```python
import torch

def _softmax(x, axis=-1):
    return torch.softmax(x, dim=axis)

def _gelu(x):
    return torch.nn.functional.gelu(x, approximate='tanh')

def _silu(x):
    return torch.nn.functional.silu(x)

def _sigmoid(x):
    return torch.sigmoid(x)

def _layernorm(x, axis=-1, eps=1e-05):
    m = x.mean(dim=axis, keepdim=True)
    v = x.var(dim=axis, keepdim=True, unbiased=False)
    return (x - m) / torch.sqrt(v + eps)

def _scatter_add(tgt, idx, src, axis=0):
    return tgt.clone().index_add_(axis, idx, src)

def _segment_sum(src, seg, n):
    out = torch.zeros((n,) + src.shape[1:], dtype=src.dtype)
    return out.index_add_(0, seg, src)

def _pad(x, pw):
    flat = tuple((v for pair in reversed(pw) for v in pair))
    return torch.nn.functional.pad(x, flat)
kernel_name = 'adaLN_cond__spectral_gfnet__glu_gated_geglu__prompt'

def setup_inputs():

    _w = lambda a: (lambda t: t.to(torch.bfloat16) if t.is_floating_point() else t)(torch.as_tensor(a))

    def _A_setup():
        B, S, D = (1, 2048, 640)
        Df = D // 2 + 1
        return {'x': _w((lambda *s: torch.randn(*s, dtype=torch.bfloat16) * 0.05)(B, S, D)), 'w_r': _w((lambda *s: torch.randn(*s, dtype=torch.bfloat16) * 3.2)(S, Df) * 0.02), 'w_i': _w((lambda *s: torch.randn(*s, dtype=torch.bfloat16) * 3.2)(S, Df) * 0.02)}
    _A_in = _A_setup()

    def _B_setup():
        B, S, Dm, Df = (1, 2048, 640, 1536)
        return {'x': _w((lambda *s: torch.randn(*s, dtype=torch.bfloat16) * 0.05)(B, S, Dm)), 'w_gate': _w((lambda *s: torch.randn(*s, dtype=torch.bfloat16) * 0.4)(Dm, Df) * Dm ** (-0.5)), 'w_up': _w((lambda *s: torch.randn(*s, dtype=torch.bfloat16) * 0.4)(Dm, Df) * Dm ** (-0.5)), 'w_down': _w((lambda *s: torch.randn(*s, dtype=torch.bfloat16) * 0.4)(Df, Dm) * Df ** (-0.5))}
    _B_in = _B_setup()
    return {'A_x': _A_in['x'], 'A_w_r': _A_in['w_r'], 'A_w_i': _A_in['w_i'], 'B_x': _B_in['x'], 'B_w_gate': _B_in['w_gate'], 'B_w_up': _B_in['w_up'], 'B_w_down': _B_in['w_down'], 'c': _w((lambda *s: torch.randn(*s, dtype=torch.bfloat16) * 0.1)(1, 640) * 8.0), 'w_mod': _w((lambda *s: torch.randn(*s, dtype=torch.bfloat16) * 0.1)(640, 6 * 640) * 640 ** (-0.5) * 8.0)}

def reference(A_x, A_w_r, A_w_i, B_x, B_w_gate, B_w_up, B_w_down, c, w_mod):

    def _A_ref(x, w_r, w_i):
        B, S, D = x.shape
        X = (lambda x, axes=(-2, -1): torch.fft.rfft2(x.float(), dim=axes))(x, axes=(-2, -1))
        W = w_r + 1j * w_i
        X = X * W
        y = (lambda x, s, axes=(-2, -1): torch.fft.irfft2(x, s=s, dim=axes).to(torch.bfloat16))(X, (S, D), axes=(-2, -1))
        return y

    def _B_ref(x, w_gate, w_up, w_down):
        g = torch.einsum('bsd,df->bsf', x, w_gate)
        u = torch.einsum('bsd,df->bsf', x, w_up)
        h = _gelu(g) * u
        return torch.einsum('bsf,fd->bsd', h, w_down)
    x = A_x
    mod = (_silu(c) @ w_mod).reshape(c.shape[0], 6, 1, -1)
    sa, ca, ga, sb, cb, gb = (mod[:, 0].clone(), mod[:, 1].clone(), mod[:, 2].clone(), mod[:, 3].clone(), mod[:, 4].clone(), mod[:, 5].clone())
    h = _layernorm(x, axis=-1) * (1 + ca) + sa
    x = x + ga * _A_ref(h, A_w_r, A_w_i)
    h = _layernorm(x, axis=-1) * (1 + cb) + sb
    x = x + gb * _B_ref(h, B_w_gate, B_w_up, B_w_down)
    return x
```

```python
import re
def regs_of(tok):
    tok = tok.strip()
    tok = tok.lstrip('-')
    m = re.match(r'^abs\((.*)\)$', tok) or re.match(r'^\|(.*)\|$', tok)
    if m: tok = m.group(1)
    m = re.match(r'^([vas])(\d+)$', tok)
    if m: return [(m.group(1), int(m.group(2)))]
    m = re.match(r'^([vas])\[(\d+):(\d+)\]$', tok)
    if m: return [(m.group(1), i) for i in range(int(m.group(2)), int(m.group(3)) + 1)]
    if tok in ('vcc', 'vcc_lo', 'vcc_hi'): return [('x', 'vcc')]
    if tok in ('exec', 'exec_lo', 'exec_hi'): return [('x', 'exec')]
    if tok == 'm0': return [('x', 'm0')]
    return []
TRANS = ('v_exp_f32', 'v_log_f32', 'v_rcp_f32', 'v_rsq_f32', 'v_sqrt_f32', 'v_sin_f32', 'v_cos_f32')
class Ins:
    def __init__(self, text):
        self.text = text
        t = text.split(';')[0].strip()
        self.label = t.endswith(':')
        self.op = t.split()[0] if t else ''
        self.rd = set(); self.wr = set()
        self.kind = 'other'; self.passes = 0; self.srcc = set(); self.srcab = set(); self.dpp = False
        self.states = 1
        if self.label or not t or t.startswith('.'):
            self.kind = 'meta'; self.states = 0; return
        rest = t[len(self.op):].strip()
        ops = [o.strip() for o in re.split(r',(?![^\[]*\])', rest)] if rest else []
        toks = []
        for o in ops:
            toks.append(o.split()[0] if o else '')
        op = self.op
        base = re.sub(r'_(e32|e64|dpp|sdwa)$', '', op)
        self.base = base
        R = lambda i: set(regs_of(toks[i])) if i < len(toks) else set()
        allr = lambda i0: set().union(*[R(i) for i in range(i0, len(toks))]) if len(toks) > i0 else set()
        if op == 's_nop':
            self.kind = 'nop'; self.states = int(toks[0], 0) + 1
        elif op.startswith('v_mfma'):
            self.kind = 'mfma'; self.wr = R(0); self.srcab = R(1) | R(2); self.srcc = R(3); self.rd = self.srcab | self.srcc
            self.passes = 8 if '32x32x16' in op else 4
        elif op.startswith('v_'):
            self.kind = 'valu'
            self.dpp = ('row_' in t) or ('quad_perm' in t) or ('wave_' in t)
            if base.startswith('v_cmp'):
                self.wr = R(0); self.rd = allr(1)
                if base.startswith('v_cmpx'): self.wr |= {('x', 'exec')}
            elif base.startswith('v_permlane') and 'swap' in base:
                self.wr = R(0) | R(1); self.rd = R(0) | R(1); self.kind = 'valu'; self.perm = True
            elif base in ('v_add_co_u32', 'v_sub_co_u32', 'v_addc_co_u32', 'v_subb_co_u32', 'v_mad_u64_u32'):
                self.wr = R(0) | R(1); self.rd = allr(2)
            else:
                self.wr = R(0); self.rd = allr(1)
                if base in ('v_fmac_f32', 'v_mac_f32', 'v_pk_fmac_f16', 'v_dot2c_f32_bf16', 'v_writelane_b32') or self.dpp: self.rd |= R(0)
                if base == 'v_cndmask_b32' and len(toks) == 3: self.rd |= {('x', 'vcc')}
            self.trans = base in TRANS
        elif op.startswith('buffer_') or op.startswith('global_') or op.startswith('flat_'):
            self.kind = 'vmem'
            islds = re.search(r'\blds\b', t) is not None or '_lds_' in op
            self.islds = islds
            if 'store' in op or 'atomic' in op:
                self.rd = allr(0); self.store = True
                self.wide = ('x3' in op or 'x4' in op)
                self.data = R(0) if op.startswith('buffer_') else R(1)
            elif islds:
                self.rd = allr(0) | {('x', 'm0')}
            else:
                self.wr = R(0); self.rd = allr(1)
                if 'd16' in op: self.rd |= R(0)
        elif op.startswith('ds_'):
            self.kind = 'ds'
            if 'write' in op: self.rd = allr(0)
            else: self.wr = R(0); self.rd = allr(1)
        elif op.startswith('s_'):
            self.kind = 'salu'
            if op.startswith('s_cmp') or op.startswith('s_cbranch') or op in ('s_branch', 's_waitcnt', 's_barrier', 's_endpgm', 's_setprio', 's_sleep', 's_setpc_b64'):
                self.rd = allr(0)
            else:
                self.wr = R(0); self.rd = allr(1)
                if 'saveexec' in op: self.wr |= {('x', 'exec')}
def need(p, c):
    n = 0
    vw = {r for r in p.wr if r[0] in 'va'}
    sw = {r for r in p.wr if r[0] in 'sx'}
    if p.kind == 'valu':
        if c.kind == 'mfma' and (vw & c.rd): n = max(n, 2)
        if c.kind == 'valu':
            if c.dpp and (vw & c.rd): n = max(n, 2)
            if getattr(c, 'perm', False) and (vw & c.rd): n = max(n, 2)
            if c.base in ('v_readfirstlane_b32', 'v_readlane_b32') and (vw & c.rd): n = max(n, 1)
            if getattr(p, 'trans', False) and (vw & (c.rd | c.wr)) : n = max(n, 1)
            if sw & c.rd: n = max(n, 4 if c.base in ('v_readlane_b32', 'v_writelane_b32') else 2)
            if ('x', 'exec') in sw:
                if c.dpp: n = max(n, 5)
                if c.base in ('v_readfirstlane_b32', 'v_readlane_b32', 'v_writelane_b32') or getattr(c, 'perm', False): n = max(n, 4)
        if c.kind == 'mfma' and ('x', 'exec') in sw: n = max(n, 4)
        if c.kind == 'vmem' and (sw & c.rd): n = max(n, 5)
        if c.kind == 'salu' and (sw & c.rd): n = max(n, 1)
        if getattr(p, 'trans', False) and c.kind in ('vmem', 'ds', 'mfma') and (vw & c.rd): n = max(n, 2)
    if p.kind == 'salu':
        if ('x', 'm0') in p.wr and ((c.kind == 'vmem' and getattr(c, 'islds', False)) or 'addtid' in c.op): n = max(n, 1)
    if p.kind == 'vmem' and getattr(p, 'store', False) and getattr(p, 'wide', False):
        if (p.data & c.wr): n = max(n, 2 if c.kind in ('valu', 'mfma') else 1)
    if p.kind == 'mfma':
        tab = {4: (6, 8, 3), 8: (10, 12, 7)}[p.passes]
        if c.kind == 'mfma':
            if c.srcab & p.wr: n = max(n, tab[1])
            if (c.srcc & p.wr) and not (c.srcc == p.wr and c.passes == p.passes): n = max(n, tab[0])
            if (c.wr & p.wr) and not (c.srcc == p.wr and c.passes == p.passes): n = max(n, tab[1])
        elif c.kind in ('valu', 'vmem', 'ds'):
            if (c.rd | c.wr) & p.wr: n = max(n, tab[1])
            if c.kind == 'valu' and (c.wr & p.srcc): n = max(n, tab[2])
    return n
class Asm:
    def __init__(self):
        self.ins = []
    def __call__(self, text):
        for line in text.strip('\n').split('\n'):
            line = line.rstrip()
            if not line.strip(): continue
            self.emit(line.strip())
    def emit(self, line):
        c = Ins(line)
        if c.kind not in ('meta',):
            dist = 0; pad = 0
            for p in reversed(self.ins):
                if dist >= 20: break
                if p.kind != 'meta':
                    n = need(p, c)
                    if n > dist: pad = max(pad, n - dist)
                dist += p.states
            while pad > 0:
                k = min(pad, 16)
                self.ins.append(Ins(f's_nop {k-1}')); pad -= k
        self.ins.append(c)
    def text(self):
        out = []
        for i in self.ins:
            out.append(i.text if (i.label or i.text.startswith('.')) else '  ' + i.text)
        return '\n'.join(out) + '\n'
def kd_block(name, vgpr, sgpr=64, agpr=0):
    acc = (vgpr + 3)//4*4
    nfv = acc + agpr if agpr else vgpr
    return f""".p2align 6
.amdhsa_kernel {name}
  .amdhsa_next_free_vgpr {nfv}
  .amdhsa_next_free_sgpr {sgpr}
  .amdhsa_accum_offset {acc}
  .amdhsa_group_segment_fixed_size 0
  .amdhsa_kernarg_size 96
  .amdhsa_user_sgpr_count 2
  .amdhsa_user_sgpr_kernarg_segment_ptr 1
  .amdhsa_system_sgpr_workgroup_id_x 1
.end_amdhsa_kernel
"""
```

```python
import sys, math, struct
sys.path.insert(0,'work')
from asmlib import *
def f2u(x): return struct.unpack('<I', struct.pack('<f', x))[0]
def fh(x): return '0x%08x' % f2u(x)
MOD=0; XF=0x100000; YF=0x400000; WP=0x700000; X1=0xA00000; H2F=0xD00000; HIDF=0x1000000; WS_SIZE=0x1800000
DPP='row_mask:0xf bank_mask:0xf'

STAMPS = False
DBG = 0x1640000
class Stamper:
    def __init__(self, a, kid): self.a=a; self.kid=kid; self.n=0
    def __call__(self):
        if not STAMPS: return
        self.a(f"s_memrealtime s[{70+2*self.n}:{71+2*self.n}]"); self.n += 1
    def dump(self, srd_ws, wgreg='s2', drain=True):
        if not STAMPS: return
        a = self.a
        if drain:
            a("s_waitcnt vmcnt(0)"); self()
        a(f"""s_waitcnt lgkmcnt(0)
s_mov_b64 exec, 1
v_lshrrev_b32 v1, 6, v0
v_lshlrev_b32 v1, 6, v1
s_lshl_b32 s68, {wgreg}, 9
s_add_u32 s68, s68, {DBG + self.kid*0x40000}""")
        for k in range(self.n):
            a(f"v_mov_b32 v2, s{70+2*k}\nbuffer_store_dword v2, v1, s[{srd_ws}:{srd_ws+3}], s68 offen offset:{4*k}")
class Asm2(Asm):
    def emit(self, line):
        if line == '@stamp': self.st(); return
        if line.startswith('@dump'):
            p = line.split(); self.st.dump(int(p[1]), p[2] if len(p) > 2 else 's2'); return
        Asm.emit(self, line)
def head(a, name):
    a.st = Stamper(a, int(name[1]))
    a(f""".globl {name}
.p2align 8
.type {name},@function
{name}:""")
def srd(a, d, p, size):
    a(f"""s_mov_b32 s{d}, s{p}
s_mov_b32 s{d+1}, s{p+1}
s_mov_b32 s{d+2}, {size}
s_mov_b32 s{d+3}, 0x00020000""")

def k0(a):
    head(a, 'k0_kernel')
    a("""
s_cmp_ge_u32 s2, 240
s_cbranch_scc1 K0_end
@stamp
s_load_dwordx4 s[4:7], s[0:1], 56
s_load_dwordx2 s[20:21], s[0:1], 88
s_and_b32 s3, s2, 7
s_mul_i32 s3, s3, 30
s_lshr_b32 s22, s2, 3
s_add_u32 s3, s3, s22
s_lshl_b32 s22, s3, 5
v_lshrrev_b32 v1, 1, v0
v_and_b32 v2, 1, v0
v_mul_u32_u24 v3, 7680, v1
v_lshl_add_u32 v3, v2, 4, v3
v_add_u32 v3, s22, v3
v_lshlrev_b32 v4, 1, v1
s_waitcnt lgkmcnt(0)
@stamp
""")
    srd(a, 8, 4, 1280)
    srd(a, 12, 6, 640*3840*2)
    srd(a, 16, 20, WS_SIZE)
    a("s_mov_b32 s23, 0")
    for i in range(5):
        a(f"buffer_load_dwordx4 v[{8+4*i}:{11+4*i}], v3, s[12:15], s23 offen")
        if i < 4: a("s_add_u32 s23, s23, 983040")
    for i in range(5):
        a(f"buffer_load_short_d16_hi v{28+i}, v4, s[8:11], 0 offen offset:{256*i}")
    a("s_waitcnt vmcnt(0)\n@stamp")
    for i in range(5):
        a(f"v_mul_f32 v{33+i}, {fh(-math.log2(math.e))}, v{28+i}")
    for i in range(5): a(f"v_exp_f32 v{33+i}, v{33+i}")
    for i in range(5): a(f"v_add_f32 v{33+i}, 1.0, v{33+i}")
    for i in range(5): a(f"v_rcp_f32 v{33+i}, v{33+i}")
    for i in range(5): a(f"v_mul_f32 v{28+i}, v{28+i}, v{33+i}")
    for i in range(5): a(f"v_cvt_pk_bf16_f32 v{28+i}, v{28+i}, v{28+i}")
    for i in range(5): a(f"v_and_b32 v{28+i}, 0xffff0000, v{28+i}")
    for i in range(5):
        for j in range(4):
            a(f"v_lshlrev_b32 v{33}, 16, v{8+4*i+j}")
            a(f"v_and_b32 v{34}, 0xffff0000, v{8+4*i+j}")
            if i == 0:
                a(f"v_mul_f32 v{40+2*j}, v33, v28")
                a(f"v_mul_f32 v{41+2*j}, v34, v28")
            else:
                a(f"v_fmac_f32 v{40+2*j}, v33, v{28+i}")
                a(f"v_fmac_f32 v{41+2*j}, v34, v{28+i}")
    for mode in ('quad_perm:[2,3,0,1]', 'row_ror:4', 'row_ror:8'):
        for j in range(8):
            a(f"v_add_f32_dpp v{40+j}, v{40+j}, v{40+j} {mode} {DPP}")
    a("""
v_and_b32 v5, 15, v0
v_lshrrev_b32 v6, 4, v0
v_lshlrev_b32 v7, 6, v6
v_lshl_add_u32 v7, v2, 5, v7
v_cmp_gt_u32 vcc, 2, v5
s_and_saveexec_b64 s[24:25], vcc
ds_write_b128 v7, v[40:43]
ds_write_b128 v7, v[44:47] offset:16
s_mov_b64 exec, s[24:25]
s_waitcnt lgkmcnt(0)
s_barrier
v_readfirstlane_b32 s24, v0
s_cmp_ge_u32 s24, 64
s_cbranch_scc1 K0_end
v_lshlrev_b32 v7, 8, v6
v_lshl_add_u32 v7, v5, 2, v7
ds_read_b32 v8, v7
ds_read_b32 v9, v7 offset:64
ds_read_b32 v10, v7 offset:128
ds_read_b32 v11, v7 offset:192
s_waitcnt lgkmcnt(0)
v_add_f32 v8, v8, v9
v_add_f32 v10, v10, v11
v_add_f32 v8, v8, v10
v_mov_b32 v9, v8
v_permlane16_swap_b32 v8, v9
v_add_f32 v8, v8, v9
v_mov_b32 v9, v8
v_permlane32_swap_b32 v8, v9
v_add_f32 v8, v8, v9
v_cvt_pk_bf16_f32 v8, v8, v8
v_and_b32 v8, 0xffff0000, v8
s_sub_u32 s24, s3, 40
s_cmp_lt_u32 s24, 40
s_cselect_b32 s25, 1, 0
s_sub_u32 s24, s3, 160
s_cmp_lt_u32 s24, 40
s_cselect_b32 s25, 1, s25
s_cmp_eq_u32 s25, 0
s_cbranch_scc1 K0_st
v_add_f32 v8, 1.0, v8
v_cvt_pk_bf16_f32 v8, v8, v8
v_and_b32 v8, 0xffff0000, v8
K0_st:
s_lshl_b32 s22, s3, 6
v_lshlrev_b32 v7, 2, v0
v_cmp_gt_u32 vcc, 16, v0
s_and_saveexec_b64 s[24:25], vcc
buffer_store_dword v8, v7, s[16:19], s22 offen
@dump 16
K0_end:
s_endpgm
""")
    return ('k0_kernel', (240,1,1), (256,1,1), 1024, kd_block('k0_kernel', 48, 96))

C1,C2,S1,S2 = math.cos(2*math.pi/5),math.cos(4*math.pi/5),math.sin(2*math.pi/5),math.sin(4*math.pi/5)

def rot_offsets(a, vL, vbase, vd, tmp):
    a(f"""v_lshlrev_b32 v{tmp}, 1, v{vL}
v_mul_u32_u24 v{tmp+1}, 52429, v{tmp}
v_lshrrev_b32 v{tmp+1}, 18, v{tmp+1}
v_mul_u32_u24 v{tmp+1}, 5, v{tmp+1}
v_sub_u32 v{tmp}, v{tmp}, v{tmp+1}
v_lshlrev_b32 v{tmp}, 8, v{tmp}""")
    for j in range(5):
        if j == 0:
            a(f"v_add_u32 v{vd}, v{tmp}, v{vbase}")
        else:
            a(f"""v_add_u32 v{tmp+1}, {256*j}, v{tmp}
v_subrev_u32 v{tmp+2}, 1280, v{tmp+1}
v_min_u32 v{tmp+1}, v{tmp+1}, v{tmp+2}
v_add_u32 v{vd+j}, v{tmp+1}, v{vbase}""")

def col_slots(a, sW, vN, vG, out, tmp):
    a(f"""v_and_b32 v{tmp}, 7, v{vN}
s_lshl_b32 s40, s{sW}, 3
v_add_u32 v{out}, s40, v{tmp}
v_cmp_eq_u32 vcc, 0, v{out}
v_cndmask_b32 v{out+2}, 1.0, 0, vcc
v_cmp_lt_u32 s[42:43], 7, v{vN}
s_and_b64 s[44:45], s[42:43], vcc
s_andn2_b64 s[42:43], s[42:43], vcc
v_cndmask_b32 v{out}, v{out}, 64, s[44:45]
v_cndmask_b32 v{out+1}, 0, -1, s[42:43]
v_sub_u32 v{tmp}, 128, v{out}
v_cndmask_b32 v{tmp}, v{out}, v{tmp}, s[42:43]
v_mul_u32_u24 v{tmp}, 5, v{tmp}
v_lshlrev_b32 v{tmp+3}, 3, v{vG}""")
    for k in range(2):
        a(f"""v_add_u32 v{tmp+1}, {128*(k+1)}, v{tmp}
v_subrev_u32 v{tmp+2}, 640, v{tmp+1}
v_min_u32 v{tmp+1}, v{tmp+1}, v{tmp+2}
v_sub_u32 v{tmp+2}, 640, v{tmp+1}
v_cmp_lt_u32 vcc, v{tmp+2}, v{tmp+1}
v_min_u32 v{tmp+1}, v{tmp+1}, v{tmp+2}
v_mov_b32 v{tmp+2}, 0x80008000
v_cndmask_b32 v{out+5+k}, 0, v{tmp+2}, vcc
v_lshl_add_u32 v{out+3+k}, v{tmp+1}, 13, v{tmp+3}""")
    a(f"""v_mul_u32_u24 v{tmp+1}, 40960, v{out}
v_and_b32 v{tmp+2}, 32, v{out+1}
v_add3_u32 v{out+7}, v{tmp+1}, v{tmp+2}, v{tmp+3}""")

def allreduce32(a, v, t):
    for mode in ('quad_perm:[1,0,3,2]', 'quad_perm:[2,3,0,1]', 'row_ror:4', 'row_ror:8'):
        a(f"v_add_f32_dpp v{v}, v{v}, v{v} {mode} {DPP}")
    a(f"""v_mov_b32 v{t}, v{v}
v_permlane16_swap_b32 v{v}, v{t}
v_add_f32 v{v}, v{v}, v{t}""")

def k1(a):
    head(a, 'k1_kernel')
    a("""
s_cmp_ge_u32 s2, 384
s_cbranch_scc1 K1_end
@stamp
s_mov_b32 s69, s2
s_load_dwordx2 s[4:5], s[0:1], 0
s_load_dwordx4 s[24:27], s[0:1], 8
s_load_dwordx2 s[6:7], s[0:1], 88
s_cmp_ge_u32 s2, 128
s_cbranch_scc1 K1_wprep
s_and_b32 s3, s2, 7
s_lshr_b32 s20, s2, 3
s_lshl_b32 s3, s3, 2
s_lshr_b32 s21, s20, 2
s_add_u32 s3, s3, s21
s_and_b32 s20, s20, 3
v_lshrrev_b32 v1, 5, v0
v_and_b32 v2, 31, v0
v_lshlrev_b32 v3, 3, v2
""")
    rot_offsets(a, 2, 3, 4, 9)
    a("""
s_lshl_b32 s21, s20, 9
s_add_u32 s21, s21, s3
s_mul_i32 s21, s21, 1280
v_mul_u32_u24 v9, 40960, v1
s_waitcnt lgkmcnt(0)
""")
    srd(a, 8, 4, 2048*1280)
    srd(a, 12, 6, WS_SIZE)
    for j in range(5):
        a(f"v_add_u32 v{10+j}, v9, v{4+j}")
        a(f"buffer_load_dwordx2 v[{16+2*j}:{17+2*j}], v{10+j}, s[8:11], s21 offen")
    for j in range(5):
        a(f"v_lshlrev_b32 v{10+j}, 1, v{4+j}")
        a(f"buffer_load_dwordx4 v[{28+4*j}:{31+4*j}], v{10+j}, s[12:15], 0 offen offset:2560")
        a(f"buffer_load_dwordx4 v[{48+4*j}:{51+4*j}], v{10+j}, s[12:15], 0 offen")
    a("""
v_lshrrev_b32 v9, 6, v0
v_and_b32 v10, 15, v0
v_readfirstlane_b32 s22, v9
v_bfe_u32 v11, v0, 4, 2
""")
    col_slots(a, 22, 10, 11, 88, 12)
    a(f"""
v_cvt_f32_u32 v12, v88
v_mul_f32 v12, {fh(1/128)}, v12
v_cvt_f32_u32 v13, v11
v_mul_f32 v13, 8.0, v13
v_and_b32 v14, {fh(0.25)}, v89
v_fma_f32 v13, v13, v12, -v14
v_mul_f32 v14, {fh(25.0)}, v12
""".replace('8.0', fh(8.0)))
    for t in range(4):
        for jj in range(4):
            a(f"""v_cos_f32 v68, v13
v_add_f32 v13, v13, v12
v_cos_f32 v69, v13
v_add_f32 v13, v13, v{14 if jj == 3 else 12}
v_cvt_pk_bf16_f32 v{96+4*t+jj}, v68, v69""")
    a("""
v_lshrrev_b32 v12, 1, v2
v_xor_b32 v12, v12, v1
v_lshlrev_b32 v12, 4, v12
v_and_b32 v13, 1, v2
v_lshl_add_u32 v12, v13, 3, v12
v_lshl_add_u32 v15, v1, 8, v12
v_xor_b32 v12, v11, v10
""")
    for t in range(4):
        a(f"""v_xor_b32 v13, {4*t}, v12
v_lshlrev_b32 v13, 4, v13
v_lshl_add_u32 v{112+t}, v10, 8, v13""")
    a(f"""
s_lshl_b32 s23, s3, 8
s_lshl_b32 s21, s20, 6
s_add_u32 s23, s23, s21
s_add_u32 s23, s23, {XF}
@stamp
s_waitcnt vmcnt(10)
@stamp
""")
    for j in range(5):
        for hlf in range(2):
            a(f"v_lshlrev_b32 v{68+4*j+2*hlf}, 16, v{16+2*j+hlf}")
            a(f"v_and_b32 v{69+4*j+2*hlf}, 0xffff0000, v{16+2*j+hlf}")
    a("v_add_f32 v12, v68, v69\nv_add_f32 v13, v70, v71")
    for k in range(4, 20, 2):
        a(f"v_add_f32 v12, v12, v{68+k}\nv_add_f32 v13, v13, v{69+k}")
    a("v_add_f32 v12, v12, v13")
    allreduce32(a, 12, 13)
    a(f"v_mul_f32 v12, {fh(1/640)}, v12")
    for k in range(20): a(f"v_sub_f32 v{68+k}, v{68+k}, v12")
    a("v_mul_f32 v12, v68, v68\nv_mul_f32 v13, v69, v69")
    for k in range(2, 20, 2):
        a(f"v_fmac_f32 v12, v{68+k}, v{68+k}\nv_fmac_f32 v13, v{69+k}, v{69+k}")
    a("v_add_f32 v12, v12, v13")
    allreduce32(a, 12, 13)
    a(f"""v_mov_b32 v13, {fh(1e-5)}
v_fmac_f32 v13, {fh(1/640)}, v12
v_rsq_f32 v12, v13
s_waitcnt vmcnt(0)""")
    for k in range(20): a(f"v_mul_f32 v{68+k}, v{68+k}, v12")
    for k in range(20): a(f"v_fma_f32 v{68+k}, v{68+k}, v{28+k}, v{48+k}")
    a(f"""s_mov_b32 s30, {fh(C1)}
s_mov_b32 s31, {fh(C2)}
s_mov_b32 s32, {fh(-S1)}
s_mov_b32 s33, {fh(-S2)}
s_mov_b32 s34, {fh(S1)}""")
    for i in range(4):
        h = {}
        for j in range(5): h[(i+3*j) % 5] = 68+4*j+i
        t1,t2,t3,t4 = 48+4*i, 49+4*i, 50+4*i, 51+4*i
        a(f"""v_add_f32 v{t1}, v{h[1]}, v{h[4]}
v_add_f32 v{t2}, v{h[2]}, v{h[3]}
v_sub_f32 v{t3}, v{h[1]}, v{h[4]}
v_sub_f32 v{t4}, v{h[2]}, v{h[3]}
v_add3_f32 v{28+i}, v{h[0]}, v{t1}, v{t2}
v_fma_f32 v{32+i}, s30, v{t1}, v{h[0]}
v_fma_f32 v{40+i}, s31, v{t1}, v{h[0]}
v_mul_f32 v{36+i}, s32, v{t3}
v_mul_f32 v{44+i}, s33, v{t3}
v_fmac_f32 v{32+i}, s31, v{t2}
v_fmac_f32 v{40+i}, s30, v{t2}
v_fmac_f32 v{36+i}, s33, v{t4}
v_fmac_f32 v{44+i}, s34, v{t4}""".replace(f"v_add3_f32 v{28+i}, v{h[0]}, v{t1}, v{t2}", f"v_add_f32 v{28+i}, v{h[0]}, v{t1}\nv_add_f32 v{28+i}, v{28+i}, v{t2}"))
    for c in range(5):
        a(f"""v_cvt_pk_bf16_f32 v{16+2*c}, v{28+4*c}, v{29+4*c}
v_cvt_pk_bf16_f32 v{17+2*c}, v{30+4*c}, v{31+4*c}
ds_write_b64 v15, v[{16+2*c}:{17+2*c}] offset:{4096*c}""")
    a("@stamp\ns_waitcnt lgkmcnt(0)\ns_barrier\n@stamp")
    def afr(c, t): return 16 + 4*((c % 3)*4 + t) if c < 3 else 64 + 4*((c-3)*4 + t) - (0)
    def afr(c, t): return (16 + 16*c + 4*t) if c < 4 else (136 + 4*t)
    for c in range(5):
        for t in range(4):
            a(f"ds_read_b128 v[{afr(c,t)}:{afr(c,t)+3}], v{112+t} offset:{4096*c}")
    n = 20
    for c in range(5):
        for t in range(4):
            n -= 1
            a(f"s_waitcnt lgkmcnt({min(n,15)})")
            src = '0' if t == 0 else f"v[{116+4*c}:{119+4*c}]"
            a(f"v_mfma_f32_16x16x32_bf16 v[{116+4*c}:{119+4*c}], v[{afr(c,t)}:{afr(c,t)+3}], v[{96+4*t}:{99+4*t}], {src}")
    a(f"""v_and_b32 v12, 0x80008000, v89
v_cvt_pk_bf16_f32 v16, v116, v117
v_cvt_pk_bf16_f32 v17, v118, v119
v_xor_b32 v16, v16, v12
v_xor_b32 v17, v17, v12
buffer_store_dwordx2 v[16:17], v95, s[12:15], s23 offen
v_and_b32 v13, 32, v89""")
    for k in range(2):
        r, im = 120+8*k, 124+8*k
        for i in range(4):
            a(f"v_mul_f32 v{20+i}, v90, v{r+i}\nv_mul_f32 v{24+i}, v90, v{im+i}")
        for i in range(4):
            a(f"v_add_f32_dpp v{r+i}, v{24+i}, v{r+i} row_ror:8 {DPP}")
            a(f"v_subrev_f32_dpp v{im+i}, v{20+i}, v{im+i} row_ror:8 {DPP}")
        o = 28+8*k
        a(f"""v_and_b32 v14, v89, v{93+k}
v_bfi_b32 v18, v89, v12, v{93+k}
v_add_u32 v19, v{91+k}, v13
v_cvt_pk_bf16_f32 v{o}, v{r}, v{r+1}
v_cvt_pk_bf16_f32 v{o+1}, v{r+2}, v{r+3}
v_cvt_pk_bf16_f32 v{o+2}, v{im}, v{im+1}
v_cvt_pk_bf16_f32 v{o+3}, v{im+2}, v{im+3}
v_xor_b32 v{o}, v{o}, v14
v_xor_b32 v{o+1}, v{o+1}, v14
v_xor_b32 v{o+2}, v{o+2}, v18
v_xor_b32 v{o+3}, v{o+3}, v18
buffer_store_dwordx2 v[{o}:{o+1}], v19, s[12:15], s23 offen
v_xor_b32 v19, 32, v19
buffer_store_dwordx2 v[{o+2}:{o+3}], v19, s[12:15], s23 offen""")
    a("@stamp\n@dump 12\ns_endpgm")
    a.st.n = 1
    a(f"""
K1_wprep:
s_sub_u32 s2, s2, 128
v_cmp_gt_u32 vcc, 321, v0
s_and_saveexec_b64 s[30:31], vcc
s_cbranch_execz K1_end
s_and_b32 s3, s2, 7
s_lshr_b32 s20, s2, 3
s_and_b32 s21, s20, 3
s_lshl_b32 s3, s3, 2
s_add_u32 s3, s3, s21
s_bfe_u32 s21, s20, 0x10002
s_lshl_b32 s21, s21, 5
s_add_u32 s3, s3, s21
s_lshr_b32 s20, s20, 3
s_lshl_b32 s21, s20, 8
s_add_u32 s21, s21, s3
s_mul_i32 s21, s21, 642
v_lshlrev_b32 v1, 1, v0
s_waitcnt lgkmcnt(0)
""")
    srd(a, 8, 24, 2048*642)
    srd(a, 16, 26, 2048*642)
    srd(a, 12, 6, WS_SIZE)
    for mt in range(2):
        for i in range(4):
            a(f"buffer_load_ushort v{4+4*mt+i}, v1, s[8:11], s21 offen")
            a(f"buffer_load_short_d16_hi v{12+4*mt+i}, v1, s[16:19], s21 offen")
            if (mt, i) != (1, 3): a(f"s_add_u32 s21, s21, {41088 if i < 3 else 41088*13}")
    a(f"""
s_lshr_b32 s21, s3, 4
s_lshl_b32 s21, s21, 11
s_and_b32 s22, s3, 15
s_lshl_b32 s23, s20, 4
s_add_u32 s22, s22, s23
s_lshl_b32 s22, s22, 5
s_add_u32 s21, s21, s22
s_add_u32 s21, s21, {WP}
v_lshlrev_b32 v1, 13, v0
@stamp
s_waitcnt vmcnt(0)
@stamp
""")
    for k in range(8): a(f"v_or_b32 v{4+k}, v{4+k}, v{12+k}")
    a("""buffer_store_dwordx4 v[4:7], v1, s[12:15], s21 offen
buffer_store_dwordx4 v[8:11], v1, s[12:15], s21 offen offset:16
@stamp
@dump 12 s69
K1_end:
s_endpgm""")
    return ('k1_kernel', (384,1,1), (512,1,1), 20480, kd_block('k1_kernel', 152, 96))

def cmul(a, r, i, tr, ti, t0, conj=False):
    a(f"""v_mul_f32 v{t0}, v{i}, v{ti}
v_mul_f32 v{i}, v{i}, v{tr}
v_fmac_f32 v{i}, v{r}, v{ti}
v_fma_f32 v{r}, v{r}, v{tr}, -v{t0}""")
def k2(a):
    head(a, 'k2_kernel')
    a(f"""
s_cmp_ge_u32 s2, 321
s_cbranch_scc1 K2_end
@stamp
s_load_dwordx2 s[6:7], s[0:1], 88
v_and_b32 v1, 15, v0
v_bfe_u32 v2, v0, 4, 2
v_lshrrev_b32 v3, 6, v0
v_lshlrev_b32 v4, 8, v1
v_readfirstlane_b32 s3, v3
v_lshrrev_b32 v5, 1, v2
v_lshl_add_u32 v4, v5, 6, v4
v_and_b32 v5, 1, v2
v_lshl_add_u32 v4, v5, 4, v4
v_lshlrev_b32 v5, 5, v0
s_lshl_b32 s20, s2, 13
s_add_u32 s21, s20, {XF}
s_add_u32 s22, s21, 4096
s_add_u32 s23, s20, {WP}
s_waitcnt lgkmcnt(0)
@stamp
""")
    srd(a, 8, 6, WS_SIZE)
    D = lambda mt,t,p: 16+16*mt+8*t+4*p
    for mt in range(2):
        for t in range(2):
            for p in range(2):
                a(f"buffer_load_dwordx4 v[{D(mt,t,p)}:{D(mt,t,p)+3}], v4, s[8:11], s{21+mt} offen offset:{128*t+32*p}")
    a("buffer_load_dwordx4 v[48:51], v5, s[8:11], s23 offen\nbuffer_load_dwordx4 v[52:55], v5, s[8:11], s23 offen offset:16")
    a(f"""
v_lshl_add_u32 v6, v3, 4, v1
v_cvt_f32_u32 v6, v6
v_cvt_f32_u32 v7, v2
v_cvt_f32_u32 v8, v1
v_mul_f32 v9, {fh(1/64)}, v6
v_mul_f32 v10, {fh(8.0)}, v7
v_mul_f32 v10, v10, v9
v_mul_f32 v11, {fh(25.0)}, v9
""")
    def gen(R, I, N, jj, cur, step1, step2):
        a(f"""v_cos_f32 v12, v{cur}
v_sin_f32 v13, v{cur}
v_add_f32 v{cur}, v{cur}, v{step1}
v_cos_f32 v14, v{cur}
v_sin_f32 v15, v{cur}
v_add_f32 v{cur}, v{cur}, v{step2}
v_cvt_pk_bf16_f32 v{R+jj}, v12, v14
v_cvt_pk_bf16_f32 v{I+jj}, -v13, -v15
v_cvt_pk_bf16_f32 v{N+jj}, v13, v15""")
    for t in range(2):
        for jj in range(4):
            gen(56+4*t, 64+4*t, 72+4*t, jj, 10, 9, 11 if jj == 3 else 9)
    for mt in range(2):
        a(f"""v_add_f32 v9, {fh(16.0*mt)}, v8
v_mul_f32 v9, {fh(1/32)}, v9
v_mul_f32 v10, 4.0, v7
v_mul_f32 v10, v10, v9
v_mul_f32 v11, {fh(13.0)}, v9""")
        for jj in range(4):
            gen(80+4*mt, 88+4*mt, 96+4*mt, jj, 10, 9, 11 if jj == 1 else 9)
    a(f"""v_mul_f32 v9, {fh(-1/2048)}, v6
v_mul_f32 v10, 4.0, v7
v_mul_f32 v10, v10, v9
v_mul_f32 v11, {fh(13.0)}, v9""")
    for k in range(8):
        a(f"v_cos_f32 v{104+k}, v10\nv_sin_f32 v{112+k}, v10")
        if k < 7: a(f"v_add_f32 v10, v10, v{11 if k == 3 else 9}")
    a(f"""s_lshl_b32 s24, s3, 2
v_add_u32 v12, s24, v2
v_cvt_f32_u32 v12, v12
v_mul_f32 v12, 4.0, v12
s_mov_b32 s25, {fh(2.0/(2048*640))}
s_cmp_eq_u32 s2, 0
s_cselect_b32 s26, 1, 0
s_cmp_eq_u32 s2, 320
s_cselect_b32 s26, 1, s26
s_cmp_eq_u32 s26, 1
s_cselect_b32 s25, {fh(1.0/(2048*640))}, s25""")
    for nt in range(2):
        a(f"""v_add_f32 v9, {fh(16.0*nt)}, v8
v_mul_f32 v9, {fh(1/2048)}, v9
v_mul_f32 v10, v12, v9""")
        for i in range(4):
            k = 4*nt+i
            a(f"v_cos_f32 v{120+k}, v10\nv_sin_f32 v{128+k}, v10")
            if i < 3: a("v_add_f32 v10, v10, v9")
    for k in range(16): a(f"v_mul_f32 v{120+k}, s25, v{120+k}")
    a(f"""v_lshrrev_b32 v9, 1, v1
v_lshrrev_b32 v10, 1, v2
v_lshl_add_u32 v10, v3, 1, v10
v_xor_b32 v10, v10, v9
v_lshlrev_b32 v10, 4, v10
v_and_b32 v11, 1, v2
v_lshl_add_u32 v10, v11, 3, v10
v_lshl_add_u32 v6, v1, 7, v10
v_xor_b32 v10, v2, v9
v_lshlrev_b32 v10, 4, v10
v_lshl_add_u32 v7, v1, 7, v10
v_xor_b32 v8, 64, v7
v_lshlrev_b32 v5, 8, v1
v_lshl_add_u32 v5, v3, 6, v5
v_lshl_add_u32 v5, v2, 3, v5
s_add_u32 s21, s20, {YF}
s_add_u32 s22, s21, 4096
@stamp
s_waitcnt vmcnt(2)
@stamp
s_cmp_eq_u32 s26, 0
s_cbranch_scc1 K2_go""")
    for mt in range(2):
        for t in range(2):
            for j in range(4): a(f"v_mov_b32 v{D(mt,t,1)+j}, 0")
    a("K2_go:\ns_nop 1")
    def mf(d, A, B, first): a(f"v_mfma_f32_16x16x32_bf16 v[{d}:{d+3}], v[{A}:{A+3}], v[{B}:{B+3}], {'0' if first else f'v[{d}:{d+3}]'}")
    for t in range(2):
        for mt in range(2):
            mf(136+8*mt, D(mt,t,0), 56+4*t, t == 0)
            mf(140+8*mt, D(mt,t,0), 64+4*t, t == 0)
        for mt in range(2):
            mf(136+8*mt, D(mt,t,1), 72+4*t, False)
            mf(140+8*mt, D(mt,t,1), 56+4*t, False)
    a("s_waitcnt vmcnt(0)")
    for k in range(8):
        a(f"v_lshlrev_b32 v{32+k}, 16, v{48+k}\nv_and_b32 v{40+k}, 0xffff0000, v{48+k}")
    def tw_pack(tr, ti, Br, Bi):
        for blk in range(2):
            for i in range(4):
                cmul(a, 136+8*blk+i, 140+8*blk+i, tr+4*blk+i, ti+4*blk+i, 12+i)
        for blk in range(2):
            for hh in range(2):
                a(f"v_cvt_pk_bf16_f32 v{Br+2*blk+hh}, v{136+8*blk+2*hh}, v{137+8*blk+2*hh}")
                a(f"v_cvt_pk_bf16_f32 v{Bi+2*blk+hh}, v{140+8*blk+2*hh}, v{141+8*blk+2*hh}")
    tw_pack(104, 112, 16, 20)
    for mt in range(2):
        mf(136+8*mt, 80+4*mt, 16, True)
        mf(140+8*mt, 88+4*mt, 16, True)
    for mt in range(2):
        mf(136+8*mt, 96+4*mt, 20, False)
        mf(140+8*mt, 80+4*mt, 20, False)
    tw_pack(32, 40, 24, 28)
    for nt in range(2):
        mf(136+8*nt, 24, 80+4*nt, True)
        mf(140+8*nt, 28, 80+4*nt, True)
    for nt in range(2):
        mf(136+8*nt, 28, 88+4*nt, False)
        mf(140+8*nt, 24, 96+4*nt, False)
    tw_pack(120, 128, 16, 20)
    for nt in range(2):
        a(f"ds_write_b64 v6, v[{16+2*nt}:{17+2*nt}] offset:{2048*nt}")
        a(f"ds_write_b64 v6, v[{20+2*nt}:{21+2*nt}] offset:{4096+2048*nt}")
    a("@stamp\ns_waitcnt lgkmcnt(0)\ns_barrier\n@stamp")
    for t in range(2):
        for nt in range(2):
            for p in range(2):
                a(f"ds_read_b128 v[{D(nt,t,p)}:{D(nt,t,p)+3}], v{7+t} offset:{4096*p+2048*nt}")
    for t in range(2):
        a(f"s_waitcnt lgkmcnt({4 if t == 0 else 0})")
        for nt in range(2):
            mf(136+8*nt, 56+4*t, D(nt,t,0), t == 0)
            mf(140+8*nt, 56+4*t, D(nt,t,1), t == 0)
        for nt in range(2):
            mf(136+8*nt, 64+4*t, D(nt,t,1), False)
            mf(140+8*nt, 72+4*t, D(nt,t,0), False)
    for nt in range(2):
        for p in range(2):
            o = 48+4*nt+2*p; s = 136+8*nt+4*p
            a(f"""v_cvt_pk_bf16_f32 v{o}, v{s}, v{s+1}
v_cvt_pk_bf16_f32 v{o+1}, v{s+2}, v{s+3}
buffer_store_dwordx2 v[{o}:{o+1}], v5, s[8:11], s{21+nt} offen offset:{32*p}""")
    a("@stamp\n@dump 8\nK2_end:\ns_endpgm")
    return ('k2_kernel', (321,1,1), (256,1,1), 8192, kd_block('k2_kernel', 152, 96))

def red_g(a, v, t):
    a(f"""v_mov_b32 v{t}, v{v}
v_permlane16_swap_b32 v{v}, v{t}
v_add_f32 v{v}, v{v}, v{t}
v_mov_b32 v{t}, v{v}
v_permlane32_swap_b32 v{v}, v{t}
v_add_f32 v{v}, v{v}, v{t}""")
def k3(a):
    head(a, 'k3_kernel')
    a(f"""
s_cmp_ge_u32 s2, 128
s_cbranch_scc1 K3_end
@stamp
s_load_dwordx2 s[4:5], s[0:1], 0
s_load_dwordx2 s[6:7], s[0:1], 88
s_and_b32 s3, s2, 7
s_lshr_b32 s20, s2, 3
s_lshl_b32 s3, s3, 2
s_lshr_b32 s21, s20, 2
s_add_u32 s3, s3, s21
s_and_b32 s20, s20, 3
v_lshrrev_b32 v9, 6, v0
v_and_b32 v1, 15, v0
v_readfirstlane_b32 s22, v9
v_bfe_u32 v2, v0, 4, 2
""")
    col_slots(a, 22, 1, 2, 88, 12)
    a(f"""
s_lshl_b32 s23, s3, 8
s_lshl_b32 s21, s20, 6
s_add_u32 s23, s23, s21
s_add_u32 s23, s23, {YF}
s_waitcnt lgkmcnt(0)
""")
    srd(a, 8, 4, 2048*1280)
    srd(a, 12, 6, WS_SIZE)
    a("buffer_load_dwordx2 v[16:17], v95, s[12:15], s23 offen")
    for k in range(2):
        a(f"buffer_load_dwordx2 v[{18+4*k}:{19+4*k}], v{91+k}, s[12:15], s23 offen")
        a(f"buffer_load_dwordx2 v[{20+4*k}:{21+4*k}], v{91+k}, s[12:15], s23 offen offset:32")
    a("v_lshrrev_b32 v3, 4, v0\nv_lshlrev_b32 v10, 3, v3")
    rot_offsets(a, 3, 10, 4, 12)
    a("""
s_lshl_b32 s21, s20, 9
s_add_u32 s21, s21, s3
s_mul_i32 s21, s21, 1280
v_mul_u32_u24 v9, 40960, v1
""")
    for j in range(5):
        a(f"v_add_u32 v10, v9, v{4+j}")
        a(f"buffer_load_dwordx2 v[{26+2*j}:{27+2*j}], v10, s[8:11], s21 offen")
    a("s_movk_i32 s24, 5120\ns_movk_i32 s25, 7680\ns_movk_i32 s26, 10240")
    for j in range(5):
        a(f"v_lshlrev_b32 v10, 1, v{4+j}")
        a(f"buffer_load_dwordx4 v[{116+4*j}:{119+4*j}], v10, s[12:15], s24 offen")
        a(f"buffer_load_dwordx4 v[{136+4*j}:{139+4*j}], v10, s[12:15], s26 offen")
        a(f"buffer_load_dwordx4 v[{156+4*j}:{159+4*j}], v10, s[12:15], s25 offen")
    a(f"""
s_lshl_b32 s27, s22, 4
v_add_u32 v12, s27, v1
v_cvt_f32_u32 v12, v12
v_mul_f32 v12, {fh(1/128)}, v12
v_and_b32 v13, 1, v2
v_cvt_f32_u32 v13, v13
v_mul_f32 v13, 4.0, v13
v_lshrrev_b32 v14, 1, v2
v_cvt_f32_u32 v14, v14
v_mul_f32 v14, {fh(0.25)}, v14
v_fma_f32 v13, v13, v12, v14
v_mul_f32 v14, {fh(5.0)}, v12
v_mul_f32 v15, {fh(64.0)}, v12
v_cmp_eq_u32 vcc, 2, v2
v_cndmask_b32 v15, v13, v15, vcc
""")
    for t in range(4):
        for jj in range(4):
            a(f"""v_cos_f32 v68, v{15 if (t, jj) == (0, 0) else 13}
v_add_f32 v13, v13, v12
v_cos_f32 v69, v13
v_add_f32 v13, v13, v{14 if jj & 1 else 12}
v_cvt_pk_bf16_f32 v{96+4*t+jj}, v68, v69""")
    a(f"""
v_lshlrev_b32 v10, 5, v1
v_lshl_add_u32 v10, v2, 3, v10
s_lshl_b32 s27, s22, 9
v_add_u32 v10, s27, v10
v_and_b32 v11, 4096, v89
v_add_u32 v11, v11, v10
v_xor_b32 v12, 4096, v11
v_and_b32 v13, 63, v0
v_lshlrev_b32 v13, 3, v13
v_and_b32 v14, 0x80000000, v89
v_xor_b32 v14, v14, v90
v_and_b32 v15, 0x80008000, v89
@stamp
s_waitcnt vmcnt(20)
@stamp
ds_write_b64 v10, v[16:17]
""")
    for k in range(2):
        re, im = 18+4*k, 20+4*k
        a(f"v_xor_b32 v{im}, v{im}, v{93+k}\nv_xor_b32 v{im+1}, v{im+1}, v{93+k}")
        for hh in range(2):
            a(f"""v_lshlrev_b32 v{36+2*hh}, 16, v{re+hh}
v_and_b32 v{37+2*hh}, 0xffff0000, v{re+hh}
v_lshlrev_b32 v{40+2*hh}, 16, v{im+hh}
v_and_b32 v{41+2*hh}, 0xffff0000, v{im+hh}
v_xor_b32 v{im+hh}, v{im+hh}, v15""")
        for hh in range(2):
            a(f"""v_lshlrev_b32 v{48+2*hh}, 16, v{im+hh}
v_and_b32 v{49+2*hh}, 0xffff0000, v{im+hh}""")
        for i in range(4):
            a(f"v_mov_b32 v{44+i}, v{36+i}")
        for i in range(4):
            a(f"v_fmac_f32_dpp v{44+i}, v{36+i}, v14 row_ror:8 {DPP}")
            a(f"v_fmac_f32_dpp v{48+i}, v{40+i}, v90 row_ror:8 {DPP}")
        a(f"""v_cvt_pk_bf16_f32 v{52+4*k}, v44, v45
v_cvt_pk_bf16_f32 v{53+4*k}, v46, v47
v_cvt_pk_bf16_f32 v{54+4*k}, v48, v49
v_cvt_pk_bf16_f32 v{55+4*k}, v50, v51
ds_write_b64 v11, v[{52+4*k}:{53+4*k}] offset:{4096+8192*k}
ds_write_b64 v12, v[{54+4*k}:{55+4*k}] offset:{4096+8192*k}""")
    a("s_waitcnt lgkmcnt(0)\ns_barrier\n@stamp")
    def rd(c):
        b = 36 + 16*(c & 1)
        for t in range(4):
            for x in range(2):
                a(f"ds_read_b64_tr_b16 v[{b+4*t+2*x}:{b+4*t+2*x+1}], v13 offset:{4096*c+1024*t+512*x}")
    rd(0)
    for c in range(5):
        if c == 0: rd(1)
        b = 36 + 16*(c & 1)
        a(f"s_waitcnt lgkmcnt({8 if c < 4 else 0})")
        for t in range(4):
            src = '0' if t == 0 else f"v[{68+4*c}:{71+4*c}]"
            a(f"v_mfma_f32_16x16x32_bf16 v[{68+4*c}:{71+4*c}], v[{96+4*t}:{99+4*t}], v[{b+4*t}:{b+4*t+3}], {src}")
        if c + 2 < 5: rd(c+2)
    a("s_waitcnt vmcnt(15)")
    for j in range(5):
        for hh in range(2):
            a(f"v_lshlrev_b32 v{96+4*j+2*hh}, 16, v{26+2*j+hh}\nv_and_b32 v{97+4*j+2*hh}, 0xffff0000, v{26+2*j+hh}")
    a(f"""s_mov_b32 s30, {fh(C1)}
s_mov_b32 s31, {fh(C2)}
s_mov_b32 s32, {fh(S1)}
s_mov_b32 s33, {fh(S2)}
s_mov_b32 s34, {fh(-S1)}
@stamp
s_waitcnt vmcnt(0)
@stamp""")
    for i in range(4):
        sl = {}
        for j in range(5): sl[(i+3*j) % 5] = 4*j+i
        A,B,Cc,Dd,E = 36,37,38,39,40
        a(f"""v_add_f32 v{E}, v{68+i}, v{72+i}
v_fma_f32 v{A}, s30, v{72+i}, v{68+i}
v_fma_f32 v{B}, s31, v{72+i}, v{68+i}
v_mul_f32 v{Cc}, s32, v{76+i}
v_mul_f32 v{Dd}, s33, v{76+i}
v_add_f32 v{E}, v{E}, v{80+i}
v_fmac_f32 v{A}, s31, v{80+i}
v_fmac_f32 v{B}, s30, v{80+i}
v_fmac_f32 v{Cc}, s33, v{84+i}
v_fmac_f32 v{Dd}, s34, v{84+i}
v_fmac_f32 v{96+sl[0]}, v{116+sl[0]}, v{E}
v_sub_f32 v41, v{A}, v{Cc}
v_add_f32 v42, v{A}, v{Cc}
v_sub_f32 v43, v{B}, v{Dd}
v_add_f32 v44, v{B}, v{Dd}
v_fmac_f32 v{96+sl[1]}, v{116+sl[1]}, v41
v_fmac_f32 v{96+sl[4]}, v{116+sl[4]}, v42
v_fmac_f32 v{96+sl[2]}, v{116+sl[2]}, v43
v_fmac_f32 v{96+sl[3]}, v{116+sl[3]}, v44""")
    a(f"""s_lshl_b32 s23, s3, 6
s_lshl_b32 s21, s20, 4
s_add_u32 s23, s23, s21
s_mul_i32 s24, s23, 1280
s_add_u32 s24, s24, {X1}
v_mul_u32_u24 v9, 1280, v1""")
    for j in range(5):
        a(f"""v_cvt_pk_bf16_f32 v{16+2*j}, v{96+4*j}, v{97+4*j}
v_cvt_pk_bf16_f32 v{17+2*j}, v{98+4*j}, v{99+4*j}
v_add_u32 v10, v9, v{4+j}
buffer_store_dwordx2 v[{16+2*j}:{17+2*j}], v10, s[12:15], s24 offen""")
    a("v_add_f32 v12, v96, v97\nv_add_f32 v13, v98, v99")
    for k in range(4, 20, 2): a(f"v_add_f32 v12, v12, v{96+k}\nv_add_f32 v13, v13, v{97+k}")
    a("v_add_f32 v12, v12, v13")
    red_g(a, 12, 13)
    a(f"v_mul_f32 v12, {fh(1/80)}, v12")
    for k in range(20): a(f"v_sub_f32 v{96+k}, v{96+k}, v12")
    a("v_mul_f32 v13, v96, v96\nv_mul_f32 v14, v97, v97")
    for k in range(2, 20, 2): a(f"v_fmac_f32 v13, v{96+k}, v{96+k}\nv_fmac_f32 v14, v{97+k}, v{97+k}")
    a("v_add_f32 v13, v13, v14")
    red_g(a, 13, 14)
    a(f"""v_mul_u32_u24 v14, 80, v1
s_lshl_b32 s27, s22, 3
v_add_u32 v15, s27, v14
ds_write_b64 v15, v[12:13] offset:20480
@stamp
s_waitcnt lgkmcnt(0)
s_barrier
@stamp
ds_read_b128 v[36:39], v14 offset:20480
ds_read_b128 v[40:43], v14 offset:20496
ds_read_b128 v[44:47], v14 offset:20512
ds_read_b128 v[48:51], v14 offset:20528
s_lshr_b32 s21, s23, 5
s_mul_i32 s21, s21, 40960
s_and_b32 s24, s23, 16
s_lshl_b32 s24, s24, 4
s_add_u32 s21, s21, s24
s_add_u32 s21, s21, {H2F}
v_lshrrev_b32 v9, 1, v2
v_lshlrev_b32 v9, 9, v9
v_lshl_add_u32 v9, v1, 4, v9
v_and_b32 v10, 1, v2
v_lshl_add_u32 v9, v10, 3, v9
s_lshl_b32 s27, s22, 10
v_add_u32 v9, s27, v9
s_waitcnt lgkmcnt(0)
v_add_f32 v14, v36, v38
v_add_f32 v15, v40, v42
v_add_f32 v52, v44, v46
v_add_f32 v53, v48, v50
v_add_f32 v14, v14, v15
v_add_f32 v52, v52, v53
v_add_f32 v14, v14, v52
v_mul_f32 v14, {fh(0.125)}, v14
v_add_f32 v15, v37, v39
v_add_f32 v52, v41, v43
v_add_f32 v53, v45, v47
v_add_f32 v54, v49, v51
v_add_f32 v15, v15, v52
v_add_f32 v53, v53, v54
v_add_f32 v15, v15, v53""")
    for k in range(8): a(f"v_sub_f32 v{36+2*k}, v{36+2*k}, v14")
    a("v_mul_f32 v52, v36, v36\nv_mul_f32 v53, v38, v38")
    for k in range(2, 8, 2): a(f"v_fmac_f32 v52, v{36+2*k}, v{36+2*k}\nv_fmac_f32 v53, v{38+2*k}, v{38+2*k}")
    a(f"""v_add_f32 v52, v52, v53
v_fmac_f32 v15, {fh(80.0)}, v52
v_mov_b32 v13, {fh(1e-5)}
v_fmac_f32 v13, {fh(1/640)}, v15
v_rsq_f32 v13, v13
v_sub_f32 v12, v12, v14""")
    for k in range(20): a(f"v_add_f32 v{96+k}, v{96+k}, v12")
    for k in range(20): a(f"v_mul_f32 v{96+k}, v{96+k}, v13")
    for k in range(20): a(f"v_fma_f32 v{96+k}, v{96+k}, v{136+k}, v{156+k}")
    for j in range(5):
        a(f"""v_cvt_pk_bf16_f32 v{26+2*j}, v{96+4*j}, v{97+4*j}
v_cvt_pk_bf16_f32 v{27+2*j}, v{98+4*j}, v{99+4*j}
v_lshrrev_b32 v10, 8, v{4+j}
v_lshl_add_u32 v10, v10, 13, v9
buffer_store_dwordx2 v[{26+2*j}:{27+2*j}], v10, s[12:15], s21 offen""")
    a("@stamp\n@dump 12\nK3_end:\ns_endpgm")
    return ('k3_kernel', (128,1,1), (512,1,1), 20480+1280, kd_block('k3_kernel', 176, 96))

def k4(a):
    head(a, 'k4_kernel')
    NS = 12; NST = 20; SLOT = 12288
    a(f"""
s_cmp_ge_u32 s2, 256
s_cbranch_scc1 K4_end
@stamp
s_load_dwordx4 s[4:7], s[0:1], 32
s_load_dwordx2 s[20:21], s[0:1], 88
s_and_b32 s3, s2, 7
s_lshr_b32 s22, s2, 3
s_and_b32 s23, s3, 1
s_lshl_b32 s23, s23, 3
s_and_b32 s24, s22, 7
s_add_u32 s23, s23, s24
s_lshr_b32 s24, s3, 1
s_lshl_b32 s24, s24, 2
s_lshr_b32 s25, s22, 3
s_add_u32 s24, s24, s25
v_lshrrev_b32 v1, 6, v0
v_and_b32 v2, 63, v0
v_readfirstlane_b32 s25, v1
""")
    for q in range(3):
        a(f"""v_add_u32 v6, {64*q}, v2
v_mul_u32_u24 v7, 43691, v6
v_lshrrev_b32 v7, 19, v7
v_mul_u32_u24 v8, 12, v7
v_sub_u32 v8, v6, v8
v_mul_u32_u24 v7, 3072, v7
v_lshl_add_u32 v7, v8, 4, v7
v_subrev_u32 v{3+q}, {1024*q}, v7""")
    a(f"""
s_and_b32 s26, s25, 1
s_mul_i32 s27, s26, {16*3072}
s_mul_i32 s28, s24, 192
s_add_u32 s27, s27, s28
s_mul_i32 s28, s25, 3072
s_lshl_b32 s29, s23, 2
s_add_u32 s29, s29, s25
s_mul_i32 s29, s29, 40960
s_add_u32 s29, s29, {H2F}
v_lshlrev_b32 v6, 4, v2
s_waitcnt lgkmcnt(0)
s_cmp_lt_u32 s25, 2
s_cselect_b32 s8, s4, s6
s_cselect_b32 s9, s5, s7
s_mov_b32 s10, {640*3072}
s_mov_b32 s11, 0x00020000
""")
    srd(a, 12, 20, WS_SIZE)
    def issue(s):
        a(f"s_add_u32 m0, s28, {(s % NS)*SLOT}")
        for q in range(3):
            a(f"buffer_load_dwordx4 v{3+q}, s[8:11], s27 offen offset:{1024*q} lds")
        a(f"s_add_u32 s27, s27, {32*3072}")
        for u in range(2):
            t = 2*s+u
            a(f"buffer_load_dwordx4 a[{4*t}:{4*t+3}], v6, s[12:15], s29 offen offset:{1024*u}")
        a("s_add_u32 s29, s29, 2048")
    for s in range(NS): issue(s)
    a(f"""v_lshrrev_b32 v7, 5, v2
v_bfe_u32 v8, v2, 2, 2
v_lshl_add_u32 v7, v7, 3, v8
v_mul_u32_u24 v7, 192, v7
v_bfe_u32 v8, v2, 4, 1
v_lshl_add_u32 v7, v8, 5, v7
v_and_b32 v8, 3, v2
v_lshl_add_u32 v7, v8, 3, v7
v_add_u32 v8, {4*SLOT}, v7
v_add_u32 v9, {8*SLOT}, v7
@stamp""")
    ACC = lambda mat, mt: 16 + 16*(3*mat+mt)
    FR = lambda buf, u, mat, mt: 112 + 48*buf + 4*(6*u+3*mat+mt)
    def reads(s):
        L = []
        sl = s % NS
        for u in range(2):
            for mat in range(2):
                for mt in range(3):
                    for x in range(2):
                        f = FR(s & 1, u, mat, mt) + 2*x
                        L.append(f"ds_read_b64_tr_b16 v[{f}:{f+1}], v{7+sl//4} offset:{(sl%4)*SLOT + mat*6144 + (16*u+4*x)*192 + 64*mt}")
        return L
    def mfmas(s):
        L = []
        for u in range(2):
            t = 2*s+u
            for mat in range(2):
                for mt in range(3):
                    f = FR(s & 1, u, mat, mt); c = ACC(mat, mt)
                    L.append(f"v_mfma_f32_32x32x16_bf16 v[{c}:{c+15}], v[{f}:{f+3}], a[{4*t}:{4*t+3}], {'0' if t == 0 else f'v[{c}:{c+15}]'}")
        return L
    issued = NS
    a(f"s_waitcnt vmcnt({5*(issued-1)})\ns_barrier\n@stamp")
    for l in reads(0): a(l)
    for s in range(NST):
        if s+1 < NST:
            a(f"s_waitcnt vmcnt({5*(issued-(s+2))}) lgkmcnt(0)\ns_barrier")
            if issued < NST:
                issue(issued); issued += 1
            R = reads(s+1)
        else:
            a("s_waitcnt lgkmcnt(0)"); R = []
        M = mfmas(s)
        for k in range(12):
            a(M[k])
            for l in R[2*k:2*k+2]: a(l)
    a("@stamp")
    kk = 2*0.7978845608028654*math.log2(math.e)
    a(f"""s_mov_b32 s30, {fh(-kk)}
s_mov_b32 s31, {fh(-kk*0.044715)}
v_mov_b32 v10, s30
s_lshl_b32 s29, s23, 3
s_lshl_b32 s26, s25, 1
s_add_u32 s29, s29, s26
s_mul_i32 s29, s29, 49152
s_mul_i32 s26, s24, 3072
s_add_u32 s29, s29, s26
s_add_u32 s29, s29, {HIDF}
v_bfe_u32 v7, v2, 4, 1
v_mul_u32_u24 v7, 49152, v7
v_lshrrev_b32 v8, 5, v2
v_lshl_add_u32 v7, v8, 8, v7
v_and_b32 v8, 15, v2
v_lshl_add_u32 v7, v8, 4, v7""")
    for mt in range(3):
        G = ACC(0, mt); U = ACC(1, mt); T = 112 + 16*(mt & 1)
        for i in range(16): a(f"v_mul_f32 v{T+i}, v{G+i}, v{G+i}")
        for i in range(16): a(f"v_fma_f32 v{T+i}, v{T+i}, s31, v10")
        for i in range(16): a(f"v_mul_f32 v{T+i}, v{T+i}, v{G+i}")
        for i in range(16): a(f"v_exp_f32 v{T+i}, v{T+i}\nv_mul_f32 v{G+i}, v{G+i}, v{U+i}")
        for i in range(16): a(f"v_add_f32 v{T+i}, 1.0, v{T+i}")
        for i in range(16): a(f"v_rcp_f32 v{T+i}, v{T+i}")
        for i in range(16): a(f"v_mul_f32 v{G+i}, v{G+i}, v{T+i}")
        O = 144 + 8*mt
        for qp in range(2):
            for hf in range(2):
                Q = qp + 2*hf
                a(f"v_cvt_pk_bf16_f32 v{O+4*qp+2*hf}, v{G+4*Q}, v{G+4*Q+1}\nv_cvt_pk_bf16_f32 v{O+4*qp+2*hf+1}, v{G+4*Q+2}, v{G+4*Q+3}")
            a(f"buffer_store_dwordx4 v[{O+4*qp}:{O+4*qp+3}], v7, s[12:15], s29 offen offset:{1024*mt+512*qp}")
    a("@stamp\n@dump 12\nK4_end:\ns_endpgm")
    return ('k4_kernel', (256,1,1), (256,1,1), NS*SLOT, kd_block('k4_kernel', 208, 96, 160))

def k5(a):
    head(a, 'k5_kernel')
    NS = 7; NST = 12; SLOT = 20480
    a(f"""
s_cmp_ge_u32 s2, 256
s_cbranch_scc1 K5_end
@stamp
s_load_dwordx2 s[4:5], s[0:1], 48
s_load_dwordx2 s[6:7], s[0:1], 72
s_load_dwordx2 s[20:21], s[0:1], 88
s_and_b32 s3, s2, 7
s_lshr_b32 s22, s2, 3
s_and_b32 s23, s3, 3
s_lshl_b32 s23, s23, 3
s_and_b32 s24, s22, 7
s_add_u32 s23, s23, s24
s_lshr_b32 s24, s3, 2
s_lshl_b32 s24, s24, 2
s_lshr_b32 s25, s22, 3
s_add_u32 s24, s24, s25
v_lshrrev_b32 v1, 6, v0
v_and_b32 v2, 63, v0
v_readfirstlane_b32 s25, v1
""")
    for q in range(5):
        a(f"""v_add_u32 v8, {64*q}, v2
v_mul_u32_u24 v9, 52429, v8
v_lshrrev_b32 v9, 19, v9
v_mul_u32_u24 v10, 10, v9
v_sub_u32 v10, v8, v10
v_mul_u32_u24 v9, 1280, v9
v_lshl_add_u32 v9, v10, 4, v9
v_subrev_u32 v{3+q}, {1024*q if q < 4 else 0}, v9""")
    a(f"""
s_mul_i32 s27, s25, {32*1280}
s_mul_i32 s28, s24, 160
s_add_u32 s27, s27, s28
s_mul_i32 s28, s25, 5120
s_lshl_b32 s29, s23, 2
s_add_u32 s29, s29, s25
s_lshl_b32 s30, s29, 4
s_mul_i32 s29, s29, 49152
s_add_u32 s29, s29, {HIDF}
v_lshlrev_b32 v8, 4, v2
s_waitcnt lgkmcnt(0)
""")
    srd(a, 8, 4, 1536*1280)
    srd(a, 12, 20, WS_SIZE)
    srd(a, 16, 6, 2048*1280)
    def issue(s):
        a(f"s_add_u32 m0, s28, {(s % NS)*SLOT}")
        for q in range(4):
            a(f"buffer_load_dwordx4 v{3+q}, s[8:11], s27 offen offset:{1024*q} lds")
        a(f"s_add_u32 m0, s28, {(s % NS)*SLOT + 4096}")
        a(f"buffer_load_dwordx4 v7, s[8:11], s27 offen lds")
        a(f"s_add_u32 s27, s27, {128*1280}")
        for u in range(4):
            t = 4*s+u
            a(f"buffer_load_dwordx4 a[{4*t}:{4*t+3}], v8, s[12:15], s29 offen offset:{1024*u}")
        a("s_add_u32 s29, s29, 4096")
    NI = 6
    for s in range(NI): issue(s)
    a(f"""v_lshrrev_b32 v9, 2, v2
v_mul_u32_u24 v9, 160, v9
v_and_b32 v10, 3, v2
v_lshl_add_u32 v9, v10, 3, v9
v_add_u32 v10, {3*SLOT}, v9
v_add_u32 v11, {6*SLOT}, v9
@stamp""")
    ACC = lambda mt: 16 + 4*mt
    FR = lambda buf, mt: 36 + 20*buf + 4*mt
    def reads(t):
        s = t // 4; u = t % 4; sl = s % NS
        return [f"ds_read_b64_tr_b16 v[{FR(t&1,mt)+2*x}:{FR(t&1,mt)+2*x+1}], v{9+sl//3} offset:{(sl%3)*SLOT + u*5120 + x*2560 + 32*mt}" for mt in range(5) for x in range(2)]
    issued = NI
    a(f"s_waitcnt vmcnt({9*(issued-1)})\ns_barrier\n@stamp")
    for l in reads(0): a(l)
    for t in range(48):
        s = t // 4
        if t % 4 == 3 and s+1 < NST:
            a(f"s_waitcnt vmcnt({9*(issued-(s+2))}) lgkmcnt(0)\ns_barrier")
            if issued < NST:
                issue(issued); issued += 1
        else:
            a("s_waitcnt lgkmcnt(0)")
        if t == 44:
            a(f"""v_and_b32 v12, 15, v2
v_lshrrev_b32 v13, 4, v2
v_mul_u32_u24 v14, 1280, v12
v_lshl_add_u32 v14, v13, 3, v14
s_mul_i32 s26, s30, 1280
s_mul_i32 s27, s24, 160
s_add_u32 s26, s26, s27
s_add_u32 s26, s26, {X1}
v_lshlrev_b32 v15, 4, v13
s_lshl_b32 s28, s27, 1
s_add_u32 s28, s28, 12800""")
            for mt in range(5):
                a(f"buffer_load_dwordx2 v[{76+2*mt}:{77+2*mt}], v14, s[12:15], s26 offen offset:{32*mt}")
                a(f"buffer_load_dwordx4 v[{88+4*mt}:{91+4*mt}], v15, s[12:15], s28 offen offset:{64*mt}")
        R = reads(t+1) if t+1 < 48 else []
        for mt in range(5):
            c = ACC(mt); f = FR(t & 1, mt)
            a(f"v_mfma_f32_16x16x32_bf16 v[{c}:{c+3}], v[{f}:{f+3}], a[{4*t}:{4*t+3}], {'0' if t == 0 else f'v[{c}:{c+3}]'}")
            for l in R[2*mt:2*mt+2]: a(l)
    a(f"""@stamp
s_and_b32 s26, s30, 63
s_lshl_b32 s26, s26, 5
s_lshr_b32 s29, s30, 6
s_add_u32 s26, s26, s29
s_mul_i32 s26, s26, 1280
s_add_u32 s26, s26, s27
v_mul_u32_u24 v14, 40960, v12
v_lshl_add_u32 v14, v13, 3, v14
s_waitcnt vmcnt(0)""")
    for mt in range(5):
        c = ACC(mt); x = 76+2*mt; g = 88+4*mt
        a(f"""v_lshlrev_b32 v36, 16, v{x}
v_and_b32 v37, 0xffff0000, v{x}
v_lshlrev_b32 v38, 16, v{x+1}
v_and_b32 v39, 0xffff0000, v{x+1}
v_fmac_f32 v36, v{c}, v{g}
v_fmac_f32 v37, v{c+1}, v{g+1}
v_fmac_f32 v38, v{c+2}, v{g+2}
v_fmac_f32 v39, v{c+3}, v{g+3}
v_cvt_pk_bf16_f32 v{x}, v36, v37
v_cvt_pk_bf16_f32 v{x+1}, v38, v39
buffer_store_dwordx2 v[{x}:{x+1}], v14, s[16:19], s26 offen offset:{32*mt}""")
    a("@stamp\n@dump 12\nK5_end:\ns_endpgm")
    return ('k5_kernel', (256,1,1), (256,1,1), NS*SLOT, kd_block('k5_kernel', 108, 96, 192))

def build(kernels, path):
    a = Asm2(); infos = []
    for k in kernels:
        infos.append(k(a))
    hdr = open('adaLN_cond__spectral_gfnet__glu_gated_geglu__prompt.s.ref').read().split('\n')[:13]
    s = '\n'.join(hdr) + '\n'
    for n, g, b, l, _ in infos:
        s += f"; @launch kernel={n} grid=({g[0]},{g[1]},{g[2]}) block=({b[0]},{b[1]},{b[2]}) lds={l}\n"
    s += '.amdgcn_target "amdgcn-amd-amdhsa--gfx950"\n.text\n' + a.text() + '.section .rodata,"a"\n'
    for i in infos: s += i[4]
    open(path, 'w').write(s)
if __name__ == '__main__':
    STAMPS = len(sys.argv) > 1 and sys.argv[1] == 'stamp'
    build([k0, k1, k2, k3, k4, k5], 'cur.s')
```

```python
import sys, math, struct
sys.path.insert(0,'work')
from asmlib import *
def f2u(x): return struct.unpack('<I', struct.pack('<f', x))[0]
def fh(x): return '0x%08x' % f2u(x)
MOD=0; XF=0x100000; YF=0x400000; WP=0x700000; X1=0xA00000; H2F=0xD00000; HIDF=0x1000000; WS_SIZE=0x1800000
DPP='row_mask:0xf bank_mask:0xf'

STAMPS = False
OPT = set()
DBG = 0x1640000
class Stamper:
    def __init__(self, a, kid): self.a=a; self.kid=kid; self.n=0
    def __call__(self):
        if not STAMPS: return
        self.a(f"s_memrealtime s[{70+2*self.n}:{71+2*self.n}]"); self.n += 1
    def dump(self, srd_ws, wgreg='s2', drain=True):
        if not STAMPS: return
        a = self.a
        if drain:
            a("s_waitcnt vmcnt(0)"); self()
        a(f"""s_waitcnt lgkmcnt(0)
s_mov_b64 exec, 1
v_lshrrev_b32 v1, 6, v0
v_lshlrev_b32 v1, 6, v1
s_lshl_b32 s68, {wgreg}, 9
s_add_u32 s68, s68, {DBG + self.kid*0x40000}""")
        for k in range(self.n):
            a(f"v_mov_b32 v2, s{70+2*k}\nbuffer_store_dword v2, v1, s[{srd_ws}:{srd_ws+3}], s68 offen offset:{4*k}")
class Asm2(Asm):
    def emit(self, line):
        if line == '@stamp': self.st(); return
        if line.startswith('@dump'):
            p = line.split(); self.st.dump(int(p[1]), p[2] if len(p) > 2 else 's2'); return
        Asm.emit(self, line)
def head(a, name):
    a.st = Stamper(a, int(name[1]))
    a(f""".globl {name}
.p2align 8
.type {name},@function
{name}:""")
def srd(a, d, p, size):
    a(f"""s_mov_b32 s{d}, s{p}
s_mov_b32 s{d+1}, s{p+1}
s_mov_b32 s{d+2}, {size}
s_mov_b32 s{d+3}, 0x00020000""")

def k0(a):
    head(a, 'k0_kernel')
    a("""
s_cmp_ge_u32 s2, 240
s_cbranch_scc1 K0_end
@stamp
s_load_dwordx4 s[4:7], s[0:1], 56
s_load_dwordx2 s[20:21], s[0:1], 88
s_and_b32 s3, s2, 7
s_mul_i32 s3, s3, 30
s_lshr_b32 s22, s2, 3
s_add_u32 s3, s3, s22
s_lshl_b32 s22, s3, 5
v_lshrrev_b32 v1, 1, v0
v_and_b32 v2, 1, v0
v_mul_u32_u24 v3, 7680, v1
v_lshl_add_u32 v3, v2, 4, v3
v_add_u32 v3, s22, v3
v_lshlrev_b32 v4, 1, v1
s_waitcnt lgkmcnt(0)
@stamp
""")
    srd(a, 8, 4, 1280)
    srd(a, 12, 6, 640*3840*2)
    srd(a, 16, 20, WS_SIZE)
    a("s_mov_b32 s23, 0")
    for i in range(5):
        a(f"buffer_load_dwordx4 v[{8+4*i}:{11+4*i}], v3, s[12:15], s23 offen")
        if i < 4: a("s_add_u32 s23, s23, 983040")
    for i in range(5):
        a(f"buffer_load_short_d16_hi v{28+i}, v4, s[8:11], 0 offen offset:{256*i}")
    if 'pfall' in OPT:
        a("""s_getpc_b64 s[60:61]
K0_pc:
s_sub_u32 s60, s60, K0_pc-k0_kernel
s_subb_u32 s61, s61, 0
v_lshlrev_b32 v38, 7, v0
v_min_u32 v38, CODE_END-k0_kernel-4, v38
global_load_dword v39, v38, s[60:61]
v_lshlrev_b32 v38, 7, v0
v_add_u32 v38, 32768, v38
v_min_u32 v38, CODE_END-k0_kernel-4, v38
global_load_dword v48, v38, s[60:61]
s_waitcnt vmcnt(2)""")
    else: a("s_waitcnt vmcnt(0)")
    a("@stamp")
    for i in range(5):
        a(f"v_mul_f32 v{33+i}, {fh(-math.log2(math.e))}, v{28+i}")
    for i in range(5): a(f"v_exp_f32 v{33+i}, v{33+i}")
    for i in range(5): a(f"v_add_f32 v{33+i}, 1.0, v{33+i}")
    for i in range(5): a(f"v_rcp_f32 v{33+i}, v{33+i}")
    for i in range(5): a(f"v_mul_f32 v{28+i}, v{28+i}, v{33+i}")
    for i in range(5): a(f"v_cvt_pk_bf16_f32 v{28+i}, v{28+i}, v{28+i}")
    for i in range(5): a(f"v_and_b32 v{28+i}, 0xffff0000, v{28+i}")
    for i in range(5):
        for j in range(4):
            a(f"v_lshlrev_b32 v{33}, 16, v{8+4*i+j}")
            a(f"v_and_b32 v{34}, 0xffff0000, v{8+4*i+j}")
            if i == 0:
                a(f"v_mul_f32 v{40+2*j}, v33, v28")
                a(f"v_mul_f32 v{41+2*j}, v34, v28")
            else:
                a(f"v_fmac_f32 v{40+2*j}, v33, v{28+i}")
                a(f"v_fmac_f32 v{41+2*j}, v34, v{28+i}")
    for mode in ('quad_perm:[2,3,0,1]', 'row_ror:4', 'row_ror:8'):
        for j in range(8):
            a(f"v_add_f32_dpp v{40+j}, v{40+j}, v{40+j} {mode} {DPP}")
    a("""
v_and_b32 v5, 15, v0
v_lshrrev_b32 v6, 4, v0
v_lshlrev_b32 v7, 6, v6
v_lshl_add_u32 v7, v2, 5, v7
v_cmp_gt_u32 vcc, 2, v5
s_and_saveexec_b64 s[24:25], vcc
ds_write_b128 v7, v[40:43]
ds_write_b128 v7, v[44:47] offset:16
s_mov_b64 exec, s[24:25]
s_waitcnt lgkmcnt(0)
s_barrier
v_readfirstlane_b32 s24, v0
s_cmp_ge_u32 s24, 64
s_cbranch_scc1 K0_end
v_lshlrev_b32 v7, 8, v6
v_lshl_add_u32 v7, v5, 2, v7
ds_read_b32 v8, v7
ds_read_b32 v9, v7 offset:64
ds_read_b32 v10, v7 offset:128
ds_read_b32 v11, v7 offset:192
s_waitcnt lgkmcnt(0)
v_add_f32 v8, v8, v9
v_add_f32 v10, v10, v11
v_add_f32 v8, v8, v10
v_mov_b32 v9, v8
v_permlane16_swap_b32 v8, v9
v_add_f32 v8, v8, v9
v_mov_b32 v9, v8
v_permlane32_swap_b32 v8, v9
v_add_f32 v8, v8, v9
v_cvt_pk_bf16_f32 v8, v8, v8
v_and_b32 v8, 0xffff0000, v8
s_sub_u32 s24, s3, 40
s_cmp_lt_u32 s24, 40
s_cselect_b32 s25, 1, 0
s_sub_u32 s24, s3, 160
s_cmp_lt_u32 s24, 40
s_cselect_b32 s25, 1, s25
s_cmp_eq_u32 s25, 0
s_cbranch_scc1 K0_st
v_add_f32 v8, 1.0, v8
v_cvt_pk_bf16_f32 v8, v8, v8
v_and_b32 v8, 0xffff0000, v8
K0_st:
s_lshl_b32 s22, s3, 6
v_lshlrev_b32 v7, 2, v0
v_cmp_gt_u32 vcc, 16, v0
s_and_saveexec_b64 s[24:25], vcc
buffer_store_dword v8, v7, s[16:19], s22 offen
@dump 16
K0_end:
s_endpgm
""")
    return ('k0_kernel', (240,1,1), (256,1,1), 1024, kd_block('k0_kernel', 52, 96))

C1,C2,S1,S2 = math.cos(2*math.pi/5),math.cos(4*math.pi/5),math.sin(2*math.pi/5),math.sin(4*math.pi/5)

def rot_offsets(a, vL, vbase, vd, tmp):
    a(f"""v_lshlrev_b32 v{tmp}, 1, v{vL}
v_mul_u32_u24 v{tmp+1}, 52429, v{tmp}
v_lshrrev_b32 v{tmp+1}, 18, v{tmp+1}
v_mul_u32_u24 v{tmp+1}, 5, v{tmp+1}
v_sub_u32 v{tmp}, v{tmp}, v{tmp+1}
v_lshlrev_b32 v{tmp}, 8, v{tmp}""")
    for j in range(5):
        if j == 0:
            a(f"v_add_u32 v{vd}, v{tmp}, v{vbase}")
        else:
            a(f"""v_add_u32 v{tmp+1}, {256*j}, v{tmp}
v_subrev_u32 v{tmp+2}, 1280, v{tmp+1}
v_min_u32 v{tmp+1}, v{tmp+1}, v{tmp+2}
v_add_u32 v{vd+j}, v{tmp+1}, v{vbase}""")

def col_slots(a, sW, vN, vG, out, tmp):
    a(f"""v_and_b32 v{tmp}, 7, v{vN}
s_lshl_b32 s40, s{sW}, 3
v_add_u32 v{out}, s40, v{tmp}
v_cmp_eq_u32 vcc, 0, v{out}
v_cndmask_b32 v{out+2}, 1.0, 0, vcc
v_cmp_lt_u32 s[42:43], 7, v{vN}
s_and_b64 s[44:45], s[42:43], vcc
s_andn2_b64 s[42:43], s[42:43], vcc
v_cndmask_b32 v{out}, v{out}, 64, s[44:45]
v_cndmask_b32 v{out+1}, 0, -1, s[42:43]
v_sub_u32 v{tmp}, 128, v{out}
v_cndmask_b32 v{tmp}, v{out}, v{tmp}, s[42:43]
v_mul_u32_u24 v{tmp}, 5, v{tmp}
v_lshlrev_b32 v{tmp+3}, 3, v{vG}""")
    for k in range(2):
        a(f"""v_add_u32 v{tmp+1}, {128*(k+1)}, v{tmp}
v_subrev_u32 v{tmp+2}, 640, v{tmp+1}
v_min_u32 v{tmp+1}, v{tmp+1}, v{tmp+2}
v_sub_u32 v{tmp+2}, 640, v{tmp+1}
v_cmp_lt_u32 vcc, v{tmp+2}, v{tmp+1}
v_min_u32 v{tmp+1}, v{tmp+1}, v{tmp+2}
v_mov_b32 v{tmp+2}, 0x80008000
v_cndmask_b32 v{out+5+k}, 0, v{tmp+2}, vcc
v_lshl_add_u32 v{out+3+k}, v{tmp+1}, 13, v{tmp+3}""")
    a(f"""v_mul_u32_u24 v{tmp+1}, 40960, v{out}
v_and_b32 v{tmp+2}, 32, v{out+1}
v_add3_u32 v{out+7}, v{tmp+1}, v{tmp+2}, v{tmp+3}""")

def allreduce32(a, v, t):
    for mode in ('quad_perm:[1,0,3,2]', 'quad_perm:[2,3,0,1]', 'row_ror:4', 'row_ror:8'):
        a(f"v_add_f32_dpp v{v}, v{v}, v{v} {mode} {DPP}")
    a(f"""v_mov_b32 v{t}, v{v}
v_permlane16_swap_b32 v{v}, v{t}
v_add_f32 v{v}, v{v}, v{t}""")

def k1(a):
    head(a, 'k1_kernel')
    a("""
s_cmp_ge_u32 s2, 384
s_cbranch_scc1 K1_end
@stamp
s_mov_b32 s69, s2
s_load_dwordx2 s[4:5], s[0:1], 0
s_load_dwordx4 s[24:27], s[0:1], 8
s_load_dwordx2 s[6:7], s[0:1], 88
s_cmp_ge_u32 s2, 128
s_cbranch_scc1 K1_wprep
s_and_b32 s3, s2, 7
s_lshr_b32 s20, s2, 3
s_lshl_b32 s3, s3, 2
s_lshr_b32 s21, s20, 2
s_add_u32 s3, s3, s21
s_and_b32 s20, s20, 3
v_lshrrev_b32 v1, 5, v0
v_and_b32 v2, 31, v0
v_lshlrev_b32 v3, 3, v2
""")
    rot_offsets(a, 2, 3, 4, 9)
    a("""
s_lshl_b32 s21, s20, 9
s_add_u32 s21, s21, s3
s_mul_i32 s21, s21, 1280
v_mul_u32_u24 v9, 40960, v1
s_waitcnt lgkmcnt(0)
""")
    srd(a, 8, 4, 2048*1280)
    srd(a, 12, 6, WS_SIZE)
    for j in range(5):
        a(f"v_add_u32 v{10+j}, v9, v{4+j}")
        a(f"buffer_load_dwordx2 v[{16+2*j}:{17+2*j}], v{10+j}, s[8:11], s21 offen")
    for j in range(5):
        a(f"v_lshlrev_b32 v{10+j}, 1, v{4+j}")
        a(f"buffer_load_dwordx4 v[{28+4*j}:{31+4*j}], v{10+j}, s[12:15], 0 offen offset:2560")
        a(f"buffer_load_dwordx4 v[{48+4*j}:{51+4*j}], v{10+j}, s[12:15], 0 offen")
    a("""
v_lshrrev_b32 v9, 6, v0
v_and_b32 v10, 15, v0
v_readfirstlane_b32 s22, v9
v_bfe_u32 v11, v0, 4, 2
""")
    col_slots(a, 22, 10, 11, 88, 12)
    a(f"""
v_cvt_f32_u32 v12, v88
v_mul_f32 v12, {fh(1/128)}, v12
v_cvt_f32_u32 v13, v11
v_mul_f32 v13, 8.0, v13
v_and_b32 v14, {fh(0.25)}, v89
v_fma_f32 v13, v13, v12, -v14
v_mul_f32 v14, {fh(25.0)}, v12
""".replace('8.0', fh(8.0)))
    for t in range(4):
        for jj in range(4):
            a(f"""v_cos_f32 v68, v13
v_add_f32 v13, v13, v12
v_cos_f32 v69, v13
v_add_f32 v13, v13, v{14 if jj == 3 else 12}
v_cvt_pk_bf16_f32 v{96+4*t+jj}, v68, v69""")
    a("""
v_lshrrev_b32 v12, 1, v2
v_xor_b32 v12, v12, v1
v_lshlrev_b32 v12, 4, v12
v_and_b32 v13, 1, v2
v_lshl_add_u32 v12, v13, 3, v12
v_lshl_add_u32 v15, v1, 8, v12
v_xor_b32 v12, v11, v10
""")
    for t in range(4):
        a(f"""v_xor_b32 v13, {4*t}, v12
v_lshlrev_b32 v13, 4, v13
v_lshl_add_u32 v{112+t}, v10, 8, v13""")
    a(f"""
s_lshl_b32 s23, s3, 8
s_lshl_b32 s21, s20, 6
s_add_u32 s23, s23, s21
s_add_u32 s23, s23, {XF}
@stamp
s_waitcnt vmcnt(10)
@stamp
""")
    for j in range(5):
        for hlf in range(2):
            a(f"v_lshlrev_b32 v{68+4*j+2*hlf}, 16, v{16+2*j+hlf}")
            a(f"v_and_b32 v{69+4*j+2*hlf}, 0xffff0000, v{16+2*j+hlf}")
    a("v_add_f32 v12, v68, v69\nv_add_f32 v13, v70, v71")
    for k in range(4, 20, 2):
        a(f"v_add_f32 v12, v12, v{68+k}\nv_add_f32 v13, v13, v{69+k}")
    a("v_add_f32 v12, v12, v13")
    allreduce32(a, 12, 13)
    a(f"v_mul_f32 v12, {fh(1/640)}, v12")
    for k in range(20): a(f"v_sub_f32 v{68+k}, v{68+k}, v12")
    a("v_mul_f32 v12, v68, v68\nv_mul_f32 v13, v69, v69")
    for k in range(2, 20, 2):
        a(f"v_fmac_f32 v12, v{68+k}, v{68+k}\nv_fmac_f32 v13, v{69+k}, v{69+k}")
    a("v_add_f32 v12, v12, v13")
    allreduce32(a, 12, 13)
    a(f"""v_mov_b32 v13, {fh(1e-5)}
v_fmac_f32 v13, {fh(1/640)}, v12
v_rsq_f32 v12, v13
s_waitcnt vmcnt(0)""")
    for k in range(20): a(f"v_mul_f32 v{68+k}, v{68+k}, v12")
    for k in range(20): a(f"v_fma_f32 v{68+k}, v{68+k}, v{28+k}, v{48+k}")
    a(f"""s_mov_b32 s30, {fh(C1)}
s_mov_b32 s31, {fh(C2)}
s_mov_b32 s32, {fh(-S1)}
s_mov_b32 s33, {fh(-S2)}
s_mov_b32 s34, {fh(S1)}""")
    for i in range(4):
        h = {}
        for j in range(5): h[(i+3*j) % 5] = 68+4*j+i
        t1,t2,t3,t4 = 48+4*i, 49+4*i, 50+4*i, 51+4*i
        a(f"""v_add_f32 v{t1}, v{h[1]}, v{h[4]}
v_add_f32 v{t2}, v{h[2]}, v{h[3]}
v_sub_f32 v{t3}, v{h[1]}, v{h[4]}
v_sub_f32 v{t4}, v{h[2]}, v{h[3]}
v_add3_f32 v{28+i}, v{h[0]}, v{t1}, v{t2}
v_fma_f32 v{32+i}, s30, v{t1}, v{h[0]}
v_fma_f32 v{40+i}, s31, v{t1}, v{h[0]}
v_mul_f32 v{36+i}, s32, v{t3}
v_mul_f32 v{44+i}, s33, v{t3}
v_fmac_f32 v{32+i}, s31, v{t2}
v_fmac_f32 v{40+i}, s30, v{t2}
v_fmac_f32 v{36+i}, s33, v{t4}
v_fmac_f32 v{44+i}, s34, v{t4}""".replace(f"v_add3_f32 v{28+i}, v{h[0]}, v{t1}, v{t2}", f"v_add_f32 v{28+i}, v{h[0]}, v{t1}\nv_add_f32 v{28+i}, v{28+i}, v{t2}"))
    for c in range(5):
        a(f"""v_cvt_pk_bf16_f32 v{16+2*c}, v{28+4*c}, v{29+4*c}
v_cvt_pk_bf16_f32 v{17+2*c}, v{30+4*c}, v{31+4*c}
ds_write_b64 v15, v[{16+2*c}:{17+2*c}] offset:{4096*c}""")
    a("@stamp\ns_waitcnt lgkmcnt(0)\ns_barrier\n@stamp")
    def afr(c, t): return 16 + 4*((c % 3)*4 + t) if c < 3 else 64 + 4*((c-3)*4 + t) - (0)
    def afr(c, t): return (16 + 16*c + 4*t) if c < 4 else (136 + 4*t)
    for c in range(5):
        for t in range(4):
            a(f"ds_read_b128 v[{afr(c,t)}:{afr(c,t)+3}], v{112+t} offset:{4096*c}")
    n = 20
    for c in range(5):
        for t in range(4):
            n -= 1
            a(f"s_waitcnt lgkmcnt({min(n,15)})")
            src = '0' if t == 0 else f"v[{116+4*c}:{119+4*c}]"
            a(f"v_mfma_f32_16x16x32_bf16 v[{116+4*c}:{119+4*c}], v[{afr(c,t)}:{afr(c,t)+3}], v[{96+4*t}:{99+4*t}], {src}")
    a(f"""v_and_b32 v12, 0x80008000, v89
v_cvt_pk_bf16_f32 v16, v116, v117
v_cvt_pk_bf16_f32 v17, v118, v119
v_xor_b32 v16, v16, v12
v_xor_b32 v17, v17, v12
buffer_store_dwordx2 v[16:17], v95, s[12:15], s23 offen
v_and_b32 v13, 32, v89""")
    for k in range(2):
        r, im = 120+8*k, 124+8*k
        for i in range(4):
            a(f"v_mul_f32 v{20+i}, v90, v{r+i}\nv_mul_f32 v{24+i}, v90, v{im+i}")
        for i in range(4):
            a(f"v_add_f32_dpp v{r+i}, v{24+i}, v{r+i} row_ror:8 {DPP}")
            a(f"v_subrev_f32_dpp v{im+i}, v{20+i}, v{im+i} row_ror:8 {DPP}")
        o = 28+8*k
        a(f"""v_and_b32 v14, v89, v{93+k}
v_bfi_b32 v18, v89, v12, v{93+k}
v_add_u32 v19, v{91+k}, v13
v_cvt_pk_bf16_f32 v{o}, v{r}, v{r+1}
v_cvt_pk_bf16_f32 v{o+1}, v{r+2}, v{r+3}
v_cvt_pk_bf16_f32 v{o+2}, v{im}, v{im+1}
v_cvt_pk_bf16_f32 v{o+3}, v{im+2}, v{im+3}
v_xor_b32 v{o}, v{o}, v14
v_xor_b32 v{o+1}, v{o+1}, v14
v_xor_b32 v{o+2}, v{o+2}, v18
v_xor_b32 v{o+3}, v{o+3}, v18
buffer_store_dwordx2 v[{o}:{o+1}], v19, s[12:15], s23 offen
v_xor_b32 v19, 32, v19
buffer_store_dwordx2 v[{o+2}:{o+3}], v19, s[12:15], s23 offen""")
    a("@stamp\n@dump 12\ns_endpgm")
    a.st.n = 1
    a(f"""
K1_wprep:
s_sub_u32 s2, s2, 128
v_cmp_gt_u32 vcc, 321, v0
s_and_saveexec_b64 s[30:31], vcc
s_cbranch_execz K1_end
s_and_b32 s3, s2, 7
s_lshr_b32 s20, s2, 3
s_and_b32 s21, s20, 3
s_lshl_b32 s3, s3, 2
s_add_u32 s3, s3, s21
s_bfe_u32 s21, s20, 0x10002
s_lshl_b32 s21, s21, 5
s_add_u32 s3, s3, s21
s_lshr_b32 s20, s20, 3
s_lshl_b32 s21, s20, 8
s_add_u32 s21, s21, s3
s_mul_i32 s21, s21, 642
v_lshlrev_b32 v1, 1, v0
s_waitcnt lgkmcnt(0)
""")
    srd(a, 8, 24, 2048*642)
    srd(a, 16, 26, 2048*642)
    srd(a, 12, 6, WS_SIZE)
    for mt in range(2):
        for i in range(4):
            a(f"buffer_load_ushort v{4+4*mt+i}, v1, s[8:11], s21 offen")
            a(f"buffer_load_short_d16_hi v{12+4*mt+i}, v1, s[16:19], s21 offen")
            if (mt, i) != (1, 3): a(f"s_add_u32 s21, s21, {41088 if i < 3 else 41088*13}")
    a(f"""
s_lshr_b32 s21, s3, 4
s_lshl_b32 s21, s21, 11
s_and_b32 s22, s3, 15
s_lshl_b32 s23, s20, 4
s_add_u32 s22, s22, s23
s_lshl_b32 s22, s22, 5
s_add_u32 s21, s21, s22
s_add_u32 s21, s21, {WP}
v_lshlrev_b32 v1, 13, v0
@stamp
s_waitcnt vmcnt(0)
@stamp
""")
    for k in range(8): a(f"v_or_b32 v{4+k}, v{4+k}, v{12+k}")
    a("""buffer_store_dwordx4 v[4:7], v1, s[12:15], s21 offen
buffer_store_dwordx4 v[8:11], v1, s[12:15], s21 offen offset:16
@stamp
@dump 12 s69
K1_end:
s_endpgm""")
    return ('k1_kernel', (384,1,1), (512,1,1), 20480, kd_block('k1_kernel', 152, 96))

def cmul(a, r, i, tr, ti, t0, conj=False):
    a(f"""v_mul_f32 v{t0}, v{i}, v{ti}
v_mul_f32 v{i}, v{i}, v{tr}
v_fmac_f32 v{i}, v{r}, v{ti}
v_fma_f32 v{r}, v{r}, v{tr}, -v{t0}""")
def k2(a):
    head(a, 'k2_kernel')
    a(f"""
s_cmp_ge_u32 s2, 321
s_cbranch_scc1 K2_end
@stamp
s_load_dwordx2 s[6:7], s[0:1], 88
v_and_b32 v1, 15, v0
v_bfe_u32 v2, v0, 4, 2
v_lshrrev_b32 v3, 6, v0
v_lshlrev_b32 v4, 8, v1
v_readfirstlane_b32 s3, v3
v_lshrrev_b32 v5, 1, v2
v_lshl_add_u32 v4, v5, 6, v4
v_and_b32 v5, 1, v2
v_lshl_add_u32 v4, v5, 4, v4
v_lshlrev_b32 v5, 5, v0
s_lshl_b32 s20, s2, 13
s_add_u32 s21, s20, {XF}
s_add_u32 s22, s21, 4096
s_add_u32 s23, s20, {WP}
s_waitcnt lgkmcnt(0)
@stamp
""")
    srd(a, 8, 6, WS_SIZE)
    D = lambda mt,t,p: 16+16*mt+8*t+4*p
    for mt in range(2):
        for t in range(2):
            for p in range(2):
                a(f"buffer_load_dwordx4 v[{D(mt,t,p)}:{D(mt,t,p)+3}], v4, s[8:11], s{21+mt} offen offset:{128*t+32*p}")
    a("buffer_load_dwordx4 v[48:51], v5, s[8:11], s23 offen\nbuffer_load_dwordx4 v[52:55], v5, s[8:11], s23 offen offset:16")
    a(f"""
v_lshl_add_u32 v6, v3, 4, v1
v_cvt_f32_u32 v6, v6
v_cvt_f32_u32 v7, v2
v_cvt_f32_u32 v8, v1
v_mul_f32 v9, {fh(1/64)}, v6
v_mul_f32 v10, {fh(8.0)}, v7
v_mul_f32 v10, v10, v9
v_mul_f32 v11, {fh(25.0)}, v9
""")
    def gen(R, I, N, jj, cur, step1, step2):
        a(f"""v_cos_f32 v12, v{cur}
v_sin_f32 v13, v{cur}
v_add_f32 v{cur}, v{cur}, v{step1}
v_cos_f32 v14, v{cur}
v_sin_f32 v15, v{cur}
v_add_f32 v{cur}, v{cur}, v{step2}
v_cvt_pk_bf16_f32 v{R+jj}, v12, v14
v_cvt_pk_bf16_f32 v{I+jj}, -v13, -v15
v_cvt_pk_bf16_f32 v{N+jj}, v13, v15""")
    for t in range(2):
        for jj in range(4):
            gen(56+4*t, 64+4*t, 72+4*t, jj, 10, 9, 11 if jj == 3 else 9)
    for mt in range(2):
        a(f"""v_add_f32 v9, {fh(16.0*mt)}, v8
v_mul_f32 v9, {fh(1/32)}, v9
v_mul_f32 v10, 4.0, v7
v_mul_f32 v10, v10, v9
v_mul_f32 v11, {fh(13.0)}, v9""")
        for jj in range(4):
            gen(80+4*mt, 88+4*mt, 96+4*mt, jj, 10, 9, 11 if jj == 1 else 9)
    a(f"""v_mul_f32 v9, {fh(-1/2048)}, v6
v_mul_f32 v10, 4.0, v7
v_mul_f32 v10, v10, v9
v_mul_f32 v11, {fh(13.0)}, v9""")
    for k in range(8):
        a(f"v_cos_f32 v{104+k}, v10\nv_sin_f32 v{112+k}, v10")
        if k < 7: a(f"v_add_f32 v10, v10, v{11 if k == 3 else 9}")
    a(f"""s_lshl_b32 s24, s3, 2
v_add_u32 v12, s24, v2
v_cvt_f32_u32 v12, v12
v_mul_f32 v12, 4.0, v12
s_mov_b32 s25, {fh(2.0/(2048*640))}
s_cmp_eq_u32 s2, 0
s_cselect_b32 s26, 1, 0
s_cmp_eq_u32 s2, 320
s_cselect_b32 s26, 1, s26
s_cmp_eq_u32 s26, 1
s_cselect_b32 s25, {fh(1.0/(2048*640))}, s25""")
    for nt in range(2):
        a(f"""v_add_f32 v9, {fh(16.0*nt)}, v8
v_mul_f32 v9, {fh(1/2048)}, v9
v_mul_f32 v10, v12, v9""")
        for i in range(4):
            k = 4*nt+i
            a(f"v_cos_f32 v{120+k}, v10\nv_sin_f32 v{128+k}, v10")
            if i < 3: a("v_add_f32 v10, v10, v9")
    for k in range(16): a(f"v_mul_f32 v{120+k}, s25, v{120+k}")
    a(f"""v_lshrrev_b32 v9, 1, v1
v_lshrrev_b32 v10, 1, v2
v_lshl_add_u32 v10, v3, 1, v10
v_xor_b32 v10, v10, v9
v_lshlrev_b32 v10, 4, v10
v_and_b32 v11, 1, v2
v_lshl_add_u32 v10, v11, 3, v10
v_lshl_add_u32 v6, v1, 7, v10
v_xor_b32 v10, v2, v9
v_lshlrev_b32 v10, 4, v10
v_lshl_add_u32 v7, v1, 7, v10
v_xor_b32 v8, 64, v7
v_lshlrev_b32 v5, 8, v1
v_lshl_add_u32 v5, v3, 6, v5
v_lshl_add_u32 v5, v2, 3, v5
s_add_u32 s21, s20, {YF}
s_add_u32 s22, s21, 4096
@stamp
s_waitcnt vmcnt(2)
@stamp
s_cmp_eq_u32 s26, 0
s_cbranch_scc1 K2_go""")
    for mt in range(2):
        for t in range(2):
            for j in range(4): a(f"v_mov_b32 v{D(mt,t,1)+j}, 0")
    a("K2_go:\ns_nop 1")
    def mf(d, A, B, first): a(f"v_mfma_f32_16x16x32_bf16 v[{d}:{d+3}], v[{A}:{A+3}], v[{B}:{B+3}], {'0' if first else f'v[{d}:{d+3}]'}")
    for t in range(2):
        for mt in range(2):
            mf(136+8*mt, D(mt,t,0), 56+4*t, t == 0)
            mf(140+8*mt, D(mt,t,0), 64+4*t, t == 0)
        for mt in range(2):
            mf(136+8*mt, D(mt,t,1), 72+4*t, False)
            mf(140+8*mt, D(mt,t,1), 56+4*t, False)
    a("s_waitcnt vmcnt(0)")
    for k in range(8):
        a(f"v_lshlrev_b32 v{32+k}, 16, v{48+k}\nv_and_b32 v{40+k}, 0xffff0000, v{48+k}")
    def tw_pack(tr, ti, Br, Bi):
        for blk in range(2):
            for i in range(4):
                cmul(a, 136+8*blk+i, 140+8*blk+i, tr+4*blk+i, ti+4*blk+i, 12+i)
        for blk in range(2):
            for hh in range(2):
                a(f"v_cvt_pk_bf16_f32 v{Br+2*blk+hh}, v{136+8*blk+2*hh}, v{137+8*blk+2*hh}")
                a(f"v_cvt_pk_bf16_f32 v{Bi+2*blk+hh}, v{140+8*blk+2*hh}, v{141+8*blk+2*hh}")
    tw_pack(104, 112, 16, 20)
    for mt in range(2):
        mf(136+8*mt, 80+4*mt, 16, True)
        mf(140+8*mt, 88+4*mt, 16, True)
    for mt in range(2):
        mf(136+8*mt, 96+4*mt, 20, False)
        mf(140+8*mt, 80+4*mt, 20, False)
    tw_pack(32, 40, 24, 28)
    for nt in range(2):
        mf(136+8*nt, 24, 80+4*nt, True)
        mf(140+8*nt, 28, 80+4*nt, True)
    for nt in range(2):
        mf(136+8*nt, 28, 88+4*nt, False)
        mf(140+8*nt, 24, 96+4*nt, False)
    tw_pack(120, 128, 16, 20)
    for nt in range(2):
        a(f"ds_write_b64 v6, v[{16+2*nt}:{17+2*nt}] offset:{2048*nt}")
        a(f"ds_write_b64 v6, v[{20+2*nt}:{21+2*nt}] offset:{4096+2048*nt}")
    a("@stamp\ns_waitcnt lgkmcnt(0)\ns_barrier\n@stamp")
    for t in range(2):
        for nt in range(2):
            for p in range(2):
                a(f"ds_read_b128 v[{D(nt,t,p)}:{D(nt,t,p)+3}], v{7+t} offset:{4096*p+2048*nt}")
    for t in range(2):
        a(f"s_waitcnt lgkmcnt({4 if t == 0 else 0})")
        for nt in range(2):
            mf(136+8*nt, 56+4*t, D(nt,t,0), t == 0)
            mf(140+8*nt, 56+4*t, D(nt,t,1), t == 0)
        for nt in range(2):
            mf(136+8*nt, 64+4*t, D(nt,t,1), False)
            mf(140+8*nt, 72+4*t, D(nt,t,0), False)
    for nt in range(2):
        for p in range(2):
            o = 48+4*nt+2*p; s = 136+8*nt+4*p
            a(f"""v_cvt_pk_bf16_f32 v{o}, v{s}, v{s+1}
v_cvt_pk_bf16_f32 v{o+1}, v{s+2}, v{s+3}
buffer_store_dwordx2 v[{o}:{o+1}], v5, s[8:11], s{21+nt} offen offset:{32*p}""")
    a("@stamp\n@dump 8\nK2_end:\ns_endpgm")
    return ('k2_kernel', (321,1,1), (256,1,1), 8192, kd_block('k2_kernel', 152, 96))

def red_g(a, v, t):
    a(f"""v_mov_b32 v{t}, v{v}
v_permlane16_swap_b32 v{v}, v{t}
v_add_f32 v{v}, v{v}, v{t}
v_mov_b32 v{t}, v{v}
v_permlane32_swap_b32 v{v}, v{t}
v_add_f32 v{v}, v{v}, v{t}""")
def k3(a):
    head(a, 'k3_kernel')
    a(f"""
s_cmp_ge_u32 s2, 128
s_cbranch_scc1 K3_end
@stamp
s_load_dwordx2 s[4:5], s[0:1], 0
s_load_dwordx2 s[6:7], s[0:1], 88
s_and_b32 s3, s2, 7
s_lshr_b32 s20, s2, 3
s_lshl_b32 s3, s3, 2
s_lshr_b32 s21, s20, 2
s_add_u32 s3, s3, s21
s_and_b32 s20, s20, 3
v_lshrrev_b32 v9, 6, v0
v_and_b32 v1, 15, v0
v_readfirstlane_b32 s22, v9
v_bfe_u32 v2, v0, 4, 2
""")
    col_slots(a, 22, 1, 2, 88, 12)
    a(f"""
s_lshl_b32 s23, s3, 8
s_lshl_b32 s21, s20, 6
s_add_u32 s23, s23, s21
s_add_u32 s23, s23, {YF}
s_waitcnt lgkmcnt(0)
""")
    srd(a, 8, 4, 2048*1280)
    srd(a, 12, 6, WS_SIZE)
    a("buffer_load_dwordx2 v[16:17], v95, s[12:15], s23 offen")
    for k in range(2):
        a(f"buffer_load_dwordx2 v[{18+4*k}:{19+4*k}], v{91+k}, s[12:15], s23 offen")
        a(f"buffer_load_dwordx2 v[{20+4*k}:{21+4*k}], v{91+k}, s[12:15], s23 offen offset:32")
    a("v_lshrrev_b32 v3, 4, v0\nv_lshlrev_b32 v10, 3, v3")
    rot_offsets(a, 3, 10, 4, 12)
    a("""
s_lshl_b32 s21, s20, 9
s_add_u32 s21, s21, s3
s_mul_i32 s21, s21, 1280
v_mul_u32_u24 v9, 40960, v1
""")
    for j in range(5):
        a(f"v_add_u32 v10, v9, v{4+j}")
        a(f"buffer_load_dwordx2 v[{26+2*j}:{27+2*j}], v10, s[8:11], s21 offen")
    a("s_movk_i32 s24, 5120\ns_movk_i32 s25, 7680\ns_movk_i32 s26, 10240")
    for j in range(5):
        a(f"v_lshlrev_b32 v10, 1, v{4+j}")
        a(f"buffer_load_dwordx4 v[{116+4*j}:{119+4*j}], v10, s[12:15], s24 offen")
        a(f"buffer_load_dwordx4 v[{136+4*j}:{139+4*j}], v10, s[12:15], s26 offen")
        a(f"buffer_load_dwordx4 v[{156+4*j}:{159+4*j}], v10, s[12:15], s25 offen")
    a(f"""
s_lshl_b32 s27, s22, 4
v_add_u32 v12, s27, v1
v_cvt_f32_u32 v12, v12
v_mul_f32 v12, {fh(1/128)}, v12
v_and_b32 v13, 1, v2
v_cvt_f32_u32 v13, v13
v_mul_f32 v13, 4.0, v13
v_lshrrev_b32 v14, 1, v2
v_cvt_f32_u32 v14, v14
v_mul_f32 v14, {fh(0.25)}, v14
v_fma_f32 v13, v13, v12, v14
v_mul_f32 v14, {fh(5.0)}, v12
v_mul_f32 v15, {fh(64.0)}, v12
v_cmp_eq_u32 vcc, 2, v2
v_cndmask_b32 v15, v13, v15, vcc
""")
    for t in range(4):
        for jj in range(4):
            a(f"""v_cos_f32 v68, v{15 if (t, jj) == (0, 0) else 13}
v_add_f32 v13, v13, v12
v_cos_f32 v69, v13
v_add_f32 v13, v13, v{14 if jj & 1 else 12}
v_cvt_pk_bf16_f32 v{96+4*t+jj}, v68, v69""")
    a(f"""
v_lshlrev_b32 v10, 5, v1
v_lshl_add_u32 v10, v2, 3, v10
s_lshl_b32 s27, s22, 9
v_add_u32 v10, s27, v10
v_and_b32 v11, 4096, v89
v_add_u32 v11, v11, v10
v_xor_b32 v12, 4096, v11
v_and_b32 v13, 63, v0
v_lshlrev_b32 v13, 3, v13
v_and_b32 v14, 0x80000000, v89
v_xor_b32 v14, v14, v90
v_and_b32 v15, 0x80008000, v89
@stamp
s_waitcnt vmcnt(20)
@stamp
ds_write_b64 v10, v[16:17]
""")
    for k in range(2):
        re, im = 18+4*k, 20+4*k
        a(f"v_xor_b32 v{im}, v{im}, v{93+k}\nv_xor_b32 v{im+1}, v{im+1}, v{93+k}")
        for hh in range(2):
            a(f"""v_lshlrev_b32 v{36+2*hh}, 16, v{re+hh}
v_and_b32 v{37+2*hh}, 0xffff0000, v{re+hh}
v_lshlrev_b32 v{40+2*hh}, 16, v{im+hh}
v_and_b32 v{41+2*hh}, 0xffff0000, v{im+hh}
v_xor_b32 v{im+hh}, v{im+hh}, v15""")
        for hh in range(2):
            a(f"""v_lshlrev_b32 v{48+2*hh}, 16, v{im+hh}
v_and_b32 v{49+2*hh}, 0xffff0000, v{im+hh}""")
        for i in range(4):
            a(f"v_mov_b32 v{44+i}, v{36+i}")
        for i in range(4):
            a(f"v_fmac_f32_dpp v{44+i}, v{36+i}, v14 row_ror:8 {DPP}")
            a(f"v_fmac_f32_dpp v{48+i}, v{40+i}, v90 row_ror:8 {DPP}")
        a(f"""v_cvt_pk_bf16_f32 v{52+4*k}, v44, v45
v_cvt_pk_bf16_f32 v{53+4*k}, v46, v47
v_cvt_pk_bf16_f32 v{54+4*k}, v48, v49
v_cvt_pk_bf16_f32 v{55+4*k}, v50, v51
ds_write_b64 v11, v[{52+4*k}:{53+4*k}] offset:{4096+8192*k}
ds_write_b64 v12, v[{54+4*k}:{55+4*k}] offset:{4096+8192*k}""")
    a("s_waitcnt lgkmcnt(0)\ns_barrier\n@stamp")
    def rd(c):
        b = 36 + 16*(c & 1)
        for t in range(4):
            for x in range(2):
                a(f"ds_read_b64_tr_b16 v[{b+4*t+2*x}:{b+4*t+2*x+1}], v13 offset:{4096*c+1024*t+512*x}")
    rd(0)
    for c in range(5):
        if c == 0: rd(1)
        b = 36 + 16*(c & 1)
        a(f"s_waitcnt lgkmcnt({8 if c < 4 else 0})")
        for t in range(4):
            src = '0' if t == 0 else f"v[{68+4*c}:{71+4*c}]"
            a(f"v_mfma_f32_16x16x32_bf16 v[{68+4*c}:{71+4*c}], v[{96+4*t}:{99+4*t}], v[{b+4*t}:{b+4*t+3}], {src}")
        if c + 2 < 5: rd(c+2)
    a("s_waitcnt vmcnt(15)")
    for j in range(5):
        for hh in range(2):
            a(f"v_lshlrev_b32 v{96+4*j+2*hh}, 16, v{26+2*j+hh}\nv_and_b32 v{97+4*j+2*hh}, 0xffff0000, v{26+2*j+hh}")
    a(f"""s_mov_b32 s30, {fh(C1)}
s_mov_b32 s31, {fh(C2)}
s_mov_b32 s32, {fh(S1)}
s_mov_b32 s33, {fh(S2)}
s_mov_b32 s34, {fh(-S1)}
@stamp
s_waitcnt vmcnt(0)
@stamp""")
    for i in range(4):
        sl = {}
        for j in range(5): sl[(i+3*j) % 5] = 4*j+i
        A,B,Cc,Dd,E = 36,37,38,39,40
        a(f"""v_add_f32 v{E}, v{68+i}, v{72+i}
v_fma_f32 v{A}, s30, v{72+i}, v{68+i}
v_fma_f32 v{B}, s31, v{72+i}, v{68+i}
v_mul_f32 v{Cc}, s32, v{76+i}
v_mul_f32 v{Dd}, s33, v{76+i}
v_add_f32 v{E}, v{E}, v{80+i}
v_fmac_f32 v{A}, s31, v{80+i}
v_fmac_f32 v{B}, s30, v{80+i}
v_fmac_f32 v{Cc}, s33, v{84+i}
v_fmac_f32 v{Dd}, s34, v{84+i}
v_fmac_f32 v{96+sl[0]}, v{116+sl[0]}, v{E}
v_sub_f32 v41, v{A}, v{Cc}
v_add_f32 v42, v{A}, v{Cc}
v_sub_f32 v43, v{B}, v{Dd}
v_add_f32 v44, v{B}, v{Dd}
v_fmac_f32 v{96+sl[1]}, v{116+sl[1]}, v41
v_fmac_f32 v{96+sl[4]}, v{116+sl[4]}, v42
v_fmac_f32 v{96+sl[2]}, v{116+sl[2]}, v43
v_fmac_f32 v{96+sl[3]}, v{116+sl[3]}, v44""")
    a(f"""s_lshl_b32 s23, s3, 6
s_lshl_b32 s21, s20, 4
s_add_u32 s23, s23, s21
s_mul_i32 s24, s23, 1280
s_add_u32 s24, s24, {X1}
v_mul_u32_u24 v9, 1280, v1""")
    for j in range(5):
        a(f"""v_cvt_pk_bf16_f32 v{16+2*j}, v{96+4*j}, v{97+4*j}
v_cvt_pk_bf16_f32 v{17+2*j}, v{98+4*j}, v{99+4*j}
v_add_u32 v10, v9, v{4+j}
buffer_store_dwordx2 v[{16+2*j}:{17+2*j}], v10, s[12:15], s24 offen""")
    a("v_add_f32 v12, v96, v97\nv_add_f32 v13, v98, v99")
    for k in range(4, 20, 2): a(f"v_add_f32 v12, v12, v{96+k}\nv_add_f32 v13, v13, v{97+k}")
    a("v_add_f32 v12, v12, v13")
    red_g(a, 12, 13)
    a(f"v_mul_f32 v12, {fh(1/80)}, v12")
    for k in range(20): a(f"v_sub_f32 v{96+k}, v{96+k}, v12")
    a("v_mul_f32 v13, v96, v96\nv_mul_f32 v14, v97, v97")
    for k in range(2, 20, 2): a(f"v_fmac_f32 v13, v{96+k}, v{96+k}\nv_fmac_f32 v14, v{97+k}, v{97+k}")
    a("v_add_f32 v13, v13, v14")
    red_g(a, 13, 14)
    a(f"""v_mul_u32_u24 v14, 80, v1
s_lshl_b32 s27, s22, 3
v_add_u32 v15, s27, v14
ds_write_b64 v15, v[12:13] offset:20480
@stamp
s_waitcnt lgkmcnt(0)
s_barrier
@stamp
ds_read_b128 v[36:39], v14 offset:20480
ds_read_b128 v[40:43], v14 offset:20496
ds_read_b128 v[44:47], v14 offset:20512
ds_read_b128 v[48:51], v14 offset:20528
s_lshr_b32 s21, s23, 5
s_mul_i32 s21, s21, 40960
s_and_b32 s24, s23, 16
s_lshl_b32 s24, s24, 4
s_add_u32 s21, s21, s24
s_add_u32 s21, s21, {H2F}
v_lshrrev_b32 v9, 1, v2
v_lshlrev_b32 v9, 9, v9
v_lshl_add_u32 v9, v1, 4, v9
v_and_b32 v10, 1, v2
v_lshl_add_u32 v9, v10, 3, v9
s_lshl_b32 s27, s22, 10
v_add_u32 v9, s27, v9
s_waitcnt lgkmcnt(0)
v_add_f32 v14, v36, v38
v_add_f32 v15, v40, v42
v_add_f32 v52, v44, v46
v_add_f32 v53, v48, v50
v_add_f32 v14, v14, v15
v_add_f32 v52, v52, v53
v_add_f32 v14, v14, v52
v_mul_f32 v14, {fh(0.125)}, v14
v_add_f32 v15, v37, v39
v_add_f32 v52, v41, v43
v_add_f32 v53, v45, v47
v_add_f32 v54, v49, v51
v_add_f32 v15, v15, v52
v_add_f32 v53, v53, v54
v_add_f32 v15, v15, v53""")
    for k in range(8): a(f"v_sub_f32 v{36+2*k}, v{36+2*k}, v14")
    a("v_mul_f32 v52, v36, v36\nv_mul_f32 v53, v38, v38")
    for k in range(2, 8, 2): a(f"v_fmac_f32 v52, v{36+2*k}, v{36+2*k}\nv_fmac_f32 v53, v{38+2*k}, v{38+2*k}")
    a(f"""v_add_f32 v52, v52, v53
v_fmac_f32 v15, {fh(80.0)}, v52
v_mov_b32 v13, {fh(1e-5)}
v_fmac_f32 v13, {fh(1/640)}, v15
v_rsq_f32 v13, v13
v_sub_f32 v12, v12, v14""")
    for k in range(20): a(f"v_add_f32 v{96+k}, v{96+k}, v12")
    for k in range(20): a(f"v_mul_f32 v{96+k}, v{96+k}, v13")
    for k in range(20): a(f"v_fma_f32 v{96+k}, v{96+k}, v{136+k}, v{156+k}")
    for j in range(5):
        a(f"""v_cvt_pk_bf16_f32 v{26+2*j}, v{96+4*j}, v{97+4*j}
v_cvt_pk_bf16_f32 v{27+2*j}, v{98+4*j}, v{99+4*j}
v_lshrrev_b32 v10, 8, v{4+j}
v_lshl_add_u32 v10, v10, 13, v9
buffer_store_dwordx2 v[{26+2*j}:{27+2*j}], v10, s[12:15], s21 offen""")
    a("@stamp\n@dump 12\nK3_end:\ns_endpgm")
    return ('k3_kernel', (128,1,1), (512,1,1), 20480+1280, kd_block('k3_kernel', 176, 96))

def k4(a):
    head(a, 'k4_kernel')
    NS = 12; NST = 20; SLOT = 12288
    a(f"""
s_cmp_ge_u32 s2, 256
s_cbranch_scc1 K4_end
@stamp
s_load_dwordx4 s[4:7], s[0:1], 32
s_load_dwordx2 s[20:21], s[0:1], 88
s_and_b32 s3, s2, 7
s_lshr_b32 s22, s2, 3
s_and_b32 s23, s3, 1
s_lshl_b32 s23, s23, 3
s_and_b32 s24, s22, 7
s_add_u32 s23, s23, s24
s_lshr_b32 s24, s3, 1
s_lshl_b32 s24, s24, 2
s_lshr_b32 s25, s22, 3
s_add_u32 s24, s24, s25
v_lshrrev_b32 v1, 6, v0
v_and_b32 v2, 63, v0
v_readfirstlane_b32 s25, v1
""")
    for q in range(3):
        a(f"""v_add_u32 v6, {64*q}, v2
v_mul_u32_u24 v7, 43691, v6
v_lshrrev_b32 v7, 19, v7
v_mul_u32_u24 v8, 12, v7
v_sub_u32 v8, v6, v8
v_mul_u32_u24 v7, 3072, v7
v_lshl_add_u32 v7, v8, 4, v7
v_subrev_u32 v{3+q}, {1024*q}, v7""")
    a(f"""
s_and_b32 s26, s25, 1
s_mul_i32 s27, s26, {16*3072}
s_mul_i32 s28, s24, 192
s_add_u32 s27, s27, s28
s_mul_i32 s28, s25, 3072
s_lshl_b32 s29, s23, 2
s_add_u32 s29, s29, s25
s_mul_i32 s29, s29, 40960
s_add_u32 s29, s29, {H2F}
v_lshlrev_b32 v6, 4, v2
s_waitcnt lgkmcnt(0)
s_cmp_lt_u32 s25, 2
s_cselect_b32 s8, s4, s6
s_cselect_b32 s9, s5, s7
s_mov_b32 s10, {640*3072}
s_mov_b32 s11, 0x00020000
""")
    srd(a, 12, 20, WS_SIZE)
    def issue(s):
        a(f"s_add_u32 m0, s28, {(s % NS)*SLOT}")
        for q in range(3):
            a(f"buffer_load_dwordx4 v{3+q}, s[8:11], s27 offen offset:{1024*q} lds")
        a(f"s_add_u32 s27, s27, {32*3072}")
        for u in range(2):
            t = 2*s+u
            a(f"buffer_load_dwordx4 a[{4*t}:{4*t+3}], v6, s[12:15], s29 offen offset:{1024*u}")
        a("s_add_u32 s29, s29, 2048")
    for s in range(NS): issue(s)
    a(f"""v_lshrrev_b32 v7, 5, v2
v_bfe_u32 v8, v2, 2, 2
v_lshl_add_u32 v7, v7, 3, v8
v_mul_u32_u24 v7, 192, v7
v_bfe_u32 v8, v2, 4, 1
v_lshl_add_u32 v7, v8, 5, v7
v_and_b32 v8, 3, v2
v_lshl_add_u32 v7, v8, 3, v7
v_add_u32 v8, {4*SLOT}, v7
v_add_u32 v9, {8*SLOT}, v7
@stamp""")
    ACC = lambda mat, mt: 16 + 16*(3*mat+mt)
    FR = lambda buf, u, mat, mt: 112 + 48*buf + 4*(6*u+3*mat+mt)
    def reads(s):
        L = []
        sl = s % NS
        for u in range(2):
            for mat in range(2):
                for mt in range(3):
                    for x in range(2):
                        f = FR(s & 1, u, mat, mt) + 2*x
                        L.append(f"ds_read_b64_tr_b16 v[{f}:{f+1}], v{7+sl//4} offset:{(sl%4)*SLOT + mat*6144 + (16*u+4*x)*192 + 64*mt}")
        return L
    def mfmas(s):
        L = []
        for u in range(2):
            t = 2*s+u
            for mat in range(2):
                for mt in range(3):
                    f = FR(s & 1, u, mat, mt); c = ACC(mat, mt)
                    L.append(f"v_mfma_f32_32x32x16_bf16 v[{c}:{c+15}], v[{f}:{f+3}], a[{4*t}:{4*t+3}], {'0' if t == 0 else f'v[{c}:{c+15}]'}")
        return L
    issued = NS
    a(f"s_waitcnt vmcnt({5*(issued-1)})\ns_barrier\n@stamp")
    for l in reads(0): a(l)
    for s in range(NST):
        if s+1 < NST:
            a(f"s_waitcnt vmcnt({5*(issued-(s+2))}) lgkmcnt(0)\ns_barrier")
            if issued < NST:
                issue(issued); issued += 1
            R = reads(s+1)
        else:
            a("s_waitcnt lgkmcnt(0)"); R = []
        M = mfmas(s)
        for k in range(12):
            a(M[k])
            for l in R[2*k:2*k+2]: a(l)
    a("@stamp")
    kk = 2*0.7978845608028654*math.log2(math.e)
    a(f"""s_mov_b32 s30, {fh(-kk)}
s_mov_b32 s31, {fh(-kk*0.044715)}
v_mov_b32 v10, s30
s_lshl_b32 s29, s23, 3
s_lshl_b32 s26, s25, 1
s_add_u32 s29, s29, s26
s_mul_i32 s29, s29, 49152
s_mul_i32 s26, s24, 3072
s_add_u32 s29, s29, s26
s_add_u32 s29, s29, {HIDF}
v_bfe_u32 v7, v2, 4, 1
v_mul_u32_u24 v7, 49152, v7
v_lshrrev_b32 v8, 5, v2
v_lshl_add_u32 v7, v8, 8, v7
v_and_b32 v8, 15, v2
v_lshl_add_u32 v7, v8, 4, v7""")
    for mt in range(3):
        G = ACC(0, mt); U = ACC(1, mt); T = 112 + 16*(mt & 1)
        for i in range(16): a(f"v_mul_f32 v{T+i}, v{G+i}, v{G+i}")
        for i in range(16): a(f"v_fma_f32 v{T+i}, v{T+i}, s31, v10")
        for i in range(16): a(f"v_mul_f32 v{T+i}, v{T+i}, v{G+i}")
        for i in range(16): a(f"v_exp_f32 v{T+i}, v{T+i}\nv_mul_f32 v{G+i}, v{G+i}, v{U+i}")
        for i in range(16): a(f"v_add_f32 v{T+i}, 1.0, v{T+i}")
        for i in range(16): a(f"v_rcp_f32 v{T+i}, v{T+i}")
        for i in range(16): a(f"v_mul_f32 v{G+i}, v{G+i}, v{T+i}")
        O = 144 + 8*mt
        for qp in range(2):
            for hf in range(2):
                Q = qp + 2*hf
                a(f"v_cvt_pk_bf16_f32 v{O+4*qp+2*hf}, v{G+4*Q}, v{G+4*Q+1}\nv_cvt_pk_bf16_f32 v{O+4*qp+2*hf+1}, v{G+4*Q+2}, v{G+4*Q+3}")
            a(f"buffer_store_dwordx4 v[{O+4*qp}:{O+4*qp+3}], v7, s[12:15], s29 offen offset:{1024*mt+512*qp}")
    a("@stamp\n@dump 12\nK4_end:\ns_endpgm")
    return ('k4_kernel', (256,1,1), (256,1,1), NS*SLOT, kd_block('k4_kernel', 208, 96, 160))

def k5(a):
    head(a, 'k5_kernel')
    NS = 7; NST = 12; SLOT = 20480
    a(f"""
s_cmp_ge_u32 s2, 256
s_cbranch_scc1 K5_end
@stamp
s_load_dwordx2 s[4:5], s[0:1], 48
s_load_dwordx2 s[6:7], s[0:1], 72
s_load_dwordx2 s[20:21], s[0:1], 88
s_and_b32 s3, s2, 7
s_lshr_b32 s22, s2, 3
s_and_b32 s23, s3, 3
s_lshl_b32 s23, s23, 3
s_and_b32 s24, s22, 7
s_add_u32 s23, s23, s24
s_lshr_b32 s24, s3, 2
s_lshl_b32 s24, s24, 2
s_lshr_b32 s25, s22, 3
s_add_u32 s24, s24, s25
v_lshrrev_b32 v1, 6, v0
v_and_b32 v2, 63, v0
v_readfirstlane_b32 s25, v1
""")
    for q in range(5):
        a(f"""v_add_u32 v8, {64*q}, v2
v_mul_u32_u24 v9, 52429, v8
v_lshrrev_b32 v9, 19, v9
v_mul_u32_u24 v10, 10, v9
v_sub_u32 v10, v8, v10
v_mul_u32_u24 v9, 1280, v9
v_lshl_add_u32 v9, v10, 4, v9
v_subrev_u32 v{3+q}, {1024*q if q < 4 else 0}, v9""")
    a(f"""
s_mul_i32 s27, s25, {32*1280}
s_mul_i32 s28, s24, 160
s_add_u32 s27, s27, s28
s_mul_i32 s28, s25, 5120
s_lshl_b32 s29, s23, 2
s_add_u32 s29, s29, s25
s_lshl_b32 s30, s29, 4
s_mul_i32 s29, s29, 49152
s_add_u32 s29, s29, {HIDF}
v_lshlrev_b32 v8, 4, v2
s_waitcnt lgkmcnt(0)
""")
    srd(a, 8, 4, 1536*1280)
    srd(a, 12, 20, WS_SIZE)
    srd(a, 16, 6, 2048*1280)
    def issue(s):
        a(f"s_add_u32 m0, s28, {(s % NS)*SLOT}")
        for q in range(4):
            a(f"buffer_load_dwordx4 v{3+q}, s[8:11], s27 offen offset:{1024*q} lds")
        a(f"s_add_u32 m0, s28, {(s % NS)*SLOT + 4096}")
        a(f"buffer_load_dwordx4 v7, s[8:11], s27 offen lds")
        a(f"s_add_u32 s27, s27, {128*1280}")
        for u in range(4):
            t = 4*s+u
            a(f"buffer_load_dwordx4 a[{4*t}:{4*t+3}], v8, s[12:15], s29 offen offset:{1024*u}")
        a("s_add_u32 s29, s29, 4096")
    NI = 6
    for s in range(NI): issue(s)
    a(f"""v_lshrrev_b32 v9, 2, v2
v_mul_u32_u24 v9, 160, v9
v_and_b32 v10, 3, v2
v_lshl_add_u32 v9, v10, 3, v9
v_add_u32 v10, {3*SLOT}, v9
v_add_u32 v11, {6*SLOT}, v9
@stamp""")
    ACC = lambda mt: 16 + 4*mt
    FR = lambda buf, mt: 36 + 20*buf + 4*mt
    def reads(t):
        s = t // 4; u = t % 4; sl = s % NS
        return [f"ds_read_b64_tr_b16 v[{FR(t&1,mt)+2*x}:{FR(t&1,mt)+2*x+1}], v{9+sl//3} offset:{(sl%3)*SLOT + u*5120 + x*2560 + 32*mt}" for mt in range(5) for x in range(2)]
    issued = NI
    a(f"s_waitcnt vmcnt({9*(issued-1)})\ns_barrier\n@stamp")
    for l in reads(0): a(l)
    for t in range(48):
        s = t // 4
        if t % 4 == 3 and s+1 < NST:
            a(f"s_waitcnt vmcnt({9*(issued-(s+2))}) lgkmcnt(0)\ns_barrier")
            if issued < NST:
                issue(issued); issued += 1
        else:
            a("s_waitcnt lgkmcnt(0)")
        if t == 44:
            a(f"""v_and_b32 v12, 15, v2
v_lshrrev_b32 v13, 4, v2
v_mul_u32_u24 v14, 1280, v12
v_lshl_add_u32 v14, v13, 3, v14
s_mul_i32 s26, s30, 1280
s_mul_i32 s27, s24, 160
s_add_u32 s26, s26, s27
s_add_u32 s26, s26, {X1}
v_lshlrev_b32 v15, 4, v13
s_lshl_b32 s28, s27, 1
s_add_u32 s28, s28, 12800""")
            for mt in range(5):
                a(f"buffer_load_dwordx2 v[{76+2*mt}:{77+2*mt}], v14, s[12:15], s26 offen offset:{32*mt}")
                a(f"buffer_load_dwordx4 v[{88+4*mt}:{91+4*mt}], v15, s[12:15], s28 offen offset:{64*mt}")
        R = reads(t+1) if t+1 < 48 else []
        for mt in range(5):
            c = ACC(mt); f = FR(t & 1, mt)
            a(f"v_mfma_f32_16x16x32_bf16 v[{c}:{c+3}], v[{f}:{f+3}], a[{4*t}:{4*t+3}], {'0' if t == 0 else f'v[{c}:{c+3}]'}")
            for l in R[2*mt:2*mt+2]: a(l)
    a(f"""@stamp
s_and_b32 s26, s30, 63
s_lshl_b32 s26, s26, 5
s_lshr_b32 s29, s30, 6
s_add_u32 s26, s26, s29
s_mul_i32 s26, s26, 1280
s_add_u32 s26, s26, s27
v_mul_u32_u24 v14, 40960, v12
v_lshl_add_u32 v14, v13, 3, v14
s_waitcnt vmcnt(0)""")
    for mt in range(5):
        c = ACC(mt); x = 76+2*mt; g = 88+4*mt
        a(f"""v_lshlrev_b32 v36, 16, v{x}
v_and_b32 v37, 0xffff0000, v{x}
v_lshlrev_b32 v38, 16, v{x+1}
v_and_b32 v39, 0xffff0000, v{x+1}
v_fmac_f32 v36, v{c}, v{g}
v_fmac_f32 v37, v{c+1}, v{g+1}
v_fmac_f32 v38, v{c+2}, v{g+2}
v_fmac_f32 v39, v{c+3}, v{g+3}
v_cvt_pk_bf16_f32 v{x}, v36, v37
v_cvt_pk_bf16_f32 v{x+1}, v38, v39
buffer_store_dwordx2 v[{x}:{x+1}], v14, s[16:19], s26 offen offset:{32*mt}""")
    a("@stamp\n@dump 12\nK5_end:\ns_endpgm")
    return ('k5_kernel', (256,1,1), (256,1,1), NS*SLOT, kd_block('k5_kernel', 108, 96, 192))

def build(kernels, path):
    a = Asm2(); infos = []
    for k in kernels:
        infos.append(k(a))
    if 'empty4' in OPT:
        for i in range(4):
            a(f".globl e{i}_kernel\n.p2align 8\n.type e{i}_kernel,@function\ne{i}_kernel:\ns_endpgm")
            infos.append((f'e{i}_kernel', (256,1,1), (256,1,1), 0, kd_block(f'e{i}_kernel', 8, 16)))
    a("CODE_END:\ns_endpgm")
    hdr = open('adaLN_cond__spectral_gfnet__glu_gated_geglu__prompt.s.ref').read().split('\n')[:13]
    s = '\n'.join(hdr) + '\n'
    for n, g, b, l, _ in infos:
        s += f"; @launch kernel={n} grid=({g[0]},{g[1]},{g[2]}) block=({b[0]},{b[1]},{b[2]}) lds={l}\n"
    s += '.amdgcn_target "amdgcn-amd-amdhsa--gfx950"\n.text\n' + a.text() + '.section .rodata,"a"\n'
    for i in infos: s += i[4]
    open(path, 'w').write(s)
if __name__ == '__main__':
    args = sys.argv[1:]
    out = 'cur.s'
    for x in args:
        if x == 'stamp': STAMPS = True
        elif x.endswith('.s'): out = x
        else: OPT.add(x)
    build([k0, k1, k2, k3, k4, k5], out)
```

```python
import sys, math, struct
sys.path.insert(0,'work')
from asmlib import *
def f2u(x): return struct.unpack('<I', struct.pack('<f', x))[0]
def fh(x): return '0x%08x' % f2u(x)
MOD=0; XF=0x100000; YF=0x400000; WP=0x700000; X1=0xA00000; H2F=0xD00000; HIDF=0x1000000; WS_SIZE=0x1A00000
DPP='row_mask:0xf bank_mask:0xf'

STAMPS = False
OPT = set()
DBG = 0x1640000
class Stamper:
    def __init__(self, a, kid): self.a=a; self.kid=kid; self.n=0
    def __call__(self):
        if not STAMPS: return
        if self.n == 0: self.a("s_memtime s[64:65]")
        self.a(f"s_memrealtime s[{70+2*self.n}:{71+2*self.n}]"); self.n += 1
    def dump(self, srd_ws, wgreg='s2', drain=True):
        if not STAMPS: return
        a = self.a
        if drain:
            a("s_waitcnt vmcnt(0)"); self()
        a(f"""s_memtime s[66:67]
s_waitcnt lgkmcnt(0)
s_sub_u32 s66, s66, s64
s_mov_b64 exec, 1
v_lshrrev_b32 v1, 6, v0
v_lshlrev_b32 v1, 6, v1
s_lshl_b32 s68, {wgreg}, 10
s_add_u32 s68, s68, {DBG + self.kid*0x80000}""")
        a(f"v_mov_b32 v2, s66\nbuffer_store_dword v2, v1, s[{srd_ws}:{srd_ws+3}], s68 offen offset:60")
        for k in range(self.n):
            a(f"v_mov_b32 v2, s{70+2*k}\nbuffer_store_dword v2, v1, s[{srd_ws}:{srd_ws+3}], s68 offen offset:{4*k}")
class Asm2(Asm):
    def emit(self, line):
        if line == '@stamp': self.st(); return
        if line == '@k0exp':
            if 'k0small' in OPT:
                for l in ("s_and_b32 s3, s2, 7", "s_mul_i32 s3, s3, 10", "s_lshr_b32 s22, s2, 3", "s_add_u32 s3, s3, s22", "s_cmp_ge_u32 s2, 80", "s_cbranch_scc1 K0_end"): Asm.emit(self, l)
            return
        if 'noload' in OPT and line.endswith(' lds'): return
        if 'nowload' in OPT and line.endswith(' lds') and 's[8:11]' in line: return
        if 'nohload' in OPT and line.endswith(' lds') and 's[12:15]' in line: return
        if line.startswith('@dump'):
            p = line.split(); self.st.dump(int(p[1]), p[2] if len(p) > 2 else 's2'); return
        Asm.emit(self, line)
def head(a, name):
    a.st = Stamper(a, int(name[1]))
    a(f""".globl {name}
.p2align 8
.type {name},@function
{name}:""")
def srd(a, d, p, size):
    a(f"""s_mov_b32 s{d}, s{p}
s_mov_b32 s{d+1}, s{p+1}
s_mov_b32 s{d+2}, {size}
s_mov_b32 s{d+3}, 0x00020000""")

def k0(a):
    head(a, 'k0_kernel')
    a("""
s_cmp_ge_u32 s2, 496
s_cbranch_scc1 K0_end
@stamp
s_mov_b32 s69, s2
s_load_dwordx4 s[4:7], s[0:1], 56
s_load_dwordx2 s[20:21], s[0:1], 88
s_load_dwordx4 s[24:27], s[0:1], 8
s_cmp_ge_u32 s2, 240
s_cbranch_scc1 K0_wprep
v_readfirstlane_b32 s28, v0
s_cmp_ge_u32 s28, 320
s_cbranch_scc1 K0_end
s_and_b32 s3, s2, 7
s_mul_i32 s3, s3, 30
s_lshr_b32 s22, s2, 3
s_add_u32 s3, s3, s22
s_lshl_b32 s22, s3, 5
v_lshrrev_b32 v1, 1, v0
v_and_b32 v2, 1, v0
v_mul_u32_u24 v3, 7680, v1
v_lshl_add_u32 v3, v2, 4, v3
v_add_u32 v3, s22, v3
v_lshlrev_b32 v4, 1, v1
s_waitcnt lgkmcnt(0)
@stamp
""")
    srd(a, 8, 4, 1280)
    srd(a, 12, 6, 640*3840*2)
    srd(a, 16, 20, WS_SIZE)
    NR = 4
    for i in range(NR):
        a(f"buffer_load_short_d16_hi v{28+i}, v4, s[8:11], 0 offen offset:{320*i}")
    a("s_mov_b32 s23, 0")
    for i in range(NR):
        a(f"buffer_load_dwordx4 v[{8+4*i}:{11+4*i}], v3, s[12:15], s23 offen")
        if i < NR-1: a(f"s_add_u32 s23, s23, {160*7680}")
    a(f"s_waitcnt vmcnt({NR})")
    for i in range(NR): a(f"v_mul_f32 v{33+i}, {fh(-math.log2(math.e))}, v{28+i}")
    for i in range(NR): a(f"v_exp_f32 v{33+i}, v{33+i}")
    for i in range(NR): a(f"v_add_f32 v{33+i}, 1.0, v{33+i}")
    for i in range(NR): a(f"v_rcp_f32 v{33+i}, v{33+i}")
    for i in range(NR): a(f"v_mul_f32 v{28+i}, v{28+i}, v{33+i}")
    for i in range(NR): a(f"v_cvt_pk_bf16_f32 v{28+i}, v{28+i}, v{28+i}")
    for i in range(NR): a(f"v_and_b32 v{48+2*i}, 0xffff0000, v{28+i}")
    a("""v_and_b32 v5, 15, v0
v_lshrrev_b32 v6, 4, v0
v_lshlrev_b32 v7, 6, v6
v_lshl_add_u32 v7, v2, 5, v7""")
    for i in range(NR):
        a(f"s_waitcnt vmcnt({NR-1-i})")
        if i == NR-1: a("@stamp")
        for j in range(4):
            a(f"v_lshlrev_b32 v{32+2*j}, 16, v{8+4*i+j}\nv_and_b32 v{33+2*j}, 0xffff0000, v{8+4*i+j}")
        for j in range(4):
            if i == 0: a(f"v_pk_mul_f32 v[{40+2*j}:{41+2*j}], v[{32+2*j}:{33+2*j}], v[48:49] op_sel_hi:[1,0]")
            else: a(f"v_pk_fma_f32 v[{40+2*j}:{41+2*j}], v[{32+2*j}:{33+2*j}], v[{48+2*i}:{49+2*i}], v[{40+2*j}:{41+2*j}] op_sel_hi:[1,0,1]")
    for mode in ('quad_perm:[2,3,0,1]', 'row_ror:4', 'row_ror:8'):
        for j in range(8):
            a(f"v_add_f32_dpp v{40+j}, v{40+j}, v{40+j} {mode} {DPP}")
    a("""
v_cmp_gt_u32 vcc, 2, v5
s_and_saveexec_b64 s[24:25], vcc
ds_write_b128 v7, v[40:43]
ds_write_b128 v7, v[44:47] offset:16
s_mov_b64 exec, s[24:25]
s_waitcnt lgkmcnt(0)
s_barrier
s_cmp_ge_u32 s28, 64
s_cbranch_scc1 K0_end
v_mul_u32_u24 v7, 320, v6
v_lshl_add_u32 v7, v5, 2, v7
ds_read_b32 v8, v7
ds_read_b32 v9, v7 offset:64
ds_read_b32 v10, v7 offset:128
ds_read_b32 v11, v7 offset:192
ds_read_b32 v12, v7 offset:256
s_sub_u32 s24, s3, 40
s_cmp_lt_u32 s24, 40
s_cselect_b32 s25, 1.0, 0
s_sub_u32 s24, s3, 160
s_cmp_lt_u32 s24, 40
s_cselect_b32 s25, 1.0, s25
s_lshl_b32 s22, s3, 6
v_lshlrev_b32 v7, 2, v0
s_waitcnt lgkmcnt(0)
v_add_f32 v8, v8, v9
v_add_f32 v10, v10, v11
v_add_f32 v8, v8, v12
v_add_f32 v8, v8, v10
v_mov_b32 v9, v8
v_permlane16_swap_b32 v8, v9
v_add_f32 v8, v8, v9
v_mov_b32 v9, v8
v_permlane32_swap_b32 v8, v9
v_add_f32 v8, v8, v9
v_cvt_pk_bf16_f32 v8, v8, v8
v_and_b32 v8, 0xffff0000, v8
v_add_f32 v8, s25, v8
v_cvt_pk_bf16_f32 v8, v8, v8
v_and_b32 v8, 0xffff0000, v8
v_cmp_gt_u32 vcc, 16, v0
s_and_saveexec_b64 s[24:25], vcc
buffer_store_dword v8, v7, s[16:19], s22 offen
@dump 16
s_endpgm
""")
    a.st.n = 1
    a(f"""
K0_wprep:
s_sub_u32 s2, s2, 240
v_cmp_gt_u32 vcc, 321, v0
s_and_saveexec_b64 s[30:31], vcc
s_cbranch_execz K0_end
s_and_b32 s3, s2, 7
s_lshr_b32 s22, s2, 3
s_and_b32 s23, s22, 3
s_lshl_b32 s3, s3, 2
s_add_u32 s3, s3, s23
s_bfe_u32 s23, s22, 0x10002
s_lshl_b32 s23, s23, 5
s_add_u32 s3, s3, s23
s_lshr_b32 s22, s22, 3
s_lshl_b32 s23, s22, 8
s_add_u32 s23, s23, s3
s_mul_i32 s23, s23, 642
v_lshlrev_b32 v1, 1, v0
s_waitcnt lgkmcnt(0)
""")
    srd(a, 8, 24, 2048*642)
    srd(a, 12, 26, 2048*642)
    srd(a, 16, 20, WS_SIZE)
    for mt in range(2):
        for i in range(4):
            a(f"buffer_load_ushort v{4+4*mt+i}, v1, s[8:11], s23 offen")
            a(f"buffer_load_short_d16_hi v{12+4*mt+i}, v1, s[12:15], s23 offen")
            if (mt, i) != (1, 3): a(f"s_add_u32 s23, s23, {41088 if i < 3 else 41088*13}")
    a(f"""
s_lshr_b32 s23, s3, 4
s_lshl_b32 s23, s23, 11
s_and_b32 s28, s3, 15
s_lshl_b32 s29, s22, 4
s_add_u32 s28, s28, s29
s_lshl_b32 s28, s28, 5
s_add_u32 s23, s23, s28
s_add_u32 s23, s23, {WP}
v_lshlrev_b32 v1, 13, v0
@stamp
s_waitcnt vmcnt(0)
@stamp
""")
    for k in range(8): a(f"v_or_b32 v{4+k}, v{4+k}, v{12+k}")
    a("""buffer_store_dwordx4 v[4:7], v1, s[16:19], s23 offen
buffer_store_dwordx4 v[8:11], v1, s[16:19], s23 offen offset:16
@stamp
@dump 16 s69
K0_end:
s_endpgm""")
    return ('k0_kernel', (496,1,1), (384,1,1), 1280, kd_block('k0_kernel', 56, 96))

C1,C2,S1,S2 = math.cos(2*math.pi/5),math.cos(4*math.pi/5),math.sin(2*math.pi/5),math.sin(4*math.pi/5)
def P(r): return f"v[{r}:{r+1}]"
def Q(r): return f"v[{r}:{r+3}]"

def col_slots(a, sW, vN, vG, out, tmp):
    a(f"""v_and_b32 v{tmp}, 7, v{vN}
s_lshl_b32 s40, s{sW}, 3
v_add_u32 v{out}, s40, v{tmp}
v_cmp_eq_u32 vcc, 0, v{out}
v_cndmask_b32 v{out+2}, 1.0, 0, vcc
v_cmp_lt_u32 s[42:43], 7, v{vN}
s_and_b64 s[44:45], s[42:43], vcc
s_andn2_b64 s[42:43], s[42:43], vcc
v_cndmask_b32 v{out}, v{out}, 64, s[44:45]
v_cndmask_b32 v{out+1}, 0, -1, s[42:43]
v_sub_u32 v{tmp}, 128, v{out}
v_cndmask_b32 v{tmp}, v{out}, v{tmp}, s[42:43]
v_mul_u32_u24 v{tmp}, 5, v{tmp}
v_lshrrev_b32 v{tmp+1}, 1, v{vG}
v_lshl_add_u32 v{tmp}, v{tmp+1}, 7, v{tmp}
v_add_u32 v{tmp+1}, 128, v{tmp}
v_subrev_u32 v{tmp+2}, 640, v{tmp+1}
v_min_u32 v{tmp+1}, v{tmp+1}, v{tmp+2}
v_sub_u32 v{tmp+2}, 640, v{tmp+1}
v_cmp_lt_u32 vcc, v{tmp+2}, v{tmp+1}
v_min_u32 v{tmp+1}, v{tmp+1}, v{tmp+2}
v_mov_b32 v{tmp+2}, 0x80008000
v_cndmask_b32 v{out+4}, 0, v{tmp+2}, vcc
v_and_b32 v{tmp+3}, 1, v{vG}
v_lshlrev_b32 v{tmp+3}, 4, v{tmp+3}
v_lshl_add_u32 v{out+3}, v{tmp+1}, 13, v{tmp+3}
v_mul_u32_u24 v{tmp+1}, 40960, v{out}
v_add_u32 v{out+5}, v{tmp+1}, v{tmp+3}""")

def allreduce64(a, v, t):
    for mode in ('quad_perm:[1,0,3,2]', 'quad_perm:[2,3,0,1]', 'row_ror:4', 'row_ror:8'):
        a(f"v_add_f32_dpp v{v}, v{v}, v{v} {mode} {DPP}")
    a(f"""v_mov_b32 v{t}, v{v}
v_permlane16_swap_b32 v{v}, v{t}
v_add_f32 v{v}, v{v}, v{t}
v_mov_b32 v{t}, v{v}
v_permlane32_swap_b32 v{v}, v{t}
v_add_f32 v{v}, v{v}, v{t}""")

def row_ids(a):
    a("""s_and_b32 s3, s2, 7
s_lshr_b32 s20, s2, 3
s_lshl_b32 s3, s3, 2
s_lshr_b32 s21, s20, 3
s_add_u32 s3, s3, s21
s_and_b32 s20, s20, 7
v_lshrrev_b32 v4, 6, v0
v_and_b32 v1, 63, v0
v_readfirstlane_b32 s22, v4
v_and_b32 v3, 31, v0
v_lshlrev_b32 v2, 3, v3
v_bfe_u32 v4, v0, 5, 1
v_lshl_add_u32 v2, v4, 8, v2
v_lshlrev_b32 v3, 2, v3
v_lshl_add_u32 v3, v4, 1, v3""")
def w5_consts(a, o, t, sgn):
    a(f"""v_cvt_f32_u32 v{t}, v3
v_mul_f32 v{t}, {fh(0.2*sgn)}, v{t}
v_add_f32 v{t+1}, {fh(0.2*sgn)}, v{t}
v_cos_f32 v{o}, v{t}
v_cos_f32 v{o+1}, v{t+1}
v_sin_f32 v{o+2}, v{t}
v_sin_f32 v{o+3}, v{t+1}
v_pk_add_f32 {P(t)}, {P(t)}, {P(t)}
v_cos_f32 v{o+4}, v{t}
v_cos_f32 v{o+5}, v{t+1}
v_sin_f32 v{o+6}, v{t}
v_sin_f32 v{o+7}, v{t+1}""")
def ln_rows(a, X, t):
    a(f"""v_pk_add_f32 {P(t)}, {P(X)}, {P(X+2)}
v_pk_add_f32 {P(t+2)}, {P(X+4)}, {P(X+6)}
v_pk_add_f32 {P(t)}, {P(t)}, {P(X+8)}
v_pk_add_f32 {P(t)}, {P(t)}, {P(t+2)}
v_add_f32 v{t}, v{t}, v{t+1}""")
    allreduce64(a, t, t+1)
    a(f"v_mul_f32 v{t}, {fh(-1/640)}, v{t}")
    for j in range(5): a(f"v_pk_add_f32 {P(X+2*j)}, {P(X+2*j)}, {P(t)} op_sel_hi:[1,0]")
    a(f"""v_pk_mul_f32 {P(t)}, {P(X)}, {P(X)}
v_pk_mul_f32 {P(t+2)}, {P(X+2)}, {P(X+2)}
v_pk_fma_f32 {P(t)}, {P(X+4)}, {P(X+4)}, {P(t)}
v_pk_fma_f32 {P(t+2)}, {P(X+6)}, {P(X+6)}, {P(t+2)}
v_pk_fma_f32 {P(t)}, {P(X+8)}, {P(X+8)}, {P(t)}
v_pk_add_f32 {P(t)}, {P(t)}, {P(t+2)}
v_add_f32 v{t}, v{t}, v{t+1}""")
    allreduce64(a, t, t+1)
    a(f"""v_mov_b32 v{t+1}, {fh(1e-5)}
v_fmac_f32 v{t+1}, {fh(1/640)}, v{t}
v_rsq_f32 v{t}, v{t+1}""")
def unpack_x(a, src, X):
    for k in range(3): a(f"v_permlane32_swap_b32 v{src+2*k}, v{src+2*k+1}")
    for j in range(5): a(f"v_lshlrev_b32 v{X+2*j}, 16, v{src+j}\nv_and_b32 v{X+2*j+1}, 0xffff0000, v{src+j}")
def r5_sconsts(a):
    a(f"""s_mov_b32 s30, {fh(C1)}
s_mov_b32 s31, {fh(C1)}
s_mov_b32 s32, {fh(C2)}
s_mov_b32 s33, {fh(C2)}
s_mov_b32 s34, {fh(S1)}
s_mov_b32 s35, {fh(S1)}
s_mov_b32 s36, {fh(S2)}
s_mov_b32 s37, {fh(S2)}""")

def k1(a):
    head(a, 'k1_kernel')
    PB = 12288
    a("""
s_cmp_ge_u32 s2, 256
s_cbranch_scc1 K1_end
@stamp
s_load_dwordx2 s[4:5], s[0:1], 0
s_load_dwordx2 s[6:7], s[0:1], 88
""")
    row_ids(a)
    a(f"""
s_lshl_b32 s21, s20, 3
s_add_u32 s21, s21, s22
s_lshl_b32 s21, s21, 5
s_add_u32 s21, s21, s3
s_mul_i32 s21, s21, 1280
v_lshlrev_b32 v4, 4, v1
s_lshl_b32 s23, s22, 10
s_add_u32 m0, s23, {PB}
s_waitcnt lgkmcnt(0)
""")
    srd(a, 8, 4, 2048*1280)
    srd(a, 12, 6, WS_SIZE)
    for k in range(3):
        a(f"buffer_load_dwordx2 {P(16+2*k)}, v2, s[8:11], s21 offen offset:{512*k}")
    a("""s_cmp_ge_u32 s22, 5
s_cbranch_scc1 K1_nodma
buffer_load_dwordx4 v4, s[12:15], s23 offen lds
K1_nodma:
v_and_b32 v5, 15, v0
v_bfe_u32 v6, v0, 4, 2""")
    col_slots(a, 22, 5, 6, 8, 22)
    w5_consts(a, 88, 22, -1.0)
    a(f"""
v_cvt_f32_u32 v22, v8
v_mul_f32 v22, {fh(1/128)}, v22
v_cvt_f32_u32 v23, v6
v_mul_f32 v23, {fh(8.0)}, v23
v_and_b32 v24, {fh(0.25)}, v9
v_fma_f32 v23, v23, v22, -v24
v_mul_f32 v24, {fh(25.0)}, v22
""")
    for t in range(4):
        for jj in range(4):
            a(f"""v_cos_f32 v25, v23
v_add_f32 v23, v23, v22
v_cos_f32 v26, v23
v_add_f32 v23, v23, v{24 if jj == 3 else 22}
v_cvt_pk_bf16_f32 v{96+4*t+jj}, v25, v26""")
    a(f"""
v_lshrrev_b32 v22, 3, v3
v_xor_b32 v22, s22, v22
v_lshlrev_b32 v22, 4, v22
v_and_b32 v23, 7, v3
v_lshl_add_u32 v22, v23, 1, v22
s_lshl_b32 s23, s22, 8
v_add_u32 v14, s23, v22
v_xor_b32 v15, {2048+128}, v14
v_lshlrev_b32 v7, 2, v3
v_xor_b32 v22, v6, v5
""")
    for t in range(4):
        a(f"""v_xor_b32 v23, {4*t}, v22
v_lshlrev_b32 v23, 4, v23
v_lshl_add_u32 v{112+t}, v5, 8, v23""")
    r5_sconsts(a)
    a(f"""
s_lshl_b32 s23, s3, 8
s_lshl_b32 s21, s20, 5
s_add_u32 s23, s23, s21
s_add_u32 s23, s23, {XF}
@stamp
s_waitcnt vmcnt(0)
s_barrier
@stamp
""")
    for j in range(5):
        a(f"ds_read_b64 {P(40+2*j)}, v7 offset:{PB+2560+512*j}\nds_read_b64 {P(50+2*j)}, v7 offset:{PB+512*j}")
    unpack_x(a, 16, 28)
    ln_rows(a, 28, 22)
    a("s_waitcnt lgkmcnt(0)")
    for j in range(5): a(f"v_pk_mul_f32 {P(40+2*j)}, {P(40+2*j)}, {P(22)} op_sel_hi:[1,0]")
    for j in range(5): a(f"v_pk_fma_f32 {P(28+2*j)}, {P(28+2*j)}, {P(40+2*j)}, {P(50+2*j)}")
    h = {(3*j) % 5: 28+2*j for j in range(5)}
    t1,t2,t3,t4 = 40,42,44,46; z0,p1,q1,p2,q2 = 48,50,52,54,56
    a(f"""v_pk_add_f32 {P(t1)}, {P(h[1])}, {P(h[4])}
v_pk_add_f32 {P(t2)}, {P(h[2])}, {P(h[3])}
v_pk_add_f32 {P(t3)}, {P(h[1])}, {P(h[4])} neg_lo:[0,1] neg_hi:[0,1]
v_pk_add_f32 {P(t4)}, {P(h[2])}, {P(h[3])} neg_lo:[0,1] neg_hi:[0,1]
v_pk_add_f32 {P(z0)}, {P(h[0])}, {P(t1)}
v_pk_fma_f32 {P(p1)}, s[30:31], {P(t1)}, {P(h[0])}
v_pk_fma_f32 {P(p2)}, s[32:33], {P(t1)}, {P(h[0])}
v_pk_mul_f32 {P(q1)}, s[34:35], {P(t3)}
v_pk_mul_f32 {P(q2)}, s[36:37], {P(t3)}
v_pk_add_f32 {P(z0)}, {P(z0)}, {P(t2)}
v_pk_fma_f32 {P(p1)}, s[32:33], {P(t2)}, {P(p1)}
v_pk_fma_f32 {P(p2)}, s[30:31], {P(t2)}, {P(p2)}
v_pk_fma_f32 {P(q1)}, s[36:37], {P(t4)}, {P(q1)}
v_pk_fma_f32 {P(q2)}, s[34:35], {P(t4)}, {P(q2)} neg_lo:[0,1,0] neg_hi:[0,1,0]
v_cvt_pk_bf16_f32 v22, v{z0}, v{z0+1}
ds_write_b32 v14, v22 offset:8192""")
    for k, (p, q) in enumerate(((p1, q1), (p2, q2))):
        c, s = 88+4*k, 90+4*k; r, im = 28+4*k, 30+4*k
        a(f"""v_pk_mul_f32 {P(r)}, {P(p)}, {P(c)}
v_pk_mul_f32 {P(im)}, {P(p)}, {P(s)}
v_pk_fma_f32 {P(r)}, {P(q)}, {P(s)}, {P(r)}
v_pk_fma_f32 {P(im)}, {P(q)}, {P(c)}, {P(im)} neg_lo:[1,0,0] neg_hi:[1,0,0]
v_cvt_pk_bf16_f32 v{23+2*k}, v{r}, v{r+1}
v_cvt_pk_bf16_f32 v{24+2*k}, v{im}, v{im+1}
ds_write_b32 v{14+k}, v{23+2*k}
ds_write_b32 v{14+k}, v{24+2*k} offset:4096""")
    a("@stamp\ns_waitcnt lgkmcnt(0)\ns_barrier\n@stamp")
    for T in range(3):
        for t in range(4):
            a(f"ds_read_b128 {Q(28+16*T+4*t)}, v{112+t} offset:{4096*T}")
    n = 12
    for T in range(3):
        for t in range(4):
            n -= 1
            a(f"s_waitcnt lgkmcnt({n})")
            a(f"v_mfma_f32_16x16x32_bf16 {Q(76+4*T)}, {Q(28+16*T+4*t)}, {Q(96+4*t)}, {'0' if t == 0 else Q(76+4*T)}")
    a(f"""v_and_b32 v22, 0x80008000, v9
v_and_b32 v23, v9, v12
v_bfi_b32 v24, v9, v22, v12
v_cmp_neq_f32 vcc, 0, v10
v_pk_mul_f32 {P(28)}, {P(76)}, {P(10)} op_sel_hi:[1,0]
v_pk_mul_f32 {P(30)}, {P(78)}, {P(10)} op_sel_hi:[1,0]
v_pk_mul_f32 {P(32)}, {P(80)}, {P(10)} op_sel_hi:[1,0]
v_pk_mul_f32 {P(34)}, {P(82)}, {P(10)} op_sel_hi:[1,0]
v_cndmask_b32 v25, 0, -1, vcc""")
    for i in range(4):
        a(f"v_add_f32_dpp v{76+i}, v{32+i}, v{76+i} row_ror:8 {DPP}")
        a(f"v_subrev_f32_dpp v{80+i}, v{28+i}, v{80+i} row_ror:8 {DPP}")
    a(f"""v_cvt_pk_bf16_f32 v36, v76, v77
v_cvt_pk_bf16_f32 v37, v78, v79
v_cvt_pk_bf16_f32 v38, v80, v81
v_cvt_pk_bf16_f32 v39, v82, v83
v_cvt_pk_bf16_f32 v44, v84, v85
v_cvt_pk_bf16_f32 v45, v86, v87
v_xor_b32 v36, v36, v23
v_xor_b32 v37, v37, v23
v_xor_b32 v38, v38, v24
v_xor_b32 v39, v39, v24
v_xor_b32 v44, v44, v22
v_xor_b32 v45, v45, v22
v_cndmask_b32 v40, v36, v38, s[42:43]
v_cndmask_b32 v41, v37, v39, s[42:43]
v_cndmask_b32 v42, v38, v36, s[42:43]
v_cndmask_b32 v43, v39, v37, s[42:43]
buffer_store_dwordx4 {Q(40)}, v11, s[12:15], s23 offen
v_and_b32_dpp v46, v44, v25 row_ror:8 {DPP}
v_and_b32_dpp v47, v45, v25 row_ror:8 {DPP}
s_not_b64 exec, s[42:43]
s_mov_b32 exec_hi, 0
buffer_store_dwordx4 {Q(44)}, v13, s[12:15], s23 offen
@stamp
@dump 12
K1_end:
s_endpgm""")
    return ('k1_kernel', (256,1,1), (512,1,1), PB+5120, kd_block('k1_kernel', 116, 96))

def k2(a):
    head(a, 'k2_kernel')
    a(f"""
s_cmp_ge_u32 s2, 321
s_cbranch_scc1 K2_end
@stamp
s_load_dwordx2 s[6:7], s[0:1], 88
v_and_b32 v1, 15, v0
v_bfe_u32 v2, v0, 4, 2
v_lshrrev_b32 v3, 6, v0
v_and_b32 v9, 63, v0
v_readfirstlane_b32 s3, v3
v_lshl_add_u32 v4, v3, 2, v2
v_xor_b32 v10, v4, v1
v_lshlrev_b32 v10, 4, v10
v_lshl_add_u32 v4, v4, 8, v10
v_lshlrev_b32 v5, 5, v0
s_lshl_b32 s20, s2, 13
s_add_u32 s21, s20, {XF}
s_add_u32 s22, s21, 4096
s_add_u32 s23, s20, {WP}
s_lshl_b32 s24, s3, 10
s_mov_b32 m0, s24
s_waitcnt lgkmcnt(0)
@stamp
""")
    srd(a, 8, 6, WS_SIZE)
    a(f"""buffer_load_dwordx4 v4, s[8:11], s21 offen lds
s_add_u32 m0, s24, 4096
s_nop 0
buffer_load_dwordx4 v4, s[8:11], s22 offen lds
buffer_load_dwordx4 v[48:51], v5, s[8:11], s23 offen
buffer_load_dwordx4 v[52:55], v5, s[8:11], s23 offen offset:16
v_lshl_add_u32 v6, v3, 4, v1
v_cvt_f32_u32 v6, v6
v_cvt_f32_u32 v7, v2
v_cvt_f32_u32 v8, v1
v_mul_f32 v7, 4.0, v7
""")
    M = lambda t: 56+6*t
    N = lambda x, y: 80+6*(2*x+y)
    def gen(R, cur, step, last):
        for hh in range(2):
            a(f"""v_cos_f32 v12, v{cur}
v_sin_f32 v13, v{cur}
v_add_f32 v{cur}, v{cur}, v{step}
v_cos_f32 v14, v{cur}
v_sin_f32 v15, v{cur}
v_add_f32 v{cur}, v{cur}, v{last if hh else step}
v_cvt_pk_bf16_f32 v{R+2+hh}, v12, v14
v_cvt_pk_bf16_f32 v{R+hh}, -v13, -v15
v_cvt_pk_bf16_f32 v{R+4+hh}, v13, v15""")
    a(f"""v_mul_f32 v16, {fh(1/64)}, v6
v_mul_f32 v10, v7, v16
v_mul_f32 v11, {fh(13.0)}, v16""")
    for t in range(4): gen(M(t), 10, 16, 11)
    for x in range(2):
        a(f"""v_add_f32 v16, {fh(16.0*x)}, v8
v_mul_f32 v16, {fh(1/32)}, v16
v_mul_f32 v10, v7, v16
v_mul_f32 v11, {fh(13.0)}, v16""")
        for y in range(2): gen(N(x, y), 10, 16, 11)
    a(f"""v_mul_f32 v16, {fh(-1/2048)}, v6
v_mul_f32 v10, v7, v16
v_mul_f32 v11, {fh(13.0)}, v16""")
    for k in range(8):
        a(f"v_cos_f32 v{104+k}, v10\nv_sin_f32 v{112+k}, v10")
        if k < 7: a(f"v_add_f32 v10, v10, v{11 if k == 3 else 16}")
    a(f"""s_lshl_b32 s24, s3, 4
v_cvt_f32_u32 v12, s24
v_add_f32 v12, v12, v7
s_mov_b32 s26, {fh(2.0/(2048*640))}
s_cmp_eq_u32 s2, 0
s_cselect_b32 s26, {fh(1.0/(2048*640))}, s26
s_cmp_eq_u32 s2, 320
s_cselect_b32 s26, {fh(1.0/(2048*640))}, s26
s_mov_b32 s27, s26""")
    for nt in range(2):
        a(f"""v_add_f32 v16, {fh(16.0*nt)}, v8
v_mul_f32 v16, {fh(1/2048)}, v16
v_mul_f32 v10, v12, v16""")
        for i in range(4):
            k = 4*nt+i
            a(f"v_cos_f32 v{120+k}, v10\nv_sin_f32 v{128+k}, v10")
            if i < 3: a("v_add_f32 v10, v10, v16")
    for k in range(8): a(f"v_pk_mul_f32 {P(120+2*k)}, s[26:27], {P(120+2*k)}")
    a(f"""v_xor_b32 v10, v2, v1
v_lshlrev_b32 v10, 4, v10
v_lshl_add_u32 v10, v1, 8, v10
v_xor_b32 v11, 64, v10
v_xor_b32 v12, 128, v10
v_xor_b32 v13, 192, v10
v_lshlrev_b32 v7, 4, v9
s_lshl_b32 s24, s3, 10
v_add_u32 v6, s24, v7
v_lshlrev_b32 v5, 8, v1
v_lshl_add_u32 v5, v3, 6, v5
v_lshl_add_u32 v5, v2, 4, v5
s_add_u32 s21, s20, {YF}
s_add_u32 s22, s21, 4096
@stamp
s_waitcnt vmcnt(2)
s_barrier
@stamp""")
    D = lambda mt, t: 16+16*mt+4*t
    for t in range(4):
        for mt in range(2):
            a(f"ds_read_b128 {Q(D(mt,t))}, v{10+t} offset:{4096*mt}")
    def mf(d, A, B, first): a(f"v_mfma_f32_16x16x32_bf16 {Q(d)}, {Q(A)}, {Q(B)}, {'0' if first else Q(d)}")
    for t in range(4):
        a(f"s_waitcnt lgkmcnt({6-2*t})")
        for mt in range(2):
            mf(136+8*mt, D(mt,t), M(t)+2, t == 0)
            mf(140+8*mt, D(mt,t), M(t), t == 0)
    a("s_waitcnt vmcnt(0)")
    for k in range(8):
        a(f"v_lshlrev_b32 v{32+k}, 16, v{48+k}\nv_and_b32 v{40+k}, 0xffff0000, v{48+k}")
    def tw_pack(tr, ti, B, swap):
        for blk in range(2):
            for hh in range(2):
                r = 136+8*blk+2*hh; i = r+4; c = tr+4*blk+2*hh; s = ti+4*blk+2*hh; t = 48+4*blk+2*hh
                a(f"""v_pk_mul_f32 {P(t)}, {P(i)}, {P(s)}
v_pk_mul_f32 {P(i)}, {P(i)}, {P(c)}
v_pk_fma_f32 {P(i)}, {P(r)}, {P(s)}, {P(i)}
v_pk_fma_f32 {P(r)}, {P(r)}, {P(c)}, {P(t)} neg_lo:[0,0,1] neg_hi:[0,0,1]""")
        for blk in range(2):
            for hh in range(2):
                r = 136+8*blk+2*hh
                a(f"v_cvt_pk_bf16_f32 v{B+4*blk+hh+(2 if swap else 0)}, v{r}, v{r+1}")
                a(f"v_cvt_pk_bf16_f32 v{B+4*blk+hh+(0 if swap else 2)}, v{r+4}, v{r+5}")
    tw_pack(104, 112, 16, False)
    for y in range(2):
        for x in range(2):
            mf(136+8*x, N(x,y)+2, 16+4*y, y == 0)
            mf(140+8*x, N(x,y), 16+4*y, y == 0)
    tw_pack(32, 40, 24, True)
    for y in range(2):
        for x in range(2):
            mf(136+8*x, 24+4*y, N(x,y), y == 0)
            mf(140+8*x, 24+4*y, N(x,y)+2, y == 0)
    tw_pack(120, 128, 16, True)
    a(f"""ds_write_b128 v6, {Q(16)} offset:8192
ds_write_b128 v6, {Q(20)} offset:12288
@stamp
s_waitcnt lgkmcnt(0)
s_barrier
@stamp""")
    for t in range(4):
        for nt in range(2):
            a(f"ds_read_b128 {Q(D(nt,t))}, v7 offset:{8192+4096*nt+1024*t}")
    for t in range(4):
        a(f"s_waitcnt lgkmcnt({6-2*t})")
        for nt in range(2):
            mf(136+8*nt, M(t), D(nt,t), t == 0)
            mf(140+8*nt, M(t)+2, D(nt,t), t == 0)
    for nt in range(2):
        o = 48+4*nt; s = 136+8*nt
        for k in range(4): a(f"v_cvt_pk_bf16_f32 v{o+k}, v{s+2*k}, v{s+2*k+1}")
        a(f"buffer_store_dwordx4 {Q(o)}, v5, s[8:11], s{21+nt} offen")
    a("@stamp\n@dump 8\nK2_end:\ns_endpgm")
    return ('k2_kernel', (321,1,1), (256,1,1), 16384, kd_block('k2_kernel', 152, 96))

def k3(a):
    head(a, 'k3_kernel')
    ZB = 12288; ZR = 528; ZC = 8*ZR; PB = ZB + 5*ZC
    a("""
s_cmp_ge_u32 s2, 256
s_cbranch_scc1 K3_end
@stamp
s_load_dwordx2 s[4:5], s[0:1], 0
s_load_dwordx2 s[6:7], s[0:1], 88
""")
    row_ids(a)
    a("v_and_b32 v5, 15, v0\nv_bfe_u32 v6, v0, 4, 2")
    col_slots(a, 22, 5, 6, 8, 22)
    a(f"""
s_lshl_b32 s23, s3, 8
s_lshl_b32 s21, s20, 5
s_add_u32 s23, s23, s21
s_add_u32 s23, s23, {YF}
s_lshl_b32 s21, s20, 3
s_add_u32 s21, s21, s22
s_lshl_b32 s24, s3, 6
s_add_u32 s24, s24, s21
s_lshl_b32 s21, s21, 5
s_add_u32 s21, s21, s3
s_mul_i32 s21, s21, 1280
s_mul_i32 s24, s24, 1280
v_lshlrev_b32 v4, 4, v1
s_lshl_b32 s25, s22, 10
s_add_u32 m0, s25, {PB}
s_add_u32 s25, s25, 5120
s_waitcnt lgkmcnt(0)
""")
    srd(a, 8, 4, 2048*1280)
    srd(a, 12, 6, WS_SIZE)
    a(f"""buffer_load_dwordx4 {Q(28)}, v11, s[12:15], s23 offen
buffer_load_dwordx4 {Q(32)}, v13, s[12:15], s23 offen
buffer_load_dwordx4 v4, s[12:15], s25 offen lds""")
    for k in range(3):
        a(f"buffer_load_dwordx2 {P(16+2*k)}, v2, s[8:11], s21 offen offset:{512*k}")
    w5_consts(a, 88, 22, 1.0)
    a(f"""
s_lshl_b32 s27, s22, 4
v_add_u32 v22, s27, v5
v_cvt_f32_u32 v22, v22
v_mul_f32 v22, {fh(1/128)}, v22
v_and_b32 v23, 1, v6
v_cvt_f32_u32 v23, v23
v_mul_f32 v23, 4.0, v23
v_lshrrev_b32 v24, 1, v6
v_cvt_f32_u32 v24, v24
v_mul_f32 v24, {fh(0.25)}, v24
v_fma_f32 v23, v23, v22, v24
v_mul_f32 v24, {fh(5.0)}, v22
v_mul_f32 v27, {fh(64.0)}, v22
v_cmp_eq_u32 vcc, 2, v6
v_cndmask_b32 v27, v23, v27, vcc
""")
    for t in range(4):
        for jj in range(4):
            a(f"""v_cos_f32 v25, v{27 if (t, jj) == (0, 0) else 23}
v_add_f32 v23, v23, v22
v_cos_f32 v26, v23
v_add_f32 v23, v23, v{24 if jj & 1 else 22}
v_cvt_pk_bf16_f32 v{96+4*t+jj}, v25, v26""")
    a(f"""
v_lshlrev_b32 v14, 5, v5
v_lshl_add_u32 v14, v6, 3, v14
s_lshl_b32 s27, s22, 9
v_add_u32 v14, s27, v14
v_and_b32 v15, 4096, v9
v_add_u32 v15, v15, v14
v_xor_b32 v112, 4096, v15
v_lshlrev_b32 v113, 3, v1
v_and_b32 v22, 7, v5
v_mul_u32_u24 v22, {ZR}, v22
v_lshl_add_u32 v22, v6, 4, v22
s_lshl_b32 s27, s22, 6
v_add_u32 v115, s27, v22
v_lshrrev_b32 v22, 3, v5
v_mul_u32_u24 v22, {2*ZC}, v22
v_add_u32 v114, v115, v22
v_lshlrev_b32 v4, 2, v3
s_mul_i32 s27, s22, {ZR}
v_add_u32 v7, s27, v4
v_and_b32 v22, 0x80000000, v9
v_xor_b32 v22, v22, v10
v_and_b32 v23, 0x80008000, v9
v_xor_b32 v24, v23, v12
""")
    r5_sconsts(a)
    a(f"""@stamp
s_waitcnt vmcnt(4)
@stamp
v_cndmask_b32 v32, v32, v34, s[42:43]
v_cndmask_b32 v33, v33, v35, s[42:43]
v_xor_b32 v26, v30, v24
v_xor_b32 v27, v31, v24
v_xor_b32 v30, v30, v12
v_xor_b32 v31, v31, v12
ds_write_b64 v14, {P(32)} offset:8192""")
    for hh in range(2):
        a(f"""v_lshlrev_b32 v{36+2*hh}, 16, v{28+hh}
v_and_b32 v{37+2*hh}, 0xffff0000, v{28+hh}
v_lshlrev_b32 v{40+2*hh}, 16, v{30+hh}
v_and_b32 v{41+2*hh}, 0xffff0000, v{30+hh}
v_lshlrev_b32 v{44+2*hh}, 16, v{28+hh}
v_and_b32 v{45+2*hh}, 0xffff0000, v{28+hh}
v_lshlrev_b32 v{48+2*hh}, 16, v{26+hh}
v_and_b32 v{49+2*hh}, 0xffff0000, v{26+hh}""")
    for i in range(4):
        a(f"v_fmac_f32_dpp v{44+i}, v{36+i}, v22 row_ror:8 {DPP}")
        a(f"v_fmac_f32_dpp v{48+i}, v{40+i}, v10 row_ror:8 {DPP}")
    a(f"""v_cvt_pk_bf16_f32 v52, v44, v45
v_cvt_pk_bf16_f32 v53, v46, v47
v_cvt_pk_bf16_f32 v54, v48, v49
v_cvt_pk_bf16_f32 v55, v50, v51
ds_write_b64 v15, {P(52)}
ds_write_b64 v112, {P(54)}
s_waitcnt vmcnt(3) lgkmcnt(0)
s_barrier
@stamp""")
    for T in range(3):
        for t in range(4):
            for x in range(2):
                a(f"ds_read_b64_tr_b16 {P(28+16*T+4*t+2*x)}, v113 offset:{4096*T+1024*t+512*x}")
            if T == 1 and t == 3:
                a("s_waitcnt lgkmcnt(8)")
                for tt in range(4): a(f"v_mfma_f32_16x16x32_bf16 {Q(76)}, {Q(96+4*tt)}, {Q(28+4*tt)}, {'0' if tt == 0 else Q(76)}")
    for T in (1, 2):
        a(f"s_waitcnt lgkmcnt({8 if T == 1 else 0})")
        for t in range(4): a(f"v_mfma_f32_16x16x32_bf16 {Q(76+4*T)}, {Q(96+4*t)}, {Q(28+16*T+4*t)}, {'0' if t == 0 else Q(76+4*T)}")
    for j in range(5):
        a(f"ds_read_b64 {P(116+2*j)}, v4 offset:{PB+512*j}")
    a(f"""ds_write_b128 v114, {Q(76)} offset:{ZB+ZC}
ds_write_b128 v114, {Q(80)} offset:{ZB+2*ZC}
ds_write_b128 v115, {Q(84)} offset:{ZB}
s_waitcnt vmcnt(0)""")
    unpack_x(a, 16, 28)
    a("@stamp\ns_waitcnt lgkmcnt(0)\ns_barrier\n@stamp")
    for c in range(5): a(f"ds_read_b64 {P(40+2*c)}, v7 offset:{ZB+ZC*c}")
    for j in range(5):
        a(f"ds_read_b64 {P(136+2*j)}, v4 offset:{PB+5120+512*j}\nds_read_b64 {P(126+2*j)}, v4 offset:{PB+2560+512*j}")
    a("s_waitcnt lgkmcnt(10)")
    for k in range(2):
        r, im = 42+4*k, 44+4*k; c, s = 88+4*k, 90+4*k; R, I = 50+4*k, 52+4*k
        a(f"""v_pk_mul_f32 {P(R)}, {P(r)}, {P(c)}
v_pk_mul_f32 {P(I)}, {P(r)}, {P(s)}
v_pk_fma_f32 {P(R)}, {P(im)}, {P(s)}, {P(R)} neg_lo:[1,0,0] neg_hi:[1,0,0]
v_pk_fma_f32 {P(I)}, {P(im)}, {P(c)}, {P(I)}""")
    z0,z1r,z1i,z2r,z2i = 40,50,52,54,56
    A,B,Cc,Dd,E = 58,60,62,64,66
    sl = {(3*j) % 5: j for j in range(5)}
    X = lambda d2: P(28+2*sl[d2]); G = lambda d2: P(116+2*sl[d2])
    a(f"""v_pk_add_f32 {P(E)}, {P(z0)}, {P(z1r)}
v_pk_fma_f32 {P(A)}, s[30:31], {P(z1r)}, {P(z0)}
v_pk_fma_f32 {P(B)}, s[32:33], {P(z1r)}, {P(z0)}
v_pk_mul_f32 {P(Cc)}, s[34:35], {P(z1i)}
v_pk_mul_f32 {P(Dd)}, s[36:37], {P(z1i)}
v_pk_add_f32 {P(E)}, {P(E)}, {P(z2r)}
v_pk_fma_f32 {P(A)}, s[32:33], {P(z2r)}, {P(A)}
v_pk_fma_f32 {P(B)}, s[30:31], {P(z2r)}, {P(B)}
v_pk_fma_f32 {P(Cc)}, s[36:37], {P(z2i)}, {P(Cc)}
v_pk_fma_f32 {P(Dd)}, s[34:35], {P(z2i)}, {P(Dd)} neg_lo:[0,1,0] neg_hi:[0,1,0]
v_pk_fma_f32 {X(0)}, {G(0)}, {P(E)}, {X(0)}
v_pk_add_f32 {P(68)}, {P(A)}, {P(Cc)} neg_lo:[0,1] neg_hi:[0,1]
v_pk_add_f32 {P(70)}, {P(A)}, {P(Cc)}
v_pk_add_f32 {P(72)}, {P(B)}, {P(Dd)} neg_lo:[0,1] neg_hi:[0,1]
v_pk_add_f32 {P(74)}, {P(B)}, {P(Dd)}
v_pk_fma_f32 {X(1)}, {G(1)}, {P(68)}, {X(1)}
v_pk_fma_f32 {X(4)}, {G(4)}, {P(70)}, {X(4)}
v_pk_fma_f32 {X(2)}, {G(2)}, {P(72)}, {X(2)}
v_pk_fma_f32 {X(3)}, {G(3)}, {P(74)}, {X(3)}
s_add_u32 s25, s24, {X1}
s_add_u32 s26, s24, {H2F}""")
    for j in range(5): a(f"v_cvt_pk_bf16_f32 v{16+j}, v{28+2*j}, v{29+2*j}")
    a(f"""v_permlane32_swap_b32 v16, v17
v_permlane32_swap_b32 v18, v19
buffer_store_dwordx2 {P(16)}, v2, s[12:15], s25 offen
buffer_store_dwordx2 {P(18)}, v2, s[12:15], s25 offen offset:512""")
    ln_rows(a, 28, 22)
    a(f"""v_bfe_u32 v24, v0, 5, 1
v_mul_u32_u24 v24, {H2F - X1 - 256}, v24
v_add_u32 v24, v24, v2
s_waitcnt lgkmcnt(0)""")
    for j in range(5): a(f"v_pk_mul_f32 {P(136+2*j)}, {P(136+2*j)}, {P(22)} op_sel_hi:[1,0]")
    for j in range(5): a(f"v_pk_fma_f32 {P(28+2*j)}, {P(28+2*j)}, {P(136+2*j)}, {P(126+2*j)}")
    for j in range(4): a(f"v_cvt_pk_bf16_f32 v{40+j}, v{28+2*j}, v{29+2*j}")
    a(f"""v_cvt_pk_bf16_f32 v21, v36, v37
v_permlane32_swap_b32 v40, v41
v_permlane32_swap_b32 v42, v43
v_permlane32_swap_b32 v20, v21
buffer_store_dwordx2 {P(40)}, v2, s[12:15], s26 offen
buffer_store_dwordx2 {P(42)}, v2, s[12:15], s26 offen offset:512
buffer_store_dwordx2 {P(20)}, v24, s[12:15], s25 offen offset:1024
@stamp
@dump 12
K3_end:
s_endpgm""")
    return ('k3_kernel', (256,1,1), (512,1,1), PB+8192, kd_block('k3_kernel', 148, 96))

def ramp(NST, D, first=3):
    nxt = first; sched = {}
    for s in range(NST):
        lim = min(NST, s + D + 1)
        take = []
        while nxt < lim and len(take) < 2:
            take.append(nxt); nxt += 1
        sched[s] = take
    return list(range(first)), sched
def k4(a):
    head(a, 'k4_kernel')
    NST = 20; WS_ = 12288; HB = 98304; HS = 16384
    a(f"""
s_cmp_ge_u32 s2, 256
s_cbranch_scc1 K4_end
@stamp
s_load_dwordx4 s[4:7], s[0:1], 32
s_load_dwordx2 s[20:21], s[0:1], 88
s_and_b32 s3, s2, 7
s_lshr_b32 s22, s2, 3
s_and_b32 s23, s3, 1
s_lshl_b32 s23, s23, 3
s_and_b32 s24, s22, 7
s_add_u32 s23, s23, s24
s_lshr_b32 s24, s3, 1
s_lshl_b32 s24, s24, 2
s_lshr_b32 s25, s22, 3
s_add_u32 s24, s24, s25
v_lshrrev_b32 v1, 6, v0
v_and_b32 v2, 63, v0
v_readfirstlane_b32 s25, v1
s_cmp_lt_u32 s25, 8
s_cbranch_scc1 K4_cons
s_sub_u32 s25, s25, 8
""")
    for q in range(3):
        a(f"""v_add_u32 v10, {64*q}, v2
v_mul_u32_u24 v11, 43691, v10
v_lshrrev_b32 v11, 19, v11
v_mul_u32_u24 v12, 12, v11
v_sub_u32 v12, v10, v12
v_lshrrev_b32 v13, 2, v11
v_and_b32 v13, 2, v13
v_xor_b32 v12, v12, v13
v_mul_u32_u24 v11, 3072, v11
v_lshl_add_u32 v11, v12, 4, v11
v_subrev_u32 v{3+q}, {1024*q}, v11""")
    for q in range(4):
        a(f"""v_lshrrev_b32 v10, 4, v2
v_add_u32 v10, {4*q}, v10
v_xor_b32 v10, v10, v2
v_and_b32 v10, 7, v10
v_lshrrev_b32 v11, 3, v2
v_mul_u32_u24 v11, 1280, v11
v_lshl_add_u32 v11, v10, 4, v11
v_add_u32 v{6+q}, {q*(10240-1024)}, v11""")
    a(f"""
s_and_b32 s26, s25, 1
s_mul_i32 s27, s26, {16*3072}
s_mul_i32 s28, s24, 192
s_add_u32 s27, s27, s28
s_mul_i32 s28, s25, 3072
s_lshl_b32 s29, s23, 2
s_add_u32 s29, s29, s25
s_mul_i32 s29, s29, 40960
s_add_u32 s29, s29, {H2F}
s_lshl_b32 s30, s25, 12
s_waitcnt lgkmcnt(0)
s_cmp_lt_u32 s25, 2
s_cselect_b32 s8, s4, s6
s_cselect_b32 s9, s5, s7
s_mov_b32 s10, {640*3072}
s_mov_b32 s11, 0x00020000
""")
    srd(a, 12, 20, WS_SIZE)
    cnt = []
    def issue(s):
        n = 0
        if s % 2 == 0:
            a(f"s_add_u32 m0, s30, {HB + ((s//2) % 4)*HS}")
            for q in range(4):
                a(f"buffer_load_dwordx4 v{6+q}, s[12:15], s29 offen offset:{1024*q} lds")
            a("s_add_u32 s29, s29, 128"); n += 4
        a(f"s_add_u32 m0, s28, {(s % 8)*WS_}")
        for q in range(3):
            a(f"buffer_load_dwordx4 v{3+q}, s[8:11], s27 offen offset:{1024*q} lds")
        a(f"s_add_u32 s27, s27, {32*3072}"); n += 3
        cnt.append(n)
    init, sched = ramp(NST, 6)
    for s in init: issue(s)
    for s in range(NST):
        a(f"s_waitcnt vmcnt({sum(cnt[s+1:])})\ns_barrier")
        for g in sched[s]: issue(g)
    a("@stamp\n@dump 12\ns_endpgm")
    a.st.n = 1
    a(f"""K4_cons:
s_lshr_b32 s26, s25, 2
s_and_b32 s27, s25, 3
v_lshrrev_b32 v3, 4, v2
v_bfe_u32 v4, v2, 2, 2
v_lshl_add_u32 v4, v3, 3, v4
v_mul_u32_u24 v4, 192, v4
v_and_b32 v5, 3, v2
v_lshl_add_u32 v4, v5, 3, v4
v_and_b32 v5, 1, v3
v_lshlrev_b32 v5, 5, v5
s_mul_i32 s28, s26, 96
v_add_u32 v4, s28, v4
s_cmp_eq_u32 s26, 0
s_cselect_b32 s29, 1, -1
v_mul_lo_u32 v5, v5, s29
v_add_u32 v6, v4, v5
v_sub_u32 v7, v4, v5
v_add_u32 v8, {4*WS_}, v6
v_add_u32 v9, {4*WS_}, v7
v_and_b32 v10, 15, v2
v_lshrrev_b32 v11, 1, v10
v_xor_b32 v11, v11, v3
v_lshlrev_b32 v11, 4, v11
v_lshl_add_u32 v11, v10, 7, v11
s_lshl_b32 s28, s27, 12
s_add_u32 s28, s28, {HB}
v_add_u32 v11, s28, v11
v_xor_b32 v12, 64, v11
s_waitcnt lgkmcnt(0)
""")
    srd(a, 12, 20, WS_SIZE)
    ACC = lambda mat, i, nt: 16 + 4*(6*nt + 3*mat + i)
    FA = lambda buf, mat, i: 64 + 32*buf + 4*(3*mat+i)
    FB = lambda buf, nt: 88 + 32*buf + 4*nt
    def reads(s):
        L = []; sl = s % 8
        for nt in range(2):
            f = FB(s & 1, nt)
            L.append(f"ds_read_b128 v[{f}:{f+3}], v{11 + (s & 1)} offset:{((s//2) % 4)*HS + 2048*nt}")
        for mat in range(2):
            for i in range(3):
                for x in range(2):
                    f = FA(s & 1, mat, i) + 2*x
                    L.append(f"ds_read_b64_tr_b16 v[{f}:{f+1}], v{6 + (i & 1) + 2*(sl//4)} offset:{(sl % 4)*WS_ + mat*6144 + 4*x*192 + 32*i}")
        return L
    a("s_barrier\n@stamp")
    for l in reads(0): a(l)
    for s in range(NST):
        a("s_waitcnt lgkmcnt(0)")
        R = []
        if s+1 < NST:
            a("s_barrier"); R = reads(s+1)
        k = 0
        for mat in range(2):
            for i in range(3):
                for nt in range(2):
                    c = ACC(mat, i, nt); fa = FA(s & 1, mat, i); fb = FB(s & 1, nt)
                    if 'nomfma' not in OPT: a(f"v_mfma_f32_16x16x32_bf16 v[{c}:{c+3}], v[{fa}:{fa+3}], v[{fb}:{fb+3}], {'0' if s == 0 else f'v[{c}:{c+3}]'}")
                    if 'nords' not in OPT:
                        for l in R[2*k:2*k+2]: a(l)
                    k += 1
    a("@stamp")
    kk = 2*0.7978845608028654*math.log2(math.e)
    a(f"""s_mov_b32 s30, {fh(-kk)}
s_mov_b32 s31, {fh(-kk*0.044715)}
v_mov_b32 v10, s30
s_lshl_b32 s29, s23, 3
s_lshl_b32 s28, s27, 1
s_add_u32 s29, s29, s28
s_mul_i32 s29, s29, 49152
s_mul_i32 s28, s24, 3072
s_add_u32 s29, s29, s28
s_mul_i32 s28, s26, 1536
s_add_u32 s29, s29, s28
s_add_u32 s29, s29, {HIDF}
s_add_u32 s28, s29, 49152
v_lshlrev_b32 v7, 3, v2""")
    for nt in range(2):
        G = ACC(0, 0, nt); U = ACC(1, 0, nt); T = 64 + 16*nt
        for i in range(12): a(f"v_mul_f32 v{T+i}, v{G+i}, v{G+i}")
        for i in range(12): a(f"v_fma_f32 v{T+i}, v{T+i}, s31, v10")
        for i in range(12): a(f"v_mul_f32 v{T+i}, v{T+i}, v{G+i}")
        for i in range(12): a(f"v_exp_f32 v{T+i}, v{T+i}\nv_mul_f32 v{G+i}, v{G+i}, v{U+i}")
        for i in range(12): a(f"v_add_f32 v{T+i}, 1.0, v{T+i}")
        for i in range(12): a(f"v_rcp_f32 v{T+i}, v{T+i}")
        for i in range(12): a(f"v_mul_f32 v{G+i}, v{G+i}, v{T+i}")
        for i in range(3):
            O = 96 + 8*nt + 2*i
            a(f"""v_cvt_pk_bf16_f32 v{O}, v{G+4*i}, v{G+4*i+1}
v_cvt_pk_bf16_f32 v{O+1}, v{G+4*i+2}, v{G+4*i+3}
buffer_store_dwordx2 v[{O}:{O+1}], v7, s[12:15], s{29-nt} offen offset:{512*i}""")
    a("@stamp\n@dump 12\nK4_end:\ns_endpgm")
    return ('k4_kernel', (256,1,1), (768,1,1), 163840, kd_block('k4_kernel', 128, 96))

def k5(a):
    head(a, 'k5_kernel')
    NST = 24; SLOT = 18432; NS = 8
    a(f"""
s_cmp_ge_u32 s2, 256
s_cbranch_scc1 K5_end
@stamp
s_load_dwordx2 s[4:5], s[0:1], 48
s_load_dwordx2 s[6:7], s[0:1], 72
s_load_dwordx2 s[20:21], s[0:1], 88
s_and_b32 s3, s2, 7
s_lshr_b32 s22, s2, 3
s_and_b32 s23, s3, 3
s_lshl_b32 s23, s23, 3
s_and_b32 s24, s22, 7
s_add_u32 s23, s23, s24
s_lshr_b32 s24, s3, 2
s_lshl_b32 s24, s24, 2
s_lshr_b32 s25, s22, 3
s_add_u32 s24, s24, s25
v_lshrrev_b32 v1, 6, v0
v_and_b32 v2, 63, v0
v_readfirstlane_b32 s25, v1
s_cmp_lt_u32 s25, 4
s_cbranch_scc1 K5_cons
s_cmp_ge_u32 s25, 6
s_cbranch_scc1 K5_prodh
s_sub_u32 s25, s25, 4
""")
    init, sched = ramp(NST, 7)
    for q in range(5):
        a(f"""v_add_u32 v8, {64*q}, v2
v_mul_u32_u24 v9, 52429, v8
v_lshrrev_b32 v9, 19, v9
v_mul_u32_u24 v10, 10, v9
v_sub_u32 v10, v8, v10
v_mul_u32_u24 v9, 1280, v9
v_lshl_add_u32 v9, v10, 4, v9
v_subrev_u32 v{3+q}, {1024*q if q < 4 else 0}, v9""")
    a(f"""
s_mul_i32 s27, s25, {32*1280}
s_mul_i32 s28, s24, 160
s_add_u32 s27, s27, s28
s_mul_i32 s28, s25, 5120
s_waitcnt lgkmcnt(0)
""")
    srd(a, 8, 4, 1536*1280)
    srd(a, 12, 20, WS_SIZE)
    def issue_w(s):
        a(f"s_add_u32 m0, s28, {(s % NS)*SLOT}")
        for q in range(4):
            a(f"buffer_load_dwordx4 v{3+q}, s[8:11], s27 offen offset:{1024*q} lds")
        a(f"s_add_u32 m0, s28, {(s % NS)*SLOT + 4096}")
        a(f"buffer_load_dwordx4 v7, s[8:11], s27 offen lds")
        a(f"s_add_u32 s27, s27, {64*1280}")
    n = 0
    for s in init: issue_w(s); n += 1
    for s in range(NST):
        a(f"s_waitcnt vmcnt({5*(n-s-1)})\ns_barrier")
        for g in sched[s]: issue_w(g); n += 1
    a("@stamp\n@dump 12\ns_endpgm")
    a.st.n = 1
    a(f"""K5_prodh:
s_sub_u32 s25, s25, 6
s_lshl_b32 s29, s23, 2
s_lshl_b32 s28, s25, 1
s_add_u32 s29, s29, s28
s_mul_i32 s29, s29, 49152
s_add_u32 s29, s29, {HIDF}
s_lshl_b32 s28, s25, 12
s_add_u32 s28, s28, 10240
v_lshlrev_b32 v3, 4, v2
v_add_u32 v4, {49152-2048}, v3
s_waitcnt lgkmcnt(0)
""")
    srd(a, 12, 20, WS_SIZE)
    def issue_h(s):
        a(f"s_add_u32 m0, s28, {(s % NS)*SLOT}")
        for q in range(4):
            a(f"buffer_load_dwordx4 v{3+q//2}, s[12:15], s29 offen offset:{1024*q} lds")
        a("s_add_u32 s29, s29, 2048")
    n = 0
    for s in init: issue_h(s); n += 1
    for s in range(NST):
        a(f"s_waitcnt vmcnt({4*(n-s-1)})\ns_barrier")
        for g in sched[s]: issue_h(g); n += 1
    a("@stamp\n@dump 12\ns_endpgm")
    a.st.n = 1
    a(f"""K5_cons:
s_lshl_b32 s30, s23, 2
s_add_u32 s30, s30, s25
s_lshl_b32 s30, s30, 4
v_lshrrev_b32 v3, 2, v2
v_mul_u32_u24 v3, 160, v3
v_and_b32 v4, 3, v2
v_lshl_add_u32 v3, v4, 3, v3
v_add_u32 v4, {3*SLOT}, v3
v_add_u32 v5, {6*SLOT}, v3
s_lshl_b32 s28, s25, 11
s_add_u32 s28, s28, 10240
v_lshlrev_b32 v6, 3, v2
v_add_u32 v6, s28, v6
v_add_u32 v7, {3*SLOT}, v6
v_add_u32 v8, {6*SLOT}, v6
v_and_b32 v12, 15, v2
v_lshrrev_b32 v13, 4, v2
v_mul_u32_u24 v14, 1280, v12
v_lshl_add_u32 v14, v13, 3, v14
s_mul_i32 s26, s30, 1280
s_mul_i32 s27, s24, 160
s_add_u32 s26, s26, s27
s_add_u32 s26, s26, {X1}
v_lshlrev_b32 v15, 4, v13
s_lshl_b32 s28, s27, 1
s_add_u32 s28, s28, 12800
s_waitcnt lgkmcnt(0)
""")
    srd(a, 12, 20, WS_SIZE)
    srd(a, 16, 6, 2048*1280)
    ACC = lambda mt: 16 + 4*mt
    FA = lambda buf, u, mt: 36 + 48*buf + 24*u + 4*mt
    FB = lambda buf, u: 36 + 48*buf + 24*u + 20
    def reads(s):
        L = []; sl = s % NS
        for u in range(2):
            for x in range(2):
                f = FB(s & 1, u) + 2*x
                L.append(f"ds_read_b64 v[{f}:{f+1}], v{6+sl//3} offset:{(sl % 3)*SLOT + 1024*u + 512*x}")
            for mt in range(5):
                for x in range(2):
                    f = FA(s & 1, u, mt) + 2*x
                    L.append(f"ds_read_b64_tr_b16 v[{f}:{f+1}], v{3+sl//3} offset:{(sl % 3)*SLOT + u*5120 + x*2560 + 32*mt}")
        return L
    a("s_barrier\n@stamp")
    for l in reads(0): a(l)
    for s in range(NST):
        a("s_waitcnt lgkmcnt(0)")
        R = []
        if s+1 < NST:
            a("s_barrier"); R = reads(s+1)
        if s == NST-6:
            for mt in range(5):
                a(f"buffer_load_dwordx2 v[{132+2*mt}:{133+2*mt}], v14, s[12:15], s26 offen offset:{32*mt}")
                a(f"buffer_load_dwordx4 v[{144+4*mt}:{147+4*mt}], v15, s[12:15], s28 offen offset:{64*mt}")
        k = 0
        for u in range(2):
            for mt in range(5):
                c = ACC(mt); fa = FA(s & 1, u, mt); fb = FB(s & 1, u)
                if 'nomfma' not in OPT: a(f"v_mfma_f32_16x16x32_bf16 v[{c}:{c+3}], v[{fa}:{fa+3}], v[{fb}:{fb+3}], {'0' if (s, u) == (0, 0) else f'v[{c}:{c+3}]'}")
                if 'nords' not in OPT:
                    for l in R[3*k:3*k+3]: a(l)
                k += 1
    a(f"""@stamp
s_and_b32 s26, s30, 63
s_lshl_b32 s26, s26, 5
s_lshr_b32 s29, s30, 6
s_add_u32 s26, s26, s29
s_mul_i32 s26, s26, 1280
s_add_u32 s26, s26, s27
v_mul_u32_u24 v14, 40960, v12
v_lshl_add_u32 v14, v13, 3, v14
s_waitcnt vmcnt(0)""")
    for mt in range(5):
        c = ACC(mt); x = 132+2*mt; g = 144+4*mt
        a(f"""v_lshlrev_b32 v36, 16, v{x}
v_and_b32 v37, 0xffff0000, v{x}
v_lshlrev_b32 v38, 16, v{x+1}
v_and_b32 v39, 0xffff0000, v{x+1}
v_fmac_f32 v36, v{c}, v{g}
v_fmac_f32 v37, v{c+1}, v{g+1}
v_fmac_f32 v38, v{c+2}, v{g+2}
v_fmac_f32 v39, v{c+3}, v{g+3}
v_cvt_pk_bf16_f32 v{x}, v36, v37
v_cvt_pk_bf16_f32 v{x+1}, v38, v39
buffer_store_dwordx2 v[{x}:{x+1}], v14, s[16:19], s26 offen offset:{32*mt}""")
    a("@stamp\n@dump 12\nK5_end:\ns_endpgm")
    return ('k5_kernel', (256,1,1), (512,1,1), NS*SLOT, kd_block('k5_kernel', 164, 96))

def build(kernels, path):
    a = Asm2(); infos = []
    for k in kernels:
        infos.append(k(a))
    if 'k4twice' in OPT: infos.insert(4, infos[4][:4] + ('',))
    if 'empty4' in OPT:
        for i in range(4):
            a(f".globl e{i}_kernel\n.p2align 8\n.type e{i}_kernel,@function\ne{i}_kernel:\ns_endpgm")
            infos.append((f'e{i}_kernel', (256,1,1), (256,1,1), 0, kd_block(f'e{i}_kernel', 8, 16)))
    a("CODE_END:\ns_endpgm")
    hdr = open('adaLN_cond__spectral_gfnet__glu_gated_geglu__prompt.s.ref').read().split('\n')[:13]
    s = '\n'.join(hdr) + '\n'
    for n, g, b, l, _ in infos:
        s += f"; @launch kernel={n} grid=({g[0]},{g[1]},{g[2]}) block=({b[0]},{b[1]},{b[2]}) lds={l}\n"
    s += '.amdgcn_target "amdgcn-amd-amdhsa--gfx950"\n.text\n' + a.text() + '.section .rodata,"a"\n'
    for i in infos: s += i[4]
    open(path, 'w').write(s)
if __name__ == '__main__':
    args = sys.argv[1:]
    out = 'cur.s'
    for x in args:
        if x == 'stamp': STAMPS = True
        elif x.endswith('.s'): out = x
        else: OPT.add(x)
    build([k0, k1, k2, k3, k4, k5], out)
```

```python
import sys, math, struct
sys.path.insert(0,'work')
from asmlib import *
def f2u(x): return struct.unpack('<I', struct.pack('<f', x))[0]
def fh(x): return '0x%08x' % f2u(x)
MOD=0; XF=0x100000; YF=0x400000; WP=0x700000; X1=0xA00000; H2F=0xD00000; HIDF=0x1000000; WS_SIZE=0x1A00000
DPP='row_mask:0xf bank_mask:0xf'

STAMPS = False
OPT = set()
DBG = 0x1640000
class Stamper:
    def __init__(self, a, kid): self.a=a; self.kid=kid; self.n=0
    def __call__(self):
        if not STAMPS: return
        if self.n == 0: self.a("s_memtime s[64:65]")
        self.a(f"s_memrealtime s[{70+2*self.n}:{71+2*self.n}]"); self.n += 1
    def dump(self, srd_ws, wgreg='s2', drain=True):
        if not STAMPS: return
        a = self.a
        if drain:
            a("s_waitcnt vmcnt(0)"); self()
        a(f"""s_memtime s[66:67]
s_waitcnt lgkmcnt(0)
s_sub_u32 s66, s66, s64
s_mov_b64 exec, 1
v_lshrrev_b32 v1, 6, v0
v_lshlrev_b32 v1, 6, v1
s_lshl_b32 s68, {wgreg}, 10
s_add_u32 s68, s68, {DBG + self.kid*0x80000}""")
        a(f"v_mov_b32 v2, s66\nbuffer_store_dword v2, v1, s[{srd_ws}:{srd_ws+3}], s68 offen offset:60")
        for k in range(self.n):
            a(f"v_mov_b32 v2, s{70+2*k}\nbuffer_store_dword v2, v1, s[{srd_ws}:{srd_ws+3}], s68 offen offset:{4*k}")
class Asm2(Asm):
    def emit(self, line):
        if line == '@stamp': self.st(); return
        if line == '@k0exp':
            if 'k0small' in OPT:
                for l in ("s_and_b32 s3, s2, 7", "s_mul_i32 s3, s3, 10", "s_lshr_b32 s22, s2, 3", "s_add_u32 s3, s3, s22", "s_cmp_ge_u32 s2, 80", "s_cbranch_scc1 K0_end"): Asm.emit(self, l)
            return
        if 'noload' in OPT and line.endswith(' lds'): return
        if 'nowload' in OPT and line.endswith(' lds') and 's[8:11]' in line: return
        if 'nohload' in OPT and line.endswith(' lds') and 's[12:15]' in line: return
        if line.startswith('@dump'):
            p = line.split(); self.st.dump(int(p[1]), p[2] if len(p) > 2 else 's2'); return
        Asm.emit(self, line)
def head(a, name):
    a.st = Stamper(a, int(name[1]))
    a(f""".globl {name}
.p2align 8
.type {name},@function
{name}:""")
def srd(a, d, p, size):
    a(f"""s_mov_b32 s{d}, s{p}
s_mov_b32 s{d+1}, s{p+1}
s_mov_b32 s{d+2}, {size}
s_mov_b32 s{d+3}, 0x00020000""")

def k0(a):
    head(a, 'k0_kernel')
    NW0 = 496 + (174 if 'pf' in OPT else 0)
    a(f"""
s_cmp_ge_u32 s2, {NW0}
s_cbranch_scc1 K0_end""")
    if 'pf' in OPT: a("s_cmp_ge_u32 s2, 496\ns_cbranch_scc1 K0_pf")
    a("""
@stamp
s_mov_b32 s69, s2
s_load_dwordx4 s[4:7], s[0:1], 56
s_load_dwordx2 s[20:21], s[0:1], 88
s_load_dwordx4 s[24:27], s[0:1], 8
s_cmp_ge_u32 s2, 240
s_cbranch_scc1 K0_wprep
v_readfirstlane_b32 s28, v0
s_cmp_ge_u32 s28, 320
s_cbranch_scc1 K0_end
s_and_b32 s3, s2, 7
s_mul_i32 s3, s3, 30
s_lshr_b32 s22, s2, 3
s_add_u32 s3, s3, s22
s_lshl_b32 s22, s3, 5
v_lshrrev_b32 v1, 1, v0
v_and_b32 v2, 1, v0
v_mul_u32_u24 v3, 7680, v1
v_lshl_add_u32 v3, v2, 4, v3
v_add_u32 v3, s22, v3
v_lshlrev_b32 v4, 1, v1
s_waitcnt lgkmcnt(0)
@stamp
""")
    srd(a, 8, 4, 1280)
    srd(a, 12, 6, 640*3840*2)
    srd(a, 16, 20, WS_SIZE)
    NR = 4
    for i in range(NR):
        a(f"buffer_load_short_d16_hi v{28+i}, v4, s[8:11], 0 offen offset:{320*i}")
    a("s_mov_b32 s23, 0")
    for i in range(NR):
        a(f"buffer_load_dwordx4 v[{8+4*i}:{11+4*i}], v3, s[12:15], s23 offen")
        if i < NR-1: a(f"s_add_u32 s23, s23, {160*7680}")
    a(f"s_waitcnt vmcnt({NR})")
    for i in range(NR): a(f"v_mul_f32 v{33+i}, {fh(-math.log2(math.e))}, v{28+i}")
    for i in range(NR): a(f"v_exp_f32 v{33+i}, v{33+i}")
    for i in range(NR): a(f"v_add_f32 v{33+i}, 1.0, v{33+i}")
    for i in range(NR): a(f"v_rcp_f32 v{33+i}, v{33+i}")
    for i in range(NR): a(f"v_mul_f32 v{28+i}, v{28+i}, v{33+i}")
    for i in range(NR): a(f"v_cvt_pk_bf16_f32 v{28+i}, v{28+i}, v{28+i}")
    for i in range(NR): a(f"v_and_b32 v{48+2*i}, 0xffff0000, v{28+i}")
    a("""v_and_b32 v5, 15, v0
v_lshrrev_b32 v6, 4, v0
v_lshlrev_b32 v7, 6, v6
v_lshl_add_u32 v7, v2, 5, v7""")
    for i in range(NR):
        a(f"s_waitcnt vmcnt({NR-1-i})")
        if i == NR-1: a("@stamp")
        for j in range(4):
            a(f"v_lshlrev_b32 v{32+2*j}, 16, v{8+4*i+j}\nv_and_b32 v{33+2*j}, 0xffff0000, v{8+4*i+j}")
        for j in range(4):
            if i == 0: a(f"v_pk_mul_f32 v[{40+2*j}:{41+2*j}], v[{32+2*j}:{33+2*j}], v[48:49] op_sel_hi:[1,0]")
            else: a(f"v_pk_fma_f32 v[{40+2*j}:{41+2*j}], v[{32+2*j}:{33+2*j}], v[{48+2*i}:{49+2*i}], v[{40+2*j}:{41+2*j}] op_sel_hi:[1,0,1]")
    for mode in ('quad_perm:[2,3,0,1]', 'row_ror:4', 'row_ror:8'):
        for j in range(8):
            a(f"v_add_f32_dpp v{40+j}, v{40+j}, v{40+j} {mode} {DPP}")
    a("""
v_cmp_gt_u32 vcc, 2, v5
s_and_saveexec_b64 s[24:25], vcc
ds_write_b128 v7, v[40:43]
ds_write_b128 v7, v[44:47] offset:16
s_mov_b64 exec, s[24:25]
s_waitcnt lgkmcnt(0)
s_barrier
s_cmp_ge_u32 s28, 64
s_cbranch_scc1 K0_end
v_mul_u32_u24 v7, 320, v6
v_lshl_add_u32 v7, v5, 2, v7
ds_read_b32 v8, v7
ds_read_b32 v9, v7 offset:64
ds_read_b32 v10, v7 offset:128
ds_read_b32 v11, v7 offset:192
ds_read_b32 v12, v7 offset:256
s_sub_u32 s24, s3, 40
s_cmp_lt_u32 s24, 40
s_cselect_b32 s25, 1.0, 0
s_sub_u32 s24, s3, 160
s_cmp_lt_u32 s24, 40
s_cselect_b32 s25, 1.0, s25
s_lshl_b32 s22, s3, 6
v_lshlrev_b32 v7, 2, v0
s_waitcnt lgkmcnt(0)
v_add_f32 v8, v8, v9
v_add_f32 v10, v10, v11
v_add_f32 v8, v8, v12
v_add_f32 v8, v8, v10
v_mov_b32 v9, v8
v_permlane16_swap_b32 v8, v9
v_add_f32 v8, v8, v9
v_mov_b32 v9, v8
v_permlane32_swap_b32 v8, v9
v_add_f32 v8, v8, v9
v_cvt_pk_bf16_f32 v8, v8, v8
v_and_b32 v8, 0xffff0000, v8
v_add_f32 v8, s25, v8
v_cvt_pk_bf16_f32 v8, v8, v8
v_and_b32 v8, 0xffff0000, v8
v_cmp_gt_u32 vcc, 16, v0
s_and_saveexec_b64 s[24:25], vcc
buffer_store_dword v8, v7, s[16:19], s22 offen
@dump 16
s_endpgm
""")
    a.st.n = 1
    a(f"""
K0_wprep:
s_sub_u32 s2, s2, 240
v_cmp_gt_u32 vcc, 321, v0
s_and_saveexec_b64 s[30:31], vcc
s_cbranch_execz K0_end
s_and_b32 s3, s2, 7
s_lshr_b32 s22, s2, 3
s_and_b32 s23, s22, 3
s_lshl_b32 s3, s3, 2
s_add_u32 s3, s3, s23
s_bfe_u32 s23, s22, 0x10002
s_lshl_b32 s23, s23, 5
s_add_u32 s3, s3, s23
s_lshr_b32 s22, s22, 3
s_lshl_b32 s23, s22, 8
s_add_u32 s23, s23, s3
s_mul_i32 s23, s23, 642
v_lshlrev_b32 v1, 1, v0
s_waitcnt lgkmcnt(0)
""")
    srd(a, 8, 24, 2048*642)
    srd(a, 12, 26, 2048*642)
    srd(a, 16, 20, WS_SIZE)
    for mt in range(2):
        for i in range(4):
            a(f"buffer_load_ushort v{4+4*mt+i}, v1, s[8:11], s23 offen")
            a(f"buffer_load_short_d16_hi v{12+4*mt+i}, v1, s[12:15], s23 offen")
            if (mt, i) != (1, 3): a(f"s_add_u32 s23, s23, {41088 if i < 3 else 41088*13}")
    a(f"""
s_lshr_b32 s23, s3, 4
s_lshl_b32 s23, s23, 11
s_and_b32 s28, s3, 15
s_lshl_b32 s29, s22, 4
s_add_u32 s28, s28, s29
s_lshl_b32 s28, s28, 5
s_add_u32 s23, s23, s28
s_add_u32 s23, s23, {WP}
v_lshlrev_b32 v1, 13, v0
@stamp
s_waitcnt vmcnt(0)
@stamp
""")
    for k in range(8): a(f"v_or_b32 v{4+k}, v{4+k}, v{12+k}")
    a("""buffer_store_dwordx4 v[4:7], v1, s[16:19], s23 offen
buffer_store_dwordx4 v[8:11], v1, s[16:19], s23 offen offset:16
@stamp
@dump 16 s69
s_endpgm""")
    if 'pf' in OPT:
        a(f"""K0_pf:
s_sub_u32 s3, s2, 496
s_mov_b32 s20, 0
s_mov_b32 s21, {2048*1280}
s_cmp_ge_u32 s3, 54
s_cselect_b32 s20, 32, s20
s_cselect_b32 s21, {640*3072}, s21
s_cselect_b32 s22, 54, 0
s_cmp_ge_u32 s3, 94
s_cselect_b32 s20, 40, s20
s_cselect_b32 s22, 94, s22
s_cmp_ge_u32 s3, 134
s_cselect_b32 s20, 48, s20
s_cselect_b32 s22, 134, s22
s_load_dwordx2 s[8:9], s[0:1], s20
s_sub_u32 s3, s3, s22
s_mul_i32 s3, s3, {384*128}
v_lshlrev_b32 v1, 7, v0
s_mov_b32 s10, s21
s_mov_b32 s11, 0x00020000
s_waitcnt lgkmcnt(0)
buffer_load_dword v2, v1, s[8:11], s3 offen
s_waitcnt vmcnt(0)""")
    a("K0_end:\ns_endpgm")
    return ('k0_kernel', (NW0,1,1), (384,1,1), 1280, kd_block('k0_kernel', 56, 96))

C1,C2,S1,S2 = math.cos(2*math.pi/5),math.cos(4*math.pi/5),math.sin(2*math.pi/5),math.sin(4*math.pi/5)
def P(r): return f"v[{r}:{r+1}]"
def Q(r): return f"v[{r}:{r+3}]"

def col_slots(a, sW, vN, vG, out, tmp):
    a(f"""v_and_b32 v{tmp}, 7, v{vN}
s_lshl_b32 s40, s{sW}, 3
v_add_u32 v{out}, s40, v{tmp}
v_cmp_eq_u32 vcc, 0, v{out}
v_cndmask_b32 v{out+2}, 1.0, 0, vcc
v_cmp_lt_u32 s[42:43], 7, v{vN}
s_and_b64 s[44:45], s[42:43], vcc
s_andn2_b64 s[42:43], s[42:43], vcc
v_cndmask_b32 v{out}, v{out}, 64, s[44:45]
v_cndmask_b32 v{out+1}, 0, -1, s[42:43]
v_sub_u32 v{tmp}, 128, v{out}
v_cndmask_b32 v{tmp}, v{out}, v{tmp}, s[42:43]
v_mul_u32_u24 v{tmp}, 5, v{tmp}
v_lshrrev_b32 v{tmp+1}, 1, v{vG}
v_lshl_add_u32 v{tmp}, v{tmp+1}, 7, v{tmp}
v_add_u32 v{tmp+1}, 128, v{tmp}
v_subrev_u32 v{tmp+2}, 640, v{tmp+1}
v_min_u32 v{tmp+1}, v{tmp+1}, v{tmp+2}
v_sub_u32 v{tmp+2}, 640, v{tmp+1}
v_cmp_lt_u32 vcc, v{tmp+2}, v{tmp+1}
v_min_u32 v{tmp+1}, v{tmp+1}, v{tmp+2}
v_mov_b32 v{tmp+2}, 0x80008000
v_cndmask_b32 v{out+4}, 0, v{tmp+2}, vcc
v_and_b32 v{tmp+3}, 1, v{vG}
v_lshlrev_b32 v{tmp+3}, 4, v{tmp+3}
v_lshl_add_u32 v{out+3}, v{tmp+1}, 13, v{tmp+3}
v_mul_u32_u24 v{tmp+1}, 40960, v{out}
v_add_u32 v{out+5}, v{tmp+1}, v{tmp+3}""")

def allreduce64(a, v, t):
    for mode in ('quad_perm:[1,0,3,2]', 'quad_perm:[2,3,0,1]', 'row_ror:4', 'row_ror:8'):
        a(f"v_add_f32_dpp v{v}, v{v}, v{v} {mode} {DPP}")
    a(f"""v_mov_b32 v{t}, v{v}
v_permlane16_swap_b32 v{v}, v{t}
v_add_f32 v{v}, v{v}, v{t}
v_mov_b32 v{t}, v{v}
v_permlane32_swap_b32 v{v}, v{t}
v_add_f32 v{v}, v{v}, v{t}""")

def row_ids(a):
    a("""s_and_b32 s3, s2, 7
s_lshr_b32 s20, s2, 3
s_lshl_b32 s3, s3, 2
s_lshr_b32 s21, s20, 3
s_add_u32 s3, s3, s21
s_and_b32 s20, s20, 7
v_lshrrev_b32 v4, 6, v0
v_and_b32 v1, 63, v0
v_readfirstlane_b32 s22, v4
v_and_b32 v3, 31, v0
v_lshlrev_b32 v2, 3, v3
v_bfe_u32 v4, v0, 5, 1
v_lshl_add_u32 v2, v4, 8, v2
v_lshlrev_b32 v3, 2, v3
v_lshl_add_u32 v3, v4, 1, v3""")
def w5_consts(a, o, t, sgn):
    a(f"""v_cvt_f32_u32 v{t}, v3
v_mul_f32 v{t}, {fh(0.2*sgn)}, v{t}
v_add_f32 v{t+1}, {fh(0.2*sgn)}, v{t}
v_cos_f32 v{o}, v{t}
v_cos_f32 v{o+1}, v{t+1}
v_sin_f32 v{o+2}, v{t}
v_sin_f32 v{o+3}, v{t+1}
v_pk_add_f32 {P(t)}, {P(t)}, {P(t)}
v_cos_f32 v{o+4}, v{t}
v_cos_f32 v{o+5}, v{t+1}
v_sin_f32 v{o+6}, v{t}
v_sin_f32 v{o+7}, v{t+1}""")
def ln_rows(a, X, t):
    a(f"""v_pk_add_f32 {P(t)}, {P(X)}, {P(X+2)}
v_pk_add_f32 {P(t+2)}, {P(X+4)}, {P(X+6)}
v_pk_add_f32 {P(t)}, {P(t)}, {P(X+8)}
v_pk_add_f32 {P(t)}, {P(t)}, {P(t+2)}
v_add_f32 v{t}, v{t}, v{t+1}""")
    allreduce64(a, t, t+1)
    a(f"v_mul_f32 v{t}, {fh(-1/640)}, v{t}")
    for j in range(5): a(f"v_pk_add_f32 {P(X+2*j)}, {P(X+2*j)}, {P(t)} op_sel_hi:[1,0]")
    a(f"""v_pk_mul_f32 {P(t)}, {P(X)}, {P(X)}
v_pk_mul_f32 {P(t+2)}, {P(X+2)}, {P(X+2)}
v_pk_fma_f32 {P(t)}, {P(X+4)}, {P(X+4)}, {P(t)}
v_pk_fma_f32 {P(t+2)}, {P(X+6)}, {P(X+6)}, {P(t+2)}
v_pk_fma_f32 {P(t)}, {P(X+8)}, {P(X+8)}, {P(t)}
v_pk_add_f32 {P(t)}, {P(t)}, {P(t+2)}
v_add_f32 v{t}, v{t}, v{t+1}""")
    allreduce64(a, t, t+1)
    a(f"""v_mov_b32 v{t+1}, {fh(1e-5)}
v_fmac_f32 v{t+1}, {fh(1/640)}, v{t}
v_rsq_f32 v{t}, v{t+1}""")
def unpack_x(a, src, X):
    for k in range(3): a(f"v_permlane32_swap_b32 v{src+2*k}, v{src+2*k+1}")
    for j in range(5): a(f"v_lshlrev_b32 v{X+2*j}, 16, v{src+j}\nv_and_b32 v{X+2*j+1}, 0xffff0000, v{src+j}")
def r5_sconsts(a):
    a(f"""s_mov_b32 s30, {fh(C1)}
s_mov_b32 s31, {fh(C1)}
s_mov_b32 s32, {fh(C2)}
s_mov_b32 s33, {fh(C2)}
s_mov_b32 s34, {fh(S1)}
s_mov_b32 s35, {fh(S1)}
s_mov_b32 s36, {fh(S2)}
s_mov_b32 s37, {fh(S2)}""")

def k1(a):
    head(a, 'k1_kernel')
    PB = 12288
    a("""
s_cmp_ge_u32 s2, 256
s_cbranch_scc1 K1_end
@stamp
s_load_dwordx2 s[4:5], s[0:1], 0
s_load_dwordx2 s[6:7], s[0:1], 88
""")
    row_ids(a)
    a(f"""
s_lshl_b32 s21, s20, 3
s_add_u32 s21, s21, s22
s_lshl_b32 s21, s21, 5
s_add_u32 s21, s21, s3
s_mul_i32 s21, s21, 1280
v_lshlrev_b32 v4, 4, v1
s_lshl_b32 s23, s22, 10
s_add_u32 m0, s23, {PB}
s_waitcnt lgkmcnt(0)
""")
    srd(a, 8, 4, 2048*1280)
    srd(a, 12, 6, WS_SIZE)
    for k in range(3):
        a(f"buffer_load_dwordx2 {P(16+2*k)}, v2, s[8:11], s21 offen offset:{512*k}")
    a("""s_cmp_ge_u32 s22, 5
s_cbranch_scc1 K1_nodma
buffer_load_dwordx4 v4, s[12:15], s23 offen lds
K1_nodma:
v_and_b32 v5, 15, v0
v_bfe_u32 v6, v0, 4, 2""")
    col_slots(a, 22, 5, 6, 8, 22)
    w5_consts(a, 88, 22, -1.0)
    a(f"""
v_cvt_f32_u32 v22, v8
v_mul_f32 v22, {fh(1/128)}, v22
v_cvt_f32_u32 v23, v6
v_mul_f32 v23, {fh(8.0)}, v23
v_and_b32 v24, {fh(0.25)}, v9
v_fma_f32 v23, v23, v22, -v24
v_mul_f32 v24, {fh(25.0)}, v22
""")
    for t in range(4):
        for jj in range(4):
            a(f"""v_cos_f32 v25, v23
v_add_f32 v23, v23, v22
v_cos_f32 v26, v23
v_add_f32 v23, v23, v{24 if jj == 3 else 22}
v_cvt_pk_bf16_f32 v{96+4*t+jj}, v25, v26""")
    a(f"""
v_lshrrev_b32 v22, 3, v3
v_xor_b32 v22, s22, v22
v_lshlrev_b32 v22, 4, v22
v_and_b32 v23, 7, v3
v_lshl_add_u32 v22, v23, 1, v22
s_lshl_b32 s23, s22, 8
v_add_u32 v14, s23, v22
v_xor_b32 v15, {2048+128}, v14
v_lshlrev_b32 v7, 2, v3
v_xor_b32 v22, v6, v5
""")
    for t in range(4):
        a(f"""v_xor_b32 v23, {4*t}, v22
v_lshlrev_b32 v23, 4, v23
v_lshl_add_u32 v{112+t}, v5, 8, v23""")
    r5_sconsts(a)
    a(f"""
s_lshl_b32 s23, s3, 8
s_lshl_b32 s21, s20, 5
s_add_u32 s23, s23, s21
s_add_u32 s23, s23, {XF}
@stamp
s_waitcnt vmcnt(0)
s_barrier
@stamp
""")
    for j in range(5):
        a(f"ds_read_b64 {P(40+2*j)}, v7 offset:{PB+2560+512*j}\nds_read_b64 {P(50+2*j)}, v7 offset:{PB+512*j}")
    unpack_x(a, 16, 28)
    ln_rows(a, 28, 22)
    a("s_waitcnt lgkmcnt(0)")
    for j in range(5): a(f"v_pk_mul_f32 {P(40+2*j)}, {P(40+2*j)}, {P(22)} op_sel_hi:[1,0]")
    for j in range(5): a(f"v_pk_fma_f32 {P(28+2*j)}, {P(28+2*j)}, {P(40+2*j)}, {P(50+2*j)}")
    h = {(3*j) % 5: 28+2*j for j in range(5)}
    t1,t2,t3,t4 = 40,42,44,46; z0,p1,q1,p2,q2 = 48,50,52,54,56
    a(f"""v_pk_add_f32 {P(t1)}, {P(h[1])}, {P(h[4])}
v_pk_add_f32 {P(t2)}, {P(h[2])}, {P(h[3])}
v_pk_add_f32 {P(t3)}, {P(h[1])}, {P(h[4])} neg_lo:[0,1] neg_hi:[0,1]
v_pk_add_f32 {P(t4)}, {P(h[2])}, {P(h[3])} neg_lo:[0,1] neg_hi:[0,1]
v_pk_add_f32 {P(z0)}, {P(h[0])}, {P(t1)}
v_pk_fma_f32 {P(p1)}, s[30:31], {P(t1)}, {P(h[0])}
v_pk_fma_f32 {P(p2)}, s[32:33], {P(t1)}, {P(h[0])}
v_pk_mul_f32 {P(q1)}, s[34:35], {P(t3)}
v_pk_mul_f32 {P(q2)}, s[36:37], {P(t3)}
v_pk_add_f32 {P(z0)}, {P(z0)}, {P(t2)}
v_pk_fma_f32 {P(p1)}, s[32:33], {P(t2)}, {P(p1)}
v_pk_fma_f32 {P(p2)}, s[30:31], {P(t2)}, {P(p2)}
v_pk_fma_f32 {P(q1)}, s[36:37], {P(t4)}, {P(q1)}
v_pk_fma_f32 {P(q2)}, s[34:35], {P(t4)}, {P(q2)} neg_lo:[0,1,0] neg_hi:[0,1,0]
v_cvt_pk_bf16_f32 v22, v{z0}, v{z0+1}
ds_write_b32 v14, v22 offset:8192""")
    for k, (p, q) in enumerate(((p1, q1), (p2, q2))):
        c, s = 88+4*k, 90+4*k; r, im = 28+4*k, 30+4*k
        a(f"""v_pk_mul_f32 {P(r)}, {P(p)}, {P(c)}
v_pk_mul_f32 {P(im)}, {P(p)}, {P(s)}
v_pk_fma_f32 {P(r)}, {P(q)}, {P(s)}, {P(r)}
v_pk_fma_f32 {P(im)}, {P(q)}, {P(c)}, {P(im)} neg_lo:[1,0,0] neg_hi:[1,0,0]
v_cvt_pk_bf16_f32 v{23+2*k}, v{r}, v{r+1}
v_cvt_pk_bf16_f32 v{24+2*k}, v{im}, v{im+1}
ds_write_b32 v{14+k}, v{23+2*k}
ds_write_b32 v{14+k}, v{24+2*k} offset:4096""")
    a("@stamp\ns_waitcnt lgkmcnt(0)\ns_barrier\n@stamp")
    for T in range(3):
        for t in range(4):
            a(f"ds_read_b128 {Q(28+16*T+4*t)}, v{112+t} offset:{4096*T}")
    n = 12
    for T in range(3):
        for t in range(4):
            n -= 1
            a(f"s_waitcnt lgkmcnt({n})")
            a(f"v_mfma_f32_16x16x32_bf16 {Q(76+4*T)}, {Q(28+16*T+4*t)}, {Q(96+4*t)}, {'0' if t == 0 else Q(76+4*T)}")
    a(f"""v_and_b32 v22, 0x80008000, v9
v_and_b32 v23, v9, v12
v_bfi_b32 v24, v9, v22, v12
v_cmp_neq_f32 vcc, 0, v10
v_pk_mul_f32 {P(28)}, {P(76)}, {P(10)} op_sel_hi:[1,0]
v_pk_mul_f32 {P(30)}, {P(78)}, {P(10)} op_sel_hi:[1,0]
v_pk_mul_f32 {P(32)}, {P(80)}, {P(10)} op_sel_hi:[1,0]
v_pk_mul_f32 {P(34)}, {P(82)}, {P(10)} op_sel_hi:[1,0]
v_cndmask_b32 v25, 0, -1, vcc""")
    for i in range(4):
        a(f"v_add_f32_dpp v{76+i}, v{32+i}, v{76+i} row_ror:8 {DPP}")
        a(f"v_subrev_f32_dpp v{80+i}, v{28+i}, v{80+i} row_ror:8 {DPP}")
    a(f"""v_cvt_pk_bf16_f32 v36, v76, v77
v_cvt_pk_bf16_f32 v37, v78, v79
v_cvt_pk_bf16_f32 v38, v80, v81
v_cvt_pk_bf16_f32 v39, v82, v83
v_cvt_pk_bf16_f32 v44, v84, v85
v_cvt_pk_bf16_f32 v45, v86, v87
v_xor_b32 v36, v36, v23
v_xor_b32 v37, v37, v23
v_xor_b32 v38, v38, v24
v_xor_b32 v39, v39, v24
v_xor_b32 v44, v44, v22
v_xor_b32 v45, v45, v22
v_cndmask_b32 v40, v36, v38, s[42:43]
v_cndmask_b32 v41, v37, v39, s[42:43]
v_cndmask_b32 v42, v38, v36, s[42:43]
v_cndmask_b32 v43, v39, v37, s[42:43]
buffer_store_dwordx4 {Q(40)}, v11, s[12:15], s23 offen
v_and_b32_dpp v46, v44, v25 row_ror:8 {DPP}
v_and_b32_dpp v47, v45, v25 row_ror:8 {DPP}
s_not_b64 exec, s[42:43]
s_mov_b32 exec_hi, 0
buffer_store_dwordx4 {Q(44)}, v13, s[12:15], s23 offen
@stamp
@dump 12
K1_end:
s_endpgm""")
    return ('k1_kernel', (256,1,1), (512,1,1), PB+5120, kd_block('k1_kernel', 116, 96))

def k2(a):
    head(a, 'k2_kernel')
    a(f"""
s_cmp_ge_u32 s2, 321
s_cbranch_scc1 K2_end
@stamp
s_load_dwordx2 s[6:7], s[0:1], 88
v_and_b32 v1, 15, v0
v_bfe_u32 v2, v0, 4, 2
v_lshrrev_b32 v3, 6, v0
v_and_b32 v9, 63, v0
v_readfirstlane_b32 s3, v3
v_lshl_add_u32 v4, v3, 2, v2
v_xor_b32 v10, v4, v1
v_lshlrev_b32 v10, 4, v10
v_lshl_add_u32 v4, v4, 8, v10
v_lshlrev_b32 v5, 5, v0
s_lshl_b32 s20, s2, 13
s_add_u32 s21, s20, {XF}
s_add_u32 s22, s21, 4096
s_add_u32 s23, s20, {WP}
s_lshl_b32 s24, s3, 10
s_mov_b32 m0, s24
s_waitcnt lgkmcnt(0)
@stamp
""")
    srd(a, 8, 6, WS_SIZE)
    a(f"""buffer_load_dwordx4 v4, s[8:11], s21 offen lds
s_add_u32 m0, s24, 4096
s_nop 0
buffer_load_dwordx4 v4, s[8:11], s22 offen lds
buffer_load_dwordx4 v[48:51], v5, s[8:11], s23 offen
buffer_load_dwordx4 v[52:55], v5, s[8:11], s23 offen offset:16
v_lshl_add_u32 v6, v3, 4, v1
v_cvt_f32_u32 v6, v6
v_cvt_f32_u32 v7, v2
v_cvt_f32_u32 v8, v1
v_mul_f32 v7, 4.0, v7
""")
    M = lambda t: 56+6*t
    N = lambda x, y: 80+6*(2*x+y)
    def gen(R, cur, step, last):
        for hh in range(2):
            a(f"""v_cos_f32 v12, v{cur}
v_sin_f32 v13, v{cur}
v_add_f32 v{cur}, v{cur}, v{step}
v_cos_f32 v14, v{cur}
v_sin_f32 v15, v{cur}
v_add_f32 v{cur}, v{cur}, v{last if hh else step}
v_cvt_pk_bf16_f32 v{R+2+hh}, v12, v14
v_cvt_pk_bf16_f32 v{R+hh}, -v13, -v15
v_cvt_pk_bf16_f32 v{R+4+hh}, v13, v15""")
    a(f"""v_mul_f32 v16, {fh(1/64)}, v6
v_mul_f32 v10, v7, v16
v_mul_f32 v11, {fh(13.0)}, v16""")
    for t in range(4): gen(M(t), 10, 16, 11)
    for x in range(2):
        a(f"""v_add_f32 v16, {fh(16.0*x)}, v8
v_mul_f32 v16, {fh(1/32)}, v16
v_mul_f32 v10, v7, v16
v_mul_f32 v11, {fh(13.0)}, v16""")
        for y in range(2): gen(N(x, y), 10, 16, 11)
    a(f"""v_mul_f32 v16, {fh(-1/2048)}, v6
v_mul_f32 v10, v7, v16
v_mul_f32 v11, {fh(13.0)}, v16""")
    for k in range(8):
        a(f"v_cos_f32 v{104+k}, v10\nv_sin_f32 v{112+k}, v10")
        if k < 7: a(f"v_add_f32 v10, v10, v{11 if k == 3 else 16}")
    a(f"""s_lshl_b32 s24, s3, 4
v_cvt_f32_u32 v12, s24
v_add_f32 v12, v12, v7
s_mov_b32 s26, {fh(2.0/(2048*640))}
s_cmp_eq_u32 s2, 0
s_cselect_b32 s26, {fh(1.0/(2048*640))}, s26
s_cmp_eq_u32 s2, 320
s_cselect_b32 s26, {fh(1.0/(2048*640))}, s26
s_mov_b32 s27, s26""")
    for nt in range(2):
        a(f"""v_add_f32 v16, {fh(16.0*nt)}, v8
v_mul_f32 v16, {fh(1/2048)}, v16
v_mul_f32 v10, v12, v16""")
        for i in range(4):
            k = 4*nt+i
            a(f"v_cos_f32 v{120+k}, v10\nv_sin_f32 v{128+k}, v10")
            if i < 3: a("v_add_f32 v10, v10, v16")
    for k in range(8): a(f"v_pk_mul_f32 {P(120+2*k)}, s[26:27], {P(120+2*k)}")
    a(f"""v_xor_b32 v10, v2, v1
v_lshlrev_b32 v10, 4, v10
v_lshl_add_u32 v10, v1, 8, v10
v_xor_b32 v11, 64, v10
v_xor_b32 v12, 128, v10
v_xor_b32 v13, 192, v10
v_lshlrev_b32 v7, 4, v9
s_lshl_b32 s24, s3, 10
v_add_u32 v6, s24, v7
v_lshlrev_b32 v5, 8, v1
v_lshl_add_u32 v5, v3, 6, v5
v_lshl_add_u32 v5, v2, 4, v5
s_add_u32 s21, s20, {YF}
s_add_u32 s22, s21, 4096
@stamp
s_waitcnt vmcnt(2)
s_barrier
@stamp""")
    D = lambda mt, t: 16+16*mt+4*t
    for t in range(4):
        for mt in range(2):
            a(f"ds_read_b128 {Q(D(mt,t))}, v{10+t} offset:{4096*mt}")
    def mf(d, A, B, first): a(f"v_mfma_f32_16x16x32_bf16 {Q(d)}, {Q(A)}, {Q(B)}, {'0' if first else Q(d)}")
    for t in range(4):
        a(f"s_waitcnt lgkmcnt({6-2*t})")
        for mt in range(2):
            mf(136+8*mt, D(mt,t), M(t)+2, t == 0)
            mf(140+8*mt, D(mt,t), M(t), t == 0)
    a("s_waitcnt vmcnt(0)")
    for k in range(8):
        a(f"v_lshlrev_b32 v{32+k}, 16, v{48+k}\nv_and_b32 v{40+k}, 0xffff0000, v{48+k}")
    def tw_pack(tr, ti, B, swap):
        for blk in range(2):
            for hh in range(2):
                r = 136+8*blk+2*hh; i = r+4; c = tr+4*blk+2*hh; s = ti+4*blk+2*hh; t = 48+4*blk+2*hh
                a(f"""v_pk_mul_f32 {P(t)}, {P(i)}, {P(s)}
v_pk_mul_f32 {P(i)}, {P(i)}, {P(c)}
v_pk_fma_f32 {P(i)}, {P(r)}, {P(s)}, {P(i)}
v_pk_fma_f32 {P(r)}, {P(r)}, {P(c)}, {P(t)} neg_lo:[0,0,1] neg_hi:[0,0,1]""")
        for blk in range(2):
            for hh in range(2):
                r = 136+8*blk+2*hh
                a(f"v_cvt_pk_bf16_f32 v{B+4*blk+hh+(2 if swap else 0)}, v{r}, v{r+1}")
                a(f"v_cvt_pk_bf16_f32 v{B+4*blk+hh+(0 if swap else 2)}, v{r+4}, v{r+5}")
    tw_pack(104, 112, 16, False)
    for y in range(2):
        for x in range(2):
            mf(136+8*x, N(x,y)+2, 16+4*y, y == 0)
            mf(140+8*x, N(x,y), 16+4*y, y == 0)
    tw_pack(32, 40, 24, True)
    for y in range(2):
        for x in range(2):
            mf(136+8*x, 24+4*y, N(x,y), y == 0)
            mf(140+8*x, 24+4*y, N(x,y)+2, y == 0)
    tw_pack(120, 128, 16, True)
    a(f"""ds_write_b128 v6, {Q(16)} offset:8192
ds_write_b128 v6, {Q(20)} offset:12288
@stamp
s_waitcnt lgkmcnt(0)
s_barrier
@stamp""")
    for t in range(4):
        for nt in range(2):
            a(f"ds_read_b128 {Q(D(nt,t))}, v7 offset:{8192+4096*nt+1024*t}")
    for t in range(4):
        a(f"s_waitcnt lgkmcnt({6-2*t})")
        for nt in range(2):
            mf(136+8*nt, M(t), D(nt,t), t == 0)
            mf(140+8*nt, M(t)+2, D(nt,t), t == 0)
    for nt in range(2):
        o = 48+4*nt; s = 136+8*nt
        for k in range(4): a(f"v_cvt_pk_bf16_f32 v{o+k}, v{s+2*k}, v{s+2*k+1}")
        a(f"buffer_store_dwordx4 {Q(o)}, v5, s[8:11], s{21+nt} offen")
    a("@stamp\n@dump 8\nK2_end:\ns_endpgm")
    return ('k2_kernel', (321,1,1), (256,1,1), 16384, kd_block('k2_kernel', 152, 96))

def k3(a):
    head(a, 'k3_kernel')
    ZB = 12288; ZR = 528; ZC = 8*ZR; PB = ZB + 5*ZC
    a("""
s_cmp_ge_u32 s2, 256
s_cbranch_scc1 K3_end
@stamp
s_load_dwordx2 s[4:5], s[0:1], 0
s_load_dwordx2 s[6:7], s[0:1], 88
""")
    row_ids(a)
    a("v_and_b32 v5, 15, v0\nv_bfe_u32 v6, v0, 4, 2")
    col_slots(a, 22, 5, 6, 8, 22)
    a(f"""
s_lshl_b32 s23, s3, 8
s_lshl_b32 s21, s20, 5
s_add_u32 s23, s23, s21
s_add_u32 s23, s23, {YF}
s_lshl_b32 s21, s20, 3
s_add_u32 s21, s21, s22
s_lshl_b32 s24, s3, 6
s_add_u32 s24, s24, s21
s_lshl_b32 s21, s21, 5
s_add_u32 s21, s21, s3
s_mul_i32 s21, s21, 1280
s_mul_i32 s24, s24, 1280
v_lshlrev_b32 v4, 4, v1
s_lshl_b32 s25, s22, 10
s_add_u32 m0, s25, {PB}
s_add_u32 s25, s25, 5120
s_waitcnt lgkmcnt(0)
""")
    srd(a, 8, 4, 2048*1280)
    srd(a, 12, 6, WS_SIZE)
    a(f"""buffer_load_dwordx4 {Q(28)}, v11, s[12:15], s23 offen
buffer_load_dwordx4 {Q(32)}, v13, s[12:15], s23 offen
buffer_load_dwordx4 v4, s[12:15], s25 offen lds""")
    for k in range(3):
        a(f"buffer_load_dwordx2 {P(16+2*k)}, v2, s[8:11], s21 offen offset:{512*k}")
    w5_consts(a, 88, 22, 1.0)
    a(f"""
s_lshl_b32 s27, s22, 4
v_add_u32 v22, s27, v5
v_cvt_f32_u32 v22, v22
v_mul_f32 v22, {fh(1/128)}, v22
v_and_b32 v23, 1, v6
v_cvt_f32_u32 v23, v23
v_mul_f32 v23, 4.0, v23
v_lshrrev_b32 v24, 1, v6
v_cvt_f32_u32 v24, v24
v_mul_f32 v24, {fh(0.25)}, v24
v_fma_f32 v23, v23, v22, v24
v_mul_f32 v24, {fh(5.0)}, v22
v_mul_f32 v27, {fh(64.0)}, v22
v_cmp_eq_u32 vcc, 2, v6
v_cndmask_b32 v27, v23, v27, vcc
""")
    for t in range(4):
        for jj in range(4):
            a(f"""v_cos_f32 v25, v{27 if (t, jj) == (0, 0) else 23}
v_add_f32 v23, v23, v22
v_cos_f32 v26, v23
v_add_f32 v23, v23, v{24 if jj & 1 else 22}
v_cvt_pk_bf16_f32 v{96+4*t+jj}, v25, v26""")
    a(f"""
v_lshlrev_b32 v14, 5, v5
v_lshl_add_u32 v14, v6, 3, v14
s_lshl_b32 s27, s22, 9
v_add_u32 v14, s27, v14
v_and_b32 v15, 4096, v9
v_add_u32 v15, v15, v14
v_xor_b32 v112, 4096, v15
v_lshlrev_b32 v113, 3, v1
v_and_b32 v22, 7, v5
v_mul_u32_u24 v22, {ZR}, v22
v_lshl_add_u32 v22, v6, 4, v22
s_lshl_b32 s27, s22, 6
v_add_u32 v115, s27, v22
v_lshrrev_b32 v22, 3, v5
v_mul_u32_u24 v22, {2*ZC}, v22
v_add_u32 v114, v115, v22
v_lshlrev_b32 v4, 2, v3
s_mul_i32 s27, s22, {ZR}
v_add_u32 v7, s27, v4
v_and_b32 v22, 0x80000000, v9
v_xor_b32 v22, v22, v10
v_and_b32 v23, 0x80008000, v9
v_xor_b32 v24, v23, v12
""")
    r5_sconsts(a)
    a(f"""@stamp
s_waitcnt vmcnt(4)
@stamp
v_cndmask_b32 v32, v32, v34, s[42:43]
v_cndmask_b32 v33, v33, v35, s[42:43]
v_xor_b32 v26, v30, v24
v_xor_b32 v27, v31, v24
v_xor_b32 v30, v30, v12
v_xor_b32 v31, v31, v12
ds_write_b64 v14, {P(32)} offset:8192""")
    for hh in range(2):
        a(f"""v_lshlrev_b32 v{36+2*hh}, 16, v{28+hh}
v_and_b32 v{37+2*hh}, 0xffff0000, v{28+hh}
v_lshlrev_b32 v{40+2*hh}, 16, v{30+hh}
v_and_b32 v{41+2*hh}, 0xffff0000, v{30+hh}
v_lshlrev_b32 v{44+2*hh}, 16, v{28+hh}
v_and_b32 v{45+2*hh}, 0xffff0000, v{28+hh}
v_lshlrev_b32 v{48+2*hh}, 16, v{26+hh}
v_and_b32 v{49+2*hh}, 0xffff0000, v{26+hh}""")
    for i in range(4):
        a(f"v_fmac_f32_dpp v{44+i}, v{36+i}, v22 row_ror:8 {DPP}")
        a(f"v_fmac_f32_dpp v{48+i}, v{40+i}, v10 row_ror:8 {DPP}")
    a(f"""v_cvt_pk_bf16_f32 v52, v44, v45
v_cvt_pk_bf16_f32 v53, v46, v47
v_cvt_pk_bf16_f32 v54, v48, v49
v_cvt_pk_bf16_f32 v55, v50, v51
ds_write_b64 v15, {P(52)}
ds_write_b64 v112, {P(54)}
s_waitcnt vmcnt(3) lgkmcnt(0)
s_barrier
@stamp""")
    for T in range(3):
        for t in range(4):
            for x in range(2):
                a(f"ds_read_b64_tr_b16 {P(28+16*T+4*t+2*x)}, v113 offset:{4096*T+1024*t+512*x}")
            if T == 1 and t == 3:
                a("s_waitcnt lgkmcnt(8)")
                for tt in range(4): a(f"v_mfma_f32_16x16x32_bf16 {Q(76)}, {Q(96+4*tt)}, {Q(28+4*tt)}, {'0' if tt == 0 else Q(76)}")
    for T in (1, 2):
        a(f"s_waitcnt lgkmcnt({8 if T == 1 else 0})")
        for t in range(4): a(f"v_mfma_f32_16x16x32_bf16 {Q(76+4*T)}, {Q(96+4*t)}, {Q(28+16*T+4*t)}, {'0' if t == 0 else Q(76+4*T)}")
    for j in range(5):
        a(f"ds_read_b64 {P(116+2*j)}, v4 offset:{PB+512*j}")
    a(f"""ds_write_b128 v114, {Q(76)} offset:{ZB+ZC}
ds_write_b128 v114, {Q(80)} offset:{ZB+2*ZC}
ds_write_b128 v115, {Q(84)} offset:{ZB}
s_waitcnt vmcnt(0)""")
    unpack_x(a, 16, 28)
    a("@stamp\ns_waitcnt lgkmcnt(0)\ns_barrier\n@stamp")
    for c in range(5): a(f"ds_read_b64 {P(40+2*c)}, v7 offset:{ZB+ZC*c}")
    for j in range(5):
        a(f"ds_read_b64 {P(136+2*j)}, v4 offset:{PB+5120+512*j}\nds_read_b64 {P(126+2*j)}, v4 offset:{PB+2560+512*j}")
    a("s_waitcnt lgkmcnt(10)")
    for k in range(2):
        r, im = 42+4*k, 44+4*k; c, s = 88+4*k, 90+4*k; R, I = 50+4*k, 52+4*k
        a(f"""v_pk_mul_f32 {P(R)}, {P(r)}, {P(c)}
v_pk_mul_f32 {P(I)}, {P(r)}, {P(s)}
v_pk_fma_f32 {P(R)}, {P(im)}, {P(s)}, {P(R)} neg_lo:[1,0,0] neg_hi:[1,0,0]
v_pk_fma_f32 {P(I)}, {P(im)}, {P(c)}, {P(I)}""")
    z0,z1r,z1i,z2r,z2i = 40,50,52,54,56
    A,B,Cc,Dd,E = 58,60,62,64,66
    sl = {(3*j) % 5: j for j in range(5)}
    X = lambda d2: P(28+2*sl[d2]); G = lambda d2: P(116+2*sl[d2])
    a(f"""v_pk_add_f32 {P(E)}, {P(z0)}, {P(z1r)}
v_pk_fma_f32 {P(A)}, s[30:31], {P(z1r)}, {P(z0)}
v_pk_fma_f32 {P(B)}, s[32:33], {P(z1r)}, {P(z0)}
v_pk_mul_f32 {P(Cc)}, s[34:35], {P(z1i)}
v_pk_mul_f32 {P(Dd)}, s[36:37], {P(z1i)}
v_pk_add_f32 {P(E)}, {P(E)}, {P(z2r)}
v_pk_fma_f32 {P(A)}, s[32:33], {P(z2r)}, {P(A)}
v_pk_fma_f32 {P(B)}, s[30:31], {P(z2r)}, {P(B)}
v_pk_fma_f32 {P(Cc)}, s[36:37], {P(z2i)}, {P(Cc)}
v_pk_fma_f32 {P(Dd)}, s[34:35], {P(z2i)}, {P(Dd)} neg_lo:[0,1,0] neg_hi:[0,1,0]
v_pk_fma_f32 {X(0)}, {G(0)}, {P(E)}, {X(0)}
v_pk_add_f32 {P(68)}, {P(A)}, {P(Cc)} neg_lo:[0,1] neg_hi:[0,1]
v_pk_add_f32 {P(70)}, {P(A)}, {P(Cc)}
v_pk_add_f32 {P(72)}, {P(B)}, {P(Dd)} neg_lo:[0,1] neg_hi:[0,1]
v_pk_add_f32 {P(74)}, {P(B)}, {P(Dd)}
v_pk_fma_f32 {X(1)}, {G(1)}, {P(68)}, {X(1)}
v_pk_fma_f32 {X(4)}, {G(4)}, {P(70)}, {X(4)}
v_pk_fma_f32 {X(2)}, {G(2)}, {P(72)}, {X(2)}
v_pk_fma_f32 {X(3)}, {G(3)}, {P(74)}, {X(3)}
s_add_u32 s25, s24, {X1}
s_add_u32 s26, s24, {H2F}""")
    for j in range(5): a(f"v_cvt_pk_bf16_f32 v{16+j}, v{28+2*j}, v{29+2*j}")
    a(f"""v_permlane32_swap_b32 v16, v17
v_permlane32_swap_b32 v18, v19
buffer_store_dwordx2 {P(16)}, v2, s[12:15], s25 offen
buffer_store_dwordx2 {P(18)}, v2, s[12:15], s25 offen offset:512""")
    ln_rows(a, 28, 22)
    a(f"""v_bfe_u32 v24, v0, 5, 1
v_mul_u32_u24 v24, {H2F - X1 - 256}, v24
v_add_u32 v24, v24, v2
s_waitcnt lgkmcnt(0)""")
    for j in range(5): a(f"v_pk_mul_f32 {P(136+2*j)}, {P(136+2*j)}, {P(22)} op_sel_hi:[1,0]")
    for j in range(5): a(f"v_pk_fma_f32 {P(28+2*j)}, {P(28+2*j)}, {P(136+2*j)}, {P(126+2*j)}")
    for j in range(4): a(f"v_cvt_pk_bf16_f32 v{40+j}, v{28+2*j}, v{29+2*j}")
    a(f"""v_cvt_pk_bf16_f32 v21, v36, v37
v_permlane32_swap_b32 v40, v41
v_permlane32_swap_b32 v42, v43
v_permlane32_swap_b32 v20, v21
buffer_store_dwordx2 {P(40)}, v2, s[12:15], s26 offen
buffer_store_dwordx2 {P(42)}, v2, s[12:15], s26 offen offset:512
buffer_store_dwordx2 {P(20)}, v24, s[12:15], s25 offen offset:1024
@stamp
@dump 12
K3_end:
s_endpgm""")
    return ('k3_kernel', (256,1,1), (512,1,1), PB+8192, kd_block('k3_kernel', 148, 96))

def ramp(NST, D, first=3):
    nxt = first; sched = {}
    for s in range(NST):
        lim = min(NST, s + D + 1)
        take = []
        while nxt < lim and len(take) < 2:
            take.append(nxt); nxt += 1
        sched[s] = take
    return list(range(first)), sched
def k4(a):
    head(a, 'k4_kernel')
    NST = 20; WS_ = 12288; HB = 98304; HS = 16384
    a(f"""
s_cmp_ge_u32 s2, 256
s_cbranch_scc1 K4_end
@stamp
s_load_dwordx4 s[4:7], s[0:1], 32
s_load_dwordx2 s[20:21], s[0:1], 88
s_and_b32 s3, s2, 7
s_lshr_b32 s22, s2, 3
s_and_b32 s23, s3, 1
s_lshl_b32 s23, s23, 3
s_and_b32 s24, s22, 7
s_add_u32 s23, s23, s24
s_lshr_b32 s24, s3, 1
s_lshl_b32 s24, s24, 2
s_lshr_b32 s25, s22, 3
s_add_u32 s24, s24, s25
v_lshrrev_b32 v1, 6, v0
v_and_b32 v2, 63, v0
v_readfirstlane_b32 s25, v1
s_cmp_lt_u32 s25, 8
s_cbranch_scc1 K4_cons
s_sub_u32 s25, s25, 8
""")
    for q in range(3):
        a(f"""v_add_u32 v10, {64*q}, v2
v_mul_u32_u24 v11, 43691, v10
v_lshrrev_b32 v11, 19, v11
v_mul_u32_u24 v12, 12, v11
v_sub_u32 v12, v10, v12
v_lshrrev_b32 v13, 2, v11
v_and_b32 v13, 2, v13
v_xor_b32 v12, v12, v13
v_mul_u32_u24 v11, 3072, v11
v_lshl_add_u32 v11, v12, 4, v11
v_subrev_u32 v{3+q}, {1024*q}, v11""")
    for q in range(4):
        a(f"""v_lshrrev_b32 v10, 4, v2
v_add_u32 v10, {4*q}, v10
v_xor_b32 v10, v10, v2
v_and_b32 v10, 7, v10
v_lshrrev_b32 v11, 3, v2
v_mul_u32_u24 v11, 1280, v11
v_lshl_add_u32 v11, v10, 4, v11
v_add_u32 v{6+q}, {q*(10240-1024)}, v11""")
    a(f"""
s_and_b32 s26, s25, 1
s_mul_i32 s27, s26, {16*3072}
s_mul_i32 s28, s24, 192
s_add_u32 s27, s27, s28
s_mul_i32 s28, s25, 3072
s_lshl_b32 s29, s23, 2
s_add_u32 s29, s29, s25
s_mul_i32 s29, s29, 40960
s_add_u32 s29, s29, {H2F}
s_lshl_b32 s30, s25, 12
s_waitcnt lgkmcnt(0)
s_cmp_lt_u32 s25, 2
s_cselect_b32 s8, s4, s6
s_cselect_b32 s9, s5, s7
s_mov_b32 s10, {640*3072}
s_mov_b32 s11, 0x00020000
""")
    srd(a, 12, 20, WS_SIZE)
    cnt = []
    def issue(s):
        n = 0
        if s % 2 == 0:
            a(f"s_add_u32 m0, s30, {HB + ((s//2) % 4)*HS}")
            for q in range(4):
                a(f"buffer_load_dwordx4 v{6+q}, s[12:15], s29 offen offset:{1024*q} lds")
            a("s_add_u32 s29, s29, 128"); n += 4
        a(f"s_add_u32 m0, s28, {(s % 8)*WS_}")
        for q in range(3):
            a(f"buffer_load_dwordx4 v{3+q}, s[8:11], s27 offen offset:{1024*q} lds")
        a(f"s_add_u32 s27, s27, {32*3072}"); n += 3
        cnt.append(n)
    init, sched = ramp(NST, 6)
    for s in init: issue(s)
    for s in range(NST):
        a(f"s_waitcnt vmcnt({sum(cnt[s+1:])})\ns_barrier")
        for g in sched[s]: issue(g)
    a("@stamp\n@dump 12\ns_endpgm")
    a.st.n = 1
    a(f"""K4_cons:
s_lshr_b32 s26, s25, 2
s_and_b32 s27, s25, 3
v_lshrrev_b32 v3, 4, v2
v_bfe_u32 v4, v2, 2, 2
v_lshl_add_u32 v4, v3, 3, v4
v_mul_u32_u24 v4, 192, v4
v_and_b32 v5, 3, v2
v_lshl_add_u32 v4, v5, 3, v4
v_and_b32 v5, 1, v3
v_lshlrev_b32 v5, 5, v5
s_mul_i32 s28, s26, 96
v_add_u32 v4, s28, v4
s_cmp_eq_u32 s26, 0
s_cselect_b32 s29, 1, -1
v_mul_lo_u32 v5, v5, s29
v_add_u32 v6, v4, v5
v_sub_u32 v7, v4, v5
v_add_u32 v8, {4*WS_}, v6
v_add_u32 v9, {4*WS_}, v7
v_and_b32 v10, 15, v2
v_lshrrev_b32 v11, 1, v10
v_xor_b32 v11, v11, v3
v_lshlrev_b32 v11, 4, v11
v_lshl_add_u32 v11, v10, 7, v11
s_lshl_b32 s28, s27, 12
s_add_u32 s28, s28, {HB}
v_add_u32 v11, s28, v11
v_xor_b32 v12, 64, v11
s_waitcnt lgkmcnt(0)
""")
    srd(a, 12, 20, WS_SIZE)
    ACC = lambda mat, i, nt: 16 + 4*(6*nt + 3*mat + i)
    FA = lambda buf, mat, i: 64 + 32*buf + 4*(3*mat+i)
    FB = lambda buf, nt: 88 + 32*buf + 4*nt
    def reads(s):
        L = []; sl = s % 8
        for nt in range(2):
            f = FB(s & 1, nt)
            L.append(f"ds_read_b128 v[{f}:{f+3}], v{11 + (s & 1)} offset:{((s//2) % 4)*HS + 2048*nt}")
        for mat in range(2):
            for i in range(3):
                for x in range(2):
                    f = FA(s & 1, mat, i) + 2*x
                    L.append(f"ds_read_b64_tr_b16 v[{f}:{f+1}], v{6 + (i & 1) + 2*(sl//4)} offset:{(sl % 4)*WS_ + mat*6144 + 4*x*192 + 32*i}")
        return L
    a("s_barrier\n@stamp")
    for l in reads(0): a(l)
    for s in range(NST):
        a("s_waitcnt lgkmcnt(0)")
        R = []
        if s+1 < NST:
            a("s_barrier"); R = reads(s+1)
        k = 0
        for mat in range(2):
            for i in range(3):
                for nt in range(2):
                    c = ACC(mat, i, nt); fa = FA(s & 1, mat, i); fb = FB(s & 1, nt)
                    if 'nomfma' not in OPT: a(f"v_mfma_f32_16x16x32_bf16 v[{c}:{c+3}], v[{fa}:{fa+3}], v[{fb}:{fb+3}], {'0' if s == 0 else f'v[{c}:{c+3}]'}")
                    if 'nords' not in OPT:
                        for l in R[2*k:2*k+2]: a(l)
                    k += 1
    a("@stamp")
    kk = 2*0.7978845608028654*math.log2(math.e)
    a(f"""s_mov_b32 s30, {fh(-kk)}
s_mov_b32 s31, {fh(-kk*0.044715)}
v_mov_b32 v10, s30
s_lshl_b32 s29, s23, 3
s_lshl_b32 s28, s27, 1
s_add_u32 s29, s29, s28
s_mul_i32 s29, s29, 49152
s_mul_i32 s28, s24, 3072
s_add_u32 s29, s29, s28
s_mul_i32 s28, s26, 1536
s_add_u32 s29, s29, s28
s_add_u32 s29, s29, {HIDF}
s_add_u32 s28, s29, 49152
v_lshlrev_b32 v7, 3, v2""")
    for nt in range(2):
        G = ACC(0, 0, nt); U = ACC(1, 0, nt); T = 64 + 16*nt
        for i in range(12): a(f"v_mul_f32 v{T+i}, v{G+i}, v{G+i}")
        for i in range(12): a(f"v_fma_f32 v{T+i}, v{T+i}, s31, v10")
        for i in range(12): a(f"v_mul_f32 v{T+i}, v{T+i}, v{G+i}")
        for i in range(12): a(f"v_exp_f32 v{T+i}, v{T+i}\nv_mul_f32 v{G+i}, v{G+i}, v{U+i}")
        for i in range(12): a(f"v_add_f32 v{T+i}, 1.0, v{T+i}")
        for i in range(12): a(f"v_rcp_f32 v{T+i}, v{T+i}")
        for i in range(12): a(f"v_mul_f32 v{G+i}, v{G+i}, v{T+i}")
        for i in range(3):
            O = 96 + 8*nt + 2*i
            a(f"""v_cvt_pk_bf16_f32 v{O}, v{G+4*i}, v{G+4*i+1}
v_cvt_pk_bf16_f32 v{O+1}, v{G+4*i+2}, v{G+4*i+3}
buffer_store_dwordx2 v[{O}:{O+1}], v7, s[12:15], s{29-nt} offen offset:{512*i}""")
    a("@stamp\n@dump 12\nK4_end:\ns_endpgm")
    return ('k4_kernel', (256,1,1), (768,1,1), 163840, kd_block('k4_kernel', 128, 96))

def k5(a):
    head(a, 'k5_kernel')
    NST = 24; SLOT = 18432; NS = 8
    a(f"""
s_cmp_ge_u32 s2, 256
s_cbranch_scc1 K5_end
@stamp
s_load_dwordx2 s[4:5], s[0:1], 48
s_load_dwordx2 s[6:7], s[0:1], 72
s_load_dwordx2 s[20:21], s[0:1], 88
s_and_b32 s3, s2, 7
s_lshr_b32 s22, s2, 3
s_and_b32 s23, s3, 3
s_lshl_b32 s23, s23, 3
s_and_b32 s24, s22, 7
s_add_u32 s23, s23, s24
s_lshr_b32 s24, s3, 2
s_lshl_b32 s24, s24, 2
s_lshr_b32 s25, s22, 3
s_add_u32 s24, s24, s25
v_lshrrev_b32 v1, 6, v0
v_and_b32 v2, 63, v0
v_readfirstlane_b32 s25, v1
s_cmp_lt_u32 s25, 4
s_cbranch_scc1 K5_cons
s_cmp_ge_u32 s25, 6
s_cbranch_scc1 K5_prodh
s_sub_u32 s25, s25, 4
""")
    init, sched = ramp(NST, 7)
    for q in range(5):
        a(f"""v_add_u32 v8, {64*q}, v2
v_mul_u32_u24 v9, 52429, v8
v_lshrrev_b32 v9, 19, v9
v_mul_u32_u24 v10, 10, v9
v_sub_u32 v10, v8, v10
v_mul_u32_u24 v9, 1280, v9
v_lshl_add_u32 v9, v10, 4, v9
v_subrev_u32 v{3+q}, {1024*q if q < 4 else 0}, v9""")
    a(f"""
s_mul_i32 s27, s25, {32*1280}
s_mul_i32 s28, s24, 160
s_add_u32 s27, s27, s28
s_mul_i32 s28, s25, 5120
s_waitcnt lgkmcnt(0)
""")
    srd(a, 8, 4, 1536*1280)
    srd(a, 12, 20, WS_SIZE)
    def issue_w(s):
        a(f"s_add_u32 m0, s28, {(s % NS)*SLOT}")
        for q in range(4):
            a(f"buffer_load_dwordx4 v{3+q}, s[8:11], s27 offen offset:{1024*q} lds")
        a(f"s_add_u32 m0, s28, {(s % NS)*SLOT + 4096}")
        a(f"buffer_load_dwordx4 v7, s[8:11], s27 offen lds")
        a(f"s_add_u32 s27, s27, {64*1280}")
    n = 0
    for s in init: issue_w(s); n += 1
    for s in range(NST):
        a(f"s_waitcnt vmcnt({5*(n-s-1)})\ns_barrier")
        for g in sched[s]: issue_w(g); n += 1
    a("@stamp\n@dump 12\ns_endpgm")
    a.st.n = 1
    a(f"""K5_prodh:
s_sub_u32 s25, s25, 6
s_lshl_b32 s29, s23, 2
s_lshl_b32 s28, s25, 1
s_add_u32 s29, s29, s28
s_mul_i32 s29, s29, 49152
s_add_u32 s29, s29, {HIDF}
s_lshl_b32 s28, s25, 12
s_add_u32 s28, s28, 10240
v_lshlrev_b32 v3, 4, v2
v_add_u32 v4, {49152-2048}, v3
s_waitcnt lgkmcnt(0)
""")
    srd(a, 12, 20, WS_SIZE)
    def issue_h(s):
        a(f"s_add_u32 m0, s28, {(s % NS)*SLOT}")
        for q in range(4):
            a(f"buffer_load_dwordx4 v{3+q//2}, s[12:15], s29 offen offset:{1024*q} lds")
        a("s_add_u32 s29, s29, 2048")
    n = 0
    for s in init: issue_h(s); n += 1
    for s in range(NST):
        a(f"s_waitcnt vmcnt({4*(n-s-1)})\ns_barrier")
        for g in sched[s]: issue_h(g); n += 1
    a("@stamp\n@dump 12\ns_endpgm")
    a.st.n = 1
    a(f"""K5_cons:
s_lshl_b32 s30, s23, 2
s_add_u32 s30, s30, s25
s_lshl_b32 s30, s30, 4
v_lshrrev_b32 v3, 2, v2
v_mul_u32_u24 v3, 160, v3
v_and_b32 v4, 3, v2
v_lshl_add_u32 v3, v4, 3, v3
v_add_u32 v4, {3*SLOT}, v3
v_add_u32 v5, {6*SLOT}, v3
s_lshl_b32 s28, s25, 11
s_add_u32 s28, s28, 10240
v_lshlrev_b32 v6, 3, v2
v_add_u32 v6, s28, v6
v_add_u32 v7, {3*SLOT}, v6
v_add_u32 v8, {6*SLOT}, v6
v_and_b32 v12, 15, v2
v_lshrrev_b32 v13, 4, v2
v_mul_u32_u24 v14, 1280, v12
v_lshl_add_u32 v14, v13, 3, v14
s_mul_i32 s26, s30, 1280
s_mul_i32 s27, s24, 160
s_add_u32 s26, s26, s27
s_add_u32 s26, s26, {X1}
v_lshlrev_b32 v15, 4, v13
s_lshl_b32 s28, s27, 1
s_add_u32 s28, s28, 12800
s_waitcnt lgkmcnt(0)
""")
    srd(a, 12, 20, WS_SIZE)
    srd(a, 16, 6, 2048*1280)
    ACC = lambda mt: 16 + 4*mt
    FA = lambda buf, u, mt: 36 + 48*buf + 24*u + 4*mt
    FB = lambda buf, u: 36 + 48*buf + 24*u + 20
    def reads(s):
        L = []; sl = s % NS
        for u in range(2):
            for x in range(2):
                f = FB(s & 1, u) + 2*x
                L.append(f"ds_read_b64 v[{f}:{f+1}], v{6+sl//3} offset:{(sl % 3)*SLOT + 1024*u + 512*x}")
            for mt in range(5):
                for x in range(2):
                    f = FA(s & 1, u, mt) + 2*x
                    L.append(f"ds_read_b64_tr_b16 v[{f}:{f+1}], v{3+sl//3} offset:{(sl % 3)*SLOT + u*5120 + x*2560 + 32*mt}")
        return L
    a("s_barrier\n@stamp")
    for l in reads(0): a(l)
    for s in range(NST):
        a("s_waitcnt lgkmcnt(0)")
        R = []
        if s+1 < NST:
            a("s_barrier"); R = reads(s+1)
        if s == NST-6:
            for mt in range(5):
                a(f"buffer_load_dwordx2 v[{132+2*mt}:{133+2*mt}], v14, s[12:15], s26 offen offset:{32*mt}")
                a(f"buffer_load_dwordx4 v[{144+4*mt}:{147+4*mt}], v15, s[12:15], s28 offen offset:{64*mt}")
        k = 0
        for u in range(2):
            for mt in range(5):
                c = ACC(mt); fa = FA(s & 1, u, mt); fb = FB(s & 1, u)
                if 'nomfma' not in OPT: a(f"v_mfma_f32_16x16x32_bf16 v[{c}:{c+3}], v[{fa}:{fa+3}], v[{fb}:{fb+3}], {'0' if (s, u) == (0, 0) else f'v[{c}:{c+3}]'}")
                if 'nords' not in OPT:
                    for l in R[3*k:3*k+3]: a(l)
                k += 1
    a(f"""@stamp
s_and_b32 s26, s30, 63
s_lshl_b32 s26, s26, 5
s_lshr_b32 s29, s30, 6
s_add_u32 s26, s26, s29
s_mul_i32 s26, s26, 1280
s_add_u32 s26, s26, s27
v_mul_u32_u24 v14, 40960, v12
v_lshl_add_u32 v14, v13, 3, v14
s_waitcnt vmcnt(0)""")
    for mt in range(5):
        c = ACC(mt); x = 132+2*mt; g = 144+4*mt
        a(f"""v_lshlrev_b32 v36, 16, v{x}
v_and_b32 v37, 0xffff0000, v{x}
v_lshlrev_b32 v38, 16, v{x+1}
v_and_b32 v39, 0xffff0000, v{x+1}
v_fmac_f32 v36, v{c}, v{g}
v_fmac_f32 v37, v{c+1}, v{g+1}
v_fmac_f32 v38, v{c+2}, v{g+2}
v_fmac_f32 v39, v{c+3}, v{g+3}
v_cvt_pk_bf16_f32 v{x}, v36, v37
v_cvt_pk_bf16_f32 v{x+1}, v38, v39
buffer_store_dwordx2 v[{x}:{x+1}], v14, s[16:19], s26 offen offset:{32*mt}""")
    a("@stamp\n@dump 12\nK5_end:\ns_endpgm")
    return ('k5_kernel', (256,1,1), (512,1,1), NS*SLOT, kd_block('k5_kernel', 164, 96))

def build(kernels, path):
    a = Asm2(); infos = []
    for k in kernels:
        infos.append(k(a))
    if 'k4twice' in OPT: infos.insert(4, infos[4][:4] + ('',))
    if 'empty4' in OPT:
        for i in range(4):
            a(f".globl e{i}_kernel\n.p2align 8\n.type e{i}_kernel,@function\ne{i}_kernel:\ns_endpgm")
            infos.append((f'e{i}_kernel', (256,1,1), (256,1,1), 0, kd_block(f'e{i}_kernel', 8, 16)))
    a("CODE_END:\ns_endpgm")
    hdr = open('adaLN_cond__spectral_gfnet__glu_gated_geglu__prompt.s.ref').read().split('\n')[:13]
    s = '\n'.join(hdr) + '\n'
    for n, g, b, l, _ in infos:
        s += f"; @launch kernel={n} grid=({g[0]},{g[1]},{g[2]}) block=({b[0]},{b[1]},{b[2]}) lds={l}\n"
    s += '.amdgcn_target "amdgcn-amd-amdhsa--gfx950"\n.text\n' + a.text() + '.section .rodata,"a"\n'
    for i in infos: s += i[4]
    open(path, 'w').write(s)
if __name__ == '__main__':
    args = sys.argv[1:]
    out = 'cur.s'
    for x in args:
        if x == 'stamp': STAMPS = True
        elif x.endswith('.s'): out = x
        else: OPT.add(x)
    build([k0, k1, k2, k3, k4, k5], out)
```

```python
import sys, math, struct
sys.path.insert(0,'work')
from asmlib import *
def f2u(x): return struct.unpack('<I', struct.pack('<f', x))[0]
def fh(x): return '0x%08x' % f2u(x)
MOD=0; XF=0x100000; YF=0x400000; WP=0x700000; X1=0xA00000; H2F=0xD00000; HIDF=0x1000000; WDT=0x1C00000; FLG=0x10000; WS_SIZE=0x1E00000
DPP='row_mask:0xf bank_mask:0xf'

STAMPS = False
SLP = 4
OPT = set()
DBG = 0x1640000
class Stamper:
    def __init__(self, a, kid): self.a=a; self.kid=kid; self.n=0
    def __call__(self):
        if not STAMPS: return
        if self.n == 0: self.a("s_memtime s[64:65]")
        self.a(f"s_memrealtime s[{70+2*self.n}:{71+2*self.n}]"); self.n += 1
    def dump(self, srd_ws, wgreg='s2', drain=True):
        if not STAMPS: return
        a = self.a
        if drain:
            a("s_waitcnt vmcnt(0)"); self()
        a(f"""s_memtime s[66:67]
s_waitcnt lgkmcnt(0)
s_sub_u32 s66, s66, s64
s_mov_b64 exec, 1
v_lshrrev_b32 v1, 6, v0
v_lshlrev_b32 v1, 6, v1
s_lshl_b32 s68, {wgreg}, 10
s_add_u32 s68, s68, {DBG + self.kid*0x80000}""")
        a(f"v_mov_b32 v2, s66\nbuffer_store_dword v2, v1, s[{srd_ws}:{srd_ws+3}], s68 offen offset:60")
        for k in range(self.n):
            a(f"v_mov_b32 v2, s{70+2*k}\nbuffer_store_dword v2, v1, s[{srd_ws}:{srd_ws+3}], s68 offen offset:{4*k}")
class Asm2(Asm):
    def emit(self, line):
        if line == '@stamp': self.st(); return
        if line == '@k0exp':
            if 'k0small' in OPT:
                for l in ("s_and_b32 s3, s2, 7", "s_mul_i32 s3, s3, 10", "s_lshr_b32 s22, s2, 3", "s_add_u32 s3, s3, s22", "s_cmp_ge_u32 s2, 80", "s_cbranch_scc1 K0_end"): Asm.emit(self, l)
            return
        if 'noload' in OPT and line.endswith(' lds'): return
        if 'nowload' in OPT and line.endswith(' lds') and 's[8:11]' in line: return
        if 'nohload' in OPT and line.endswith(' lds') and 's[12:15]' in line: return
        if line.startswith('@dump'):
            p = line.split(); self.st.dump(int(p[1]), p[2] if len(p) > 2 else 's2'); return
        Asm.emit(self, line)
def head(a, name):
    a.st = Stamper(a, int(name[1]))
    a(f""".globl {name}
.p2align 8
.type {name},@function
{name}:""")
def srd(a, d, p, size):
    a(f"""s_mov_b32 s{d}, s{p}
s_mov_b32 s{d+1}, s{p+1}
s_mov_b32 s{d+2}, {size}
s_mov_b32 s{d+3}, 0x00020000""")

def k0(a):
    head(a, 'k0_kernel')
    NW0 = 496 + 54
    a(f"""
s_cmp_ge_u32 s2, {NW0}
s_cbranch_scc1 K0_end""")
    a("s_cmp_ge_u32 s2, 496\ns_cbranch_scc1 K0_pf")
    a("""
@stamp
s_mov_b32 s69, s2
s_load_dwordx4 s[4:7], s[0:1], 56
s_load_dwordx2 s[20:21], s[0:1], 88
s_load_dwordx4 s[24:27], s[0:1], 8
s_cmp_ge_u32 s2, 240
s_cbranch_scc1 K0_wprep
v_readfirstlane_b32 s28, v0
s_cmp_ge_u32 s28, 320
s_cbranch_scc1 K0_end
s_and_b32 s3, s2, 7
s_mul_i32 s3, s3, 30
s_lshr_b32 s22, s2, 3
s_add_u32 s3, s3, s22
s_lshl_b32 s22, s3, 5
v_lshrrev_b32 v1, 1, v0
v_and_b32 v2, 1, v0
v_mul_u32_u24 v3, 7680, v1
v_lshl_add_u32 v3, v2, 4, v3
v_add_u32 v3, s22, v3
v_lshlrev_b32 v4, 1, v1
s_waitcnt lgkmcnt(0)
@stamp
""")
    srd(a, 8, 4, 1280)
    srd(a, 12, 6, 640*3840*2)
    srd(a, 16, 20, WS_SIZE)
    NR = 4
    for i in range(NR):
        a(f"buffer_load_short_d16_hi v{28+i}, v4, s[8:11], 0 offen offset:{320*i}")
    a("s_mov_b32 s23, 0")
    for i in range(NR):
        a(f"buffer_load_dwordx4 v[{8+4*i}:{11+4*i}], v3, s[12:15], s23 offen")
        if i < NR-1: a(f"s_add_u32 s23, s23, {160*7680}")
    a(f"s_waitcnt vmcnt({NR})")
    for i in range(NR): a(f"v_mul_f32 v{33+i}, {fh(-math.log2(math.e))}, v{28+i}")
    for i in range(NR): a(f"v_exp_f32 v{33+i}, v{33+i}")
    for i in range(NR): a(f"v_add_f32 v{33+i}, 1.0, v{33+i}")
    for i in range(NR): a(f"v_rcp_f32 v{33+i}, v{33+i}")
    for i in range(NR): a(f"v_mul_f32 v{28+i}, v{28+i}, v{33+i}")
    for i in range(NR): a(f"v_cvt_pk_bf16_f32 v{28+i}, v{28+i}, v{28+i}")
    for i in range(NR): a(f"v_and_b32 v{48+2*i}, 0xffff0000, v{28+i}")
    a("""v_and_b32 v5, 15, v0
v_lshrrev_b32 v6, 4, v0
v_lshlrev_b32 v7, 6, v6
v_lshl_add_u32 v7, v2, 5, v7""")
    for i in range(NR):
        a(f"s_waitcnt vmcnt({NR-1-i})")
        if i == NR-1: a("@stamp")
        for j in range(4):
            a(f"v_lshlrev_b32 v{32+2*j}, 16, v{8+4*i+j}\nv_and_b32 v{33+2*j}, 0xffff0000, v{8+4*i+j}")
        for j in range(4):
            if i == 0: a(f"v_pk_mul_f32 v[{40+2*j}:{41+2*j}], v[{32+2*j}:{33+2*j}], v[48:49] op_sel_hi:[1,0]")
            else: a(f"v_pk_fma_f32 v[{40+2*j}:{41+2*j}], v[{32+2*j}:{33+2*j}], v[{48+2*i}:{49+2*i}], v[{40+2*j}:{41+2*j}] op_sel_hi:[1,0,1]")
    for mode in ('quad_perm:[2,3,0,1]', 'row_ror:4', 'row_ror:8'):
        for j in range(8):
            a(f"v_add_f32_dpp v{40+j}, v{40+j}, v{40+j} {mode} {DPP}")
    a("""
v_cmp_gt_u32 vcc, 2, v5
s_and_saveexec_b64 s[24:25], vcc
ds_write_b128 v7, v[40:43]
ds_write_b128 v7, v[44:47] offset:16
s_mov_b64 exec, s[24:25]
s_waitcnt lgkmcnt(0)
s_barrier
s_cmp_ge_u32 s28, 64
s_cbranch_scc1 K0_end
v_mul_u32_u24 v7, 320, v6
v_lshl_add_u32 v7, v5, 2, v7
ds_read_b32 v8, v7
ds_read_b32 v9, v7 offset:64
ds_read_b32 v10, v7 offset:128
ds_read_b32 v11, v7 offset:192
ds_read_b32 v12, v7 offset:256
s_sub_u32 s24, s3, 40
s_cmp_lt_u32 s24, 40
s_cselect_b32 s25, 1.0, 0
s_sub_u32 s24, s3, 160
s_cmp_lt_u32 s24, 40
s_cselect_b32 s25, 1.0, s25
s_lshl_b32 s22, s3, 6
v_lshlrev_b32 v7, 2, v0
s_waitcnt lgkmcnt(0)
v_add_f32 v8, v8, v9
v_add_f32 v10, v10, v11
v_add_f32 v8, v8, v12
v_add_f32 v8, v8, v10
v_mov_b32 v9, v8
v_permlane16_swap_b32 v8, v9
v_add_f32 v8, v8, v9
v_mov_b32 v9, v8
v_permlane32_swap_b32 v8, v9
v_add_f32 v8, v8, v9
v_cvt_pk_bf16_f32 v8, v8, v8
v_and_b32 v8, 0xffff0000, v8
v_add_f32 v8, s25, v8
v_cvt_pk_bf16_f32 v8, v8, v8
v_and_b32 v8, 0xffff0000, v8
v_cmp_gt_u32 vcc, 16, v0
s_and_saveexec_b64 s[24:25], vcc
buffer_store_dword v8, v7, s[16:19], s22 offen
@dump 16
s_endpgm
""")
    a.st.n = 1
    a(f"""
K0_wprep:
s_sub_u32 s2, s2, 240
v_cmp_gt_u32 vcc, 321, v0
s_and_saveexec_b64 s[30:31], vcc
s_cbranch_execz K0_end
s_and_b32 s3, s2, 7
s_lshr_b32 s22, s2, 3
s_and_b32 s23, s22, 3
s_lshl_b32 s3, s3, 2
s_add_u32 s3, s3, s23
s_bfe_u32 s23, s22, 0x10002
s_lshl_b32 s23, s23, 5
s_add_u32 s3, s3, s23
s_lshr_b32 s22, s22, 3
s_lshl_b32 s23, s22, 8
s_add_u32 s23, s23, s3
s_mul_i32 s23, s23, 642
v_lshlrev_b32 v1, 1, v0
s_waitcnt lgkmcnt(0)
""")
    srd(a, 8, 24, 2048*642)
    srd(a, 12, 26, 2048*642)
    srd(a, 16, 20, WS_SIZE)
    for mt in range(2):
        for i in range(4):
            a(f"buffer_load_ushort v{4+4*mt+i}, v1, s[8:11], s23 offen")
            a(f"buffer_load_short_d16_hi v{12+4*mt+i}, v1, s[12:15], s23 offen")
            if (mt, i) != (1, 3): a(f"s_add_u32 s23, s23, {41088 if i < 3 else 41088*13}")
    a(f"""
s_lshr_b32 s23, s3, 4
s_lshl_b32 s23, s23, 11
s_and_b32 s28, s3, 15
s_lshl_b32 s29, s22, 4
s_add_u32 s28, s28, s29
s_lshl_b32 s28, s28, 5
s_add_u32 s23, s23, s28
s_add_u32 s23, s23, {WP}
v_lshlrev_b32 v1, 13, v0
@stamp
s_waitcnt vmcnt(0)
@stamp
""")
    for k in range(8): a(f"v_or_b32 v{4+k}, v{4+k}, v{12+k}")
    a("""buffer_store_dwordx4 v[4:7], v1, s[16:19], s23 offen
buffer_store_dwordx4 v[8:11], v1, s[16:19], s23 offen offset:16
@stamp
@dump 16 s69
s_endpgm""")
    a(f"""K0_pf:
s_load_dwordx2 s[8:9], s[0:1], 0
s_sub_u32 s3, s2, 496
s_mul_i32 s3, s3, {384*128}
v_lshlrev_b32 v1, 7, v0
s_mov_b32 s10, {2048*1280}
s_mov_b32 s11, 0x00020000
s_waitcnt lgkmcnt(0)
buffer_load_dword v2, v1, s[8:11], s3 offen""")
    a("K0_end:\ns_endpgm")
    return ('k0_kernel', (NW0,1,1), (384,1,1), 1280, kd_block('k0_kernel', 56, 96))

C1,C2,S1,S2 = math.cos(2*math.pi/5),math.cos(4*math.pi/5),math.sin(2*math.pi/5),math.sin(4*math.pi/5)
def P(r): return f"v[{r}:{r+1}]"
def Q(r): return f"v[{r}:{r+3}]"

def col_slots(a, sW, vN, vG, out, tmp):
    a(f"""v_and_b32 v{tmp}, 7, v{vN}
s_lshl_b32 s40, s{sW}, 3
v_add_u32 v{out}, s40, v{tmp}
v_cmp_eq_u32 vcc, 0, v{out}
v_cndmask_b32 v{out+2}, 1.0, 0, vcc
v_cmp_lt_u32 s[42:43], 7, v{vN}
s_and_b64 s[44:45], s[42:43], vcc
s_andn2_b64 s[42:43], s[42:43], vcc
v_cndmask_b32 v{out}, v{out}, 64, s[44:45]
v_cndmask_b32 v{out+1}, 0, -1, s[42:43]
v_sub_u32 v{tmp}, 128, v{out}
v_cndmask_b32 v{tmp}, v{out}, v{tmp}, s[42:43]
v_mul_u32_u24 v{tmp}, 5, v{tmp}
v_lshrrev_b32 v{tmp+1}, 1, v{vG}
v_lshl_add_u32 v{tmp}, v{tmp+1}, 7, v{tmp}
v_add_u32 v{tmp+1}, 128, v{tmp}
v_subrev_u32 v{tmp+2}, 640, v{tmp+1}
v_min_u32 v{tmp+1}, v{tmp+1}, v{tmp+2}
v_sub_u32 v{tmp+2}, 640, v{tmp+1}
v_cmp_lt_u32 vcc, v{tmp+2}, v{tmp+1}
v_min_u32 v{tmp+1}, v{tmp+1}, v{tmp+2}
v_mov_b32 v{tmp+2}, 0x80008000
v_cndmask_b32 v{out+4}, 0, v{tmp+2}, vcc
v_and_b32 v{tmp+3}, 1, v{vG}
v_lshlrev_b32 v{tmp+3}, 4, v{tmp+3}
v_lshl_add_u32 v{out+3}, v{tmp+1}, 13, v{tmp+3}
v_mul_u32_u24 v{tmp+1}, 40960, v{out}
v_add_u32 v{out+5}, v{tmp+1}, v{tmp+3}""")

def allreduce64(a, v, t):
    for mode in ('quad_perm:[1,0,3,2]', 'quad_perm:[2,3,0,1]', 'row_ror:4', 'row_ror:8'):
        a(f"v_add_f32_dpp v{v}, v{v}, v{v} {mode} {DPP}")
    a(f"""v_mov_b32 v{t}, v{v}
v_permlane16_swap_b32 v{v}, v{t}
v_add_f32 v{v}, v{v}, v{t}
v_mov_b32 v{t}, v{v}
v_permlane32_swap_b32 v{v}, v{t}
v_add_f32 v{v}, v{v}, v{t}""")

def row_ids(a):
    a("""s_and_b32 s3, s2, 7
s_lshr_b32 s20, s2, 3
s_lshl_b32 s3, s3, 2
s_lshr_b32 s21, s20, 3
s_add_u32 s3, s3, s21
s_and_b32 s20, s20, 7
v_lshrrev_b32 v4, 6, v0
v_and_b32 v1, 63, v0
v_readfirstlane_b32 s22, v4
v_and_b32 v3, 31, v0
v_lshlrev_b32 v2, 3, v3
v_bfe_u32 v4, v0, 5, 1
v_lshl_add_u32 v2, v4, 8, v2
v_lshlrev_b32 v3, 2, v3
v_lshl_add_u32 v3, v4, 1, v3""")
def w5_consts(a, o, t, sgn):
    a(f"""v_cvt_f32_u32 v{t}, v3
v_mul_f32 v{t}, {fh(0.2*sgn)}, v{t}
v_add_f32 v{t+1}, {fh(0.2*sgn)}, v{t}
v_cos_f32 v{o}, v{t}
v_cos_f32 v{o+1}, v{t+1}
v_sin_f32 v{o+2}, v{t}
v_sin_f32 v{o+3}, v{t+1}
v_pk_add_f32 {P(t)}, {P(t)}, {P(t)}
v_cos_f32 v{o+4}, v{t}
v_cos_f32 v{o+5}, v{t+1}
v_sin_f32 v{o+6}, v{t}
v_sin_f32 v{o+7}, v{t+1}""")
def ln_rows(a, X, t):
    a(f"""v_pk_add_f32 {P(t)}, {P(X)}, {P(X+2)}
v_pk_add_f32 {P(t+2)}, {P(X+4)}, {P(X+6)}
v_pk_add_f32 {P(t)}, {P(t)}, {P(X+8)}
v_pk_add_f32 {P(t)}, {P(t)}, {P(t+2)}
v_add_f32 v{t}, v{t}, v{t+1}""")
    allreduce64(a, t, t+1)
    a(f"v_mul_f32 v{t}, {fh(-1/640)}, v{t}")
    for j in range(5): a(f"v_pk_add_f32 {P(X+2*j)}, {P(X+2*j)}, {P(t)} op_sel_hi:[1,0]")
    a(f"""v_pk_mul_f32 {P(t)}, {P(X)}, {P(X)}
v_pk_mul_f32 {P(t+2)}, {P(X+2)}, {P(X+2)}
v_pk_fma_f32 {P(t)}, {P(X+4)}, {P(X+4)}, {P(t)}
v_pk_fma_f32 {P(t+2)}, {P(X+6)}, {P(X+6)}, {P(t+2)}
v_pk_fma_f32 {P(t)}, {P(X+8)}, {P(X+8)}, {P(t)}
v_pk_add_f32 {P(t)}, {P(t)}, {P(t+2)}
v_add_f32 v{t}, v{t}, v{t+1}""")
    allreduce64(a, t, t+1)
    a(f"""v_mov_b32 v{t+1}, {fh(1e-5)}
v_fmac_f32 v{t+1}, {fh(1/640)}, v{t}
v_rsq_f32 v{t}, v{t+1}""")
def unpack_x(a, src, X):
    for k in range(3): a(f"v_permlane32_swap_b32 v{src+2*k}, v{src+2*k+1}")
    for j in range(5): a(f"v_lshlrev_b32 v{X+2*j}, 16, v{src+j}\nv_and_b32 v{X+2*j+1}, 0xffff0000, v{src+j}")
def r5_sconsts(a):
    a(f"""s_mov_b32 s30, {fh(C1)}
s_mov_b32 s31, {fh(C1)}
s_mov_b32 s32, {fh(C2)}
s_mov_b32 s33, {fh(C2)}
s_mov_b32 s34, {fh(S1)}
s_mov_b32 s35, {fh(S1)}
s_mov_b32 s36, {fh(S2)}
s_mov_b32 s37, {fh(S2)}""")

def k1(a):
    head(a, 'k1_kernel')
    PB = 12288
    a("""
s_cmp_ge_u32 s2, 256
s_cbranch_scc1 K1_side
@stamp
s_load_dwordx2 s[4:5], s[0:1], 0
s_load_dwordx2 s[6:7], s[0:1], 88
""")
    row_ids(a)
    a(f"""
s_lshl_b32 s21, s20, 3
s_add_u32 s21, s21, s22
s_lshl_b32 s21, s21, 5
s_add_u32 s21, s21, s3
s_mul_i32 s21, s21, 1280
v_lshlrev_b32 v4, 4, v1
s_lshl_b32 s23, s22, 10
s_add_u32 m0, s23, {PB}
s_waitcnt lgkmcnt(0)
""")
    srd(a, 8, 4, 2048*1280)
    srd(a, 12, 6, WS_SIZE)
    for k in range(3):
        a(f"buffer_load_dwordx2 {P(16+2*k)}, v2, s[8:11], s21 offen offset:{512*k}")
    a("""s_cmp_ge_u32 s22, 5
s_cbranch_scc1 K1_nodma
buffer_load_dwordx4 v4, s[12:15], s23 offen lds
K1_nodma:
v_and_b32 v5, 15, v0
v_bfe_u32 v6, v0, 4, 2""")
    col_slots(a, 22, 5, 6, 8, 22)
    w5_consts(a, 88, 22, -1.0)
    a(f"""
v_cvt_f32_u32 v22, v8
v_mul_f32 v22, {fh(1/128)}, v22
v_cvt_f32_u32 v23, v6
v_mul_f32 v23, {fh(8.0)}, v23
v_and_b32 v24, {fh(0.25)}, v9
v_fma_f32 v23, v23, v22, -v24
v_mul_f32 v24, {fh(25.0)}, v22
""")
    for t in range(4):
        for jj in range(4):
            a(f"""v_cos_f32 v25, v23
v_add_f32 v23, v23, v22
v_cos_f32 v26, v23
v_add_f32 v23, v23, v{24 if jj == 3 else 22}
v_cvt_pk_bf16_f32 v{96+4*t+jj}, v25, v26""")
    a(f"""
v_lshrrev_b32 v22, 3, v3
v_xor_b32 v22, s22, v22
v_lshlrev_b32 v22, 4, v22
v_and_b32 v23, 7, v3
v_lshl_add_u32 v22, v23, 1, v22
s_lshl_b32 s23, s22, 8
v_add_u32 v14, s23, v22
v_xor_b32 v15, {2048+128}, v14
v_lshlrev_b32 v7, 2, v3
v_xor_b32 v22, v6, v5
""")
    for t in range(4):
        a(f"""v_xor_b32 v23, {4*t}, v22
v_lshlrev_b32 v23, 4, v23
v_lshl_add_u32 v{112+t}, v5, 8, v23""")
    r5_sconsts(a)
    a(f"""
s_lshl_b32 s23, s3, 8
s_lshl_b32 s21, s20, 5
s_add_u32 s23, s23, s21
s_add_u32 s23, s23, {XF}
@stamp
s_waitcnt vmcnt(0)
s_barrier
@stamp
""")
    for j in range(5):
        a(f"ds_read_b64 {P(40+2*j)}, v7 offset:{PB+2560+512*j}\nds_read_b64 {P(50+2*j)}, v7 offset:{PB+512*j}")
    unpack_x(a, 16, 28)
    ln_rows(a, 28, 22)
    a("s_waitcnt lgkmcnt(0)")
    for j in range(5): a(f"v_pk_mul_f32 {P(40+2*j)}, {P(40+2*j)}, {P(22)} op_sel_hi:[1,0]")
    for j in range(5): a(f"v_pk_fma_f32 {P(28+2*j)}, {P(28+2*j)}, {P(40+2*j)}, {P(50+2*j)}")
    h = {(3*j) % 5: 28+2*j for j in range(5)}
    t1,t2,t3,t4 = 40,42,44,46; z0,p1,q1,p2,q2 = 48,50,52,54,56
    a(f"""v_pk_add_f32 {P(t1)}, {P(h[1])}, {P(h[4])}
v_pk_add_f32 {P(t2)}, {P(h[2])}, {P(h[3])}
v_pk_add_f32 {P(t3)}, {P(h[1])}, {P(h[4])} neg_lo:[0,1] neg_hi:[0,1]
v_pk_add_f32 {P(t4)}, {P(h[2])}, {P(h[3])} neg_lo:[0,1] neg_hi:[0,1]
v_pk_add_f32 {P(z0)}, {P(h[0])}, {P(t1)}
v_pk_fma_f32 {P(p1)}, s[30:31], {P(t1)}, {P(h[0])}
v_pk_fma_f32 {P(p2)}, s[32:33], {P(t1)}, {P(h[0])}
v_pk_mul_f32 {P(q1)}, s[34:35], {P(t3)}
v_pk_mul_f32 {P(q2)}, s[36:37], {P(t3)}
v_pk_add_f32 {P(z0)}, {P(z0)}, {P(t2)}
v_pk_fma_f32 {P(p1)}, s[32:33], {P(t2)}, {P(p1)}
v_pk_fma_f32 {P(p2)}, s[30:31], {P(t2)}, {P(p2)}
v_pk_fma_f32 {P(q1)}, s[36:37], {P(t4)}, {P(q1)}
v_pk_fma_f32 {P(q2)}, s[34:35], {P(t4)}, {P(q2)} neg_lo:[0,1,0] neg_hi:[0,1,0]
v_cvt_pk_bf16_f32 v22, v{z0}, v{z0+1}
ds_write_b32 v14, v22 offset:8192""")
    for k, (p, q) in enumerate(((p1, q1), (p2, q2))):
        c, s = 88+4*k, 90+4*k; r, im = 28+4*k, 30+4*k
        a(f"""v_pk_mul_f32 {P(r)}, {P(p)}, {P(c)}
v_pk_mul_f32 {P(im)}, {P(p)}, {P(s)}
v_pk_fma_f32 {P(r)}, {P(q)}, {P(s)}, {P(r)}
v_pk_fma_f32 {P(im)}, {P(q)}, {P(c)}, {P(im)} neg_lo:[1,0,0] neg_hi:[1,0,0]
v_cvt_pk_bf16_f32 v{23+2*k}, v{r}, v{r+1}
v_cvt_pk_bf16_f32 v{24+2*k}, v{im}, v{im+1}
ds_write_b32 v{14+k}, v{23+2*k}
ds_write_b32 v{14+k}, v{24+2*k} offset:4096""")
    a("@stamp\ns_waitcnt lgkmcnt(0)\ns_barrier\n@stamp")
    for T in range(3):
        for t in range(4):
            a(f"ds_read_b128 {Q(28+16*T+4*t)}, v{112+t} offset:{4096*T}")
    n = 12
    for T in range(3):
        for t in range(4):
            n -= 1
            a(f"s_waitcnt lgkmcnt({n})")
            a(f"v_mfma_f32_16x16x32_bf16 {Q(76+4*T)}, {Q(28+16*T+4*t)}, {Q(96+4*t)}, {'0' if t == 0 else Q(76+4*T)}")
    a(f"""v_and_b32 v22, 0x80008000, v9
v_and_b32 v23, v9, v12
v_bfi_b32 v24, v9, v22, v12
v_cmp_neq_f32 vcc, 0, v10
v_pk_mul_f32 {P(28)}, {P(76)}, {P(10)} op_sel_hi:[1,0]
v_pk_mul_f32 {P(30)}, {P(78)}, {P(10)} op_sel_hi:[1,0]
v_pk_mul_f32 {P(32)}, {P(80)}, {P(10)} op_sel_hi:[1,0]
v_pk_mul_f32 {P(34)}, {P(82)}, {P(10)} op_sel_hi:[1,0]
v_cndmask_b32 v25, 0, -1, vcc""")
    for i in range(4):
        a(f"v_add_f32_dpp v{76+i}, v{32+i}, v{76+i} row_ror:8 {DPP}")
        a(f"v_subrev_f32_dpp v{80+i}, v{28+i}, v{80+i} row_ror:8 {DPP}")
    a(f"""v_cvt_pk_bf16_f32 v36, v76, v77
v_cvt_pk_bf16_f32 v37, v78, v79
v_cvt_pk_bf16_f32 v38, v80, v81
v_cvt_pk_bf16_f32 v39, v82, v83
v_cvt_pk_bf16_f32 v44, v84, v85
v_cvt_pk_bf16_f32 v45, v86, v87
v_xor_b32 v36, v36, v23
v_xor_b32 v37, v37, v23
v_xor_b32 v38, v38, v24
v_xor_b32 v39, v39, v24
v_xor_b32 v44, v44, v22
v_xor_b32 v45, v45, v22
v_cndmask_b32 v40, v36, v38, s[42:43]
v_cndmask_b32 v41, v37, v39, s[42:43]
v_cndmask_b32 v42, v38, v36, s[42:43]
v_cndmask_b32 v43, v39, v37, s[42:43]
buffer_store_dwordx4 {Q(40)}, v11, s[12:15], s23 offen
v_and_b32_dpp v46, v44, v25 row_ror:8 {DPP}
v_and_b32_dpp v47, v45, v25 row_ror:8 {DPP}
s_not_b64 exec, s[42:43]
s_mov_b32 exec_hi, 0
buffer_store_dwordx4 {Q(44)}, v13, s[12:15], s23 offen
@stamp
@dump 12
s_endpgm
K1_side:
s_cmp_ge_u32 s2, 352
s_cbranch_scc1 K1_end
s_load_dwordx2 s[4:5], s[0:1], 48
s_load_dwordx2 s[6:7], s[0:1], 88
s_sub_u32 s3, s2, 256
s_cmp_lg_u32 s3, 0
s_cbranch_scc1 K1_nz
s_waitcnt lgkmcnt(0)
s_mov_b32 s12, s6
s_mov_b32 s13, s7
s_mov_b32 s14, {WS_SIZE}
s_mov_b32 s15, 0x00020000
s_mov_b32 s20, {FLG}
v_lshlrev_b32 v1, 7, v0
v_mov_b32 v24, 0
buffer_store_dword v24, v1, s[12:15], s20 offen
K1_nz:
v_cmp_gt_u32 vcc, 320, v0
s_and_saveexec_b64 s[30:31], vcc
s_cbranch_execz K1_end
v_mul_u32_u24 v1, 52429, v0
v_lshrrev_b32 v1, 22, v1
v_mul_u32_u24 v2, 80, v1
v_sub_u32 v2, v0, v2
v_mul_u32_u24 v3, 52429, v2
v_lshrrev_b32 v3, 19, v3
v_mul_u32_u24 v4, 10, v3
v_sub_u32 v4, v2, v4
v_mul_u32_u24 v5, 1280, v1
v_lshl_add_u32 v5, v2, 4, v5
s_mov_b32 s20, {1536*160}
v_mul_lo_u32 v6, v3, s20
v_lshl_add_u32 v6, v4, 4, v6
v_mul_u32_u24 v7, 160, v1
v_add_u32 v6, v6, v7
s_mul_i32 s20, s3, {16*1280}
s_lshr_b32 s21, s3, 1
s_mul_i32 s21, s21, {32*160}
s_and_b32 s22, s3, 1
s_mul_i32 s22, s22, {8*160}
s_add_u32 s21, s21, s22
s_add_u32 s21, s21, {WDT}
s_waitcnt lgkmcnt(0)""")
    srd(a, 8, 4, 1536*1280)
    srd(a, 12, 6, WS_SIZE)
    for q in range(4):
        a(f"buffer_load_dwordx4 {Q(8+4*q)}, v5, s[8:11], s20 offen")
        if q < 3: a("s_add_u32 s20, s20, 5120")
    for q in range(4):
        a(f"s_waitcnt vmcnt(3)\nbuffer_store_dwordx4 {Q(8+4*q)}, v6, s[12:15], s21 offen offset:{(16*(q&1) + 4*(q>>1))*160}")
    a("K1_end:\ns_endpgm")
    return ('k1_kernel', (352,1,1), (512,1,1), PB+5120, kd_block('k1_kernel', 116, 96))

def k2(a):
    head(a, 'k2_kernel')
    a(f"""
s_cmp_ge_u32 s2, 321
s_cbranch_scc1 K2_side
@stamp
s_load_dwordx2 s[6:7], s[0:1], 88
v_and_b32 v1, 15, v0
v_bfe_u32 v2, v0, 4, 2
v_lshrrev_b32 v3, 6, v0
v_and_b32 v9, 63, v0
v_readfirstlane_b32 s3, v3
v_lshl_add_u32 v4, v3, 2, v2
v_xor_b32 v10, v4, v1
v_lshlrev_b32 v10, 4, v10
v_lshl_add_u32 v4, v4, 8, v10
v_lshlrev_b32 v5, 5, v0
s_lshl_b32 s20, s2, 13
s_add_u32 s21, s20, {XF}
s_add_u32 s22, s21, 4096
s_add_u32 s23, s20, {WP}
s_lshl_b32 s24, s3, 10
s_mov_b32 m0, s24
s_waitcnt lgkmcnt(0)
@stamp
""")
    srd(a, 8, 6, WS_SIZE)
    a(f"""buffer_load_dwordx4 v4, s[8:11], s21 offen lds
s_add_u32 m0, s24, 4096
s_nop 0
buffer_load_dwordx4 v4, s[8:11], s22 offen lds
buffer_load_dwordx4 v[48:51], v5, s[8:11], s23 offen
buffer_load_dwordx4 v[52:55], v5, s[8:11], s23 offen offset:16
v_lshl_add_u32 v6, v3, 4, v1
v_cvt_f32_u32 v6, v6
v_cvt_f32_u32 v7, v2
v_cvt_f32_u32 v8, v1
v_mul_f32 v7, 4.0, v7
""")
    M = lambda t: 56+6*t
    N = lambda x, y: 80+6*(2*x+y)
    def gen(R, cur, step, last):
        for hh in range(2):
            a(f"""v_cos_f32 v12, v{cur}
v_sin_f32 v13, v{cur}
v_add_f32 v{cur}, v{cur}, v{step}
v_cos_f32 v14, v{cur}
v_sin_f32 v15, v{cur}
v_add_f32 v{cur}, v{cur}, v{last if hh else step}
v_cvt_pk_bf16_f32 v{R+2+hh}, v12, v14
v_cvt_pk_bf16_f32 v{R+hh}, -v13, -v15
v_cvt_pk_bf16_f32 v{R+4+hh}, v13, v15""")
    a(f"""v_mul_f32 v16, {fh(1/64)}, v6
v_mul_f32 v10, v7, v16
v_mul_f32 v11, {fh(13.0)}, v16""")
    for t in range(4): gen(M(t), 10, 16, 11)
    for x in range(2):
        a(f"""v_add_f32 v16, {fh(16.0*x)}, v8
v_mul_f32 v16, {fh(1/32)}, v16
v_mul_f32 v10, v7, v16
v_mul_f32 v11, {fh(13.0)}, v16""")
        for y in range(2): gen(N(x, y), 10, 16, 11)
    a(f"""v_mul_f32 v16, {fh(-1/2048)}, v6
v_mul_f32 v10, v7, v16
v_mul_f32 v11, {fh(13.0)}, v16""")
    for k in range(8):
        a(f"v_cos_f32 v{104+k}, v10\nv_sin_f32 v{112+k}, v10")
        if k < 7: a(f"v_add_f32 v10, v10, v{11 if k == 3 else 16}")
    a(f"""s_lshl_b32 s24, s3, 4
v_cvt_f32_u32 v12, s24
v_add_f32 v12, v12, v7
s_mov_b32 s26, {fh(2.0/(2048*640))}
s_cmp_eq_u32 s2, 0
s_cselect_b32 s26, {fh(1.0/(2048*640))}, s26
s_cmp_eq_u32 s2, 320
s_cselect_b32 s26, {fh(1.0/(2048*640))}, s26
s_mov_b32 s27, s26""")
    for nt in range(2):
        a(f"""v_add_f32 v16, {fh(16.0*nt)}, v8
v_mul_f32 v16, {fh(1/2048)}, v16
v_mul_f32 v10, v12, v16""")
        for i in range(4):
            k = 4*nt+i
            a(f"v_cos_f32 v{120+k}, v10\nv_sin_f32 v{128+k}, v10")
            if i < 3: a("v_add_f32 v10, v10, v16")
    for k in range(8): a(f"v_pk_mul_f32 {P(120+2*k)}, s[26:27], {P(120+2*k)}")
    a(f"""v_xor_b32 v10, v2, v1
v_lshlrev_b32 v10, 4, v10
v_lshl_add_u32 v10, v1, 8, v10
v_xor_b32 v11, 64, v10
v_xor_b32 v12, 128, v10
v_xor_b32 v13, 192, v10
v_lshlrev_b32 v7, 4, v9
s_lshl_b32 s24, s3, 10
v_add_u32 v6, s24, v7
v_lshlrev_b32 v5, 8, v1
v_lshl_add_u32 v5, v3, 6, v5
v_lshl_add_u32 v5, v2, 4, v5
s_add_u32 s21, s20, {YF}
s_add_u32 s22, s21, 4096
@stamp
s_waitcnt vmcnt(2)
s_barrier
@stamp""")
    D = lambda mt, t: 16+16*mt+4*t
    for t in range(4):
        for mt in range(2):
            a(f"ds_read_b128 {Q(D(mt,t))}, v{10+t} offset:{4096*mt}")
    def mf(d, A, B, first): a(f"v_mfma_f32_16x16x32_bf16 {Q(d)}, {Q(A)}, {Q(B)}, {'0' if first else Q(d)}")
    for t in range(4):
        a(f"s_waitcnt lgkmcnt({6-2*t})")
        for mt in range(2):
            mf(136+8*mt, D(mt,t), M(t)+2, t == 0)
            mf(140+8*mt, D(mt,t), M(t), t == 0)
    a("s_waitcnt vmcnt(0)")
    for k in range(8):
        a(f"v_lshlrev_b32 v{32+k}, 16, v{48+k}\nv_and_b32 v{40+k}, 0xffff0000, v{48+k}")
    def tw_pack(tr, ti, B, swap):
        for blk in range(2):
            for hh in range(2):
                r = 136+8*blk+2*hh; i = r+4; c = tr+4*blk+2*hh; s = ti+4*blk+2*hh; t = 48+4*blk+2*hh
                a(f"""v_pk_mul_f32 {P(t)}, {P(i)}, {P(s)}
v_pk_mul_f32 {P(i)}, {P(i)}, {P(c)}
v_pk_fma_f32 {P(i)}, {P(r)}, {P(s)}, {P(i)}
v_pk_fma_f32 {P(r)}, {P(r)}, {P(c)}, {P(t)} neg_lo:[0,0,1] neg_hi:[0,0,1]""")
        for blk in range(2):
            for hh in range(2):
                r = 136+8*blk+2*hh
                a(f"v_cvt_pk_bf16_f32 v{B+4*blk+hh+(2 if swap else 0)}, v{r}, v{r+1}")
                a(f"v_cvt_pk_bf16_f32 v{B+4*blk+hh+(0 if swap else 2)}, v{r+4}, v{r+5}")
    tw_pack(104, 112, 16, False)
    for y in range(2):
        for x in range(2):
            mf(136+8*x, N(x,y)+2, 16+4*y, y == 0)
            mf(140+8*x, N(x,y), 16+4*y, y == 0)
    tw_pack(32, 40, 24, True)
    for y in range(2):
        for x in range(2):
            mf(136+8*x, 24+4*y, N(x,y), y == 0)
            mf(140+8*x, 24+4*y, N(x,y)+2, y == 0)
    tw_pack(120, 128, 16, True)
    a(f"""ds_write_b128 v6, {Q(16)} offset:8192
ds_write_b128 v6, {Q(20)} offset:12288
@stamp
s_waitcnt lgkmcnt(0)
s_barrier
@stamp""")
    for t in range(4):
        for nt in range(2):
            a(f"ds_read_b128 {Q(D(nt,t))}, v7 offset:{8192+4096*nt+1024*t}")
    for t in range(4):
        a(f"s_waitcnt lgkmcnt({6-2*t})")
        for nt in range(2):
            mf(136+8*nt, M(t), D(nt,t), t == 0)
            mf(140+8*nt, M(t)+2, D(nt,t), t == 0)
    for nt in range(2):
        o = 48+4*nt; s = 136+8*nt
        for k in range(4): a(f"v_cvt_pk_bf16_f32 v{o+k}, v{s+2*k}, v{s+2*k+1}")
        a(f"buffer_store_dwordx4 {Q(o)}, v5, s[8:11], s{21+nt} offen")
    a(f"""@stamp
@dump 8
s_endpgm
K2_side:
s_cmp_ge_u32 s2, 381
s_cbranch_scc1 K2_end
s_load_dwordx4 s[4:7], s[0:1], 32
s_sub_u32 s3, s2, 321
s_lshl_b32 s3, s3, 15
v_lshlrev_b32 v1, 7, v0
s_waitcnt lgkmcnt(0)""")
    srd(a, 8, 4, 640*3072)
    srd(a, 12, 6, 640*3072)
    a("""buffer_load_dword v2, v1, s[8:11], s3 offen
buffer_load_dword v3, v1, s[12:15], s3 offen
K2_end:
s_endpgm""")
    return ('k2_kernel', (381,1,1), (256,1,1), 16384, kd_block('k2_kernel', 152, 96))

def k3(a):
    head(a, 'k3_kernel')
    ZB = 12288; ZR = 528; ZC = 8*ZR; PB = ZB + 5*ZC
    a("""
s_cmp_ge_u32 s2, 256
s_cbranch_scc1 K3_end
@stamp
s_load_dwordx2 s[4:5], s[0:1], 0
s_load_dwordx2 s[6:7], s[0:1], 88
""")
    row_ids(a)
    a("v_and_b32 v5, 15, v0\nv_bfe_u32 v6, v0, 4, 2")
    col_slots(a, 22, 5, 6, 8, 22)
    a(f"""
s_lshl_b32 s23, s3, 8
s_lshl_b32 s21, s20, 5
s_add_u32 s23, s23, s21
s_add_u32 s23, s23, {YF}
s_lshl_b32 s21, s20, 3
s_add_u32 s21, s21, s22
s_lshl_b32 s24, s3, 6
s_add_u32 s24, s24, s21
s_lshl_b32 s21, s21, 5
s_add_u32 s21, s21, s3
s_mul_i32 s21, s21, 1280
s_mul_i32 s24, s24, 1280
v_lshlrev_b32 v4, 4, v1
s_lshl_b32 s25, s22, 10
s_add_u32 m0, s25, {PB}
s_add_u32 s25, s25, 5120
s_waitcnt lgkmcnt(0)
""")
    srd(a, 8, 4, 2048*1280)
    srd(a, 12, 6, WS_SIZE)
    a(f"""buffer_load_dwordx4 {Q(28)}, v11, s[12:15], s23 offen
buffer_load_dwordx4 {Q(32)}, v13, s[12:15], s23 offen
buffer_load_dwordx4 v4, s[12:15], s25 offen lds""")
    for k in range(3):
        a(f"buffer_load_dwordx2 {P(16+2*k)}, v2, s[8:11], s21 offen offset:{512*k}")
    w5_consts(a, 88, 22, 1.0)
    a(f"""
s_lshl_b32 s27, s22, 4
v_add_u32 v22, s27, v5
v_cvt_f32_u32 v22, v22
v_mul_f32 v22, {fh(1/128)}, v22
v_and_b32 v23, 1, v6
v_cvt_f32_u32 v23, v23
v_mul_f32 v23, 4.0, v23
v_lshrrev_b32 v24, 1, v6
v_cvt_f32_u32 v24, v24
v_mul_f32 v24, {fh(0.25)}, v24
v_fma_f32 v23, v23, v22, v24
v_mul_f32 v24, {fh(5.0)}, v22
v_mul_f32 v27, {fh(64.0)}, v22
v_cmp_eq_u32 vcc, 2, v6
v_cndmask_b32 v27, v23, v27, vcc
""")
    for t in range(4):
        for jj in range(4):
            a(f"""v_cos_f32 v25, v{27 if (t, jj) == (0, 0) else 23}
v_add_f32 v23, v23, v22
v_cos_f32 v26, v23
v_add_f32 v23, v23, v{24 if jj & 1 else 22}
v_cvt_pk_bf16_f32 v{96+4*t+jj}, v25, v26""")
    a(f"""
v_lshlrev_b32 v14, 5, v5
v_lshl_add_u32 v14, v6, 3, v14
s_lshl_b32 s27, s22, 9
v_add_u32 v14, s27, v14
v_and_b32 v15, 4096, v9
v_add_u32 v15, v15, v14
v_xor_b32 v112, 4096, v15
v_lshlrev_b32 v113, 3, v1
v_and_b32 v22, 7, v5
v_mul_u32_u24 v22, {ZR}, v22
v_lshl_add_u32 v22, v6, 4, v22
s_lshl_b32 s27, s22, 6
v_add_u32 v115, s27, v22
v_lshrrev_b32 v22, 3, v5
v_mul_u32_u24 v22, {2*ZC}, v22
v_add_u32 v114, v115, v22
v_lshlrev_b32 v4, 2, v3
s_mul_i32 s27, s22, {ZR}
v_add_u32 v7, s27, v4
v_and_b32 v22, 0x80000000, v9
v_xor_b32 v22, v22, v10
v_and_b32 v23, 0x80008000, v9
v_xor_b32 v24, v23, v12
""")
    r5_sconsts(a)
    a(f"""@stamp
s_waitcnt vmcnt(4)
@stamp
v_cndmask_b32 v32, v32, v34, s[42:43]
v_cndmask_b32 v33, v33, v35, s[42:43]
v_xor_b32 v26, v30, v24
v_xor_b32 v27, v31, v24
v_xor_b32 v30, v30, v12
v_xor_b32 v31, v31, v12
ds_write_b64 v14, {P(32)} offset:8192""")
    for hh in range(2):
        a(f"""v_lshlrev_b32 v{36+2*hh}, 16, v{28+hh}
v_and_b32 v{37+2*hh}, 0xffff0000, v{28+hh}
v_lshlrev_b32 v{40+2*hh}, 16, v{30+hh}
v_and_b32 v{41+2*hh}, 0xffff0000, v{30+hh}
v_lshlrev_b32 v{44+2*hh}, 16, v{28+hh}
v_and_b32 v{45+2*hh}, 0xffff0000, v{28+hh}
v_lshlrev_b32 v{48+2*hh}, 16, v{26+hh}
v_and_b32 v{49+2*hh}, 0xffff0000, v{26+hh}""")
    for i in range(4):
        a(f"v_fmac_f32_dpp v{44+i}, v{36+i}, v22 row_ror:8 {DPP}")
        a(f"v_fmac_f32_dpp v{48+i}, v{40+i}, v10 row_ror:8 {DPP}")
    a(f"""v_cvt_pk_bf16_f32 v52, v44, v45
v_cvt_pk_bf16_f32 v53, v46, v47
v_cvt_pk_bf16_f32 v54, v48, v49
v_cvt_pk_bf16_f32 v55, v50, v51
ds_write_b64 v15, {P(52)}
ds_write_b64 v112, {P(54)}
s_waitcnt vmcnt(3) lgkmcnt(0)
s_barrier
@stamp""")
    for T in range(3):
        for t in range(4):
            for x in range(2):
                a(f"ds_read_b64_tr_b16 {P(28+16*T+4*t+2*x)}, v113 offset:{4096*T+1024*t+512*x}")
            if T == 1 and t == 3:
                a("s_waitcnt lgkmcnt(8)")
                for tt in range(4): a(f"v_mfma_f32_16x16x32_bf16 {Q(76)}, {Q(96+4*tt)}, {Q(28+4*tt)}, {'0' if tt == 0 else Q(76)}")
    for T in (1, 2):
        a(f"s_waitcnt lgkmcnt({8 if T == 1 else 0})")
        for t in range(4): a(f"v_mfma_f32_16x16x32_bf16 {Q(76+4*T)}, {Q(96+4*t)}, {Q(28+16*T+4*t)}, {'0' if t == 0 else Q(76+4*T)}")
    for j in range(5):
        a(f"ds_read_b64 {P(116+2*j)}, v4 offset:{PB+512*j}")
    a(f"""ds_write_b128 v114, {Q(76)} offset:{ZB+ZC}
ds_write_b128 v114, {Q(80)} offset:{ZB+2*ZC}
ds_write_b128 v115, {Q(84)} offset:{ZB}
s_waitcnt vmcnt(0)""")
    unpack_x(a, 16, 28)
    a("@stamp\ns_waitcnt lgkmcnt(0)\ns_barrier\n@stamp")
    for c in range(5): a(f"ds_read_b64 {P(40+2*c)}, v7 offset:{ZB+ZC*c}")
    for j in range(5):
        a(f"ds_read_b64 {P(136+2*j)}, v4 offset:{PB+5120+512*j}\nds_read_b64 {P(126+2*j)}, v4 offset:{PB+2560+512*j}")
    a("s_waitcnt lgkmcnt(10)")
    for k in range(2):
        r, im = 42+4*k, 44+4*k; c, s = 88+4*k, 90+4*k; R, I = 50+4*k, 52+4*k
        a(f"""v_pk_mul_f32 {P(R)}, {P(r)}, {P(c)}
v_pk_mul_f32 {P(I)}, {P(r)}, {P(s)}
v_pk_fma_f32 {P(R)}, {P(im)}, {P(s)}, {P(R)} neg_lo:[1,0,0] neg_hi:[1,0,0]
v_pk_fma_f32 {P(I)}, {P(im)}, {P(c)}, {P(I)}""")
    z0,z1r,z1i,z2r,z2i = 40,50,52,54,56
    A,B,Cc,Dd,E = 58,60,62,64,66
    sl = {(3*j) % 5: j for j in range(5)}
    X = lambda d2: P(28+2*sl[d2]); G = lambda d2: P(116+2*sl[d2])
    a(f"""v_pk_add_f32 {P(E)}, {P(z0)}, {P(z1r)}
v_pk_fma_f32 {P(A)}, s[30:31], {P(z1r)}, {P(z0)}
v_pk_fma_f32 {P(B)}, s[32:33], {P(z1r)}, {P(z0)}
v_pk_mul_f32 {P(Cc)}, s[34:35], {P(z1i)}
v_pk_mul_f32 {P(Dd)}, s[36:37], {P(z1i)}
v_pk_add_f32 {P(E)}, {P(E)}, {P(z2r)}
v_pk_fma_f32 {P(A)}, s[32:33], {P(z2r)}, {P(A)}
v_pk_fma_f32 {P(B)}, s[30:31], {P(z2r)}, {P(B)}
v_pk_fma_f32 {P(Cc)}, s[36:37], {P(z2i)}, {P(Cc)}
v_pk_fma_f32 {P(Dd)}, s[34:35], {P(z2i)}, {P(Dd)} neg_lo:[0,1,0] neg_hi:[0,1,0]
v_pk_fma_f32 {X(0)}, {G(0)}, {P(E)}, {X(0)}
v_pk_add_f32 {P(68)}, {P(A)}, {P(Cc)} neg_lo:[0,1] neg_hi:[0,1]
v_pk_add_f32 {P(70)}, {P(A)}, {P(Cc)}
v_pk_add_f32 {P(72)}, {P(B)}, {P(Dd)} neg_lo:[0,1] neg_hi:[0,1]
v_pk_add_f32 {P(74)}, {P(B)}, {P(Dd)}
v_pk_fma_f32 {X(1)}, {G(1)}, {P(68)}, {X(1)}
v_pk_fma_f32 {X(4)}, {G(4)}, {P(70)}, {X(4)}
v_pk_fma_f32 {X(2)}, {G(2)}, {P(72)}, {X(2)}
v_pk_fma_f32 {X(3)}, {G(3)}, {P(74)}, {X(3)}
s_add_u32 s25, s24, {X1}
s_add_u32 s26, s24, {H2F}""")
    for j in range(5): a(f"v_cvt_pk_bf16_f32 v{16+j}, v{28+2*j}, v{29+2*j}")
    a(f"""v_permlane32_swap_b32 v16, v17
v_permlane32_swap_b32 v18, v19
buffer_store_dwordx2 {P(16)}, v2, s[12:15], s25 offen
buffer_store_dwordx2 {P(18)}, v2, s[12:15], s25 offen offset:512""")
    ln_rows(a, 28, 22)
    a(f"""v_bfe_u32 v24, v0, 5, 1
v_mul_u32_u24 v24, {H2F - X1 - 256}, v24
v_add_u32 v24, v24, v2
s_waitcnt lgkmcnt(0)""")
    for j in range(5): a(f"v_pk_mul_f32 {P(136+2*j)}, {P(136+2*j)}, {P(22)} op_sel_hi:[1,0]")
    for j in range(5): a(f"v_pk_fma_f32 {P(28+2*j)}, {P(28+2*j)}, {P(136+2*j)}, {P(126+2*j)}")
    for j in range(4): a(f"v_cvt_pk_bf16_f32 v{40+j}, v{28+2*j}, v{29+2*j}")
    a(f"""v_cvt_pk_bf16_f32 v21, v36, v37
v_permlane32_swap_b32 v40, v41
v_permlane32_swap_b32 v42, v43
v_permlane32_swap_b32 v20, v21
buffer_store_dwordx2 {P(40)}, v2, s[12:15], s26 offen
buffer_store_dwordx2 {P(42)}, v2, s[12:15], s26 offen offset:512
buffer_store_dwordx2 {P(20)}, v24, s[12:15], s25 offen offset:1024
@stamp
@dump 12
K3_end:
s_endpgm""")
    return ('k3_kernel', (256,1,1), (512,1,1), PB+8192, kd_block('k3_kernel', 148, 96))

def ramp(NST, D, first=3):
    nxt = first; sched = {}
    for s in range(NST):
        lim = min(NST, s + D + 1)
        take = []
        while nxt < lim and len(take) < 2:
            take.append(nxt); nxt += 1
        sched[s] = take
    return list(range(first)), sched
def k4(a):
    head(a, 'k4_kernel')
    NST = 20; WS_ = 12288; HB = 98304; HS = 16384
    a(f"""
s_cmp_ge_u32 s2, 256
s_cbranch_scc1 K4_end
@stamp
s_load_dwordx4 s[4:7], s[0:1], 32
s_load_dwordx2 s[20:21], s[0:1], 88
s_and_b32 s3, s2, 7
s_lshr_b32 s22, s2, 3
s_and_b32 s23, s3, 1
s_lshl_b32 s23, s23, 3
s_and_b32 s24, s22, 7
s_add_u32 s23, s23, s24
s_lshr_b32 s24, s3, 1
s_lshl_b32 s24, s24, 2
s_lshr_b32 s25, s22, 3
s_add_u32 s24, s24, s25
v_lshrrev_b32 v1, 6, v0
v_and_b32 v2, 63, v0
v_readfirstlane_b32 s25, v1
s_cmp_lt_u32 s25, 8
s_cbranch_scc1 K4_cons
s_sub_u32 s25, s25, 8
""")
    for q in range(3):
        a(f"""v_add_u32 v10, {64*q}, v2
v_mul_u32_u24 v11, 43691, v10
v_lshrrev_b32 v11, 19, v11
v_mul_u32_u24 v12, 12, v11
v_sub_u32 v12, v10, v12
v_lshrrev_b32 v13, 2, v11
v_and_b32 v13, 2, v13
v_xor_b32 v12, v12, v13
v_mul_u32_u24 v11, 3072, v11
v_lshl_add_u32 v11, v12, 4, v11
v_subrev_u32 v{3+q}, {1024*q}, v11""")
    for q in range(4):
        a(f"""v_lshrrev_b32 v10, 4, v2
v_add_u32 v10, {4*q}, v10
v_xor_b32 v10, v10, v2
v_and_b32 v10, 7, v10
v_lshrrev_b32 v11, 3, v2
v_mul_u32_u24 v11, 1280, v11
v_lshl_add_u32 v11, v10, 4, v11
v_add_u32 v{6+q}, {q*(10240-1024)}, v11""")
    a(f"""
s_and_b32 s26, s25, 1
s_mul_i32 s27, s26, {16*3072}
s_mul_i32 s28, s24, 192
s_add_u32 s27, s27, s28
s_mul_i32 s28, s25, 3072
s_lshl_b32 s29, s23, 2
s_add_u32 s29, s29, s25
s_mul_i32 s29, s29, 40960
s_add_u32 s29, s29, {H2F}
s_lshl_b32 s30, s25, 12
s_waitcnt lgkmcnt(0)
s_cmp_lt_u32 s25, 2
s_cselect_b32 s8, s4, s6
s_cselect_b32 s9, s5, s7
s_mov_b32 s10, {640*3072}
s_mov_b32 s11, 0x00020000
""")
    srd(a, 12, 20, WS_SIZE)
    cnt = []
    def issue(s):
        n = 0
        if s % 2 == 0:
            a(f"s_add_u32 m0, s30, {HB + ((s//2) % 4)*HS}")
            for q in range(4):
                a(f"buffer_load_dwordx4 v{6+q}, s[12:15], s29 offen offset:{1024*q} lds")
            a("s_add_u32 s29, s29, 128"); n += 4
        a(f"s_add_u32 m0, s28, {(s % 8)*WS_}")
        for q in range(3):
            a(f"buffer_load_dwordx4 v{3+q}, s[8:11], s27 offen offset:{1024*q} lds")
        a(f"s_add_u32 s27, s27, {32*3072}"); n += 3
        cnt.append(n)
    init, sched = ramp(NST, 6)
    for s in init: issue(s)
    for s in range(NST):
        a(f"s_waitcnt vmcnt({sum(cnt[s+1:])})\ns_barrier")
        for g in sched[s]: issue(g)
    a("@stamp\n@dump 12\ns_endpgm")
    a.st.n = 1
    a(f"""K4_cons:
s_lshr_b32 s26, s25, 2
s_and_b32 s27, s25, 3
v_lshrrev_b32 v3, 4, v2
v_bfe_u32 v4, v2, 2, 2
v_lshl_add_u32 v4, v3, 3, v4
v_mul_u32_u24 v4, 192, v4
v_and_b32 v5, 3, v2
v_lshl_add_u32 v4, v5, 3, v4
v_and_b32 v5, 1, v3
v_lshlrev_b32 v5, 5, v5
s_mul_i32 s28, s26, 96
v_add_u32 v4, s28, v4
s_cmp_eq_u32 s26, 0
s_cselect_b32 s29, 1, -1
v_mul_lo_u32 v5, v5, s29
v_add_u32 v6, v4, v5
v_sub_u32 v7, v4, v5
v_add_u32 v8, {4*WS_}, v6
v_add_u32 v9, {4*WS_}, v7
v_and_b32 v10, 15, v2
v_lshrrev_b32 v11, 1, v10
v_xor_b32 v11, v11, v3
v_lshlrev_b32 v11, 4, v11
v_lshl_add_u32 v11, v10, 7, v11
s_lshl_b32 s28, s27, 12
s_add_u32 s28, s28, {HB}
v_add_u32 v11, s28, v11
v_xor_b32 v12, 64, v11
s_waitcnt lgkmcnt(0)
""")
    srd(a, 12, 20, WS_SIZE)
    ACC = lambda mat, i, nt: 16 + 4*(6*nt + 3*mat + i)
    FA = lambda buf, mat, i: 64 + 32*buf + 4*(3*mat+i)
    FB = lambda buf, nt: 88 + 32*buf + 4*nt
    def reads(s):
        L = []; sl = s % 8
        for nt in range(2):
            f = FB(s & 1, nt)
            L.append(f"ds_read_b128 v[{f}:{f+3}], v{11 + (s & 1)} offset:{((s//2) % 4)*HS + 2048*nt}")
        for mat in range(2):
            for i in range(3):
                for x in range(2):
                    f = FA(s & 1, mat, i) + 2*x
                    L.append(f"ds_read_b64_tr_b16 v[{f}:{f+1}], v{6 + (i & 1) + 2*(sl//4)} offset:{(sl % 4)*WS_ + mat*6144 + 4*x*192 + 32*i}")
        return L
    a("s_barrier\n@stamp")
    for l in reads(0): a(l)
    for s in range(NST):
        a("s_waitcnt lgkmcnt(0)")
        R = []
        if s+1 < NST:
            a("s_barrier"); R = reads(s+1)
        k = 0
        for mat in range(2):
            for i in range(3):
                for nt in range(2):
                    c = ACC(mat, i, nt); fa = FA(s & 1, mat, i); fb = FB(s & 1, nt)
                    if 'nomfma' not in OPT: a(f"v_mfma_f32_16x16x32_bf16 v[{c}:{c+3}], v[{fa}:{fa+3}], v[{fb}:{fb+3}], {'0' if s == 0 else f'v[{c}:{c+3}]'}")
                    if 'nords' not in OPT:
                        for l in R[2*k:2*k+2]: a(l)
                    k += 1
    a("@stamp")
    kk = 2*0.7978845608028654*math.log2(math.e)
    a(f"""s_mov_b32 s30, {fh(-kk)}
s_mov_b32 s31, {fh(-kk*0.044715)}
v_mov_b32 v10, s30
s_lshl_b32 s29, s23, 3
s_lshl_b32 s28, s27, 1
s_add_u32 s29, s29, s28
s_mul_i32 s29, s29, 49152
s_mul_i32 s28, s24, 3072
s_add_u32 s29, s29, s28
s_mul_i32 s28, s26, 1536
s_add_u32 s29, s29, s28
s_add_u32 s29, s29, {HIDF}
s_mov_b32 s32, s30
s_mov_b32 s33, s30
s_mov_b32 s30, s31
v_mov_b32 v11, v10
v_bfe_u32 v7, v2, 4, 1
v_mul_u32_u24 v7, 49152, v7
v_lshrrev_b32 v8, 5, v2
v_lshl_add_u32 v7, v8, 8, v7
v_and_b32 v8, 15, v2
v_lshl_add_u32 v7, v8, 4, v7""")
    for nt in range(2):
        G = ACC(0, 0, nt); U = ACC(1, 0, nt); T = 64 + 16*nt
        for i in range(0, 12, 2): a(f"v_pk_mul_f32 {P(T+i)}, {P(G+i)}, {P(G+i)}")
        for i in range(0, 12, 2): a(f"v_pk_fma_f32 {P(T+i)}, {P(T+i)}, s[30:31], {P(10)}")
        for i in range(0, 12, 2): a(f"v_pk_mul_f32 {P(T+i)}, {P(T+i)}, {P(G+i)}")
        for i in range(0, 12, 2): a(f"v_exp_f32 v{T+i}, v{T+i}\nv_exp_f32 v{T+i+1}, v{T+i+1}\nv_pk_mul_f32 {P(G+i)}, {P(G+i)}, {P(U+i)}")
        for i in range(0, 12, 2): a(f"v_pk_add_f32 {P(T+i)}, {P(T+i)}, 1.0 op_sel_hi:[1,0]")
        for i in range(12): a(f"v_rcp_f32 v{T+i}, v{T+i}")
        for i in range(0, 12, 2): a(f"v_pk_mul_f32 {P(G+i)}, {P(G+i)}, {P(T+i)}")
        for i in range(3):
            O = 96 + 4*i + 2*nt
            a(f"""v_cvt_pk_bf16_f32 v{O}, v{G+4*i}, v{G+4*i+1}
v_cvt_pk_bf16_f32 v{O+1}, v{G+4*i+2}, v{G+4*i+3}""")
    for i in range(3):
        O = 96 + 4*i
        a(f"""v_permlane16_swap_b32 v{O}, v{O+2}
v_permlane16_swap_b32 v{O+1}, v{O+3}
buffer_store_dwordx4 {Q(O)}, v7, s[12:15], s29 offen offset:{512*i}""")
    a("@stamp\n@dump 12\nK4_end:\ns_endpgm")
    return ('k4_kernel', (256,1,1), (768,1,1), 163840, kd_block('k4_kernel', 128, 96))

def k5(a):
    head(a, 'k5_kernel')
    NST = 24; SLOT = 18432; NS = 8
    a(f"""
s_cmp_ge_u32 s2, 256
s_cbranch_scc1 K5_end
@stamp
s_load_dwordx2 s[4:5], s[0:1], 48
s_load_dwordx2 s[6:7], s[0:1], 72
s_load_dwordx2 s[20:21], s[0:1], 88
s_and_b32 s3, s2, 7
s_lshr_b32 s22, s2, 3
s_and_b32 s23, s3, 3
s_lshl_b32 s23, s23, 3
s_and_b32 s24, s22, 7
s_add_u32 s23, s23, s24
s_lshr_b32 s24, s3, 2
s_lshl_b32 s24, s24, 2
s_lshr_b32 s25, s22, 3
s_add_u32 s24, s24, s25
v_lshrrev_b32 v1, 6, v0
v_and_b32 v2, 63, v0
v_readfirstlane_b32 s25, v1
s_cmp_lt_u32 s25, 4
s_cbranch_scc1 K5_cons
s_cmp_ge_u32 s25, 6
s_cbranch_scc1 K5_prodh
s_sub_u32 s25, s25, 4
""")
    init, sched = ramp(NST, 7)
    a(f"""
s_mul_i32 s28, s25, 5120
s_mul_i32 s27, s24, {1536*160}
s_add_u32 s27, s27, s28
s_add_u32 s27, s27, {WDT}
v_lshlrev_b32 v3, 4, v2
v_add_u32 v4, 4096, v3
s_waitcnt lgkmcnt(0)
""")
    srd(a, 8, 20, WS_SIZE)
    srd(a, 12, 20, WS_SIZE)
    def issue_w(s):
        a(f"s_add_u32 m0, s28, {(s % NS)*SLOT}")
        for q in range(4):
            a(f"buffer_load_dwordx4 v3, s[8:11], s27 offen offset:{1024*q} lds")
        a(f"s_add_u32 m0, s28, {(s % NS)*SLOT + 4096}")
        a(f"buffer_load_dwordx4 v4, s[8:11], s27 offen lds")
        a(f"s_add_u32 s27, s27, 10240")
    n = 0
    for s in init: issue_w(s); n += 1
    for s in range(NST):
        a(f"s_waitcnt vmcnt({5*(n-s-1)})\ns_barrier")
        for g in sched[s]: issue_w(g); n += 1
    a("@stamp\n@dump 12\ns_endpgm")
    a.st.n = 1
    a(f"""K5_prodh:
s_sub_u32 s25, s25, 6
s_lshl_b32 s29, s23, 2
s_lshl_b32 s28, s25, 1
s_add_u32 s29, s29, s28
s_mul_i32 s29, s29, 49152
s_add_u32 s29, s29, {HIDF}
s_lshl_b32 s28, s25, 12
s_add_u32 s28, s28, 10240
v_lshlrev_b32 v3, 4, v2
v_add_u32 v4, {49152-2048}, v3
s_waitcnt lgkmcnt(0)
""")
    srd(a, 12, 20, WS_SIZE)
    def issue_h(s):
        a(f"s_add_u32 m0, s28, {(s % NS)*SLOT}")
        for q in range(4):
            a(f"buffer_load_dwordx4 v{3+q//2}, s[12:15], s29 offen offset:{1024*q} lds")
        a("s_add_u32 s29, s29, 2048")
    n = 0
    for s in init: issue_h(s); n += 1
    for s in range(NST):
        a(f"s_waitcnt vmcnt({4*(n-s-1)})\ns_barrier")
        for g in sched[s]: issue_h(g); n += 1
    a("@stamp\n@dump 12\ns_endpgm")
    a.st.n = 1
    a(f"""K5_cons:
s_lshl_b32 s30, s23, 2
s_add_u32 s30, s30, s25
s_lshl_b32 s30, s30, 4
v_lshrrev_b32 v3, 2, v2
v_mul_u32_u24 v3, 160, v3
v_and_b32 v4, 3, v2
v_lshl_add_u32 v3, v4, 3, v3
v_add_u32 v4, {3*SLOT}, v3
v_add_u32 v5, {6*SLOT}, v3
s_lshl_b32 s28, s25, 11
s_add_u32 s28, s28, 10240
v_lshlrev_b32 v6, 4, v2
v_add_u32 v6, s28, v6
v_add_u32 v7, {3*SLOT}, v6
v_add_u32 v8, {6*SLOT}, v6
v_and_b32 v12, 15, v2
v_lshrrev_b32 v13, 4, v2
v_mul_u32_u24 v14, 1280, v12
v_lshl_add_u32 v14, v13, 3, v14
s_mul_i32 s26, s30, 1280
s_mul_i32 s27, s24, 160
s_add_u32 s26, s26, s27
s_add_u32 s26, s26, {X1}
v_lshlrev_b32 v15, 4, v13
s_lshl_b32 s28, s27, 1
s_add_u32 s28, s28, 12800
s_waitcnt lgkmcnt(0)
""")
    srd(a, 12, 20, WS_SIZE)
    srd(a, 16, 6, 2048*1280)
    ACC = lambda mt: 16 + 4*mt
    FA = lambda buf, u, mt: 36 + 48*buf + 24*u + 4*mt
    FB = lambda buf, u: 36 + 48*buf + 24*u + 20
    def reads(s):
        L = []; sl = s % NS
        for u in range(2):
            f = FB(s & 1, u)
            L.append(f"ds_read_b128 v[{f}:{f+3}], v{6+sl//3} offset:{(sl % 3)*SLOT + 1024*u}")
            for mt in range(5):
                for x in range(2):
                    f = FA(s & 1, u, mt) + 2*x
                    L.append(f"ds_read_b64_tr_b16 v[{f}:{f+1}], v{3+sl//3} offset:{(sl % 3)*SLOT + u*5120 + x*2560 + 32*mt}")
        return L
    a("s_barrier\n@stamp")
    for l in reads(0): a(l)
    for s in range(NST):
        a("s_waitcnt lgkmcnt(0)")
        R = []
        if s+1 < NST:
            a("s_barrier"); R = reads(s+1)
        if s == NST-6:
            for mt in range(5):
                a(f"buffer_load_dwordx2 v[{132+2*mt}:{133+2*mt}], v14, s[12:15], s26 offen offset:{32*mt}")
                a(f"buffer_load_dwordx4 v[{144+4*mt}:{147+4*mt}], v15, s[12:15], s28 offen offset:{64*mt}")
        k = 0
        for u in range(2):
            for mt in range(5):
                c = ACC(mt); fa = FA(s & 1, u, mt); fb = FB(s & 1, u)
                if 'nomfma' not in OPT: a(f"v_mfma_f32_16x16x32_bf16 v[{c}:{c+3}], v[{fa}:{fa+3}], v[{fb}:{fb+3}], {'0' if (s, u) == (0, 0) else f'v[{c}:{c+3}]'}")
                if 'nords' not in OPT:
                    for l in R[3*k:3*k+3]: a(l)
                k += 1
    a(f"""@stamp
s_and_b32 s26, s30, 63
s_lshl_b32 s26, s26, 5
s_lshr_b32 s29, s30, 6
s_add_u32 s26, s26, s29
s_mul_i32 s26, s26, 1280
s_add_u32 s26, s26, s27
v_mul_u32_u24 v14, 40960, v12
v_lshl_add_u32 v14, v13, 3, v14
s_waitcnt vmcnt(0)""")
    for mt in range(5):
        c = ACC(mt); x = 132+2*mt; g = 144+4*mt
        a(f"""v_lshlrev_b32 v36, 16, v{x}
v_and_b32 v37, 0xffff0000, v{x}
v_lshlrev_b32 v38, 16, v{x+1}
v_and_b32 v39, 0xffff0000, v{x+1}
v_fmac_f32 v36, v{c}, v{g}
v_fmac_f32 v37, v{c+1}, v{g+1}
v_fmac_f32 v38, v{c+2}, v{g+2}
v_fmac_f32 v39, v{c+3}, v{g+3}
v_cvt_pk_bf16_f32 v{x}, v36, v37
v_cvt_pk_bf16_f32 v{x+1}, v38, v39
buffer_store_dwordx2 v[{x}:{x+1}], v14, s[16:19], s26 offen offset:{32*mt}""")
    a("@stamp\n@dump 12\nK5_end:\ns_endpgm")
    return ('k5_kernel', (256,1,1), (512,1,1), NS*SLOT, kd_block('k5_kernel', 164, 96))

def poll(a, name, vaddr, vtmp, soff, target=1):
    a(f"""s_mov_b32 s46, 0x40000
{name}:
buffer_load_dword v{vtmp}, v{vaddr}, s[12:15], {soff} offen sc1
s_waitcnt vmcnt(0)
v_cmp_ne_u32 vcc, {target}, v{vtmp}
s_nop 1
s_cmp_eq_u64 vcc, 0
s_cbranch_scc1 {name}_ok
s_sleep {SLP}
s_sub_u32 s46, s46, 1
s_cmp_lg_u32 s46, 0
s_cbranch_scc1 {name}
{name}_ok:""")
def kf(a):
    head(a, 'k3_kernel')
    R2 = 98304
    TB = R2; ZB = R2 + 12288; ZR = 528; ZC = 8*ZR; PB = ZB + 5*ZC
    NST = 20; WS_ = 12288; HB = R2; HS = 16384
    NS2 = 24; DW = 10240; NWD = 16
    ORDER = [5, 6, 13,  7, 8, 14, 15,  0, 1, 9, 10,  2, 3, 4, 11, 12]
    EARLY = {7: 3, 8: 4, 9: 4}
    WPOS = lambda s: ORDER[s % NWD]
    CB = [3, 7, 15, 19]
    NEXTCB = {3: 7, 7: 15, 15: 19, 19: 23}
    SC = 'sc1' if 'nosc' not in OPT else ''
    SST = '' if 'stplain' in OPT else 'sc1'
    FST = '' if 'flplain' in OPT else 'sc1'
    FEX = '0xffff' if 'fl64' in OPT else '1'
    WSC = 'sc1' if 'wsc1' in OPT else ('nt' if 'wnt' in OPT else '')
    a(f"""
s_cmp_ge_u32 s2, 256
s_cbranch_scc1 KF_end
@stamp
s_load_dwordx2 s[4:5], s[0:1], 0
s_load_dwordx2 s[6:7], s[0:1], 88
s_load_dwordx4 s[56:59], s[0:1], 32
s_load_dwordx2 s[60:61], s[0:1], 72
s_and_b32 s50, s2, 7
s_lshr_b32 s51, s2, 3
s_lshl_b32 s50, s50, 1
s_lshr_b32 s21, s51, 4
s_add_u32 s50, s50, s21
s_and_b32 s51, s51, 15
v_lshrrev_b32 v4, 6, v0
v_and_b32 v1, 63, v0
v_readfirstlane_b32 s22, v4
s_cmp_ge_u32 s22, 8
s_cbranch_scc1 KF_prod
s_lshl_b32 s3, s50, 1
s_lshr_b32 s21, s51, 3
s_add_u32 s3, s3, s21
s_and_b32 s20, s51, 7
v_and_b32 v3, 31, v0
v_lshlrev_b32 v2, 3, v3
v_bfe_u32 v4, v0, 5, 1
v_lshl_add_u32 v2, v4, 8, v2
v_lshlrev_b32 v3, 2, v3
v_lshl_add_u32 v3, v4, 1, v3
v_and_b32 v5, 15, v0
v_bfe_u32 v6, v0, 4, 2""")
    col_slots(a, 22, 5, 6, 8, 22)
    a(f"""
s_lshl_b32 s23, s3, 8
s_lshl_b32 s21, s20, 5
s_add_u32 s23, s23, s21
s_add_u32 s23, s23, {YF}
s_lshl_b32 s21, s20, 3
s_add_u32 s21, s21, s22
s_lshl_b32 s24, s3, 6
s_add_u32 s24, s24, s21
s_lshl_b32 s47, s24, 2
s_lshl_b32 s21, s21, 5
s_add_u32 s21, s21, s3
s_mul_i32 s21, s21, 1280
s_mul_i32 s24, s24, 1280
v_lshlrev_b32 v4, 4, v1
s_lshl_b32 s25, s22, 10
s_add_u32 m0, s25, {PB}
s_add_u32 s25, s25, 5120
s_waitcnt lgkmcnt(0)
""")
    srd(a, 8, 4, 2048*1280)
    srd(a, 12, 6, WS_SIZE)
    a(f"""buffer_load_dwordx4 {Q(28)}, v11, s[12:15], s23 offen
buffer_load_dwordx4 {Q(32)}, v13, s[12:15], s23 offen
buffer_load_dwordx4 v4, s[12:15], s25 offen lds""")
    for k in range(3):
        a(f"buffer_load_dwordx2 {P(16+2*k)}, v2, s[8:11], s21 offen offset:{512*k}")
    w5_consts(a, 88, 22, 1.0)
    a(f"""
s_lshl_b32 s27, s22, 4
v_add_u32 v22, s27, v5
v_cvt_f32_u32 v22, v22
v_mul_f32 v22, {fh(1/128)}, v22
v_and_b32 v23, 1, v6
v_cvt_f32_u32 v23, v23
v_mul_f32 v23, 4.0, v23
v_lshrrev_b32 v24, 1, v6
v_cvt_f32_u32 v24, v24
v_mul_f32 v24, {fh(0.25)}, v24
v_fma_f32 v23, v23, v22, v24
v_mul_f32 v24, {fh(5.0)}, v22
v_mul_f32 v27, {fh(64.0)}, v22
v_cmp_eq_u32 vcc, 2, v6
v_cndmask_b32 v27, v23, v27, vcc
""")
    for t in range(4):
        for jj in range(4):
            a(f"""v_cos_f32 v25, v{27 if (t, jj) == (0, 0) else 23}
v_add_f32 v23, v23, v22
v_cos_f32 v26, v23
v_add_f32 v23, v23, v{24 if jj & 1 else 22}
v_cvt_pk_bf16_f32 v{96+4*t+jj}, v25, v26""")
    a(f"""
v_lshlrev_b32 v14, 5, v5
v_lshl_add_u32 v14, v6, 3, v14
s_lshl_b32 s27, s22, 9
s_add_u32 s27, s27, {TB}
v_add_u32 v14, s27, v14
v_and_b32 v15, 4096, v9
v_add_u32 v15, v15, v14
v_xor_b32 v112, 4096, v15
v_lshlrev_b32 v113, 3, v1
v_add_u32 v113, {TB}, v113
v_and_b32 v22, 7, v5
v_mul_u32_u24 v22, {ZR}, v22
v_lshl_add_u32 v22, v6, 4, v22
s_lshl_b32 s27, s22, 6
s_add_u32 s27, s27, {ZB}
v_add_u32 v115, s27, v22
v_lshrrev_b32 v22, 3, v5
v_mul_u32_u24 v22, {2*ZC}, v22
v_add_u32 v114, v115, v22
v_lshlrev_b32 v4, 2, v3
s_mul_i32 s27, s22, {ZR}
s_add_u32 s27, s27, {ZB}
v_add_u32 v7, s27, v4
v_add_u32 v4, {PB}, v4
v_and_b32 v22, 0x80000000, v9
v_xor_b32 v22, v22, v10
v_and_b32 v23, 0x80008000, v9
v_xor_b32 v24, v23, v12
""")
    r5_sconsts(a)
    a(f"""s_waitcnt vmcnt(4)
s_barrier
@stamp
v_cndmask_b32 v32, v32, v34, s[42:43]
v_cndmask_b32 v33, v33, v35, s[42:43]
v_xor_b32 v26, v30, v24
v_xor_b32 v27, v31, v24
v_xor_b32 v30, v30, v12
v_xor_b32 v31, v31, v12
ds_write_b64 v14, {P(32)} offset:8192""")
    for hh in range(2):
        a(f"""v_lshlrev_b32 v{36+2*hh}, 16, v{28+hh}
v_and_b32 v{37+2*hh}, 0xffff0000, v{28+hh}
v_lshlrev_b32 v{40+2*hh}, 16, v{30+hh}
v_and_b32 v{41+2*hh}, 0xffff0000, v{30+hh}
v_lshlrev_b32 v{44+2*hh}, 16, v{28+hh}
v_and_b32 v{45+2*hh}, 0xffff0000, v{28+hh}
v_lshlrev_b32 v{48+2*hh}, 16, v{26+hh}
v_and_b32 v{49+2*hh}, 0xffff0000, v{26+hh}""")
    for i in range(4):
        a(f"v_fmac_f32_dpp v{44+i}, v{36+i}, v22 row_ror:8 {DPP}")
        a(f"v_fmac_f32_dpp v{48+i}, v{40+i}, v10 row_ror:8 {DPP}")
    a(f"""v_cvt_pk_bf16_f32 v52, v44, v45
v_cvt_pk_bf16_f32 v53, v46, v47
v_cvt_pk_bf16_f32 v54, v48, v49
v_cvt_pk_bf16_f32 v55, v50, v51
ds_write_b64 v15, {P(52)}
ds_write_b64 v112, {P(54)}
s_waitcnt vmcnt(3) lgkmcnt(0)
s_barrier
@stamp""")
    for T in range(3):
        for t in range(4):
            for x in range(2):
                a(f"ds_read_b64_tr_b16 {P(28+16*T+4*t+2*x)}, v113 offset:{4096*T+1024*t+512*x}")
            if T == 1 and t == 3:
                a("s_waitcnt lgkmcnt(8)")
                for tt in range(4): a(f"v_mfma_f32_16x16x32_bf16 {Q(76)}, {Q(96+4*tt)}, {Q(28+4*tt)}, {'0' if tt == 0 else Q(76)}")
    for T in (1, 2):
        a(f"s_waitcnt lgkmcnt({8 if T == 1 else 0})")
        for t in range(4): a(f"v_mfma_f32_16x16x32_bf16 {Q(76+4*T)}, {Q(96+4*t)}, {Q(28+16*T+4*t)}, {'0' if t == 0 else Q(76+4*T)}")
    for j in range(5):
        a(f"ds_read_b64 {P(116+2*j)}, v4 offset:{512*j}")
    a(f"""ds_write_b128 v114, {Q(76)} offset:{ZC}
ds_write_b128 v114, {Q(80)} offset:{2*ZC}
ds_write_b128 v115, {Q(84)}
s_waitcnt vmcnt(0)""")
    unpack_x(a, 16, 28)
    a("s_waitcnt lgkmcnt(0)\ns_barrier\n@stamp")
    for c in range(5): a(f"ds_read_b64 {P(40+2*c)}, v7 offset:{ZC*c}")
    for j in range(5):
        a(f"ds_read_b64 {P(136+2*j)}, v4 offset:{5120+512*j}\nds_read_b64 {P(126+2*j)}, v4 offset:{2560+512*j}")
    a("s_waitcnt lgkmcnt(10)")
    for k in range(2):
        r, im = 42+4*k, 44+4*k; c, s = 88+4*k, 90+4*k; R, I = 50+4*k, 52+4*k
        a(f"""v_pk_mul_f32 {P(R)}, {P(r)}, {P(c)}
v_pk_mul_f32 {P(I)}, {P(r)}, {P(s)}
v_pk_fma_f32 {P(R)}, {P(im)}, {P(s)}, {P(R)} neg_lo:[1,0,0] neg_hi:[1,0,0]
v_pk_fma_f32 {P(I)}, {P(im)}, {P(c)}, {P(I)}""")
    z0,z1r,z1i,z2r,z2i = 40,50,52,54,56
    A,B,Cc,Dd,E = 58,60,62,64,66
    sl = {(3*j) % 5: j for j in range(5)}
    X = lambda d2: P(28+2*sl[d2]); G = lambda d2: P(116+2*sl[d2])
    a(f"""v_pk_add_f32 {P(E)}, {P(z0)}, {P(z1r)}
v_pk_fma_f32 {P(A)}, s[30:31], {P(z1r)}, {P(z0)}
v_pk_fma_f32 {P(B)}, s[32:33], {P(z1r)}, {P(z0)}
v_pk_mul_f32 {P(Cc)}, s[34:35], {P(z1i)}
v_pk_mul_f32 {P(Dd)}, s[36:37], {P(z1i)}
v_pk_add_f32 {P(E)}, {P(E)}, {P(z2r)}
v_pk_fma_f32 {P(A)}, s[32:33], {P(z2r)}, {P(A)}
v_pk_fma_f32 {P(B)}, s[30:31], {P(z2r)}, {P(B)}
v_pk_fma_f32 {P(Cc)}, s[36:37], {P(z2i)}, {P(Cc)}
v_pk_fma_f32 {P(Dd)}, s[34:35], {P(z2i)}, {P(Dd)} neg_lo:[0,1,0] neg_hi:[0,1,0]
v_pk_fma_f32 {X(0)}, {G(0)}, {P(E)}, {X(0)}
v_pk_add_f32 {P(68)}, {P(A)}, {P(Cc)} neg_lo:[0,1] neg_hi:[0,1]
v_pk_add_f32 {P(70)}, {P(A)}, {P(Cc)}
v_pk_add_f32 {P(72)}, {P(B)}, {P(Dd)} neg_lo:[0,1] neg_hi:[0,1]
v_pk_add_f32 {P(74)}, {P(B)}, {P(Dd)}
v_pk_fma_f32 {X(1)}, {G(1)}, {P(68)}, {X(1)}
v_pk_fma_f32 {X(4)}, {G(4)}, {P(70)}, {X(4)}
v_pk_fma_f32 {X(2)}, {G(2)}, {P(72)}, {X(2)}
v_pk_fma_f32 {X(3)}, {G(3)}, {P(74)}, {X(3)}
s_add_u32 s25, s24, {X1}
s_add_u32 s26, s24, {H2F}""")
    for j in range(5): a(f"v_cvt_pk_bf16_f32 v{16+j}, v{28+2*j}, v{29+2*j}")
    a(f"""v_permlane32_swap_b32 v16, v17
v_permlane32_swap_b32 v18, v19
buffer_store_dwordx2 {P(16)}, v2, s[12:15], s25 offen {SST}
buffer_store_dwordx2 {P(18)}, v2, s[12:15], s25 offen offset:512 {SST}
s_waitcnt lgkmcnt(0)
s_barrier""")
    ln_rows(a, 28, 22)
    a(f"""v_bfe_u32 v24, v0, 5, 1
v_mul_u32_u24 v24, {H2F - X1 - 256}, v24
v_add_u32 v24, v24, v2""")
    for j in range(5): a(f"v_pk_mul_f32 {P(136+2*j)}, {P(136+2*j)}, {P(22)} op_sel_hi:[1,0]")
    for j in range(5): a(f"v_pk_fma_f32 {P(28+2*j)}, {P(28+2*j)}, {P(136+2*j)}, {P(126+2*j)}")
    for j in range(4): a(f"v_cvt_pk_bf16_f32 v{40+j}, v{28+2*j}, v{29+2*j}")
    a(f"""v_cvt_pk_bf16_f32 v21, v36, v37
v_permlane32_swap_b32 v40, v41
v_permlane32_swap_b32 v42, v43
v_permlane32_swap_b32 v20, v21
buffer_store_dwordx2 {P(40)}, v2, s[12:15], s26 offen {SST}
buffer_store_dwordx2 {P(42)}, v2, s[12:15], s26 offen offset:512 {SST}
buffer_store_dwordx2 {P(20)}, v24, s[12:15], s25 offen offset:1024 {SST}
@stamp""")
    a(f"""v_mov_b32 v2, v1
s_lshr_b32 s26, s22, 2
s_and_b32 s27, s22, 3
v_lshrrev_b32 v3, 4, v2
v_bfe_u32 v4, v2, 2, 2
v_lshl_add_u32 v4, v3, 3, v4
v_mul_u32_u24 v4, 192, v4
v_and_b32 v5, 3, v2
v_lshl_add_u32 v4, v5, 3, v4
v_and_b32 v5, 1, v3
v_lshlrev_b32 v5, 5, v5
s_mul_i32 s28, s26, 96
v_add_u32 v4, s28, v4
s_cmp_eq_u32 s26, 0
s_cselect_b32 s29, 1, -1
v_mul_lo_u32 v5, v5, s29
v_add_u32 v6, v4, v5
v_sub_u32 v7, v4, v5
v_add_u32 v8, {4*WS_}, v6
v_add_u32 v9, {4*WS_}, v7
v_and_b32 v10, 15, v2
v_lshrrev_b32 v11, 1, v10
v_xor_b32 v11, v11, v3
v_lshlrev_b32 v11, 4, v11
v_lshl_add_u32 v11, v10, 7, v11
s_lshl_b32 s28, s27, 12
s_add_u32 s28, s28, {HB}
v_add_u32 v11, s28, v11
v_xor_b32 v12, 64, v11
s_add_u32 s47, s47, {FLG}
v_mov_b32 v13, 1
v_mov_b32 v14, 0
s_waitcnt vmcnt(0)
@stamp""")
    a("s_barrier")
    ACC = lambda mat, i, nt: 16 + 4*(6*nt + 3*mat + i)
    FA = lambda buf, mat, i: 64 + 32*buf + 4*(3*mat+i)
    FB = lambda buf, nt: 88 + 32*buf + 4*nt
    def reads(s):
        L = []; sl = s % 8
        for nt in range(2):
            L.append(f"ds_read_b128 {Q(FB(s & 1, nt))}, v{11 + (s & 1)} offset:{((s//2) % 4)*HS + 2048*nt}")
        for mat in range(2):
            for i in range(3):
                for x in range(2):
                    L.append(f"ds_read_b64_tr_b16 {P(FA(s & 1, mat, i) + 2*x)}, v{6 + (i & 1) + 2*(sl//4)} offset:{(sl % 4)*WS_ + mat*6144 + 4*x*192 + 32*i}")
        return L
    a("s_barrier\n@stamp")
    for l in reads(0): a(l)
    for s in range(NST):
        a("s_waitcnt lgkmcnt(0)")
        if s & 1: a("s_barrier")
        R = reads(s+1) if s+1 < NST else []
        k = 0
        for mat in range(2):
            for i in range(3):
                for nt in range(2):
                    c = ACC(mat, i, nt)
                    a(f"v_mfma_f32_16x16x32_bf16 {Q(c)}, {Q(FA(s & 1, mat, i))}, {Q(FB(s & 1, nt))}, {'0' if s == 0 else Q(c)}")
                    for l in R[2*k:2*k+2]: a(l)
                    k += 1
    a("@stamp")
    kk = 2*0.7978845608028654*math.log2(math.e)
    a(f"""s_mov_b32 s30, {fh(-kk*0.044715)}
s_mov_b32 s31, {fh(-kk*0.044715)}
v_mov_b32 v10, {fh(-kk)}
v_mov_b32 v11, {fh(-kk)}
s_lshl_b32 s29, s50, 3
s_lshl_b32 s28, s27, 1
s_add_u32 s29, s29, s28
s_mul_i32 s29, s29, 49152
s_mul_i32 s28, s51, 3072
s_add_u32 s29, s29, s28
s_mul_i32 s28, s26, 1536
s_add_u32 s29, s29, s28
s_add_u32 s29, s29, {HIDF}
v_bfe_u32 v7, v2, 4, 1
v_mul_u32_u24 v7, 49152, v7
v_lshrrev_b32 v8, 5, v2
v_lshl_add_u32 v7, v8, 8, v7
v_and_b32 v8, 15, v2
v_lshl_add_u32 v7, v8, 4, v7""")
    for nt in range(2):
        Gt = ACC(0, 0, nt); U = ACC(1, 0, nt); T = 64 + 16*nt
        for i in range(0, 12, 2): a(f"v_pk_mul_f32 {P(T+i)}, {P(Gt+i)}, {P(Gt+i)}")
        for i in range(0, 12, 2): a(f"v_pk_fma_f32 {P(T+i)}, {P(T+i)}, s[30:31], {P(10)}")
        for i in range(0, 12, 2): a(f"v_pk_mul_f32 {P(T+i)}, {P(T+i)}, {P(Gt+i)}")
        for i in range(0, 12, 2): a(f"v_exp_f32 v{T+i}, v{T+i}\nv_exp_f32 v{T+i+1}, v{T+i+1}\nv_pk_mul_f32 {P(Gt+i)}, {P(Gt+i)}, {P(U+i)}")
        for i in range(0, 12, 2): a(f"v_pk_add_f32 {P(T+i)}, {P(T+i)}, 1.0 op_sel_hi:[1,0]")
        for i in range(12): a(f"v_rcp_f32 v{T+i}, v{T+i}")
        for i in range(0, 12, 2): a(f"v_pk_mul_f32 {P(Gt+i)}, {P(Gt+i)}, {P(T+i)}")
        for i in range(3):
            O = 96 + 4*i + 2*nt
            a(f"v_cvt_pk_bf16_f32 v{O}, v{Gt+4*i}, v{Gt+4*i+1}\nv_cvt_pk_bf16_f32 v{O+1}, v{Gt+4*i+2}, v{Gt+4*i+3}")
    for i in range(3):
        O = 96 + 4*i
        a(f"""v_permlane16_swap_b32 v{O}, v{O+2}
v_permlane16_swap_b32 v{O+1}, v{O+3}
buffer_store_dwordx4 {Q(O)}, v7, s[12:15], s29 offen offset:{512*i} {SST}""")
    a(f"""@stamp
s_lshl_b32 s30, s50, 3
s_lshr_b32 s28, s51, 3
s_lshl_b32 s28, s28, 2
s_add_u32 s30, s30, s28
s_add_u32 s30, s30, s27
s_mul_i32 s29, s30, 49152
s_lshl_b32 s28, s26, 10
s_add_u32 s29, s29, s28
s_add_u32 s29, s29, {HIDF}
s_lshl_b32 s30, s30, 4
s_and_b32 s24, s51, 7
v_lshrrev_b32 v3, 2, v2
v_mul_u32_u24 v3, 160, v3
v_and_b32 v4, 3, v2
v_lshl_add_u32 v3, v4, 3, v3
s_mul_i32 s28, s26, 5120
v_add_u32 v3, s28, v3
v_add_u32 v4, {6*DW}, v3
v_add_u32 v5, {12*DW}, v3
v_lshlrev_b32 v6, 4, v2
v_and_b32 v12, 15, v2
v_lshrrev_b32 v13, 4, v2
v_mul_u32_u24 v8, 1280, v12
v_lshl_add_u32 v8, v13, 3, v8
s_mul_i32 s23, s30, 1280
s_mul_i32 s25, s24, 160
s_add_u32 s23, s23, s25
s_add_u32 s23, s23, {X1}
v_lshlrev_b32 v15, 4, v13
s_lshl_b32 s28, s25, 1
s_add_u32 s28, s28, 12800
s_lshl_b32 s21, s26, 6
s_add_u32 s23, s23, s21
s_lshl_b32 s21, s26, 7
s_add_u32 s28, s28, s21
s_waitcnt vmcnt(0)
@stamp
s_barrier""")
    srd(a, 16, 60, 2048*1280)
    AC2 = lambda mt: 16 + 4*mt
    FA2 = lambda buf, mt: 36 + 20*buf + 4*mt
    NB = 10
    FB2 = lambda s: 76 + 4*(s % NB)
    def reads2(s):
        p = WPOS(s)
        return [f"ds_read_b64_tr_b16 {P(FA2(s & 1, mt) + 2*x)}, v{3+p//6} offset:{(p % 6)*DW + x*2560 + 32*mt}" for mt in range(5) for x in range(2)]
    def ldb(s):
        a(f"buffer_load_dwordx4 {Q(FB2(s))}, v6, s[12:15], s29 offen offset:{2048*(s & 1)} {SC}")
        if s & 1: a("s_add_u32 s29, s29, 4096")
    a("s_barrier\n@stamp")
    nb = 0; nx = 0
    for s in range(NB-1): ldb(s); nb += 1
    for l in reads2(0): a(l)
    for s in range(NS2):
        a(f"s_waitcnt vmcnt({nb-s-1+nx}) lgkmcnt(0)")
        if s in CB: a("s_barrier")
        if nb < NS2: ldb(nb); nb += 1
        elif nx < 6:
            k = nx // 2
            a(f"buffer_load_dwordx2 {P(116+2*k)}, v8, s[12:15], s23 offen offset:{32*k} {SC}")
            a(f"buffer_load_dwordx4 {Q(128+4*k)}, v15, s[12:15], s28 offen offset:{64*k}")
            nx += 2
        R = reads2(s+1) if s+1 < NS2 else []
        for mt in range(5):
            c = AC2(mt)
            a(f"v_mfma_f32_16x16x32_bf16 {Q(c)}, {Q(FA2(s & 1, mt))}, {Q(FB2(s))}, {'0' if s == 0 else Q(c)}")
            for l in R[2*mt:2*mt+2]: a(l)
    RB = WPOS(10)*DW
    a(f"""@stamp
s_mul_i32 s28, s27, 5120
s_add_u32 s28, s28, {RB}
v_add_u32 v6, s28, v6
s_and_b32 s23, s30, 63
s_lshl_b32 s23, s23, 5
s_lshr_b32 s29, s30, 6
s_add_u32 s23, s23, s29
s_mul_i32 s23, s23, 1280
s_add_u32 s23, s23, s25
v_mul_u32_u24 v8, 40960, v12
v_lshl_add_u32 v8, v13, 3, v8
s_cmp_eq_u32 s26, 0
s_cbranch_scc1 KF_lo""")
    def fin(give, keep, base):
        for mt in give: a(f"ds_write_b128 v6, {Q(AC2(mt))} offset:{1024*mt}")
        a("s_waitcnt vmcnt(0)")
        for mt in keep:
            x = 116+2*(mt-base); r = 76+4*mt
            a(f"""v_lshlrev_b32 v{r}, 16, v{x}
v_and_b32 v{r+1}, 0xffff0000, v{x}
v_lshlrev_b32 v{r+2}, 16, v{x+1}
v_and_b32 v{r+3}, 0xffff0000, v{x+1}""")
        a("s_waitcnt lgkmcnt(0)\ns_barrier")
        for mt in keep: a(f"ds_read_b128 {Q(36+4*mt)}, v6 offset:{1024*mt}")
        for n, mt in enumerate(keep):
            c = AC2(mt); x = 116+2*(mt-base); g = 128+4*(mt-base); r = 36+4*mt; o = 76+4*mt
            a(f"""s_waitcnt lgkmcnt({len(keep)-1-n})
v_pk_add_f32 {P(c)}, {P(c)}, {P(r)}
v_pk_add_f32 {P(c+2)}, {P(c+2)}, {P(r+2)}
v_pk_fma_f32 {P(o)}, {P(c)}, {P(g)}, {P(o)}
v_pk_fma_f32 {P(o+2)}, {P(c+2)}, {P(g+2)}, {P(o+2)}
v_cvt_pk_bf16_f32 v{x}, v{o}, v{o+1}
v_cvt_pk_bf16_f32 v{x+1}, v{o+2}, v{o+3}
buffer_store_dwordx2 {P(x)}, v8, s[16:19], s23 offen offset:{32*mt}""")
        a("@dump 12\ns_endpgm")
    nst = a.st.n
    fin([0,1,2], [3,4], 2)
    a.st.n = nst
    a("KF_lo:")
    fin([3,4], [0,1,2], 0)
    a.st.n = 1
    a("KF_prod:\ns_sub_u32 s25, s22, 8\nv_mov_b32 v2, v1")
    for q in range(3):
        a(f"""v_add_u32 v10, {64*q}, v2
v_mul_u32_u24 v11, 43691, v10
v_lshrrev_b32 v11, 19, v11
v_mul_u32_u24 v12, 12, v11
v_sub_u32 v12, v10, v12
v_lshrrev_b32 v13, 2, v11
v_and_b32 v13, 2, v13
v_xor_b32 v12, v12, v13
v_mul_u32_u24 v11, 3072, v11
v_lshl_add_u32 v11, v12, 4, v11
v_subrev_u32 v{3+q}, {1024*q}, v11""")
    for q in range(4):
        a(f"""v_lshrrev_b32 v10, 4, v2
v_add_u32 v10, {4*q}, v10
v_xor_b32 v10, v10, v2
v_and_b32 v10, 7, v10
v_lshrrev_b32 v11, 3, v2
v_mul_u32_u24 v11, 1280, v11
v_lshl_add_u32 v11, v10, 4, v11
v_add_u32 v{6+q}, {q*(10240-1024)}, v11""")
    a(f"""
s_and_b32 s26, s25, 1
s_mul_i32 s27, s26, {16*3072}
s_mul_i32 s28, s51, 192
s_add_u32 s27, s27, s28
s_mul_i32 s28, s25, 3072
s_lshl_b32 s29, s50, 2
s_add_u32 s29, s29, s25
s_lshl_b32 s47, s29, 7
s_add_u32 s47, s47, {FLG}
s_mul_i32 s29, s29, 40960
s_add_u32 s29, s29, {H2F}
s_lshl_b32 s30, s25, 12
v_and_b32 v10, 31, v2
v_lshlrev_b32 v10, 2, v10
s_waitcnt lgkmcnt(0)
s_cmp_lt_u32 s25, 2
s_cselect_b32 s8, s56, s58
s_cselect_b32 s9, s57, s59
s_mov_b32 s10, {640*3072}
s_mov_b32 s11, 0x00020000
""")
    srd(a, 12, 6, WS_SIZE)
    def iw(s):
        a(f"s_add_u32 m0, s28, {(s % 8)*WS_}")
        for q in range(3):
            a(f"buffer_load_dwordx4 v{3+q}, s[8:11], s27 offen offset:{1024*q} {WSC} lds")
        a(f"s_add_u32 s27, s27, {32*3072}")
    def ih(d):
        a(f"s_add_u32 m0, s30, {HB + (d % 4)*HS}")
        for q in range(4):
            a(f"buffer_load_dwordx4 v{6+q}, s[12:15], s29 offen offset:{1024*q} {SC} lds")
        a("s_add_u32 s29, s29, 128")
    a("s_barrier")
    for s in range(0, 3): iw(s)
    a("@stamp\ns_barrier")
    for s in range(3, 6): iw(s)
    a("s_barrier")
    for s in range(6, 8): iw(s)
    a("s_barrier\n@stamp")
    a(f"""v_lshlrev_b32 v10, 2, v2
v_mov_b32 v12, 1
s_lshl_b32 s48, s50, 4
s_add_u32 s48, s48, s51
s_lshl_b32 s48, s48, 7
s_add_u32 s48, s48, {FLG}
s_lshl_b32 s47, s50, 2
s_add_u32 s47, s47, s25
s_lshl_b32 s47, s47, 9
s_add_u32 s47, s47, {FLG}
v_and_b32 v14, 3, v2
v_lshlrev_b32 v14, 7, v14
v_and_b32 v15, 15, v2
v_lshlrev_b32 v15, 7, v15
s_and_b32 s24, s51, 7
s_mul_i32 s31, s25, 2560
s_mul_i32 s32, s24, {1536*160}
s_add_u32 s32, s32, s31
s_add_u32 s32, s32, {WDT}
v_lshlrev_b32 v13, 4, v2
s_barrier
s_cmp_lg_u32 s25, 0
s_cbranch_scc1 KF_na1
s_mov_b64 exec, {FEX}
buffer_store_dword v12, v10, s[12:15], s48 offen {FST}
s_mov_b64 exec, -1
KF_na1:""")
    poll(a, 'KF_p1', 14, 11, 's47', 1)
    a("@stamp")
    cnt = []
    def iw2(s):
        a(f"s_add_u32 m0, s31, {WPOS(s)*DW}")
        a(f"buffer_load_dwordx4 v13, s[12:15], s32 offen {WSC} lds")
        a(f"buffer_load_dwordx4 v13, s[12:15], s32 offen offset:1024 {WSC} lds")
        a("s_mov_b32 exec_hi, 0")
        a(f"buffer_load_dwordx4 v13, s[12:15], s32 offen offset:2048 {WSC} lds")
        a("s_mov_b32 exec_hi, -1")
        a("s_add_u32 s32, s32, 10240")
    def grp(d):
        ih(d); n = 4
        if d >= 4:
            iw(2*d); iw(2*d+1); n += 6
        cnt.append(n)
    for d in range(4): grp(d)
    nw2 = 0
    for d in range(10):
        a(f"s_waitcnt vmcnt({sum(cnt[d+1:])})\ns_barrier")
        if d >= 1 and d+3 < 10: grp(d+3)
        if d >= 7:
            for _ in range(EARLY[d]): iw2(nw2); nw2 += 1
            cnt.append(3*EARLY[d])
    a("@stamp\ns_barrier")
    while nw2 < NWD: iw2(nw2); nw2 += 1
    a(f"""@stamp
s_lshl_b32 s47, s50, 11
s_add_u32 s47, s47, {FLG + 32768}
s_add_u32 s48, s48, 32768
s_barrier
s_cmp_eq_u32 s25, 1
s_cbranch_scc0 KF_nb2
s_mov_b64 exec, {FEX}
buffer_store_dword v12, v10, s[12:15], s48 offen {FST}
s_mov_b64 exec, -1
KF_nb2:
s_cmp_lg_u32 s25, 0
s_cbranch_scc1 KF_na2""")
    poll(a, 'KF_p2', 15, 11, 's47', 1)
    a("KF_na2:\n@stamp\ns_waitcnt vmcnt(0)\ns_barrier")
    pend = []
    for s in CB:
        need = [t for t in pend if t <= NEXTCB[s]]
        a(f"s_waitcnt vmcnt({3*(len(pend)-len(need))})\ns_barrier")
        pend = [t for t in pend if t not in need]
        while nw2 < NS2 and nw2 - NWD <= s:
            iw2(nw2); pend.append(nw2); nw2 += 1
    a("@stamp\n@dump 12\nKF_end:\ns_endpgm")
    return ('k3_kernel', (256,1,1), (768,1,1), 163840, kd_block('k3_kernel', 148, 100))

def build(kernels, path):
    a = Asm2(); infos = []
    for k in kernels:
        infos.append(k(a))
    if 'k4twice' in OPT: infos.insert(4, infos[4][:4] + ('',))
    if 'empty4' in OPT:
        for i in range(4):
            a(f".globl e{i}_kernel\n.p2align 8\n.type e{i}_kernel,@function\ne{i}_kernel:\ns_endpgm")
            infos.append((f'e{i}_kernel', (256,1,1), (256,1,1), 0, kd_block(f'e{i}_kernel', 8, 16)))
    a("CODE_END:\ns_endpgm")
    hdr = open('adaLN_cond__spectral_gfnet__glu_gated_geglu__prompt.s.ref').read().split('\n')[:13]
    s = '\n'.join(hdr) + '\n'
    for n, g, b, l, _ in infos:
        s += f"; @launch kernel={n} grid=({g[0]},{g[1]},{g[2]}) block=({b[0]},{b[1]},{b[2]}) lds={l}\n"
    s += '.amdgcn_target "amdgcn-amd-amdhsa--gfx950"\n.text\n' + a.text() + '.section .rodata,"a"\n'
    for i in infos: s += i[4]
    open(path, 'w').write(s)
if __name__ == '__main__':
    args = sys.argv[1:]
    out = 'cur.s'
    for x in args:
        if x == 'stamp': STAMPS = True
        elif x.endswith('.s'): out = x
        elif x.startswith('slp'): SLP = int(x[3:])
        else: OPT.add(x)
    build([k0, k1, k2, k3, k4, k5] if 'unfused' in OPT else [k0, k1, k2, kf], out)
```

```python
import sys, math, struct
sys.path.insert(0,'work')
from asmlib import *
def f2u(x): return struct.unpack('<I', struct.pack('<f', x))[0]
def fh(x): return '0x%08x' % f2u(x)
MOD=0; XF=0x100000; YF=0x400000; WP=0x700000; X1=0xA00000; H2F=0xD00000; HIDF=0x1000000; WDT=0x1C00000; FLG=0x10000; WS_SIZE=0x1E00000
DPP='row_mask:0xf bank_mask:0xf'

STAMPS = False
SLP = 4
TLBSH = 16
OPT = set()
DBG = 0x1640000
class Stamper:
    def __init__(self, a, kid): self.a=a; self.kid=kid; self.n=0
    def __call__(self):
        if not STAMPS: return
        if self.n == 0: self.a("s_memtime s[64:65]")
        self.a(f"s_memrealtime s[{70+2*self.n}:{71+2*self.n}]"); self.n += 1
    def dump(self, srd_ws, wgreg='s2', drain=True):
        if not STAMPS: return
        a = self.a
        if drain:
            a("s_waitcnt vmcnt(0)"); self()
        a(f"""s_memtime s[66:67]
s_waitcnt lgkmcnt(0)
s_sub_u32 s66, s66, s64
s_mov_b64 exec, 1
v_lshrrev_b32 v1, 6, v0
v_lshlrev_b32 v1, 6, v1
s_lshl_b32 s68, {wgreg}, 10
s_add_u32 s68, s68, {DBG + self.kid*0x80000}""")
        a(f"v_mov_b32 v2, s66\nbuffer_store_dword v2, v1, s[{srd_ws}:{srd_ws+3}], s68 offen offset:60")
        for k in range(self.n):
            a(f"v_mov_b32 v2, s{70+2*k}\nbuffer_store_dword v2, v1, s[{srd_ws}:{srd_ws+3}], s68 offen offset:{4*k}")
class Asm2(Asm):
    def emit(self, line):
        if line == '@stamp': self.st(); return
        if line == '@k0exp':
            if 'k0small' in OPT:
                for l in ("s_and_b32 s3, s2, 7", "s_mul_i32 s3, s3, 10", "s_lshr_b32 s22, s2, 3", "s_add_u32 s3, s3, s22", "s_cmp_ge_u32 s2, 80", "s_cbranch_scc1 K0_end"): Asm.emit(self, l)
            return
        if 'noload' in OPT and line.endswith(' lds'): return
        if 'nowload' in OPT and line.endswith(' lds') and 's[8:11]' in line: return
        if 'nohload' in OPT and line.endswith(' lds') and 's[12:15]' in line: return
        if line.startswith('@dump'):
            p = line.split(); self.st.dump(int(p[1]), p[2] if len(p) > 2 else 's2'); return
        Asm.emit(self, line)
def head(a, name):
    a.st = Stamper(a, int(name[1]))
    a(f""".globl {name}
.p2align 8
.type {name},@function
{name}:""")
def srd(a, d, p, size):
    a(f"""s_mov_b32 s{d}, s{p}
s_mov_b32 s{d+1}, s{p+1}
s_mov_b32 s{d+2}, {size}
s_mov_b32 s{d+3}, 0x00020000""")

def k0(a):
    head(a, 'k0_kernel')
    NW0 = 496 + 56 + (8 if 'tlb' in OPT else 0)
    a(f"""
s_cmp_ge_u32 s2, {NW0}
s_cbranch_scc1 K0_end""")
    a("s_cmp_ge_u32 s2, 496\ns_cbranch_scc1 K0_pf")
    a("""
@stamp
s_mov_b32 s69, s2
s_load_dwordx4 s[4:7], s[0:1], 56
s_load_dwordx2 s[20:21], s[0:1], 88
s_load_dwordx4 s[24:27], s[0:1], 8
s_cmp_ge_u32 s2, 240
s_cbranch_scc1 K0_wprep
v_readfirstlane_b32 s28, v0
s_cmp_ge_u32 s28, 320
s_cbranch_scc1 K0_end
s_and_b32 s3, s2, 7
s_mul_i32 s3, s3, 30
s_lshr_b32 s22, s2, 3
s_add_u32 s3, s3, s22
s_lshl_b32 s22, s3, 5
v_lshrrev_b32 v1, 1, v0
v_and_b32 v2, 1, v0
v_mul_u32_u24 v3, 7680, v1
v_lshl_add_u32 v3, v2, 4, v3
v_add_u32 v3, s22, v3
v_lshlrev_b32 v4, 1, v1
s_waitcnt lgkmcnt(0)
@stamp
""")
    srd(a, 8, 4, 1280)
    srd(a, 12, 6, 640*3840*2)
    srd(a, 16, 20, WS_SIZE)
    NR = 4
    for i in range(NR):
        a(f"buffer_load_short_d16_hi v{28+i}, v4, s[8:11], 0 offen offset:{320*i}")
    a("s_mov_b32 s23, 0")
    for i in range(NR):
        a(f"buffer_load_dwordx4 v[{8+4*i}:{11+4*i}], v3, s[12:15], s23 offen")
        if i < NR-1: a(f"s_add_u32 s23, s23, {160*7680}")
    a(f"s_waitcnt vmcnt({NR})")
    for i in range(NR): a(f"v_mul_f32 v{33+i}, {fh(-math.log2(math.e))}, v{28+i}")
    for i in range(NR): a(f"v_exp_f32 v{33+i}, v{33+i}")
    for i in range(NR): a(f"v_add_f32 v{33+i}, 1.0, v{33+i}")
    for i in range(NR): a(f"v_rcp_f32 v{33+i}, v{33+i}")
    for i in range(NR): a(f"v_mul_f32 v{28+i}, v{28+i}, v{33+i}")
    for i in range(NR): a(f"v_cvt_pk_bf16_f32 v{28+i}, v{28+i}, v{28+i}")
    for i in range(NR): a(f"v_and_b32 v{48+2*i}, 0xffff0000, v{28+i}")
    a("""v_and_b32 v5, 15, v0
v_lshrrev_b32 v6, 4, v0
v_lshlrev_b32 v7, 6, v6
v_lshl_add_u32 v7, v2, 5, v7""")
    for i in range(NR):
        a(f"s_waitcnt vmcnt({NR-1-i})")
        if i == NR-1: a("@stamp")
        for j in range(4):
            a(f"v_lshlrev_b32 v{32+2*j}, 16, v{8+4*i+j}\nv_and_b32 v{33+2*j}, 0xffff0000, v{8+4*i+j}")
        for j in range(4):
            if i == 0: a(f"v_pk_mul_f32 v[{40+2*j}:{41+2*j}], v[{32+2*j}:{33+2*j}], v[48:49] op_sel_hi:[1,0]")
            else: a(f"v_pk_fma_f32 v[{40+2*j}:{41+2*j}], v[{32+2*j}:{33+2*j}], v[{48+2*i}:{49+2*i}], v[{40+2*j}:{41+2*j}] op_sel_hi:[1,0,1]")
    for mode in ('quad_perm:[2,3,0,1]', 'row_ror:4', 'row_ror:8'):
        for j in range(8):
            a(f"v_add_f32_dpp v{40+j}, v{40+j}, v{40+j} {mode} {DPP}")
    a("""
v_cmp_gt_u32 vcc, 2, v5
s_and_saveexec_b64 s[24:25], vcc
ds_write_b128 v7, v[40:43]
ds_write_b128 v7, v[44:47] offset:16
s_mov_b64 exec, s[24:25]
s_waitcnt lgkmcnt(0)
s_barrier
s_cmp_ge_u32 s28, 64
s_cbranch_scc1 K0_end
v_mul_u32_u24 v7, 320, v6
v_lshl_add_u32 v7, v5, 2, v7
ds_read_b32 v8, v7
ds_read_b32 v9, v7 offset:64
ds_read_b32 v10, v7 offset:128
ds_read_b32 v11, v7 offset:192
ds_read_b32 v12, v7 offset:256
s_sub_u32 s24, s3, 40
s_cmp_lt_u32 s24, 40
s_cselect_b32 s25, 1.0, 0
s_sub_u32 s24, s3, 160
s_cmp_lt_u32 s24, 40
s_cselect_b32 s25, 1.0, s25
s_lshl_b32 s22, s3, 6
v_lshlrev_b32 v7, 2, v0
s_waitcnt lgkmcnt(0)
v_add_f32 v8, v8, v9
v_add_f32 v10, v10, v11
v_add_f32 v8, v8, v12
v_add_f32 v8, v8, v10
v_mov_b32 v9, v8
v_permlane16_swap_b32 v8, v9
v_add_f32 v8, v8, v9
v_mov_b32 v9, v8
v_permlane32_swap_b32 v8, v9
v_add_f32 v8, v8, v9
v_cvt_pk_bf16_f32 v8, v8, v8
v_and_b32 v8, 0xffff0000, v8
v_add_f32 v8, s25, v8
v_cvt_pk_bf16_f32 v8, v8, v8
v_and_b32 v8, 0xffff0000, v8
v_cmp_gt_u32 vcc, 16, v0
s_and_saveexec_b64 s[24:25], vcc
buffer_store_dword v8, v7, s[16:19], s22 offen
@dump 16
s_endpgm
""")
    a.st.n = 1
    a(f"""
K0_wprep:
s_sub_u32 s2, s2, 240
v_cmp_gt_u32 vcc, 321, v0
s_and_saveexec_b64 s[30:31], vcc
s_cbranch_execz K0_end
s_and_b32 s3, s2, 7
s_lshr_b32 s22, s2, 3
s_and_b32 s23, s22, 3
s_lshl_b32 s3, s3, 2
s_add_u32 s3, s3, s23
s_bfe_u32 s23, s22, 0x10002
s_lshl_b32 s23, s23, 5
s_add_u32 s3, s3, s23
s_lshr_b32 s22, s22, 3
s_lshl_b32 s23, s22, 8
s_add_u32 s23, s23, s3
s_mul_i32 s23, s23, 642
v_lshlrev_b32 v1, 1, v0
s_waitcnt lgkmcnt(0)
""")
    srd(a, 8, 24, 2048*642)
    srd(a, 12, 26, 2048*642)
    srd(a, 16, 20, WS_SIZE)
    for mt in range(2):
        for i in range(4):
            a(f"buffer_load_ushort v{4+4*mt+i}, v1, s[8:11], s23 offen")
            a(f"buffer_load_short_d16_hi v{12+4*mt+i}, v1, s[12:15], s23 offen")
            if (mt, i) != (1, 3): a(f"s_add_u32 s23, s23, {41088 if i < 3 else 41088*13}")
    a(f"""
s_lshr_b32 s23, s3, 4
s_lshl_b32 s23, s23, 11
s_and_b32 s28, s3, 15
s_lshl_b32 s29, s22, 4
s_add_u32 s28, s28, s29
s_lshl_b32 s28, s28, 5
s_add_u32 s23, s23, s28
s_add_u32 s23, s23, {WP}
v_lshlrev_b32 v1, 13, v0
@stamp
s_waitcnt vmcnt(0)
@stamp
""")
    for k in range(8): a(f"v_or_b32 v{4+k}, v{4+k}, v{12+k}")
    a("""buffer_store_dwordx4 v[4:7], v1, s[16:19], s23 offen
buffer_store_dwordx4 v[8:11], v1, s[16:19], s23 offen offset:16
@stamp
@dump 16 s69
s_endpgm""")
    a("K0_pf:")
    if 'tlb' in OPT:
        a(f"""s_cmp_lt_u32 s2, 552
s_cbranch_scc1 K0_pf2
s_load_dwordx8 s[24:31], s[0:1], 32
s_load_dwordx2 s[32:33], s[0:1], 72
s_load_dwordx2 s[34:35], s[0:1], 88
s_load_dwordx2 s[36:37], s[0:1], 0
v_lshlrev_b32 v1, {TLBSH}, v0
s_mov_b32 s11, 0x00020000
s_waitcnt lgkmcnt(0)""")
        k = 2
        for p, sz in ((34, WS_SIZE), (24, 640*3072), (26, 640*3072), (28, 640*3072), (32, 2048*1280), (36, 2048*1280)):
            a(f"s_mov_b32 s8, s{p}\ns_mov_b32 s9, s{p+1}\ns_mov_b32 s10, {sz}")
            for o in range(0, sz, 384 << TLBSH):
                a(f"s_mov_b32 s20, {o}\nbuffer_load_dword v{k}, v1, s[8:11], s20 offen"); k += 1
        a("s_endpgm\nK0_pf2:")
    a(f"""s_load_dwordx2 s[8:9], s[0:1], 0
s_sub_u32 s3, s2, 496
s_mul_i32 s3, s3, {384*128}
v_lshlrev_b32 v1, 7, v0
s_mov_b32 s10, {2048*1280}
s_mov_b32 s11, 0x00020000
s_waitcnt lgkmcnt(0)
buffer_load_dword v2, v1, s[8:11], s3 offen""")
    a("K0_end:\ns_endpgm")
    return ('k0_kernel', (NW0,1,1), (384,1,1), 1280, kd_block('k0_kernel', 56, 96))

C1,C2,S1,S2 = math.cos(2*math.pi/5),math.cos(4*math.pi/5),math.sin(2*math.pi/5),math.sin(4*math.pi/5)
def P(r): return f"v[{r}:{r+1}]"
def Q(r): return f"v[{r}:{r+3}]"

def col_slots(a, sW, vN, vG, out, tmp):
    a(f"""v_and_b32 v{tmp}, 7, v{vN}
s_lshl_b32 s40, s{sW}, 3
v_add_u32 v{out}, s40, v{tmp}
v_cmp_eq_u32 vcc, 0, v{out}
v_cndmask_b32 v{out+2}, 1.0, 0, vcc
v_cmp_lt_u32 s[42:43], 7, v{vN}
s_and_b64 s[44:45], s[42:43], vcc
s_andn2_b64 s[42:43], s[42:43], vcc
v_cndmask_b32 v{out}, v{out}, 64, s[44:45]
v_cndmask_b32 v{out+1}, 0, -1, s[42:43]
v_sub_u32 v{tmp}, 128, v{out}
v_cndmask_b32 v{tmp}, v{out}, v{tmp}, s[42:43]
v_mul_u32_u24 v{tmp}, 5, v{tmp}
v_lshrrev_b32 v{tmp+1}, 1, v{vG}
v_lshl_add_u32 v{tmp}, v{tmp+1}, 7, v{tmp}
v_add_u32 v{tmp+1}, 128, v{tmp}
v_subrev_u32 v{tmp+2}, 640, v{tmp+1}
v_min_u32 v{tmp+1}, v{tmp+1}, v{tmp+2}
v_sub_u32 v{tmp+2}, 640, v{tmp+1}
v_cmp_lt_u32 vcc, v{tmp+2}, v{tmp+1}
v_min_u32 v{tmp+1}, v{tmp+1}, v{tmp+2}
v_mov_b32 v{tmp+2}, 0x80008000
v_cndmask_b32 v{out+4}, 0, v{tmp+2}, vcc
v_and_b32 v{tmp+3}, 1, v{vG}
v_lshlrev_b32 v{tmp+3}, 4, v{tmp+3}
v_lshl_add_u32 v{out+3}, v{tmp+1}, 13, v{tmp+3}
v_mul_u32_u24 v{tmp+1}, 40960, v{out}
v_add_u32 v{out+5}, v{tmp+1}, v{tmp+3}""")

def allreduce64(a, v, t):
    for mode in ('quad_perm:[1,0,3,2]', 'quad_perm:[2,3,0,1]', 'row_ror:4', 'row_ror:8'):
        a(f"v_add_f32_dpp v{v}, v{v}, v{v} {mode} {DPP}")
    a(f"""v_mov_b32 v{t}, v{v}
v_permlane16_swap_b32 v{v}, v{t}
v_add_f32 v{v}, v{v}, v{t}
v_mov_b32 v{t}, v{v}
v_permlane32_swap_b32 v{v}, v{t}
v_add_f32 v{v}, v{v}, v{t}""")

def row_ids(a):
    a("""s_and_b32 s3, s2, 7
s_lshr_b32 s20, s2, 3
s_lshl_b32 s3, s3, 2
s_lshr_b32 s21, s20, 3
s_add_u32 s3, s3, s21
s_and_b32 s20, s20, 7
v_lshrrev_b32 v4, 6, v0
v_and_b32 v1, 63, v0
v_readfirstlane_b32 s22, v4
v_and_b32 v3, 31, v0
v_lshlrev_b32 v2, 3, v3
v_bfe_u32 v4, v0, 5, 1
v_lshl_add_u32 v2, v4, 8, v2
v_lshlrev_b32 v3, 2, v3
v_lshl_add_u32 v3, v4, 1, v3""")
def w5_consts(a, o, t, sgn):
    a(f"""v_cvt_f32_u32 v{t}, v3
v_mul_f32 v{t}, {fh(0.2*sgn)}, v{t}
v_add_f32 v{t+1}, {fh(0.2*sgn)}, v{t}
v_cos_f32 v{o}, v{t}
v_cos_f32 v{o+1}, v{t+1}
v_sin_f32 v{o+2}, v{t}
v_sin_f32 v{o+3}, v{t+1}
v_pk_add_f32 {P(t)}, {P(t)}, {P(t)}
v_cos_f32 v{o+4}, v{t}
v_cos_f32 v{o+5}, v{t+1}
v_sin_f32 v{o+6}, v{t}
v_sin_f32 v{o+7}, v{t+1}""")
def ln_rows(a, X, t):
    a(f"""v_pk_add_f32 {P(t)}, {P(X)}, {P(X+2)}
v_pk_add_f32 {P(t+2)}, {P(X+4)}, {P(X+6)}
v_pk_add_f32 {P(t)}, {P(t)}, {P(X+8)}
v_pk_add_f32 {P(t)}, {P(t)}, {P(t+2)}
v_add_f32 v{t}, v{t}, v{t+1}""")
    allreduce64(a, t, t+1)
    a(f"v_mul_f32 v{t}, {fh(-1/640)}, v{t}")
    for j in range(5): a(f"v_pk_add_f32 {P(X+2*j)}, {P(X+2*j)}, {P(t)} op_sel_hi:[1,0]")
    a(f"""v_pk_mul_f32 {P(t)}, {P(X)}, {P(X)}
v_pk_mul_f32 {P(t+2)}, {P(X+2)}, {P(X+2)}
v_pk_fma_f32 {P(t)}, {P(X+4)}, {P(X+4)}, {P(t)}
v_pk_fma_f32 {P(t+2)}, {P(X+6)}, {P(X+6)}, {P(t+2)}
v_pk_fma_f32 {P(t)}, {P(X+8)}, {P(X+8)}, {P(t)}
v_pk_add_f32 {P(t)}, {P(t)}, {P(t+2)}
v_add_f32 v{t}, v{t}, v{t+1}""")
    allreduce64(a, t, t+1)
    a(f"""v_mov_b32 v{t+1}, {fh(1e-5)}
v_fmac_f32 v{t+1}, {fh(1/640)}, v{t}
v_rsq_f32 v{t}, v{t+1}""")
def unpack_x(a, src, X):
    for k in range(3): a(f"v_permlane32_swap_b32 v{src+2*k}, v{src+2*k+1}")
    for j in range(5): a(f"v_lshlrev_b32 v{X+2*j}, 16, v{src+j}\nv_and_b32 v{X+2*j+1}, 0xffff0000, v{src+j}")
def r5_sconsts(a):
    a(f"""s_mov_b32 s30, {fh(C1)}
s_mov_b32 s31, {fh(C1)}
s_mov_b32 s32, {fh(C2)}
s_mov_b32 s33, {fh(C2)}
s_mov_b32 s34, {fh(S1)}
s_mov_b32 s35, {fh(S1)}
s_mov_b32 s36, {fh(S2)}
s_mov_b32 s37, {fh(S2)}""")

def k1(a):
    head(a, 'k1_kernel')
    PB = 12288
    a("""
s_cmp_ge_u32 s2, 256
s_cbranch_scc1 K1_side
@stamp
s_load_dwordx2 s[4:5], s[0:1], 0
s_load_dwordx2 s[6:7], s[0:1], 88
""")
    row_ids(a)
    a(f"""
s_lshl_b32 s21, s20, 3
s_add_u32 s21, s21, s22
s_lshl_b32 s21, s21, 5
s_add_u32 s21, s21, s3
s_mul_i32 s21, s21, 1280
v_lshlrev_b32 v4, 4, v1
s_lshl_b32 s23, s22, 10
s_add_u32 m0, s23, {PB}
s_waitcnt lgkmcnt(0)
""")
    srd(a, 8, 4, 2048*1280)
    srd(a, 12, 6, WS_SIZE)
    for k in range(3):
        a(f"buffer_load_dwordx2 {P(16+2*k)}, v2, s[8:11], s21 offen offset:{512*k}")
    a("""s_cmp_ge_u32 s22, 5
s_cbranch_scc1 K1_nodma
buffer_load_dwordx4 v4, s[12:15], s23 offen lds
K1_nodma:
v_and_b32 v5, 15, v0
v_bfe_u32 v6, v0, 4, 2""")
    col_slots(a, 22, 5, 6, 8, 22)
    w5_consts(a, 88, 22, -1.0)
    a(f"""
v_cvt_f32_u32 v22, v8
v_mul_f32 v22, {fh(1/128)}, v22
v_cvt_f32_u32 v23, v6
v_mul_f32 v23, {fh(8.0)}, v23
v_and_b32 v24, {fh(0.25)}, v9
v_fma_f32 v23, v23, v22, -v24
v_mul_f32 v24, {fh(25.0)}, v22
""")
    for t in range(4):
        for jj in range(4):
            a(f"""v_cos_f32 v25, v23
v_add_f32 v23, v23, v22
v_cos_f32 v26, v23
v_add_f32 v23, v23, v{24 if jj == 3 else 22}
v_cvt_pk_bf16_f32 v{96+4*t+jj}, v25, v26""")
    a(f"""
v_lshrrev_b32 v22, 3, v3
v_xor_b32 v22, s22, v22
v_lshlrev_b32 v22, 4, v22
v_and_b32 v23, 7, v3
v_lshl_add_u32 v22, v23, 1, v22
s_lshl_b32 s23, s22, 8
v_add_u32 v14, s23, v22
v_xor_b32 v15, {2048+128}, v14
v_lshlrev_b32 v7, 2, v3
v_xor_b32 v22, v6, v5
""")
    for t in range(4):
        a(f"""v_xor_b32 v23, {4*t}, v22
v_lshlrev_b32 v23, 4, v23
v_lshl_add_u32 v{112+t}, v5, 8, v23""")
    r5_sconsts(a)
    a(f"""
s_lshl_b32 s23, s3, 8
s_lshl_b32 s21, s20, 5
s_add_u32 s23, s23, s21
s_add_u32 s23, s23, {XF}
@stamp
s_waitcnt vmcnt(0)
s_barrier
@stamp
""")
    for j in range(5):
        a(f"ds_read_b64 {P(40+2*j)}, v7 offset:{PB+2560+512*j}\nds_read_b64 {P(50+2*j)}, v7 offset:{PB+512*j}")
    unpack_x(a, 16, 28)
    ln_rows(a, 28, 22)
    a("s_waitcnt lgkmcnt(0)")
    for j in range(5): a(f"v_pk_mul_f32 {P(40+2*j)}, {P(40+2*j)}, {P(22)} op_sel_hi:[1,0]")
    for j in range(5): a(f"v_pk_fma_f32 {P(28+2*j)}, {P(28+2*j)}, {P(40+2*j)}, {P(50+2*j)}")
    h = {(3*j) % 5: 28+2*j for j in range(5)}
    t1,t2,t3,t4 = 40,42,44,46; z0,p1,q1,p2,q2 = 48,50,52,54,56
    a(f"""v_pk_add_f32 {P(t1)}, {P(h[1])}, {P(h[4])}
v_pk_add_f32 {P(t2)}, {P(h[2])}, {P(h[3])}
v_pk_add_f32 {P(t3)}, {P(h[1])}, {P(h[4])} neg_lo:[0,1] neg_hi:[0,1]
v_pk_add_f32 {P(t4)}, {P(h[2])}, {P(h[3])} neg_lo:[0,1] neg_hi:[0,1]
v_pk_add_f32 {P(z0)}, {P(h[0])}, {P(t1)}
v_pk_fma_f32 {P(p1)}, s[30:31], {P(t1)}, {P(h[0])}
v_pk_fma_f32 {P(p2)}, s[32:33], {P(t1)}, {P(h[0])}
v_pk_mul_f32 {P(q1)}, s[34:35], {P(t3)}
v_pk_mul_f32 {P(q2)}, s[36:37], {P(t3)}
v_pk_add_f32 {P(z0)}, {P(z0)}, {P(t2)}
v_pk_fma_f32 {P(p1)}, s[32:33], {P(t2)}, {P(p1)}
v_pk_fma_f32 {P(p2)}, s[30:31], {P(t2)}, {P(p2)}
v_pk_fma_f32 {P(q1)}, s[36:37], {P(t4)}, {P(q1)}
v_pk_fma_f32 {P(q2)}, s[34:35], {P(t4)}, {P(q2)} neg_lo:[0,1,0] neg_hi:[0,1,0]
v_cvt_pk_bf16_f32 v22, v{z0}, v{z0+1}
ds_write_b32 v14, v22 offset:8192""")
    for k, (p, q) in enumerate(((p1, q1), (p2, q2))):
        c, s = 88+4*k, 90+4*k; r, im = 28+4*k, 30+4*k
        a(f"""v_pk_mul_f32 {P(r)}, {P(p)}, {P(c)}
v_pk_mul_f32 {P(im)}, {P(p)}, {P(s)}
v_pk_fma_f32 {P(r)}, {P(q)}, {P(s)}, {P(r)}
v_pk_fma_f32 {P(im)}, {P(q)}, {P(c)}, {P(im)} neg_lo:[1,0,0] neg_hi:[1,0,0]
v_cvt_pk_bf16_f32 v{23+2*k}, v{r}, v{r+1}
v_cvt_pk_bf16_f32 v{24+2*k}, v{im}, v{im+1}
ds_write_b32 v{14+k}, v{23+2*k}
ds_write_b32 v{14+k}, v{24+2*k} offset:4096""")
    a("@stamp\ns_waitcnt lgkmcnt(0)\ns_barrier\n@stamp")
    for T in range(3):
        for t in range(4):
            a(f"ds_read_b128 {Q(28+16*T+4*t)}, v{112+t} offset:{4096*T}")
    n = 12
    for T in range(3):
        for t in range(4):
            n -= 1
            a(f"s_waitcnt lgkmcnt({n})")
            a(f"v_mfma_f32_16x16x32_bf16 {Q(76+4*T)}, {Q(28+16*T+4*t)}, {Q(96+4*t)}, {'0' if t == 0 else Q(76+4*T)}")
    a(f"""v_and_b32 v22, 0x80008000, v9
v_and_b32 v23, v9, v12
v_bfi_b32 v24, v9, v22, v12
v_cmp_neq_f32 vcc, 0, v10
v_pk_mul_f32 {P(28)}, {P(76)}, {P(10)} op_sel_hi:[1,0]
v_pk_mul_f32 {P(30)}, {P(78)}, {P(10)} op_sel_hi:[1,0]
v_pk_mul_f32 {P(32)}, {P(80)}, {P(10)} op_sel_hi:[1,0]
v_pk_mul_f32 {P(34)}, {P(82)}, {P(10)} op_sel_hi:[1,0]
v_cndmask_b32 v25, 0, -1, vcc""")
    for i in range(4):
        a(f"v_add_f32_dpp v{76+i}, v{32+i}, v{76+i} row_ror:8 {DPP}")
        a(f"v_subrev_f32_dpp v{80+i}, v{28+i}, v{80+i} row_ror:8 {DPP}")
    a(f"""v_cvt_pk_bf16_f32 v36, v76, v77
v_cvt_pk_bf16_f32 v37, v78, v79
v_cvt_pk_bf16_f32 v38, v80, v81
v_cvt_pk_bf16_f32 v39, v82, v83
v_cvt_pk_bf16_f32 v44, v84, v85
v_cvt_pk_bf16_f32 v45, v86, v87
v_xor_b32 v36, v36, v23
v_xor_b32 v37, v37, v23
v_xor_b32 v38, v38, v24
v_xor_b32 v39, v39, v24
v_xor_b32 v44, v44, v22
v_xor_b32 v45, v45, v22
v_cndmask_b32 v40, v36, v38, s[42:43]
v_cndmask_b32 v41, v37, v39, s[42:43]
v_cndmask_b32 v42, v38, v36, s[42:43]
v_cndmask_b32 v43, v39, v37, s[42:43]
buffer_store_dwordx4 {Q(40)}, v11, s[12:15], s23 offen
v_and_b32_dpp v46, v44, v25 row_ror:8 {DPP}
v_and_b32_dpp v47, v45, v25 row_ror:8 {DPP}
s_not_b64 exec, s[42:43]
s_mov_b32 exec_hi, 0
buffer_store_dwordx4 {Q(44)}, v13, s[12:15], s23 offen
@stamp
@dump 12
s_endpgm
K1_side:
s_cmp_ge_u32 s2, 352
s_cbranch_scc1 K1_end
s_load_dwordx2 s[4:5], s[0:1], 48
s_load_dwordx2 s[6:7], s[0:1], 88
s_sub_u32 s3, s2, 256
s_cmp_lg_u32 s3, 0
s_cbranch_scc1 K1_nz
s_waitcnt lgkmcnt(0)
s_mov_b32 s12, s6
s_mov_b32 s13, s7
s_mov_b32 s14, {WS_SIZE}
s_mov_b32 s15, 0x00020000
s_mov_b32 s20, {FLG}
v_lshlrev_b32 v1, 7, v0
v_mov_b32 v24, 0
buffer_store_dword v24, v1, s[12:15], s20 offen
K1_nz:
v_cmp_gt_u32 vcc, 320, v0
s_and_saveexec_b64 s[30:31], vcc
s_cbranch_execz K1_end
v_mul_u32_u24 v1, 52429, v0
v_lshrrev_b32 v1, 22, v1
v_mul_u32_u24 v2, 80, v1
v_sub_u32 v2, v0, v2
v_mul_u32_u24 v3, 52429, v2
v_lshrrev_b32 v3, 19, v3
v_mul_u32_u24 v4, 10, v3
v_sub_u32 v4, v2, v4
v_mul_u32_u24 v5, 1280, v1
v_lshl_add_u32 v5, v2, 4, v5
s_mov_b32 s20, {1536*160}
v_mul_lo_u32 v6, v3, s20
v_lshl_add_u32 v6, v4, 4, v6
v_mul_u32_u24 v7, 160, v1
v_add_u32 v6, v6, v7
s_mul_i32 s20, s3, {16*1280}
s_lshr_b32 s21, s3, 1
s_mul_i32 s21, s21, {32*160}
s_and_b32 s22, s3, 1
s_mul_i32 s22, s22, {8*160}
s_add_u32 s21, s21, s22
s_add_u32 s21, s21, {WDT}
s_waitcnt lgkmcnt(0)""")
    srd(a, 8, 4, 1536*1280)
    srd(a, 12, 6, WS_SIZE)
    for q in range(4):
        a(f"buffer_load_dwordx4 {Q(8+4*q)}, v5, s[8:11], s20 offen")
        if q < 3: a("s_add_u32 s20, s20, 5120")
    for q in range(4):
        a(f"s_waitcnt vmcnt(3)\nbuffer_store_dwordx4 {Q(8+4*q)}, v6, s[12:15], s21 offen offset:{(16*(q&1) + 4*(q>>1))*160}")
    a("K1_end:\ns_endpgm")
    return ('k1_kernel', (352,1,1), (512,1,1), PB+5120, kd_block('k1_kernel', 116, 96))

def k2(a):
    head(a, 'k2_kernel')
    a(f"""
s_cmp_ge_u32 s2, 321
s_cbranch_scc1 K2_side
@stamp
s_load_dwordx2 s[6:7], s[0:1], 88
v_and_b32 v1, 15, v0
v_bfe_u32 v2, v0, 4, 2
v_lshrrev_b32 v3, 6, v0
v_and_b32 v9, 63, v0
v_readfirstlane_b32 s3, v3
v_lshl_add_u32 v4, v3, 2, v2
v_xor_b32 v10, v4, v1
v_lshlrev_b32 v10, 4, v10
v_lshl_add_u32 v4, v4, 8, v10
v_lshlrev_b32 v5, 5, v0
s_lshl_b32 s20, s2, 13
s_add_u32 s21, s20, {XF}
s_add_u32 s22, s21, 4096
s_add_u32 s23, s20, {WP}
s_lshl_b32 s24, s3, 10
s_mov_b32 m0, s24
s_waitcnt lgkmcnt(0)
@stamp
""")
    srd(a, 8, 6, WS_SIZE)
    a(f"""buffer_load_dwordx4 v4, s[8:11], s21 offen lds
s_add_u32 m0, s24, 4096
s_nop 0
buffer_load_dwordx4 v4, s[8:11], s22 offen lds
buffer_load_dwordx4 v[48:51], v5, s[8:11], s23 offen
buffer_load_dwordx4 v[52:55], v5, s[8:11], s23 offen offset:16
v_lshl_add_u32 v6, v3, 4, v1
v_cvt_f32_u32 v6, v6
v_cvt_f32_u32 v7, v2
v_cvt_f32_u32 v8, v1
v_mul_f32 v7, 4.0, v7
""")
    M = lambda t: 56+6*t
    N = lambda x, y: 80+6*(2*x+y)
    def gen(R, cur, step, last):
        for hh in range(2):
            a(f"""v_cos_f32 v12, v{cur}
v_sin_f32 v13, v{cur}
v_add_f32 v{cur}, v{cur}, v{step}
v_cos_f32 v14, v{cur}
v_sin_f32 v15, v{cur}
v_add_f32 v{cur}, v{cur}, v{last if hh else step}
v_cvt_pk_bf16_f32 v{R+2+hh}, v12, v14
v_cvt_pk_bf16_f32 v{R+hh}, -v13, -v15
v_cvt_pk_bf16_f32 v{R+4+hh}, v13, v15""")
    a(f"""v_mul_f32 v16, {fh(1/64)}, v6
v_mul_f32 v10, v7, v16
v_mul_f32 v11, {fh(13.0)}, v16""")
    for t in range(4): gen(M(t), 10, 16, 11)
    for x in range(2):
        a(f"""v_add_f32 v16, {fh(16.0*x)}, v8
v_mul_f32 v16, {fh(1/32)}, v16
v_mul_f32 v10, v7, v16
v_mul_f32 v11, {fh(13.0)}, v16""")
        for y in range(2): gen(N(x, y), 10, 16, 11)
    a(f"""v_mul_f32 v16, {fh(-1/2048)}, v6
v_mul_f32 v10, v7, v16
v_mul_f32 v11, {fh(13.0)}, v16""")
    for k in range(8):
        a(f"v_cos_f32 v{104+k}, v10\nv_sin_f32 v{112+k}, v10")
        if k < 7: a(f"v_add_f32 v10, v10, v{11 if k == 3 else 16}")
    a(f"""s_lshl_b32 s24, s3, 4
v_cvt_f32_u32 v12, s24
v_add_f32 v12, v12, v7
s_mov_b32 s26, {fh(2.0/(2048*640))}
s_cmp_eq_u32 s2, 0
s_cselect_b32 s26, {fh(1.0/(2048*640))}, s26
s_cmp_eq_u32 s2, 320
s_cselect_b32 s26, {fh(1.0/(2048*640))}, s26
s_mov_b32 s27, s26""")
    for nt in range(2):
        a(f"""v_add_f32 v16, {fh(16.0*nt)}, v8
v_mul_f32 v16, {fh(1/2048)}, v16
v_mul_f32 v10, v12, v16""")
        for i in range(4):
            k = 4*nt+i
            a(f"v_cos_f32 v{120+k}, v10\nv_sin_f32 v{128+k}, v10")
            if i < 3: a("v_add_f32 v10, v10, v16")
    for k in range(8): a(f"v_pk_mul_f32 {P(120+2*k)}, s[26:27], {P(120+2*k)}")
    a(f"""v_xor_b32 v10, v2, v1
v_lshlrev_b32 v10, 4, v10
v_lshl_add_u32 v10, v1, 8, v10
v_xor_b32 v11, 64, v10
v_xor_b32 v12, 128, v10
v_xor_b32 v13, 192, v10
v_lshlrev_b32 v7, 4, v9
s_lshl_b32 s24, s3, 10
v_add_u32 v6, s24, v7
v_lshlrev_b32 v5, 8, v1
v_lshl_add_u32 v5, v3, 6, v5
v_lshl_add_u32 v5, v2, 4, v5
s_add_u32 s21, s20, {YF}
s_add_u32 s22, s21, 4096
@stamp
s_waitcnt vmcnt(2)
s_barrier
@stamp""")
    D = lambda mt, t: 16+16*mt+4*t
    for t in range(4):
        for mt in range(2):
            a(f"ds_read_b128 {Q(D(mt,t))}, v{10+t} offset:{4096*mt}")
    def mf(d, A, B, first): a(f"v_mfma_f32_16x16x32_bf16 {Q(d)}, {Q(A)}, {Q(B)}, {'0' if first else Q(d)}")
    for t in range(4):
        a(f"s_waitcnt lgkmcnt({6-2*t})")
        for mt in range(2):
            mf(136+8*mt, D(mt,t), M(t)+2, t == 0)
            mf(140+8*mt, D(mt,t), M(t), t == 0)
    a("s_waitcnt vmcnt(0)")
    for k in range(8):
        a(f"v_lshlrev_b32 v{32+k}, 16, v{48+k}\nv_and_b32 v{40+k}, 0xffff0000, v{48+k}")
    def tw_pack(tr, ti, B, swap):
        for blk in range(2):
            for hh in range(2):
                r = 136+8*blk+2*hh; i = r+4; c = tr+4*blk+2*hh; s = ti+4*blk+2*hh; t = 48+4*blk+2*hh
                a(f"""v_pk_mul_f32 {P(t)}, {P(i)}, {P(s)}
v_pk_mul_f32 {P(i)}, {P(i)}, {P(c)}
v_pk_fma_f32 {P(i)}, {P(r)}, {P(s)}, {P(i)}
v_pk_fma_f32 {P(r)}, {P(r)}, {P(c)}, {P(t)} neg_lo:[0,0,1] neg_hi:[0,0,1]""")
        for blk in range(2):
            for hh in range(2):
                r = 136+8*blk+2*hh
                a(f"v_cvt_pk_bf16_f32 v{B+4*blk+hh+(2 if swap else 0)}, v{r}, v{r+1}")
                a(f"v_cvt_pk_bf16_f32 v{B+4*blk+hh+(0 if swap else 2)}, v{r+4}, v{r+5}")
    tw_pack(104, 112, 16, False)
    for y in range(2):
        for x in range(2):
            mf(136+8*x, N(x,y)+2, 16+4*y, y == 0)
            mf(140+8*x, N(x,y), 16+4*y, y == 0)
    tw_pack(32, 40, 24, True)
    for y in range(2):
        for x in range(2):
            mf(136+8*x, 24+4*y, N(x,y), y == 0)
            mf(140+8*x, 24+4*y, N(x,y)+2, y == 0)
    tw_pack(120, 128, 16, True)
    a(f"""ds_write_b128 v6, {Q(16)} offset:8192
ds_write_b128 v6, {Q(20)} offset:12288
@stamp
s_waitcnt lgkmcnt(0)
s_barrier
@stamp""")
    for t in range(4):
        for nt in range(2):
            a(f"ds_read_b128 {Q(D(nt,t))}, v7 offset:{8192+4096*nt+1024*t}")
    for t in range(4):
        a(f"s_waitcnt lgkmcnt({6-2*t})")
        for nt in range(2):
            mf(136+8*nt, M(t), D(nt,t), t == 0)
            mf(140+8*nt, M(t)+2, D(nt,t), t == 0)
    for nt in range(2):
        o = 48+4*nt; s = 136+8*nt
        for k in range(4): a(f"v_cvt_pk_bf16_f32 v{o+k}, v{s+2*k}, v{s+2*k+1}")
        a(f"buffer_store_dwordx4 {Q(o)}, v5, s[8:11], s{21+nt} offen")
    a(f"""@stamp
@dump 8
s_endpgm
K2_side:
s_cmp_ge_u32 s2, 381
s_cbranch_scc1 K2_end
s_load_dwordx4 s[4:7], s[0:1], 32
s_sub_u32 s3, s2, 321
s_lshl_b32 s3, s3, 15
v_lshlrev_b32 v1, 7, v0
s_waitcnt lgkmcnt(0)""")
    srd(a, 8, 4, 640*3072)
    srd(a, 12, 6, 640*3072)
    a("""buffer_load_dword v2, v1, s[8:11], s3 offen
buffer_load_dword v3, v1, s[12:15], s3 offen
K2_end:
s_endpgm""")
    return ('k2_kernel', (381,1,1), (256,1,1), 16384, kd_block('k2_kernel', 152, 96))

def k3(a):
    head(a, 'k3_kernel')
    ZB = 12288; ZR = 528; ZC = 8*ZR; PB = ZB + 5*ZC
    a("""
s_cmp_ge_u32 s2, 256
s_cbranch_scc1 K3_end
@stamp
s_load_dwordx2 s[4:5], s[0:1], 0
s_load_dwordx2 s[6:7], s[0:1], 88
""")
    row_ids(a)
    a("v_and_b32 v5, 15, v0\nv_bfe_u32 v6, v0, 4, 2")
    col_slots(a, 22, 5, 6, 8, 22)
    a(f"""
s_lshl_b32 s23, s3, 8
s_lshl_b32 s21, s20, 5
s_add_u32 s23, s23, s21
s_add_u32 s23, s23, {YF}
s_lshl_b32 s21, s20, 3
s_add_u32 s21, s21, s22
s_lshl_b32 s24, s3, 6
s_add_u32 s24, s24, s21
s_lshl_b32 s21, s21, 5
s_add_u32 s21, s21, s3
s_mul_i32 s21, s21, 1280
s_mul_i32 s24, s24, 1280
v_lshlrev_b32 v4, 4, v1
s_lshl_b32 s25, s22, 10
s_add_u32 m0, s25, {PB}
s_add_u32 s25, s25, 5120
s_waitcnt lgkmcnt(0)
""")
    srd(a, 8, 4, 2048*1280)
    srd(a, 12, 6, WS_SIZE)
    a(f"""buffer_load_dwordx4 {Q(28)}, v11, s[12:15], s23 offen
buffer_load_dwordx4 {Q(32)}, v13, s[12:15], s23 offen
buffer_load_dwordx4 v4, s[12:15], s25 offen lds""")
    for k in range(3):
        a(f"buffer_load_dwordx2 {P(16+2*k)}, v2, s[8:11], s21 offen offset:{512*k}")
    w5_consts(a, 88, 22, 1.0)
    a(f"""
s_lshl_b32 s27, s22, 4
v_add_u32 v22, s27, v5
v_cvt_f32_u32 v22, v22
v_mul_f32 v22, {fh(1/128)}, v22
v_and_b32 v23, 1, v6
v_cvt_f32_u32 v23, v23
v_mul_f32 v23, 4.0, v23
v_lshrrev_b32 v24, 1, v6
v_cvt_f32_u32 v24, v24
v_mul_f32 v24, {fh(0.25)}, v24
v_fma_f32 v23, v23, v22, v24
v_mul_f32 v24, {fh(5.0)}, v22
v_mul_f32 v27, {fh(64.0)}, v22
v_cmp_eq_u32 vcc, 2, v6
v_cndmask_b32 v27, v23, v27, vcc
""")
    for t in range(4):
        for jj in range(4):
            a(f"""v_cos_f32 v25, v{27 if (t, jj) == (0, 0) else 23}
v_add_f32 v23, v23, v22
v_cos_f32 v26, v23
v_add_f32 v23, v23, v{24 if jj & 1 else 22}
v_cvt_pk_bf16_f32 v{96+4*t+jj}, v25, v26""")
    a(f"""
v_lshlrev_b32 v14, 5, v5
v_lshl_add_u32 v14, v6, 3, v14
s_lshl_b32 s27, s22, 9
v_add_u32 v14, s27, v14
v_and_b32 v15, 4096, v9
v_add_u32 v15, v15, v14
v_xor_b32 v112, 4096, v15
v_lshlrev_b32 v113, 3, v1
v_and_b32 v22, 7, v5
v_mul_u32_u24 v22, {ZR}, v22
v_lshl_add_u32 v22, v6, 4, v22
s_lshl_b32 s27, s22, 6
v_add_u32 v115, s27, v22
v_lshrrev_b32 v22, 3, v5
v_mul_u32_u24 v22, {2*ZC}, v22
v_add_u32 v114, v115, v22
v_lshlrev_b32 v4, 2, v3
s_mul_i32 s27, s22, {ZR}
v_add_u32 v7, s27, v4
v_and_b32 v22, 0x80000000, v9
v_xor_b32 v22, v22, v10
v_and_b32 v23, 0x80008000, v9
v_xor_b32 v24, v23, v12
""")
    r5_sconsts(a)
    a(f"""@stamp
s_waitcnt vmcnt(4)
@stamp
v_cndmask_b32 v32, v32, v34, s[42:43]
v_cndmask_b32 v33, v33, v35, s[42:43]
v_xor_b32 v26, v30, v24
v_xor_b32 v27, v31, v24
v_xor_b32 v30, v30, v12
v_xor_b32 v31, v31, v12
ds_write_b64 v14, {P(32)} offset:8192""")
    for hh in range(2):
        a(f"""v_lshlrev_b32 v{36+2*hh}, 16, v{28+hh}
v_and_b32 v{37+2*hh}, 0xffff0000, v{28+hh}
v_lshlrev_b32 v{40+2*hh}, 16, v{30+hh}
v_and_b32 v{41+2*hh}, 0xffff0000, v{30+hh}
v_lshlrev_b32 v{44+2*hh}, 16, v{28+hh}
v_and_b32 v{45+2*hh}, 0xffff0000, v{28+hh}
v_lshlrev_b32 v{48+2*hh}, 16, v{26+hh}
v_and_b32 v{49+2*hh}, 0xffff0000, v{26+hh}""")
    for i in range(4):
        a(f"v_fmac_f32_dpp v{44+i}, v{36+i}, v22 row_ror:8 {DPP}")
        a(f"v_fmac_f32_dpp v{48+i}, v{40+i}, v10 row_ror:8 {DPP}")
    a(f"""v_cvt_pk_bf16_f32 v52, v44, v45
v_cvt_pk_bf16_f32 v53, v46, v47
v_cvt_pk_bf16_f32 v54, v48, v49
v_cvt_pk_bf16_f32 v55, v50, v51
ds_write_b64 v15, {P(52)}
ds_write_b64 v112, {P(54)}
s_waitcnt vmcnt(3) lgkmcnt(0)
s_barrier
@stamp""")
    for T in range(3):
        for t in range(4):
            for x in range(2):
                a(f"ds_read_b64_tr_b16 {P(28+16*T+4*t+2*x)}, v113 offset:{4096*T+1024*t+512*x}")
            if T == 1 and t == 3:
                a("s_waitcnt lgkmcnt(8)")
                for tt in range(4): a(f"v_mfma_f32_16x16x32_bf16 {Q(76)}, {Q(96+4*tt)}, {Q(28+4*tt)}, {'0' if tt == 0 else Q(76)}")
    for T in (1, 2):
        a(f"s_waitcnt lgkmcnt({8 if T == 1 else 0})")
        for t in range(4): a(f"v_mfma_f32_16x16x32_bf16 {Q(76+4*T)}, {Q(96+4*t)}, {Q(28+16*T+4*t)}, {'0' if t == 0 else Q(76+4*T)}")
    for j in range(5):
        a(f"ds_read_b64 {P(116+2*j)}, v4 offset:{PB+512*j}")
    a(f"""ds_write_b128 v114, {Q(76)} offset:{ZB+ZC}
ds_write_b128 v114, {Q(80)} offset:{ZB+2*ZC}
ds_write_b128 v115, {Q(84)} offset:{ZB}
s_waitcnt vmcnt(0)""")
    unpack_x(a, 16, 28)
    a("@stamp\ns_waitcnt lgkmcnt(0)\ns_barrier\n@stamp")
    for c in range(5): a(f"ds_read_b64 {P(40+2*c)}, v7 offset:{ZB+ZC*c}")
    for j in range(5):
        a(f"ds_read_b64 {P(136+2*j)}, v4 offset:{PB+5120+512*j}\nds_read_b64 {P(126+2*j)}, v4 offset:{PB+2560+512*j}")
    a("s_waitcnt lgkmcnt(10)")
    for k in range(2):
        r, im = 42+4*k, 44+4*k; c, s = 88+4*k, 90+4*k; R, I = 50+4*k, 52+4*k
        a(f"""v_pk_mul_f32 {P(R)}, {P(r)}, {P(c)}
v_pk_mul_f32 {P(I)}, {P(r)}, {P(s)}
v_pk_fma_f32 {P(R)}, {P(im)}, {P(s)}, {P(R)} neg_lo:[1,0,0] neg_hi:[1,0,0]
v_pk_fma_f32 {P(I)}, {P(im)}, {P(c)}, {P(I)}""")
    z0,z1r,z1i,z2r,z2i = 40,50,52,54,56
    A,B,Cc,Dd,E = 58,60,62,64,66
    sl = {(3*j) % 5: j for j in range(5)}
    X = lambda d2: P(28+2*sl[d2]); G = lambda d2: P(116+2*sl[d2])
    a(f"""v_pk_add_f32 {P(E)}, {P(z0)}, {P(z1r)}
v_pk_fma_f32 {P(A)}, s[30:31], {P(z1r)}, {P(z0)}
v_pk_fma_f32 {P(B)}, s[32:33], {P(z1r)}, {P(z0)}
v_pk_mul_f32 {P(Cc)}, s[34:35], {P(z1i)}
v_pk_mul_f32 {P(Dd)}, s[36:37], {P(z1i)}
v_pk_add_f32 {P(E)}, {P(E)}, {P(z2r)}
v_pk_fma_f32 {P(A)}, s[32:33], {P(z2r)}, {P(A)}
v_pk_fma_f32 {P(B)}, s[30:31], {P(z2r)}, {P(B)}
v_pk_fma_f32 {P(Cc)}, s[36:37], {P(z2i)}, {P(Cc)}
v_pk_fma_f32 {P(Dd)}, s[34:35], {P(z2i)}, {P(Dd)} neg_lo:[0,1,0] neg_hi:[0,1,0]
v_pk_fma_f32 {X(0)}, {G(0)}, {P(E)}, {X(0)}
v_pk_add_f32 {P(68)}, {P(A)}, {P(Cc)} neg_lo:[0,1] neg_hi:[0,1]
v_pk_add_f32 {P(70)}, {P(A)}, {P(Cc)}
v_pk_add_f32 {P(72)}, {P(B)}, {P(Dd)} neg_lo:[0,1] neg_hi:[0,1]
v_pk_add_f32 {P(74)}, {P(B)}, {P(Dd)}
v_pk_fma_f32 {X(1)}, {G(1)}, {P(68)}, {X(1)}
v_pk_fma_f32 {X(4)}, {G(4)}, {P(70)}, {X(4)}
v_pk_fma_f32 {X(2)}, {G(2)}, {P(72)}, {X(2)}
v_pk_fma_f32 {X(3)}, {G(3)}, {P(74)}, {X(3)}
s_add_u32 s25, s24, {X1}
s_add_u32 s26, s24, {H2F}""")
    for j in range(5): a(f"v_cvt_pk_bf16_f32 v{16+j}, v{28+2*j}, v{29+2*j}")
    a(f"""v_permlane32_swap_b32 v16, v17
v_permlane32_swap_b32 v18, v19
buffer_store_dwordx2 {P(16)}, v2, s[12:15], s25 offen
buffer_store_dwordx2 {P(18)}, v2, s[12:15], s25 offen offset:512""")
    ln_rows(a, 28, 22)
    a(f"""v_bfe_u32 v24, v0, 5, 1
v_mul_u32_u24 v24, {H2F - X1 - 256}, v24
v_add_u32 v24, v24, v2
s_waitcnt lgkmcnt(0)""")
    for j in range(5): a(f"v_pk_mul_f32 {P(136+2*j)}, {P(136+2*j)}, {P(22)} op_sel_hi:[1,0]")
    for j in range(5): a(f"v_pk_fma_f32 {P(28+2*j)}, {P(28+2*j)}, {P(136+2*j)}, {P(126+2*j)}")
    for j in range(4): a(f"v_cvt_pk_bf16_f32 v{40+j}, v{28+2*j}, v{29+2*j}")
    a(f"""v_cvt_pk_bf16_f32 v21, v36, v37
v_permlane32_swap_b32 v40, v41
v_permlane32_swap_b32 v42, v43
v_permlane32_swap_b32 v20, v21
buffer_store_dwordx2 {P(40)}, v2, s[12:15], s26 offen
buffer_store_dwordx2 {P(42)}, v2, s[12:15], s26 offen offset:512
buffer_store_dwordx2 {P(20)}, v24, s[12:15], s25 offen offset:1024
@stamp
@dump 12
K3_end:
s_endpgm""")
    return ('k3_kernel', (256,1,1), (512,1,1), PB+8192, kd_block('k3_kernel', 148, 96))

def ramp(NST, D, first=3):
    nxt = first; sched = {}
    for s in range(NST):
        lim = min(NST, s + D + 1)
        take = []
        while nxt < lim and len(take) < 2:
            take.append(nxt); nxt += 1
        sched[s] = take
    return list(range(first)), sched
def k4(a):
    head(a, 'k4_kernel')
    NST = 20; WS_ = 12288; HB = 98304; HS = 16384
    a(f"""
s_cmp_ge_u32 s2, 256
s_cbranch_scc1 K4_end
@stamp
s_load_dwordx4 s[4:7], s[0:1], 32
s_load_dwordx2 s[20:21], s[0:1], 88
s_and_b32 s3, s2, 7
s_lshr_b32 s22, s2, 3
s_and_b32 s23, s3, 1
s_lshl_b32 s23, s23, 3
s_and_b32 s24, s22, 7
s_add_u32 s23, s23, s24
s_lshr_b32 s24, s3, 1
s_lshl_b32 s24, s24, 2
s_lshr_b32 s25, s22, 3
s_add_u32 s24, s24, s25
v_lshrrev_b32 v1, 6, v0
v_and_b32 v2, 63, v0
v_readfirstlane_b32 s25, v1
s_cmp_lt_u32 s25, 8
s_cbranch_scc1 K4_cons
s_sub_u32 s25, s25, 8
""")
    for q in range(3):
        a(f"""v_add_u32 v10, {64*q}, v2
v_mul_u32_u24 v11, 43691, v10
v_lshrrev_b32 v11, 19, v11
v_mul_u32_u24 v12, 12, v11
v_sub_u32 v12, v10, v12
v_lshrrev_b32 v13, 2, v11
v_and_b32 v13, 2, v13
v_xor_b32 v12, v12, v13
v_mul_u32_u24 v11, 3072, v11
v_lshl_add_u32 v11, v12, 4, v11
v_subrev_u32 v{3+q}, {1024*q}, v11""")
    for q in range(4):
        a(f"""v_lshrrev_b32 v10, 4, v2
v_add_u32 v10, {4*q}, v10
v_xor_b32 v10, v10, v2
v_and_b32 v10, 7, v10
v_lshrrev_b32 v11, 3, v2
v_mul_u32_u24 v11, 1280, v11
v_lshl_add_u32 v11, v10, 4, v11
v_add_u32 v{6+q}, {q*(10240-1024)}, v11""")
    a(f"""
s_and_b32 s26, s25, 1
s_mul_i32 s27, s26, {16*3072}
s_mul_i32 s28, s24, 192
s_add_u32 s27, s27, s28
s_mul_i32 s28, s25, 3072
s_lshl_b32 s29, s23, 2
s_add_u32 s29, s29, s25
s_mul_i32 s29, s29, 40960
s_add_u32 s29, s29, {H2F}
s_lshl_b32 s30, s25, 12
s_waitcnt lgkmcnt(0)
s_cmp_lt_u32 s25, 2
s_cselect_b32 s8, s4, s6
s_cselect_b32 s9, s5, s7
s_mov_b32 s10, {640*3072}
s_mov_b32 s11, 0x00020000
""")
    srd(a, 12, 20, WS_SIZE)
    cnt = []
    def issue(s):
        n = 0
        if s % 2 == 0:
            a(f"s_add_u32 m0, s30, {HB + ((s//2) % 4)*HS}")
            for q in range(4):
                a(f"buffer_load_dwordx4 v{6+q}, s[12:15], s29 offen offset:{1024*q} lds")
            a("s_add_u32 s29, s29, 128"); n += 4
        a(f"s_add_u32 m0, s28, {(s % 8)*WS_}")
        for q in range(3):
            a(f"buffer_load_dwordx4 v{3+q}, s[8:11], s27 offen offset:{1024*q} lds")
        a(f"s_add_u32 s27, s27, {32*3072}"); n += 3
        cnt.append(n)
    init, sched = ramp(NST, 6)
    for s in init: issue(s)
    for s in range(NST):
        a(f"s_waitcnt vmcnt({sum(cnt[s+1:])})\ns_barrier")
        for g in sched[s]: issue(g)
    a("@stamp\n@dump 12\ns_endpgm")
    a.st.n = 1
    a(f"""K4_cons:
s_lshr_b32 s26, s25, 2
s_and_b32 s27, s25, 3
v_lshrrev_b32 v3, 4, v2
v_bfe_u32 v4, v2, 2, 2
v_lshl_add_u32 v4, v3, 3, v4
v_mul_u32_u24 v4, 192, v4
v_and_b32 v5, 3, v2
v_lshl_add_u32 v4, v5, 3, v4
v_and_b32 v5, 1, v3
v_lshlrev_b32 v5, 5, v5
s_mul_i32 s28, s26, 96
v_add_u32 v4, s28, v4
s_cmp_eq_u32 s26, 0
s_cselect_b32 s29, 1, -1
v_mul_lo_u32 v5, v5, s29
v_add_u32 v6, v4, v5
v_sub_u32 v7, v4, v5
v_add_u32 v8, {4*WS_}, v6
v_add_u32 v9, {4*WS_}, v7
v_and_b32 v10, 15, v2
v_lshrrev_b32 v11, 1, v10
v_xor_b32 v11, v11, v3
v_lshlrev_b32 v11, 4, v11
v_lshl_add_u32 v11, v10, 7, v11
s_lshl_b32 s28, s27, 12
s_add_u32 s28, s28, {HB}
v_add_u32 v11, s28, v11
v_xor_b32 v12, 64, v11
s_waitcnt lgkmcnt(0)
""")
    srd(a, 12, 20, WS_SIZE)
    ACC = lambda mat, i, nt: 16 + 4*(6*nt + 3*mat + i)
    FA = lambda buf, mat, i: 64 + 32*buf + 4*(3*mat+i)
    FB = lambda buf, nt: 88 + 32*buf + 4*nt
    def reads(s):
        L = []; sl = s % 8
        for nt in range(2):
            f = FB(s & 1, nt)
            L.append(f"ds_read_b128 v[{f}:{f+3}], v{11 + (s & 1)} offset:{((s//2) % 4)*HS + 2048*nt}")
        for mat in range(2):
            for i in range(3):
                for x in range(2):
                    f = FA(s & 1, mat, i) + 2*x
                    L.append(f"ds_read_b64_tr_b16 v[{f}:{f+1}], v{6 + (i & 1) + 2*(sl//4)} offset:{(sl % 4)*WS_ + mat*6144 + 4*x*192 + 32*i}")
        return L
    a("s_barrier\n@stamp")
    for l in reads(0): a(l)
    for s in range(NST):
        a("s_waitcnt lgkmcnt(0)")
        R = []
        if s+1 < NST:
            a("s_barrier"); R = reads(s+1)
        k = 0
        for mat in range(2):
            for i in range(3):
                for nt in range(2):
                    c = ACC(mat, i, nt); fa = FA(s & 1, mat, i); fb = FB(s & 1, nt)
                    if 'nomfma' not in OPT: a(f"v_mfma_f32_16x16x32_bf16 v[{c}:{c+3}], v[{fa}:{fa+3}], v[{fb}:{fb+3}], {'0' if s == 0 else f'v[{c}:{c+3}]'}")
                    if 'nords' not in OPT:
                        for l in R[2*k:2*k+2]: a(l)
                    k += 1
    a("@stamp")
    kk = 2*0.7978845608028654*math.log2(math.e)
    a(f"""s_mov_b32 s30, {fh(-kk)}
s_mov_b32 s31, {fh(-kk*0.044715)}
v_mov_b32 v10, s30
s_lshl_b32 s29, s23, 3
s_lshl_b32 s28, s27, 1
s_add_u32 s29, s29, s28
s_mul_i32 s29, s29, 49152
s_mul_i32 s28, s24, 3072
s_add_u32 s29, s29, s28
s_mul_i32 s28, s26, 1536
s_add_u32 s29, s29, s28
s_add_u32 s29, s29, {HIDF}
s_mov_b32 s32, s30
s_mov_b32 s33, s30
s_mov_b32 s30, s31
v_mov_b32 v11, v10
v_bfe_u32 v7, v2, 4, 1
v_mul_u32_u24 v7, 49152, v7
v_lshrrev_b32 v8, 5, v2
v_lshl_add_u32 v7, v8, 8, v7
v_and_b32 v8, 15, v2
v_lshl_add_u32 v7, v8, 4, v7""")
    for nt in range(2):
        G = ACC(0, 0, nt); U = ACC(1, 0, nt); T = 64 + 16*nt
        for i in range(0, 12, 2): a(f"v_pk_mul_f32 {P(T+i)}, {P(G+i)}, {P(G+i)}")
        for i in range(0, 12, 2): a(f"v_pk_fma_f32 {P(T+i)}, {P(T+i)}, s[30:31], {P(10)}")
        for i in range(0, 12, 2): a(f"v_pk_mul_f32 {P(T+i)}, {P(T+i)}, {P(G+i)}")
        for i in range(0, 12, 2): a(f"v_exp_f32 v{T+i}, v{T+i}\nv_exp_f32 v{T+i+1}, v{T+i+1}\nv_pk_mul_f32 {P(G+i)}, {P(G+i)}, {P(U+i)}")
        for i in range(0, 12, 2): a(f"v_pk_add_f32 {P(T+i)}, {P(T+i)}, 1.0 op_sel_hi:[1,0]")
        for i in range(12): a(f"v_rcp_f32 v{T+i}, v{T+i}")
        for i in range(0, 12, 2): a(f"v_pk_mul_f32 {P(G+i)}, {P(G+i)}, {P(T+i)}")
        for i in range(3):
            O = 96 + 4*i + 2*nt
            a(f"""v_cvt_pk_bf16_f32 v{O}, v{G+4*i}, v{G+4*i+1}
v_cvt_pk_bf16_f32 v{O+1}, v{G+4*i+2}, v{G+4*i+3}""")
    for i in range(3):
        O = 96 + 4*i
        a(f"""v_permlane16_swap_b32 v{O}, v{O+2}
v_permlane16_swap_b32 v{O+1}, v{O+3}
buffer_store_dwordx4 {Q(O)}, v7, s[12:15], s29 offen offset:{512*i}""")
    a("@stamp\n@dump 12\nK4_end:\ns_endpgm")
    return ('k4_kernel', (256,1,1), (768,1,1), 163840, kd_block('k4_kernel', 128, 96))

def k5(a):
    head(a, 'k5_kernel')
    NST = 24; SLOT = 18432; NS = 8
    a(f"""
s_cmp_ge_u32 s2, 256
s_cbranch_scc1 K5_end
@stamp
s_load_dwordx2 s[4:5], s[0:1], 48
s_load_dwordx2 s[6:7], s[0:1], 72
s_load_dwordx2 s[20:21], s[0:1], 88
s_and_b32 s3, s2, 7
s_lshr_b32 s22, s2, 3
s_and_b32 s23, s3, 3
s_lshl_b32 s23, s23, 3
s_and_b32 s24, s22, 7
s_add_u32 s23, s23, s24
s_lshr_b32 s24, s3, 2
s_lshl_b32 s24, s24, 2
s_lshr_b32 s25, s22, 3
s_add_u32 s24, s24, s25
v_lshrrev_b32 v1, 6, v0
v_and_b32 v2, 63, v0
v_readfirstlane_b32 s25, v1
s_cmp_lt_u32 s25, 4
s_cbranch_scc1 K5_cons
s_cmp_ge_u32 s25, 6
s_cbranch_scc1 K5_prodh
s_sub_u32 s25, s25, 4
""")
    init, sched = ramp(NST, 7)
    a(f"""
s_mul_i32 s28, s25, 5120
s_mul_i32 s27, s24, {1536*160}
s_add_u32 s27, s27, s28
s_add_u32 s27, s27, {WDT}
v_lshlrev_b32 v3, 4, v2
v_add_u32 v4, 4096, v3
s_waitcnt lgkmcnt(0)
""")
    srd(a, 8, 20, WS_SIZE)
    srd(a, 12, 20, WS_SIZE)
    def issue_w(s):
        a(f"s_add_u32 m0, s28, {(s % NS)*SLOT}")
        for q in range(4):
            a(f"buffer_load_dwordx4 v3, s[8:11], s27 offen offset:{1024*q} lds")
        a(f"s_add_u32 m0, s28, {(s % NS)*SLOT + 4096}")
        a(f"buffer_load_dwordx4 v4, s[8:11], s27 offen lds")
        a(f"s_add_u32 s27, s27, 10240")
    n = 0
    for s in init: issue_w(s); n += 1
    for s in range(NST):
        a(f"s_waitcnt vmcnt({5*(n-s-1)})\ns_barrier")
        for g in sched[s]: issue_w(g); n += 1
    a("@stamp\n@dump 12\ns_endpgm")
    a.st.n = 1
    a(f"""K5_prodh:
s_sub_u32 s25, s25, 6
s_lshl_b32 s29, s23, 2
s_lshl_b32 s28, s25, 1
s_add_u32 s29, s29, s28
s_mul_i32 s29, s29, 49152
s_add_u32 s29, s29, {HIDF}
s_lshl_b32 s28, s25, 12
s_add_u32 s28, s28, 10240
v_lshlrev_b32 v3, 4, v2
v_add_u32 v4, {49152-2048}, v3
s_waitcnt lgkmcnt(0)
""")
    srd(a, 12, 20, WS_SIZE)
    def issue_h(s):
        a(f"s_add_u32 m0, s28, {(s % NS)*SLOT}")
        for q in range(4):
            a(f"buffer_load_dwordx4 v{3+q//2}, s[12:15], s29 offen offset:{1024*q} lds")
        a("s_add_u32 s29, s29, 2048")
    n = 0
    for s in init: issue_h(s); n += 1
    for s in range(NST):
        a(f"s_waitcnt vmcnt({4*(n-s-1)})\ns_barrier")
        for g in sched[s]: issue_h(g); n += 1
    a("@stamp\n@dump 12\ns_endpgm")
    a.st.n = 1
    a(f"""K5_cons:
s_lshl_b32 s30, s23, 2
s_add_u32 s30, s30, s25
s_lshl_b32 s30, s30, 4
v_lshrrev_b32 v3, 2, v2
v_mul_u32_u24 v3, 160, v3
v_and_b32 v4, 3, v2
v_lshl_add_u32 v3, v4, 3, v3
v_add_u32 v4, {3*SLOT}, v3
v_add_u32 v5, {6*SLOT}, v3
s_lshl_b32 s28, s25, 11
s_add_u32 s28, s28, 10240
v_lshlrev_b32 v6, 4, v2
v_add_u32 v6, s28, v6
v_add_u32 v7, {3*SLOT}, v6
v_add_u32 v8, {6*SLOT}, v6
v_and_b32 v12, 15, v2
v_lshrrev_b32 v13, 4, v2
v_mul_u32_u24 v14, 1280, v12
v_lshl_add_u32 v14, v13, 3, v14
s_mul_i32 s26, s30, 1280
s_mul_i32 s27, s24, 160
s_add_u32 s26, s26, s27
s_add_u32 s26, s26, {X1}
v_lshlrev_b32 v15, 4, v13
s_lshl_b32 s28, s27, 1
s_add_u32 s28, s28, 12800
s_waitcnt lgkmcnt(0)
""")
    srd(a, 12, 20, WS_SIZE)
    srd(a, 16, 6, 2048*1280)
    ACC = lambda mt: 16 + 4*mt
    FA = lambda buf, u, mt: 36 + 48*buf + 24*u + 4*mt
    FB = lambda buf, u: 36 + 48*buf + 24*u + 20
    def reads(s):
        L = []; sl = s % NS
        for u in range(2):
            f = FB(s & 1, u)
            L.append(f"ds_read_b128 v[{f}:{f+3}], v{6+sl//3} offset:{(sl % 3)*SLOT + 1024*u}")
            for mt in range(5):
                for x in range(2):
                    f = FA(s & 1, u, mt) + 2*x
                    L.append(f"ds_read_b64_tr_b16 v[{f}:{f+1}], v{3+sl//3} offset:{(sl % 3)*SLOT + u*5120 + x*2560 + 32*mt}")
        return L
    a("s_barrier\n@stamp")
    for l in reads(0): a(l)
    for s in range(NST):
        a("s_waitcnt lgkmcnt(0)")
        R = []
        if s+1 < NST:
            a("s_barrier"); R = reads(s+1)
        if s == NST-6:
            for mt in range(5):
                a(f"buffer_load_dwordx2 v[{132+2*mt}:{133+2*mt}], v14, s[12:15], s26 offen offset:{32*mt}")
                a(f"buffer_load_dwordx4 v[{144+4*mt}:{147+4*mt}], v15, s[12:15], s28 offen offset:{64*mt}")
        k = 0
        for u in range(2):
            for mt in range(5):
                c = ACC(mt); fa = FA(s & 1, u, mt); fb = FB(s & 1, u)
                if 'nomfma' not in OPT: a(f"v_mfma_f32_16x16x32_bf16 v[{c}:{c+3}], v[{fa}:{fa+3}], v[{fb}:{fb+3}], {'0' if (s, u) == (0, 0) else f'v[{c}:{c+3}]'}")
                if 'nords' not in OPT:
                    for l in R[3*k:3*k+3]: a(l)
                k += 1
    a(f"""@stamp
s_and_b32 s26, s30, 63
s_lshl_b32 s26, s26, 5
s_lshr_b32 s29, s30, 6
s_add_u32 s26, s26, s29
s_mul_i32 s26, s26, 1280
s_add_u32 s26, s26, s27
v_mul_u32_u24 v14, 40960, v12
v_lshl_add_u32 v14, v13, 3, v14
s_waitcnt vmcnt(0)""")
    for mt in range(5):
        c = ACC(mt); x = 132+2*mt; g = 144+4*mt
        a(f"""v_lshlrev_b32 v36, 16, v{x}
v_and_b32 v37, 0xffff0000, v{x}
v_lshlrev_b32 v38, 16, v{x+1}
v_and_b32 v39, 0xffff0000, v{x+1}
v_fmac_f32 v36, v{c}, v{g}
v_fmac_f32 v37, v{c+1}, v{g+1}
v_fmac_f32 v38, v{c+2}, v{g+2}
v_fmac_f32 v39, v{c+3}, v{g+3}
v_cvt_pk_bf16_f32 v{x}, v36, v37
v_cvt_pk_bf16_f32 v{x+1}, v38, v39
buffer_store_dwordx2 v[{x}:{x+1}], v14, s[16:19], s26 offen offset:{32*mt}""")
    a("@stamp\n@dump 12\nK5_end:\ns_endpgm")
    return ('k5_kernel', (256,1,1), (512,1,1), NS*SLOT, kd_block('k5_kernel', 164, 96))

def poll(a, name, vaddr, vtmp, soff, target=1):
    a(f"""s_mov_b32 s46, 0x40000
{name}:
buffer_load_dword v{vtmp}, v{vaddr}, s[12:15], {soff} offen sc1
s_waitcnt vmcnt(0)
v_cmp_ne_u32 vcc, {target}, v{vtmp}
s_nop 1
s_cmp_eq_u64 vcc, 0
s_cbranch_scc1 {name}_ok
s_sleep {SLP}
s_sub_u32 s46, s46, 1
s_cmp_lg_u32 s46, 0
s_cbranch_scc1 {name}
{name}_ok:""")
def kf(a):
    head(a, 'k3_kernel')
    R2 = 98304
    TB = R2; ZB = R2 + 12288; ZR = 528; ZC = 8*ZR; PB = ZB + 5*ZC
    NST = 20; WS_ = 12288; HB = R2; HS = 16384
    NS2 = 24; DW = 10240; NWD = 16
    ORDER = [5, 6, 13,  7, 8, 14, 15,  0, 1, 9, 10,  2, 3, 4, 11, 12]
    EARLY = {7: 3, 8: 4, 9: 4}
    WPOS = lambda s: ORDER[s % NWD]
    CB = [3, 7, 15, 19]
    NEXTCB = {3: 7, 7: 15, 15: 19, 19: 23}
    SC = 'sc1' if 'nosc' not in OPT else ''
    SST = '' if 'stplain' in OPT else 'sc1'
    FST = '' if 'flplain' in OPT else 'sc1'
    FEX = '0xffff' if 'fl64' in OPT else '1'
    WSC = 'sc1' if 'wsc1' in OPT else ('nt' if 'wnt' in OPT else '')
    a(f"""
s_cmp_ge_u32 s2, 256
s_cbranch_scc1 KF_end
@stamp
s_load_dwordx2 s[4:5], s[0:1], 0
s_load_dwordx2 s[6:7], s[0:1], 88
s_load_dwordx4 s[56:59], s[0:1], 32
s_load_dwordx2 s[60:61], s[0:1], 72
s_and_b32 s50, s2, 7
s_lshr_b32 s51, s2, 3
s_lshl_b32 s50, s50, 1
s_lshr_b32 s21, s51, 4
s_add_u32 s50, s50, s21
s_and_b32 s51, s51, 15
v_lshrrev_b32 v4, 6, v0
v_and_b32 v1, 63, v0
v_readfirstlane_b32 s22, v4
s_cmp_ge_u32 s22, 8
s_cbranch_scc1 KF_prod
s_lshl_b32 s3, s50, 1
s_lshr_b32 s21, s51, 3
s_add_u32 s3, s3, s21
s_and_b32 s20, s51, 7
v_and_b32 v3, 31, v0
v_lshlrev_b32 v2, 3, v3
v_bfe_u32 v4, v0, 5, 1
v_lshl_add_u32 v2, v4, 8, v2
v_lshlrev_b32 v3, 2, v3
v_lshl_add_u32 v3, v4, 1, v3
v_and_b32 v5, 15, v0
v_bfe_u32 v6, v0, 4, 2""")
    col_slots(a, 22, 5, 6, 8, 22)
    a(f"""
s_lshl_b32 s23, s3, 8
s_lshl_b32 s21, s20, 5
s_add_u32 s23, s23, s21
s_add_u32 s23, s23, {YF}
s_lshl_b32 s21, s20, 3
s_add_u32 s21, s21, s22
s_lshl_b32 s24, s3, 6
s_add_u32 s24, s24, s21
s_lshl_b32 s47, s24, 2
s_lshl_b32 s21, s21, 5
s_add_u32 s21, s21, s3
s_mul_i32 s21, s21, 1280
s_mul_i32 s24, s24, 1280
v_lshlrev_b32 v4, 4, v1
s_lshl_b32 s25, s22, 10
s_add_u32 m0, s25, {PB}
s_add_u32 s25, s25, 5120
s_waitcnt lgkmcnt(0)
""")
    srd(a, 8, 4, 2048*1280)
    srd(a, 12, 6, WS_SIZE)
    a(f"""buffer_load_dwordx4 {Q(28)}, v11, s[12:15], s23 offen
buffer_load_dwordx4 {Q(32)}, v13, s[12:15], s23 offen
buffer_load_dwordx4 v4, s[12:15], s25 offen lds""")
    for k in range(3):
        a(f"buffer_load_dwordx2 {P(16+2*k)}, v2, s[8:11], s21 offen offset:{512*k}")
    w5_consts(a, 88, 22, 1.0)
    a(f"""
s_lshl_b32 s27, s22, 4
v_add_u32 v22, s27, v5
v_cvt_f32_u32 v22, v22
v_mul_f32 v22, {fh(1/128)}, v22
v_and_b32 v23, 1, v6
v_cvt_f32_u32 v23, v23
v_mul_f32 v23, 4.0, v23
v_lshrrev_b32 v24, 1, v6
v_cvt_f32_u32 v24, v24
v_mul_f32 v24, {fh(0.25)}, v24
v_fma_f32 v23, v23, v22, v24
v_mul_f32 v24, {fh(5.0)}, v22
v_mul_f32 v27, {fh(64.0)}, v22
v_cmp_eq_u32 vcc, 2, v6
v_cndmask_b32 v27, v23, v27, vcc
""")
    for t in range(4):
        for jj in range(4):
            a(f"""v_cos_f32 v25, v{27 if (t, jj) == (0, 0) else 23}
v_add_f32 v23, v23, v22
v_cos_f32 v26, v23
v_add_f32 v23, v23, v{24 if jj & 1 else 22}
v_cvt_pk_bf16_f32 v{96+4*t+jj}, v25, v26""")
    a(f"""
v_lshlrev_b32 v14, 5, v5
v_lshl_add_u32 v14, v6, 3, v14
s_lshl_b32 s27, s22, 9
s_add_u32 s27, s27, {TB}
v_add_u32 v14, s27, v14
v_and_b32 v15, 4096, v9
v_add_u32 v15, v15, v14
v_xor_b32 v112, 4096, v15
v_lshlrev_b32 v113, 3, v1
v_add_u32 v113, {TB}, v113
v_and_b32 v22, 7, v5
v_mul_u32_u24 v22, {ZR}, v22
v_lshl_add_u32 v22, v6, 4, v22
s_lshl_b32 s27, s22, 6
s_add_u32 s27, s27, {ZB}
v_add_u32 v115, s27, v22
v_lshrrev_b32 v22, 3, v5
v_mul_u32_u24 v22, {2*ZC}, v22
v_add_u32 v114, v115, v22
v_lshlrev_b32 v4, 2, v3
s_mul_i32 s27, s22, {ZR}
s_add_u32 s27, s27, {ZB}
v_add_u32 v7, s27, v4
v_add_u32 v4, {PB}, v4
v_and_b32 v22, 0x80000000, v9
v_xor_b32 v22, v22, v10
v_and_b32 v23, 0x80008000, v9
v_xor_b32 v24, v23, v12
""")
    r5_sconsts(a)
    a(f"""s_waitcnt vmcnt(4)
s_barrier
@stamp
v_cndmask_b32 v32, v32, v34, s[42:43]
v_cndmask_b32 v33, v33, v35, s[42:43]
v_xor_b32 v26, v30, v24
v_xor_b32 v27, v31, v24
v_xor_b32 v30, v30, v12
v_xor_b32 v31, v31, v12
ds_write_b64 v14, {P(32)} offset:8192""")
    for hh in range(2):
        a(f"""v_lshlrev_b32 v{36+2*hh}, 16, v{28+hh}
v_and_b32 v{37+2*hh}, 0xffff0000, v{28+hh}
v_lshlrev_b32 v{40+2*hh}, 16, v{30+hh}
v_and_b32 v{41+2*hh}, 0xffff0000, v{30+hh}
v_lshlrev_b32 v{44+2*hh}, 16, v{28+hh}
v_and_b32 v{45+2*hh}, 0xffff0000, v{28+hh}
v_lshlrev_b32 v{48+2*hh}, 16, v{26+hh}
v_and_b32 v{49+2*hh}, 0xffff0000, v{26+hh}""")
    for i in range(4):
        a(f"v_fmac_f32_dpp v{44+i}, v{36+i}, v22 row_ror:8 {DPP}")
        a(f"v_fmac_f32_dpp v{48+i}, v{40+i}, v10 row_ror:8 {DPP}")
    a(f"""v_cvt_pk_bf16_f32 v52, v44, v45
v_cvt_pk_bf16_f32 v53, v46, v47
v_cvt_pk_bf16_f32 v54, v48, v49
v_cvt_pk_bf16_f32 v55, v50, v51
ds_write_b64 v15, {P(52)}
ds_write_b64 v112, {P(54)}
s_waitcnt vmcnt(3) lgkmcnt(0)
s_barrier
@stamp""")
    for T in range(3):
        for t in range(4):
            for x in range(2):
                a(f"ds_read_b64_tr_b16 {P(28+16*T+4*t+2*x)}, v113 offset:{4096*T+1024*t+512*x}")
            if T == 1 and t == 3:
                a("s_waitcnt lgkmcnt(8)")
                for tt in range(4): a(f"v_mfma_f32_16x16x32_bf16 {Q(76)}, {Q(96+4*tt)}, {Q(28+4*tt)}, {'0' if tt == 0 else Q(76)}")
    for T in (1, 2):
        a(f"s_waitcnt lgkmcnt({8 if T == 1 else 0})")
        for t in range(4): a(f"v_mfma_f32_16x16x32_bf16 {Q(76+4*T)}, {Q(96+4*t)}, {Q(28+16*T+4*t)}, {'0' if t == 0 else Q(76+4*T)}")
    for j in range(5):
        a(f"ds_read_b64 {P(116+2*j)}, v4 offset:{512*j}")
    a(f"""ds_write_b128 v114, {Q(76)} offset:{ZC}
ds_write_b128 v114, {Q(80)} offset:{2*ZC}
ds_write_b128 v115, {Q(84)}
s_waitcnt vmcnt(0)""")
    unpack_x(a, 16, 28)
    a("s_waitcnt lgkmcnt(0)\ns_barrier\n@stamp")
    for c in range(5): a(f"ds_read_b64 {P(40+2*c)}, v7 offset:{ZC*c}")
    for j in range(5):
        a(f"ds_read_b64 {P(136+2*j)}, v4 offset:{5120+512*j}\nds_read_b64 {P(126+2*j)}, v4 offset:{2560+512*j}")
    a("s_waitcnt lgkmcnt(10)")
    for k in range(2):
        r, im = 42+4*k, 44+4*k; c, s = 88+4*k, 90+4*k; R, I = 50+4*k, 52+4*k
        a(f"""v_pk_mul_f32 {P(R)}, {P(r)}, {P(c)}
v_pk_mul_f32 {P(I)}, {P(r)}, {P(s)}
v_pk_fma_f32 {P(R)}, {P(im)}, {P(s)}, {P(R)} neg_lo:[1,0,0] neg_hi:[1,0,0]
v_pk_fma_f32 {P(I)}, {P(im)}, {P(c)}, {P(I)}""")
    z0,z1r,z1i,z2r,z2i = 40,50,52,54,56
    A,B,Cc,Dd,E = 58,60,62,64,66
    sl = {(3*j) % 5: j for j in range(5)}
    X = lambda d2: P(28+2*sl[d2]); G = lambda d2: P(116+2*sl[d2])
    a(f"""v_pk_add_f32 {P(E)}, {P(z0)}, {P(z1r)}
v_pk_fma_f32 {P(A)}, s[30:31], {P(z1r)}, {P(z0)}
v_pk_fma_f32 {P(B)}, s[32:33], {P(z1r)}, {P(z0)}
v_pk_mul_f32 {P(Cc)}, s[34:35], {P(z1i)}
v_pk_mul_f32 {P(Dd)}, s[36:37], {P(z1i)}
v_pk_add_f32 {P(E)}, {P(E)}, {P(z2r)}
v_pk_fma_f32 {P(A)}, s[32:33], {P(z2r)}, {P(A)}
v_pk_fma_f32 {P(B)}, s[30:31], {P(z2r)}, {P(B)}
v_pk_fma_f32 {P(Cc)}, s[36:37], {P(z2i)}, {P(Cc)}
v_pk_fma_f32 {P(Dd)}, s[34:35], {P(z2i)}, {P(Dd)} neg_lo:[0,1,0] neg_hi:[0,1,0]
v_pk_fma_f32 {X(0)}, {G(0)}, {P(E)}, {X(0)}
v_pk_add_f32 {P(68)}, {P(A)}, {P(Cc)} neg_lo:[0,1] neg_hi:[0,1]
v_pk_add_f32 {P(70)}, {P(A)}, {P(Cc)}
v_pk_add_f32 {P(72)}, {P(B)}, {P(Dd)} neg_lo:[0,1] neg_hi:[0,1]
v_pk_add_f32 {P(74)}, {P(B)}, {P(Dd)}
v_pk_fma_f32 {X(1)}, {G(1)}, {P(68)}, {X(1)}
v_pk_fma_f32 {X(4)}, {G(4)}, {P(70)}, {X(4)}
v_pk_fma_f32 {X(2)}, {G(2)}, {P(72)}, {X(2)}
v_pk_fma_f32 {X(3)}, {G(3)}, {P(74)}, {X(3)}
s_add_u32 s25, s24, {X1}
s_add_u32 s26, s24, {H2F}""")
    for j in range(5): a(f"v_cvt_pk_bf16_f32 v{16+j}, v{28+2*j}, v{29+2*j}")
    a(f"""v_permlane32_swap_b32 v16, v17
v_permlane32_swap_b32 v18, v19
buffer_store_dwordx2 {P(16)}, v2, s[12:15], s25 offen {SST}
buffer_store_dwordx2 {P(18)}, v2, s[12:15], s25 offen offset:512 {SST}
s_waitcnt lgkmcnt(0)
s_barrier""")
    ln_rows(a, 28, 22)
    a(f"""v_bfe_u32 v24, v0, 5, 1
v_mul_u32_u24 v24, {H2F - X1 - 256}, v24
v_add_u32 v24, v24, v2""")
    for j in range(5): a(f"v_pk_mul_f32 {P(136+2*j)}, {P(136+2*j)}, {P(22)} op_sel_hi:[1,0]")
    for j in range(5): a(f"v_pk_fma_f32 {P(28+2*j)}, {P(28+2*j)}, {P(136+2*j)}, {P(126+2*j)}")
    for j in range(4): a(f"v_cvt_pk_bf16_f32 v{40+j}, v{28+2*j}, v{29+2*j}")
    a(f"""v_cvt_pk_bf16_f32 v21, v36, v37
v_permlane32_swap_b32 v40, v41
v_permlane32_swap_b32 v42, v43
v_permlane32_swap_b32 v20, v21
buffer_store_dwordx2 {P(40)}, v2, s[12:15], s26 offen {SST}
buffer_store_dwordx2 {P(42)}, v2, s[12:15], s26 offen offset:512 {SST}
buffer_store_dwordx2 {P(20)}, v24, s[12:15], s25 offen offset:1024 {SST}
@stamp""")
    a(f"""v_mov_b32 v2, v1
s_lshr_b32 s26, s22, 2
s_and_b32 s27, s22, 3
v_lshrrev_b32 v3, 4, v2
v_bfe_u32 v4, v2, 2, 2
v_lshl_add_u32 v4, v3, 3, v4
v_mul_u32_u24 v4, 192, v4
v_and_b32 v5, 3, v2
v_lshl_add_u32 v4, v5, 3, v4
v_and_b32 v5, 1, v3
v_lshlrev_b32 v5, 5, v5
s_mul_i32 s28, s26, 96
v_add_u32 v4, s28, v4
s_cmp_eq_u32 s26, 0
s_cselect_b32 s29, 1, -1
v_mul_lo_u32 v5, v5, s29
v_add_u32 v6, v4, v5
v_sub_u32 v7, v4, v5
v_add_u32 v8, {4*WS_}, v6
v_add_u32 v9, {4*WS_}, v7
v_and_b32 v10, 15, v2
v_lshrrev_b32 v11, 1, v10
v_xor_b32 v11, v11, v3
v_lshlrev_b32 v11, 4, v11
v_lshl_add_u32 v11, v10, 7, v11
s_lshl_b32 s28, s27, 12
s_add_u32 s28, s28, {HB}
v_add_u32 v11, s28, v11
v_xor_b32 v12, 64, v11
s_add_u32 s47, s47, {FLG}
v_mov_b32 v13, 1
v_mov_b32 v14, 0
s_waitcnt vmcnt(0)
@stamp""")
    a("s_barrier")
    ACC = lambda mat, i, nt: 16 + 4*(6*nt + 3*mat + i)
    FA = lambda buf, mat, i: 64 + 32*buf + 4*(3*mat+i)
    FB = lambda buf, nt: 88 + 32*buf + 4*nt
    def reads(s):
        L = []; sl = s % 8
        for nt in range(2):
            L.append(f"ds_read_b128 {Q(FB(s & 1, nt))}, v{11 + (s & 1)} offset:{((s//2) % 4)*HS + 2048*nt}")
        for mat in range(2):
            for i in range(3):
                for x in range(2):
                    L.append(f"ds_read_b64_tr_b16 {P(FA(s & 1, mat, i) + 2*x)}, v{6 + (i & 1) + 2*(sl//4)} offset:{(sl % 4)*WS_ + mat*6144 + 4*x*192 + 32*i}")
        return L
    a("s_barrier\n@stamp")
    for l in reads(0): a(l)
    for s in range(NST):
        a("s_waitcnt lgkmcnt(0)")
        if s & 1: a("s_barrier")
        R = reads(s+1) if s+1 < NST else []
        k = 0
        for mat in range(2):
            for i in range(3):
                for nt in range(2):
                    c = ACC(mat, i, nt)
                    a(f"v_mfma_f32_16x16x32_bf16 {Q(c)}, {Q(FA(s & 1, mat, i))}, {Q(FB(s & 1, nt))}, {'0' if s == 0 else Q(c)}")
                    for l in R[2*k:2*k+2]: a(l)
                    k += 1
    a("@stamp")
    kk = 2*0.7978845608028654*math.log2(math.e)
    a(f"""s_mov_b32 s30, {fh(-kk*0.044715)}
s_mov_b32 s31, {fh(-kk*0.044715)}
v_mov_b32 v10, {fh(-kk)}
v_mov_b32 v11, {fh(-kk)}
s_lshl_b32 s29, s50, 3
s_lshl_b32 s28, s27, 1
s_add_u32 s29, s29, s28
s_mul_i32 s29, s29, 49152
s_mul_i32 s28, s51, 3072
s_add_u32 s29, s29, s28
s_mul_i32 s28, s26, 1536
s_add_u32 s29, s29, s28
s_add_u32 s29, s29, {HIDF}
v_bfe_u32 v7, v2, 4, 1
v_mul_u32_u24 v7, 49152, v7
v_lshrrev_b32 v8, 5, v2
v_lshl_add_u32 v7, v8, 8, v7
v_and_b32 v8, 15, v2
v_lshl_add_u32 v7, v8, 4, v7""")
    for nt in range(2):
        Gt = ACC(0, 0, nt); U = ACC(1, 0, nt); T = 64 + 16*nt
        for i in range(0, 12, 2): a(f"v_pk_mul_f32 {P(T+i)}, {P(Gt+i)}, {P(Gt+i)}")
        for i in range(0, 12, 2): a(f"v_pk_fma_f32 {P(T+i)}, {P(T+i)}, s[30:31], {P(10)}")
        for i in range(0, 12, 2): a(f"v_pk_mul_f32 {P(T+i)}, {P(T+i)}, {P(Gt+i)}")
        for i in range(0, 12, 2): a(f"v_exp_f32 v{T+i}, v{T+i}\nv_exp_f32 v{T+i+1}, v{T+i+1}\nv_pk_mul_f32 {P(Gt+i)}, {P(Gt+i)}, {P(U+i)}")
        for i in range(0, 12, 2): a(f"v_pk_add_f32 {P(T+i)}, {P(T+i)}, 1.0 op_sel_hi:[1,0]")
        for i in range(12): a(f"v_rcp_f32 v{T+i}, v{T+i}")
        for i in range(0, 12, 2): a(f"v_pk_mul_f32 {P(Gt+i)}, {P(Gt+i)}, {P(T+i)}")
        for i in range(3):
            O = 96 + 4*i + 2*nt
            a(f"v_cvt_pk_bf16_f32 v{O}, v{Gt+4*i}, v{Gt+4*i+1}\nv_cvt_pk_bf16_f32 v{O+1}, v{Gt+4*i+2}, v{Gt+4*i+3}")
    for i in range(3):
        O = 96 + 4*i
        a(f"""v_permlane16_swap_b32 v{O}, v{O+2}
v_permlane16_swap_b32 v{O+1}, v{O+3}
buffer_store_dwordx4 {Q(O)}, v7, s[12:15], s29 offen offset:{512*i} {SST}""")
    a(f"""@stamp
s_lshl_b32 s30, s50, 3
s_lshr_b32 s28, s51, 3
s_lshl_b32 s28, s28, 2
s_add_u32 s30, s30, s28
s_add_u32 s30, s30, s27
s_mul_i32 s29, s30, 49152
s_lshl_b32 s28, s26, 10
s_add_u32 s29, s29, s28
s_add_u32 s29, s29, {HIDF}
s_lshl_b32 s30, s30, 4
s_and_b32 s24, s51, 7
v_lshrrev_b32 v3, 2, v2
v_mul_u32_u24 v3, 160, v3
v_and_b32 v4, 3, v2
v_lshl_add_u32 v3, v4, 3, v3
s_mul_i32 s28, s26, 5120
v_add_u32 v3, s28, v3
v_add_u32 v4, {6*DW}, v3
v_add_u32 v5, {12*DW}, v3
v_lshlrev_b32 v6, 4, v2
v_and_b32 v12, 15, v2
v_lshrrev_b32 v13, 4, v2
v_mul_u32_u24 v8, 1280, v12
v_lshl_add_u32 v8, v13, 3, v8
s_mul_i32 s23, s30, 1280
s_mul_i32 s25, s24, 160
s_add_u32 s23, s23, s25
s_add_u32 s23, s23, {X1}
v_lshlrev_b32 v15, 4, v13
s_lshl_b32 s28, s25, 1
s_add_u32 s28, s28, 12800
s_lshl_b32 s21, s26, 6
s_add_u32 s23, s23, s21
s_lshl_b32 s21, s26, 7
s_add_u32 s28, s28, s21
s_waitcnt vmcnt(0)
@stamp
s_barrier""")
    srd(a, 16, 60, 2048*1280)
    AC2 = lambda mt: 16 + 4*mt
    FA2 = lambda buf, mt: 36 + 20*buf + 4*mt
    NB = 10
    FB2 = lambda s: 76 + 4*(s % NB)
    def reads2(s):
        p = WPOS(s)
        return [f"ds_read_b64_tr_b16 {P(FA2(s & 1, mt) + 2*x)}, v{3+p//6} offset:{(p % 6)*DW + x*2560 + 32*mt}" for mt in range(5) for x in range(2)]
    def ldb(s):
        a(f"buffer_load_dwordx4 {Q(FB2(s))}, v6, s[12:15], s29 offen offset:{2048*(s & 1)} {SC}")
        if s & 1: a("s_add_u32 s29, s29, 4096")
    a("s_barrier\n@stamp")
    nb = 0; nx = 0
    for s in range(NB-1): ldb(s); nb += 1
    for l in reads2(0): a(l)
    for s in range(NS2):
        a(f"s_waitcnt vmcnt({nb-s-1+nx}) lgkmcnt(0)")
        if s in CB: a("s_barrier")
        if nb < NS2: ldb(nb); nb += 1
        elif nx < 6:
            k = nx // 2
            a(f"buffer_load_dwordx2 {P(116+2*k)}, v8, s[12:15], s23 offen offset:{32*k} {SC}")
            a(f"buffer_load_dwordx4 {Q(128+4*k)}, v15, s[12:15], s28 offen offset:{64*k}")
            nx += 2
        R = reads2(s+1) if s+1 < NS2 else []
        for mt in range(5):
            c = AC2(mt)
            a(f"v_mfma_f32_16x16x32_bf16 {Q(c)}, {Q(FA2(s & 1, mt))}, {Q(FB2(s))}, {'0' if s == 0 else Q(c)}")
            for l in R[2*mt:2*mt+2]: a(l)
    RB = WPOS(10)*DW
    a(f"""@stamp
s_mul_i32 s28, s27, 5120
s_add_u32 s28, s28, {RB}
v_add_u32 v6, s28, v6
s_and_b32 s23, s30, 63
s_lshl_b32 s23, s23, 5
s_lshr_b32 s29, s30, 6
s_add_u32 s23, s23, s29
s_mul_i32 s23, s23, 1280
s_add_u32 s23, s23, s25
v_mul_u32_u24 v8, 40960, v12
v_lshl_add_u32 v8, v13, 3, v8
s_cmp_eq_u32 s26, 0
s_cbranch_scc1 KF_lo""")
    def fin(give, keep, base):
        for mt in give: a(f"ds_write_b128 v6, {Q(AC2(mt))} offset:{1024*mt}")
        a("s_waitcnt vmcnt(0)")
        for mt in keep:
            x = 116+2*(mt-base); r = 76+4*mt
            a(f"""v_lshlrev_b32 v{r}, 16, v{x}
v_and_b32 v{r+1}, 0xffff0000, v{x}
v_lshlrev_b32 v{r+2}, 16, v{x+1}
v_and_b32 v{r+3}, 0xffff0000, v{x+1}""")
        a("s_waitcnt lgkmcnt(0)\ns_barrier")
        for mt in keep: a(f"ds_read_b128 {Q(36+4*mt)}, v6 offset:{1024*mt}")
        for n, mt in enumerate(keep):
            c = AC2(mt); x = 116+2*(mt-base); g = 128+4*(mt-base); r = 36+4*mt; o = 76+4*mt
            a(f"""s_waitcnt lgkmcnt({len(keep)-1-n})
v_pk_add_f32 {P(c)}, {P(c)}, {P(r)}
v_pk_add_f32 {P(c+2)}, {P(c+2)}, {P(r+2)}
v_pk_fma_f32 {P(o)}, {P(c)}, {P(g)}, {P(o)}
v_pk_fma_f32 {P(o+2)}, {P(c+2)}, {P(g+2)}, {P(o+2)}
v_cvt_pk_bf16_f32 v{x}, v{o}, v{o+1}
v_cvt_pk_bf16_f32 v{x+1}, v{o+2}, v{o+3}
buffer_store_dwordx2 {P(x)}, v8, s[16:19], s23 offen offset:{32*mt}""")
        a("@dump 12\ns_endpgm")
    nst = a.st.n
    fin([0,1,2], [3,4], 2)
    a.st.n = nst
    a("KF_lo:")
    fin([3,4], [0,1,2], 0)
    a.st.n = 1
    a("KF_prod:\ns_sub_u32 s25, s22, 8\nv_mov_b32 v2, v1")
    for q in range(3):
        a(f"""v_add_u32 v10, {64*q}, v2
v_mul_u32_u24 v11, 43691, v10
v_lshrrev_b32 v11, 19, v11
v_mul_u32_u24 v12, 12, v11
v_sub_u32 v12, v10, v12
v_lshrrev_b32 v13, 2, v11
v_and_b32 v13, 2, v13
v_xor_b32 v12, v12, v13
v_mul_u32_u24 v11, 3072, v11
v_lshl_add_u32 v11, v12, 4, v11
v_subrev_u32 v{3+q}, {1024*q}, v11""")
    for q in range(4):
        a(f"""v_lshrrev_b32 v10, 4, v2
v_add_u32 v10, {4*q}, v10
v_xor_b32 v10, v10, v2
v_and_b32 v10, 7, v10
v_lshrrev_b32 v11, 3, v2
v_mul_u32_u24 v11, 1280, v11
v_lshl_add_u32 v11, v10, 4, v11
v_add_u32 v{6+q}, {q*(10240-1024)}, v11""")
    a(f"""
s_and_b32 s26, s25, 1
s_mul_i32 s27, s26, {16*3072}
s_mul_i32 s28, s51, 192
s_add_u32 s27, s27, s28
s_mul_i32 s28, s25, 3072
s_lshl_b32 s29, s50, 2
s_add_u32 s29, s29, s25
s_lshl_b32 s47, s29, 7
s_add_u32 s47, s47, {FLG}
s_mul_i32 s29, s29, 40960
s_add_u32 s29, s29, {H2F}
s_lshl_b32 s30, s25, 12
v_and_b32 v10, 31, v2
v_lshlrev_b32 v10, 2, v10
s_waitcnt lgkmcnt(0)
s_cmp_lt_u32 s25, 2
s_cselect_b32 s8, s56, s58
s_cselect_b32 s9, s57, s59
s_mov_b32 s10, {640*3072}
s_mov_b32 s11, 0x00020000
""")
    srd(a, 12, 6, WS_SIZE)
    def iw(s):
        a(f"s_add_u32 m0, s28, {(s % 8)*WS_}")
        for q in range(3):
            a(f"buffer_load_dwordx4 v{3+q}, s[8:11], s27 offen offset:{1024*q} {WSC} lds")
        a(f"s_add_u32 s27, s27, {32*3072}")
    def ih(d):
        a(f"s_add_u32 m0, s30, {HB + (d % 4)*HS}")
        for q in range(4):
            a(f"buffer_load_dwordx4 v{6+q}, s[12:15], s29 offen offset:{1024*q} {SC} lds")
        a("s_add_u32 s29, s29, 128")
    a("s_barrier")
    for s in range(0, 3): iw(s)
    a("@stamp\ns_barrier")
    for s in range(3, 6): iw(s)
    a("s_barrier")
    for s in range(6, 8): iw(s)
    a("s_barrier\n@stamp")
    a(f"""v_lshlrev_b32 v10, 2, v2
v_mov_b32 v12, 1
s_lshl_b32 s48, s50, 4
s_add_u32 s48, s48, s51
s_lshl_b32 s48, s48, 7
s_add_u32 s48, s48, {FLG}
s_lshl_b32 s47, s50, 2
s_add_u32 s47, s47, s25
s_lshl_b32 s47, s47, 9
s_add_u32 s47, s47, {FLG}
v_and_b32 v14, 3, v2
v_lshlrev_b32 v14, 7, v14
v_and_b32 v15, 15, v2
v_lshlrev_b32 v15, 7, v15
s_and_b32 s24, s51, 7
s_mul_i32 s31, s25, 2560
s_mul_i32 s32, s24, {1536*160}
s_add_u32 s32, s32, s31
s_add_u32 s32, s32, {WDT}
v_lshlrev_b32 v13, 4, v2
s_barrier
s_cmp_lg_u32 s25, 0
s_cbranch_scc1 KF_na1
s_mov_b64 exec, {FEX}
buffer_store_dword v12, v10, s[12:15], s48 offen {FST}
s_mov_b64 exec, -1
KF_na1:""")
    poll(a, 'KF_p1', 14, 11, 's47', 1)
    a("@stamp")
    cnt = []
    def iw2(s):
        a(f"s_add_u32 m0, s31, {WPOS(s)*DW}")
        a(f"buffer_load_dwordx4 v13, s[12:15], s32 offen {WSC} lds")
        a(f"buffer_load_dwordx4 v13, s[12:15], s32 offen offset:1024 {WSC} lds")
        a("s_mov_b32 exec_hi, 0")
        a(f"buffer_load_dwordx4 v13, s[12:15], s32 offen offset:2048 {WSC} lds")
        a("s_mov_b32 exec_hi, -1")
        a("s_add_u32 s32, s32, 10240")
    def grp(d):
        ih(d); n = 4
        if d >= 4:
            iw(2*d); iw(2*d+1); n += 6
        cnt.append(n)
    for d in range(4): grp(d)
    nw2 = 0
    for d in range(10):
        a(f"s_waitcnt vmcnt({sum(cnt[d+1:])})\ns_barrier")
        if d >= 1 and d+3 < 10: grp(d+3)
        if d >= 7:
            for _ in range(EARLY[d]): iw2(nw2); nw2 += 1
            cnt.append(3*EARLY[d])
    a("@stamp\ns_barrier")
    while nw2 < NWD: iw2(nw2); nw2 += 1
    a(f"""@stamp
s_lshl_b32 s47, s50, 11
s_add_u32 s47, s47, {FLG + 32768}
s_add_u32 s48, s48, 32768
s_barrier
s_cmp_eq_u32 s25, 1
s_cbranch_scc0 KF_nb2
s_mov_b64 exec, {FEX}
buffer_store_dword v12, v10, s[12:15], s48 offen {FST}
s_mov_b64 exec, -1
KF_nb2:
s_cmp_lg_u32 s25, 0
s_cbranch_scc1 KF_na2""")
    poll(a, 'KF_p2', 15, 11, 's47', 1)
    a("KF_na2:\n@stamp\ns_waitcnt vmcnt(0)\ns_barrier")
    pend = []
    for s in CB:
        need = [t for t in pend if t <= NEXTCB[s]]
        a(f"s_waitcnt vmcnt({3*(len(pend)-len(need))})\ns_barrier")
        pend = [t for t in pend if t not in need]
        while nw2 < NS2 and nw2 - NWD <= s:
            iw2(nw2); pend.append(nw2); nw2 += 1
    a("@stamp\n@dump 12\nKF_end:\ns_endpgm")
    return ('k3_kernel', (256,1,1), (768,1,1), 163840, kd_block('k3_kernel', 148, 100))

def build(kernels, path):
    a = Asm2(); infos = []
    for k in kernels:
        infos.append(k(a))
    if 'k4twice' in OPT: infos.insert(4, infos[4][:4] + ('',))
    if 'empty4' in OPT:
        for i in range(4):
            a(f".globl e{i}_kernel\n.p2align 8\n.type e{i}_kernel,@function\ne{i}_kernel:\ns_endpgm")
            infos.append((f'e{i}_kernel', (256,1,1), (256,1,1), 0, kd_block(f'e{i}_kernel', 8, 16)))
    a("CODE_END:\ns_endpgm")
    hdr = open('adaLN_cond__spectral_gfnet__glu_gated_geglu__prompt.s.ref').read().split('\n')[:13]
    s = '\n'.join(hdr) + '\n'
    for n, g, b, l, _ in infos:
        s += f"; @launch kernel={n} grid=({g[0]},{g[1]},{g[2]}) block=({b[0]},{b[1]},{b[2]}) lds={l}\n"
    s += '.amdgcn_target "amdgcn-amd-amdhsa--gfx950"\n.text\n' + a.text() + '.section .rodata,"a"\n'
    for i in infos: s += i[4]
    open(path, 'w').write(s)
if __name__ == '__main__':
    args = sys.argv[1:]
    out = 'cur.s'
    for x in args:
        if x == 'stamp': STAMPS = True
        elif x.endswith('.s'): out = x
        elif x.startswith('slp'): SLP = int(x[3:])
        elif x.startswith('tsh'): TLBSH = int(x[3:])
        else: OPT.add(x)
    build([k0, k1, k2, k3, k4, k5] if 'unfused' in OPT else [k0, k1, k2, kf], out)
```

```python
import sys, math, struct
sys.path.insert(0,'work')
from asmlib import *
def f2u(x): return struct.unpack('<I', struct.pack('<f', x))[0]
def fh(x): return '0x%08x' % f2u(x)
MOD=0; XF=0x100000; YF=0x400000; WP=0x700000; X1=0xA00000; H2F=0xD00000; HIDF=0x1000000; WDT=0x1C00000; FLG=0x10000; WS_SIZE=0x1E00000
DPP='row_mask:0xf bank_mask:0xf'

STAMPS = False
SLP = 4
TLBSH = 16
RPG = 2
OPT = set()
DBG = 0x1640000
class Stamper:
    def __init__(self, a, kid): self.a=a; self.kid=kid; self.n=0
    def __call__(self):
        if not STAMPS: return
        if self.n == 0: self.a("s_memtime s[64:65]")
        self.a(f"s_memrealtime s[{70+2*self.n}:{71+2*self.n}]"); self.n += 1
    def dump(self, srd_ws, wgreg='s2', drain=True):
        if not STAMPS: return
        a = self.a
        if drain:
            a("s_waitcnt vmcnt(0)"); self()
        a(f"""s_memtime s[66:67]
s_waitcnt lgkmcnt(0)
s_sub_u32 s66, {'s62' if ('g1cyc' in OPT and self.kid == 3) else 's66'}, s64
s_mov_b64 exec, 1
v_lshrrev_b32 v1, 6, v0
v_lshlrev_b32 v1, 6, v1
s_lshl_b32 s68, {wgreg}, 10
s_add_u32 s68, s68, {DBG + self.kid*0x80000}""")
        a(f"v_mov_b32 v2, s66\nbuffer_store_dword v2, v1, s[{srd_ws}:{srd_ws+3}], s68 offen offset:60")
        for k in range(self.n):
            a(f"v_mov_b32 v2, s{70+2*k}\nbuffer_store_dword v2, v1, s[{srd_ws}:{srd_ws+3}], s68 offen offset:{4*k}")
class Asm2(Asm):
    _u = 0
    def uid(self, inc=1):
        self._u += inc; return self._u
    def emit(self, line):
        if line == '@stamp': self.st(); return
        if line == '@k0exp':
            if 'k0small' in OPT:
                for l in ("s_and_b32 s3, s2, 7", "s_mul_i32 s3, s3, 10", "s_lshr_b32 s22, s2, 3", "s_add_u32 s3, s3, s22", "s_cmp_ge_u32 s2, 80", "s_cbranch_scc1 K0_end"): Asm.emit(self, l)
            return
        if 'noload' in OPT and line.endswith(' lds'): return
        if 'nowload' in OPT and line.endswith(' lds') and 's[8:11]' in line: return
        if 'nohload' in OPT and line.endswith(' lds') and 's[12:15]' in line: return
        if line.startswith('@dump'):
            p = line.split(); self.st.dump(int(p[1]), p[2] if len(p) > 2 else 's2'); return
        Asm.emit(self, line)
def head(a, name):
    a.st = Stamper(a, int(name[1]))
    a(f""".globl {name}
.p2align 8
.type {name},@function
{name}:""")
def srd(a, d, p, size):
    a(f"""s_mov_b32 s{d}, s{p}
s_mov_b32 s{d+1}, s{p+1}
s_mov_b32 s{d+2}, {size}
s_mov_b32 s{d+3}, 0x00020000""")

def P(r): return f"v[{r}:{r+1}]"
def Q(r): return f"v[{r}:{r+3}]"
def wprep(a, sT, pr, pi, ws, sc):
    a(f"""s_movk_i32 s46, 640
s_and_b32 s28, s{sT}, 31
s_lshr_b32 s29, s{sT}, 5
s_and_b32 s30, s28, 3
s_lshl_b32 s31, s30, 4
s_lshl_b32 s30, s30, 11
s_bfe_u32 s23, s28, 0x10002
s_lshl_b32 s23, s23, 10
s_add_u32 s31, s31, s23
s_add_u32 s30, s30, s23
s_lshr_b32 s23, s28, 3
s_lshl_b32 s23, s23, 8
s_add_u32 s31, s31, s23
s_add_u32 s30, s30, s23
s_mul_i32 s31, s31, 642
s_lshl_b32 s28, s29, 5
s_min_u32 s28, s28, 314
s_lshl_b32 s23, s28, 1
s_add_u32 s31, s31, s23
s_lshl_b32 s23, s28, 13
s_add_u32 s30, s30, s23
s_add_u32 s30, s30, {WP}
v_and_b32 v1, 15, v0
v_bfe_u32 v2, v0, 4, 2
v_and_b32 v3, 7, v0
v_bfe_u32 v5, v0, 3, 1
v_mul_u32_u24 v3, 1284, v3
v_mad_u32_u24 v3, v5, s46, v3
v_lshl_add_u32 v3, v2, 4, v3
v_lshlrev_b32 v4, 4, v1
v_lshl_add_u32 v4, v2, 16, v4
v_xor_b32 v5, 1, v5
v_lshl_add_u32 v4, v5, 13, v4
s_sub_u32 s30, s30, 8192
s_mov_b32 s8, s{pr}
s_mov_b32 s9, s{pr+1}
s_mov_b32 s10, {2048*642}
s_mov_b32 s11, 0x00020000
s_mov_b32 s24, s{pi}
s_mov_b32 s25, s{pi+1}
s_mov_b32 s26, {2048*642}
s_mov_b32 s27, 0x00020000
s_cmp_eq_u32 s29, 10
s_cselect_b64 exec, 0xffff, -1""")
    for i in range(4):
        a(f"buffer_load_dwordx4 {Q(8+4*i)}, v3, s[8:11], s31 offen\nbuffer_load_dwordx4 {Q(24+4*i)}, v3, s[24:27], s31 offen")
        if i < 3: a("s_add_u32 s31, s31, 41088")
    a(f"""s_mov_b32 s28, 0x05040100
s_mov_b32 s23, 0x07060302
@stamp
s_waitcnt vmcnt(0)
@stamp""")
    for c in range(8):
        o = 40 + 4*(c & 1)
        for i in range(4):
            a(f"v_perm_b32 v{o+i}, v{24+4*i+c//2}, v{8+4*i+c//2}, s{23 if c & 1 else 28}")
        a(f"buffer_store_dwordx4 {Q(o)}, v4, s[{ws}:{ws+3}], s30 offen {sc}")
        if c < 7: a("s_add_u32 s30, s30, 8192")
    a("s_mov_b64 exec, -1")

def k0(a):
    head(a, 'k0_kernel')
    WPT = 1; NWP = 240 + 352//WPT
    NW0 = NWP + 56
    a(f"""
s_cmp_ge_u32 s2, {NW0}
s_cbranch_scc1 K0_end""")
    a(f"s_cmp_ge_u32 s2, {NWP}\ns_cbranch_scc1 K0_pf")
    a("""
@stamp
s_mov_b32 s69, s2
s_load_dwordx4 s[4:7], s[0:1], 56
s_load_dwordx2 s[20:21], s[0:1], 88
s_load_dwordx4 s[24:27], s[0:1], 8
s_cmp_ge_u32 s2, 240
s_cbranch_scc1 K0_wprep
v_readfirstlane_b32 s28, v0
s_cmp_ge_u32 s28, 320
s_cbranch_scc1 K0_end
s_and_b32 s3, s2, 7
s_mul_i32 s3, s3, 30
s_lshr_b32 s22, s2, 3
s_add_u32 s3, s3, s22
s_lshl_b32 s22, s3, 5
v_lshrrev_b32 v1, 1, v0
v_and_b32 v2, 1, v0
v_mul_u32_u24 v3, 7680, v1
v_lshl_add_u32 v3, v2, 4, v3
v_add_u32 v3, s22, v3
v_lshlrev_b32 v4, 1, v1
s_waitcnt lgkmcnt(0)
@stamp
""")
    srd(a, 8, 4, 1280)
    srd(a, 12, 6, 640*3840*2)
    srd(a, 16, 20, WS_SIZE)
    NR = 4
    for i in range(NR):
        a(f"buffer_load_short_d16_hi v{28+i}, v4, s[8:11], 0 offen offset:{320*i}")
    a("s_mov_b32 s23, 0")
    for i in range(NR):
        a(f"buffer_load_dwordx4 v[{8+4*i}:{11+4*i}], v3, s[12:15], s23 offen")
        if i < NR-1: a(f"s_add_u32 s23, s23, {160*7680}")
    a(f"s_waitcnt vmcnt({NR})")
    for i in range(NR): a(f"v_mul_f32 v{33+i}, {fh(-math.log2(math.e))}, v{28+i}")
    for i in range(NR): a(f"v_exp_f32 v{33+i}, v{33+i}")
    for i in range(NR): a(f"v_add_f32 v{33+i}, 1.0, v{33+i}")
    for i in range(NR): a(f"v_rcp_f32 v{33+i}, v{33+i}")
    for i in range(NR): a(f"v_mul_f32 v{28+i}, v{28+i}, v{33+i}")
    for i in range(NR): a(f"v_cvt_pk_bf16_f32 v{28+i}, v{28+i}, v{28+i}")
    for i in range(NR): a(f"v_and_b32 v{48+2*i}, 0xffff0000, v{28+i}")
    a("""v_and_b32 v5, 15, v0
v_lshrrev_b32 v6, 4, v0
v_lshlrev_b32 v7, 6, v6
v_lshl_add_u32 v7, v2, 5, v7""")
    for i in range(NR):
        a(f"s_waitcnt vmcnt({NR-1-i})")
        if i == NR-1: a("@stamp")
        for j in range(4):
            a(f"v_lshlrev_b32 v{32+2*j}, 16, v{8+4*i+j}\nv_and_b32 v{33+2*j}, 0xffff0000, v{8+4*i+j}")
        for j in range(4):
            if i == 0: a(f"v_pk_mul_f32 v[{40+2*j}:{41+2*j}], v[{32+2*j}:{33+2*j}], v[48:49] op_sel_hi:[1,0]")
            else: a(f"v_pk_fma_f32 v[{40+2*j}:{41+2*j}], v[{32+2*j}:{33+2*j}], v[{48+2*i}:{49+2*i}], v[{40+2*j}:{41+2*j}] op_sel_hi:[1,0,1]")
    for mode in ('quad_perm:[2,3,0,1]', 'row_ror:4', 'row_ror:8'):
        for j in range(8):
            a(f"v_add_f32_dpp v{40+j}, v{40+j}, v{40+j} {mode} {DPP}")
    a("""
v_cmp_gt_u32 vcc, 2, v5
s_and_saveexec_b64 s[24:25], vcc
ds_write_b128 v7, v[40:43]
ds_write_b128 v7, v[44:47] offset:16
s_mov_b64 exec, s[24:25]
s_waitcnt lgkmcnt(0)
s_barrier
s_cmp_ge_u32 s28, 64
s_cbranch_scc1 K0_end
v_mul_u32_u24 v7, 320, v6
v_lshl_add_u32 v7, v5, 2, v7
ds_read_b32 v8, v7
ds_read_b32 v9, v7 offset:64
ds_read_b32 v10, v7 offset:128
ds_read_b32 v11, v7 offset:192
ds_read_b32 v12, v7 offset:256
s_sub_u32 s24, s3, 40
s_cmp_lt_u32 s24, 40
s_cselect_b32 s25, 1.0, 0
s_sub_u32 s24, s3, 160
s_cmp_lt_u32 s24, 40
s_cselect_b32 s25, 1.0, s25
s_lshl_b32 s22, s3, 6
v_lshlrev_b32 v7, 2, v0
s_waitcnt lgkmcnt(0)
v_add_f32 v8, v8, v9
v_add_f32 v10, v10, v11
v_add_f32 v8, v8, v12
v_add_f32 v8, v8, v10
v_mov_b32 v9, v8
v_permlane16_swap_b32 v8, v9
v_add_f32 v8, v8, v9
v_mov_b32 v9, v8
v_permlane32_swap_b32 v8, v9
v_add_f32 v8, v8, v9
v_cvt_pk_bf16_f32 v8, v8, v8
v_and_b32 v8, 0xffff0000, v8
v_add_f32 v8, s25, v8
v_cvt_pk_bf16_f32 v8, v8, v8
v_and_b32 v8, 0xffff0000, v8
v_cmp_gt_u32 vcc, 16, v0
s_and_saveexec_b64 s[24:25], vcc
buffer_store_dword v8, v7, s[16:19], s22 offen
@dump 16
s_endpgm
""")
    a.st.n = 1
    a(f"""
K0_wprep:
s_sub_u32 s3, s2, 240
v_lshrrev_b32 v1, 6, v0
s_mul_i32 s3, s3, {WPT}
v_readfirstlane_b32 s22, v1
s_add_u32 s3, s3, s22
s_cmp_ge_u32 s22, {WPT}
s_cbranch_scc1 K0_end
s_waitcnt lgkmcnt(0)""")
    srd(a, 16, 20, WS_SIZE)
    wprep(a, 3, 24, 26, 16, '')
    a("@dump 16 s69\ns_endpgm")
    a("K0_pf:")
    if 'tlb' in OPT:
        a(f"""s_cmp_lt_u32 s2, 552
s_cbranch_scc1 K0_pf2
s_load_dwordx8 s[24:31], s[0:1], 32
s_load_dwordx2 s[32:33], s[0:1], 72
s_load_dwordx2 s[34:35], s[0:1], 88
s_load_dwordx2 s[36:37], s[0:1], 0
v_lshlrev_b32 v1, {TLBSH}, v0
s_mov_b32 s11, 0x00020000
s_waitcnt lgkmcnt(0)""")
        k = 2
        for p, sz in ((34, WS_SIZE), (24, 640*3072), (26, 640*3072), (28, 640*3072), (32, 2048*1280), (36, 2048*1280)):
            a(f"s_mov_b32 s8, s{p}\ns_mov_b32 s9, s{p+1}\ns_mov_b32 s10, {sz}")
            for o in range(0, sz, 384 << TLBSH):
                a(f"s_mov_b32 s20, {o}\nbuffer_load_dword v{k}, v1, s[8:11], s20 offen"); k += 1
        a("s_endpgm\nK0_pf2:")
    a(f"""s_load_dwordx2 s[8:9], s[0:1], 0
s_sub_u32 s3, s2, {NWP}
s_mul_i32 s3, s3, {384*128}
v_lshlrev_b32 v1, 7, v0
s_mov_b32 s10, {2048*1280}
s_mov_b32 s11, 0x00020000
s_waitcnt lgkmcnt(0)
buffer_load_dword v2, v1, s[8:11], s3 offen""")
    a("K0_end:\ns_endpgm")
    return ('k0_kernel', (NW0,1,1), (384,1,1), 1280, kd_block('k0_kernel', 56, 96))

C1,C2,S1,S2 = math.cos(2*math.pi/5),math.cos(4*math.pi/5),math.sin(2*math.pi/5),math.sin(4*math.pi/5)
def P(r): return f"v[{r}:{r+1}]"
def Q(r): return f"v[{r}:{r+3}]"

def col_slots(a, sW, vN, vG, out, tmp):
    a(f"""v_and_b32 v{tmp}, 7, v{vN}
s_lshl_b32 s40, s{sW}, 3
v_add_u32 v{out}, s40, v{tmp}
v_cmp_eq_u32 vcc, 0, v{out}
v_cndmask_b32 v{out+2}, 1.0, 0, vcc
v_cmp_lt_u32 s[42:43], 7, v{vN}
s_and_b64 s[44:45], s[42:43], vcc
s_andn2_b64 s[42:43], s[42:43], vcc
v_cndmask_b32 v{out}, v{out}, 64, s[44:45]
v_cndmask_b32 v{out+1}, 0, -1, s[42:43]
v_sub_u32 v{tmp}, 128, v{out}
v_cndmask_b32 v{tmp}, v{out}, v{tmp}, s[42:43]
v_mul_u32_u24 v{tmp}, 5, v{tmp}
v_lshrrev_b32 v{tmp+1}, 1, v{vG}
v_lshl_add_u32 v{tmp}, v{tmp+1}, 7, v{tmp}
v_add_u32 v{tmp+1}, 128, v{tmp}
v_subrev_u32 v{tmp+2}, 640, v{tmp+1}
v_min_u32 v{tmp+1}, v{tmp+1}, v{tmp+2}
v_sub_u32 v{tmp+2}, 640, v{tmp+1}
v_cmp_lt_u32 vcc, v{tmp+2}, v{tmp+1}
v_min_u32 v{tmp+1}, v{tmp+1}, v{tmp+2}
v_mov_b32 v{tmp+2}, 0x80008000
v_cndmask_b32 v{out+4}, 0, v{tmp+2}, vcc
v_and_b32 v{tmp+3}, 1, v{vG}
v_lshlrev_b32 v{tmp+3}, 4, v{tmp+3}
v_lshl_add_u32 v{out+3}, v{tmp+1}, 13, v{tmp+3}
v_mul_u32_u24 v{tmp+1}, 40960, v{out}
v_add_u32 v{out+5}, v{tmp+1}, v{tmp+3}""")

def allreduce64(a, v, t):
    for mode in ('quad_perm:[1,0,3,2]', 'quad_perm:[2,3,0,1]', 'row_ror:4', 'row_ror:8'):
        a(f"v_add_f32_dpp v{v}, v{v}, v{v} {mode} {DPP}")
    a(f"""v_mov_b32 v{t}, v{v}
v_permlane16_swap_b32 v{v}, v{t}
v_add_f32 v{v}, v{v}, v{t}
v_mov_b32 v{t}, v{v}
v_permlane32_swap_b32 v{v}, v{t}
v_add_f32 v{v}, v{v}, v{t}""")

def row_ids(a):
    a("""s_and_b32 s3, s2, 7
s_lshr_b32 s20, s2, 3
s_lshl_b32 s3, s3, 2
s_lshr_b32 s21, s20, 3
s_add_u32 s3, s3, s21
s_and_b32 s20, s20, 7
v_lshrrev_b32 v4, 6, v0
v_and_b32 v1, 63, v0
v_readfirstlane_b32 s22, v4
v_and_b32 v3, 31, v0
v_lshlrev_b32 v2, 3, v3
v_bfe_u32 v4, v0, 5, 1
v_lshl_add_u32 v2, v4, 8, v2
v_lshlrev_b32 v3, 2, v3
v_lshl_add_u32 v3, v4, 1, v3""")
def w5_consts(a, o, t, sgn):
    a(f"""v_cvt_f32_u32 v{t}, v3
v_mul_f32 v{t}, {fh(0.2*sgn)}, v{t}
v_add_f32 v{t+1}, {fh(0.2*sgn)}, v{t}
v_cos_f32 v{o}, v{t}
v_cos_f32 v{o+1}, v{t+1}
v_sin_f32 v{o+2}, v{t}
v_sin_f32 v{o+3}, v{t+1}
v_pk_add_f32 {P(t)}, {P(t)}, {P(t)}
v_cos_f32 v{o+4}, v{t}
v_cos_f32 v{o+5}, v{t+1}
v_sin_f32 v{o+6}, v{t}
v_sin_f32 v{o+7}, v{t+1}""")
def ln_rows(a, X, t):
    a(f"""v_pk_add_f32 {P(t)}, {P(X)}, {P(X+2)}
v_pk_add_f32 {P(t+2)}, {P(X+4)}, {P(X+6)}
v_pk_add_f32 {P(t)}, {P(t)}, {P(X+8)}
v_pk_add_f32 {P(t)}, {P(t)}, {P(t+2)}
v_add_f32 v{t}, v{t}, v{t+1}""")
    allreduce64(a, t, t+1)
    a(f"v_mul_f32 v{t}, {fh(-1/640)}, v{t}")
    for j in range(5): a(f"v_pk_add_f32 {P(X+2*j)}, {P(X+2*j)}, {P(t)} op_sel_hi:[1,0]")
    a(f"""v_pk_mul_f32 {P(t)}, {P(X)}, {P(X)}
v_pk_mul_f32 {P(t+2)}, {P(X+2)}, {P(X+2)}
v_pk_fma_f32 {P(t)}, {P(X+4)}, {P(X+4)}, {P(t)}
v_pk_fma_f32 {P(t+2)}, {P(X+6)}, {P(X+6)}, {P(t+2)}
v_pk_fma_f32 {P(t)}, {P(X+8)}, {P(X+8)}, {P(t)}
v_pk_add_f32 {P(t)}, {P(t)}, {P(t+2)}
v_add_f32 v{t}, v{t}, v{t+1}""")
    allreduce64(a, t, t+1)
    a(f"""v_mov_b32 v{t+1}, {fh(1e-5)}
v_fmac_f32 v{t+1}, {fh(1/640)}, v{t}
v_rsq_f32 v{t}, v{t+1}""")
def unpack_x(a, src, X):
    for k in range(3): a(f"v_permlane32_swap_b32 v{src+2*k}, v{src+2*k+1}")
    for j in range(5): a(f"v_lshlrev_b32 v{X+2*j}, 16, v{src+j}\nv_and_b32 v{X+2*j+1}, 0xffff0000, v{src+j}")
def r5_sconsts(a):
    a(f"""s_mov_b32 s30, {fh(C1)}
s_mov_b32 s31, {fh(C1)}
s_mov_b32 s32, {fh(C2)}
s_mov_b32 s33, {fh(C2)}
s_mov_b32 s34, {fh(S1)}
s_mov_b32 s35, {fh(S1)}
s_mov_b32 s36, {fh(S2)}
s_mov_b32 s37, {fh(S2)}""")

def k1(a):
    head(a, 'k1_kernel')
    PB = 12288
    a("""
s_cmp_ge_u32 s2, 256
s_cbranch_scc1 K1_side
@stamp
s_load_dwordx2 s[4:5], s[0:1], 0
s_load_dwordx2 s[6:7], s[0:1], 88
""")
    row_ids(a)
    a(f"""
s_lshl_b32 s21, s20, 3
s_add_u32 s21, s21, s22
s_lshl_b32 s21, s21, 5
s_add_u32 s21, s21, s3
s_mul_i32 s21, s21, 1280
v_lshlrev_b32 v4, 4, v1
s_lshl_b32 s23, s22, 10
s_add_u32 m0, s23, {PB}
s_waitcnt lgkmcnt(0)
""")
    srd(a, 8, 4, 2048*1280)
    srd(a, 12, 6, WS_SIZE)
    for k in range(3):
        a(f"buffer_load_dwordx2 {P(16+2*k)}, v2, s[8:11], s21 offen offset:{512*k}")
    a("""s_cmp_ge_u32 s22, 5
s_cbranch_scc1 K1_nodma
buffer_load_dwordx4 v4, s[12:15], s23 offen lds
K1_nodma:
v_and_b32 v5, 15, v0
v_bfe_u32 v6, v0, 4, 2""")
    col_slots(a, 22, 5, 6, 8, 22)
    w5_consts(a, 88, 22, -1.0)
    a(f"""
v_cvt_f32_u32 v22, v8
v_mul_f32 v22, {fh(1/128)}, v22
v_cvt_f32_u32 v23, v6
v_mul_f32 v23, {fh(8.0)}, v23
v_and_b32 v24, {fh(0.25)}, v9
v_fma_f32 v23, v23, v22, -v24
v_mul_f32 v24, {fh(25.0)}, v22
""")
    for t in range(4):
        for jj in range(4):
            a(f"""v_cos_f32 v25, v23
v_add_f32 v23, v23, v22
v_cos_f32 v26, v23
v_add_f32 v23, v23, v{24 if jj == 3 else 22}
v_cvt_pk_bf16_f32 v{96+4*t+jj}, v25, v26""")
    a(f"""
v_lshrrev_b32 v22, 3, v3
v_xor_b32 v22, s22, v22
v_lshlrev_b32 v22, 4, v22
v_and_b32 v23, 7, v3
v_lshl_add_u32 v22, v23, 1, v22
s_lshl_b32 s23, s22, 8
v_add_u32 v14, s23, v22
v_xor_b32 v15, {2048+128}, v14
v_lshlrev_b32 v7, 2, v3
v_xor_b32 v22, v6, v5
""")
    for t in range(4):
        a(f"""v_xor_b32 v23, {4*t}, v22
v_lshlrev_b32 v23, 4, v23
v_lshl_add_u32 v{112+t}, v5, 8, v23""")
    r5_sconsts(a)
    a(f"""
s_lshl_b32 s23, s3, 8
s_lshl_b32 s21, s20, 5
s_add_u32 s23, s23, s21
s_add_u32 s23, s23, {XF}
@stamp
s_waitcnt vmcnt(0)
s_barrier
@stamp
""")
    for j in range(5):
        a(f"ds_read_b64 {P(40+2*j)}, v7 offset:{PB+2560+512*j}\nds_read_b64 {P(50+2*j)}, v7 offset:{PB+512*j}")
    unpack_x(a, 16, 28)
    ln_rows(a, 28, 22)
    a("s_waitcnt lgkmcnt(0)")
    for j in range(5): a(f"v_pk_mul_f32 {P(40+2*j)}, {P(40+2*j)}, {P(22)} op_sel_hi:[1,0]")
    for j in range(5): a(f"v_pk_fma_f32 {P(28+2*j)}, {P(28+2*j)}, {P(40+2*j)}, {P(50+2*j)}")
    h = {(3*j) % 5: 28+2*j for j in range(5)}
    t1,t2,t3,t4 = 40,42,44,46; z0,p1,q1,p2,q2 = 48,50,52,54,56
    a(f"""v_pk_add_f32 {P(t1)}, {P(h[1])}, {P(h[4])}
v_pk_add_f32 {P(t2)}, {P(h[2])}, {P(h[3])}
v_pk_add_f32 {P(t3)}, {P(h[1])}, {P(h[4])} neg_lo:[0,1] neg_hi:[0,1]
v_pk_add_f32 {P(t4)}, {P(h[2])}, {P(h[3])} neg_lo:[0,1] neg_hi:[0,1]
v_pk_add_f32 {P(z0)}, {P(h[0])}, {P(t1)}
v_pk_fma_f32 {P(p1)}, s[30:31], {P(t1)}, {P(h[0])}
v_pk_fma_f32 {P(p2)}, s[32:33], {P(t1)}, {P(h[0])}
v_pk_mul_f32 {P(q1)}, s[34:35], {P(t3)}
v_pk_mul_f32 {P(q2)}, s[36:37], {P(t3)}
v_pk_add_f32 {P(z0)}, {P(z0)}, {P(t2)}
v_pk_fma_f32 {P(p1)}, s[32:33], {P(t2)}, {P(p1)}
v_pk_fma_f32 {P(p2)}, s[30:31], {P(t2)}, {P(p2)}
v_pk_fma_f32 {P(q1)}, s[36:37], {P(t4)}, {P(q1)}
v_pk_fma_f32 {P(q2)}, s[34:35], {P(t4)}, {P(q2)} neg_lo:[0,1,0] neg_hi:[0,1,0]
v_cvt_pk_bf16_f32 v22, v{z0}, v{z0+1}
ds_write_b32 v14, v22 offset:8192""")
    for k, (p, q) in enumerate(((p1, q1), (p2, q2))):
        c, s = 88+4*k, 90+4*k; r, im = 28+4*k, 30+4*k
        a(f"""v_pk_mul_f32 {P(r)}, {P(p)}, {P(c)}
v_pk_mul_f32 {P(im)}, {P(p)}, {P(s)}
v_pk_fma_f32 {P(r)}, {P(q)}, {P(s)}, {P(r)}
v_pk_fma_f32 {P(im)}, {P(q)}, {P(c)}, {P(im)} neg_lo:[1,0,0] neg_hi:[1,0,0]
v_cvt_pk_bf16_f32 v{23+2*k}, v{r}, v{r+1}
v_cvt_pk_bf16_f32 v{24+2*k}, v{im}, v{im+1}
ds_write_b32 v{14+k}, v{23+2*k}
ds_write_b32 v{14+k}, v{24+2*k} offset:4096""")
    a("@stamp\ns_waitcnt lgkmcnt(0)\ns_barrier\n@stamp")
    for T in range(3):
        for t in range(4):
            a(f"ds_read_b128 {Q(28+16*T+4*t)}, v{112+t} offset:{4096*T}")
    n = 12
    for T in range(3):
        for t in range(4):
            n -= 1
            a(f"s_waitcnt lgkmcnt({n})")
            a(f"v_mfma_f32_16x16x32_bf16 {Q(76+4*T)}, {Q(28+16*T+4*t)}, {Q(96+4*t)}, {'0' if t == 0 else Q(76+4*T)}")
    a(f"""v_and_b32 v22, 0x80008000, v9
v_and_b32 v23, v9, v12
v_bfi_b32 v24, v9, v22, v12
v_cmp_neq_f32 vcc, 0, v10
v_pk_mul_f32 {P(28)}, {P(76)}, {P(10)} op_sel_hi:[1,0]
v_pk_mul_f32 {P(30)}, {P(78)}, {P(10)} op_sel_hi:[1,0]
v_pk_mul_f32 {P(32)}, {P(80)}, {P(10)} op_sel_hi:[1,0]
v_pk_mul_f32 {P(34)}, {P(82)}, {P(10)} op_sel_hi:[1,0]
v_cndmask_b32 v25, 0, -1, vcc""")
    for i in range(4):
        a(f"v_add_f32_dpp v{76+i}, v{32+i}, v{76+i} row_ror:8 {DPP}")
        a(f"v_subrev_f32_dpp v{80+i}, v{28+i}, v{80+i} row_ror:8 {DPP}")
    a(f"""v_cvt_pk_bf16_f32 v36, v76, v77
v_cvt_pk_bf16_f32 v37, v78, v79
v_cvt_pk_bf16_f32 v38, v80, v81
v_cvt_pk_bf16_f32 v39, v82, v83
v_cvt_pk_bf16_f32 v44, v84, v85
v_cvt_pk_bf16_f32 v45, v86, v87
v_xor_b32 v36, v36, v23
v_xor_b32 v37, v37, v23
v_xor_b32 v38, v38, v24
v_xor_b32 v39, v39, v24
v_xor_b32 v44, v44, v22
v_xor_b32 v45, v45, v22
v_cndmask_b32 v40, v36, v38, s[42:43]
v_cndmask_b32 v41, v37, v39, s[42:43]
v_cndmask_b32 v42, v38, v36, s[42:43]
v_cndmask_b32 v43, v39, v37, s[42:43]
buffer_store_dwordx4 {Q(40)}, v11, s[12:15], s23 offen
v_and_b32_dpp v46, v44, v25 row_ror:8 {DPP}
v_and_b32_dpp v47, v45, v25 row_ror:8 {DPP}
s_not_b64 exec, s[42:43]
s_mov_b32 exec_hi, 0
buffer_store_dwordx4 {Q(44)}, v13, s[12:15], s23 offen
@stamp
@dump 12
s_endpgm
K1_side:
s_cmp_ge_u32 s2, 352
s_cbranch_scc1 K1_end
s_load_dwordx2 s[4:5], s[0:1], 48
s_load_dwordx2 s[6:7], s[0:1], 88
s_sub_u32 s3, s2, 256
s_cmp_lg_u32 s3, 0
s_cbranch_scc1 K1_nz
s_waitcnt lgkmcnt(0)
s_mov_b32 s12, s6
s_mov_b32 s13, s7
s_mov_b32 s14, {WS_SIZE}
s_mov_b32 s15, 0x00020000
s_mov_b32 s20, {FLG}
v_lshlrev_b32 v1, 7, v0
v_mov_b32 v24, 0
buffer_store_dword v24, v1, s[12:15], s20 offen
K1_nz:
v_cmp_gt_u32 vcc, 320, v0
s_and_saveexec_b64 s[30:31], vcc
s_cbranch_execz K1_end
v_mul_u32_u24 v1, 52429, v0
v_lshrrev_b32 v1, 22, v1
v_mul_u32_u24 v2, 80, v1
v_sub_u32 v2, v0, v2
v_mul_u32_u24 v3, 52429, v2
v_lshrrev_b32 v3, 19, v3
v_mul_u32_u24 v4, 10, v3
v_sub_u32 v4, v2, v4
v_mul_u32_u24 v5, 1280, v1
v_lshl_add_u32 v5, v2, 4, v5
s_mov_b32 s20, {1536*160}
v_mul_lo_u32 v6, v3, s20
v_lshl_add_u32 v6, v4, 4, v6
v_mul_u32_u24 v7, 160, v1
v_add_u32 v6, v6, v7
s_mul_i32 s20, s3, {16*1280}
s_lshr_b32 s21, s3, 1
s_mul_i32 s21, s21, {32*160}
s_and_b32 s22, s3, 1
s_mul_i32 s22, s22, {8*160}
s_add_u32 s21, s21, s22
s_add_u32 s21, s21, {WDT}
s_waitcnt lgkmcnt(0)""")
    srd(a, 8, 4, 1536*1280)
    srd(a, 12, 6, WS_SIZE)
    for q in range(4):
        a(f"buffer_load_dwordx4 {Q(8+4*q)}, v5, s[8:11], s20 offen")
        if q < 3: a("s_add_u32 s20, s20, 5120")
    for q in range(4):
        a(f"s_waitcnt vmcnt(3)\nbuffer_store_dwordx4 {Q(8+4*q)}, v6, s[12:15], s21 offen offset:{(16*(q&1) + 4*(q>>1))*160}")
    a("K1_end:\ns_endpgm")
    return ('k1_kernel', (352,1,1), (512,1,1), PB+5120, kd_block('k1_kernel', 116, 96))

def k2(a):
    head(a, 'k2_kernel')
    a(f"""
s_cmp_ge_u32 s2, 321
s_cbranch_scc1 K2_side
@stamp
s_load_dwordx2 s[6:7], s[0:1], 88
v_and_b32 v1, 15, v0
v_bfe_u32 v2, v0, 4, 2
v_lshrrev_b32 v3, 6, v0
v_and_b32 v9, 63, v0
v_readfirstlane_b32 s3, v3
v_lshl_add_u32 v4, v3, 2, v2
v_xor_b32 v10, v4, v1
v_lshlrev_b32 v10, 4, v10
v_lshl_add_u32 v4, v4, 8, v10
v_lshrrev_b32 v5, 1, v1
v_and_b32 v6, 1, v1
v_lshl_add_u32 v5, v6, 3, v5
v_lshl_add_u32 v5, v2, 4, v5
v_lshlrev_b32 v5, 4, v5
v_lshl_add_u32 v5, v3, 11, v5
s_lshl_b32 s20, s2, 13
s_add_u32 s21, s20, {XF}
s_add_u32 s22, s21, 4096
s_add_u32 s23, s20, {WP}
s_lshl_b32 s24, s3, 10
s_mov_b32 m0, s24
s_waitcnt lgkmcnt(0)
@stamp
""")
    srd(a, 8, 6, WS_SIZE)
    a(f"""buffer_load_dwordx4 v4, s[8:11], s21 offen lds
s_add_u32 m0, s24, 4096
s_nop 0
buffer_load_dwordx4 v4, s[8:11], s22 offen lds
buffer_load_dwordx4 v[48:51], v5, s[8:11], s23 offen
buffer_load_dwordx4 v[52:55], v5, s[8:11], s23 offen offset:1024
v_lshl_add_u32 v6, v3, 4, v1
v_cvt_f32_u32 v6, v6
v_cvt_f32_u32 v7, v2
v_cvt_f32_u32 v8, v1
v_mul_f32 v7, 4.0, v7
""")
    M = lambda t: 56+6*t
    N = lambda x, y: 80+6*(2*x+y)
    def gen(R, cur, step, last):
        for hh in range(2):
            a(f"""v_cos_f32 v12, v{cur}
v_sin_f32 v13, v{cur}
v_add_f32 v{cur}, v{cur}, v{step}
v_cos_f32 v14, v{cur}
v_sin_f32 v15, v{cur}
v_add_f32 v{cur}, v{cur}, v{last if hh else step}
v_cvt_pk_bf16_f32 v{R+2+hh}, v12, v14
v_cvt_pk_bf16_f32 v{R+hh}, -v13, -v15
v_cvt_pk_bf16_f32 v{R+4+hh}, v13, v15""")
    a(f"""v_mul_f32 v16, {fh(1/64)}, v6
v_mul_f32 v10, v7, v16
v_mul_f32 v11, {fh(13.0)}, v16""")
    for t in range(4): gen(M(t), 10, 16, 11)
    for x in range(2):
        a(f"""v_add_f32 v16, {fh(16.0*x)}, v8
v_mul_f32 v16, {fh(1/32)}, v16
v_mul_f32 v10, v7, v16
v_mul_f32 v11, {fh(13.0)}, v16""")
        for y in range(2): gen(N(x, y), 10, 16, 11)
    a(f"""v_mul_f32 v16, {fh(-1/2048)}, v6
v_mul_f32 v10, v7, v16
v_mul_f32 v11, {fh(13.0)}, v16""")
    for k in range(8):
        a(f"v_cos_f32 v{104+k}, v10\nv_sin_f32 v{112+k}, v10")
        if k < 7: a(f"v_add_f32 v10, v10, v{11 if k == 3 else 16}")
    a(f"""s_lshl_b32 s24, s3, 4
v_cvt_f32_u32 v12, s24
v_add_f32 v12, v12, v7
s_mov_b32 s26, {fh(2.0/(2048*640))}
s_cmp_eq_u32 s2, 0
s_cselect_b32 s26, {fh(1.0/(2048*640))}, s26
s_cmp_eq_u32 s2, 320
s_cselect_b32 s26, {fh(1.0/(2048*640))}, s26
s_mov_b32 s27, s26""")
    for nt in range(2):
        a(f"""v_add_f32 v16, {fh(16.0*nt)}, v8
v_mul_f32 v16, {fh(1/2048)}, v16
v_mul_f32 v10, v12, v16""")
        for i in range(4):
            k = 4*nt+i
            a(f"v_cos_f32 v{120+k}, v10\nv_sin_f32 v{128+k}, v10")
            if i < 3: a("v_add_f32 v10, v10, v16")
    for k in range(8): a(f"v_pk_mul_f32 {P(120+2*k)}, s[26:27], {P(120+2*k)}")
    a(f"""v_xor_b32 v10, v2, v1
v_lshlrev_b32 v10, 4, v10
v_lshl_add_u32 v10, v1, 8, v10
v_xor_b32 v11, 64, v10
v_xor_b32 v12, 128, v10
v_xor_b32 v13, 192, v10
v_lshlrev_b32 v7, 4, v9
s_lshl_b32 s24, s3, 10
v_add_u32 v6, s24, v7
v_lshlrev_b32 v5, 8, v1
v_lshl_add_u32 v5, v3, 6, v5
v_lshl_add_u32 v5, v2, 4, v5
s_add_u32 s21, s20, {YF}
s_add_u32 s22, s21, 4096
@stamp
s_waitcnt vmcnt(2)
s_barrier
@stamp""")
    D = lambda mt, t: 16+16*mt+4*t
    for t in range(4):
        for mt in range(2):
            a(f"ds_read_b128 {Q(D(mt,t))}, v{10+t} offset:{4096*mt}")
    def mf(d, A, B, first): a(f"v_mfma_f32_16x16x32_bf16 {Q(d)}, {Q(A)}, {Q(B)}, {'0' if first else Q(d)}")
    for t in range(4):
        a(f"s_waitcnt lgkmcnt({6-2*t})")
        for mt in range(2):
            mf(136+8*mt, D(mt,t), M(t)+2, t == 0)
            mf(140+8*mt, D(mt,t), M(t), t == 0)
    a("s_waitcnt vmcnt(0)")
    for k in range(8):
        a(f"v_lshlrev_b32 v{32+k}, 16, v{48+k}\nv_and_b32 v{40+k}, 0xffff0000, v{48+k}")
    def tw_pack(tr, ti, B, swap):
        for blk in range(2):
            for hh in range(2):
                r = 136+8*blk+2*hh; i = r+4; c = tr+4*blk+2*hh; s = ti+4*blk+2*hh; t = 48+4*blk+2*hh
                a(f"""v_pk_mul_f32 {P(t)}, {P(i)}, {P(s)}
v_pk_mul_f32 {P(i)}, {P(i)}, {P(c)}
v_pk_fma_f32 {P(i)}, {P(r)}, {P(s)}, {P(i)}
v_pk_fma_f32 {P(r)}, {P(r)}, {P(c)}, {P(t)} neg_lo:[0,0,1] neg_hi:[0,0,1]""")
        for blk in range(2):
            for hh in range(2):
                r = 136+8*blk+2*hh
                a(f"v_cvt_pk_bf16_f32 v{B+4*blk+hh+(2 if swap else 0)}, v{r}, v{r+1}")
                a(f"v_cvt_pk_bf16_f32 v{B+4*blk+hh+(0 if swap else 2)}, v{r+4}, v{r+5}")
    tw_pack(104, 112, 16, False)
    for y in range(2):
        for x in range(2):
            mf(136+8*x, N(x,y)+2, 16+4*y, y == 0)
            mf(140+8*x, N(x,y), 16+4*y, y == 0)
    tw_pack(32, 40, 24, True)
    for y in range(2):
        for x in range(2):
            mf(136+8*x, 24+4*y, N(x,y), y == 0)
            mf(140+8*x, 24+4*y, N(x,y)+2, y == 0)
    tw_pack(120, 128, 16, True)
    a(f"""ds_write_b128 v6, {Q(16)} offset:8192
ds_write_b128 v6, {Q(20)} offset:12288
@stamp
s_waitcnt lgkmcnt(0)
s_barrier
@stamp""")
    for t in range(4):
        for nt in range(2):
            a(f"ds_read_b128 {Q(D(nt,t))}, v7 offset:{8192+4096*nt+1024*t}")
    for t in range(4):
        a(f"s_waitcnt lgkmcnt({6-2*t})")
        for nt in range(2):
            mf(136+8*nt, M(t), D(nt,t), t == 0)
            mf(140+8*nt, M(t)+2, D(nt,t), t == 0)
    for nt in range(2):
        o = 48+4*nt; s = 136+8*nt
        for k in range(4): a(f"v_cvt_pk_bf16_f32 v{o+k}, v{s+2*k}, v{s+2*k+1}")
        a(f"buffer_store_dwordx4 {Q(o)}, v5, s[8:11], s{21+nt} offen")
    a(f"""@stamp
@dump 8
s_endpgm
K2_side:
s_cmp_ge_u32 s2, 381
s_cbranch_scc1 K2_end
s_load_dwordx4 s[4:7], s[0:1], 32
s_sub_u32 s3, s2, 321
s_lshl_b32 s3, s3, 15
v_lshlrev_b32 v1, 7, v0
s_waitcnt lgkmcnt(0)""")
    srd(a, 8, 4, 640*3072)
    srd(a, 12, 6, 640*3072)
    a("""buffer_load_dword v2, v1, s[8:11], s3 offen
buffer_load_dword v3, v1, s[12:15], s3 offen""")
    if 'wstouch' in OPT:
        a(f"""s_load_dwordx2 s[16:17], s[0:1], 88
s_mov_b32 s18, {HIDF + 2048*3072}
s_mov_b32 s19, 0x00020000
s_add_u32 s3, s3, {X1}
s_waitcnt lgkmcnt(0)""")
        for k in range(7):
            a(f"buffer_load_dword v{4+k}, v1, s[16:19], s3 offen\ns_add_u32 s3, s3, {60*32768}")
    a("K2_end:\ns_endpgm")
    return ('k2_kernel', (381,1,1), (256,1,1), 16384, kd_block('k2_kernel', 152, 96))

def k3(a):
    head(a, 'k3_kernel')
    ZB = 12288; ZR = 528; ZC = 8*ZR; PB = ZB + 5*ZC
    a("""
s_cmp_ge_u32 s2, 256
s_cbranch_scc1 K3_end
@stamp
s_load_dwordx2 s[4:5], s[0:1], 0
s_load_dwordx2 s[6:7], s[0:1], 88
""")
    row_ids(a)
    a("v_and_b32 v5, 15, v0\nv_bfe_u32 v6, v0, 4, 2")
    col_slots(a, 22, 5, 6, 8, 22)
    a(f"""
s_lshl_b32 s23, s3, 8
s_lshl_b32 s21, s20, 5
s_add_u32 s23, s23, s21
s_add_u32 s23, s23, {YF}
s_lshl_b32 s21, s20, 3
s_add_u32 s21, s21, s22
s_lshl_b32 s24, s3, 6
s_add_u32 s24, s24, s21
s_lshl_b32 s21, s21, 5
s_add_u32 s21, s21, s3
s_mul_i32 s21, s21, 1280
s_mul_i32 s24, s24, 1280
v_lshlrev_b32 v4, 4, v1
s_lshl_b32 s25, s22, 10
s_add_u32 m0, s25, {PB}
s_add_u32 s25, s25, 5120
s_waitcnt lgkmcnt(0)
""")
    srd(a, 8, 4, 2048*1280)
    srd(a, 12, 6, WS_SIZE)
    a(f"""buffer_load_dwordx4 {Q(28)}, v11, s[12:15], s23 offen
buffer_load_dwordx4 {Q(32)}, v13, s[12:15], s23 offen
buffer_load_dwordx4 v4, s[12:15], s25 offen lds""")
    for k in range(3):
        a(f"buffer_load_dwordx2 {P(16+2*k)}, v2, s[8:11], s21 offen offset:{512*k}")
    w5_consts(a, 88, 22, 1.0)
    a(f"""
s_lshl_b32 s27, s22, 4
v_add_u32 v22, s27, v5
v_cvt_f32_u32 v22, v22
v_mul_f32 v22, {fh(1/128)}, v22
v_and_b32 v23, 1, v6
v_cvt_f32_u32 v23, v23
v_mul_f32 v23, 4.0, v23
v_lshrrev_b32 v24, 1, v6
v_cvt_f32_u32 v24, v24
v_mul_f32 v24, {fh(0.25)}, v24
v_fma_f32 v23, v23, v22, v24
v_mul_f32 v24, {fh(5.0)}, v22
v_mul_f32 v27, {fh(64.0)}, v22
v_cmp_eq_u32 vcc, 2, v6
v_cndmask_b32 v27, v23, v27, vcc
""")
    for t in range(4):
        for jj in range(4):
            a(f"""v_cos_f32 v25, v{27 if (t, jj) == (0, 0) else 23}
v_add_f32 v23, v23, v22
v_cos_f32 v26, v23
v_add_f32 v23, v23, v{24 if jj & 1 else 22}
v_cvt_pk_bf16_f32 v{96+4*t+jj}, v25, v26""")
    a(f"""
v_lshlrev_b32 v14, 5, v5
v_lshl_add_u32 v14, v6, 3, v14
s_lshl_b32 s27, s22, 9
v_add_u32 v14, s27, v14
v_and_b32 v15, 4096, v9
v_add_u32 v15, v15, v14
v_xor_b32 v112, 4096, v15
v_lshlrev_b32 v113, 3, v1
v_and_b32 v22, 7, v5
v_mul_u32_u24 v22, {ZR}, v22
v_lshl_add_u32 v22, v6, 4, v22
s_lshl_b32 s27, s22, 6
v_add_u32 v115, s27, v22
v_lshrrev_b32 v22, 3, v5
v_mul_u32_u24 v22, {2*ZC}, v22
v_add_u32 v114, v115, v22
v_lshlrev_b32 v4, 2, v3
s_mul_i32 s27, s22, {ZR}
v_add_u32 v7, s27, v4
v_and_b32 v22, 0x80000000, v9
v_xor_b32 v22, v22, v10
v_and_b32 v23, 0x80008000, v9
v_xor_b32 v24, v23, v12
""")
    r5_sconsts(a)
    a(f"""@stamp
s_waitcnt vmcnt(4)
@stamp
v_cndmask_b32 v32, v32, v34, s[42:43]
v_cndmask_b32 v33, v33, v35, s[42:43]
v_xor_b32 v26, v30, v24
v_xor_b32 v27, v31, v24
v_xor_b32 v30, v30, v12
v_xor_b32 v31, v31, v12
ds_write_b64 v14, {P(32)} offset:8192""")
    for hh in range(2):
        a(f"""v_lshlrev_b32 v{36+2*hh}, 16, v{28+hh}
v_and_b32 v{37+2*hh}, 0xffff0000, v{28+hh}
v_lshlrev_b32 v{40+2*hh}, 16, v{30+hh}
v_and_b32 v{41+2*hh}, 0xffff0000, v{30+hh}
v_lshlrev_b32 v{44+2*hh}, 16, v{28+hh}
v_and_b32 v{45+2*hh}, 0xffff0000, v{28+hh}
v_lshlrev_b32 v{48+2*hh}, 16, v{26+hh}
v_and_b32 v{49+2*hh}, 0xffff0000, v{26+hh}""")
    for i in range(4):
        a(f"v_fmac_f32_dpp v{44+i}, v{36+i}, v22 row_ror:8 {DPP}")
        a(f"v_fmac_f32_dpp v{48+i}, v{40+i}, v10 row_ror:8 {DPP}")
    a(f"""v_cvt_pk_bf16_f32 v52, v44, v45
v_cvt_pk_bf16_f32 v53, v46, v47
v_cvt_pk_bf16_f32 v54, v48, v49
v_cvt_pk_bf16_f32 v55, v50, v51
ds_write_b64 v15, {P(52)}
ds_write_b64 v112, {P(54)}
s_waitcnt vmcnt(3) lgkmcnt(0)
s_barrier
@stamp""")
    for T in range(3):
        for t in range(4):
            for x in range(2):
                a(f"ds_read_b64_tr_b16 {P(28+16*T+4*t+2*x)}, v113 offset:{4096*T+1024*t+512*x}")
            if T == 1 and t == 3:
                a("s_waitcnt lgkmcnt(8)")
                for tt in range(4): a(f"v_mfma_f32_16x16x32_bf16 {Q(76)}, {Q(96+4*tt)}, {Q(28+4*tt)}, {'0' if tt == 0 else Q(76)}")
    for T in (1, 2):
        a(f"s_waitcnt lgkmcnt({8 if T == 1 else 0})")
        for t in range(4): a(f"v_mfma_f32_16x16x32_bf16 {Q(76+4*T)}, {Q(96+4*t)}, {Q(28+16*T+4*t)}, {'0' if t == 0 else Q(76+4*T)}")
    for j in range(5):
        a(f"ds_read_b64 {P(116+2*j)}, v4 offset:{PB+512*j}")
    a(f"""ds_write_b128 v114, {Q(76)} offset:{ZB+ZC}
ds_write_b128 v114, {Q(80)} offset:{ZB+2*ZC}
ds_write_b128 v115, {Q(84)} offset:{ZB}
s_waitcnt vmcnt(0)""")
    unpack_x(a, 16, 28)
    a("@stamp\ns_waitcnt lgkmcnt(0)\ns_barrier\n@stamp")
    for c in range(5): a(f"ds_read_b64 {P(40+2*c)}, v7 offset:{ZB+ZC*c}")
    for j in range(5):
        a(f"ds_read_b64 {P(136+2*j)}, v4 offset:{PB+5120+512*j}\nds_read_b64 {P(126+2*j)}, v4 offset:{PB+2560+512*j}")
    a("s_waitcnt lgkmcnt(10)")
    for k in range(2):
        r, im = 42+4*k, 44+4*k; c, s = 88+4*k, 90+4*k; R, I = 50+4*k, 52+4*k
        a(f"""v_pk_mul_f32 {P(R)}, {P(r)}, {P(c)}
v_pk_mul_f32 {P(I)}, {P(r)}, {P(s)}
v_pk_fma_f32 {P(R)}, {P(im)}, {P(s)}, {P(R)} neg_lo:[1,0,0] neg_hi:[1,0,0]
v_pk_fma_f32 {P(I)}, {P(im)}, {P(c)}, {P(I)}""")
    z0,z1r,z1i,z2r,z2i = 40,50,52,54,56
    A,B,Cc,Dd,E = 58,60,62,64,66
    sl = {(3*j) % 5: j for j in range(5)}
    X = lambda d2: P(28+2*sl[d2]); G = lambda d2: P(116+2*sl[d2])
    a(f"""v_pk_add_f32 {P(E)}, {P(z0)}, {P(z1r)}
v_pk_fma_f32 {P(A)}, s[30:31], {P(z1r)}, {P(z0)}
v_pk_fma_f32 {P(B)}, s[32:33], {P(z1r)}, {P(z0)}
v_pk_mul_f32 {P(Cc)}, s[34:35], {P(z1i)}
v_pk_mul_f32 {P(Dd)}, s[36:37], {P(z1i)}
v_pk_add_f32 {P(E)}, {P(E)}, {P(z2r)}
v_pk_fma_f32 {P(A)}, s[32:33], {P(z2r)}, {P(A)}
v_pk_fma_f32 {P(B)}, s[30:31], {P(z2r)}, {P(B)}
v_pk_fma_f32 {P(Cc)}, s[36:37], {P(z2i)}, {P(Cc)}
v_pk_fma_f32 {P(Dd)}, s[34:35], {P(z2i)}, {P(Dd)} neg_lo:[0,1,0] neg_hi:[0,1,0]
v_pk_fma_f32 {X(0)}, {G(0)}, {P(E)}, {X(0)}
v_pk_add_f32 {P(68)}, {P(A)}, {P(Cc)} neg_lo:[0,1] neg_hi:[0,1]
v_pk_add_f32 {P(70)}, {P(A)}, {P(Cc)}
v_pk_add_f32 {P(72)}, {P(B)}, {P(Dd)} neg_lo:[0,1] neg_hi:[0,1]
v_pk_add_f32 {P(74)}, {P(B)}, {P(Dd)}
v_pk_fma_f32 {X(1)}, {G(1)}, {P(68)}, {X(1)}
v_pk_fma_f32 {X(4)}, {G(4)}, {P(70)}, {X(4)}
v_pk_fma_f32 {X(2)}, {G(2)}, {P(72)}, {X(2)}
v_pk_fma_f32 {X(3)}, {G(3)}, {P(74)}, {X(3)}
s_add_u32 s25, s24, {X1}
s_add_u32 s26, s24, {H2F}""")
    for j in range(5): a(f"v_cvt_pk_bf16_f32 v{16+j}, v{28+2*j}, v{29+2*j}")
    a(f"""v_permlane32_swap_b32 v16, v17
v_permlane32_swap_b32 v18, v19
buffer_store_dwordx2 {P(16)}, v2, s[12:15], s25 offen
buffer_store_dwordx2 {P(18)}, v2, s[12:15], s25 offen offset:512""")
    ln_rows(a, 28, 22)
    a(f"""v_bfe_u32 v24, v0, 5, 1
v_mul_u32_u24 v24, {H2F - X1 - 256}, v24
v_add_u32 v24, v24, v2
s_waitcnt lgkmcnt(0)""")
    for j in range(5): a(f"v_pk_mul_f32 {P(136+2*j)}, {P(136+2*j)}, {P(22)} op_sel_hi:[1,0]")
    for j in range(5): a(f"v_pk_fma_f32 {P(28+2*j)}, {P(28+2*j)}, {P(136+2*j)}, {P(126+2*j)}")
    for j in range(4): a(f"v_cvt_pk_bf16_f32 v{40+j}, v{28+2*j}, v{29+2*j}")
    a(f"""v_cvt_pk_bf16_f32 v21, v36, v37
v_permlane32_swap_b32 v40, v41
v_permlane32_swap_b32 v42, v43
v_permlane32_swap_b32 v20, v21
buffer_store_dwordx2 {P(40)}, v2, s[12:15], s26 offen
buffer_store_dwordx2 {P(42)}, v2, s[12:15], s26 offen offset:512
buffer_store_dwordx2 {P(20)}, v24, s[12:15], s25 offen offset:1024
@stamp
@dump 12
K3_end:
s_endpgm""")
    return ('k3_kernel', (256,1,1), (512,1,1), PB+8192, kd_block('k3_kernel', 148, 96))

def ramp(NST, D, first=3):
    nxt = first; sched = {}
    for s in range(NST):
        lim = min(NST, s + D + 1)
        take = []
        while nxt < lim and len(take) < 2:
            take.append(nxt); nxt += 1
        sched[s] = take
    return list(range(first)), sched
def k4(a):
    head(a, 'k4_kernel')
    NST = 20; WS_ = 12288; HB = 98304; HS = 16384
    a(f"""
s_cmp_ge_u32 s2, 256
s_cbranch_scc1 K4_end
@stamp
s_load_dwordx4 s[4:7], s[0:1], 32
s_load_dwordx2 s[20:21], s[0:1], 88
s_and_b32 s3, s2, 7
s_lshr_b32 s22, s2, 3
s_and_b32 s23, s3, 1
s_lshl_b32 s23, s23, 3
s_and_b32 s24, s22, 7
s_add_u32 s23, s23, s24
s_lshr_b32 s24, s3, 1
s_lshl_b32 s24, s24, 2
s_lshr_b32 s25, s22, 3
s_add_u32 s24, s24, s25
v_lshrrev_b32 v1, 6, v0
v_and_b32 v2, 63, v0
v_readfirstlane_b32 s25, v1
s_cmp_lt_u32 s25, 8
s_cbranch_scc1 K4_cons
s_sub_u32 s25, s25, 8
""")
    for q in range(3):
        a(f"""v_add_u32 v10, {64*q}, v2
v_mul_u32_u24 v11, 43691, v10
v_lshrrev_b32 v11, 19, v11
v_mul_u32_u24 v12, 12, v11
v_sub_u32 v12, v10, v12
v_lshrrev_b32 v13, 2, v11
v_and_b32 v13, 2, v13
v_xor_b32 v12, v12, v13
v_mul_u32_u24 v11, 3072, v11
v_lshl_add_u32 v11, v12, 4, v11
v_subrev_u32 v{3+q}, {1024*q}, v11""")
    for q in range(4):
        a(f"""v_lshrrev_b32 v10, 4, v2
v_add_u32 v10, {4*q}, v10
v_xor_b32 v10, v10, v2
v_and_b32 v10, 7, v10
v_lshrrev_b32 v11, 3, v2
v_mul_u32_u24 v11, 1280, v11
v_lshl_add_u32 v11, v10, 4, v11
v_add_u32 v{6+q}, {q*(10240-1024)}, v11""")
    a(f"""
s_and_b32 s26, s25, 1
s_mul_i32 s27, s26, {16*3072}
s_mul_i32 s28, s24, 192
s_add_u32 s27, s27, s28
s_mul_i32 s28, s25, 3072
s_lshl_b32 s29, s23, 2
s_add_u32 s29, s29, s25
s_mul_i32 s29, s29, 40960
s_add_u32 s29, s29, {H2F}
s_lshl_b32 s30, s25, 12
s_waitcnt lgkmcnt(0)
s_cmp_lt_u32 s25, 2
s_cselect_b32 s8, s4, s6
s_cselect_b32 s9, s5, s7
s_mov_b32 s10, {640*3072}
s_mov_b32 s11, 0x00020000
""")
    srd(a, 12, 20, WS_SIZE)
    cnt = []
    def issue(s):
        n = 0
        if s % 2 == 0:
            a(f"s_add_u32 m0, s30, {HB + ((s//2) % 4)*HS}")
            for q in range(4):
                a(f"buffer_load_dwordx4 v{6+q}, s[12:15], s29 offen offset:{1024*q} lds")
            a("s_add_u32 s29, s29, 128"); n += 4
        a(f"s_add_u32 m0, s28, {(s % 8)*WS_}")
        for q in range(3):
            a(f"buffer_load_dwordx4 v{3+q}, s[8:11], s27 offen offset:{1024*q} lds")
        a(f"s_add_u32 s27, s27, {32*3072}"); n += 3
        cnt.append(n)
    init, sched = ramp(NST, 6)
    for s in init: issue(s)
    for s in range(NST):
        a(f"s_waitcnt vmcnt({sum(cnt[s+1:])})\ns_barrier")
        for g in sched[s]: issue(g)
    a("@stamp\n@dump 12\ns_endpgm")
    a.st.n = 1
    a(f"""K4_cons:
s_lshr_b32 s26, s25, 2
s_and_b32 s27, s25, 3
v_lshrrev_b32 v3, 4, v2
v_bfe_u32 v4, v2, 2, 2
v_lshl_add_u32 v4, v3, 3, v4
v_mul_u32_u24 v4, 192, v4
v_and_b32 v5, 3, v2
v_lshl_add_u32 v4, v5, 3, v4
v_and_b32 v5, 1, v3
v_lshlrev_b32 v5, 5, v5
s_mul_i32 s28, s26, 96
v_add_u32 v4, s28, v4
s_cmp_eq_u32 s26, 0
s_cselect_b32 s29, 1, -1
v_mul_lo_u32 v5, v5, s29
v_add_u32 v6, v4, v5
v_sub_u32 v7, v4, v5
v_add_u32 v8, {4*WS_}, v6
v_add_u32 v9, {4*WS_}, v7
v_and_b32 v10, 15, v2
v_lshrrev_b32 v11, 1, v10
v_xor_b32 v11, v11, v3
v_lshlrev_b32 v11, 4, v11
v_lshl_add_u32 v11, v10, 7, v11
s_lshl_b32 s28, s27, 12
s_add_u32 s28, s28, {HB}
v_add_u32 v11, s28, v11
v_xor_b32 v12, 64, v11
s_waitcnt lgkmcnt(0)
""")
    srd(a, 12, 20, WS_SIZE)
    ACC = lambda mat, i, nt: 16 + 4*(6*nt + 3*mat + i)
    FA = lambda buf, mat, i: 64 + 32*buf + 4*(3*mat+i)
    FB = lambda buf, nt: 88 + 32*buf + 4*nt
    def reads(s):
        L = []; sl = s % 8
        for nt in range(2):
            f = FB(s & 1, nt)
            L.append(f"ds_read_b128 v[{f}:{f+3}], v{11 + (s & 1)} offset:{((s//2) % 4)*HS + 2048*nt}")
        for mat in range(2):
            for i in range(3):
                for x in range(2):
                    f = FA(s & 1, mat, i) + 2*x
                    L.append(f"ds_read_b64_tr_b16 v[{f}:{f+1}], v{6 + (i & 1) + 2*(sl//4)} offset:{(sl % 4)*WS_ + mat*6144 + 4*x*192 + 32*i}")
        return L
    a("s_barrier\n@stamp")
    for l in reads(0): a(l)
    for s in range(NST):
        a("s_waitcnt lgkmcnt(0)")
        R = []
        if s+1 < NST:
            a("s_barrier"); R = reads(s+1)
        k = 0
        for mat in range(2):
            for i in range(3):
                for nt in range(2):
                    c = ACC(mat, i, nt); fa = FA(s & 1, mat, i); fb = FB(s & 1, nt)
                    if 'nomfma' not in OPT: a(f"v_mfma_f32_16x16x32_bf16 v[{c}:{c+3}], v[{fa}:{fa+3}], v[{fb}:{fb+3}], {'0' if s == 0 else f'v[{c}:{c+3}]'}")
                    if 'nords' not in OPT:
                        for l in R[2*k:2*k+2]: a(l)
                    k += 1
    a("@stamp")
    kk = 2*0.7978845608028654*math.log2(math.e)
    a(f"""s_mov_b32 s30, {fh(-kk)}
s_mov_b32 s31, {fh(-kk*0.044715)}
v_mov_b32 v10, s30
s_lshl_b32 s29, s23, 3
s_lshl_b32 s28, s27, 1
s_add_u32 s29, s29, s28
s_mul_i32 s29, s29, 49152
s_mul_i32 s28, s24, 3072
s_add_u32 s29, s29, s28
s_mul_i32 s28, s26, 1536
s_add_u32 s29, s29, s28
s_add_u32 s29, s29, {HIDF}
s_mov_b32 s32, s30
s_mov_b32 s33, s30
s_mov_b32 s30, s31
v_mov_b32 v11, v10
v_bfe_u32 v7, v2, 4, 1
v_mul_u32_u24 v7, 49152, v7
v_lshrrev_b32 v8, 5, v2
v_lshl_add_u32 v7, v8, 8, v7
v_and_b32 v8, 15, v2
v_lshl_add_u32 v7, v8, 4, v7""")
    for nt in range(2):
        G = ACC(0, 0, nt); U = ACC(1, 0, nt); T = 64 + 16*nt
        for i in range(0, 12, 2): a(f"v_pk_mul_f32 {P(T+i)}, {P(G+i)}, {P(G+i)}")
        for i in range(0, 12, 2): a(f"v_pk_fma_f32 {P(T+i)}, {P(T+i)}, s[30:31], {P(10)}")
        for i in range(0, 12, 2): a(f"v_pk_mul_f32 {P(T+i)}, {P(T+i)}, {P(G+i)}")
        for i in range(0, 12, 2): a(f"v_exp_f32 v{T+i}, v{T+i}\nv_exp_f32 v{T+i+1}, v{T+i+1}\nv_pk_mul_f32 {P(G+i)}, {P(G+i)}, {P(U+i)}")
        for i in range(0, 12, 2): a(f"v_pk_add_f32 {P(T+i)}, {P(T+i)}, 1.0 op_sel_hi:[1,0]")
        for i in range(12): a(f"v_rcp_f32 v{T+i}, v{T+i}")
        for i in range(0, 12, 2): a(f"v_pk_mul_f32 {P(G+i)}, {P(G+i)}, {P(T+i)}")
        for i in range(3):
            O = 96 + 4*i + 2*nt
            a(f"""v_cvt_pk_bf16_f32 v{O}, v{G+4*i}, v{G+4*i+1}
v_cvt_pk_bf16_f32 v{O+1}, v{G+4*i+2}, v{G+4*i+3}""")
    for i in range(3):
        O = 96 + 4*i
        a(f"""v_permlane16_swap_b32 v{O}, v{O+2}
v_permlane16_swap_b32 v{O+1}, v{O+3}
buffer_store_dwordx4 {Q(O)}, v7, s[12:15], s29 offen offset:{512*i}""")
    a("@stamp\n@dump 12\nK4_end:\ns_endpgm")
    return ('k4_kernel', (256,1,1), (768,1,1), 163840, kd_block('k4_kernel', 128, 96))

def k5(a):
    head(a, 'k5_kernel')
    NST = 24; SLOT = 18432; NS = 8
    a(f"""
s_cmp_ge_u32 s2, 256
s_cbranch_scc1 K5_end
@stamp
s_load_dwordx2 s[4:5], s[0:1], 48
s_load_dwordx2 s[6:7], s[0:1], 72
s_load_dwordx2 s[20:21], s[0:1], 88
s_and_b32 s3, s2, 7
s_lshr_b32 s22, s2, 3
s_and_b32 s23, s3, 3
s_lshl_b32 s23, s23, 3
s_and_b32 s24, s22, 7
s_add_u32 s23, s23, s24
s_lshr_b32 s24, s3, 2
s_lshl_b32 s24, s24, 2
s_lshr_b32 s25, s22, 3
s_add_u32 s24, s24, s25
v_lshrrev_b32 v1, 6, v0
v_and_b32 v2, 63, v0
v_readfirstlane_b32 s25, v1
s_cmp_lt_u32 s25, 4
s_cbranch_scc1 K5_cons
s_cmp_ge_u32 s25, 6
s_cbranch_scc1 K5_prodh
s_sub_u32 s25, s25, 4
""")
    init, sched = ramp(NST, 7)
    a(f"""
s_mul_i32 s28, s25, 5120
s_mul_i32 s27, s24, {1536*160}
s_add_u32 s27, s27, s28
s_add_u32 s27, s27, {WDT}
v_lshlrev_b32 v3, 4, v2
v_add_u32 v4, 4096, v3
s_waitcnt lgkmcnt(0)
""")
    srd(a, 8, 20, WS_SIZE)
    srd(a, 12, 20, WS_SIZE)
    def issue_w(s):
        a(f"s_add_u32 m0, s28, {(s % NS)*SLOT}")
        for q in range(4):
            a(f"buffer_load_dwordx4 v3, s[8:11], s27 offen offset:{1024*q} lds")
        a(f"s_add_u32 m0, s28, {(s % NS)*SLOT + 4096}")
        a(f"buffer_load_dwordx4 v4, s[8:11], s27 offen lds")
        a(f"s_add_u32 s27, s27, 10240")
    n = 0
    for s in init: issue_w(s); n += 1
    for s in range(NST):
        a(f"s_waitcnt vmcnt({5*(n-s-1)})\ns_barrier")
        for g in sched[s]: issue_w(g); n += 1
    a("@stamp\n@dump 12\ns_endpgm")
    a.st.n = 1
    a(f"""K5_prodh:
s_sub_u32 s25, s25, 6
s_lshl_b32 s29, s23, 2
s_lshl_b32 s28, s25, 1
s_add_u32 s29, s29, s28
s_mul_i32 s29, s29, 49152
s_add_u32 s29, s29, {HIDF}
s_lshl_b32 s28, s25, 12
s_add_u32 s28, s28, 10240
v_lshlrev_b32 v3, 4, v2
v_add_u32 v4, {49152-2048}, v3
s_waitcnt lgkmcnt(0)
""")
    srd(a, 12, 20, WS_SIZE)
    def issue_h(s):
        a(f"s_add_u32 m0, s28, {(s % NS)*SLOT}")
        for q in range(4):
            a(f"buffer_load_dwordx4 v{3+q//2}, s[12:15], s29 offen offset:{1024*q} lds")
        a("s_add_u32 s29, s29, 2048")
    n = 0
    for s in init: issue_h(s); n += 1
    for s in range(NST):
        a(f"s_waitcnt vmcnt({4*(n-s-1)})\ns_barrier")
        for g in sched[s]: issue_h(g); n += 1
    a("@stamp\n@dump 12\ns_endpgm")
    a.st.n = 1
    a(f"""K5_cons:
s_lshl_b32 s30, s23, 2
s_add_u32 s30, s30, s25
s_lshl_b32 s30, s30, 4
v_lshrrev_b32 v3, 2, v2
v_mul_u32_u24 v3, 160, v3
v_and_b32 v4, 3, v2
v_lshl_add_u32 v3, v4, 3, v3
v_add_u32 v4, {3*SLOT}, v3
v_add_u32 v5, {6*SLOT}, v3
s_lshl_b32 s28, s25, 11
s_add_u32 s28, s28, 10240
v_lshlrev_b32 v6, 4, v2
v_add_u32 v6, s28, v6
v_add_u32 v7, {3*SLOT}, v6
v_add_u32 v8, {6*SLOT}, v6
v_and_b32 v12, 15, v2
v_lshrrev_b32 v13, 4, v2
v_mul_u32_u24 v14, 1280, v12
v_lshl_add_u32 v14, v13, 3, v14
s_mul_i32 s26, s30, 1280
s_mul_i32 s27, s24, 160
s_add_u32 s26, s26, s27
s_add_u32 s26, s26, {X1}
v_lshlrev_b32 v15, 4, v13
s_lshl_b32 s28, s27, 1
s_add_u32 s28, s28, 12800
s_waitcnt lgkmcnt(0)
""")
    srd(a, 12, 20, WS_SIZE)
    srd(a, 16, 6, 2048*1280)
    ACC = lambda mt: 16 + 4*mt
    FA = lambda buf, u, mt: 36 + 48*buf + 24*u + 4*mt
    FB = lambda buf, u: 36 + 48*buf + 24*u + 20
    def reads(s):
        L = []; sl = s % NS
        for u in range(2):
            f = FB(s & 1, u)
            L.append(f"ds_read_b128 v[{f}:{f+3}], v{6+sl//3} offset:{(sl % 3)*SLOT + 1024*u}")
            for mt in range(5):
                for x in range(2):
                    f = FA(s & 1, u, mt) + 2*x
                    L.append(f"ds_read_b64_tr_b16 v[{f}:{f+1}], v{3+sl//3} offset:{(sl % 3)*SLOT + u*5120 + x*2560 + 32*mt}")
        return L
    a("s_barrier\n@stamp")
    for l in reads(0): a(l)
    for s in range(NST):
        a("s_waitcnt lgkmcnt(0)")
        R = []
        if s+1 < NST:
            a("s_barrier"); R = reads(s+1)
        if s == NST-6:
            for mt in range(5):
                a(f"buffer_load_dwordx2 v[{132+2*mt}:{133+2*mt}], v14, s[12:15], s26 offen offset:{32*mt}")
                a(f"buffer_load_dwordx4 v[{144+4*mt}:{147+4*mt}], v15, s[12:15], s28 offen offset:{64*mt}")
        k = 0
        for u in range(2):
            for mt in range(5):
                c = ACC(mt); fa = FA(s & 1, u, mt); fb = FB(s & 1, u)
                if 'nomfma' not in OPT: a(f"v_mfma_f32_16x16x32_bf16 v[{c}:{c+3}], v[{fa}:{fa+3}], v[{fb}:{fb+3}], {'0' if (s, u) == (0, 0) else f'v[{c}:{c+3}]'}")
                if 'nords' not in OPT:
                    for l in R[3*k:3*k+3]: a(l)
                k += 1
    a(f"""@stamp
s_and_b32 s26, s30, 63
s_lshl_b32 s26, s26, 5
s_lshr_b32 s29, s30, 6
s_add_u32 s26, s26, s29
s_mul_i32 s26, s26, 1280
s_add_u32 s26, s26, s27
v_mul_u32_u24 v14, 40960, v12
v_lshl_add_u32 v14, v13, 3, v14
s_waitcnt vmcnt(0)""")
    for mt in range(5):
        c = ACC(mt); x = 132+2*mt; g = 144+4*mt
        a(f"""v_lshlrev_b32 v36, 16, v{x}
v_and_b32 v37, 0xffff0000, v{x}
v_lshlrev_b32 v38, 16, v{x+1}
v_and_b32 v39, 0xffff0000, v{x+1}
v_fmac_f32 v36, v{c}, v{g}
v_fmac_f32 v37, v{c+1}, v{g+1}
v_fmac_f32 v38, v{c+2}, v{g+2}
v_fmac_f32 v39, v{c+3}, v{g+3}
v_cvt_pk_bf16_f32 v{x}, v36, v37
v_cvt_pk_bf16_f32 v{x+1}, v38, v39
buffer_store_dwordx2 v[{x}:{x+1}], v14, s[16:19], s26 offen offset:{32*mt}""")
    a("@stamp\n@dump 12\nK5_end:\ns_endpgm")
    return ('k5_kernel', (256,1,1), (512,1,1), NS*SLOT, kd_block('k5_kernel', 164, 96))

def poll(a, name, vaddr, vtmp, soff, target=1):
    a(f"""s_mov_b32 s46, 0x40000
{name}:
buffer_load_dword v{vtmp}, v{vaddr}, s[12:15], {soff} offen sc1
s_waitcnt vmcnt(0)
v_cmp_ne_u32 vcc, {target}, v{vtmp}
s_nop 1
s_cmp_eq_u64 vcc, 0
s_cbranch_scc1 {name}_ok
s_sleep {SLP}
s_sub_u32 s46, s46, 1
s_cmp_lg_u32 s46, 0
s_cbranch_scc1 {name}
{name}_ok:""")
def kf(a):
    head(a, 'k3_kernel')
    R2 = 98304
    TB = R2; ZB = R2 + 12288; ZR = 528; ZC = 8*ZR; PB = ZB + 5*ZC
    NST = 20; WS_ = 12288; HB = R2; HS = 16384
    NS2 = 24; DW = 10240; NWD = 16
    ORDER = [5, 6, 13,  7, 8, 14, 15,  0, 1, 9, 10,  2, 3, 4, 11, 12]
    EARLY = {7: 3, 8: 4, 9: 4}
    WPOS = lambda s: ORDER[s % NWD]
    CB = [3, 7, 15, 19]
    NEXTCB = {3: 7, 7: 15, 15: 19, 19: 23}
    SC = 'sc1' if 'nosc' not in OPT else ''
    SST = '' if 'stplain' in OPT else 'sc1'
    FST = '' if 'flplain' in OPT else 'sc1'
    FEX = '0xffff' if 'fl64' in OPT else '1'
    WSC = 'sc1' if 'wsc1' in OPT else ('nt' if 'wnt' in OPT else '')
    a(f"""
s_cmp_ge_u32 s2, 256
s_cbranch_scc1 KF_end
@stamp
s_load_dwordx2 s[4:5], s[0:1], 0
s_load_dwordx2 s[6:7], s[0:1], 88
s_load_dwordx4 s[56:59], s[0:1], 32
s_load_dwordx2 s[60:61], s[0:1], 72
s_and_b32 s50, s2, 7
s_lshr_b32 s51, s2, 3
s_lshl_b32 s50, s50, 1
s_lshr_b32 s21, s51, 4
s_add_u32 s50, s50, s21
s_and_b32 s51, s51, 15
v_lshrrev_b32 v4, 6, v0
v_and_b32 v1, 63, v0
v_readfirstlane_b32 s22, v4
s_cmp_ge_u32 s22, 8
s_cbranch_scc1 KF_prod
s_lshl_b32 s3, s50, 1
s_lshr_b32 s21, s51, 3
s_add_u32 s3, s3, s21
s_and_b32 s20, s51, 7
v_and_b32 v3, 31, v0
v_lshlrev_b32 v2, 3, v3
v_bfe_u32 v4, v0, 5, 1
v_lshl_add_u32 v2, v4, 8, v2
v_lshlrev_b32 v3, 2, v3
v_lshl_add_u32 v3, v4, 1, v3
v_and_b32 v5, 15, v0
v_bfe_u32 v6, v0, 4, 2""")
    col_slots(a, 22, 5, 6, 8, 22)
    a(f"""
s_lshl_b32 s23, s3, 8
s_lshl_b32 s21, s20, 5
s_add_u32 s23, s23, s21
s_add_u32 s23, s23, {YF}
s_lshl_b32 s21, s20, 3
s_add_u32 s21, s21, s22
s_lshl_b32 s24, s3, 6
s_add_u32 s24, s24, s21
s_lshl_b32 s47, s24, 2
s_lshl_b32 s21, s21, 5
s_add_u32 s21, s21, s3
s_mul_i32 s21, s21, 1280
s_mul_i32 s24, s24, 1280
v_lshlrev_b32 v4, 4, v1
s_lshl_b32 s25, s22, 10
s_add_u32 m0, s25, {PB}
s_add_u32 s25, s25, 5120
s_waitcnt lgkmcnt(0)
""")
    srd(a, 8, 4, 2048*1280)
    srd(a, 12, 6, WS_SIZE)
    a(f"""buffer_load_dwordx4 {Q(28)}, v11, s[12:15], s23 offen
buffer_load_dwordx4 {Q(32)}, v13, s[12:15], s23 offen
buffer_load_dwordx4 v4, s[12:15], s25 offen lds""")
    for k in range(3):
        a(f"buffer_load_dwordx2 {P(16+2*k)}, v2, s[8:11], s21 offen offset:{512*k}")
    w5_consts(a, 88, 22, 1.0)
    a(f"""
s_lshl_b32 s27, s22, 4
v_add_u32 v22, s27, v5
v_cvt_f32_u32 v22, v22
v_mul_f32 v22, {fh(1/128)}, v22
v_and_b32 v23, 1, v6
v_cvt_f32_u32 v23, v23
v_mul_f32 v23, 4.0, v23
v_lshrrev_b32 v24, 1, v6
v_cvt_f32_u32 v24, v24
v_mul_f32 v24, {fh(0.25)}, v24
v_fma_f32 v23, v23, v22, v24
v_mul_f32 v24, {fh(5.0)}, v22
v_mul_f32 v27, {fh(64.0)}, v22
v_cmp_eq_u32 vcc, 2, v6
v_cndmask_b32 v27, v23, v27, vcc
""")
    for t in range(4):
        for jj in range(4):
            a(f"""v_cos_f32 v25, v{27 if (t, jj) == (0, 0) else 23}
v_add_f32 v23, v23, v22
v_cos_f32 v26, v23
v_add_f32 v23, v23, v{24 if jj & 1 else 22}
v_cvt_pk_bf16_f32 v{96+4*t+jj}, v25, v26""")
    a(f"""
v_lshlrev_b32 v14, 5, v5
v_lshl_add_u32 v14, v6, 3, v14
s_lshl_b32 s27, s22, 9
s_add_u32 s27, s27, {TB}
v_add_u32 v14, s27, v14
v_and_b32 v15, 4096, v9
v_add_u32 v15, v15, v14
v_xor_b32 v112, 4096, v15
v_lshlrev_b32 v113, 3, v1
v_add_u32 v113, {TB}, v113
v_and_b32 v22, 7, v5
v_mul_u32_u24 v22, {ZR}, v22
v_lshl_add_u32 v22, v6, 4, v22
s_lshl_b32 s27, s22, 6
s_add_u32 s27, s27, {ZB}
v_add_u32 v115, s27, v22
v_lshrrev_b32 v22, 3, v5
v_mul_u32_u24 v22, {2*ZC}, v22
v_add_u32 v114, v115, v22
v_lshlrev_b32 v4, 2, v3
s_mul_i32 s27, s22, {ZR}
s_add_u32 s27, s27, {ZB}
v_add_u32 v7, s27, v4
v_add_u32 v4, {PB}, v4
v_and_b32 v22, 0x80000000, v9
v_xor_b32 v22, v22, v10
v_and_b32 v23, 0x80008000, v9
v_xor_b32 v24, v23, v12
""")
    r5_sconsts(a)
    a(f"""s_waitcnt vmcnt(4)
s_barrier
@stamp
v_cndmask_b32 v32, v32, v34, s[42:43]
v_cndmask_b32 v33, v33, v35, s[42:43]
v_xor_b32 v26, v30, v24
v_xor_b32 v27, v31, v24
v_xor_b32 v30, v30, v12
v_xor_b32 v31, v31, v12
ds_write_b64 v14, {P(32)} offset:8192""")
    for hh in range(2):
        a(f"""v_lshlrev_b32 v{36+2*hh}, 16, v{28+hh}
v_and_b32 v{37+2*hh}, 0xffff0000, v{28+hh}
v_lshlrev_b32 v{40+2*hh}, 16, v{30+hh}
v_and_b32 v{41+2*hh}, 0xffff0000, v{30+hh}
v_lshlrev_b32 v{44+2*hh}, 16, v{28+hh}
v_and_b32 v{45+2*hh}, 0xffff0000, v{28+hh}
v_lshlrev_b32 v{48+2*hh}, 16, v{26+hh}
v_and_b32 v{49+2*hh}, 0xffff0000, v{26+hh}""")
    for i in range(4):
        a(f"v_fmac_f32_dpp v{44+i}, v{36+i}, v22 row_ror:8 {DPP}")
        a(f"v_fmac_f32_dpp v{48+i}, v{40+i}, v10 row_ror:8 {DPP}")
    a(f"""v_cvt_pk_bf16_f32 v52, v44, v45
v_cvt_pk_bf16_f32 v53, v46, v47
v_cvt_pk_bf16_f32 v54, v48, v49
v_cvt_pk_bf16_f32 v55, v50, v51
ds_write_b64 v15, {P(52)}
ds_write_b64 v112, {P(54)}
s_waitcnt vmcnt(3) lgkmcnt(0)
s_barrier
@stamp""")
    for T in range(3):
        for t in range(4):
            for x in range(2):
                a(f"ds_read_b64_tr_b16 {P(28+16*T+4*t+2*x)}, v113 offset:{4096*T+1024*t+512*x}")
            if T == 1 and t == 3:
                a("s_waitcnt lgkmcnt(8)")
                for tt in range(4): a(f"v_mfma_f32_16x16x32_bf16 {Q(76)}, {Q(96+4*tt)}, {Q(28+4*tt)}, {'0' if tt == 0 else Q(76)}")
    for T in (1, 2):
        a(f"s_waitcnt lgkmcnt({8 if T == 1 else 0})")
        for t in range(4): a(f"v_mfma_f32_16x16x32_bf16 {Q(76+4*T)}, {Q(96+4*t)}, {Q(28+16*T+4*t)}, {'0' if t == 0 else Q(76+4*T)}")
    for j in range(5):
        a(f"ds_read_b64 {P(116+2*j)}, v4 offset:{512*j}")
    a(f"""ds_write_b128 v114, {Q(76)} offset:{ZC}
ds_write_b128 v114, {Q(80)} offset:{2*ZC}
ds_write_b128 v115, {Q(84)}
s_waitcnt vmcnt(0)""")
    unpack_x(a, 16, 28)
    a("s_waitcnt lgkmcnt(0)\ns_barrier\n@stamp")
    for c in range(5): a(f"ds_read_b64 {P(40+2*c)}, v7 offset:{ZC*c}")
    for j in range(5):
        a(f"ds_read_b64 {P(136+2*j)}, v4 offset:{5120+512*j}\nds_read_b64 {P(126+2*j)}, v4 offset:{2560+512*j}")
    a("s_waitcnt lgkmcnt(10)")
    for k in range(2):
        r, im = 42+4*k, 44+4*k; c, s = 88+4*k, 90+4*k; R, I = 50+4*k, 52+4*k
        a(f"""v_pk_mul_f32 {P(R)}, {P(r)}, {P(c)}
v_pk_mul_f32 {P(I)}, {P(r)}, {P(s)}
v_pk_fma_f32 {P(R)}, {P(im)}, {P(s)}, {P(R)} neg_lo:[1,0,0] neg_hi:[1,0,0]
v_pk_fma_f32 {P(I)}, {P(im)}, {P(c)}, {P(I)}""")
    z0,z1r,z1i,z2r,z2i = 40,50,52,54,56
    A,B,Cc,Dd,E = 58,60,62,64,66
    sl = {(3*j) % 5: j for j in range(5)}
    X = lambda d2: P(28+2*sl[d2]); G = lambda d2: P(116+2*sl[d2])
    a(f"""v_pk_add_f32 {P(E)}, {P(z0)}, {P(z1r)}
v_pk_fma_f32 {P(A)}, s[30:31], {P(z1r)}, {P(z0)}
v_pk_fma_f32 {P(B)}, s[32:33], {P(z1r)}, {P(z0)}
v_pk_mul_f32 {P(Cc)}, s[34:35], {P(z1i)}
v_pk_mul_f32 {P(Dd)}, s[36:37], {P(z1i)}
v_pk_add_f32 {P(E)}, {P(E)}, {P(z2r)}
v_pk_fma_f32 {P(A)}, s[32:33], {P(z2r)}, {P(A)}
v_pk_fma_f32 {P(B)}, s[30:31], {P(z2r)}, {P(B)}
v_pk_fma_f32 {P(Cc)}, s[36:37], {P(z2i)}, {P(Cc)}
v_pk_fma_f32 {P(Dd)}, s[34:35], {P(z2i)}, {P(Dd)} neg_lo:[0,1,0] neg_hi:[0,1,0]
v_pk_fma_f32 {X(0)}, {G(0)}, {P(E)}, {X(0)}
v_pk_add_f32 {P(68)}, {P(A)}, {P(Cc)} neg_lo:[0,1] neg_hi:[0,1]
v_pk_add_f32 {P(70)}, {P(A)}, {P(Cc)}
v_pk_add_f32 {P(72)}, {P(B)}, {P(Dd)} neg_lo:[0,1] neg_hi:[0,1]
v_pk_add_f32 {P(74)}, {P(B)}, {P(Dd)}
v_pk_fma_f32 {X(1)}, {G(1)}, {P(68)}, {X(1)}
v_pk_fma_f32 {X(4)}, {G(4)}, {P(70)}, {X(4)}
v_pk_fma_f32 {X(2)}, {G(2)}, {P(72)}, {X(2)}
v_pk_fma_f32 {X(3)}, {G(3)}, {P(74)}, {X(3)}
s_add_u32 s25, s24, {X1}
s_add_u32 s26, s24, {H2F}""")
    for j in range(5): a(f"v_cvt_pk_bf16_f32 v{16+j}, v{28+2*j}, v{29+2*j}")
    a(f"""v_permlane32_swap_b32 v16, v17
v_permlane32_swap_b32 v18, v19
buffer_store_dwordx2 {P(16)}, v2, s[12:15], s25 offen {SST}
buffer_store_dwordx2 {P(18)}, v2, s[12:15], s25 offen offset:512 {SST}
s_waitcnt lgkmcnt(0)
s_barrier""")
    ln_rows(a, 28, 22)
    a(f"""v_bfe_u32 v24, v0, 5, 1
v_mul_u32_u24 v24, {H2F - X1 - 256}, v24
v_add_u32 v24, v24, v2""")
    for j in range(5): a(f"v_pk_mul_f32 {P(136+2*j)}, {P(136+2*j)}, {P(22)} op_sel_hi:[1,0]")
    for j in range(5): a(f"v_pk_fma_f32 {P(28+2*j)}, {P(28+2*j)}, {P(136+2*j)}, {P(126+2*j)}")
    for j in range(4): a(f"v_cvt_pk_bf16_f32 v{40+j}, v{28+2*j}, v{29+2*j}")
    a(f"""v_cvt_pk_bf16_f32 v21, v36, v37
v_permlane32_swap_b32 v40, v41
v_permlane32_swap_b32 v42, v43
v_permlane32_swap_b32 v20, v21
buffer_store_dwordx2 {P(40)}, v2, s[12:15], s26 offen {SST}
buffer_store_dwordx2 {P(42)}, v2, s[12:15], s26 offen offset:512 {SST}
buffer_store_dwordx2 {P(20)}, v24, s[12:15], s25 offen offset:1024 {SST}
@stamp""")
    a(f"""v_mov_b32 v2, v1
s_lshr_b32 s26, s22, 2
s_and_b32 s27, s22, 3
v_lshrrev_b32 v3, 4, v2
v_bfe_u32 v4, v2, 2, 2
v_lshl_add_u32 v4, v3, 3, v4
v_mul_u32_u24 v4, 192, v4
v_and_b32 v5, 3, v2
v_lshl_add_u32 v4, v5, 3, v4
v_and_b32 v5, 1, v3
v_lshlrev_b32 v5, 5, v5
s_mul_i32 s28, s26, 96
v_add_u32 v4, s28, v4
s_cmp_eq_u32 s26, 0
s_cselect_b32 s29, 1, -1
v_mul_lo_u32 v5, v5, s29
v_add_u32 v6, v4, v5
v_sub_u32 v7, v4, v5
v_add_u32 v8, {4*WS_}, v6
v_add_u32 v9, {4*WS_}, v7
v_and_b32 v10, 15, v2
v_lshrrev_b32 v11, 1, v10
v_xor_b32 v11, v11, v3
v_lshlrev_b32 v11, 4, v11
v_lshl_add_u32 v11, v10, 7, v11
s_lshl_b32 s28, s27, 12
s_add_u32 s28, s28, {HB}
v_add_u32 v11, s28, v11
v_xor_b32 v12, 64, v11
s_add_u32 s47, s47, {FLG}
v_mov_b32 v13, 1
v_mov_b32 v14, 0
s_waitcnt vmcnt(0)
@stamp""")
    a("s_barrier")
    ACC = lambda mat, i, nt: 16 + 4*(6*nt + 3*mat + i)
    FA = lambda buf, mat, i: 64 + 32*buf + 4*(3*mat+i)
    FB = lambda buf, nt: 88 + 32*buf + 4*nt
    def reads(s):
        L = []; sl = s % 8
        for nt in range(2):
            L.append(f"ds_read_b128 {Q(FB(s & 1, nt))}, v{11 + (s & 1)} offset:{((s//2) % 4)*HS + 2048*nt}")
        for mat in range(2):
            for i in range(3):
                for x in range(2):
                    L.append(f"ds_read_b64_tr_b16 {P(FA(s & 1, mat, i) + 2*x)}, v{6 + (i & 1) + 2*(sl//4)} offset:{(sl % 4)*WS_ + mat*6144 + 4*x*192 + 32*i}")
        return L
    a("s_barrier\n@stamp")
    if STAMPS and 'g1cyc' in OPT: a("s_memtime s[64:65]")
    for l in reads(0): a(l)
    for s in range(NST):
        a("s_waitcnt lgkmcnt(0)")
        if s & 1: a("s_barrier")
        R = reads(s+1) if s+1 < NST else []
        k = 0
        for mat in range(2):
            for i in range(3):
                for nt in range(2):
                    c = ACC(mat, i, nt)
                    if 'g1nomfma' not in OPT: a(f"v_mfma_f32_16x16x32_bf16 {Q(c)}, {Q(FA(s & 1, mat, i))}, {Q(FB(s & 1, nt))}, {'0' if s == 0 else Q(c)}")
                    if 'g1nords' not in OPT:
                        for l in (R[RPG*k:RPG*k+RPG] if RPG else (R[:3] if k == 0 else R[k+2:k+3])): a(l)
                    k += 1
    a("@stamp")
    if STAMPS and 'g1cyc' in OPT: a("s_memtime s[62:63]")
    kk = 2*0.7978845608028654*math.log2(math.e)
    a(f"""s_mov_b32 s30, {fh(-kk*0.044715)}
s_mov_b32 s31, {fh(-kk*0.044715)}
v_mov_b32 v10, {fh(-kk)}
v_mov_b32 v11, {fh(-kk)}
s_lshl_b32 s29, s50, 3
s_lshl_b32 s28, s27, 1
s_add_u32 s29, s29, s28
s_mul_i32 s29, s29, 49152
s_mul_i32 s28, s51, 3072
s_add_u32 s29, s29, s28
s_mul_i32 s28, s26, 1536
s_add_u32 s29, s29, s28
s_add_u32 s29, s29, {HIDF}
v_bfe_u32 v7, v2, 4, 1
v_mul_u32_u24 v7, 49152, v7
v_lshrrev_b32 v8, 5, v2
v_lshl_add_u32 v7, v8, 8, v7
v_and_b32 v8, 15, v2
v_lshl_add_u32 v7, v8, 4, v7""")
    for nt in range(2):
        Gt = ACC(0, 0, nt); U = ACC(1, 0, nt); T = 64 + 16*nt
        for i in range(0, 12, 2): a(f"v_pk_mul_f32 {P(T+i)}, {P(Gt+i)}, {P(Gt+i)}")
        for i in range(0, 12, 2): a(f"v_pk_fma_f32 {P(T+i)}, {P(T+i)}, s[30:31], {P(10)}")
        for i in range(0, 12, 2): a(f"v_pk_mul_f32 {P(T+i)}, {P(T+i)}, {P(Gt+i)}")
        for i in range(0, 12, 2): a(f"v_exp_f32 v{T+i}, v{T+i}\nv_exp_f32 v{T+i+1}, v{T+i+1}\nv_pk_mul_f32 {P(Gt+i)}, {P(Gt+i)}, {P(U+i)}")
        for i in range(0, 12, 2): a(f"v_pk_add_f32 {P(T+i)}, {P(T+i)}, 1.0 op_sel_hi:[1,0]")
        for i in range(12): a(f"v_rcp_f32 v{T+i}, v{T+i}")
        for i in range(0, 12, 2): a(f"v_pk_mul_f32 {P(Gt+i)}, {P(Gt+i)}, {P(T+i)}")
        for i in range(3):
            O = 96 + 4*i + 2*nt
            a(f"v_cvt_pk_bf16_f32 v{O}, v{Gt+4*i}, v{Gt+4*i+1}\nv_cvt_pk_bf16_f32 v{O+1}, v{Gt+4*i+2}, v{Gt+4*i+3}")
    for i in range(3):
        O = 96 + 4*i
        a(f"""v_permlane16_swap_b32 v{O}, v{O+2}
v_permlane16_swap_b32 v{O+1}, v{O+3}
buffer_store_dwordx4 {Q(O)}, v7, s[12:15], s29 offen offset:{512*i} {SST}""")
    a(f"""@stamp
s_lshl_b32 s30, s50, 3
s_lshr_b32 s28, s51, 3
s_lshl_b32 s28, s28, 2
s_add_u32 s30, s30, s28
s_add_u32 s30, s30, s27
s_mul_i32 s29, s30, 49152
s_lshl_b32 s28, s26, 10
s_add_u32 s29, s29, s28
s_add_u32 s29, s29, {HIDF}
s_lshl_b32 s30, s30, 4
s_and_b32 s24, s51, 7
v_lshrrev_b32 v3, 2, v2
v_mul_u32_u24 v3, 160, v3
v_and_b32 v4, 3, v2
v_lshl_add_u32 v3, v4, 3, v3
s_mul_i32 s28, s26, 5120
v_add_u32 v3, s28, v3
v_add_u32 v4, {6*DW}, v3
v_add_u32 v5, {12*DW}, v3
v_lshlrev_b32 v6, 4, v2
v_and_b32 v12, 15, v2
v_lshrrev_b32 v13, 4, v2
v_mul_u32_u24 v8, 1280, v12
v_lshl_add_u32 v8, v13, 3, v8
s_mul_i32 s23, s30, 1280
s_mul_i32 s25, s24, 160
s_add_u32 s23, s23, s25
s_add_u32 s23, s23, {X1}
v_lshlrev_b32 v15, 4, v13
s_lshl_b32 s28, s25, 1
s_add_u32 s28, s28, 12800
s_lshl_b32 s21, s26, 6
s_add_u32 s23, s23, s21
s_lshl_b32 s21, s26, 7
s_add_u32 s28, s28, s21
s_waitcnt vmcnt(0)
@stamp
s_barrier""")
    srd(a, 16, 60, 2048*1280)
    AC2 = lambda mt: 16 + 4*mt
    FA2 = lambda buf, mt: 36 + 20*buf + 4*mt
    NB = 10
    FB2 = lambda s: 76 + 4*(s % NB)
    def reads2(s):
        p = WPOS(s)
        return [f"ds_read_b64_tr_b16 {P(FA2(s & 1, mt) + 2*x)}, v{3+p//6} offset:{(p % 6)*DW + x*2560 + 32*mt}" for mt in range(5) for x in range(2)]
    def ldb(s):
        a(f"buffer_load_dwordx4 {Q(FB2(s))}, v6, s[12:15], s29 offen offset:{2048*(s & 1)} {SC}")
        if s & 1: a("s_add_u32 s29, s29, 4096")
    a("s_barrier\n@stamp")
    nb = 0; nx = 0
    for s in range(NB-1): ldb(s); nb += 1
    for l in reads2(0): a(l)
    for s in range(NS2):
        a(f"s_waitcnt vmcnt({nb-s-1+nx}) lgkmcnt(0)")
        if s in CB: a("s_barrier")
        if nb < NS2: ldb(nb); nb += 1
        elif nx < 6:
            k = nx // 2
            a(f"buffer_load_dwordx2 {P(116+2*k)}, v8, s[12:15], s23 offen offset:{32*k} {SC}")
            a(f"buffer_load_dwordx4 {Q(128+4*k)}, v15, s[12:15], s28 offen offset:{64*k}")
            nx += 2
        R = reads2(s+1) if s+1 < NS2 else []
        for mt in range(5):
            c = AC2(mt)
            a(f"v_mfma_f32_16x16x32_bf16 {Q(c)}, {Q(FA2(s & 1, mt))}, {Q(FB2(s))}, {'0' if s == 0 else Q(c)}")
            for l in R[2*mt:2*mt+2]: a(l)
    RB = WPOS(10)*DW
    a(f"""@stamp
s_mul_i32 s28, s27, 5120
s_add_u32 s28, s28, {RB}
v_add_u32 v6, s28, v6
s_and_b32 s23, s30, 63
s_lshl_b32 s23, s23, 5
s_lshr_b32 s29, s30, 6
s_add_u32 s23, s23, s29
s_mul_i32 s23, s23, 1280
s_add_u32 s23, s23, s25
v_mul_u32_u24 v8, 40960, v12
v_lshl_add_u32 v8, v13, 3, v8
s_cmp_eq_u32 s26, 0
s_cbranch_scc1 KF_lo""")
    def fin(give, keep, base):
        for mt in give: a(f"ds_write_b128 v6, {Q(AC2(mt))} offset:{1024*mt}")
        a("s_waitcnt vmcnt(0)")
        for mt in keep:
            x = 116+2*(mt-base); r = 76+4*mt
            a(f"""v_lshlrev_b32 v{r}, 16, v{x}
v_and_b32 v{r+1}, 0xffff0000, v{x}
v_lshlrev_b32 v{r+2}, 16, v{x+1}
v_and_b32 v{r+3}, 0xffff0000, v{x+1}""")
        a("s_waitcnt lgkmcnt(0)\ns_barrier")
        for mt in keep: a(f"ds_read_b128 {Q(36+4*mt)}, v6 offset:{1024*mt}")
        for n, mt in enumerate(keep):
            c = AC2(mt); x = 116+2*(mt-base); g = 128+4*(mt-base); r = 36+4*mt; o = 76+4*mt
            a(f"""s_waitcnt lgkmcnt({len(keep)-1-n})
v_pk_add_f32 {P(c)}, {P(c)}, {P(r)}
v_pk_add_f32 {P(c+2)}, {P(c+2)}, {P(r+2)}
v_pk_fma_f32 {P(o)}, {P(c)}, {P(g)}, {P(o)}
v_pk_fma_f32 {P(o+2)}, {P(c+2)}, {P(g+2)}, {P(o+2)}
v_cvt_pk_bf16_f32 v{x}, v{o}, v{o+1}
v_cvt_pk_bf16_f32 v{x+1}, v{o+2}, v{o+3}
buffer_store_dwordx2 {P(x)}, v8, s[16:19], s23 offen offset:{32*mt}""")
        a("@dump 12\ns_endpgm")
    nst = a.st.n
    fin([0,1,2], [3,4], 2)
    a.st.n = nst
    a("KF_lo:")
    fin([3,4], [0,1,2], 0)
    a.st.n = 1
    a("KF_prod:\ns_sub_u32 s25, s22, 8\nv_mov_b32 v2, v1")
    for q in range(3):
        a(f"""v_add_u32 v10, {64*q}, v2
v_mul_u32_u24 v11, 43691, v10
v_lshrrev_b32 v11, 19, v11
v_mul_u32_u24 v12, 12, v11
v_sub_u32 v12, v10, v12
v_lshrrev_b32 v13, 2, v11
v_and_b32 v13, 2, v13
v_xor_b32 v12, v12, v13
v_mul_u32_u24 v11, 3072, v11
v_lshl_add_u32 v11, v12, 4, v11
v_subrev_u32 v{3+q}, {1024*q}, v11""")
    for q in range(4):
        a(f"""v_lshrrev_b32 v10, 4, v2
v_add_u32 v10, {4*q}, v10
v_xor_b32 v10, v10, v2
v_and_b32 v10, 7, v10
v_lshrrev_b32 v11, 3, v2
v_mul_u32_u24 v11, 1280, v11
v_lshl_add_u32 v11, v10, 4, v11
v_add_u32 v{6+q}, {q*(10240-1024)}, v11""")
    a(f"""
s_and_b32 s26, s25, 1
s_mul_i32 s27, s26, {16*3072}
s_mul_i32 s28, s51, 192
s_add_u32 s27, s27, s28
s_mul_i32 s28, s25, 3072
s_lshl_b32 s29, s50, 2
s_add_u32 s29, s29, s25
s_lshl_b32 s47, s29, 7
s_add_u32 s47, s47, {FLG}
s_mul_i32 s29, s29, 40960
s_add_u32 s29, s29, {H2F}
s_lshl_b32 s30, s25, 12
v_and_b32 v10, 31, v2
v_lshlrev_b32 v10, 2, v10
s_waitcnt lgkmcnt(0)
s_cmp_lt_u32 s25, 2
s_cselect_b32 s8, s56, s58
s_cselect_b32 s9, s57, s59
s_mov_b32 s10, {640*3072}
s_mov_b32 s11, 0x00020000
""")
    srd(a, 12, 6, WS_SIZE)
    def iw(s):
        a(f"s_add_u32 m0, s28, {(s % 8)*WS_}")
        for q in range(3):
            a(f"buffer_load_dwordx4 v{3+q}, s[8:11], s27 offen offset:{1024*q} {WSC} lds")
        a(f"s_add_u32 s27, s27, {32*3072}")
    def ih(d):
        a(f"s_add_u32 m0, s30, {HB + (d % 4)*HS}")
        for q in range(4):
            a(f"buffer_load_dwordx4 v{6+q}, s[12:15], s29 offen offset:{1024*q} {SC} lds")
        a("s_add_u32 s29, s29, 128")
    a("s_barrier")
    for s in range(0, 3): iw(s)
    a("@stamp\ns_barrier")
    for s in range(3, 6): iw(s)
    a("s_barrier")
    for s in range(6, 8): iw(s)
    a("s_barrier\n@stamp")
    a(f"""v_lshlrev_b32 v10, 2, v2
v_mov_b32 v12, 1
s_lshl_b32 s48, s50, 4
s_add_u32 s48, s48, s51
s_lshl_b32 s48, s48, 7
s_add_u32 s48, s48, {FLG}
s_lshl_b32 s47, s50, 2
s_add_u32 s47, s47, s25
s_lshl_b32 s47, s47, 9
s_add_u32 s47, s47, {FLG}
v_and_b32 v14, 3, v2
v_lshlrev_b32 v14, 7, v14
v_and_b32 v15, 15, v2
v_lshlrev_b32 v15, 7, v15
s_and_b32 s24, s51, 7
s_mul_i32 s31, s25, 2560
s_mul_i32 s32, s24, {1536*160}
s_add_u32 s32, s32, s31
s_add_u32 s32, s32, {WDT}
v_lshlrev_b32 v13, 4, v2
s_barrier
s_cmp_lg_u32 s25, 0
s_cbranch_scc1 KF_na1
s_mov_b64 exec, {FEX}
buffer_store_dword v12, v10, s[12:15], s48 offen {FST}
s_mov_b64 exec, -1
KF_na1:""")
    poll(a, 'KF_p1', 14, 11, 's47', 1)
    a("@stamp")
    cnt = []
    def iw2(s):
        a(f"s_add_u32 m0, s31, {WPOS(s)*DW}")
        a(f"buffer_load_dwordx4 v13, s[12:15], s32 offen {WSC} lds")
        a(f"buffer_load_dwordx4 v13, s[12:15], s32 offen offset:1024 {WSC} lds")
        a("s_mov_b32 exec_hi, 0")
        a(f"buffer_load_dwordx4 v13, s[12:15], s32 offen offset:2048 {WSC} lds")
        a("s_mov_b32 exec_hi, -1")
        a("s_add_u32 s32, s32, 10240")
    def grp(d):
        if 'g1noload' in OPT and d >= 4:
            cnt.append(0); return
        ih(d); n = 4
        if d >= 4:
            iw(2*d); iw(2*d+1); n += 6
        cnt.append(n)
    for d in range(4): grp(d)
    nw2 = 0
    for d in range(10):
        a(f"s_waitcnt vmcnt({sum(cnt[d+1:])})\ns_barrier")
        if d >= 1 and d+3 < 10: grp(d+3)
        if d >= 7:
            for _ in range(EARLY[d]): iw2(nw2); nw2 += 1
            cnt.append(3*EARLY[d])
    a("@stamp\ns_barrier")
    while nw2 < NWD: iw2(nw2); nw2 += 1
    a(f"""@stamp
s_lshl_b32 s47, s50, 11
s_add_u32 s47, s47, {FLG + 32768}
s_add_u32 s48, s48, 32768
s_barrier
s_cmp_eq_u32 s25, 1
s_cbranch_scc0 KF_nb2
s_mov_b64 exec, {FEX}
buffer_store_dword v12, v10, s[12:15], s48 offen {FST}
s_mov_b64 exec, -1
KF_nb2:
s_cmp_lg_u32 s25, 0
s_cbranch_scc1 KF_na2""")
    poll(a, 'KF_p2', 15, 11, 's47', 1)
    a("KF_na2:\n@stamp\ns_waitcnt vmcnt(0)\ns_barrier")
    pend = []
    for s in CB:
        need = [t for t in pend if t <= NEXTCB[s]]
        a(f"s_waitcnt vmcnt({3*(len(pend)-len(need))})\ns_barrier")
        pend = [t for t in pend if t not in need]
        while nw2 < NS2 and nw2 - NWD <= s:
            iw2(nw2); pend.append(nw2); nw2 += 1
    a("@stamp\n@dump 12\nKF_end:\ns_endpgm")
    return ('k3_kernel', (256,1,1), (768,1,1), 163840, kd_block('k3_kernel', 148, 100))

def build(kernels, path):
    a = Asm2(); infos = []
    for k in kernels:
        infos.append(k(a))
    if 'k4twice' in OPT: infos.insert(4, infos[4][:4] + ('',))
    if 'empty4' in OPT:
        for i in range(4):
            a(f".globl e{i}_kernel\n.p2align 8\n.type e{i}_kernel,@function\ne{i}_kernel:\ns_endpgm")
            infos.append((f'e{i}_kernel', (256,1,1), (256,1,1), 0, kd_block(f'e{i}_kernel', 8, 16)))
    a("CODE_END:\ns_endpgm")
    hdr = open('adaLN_cond__spectral_gfnet__glu_gated_geglu__prompt.s.ref').read().split('\n')[:13]
    s = '\n'.join(hdr) + '\n'
    for n, g, b, l, _ in infos:
        s += f"; @launch kernel={n} grid=({g[0]},{g[1]},{g[2]}) block=({b[0]},{b[1]},{b[2]}) lds={l}\n"
    s += '.amdgcn_target "amdgcn-amd-amdhsa--gfx950"\n.text\n' + a.text() + '.section .rodata,"a"\n'
    for i in infos: s += i[4]
    open(path, 'w').write(s)
if __name__ == '__main__':
    args = sys.argv[1:]
    out = 'cur.s'
    for x in args:
        if x == 'stamp': STAMPS = True
        elif x.endswith('.s'): out = x
        elif x.startswith('slp'): SLP = int(x[3:])
        elif x.startswith('tsh'): TLBSH = int(x[3:])
        elif x.startswith('rpg'): RPG = int(x[3:])
        else: OPT.add(x)
    build([k0, k1, k2, k3, k4, k5] if 'unfused' in OPT else [k0, k1, k2, kf], out)
```

```python
import sys, math
sys.path.insert(0,'work')
import gen
from gen import *
NAME = 'adaLN_cond__spectral_gfnet__glu_gated_geglu__prompt_kernel'
MODG = 0x4000
GFL = 0x20000
CNT = 0x8000
class Bar:
    def __init__(self): self.seq = {}
    def __call__(self, a, role, name):
        self.seq.setdefault(role, []).append(name); a("s_barrier")
def spin(a, name, load, cmp):
    a(f"s_mov_b32 s46, 0x40000\n{name}:")
    a(load); a("s_waitcnt vmcnt(0)"); a(cmp)
    a(f"""s_nop 1
s_cmp_eq_u64 vcc, 0
s_cbranch_scc1 {name}_ok
s_sleep {gen.SLP}
s_sub_u32 s46, s46, 1
s_cmp_lg_u32 s46, 0
s_cbranch_scc1 {name}
{name}_ok:""")
def addr_xf(a):
    a(f"""s_lshl_b32 s40, s22, 5
v_lshrrev_b32 v22, 1, v6
v_lshl_add_u32 v22, v22, 4, v5
v_add_u32 v22, s40, v22
v_add_u32 v23, 256, v8
v_and_b32 v24, 1, v6
v_lshlrev_b32 v24, 7, v24""")
    for src_, dst in ((22, 11), (23, 13)):
        a(f"""v_lshrrev_b32 v25, 3, v{src_}
v_lshl_add_u32 v25, v25, 16, v24
v_and_b32 v26, 7, v{src_}
v_lshl_add_u32 v{dst}, v26, 4, v25""")
def addr_yf(a):
    a(f"""s_lshl_b32 s40, s22, 5
v_lshrrev_b32 v22, 1, v6
v_lshl_add_u32 v22, v22, 4, v5
v_add_u32 v22, s40, v22
v_add_u32 v23, 256, v8
v_and_b32 v24, 1, v6
v_lshlrev_b32 v24, 8, v24
v_lshl_add_u32 v11, v22, 13, v24
v_lshl_add_u32 v13, v23, 13, v24""")
def km(a, OPT):
    bar = Bar()
    a(f".globl {NAME}\n.p2align 8\n.type {NAME},@function\n{NAME}:")
    a.st = Stamper(a, 3)
    ST = lambda tag: a("@stamp") if tag in OPT.get('st', '') else None
    R2 = 98304
    GP = R2; NON = R2 + 1536; PB1 = R2 + 2048; Z1 = R2 + 8192; K2B = R2 + 24576
    TB = R2; ZB = R2 + 12288; ZR = 528; ZC = 8*ZR; PB = R2 + 57344
    NST = 20; WS_ = 12288; HB = R2; HS = 16384
    NS2 = 24; DW = 10240; NWD = 16
    ORDER = [5, 6, 13,  7, 8, 14, 15,  0, 1, 9, 10,  2, 3, 4, 11, 12]
    EARLY = {7: 3, 8: 4, 9: 4}
    WPOS = lambda s: ORDER[s % NWD]
    CB = [3, 7, 15, 19]; NEXTCB = {3: 7, 7: 15, 15: 19, 19: 23}
    XR = 152
    a(f"""
s_cmp_ge_u32 s2, 256
s_cbranch_scc1 KM_end
@stamp
s_load_dwordx2 s[4:5], s[0:1], 0
s_load_dwordx2 s[6:7], s[0:1], 88
s_load_dwordx4 s[56:59], s[0:1], 56
s_load_dwordx4 s[24:27], s[0:1], 8
s_load_dwordx2 s[60:61], s[0:1], 80
s_and_b32 s50, s2, 7
s_lshr_b32 s51, s2, 3
s_mul_i32 s52, s50, 30
s_add_u32 s52, s52, s51
s_lshl_b32 s50, s50, 1
s_lshr_b32 s21, s51, 4
s_add_u32 s50, s50, s21
s_and_b32 s51, s51, 15
v_lshrrev_b32 v4, 6, v0
v_and_b32 v1, 63, v0
v_readfirstlane_b32 s22, v4
s_lshl_b32 s3, s50, 1
s_lshr_b32 s21, s51, 3
s_add_u32 s3, s3, s21
s_and_b32 s20, s51, 7
s_cmp_ge_u32 s22, 8
s_cbranch_scc1 KM_prod
v_and_b32 v3, 31, v0
v_lshlrev_b32 v2, 3, v3
v_bfe_u32 v4, v0, 5, 1
v_lshl_add_u32 v2, v4, 8, v2
v_lshlrev_b32 v3, 2, v3
v_lshl_add_u32 v3, v4, 1, v3
s_lshl_b32 s21, s20, 3
s_add_u32 s21, s21, s22
s_lshl_b32 s21, s21, 5
s_add_u32 s21, s21, s3
s_mul_i32 s21, s21, 1280
s_lshl_b32 s23, s52, 5
v_lshrrev_b32 v116, 1, v0
v_and_b32 v117, 1, v0
v_mul_u32_u24 v118, 7680, v116
v_lshl_add_u32 v118, v117, 4, v118
v_add_u32 v118, s23, v118
v_lshlrev_b32 v119, 1, v116
s_cmp_lt_u32 s2, 240
s_cselect_b32 s49, 5, 0
s_waitcnt lgkmcnt(0)
""")
    srd(a, 12, 6, WS_SIZE)
    srd(a, 8, 56, 1280)
    srd(a, 16, 58, 640*3840*2)
    NR = 4
    a("s_cmp_ge_u32 s22, s49\ns_cbranch_scc1 KM_nog1")
    for i in range(NR): a(f"buffer_load_short_d16_hi v{136+i}, v119, s[8:11], 0 offen offset:{320*i}")
    a("s_mov_b32 s23, 0")
    for i in range(NR):
        a(f"buffer_load_dwordx4 {Q(120+4*i)}, v118, s[16:19], s23 offen")
        if i < NR-1: a(f"s_add_u32 s23, s23, {160*7680}")
    a("KM_nog1:")
    srd(a, 8, 4, 2048*1280)
    for k in range(3): a(f"buffer_load_dwordx2 {P(XR+2*k)}, v2, s[8:11], s21 offen offset:{512*k}")
    a("v_and_b32 v5, 15, v0\nv_bfe_u32 v6, v0, 4, 2")
    col_slots(a, 22, 5, 6, 8, 22)
    addr_xf(a)
    w5_consts(a, 88, 22, -1.0)
    a(f"""
v_cvt_f32_u32 v22, v8
v_mul_f32 v22, {fh(1/128)}, v22
v_cvt_f32_u32 v23, v6
v_mul_f32 v23, {fh(8.0)}, v23
v_and_b32 v24, {fh(0.25)}, v9
v_fma_f32 v23, v23, v22, -v24
v_mul_f32 v24, {fh(25.0)}, v22
""")
    for t in range(4):
        for jj in range(4):
            a(f"""v_cos_f32 v25, v23
v_add_f32 v23, v23, v22
v_cos_f32 v26, v23
v_add_f32 v23, v23, v{24 if jj == 3 else 22}
v_cvt_pk_bf16_f32 v{96+4*t+jj}, v25, v26""")
    a(f"""
v_lshrrev_b32 v22, 3, v3
v_xor_b32 v22, s22, v22
v_lshlrev_b32 v22, 4, v22
v_and_b32 v23, 7, v3
v_lshl_add_u32 v22, v23, 1, v22
s_lshl_b32 s23, s22, 8
s_add_u32 s23, s23, {Z1}
v_add_u32 v14, s23, v22
v_xor_b32 v15, {2048+128}, v14
v_lshlrev_b32 v7, 2, v3
v_add_u32 v7, {PB1}, v7
v_xor_b32 v22, v6, v5
""")
    for t in range(4):
        a(f"""v_xor_b32 v23, {4*t}, v22
v_lshlrev_b32 v23, 4, v23
v_lshl_add_u32 v23, v5, 8, v23
v_add_u32 v{112+t}, {Z1}, v23""")
    r5_sconsts(a)
    a(f"s_cmp_ge_u32 s22, s49\ns_cbranch_scc1 KM_nog2\ns_waitcnt vmcnt({NR+3})")
    C = 136; T = 140
    for i in range(NR): a(f"v_mul_f32 v{T+i}, {fh(-math.log2(math.e))}, v{C+i}")
    for i in range(NR): a(f"v_exp_f32 v{T+i}, v{T+i}")
    for i in range(NR): a(f"v_add_f32 v{T+i}, 1.0, v{T+i}")
    for i in range(NR): a(f"v_rcp_f32 v{T+i}, v{T+i}")
    for i in range(NR): a(f"v_mul_f32 v{C+i}, v{C+i}, v{T+i}")
    for i in range(NR): a(f"v_cvt_pk_bf16_f32 v{C+i}, v{C+i}, v{C+i}")
    for i in range(NR): a(f"v_and_b32 v{48+2*i}, 0xffff0000, v{C+i}")
    a(f"""v_lshrrev_b32 v22, 4, v0
v_lshlrev_b32 v23, 6, v22
v_lshl_add_u32 v23, v117, 5, v23
v_add_u32 v23, {GP}, v23""")
    for i in range(NR):
        a(f"s_waitcnt vmcnt({NR-1-i+3})")
        for j in range(4): a(f"v_lshlrev_b32 v{32+2*j}, 16, v{120+4*i+j}\nv_and_b32 v{33+2*j}, 0xffff0000, v{120+4*i+j}")
        for j in range(4):
            if i == 0: a(f"v_pk_mul_f32 {P(40+2*j)}, {P(32+2*j)}, {P(48)} op_sel_hi:[1,0]")
            else: a(f"v_pk_fma_f32 {P(40+2*j)}, {P(32+2*j)}, {P(48+2*i)}, {P(40+2*j)} op_sel_hi:[1,0,1]")
    for mode in ('quad_perm:[2,3,0,1]', 'row_ror:4', 'row_ror:8'):
        for j in range(8): a(f"v_add_f32_dpp v{40+j}, v{40+j}, v{40+j} {mode} {DPP}")
    a(f"""v_cmp_gt_u32 vcc, 2, v5
s_and_saveexec_b64 s[38:39], vcc
ds_write_b128 v23, {Q(40)}
ds_write_b128 v23, {Q(44)} offset:16
s_mov_b64 exec, s[38:39]
KM_nog2:
s_waitcnt lgkmcnt(0)""")
    ST('a')
    bar(a, 'W', 'g1')
    a(f"""v_mov_b32 v22, {NON}
ds_read_b32 v27, v22
s_cmp_lg_u32 s22, 0
s_cbranch_scc1 KM_nog3
s_cmp_eq_u32 s49, 0
s_cbranch_scc1 KM_nog3
v_mul_u32_u24 v23, 320, v6
v_lshl_add_u32 v23, v5, 2, v23
v_add_u32 v23, {GP}, v23
ds_read_b32 v40, v23
ds_read_b32 v41, v23 offset:64
ds_read_b32 v42, v23 offset:128
ds_read_b32 v43, v23 offset:192
ds_read_b32 v44, v23 offset:256
s_sub_u32 s23, s52, 40
s_cmp_lt_u32 s23, 40
s_cselect_b32 s21, 1.0, 0
s_sub_u32 s23, s52, 160
s_cmp_lt_u32 s23, 40
s_cselect_b32 s21, 1.0, s21
s_waitcnt lgkmcnt(0)
v_add_f32 v40, v40, v41
v_add_f32 v42, v42, v43
v_add_f32 v40, v40, v44
v_add_f32 v40, v40, v42
v_mov_b32 v41, v40
v_permlane16_swap_b32 v40, v41
v_add_f32 v40, v40, v41
v_mov_b32 v41, v40
v_permlane32_swap_b32 v40, v41
v_add_f32 v40, v40, v41
v_cvt_pk_bf16_f32 v40, v40, v40
v_and_b32 v40, 0xffff0000, v40
v_add_f32 v40, s21, v40
v_cvt_pk_bf16_f32 v40, v40, v40
v_and_b32 v40, 0xffff0000, v40
v_mov_b32 v41, v27
s_mov_b64 exec, 0xffff
s_cmp_lt_u32 s52, 80
s_cbranch_scc1 KM_gran
s_lshl_b32 s23, s52, 6
v_lshlrev_b32 v23, 2, v1
buffer_store_dword v40, v23, s[12:15], s23 offen sc1
s_branch KM_pub
KM_gran:
s_lshl_b32 s23, s52, 7
s_add_u32 s23, s23, {MODG}
v_lshlrev_b32 v23, 3, v1
buffer_store_dwordx2 {P(40)}, v23, s[12:15], s23 offen sc1
KM_pub:
s_mov_b64 exec, -1
KM_nog3:
s_waitcnt vmcnt(1) lgkmcnt(0)
v_readfirstlane_b32 s53, v27""")
    a("s_cmp_eq_u32 s22, 0\ns_cbranch_scc1 KM_x0\ns_waitcnt vmcnt(0)\nKM_x0:")
    a("s_cmp_lg_u32 s49, 0\ns_cbranch_scc1 KM_x1\ns_waitcnt vmcnt(0)\nKM_x1:")
    unpack_x(a, XR, 28)
    ln_rows(a, 28, 22)
    a(f"""s_lshl_b32 s23, s3, 11
s_lshl_b32 s21, s20, 8
s_add_u32 s23, s23, s21
s_add_u32 s23, s23, {XF}""")
    ST('a')
    bar(a, 'W', 'g2')
    ST('a')
    for j in range(5): a(f"ds_read_b64 {P(40+2*j)}, v7 offset:{2560+512*j}\nds_read_b64 {P(50+2*j)}, v7 offset:{512*j}")
    for j in range(5): a(f"v_pk_mul_f32 {P(28+2*j)}, {P(28+2*j)}, {P(22)} op_sel_hi:[1,0]")
    a("s_waitcnt lgkmcnt(0)")
    for j in range(5): a(f"v_pk_fma_f32 {P(28+2*j)}, {P(28+2*j)}, {P(40+2*j)}, {P(50+2*j)}")
    h = {(3*j) % 5: 28+2*j for j in range(5)}
    t1,t2,t3,t4 = 40,42,44,46; z0,p1,q1,p2,q2 = 48,50,52,54,56
    a(f"""v_pk_add_f32 {P(t1)}, {P(h[1])}, {P(h[4])}
v_pk_add_f32 {P(t2)}, {P(h[2])}, {P(h[3])}
v_pk_add_f32 {P(t3)}, {P(h[1])}, {P(h[4])} neg_lo:[0,1] neg_hi:[0,1]
v_pk_add_f32 {P(t4)}, {P(h[2])}, {P(h[3])} neg_lo:[0,1] neg_hi:[0,1]
v_pk_add_f32 {P(z0)}, {P(h[0])}, {P(t1)}
v_pk_fma_f32 {P(p1)}, s[30:31], {P(t1)}, {P(h[0])}
v_pk_fma_f32 {P(p2)}, s[32:33], {P(t1)}, {P(h[0])}
v_pk_mul_f32 {P(q1)}, s[34:35], {P(t3)}
v_pk_mul_f32 {P(q2)}, s[36:37], {P(t3)}
v_pk_add_f32 {P(z0)}, {P(z0)}, {P(t2)}
v_pk_fma_f32 {P(p1)}, s[32:33], {P(t2)}, {P(p1)}
v_pk_fma_f32 {P(p2)}, s[30:31], {P(t2)}, {P(p2)}
v_pk_fma_f32 {P(q1)}, s[36:37], {P(t4)}, {P(q1)}
v_pk_fma_f32 {P(q2)}, s[34:35], {P(t4)}, {P(q2)} neg_lo:[0,1,0] neg_hi:[0,1,0]
v_cvt_pk_bf16_f32 v22, v{z0}, v{z0+1}
ds_write_b32 v14, v22 offset:8192""")
    for k, (p, q) in enumerate(((p1, q1), (p2, q2))):
        c, s = 88+4*k, 90+4*k; r, im = 28+4*k, 30+4*k
        a(f"""v_pk_mul_f32 {P(r)}, {P(p)}, {P(c)}
v_pk_mul_f32 {P(im)}, {P(p)}, {P(s)}
v_pk_fma_f32 {P(r)}, {P(q)}, {P(s)}, {P(r)}
v_pk_fma_f32 {P(im)}, {P(q)}, {P(c)}, {P(im)} neg_lo:[1,0,0] neg_hi:[1,0,0]
v_cvt_pk_bf16_f32 v{23+2*k}, v{r}, v{r+1}
v_cvt_pk_bf16_f32 v{24+2*k}, v{im}, v{im+1}
ds_write_b32 v{14+k}, v{23+2*k}
ds_write_b32 v{14+k}, v{24+2*k} offset:4096""")
    a("s_waitcnt lgkmcnt(0)")
    bar(a, 'W', 'k1a')
    for T in range(3):
        for t in range(4): a(f"ds_read_b128 {Q(28+16*T+4*t)}, v{112+t} offset:{4096*T}")
    n = 12
    for T in range(3):
        for t in range(4):
            n -= 1
            a(f"s_waitcnt lgkmcnt({n})")
            a(f"v_mfma_f32_16x16x32_bf16 {Q(76+4*T)}, {Q(28+16*T+4*t)}, {Q(96+4*t)}, {'0' if t == 0 else Q(76+4*T)}")
    a(f"""v_and_b32 v22, 0x80008000, v9
v_and_b32 v23, v9, v12
v_bfi_b32 v24, v9, v22, v12
v_pk_mul_f32 {P(28)}, {P(76)}, {P(10)} op_sel_hi:[1,0]
v_pk_mul_f32 {P(30)}, {P(78)}, {P(10)} op_sel_hi:[1,0]
v_pk_mul_f32 {P(32)}, {P(80)}, {P(10)} op_sel_hi:[1,0]
v_pk_mul_f32 {P(34)}, {P(82)}, {P(10)} op_sel_hi:[1,0]""")
    for i in range(4):
        a(f"v_add_f32_dpp v{76+i}, v{32+i}, v{76+i} row_ror:8 {DPP}")
        a(f"v_subrev_f32_dpp v{80+i}, v{28+i}, v{80+i} row_ror:8 {DPP}")
    a(f"""v_cvt_pk_bf16_f32 v36, v76, v77
v_cvt_pk_bf16_f32 v37, v78, v79
v_cvt_pk_bf16_f32 v38, v80, v81
v_cvt_pk_bf16_f32 v39, v82, v83
v_cvt_pk_bf16_f32 v44, v84, v85
v_cvt_pk_bf16_f32 v45, v86, v87
v_xor_b32 v36, v36, v23
v_xor_b32 v37, v37, v23
v_xor_b32 v38, v38, v24
v_xor_b32 v39, v39, v24
v_xor_b32 v44, v44, v22
v_xor_b32 v45, v45, v22
v_cndmask_b32 v40, v36, v38, s[42:43]
v_cndmask_b32 v41, v37, v39, s[42:43]
v_cndmask_b32 v42, v38, v36, s[42:43]
v_cndmask_b32 v43, v39, v37, s[42:43]
buffer_store_dwordx4 {Q(40)}, v11, s[12:15], s23 offen sc1
v_mov_b32_dpp v46, v44 row_ror:8 {DPP}
v_mov_b32_dpp v47, v45 row_ror:8 {DPP}
s_mov_b32 exec_lo, 0x00ff00ff
s_mov_b32 exec_hi, 0
buffer_store_dwordx4 {Q(44)}, v13, s[12:15], s23 offen sc1
s_mov_b64 exec, -1""")
    ST('a')
    a("s_waitcnt vmcnt(0)")
    ST('a')
    bar(a, 'W', 'k1b')
    a(f"""s_lshr_b32 s26, s22, 2
s_and_b32 s27, s22, 3
s_lshl_b32 s28, s26, 2
s_lshr_b32 s29, s2, 6
s_add_u32 s28, s28, s29
s_lshl_b32 s28, s28, 3
s_and_b32 s29, s2, 7
s_add_u32 s28, s28, s29
s_lshl_b32 s41, s28, 16
s_lshl_b32 s28, s28, 3
s_bfe_u32 s29, s2, 0x30003
s_add_u32 s28, s28, s29
s_lshl_b32 s29, s29, 4
s_add_u32 s41, s41, s29
s_cmp_gt_u32 s28, 320
s_cbranch_scc1 KM_k2skip
s_cmp_eq_u32 s28, 320
s_cselect_b32 s41, {32*65536}, s41
s_lshr_b32 s21, s28, 5
s_lshl_b32 s21, s21, 3
s_and_b32 s23, s28, 7
s_add_u32 s21, s21, s23
s_sub_u32 s23, 128, s21
s_cmp_eq_u32 s21, 0
s_cselect_b32 s23, 64, s23
s_bitcmp1_b32 s28, 3
s_cselect_b32 s21, s23, s21
s_mul_i32 s21, s21, 5
s_bfe_u32 s23, s28, 0x10004
s_lshl_b32 s23, s23, 7
s_add_u32 s21, s21, s23
s_add_u32 s21, s21, 128
s_sub_u32 s23, s21, 640
s_min_u32 s21, s21, s23
s_sub_u32 s23, 640, s21
s_min_u32 s21, s21, s23
s_sub_u32 s23, s28, 256
s_mul_i32 s23, s23, 5
s_cmp_ge_u32 s28, 256
s_cselect_b32 s40, s23, s21
v_and_b32 v1, 15, v0
v_bfe_u32 v2, v0, 4, 2
v_bfe_u32 v3, v0, 6, 2
v_and_b32 v9, 63, v0
v_lshl_add_u32 v4, v3, 2, v2
v_xor_b32 v10, v4, v1
v_lshl_add_u32 v4, v4, 4, v10
v_lshlrev_b32 v4, 7, v4
v_lshrrev_b32 v5, 1, v1
v_and_b32 v6, 1, v1
v_lshl_add_u32 v5, v6, 3, v5
v_lshl_add_u32 v5, v2, 4, v5
v_lshlrev_b32 v5, 4, v5
v_lshl_add_u32 v5, v3, 11, v5
s_lshl_b32 s29, s28, 13
s_lshl_b32 s48, s26, 14
s_add_u32 s48, s48, {K2B}
v_lshl_add_u32 v6, v3, 4, v1
v_cvt_f32_u32 v6, v6
v_cvt_f32_u32 v7, v2
v_cvt_f32_u32 v8, v1
v_mul_f32 v7, 4.0, v7
""")
    M = lambda t: 56+6*t
    N = lambda x, y: 80+6*(2*x+y)
    def gen_(R, cur, step, last):
        for hh in range(2):
            a(f"""v_cos_f32 v12, v{cur}
v_sin_f32 v13, v{cur}
v_add_f32 v{cur}, v{cur}, v{step}
v_cos_f32 v14, v{cur}
v_sin_f32 v15, v{cur}
v_add_f32 v{cur}, v{cur}, v{last if hh else step}
v_cvt_pk_bf16_f32 v{R+2+hh}, v12, v14
v_cvt_pk_bf16_f32 v{R+hh}, -v13, -v15
v_cvt_pk_bf16_f32 v{R+4+hh}, v13, v15""")
    a(f"v_mul_f32 v16, {fh(1/64)}, v6\nv_mul_f32 v10, v7, v16\nv_mul_f32 v11, {fh(13.0)}, v16")
    for t in range(4): gen_(M(t), 10, 16, 11)
    for x in range(2):
        a(f"v_add_f32 v16, {fh(16.0*x)}, v8\nv_mul_f32 v16, {fh(1/32)}, v16\nv_mul_f32 v10, v7, v16\nv_mul_f32 v11, {fh(13.0)}, v16")
        for y in range(2): gen_(N(x, y), 10, 16, 11)
    a(f"v_mul_f32 v16, {fh(-1/2048)}, v6\nv_mul_f32 v10, v7, v16\nv_mul_f32 v11, {fh(13.0)}, v16")
    for k in range(8):
        a(f"v_cos_f32 v{104+k}, v10\nv_sin_f32 v{112+k}, v10")
        if k < 7: a(f"v_add_f32 v10, v10, v{11 if k == 3 else 16}")
    a(f"""s_lshl_b32 s24, s27, 4
v_cvt_f32_u32 v12, s24
v_add_f32 v12, v12, v7
s_mov_b32 s38, {fh(2.0/(2048*640))}
s_cmp_eq_u32 s28, 256
s_cselect_b32 s38, {fh(1.0/(2048*640))}, s38
s_cmp_eq_u32 s28, 320
s_cselect_b32 s38, {fh(1.0/(2048*640))}, s38
s_mov_b32 s39, s38""")
    for nt in range(2):
        a(f"v_add_f32 v16, {fh(16.0*nt)}, v8\nv_mul_f32 v16, {fh(1/2048)}, v16\nv_mul_f32 v10, v12, v16")
        for i in range(4):
            k = 4*nt+i
            a(f"v_cos_f32 v{120+k}, v10\nv_sin_f32 v{128+k}, v10")
            if i < 3: a("v_add_f32 v10, v10, v16")
    for k in range(8): a(f"v_pk_mul_f32 {P(120+2*k)}, s[38:39], {P(120+2*k)}")
    a(f"""v_xor_b32 v10, v2, v1
v_lshlrev_b32 v10, 4, v10
v_lshl_add_u32 v10, v1, 8, v10
v_add_u32 v10, s48, v10
v_xor_b32 v11, 64, v10
v_xor_b32 v12, 128, v10
v_xor_b32 v13, 192, v10
v_lshlrev_b32 v7, 4, v9
v_add_u32 v7, s48, v7
s_lshl_b32 s24, s27, 10
v_add_u32 v6, s24, v7
v_lshlrev_b32 v8, 4, v9
v_lshl_add_u32 v8, v3, 11, v8
s_add_u32 s24, s24, s48
s_add_u32 s21, s41, {XF}
s_add_u32 s23, s21, 32768
s_lshl_b32 s25, s40, 13
s_add_u32 s25, s25, {WP}
s_mov_b32 m0, s24""")
    ST('b')
    bar(a, 'W', 'sA')
    ST('b')
    a(f"""buffer_load_dwordx4 v4, s[12:15], s21 offen sc1 lds
s_add_u32 m0, s24, 4096
s_nop 0
buffer_load_dwordx4 v4, s[12:15], s23 offen sc1 lds
buffer_load_dwordx4 v[48:51], v5, s[12:15], s25 offen sc1
buffer_load_dwordx4 v[52:55], v5, s[12:15], s25 offen offset:1024 sc1
s_add_u32 s21, s29, {YF}
s_add_u32 s23, s21, 1024
s_waitcnt vmcnt(2)""")
    bar(a, 'W', 'k2a')
    ST('b')
    D = lambda mt, t: 16+16*mt+4*t
    for t in range(4):
        for mt in range(2): a(f"ds_read_b128 {Q(D(mt,t))}, v{10+t} offset:{4096*mt}")
    def mf(d, A, B, first): a(f"v_mfma_f32_16x16x32_bf16 {Q(d)}, {Q(A)}, {Q(B)}, {'0' if first else Q(d)}")
    a("s_and_b32 s24, s28, 0xffffffbf\ns_cmp_lg_u32 s24, 256\ns_cbranch_scc1 KM_k2gen\ns_waitcnt lgkmcnt(0)\ns_cmp_eq_u32 s28, 256\ns_cbranch_scc1 KM_k2z")
    for f in range(8): a(f"v_mov_b32 v{16+4*f}, v{18+4*f}\nv_mov_b32 v{17+4*f}, v{19+4*f}")
    a("KM_k2z:")
    for f in range(8): a(f"v_mov_b32 v{18+4*f}, 0\nv_mov_b32 v{19+4*f}, 0")
    a("s_nop 1\nKM_k2gen:")
    for t in range(4):
        a(f"s_waitcnt lgkmcnt({6-2*t})")
        for mt in range(2):
            mf(136+8*mt, D(mt,t), M(t)+2, t == 0)
            mf(140+8*mt, D(mt,t), M(t), t == 0)
    a("s_waitcnt vmcnt(0)")
    for k in range(8): a(f"v_lshlrev_b32 v{32+k}, 16, v{48+k}\nv_and_b32 v{40+k}, 0xffff0000, v{48+k}")
    def tw_pack(tr, ti, B, swap):
        for blk in range(2):
            for hh in range(2):
                r = 136+8*blk+2*hh; i = r+4; c = tr+4*blk+2*hh; s = ti+4*blk+2*hh; t = 48+4*blk+2*hh
                a(f"""v_pk_mul_f32 {P(t)}, {P(i)}, {P(s)}
v_pk_mul_f32 {P(i)}, {P(i)}, {P(c)}
v_pk_fma_f32 {P(i)}, {P(r)}, {P(s)}, {P(i)}
v_pk_fma_f32 {P(r)}, {P(r)}, {P(c)}, {P(t)} neg_lo:[0,0,1] neg_hi:[0,0,1]""")
        for blk in range(2):
            for hh in range(2):
                r = 136+8*blk+2*hh
                a(f"v_cvt_pk_bf16_f32 v{B+4*blk+hh+(2 if swap else 0)}, v{r}, v{r+1}")
                a(f"v_cvt_pk_bf16_f32 v{B+4*blk+hh+(0 if swap else 2)}, v{r+4}, v{r+5}")
    tw_pack(104, 112, 16, False)
    for y in range(2):
        for x in range(2):
            mf(136+8*x, N(x,y)+2, 16+4*y, y == 0)
            mf(140+8*x, N(x,y), 16+4*y, y == 0)
    tw_pack(32, 40, 24, True)
    for y in range(2):
        for x in range(2):
            mf(136+8*x, 24+4*y, N(x,y), y == 0)
            mf(140+8*x, 24+4*y, N(x,y)+2, y == 0)
    tw_pack(120, 128, 16, True)
    a(f"ds_write_b128 v6, {Q(16)} offset:8192\nds_write_b128 v6, {Q(20)} offset:12288\ns_waitcnt lgkmcnt(0)")
    bar(a, 'W', 'k2b')
    for t in range(4):
        for nt in range(2): a(f"ds_read_b128 {Q(D(nt,t))}, v7 offset:{8192+4096*nt+1024*t}")
    for t in range(4):
        a(f"s_waitcnt lgkmcnt({6-2*t})")
        for nt in range(2):
            mf(136+8*nt, M(t), D(nt,t), t == 0)
            mf(140+8*nt, M(t)+2, D(nt,t), t == 0)
    for nt in range(2):
        o = 48+4*nt; s = 136+8*nt
        for k in range(4): a(f"v_cvt_pk_bf16_f32 v{o+k}, v{s+2*k}, v{s+2*k+1}")
        a(f"buffer_store_dwordx4 {Q(o)}, v8, s[12:15], s{21+2*nt} offen sc1")
    ST('b')
    a("s_waitcnt vmcnt(0)")
    ST('b')
    a("s_branch KM_k2done\nKM_k2skip:\ns_barrier\ns_barrier\ns_barrier\nKM_k2done:")
    bar(a, 'W', 'k2c')
    a(f"""v_and_b32 v1, 63, v0
v_and_b32 v3, 31, v0
v_lshlrev_b32 v2, 3, v3
v_bfe_u32 v4, v0, 5, 1
v_lshl_add_u32 v2, v4, 8, v2
v_lshlrev_b32 v3, 2, v3
v_lshl_add_u32 v3, v4, 1, v3
v_and_b32 v5, 15, v0
v_bfe_u32 v6, v0, 4, 2""")
    col_slots(a, 22, 5, 6, 8, 22)
    addr_yf(a)
    a(f"""
s_and_b32 s23, s3, 15
s_lshl_b32 s23, s23, 4
s_lshr_b32 s21, s3, 4
s_lshl_b32 s21, s21, 10
s_add_u32 s23, s23, s21
s_lshr_b32 s21, s20, 1
s_lshl_b32 s21, s21, 11
s_add_u32 s23, s23, s21
s_and_b32 s21, s20, 1
s_lshl_b32 s21, s21, 9
s_add_u32 s23, s23, s21
s_add_u32 s23, s23, {YF}
s_lshl_b32 s21, s20, 3
s_add_u32 s21, s21, s22
s_lshl_b32 s24, s3, 6
s_add_u32 s24, s24, s21
s_mul_i32 s24, s24, 1280
""")
    w5_consts(a, 88, 22, 1.0)
    a(f"""
s_lshl_b32 s27, s22, 4
v_add_u32 v22, s27, v5
v_cvt_f32_u32 v22, v22
v_mul_f32 v22, {fh(1/128)}, v22
v_and_b32 v23, 1, v6
v_cvt_f32_u32 v23, v23
v_mul_f32 v23, 4.0, v23
v_lshrrev_b32 v24, 1, v6
v_cvt_f32_u32 v24, v24
v_mul_f32 v24, {fh(0.25)}, v24
v_fma_f32 v23, v23, v22, v24
v_mul_f32 v24, {fh(5.0)}, v22
v_mul_f32 v27, {fh(64.0)}, v22
v_cmp_eq_u32 vcc, 2, v6
v_cndmask_b32 v27, v23, v27, vcc
""")
    for t in range(4):
        for jj in range(4):
            a(f"""v_cos_f32 v25, v{27 if (t, jj) == (0, 0) else 23}
v_add_f32 v23, v23, v22
v_cos_f32 v26, v23
v_add_f32 v23, v23, v{24 if jj & 1 else 22}
v_cvt_pk_bf16_f32 v{96+4*t+jj}, v25, v26""")
    a(f"""
v_lshlrev_b32 v14, 5, v5
v_lshl_add_u32 v14, v6, 3, v14
s_lshl_b32 s27, s22, 9
s_add_u32 s27, s27, {TB}
v_add_u32 v14, s27, v14
v_and_b32 v15, 4096, v9
v_add_u32 v15, v15, v14
v_xor_b32 v112, 4096, v15
v_lshlrev_b32 v113, 3, v1
v_add_u32 v113, {TB}, v113
v_and_b32 v22, 7, v5
v_mul_u32_u24 v22, {ZR}, v22
v_lshl_add_u32 v22, v6, 4, v22
s_lshl_b32 s27, s22, 6
s_add_u32 s27, s27, {ZB}
v_add_u32 v115, s27, v22
v_lshrrev_b32 v22, 3, v5
v_mul_u32_u24 v22, {2*ZC}, v22
v_add_u32 v114, v115, v22
v_lshlrev_b32 v4, 2, v3
s_mul_i32 s27, s22, {ZR}
s_add_u32 s27, s27, {ZB}
v_add_u32 v7, s27, v4
v_add_u32 v4, {PB}, v4
v_and_b32 v22, 0x80000000, v9
v_xor_b32 v22, v22, v10
v_and_b32 v23, 0x80008000, v9
v_xor_b32 v24, v23, v12
""")
    for j in range(5):
        a(f"ds_read_b64 {P(116+2*j)}, v4 offset:{512*j}\nds_read_b64 {P(136+2*j)}, v4 offset:{5120+512*j}\nds_read_b64 {P(126+2*j)}, v4 offset:{2560+512*j}")
    a("s_waitcnt lgkmcnt(0)")
    ST('c')
    bar(a, 'W', 'sB')
    ST('c')
    a(f"""buffer_load_dwordx4 {Q(28)}, v11, s[12:15], s23 offen sc1
buffer_load_dwordx4 {Q(32)}, v13, s[12:15], s23 offen sc1
s_waitcnt vmcnt(0)""")
    ST('c')
    a(f"""v_cndmask_b32 v32, v32, v34, s[42:43]
v_cndmask_b32 v33, v33, v35, s[42:43]
v_xor_b32 v26, v30, v24
v_xor_b32 v27, v31, v24
v_xor_b32 v30, v30, v12
v_xor_b32 v31, v31, v12
ds_write_b64 v14, {P(32)} offset:8192""")
    for hh in range(2):
        a(f"""v_lshlrev_b32 v{36+2*hh}, 16, v{28+hh}
v_and_b32 v{37+2*hh}, 0xffff0000, v{28+hh}
v_lshlrev_b32 v{40+2*hh}, 16, v{30+hh}
v_and_b32 v{41+2*hh}, 0xffff0000, v{30+hh}
v_lshlrev_b32 v{44+2*hh}, 16, v{28+hh}
v_and_b32 v{45+2*hh}, 0xffff0000, v{28+hh}
v_lshlrev_b32 v{48+2*hh}, 16, v{26+hh}
v_and_b32 v{49+2*hh}, 0xffff0000, v{26+hh}""")
    for i in range(4):
        a(f"v_fmac_f32_dpp v{44+i}, v{36+i}, v22 row_ror:8 {DPP}")
        a(f"v_fmac_f32_dpp v{48+i}, v{40+i}, v10 row_ror:8 {DPP}")
    a(f"""v_cvt_pk_bf16_f32 v52, v44, v45
v_cvt_pk_bf16_f32 v53, v46, v47
v_cvt_pk_bf16_f32 v54, v48, v49
v_cvt_pk_bf16_f32 v55, v50, v51
ds_write_b64 v15, {P(52)}
ds_write_b64 v112, {P(54)}
s_waitcnt lgkmcnt(0)""")
    bar(a, 'W', 'b1')
    for T in range(3):
        for t in range(4):
            for x in range(2): a(f"ds_read_b64_tr_b16 {P(28+16*T+4*t+2*x)}, v113 offset:{4096*T+1024*t+512*x}")
            if T == 1 and t == 3:
                a("s_waitcnt lgkmcnt(8)")
                for tt in range(4): a(f"v_mfma_f32_16x16x32_bf16 {Q(76)}, {Q(96+4*tt)}, {Q(28+4*tt)}, {'0' if tt == 0 else Q(76)}")
    for T in (1, 2):
        a(f"s_waitcnt lgkmcnt({8 if T == 1 else 0})")
        for t in range(4): a(f"v_mfma_f32_16x16x32_bf16 {Q(76+4*T)}, {Q(96+4*t)}, {Q(28+16*T+4*t)}, {'0' if t == 0 else Q(76+4*T)}")
    a(f"ds_write_b128 v114, {Q(76)} offset:{ZC}")
    for j in range(5): a(f"v_lshlrev_b32 v{28+2*j}, 16, v{XR+j}\nv_and_b32 v{29+2*j}, 0xffff0000, v{XR+j}")
    a(f"""ds_write_b128 v114, {Q(80)} offset:{2*ZC}
ds_write_b128 v115, {Q(84)}
s_waitcnt lgkmcnt(0)""")
    bar(a, 'W', 'b2')
    for c in range(5): a(f"ds_read_b64 {P(40+2*c)}, v7 offset:{ZC*c}")
    a("s_waitcnt lgkmcnt(0)")
    bar(a, 'W', 'b3')
    for k in range(2):
        r, im = 42+4*k, 44+4*k; c, s = 88+4*k, 90+4*k; R, I = 50+4*k, 52+4*k
        a(f"""v_pk_mul_f32 {P(R)}, {P(r)}, {P(c)}
v_pk_mul_f32 {P(I)}, {P(r)}, {P(s)}
v_pk_fma_f32 {P(R)}, {P(im)}, {P(s)}, {P(R)} neg_lo:[1,0,0] neg_hi:[1,0,0]
v_pk_fma_f32 {P(I)}, {P(im)}, {P(c)}, {P(I)}""")
    z0,z1r,z1i,z2r,z2i = 40,50,52,54,56
    A,B,Cc,Dd,E = 58,60,62,64,66
    sl = {(3*j) % 5: j for j in range(5)}
    X = lambda d2: P(28+2*sl[d2]); G = lambda d2: P(116+2*sl[d2])
    a(f"""v_pk_add_f32 {P(E)}, {P(z0)}, {P(z1r)}
v_pk_fma_f32 {P(A)}, s[30:31], {P(z1r)}, {P(z0)}
v_pk_fma_f32 {P(B)}, s[32:33], {P(z1r)}, {P(z0)}
v_pk_mul_f32 {P(Cc)}, s[34:35], {P(z1i)}
v_pk_mul_f32 {P(Dd)}, s[36:37], {P(z1i)}
v_pk_add_f32 {P(E)}, {P(E)}, {P(z2r)}
v_pk_fma_f32 {P(A)}, s[32:33], {P(z2r)}, {P(A)}
v_pk_fma_f32 {P(B)}, s[30:31], {P(z2r)}, {P(B)}
v_pk_fma_f32 {P(Cc)}, s[36:37], {P(z2i)}, {P(Cc)}
v_pk_fma_f32 {P(Dd)}, s[34:35], {P(z2i)}, {P(Dd)} neg_lo:[0,1,0] neg_hi:[0,1,0]
v_pk_fma_f32 {X(0)}, {G(0)}, {P(E)}, {X(0)}
v_pk_add_f32 {P(68)}, {P(A)}, {P(Cc)} neg_lo:[0,1] neg_hi:[0,1]
v_pk_add_f32 {P(70)}, {P(A)}, {P(Cc)}
v_pk_add_f32 {P(72)}, {P(B)}, {P(Dd)} neg_lo:[0,1] neg_hi:[0,1]
v_pk_add_f32 {P(74)}, {P(B)}, {P(Dd)}
v_pk_fma_f32 {X(1)}, {G(1)}, {P(68)}, {X(1)}
v_pk_fma_f32 {X(4)}, {G(4)}, {P(70)}, {X(4)}
v_pk_fma_f32 {X(2)}, {G(2)}, {P(72)}, {X(2)}
v_pk_fma_f32 {X(3)}, {G(3)}, {P(74)}, {X(3)}
s_add_u32 s25, s24, {X1}
s_add_u32 s26, s24, {H2F}""")
    for j in range(5): a(f"v_cvt_pk_bf16_f32 v{16+j}, v{28+2*j}, v{29+2*j}")
    a(f"""v_permlane32_swap_b32 v16, v17
v_permlane32_swap_b32 v18, v19
buffer_store_dwordx2 {P(16)}, v2, s[12:15], s25 offen sc1
buffer_store_dwordx2 {P(18)}, v2, s[12:15], s25 offen offset:512 sc1""")
    ln_rows(a, 28, 22)
    a(f"v_bfe_u32 v24, v0, 5, 1\nv_mul_u32_u24 v24, {H2F - X1 - 256}, v24\nv_add_u32 v24, v24, v2")
    for j in range(5): a(f"v_pk_mul_f32 {P(136+2*j)}, {P(136+2*j)}, {P(22)} op_sel_hi:[1,0]")
    for j in range(5): a(f"v_pk_fma_f32 {P(28+2*j)}, {P(28+2*j)}, {P(136+2*j)}, {P(126+2*j)}")
    for j in range(4): a(f"v_cvt_pk_bf16_f32 v{40+j}, v{28+2*j}, v{29+2*j}")
    a(f"""v_cvt_pk_bf16_f32 v21, v36, v37
v_permlane32_swap_b32 v40, v41
v_permlane32_swap_b32 v42, v43
v_permlane32_swap_b32 v20, v21
buffer_store_dwordx2 {P(40)}, v2, s[12:15], s26 offen sc1
buffer_store_dwordx2 {P(42)}, v2, s[12:15], s26 offen offset:512 sc1
buffer_store_dwordx2 {P(20)}, v24, s[12:15], s25 offen offset:1024 sc1""")
    ST('c')
    a(f"""v_mov_b32 v2, v1
s_lshr_b32 s26, s22, 2
s_and_b32 s27, s22, 3
v_lshrrev_b32 v3, 4, v2
v_bfe_u32 v4, v2, 2, 2
v_lshl_add_u32 v4, v3, 3, v4
v_mul_u32_u24 v4, 192, v4
v_and_b32 v5, 3, v2
v_lshl_add_u32 v4, v5, 3, v4
v_and_b32 v5, 1, v3
v_lshlrev_b32 v5, 5, v5
s_mul_i32 s28, s26, 96
v_add_u32 v4, s28, v4
s_cmp_eq_u32 s26, 0
s_cselect_b32 s29, 1, -1
v_mul_lo_u32 v5, v5, s29
v_add_u32 v6, v4, v5
v_sub_u32 v7, v4, v5
v_add_u32 v8, {4*WS_}, v6
v_add_u32 v9, {4*WS_}, v7
v_and_b32 v10, 15, v2
v_lshrrev_b32 v11, 1, v10
v_xor_b32 v11, v11, v3
v_lshlrev_b32 v11, 4, v11
v_lshl_add_u32 v11, v10, 7, v11
s_lshl_b32 s28, s27, 12
s_add_u32 s28, s28, {HB}
v_add_u32 v11, s28, v11
v_xor_b32 v12, 64, v11
s_load_dwordx2 s[60:61], s[0:1], 72
s_waitcnt vmcnt(0)""")
    ST('c')
    bar(a, 'W', 'd1')
    ACC = lambda mat, i, nt: 16 + 4*(6*nt + 3*mat + i)
    FA = lambda buf, mat, i: 64 + 32*buf + 4*(3*mat+i)
    FB = lambda buf, nt: 88 + 32*buf + 4*nt
    def reads(s):
        L = []; sl = s % 8
        for nt in range(2): L.append(f"ds_read_b128 {Q(FB(s & 1, nt))}, v{11 + (s & 1)} offset:{((s//2) % 4)*HS + 2048*nt}")
        for mat in range(2):
            for i in range(3):
                for x in range(2):
                    L.append(f"ds_read_b64_tr_b16 {P(FA(s & 1, mat, i) + 2*x)}, v{6 + (i & 1) + 2*(sl//4)} offset:{(sl % 4)*WS_ + mat*6144 + 4*x*192 + 32*i}")
        return L
    bar(a, 'W', 'B0')
    ST('d')
    for l in reads(0): a(l)
    for s in range(NST):
        a("s_waitcnt lgkmcnt(0)")
        if s & 1: bar(a, 'W', f'B{(s+1)//2}')
        R = reads(s+1) if s+1 < NST else []
        k = 0
        for mat in range(2):
            for i in range(3):
                for nt in range(2):
                    c = ACC(mat, i, nt)
                    a(f"v_mfma_f32_16x16x32_bf16 {Q(c)}, {Q(FA(s & 1, mat, i))}, {Q(FB(s & 1, nt))}, {'0' if s == 0 else Q(c)}")
                    for l in R[2*k:2*k+2]: a(l)
                    k += 1
    ST('d')
    kk = 2*0.7978845608028654*math.log2(math.e)
    a(f"""s_mov_b32 s30, {fh(-kk*0.044715)}
s_mov_b32 s31, {fh(-kk*0.044715)}
v_mov_b32 v10, {fh(-kk)}
v_mov_b32 v11, {fh(-kk)}
s_lshl_b32 s29, s50, 3
s_lshl_b32 s28, s27, 1
s_add_u32 s29, s29, s28
s_mul_i32 s29, s29, 49152
s_mul_i32 s28, s51, 3072
s_add_u32 s29, s29, s28
s_mul_i32 s28, s26, 1536
s_add_u32 s29, s29, s28
s_add_u32 s29, s29, {HIDF}
v_bfe_u32 v7, v2, 4, 1
v_mul_u32_u24 v7, 49152, v7
v_lshrrev_b32 v8, 5, v2
v_lshl_add_u32 v7, v8, 8, v7
v_and_b32 v8, 15, v2
v_lshl_add_u32 v7, v8, 4, v7""")
    for nt in range(2):
        Gt = ACC(0, 0, nt); U = ACC(1, 0, nt); T = 64 + 16*nt
        for i in range(0, 12, 2): a(f"v_pk_mul_f32 {P(T+i)}, {P(Gt+i)}, {P(Gt+i)}")
        for i in range(0, 12, 2): a(f"v_pk_fma_f32 {P(T+i)}, {P(T+i)}, s[30:31], {P(10)}")
        for i in range(0, 12, 2): a(f"v_pk_mul_f32 {P(T+i)}, {P(T+i)}, {P(Gt+i)}")
        for i in range(0, 12, 2): a(f"v_exp_f32 v{T+i}, v{T+i}\nv_exp_f32 v{T+i+1}, v{T+i+1}\nv_pk_mul_f32 {P(Gt+i)}, {P(Gt+i)}, {P(U+i)}")
        for i in range(0, 12, 2): a(f"v_pk_add_f32 {P(T+i)}, {P(T+i)}, 1.0 op_sel_hi:[1,0]")
        for i in range(12): a(f"v_rcp_f32 v{T+i}, v{T+i}")
        for i in range(0, 12, 2): a(f"v_pk_mul_f32 {P(Gt+i)}, {P(Gt+i)}, {P(T+i)}")
        for i in range(3):
            O = 96 + 4*i + 2*nt
            a(f"v_cvt_pk_bf16_f32 v{O}, v{Gt+4*i}, v{Gt+4*i+1}\nv_cvt_pk_bf16_f32 v{O+1}, v{Gt+4*i+2}, v{Gt+4*i+3}")
    for i in range(3):
        O = 96 + 4*i
        a(f"""v_permlane16_swap_b32 v{O}, v{O+2}
v_permlane16_swap_b32 v{O+1}, v{O+3}
buffer_store_dwordx4 {Q(O)}, v7, s[12:15], s29 offen offset:{512*i} sc1""")
    ST('d')
    a(f"""s_lshl_b32 s30, s50, 3
s_lshr_b32 s28, s51, 3
s_lshl_b32 s28, s28, 2
s_add_u32 s30, s30, s28
s_add_u32 s30, s30, s27
s_mul_i32 s29, s30, 49152
s_lshl_b32 s28, s26, 10
s_add_u32 s29, s29, s28
s_add_u32 s29, s29, {HIDF}
s_lshl_b32 s30, s30, 4
s_and_b32 s24, s51, 7
v_lshrrev_b32 v3, 2, v2
v_mul_u32_u24 v3, 160, v3
v_and_b32 v4, 3, v2
v_lshl_add_u32 v3, v4, 3, v3
s_mul_i32 s28, s26, 5120
v_add_u32 v3, s28, v3
v_add_u32 v4, {6*DW}, v3
v_add_u32 v5, {12*DW}, v3
v_lshlrev_b32 v6, 4, v2
v_and_b32 v12, 15, v2
v_lshrrev_b32 v13, 4, v2
v_mul_u32_u24 v8, 1280, v12
v_lshl_add_u32 v8, v13, 3, v8
s_mul_i32 s23, s30, 1280
s_mul_i32 s25, s24, 160
s_add_u32 s23, s23, s25
s_add_u32 s23, s23, {X1}
v_lshlrev_b32 v15, 4, v13
s_lshl_b32 s28, s25, 1
s_add_u32 s28, s28, 12800
s_lshl_b32 s21, s26, 6
s_add_u32 s23, s23, s21
s_lshl_b32 s21, s26, 7
s_add_u32 s28, s28, s21
s_waitcnt vmcnt(0)""")
    ST('d')
    bar(a, 'W', 'd2')
    srd(a, 16, 60, 2048*1280)
    AC2 = lambda mt: 16 + 4*mt
    FA2 = lambda buf, mt: 36 + 20*buf + 4*mt
    NB = 10
    FB2 = lambda s: 76 + 4*(s % NB)
    def reads2(s):
        p = WPOS(s)
        return [f"ds_read_b64_tr_b16 {P(FA2(s & 1, mt) + 2*x)}, v{3+p//6} offset:{(p % 6)*DW + x*2560 + 32*mt}" for mt in range(5) for x in range(2)]
    def ldb(s):
        a(f"buffer_load_dwordx4 {Q(FB2(s))}, v6, s[12:15], s29 offen offset:{2048*(s & 1)} sc1")
        if s & 1: a("s_add_u32 s29, s29, 4096")
    bar(a, 'W', 'C0')
    ST('d')
    nb = 0; nx = 0
    for s in range(NB-1): ldb(s); nb += 1
    for l in reads2(0): a(l)
    for s in range(NS2):
        a(f"s_waitcnt vmcnt({nb-s-1+nx}) lgkmcnt(0)")
        if s in CB: bar(a, 'W', f'C{s}')
        if nb < NS2: ldb(nb); nb += 1
        elif nx < 6:
            k = nx // 2
            a(f"buffer_load_dwordx2 {P(116+2*k)}, v8, s[12:15], s23 offen offset:{32*k} sc1")
            a(f"buffer_load_dwordx4 {Q(128+4*k)}, v15, s[12:15], s28 offen offset:{64*k} sc1")
            nx += 2
        R = reads2(s+1) if s+1 < NS2 else []
        for mt in range(5):
            c = AC2(mt)
            a(f"v_mfma_f32_16x16x32_bf16 {Q(c)}, {Q(FA2(s & 1, mt))}, {Q(FB2(s))}, {'0' if s == 0 else Q(c)}")
            for l in R[2*mt:2*mt+2]: a(l)
    RB = WPOS(10)*DW
    ST('d')
    a(f"""s_mul_i32 s28, s27, 5120
s_add_u32 s28, s28, {RB}
v_add_u32 v6, s28, v6
s_and_b32 s23, s30, 63
s_lshl_b32 s23, s23, 5
s_lshr_b32 s29, s30, 6
s_add_u32 s23, s23, s29
s_mul_i32 s23, s23, 1280
s_add_u32 s23, s23, s25
v_mul_u32_u24 v8, 40960, v12
v_lshl_add_u32 v8, v13, 3, v8
s_cmp_eq_u32 s26, 0
s_cbranch_scc1 KM_lo""")
    def fin(give, keep, base):
        for mt in give: a(f"ds_write_b128 v6, {Q(AC2(mt))} offset:{1024*mt}")
        a("s_waitcnt vmcnt(0)")
        for mt in keep:
            x = 116+2*(mt-base); r = 76+4*mt
            a(f"v_lshlrev_b32 v{r}, 16, v{x}\nv_and_b32 v{r+1}, 0xffff0000, v{x}\nv_lshlrev_b32 v{r+2}, 16, v{x+1}\nv_and_b32 v{r+3}, 0xffff0000, v{x+1}")
        a("s_waitcnt lgkmcnt(0)\ns_barrier")
        for mt in keep: a(f"ds_read_b128 {Q(36+4*mt)}, v6 offset:{1024*mt}")
        for n, mt in enumerate(keep):
            c = AC2(mt); x = 116+2*(mt-base); g = 128+4*(mt-base); r = 36+4*mt; o = 76+4*mt
            a(f"""s_waitcnt lgkmcnt({len(keep)-1-n})
v_pk_add_f32 {P(c)}, {P(c)}, {P(r)}
v_pk_add_f32 {P(c+2)}, {P(c+2)}, {P(r+2)}
v_pk_fma_f32 {P(o)}, {P(c)}, {P(g)}, {P(o)}
v_pk_fma_f32 {P(o+2)}, {P(c+2)}, {P(g+2)}, {P(o+2)}
v_cvt_pk_bf16_f32 v{x}, v{o}, v{o+1}
v_cvt_pk_bf16_f32 v{x+1}, v{o+2}, v{o+3}
buffer_store_dwordx2 {P(x)}, v8, s[16:19], s23 offen offset:{32*mt}""")
        a("@dump 12\ns_endpgm")
    nst = a.st.n
    fin([0,1,2], [3,4], 2)
    a.st.n = nst
    a("KM_lo:")
    fin([3,4], [0,1,2], 0)
    a.st.n = 1
    a(f"""KM_prod:
s_sub_u32 s47, s22, 8
s_waitcnt lgkmcnt(0)""")
    srd(a, 12, 6, WS_SIZE)
    srd(a, 16, 60, 256)
    a(f"""v_mov_b32 v60, 0
s_load_dwordx4 s[56:59], s[0:1], 32
s_load_dwordx2 s[4:5], s[0:1], 48
v_lshlrev_b32 v59, 4, v1
s_lshl_b32 s54, s47, 8
s_add_u32 s54, s54, s2
s_cmp_ge_u32 s47, 2
s_cbranch_scc1 KM_p_wp
s_cmp_lg_u32 s47, 0
s_cbranch_scc1 KM_p_no0
s_cmp_lg_u32 s2, 0
s_cbranch_scc1 KM_p_nn
s_memrealtime s[38:39]
s_waitcnt lgkmcnt(0)
s_or_b32 s38, s38, 1
v_mov_b32 v61, s38
s_mov_b64 exec, 1
buffer_store_dword v61, v60, s[16:19], 0 offen sc1
s_mov_b64 exec, -1
KM_p_nn:
KM_p_nc:""")
    spin(a, 'KM_pn', "buffer_load_dword v61, v60, s[16:19], 0 offen sc1", "v_cmp_eq_u32 vcc, 0, v61")
    a(f"""v_mov_b32 v62, {NON}
ds_write_b32 v62, v61
KM_p_no0:
s_waitcnt lgkmcnt(0)""")
    srd(a, 8, 4, 1536*1280)
    a(f"""s_cmp_ge_u32 s54, 384
s_cbranch_scc1 KM_p_nwd
s_lshr_b32 s24, s54, 3
s_and_b32 s25, s54, 7
s_mul_i32 s55, s25, {1536*160}
s_mul_i32 s21, s24, 5120
s_add_u32 s55, s55, s21
s_add_u32 s55, s55, {WDT}
s_mul_i32 s24, s24, {32*1280}
s_mul_i32 s25, s25, 160
s_add_u32 s24, s24, s25""")
    for q in range(5):
        a(f"""v_add_u32 v12, {64*q}, v1
v_mul_u32_u24 v14, 52429, v12
v_lshrrev_b32 v14, 19, v14
v_mul_u32_u24 v15, 10, v14
v_sub_u32 v15, v12, v15
v_and_b32 v36, 3, v14
v_bfe_u32 v37, v14, 2, 2
v_lshl_add_u32 v36, v37, 3, v36
v_lshrrev_b32 v37, 4, v14
v_lshl_add_u32 v36, v37, 2, v36
v_mul_u32_u24 v36, 1280, v36
v_lshl_add_u32 v36, v15, 4, v36
buffer_load_dwordx4 {Q(64+4*q)}, v36, s[8:11], s24 offen""")
    a("KM_p_nwd:")
    bar(a, 'P', 'g1')
    a(f"""v_mov_b32 v62, {NON}
ds_read_b32 v61, v62
s_mul_i32 s23, s47, 5120
s_add_u32 s23, s23, {MODG}
s_add_u32 s21, s23, 4096
v_lshlrev_b32 v62, 4, v1
s_mul_i32 s24, s47, 2560
s_add_u32 s24, s24, {PB1}
v_lshlrev_b32 v63, 3, v1
v_add_u32 v63, s24, v63
s_waitcnt lgkmcnt(0)""")
    ld = "\n".join([f"buffer_load_dwordx4 {Q(8+4*q)}, v62, s[12:15], {'s23' if q < 4 else 's21'} offen offset:{1024*(q % 4)} sc1" for q in range(5)])
    cm = "v_cmp_ne_u32 vcc, v9, v61\n" + "\n".join([f"v_cmp_ne_u32 s[38:39], v{r}, v61\ns_or_b64 vcc, vcc, s[38:39]" for r in range(11, 28, 2)])
    spin(a, 'KM_pg', ld, cm)
    for q in range(5): a(f"v_mov_b32 v{9+4*q}, v{10+4*q}\nds_write_b64 v63, {P(8+4*q)} offset:{512*q}")
    a("s_waitcnt lgkmcnt(0)")
    ST('p')
    a("s_branch KM_p_g2")
    a(f"""KM_p_wp:
s_sub_u32 s21, s47, 2
s_lshl_b32 s21, s21, 8
s_add_u32 s21, s21, s2
s_cmp_ge_u32 s21, 352
s_cbranch_scc1 KM_p_nowp""")
    TOUCH = f"""s_mov_b64 s[44:45], exec
s_mov_b64 exec, -1
s_waitcnt lgkmcnt(0)
s_cmp_eq_u32 s47, 2
s_cselect_b32 s16, s56, s58
s_cselect_b32 s17, s57, s59
s_mov_b32 s18, {640*3072}
s_mov_b32 s19, 0x00020000
s_mul_i32 s40, s2, 7680
v_and_b32 v50, 63, v0
v_min_u32 v50, 59, v50
v_lshlrev_b32 v50, 7, v50
buffer_load_dword v51, v50, s[16:19], s40 offen
s_mov_b64 exec, s[44:45]
s_barrier"""
    st_save = gen.STAMPS; gen.STAMPS = False
    tmp = Asm2(); tmp.st = a.st
    wprep(tmp, 21, 24, 26, 12, 'sc1')
    gen.STAMPS = st_save
    for ins in tmp.ins:
        if ins.kind == 'nop': continue
        if ins.text.strip() == 's_waitcnt vmcnt(0)':
            a(TOUCH); a("s_waitcnt vmcnt(1)"); continue
        a(ins.text)
    a("s_branch KM_p_g2\nKM_p_nowp:")
    a(TOUCH)
    a("KM_p_g2:")
    bar(a, 'P', 'g2')
    a("s_cmp_ge_u32 s54, 384\ns_cbranch_scc1 KM_p_nwd2\ns_add_u32 s54, s55, 4096")
    for q in range(5): a(f"buffer_store_dwordx4 {Q(64+4*q)}, v59, s[12:15], {'s55' if q < 4 else 's54'} offen offset:{1024*(q % 4)} sc1")
    a(f"""KM_p_nwd2:
v_mov_b32 v62, {NON}
ds_read_b32 v61, v62
v_and_b32 v2, 63, v0
s_waitcnt lgkmcnt(0)
s_cmp_lt_u32 s47, 2
s_cselect_b32 s8, s56, s58
s_cselect_b32 s9, s57, s59
s_mov_b32 s10, {640*3072}
s_mov_b32 s11, 0x00020000""")
    bar(a, 'P', 'k1a')
    for q in range(3):
        a(f"""v_add_u32 v10, {64*q}, v2
v_mul_u32_u24 v11, 43691, v10
v_lshrrev_b32 v11, 19, v11
v_mul_u32_u24 v12, 12, v11
v_sub_u32 v12, v10, v12
v_lshrrev_b32 v13, 2, v11
v_and_b32 v13, 2, v13
v_xor_b32 v12, v12, v13
v_mul_u32_u24 v11, 3072, v11
v_lshl_add_u32 v11, v12, 4, v11
v_subrev_u32 v{50+q}, {1024*q}, v11""")
    for q in range(4):
        a(f"""v_lshrrev_b32 v10, 4, v2
v_add_u32 v10, {4*q}, v10
v_xor_b32 v10, v10, v2
v_and_b32 v10, 7, v10
v_lshrrev_b32 v11, 3, v2
v_mul_u32_u24 v11, 1280, v11
v_lshl_add_u32 v11, v10, 4, v11
v_add_u32 v{53+q}, {q*(10240-1024)}, v11""")
    a(f"""
s_and_b32 s26, s47, 1
s_mul_i32 s27, s26, {16*3072}
s_mul_i32 s28, s51, 192
s_add_u32 s27, s27, s28
s_mul_i32 s28, s47, 3072
s_lshl_b32 s29, s50, 2
s_add_u32 s29, s29, s47
s_mul_i32 s29, s29, 40960
s_add_u32 s29, s29, {H2F}
s_lshl_b32 s30, s47, 12
v_and_b32 v58, 15, v2
v_lshlrev_b32 v58, 7, v58
v_and_b32 v57, 3, v2
v_lshlrev_b32 v57, 7, v57
v_lshlrev_b32 v59, 4, v2
v_lshlrev_b32 v63, 7, v2
s_waitcnt vmcnt(0)""")
    def iw(s):
        a(f"s_add_u32 m0, s28, {(s % 8)*WS_}")
        for q in range(3): a(f"buffer_load_dwordx4 v{50+q}, s[8:11], s27 offen offset:{1024*q} sc1 lds")
        a(f"s_add_u32 s27, s27, {32*3072}")
    def ih(d):
        a(f"s_add_u32 m0, s30, {HB + (d % 4)*HS}")
        for q in range(4): a(f"buffer_load_dwordx4 v{53+q}, s[12:15], s29 offen offset:{1024*q} sc1 lds")
        a("s_add_u32 s29, s29, 128")
    def gridsync(tag, off, nm):
        a(f"""s_lshl_b32 s23, s2, 7
s_add_u32 s23, s23, {GFL + off}
s_lshl_b32 s24, s47, 13
s_add_u32 s24, s24, {GFL + off}
s_cmp_lg_u32 s47, 0
s_cbranch_scc1 KM_{tag}_na
s_mov_b64 exec, 1
buffer_store_dword v61, v60, s[12:15], s23 offen sc1
s_mov_b64 exec, -1
KM_{tag}_na:
s_sleep {OPT.get('bk', 12)}""")
        spin(a, f'KM_{tag}_p', f"buffer_load_dword v11, v63, s[12:15], s24 offen sc1", "v_cmp_ne_u32 vcc, v11, v61")
        ST('p')
        bar(a, 'P', nm)
    bar(a, 'P', 'k1b')
    gridsync('A', 0, 'sA')
    bar(a, 'P', 'k2a')
    a(f"""s_lshl_b32 s23, s47, 11
s_add_u32 m0, s23, {PB}
s_add_u32 s23, s23, 5120
buffer_load_dwordx4 v59, s[12:15], s23 offen sc1 lds
buffer_load_dwordx4 v59, s[12:15], s23 offen offset:1024 sc1 lds""")
    for s in range(0, 4): iw(s)
    bar(a, 'P', 'k2b')
    a("s_waitcnt vmcnt(12)")
    bar(a, 'P', 'k2c')
    gridsync('B', 32768, 'sB')
    bar(a, 'P', 'b1')
    for s in range(4, 8): iw(s)
    bar(a, 'P', 'b2'); bar(a, 'P', 'b3')
    a(f"""s_lshl_b32 s48, s50, 4
s_add_u32 s48, s48, s51
s_lshl_b32 s48, s48, 7
s_add_u32 s48, s48, {FLG}
s_lshl_b32 s23, s50, 2
s_add_u32 s23, s23, s47
s_lshl_b32 s23, s23, 9
s_add_u32 s23, s23, {FLG}
s_and_b32 s24, s51, 7
s_mul_i32 s31, s47, 2560
s_mul_i32 s32, s24, {1536*160}
s_add_u32 s32, s32, s31
s_add_u32 s32, s32, {WDT}""")
    bar(a, 'P', 'd1')
    a(f"""s_cmp_lg_u32 s47, 0
s_cbranch_scc1 KM_na1
s_mov_b64 exec, 1
buffer_store_dword v61, v60, s[12:15], s48 offen sc1
s_mov_b64 exec, -1
KM_na1:""")
    spin(a, 'KM_p1', "buffer_load_dword v11, v57, s[12:15], s23 offen sc1", "v_cmp_ne_u32 vcc, v11, v61")
    ST('p')
    cnt = []
    def iw2(s):
        a(f"""s_add_u32 m0, s31, {WPOS(s)*DW}
buffer_load_dwordx4 v59, s[12:15], s32 offen sc1 lds
buffer_load_dwordx4 v59, s[12:15], s32 offen offset:1024 sc1 lds
s_mov_b32 exec_hi, 0
buffer_load_dwordx4 v59, s[12:15], s32 offen offset:2048 sc1 lds
s_mov_b32 exec_hi, -1
s_add_u32 s32, s32, 10240""")
    def grp(d):
        ih(d); n = 4
        if d >= 4:
            iw(2*d); iw(2*d+1); n += 6
        cnt.append(n)
    for d in range(4): grp(d)
    nw2 = 0
    for d in range(10):
        a(f"s_waitcnt vmcnt({sum(cnt[d+1:])})")
        bar(a, 'P', f'B{d}')
        if d >= 1 and d+3 < 10: grp(d+3)
        if d >= 7:
            for _ in range(EARLY[d]): iw2(nw2); nw2 += 1
            cnt.append(3*EARLY[d])
    bar(a, 'P', 'B10')
    while nw2 < NWD: iw2(nw2); nw2 += 1
    a(f"""s_lshl_b32 s23, s50, 11
s_add_u32 s23, s23, {FLG + 32768}
s_add_u32 s48, s48, 32768""")
    bar(a, 'P', 'd2')
    a(f"""s_cmp_eq_u32 s47, 1
s_cbranch_scc0 KM_nb2
s_mov_b64 exec, 1
buffer_store_dword v61, v60, s[12:15], s48 offen sc1
s_mov_b64 exec, -1
KM_nb2:
s_cmp_lg_u32 s47, 0
s_cbranch_scc1 KM_na2""")
    spin(a, 'KM_p2', "buffer_load_dword v11, v58, s[12:15], s23 offen sc1", "v_cmp_ne_u32 vcc, v11, v61")
    a("KM_na2:\ns_waitcnt vmcnt(0)")
    ST('p')
    bar(a, 'P', 'C0')
    pend = []
    for s in CB:
        need = [t for t in pend if t <= NEXTCB[s]]
        a(f"s_waitcnt vmcnt({3*(len(pend)-len(need))})")
        bar(a, 'P', f'C{s}')
        pend = [t for t in pend if t not in need]
        while nw2 < NS2 and nw2 - NWD <= s:
            iw2(nw2); pend.append(nw2); nw2 += 1
    a("@dump 12\nKM_end:\ns_endpgm")
    assert bar.seq['W'] == bar.seq['P'], (bar.seq['W'], bar.seq['P'])
    return kd_block(NAME, 160, 100)
if __name__ == '__main__':
    OPT = {}; out = 'mega.s'
    for x in sys.argv[1:]:
        if x.endswith('.s'): out = x
        elif x.startswith('st='): gen.STAMPS = True; OPT['st'] = x[3:]
        elif x.startswith('slp'): gen.SLP = int(x[3:])
        elif x.startswith('bk'): OPT['bk'] = int(x[2:])
        else: OPT[x] = 1
    a = Asm2()
    kd = km(a, OPT)
    hdr = open('adaLN_cond__spectral_gfnet__glu_gated_geglu__prompt.s.ref').read().split('\n')[:13]
    s = '\n'.join(hdr) + '\n; @launch grid=(256,1,1) block=(768,1,1) lds=163840\n'
    s += '.amdgcn_target "amdgcn-amd-amdhsa--gfx950"\n.text\n' + a.text() + '.section .rodata,"a"\n' + kd
    open(out, 'w').write(s)
```

```python
import sys, math
sys.path.insert(0,'work')
import gen
from gen import *
NAME = 'adaLN_cond__spectral_gfnet__glu_gated_geglu__prompt_kernel'
MODG = 0x4000
GFL = 0x20000
CNT = 0x8000
class Bar:
    def __init__(self): self.seq = {}
    def __call__(self, a, role, name):
        self.seq.setdefault(role, []).append(name); a("s_barrier")
def spin(a, name, load, cmp):
    a(f"s_mov_b32 s46, 0x8000\n{name}:")
    a(load); a("s_waitcnt vmcnt(0)"); a(cmp)
    a(f"""s_nop 1
s_cmp_eq_u64 vcc, 0
s_cbranch_scc1 {name}_ok
s_sleep {gen.SLP}
s_sub_u32 s46, s46, 1
s_cmp_lg_u32 s46, 0
s_cbranch_scc1 {name}
{name}_ok:""")
def addr_xf(a):
    a(f"""s_lshl_b32 s40, s22, 5
v_lshrrev_b32 v22, 1, v6
v_lshl_add_u32 v22, v22, 4, v5
v_add_u32 v22, s40, v22
v_add_u32 v23, 256, v8
v_and_b32 v24, 1, v6
v_lshlrev_b32 v24, 7, v24""")
    for src_, dst in ((22, 11), (23, 13)):
        a(f"""v_lshrrev_b32 v25, 3, v{src_}
v_lshl_add_u32 v25, v25, 16, v24
v_and_b32 v26, 7, v{src_}
v_lshl_add_u32 v{dst}, v26, 4, v25""")
def addr_yf(a):
    a(f"""s_lshl_b32 s40, s22, 5
v_lshrrev_b32 v22, 1, v6
v_lshl_add_u32 v22, v22, 4, v5
v_add_u32 v22, s40, v22
v_add_u32 v23, 256, v8
v_and_b32 v24, 1, v6
v_lshlrev_b32 v24, 8, v24
v_lshl_add_u32 v11, v22, 13, v24
v_lshl_add_u32 v13, v23, 13, v24""")
def gather2(a, name, ld0, ld1, r0, r1, t, pre=False):
    a(f"""s_mov_b32 s46, 0x8000
{f's_branch {name}_chk' if pre else ''}
{name}:
{ld0}
{ld1}
{name}_chk:
s_waitcnt vmcnt(0)
v_max3_u32 v{t}, v{r0}, v{r0+1}, v{r0+2}
v_max3_u32 v{t+1}, v{r1}, v{r1+1}, v{r1+2}
v_max3_u32 v{t}, v{t}, v{r0+3}, v{r1+3}
v_max_u32 v{t}, v{t}, v{t+1}
v_cmp_eq_u32 vcc, -1, v{t}
s_nop 1
s_and_b64 exec, exec, vcc
s_cbranch_scc0 {name}_ok
s_sleep 2
s_sub_u32 s46, s46, 1
s_cmp_lg_u32 s46, 0
s_cbranch_scc1 {name}
{name}_ok:
s_mov_b64 exec, -1""")
def task_ids(a, slot):
    a(f"""s_lshl_b32 s28, s{slot}, 2
s_lshr_b32 s29, s2, 6
s_add_u32 s28, s28, s29
s_lshl_b32 s28, s28, 3
s_and_b32 s29, s2, 7
s_add_u32 s28, s28, s29
s_lshl_b32 s41, s28, 16
s_lshl_b32 s28, s28, 3
s_bfe_u32 s29, s2, 0x30003
s_add_u32 s28, s28, s29
s_lshl_b32 s29, s29, 4
s_add_u32 s41, s41, s29""")
def km(a, OPT):
    bar = Bar()
    a(f".globl {NAME}\n.p2align 8\n.type {NAME},@function\n{NAME}:")
    a.st = Stamper(a, 3)
    ST = lambda tag: a("@stamp") if tag in OPT.get('st', '') else None
    R2 = 98304
    GP = R2; NON = R2 + 1536; PB1 = R2 + 2048; Z1 = R2 + 8192; K2B = R2 + 24576
    TB = R2; ZB = R2 + 12288; ZR = 528; ZC = 8*ZR; PB = R2 + 57344
    NST = 20; WS_ = 12288; HB = R2; HS = 16384
    NS2 = 24; DW = 10240; NWD = 16
    ORDER = [5, 6, 13,  7, 8, 14, 15,  0, 1, 9, 10,  2, 3, 4, 11, 12]
    EARLY = {7: 3, 8: 4, 9: 4}
    WPOS = lambda s: ORDER[s % NWD]
    CB = [3, 7, 15, 19]; NEXTCB = {3: 7, 7: 15, 15: 19, 19: 23}
    XR = 114
    a(f"""
s_cmp_ge_u32 s2, 256
s_cbranch_scc1 KM_end
@stamp
s_load_dwordx2 s[4:5], s[0:1], 0
s_load_dwordx2 s[6:7], s[0:1], 88
s_load_dwordx4 s[56:59], s[0:1], 56
s_load_dwordx4 s[24:27], s[0:1], 8
s_load_dwordx2 s[60:61], s[0:1], 80
s_and_b32 s50, s2, 7
s_lshr_b32 s51, s2, 3
s_mul_i32 s52, s50, 10
s_add_u32 s52, s52, s51
s_mul_i32 s21, s50, 20
s_add_u32 s21, s21, s51
s_add_u32 s21, s21, 70
s_cmp_lt_u32 s2, 80
s_cselect_b32 s52, s52, s21
s_lshl_b32 s50, s50, 1
s_lshr_b32 s21, s51, 4
s_add_u32 s50, s50, s21
s_and_b32 s51, s51, 15
v_lshrrev_b32 v4, 6, v0
v_and_b32 v1, 63, v0
v_readfirstlane_b32 s22, v4
s_lshl_b32 s3, s50, 1
s_lshr_b32 s21, s51, 3
s_add_u32 s3, s3, s21
s_and_b32 s20, s51, 7
s_cmp_ge_u32 s22, 8
s_cbranch_scc1 KM_prod
v_and_b32 v3, 31, v0
v_lshlrev_b32 v2, 3, v3
v_bfe_u32 v4, v0, 5, 1
v_lshl_add_u32 v2, v4, 8, v2
v_lshlrev_b32 v3, 2, v3
v_lshl_add_u32 v3, v4, 1, v3
s_lshl_b32 s21, s20, 3
s_add_u32 s21, s21, s22
s_lshl_b32 s21, s21, 5
s_add_u32 s21, s21, s3
s_mul_i32 s21, s21, 1280
s_lshl_b32 s23, s52, 5
v_lshrrev_b32 v144, 1, v0
v_and_b32 v145, 1, v0
v_mul_u32_u24 v146, 7680, v144
v_lshl_add_u32 v146, v145, 4, v146
v_add_u32 v146, s23, v146
v_lshlrev_b32 v147, 1, v144
s_cmp_lt_u32 s2, 240
s_cselect_b32 s49, 5, 0
s_waitcnt lgkmcnt(0)
""")
    srd(a, 12, 6, WS_SIZE)
    srd(a, 8, 56, 1280)
    srd(a, 16, 58, 640*3840*2)
    NR = 4
    def gloads(tag, cond):
        a(f"s_cmp_ge_u32 s22, s49\ns_cbranch_scc1 KM_nog1{tag}")
        for i in range(NR): a(f"buffer_load_short_d16_hi v{136+i}, v147, s[8:11], 0 offen offset:{320*i}")
        a("s_mov_b32 s23, 0")
        for i in range(NR):
            a(f"buffer_load_dwordx4 {Q(120+4*i)}, v146, s[16:19], s23 offen")
            if i < NR-1: a(f"s_add_u32 s23, s23, {160*7680}")
        a(f"KM_nog1{tag}:")
    srd(a, 24, 4, 2048*1280)
    for k in range(3): a(f"buffer_load_dwordx2 {P(XR+2*k)}, v2, s[24:27], s21 offen offset:{512*k}")
    gloads('a', 0)
    a("v_and_b32 v5, 15, v0\nv_bfe_u32 v6, v0, 4, 2")
    col_slots(a, 22, 5, 6, 8, 22)
    addr_xf(a)
    a(f"""s_lshl_b32 s38, s3, 11
s_lshl_b32 s21, s20, 8
s_add_u32 s38, s38, s21
s_add_u32 s38, s38, {XF}
v_mov_b32 v28, -1
v_mov_b32 v29, -1
v_mov_b32 v30, -1
v_mov_b32 v31, -1
buffer_store_dwordx4 {Q(28)}, v11, s[12:15], s38 offen sc1
s_mov_b32 exec_lo, 0x00ff00ff
s_mov_b32 exec_hi, 0
buffer_store_dwordx4 {Q(28)}, v13, s[12:15], s38 offen sc1
s_mov_b64 exec, -1""")
    w5_consts(a, 88, 22, -1.0)
    a(f"""
v_cvt_f32_u32 v22, v8
v_mul_f32 v22, {fh(1/128)}, v22
v_cvt_f32_u32 v23, v6
v_mul_f32 v23, {fh(8.0)}, v23
v_and_b32 v24, {fh(0.25)}, v9
v_fma_f32 v23, v23, v22, -v24
v_mul_f32 v24, {fh(25.0)}, v22
""")
    for t in range(4):
        for jj in range(4):
            a(f"""v_cos_f32 v25, v23
v_add_f32 v23, v23, v22
v_cos_f32 v26, v23
v_add_f32 v23, v23, v{24 if jj == 3 else 22}
v_cvt_pk_bf16_f32 v{96+4*t+jj}, v25, v26""")
    a(f"""
v_lshrrev_b32 v22, 3, v3
v_xor_b32 v22, s22, v22
v_lshlrev_b32 v22, 4, v22
v_and_b32 v23, 7, v3
v_lshl_add_u32 v22, v23, 1, v22
s_lshl_b32 s23, s22, 8
s_add_u32 s23, s23, {Z1}
v_add_u32 v14, s23, v22
v_xor_b32 v15, {2048+128}, v14
v_lshlrev_b32 v7, 2, v3
v_add_u32 v7, {PB1}, v7
v_xor_b32 v22, v6, v5
""")
    for t in range(4):
        a(f"""v_xor_b32 v23, {4*t}, v22
v_lshlrev_b32 v23, 4, v23
v_lshl_add_u32 v23, v5, 8, v23
v_add_u32 v{16+t}, {Z1}, v23""")
    r5_sconsts(a)
    a("s_waitcnt vmcnt(10)\ns_cmp_lt_u32 s22, s49\ns_cbranch_scc1 KM_x0\ns_waitcnt vmcnt(2)\nKM_x0:")
    unpack_x(a, XR, 60)
    ln_rows(a, 60, 70)
    a(f"s_cmp_ge_u32 s22, s49\ns_cbranch_scc1 KM_nog2\ns_waitcnt vmcnt({NR+2})")
    C = 136; T = 140
    for i in range(NR): a(f"v_mul_f32 v{T+i}, {fh(-math.log2(math.e))}, v{C+i}")
    for i in range(NR): a(f"v_exp_f32 v{T+i}, v{T+i}")
    for i in range(NR): a(f"v_add_f32 v{T+i}, 1.0, v{T+i}")
    for i in range(NR): a(f"v_rcp_f32 v{T+i}, v{T+i}")
    for i in range(NR): a(f"v_mul_f32 v{C+i}, v{C+i}, v{T+i}")
    for i in range(NR): a(f"v_cvt_pk_bf16_f32 v{C+i}, v{C+i}, v{C+i}")
    for i in range(NR): a(f"v_and_b32 v{48+2*i}, 0xffff0000, v{C+i}")
    a(f"""v_lshrrev_b32 v22, 4, v0
v_lshlrev_b32 v23, 6, v22
v_lshl_add_u32 v23, v145, 5, v23
v_add_u32 v23, {GP}, v23""")
    for i in range(NR):
        a(f"s_waitcnt vmcnt({NR-1-i+2})")
        for j in range(4): a(f"v_lshlrev_b32 v{32+2*j}, 16, v{120+4*i+j}\nv_and_b32 v{33+2*j}, 0xffff0000, v{120+4*i+j}")
        for j in range(4):
            if i == 0: a(f"v_pk_mul_f32 {P(40+2*j)}, {P(32+2*j)}, {P(48)} op_sel_hi:[1,0]")
            else: a(f"v_pk_fma_f32 {P(40+2*j)}, {P(32+2*j)}, {P(48+2*i)}, {P(40+2*j)} op_sel_hi:[1,0,1]")
    for mode in ('quad_perm:[2,3,0,1]', 'row_ror:4', 'row_ror:8'):
        for j in range(8): a(f"v_add_f32_dpp v{40+j}, v{40+j}, v{40+j} {mode} {DPP}")
    a(f"""v_cmp_gt_u32 vcc, 2, v5
s_and_saveexec_b64 s[38:39], vcc
ds_write_b128 v23, {Q(40)}
ds_write_b128 v23, {Q(44)} offset:16
s_mov_b64 exec, s[38:39]
KM_nog2:
s_waitcnt vmcnt(0) lgkmcnt(0)""")
    ST('a')
    bar(a, 'W', 'g1')
    a(f"""v_mov_b32 v22, {NON}
ds_read_b32 v27, v22
s_cmp_lg_u32 s22, 0
s_cbranch_scc1 KM_nog3
s_cmp_eq_u32 s49, 0
s_cbranch_scc1 KM_nog3
v_mul_u32_u24 v23, 320, v6
v_lshl_add_u32 v23, v5, 2, v23
v_add_u32 v23, {GP}, v23
ds_read_b32 v40, v23
ds_read_b32 v41, v23 offset:64
ds_read_b32 v42, v23 offset:128
ds_read_b32 v43, v23 offset:192
ds_read_b32 v44, v23 offset:256
s_sub_u32 s23, s52, 40
s_cmp_lt_u32 s23, 40
s_cselect_b32 s21, 1.0, 0
s_sub_u32 s23, s52, 160
s_cmp_lt_u32 s23, 40
s_cselect_b32 s21, 1.0, s21
s_waitcnt lgkmcnt(0)
v_add_f32 v40, v40, v41
v_add_f32 v42, v42, v43
v_add_f32 v40, v40, v44
v_add_f32 v40, v40, v42
v_mov_b32 v41, v40
v_permlane16_swap_b32 v40, v41
v_add_f32 v40, v40, v41
v_mov_b32 v41, v40
v_permlane32_swap_b32 v40, v41
v_add_f32 v40, v40, v41
v_cvt_pk_bf16_f32 v40, v40, v40
v_and_b32 v40, 0xffff0000, v40
v_add_f32 v40, s21, v40
v_cvt_pk_bf16_f32 v40, v40, v40
v_and_b32 v40, 0xffff0000, v40
v_mov_b32 v41, v27
s_mov_b64 exec, 0xffff
s_cmp_lt_u32 s52, 80
s_cbranch_scc1 KM_gran
s_lshl_b32 s23, s52, 6
v_lshlrev_b32 v23, 2, v1
buffer_store_dword v40, v23, s[12:15], s23 offen sc1
s_branch KM_pub
KM_gran:
s_lshl_b32 s23, s52, 7
s_add_u32 s23, s23, {MODG}
v_lshlrev_b32 v23, 3, v1
buffer_store_dwordx2 {P(40)}, v23, s[12:15], s23 offen sc1
KM_pub:
s_mov_b64 exec, -1
KM_nog3:""")
    M = lambda t: 120+6*t
    N = lambda x, y: 144+6*(2*x+y)
    def gen_(R, cur, step, last, t0=12):
        for hh in range(2):
            a(f"""v_cos_f32 v{t0}, v{cur}
v_sin_f32 v{t0+1}, v{cur}
v_add_f32 v{cur}, v{cur}, v{step}
v_cos_f32 v{t0+2}, v{cur}
v_sin_f32 v{t0+3}, v{cur}
v_add_f32 v{cur}, v{cur}, v{last if hh else step}
v_cvt_pk_bf16_f32 v{R+2+hh}, v{t0}, v{t0+2}
v_cvt_pk_bf16_f32 v{R+hh}, -v{t0+1}, -v{t0+3}
v_cvt_pk_bf16_f32 v{R+4+hh}, v{t0+1}, v{t0+3}""")
    a(f"""v_bfe_u32 v46, v0, 6, 2
v_lshl_add_u32 v46, v46, 4, v5
v_cvt_f32_u32 v46, v46
v_cvt_f32_u32 v47, v6
v_cvt_f32_u32 v48, v5
v_mul_f32 v47, 4.0, v47
v_mul_f32 v49, {fh(1/64)}, v46
v_mul_f32 v50, v47, v49
v_mul_f32 v51, {fh(13.0)}, v49""")
    for t in range(4): gen_(M(t), 50, 49, 51, 52)
    for x in range(2):
        a(f"v_add_f32 v49, {fh(16.0*x)}, v48\nv_mul_f32 v49, {fh(1/32)}, v49\nv_mul_f32 v50, v47, v49\nv_mul_f32 v51, {fh(13.0)}, v49")
        for y in range(2): gen_(N(x, y), 50, 49, 51, 52)
    a(f"""s_lshl_b32 s23, s3, 11
s_lshl_b32 s21, s20, 8
s_add_u32 s23, s23, s21
s_add_u32 s23, s23, {XF}""")
    ST('a')
    bar(a, 'W', 'g2')
    ST('a')
    for j in range(5): a(f"ds_read_b64 {P(40+2*j)}, v7 offset:{2560+512*j}\nds_read_b64 {P(50+2*j)}, v7 offset:{512*j}")
    for j in range(5): a(f"v_pk_mul_f32 {P(28+2*j)}, {P(60+2*j)}, {P(70)} op_sel_hi:[1,0]")
    a("s_waitcnt lgkmcnt(0)")
    for j in range(5): a(f"v_pk_fma_f32 {P(28+2*j)}, {P(28+2*j)}, {P(40+2*j)}, {P(50+2*j)}")
    h = {(3*j) % 5: 28+2*j for j in range(5)}
    t1,t2,t3,t4 = 40,42,44,46; z0,p1,q1,p2,q2 = 48,50,52,54,56
    a(f"""v_pk_add_f32 {P(t1)}, {P(h[1])}, {P(h[4])}
v_pk_add_f32 {P(t2)}, {P(h[2])}, {P(h[3])}
v_pk_add_f32 {P(t3)}, {P(h[1])}, {P(h[4])} neg_lo:[0,1] neg_hi:[0,1]
v_pk_add_f32 {P(t4)}, {P(h[2])}, {P(h[3])} neg_lo:[0,1] neg_hi:[0,1]
v_pk_add_f32 {P(z0)}, {P(h[0])}, {P(t1)}
v_pk_fma_f32 {P(p1)}, s[30:31], {P(t1)}, {P(h[0])}
v_pk_fma_f32 {P(p2)}, s[32:33], {P(t1)}, {P(h[0])}
v_pk_mul_f32 {P(q1)}, s[34:35], {P(t3)}
v_pk_mul_f32 {P(q2)}, s[36:37], {P(t3)}
v_pk_add_f32 {P(z0)}, {P(z0)}, {P(t2)}
v_pk_fma_f32 {P(p1)}, s[32:33], {P(t2)}, {P(p1)}
v_pk_fma_f32 {P(p2)}, s[30:31], {P(t2)}, {P(p2)}
v_pk_fma_f32 {P(q1)}, s[36:37], {P(t4)}, {P(q1)}
v_pk_fma_f32 {P(q2)}, s[34:35], {P(t4)}, {P(q2)} neg_lo:[0,1,0] neg_hi:[0,1,0]
v_cvt_pk_bf16_f32 v22, v{z0}, v{z0+1}
ds_write_b32 v14, v22 offset:8192""")
    for k, (p, q) in enumerate(((p1, q1), (p2, q2))):
        c, s = 88+4*k, 90+4*k; r, im = 28+4*k, 30+4*k
        a(f"""v_pk_mul_f32 {P(r)}, {P(p)}, {P(c)}
v_pk_mul_f32 {P(im)}, {P(p)}, {P(s)}
v_pk_fma_f32 {P(r)}, {P(q)}, {P(s)}, {P(r)}
v_pk_fma_f32 {P(im)}, {P(q)}, {P(c)}, {P(im)} neg_lo:[1,0,0] neg_hi:[1,0,0]
v_cvt_pk_bf16_f32 v{23+2*k}, v{r}, v{r+1}
v_cvt_pk_bf16_f32 v{24+2*k}, v{im}, v{im+1}
ds_write_b32 v{14+k}, v{23+2*k}
ds_write_b32 v{14+k}, v{24+2*k} offset:4096""")
    a("s_waitcnt vmcnt(0) lgkmcnt(0)")
    bar(a, 'W', 'k1a')
    for T in range(3):
        for t in range(4): a(f"ds_read_b128 {Q(28+16*T+4*t)}, v{16+t} offset:{4096*T}")
    n = 12
    for T in range(3):
        for t in range(4):
            n -= 1
            a(f"s_waitcnt lgkmcnt({n})")
            a(f"v_mfma_f32_16x16x32_bf16 {Q(76+4*T)}, {Q(28+16*T+4*t)}, {Q(96+4*t)}, {'0' if t == 0 else Q(76+4*T)}")
    a(f"""v_and_b32 v22, 0x80008000, v9
v_and_b32 v23, v9, v12
v_bfi_b32 v24, v9, v22, v12
v_pk_mul_f32 {P(28)}, {P(76)}, {P(10)} op_sel_hi:[1,0]
v_pk_mul_f32 {P(30)}, {P(78)}, {P(10)} op_sel_hi:[1,0]
v_pk_mul_f32 {P(32)}, {P(80)}, {P(10)} op_sel_hi:[1,0]
v_pk_mul_f32 {P(34)}, {P(82)}, {P(10)} op_sel_hi:[1,0]""")
    for i in range(4):
        a(f"v_add_f32_dpp v{76+i}, v{32+i}, v{76+i} row_ror:8 {DPP}")
        a(f"v_subrev_f32_dpp v{80+i}, v{28+i}, v{80+i} row_ror:8 {DPP}")
    a(f"""v_cvt_pk_bf16_f32 v36, v76, v77
v_cvt_pk_bf16_f32 v37, v78, v79
v_cvt_pk_bf16_f32 v38, v80, v81
v_cvt_pk_bf16_f32 v39, v82, v83
v_cvt_pk_bf16_f32 v44, v84, v85
v_cvt_pk_bf16_f32 v45, v86, v87
v_xor_b32 v36, v36, v23
v_xor_b32 v37, v37, v23
v_xor_b32 v38, v38, v24
v_xor_b32 v39, v39, v24
v_xor_b32 v44, v44, v22
v_xor_b32 v45, v45, v22
v_cndmask_b32 v40, v36, v38, s[42:43]
v_cndmask_b32 v41, v37, v39, s[42:43]
v_cndmask_b32 v42, v38, v36, s[42:43]
v_cndmask_b32 v43, v39, v37, s[42:43]
buffer_store_dwordx4 {Q(40)}, v11, s[12:15], s23 offen sc1
v_mov_b32_dpp v46, v44 row_ror:8 {DPP}
v_mov_b32_dpp v47, v45 row_ror:8 {DPP}
s_mov_b32 exec_lo, 0x00ff00ff
s_mov_b32 exec_hi, 0
buffer_store_dwordx4 {Q(44)}, v13, s[12:15], s23 offen sc1
s_mov_b64 exec, -1""")
    ST('a')
    a(f"""s_lshr_b32 s26, s22, 2
s_and_b32 s27, s22, 3
""")
    task_ids(a, 26)
    a(f"""s_cmp_gt_u32 s28, 320
s_cbranch_scc1 KM_k2skip
s_cmp_eq_u32 s28, 320
s_cselect_b32 s41, {32*65536}, s41
s_lshr_b32 s21, s28, 5
s_lshl_b32 s21, s21, 3
s_and_b32 s23, s28, 7
s_add_u32 s21, s21, s23
s_sub_u32 s23, 128, s21
s_cmp_eq_u32 s21, 0
s_cselect_b32 s23, 64, s23
s_bitcmp1_b32 s28, 3
s_cselect_b32 s21, s23, s21
s_mul_i32 s21, s21, 5
s_bfe_u32 s23, s28, 0x10004
s_lshl_b32 s23, s23, 7
s_add_u32 s21, s21, s23
s_add_u32 s21, s21, 128
s_sub_u32 s23, s21, 640
s_min_u32 s21, s21, s23
s_sub_u32 s23, 640, s21
s_min_u32 s21, s21, s23
s_sub_u32 s23, s28, 256
s_mul_i32 s23, s23, 5
s_cmp_ge_u32 s28, 256
s_cselect_b32 s40, s23, s21
v_and_b32 v1, 15, v0
v_bfe_u32 v2, v0, 4, 2
v_bfe_u32 v3, v0, 6, 2
v_and_b32 v9, 63, v0
v_lshl_add_u32 v4, v3, 2, v2
v_xor_b32 v10, v4, v1
v_lshl_add_u32 v4, v4, 4, v10
v_lshlrev_b32 v4, 7, v4
v_lshrrev_b32 v5, 1, v1
v_and_b32 v6, 1, v1
v_lshl_add_u32 v5, v6, 3, v5
v_lshl_add_u32 v5, v2, 4, v5
v_lshlrev_b32 v5, 4, v5
v_lshl_add_u32 v5, v3, 11, v5
s_add_u32 s21, s41, {XF}
s_add_u32 s23, s21, 32768
s_lshl_b32 s29, s28, 13
s_lshl_b32 s48, s26, 14
s_add_u32 s48, s48, {K2B}
v_lshl_add_u32 v6, v3, 4, v1
v_cvt_f32_u32 v6, v6
v_cvt_f32_u32 v7, v2
v_cvt_f32_u32 v8, v1
v_mul_f32 v7, 4.0, v7
""")
    a(f"v_mul_f32 v16, {fh(-1/2048)}, v6\nv_mul_f32 v10, v7, v16\nv_mul_f32 v11, {fh(13.0)}, v16")
    for k in range(8):
        a(f"v_cos_f32 v{56+k}, v10\nv_sin_f32 v{64+k}, v10")
        if k < 7: a(f"v_add_f32 v10, v10, v{11 if k == 3 else 16}")
    if 'gx1' in OPT:
        for l in (f"buffer_load_dwordx4 {Q(24)}, v4, s[12:15], s21 offen sc1", f"buffer_load_dwordx4 {Q(28)}, v4, s[12:15], s23 offen sc1"): a(l)
    a(f"""s_lshl_b32 s24, s27, 4
v_cvt_f32_u32 v12, s24
v_add_f32 v12, v12, v7
s_mov_b32 s38, {fh(2.0/(2048*640))}
s_cmp_eq_u32 s28, 256
s_cselect_b32 s38, {fh(1.0/(2048*640))}, s38
s_cmp_eq_u32 s28, 320
s_cselect_b32 s38, {fh(1.0/(2048*640))}, s38
s_mov_b32 s39, s38""")
    for nt in range(2):
        a(f"v_add_f32 v16, {fh(16.0*nt)}, v8\nv_mul_f32 v16, {fh(1/2048)}, v16\nv_mul_f32 v10, v12, v16")
        for i in range(4):
            k = 4*nt+i
            a(f"v_cos_f32 v{72+k}, v10\nv_sin_f32 v{80+k}, v10")
            if i < 3: a("v_add_f32 v10, v10, v16")
    for k in range(8): a(f"v_pk_mul_f32 {P(72+2*k)}, s[38:39], {P(72+2*k)}")
    a(f"""v_xor_b32 v10, v2, v1
v_lshlrev_b32 v10, 4, v10
v_lshl_add_u32 v10, v1, 8, v10
v_add_u32 v10, s48, v10
v_xor_b32 v11, 64, v10
v_xor_b32 v12, 128, v10
v_xor_b32 v13, 192, v10
v_lshlrev_b32 v7, 4, v9
v_add_u32 v7, s48, v7
s_lshl_b32 s24, s27, 10
v_add_u32 v6, s24, v7
v_lshlrev_b32 v8, 4, v9
v_lshl_add_u32 v8, v3, 11, v8
s_add_u32 s24, s24, s48
s_lshl_b32 s25, s40, 13
s_add_u32 s25, s25, {WP}
s_mov_b32 m0, s24""")
    ST('b')
    gather2(a, 'KM_gx', f"buffer_load_dwordx4 {Q(24)}, v4, s[12:15], s21 offen sc1", f"buffer_load_dwordx4 {Q(28)}, v4, s[12:15], s23 offen sc1", 24, 28, 32, pre=('gx1' in OPT))
    a(f"""ds_write_b128 v6, {Q(24)}
ds_write_b128 v6, {Q(28)} offset:4096
s_add_u32 s21, s29, {YF}
s_add_u32 s23, s21, 1024
s_waitcnt lgkmcnt(0)""")
    bar(a, 'W', 'k2a')
    ST('b')
    a(f"""buffer_load_dwordx4 v[48:51], v5, s[12:15], s25 offen sc1
buffer_load_dwordx4 v[52:55], v5, s[12:15], s25 offen offset:1024 sc1""")
    D = lambda mt, t: 16+16*mt+4*t
    for t in range(4):
        for mt in range(2): a(f"ds_read_b128 {Q(D(mt,t))}, v{10+t} offset:{4096*mt}")
    def mf(d, A, B, first): a(f"v_mfma_f32_16x16x32_bf16 {Q(d)}, {Q(A)}, {Q(B)}, {'0' if first else Q(d)}")
    a("s_and_b32 s24, s28, 0xffffffbf\ns_cmp_lg_u32 s24, 256\ns_cbranch_scc1 KM_k2gen\ns_waitcnt lgkmcnt(0)\ns_cmp_eq_u32 s28, 256\ns_cbranch_scc1 KM_k2z")
    for f in range(8): a(f"v_mov_b32 v{16+4*f}, v{18+4*f}\nv_mov_b32 v{17+4*f}, v{19+4*f}")
    a("KM_k2z:")
    for f in range(8): a(f"v_mov_b32 v{18+4*f}, 0\nv_mov_b32 v{19+4*f}, 0")
    a("s_nop 1\nKM_k2gen:")
    for t in range(4):
        a(f"s_waitcnt lgkmcnt({6-2*t})")
        for mt in range(2):
            mf(88+8*mt, D(mt,t), M(t)+2, t == 0)
            mf(92+8*mt, D(mt,t), M(t), t == 0)
    def tw_pack(tr, ti, B, swap):
        for blk in range(2):
            for hh in range(2):
                r = 88+8*blk+2*hh; i = r+4; c = tr+4*blk+2*hh; s = ti+4*blk+2*hh; t = 104+4*blk+2*hh
                a(f"""v_pk_mul_f32 {P(t)}, {P(i)}, {P(s)}
v_pk_mul_f32 {P(i)}, {P(i)}, {P(c)}
v_pk_fma_f32 {P(i)}, {P(r)}, {P(s)}, {P(i)}
v_pk_fma_f32 {P(r)}, {P(r)}, {P(c)}, {P(t)} neg_lo:[0,0,1] neg_hi:[0,0,1]""")
        for blk in range(2):
            for hh in range(2):
                r = 88+8*blk+2*hh
                a(f"v_cvt_pk_bf16_f32 v{B+4*blk+hh+(2 if swap else 0)}, v{r}, v{r+1}")
                a(f"v_cvt_pk_bf16_f32 v{B+4*blk+hh+(0 if swap else 2)}, v{r+4}, v{r+5}")
    tw_pack(56, 64, 16, False)
    for y in range(2):
        for x in range(2):
            mf(88+8*x, N(x,y)+2, 16+4*y, y == 0)
            mf(92+8*x, N(x,y), 16+4*y, y == 0)
    a("s_waitcnt vmcnt(0)")
    for k in range(8): a(f"v_lshlrev_b32 v{32+k}, 16, v{48+k}\nv_and_b32 v{40+k}, 0xffff0000, v{48+k}")
    tw_pack(32, 40, 24, True)
    for y in range(2):
        for x in range(2):
            mf(88+8*x, 24+4*y, N(x,y), y == 0)
            mf(92+8*x, 24+4*y, N(x,y)+2, y == 0)
    tw_pack(72, 80, 16, True)
    a(f"ds_write_b128 v6, {Q(16)} offset:8192\nds_write_b128 v6, {Q(20)} offset:12288\ns_waitcnt lgkmcnt(0)")
    bar(a, 'W', 'k2b')
    for t in range(4):
        for nt in range(2): a(f"ds_read_b128 {Q(D(nt,t))}, v7 offset:{8192+4096*nt+1024*t}")
    for t in range(4):
        a(f"s_waitcnt lgkmcnt({6-2*t})")
        for nt in range(2):
            mf(88+8*nt, M(t), D(nt,t), t == 0)
            mf(92+8*nt, M(t)+2, D(nt,t), t == 0)
    for nt in range(2):
        o = 48+4*nt; s = 88+8*nt
        for k in range(4): a(f"v_cvt_pk_bf16_f32 v{o+k}, v{s+2*k}, v{s+2*k+1}")
        a(f"buffer_store_dwordx4 {Q(o)}, v8, s[12:15], s{21+2*nt} offen sc1")
    ST('b')
    a("s_branch KM_k2done\nKM_k2skip:\ns_barrier\ns_barrier\nKM_k2done:")
    a(f"""v_and_b32 v1, 63, v0
v_and_b32 v3, 31, v0
v_lshlrev_b32 v2, 3, v3
v_bfe_u32 v4, v0, 5, 1
v_lshl_add_u32 v2, v4, 8, v2
v_lshlrev_b32 v3, 2, v3
v_lshl_add_u32 v3, v4, 1, v3
v_and_b32 v5, 15, v0
v_bfe_u32 v6, v0, 4, 2""")
    col_slots(a, 22, 5, 6, 8, 22)
    addr_yf(a)
    a(f"""
s_and_b32 s23, s3, 15
s_lshl_b32 s23, s23, 4
s_lshr_b32 s21, s3, 4
s_lshl_b32 s21, s21, 10
s_add_u32 s23, s23, s21
s_lshr_b32 s21, s20, 1
s_lshl_b32 s21, s21, 11
s_add_u32 s23, s23, s21
s_and_b32 s21, s20, 1
s_lshl_b32 s21, s21, 9
s_add_u32 s23, s23, s21
s_add_u32 s23, s23, {YF}
s_lshl_b32 s21, s20, 3
s_add_u32 s21, s21, s22
s_lshl_b32 s24, s3, 6
s_add_u32 s24, s24, s21
s_mul_i32 s24, s24, 1280
""")
    w5_consts(a, 88, 22, 1.0)
    a(f"""
s_lshl_b32 s27, s22, 4
v_add_u32 v22, s27, v5
v_cvt_f32_u32 v22, v22
v_mul_f32 v22, {fh(1/128)}, v22
v_and_b32 v23, 1, v6
v_cvt_f32_u32 v23, v23
v_mul_f32 v23, 4.0, v23
v_lshrrev_b32 v24, 1, v6
v_cvt_f32_u32 v24, v24
v_mul_f32 v24, {fh(0.25)}, v24
v_fma_f32 v23, v23, v22, v24
v_mul_f32 v24, {fh(5.0)}, v22
v_mul_f32 v27, {fh(64.0)}, v22
v_cmp_eq_u32 vcc, 2, v6
v_cndmask_b32 v27, v23, v27, vcc
""")
    for t in range(4):
        for jj in range(4):
            a(f"""v_cos_f32 v25, v{27 if (t, jj) == (0, 0) else 23}
v_add_f32 v23, v23, v22
v_cos_f32 v26, v23
v_add_f32 v23, v23, v{24 if jj & 1 else 22}
v_cvt_pk_bf16_f32 v{96+4*t+jj}, v25, v26""")
    a(f"""
v_lshlrev_b32 v14, 5, v5
v_lshl_add_u32 v14, v6, 3, v14
s_lshl_b32 s27, s22, 9
s_add_u32 s27, s27, {TB}
v_add_u32 v14, s27, v14
v_and_b32 v15, 4096, v9
v_add_u32 v15, v15, v14
v_xor_b32 v112, 4096, v15
v_lshlrev_b32 v113, 3, v1
v_add_u32 v113, {TB}, v113
v_and_b32 v22, 7, v5
v_mul_u32_u24 v22, {ZR}, v22
v_lshl_add_u32 v22, v6, 4, v22
s_lshl_b32 s27, s22, 6
s_add_u32 s27, s27, {ZB}
v_add_u32 v17, s27, v22
v_lshrrev_b32 v22, 3, v5
v_mul_u32_u24 v22, {2*ZC}, v22
v_add_u32 v16, v17, v22
v_lshlrev_b32 v4, 2, v3
s_mul_i32 s27, s22, {ZR}
s_add_u32 s27, s27, {ZB}
v_add_u32 v7, s27, v4
v_add_u32 v4, {PB}, v4
v_and_b32 v22, 0x80000000, v9
v_xor_b32 v22, v22, v10
v_and_b32 v23, 0x80008000, v9
v_xor_b32 v24, v23, v12
""")
    for j in range(5):
        a(f"ds_read_b64 {P(120+2*j)}, v4 offset:{512*j}\nds_read_b64 {P(140+2*j)}, v4 offset:{5120+512*j}\nds_read_b64 {P(130+2*j)}, v4 offset:{2560+512*j}")
    a("s_waitcnt lgkmcnt(0)")
    ST('c')
    gather2(a, 'KM_gy', f"buffer_load_dwordx4 {Q(28)}, v11, s[12:15], s23 offen sc1", f"buffer_load_dwordx4 {Q(32)}, v13, s[12:15], s23 offen sc1", 28, 32, 36)
    ST('c')
    a(f"""v_cndmask_b32 v32, v32, v34, s[42:43]
v_cndmask_b32 v33, v33, v35, s[42:43]
v_xor_b32 v26, v30, v24
v_xor_b32 v27, v31, v24
v_xor_b32 v30, v30, v12
v_xor_b32 v31, v31, v12
ds_write_b64 v14, {P(32)} offset:8192""")
    for hh in range(2):
        a(f"""v_lshlrev_b32 v{36+2*hh}, 16, v{28+hh}
v_and_b32 v{37+2*hh}, 0xffff0000, v{28+hh}
v_lshlrev_b32 v{40+2*hh}, 16, v{30+hh}
v_and_b32 v{41+2*hh}, 0xffff0000, v{30+hh}
v_lshlrev_b32 v{44+2*hh}, 16, v{28+hh}
v_and_b32 v{45+2*hh}, 0xffff0000, v{28+hh}
v_lshlrev_b32 v{48+2*hh}, 16, v{26+hh}
v_and_b32 v{49+2*hh}, 0xffff0000, v{26+hh}""")
    for i in range(4):
        a(f"v_fmac_f32_dpp v{44+i}, v{36+i}, v22 row_ror:8 {DPP}")
        a(f"v_fmac_f32_dpp v{48+i}, v{40+i}, v10 row_ror:8 {DPP}")
    a(f"""v_cvt_pk_bf16_f32 v52, v44, v45
v_cvt_pk_bf16_f32 v53, v46, v47
v_cvt_pk_bf16_f32 v54, v48, v49
v_cvt_pk_bf16_f32 v55, v50, v51
ds_write_b64 v15, {P(52)}
ds_write_b64 v112, {P(54)}
s_waitcnt lgkmcnt(0)""")
    bar(a, 'W', 'b1')
    for T in range(3):
        for t in range(4):
            for x in range(2): a(f"ds_read_b64_tr_b16 {P(28+16*T+4*t+2*x)}, v113 offset:{4096*T+1024*t+512*x}")
            if T == 1 and t == 3:
                a("s_waitcnt lgkmcnt(8)")
                for tt in range(4): a(f"v_mfma_f32_16x16x32_bf16 {Q(76)}, {Q(96+4*tt)}, {Q(28+4*tt)}, {'0' if tt == 0 else Q(76)}")
    for T in (1, 2):
        a(f"s_waitcnt lgkmcnt({8 if T == 1 else 0})")
        for t in range(4): a(f"v_mfma_f32_16x16x32_bf16 {Q(76+4*T)}, {Q(96+4*t)}, {Q(28+16*T+4*t)}, {'0' if t == 0 else Q(76+4*T)}")
    a(f"ds_write_b128 v16, {Q(76)} offset:{ZC}")
    for j in range(5): a(f"v_lshlrev_b32 v{28+2*j}, 16, v{XR+j}\nv_and_b32 v{29+2*j}, 0xffff0000, v{XR+j}")
    a(f"""ds_write_b128 v16, {Q(80)} offset:{2*ZC}
ds_write_b128 v17, {Q(84)}
s_waitcnt lgkmcnt(0)""")
    bar(a, 'W', 'b2')
    for c in range(5): a(f"ds_read_b64 {P(40+2*c)}, v7 offset:{ZC*c}")
    a("s_waitcnt lgkmcnt(0)")
    bar(a, 'W', 'b3')
    for k in range(2):
        r, im = 42+4*k, 44+4*k; c, s = 88+4*k, 90+4*k; R, I = 50+4*k, 52+4*k
        a(f"""v_pk_mul_f32 {P(R)}, {P(r)}, {P(c)}
v_pk_mul_f32 {P(I)}, {P(r)}, {P(s)}
v_pk_fma_f32 {P(R)}, {P(im)}, {P(s)}, {P(R)} neg_lo:[1,0,0] neg_hi:[1,0,0]
v_pk_fma_f32 {P(I)}, {P(im)}, {P(c)}, {P(I)}""")
    z0,z1r,z1i,z2r,z2i = 40,50,52,54,56
    A,B,Cc,Dd,E = 58,60,62,64,66
    sl = {(3*j) % 5: j for j in range(5)}
    X = lambda d2: P(28+2*sl[d2]); G = lambda d2: P(120+2*sl[d2])
    a(f"""v_pk_add_f32 {P(E)}, {P(z0)}, {P(z1r)}
v_pk_fma_f32 {P(A)}, s[30:31], {P(z1r)}, {P(z0)}
v_pk_fma_f32 {P(B)}, s[32:33], {P(z1r)}, {P(z0)}
v_pk_mul_f32 {P(Cc)}, s[34:35], {P(z1i)}
v_pk_mul_f32 {P(Dd)}, s[36:37], {P(z1i)}
v_pk_add_f32 {P(E)}, {P(E)}, {P(z2r)}
v_pk_fma_f32 {P(A)}, s[32:33], {P(z2r)}, {P(A)}
v_pk_fma_f32 {P(B)}, s[30:31], {P(z2r)}, {P(B)}
v_pk_fma_f32 {P(Cc)}, s[36:37], {P(z2i)}, {P(Cc)}
v_pk_fma_f32 {P(Dd)}, s[34:35], {P(z2i)}, {P(Dd)} neg_lo:[0,1,0] neg_hi:[0,1,0]
v_pk_fma_f32 {X(0)}, {G(0)}, {P(E)}, {X(0)}
v_pk_add_f32 {P(68)}, {P(A)}, {P(Cc)} neg_lo:[0,1] neg_hi:[0,1]
v_pk_add_f32 {P(70)}, {P(A)}, {P(Cc)}
v_pk_add_f32 {P(72)}, {P(B)}, {P(Dd)} neg_lo:[0,1] neg_hi:[0,1]
v_pk_add_f32 {P(74)}, {P(B)}, {P(Dd)}
v_pk_fma_f32 {X(1)}, {G(1)}, {P(68)}, {X(1)}
v_pk_fma_f32 {X(4)}, {G(4)}, {P(70)}, {X(4)}
v_pk_fma_f32 {X(2)}, {G(2)}, {P(72)}, {X(2)}
v_pk_fma_f32 {X(3)}, {G(3)}, {P(74)}, {X(3)}
s_add_u32 s25, s24, {X1}
s_add_u32 s26, s24, {H2F}""")
    for j in range(5): a(f"v_cvt_pk_bf16_f32 v{16+j}, v{28+2*j}, v{29+2*j}")
    a(f"""v_permlane32_swap_b32 v16, v17
v_permlane32_swap_b32 v18, v19
buffer_store_dwordx2 {P(16)}, v2, s[12:15], s25 offen sc1
buffer_store_dwordx2 {P(18)}, v2, s[12:15], s25 offen offset:512 sc1""")
    ln_rows(a, 28, 22)
    a(f"v_bfe_u32 v24, v0, 5, 1\nv_mul_u32_u24 v24, {H2F - X1 - 256}, v24\nv_add_u32 v24, v24, v2")
    for j in range(5): a(f"v_pk_mul_f32 {P(140+2*j)}, {P(140+2*j)}, {P(22)} op_sel_hi:[1,0]")
    for j in range(5): a(f"v_pk_fma_f32 {P(28+2*j)}, {P(28+2*j)}, {P(140+2*j)}, {P(130+2*j)}")
    for j in range(4): a(f"v_cvt_pk_bf16_f32 v{40+j}, v{28+2*j}, v{29+2*j}")
    a(f"""v_cvt_pk_bf16_f32 v21, v36, v37
v_permlane32_swap_b32 v40, v41
v_permlane32_swap_b32 v42, v43
v_permlane32_swap_b32 v20, v21
buffer_store_dwordx2 {P(40)}, v2, s[12:15], s26 offen sc1
buffer_store_dwordx2 {P(42)}, v2, s[12:15], s26 offen offset:512 sc1
buffer_store_dwordx2 {P(20)}, v24, s[12:15], s25 offen offset:1024 sc1""")
    ST('c')
    a(f"""v_mov_b32 v2, v1
s_lshr_b32 s26, s22, 2
s_and_b32 s27, s22, 3
v_lshrrev_b32 v3, 4, v2
v_bfe_u32 v4, v2, 2, 2
v_lshl_add_u32 v4, v3, 3, v4
v_mul_u32_u24 v4, 192, v4
v_and_b32 v5, 3, v2
v_lshl_add_u32 v4, v5, 3, v4
v_and_b32 v5, 1, v3
v_lshlrev_b32 v5, 5, v5
s_mul_i32 s28, s26, 96
v_add_u32 v4, s28, v4
s_cmp_eq_u32 s26, 0
s_cselect_b32 s29, 1, -1
v_mul_lo_u32 v5, v5, s29
v_add_u32 v6, v4, v5
v_sub_u32 v7, v4, v5
v_add_u32 v8, {4*WS_}, v6
v_add_u32 v9, {4*WS_}, v7
v_and_b32 v10, 15, v2
v_lshrrev_b32 v11, 1, v10
v_xor_b32 v11, v11, v3
v_lshlrev_b32 v11, 4, v11
v_lshl_add_u32 v11, v10, 7, v11
s_lshl_b32 s28, s27, 12
s_add_u32 s28, s28, {HB}
v_add_u32 v11, s28, v11
v_xor_b32 v12, 64, v11
s_load_dwordx2 s[60:61], s[0:1], 72
s_waitcnt vmcnt(0)""")
    ST('c')
    bar(a, 'W', 'd1')
    ACC = lambda mat, i, nt: 16 + 4*(6*nt + 3*mat + i)
    FA = lambda buf, mat, i: 64 + 32*buf + 4*(3*mat+i)
    FB = lambda buf, nt: 88 + 32*buf + 4*nt
    def reads(s):
        L = []; sl = s % 8
        for nt in range(2): L.append(f"ds_read_b128 {Q(FB(s & 1, nt))}, v{11 + (s & 1)} offset:{((s//2) % 4)*HS + 2048*nt}")
        for mat in range(2):
            for i in range(3):
                for x in range(2):
                    L.append(f"ds_read_b64_tr_b16 {P(FA(s & 1, mat, i) + 2*x)}, v{6 + (i & 1) + 2*(sl//4)} offset:{(sl % 4)*WS_ + mat*6144 + 4*x*192 + 32*i}")
        return L
    bar(a, 'W', 'B0')
    ST('d')
    for l in reads(0): a(l)
    for s in range(NST):
        a("s_waitcnt lgkmcnt(0)")
        if s & 1: bar(a, 'W', f'B{(s+1)//2}')
        R = reads(s+1) if s+1 < NST else []
        k = 0
        for mat in range(2):
            for i in range(3):
                for nt in range(2):
                    c = ACC(mat, i, nt)
                    a(f"v_mfma_f32_16x16x32_bf16 {Q(c)}, {Q(FA(s & 1, mat, i))}, {Q(FB(s & 1, nt))}, {'0' if s == 0 else Q(c)}")
                    for l in R[2*k:2*k+2]: a(l)
                    k += 1
    ST('d')
    kk = 2*0.7978845608028654*math.log2(math.e)
    a(f"""s_mov_b32 s30, {fh(-kk*0.044715)}
s_mov_b32 s31, {fh(-kk*0.044715)}
v_mov_b32 v10, {fh(-kk)}
v_mov_b32 v11, {fh(-kk)}
s_lshl_b32 s29, s50, 3
s_lshl_b32 s28, s27, 1
s_add_u32 s29, s29, s28
s_mul_i32 s29, s29, 49152
s_mul_i32 s28, s51, 3072
s_add_u32 s29, s29, s28
s_mul_i32 s28, s26, 1536
s_add_u32 s29, s29, s28
s_add_u32 s29, s29, {HIDF}
v_bfe_u32 v7, v2, 4, 1
v_mul_u32_u24 v7, 49152, v7
v_lshrrev_b32 v8, 5, v2
v_lshl_add_u32 v7, v8, 8, v7
v_and_b32 v8, 15, v2
v_lshl_add_u32 v7, v8, 4, v7""")
    for nt in range(2):
        Gt = ACC(0, 0, nt); U = ACC(1, 0, nt); T = 64 + 16*nt
        for i in range(0, 12, 2): a(f"v_pk_mul_f32 {P(T+i)}, {P(Gt+i)}, {P(Gt+i)}")
        for i in range(0, 12, 2): a(f"v_pk_fma_f32 {P(T+i)}, {P(T+i)}, s[30:31], {P(10)}")
        for i in range(0, 12, 2): a(f"v_pk_mul_f32 {P(T+i)}, {P(T+i)}, {P(Gt+i)}")
        for i in range(0, 12, 2): a(f"v_exp_f32 v{T+i}, v{T+i}\nv_exp_f32 v{T+i+1}, v{T+i+1}\nv_pk_mul_f32 {P(Gt+i)}, {P(Gt+i)}, {P(U+i)}")
        for i in range(0, 12, 2): a(f"v_pk_add_f32 {P(T+i)}, {P(T+i)}, 1.0 op_sel_hi:[1,0]")
        for i in range(12): a(f"v_rcp_f32 v{T+i}, v{T+i}")
        for i in range(0, 12, 2): a(f"v_pk_mul_f32 {P(Gt+i)}, {P(Gt+i)}, {P(T+i)}")
        for i in range(3):
            O = 96 + 4*i + 2*nt
            a(f"v_cvt_pk_bf16_f32 v{O}, v{Gt+4*i}, v{Gt+4*i+1}\nv_cvt_pk_bf16_f32 v{O+1}, v{Gt+4*i+2}, v{Gt+4*i+3}")
    for i in range(3):
        O = 96 + 4*i
        a(f"""v_permlane16_swap_b32 v{O}, v{O+2}
v_permlane16_swap_b32 v{O+1}, v{O+3}
buffer_store_dwordx4 {Q(O)}, v7, s[12:15], s29 offen offset:{512*i} sc1""")
    ST('d')
    a(f"""s_lshl_b32 s30, s50, 3
s_lshr_b32 s28, s51, 3
s_lshl_b32 s28, s28, 2
s_add_u32 s30, s30, s28
s_add_u32 s30, s30, s27
s_mul_i32 s29, s30, 49152
s_lshl_b32 s28, s26, 10
s_add_u32 s29, s29, s28
s_add_u32 s29, s29, {HIDF}
s_lshl_b32 s30, s30, 4
s_and_b32 s24, s51, 7
v_lshrrev_b32 v3, 2, v2
v_mul_u32_u24 v3, 160, v3
v_and_b32 v4, 3, v2
v_lshl_add_u32 v3, v4, 3, v3
s_mul_i32 s28, s26, 5120
v_add_u32 v3, s28, v3
v_add_u32 v4, {6*DW}, v3
v_add_u32 v5, {12*DW}, v3
v_lshlrev_b32 v6, 4, v2
v_and_b32 v12, 15, v2
v_lshrrev_b32 v13, 4, v2
v_mul_u32_u24 v8, 1280, v12
v_lshl_add_u32 v8, v13, 3, v8
s_mul_i32 s23, s30, 1280
s_mul_i32 s25, s24, 160
s_add_u32 s23, s23, s25
s_add_u32 s23, s23, {X1}
v_lshlrev_b32 v15, 4, v13
s_lshl_b32 s28, s25, 1
s_add_u32 s28, s28, 12800
s_lshl_b32 s21, s26, 6
s_add_u32 s23, s23, s21
s_lshl_b32 s21, s26, 7
s_add_u32 s28, s28, s21
s_waitcnt vmcnt(0)""")
    ST('d')
    bar(a, 'W', 'd2')
    srd(a, 16, 60, 2048*1280)
    AC2 = lambda mt: 16 + 4*mt
    FA2 = lambda buf, mt: 36 + 20*buf + 4*mt
    NB = 10
    FB2 = lambda s: 76 + 4*(s % NB)
    def reads2(s):
        p = WPOS(s)
        return [f"ds_read_b64_tr_b16 {P(FA2(s & 1, mt) + 2*x)}, v{3+p//6} offset:{(p % 6)*DW + x*2560 + 32*mt}" for mt in range(5) for x in range(2)]
    def ldb(s):
        a(f"buffer_load_dwordx4 {Q(FB2(s))}, v6, s[12:15], s29 offen offset:{2048*(s & 1)} sc1")
        if s & 1: a("s_add_u32 s29, s29, 4096")
    bar(a, 'W', 'C0')
    ST('d')
    nb = 0; nx = 0
    for s in range(NB-1): ldb(s); nb += 1
    for l in reads2(0): a(l)
    for s in range(NS2):
        a(f"s_waitcnt vmcnt({nb-s-1+nx}) lgkmcnt(0)")
        if s in CB: bar(a, 'W', f'C{s}')
        if nb < NS2: ldb(nb); nb += 1
        elif nx < 6:
            k = nx // 2
            a(f"buffer_load_dwordx2 {P(116+2*k)}, v8, s[12:15], s23 offen offset:{32*k} sc1")
            a(f"buffer_load_dwordx4 {Q(128+4*k)}, v15, s[12:15], s28 offen offset:{64*k} sc1")
            nx += 2
        R = reads2(s+1) if s+1 < NS2 else []
        for mt in range(5):
            c = AC2(mt)
            a(f"v_mfma_f32_16x16x32_bf16 {Q(c)}, {Q(FA2(s & 1, mt))}, {Q(FB2(s))}, {'0' if s == 0 else Q(c)}")
            for l in R[2*mt:2*mt+2]: a(l)
    RB = WPOS(10)*DW
    ST('d')
    a(f"""s_mul_i32 s28, s27, 5120
s_add_u32 s28, s28, {RB}
v_add_u32 v6, s28, v6
s_and_b32 s23, s30, 63
s_lshl_b32 s23, s23, 5
s_lshr_b32 s29, s30, 6
s_add_u32 s23, s23, s29
s_mul_i32 s23, s23, 1280
s_add_u32 s23, s23, s25
v_mul_u32_u24 v8, 40960, v12
v_lshl_add_u32 v8, v13, 3, v8
s_cmp_eq_u32 s26, 0
s_cbranch_scc1 KM_lo""")
    def fin(give, keep, base):
        for mt in give: a(f"ds_write_b128 v6, {Q(AC2(mt))} offset:{1024*mt}")
        a("s_waitcnt vmcnt(0)")
        for mt in keep:
            x = 116+2*(mt-base); r = 76+4*mt
            a(f"v_lshlrev_b32 v{r}, 16, v{x}\nv_and_b32 v{r+1}, 0xffff0000, v{x}\nv_lshlrev_b32 v{r+2}, 16, v{x+1}\nv_and_b32 v{r+3}, 0xffff0000, v{x+1}")
        a("s_waitcnt lgkmcnt(0)\ns_barrier")
        for mt in keep: a(f"ds_read_b128 {Q(36+4*mt)}, v6 offset:{1024*mt}")
        for n, mt in enumerate(keep):
            c = AC2(mt); x = 116+2*(mt-base); g = 128+4*(mt-base); r = 36+4*mt; o = 76+4*mt
            a(f"""s_waitcnt lgkmcnt({len(keep)-1-n})
v_pk_add_f32 {P(c)}, {P(c)}, {P(r)}
v_pk_add_f32 {P(c+2)}, {P(c+2)}, {P(r+2)}
v_pk_fma_f32 {P(o)}, {P(c)}, {P(g)}, {P(o)}
v_pk_fma_f32 {P(o+2)}, {P(c+2)}, {P(g+2)}, {P(o+2)}
v_cvt_pk_bf16_f32 v{x}, v{o}, v{o+1}
v_cvt_pk_bf16_f32 v{x+1}, v{o+2}, v{o+3}
buffer_store_dwordx2 {P(x)}, v8, s[16:19], s23 offen offset:{32*mt}""")
        a("@dump 12\ns_endpgm")
    nst = a.st.n
    fin([0,1,2], [3,4], 2)
    a.st.n = nst
    a("KM_lo:")
    fin([3,4], [0,1,2], 0)
    a.st.n = 1
    a(f"""KM_prod:
s_sub_u32 s47, s22, 8
s_waitcnt lgkmcnt(0)""")
    srd(a, 12, 6, WS_SIZE)
    srd(a, 16, 60, 256)
    a(f"""v_mov_b32 v60, 0
s_load_dwordx4 s[56:59], s[0:1], 32
s_load_dwordx2 s[4:5], s[0:1], 48
v_lshlrev_b32 v59, 4, v1
s_sub_u32 s53, s2, 80
s_xor_b32 s54, s47, 2
s_mul_i32 s54, s54, 192
s_sub_u32 s21, s2, 64
s_add_u32 s54, s54, s21
s_cmp_lt_u32 s2, 64
s_cselect_b32 s54, 999, s54
s_cmp_ge_u32 s47, 2
s_cbranch_scc1 KM_p_wp
s_cmp_lg_u32 s47, 0
s_cbranch_scc1 KM_p_no0
s_cmp_lg_u32 s2, 0
s_cbranch_scc1 KM_p_nn
s_memrealtime s[38:39]
s_waitcnt lgkmcnt(0)
s_or_b32 s38, s38, 1
v_mov_b32 v61, s38
s_mov_b64 exec, 1
buffer_store_dword v61, v60, s[16:19], 0 offen sc1
s_mov_b64 exec, -1
KM_p_nn:
KM_p_nc:""")
    spin(a, 'KM_pn', "buffer_load_dword v61, v60, s[16:19], 0 offen sc1", "v_cmp_eq_u32 vcc, 0, v61")
    a(f"""v_mov_b32 v62, {NON}
ds_write_b32 v62, v61
KM_p_no0:
s_waitcnt lgkmcnt(0)""")
    bar(a, 'P', 'g1')
    a(f"""v_mov_b32 v62, {NON}
ds_read_b32 v61, v62
s_mul_i32 s23, s47, 5120
s_add_u32 s23, s23, {MODG}
s_add_u32 s21, s23, 4096
v_lshlrev_b32 v62, 4, v1
s_mul_i32 s24, s47, 2560
s_add_u32 s24, s24, {PB1}
v_lshlrev_b32 v63, 3, v1
v_add_u32 v63, s24, v63
s_lshl_b32 s25, s2, 7
s_add_u32 s25, s25, {GFL}
s_lshl_b32 s26, s47, 14
s_add_u32 s26, s26, {GFL}
s_add_u32 s27, s26, 8192
v_lshlrev_b32 v58, 7, v1
s_waitcnt lgkmcnt(0)
s_cmp_lg_u32 s47, 0
s_cbranch_scc1 KM_p_nf
s_mov_b64 exec, 1
buffer_store_dword v61, v60, s[12:15], s25 offen sc1
s_mov_b64 exec, -1
KM_p_nf:""")
    ld = "\n".join([f"buffer_load_dwordx4 {Q(8+4*q)}, v62, s[12:15], {'s23' if q < 4 else 's21'} offen offset:{1024*(q % 4)} sc1" for q in range(5)])
    cm = "v_cmp_ne_u32 vcc, v9, v61\n" + "\n".join([f"v_cmp_ne_u32 s[38:39], v{r}, v61\ns_or_b64 vcc, vcc, s[38:39]" for r in range(11, 28, 2)])
    spin(a, 'KM_pg', ld, cm)
    for q in range(5): a(f"v_mov_b32 v{9+4*q}, v{10+4*q}\nds_write_b64 v63, {P(8+4*q)} offset:{512*q}")
    a("s_waitcnt lgkmcnt(0)")
    ST('p')
    a("s_barrier")
    spin(a, 'KM_A_p', "buffer_load_dword v11, v58, s[12:15], s26 offen sc1\nbuffer_load_dword v12, v58, s[12:15], s27 offen sc1", "v_cmp_ne_u32 vcc, v11, v61\nv_cmp_ne_u32 s[38:39], v12, v61\ns_or_b64 vcc, vcc, s[38:39]")
    ST('p')
    a("s_branch KM_p_ag2")
    a(f"""KM_p_wp:
s_sub_u32 s21, s47, 2""")
    task_ids(a, 21)
    a(f"""s_cmp_gt_u32 s28, 320
s_cbranch_scc1 KM_p_nyf
s_lshl_b32 s28, s28, 13
s_add_u32 s28, s28, {YF}
s_add_u32 s29, s28, 4096
v_mov_b32 v64, -1
v_mov_b32 v65, -1
v_mov_b32 v66, -1
v_mov_b32 v67, -1""")
    for q in range(8): a(f"buffer_store_dwordx4 {Q(64)}, v59, s[12:15], {'s28' if q < 4 else 's29'} offen offset:{1024*(q % 4)} sc1")
    a(f"""KM_p_nyf:
s_mul_i32 s21, s21, 176
s_add_u32 s21, s21, s53
s_cmp_lt_u32 s2, 80
s_cbranch_scc1 KM_p_nowp""")
    TOUCH = f"""s_mov_b64 s[44:45], exec
s_mov_b64 exec, -1
s_waitcnt lgkmcnt(0)
s_cmp_eq_u32 s47, 2
s_cselect_b32 s16, s56, s58
s_cselect_b32 s17, s57, s59
s_mov_b32 s18, {640*3072}
s_mov_b32 s19, 0x00020000
s_mul_i32 s40, s2, 7680
v_and_b32 v84, 63, v0
v_min_u32 v84, 59, v84
v_lshlrev_b32 v84, 7, v84
buffer_load_dword v85, v84, s[16:19], s40 offen
s_mov_b64 exec, s[44:45]"""
    st_save = gen.STAMPS; gen.STAMPS = False
    tmp = Asm2(); tmp.st = a.st
    wprep(tmp, 21, 24, 26, 12, 'sc1')
    gen.STAMPS = st_save
    for ins in tmp.ins:
        if ins.kind == 'nop': continue
        if ins.text.strip() == 's_waitcnt vmcnt(0)':
            a("s_barrier\ns_waitcnt vmcnt(0)"); continue
        a(ins.text)
    a("s_branch KM_p_wd\nKM_p_nowp:\ns_barrier\nKM_p_wd:\nv_and_b32 v2, 63, v0\ns_waitcnt lgkmcnt(0)")
    bar(a, 'P', 'g2')
    a("KM_p_ag2:")
    a(f"""v_mov_b32 v62, {NON}
ds_read_b32 v61, v62
v_and_b32 v2, 63, v0
s_waitcnt vmcnt(0) lgkmcnt(0)
s_cmp_lt_u32 s47, 2
s_cselect_b32 s8, s56, s58
s_cselect_b32 s9, s57, s59
s_mov_b32 s10, {640*3072}
s_mov_b32 s11, 0x00020000""")
    bar(a, 'P', 'k1a')
    srd(a, 16, 4, 1536*1280)
    a(f"""s_cmp_ge_u32 s54, 384
s_cbranch_scc1 KM_p_nwd
s_lshr_b32 s24, s54, 3
s_and_b32 s25, s54, 7
s_mul_i32 s55, s25, {1536*160}
s_mul_i32 s21, s24, 5120
s_add_u32 s55, s55, s21
s_add_u32 s55, s55, {WDT}
s_mul_i32 s24, s24, {32*1280}
s_mul_i32 s25, s25, 160
s_add_u32 s24, s24, s25""")
    for q in range(5):
        a(f"""v_add_u32 v12, {64*q}, v2
v_mul_u32_u24 v14, 52429, v12
v_lshrrev_b32 v14, 19, v14
v_mul_u32_u24 v15, 10, v14
v_sub_u32 v15, v12, v15
v_and_b32 v36, 3, v14
v_bfe_u32 v37, v14, 2, 2
v_lshl_add_u32 v36, v37, 3, v36
v_lshrrev_b32 v37, 4, v14
v_lshl_add_u32 v36, v37, 2, v36
v_mul_u32_u24 v36, 1280, v36
v_lshl_add_u32 v36, v15, 4, v36
buffer_load_dwordx4 {Q(64+4*q)}, v36, s[16:19], s24 offen""")
    a("KM_p_nwd:")
    def touch():
        a("s_cmp_lt_u32 s47, 2\ns_cbranch_scc1 KM_p_nt")
        a(TOUCH)
        a("KM_p_nt:")
    if OPT.get('tp', 'k1a') == 'k1a': touch()
    for q in range(3):
        a(f"""v_add_u32 v10, {64*q}, v2
v_mul_u32_u24 v11, 43691, v10
v_lshrrev_b32 v11, 19, v11
v_mul_u32_u24 v12, 12, v11
v_sub_u32 v12, v10, v12
v_lshrrev_b32 v13, 2, v11
v_and_b32 v13, 2, v13
v_xor_b32 v12, v12, v13
v_mul_u32_u24 v11, 3072, v11
v_lshl_add_u32 v11, v12, 4, v11
v_subrev_u32 v{50+q}, {1024*q}, v11""")
    for q in range(4):
        a(f"""v_lshrrev_b32 v10, 4, v2
v_add_u32 v10, {4*q}, v10
v_xor_b32 v10, v10, v2
v_and_b32 v10, 7, v10
v_lshrrev_b32 v11, 3, v2
v_mul_u32_u24 v11, 1280, v11
v_lshl_add_u32 v11, v10, 4, v11
v_add_u32 v{53+q}, {q*(10240-1024)}, v11""")
    a(f"""
s_and_b32 s26, s47, 1
s_mul_i32 s27, s26, {16*3072}
s_mul_i32 s28, s51, 192
s_add_u32 s27, s27, s28
s_mul_i32 s28, s47, 3072
s_lshl_b32 s29, s50, 2
s_add_u32 s29, s29, s47
s_mul_i32 s29, s29, 40960
s_add_u32 s29, s29, {H2F}
s_lshl_b32 s30, s47, 12
v_and_b32 v58, 15, v2
v_lshlrev_b32 v58, 7, v58
v_and_b32 v57, 3, v2
v_lshlrev_b32 v57, 7, v57
v_lshlrev_b32 v59, 4, v2
v_lshlrev_b32 v63, 7, v2""")
    def iw(s):
        a(f"s_add_u32 m0, s28, {(s % 8)*WS_}")
        for q in range(3): a(f"buffer_load_dwordx4 v{50+q}, s[8:11], s27 offen offset:{1024*q} sc1 lds")
        a(f"s_add_u32 s27, s27, {32*3072}")
    def ih(d):
        a(f"s_add_u32 m0, s30, {HB + (d % 4)*HS}")
        for q in range(4): a(f"buffer_load_dwordx4 v{53+q}, s[12:15], s29 offen offset:{1024*q} sc1 lds")
        a("s_add_u32 s29, s29, 128")
    bar(a, 'P', 'k2a')
    a("s_cmp_ge_u32 s54, 384\ns_cbranch_scc1 KM_p_nwd2\ns_add_u32 s54, s55, 4096\ns_waitcnt vmcnt(0)")
    for q in range(5): a(f"buffer_store_dwordx4 {Q(64+4*q)}, v59, s[12:15], {'s55' if q < 4 else 's54'} offen offset:{1024*(q % 4)} sc1")
    a("KM_p_nwd2:")
    a(f"""s_lshl_b32 s23, s47, 11
s_add_u32 m0, s23, {PB}
s_add_u32 s23, s23, 5120
buffer_load_dwordx4 v59, s[12:15], s23 offen sc1 lds
buffer_load_dwordx4 v59, s[12:15], s23 offen offset:1024 sc1 lds""")
    for s in range(0, 4): iw(s)
    a("s_waitcnt vmcnt(12)")
    bar(a, 'P', 'k2b')
    if OPT.get('tp', 'k1a') == 'k2b': touch()
    bar(a, 'P', 'b1')
    if OPT.get('tp', 'k1a') == 'b1': touch()
    for s in range(4, 8): iw(s)
    bar(a, 'P', 'b2'); bar(a, 'P', 'b3')
    a(f"""s_lshl_b32 s48, s50, 4
s_add_u32 s48, s48, s51
s_lshl_b32 s48, s48, 7
s_add_u32 s48, s48, {FLG}
s_lshl_b32 s23, s50, 2
s_add_u32 s23, s23, s47
s_lshl_b32 s23, s23, 9
s_add_u32 s23, s23, {FLG}
s_and_b32 s24, s51, 7
s_mul_i32 s31, s47, 2560
s_mul_i32 s32, s24, {1536*160}
s_add_u32 s32, s32, s31
s_add_u32 s32, s32, {WDT}""")
    bar(a, 'P', 'd1')
    a(f"""s_cmp_lg_u32 s47, 0
s_cbranch_scc1 KM_na1
s_mov_b64 exec, 1
buffer_store_dword v61, v60, s[12:15], s48 offen sc1
s_mov_b64 exec, -1
KM_na1:""")
    spin(a, 'KM_p1', "buffer_load_dword v11, v57, s[12:15], s23 offen sc1", "v_cmp_ne_u32 vcc, v11, v61")
    ST('p')
    cnt = []
    def iw2(s):
        a(f"""s_add_u32 m0, s31, {WPOS(s)*DW}
buffer_load_dwordx4 v59, s[12:15], s32 offen sc1 lds
buffer_load_dwordx4 v59, s[12:15], s32 offen offset:1024 sc1 lds
s_mov_b32 exec_hi, 0
buffer_load_dwordx4 v59, s[12:15], s32 offen offset:2048 sc1 lds
s_mov_b32 exec_hi, -1
s_add_u32 s32, s32, 10240""")
    def grp(d):
        ih(d); n = 4
        if d >= 4:
            iw(2*d); iw(2*d+1); n += 6
        cnt.append(n)
    for d in range(4): grp(d)
    nw2 = 0
    for d in range(10):
        a(f"s_waitcnt vmcnt({sum(cnt[d+1:])})")
        bar(a, 'P', f'B{d}')
        if d >= 1 and d+3 < 10: grp(d+3)
        if d >= 7:
            for _ in range(EARLY[d]): iw2(nw2); nw2 += 1
            cnt.append(3*EARLY[d])
    bar(a, 'P', 'B10')
    while nw2 < NWD: iw2(nw2); nw2 += 1
    a(f"""s_lshl_b32 s23, s50, 11
s_add_u32 s23, s23, {FLG + 32768}
s_add_u32 s48, s48, 32768""")
    bar(a, 'P', 'd2')
    a(f"""s_cmp_eq_u32 s47, 1
s_cbranch_scc0 KM_nb2
s_mov_b64 exec, 1
buffer_store_dword v61, v60, s[12:15], s48 offen sc1
s_mov_b64 exec, -1
KM_nb2:
s_cmp_lg_u32 s47, 0
s_cbranch_scc1 KM_na2""")
    spin(a, 'KM_p2', "buffer_load_dword v11, v58, s[12:15], s23 offen sc1", "v_cmp_ne_u32 vcc, v11, v61")
    a("KM_na2:\ns_waitcnt vmcnt(0)")
    ST('p')
    bar(a, 'P', 'C0')
    pend = []
    for s in CB:
        need = [t for t in pend if t <= NEXTCB[s]]
        a(f"s_waitcnt vmcnt({3*(len(pend)-len(need))})")
        bar(a, 'P', f'C{s}')
        pend = [t for t in pend if t not in need]
        while nw2 < NS2 and nw2 - NWD <= s:
            iw2(nw2); pend.append(nw2); nw2 += 1
    a("@dump 12\nKM_end:\ns_endpgm")
    assert bar.seq['W'] == bar.seq['P'], (bar.seq['W'], bar.seq['P'])
    return kd_block(NAME, 168, 100)
if __name__ == '__main__':
    OPT = {}; out = 'mega.s'
    for x in sys.argv[1:]:
        if x.endswith('.s'): out = x
        elif x.startswith('st='): gen.STAMPS = True; OPT['st'] = x[3:]
        elif x.startswith('slp'): gen.SLP = int(x[3:])
        elif x.startswith('bk'): OPT['bk'] = int(x[2:])
        elif x.startswith('tp='): OPT['tp'] = x[3:]
        else: OPT[x] = 1
    a = Asm2()
    kd = km(a, OPT)
    hdr = open('adaLN_cond__spectral_gfnet__glu_gated_geglu__prompt.s.ref').read().split('\n')[:13]
    s = '\n'.join(hdr) + '\n; @launch grid=(256,1,1) block=(768,1,1) lds=163840\n'
    s += '.amdgcn_target "amdgcn-amd-amdhsa--gfx950"\n.text\n' + a.text() + '.section .rodata,"a"\n' + kd
    open(out, 'w').write(s)
```

```python
import sys, math
sys.path.insert(0,'work')
import gen
from gen import *
NAME = 'adaLN_cond__spectral_gfnet__glu_gated_geglu__prompt_kernel'
MODG = 0x4000
GFL = 0x20000
CNT = 0x8000
class Bar:
    def __init__(self): self.seq = {}
    def __call__(self, a, role, name):
        self.seq.setdefault(role, []).append(name); a("s_barrier")
def spin(a, name, load, cmp):
    a(f"s_mov_b32 s46, 0x8000\n{name}:")
    a(load); a("s_waitcnt vmcnt(0)"); a(cmp)
    a(f"""s_nop 1
s_cmp_eq_u64 vcc, 0
s_cbranch_scc1 {name}_ok
s_sleep {gen.SLP}
s_sub_u32 s46, s46, 1
s_cmp_lg_u32 s46, 0
s_cbranch_scc1 {name}
{name}_ok:""")
def addr_xf(a):
    a(f"""s_lshl_b32 s40, s22, 5
v_lshrrev_b32 v22, 1, v6
v_lshl_add_u32 v22, v22, 4, v5
v_add_u32 v22, s40, v22
v_add_u32 v23, 256, v8
v_and_b32 v24, 1, v6
v_lshlrev_b32 v24, 7, v24""")
    for src_, dst in ((22, 11), (23, 13)):
        a(f"""v_lshrrev_b32 v25, 3, v{src_}
v_lshl_add_u32 v25, v25, 16, v24
v_and_b32 v26, 7, v{src_}
v_lshl_add_u32 v{dst}, v26, 4, v25""")
def addr_yf(a):
    a(f"""s_lshl_b32 s40, s22, 5
v_lshrrev_b32 v22, 1, v6
v_lshl_add_u32 v22, v22, 4, v5
v_add_u32 v22, s40, v22
v_add_u32 v23, 256, v8
v_and_b32 v24, 1, v6
v_lshlrev_b32 v24, 8, v24
v_lshl_add_u32 v11, v22, 13, v24
v_lshl_add_u32 v13, v23, 13, v24""")
def gather2(a, name, ld0, ld1, r0, r1, t, pre=False):
    a(f"""s_mov_b32 s46, 0x8000
{f's_branch {name}_chk' if pre else ''}
{name}:
{ld0}
{ld1}
{name}_chk:
s_waitcnt vmcnt(0)
v_max3_u32 v{t}, v{r0}, v{r0+1}, v{r0+2}
v_max3_u32 v{t+1}, v{r1}, v{r1+1}, v{r1+2}
v_max3_u32 v{t}, v{t}, v{r0+3}, v{r1+3}
v_max_u32 v{t}, v{t}, v{t+1}
v_cmp_eq_u32 vcc, -1, v{t}
s_nop 1
s_and_b64 exec, exec, vcc
s_cbranch_scc0 {name}_ok
s_sleep 2
s_sub_u32 s46, s46, 1
s_cmp_lg_u32 s46, 0
s_cbranch_scc1 {name}
{name}_ok:
s_mov_b64 exec, -1""")
def task_ids(a, slot):
    a(f"""s_lshl_b32 s28, s{slot}, 2
s_lshr_b32 s29, s2, 6
s_add_u32 s28, s28, s29
s_lshl_b32 s28, s28, 3
s_and_b32 s29, s2, 7
s_add_u32 s28, s28, s29
s_lshl_b32 s41, s28, 16
s_lshl_b32 s28, s28, 3
s_bfe_u32 s29, s2, 0x30003
s_add_u32 s28, s28, s29
s_lshl_b32 s29, s29, 4
s_add_u32 s41, s41, s29""")
def km(a, OPT):
    bar = Bar()
    a(f".globl {NAME}\n.p2align 8\n.type {NAME},@function\n{NAME}:")
    a.st = Stamper(a, 3)
    ST = lambda tag: a("@stamp") if tag in OPT.get('st', '') else None
    R2 = 98304
    GP = R2; NON = R2 + 1536; PB1 = R2 + 2048; Z1 = R2 + 8192; K2B = R2 + 24576
    TB = R2; ZB = R2 + 12288; ZR = 528; ZC = 8*ZR; PB = R2 + 57344
    NST = 20; WS_ = 12288; HB = R2; HS = 16384
    NS2 = 24; DW = 10240; NWD = 16
    ORDER = [5, 6, 13,  7, 8, 14, 15,  0, 1, 9, 10,  2, 3, 4, 11, 12]
    EARLY = {7: 3, 8: 4, 9: 4}
    WPOS = lambda s: ORDER[s % NWD]
    CB = [3, 7, 15, 19]; NEXTCB = {3: 7, 7: 15, 15: 19, 19: 23}
    XR = 114
    a(f"""
s_cmp_ge_u32 s2, 256
s_cbranch_scc1 KM_end
@stamp
s_load_dwordx2 s[4:5], s[0:1], 0
s_load_dwordx2 s[6:7], s[0:1], 88
s_load_dwordx4 s[56:59], s[0:1], 56
s_load_dwordx4 s[24:27], s[0:1], 8
s_load_dwordx2 s[60:61], s[0:1], 80
s_and_b32 s50, s2, 7
s_lshr_b32 s51, s2, 3
s_mul_i32 s52, s50, 10
s_add_u32 s52, s52, s51
s_mul_i32 s21, s50, 20
s_add_u32 s21, s21, s51
s_add_u32 s21, s21, 70
s_cmp_lt_u32 s2, 80
s_cselect_b32 s52, s52, s21
s_lshl_b32 s50, s50, 1
s_lshr_b32 s21, s51, 4
s_add_u32 s50, s50, s21
s_and_b32 s51, s51, 15
v_lshrrev_b32 v4, 6, v0
v_and_b32 v1, 63, v0
v_readfirstlane_b32 s22, v4
s_lshl_b32 s3, s50, 1
s_lshr_b32 s21, s51, 3
s_add_u32 s3, s3, s21
s_and_b32 s20, s51, 7
s_cmp_ge_u32 s22, 8
s_cbranch_scc1 KM_prod
v_and_b32 v3, 31, v0
v_lshlrev_b32 v2, 3, v3
v_bfe_u32 v4, v0, 5, 1
v_lshl_add_u32 v2, v4, 8, v2
v_lshlrev_b32 v3, 2, v3
v_lshl_add_u32 v3, v4, 1, v3
s_lshl_b32 s21, s20, 3
s_add_u32 s21, s21, s22
s_lshl_b32 s21, s21, 5
s_add_u32 s21, s21, s3
s_mul_i32 s21, s21, 1280
s_lshl_b32 s23, s52, 5
v_lshrrev_b32 v144, 1, v0
v_and_b32 v145, 1, v0
v_mul_u32_u24 v146, 7680, v144
v_lshl_add_u32 v146, v145, 4, v146
v_add_u32 v146, s23, v146
v_lshlrev_b32 v147, 1, v144
s_cmp_lt_u32 s2, 240
s_cselect_b32 s49, 5, 0
s_waitcnt lgkmcnt(0)
""")
    srd(a, 12, 6, WS_SIZE)
    srd(a, 8, 56, 1280)
    srd(a, 16, 58, 640*3840*2)
    NR = 4
    def gloads(tag, cond):
        a(f"s_cmp_ge_u32 s22, s49\ns_cbranch_scc1 KM_nog1{tag}")
        for i in range(NR): a(f"buffer_load_short_d16_hi v{136+i}, v147, s[8:11], 0 offen offset:{320*i}")
        a("s_mov_b32 s23, 0")
        for i in range(NR):
            a(f"buffer_load_dwordx4 {Q(120+4*i)}, v146, s[16:19], s23 offen")
            if i < NR-1: a(f"s_add_u32 s23, s23, {160*7680}")
        a(f"KM_nog1{tag}:")
    srd(a, 24, 4, 2048*1280)
    for k in range(3): a(f"buffer_load_dwordx2 {P(XR+2*k)}, v2, s[24:27], s21 offen offset:{512*k}")
    gloads('a', 0)
    a("v_and_b32 v5, 15, v0\nv_bfe_u32 v6, v0, 4, 2")
    col_slots(a, 22, 5, 6, 8, 22)
    addr_xf(a)
    a(f"""s_lshl_b32 s38, s3, 11
s_lshl_b32 s21, s20, 8
s_add_u32 s38, s38, s21
s_add_u32 s38, s38, {XF}
v_mov_b32 v28, -1
v_mov_b32 v29, -1
v_mov_b32 v30, -1
v_mov_b32 v31, -1
buffer_store_dwordx4 {Q(28)}, v11, s[12:15], s38 offen sc1
s_mov_b32 exec_lo, 0x00ff00ff
s_mov_b32 exec_hi, 0
buffer_store_dwordx4 {Q(28)}, v13, s[12:15], s38 offen sc1
s_mov_b64 exec, -1
s_lshl_b32 s38, s20, 3
s_add_u32 s38, s38, s22
s_lshl_b32 s21, s3, 6
s_add_u32 s38, s38, s21
s_mul_i32 s38, s38, 1280
s_add_u32 s38, s38, {H2F}
buffer_store_dwordx2 {P(28)}, v2, s[12:15], s38 offen sc1""")
    w5_consts(a, 88, 22, -1.0)
    a(f"""
v_cvt_f32_u32 v22, v8
v_mul_f32 v22, {fh(1/128)}, v22
v_cvt_f32_u32 v23, v6
v_mul_f32 v23, {fh(8.0)}, v23
v_and_b32 v24, {fh(0.25)}, v9
v_fma_f32 v23, v23, v22, -v24
v_mul_f32 v24, {fh(25.0)}, v22
""")
    for t in range(4):
        for jj in range(4):
            a(f"""v_cos_f32 v25, v23
v_add_f32 v23, v23, v22
v_cos_f32 v26, v23
v_add_f32 v23, v23, v{24 if jj == 3 else 22}
v_cvt_pk_bf16_f32 v{96+4*t+jj}, v25, v26""")
    a(f"""
v_lshrrev_b32 v22, 3, v3
v_xor_b32 v22, s22, v22
v_lshlrev_b32 v22, 4, v22
v_and_b32 v23, 7, v3
v_lshl_add_u32 v22, v23, 1, v22
s_lshl_b32 s23, s22, 8
s_add_u32 s23, s23, {Z1}
v_add_u32 v14, s23, v22
v_xor_b32 v15, {2048+128}, v14
v_lshlrev_b32 v7, 2, v3
v_add_u32 v7, {PB1}, v7
v_xor_b32 v22, v6, v5
""")
    for t in range(4):
        a(f"""v_xor_b32 v23, {4*t}, v22
v_lshlrev_b32 v23, 4, v23
v_lshl_add_u32 v23, v5, 8, v23
v_add_u32 v{16+t}, {Z1}, v23""")
    r5_sconsts(a)
    a("s_waitcnt vmcnt(11)\ns_cmp_lt_u32 s22, s49\ns_cbranch_scc1 KM_x0\ns_waitcnt vmcnt(3)\nKM_x0:")
    unpack_x(a, XR, 60)
    ln_rows(a, 60, 70)
    a(f"s_cmp_ge_u32 s22, s49\ns_cbranch_scc1 KM_nog2\ns_waitcnt vmcnt({NR+3})")
    C = 136; T = 140
    for i in range(NR): a(f"v_mul_f32 v{T+i}, {fh(-math.log2(math.e))}, v{C+i}")
    for i in range(NR): a(f"v_exp_f32 v{T+i}, v{T+i}")
    for i in range(NR): a(f"v_add_f32 v{T+i}, 1.0, v{T+i}")
    for i in range(NR): a(f"v_rcp_f32 v{T+i}, v{T+i}")
    for i in range(NR): a(f"v_mul_f32 v{C+i}, v{C+i}, v{T+i}")
    for i in range(NR): a(f"v_cvt_pk_bf16_f32 v{C+i}, v{C+i}, v{C+i}")
    for i in range(NR): a(f"v_and_b32 v{48+2*i}, 0xffff0000, v{C+i}")
    a(f"""v_lshrrev_b32 v22, 4, v0
v_lshlrev_b32 v23, 6, v22
v_lshl_add_u32 v23, v145, 5, v23
v_add_u32 v23, {GP}, v23""")
    for i in range(NR):
        a(f"s_waitcnt vmcnt({NR-1-i+3})")
        for j in range(4): a(f"v_lshlrev_b32 v{32+2*j}, 16, v{120+4*i+j}\nv_and_b32 v{33+2*j}, 0xffff0000, v{120+4*i+j}")
        for j in range(4):
            if i == 0: a(f"v_pk_mul_f32 {P(40+2*j)}, {P(32+2*j)}, {P(48)} op_sel_hi:[1,0]")
            else: a(f"v_pk_fma_f32 {P(40+2*j)}, {P(32+2*j)}, {P(48+2*i)}, {P(40+2*j)} op_sel_hi:[1,0,1]")
    for mode in ('quad_perm:[2,3,0,1]', 'row_ror:4', 'row_ror:8'):
        for j in range(8): a(f"v_add_f32_dpp v{40+j}, v{40+j}, v{40+j} {mode} {DPP}")
    a(f"""v_cmp_gt_u32 vcc, 2, v5
s_and_saveexec_b64 s[38:39], vcc
ds_write_b128 v23, {Q(40)}
ds_write_b128 v23, {Q(44)} offset:16
s_mov_b64 exec, s[38:39]
KM_nog2:
s_waitcnt vmcnt(0) lgkmcnt(0)""")
    ST('a')
    bar(a, 'W', 'g1')
    a(f"""v_mov_b32 v22, {NON}
ds_read_b32 v27, v22
s_cmp_lg_u32 s22, 0
s_cbranch_scc1 KM_nog3
s_cmp_eq_u32 s49, 0
s_cbranch_scc1 KM_nog3
v_mul_u32_u24 v23, 320, v6
v_lshl_add_u32 v23, v5, 2, v23
v_add_u32 v23, {GP}, v23
ds_read_b32 v40, v23
ds_read_b32 v41, v23 offset:64
ds_read_b32 v42, v23 offset:128
ds_read_b32 v43, v23 offset:192
ds_read_b32 v44, v23 offset:256
s_sub_u32 s23, s52, 40
s_cmp_lt_u32 s23, 40
s_cselect_b32 s21, 1.0, 0
s_sub_u32 s23, s52, 160
s_cmp_lt_u32 s23, 40
s_cselect_b32 s21, 1.0, s21
s_waitcnt lgkmcnt(0)
v_add_f32 v40, v40, v41
v_add_f32 v42, v42, v43
v_add_f32 v40, v40, v44
v_add_f32 v40, v40, v42
v_mov_b32 v41, v40
v_permlane16_swap_b32 v40, v41
v_add_f32 v40, v40, v41
v_mov_b32 v41, v40
v_permlane32_swap_b32 v40, v41
v_add_f32 v40, v40, v41
v_cvt_pk_bf16_f32 v40, v40, v40
v_and_b32 v40, 0xffff0000, v40
v_add_f32 v40, s21, v40
v_cvt_pk_bf16_f32 v40, v40, v40
v_and_b32 v40, 0xffff0000, v40
v_mov_b32 v41, v27
s_mov_b64 exec, 0xffff
s_cmp_lt_u32 s52, 80
s_cbranch_scc1 KM_gran
s_lshl_b32 s23, s52, 6
v_lshlrev_b32 v23, 2, v1
buffer_store_dword v40, v23, s[12:15], s23 offen sc1
s_branch KM_pub
KM_gran:
s_lshl_b32 s23, s52, 7
s_add_u32 s23, s23, {MODG}
v_lshlrev_b32 v23, 3, v1
buffer_store_dwordx2 {P(40)}, v23, s[12:15], s23 offen sc1
KM_pub:
s_mov_b64 exec, -1
KM_nog3:""")
    M = lambda t: 120+6*t
    N = lambda x, y: 144+6*(2*x+y)
    def gen_(R, cur, step, last, t0=12):
        for hh in range(2):
            a(f"""v_cos_f32 v{t0}, v{cur}
v_sin_f32 v{t0+1}, v{cur}
v_add_f32 v{cur}, v{cur}, v{step}
v_cos_f32 v{t0+2}, v{cur}
v_sin_f32 v{t0+3}, v{cur}
v_add_f32 v{cur}, v{cur}, v{last if hh else step}
v_cvt_pk_bf16_f32 v{R+2+hh}, v{t0}, v{t0+2}
v_cvt_pk_bf16_f32 v{R+hh}, -v{t0+1}, -v{t0+3}
v_cvt_pk_bf16_f32 v{R+4+hh}, v{t0+1}, v{t0+3}""")
    a(f"""v_bfe_u32 v46, v0, 6, 2
v_lshl_add_u32 v46, v46, 4, v5
v_cvt_f32_u32 v46, v46
v_cvt_f32_u32 v47, v6
v_cvt_f32_u32 v48, v5
v_mul_f32 v47, 4.0, v47
v_mul_f32 v49, {fh(1/64)}, v46
v_mul_f32 v50, v47, v49
v_mul_f32 v51, {fh(13.0)}, v49""")
    for t in range(4): gen_(M(t), 50, 49, 51, 52)
    for x in range(2):
        a(f"v_add_f32 v49, {fh(16.0*x)}, v48\nv_mul_f32 v49, {fh(1/32)}, v49\nv_mul_f32 v50, v47, v49\nv_mul_f32 v51, {fh(13.0)}, v49")
        for y in range(2): gen_(N(x, y), 50, 49, 51, 52)
    a(f"""s_lshl_b32 s23, s3, 11
s_lshl_b32 s21, s20, 8
s_add_u32 s23, s23, s21
s_add_u32 s23, s23, {XF}""")
    ST('a')
    bar(a, 'W', 'g2')
    ST('a')
    for j in range(5): a(f"ds_read_b64 {P(40+2*j)}, v7 offset:{2560+512*j}\nds_read_b64 {P(50+2*j)}, v7 offset:{512*j}")
    for j in range(5): a(f"v_pk_mul_f32 {P(28+2*j)}, {P(60+2*j)}, {P(70)} op_sel_hi:[1,0]")
    a("s_waitcnt lgkmcnt(0)")
    for j in range(5): a(f"v_pk_fma_f32 {P(28+2*j)}, {P(28+2*j)}, {P(40+2*j)}, {P(50+2*j)}")
    h = {(3*j) % 5: 28+2*j for j in range(5)}
    t1,t2,t3,t4 = 40,42,44,46; z0,p1,q1,p2,q2 = 48,50,52,54,56
    a(f"""v_pk_add_f32 {P(t1)}, {P(h[1])}, {P(h[4])}
v_pk_add_f32 {P(t2)}, {P(h[2])}, {P(h[3])}
v_pk_add_f32 {P(t3)}, {P(h[1])}, {P(h[4])} neg_lo:[0,1] neg_hi:[0,1]
v_pk_add_f32 {P(t4)}, {P(h[2])}, {P(h[3])} neg_lo:[0,1] neg_hi:[0,1]
v_pk_add_f32 {P(z0)}, {P(h[0])}, {P(t1)}
v_pk_fma_f32 {P(p1)}, s[30:31], {P(t1)}, {P(h[0])}
v_pk_fma_f32 {P(p2)}, s[32:33], {P(t1)}, {P(h[0])}
v_pk_mul_f32 {P(q1)}, s[34:35], {P(t3)}
v_pk_mul_f32 {P(q2)}, s[36:37], {P(t3)}
v_pk_add_f32 {P(z0)}, {P(z0)}, {P(t2)}
v_pk_fma_f32 {P(p1)}, s[32:33], {P(t2)}, {P(p1)}
v_pk_fma_f32 {P(p2)}, s[30:31], {P(t2)}, {P(p2)}
v_pk_fma_f32 {P(q1)}, s[36:37], {P(t4)}, {P(q1)}
v_pk_fma_f32 {P(q2)}, s[34:35], {P(t4)}, {P(q2)} neg_lo:[0,1,0] neg_hi:[0,1,0]
v_cvt_pk_bf16_f32 v22, v{z0}, v{z0+1}
ds_write_b32 v14, v22 offset:8192""")
    for k, (p, q) in enumerate(((p1, q1), (p2, q2))):
        c, s = 88+4*k, 90+4*k; r, im = 28+4*k, 30+4*k
        a(f"""v_pk_mul_f32 {P(r)}, {P(p)}, {P(c)}
v_pk_mul_f32 {P(im)}, {P(p)}, {P(s)}
v_pk_fma_f32 {P(r)}, {P(q)}, {P(s)}, {P(r)}
v_pk_fma_f32 {P(im)}, {P(q)}, {P(c)}, {P(im)} neg_lo:[1,0,0] neg_hi:[1,0,0]
v_cvt_pk_bf16_f32 v{23+2*k}, v{r}, v{r+1}
v_cvt_pk_bf16_f32 v{24+2*k}, v{im}, v{im+1}
ds_write_b32 v{14+k}, v{23+2*k}
ds_write_b32 v{14+k}, v{24+2*k} offset:4096""")
    a("s_waitcnt vmcnt(0) lgkmcnt(0)")
    bar(a, 'W', 'k1a')
    for T in range(3):
        for t in range(4): a(f"ds_read_b128 {Q(28+16*T+4*t)}, v{16+t} offset:{4096*T}")
    n = 12
    for T in range(3):
        for t in range(4):
            n -= 1
            a(f"s_waitcnt lgkmcnt({n})")
            a(f"v_mfma_f32_16x16x32_bf16 {Q(76+4*T)}, {Q(28+16*T+4*t)}, {Q(96+4*t)}, {'0' if t == 0 else Q(76+4*T)}")
    a(f"""v_and_b32 v22, 0x80008000, v9
v_and_b32 v23, v9, v12
v_bfi_b32 v24, v9, v22, v12
v_pk_mul_f32 {P(28)}, {P(76)}, {P(10)} op_sel_hi:[1,0]
v_pk_mul_f32 {P(30)}, {P(78)}, {P(10)} op_sel_hi:[1,0]
v_pk_mul_f32 {P(32)}, {P(80)}, {P(10)} op_sel_hi:[1,0]
v_pk_mul_f32 {P(34)}, {P(82)}, {P(10)} op_sel_hi:[1,0]""")
    for i in range(4):
        a(f"v_add_f32_dpp v{76+i}, v{32+i}, v{76+i} row_ror:8 {DPP}")
        a(f"v_subrev_f32_dpp v{80+i}, v{28+i}, v{80+i} row_ror:8 {DPP}")
    a(f"""v_cvt_pk_bf16_f32 v36, v76, v77
v_cvt_pk_bf16_f32 v37, v78, v79
v_cvt_pk_bf16_f32 v38, v80, v81
v_cvt_pk_bf16_f32 v39, v82, v83
v_cvt_pk_bf16_f32 v44, v84, v85
v_cvt_pk_bf16_f32 v45, v86, v87
v_xor_b32 v36, v36, v23
v_xor_b32 v37, v37, v23
v_xor_b32 v38, v38, v24
v_xor_b32 v39, v39, v24
v_xor_b32 v44, v44, v22
v_xor_b32 v45, v45, v22
v_cndmask_b32 v40, v36, v38, s[42:43]
v_cndmask_b32 v41, v37, v39, s[42:43]
v_cndmask_b32 v42, v38, v36, s[42:43]
v_cndmask_b32 v43, v39, v37, s[42:43]
buffer_store_dwordx4 {Q(40)}, v11, s[12:15], s23 offen sc1
v_mov_b32_dpp v46, v44 row_ror:8 {DPP}
v_mov_b32_dpp v47, v45 row_ror:8 {DPP}
s_mov_b32 exec_lo, 0x00ff00ff
s_mov_b32 exec_hi, 0
buffer_store_dwordx4 {Q(44)}, v13, s[12:15], s23 offen sc1
s_mov_b64 exec, -1""")
    ST('a')
    a(f"""s_lshr_b32 s26, s22, 2
s_and_b32 s27, s22, 3
""")
    task_ids(a, 26)
    a(f"""s_cmp_gt_u32 s28, 320
s_cbranch_scc1 KM_k2skip
s_cmp_eq_u32 s28, 320
s_cselect_b32 s41, {32*65536}, s41
s_lshr_b32 s21, s28, 5
s_lshl_b32 s21, s21, 3
s_and_b32 s23, s28, 7
s_add_u32 s21, s21, s23
s_sub_u32 s23, 128, s21
s_cmp_eq_u32 s21, 0
s_cselect_b32 s23, 64, s23
s_bitcmp1_b32 s28, 3
s_cselect_b32 s21, s23, s21
s_mul_i32 s21, s21, 5
s_bfe_u32 s23, s28, 0x10004
s_lshl_b32 s23, s23, 7
s_add_u32 s21, s21, s23
s_add_u32 s21, s21, 128
s_sub_u32 s23, s21, 640
s_min_u32 s21, s21, s23
s_sub_u32 s23, 640, s21
s_min_u32 s21, s21, s23
s_sub_u32 s23, s28, 256
s_mul_i32 s23, s23, 5
s_cmp_ge_u32 s28, 256
s_cselect_b32 s40, s23, s21
v_and_b32 v1, 15, v0
v_bfe_u32 v2, v0, 4, 2
v_bfe_u32 v3, v0, 6, 2
v_and_b32 v9, 63, v0
v_lshl_add_u32 v4, v3, 2, v2
v_xor_b32 v10, v4, v1
v_lshl_add_u32 v4, v4, 4, v10
v_lshlrev_b32 v4, 7, v4
v_lshrrev_b32 v5, 1, v1
v_and_b32 v6, 1, v1
v_lshl_add_u32 v5, v6, 3, v5
v_lshl_add_u32 v5, v2, 4, v5
v_lshlrev_b32 v5, 4, v5
v_lshl_add_u32 v5, v3, 11, v5
s_add_u32 s21, s41, {XF}
s_add_u32 s23, s21, 32768
s_lshl_b32 s29, s28, 13
s_lshl_b32 s48, s26, 14
s_add_u32 s48, s48, {K2B}
v_lshl_add_u32 v6, v3, 4, v1
v_cvt_f32_u32 v6, v6
v_cvt_f32_u32 v7, v2
v_cvt_f32_u32 v8, v1
v_mul_f32 v7, 4.0, v7
""")
    a(f"v_mul_f32 v16, {fh(-1/2048)}, v6\nv_mul_f32 v10, v7, v16\nv_mul_f32 v11, {fh(13.0)}, v16")
    for k in range(8):
        a(f"v_cos_f32 v{56+k}, v10\nv_sin_f32 v{64+k}, v10")
        if k < 7: a(f"v_add_f32 v10, v10, v{11 if k == 3 else 16}")
    if 'gx1' in OPT:
        for l in (f"buffer_load_dwordx4 {Q(24)}, v4, s[12:15], s21 offen sc1", f"buffer_load_dwordx4 {Q(28)}, v4, s[12:15], s23 offen sc1"): a(l)
    a(f"""s_lshl_b32 s24, s27, 4
v_cvt_f32_u32 v12, s24
v_add_f32 v12, v12, v7
s_mov_b32 s38, {fh(2.0/(2048*640))}
s_cmp_eq_u32 s28, 256
s_cselect_b32 s38, {fh(1.0/(2048*640))}, s38
s_cmp_eq_u32 s28, 320
s_cselect_b32 s38, {fh(1.0/(2048*640))}, s38
s_mov_b32 s39, s38""")
    for nt in range(2):
        a(f"v_add_f32 v16, {fh(16.0*nt)}, v8\nv_mul_f32 v16, {fh(1/2048)}, v16\nv_mul_f32 v10, v12, v16")
        for i in range(4):
            k = 4*nt+i
            a(f"v_cos_f32 v{72+k}, v10\nv_sin_f32 v{80+k}, v10")
            if i < 3: a("v_add_f32 v10, v10, v16")
    for k in range(8): a(f"v_pk_mul_f32 {P(72+2*k)}, s[38:39], {P(72+2*k)}")
    a(f"""v_xor_b32 v10, v2, v1
v_lshlrev_b32 v10, 4, v10
v_lshl_add_u32 v10, v1, 8, v10
v_add_u32 v10, s48, v10
v_xor_b32 v11, 64, v10
v_xor_b32 v12, 128, v10
v_xor_b32 v13, 192, v10
v_lshlrev_b32 v7, 4, v9
v_add_u32 v7, s48, v7
s_lshl_b32 s24, s27, 10
v_add_u32 v6, s24, v7
v_lshlrev_b32 v8, 4, v9
v_lshl_add_u32 v8, v3, 11, v8
s_add_u32 s24, s24, s48
s_lshl_b32 s25, s40, 13
s_add_u32 s25, s25, {WP}
s_mov_b32 m0, s24""")
    ST('b')
    gather2(a, 'KM_gx', f"buffer_load_dwordx4 {Q(24)}, v4, s[12:15], s21 offen sc1", f"buffer_load_dwordx4 {Q(28)}, v4, s[12:15], s23 offen sc1", 24, 28, 32, pre=('gx1' in OPT))
    a(f"""ds_write_b128 v6, {Q(24)}
ds_write_b128 v6, {Q(28)} offset:4096
s_add_u32 s21, s29, {YF}
s_add_u32 s23, s21, 1024
s_waitcnt lgkmcnt(0)""")
    bar(a, 'W', 'k2a')
    ST('b')
    a(f"""buffer_load_dwordx4 v[48:51], v5, s[12:15], s25 offen sc1
buffer_load_dwordx4 v[52:55], v5, s[12:15], s25 offen offset:1024 sc1""")
    D = lambda mt, t: 16+16*mt+4*t
    for t in range(4):
        for mt in range(2): a(f"ds_read_b128 {Q(D(mt,t))}, v{10+t} offset:{4096*mt}")
    def mf(d, A, B, first): a(f"v_mfma_f32_16x16x32_bf16 {Q(d)}, {Q(A)}, {Q(B)}, {'0' if first else Q(d)}")
    a("s_and_b32 s24, s28, 0xffffffbf\ns_cmp_lg_u32 s24, 256\ns_cbranch_scc1 KM_k2gen\ns_waitcnt lgkmcnt(0)\ns_cmp_eq_u32 s28, 256\ns_cbranch_scc1 KM_k2z")
    for f in range(8): a(f"v_mov_b32 v{16+4*f}, v{18+4*f}\nv_mov_b32 v{17+4*f}, v{19+4*f}")
    a("KM_k2z:")
    for f in range(8): a(f"v_mov_b32 v{18+4*f}, 0\nv_mov_b32 v{19+4*f}, 0")
    a("s_nop 1\nKM_k2gen:")
    for t in range(4):
        a(f"s_waitcnt lgkmcnt({6-2*t})")
        for mt in range(2):
            mf(88+8*mt, D(mt,t), M(t)+2, t == 0)
            mf(92+8*mt, D(mt,t), M(t), t == 0)
    def tw_pack(tr, ti, B, swap):
        for blk in range(2):
            for hh in range(2):
                r = 88+8*blk+2*hh; i = r+4; c = tr+4*blk+2*hh; s = ti+4*blk+2*hh; t = 104+4*blk+2*hh
                a(f"""v_pk_mul_f32 {P(t)}, {P(i)}, {P(s)}
v_pk_mul_f32 {P(i)}, {P(i)}, {P(c)}
v_pk_fma_f32 {P(i)}, {P(r)}, {P(s)}, {P(i)}
v_pk_fma_f32 {P(r)}, {P(r)}, {P(c)}, {P(t)} neg_lo:[0,0,1] neg_hi:[0,0,1]""")
        for blk in range(2):
            for hh in range(2):
                r = 88+8*blk+2*hh
                a(f"v_cvt_pk_bf16_f32 v{B+4*blk+hh+(2 if swap else 0)}, v{r}, v{r+1}")
                a(f"v_cvt_pk_bf16_f32 v{B+4*blk+hh+(0 if swap else 2)}, v{r+4}, v{r+5}")
    tw_pack(56, 64, 16, False)
    for y in range(2):
        for x in range(2):
            mf(88+8*x, N(x,y)+2, 16+4*y, y == 0)
            mf(92+8*x, N(x,y), 16+4*y, y == 0)
    a("s_waitcnt vmcnt(0)")
    for k in range(8): a(f"v_lshlrev_b32 v{32+k}, 16, v{48+k}\nv_and_b32 v{40+k}, 0xffff0000, v{48+k}")
    tw_pack(32, 40, 24, True)
    for y in range(2):
        for x in range(2):
            mf(88+8*x, 24+4*y, N(x,y), y == 0)
            mf(92+8*x, 24+4*y, N(x,y)+2, y == 0)
    tw_pack(72, 80, 16, True)
    a(f"ds_write_b128 v6, {Q(16)} offset:8192\nds_write_b128 v6, {Q(20)} offset:12288\ns_waitcnt lgkmcnt(0)")
    bar(a, 'W', 'k2b')
    for t in range(4):
        for nt in range(2): a(f"ds_read_b128 {Q(D(nt,t))}, v7 offset:{8192+4096*nt+1024*t}")
    for t in range(4):
        a(f"s_waitcnt lgkmcnt({6-2*t})")
        for nt in range(2):
            mf(88+8*nt, M(t), D(nt,t), t == 0)
            mf(92+8*nt, M(t)+2, D(nt,t), t == 0)
    for nt in range(2):
        o = 48+4*nt; s = 88+8*nt
        for k in range(4): a(f"v_cvt_pk_bf16_f32 v{o+k}, v{s+2*k}, v{s+2*k+1}")
        a(f"buffer_store_dwordx4 {Q(o)}, v8, s[12:15], s{21+2*nt} offen sc1")
    ST('b')
    a("s_branch KM_k2done\nKM_k2skip:\ns_barrier\ns_barrier\nKM_k2done:")
    a(f"""v_and_b32 v1, 63, v0
v_and_b32 v3, 31, v0
v_lshlrev_b32 v2, 3, v3
v_bfe_u32 v4, v0, 5, 1
v_lshl_add_u32 v2, v4, 8, v2
v_lshlrev_b32 v3, 2, v3
v_lshl_add_u32 v3, v4, 1, v3
v_and_b32 v5, 15, v0
v_bfe_u32 v6, v0, 4, 2""")
    col_slots(a, 22, 5, 6, 8, 22)
    addr_yf(a)
    a(f"""
s_and_b32 s23, s3, 15
s_lshl_b32 s23, s23, 4
s_lshr_b32 s21, s3, 4
s_lshl_b32 s21, s21, 10
s_add_u32 s23, s23, s21
s_lshr_b32 s21, s20, 1
s_lshl_b32 s21, s21, 11
s_add_u32 s23, s23, s21
s_and_b32 s21, s20, 1
s_lshl_b32 s21, s21, 9
s_add_u32 s23, s23, s21
s_add_u32 s23, s23, {YF}
s_lshl_b32 s21, s20, 3
s_add_u32 s21, s21, s22
s_lshl_b32 s24, s3, 6
s_add_u32 s24, s24, s21
s_mul_i32 s24, s24, 1280
""")
    w5_consts(a, 88, 22, 1.0)
    a(f"""
s_lshl_b32 s27, s22, 4
v_add_u32 v22, s27, v5
v_cvt_f32_u32 v22, v22
v_mul_f32 v22, {fh(1/128)}, v22
v_and_b32 v23, 1, v6
v_cvt_f32_u32 v23, v23
v_mul_f32 v23, 4.0, v23
v_lshrrev_b32 v24, 1, v6
v_cvt_f32_u32 v24, v24
v_mul_f32 v24, {fh(0.25)}, v24
v_fma_f32 v23, v23, v22, v24
v_mul_f32 v24, {fh(5.0)}, v22
v_mul_f32 v27, {fh(64.0)}, v22
v_cmp_eq_u32 vcc, 2, v6
v_cndmask_b32 v27, v23, v27, vcc
""")
    for t in range(4):
        for jj in range(4):
            a(f"""v_cos_f32 v25, v{27 if (t, jj) == (0, 0) else 23}
v_add_f32 v23, v23, v22
v_cos_f32 v26, v23
v_add_f32 v23, v23, v{24 if jj & 1 else 22}
v_cvt_pk_bf16_f32 v{96+4*t+jj}, v25, v26""")
    a(f"""
v_lshlrev_b32 v14, 5, v5
v_lshl_add_u32 v14, v6, 3, v14
s_lshl_b32 s27, s22, 9
s_add_u32 s27, s27, {TB}
v_add_u32 v14, s27, v14
v_and_b32 v15, 4096, v9
v_add_u32 v15, v15, v14
v_xor_b32 v112, 4096, v15
v_lshlrev_b32 v113, 3, v1
v_add_u32 v113, {TB}, v113
v_and_b32 v22, 7, v5
v_mul_u32_u24 v22, {ZR}, v22
v_lshl_add_u32 v22, v6, 4, v22
s_lshl_b32 s27, s22, 6
s_add_u32 s27, s27, {ZB}
v_add_u32 v17, s27, v22
v_lshrrev_b32 v22, 3, v5
v_mul_u32_u24 v22, {2*ZC}, v22
v_add_u32 v16, v17, v22
v_lshlrev_b32 v4, 2, v3
s_mul_i32 s27, s22, {ZR}
s_add_u32 s27, s27, {ZB}
v_add_u32 v7, s27, v4
v_add_u32 v4, {PB}, v4
v_and_b32 v22, 0x80000000, v9
v_xor_b32 v22, v22, v10
v_and_b32 v23, 0x80008000, v9
v_xor_b32 v24, v23, v12
""")
    for j in range(5):
        a(f"ds_read_b64 {P(120+2*j)}, v4 offset:{512*j}\nds_read_b64 {P(140+2*j)}, v4 offset:{5120+512*j}\nds_read_b64 {P(130+2*j)}, v4 offset:{2560+512*j}")
    a("s_waitcnt lgkmcnt(0)")
    ST('c')
    gather2(a, 'KM_gy', f"buffer_load_dwordx4 {Q(28)}, v11, s[12:15], s23 offen sc1", f"buffer_load_dwordx4 {Q(32)}, v13, s[12:15], s23 offen sc1", 28, 32, 36)
    ST('c')
    a(f"""v_cndmask_b32 v32, v32, v34, s[42:43]
v_cndmask_b32 v33, v33, v35, s[42:43]
v_xor_b32 v26, v30, v24
v_xor_b32 v27, v31, v24
v_xor_b32 v30, v30, v12
v_xor_b32 v31, v31, v12
ds_write_b64 v14, {P(32)} offset:8192""")
    for hh in range(2):
        a(f"""v_lshlrev_b32 v{36+2*hh}, 16, v{28+hh}
v_and_b32 v{37+2*hh}, 0xffff0000, v{28+hh}
v_lshlrev_b32 v{40+2*hh}, 16, v{30+hh}
v_and_b32 v{41+2*hh}, 0xffff0000, v{30+hh}
v_lshlrev_b32 v{44+2*hh}, 16, v{28+hh}
v_and_b32 v{45+2*hh}, 0xffff0000, v{28+hh}
v_lshlrev_b32 v{48+2*hh}, 16, v{26+hh}
v_and_b32 v{49+2*hh}, 0xffff0000, v{26+hh}""")
    for i in range(4):
        a(f"v_fmac_f32_dpp v{44+i}, v{36+i}, v22 row_ror:8 {DPP}")
        a(f"v_fmac_f32_dpp v{48+i}, v{40+i}, v10 row_ror:8 {DPP}")
    a(f"""v_cvt_pk_bf16_f32 v52, v44, v45
v_cvt_pk_bf16_f32 v53, v46, v47
v_cvt_pk_bf16_f32 v54, v48, v49
v_cvt_pk_bf16_f32 v55, v50, v51
ds_write_b64 v15, {P(52)}
ds_write_b64 v112, {P(54)}
s_waitcnt lgkmcnt(0)""")
    bar(a, 'W', 'b1')
    for T in range(3):
        for t in range(4):
            for x in range(2): a(f"ds_read_b64_tr_b16 {P(28+16*T+4*t+2*x)}, v113 offset:{4096*T+1024*t+512*x}")
            if T == 1 and t == 3:
                a("s_waitcnt lgkmcnt(8)")
                for tt in range(4): a(f"v_mfma_f32_16x16x32_bf16 {Q(76)}, {Q(96+4*tt)}, {Q(28+4*tt)}, {'0' if tt == 0 else Q(76)}")
    for T in (1, 2):
        a(f"s_waitcnt lgkmcnt({8 if T == 1 else 0})")
        for t in range(4): a(f"v_mfma_f32_16x16x32_bf16 {Q(76+4*T)}, {Q(96+4*t)}, {Q(28+16*T+4*t)}, {'0' if t == 0 else Q(76+4*T)}")
    a(f"ds_write_b128 v16, {Q(76)} offset:{ZC}")
    for j in range(5): a(f"v_lshlrev_b32 v{28+2*j}, 16, v{XR+j}\nv_and_b32 v{29+2*j}, 0xffff0000, v{XR+j}")
    a(f"""ds_write_b128 v16, {Q(80)} offset:{2*ZC}
ds_write_b128 v17, {Q(84)}
s_waitcnt lgkmcnt(0)""")
    bar(a, 'W', 'b2')
    for c in range(5): a(f"ds_read_b64 {P(40+2*c)}, v7 offset:{ZC*c}")
    a("s_waitcnt lgkmcnt(0)")
    bar(a, 'W', 'b3')
    for k in range(2):
        r, im = 42+4*k, 44+4*k; c, s = 88+4*k, 90+4*k; R, I = 50+4*k, 52+4*k
        a(f"""v_pk_mul_f32 {P(R)}, {P(r)}, {P(c)}
v_pk_mul_f32 {P(I)}, {P(r)}, {P(s)}
v_pk_fma_f32 {P(R)}, {P(im)}, {P(s)}, {P(R)} neg_lo:[1,0,0] neg_hi:[1,0,0]
v_pk_fma_f32 {P(I)}, {P(im)}, {P(c)}, {P(I)}""")
    z0,z1r,z1i,z2r,z2i = 40,50,52,54,56
    A,B,Cc,Dd,E = 58,60,62,64,66
    sl = {(3*j) % 5: j for j in range(5)}
    X = lambda d2: P(28+2*sl[d2]); G = lambda d2: P(120+2*sl[d2])
    a(f"""v_pk_add_f32 {P(E)}, {P(z0)}, {P(z1r)}
v_pk_fma_f32 {P(A)}, s[30:31], {P(z1r)}, {P(z0)}
v_pk_fma_f32 {P(B)}, s[32:33], {P(z1r)}, {P(z0)}
v_pk_mul_f32 {P(Cc)}, s[34:35], {P(z1i)}
v_pk_mul_f32 {P(Dd)}, s[36:37], {P(z1i)}
v_pk_add_f32 {P(E)}, {P(E)}, {P(z2r)}
v_pk_fma_f32 {P(A)}, s[32:33], {P(z2r)}, {P(A)}
v_pk_fma_f32 {P(B)}, s[30:31], {P(z2r)}, {P(B)}
v_pk_fma_f32 {P(Cc)}, s[36:37], {P(z2i)}, {P(Cc)}
v_pk_fma_f32 {P(Dd)}, s[34:35], {P(z2i)}, {P(Dd)} neg_lo:[0,1,0] neg_hi:[0,1,0]
v_pk_fma_f32 {X(0)}, {G(0)}, {P(E)}, {X(0)}
v_pk_add_f32 {P(68)}, {P(A)}, {P(Cc)} neg_lo:[0,1] neg_hi:[0,1]
v_pk_add_f32 {P(70)}, {P(A)}, {P(Cc)}
v_pk_add_f32 {P(72)}, {P(B)}, {P(Dd)} neg_lo:[0,1] neg_hi:[0,1]
v_pk_add_f32 {P(74)}, {P(B)}, {P(Dd)}
v_pk_fma_f32 {X(1)}, {G(1)}, {P(68)}, {X(1)}
v_pk_fma_f32 {X(4)}, {G(4)}, {P(70)}, {X(4)}
v_pk_fma_f32 {X(2)}, {G(2)}, {P(72)}, {X(2)}
v_pk_fma_f32 {X(3)}, {G(3)}, {P(74)}, {X(3)}
s_add_u32 s25, s24, {X1}
s_add_u32 s26, s24, {H2F}""")
    for j in range(5): a(f"v_cvt_pk_bf16_f32 v{16+j}, v{28+2*j}, v{29+2*j}")
    a(f"""v_permlane32_swap_b32 v16, v17
v_permlane32_swap_b32 v18, v19
buffer_store_dwordx2 {P(16)}, v2, s[12:15], s25 offen sc1
buffer_store_dwordx2 {P(18)}, v2, s[12:15], s25 offen offset:512 sc1""")
    ln_rows(a, 28, 22)
    a(f"v_bfe_u32 v24, v0, 5, 1\nv_mul_u32_u24 v24, {H2F - X1 - 256}, v24\nv_add_u32 v24, v24, v2")
    for j in range(5): a(f"v_pk_mul_f32 {P(140+2*j)}, {P(140+2*j)}, {P(22)} op_sel_hi:[1,0]")
    for j in range(5): a(f"v_pk_fma_f32 {P(28+2*j)}, {P(28+2*j)}, {P(140+2*j)}, {P(130+2*j)}")
    for j in range(4): a(f"v_cvt_pk_bf16_f32 v{40+j}, v{28+2*j}, v{29+2*j}")
    a(f"""v_cvt_pk_bf16_f32 v21, v36, v37
v_permlane32_swap_b32 v40, v41
v_permlane32_swap_b32 v42, v43
v_permlane32_swap_b32 v20, v21
buffer_store_dwordx2 {P(40)}, v2, s[12:15], s26 offen sc1
buffer_store_dwordx2 {P(42)}, v2, s[12:15], s26 offen offset:512 sc1
buffer_store_dwordx2 {P(20)}, v24, s[12:15], s25 offen offset:1024 sc1""")
    ST('c')
    a(f"""v_mov_b32 v2, v1
s_lshr_b32 s26, s22, 2
s_and_b32 s27, s22, 3
v_lshrrev_b32 v3, 4, v2
v_bfe_u32 v4, v2, 2, 2
v_lshl_add_u32 v4, v3, 3, v4
v_mul_u32_u24 v4, 192, v4
v_and_b32 v5, 3, v2
v_lshl_add_u32 v4, v5, 3, v4
v_and_b32 v5, 1, v3
v_lshlrev_b32 v5, 5, v5
s_mul_i32 s28, s26, 96
v_add_u32 v4, s28, v4
s_cmp_eq_u32 s26, 0
s_cselect_b32 s29, 1, -1
v_mul_lo_u32 v5, v5, s29
v_add_u32 v6, v4, v5
v_sub_u32 v7, v4, v5
v_add_u32 v8, {4*WS_}, v6
v_add_u32 v9, {4*WS_}, v7
v_and_b32 v10, 15, v2
v_lshrrev_b32 v11, 1, v10
v_xor_b32 v11, v11, v3
v_lshlrev_b32 v11, 4, v11
v_lshl_add_u32 v11, v10, 7, v11
s_lshl_b32 s28, s27, 12
s_add_u32 s28, s28, {HB}
v_add_u32 v11, s28, v11
v_xor_b32 v12, 64, v11
s_load_dwordx2 s[60:61], s[0:1], 72
s_waitcnt vmcnt(0)""")
    ST('c')
    bar(a, 'W', 'd1')
    ACC = lambda mat, i, nt: 16 + 4*(6*nt + 3*mat + i)
    FA = lambda buf, mat, i: 64 + 32*buf + 4*(3*mat+i)
    FB = lambda buf, nt: 88 + 32*buf + 4*nt
    def reads(s):
        L = []; sl = s % 8
        for nt in range(2): L.append(f"ds_read_b128 {Q(FB(s & 1, nt))}, v{11 + (s & 1)} offset:{((s//2) % 4)*HS + 2048*nt}")
        for mat in range(2):
            for i in range(3):
                for x in range(2):
                    L.append(f"ds_read_b64_tr_b16 {P(FA(s & 1, mat, i) + 2*x)}, v{6 + (i & 1) + 2*(sl//4)} offset:{(sl % 4)*WS_ + mat*6144 + 4*x*192 + 32*i}")
        return L
    bar(a, 'W', 'B0')
    ST('d')
    for l in reads(0): a(l)
    for s in range(NST):
        a("s_waitcnt lgkmcnt(0)")
        if s & 1: bar(a, 'W', f'B{(s+1)//2}')
        R = reads(s+1) if s+1 < NST else []
        k = 0
        for mat in range(2):
            for i in range(3):
                for nt in range(2):
                    c = ACC(mat, i, nt)
                    a(f"v_mfma_f32_16x16x32_bf16 {Q(c)}, {Q(FA(s & 1, mat, i))}, {Q(FB(s & 1, nt))}, {'0' if s == 0 else Q(c)}")
                    for l in R[2*k:2*k+2]: a(l)
                    k += 1
    ST('d')
    kk = 2*0.7978845608028654*math.log2(math.e)
    a(f"""s_mov_b32 s30, {fh(-kk*0.044715)}
s_mov_b32 s31, {fh(-kk*0.044715)}
v_mov_b32 v10, {fh(-kk)}
v_mov_b32 v11, {fh(-kk)}
s_lshl_b32 s29, s50, 3
s_lshl_b32 s28, s27, 1
s_add_u32 s29, s29, s28
s_mul_i32 s29, s29, 49152
s_mul_i32 s28, s51, 3072
s_add_u32 s29, s29, s28
s_mul_i32 s28, s26, 1536
s_add_u32 s29, s29, s28
s_add_u32 s29, s29, {HIDF}
v_bfe_u32 v7, v2, 4, 1
v_mul_u32_u24 v7, 49152, v7
v_lshrrev_b32 v8, 5, v2
v_lshl_add_u32 v7, v8, 8, v7
v_and_b32 v8, 15, v2
v_lshl_add_u32 v7, v8, 4, v7""")
    for nt in range(2):
        Gt = ACC(0, 0, nt); U = ACC(1, 0, nt); T = 64 + 16*nt
        for i in range(0, 12, 2): a(f"v_pk_mul_f32 {P(T+i)}, {P(Gt+i)}, {P(Gt+i)}")
        for i in range(0, 12, 2): a(f"v_pk_fma_f32 {P(T+i)}, {P(T+i)}, s[30:31], {P(10)}")
        for i in range(0, 12, 2): a(f"v_pk_mul_f32 {P(T+i)}, {P(T+i)}, {P(Gt+i)}")
        for i in range(0, 12, 2): a(f"v_exp_f32 v{T+i}, v{T+i}\nv_exp_f32 v{T+i+1}, v{T+i+1}\nv_pk_mul_f32 {P(Gt+i)}, {P(Gt+i)}, {P(U+i)}")
        for i in range(0, 12, 2): a(f"v_pk_add_f32 {P(T+i)}, {P(T+i)}, 1.0 op_sel_hi:[1,0]")
        for i in range(12): a(f"v_rcp_f32 v{T+i}, v{T+i}")
        for i in range(0, 12, 2): a(f"v_pk_mul_f32 {P(Gt+i)}, {P(Gt+i)}, {P(T+i)}")
        for i in range(3):
            O = 96 + 4*i + 2*nt
            a(f"v_cvt_pk_bf16_f32 v{O}, v{Gt+4*i}, v{Gt+4*i+1}\nv_cvt_pk_bf16_f32 v{O+1}, v{Gt+4*i+2}, v{Gt+4*i+3}")
    for i in range(3):
        O = 96 + 4*i
        a(f"""v_permlane16_swap_b32 v{O}, v{O+2}
v_permlane16_swap_b32 v{O+1}, v{O+3}
buffer_store_dwordx4 {Q(O)}, v7, s[12:15], s29 offen offset:{512*i} sc1""")
    ST('d')
    a(f"""s_lshl_b32 s30, s50, 3
s_lshr_b32 s28, s51, 3
s_lshl_b32 s28, s28, 2
s_add_u32 s30, s30, s28
s_add_u32 s30, s30, s27
s_mul_i32 s29, s30, 49152
s_lshl_b32 s28, s26, 10
s_add_u32 s29, s29, s28
s_add_u32 s29, s29, {HIDF}
s_lshl_b32 s30, s30, 4
s_and_b32 s24, s51, 7
v_lshrrev_b32 v3, 2, v2
v_mul_u32_u24 v3, 160, v3
v_and_b32 v4, 3, v2
v_lshl_add_u32 v3, v4, 3, v3
s_mul_i32 s28, s26, 5120
v_add_u32 v3, s28, v3
v_add_u32 v4, {6*DW}, v3
v_add_u32 v5, {12*DW}, v3
v_lshlrev_b32 v6, 4, v2
v_and_b32 v12, 15, v2
v_lshrrev_b32 v13, 4, v2
v_mul_u32_u24 v8, 1280, v12
v_lshl_add_u32 v8, v13, 3, v8
s_mul_i32 s23, s30, 1280
s_mul_i32 s25, s24, 160
s_add_u32 s23, s23, s25
s_add_u32 s23, s23, {X1}
v_lshlrev_b32 v15, 4, v13
s_lshl_b32 s28, s25, 1
s_add_u32 s28, s28, 12800
s_lshl_b32 s21, s26, 6
s_add_u32 s23, s23, s21
s_lshl_b32 s21, s26, 7
s_add_u32 s28, s28, s21
s_waitcnt vmcnt(0)""")
    ST('d')
    a("s_mov_b32 s41, s29")
    srd(a, 16, 60, 2048*1280)
    AC2 = lambda mt: 16 + 4*mt
    FA2 = lambda buf, mt: 36 + 20*buf + 4*mt
    NB = 10
    FB2 = lambda s: 76 + 4*(s % NB)
    def reads2(s):
        p = WPOS(s)
        return [f"ds_read_b64_tr_b16 {P(FA2(s & 1, mt) + 2*x)}, v{3+p//6} offset:{(p % 6)*DW + x*2560 + 32*mt}" for mt in range(5) for x in range(2)]
    def ldb(s):
        a(f"buffer_load_dwordx4 {Q(FB2(s))}, v6, s[12:15], s29 offen offset:{2048*(s & 1)} sc1")
        if s & 1: a("s_add_u32 s29, s29, 4096")
    bar(a, 'W', 'C0')
    ST('d')
    nb = 0; nx = 0
    for s in range(NB-1): ldb(s); nb += 1
    for l in reads2(0): a(l)
    for s in range(NS2):
        f = FB2(s)
        a(f"""s_waitcnt vmcnt({nb-s-1+nx})
v_max3_u32 v9, v{f}, v{f+1}, v{f+2}
v_max_u32 v9, v9, v{f+3}
v_cmp_eq_u32 vcc, -1, v9
s_waitcnt lgkmcnt(0)
s_cmp_lg_u64 vcc, 0
s_cbranch_scc1 KM_hs{s}
KM_hr{s}:""")
        if s in CB: bar(a, 'W', f'C{s}')
        if nb < NS2: ldb(nb); nb += 1
        elif nx < 6:
            k = nx // 2
            a(f"buffer_load_dwordx2 {P(116+2*k)}, v8, s[12:15], s23 offen offset:{32*k} sc1")
            a(f"buffer_load_dwordx4 {Q(128+4*k)}, v15, s[12:15], s28 offen offset:{64*k} sc1")
            nx += 2
        R = reads2(s+1) if s+1 < NS2 else []
        for mt in range(5):
            c = AC2(mt)
            a(f"v_mfma_f32_16x16x32_bf16 {Q(c)}, {Q(FA2(s & 1, mt))}, {Q(FB2(s))}, {'0' if s == 0 else Q(c)}")
            for l in R[2*mt:2*mt+2]: a(l)
    RB = WPOS(10)*DW
    ST('d')
    a(f"""s_mul_i32 s28, s27, 5120
s_add_u32 s28, s28, {RB}
v_add_u32 v6, s28, v6
s_and_b32 s23, s30, 63
s_lshl_b32 s23, s23, 5
s_lshr_b32 s29, s30, 6
s_add_u32 s23, s23, s29
s_mul_i32 s23, s23, 1280
s_add_u32 s23, s23, s25
v_mul_u32_u24 v8, 40960, v12
v_lshl_add_u32 v8, v13, 3, v8
s_cmp_eq_u32 s26, 0
s_cbranch_scc1 KM_lo""")
    def fin(give, keep, base):
        for mt in give: a(f"ds_write_b128 v6, {Q(AC2(mt))} offset:{1024*mt}")
        a("s_waitcnt vmcnt(0)")
        for mt in keep:
            x = 116+2*(mt-base); r = 76+4*mt
            a(f"v_lshlrev_b32 v{r}, 16, v{x}\nv_and_b32 v{r+1}, 0xffff0000, v{x}\nv_lshlrev_b32 v{r+2}, 16, v{x+1}\nv_and_b32 v{r+3}, 0xffff0000, v{x+1}")
        a("s_waitcnt lgkmcnt(0)\ns_barrier")
        for mt in keep: a(f"ds_read_b128 {Q(36+4*mt)}, v6 offset:{1024*mt}")
        for n, mt in enumerate(keep):
            c = AC2(mt); x = 116+2*(mt-base); g = 128+4*(mt-base); r = 36+4*mt; o = 76+4*mt
            a(f"""s_waitcnt lgkmcnt({len(keep)-1-n})
v_pk_add_f32 {P(c)}, {P(c)}, {P(r)}
v_pk_add_f32 {P(c+2)}, {P(c+2)}, {P(r+2)}
v_pk_fma_f32 {P(o)}, {P(c)}, {P(g)}, {P(o)}
v_pk_fma_f32 {P(o+2)}, {P(c+2)}, {P(g+2)}, {P(o+2)}
v_cvt_pk_bf16_f32 v{x}, v{o}, v{o+1}
v_cvt_pk_bf16_f32 v{x+1}, v{o+2}, v{o+3}
buffer_store_dwordx2 {P(x)}, v8, s[16:19], s23 offen offset:{32*mt}""")
        a("@dump 12\ns_endpgm")
    nst = a.st.n
    fin([0,1,2], [3,4], 2)
    a.st.n = nst
    a("KM_lo:")
    fin([3,4], [0,1,2], 0)
    a.st.n = 1
    for s in range(NS2):
        f = FB2(s)
        a(f"""KM_hs{s}:
s_add_u32 s40, s41, {2048*s}
s_mov_b32 s46, 0x8000
KM_hl{s}:
s_mov_b64 exec, vcc
s_sleep 2
buffer_load_dwordx4 {Q(f)}, v6, s[12:15], s40 offen sc1
s_waitcnt vmcnt(0)
v_max3_u32 v9, v{f}, v{f+1}, v{f+2}
v_max_u32 v9, v9, v{f+3}
v_cmp_eq_u32 vcc, -1, v9
s_mov_b64 exec, -1
s_sub_u32 s46, s46, 1
s_cmp_eq_u32 s46, 0
s_cbranch_scc1 KM_hr{s}
s_cmp_lg_u64 vcc, 0
s_cbranch_scc1 KM_hl{s}
s_branch KM_hr{s}""")
    a(f"""KM_prod:
s_sub_u32 s47, s22, 8
s_waitcnt lgkmcnt(0)""")
    srd(a, 12, 6, WS_SIZE)
    srd(a, 16, 60, 256)
    a(f"""v_mov_b32 v60, 0
s_load_dwordx4 s[56:59], s[0:1], 32
s_load_dwordx2 s[4:5], s[0:1], 48
v_lshlrev_b32 v59, 4, v1
s_sub_u32 s53, s2, 80
s_xor_b32 s54, s47, 2
s_mul_i32 s54, s54, 192
s_sub_u32 s21, s2, 64
s_add_u32 s54, s54, s21
s_cmp_lt_u32 s2, 64
s_cselect_b32 s54, 999, s54
s_cmp_ge_u32 s47, 2
s_cbranch_scc1 KM_p_wp
s_cmp_lg_u32 s47, 0
s_cbranch_scc1 KM_p_no0
s_cmp_lg_u32 s2, 0
s_cbranch_scc1 KM_p_nn
s_memrealtime s[38:39]
s_waitcnt lgkmcnt(0)
s_or_b32 s38, s38, 1
v_mov_b32 v61, s38
s_mov_b64 exec, 1
buffer_store_dword v61, v60, s[16:19], 0 offen sc1
s_mov_b64 exec, -1
KM_p_nn:
KM_p_nc:""")
    spin(a, 'KM_pn', "buffer_load_dword v61, v60, s[16:19], 0 offen sc1", "v_cmp_eq_u32 vcc, 0, v61")
    a(f"""v_mov_b32 v62, {NON}
ds_write_b32 v62, v61
KM_p_no0:
s_waitcnt lgkmcnt(0)""")
    bar(a, 'P', 'g1')
    a(f"""v_mov_b32 v62, {NON}
ds_read_b32 v61, v62
s_mul_i32 s23, s47, 5120
s_add_u32 s23, s23, {MODG}
s_add_u32 s21, s23, 4096
v_lshlrev_b32 v62, 4, v1
s_mul_i32 s24, s47, 2560
s_add_u32 s24, s24, {PB1}
v_lshlrev_b32 v63, 3, v1
v_add_u32 v63, s24, v63
s_lshl_b32 s25, s2, 7
s_add_u32 s25, s25, {GFL}
s_lshl_b32 s26, s47, 14
s_add_u32 s26, s26, {GFL}
s_add_u32 s27, s26, 8192
v_lshlrev_b32 v58, 7, v1
s_waitcnt lgkmcnt(0)
s_cmp_lg_u32 s47, 0
s_cbranch_scc1 KM_p_nf
s_mov_b64 exec, 1
buffer_store_dword v61, v60, s[12:15], s25 offen sc1
s_mov_b64 exec, -1
KM_p_nf:""")
    ld = "\n".join([f"buffer_load_dwordx4 {Q(8+4*q)}, v62, s[12:15], {'s23' if q < 4 else 's21'} offen offset:{1024*(q % 4)} sc1" for q in range(5)])
    cm = "v_cmp_ne_u32 vcc, v9, v61\n" + "\n".join([f"v_cmp_ne_u32 s[38:39], v{r}, v61\ns_or_b64 vcc, vcc, s[38:39]" for r in range(11, 28, 2)])
    spin(a, 'KM_pg', ld, cm)
    for q in range(5): a(f"v_mov_b32 v{9+4*q}, v{10+4*q}\nds_write_b64 v63, {P(8+4*q)} offset:{512*q}")
    a("s_waitcnt lgkmcnt(0)")
    ST('p')
    a("s_barrier")
    spin(a, 'KM_A_p', "buffer_load_dword v11, v58, s[12:15], s26 offen sc1\nbuffer_load_dword v12, v58, s[12:15], s27 offen sc1", "v_cmp_ne_u32 vcc, v11, v61\nv_cmp_ne_u32 s[38:39], v12, v61\ns_or_b64 vcc, vcc, s[38:39]")
    ST('p')
    a("s_branch KM_p_ag2")
    a(f"""KM_p_wp:
s_sub_u32 s21, s47, 2""")
    task_ids(a, 21)
    a(f"""s_cmp_gt_u32 s28, 320
s_cbranch_scc1 KM_p_nyf
s_lshl_b32 s28, s28, 13
s_add_u32 s28, s28, {YF}
s_add_u32 s29, s28, 4096
v_mov_b32 v64, -1
v_mov_b32 v65, -1
v_mov_b32 v66, -1
v_mov_b32 v67, -1""")
    for q in range(8): a(f"buffer_store_dwordx4 {Q(64)}, v59, s[12:15], {'s28' if q < 4 else 's29'} offen offset:{1024*(q % 4)} sc1")
    a(f"""KM_p_nyf:
s_mul_i32 s21, s21, 176
s_add_u32 s21, s21, s53
s_cmp_lt_u32 s2, 80
s_cbranch_scc1 KM_p_nowp""")
    TOUCH = f"""s_mov_b64 s[44:45], exec
s_mov_b64 exec, -1
s_waitcnt lgkmcnt(0)
s_cmp_eq_u32 s47, 2
s_cselect_b32 s16, s56, s58
s_cselect_b32 s17, s57, s59
s_mov_b32 s18, {640*3072}
s_mov_b32 s19, 0x00020000
s_mul_i32 s40, s2, 7680
v_and_b32 v84, 63, v0
v_min_u32 v84, 59, v84
v_lshlrev_b32 v84, 7, v84
buffer_load_dword v85, v84, s[16:19], s40 offen
s_mov_b64 exec, s[44:45]"""
    st_save = gen.STAMPS; gen.STAMPS = False
    tmp = Asm2(); tmp.st = a.st
    wprep(tmp, 21, 24, 26, 12, 'sc1')
    gen.STAMPS = st_save
    for ins in tmp.ins:
        if ins.kind == 'nop': continue
        if ins.text.strip() == 's_waitcnt vmcnt(0)':
            a("s_barrier\ns_waitcnt vmcnt(0)"); continue
        a(ins.text)
    a("s_branch KM_p_wd\nKM_p_nowp:\ns_barrier\nKM_p_wd:\nv_and_b32 v2, 63, v0\ns_waitcnt lgkmcnt(0)")
    bar(a, 'P', 'g2')
    a("KM_p_ag2:")
    a(f"""v_mov_b32 v62, {NON}
ds_read_b32 v61, v62
v_and_b32 v2, 63, v0
s_waitcnt vmcnt(0) lgkmcnt(0)
s_cmp_lt_u32 s47, 2
s_cselect_b32 s8, s56, s58
s_cselect_b32 s9, s57, s59
s_mov_b32 s10, {640*3072}
s_mov_b32 s11, 0x00020000""")
    bar(a, 'P', 'k1a')
    a("""s_or_b32 s23, s2, s47
s_cmp_lg_u32 s23, 0
s_cbranch_scc1 KM_p_nr
s_mov_b64 exec, 1
buffer_store_dword v60, v60, s[16:19], 0 offen sc1
s_mov_b64 exec, -1
KM_p_nr:""")
    srd(a, 16, 4, 1536*1280)
    a(f"""s_cmp_ge_u32 s54, 384
s_cbranch_scc1 KM_p_nwd
s_lshr_b32 s24, s54, 3
s_and_b32 s25, s54, 7
s_mul_i32 s55, s25, {1536*160}
s_mul_i32 s21, s24, 5120
s_add_u32 s55, s55, s21
s_add_u32 s55, s55, {WDT}
s_mul_i32 s24, s24, {32*1280}
s_mul_i32 s25, s25, 160
s_add_u32 s24, s24, s25""")
    for q in range(5):
        a(f"""v_add_u32 v12, {64*q}, v2
v_mul_u32_u24 v14, 52429, v12
v_lshrrev_b32 v14, 19, v14
v_mul_u32_u24 v15, 10, v14
v_sub_u32 v15, v12, v15
v_and_b32 v36, 3, v14
v_bfe_u32 v37, v14, 2, 2
v_lshl_add_u32 v36, v37, 3, v36
v_lshrrev_b32 v37, 4, v14
v_lshl_add_u32 v36, v37, 2, v36
v_mul_u32_u24 v36, 1280, v36
v_lshl_add_u32 v36, v15, 4, v36
buffer_load_dwordx4 {Q(64+4*q)}, v36, s[16:19], s24 offen""")
    a("KM_p_nwd:")
    def touch():
        a("s_cmp_lt_u32 s47, 2\ns_cbranch_scc1 KM_p_nt")
        a(TOUCH)
        a("KM_p_nt:")
    if OPT.get('tp', 'k1a') == 'k1a': touch()
    for q in range(3):
        a(f"""v_add_u32 v10, {64*q}, v2
v_mul_u32_u24 v11, 43691, v10
v_lshrrev_b32 v11, 19, v11
v_mul_u32_u24 v12, 12, v11
v_sub_u32 v12, v10, v12
v_lshrrev_b32 v13, 2, v11
v_and_b32 v13, 2, v13
v_xor_b32 v12, v12, v13
v_mul_u32_u24 v11, 3072, v11
v_lshl_add_u32 v11, v12, 4, v11
v_subrev_u32 v{50+q}, {1024*q}, v11""")
    for q in range(4):
        a(f"""v_lshrrev_b32 v10, 4, v2
v_add_u32 v10, {4*q}, v10
v_xor_b32 v10, v10, v2
v_and_b32 v10, 7, v10
v_lshrrev_b32 v11, 3, v2
v_mul_u32_u24 v11, 1280, v11
v_lshl_add_u32 v11, v10, 4, v11
v_add_u32 v{53+q}, {q*(10240-1024)}, v11""")
    a(f"""
s_and_b32 s26, s47, 1
s_mul_i32 s27, s26, {16*3072}
s_mul_i32 s28, s51, 192
s_add_u32 s27, s27, s28
s_mul_i32 s28, s47, 3072
s_lshl_b32 s29, s50, 2
s_add_u32 s29, s29, s47
s_mul_i32 s29, s29, 40960
s_add_u32 s29, s29, {H2F}
s_lshl_b32 s30, s47, 12
v_and_b32 v58, 15, v2
v_lshlrev_b32 v58, 7, v58
v_and_b32 v57, 3, v2
v_lshlrev_b32 v57, 7, v57
v_lshlrev_b32 v59, 4, v2
v_lshlrev_b32 v63, 7, v2""")
    def iw(s):
        a(f"s_add_u32 m0, s28, {(s % 8)*WS_}")
        for q in range(3): a(f"buffer_load_dwordx4 v{50+q}, s[8:11], s27 offen offset:{1024*q} sc1 lds")
        a(f"s_add_u32 s27, s27, {32*3072}")
    def ih(d):
        a(f"s_add_u32 m0, s30, {HB + (d % 4)*HS}")
        for q in range(4): a(f"buffer_load_dwordx4 v{53+q}, s[12:15], s33 offen offset:{1024*q} sc1 lds")
        a("s_add_u32 s33, s33, 128")
    bar(a, 'P', 'k2a')
    a("s_cmp_ge_u32 s54, 384\ns_cbranch_scc1 KM_p_nwd2\ns_add_u32 s54, s55, 4096\ns_waitcnt vmcnt(0)")
    for q in range(5): a(f"buffer_store_dwordx4 {Q(64+4*q)}, v59, s[12:15], {'s55' if q < 4 else 's54'} offen offset:{1024*(q % 4)} sc1")
    a("KM_p_nwd2:")
    a(f"""s_lshl_b32 s23, s47, 11
s_add_u32 m0, s23, {PB}
s_add_u32 s23, s23, 5120
buffer_load_dwordx4 v59, s[12:15], s23 offen sc1 lds
buffer_load_dwordx4 v59, s[12:15], s23 offen offset:1024 sc1 lds""")
    for s in range(0, 4): iw(s)
    a("s_waitcnt vmcnt(12)")
    bar(a, 'P', 'k2b')
    if OPT.get('tp', 'k1a') == 'k2b': touch()
    a(f"""s_lshl_b32 s23, s50, 3
s_lshl_b32 s24, s47, 1
s_add_u32 s23, s23, s24
s_mul_i32 s23, s23, 49152
s_mul_i32 s24, s51, 3072
s_add_u32 s23, s23, s24
s_add_u32 s23, s23, {HIDF}
s_add_u32 s24, s23, 49152
v_mov_b32 v88, -1
v_mov_b32 v89, -1
v_mov_b32 v90, -1
v_mov_b32 v91, -1""")
    def hpre():
        for q in range(6): a(f"buffer_store_dwordx4 {Q(88)}, v59, s[12:15], {'s23' if q < 3 else 's24'} offen offset:{1024*(q % 3)} sc1")
    if OPT.get('hp', 'b1') == 'k2b': hpre()
    bar(a, 'P', 'b1')
    if OPT.get('tp', 'k1a') == 'b1': touch()
    if OPT.get('hp', 'b1') == 'b1': hpre()
    for s in range(4, 8): iw(s)
    bar(a, 'P', 'b2'); bar(a, 'P', 'b3')
    a(f"""s_lshl_b32 s48, s50, 4
s_add_u32 s48, s48, s51
s_lshl_b32 s48, s48, 7
s_add_u32 s48, s48, {FLG}
s_lshl_b32 s23, s50, 2
s_add_u32 s23, s23, s47
s_lshl_b32 s23, s23, 9
s_add_u32 s23, s23, {FLG}
s_and_b32 s24, s51, 7
s_mul_i32 s31, s47, 2560
s_mul_i32 s32, s24, {1536*160}
s_add_u32 s32, s32, s31
s_add_u32 s32, s32, {WDT}
s_waitcnt vmcnt(0)""")
    bar(a, 'P', 'd1')
    a(f"""s_cmp_lg_u32 s47, 0
s_cbranch_scc1 KM_na1
s_mov_b64 exec, 1
buffer_store_dword v61, v60, s[12:15], s48 offen sc1
s_mov_b64 exec, -1
KM_na1:""")
    cnt = []
    def iw2(s):
        a(f"""s_add_u32 m0, s31, {WPOS(s)*DW}
buffer_load_dwordx4 v59, s[12:15], s32 offen sc1 lds
buffer_load_dwordx4 v59, s[12:15], s32 offen offset:1024 sc1 lds
s_mov_b32 exec_hi, 0
buffer_load_dwordx4 v59, s[12:15], s32 offen offset:2048 sc1 lds
s_mov_b32 exec_hi, -1
s_add_u32 s32, s32, 10240""")
    def grp(d):
        ih(d); n = 4
        if d >= 4:
            iw(2*d); iw(2*d+1); n += 6
        cnt.append(n)
    a(f"v_add_u32 v62, s30, v59\nv_add_u32 v62, {HB}, v62")
    def hl(d, q): return f"buffer_load_dwordx4 {Q(96+16*d+4*q)}, v{53+q}, s[12:15], s29 offen offset:{1024*q+128*d} sc1"
    for d in range(4):
        for q in range(4): a(hl(d, q))
    nw2 = 0
    for d in range(10):
        if d < 4:
            R = 96+16*d
            a(f"s_mov_b32 s46, 0x8000\ns_waitcnt vmcnt({4*(3-d)+sum(cnt)})\ns_branch KM_hc{d}\nKM_hq{d}:\ns_sleep 2")
            for q in range(4): a(hl(d, q))
            a(f"s_waitcnt vmcnt(0)\nKM_hc{d}:")
            a(f"v_max3_u32 v12, v{R}, v{R+1}, v{R+2}")
            for k in range(3, 15, 2): a(f"v_max3_u32 v12, v12, v{R+k}, v{R+k+1}")
            a(f"""v_max_u32 v12, v12, v{R+15}
v_cmp_eq_u32 vcc, -1, v12
s_nop 1
s_and_b64 exec, exec, vcc
s_cbranch_scc0 KM_ho{d}
s_sub_u32 s46, s46, 1
s_cmp_lg_u32 s46, 0
s_cbranch_scc1 KM_hq{d}
KM_ho{d}:
s_mov_b64 exec, -1""")
            for q in range(4): a(f"ds_write_b128 v62, {Q(R+4*q)} offset:{d*HS+1024*q}")
            a("s_waitcnt lgkmcnt(0)")
            if d == 0: ST('p')
        else:
            a(f"s_waitcnt vmcnt({sum(cnt[d-3:])})")
        bar(a, 'P', f'B{d}')
        if d == 1:
            spin(a, 'KM_p1', "buffer_load_dword v11, v57, s[12:15], s23 offen sc1", "v_cmp_ne_u32 vcc, v11, v61")
            a("s_add_u32 s33, s29, 512")
        if d >= 1 and d+3 < 10: grp(d+3)
        if d >= 7:
            for _ in range(EARLY[d]): iw2(nw2); nw2 += 1
            cnt.append(3*EARLY[d])
    bar(a, 'P', 'B10')
    while nw2 < NWD: iw2(nw2); nw2 += 1
    a("s_waitcnt vmcnt(0)")
    ST('p')
    bar(a, 'P', 'C0')
    pend = []
    for s in CB:
        need = [t for t in pend if t <= NEXTCB[s]]
        a(f"s_waitcnt vmcnt({3*(len(pend)-len(need))})")
        bar(a, 'P', f'C{s}')
        pend = [t for t in pend if t not in need]
        while nw2 < NS2 and nw2 - NWD <= s:
            iw2(nw2); pend.append(nw2); nw2 += 1
    a("@dump 12\nKM_end:\ns_endpgm")
    assert bar.seq['W'] == bar.seq['P'], (bar.seq['W'], bar.seq['P'])
    return kd_block(NAME, 168, 100)
if __name__ == '__main__':
    OPT = {}; out = 'mega.s'
    for x in sys.argv[1:]:
        if x.endswith('.s'): out = x
        elif x.startswith('st='): gen.STAMPS = True; OPT['st'] = x[3:]
        elif x.startswith('slp'): gen.SLP = int(x[3:])
        elif x.startswith('bk'): OPT['bk'] = int(x[2:])
        elif x.startswith('tp='): OPT['tp'] = x[3:]
        elif x.startswith('hp='): OPT['hp'] = x[3:]
        else: OPT[x] = 1
    a = Asm2()
    kd = km(a, OPT)
    hdr = open('adaLN_cond__spectral_gfnet__glu_gated_geglu__prompt.s.ref').read().split('\n')[:13]
    s = '\n'.join(hdr) + '\n; @launch grid=(256,1,1) block=(768,1,1) lds=163840\n'
    s += '.amdgcn_target "amdgcn-amd-amdhsa--gfx950"\n.text\n' + a.text() + '.section .rodata,"a"\n' + kd
    open(out, 'w').write(s)
```

```python
import sys, math
sys.path.insert(0,'work')
import gen
from gen import *
NAME = 'adaLN_cond__spectral_gfnet__glu_gated_geglu__prompt_kernel'
MODG = 0x4000
GFL = 0x20000
CNT = 0x8000
class Bar:
    def __init__(self): self.seq = {}
    def __call__(self, a, role, name):
        self.seq.setdefault(role, []).append(name); a("s_barrier")
def spin(a, name, load, cmp):
    a(f"s_mov_b32 s46, 0x8000\n{name}:")
    a(load); a("s_waitcnt vmcnt(0)"); a(cmp)
    a(f"""s_nop 1
s_cmp_eq_u64 vcc, 0
s_cbranch_scc1 {name}_ok
s_sleep {gen.SLP}
s_sub_u32 s46, s46, 1
s_cmp_lg_u32 s46, 0
s_cbranch_scc1 {name}
{name}_ok:""")
def addr_xf(a):
    a(f"""s_lshl_b32 s40, s22, 5
v_lshrrev_b32 v22, 1, v6
v_lshl_add_u32 v22, v22, 4, v5
v_add_u32 v22, s40, v22
v_add_u32 v23, 256, v8
v_and_b32 v24, 1, v6
v_lshlrev_b32 v24, 7, v24""")
    for src_, dst in ((22, 11), (23, 13)):
        a(f"""v_lshrrev_b32 v25, 3, v{src_}
v_lshl_add_u32 v25, v25, 16, v24
v_and_b32 v26, 7, v{src_}
v_lshl_add_u32 v{dst}, v26, 4, v25""")
def addr_yf(a):
    a(f"""s_lshl_b32 s40, s22, 5
v_lshrrev_b32 v22, 1, v6
v_lshl_add_u32 v22, v22, 4, v5
v_add_u32 v22, s40, v22
v_add_u32 v23, 256, v8
v_and_b32 v24, 1, v6
v_lshlrev_b32 v24, 8, v24
v_lshl_add_u32 v11, v22, 13, v24
v_lshl_add_u32 v13, v23, 13, v24""")
def gather2(a, name, ld0, ld1, r0, r1, t, pre=False):
    a(f"""s_mov_b32 s46, 0x8000
{f's_branch {name}_chk' if pre else ''}
{name}:
{ld0}
{ld1}
{name}_chk:
s_waitcnt vmcnt(0)
v_max3_u32 v{t}, v{r0}, v{r0+1}, v{r0+2}
v_max3_u32 v{t+1}, v{r1}, v{r1+1}, v{r1+2}
v_max3_u32 v{t}, v{t}, v{r0+3}, v{r1+3}
v_max_u32 v{t}, v{t}, v{t+1}
v_cmp_eq_u32 vcc, -1, v{t}
s_nop 1
s_and_b64 exec, exec, vcc
s_cbranch_scc0 {name}_ok
s_sleep 2
s_sub_u32 s46, s46, 1
s_cmp_lg_u32 s46, 0
s_cbranch_scc1 {name}
{name}_ok:
s_mov_b64 exec, -1""")
def task_ids(a, slot):
    a(f"""s_lshl_b32 s28, s{slot}, 2
s_lshr_b32 s29, s2, 6
s_add_u32 s28, s28, s29
s_lshl_b32 s28, s28, 3
s_and_b32 s29, s2, 7
s_add_u32 s28, s28, s29
s_lshl_b32 s41, s28, 16
s_lshl_b32 s28, s28, 3
s_bfe_u32 s29, s2, 0x30003
s_add_u32 s28, s28, s29
s_lshl_b32 s29, s29, 4
s_add_u32 s41, s41, s29""")
def km(a, OPT):
    bar = Bar()
    a(f".globl {NAME}\n.p2align 8\n.type {NAME},@function\n{NAME}:")
    a.st = Stamper(a, 3)
    ST = lambda tag: a("@stamp") if tag in OPT.get('st', '') else None
    R2 = 98304
    GP = R2; NON = R2 + 1536; PB1 = R2 + 2048; Z1 = R2 + 8192; K2B = R2 + 24576
    TB = R2; ZB = R2 + 12288; ZR = 528; ZC = 8*ZR; PB = R2 + 57344
    NST = 20; WS_ = 12288; HB = R2; HS = 16384
    NS2 = 24; DW = 10240; NWD = 16
    ORDER = [5, 6, 13,  7, 8, 14, 15,  0, 1, 9, 10,  2, 3, 4, 11, 12]
    EARLY = {7: 3, 8: 4, 9: 4}
    WPOS = lambda s: ORDER[s % NWD]
    CB = [3, 7, 15, 19]; NEXTCB = {3: 7, 7: 15, 15: 19, 19: 23}
    XR = 114
    a(f"""
s_cmp_ge_u32 s2, 256
s_cbranch_scc1 KM_end
@stamp
s_load_dwordx2 s[4:5], s[0:1], 0
s_load_dwordx2 s[6:7], s[0:1], 88
s_load_dwordx4 s[56:59], s[0:1], 56
s_load_dwordx4 s[24:27], s[0:1], 8
s_load_dwordx2 s[60:61], s[0:1], 80
s_and_b32 s50, s2, 7
s_lshr_b32 s51, s2, 3
s_mul_i32 s52, s50, 10
s_add_u32 s52, s52, s51
s_mul_i32 s21, s50, 20
s_add_u32 s21, s21, s51
s_add_u32 s21, s21, 70
s_cmp_lt_u32 s2, 80
s_cselect_b32 s52, s52, s21
s_lshl_b32 s50, s50, 1
s_lshr_b32 s21, s51, 4
s_add_u32 s50, s50, s21
s_and_b32 s51, s51, 15
v_lshrrev_b32 v4, 6, v0
v_and_b32 v1, 63, v0
v_readfirstlane_b32 s22, v4
s_lshl_b32 s3, s50, 1
s_lshr_b32 s21, s51, 3
s_add_u32 s3, s3, s21
s_and_b32 s20, s51, 7
s_cmp_ge_u32 s22, 8
s_cbranch_scc1 KM_prod
v_and_b32 v3, 31, v0
v_lshlrev_b32 v2, 3, v3
v_bfe_u32 v4, v0, 5, 1
v_lshl_add_u32 v2, v4, 8, v2
v_lshlrev_b32 v3, 2, v3
v_lshl_add_u32 v3, v4, 1, v3
s_lshl_b32 s21, s20, 3
s_add_u32 s21, s21, s22
s_lshl_b32 s21, s21, 5
s_add_u32 s21, s21, s3
s_mul_i32 s21, s21, 1280
s_lshl_b32 s23, s52, 5
v_lshrrev_b32 v144, 1, v0
v_and_b32 v145, 1, v0
v_mul_u32_u24 v146, 7680, v144
v_lshl_add_u32 v146, v145, 4, v146
v_add_u32 v146, s23, v146
v_lshlrev_b32 v147, 1, v144
s_cmp_lt_u32 s2, 240
s_cselect_b32 s49, 5, 0
s_waitcnt lgkmcnt(0)
""")
    if OPT.get('wb'): a(f"s_add_u32 s6, s6, {OPT['wb']}\ns_addc_u32 s7, s7, 0")
    srd(a, 12, 6, WS_SIZE)
    srd(a, 8, 56, 1280)
    srd(a, 16, 58, 640*3840*2)
    NR = 4
    def gloads(tag, cond):
        a(f"s_cmp_ge_u32 s22, s49\ns_cbranch_scc1 KM_nog1{tag}")
        for i in range(NR): a(f"buffer_load_short_d16_hi v{136+i}, v147, s[8:11], 0 offen offset:{320*i}")
        a("s_mov_b32 s23, 0")
        for i in range(NR):
            a(f"buffer_load_dwordx4 {Q(120+4*i)}, v146, s[16:19], s23 offen")
            if i < NR-1: a(f"s_add_u32 s23, s23, {160*7680}")
        a(f"KM_nog1{tag}:")
    srd(a, 24, 4, 2048*1280)
    for k in range(3): a(f"buffer_load_dwordx2 {P(XR+2*k)}, v2, s[24:27], s21 offen offset:{512*k}")
    gloads('a', 0)
    a("v_and_b32 v5, 15, v0\nv_bfe_u32 v6, v0, 4, 2")
    col_slots(a, 22, 5, 6, 8, 22)
    addr_xf(a)
    a(f"""s_lshl_b32 s38, s3, 11
s_lshl_b32 s21, s20, 8
s_add_u32 s38, s38, s21
s_add_u32 s38, s38, {XF}
v_mov_b32 v28, -1
v_mov_b32 v29, -1
v_mov_b32 v30, -1
v_mov_b32 v31, -1
buffer_store_dwordx4 {Q(28)}, v11, s[12:15], s38 offen sc1
s_mov_b32 exec_lo, 0x00ff00ff
s_mov_b32 exec_hi, 0
buffer_store_dwordx4 {Q(28)}, v13, s[12:15], s38 offen sc1
s_mov_b64 exec, -1
s_lshl_b32 s38, s20, 3
s_add_u32 s38, s38, s22
s_lshl_b32 s21, s3, 6
s_add_u32 s38, s38, s21
s_mul_i32 s38, s38, 1280
s_add_u32 s38, s38, {H2F}
buffer_store_dwordx2 {P(28)}, v2, s[12:15], s38 offen sc1""")
    w5_consts(a, 88, 22, -1.0)
    a(f"""
v_cvt_f32_u32 v22, v8
v_mul_f32 v22, {fh(1/128)}, v22
v_cvt_f32_u32 v23, v6
v_mul_f32 v23, {fh(8.0)}, v23
v_and_b32 v24, {fh(0.25)}, v9
v_fma_f32 v23, v23, v22, -v24
v_mul_f32 v24, {fh(25.0)}, v22
""")
    for t in range(4):
        for jj in range(4):
            a(f"""v_cos_f32 v25, v23
v_add_f32 v23, v23, v22
v_cos_f32 v26, v23
v_add_f32 v23, v23, v{24 if jj == 3 else 22}
v_cvt_pk_bf16_f32 v{96+4*t+jj}, v25, v26""")
    a(f"""
v_lshrrev_b32 v22, 3, v3
v_xor_b32 v22, s22, v22
v_lshlrev_b32 v22, 4, v22
v_and_b32 v23, 7, v3
v_lshl_add_u32 v22, v23, 1, v22
s_lshl_b32 s23, s22, 8
s_add_u32 s23, s23, {Z1}
v_add_u32 v14, s23, v22
v_xor_b32 v15, {2048+128}, v14
v_lshlrev_b32 v7, 2, v3
v_add_u32 v7, {PB1}, v7
v_xor_b32 v22, v6, v5
""")
    for t in range(4):
        a(f"""v_xor_b32 v23, {4*t}, v22
v_lshlrev_b32 v23, 4, v23
v_lshl_add_u32 v23, v5, 8, v23
v_add_u32 v{16+t}, {Z1}, v23""")
    r5_sconsts(a)
    a("s_waitcnt vmcnt(11)\ns_cmp_lt_u32 s22, s49\ns_cbranch_scc1 KM_x0\ns_waitcnt vmcnt(3)\nKM_x0:")
    unpack_x(a, XR, 60)
    ln_rows(a, 60, 70)
    a(f"s_cmp_ge_u32 s22, s49\ns_cbranch_scc1 KM_nog2\ns_waitcnt vmcnt({NR+3})")
    C = 136; T = 140
    for i in range(NR): a(f"v_mul_f32 v{T+i}, {fh(-math.log2(math.e))}, v{C+i}")
    for i in range(NR): a(f"v_exp_f32 v{T+i}, v{T+i}")
    for i in range(NR): a(f"v_add_f32 v{T+i}, 1.0, v{T+i}")
    for i in range(NR): a(f"v_rcp_f32 v{T+i}, v{T+i}")
    for i in range(NR): a(f"v_mul_f32 v{C+i}, v{C+i}, v{T+i}")
    for i in range(NR): a(f"v_cvt_pk_bf16_f32 v{C+i}, v{C+i}, v{C+i}")
    for i in range(NR): a(f"v_and_b32 v{48+2*i}, 0xffff0000, v{C+i}")
    a(f"""v_lshrrev_b32 v22, 4, v0
v_lshlrev_b32 v23, 6, v22
v_lshl_add_u32 v23, v145, 5, v23
v_add_u32 v23, {GP}, v23""")
    for i in range(NR):
        a(f"s_waitcnt vmcnt({NR-1-i+3})")
        for j in range(4): a(f"v_lshlrev_b32 v{32+2*j}, 16, v{120+4*i+j}\nv_and_b32 v{33+2*j}, 0xffff0000, v{120+4*i+j}")
        for j in range(4):
            if i == 0: a(f"v_pk_mul_f32 {P(40+2*j)}, {P(32+2*j)}, {P(48)} op_sel_hi:[1,0]")
            else: a(f"v_pk_fma_f32 {P(40+2*j)}, {P(32+2*j)}, {P(48+2*i)}, {P(40+2*j)} op_sel_hi:[1,0,1]")
    for mode in ('quad_perm:[2,3,0,1]', 'row_ror:4', 'row_ror:8'):
        for j in range(8): a(f"v_add_f32_dpp v{40+j}, v{40+j}, v{40+j} {mode} {DPP}")
    a(f"""v_cmp_gt_u32 vcc, 2, v5
s_and_saveexec_b64 s[38:39], vcc
ds_write_b128 v23, {Q(40)}
ds_write_b128 v23, {Q(44)} offset:16
s_mov_b64 exec, s[38:39]
KM_nog2:
s_waitcnt vmcnt(0) lgkmcnt(0)""")
    ST('a')
    bar(a, 'W', 'g1')
    a(f"""v_mov_b32 v22, {NON}
ds_read_b32 v27, v22
s_cmp_lg_u32 s22, 0
s_cbranch_scc1 KM_nog3
s_cmp_eq_u32 s49, 0
s_cbranch_scc1 KM_nog3
v_mul_u32_u24 v23, 320, v6
v_lshl_add_u32 v23, v5, 2, v23
v_add_u32 v23, {GP}, v23
ds_read_b32 v40, v23
ds_read_b32 v41, v23 offset:64
ds_read_b32 v42, v23 offset:128
ds_read_b32 v43, v23 offset:192
ds_read_b32 v44, v23 offset:256
s_sub_u32 s23, s52, 40
s_cmp_lt_u32 s23, 40
s_cselect_b32 s21, 1.0, 0
s_sub_u32 s23, s52, 160
s_cmp_lt_u32 s23, 40
s_cselect_b32 s21, 1.0, s21
s_waitcnt lgkmcnt(0)
v_add_f32 v40, v40, v41
v_add_f32 v42, v42, v43
v_add_f32 v40, v40, v44
v_add_f32 v40, v40, v42
v_mov_b32 v41, v40
v_permlane16_swap_b32 v40, v41
v_add_f32 v40, v40, v41
v_mov_b32 v41, v40
v_permlane32_swap_b32 v40, v41
v_add_f32 v40, v40, v41
v_cvt_pk_bf16_f32 v40, v40, v40
v_and_b32 v40, 0xffff0000, v40
v_add_f32 v40, s21, v40
v_cvt_pk_bf16_f32 v40, v40, v40
v_and_b32 v40, 0xffff0000, v40
v_mov_b32 v41, v27
s_mov_b64 exec, 0xffff
s_cmp_lt_u32 s52, 80
s_cbranch_scc1 KM_gran
s_lshl_b32 s23, s52, 6
v_lshlrev_b32 v23, 2, v1
buffer_store_dword v40, v23, s[12:15], s23 offen sc1
s_branch KM_pub
KM_gran:
s_lshl_b32 s23, s52, 7
s_add_u32 s23, s23, {MODG}
v_lshlrev_b32 v23, 3, v1
buffer_store_dwordx2 {P(40)}, v23, s[12:15], s23 offen sc1
KM_pub:
s_mov_b64 exec, -1
KM_nog3:""")
    M = lambda t: 120+6*t
    N = lambda x, y: 144+6*(2*x+y)
    def gen_(R, cur, step, last, t0=12):
        for hh in range(2):
            a(f"""v_cos_f32 v{t0}, v{cur}
v_sin_f32 v{t0+1}, v{cur}
v_add_f32 v{cur}, v{cur}, v{step}
v_cos_f32 v{t0+2}, v{cur}
v_sin_f32 v{t0+3}, v{cur}
v_add_f32 v{cur}, v{cur}, v{last if hh else step}
v_cvt_pk_bf16_f32 v{R+2+hh}, v{t0}, v{t0+2}
v_cvt_pk_bf16_f32 v{R+hh}, -v{t0+1}, -v{t0+3}
v_cvt_pk_bf16_f32 v{R+4+hh}, v{t0+1}, v{t0+3}""")
    a(f"""v_bfe_u32 v46, v0, 6, 2
v_lshl_add_u32 v46, v46, 4, v5
v_cvt_f32_u32 v46, v46
v_cvt_f32_u32 v47, v6
v_cvt_f32_u32 v48, v5
v_mul_f32 v47, 4.0, v47
v_mul_f32 v49, {fh(1/64)}, v46
v_mul_f32 v50, v47, v49
v_mul_f32 v51, {fh(13.0)}, v49""")
    for t in range(4): gen_(M(t), 50, 49, 51, 52)
    for x in range(2):
        a(f"v_add_f32 v49, {fh(16.0*x)}, v48\nv_mul_f32 v49, {fh(1/32)}, v49\nv_mul_f32 v50, v47, v49\nv_mul_f32 v51, {fh(13.0)}, v49")
        for y in range(2): gen_(N(x, y), 50, 49, 51, 52)
    a(f"""s_lshl_b32 s23, s3, 11
s_lshl_b32 s21, s20, 8
s_add_u32 s23, s23, s21
s_add_u32 s23, s23, {XF}""")
    ST('a')
    bar(a, 'W', 'g2')
    ST('a')
    for j in range(5): a(f"ds_read_b64 {P(40+2*j)}, v7 offset:{2560+512*j}\nds_read_b64 {P(50+2*j)}, v7 offset:{512*j}")
    for j in range(5): a(f"v_pk_mul_f32 {P(28+2*j)}, {P(60+2*j)}, {P(70)} op_sel_hi:[1,0]")
    a("s_waitcnt lgkmcnt(0)")
    for j in range(5): a(f"v_pk_fma_f32 {P(28+2*j)}, {P(28+2*j)}, {P(40+2*j)}, {P(50+2*j)}")
    h = {(3*j) % 5: 28+2*j for j in range(5)}
    t1,t2,t3,t4 = 40,42,44,46; z0,p1,q1,p2,q2 = 48,50,52,54,56
    a(f"""v_pk_add_f32 {P(t1)}, {P(h[1])}, {P(h[4])}
v_pk_add_f32 {P(t2)}, {P(h[2])}, {P(h[3])}
v_pk_add_f32 {P(t3)}, {P(h[1])}, {P(h[4])} neg_lo:[0,1] neg_hi:[0,1]
v_pk_add_f32 {P(t4)}, {P(h[2])}, {P(h[3])} neg_lo:[0,1] neg_hi:[0,1]
v_pk_add_f32 {P(z0)}, {P(h[0])}, {P(t1)}
v_pk_fma_f32 {P(p1)}, s[30:31], {P(t1)}, {P(h[0])}
v_pk_fma_f32 {P(p2)}, s[32:33], {P(t1)}, {P(h[0])}
v_pk_mul_f32 {P(q1)}, s[34:35], {P(t3)}
v_pk_mul_f32 {P(q2)}, s[36:37], {P(t3)}
v_pk_add_f32 {P(z0)}, {P(z0)}, {P(t2)}
v_pk_fma_f32 {P(p1)}, s[32:33], {P(t2)}, {P(p1)}
v_pk_fma_f32 {P(p2)}, s[30:31], {P(t2)}, {P(p2)}
v_pk_fma_f32 {P(q1)}, s[36:37], {P(t4)}, {P(q1)}
v_pk_fma_f32 {P(q2)}, s[34:35], {P(t4)}, {P(q2)} neg_lo:[0,1,0] neg_hi:[0,1,0]
v_cvt_pk_bf16_f32 v22, v{z0}, v{z0+1}
ds_write_b32 v14, v22 offset:8192""")
    for k, (p, q) in enumerate(((p1, q1), (p2, q2))):
        c, s = 88+4*k, 90+4*k; r, im = 28+4*k, 30+4*k
        a(f"""v_pk_mul_f32 {P(r)}, {P(p)}, {P(c)}
v_pk_mul_f32 {P(im)}, {P(p)}, {P(s)}
v_pk_fma_f32 {P(r)}, {P(q)}, {P(s)}, {P(r)}
v_pk_fma_f32 {P(im)}, {P(q)}, {P(c)}, {P(im)} neg_lo:[1,0,0] neg_hi:[1,0,0]
v_cvt_pk_bf16_f32 v{23+2*k}, v{r}, v{r+1}
v_cvt_pk_bf16_f32 v{24+2*k}, v{im}, v{im+1}
ds_write_b32 v{14+k}, v{23+2*k}
ds_write_b32 v{14+k}, v{24+2*k} offset:4096""")
    a("s_waitcnt vmcnt(0) lgkmcnt(0)")
    bar(a, 'W', 'k1a')
    for T in range(3):
        for t in range(4): a(f"ds_read_b128 {Q(28+16*T+4*t)}, v{16+t} offset:{4096*T}")
    n = 12
    for T in range(3):
        for t in range(4):
            n -= 1
            a(f"s_waitcnt lgkmcnt({n})")
            a(f"v_mfma_f32_16x16x32_bf16 {Q(76+4*T)}, {Q(28+16*T+4*t)}, {Q(96+4*t)}, {'0' if t == 0 else Q(76+4*T)}")
    a(f"""v_and_b32 v22, 0x80008000, v9
v_and_b32 v23, v9, v12
v_bfi_b32 v24, v9, v22, v12
v_pk_mul_f32 {P(28)}, {P(76)}, {P(10)} op_sel_hi:[1,0]
v_pk_mul_f32 {P(30)}, {P(78)}, {P(10)} op_sel_hi:[1,0]
v_pk_mul_f32 {P(32)}, {P(80)}, {P(10)} op_sel_hi:[1,0]
v_pk_mul_f32 {P(34)}, {P(82)}, {P(10)} op_sel_hi:[1,0]""")
    for i in range(4):
        a(f"v_add_f32_dpp v{76+i}, v{32+i}, v{76+i} row_ror:8 {DPP}")
        a(f"v_subrev_f32_dpp v{80+i}, v{28+i}, v{80+i} row_ror:8 {DPP}")
    a(f"""v_cvt_pk_bf16_f32 v36, v76, v77
v_cvt_pk_bf16_f32 v37, v78, v79
v_cvt_pk_bf16_f32 v38, v80, v81
v_cvt_pk_bf16_f32 v39, v82, v83
v_cvt_pk_bf16_f32 v44, v84, v85
v_cvt_pk_bf16_f32 v45, v86, v87
v_xor_b32 v36, v36, v23
v_xor_b32 v37, v37, v23
v_xor_b32 v38, v38, v24
v_xor_b32 v39, v39, v24
v_xor_b32 v44, v44, v22
v_xor_b32 v45, v45, v22
v_cndmask_b32 v40, v36, v38, s[42:43]
v_cndmask_b32 v41, v37, v39, s[42:43]
v_cndmask_b32 v42, v38, v36, s[42:43]
v_cndmask_b32 v43, v39, v37, s[42:43]
buffer_store_dwordx4 {Q(40)}, v11, s[12:15], s23 offen sc1
v_mov_b32_dpp v46, v44 row_ror:8 {DPP}
v_mov_b32_dpp v47, v45 row_ror:8 {DPP}
s_mov_b32 exec_lo, 0x00ff00ff
s_mov_b32 exec_hi, 0
buffer_store_dwordx4 {Q(44)}, v13, s[12:15], s23 offen sc1
s_mov_b64 exec, -1""")
    ST('a')
    a(f"""s_lshr_b32 s26, s22, 2
s_and_b32 s27, s22, 3
""")
    task_ids(a, 26)
    a(f"""s_cmp_gt_u32 s28, 320
s_cbranch_scc1 KM_k2skip
s_cmp_eq_u32 s28, 320
s_cselect_b32 s41, {32*65536}, s41
s_lshr_b32 s21, s28, 5
s_lshl_b32 s21, s21, 3
s_and_b32 s23, s28, 7
s_add_u32 s21, s21, s23
s_sub_u32 s23, 128, s21
s_cmp_eq_u32 s21, 0
s_cselect_b32 s23, 64, s23
s_bitcmp1_b32 s28, 3
s_cselect_b32 s21, s23, s21
s_mul_i32 s21, s21, 5
s_bfe_u32 s23, s28, 0x10004
s_lshl_b32 s23, s23, 7
s_add_u32 s21, s21, s23
s_add_u32 s21, s21, 128
s_sub_u32 s23, s21, 640
s_min_u32 s21, s21, s23
s_sub_u32 s23, 640, s21
s_min_u32 s21, s21, s23
s_sub_u32 s23, s28, 256
s_mul_i32 s23, s23, 5
s_cmp_ge_u32 s28, 256
s_cselect_b32 s40, s23, s21
v_and_b32 v1, 15, v0
v_bfe_u32 v2, v0, 4, 2
v_bfe_u32 v3, v0, 6, 2
v_and_b32 v9, 63, v0
v_lshl_add_u32 v4, v3, 2, v2
v_xor_b32 v10, v4, v1
v_lshl_add_u32 v4, v4, 4, v10
v_lshlrev_b32 v4, 7, v4
v_lshrrev_b32 v5, 1, v1
v_and_b32 v6, 1, v1
v_lshl_add_u32 v5, v6, 3, v5
v_lshl_add_u32 v5, v2, 4, v5
v_lshlrev_b32 v5, 4, v5
v_lshl_add_u32 v5, v3, 11, v5
s_add_u32 s21, s41, {XF}
s_add_u32 s23, s21, 32768
s_lshl_b32 s29, s28, 13
s_lshl_b32 s48, s26, 14
s_add_u32 s48, s48, {K2B}
v_lshl_add_u32 v6, v3, 4, v1
v_cvt_f32_u32 v6, v6
v_cvt_f32_u32 v7, v2
v_cvt_f32_u32 v8, v1
v_mul_f32 v7, 4.0, v7
""")
    a(f"v_mul_f32 v16, {fh(-1/2048)}, v6\nv_mul_f32 v10, v7, v16\nv_mul_f32 v11, {fh(13.0)}, v16")
    for k in range(8):
        a(f"v_cos_f32 v{56+k}, v10\nv_sin_f32 v{64+k}, v10")
        if k < 7: a(f"v_add_f32 v10, v10, v{11 if k == 3 else 16}")
    if 'gx1' in OPT:
        for l in (f"buffer_load_dwordx4 {Q(24)}, v4, s[12:15], s21 offen sc1", f"buffer_load_dwordx4 {Q(28)}, v4, s[12:15], s23 offen sc1"): a(l)
    a(f"""s_lshl_b32 s24, s27, 4
v_cvt_f32_u32 v12, s24
v_add_f32 v12, v12, v7
s_mov_b32 s38, {fh(2.0/(2048*640))}
s_cmp_eq_u32 s28, 256
s_cselect_b32 s38, {fh(1.0/(2048*640))}, s38
s_cmp_eq_u32 s28, 320
s_cselect_b32 s38, {fh(1.0/(2048*640))}, s38
s_mov_b32 s39, s38""")
    for nt in range(2):
        a(f"v_add_f32 v16, {fh(16.0*nt)}, v8\nv_mul_f32 v16, {fh(1/2048)}, v16\nv_mul_f32 v10, v12, v16")
        for i in range(4):
            k = 4*nt+i
            a(f"v_cos_f32 v{72+k}, v10\nv_sin_f32 v{80+k}, v10")
            if i < 3: a("v_add_f32 v10, v10, v16")
    for k in range(8): a(f"v_pk_mul_f32 {P(72+2*k)}, s[38:39], {P(72+2*k)}")
    a(f"""v_xor_b32 v10, v2, v1
v_lshlrev_b32 v10, 4, v10
v_lshl_add_u32 v10, v1, 8, v10
v_add_u32 v10, s48, v10
v_xor_b32 v11, 64, v10
v_xor_b32 v12, 128, v10
v_xor_b32 v13, 192, v10
v_lshlrev_b32 v7, 4, v9
v_add_u32 v7, s48, v7
s_lshl_b32 s24, s27, 10
v_add_u32 v6, s24, v7
v_lshlrev_b32 v8, 4, v9
v_lshl_add_u32 v8, v3, 11, v8
s_add_u32 s24, s24, s48
s_lshl_b32 s25, s40, 13
s_add_u32 s25, s25, {WP}
s_mov_b32 m0, s24""")
    ST('b')
    gather2(a, 'KM_gx', f"buffer_load_dwordx4 {Q(24)}, v4, s[12:15], s21 offen sc1", f"buffer_load_dwordx4 {Q(28)}, v4, s[12:15], s23 offen sc1", 24, 28, 32, pre=('gx1' in OPT))
    a(f"""ds_write_b128 v6, {Q(24)}
ds_write_b128 v6, {Q(28)} offset:4096
s_add_u32 s21, s29, {YF}
s_add_u32 s23, s21, 1024
s_waitcnt lgkmcnt(0)""")
    bar(a, 'W', 'k2a')
    ST('b')
    a(f"""buffer_load_dwordx4 v[48:51], v5, s[12:15], s25 offen sc1
buffer_load_dwordx4 v[52:55], v5, s[12:15], s25 offen offset:1024 sc1""")
    D = lambda mt, t: 16+16*mt+4*t
    for t in range(4):
        for mt in range(2): a(f"ds_read_b128 {Q(D(mt,t))}, v{10+t} offset:{4096*mt}")
    def mf(d, A, B, first): a(f"v_mfma_f32_16x16x32_bf16 {Q(d)}, {Q(A)}, {Q(B)}, {'0' if first else Q(d)}")
    a("s_and_b32 s24, s28, 0xffffffbf\ns_cmp_lg_u32 s24, 256\ns_cbranch_scc1 KM_k2gen\ns_waitcnt lgkmcnt(0)\ns_cmp_eq_u32 s28, 256\ns_cbranch_scc1 KM_k2z")
    for f in range(8): a(f"v_mov_b32 v{16+4*f}, v{18+4*f}\nv_mov_b32 v{17+4*f}, v{19+4*f}")
    a("KM_k2z:")
    for f in range(8): a(f"v_mov_b32 v{18+4*f}, 0\nv_mov_b32 v{19+4*f}, 0")
    a("s_nop 1\nKM_k2gen:")
    for t in range(4):
        a(f"s_waitcnt lgkmcnt({6-2*t})")
        for mt in range(2):
            mf(88+8*mt, D(mt,t), M(t)+2, t == 0)
            mf(92+8*mt, D(mt,t), M(t), t == 0)
    def tw_pack(tr, ti, B, swap):
        for blk in range(2):
            for hh in range(2):
                r = 88+8*blk+2*hh; i = r+4; c = tr+4*blk+2*hh; s = ti+4*blk+2*hh; t = 104+4*blk+2*hh
                a(f"""v_pk_mul_f32 {P(t)}, {P(i)}, {P(s)}
v_pk_mul_f32 {P(i)}, {P(i)}, {P(c)}
v_pk_fma_f32 {P(i)}, {P(r)}, {P(s)}, {P(i)}
v_pk_fma_f32 {P(r)}, {P(r)}, {P(c)}, {P(t)} neg_lo:[0,0,1] neg_hi:[0,0,1]""")
        for blk in range(2):
            for hh in range(2):
                r = 88+8*blk+2*hh
                a(f"v_cvt_pk_bf16_f32 v{B+4*blk+hh+(2 if swap else 0)}, v{r}, v{r+1}")
                a(f"v_cvt_pk_bf16_f32 v{B+4*blk+hh+(0 if swap else 2)}, v{r+4}, v{r+5}")
    tw_pack(56, 64, 16, False)
    for y in range(2):
        for x in range(2):
            mf(88+8*x, N(x,y)+2, 16+4*y, y == 0)
            mf(92+8*x, N(x,y), 16+4*y, y == 0)
    a("s_waitcnt vmcnt(0)")
    for k in range(8): a(f"v_lshlrev_b32 v{32+k}, 16, v{48+k}\nv_and_b32 v{40+k}, 0xffff0000, v{48+k}")
    tw_pack(32, 40, 24, True)
    for y in range(2):
        for x in range(2):
            mf(88+8*x, 24+4*y, N(x,y), y == 0)
            mf(92+8*x, 24+4*y, N(x,y)+2, y == 0)
    tw_pack(72, 80, 16, True)
    a(f"ds_write_b128 v6, {Q(16)} offset:8192\nds_write_b128 v6, {Q(20)} offset:12288\ns_waitcnt lgkmcnt(0)")
    bar(a, 'W', 'k2b')
    for t in range(4):
        for nt in range(2): a(f"ds_read_b128 {Q(D(nt,t))}, v7 offset:{8192+4096*nt+1024*t}")
    for t in range(4):
        a(f"s_waitcnt lgkmcnt({6-2*t})")
        for nt in range(2):
            mf(88+8*nt, M(t), D(nt,t), t == 0)
            mf(92+8*nt, M(t)+2, D(nt,t), t == 0)
    for nt in range(2):
        o = 48+4*nt; s = 88+8*nt
        for k in range(4): a(f"v_cvt_pk_bf16_f32 v{o+k}, v{s+2*k}, v{s+2*k+1}")
        a(f"buffer_store_dwordx4 {Q(o)}, v8, s[12:15], s{21+2*nt} offen sc1")
    ST('b')
    a("s_branch KM_k2done\nKM_k2skip:\ns_barrier\ns_barrier\nKM_k2done:")
    a(f"""v_and_b32 v1, 63, v0
v_and_b32 v3, 31, v0
v_lshlrev_b32 v2, 3, v3
v_bfe_u32 v4, v0, 5, 1
v_lshl_add_u32 v2, v4, 8, v2
v_lshlrev_b32 v3, 2, v3
v_lshl_add_u32 v3, v4, 1, v3
v_and_b32 v5, 15, v0
v_bfe_u32 v6, v0, 4, 2""")
    col_slots(a, 22, 5, 6, 8, 22)
    addr_yf(a)
    a(f"""
s_and_b32 s23, s3, 15
s_lshl_b32 s23, s23, 4
s_lshr_b32 s21, s3, 4
s_lshl_b32 s21, s21, 10
s_add_u32 s23, s23, s21
s_lshr_b32 s21, s20, 1
s_lshl_b32 s21, s21, 11
s_add_u32 s23, s23, s21
s_and_b32 s21, s20, 1
s_lshl_b32 s21, s21, 9
s_add_u32 s23, s23, s21
s_add_u32 s23, s23, {YF}
s_lshl_b32 s21, s20, 3
s_add_u32 s21, s21, s22
s_lshl_b32 s24, s3, 6
s_add_u32 s24, s24, s21
s_mul_i32 s24, s24, 1280
""")
    w5_consts(a, 88, 22, 1.0)
    a(f"""
s_lshl_b32 s27, s22, 4
v_add_u32 v22, s27, v5
v_cvt_f32_u32 v22, v22
v_mul_f32 v22, {fh(1/128)}, v22
v_and_b32 v23, 1, v6
v_cvt_f32_u32 v23, v23
v_mul_f32 v23, 4.0, v23
v_lshrrev_b32 v24, 1, v6
v_cvt_f32_u32 v24, v24
v_mul_f32 v24, {fh(0.25)}, v24
v_fma_f32 v23, v23, v22, v24
v_mul_f32 v24, {fh(5.0)}, v22
v_mul_f32 v27, {fh(64.0)}, v22
v_cmp_eq_u32 vcc, 2, v6
v_cndmask_b32 v27, v23, v27, vcc
""")
    for t in range(4):
        for jj in range(4):
            a(f"""v_cos_f32 v25, v{27 if (t, jj) == (0, 0) else 23}
v_add_f32 v23, v23, v22
v_cos_f32 v26, v23
v_add_f32 v23, v23, v{24 if jj & 1 else 22}
v_cvt_pk_bf16_f32 v{96+4*t+jj}, v25, v26""")
    a(f"""
v_lshlrev_b32 v14, 5, v5
v_lshl_add_u32 v14, v6, 3, v14
s_lshl_b32 s27, s22, 9
s_add_u32 s27, s27, {TB}
v_add_u32 v14, s27, v14
v_and_b32 v15, 4096, v9
v_add_u32 v15, v15, v14
v_xor_b32 v112, 4096, v15
v_lshlrev_b32 v113, 3, v1
v_add_u32 v113, {TB}, v113
v_and_b32 v22, 7, v5
v_mul_u32_u24 v22, {ZR}, v22
v_lshl_add_u32 v22, v6, 4, v22
s_lshl_b32 s27, s22, 6
s_add_u32 s27, s27, {ZB}
v_add_u32 v17, s27, v22
v_lshrrev_b32 v22, 3, v5
v_mul_u32_u24 v22, {2*ZC}, v22
v_add_u32 v16, v17, v22
v_lshlrev_b32 v4, 2, v3
s_mul_i32 s27, s22, {ZR}
s_add_u32 s27, s27, {ZB}
v_add_u32 v7, s27, v4
v_add_u32 v4, {PB}, v4
v_and_b32 v22, 0x80000000, v9
v_xor_b32 v22, v22, v10
v_and_b32 v23, 0x80008000, v9
v_xor_b32 v24, v23, v12
""")
    for j in range(5):
        a(f"ds_read_b64 {P(120+2*j)}, v4 offset:{512*j}\nds_read_b64 {P(140+2*j)}, v4 offset:{5120+512*j}\nds_read_b64 {P(130+2*j)}, v4 offset:{2560+512*j}")
    a("s_waitcnt lgkmcnt(0)")
    ST('c')
    gather2(a, 'KM_gy', f"buffer_load_dwordx4 {Q(28)}, v11, s[12:15], s23 offen sc1", f"buffer_load_dwordx4 {Q(32)}, v13, s[12:15], s23 offen sc1", 28, 32, 36)
    ST('c')
    a(f"""v_cndmask_b32 v32, v32, v34, s[42:43]
v_cndmask_b32 v33, v33, v35, s[42:43]
v_xor_b32 v26, v30, v24
v_xor_b32 v27, v31, v24
v_xor_b32 v30, v30, v12
v_xor_b32 v31, v31, v12
ds_write_b64 v14, {P(32)} offset:8192""")
    for hh in range(2):
        a(f"""v_lshlrev_b32 v{36+2*hh}, 16, v{28+hh}
v_and_b32 v{37+2*hh}, 0xffff0000, v{28+hh}
v_lshlrev_b32 v{40+2*hh}, 16, v{30+hh}
v_and_b32 v{41+2*hh}, 0xffff0000, v{30+hh}
v_lshlrev_b32 v{44+2*hh}, 16, v{28+hh}
v_and_b32 v{45+2*hh}, 0xffff0000, v{28+hh}
v_lshlrev_b32 v{48+2*hh}, 16, v{26+hh}
v_and_b32 v{49+2*hh}, 0xffff0000, v{26+hh}""")
    for i in range(4):
        a(f"v_fmac_f32_dpp v{44+i}, v{36+i}, v22 row_ror:8 {DPP}")
        a(f"v_fmac_f32_dpp v{48+i}, v{40+i}, v10 row_ror:8 {DPP}")
    a(f"""v_cvt_pk_bf16_f32 v52, v44, v45
v_cvt_pk_bf16_f32 v53, v46, v47
v_cvt_pk_bf16_f32 v54, v48, v49
v_cvt_pk_bf16_f32 v55, v50, v51
ds_write_b64 v15, {P(52)}
ds_write_b64 v112, {P(54)}
s_waitcnt lgkmcnt(0)""")
    bar(a, 'W', 'b1')
    for T in range(3):
        for t in range(4):
            for x in range(2): a(f"ds_read_b64_tr_b16 {P(28+16*T+4*t+2*x)}, v113 offset:{4096*T+1024*t+512*x}")
            if T == 1 and t == 3:
                a("s_waitcnt lgkmcnt(8)")
                for tt in range(4): a(f"v_mfma_f32_16x16x32_bf16 {Q(76)}, {Q(96+4*tt)}, {Q(28+4*tt)}, {'0' if tt == 0 else Q(76)}")
    for T in (1, 2):
        a(f"s_waitcnt lgkmcnt({8 if T == 1 else 0})")
        for t in range(4): a(f"v_mfma_f32_16x16x32_bf16 {Q(76+4*T)}, {Q(96+4*t)}, {Q(28+16*T+4*t)}, {'0' if t == 0 else Q(76+4*T)}")
    a(f"ds_write_b128 v16, {Q(76)} offset:{ZC}")
    for j in range(5): a(f"v_lshlrev_b32 v{28+2*j}, 16, v{XR+j}\nv_and_b32 v{29+2*j}, 0xffff0000, v{XR+j}")
    a(f"""ds_write_b128 v16, {Q(80)} offset:{2*ZC}
ds_write_b128 v17, {Q(84)}
s_waitcnt lgkmcnt(0)""")
    bar(a, 'W', 'b2')
    for c in range(5): a(f"ds_read_b64 {P(40+2*c)}, v7 offset:{ZC*c}")
    a("s_waitcnt lgkmcnt(0)")
    bar(a, 'W', 'b3')
    for k in range(2):
        r, im = 42+4*k, 44+4*k; c, s = 88+4*k, 90+4*k; R, I = 50+4*k, 52+4*k
        a(f"""v_pk_mul_f32 {P(R)}, {P(r)}, {P(c)}
v_pk_mul_f32 {P(I)}, {P(r)}, {P(s)}
v_pk_fma_f32 {P(R)}, {P(im)}, {P(s)}, {P(R)} neg_lo:[1,0,0] neg_hi:[1,0,0]
v_pk_fma_f32 {P(I)}, {P(im)}, {P(c)}, {P(I)}""")
    z0,z1r,z1i,z2r,z2i = 40,50,52,54,56
    A,B,Cc,Dd,E = 58,60,62,64,66
    sl = {(3*j) % 5: j for j in range(5)}
    X = lambda d2: P(28+2*sl[d2]); G = lambda d2: P(120+2*sl[d2])
    a(f"""v_pk_add_f32 {P(E)}, {P(z0)}, {P(z1r)}
v_pk_fma_f32 {P(A)}, s[30:31], {P(z1r)}, {P(z0)}
v_pk_fma_f32 {P(B)}, s[32:33], {P(z1r)}, {P(z0)}
v_pk_mul_f32 {P(Cc)}, s[34:35], {P(z1i)}
v_pk_mul_f32 {P(Dd)}, s[36:37], {P(z1i)}
v_pk_add_f32 {P(E)}, {P(E)}, {P(z2r)}
v_pk_fma_f32 {P(A)}, s[32:33], {P(z2r)}, {P(A)}
v_pk_fma_f32 {P(B)}, s[30:31], {P(z2r)}, {P(B)}
v_pk_fma_f32 {P(Cc)}, s[36:37], {P(z2i)}, {P(Cc)}
v_pk_fma_f32 {P(Dd)}, s[34:35], {P(z2i)}, {P(Dd)} neg_lo:[0,1,0] neg_hi:[0,1,0]
v_pk_fma_f32 {X(0)}, {G(0)}, {P(E)}, {X(0)}
v_pk_add_f32 {P(68)}, {P(A)}, {P(Cc)} neg_lo:[0,1] neg_hi:[0,1]
v_pk_add_f32 {P(70)}, {P(A)}, {P(Cc)}
v_pk_add_f32 {P(72)}, {P(B)}, {P(Dd)} neg_lo:[0,1] neg_hi:[0,1]
v_pk_add_f32 {P(74)}, {P(B)}, {P(Dd)}
v_pk_fma_f32 {X(1)}, {G(1)}, {P(68)}, {X(1)}
v_pk_fma_f32 {X(4)}, {G(4)}, {P(70)}, {X(4)}
v_pk_fma_f32 {X(2)}, {G(2)}, {P(72)}, {X(2)}
v_pk_fma_f32 {X(3)}, {G(3)}, {P(74)}, {X(3)}
s_add_u32 s25, s24, {X1}
s_add_u32 s26, s24, {H2F}""")
    for j in range(5): a(f"v_cvt_pk_bf16_f32 v{16+j}, v{28+2*j}, v{29+2*j}")
    a(f"""v_permlane32_swap_b32 v16, v17
v_permlane32_swap_b32 v18, v19
buffer_store_dwordx2 {P(16)}, v2, s[12:15], s25 offen sc1
buffer_store_dwordx2 {P(18)}, v2, s[12:15], s25 offen offset:512 sc1""")
    ln_rows(a, 28, 22)
    a(f"v_bfe_u32 v24, v0, 5, 1\nv_mul_u32_u24 v24, {H2F - X1 - 256}, v24\nv_add_u32 v24, v24, v2")
    for j in range(5): a(f"v_pk_mul_f32 {P(140+2*j)}, {P(140+2*j)}, {P(22)} op_sel_hi:[1,0]")
    for j in range(5): a(f"v_pk_fma_f32 {P(28+2*j)}, {P(28+2*j)}, {P(140+2*j)}, {P(130+2*j)}")
    for j in range(4): a(f"v_cvt_pk_bf16_f32 v{40+j}, v{28+2*j}, v{29+2*j}")
    a(f"""v_cvt_pk_bf16_f32 v21, v36, v37
v_permlane32_swap_b32 v40, v41
v_permlane32_swap_b32 v42, v43
v_permlane32_swap_b32 v20, v21
buffer_store_dwordx2 {P(40)}, v2, s[12:15], s26 offen sc1
buffer_store_dwordx2 {P(42)}, v2, s[12:15], s26 offen offset:512 sc1
buffer_store_dwordx2 {P(20)}, v24, s[12:15], s25 offen offset:1024 sc1""")
    ST('c')
    a(f"""v_mov_b32 v2, v1
s_lshr_b32 s26, s22, 2
s_and_b32 s27, s22, 3
v_lshrrev_b32 v3, 4, v2
v_bfe_u32 v4, v2, 2, 2
v_lshl_add_u32 v4, v3, 3, v4
v_mul_u32_u24 v4, 192, v4
v_and_b32 v5, 3, v2
v_lshl_add_u32 v4, v5, 3, v4
v_and_b32 v5, 1, v3
v_lshlrev_b32 v5, 5, v5
s_mul_i32 s28, s26, 96
v_add_u32 v4, s28, v4
s_cmp_eq_u32 s26, 0
s_cselect_b32 s29, 1, -1
v_mul_lo_u32 v5, v5, s29
v_add_u32 v6, v4, v5
v_sub_u32 v7, v4, v5
v_add_u32 v8, {4*WS_}, v6
v_add_u32 v9, {4*WS_}, v7
v_and_b32 v10, 15, v2
v_lshrrev_b32 v11, 1, v10
v_xor_b32 v11, v11, v3
v_lshlrev_b32 v11, 4, v11
v_lshl_add_u32 v11, v10, 7, v11
s_lshl_b32 s28, s27, 12
s_add_u32 s28, s28, {HB}
v_add_u32 v11, s28, v11
v_xor_b32 v12, 64, v11
s_load_dwordx2 s[60:61], s[0:1], 72
s_waitcnt vmcnt(0)""")
    ST('c')
    bar(a, 'W', 'd1')
    ACC = lambda mat, i, nt: 16 + 4*(6*nt + 3*mat + i)
    FA = lambda buf, mat, i: 64 + 32*buf + 4*(3*mat+i)
    FB = lambda buf, nt: 88 + 32*buf + 4*nt
    def reads(s):
        L = []; sl = s % 8
        for nt in range(2): L.append(f"ds_read_b128 {Q(FB(s & 1, nt))}, v{11 + (s & 1)} offset:{((s//2) % 4)*HS + 2048*nt}")
        for mat in range(2):
            for i in range(3):
                for x in range(2):
                    L.append(f"ds_read_b64_tr_b16 {P(FA(s & 1, mat, i) + 2*x)}, v{6 + (i & 1) + 2*(sl//4)} offset:{(sl % 4)*WS_ + mat*6144 + 4*x*192 + 32*i}")
        return L
    bar(a, 'W', 'B0')
    ST('d')
    for l in reads(0): a(l)
    for s in range(NST):
        a("s_waitcnt lgkmcnt(0)")
        if s & 1: bar(a, 'W', f'B{(s+1)//2}')
        R = reads(s+1) if s+1 < NST else []
        k = 0
        for mat in range(2):
            for i in range(3):
                for nt in range(2):
                    c = ACC(mat, i, nt)
                    a(f"v_mfma_f32_16x16x32_bf16 {Q(c)}, {Q(FA(s & 1, mat, i))}, {Q(FB(s & 1, nt))}, {'0' if s == 0 else Q(c)}")
                    for l in R[2*k:2*k+2]: a(l)
                    k += 1
    ST('d')
    kk = 2*0.7978845608028654*math.log2(math.e)
    a(f"""s_mov_b32 s30, {fh(-kk*0.044715)}
s_mov_b32 s31, {fh(-kk*0.044715)}
v_mov_b32 v10, {fh(-kk)}
v_mov_b32 v11, {fh(-kk)}
s_lshl_b32 s29, s50, 3
s_lshl_b32 s28, s27, 1
s_add_u32 s29, s29, s28
s_mul_i32 s29, s29, 49152
s_mul_i32 s28, s51, 3072
s_add_u32 s29, s29, s28
s_mul_i32 s28, s26, 1536
s_add_u32 s29, s29, s28
s_add_u32 s29, s29, {HIDF}
v_bfe_u32 v7, v2, 4, 1
v_mul_u32_u24 v7, 49152, v7
v_lshrrev_b32 v8, 5, v2
v_lshl_add_u32 v7, v8, 8, v7
v_and_b32 v8, 15, v2
v_lshl_add_u32 v7, v8, 4, v7""")
    for nt in range(2):
        Gt = ACC(0, 0, nt); U = ACC(1, 0, nt); T = 64 + 16*nt
        for i in range(0, 12, 2): a(f"v_pk_mul_f32 {P(T+i)}, {P(Gt+i)}, {P(Gt+i)}")
        for i in range(0, 12, 2): a(f"v_pk_fma_f32 {P(T+i)}, {P(T+i)}, s[30:31], {P(10)}")
        for i in range(0, 12, 2): a(f"v_pk_mul_f32 {P(T+i)}, {P(T+i)}, {P(Gt+i)}")
        for i in range(0, 12, 2): a(f"v_exp_f32 v{T+i}, v{T+i}\nv_exp_f32 v{T+i+1}, v{T+i+1}\nv_pk_mul_f32 {P(Gt+i)}, {P(Gt+i)}, {P(U+i)}")
        for i in range(0, 12, 2): a(f"v_pk_add_f32 {P(T+i)}, {P(T+i)}, 1.0 op_sel_hi:[1,0]")
        for i in range(12): a(f"v_rcp_f32 v{T+i}, v{T+i}")
        for i in range(0, 12, 2): a(f"v_pk_mul_f32 {P(Gt+i)}, {P(Gt+i)}, {P(T+i)}")
        for i in range(3):
            O = 96 + 4*i + 2*nt
            a(f"v_cvt_pk_bf16_f32 v{O}, v{Gt+4*i}, v{Gt+4*i+1}\nv_cvt_pk_bf16_f32 v{O+1}, v{Gt+4*i+2}, v{Gt+4*i+3}")
    for i in range(3):
        O = 96 + 4*i
        a(f"""v_permlane16_swap_b32 v{O}, v{O+2}
v_permlane16_swap_b32 v{O+1}, v{O+3}
buffer_store_dwordx4 {Q(O)}, v7, s[12:15], s29 offen offset:{512*i} sc1""")
    ST('d')
    a(f"""s_lshl_b32 s30, s50, 3
s_lshr_b32 s28, s51, 3
s_lshl_b32 s28, s28, 2
s_add_u32 s30, s30, s28
s_add_u32 s30, s30, s27
s_mul_i32 s29, s30, 49152
s_lshl_b32 s28, s26, 10
s_add_u32 s29, s29, s28
s_add_u32 s29, s29, {HIDF}
s_lshl_b32 s30, s30, 4
s_and_b32 s24, s51, 7
v_lshrrev_b32 v3, 2, v2
v_mul_u32_u24 v3, 160, v3
v_and_b32 v4, 3, v2
v_lshl_add_u32 v3, v4, 3, v3
s_mul_i32 s28, s26, 5120
v_add_u32 v3, s28, v3
v_add_u32 v4, {6*DW}, v3
v_add_u32 v5, {12*DW}, v3
v_lshlrev_b32 v6, 4, v2
v_and_b32 v12, 15, v2
v_lshrrev_b32 v13, 4, v2
v_mul_u32_u24 v8, 1280, v12
v_lshl_add_u32 v8, v13, 3, v8
s_mul_i32 s23, s30, 1280
s_mul_i32 s25, s24, 160
s_add_u32 s23, s23, s25
s_add_u32 s23, s23, {X1}
v_lshlrev_b32 v15, 4, v13
s_lshl_b32 s28, s25, 1
s_add_u32 s28, s28, 12800
s_lshl_b32 s21, s26, 6
s_add_u32 s23, s23, s21
s_lshl_b32 s21, s26, 7
s_add_u32 s28, s28, s21
s_waitcnt vmcnt(0)""")
    ST('d')
    a("s_mov_b32 s41, s29")
    srd(a, 16, 60, 2048*1280)
    AC2 = lambda mt: 16 + 4*mt
    FA2 = lambda buf, mt: 36 + 20*buf + 4*mt
    NB = 10
    FB2 = lambda s: 76 + 4*(s % NB)
    def reads2(s):
        p = WPOS(s)
        return [f"ds_read_b64_tr_b16 {P(FA2(s & 1, mt) + 2*x)}, v{3+p//6} offset:{(p % 6)*DW + x*2560 + 32*mt}" for mt in range(5) for x in range(2)]
    def ldb(s):
        a(f"buffer_load_dwordx4 {Q(FB2(s))}, v6, s[12:15], s29 offen offset:{2048*(s & 1)} sc1")
        if s & 1: a("s_add_u32 s29, s29, 4096")
    bar(a, 'W', 'C0')
    ST('d')
    nb = 0; nx = 0
    for s in range(NB-1): ldb(s); nb += 1
    for l in reads2(0): a(l)
    for s in range(NS2):
        f = FB2(s)
        a(f"""s_waitcnt vmcnt({nb-s-1+nx})
v_max3_u32 v9, v{f}, v{f+1}, v{f+2}
v_max_u32 v9, v9, v{f+3}
v_cmp_eq_u32 vcc, -1, v9
s_waitcnt lgkmcnt(0)
s_cmp_lg_u64 vcc, 0
s_cbranch_scc1 KM_hs{s}
KM_hr{s}:""")
        if s in CB: bar(a, 'W', f'C{s}')
        if nb < NS2: ldb(nb); nb += 1
        elif nx < 6:
            k = nx // 2
            a(f"buffer_load_dwordx2 {P(116+2*k)}, v8, s[12:15], s23 offen offset:{32*k} sc1")
            a(f"buffer_load_dwordx4 {Q(128+4*k)}, v15, s[12:15], s28 offen offset:{64*k} sc1")
            nx += 2
        R = reads2(s+1) if s+1 < NS2 else []
        for mt in range(5):
            c = AC2(mt)
            a(f"v_mfma_f32_16x16x32_bf16 {Q(c)}, {Q(FA2(s & 1, mt))}, {Q(FB2(s))}, {'0' if s == 0 else Q(c)}")
            for l in R[2*mt:2*mt+2]: a(l)
    RB = WPOS(10)*DW
    ST('d')
    a(f"""s_mul_i32 s28, s27, 5120
s_add_u32 s28, s28, {RB}
v_add_u32 v6, s28, v6
s_and_b32 s23, s30, 63
s_lshl_b32 s23, s23, 5
s_lshr_b32 s29, s30, 6
s_add_u32 s23, s23, s29
s_mul_i32 s23, s23, 1280
s_add_u32 s23, s23, s25
v_mul_u32_u24 v8, 40960, v12
v_lshl_add_u32 v8, v13, 3, v8
s_cmp_eq_u32 s26, 0
s_cbranch_scc1 KM_lo""")
    def fin(give, keep, base):
        for mt in give: a(f"ds_write_b128 v6, {Q(AC2(mt))} offset:{1024*mt}")
        a("s_waitcnt vmcnt(0)")
        for mt in keep:
            x = 116+2*(mt-base); r = 76+4*mt
            a(f"v_lshlrev_b32 v{r}, 16, v{x}\nv_and_b32 v{r+1}, 0xffff0000, v{x}\nv_lshlrev_b32 v{r+2}, 16, v{x+1}\nv_and_b32 v{r+3}, 0xffff0000, v{x+1}")
        a("s_waitcnt lgkmcnt(0)\ns_barrier")
        for mt in keep: a(f"ds_read_b128 {Q(36+4*mt)}, v6 offset:{1024*mt}")
        for n, mt in enumerate(keep):
            c = AC2(mt); x = 116+2*(mt-base); g = 128+4*(mt-base); r = 36+4*mt; o = 76+4*mt
            a(f"""s_waitcnt lgkmcnt({len(keep)-1-n})
v_pk_add_f32 {P(c)}, {P(c)}, {P(r)}
v_pk_add_f32 {P(c+2)}, {P(c+2)}, {P(r+2)}
v_pk_fma_f32 {P(o)}, {P(c)}, {P(g)}, {P(o)}
v_pk_fma_f32 {P(o+2)}, {P(c+2)}, {P(g+2)}, {P(o+2)}
v_cvt_pk_bf16_f32 v{x}, v{o}, v{o+1}
v_cvt_pk_bf16_f32 v{x+1}, v{o+2}, v{o+3}
buffer_store_dwordx2 {P(x)}, v8, s[16:19], s23 offen offset:{32*mt}""")
        a("@dump 12\ns_endpgm")
    nst = a.st.n
    fin([0,1,2], [3,4], 2)
    a.st.n = nst
    a("KM_lo:")
    fin([3,4], [0,1,2], 0)
    a.st.n = 1
    for s in range(NS2):
        f = FB2(s)
        a(f"""KM_hs{s}:
s_add_u32 s40, s41, {2048*s}
s_mov_b32 s46, 0x8000
KM_hl{s}:
s_mov_b64 exec, vcc
s_sleep 2
buffer_load_dwordx4 {Q(f)}, v6, s[12:15], s40 offen sc1
s_waitcnt vmcnt(0)
v_max3_u32 v9, v{f}, v{f+1}, v{f+2}
v_max_u32 v9, v9, v{f+3}
v_cmp_eq_u32 vcc, -1, v9
s_mov_b64 exec, -1
s_sub_u32 s46, s46, 1
s_cmp_eq_u32 s46, 0
s_cbranch_scc1 KM_hr{s}
s_cmp_lg_u64 vcc, 0
s_cbranch_scc1 KM_hl{s}
s_branch KM_hr{s}""")
    a(f"""KM_prod:
s_sub_u32 s47, s22, 8
s_waitcnt lgkmcnt(0)""")
    if OPT.get('wb'): a(f"s_add_u32 s6, s6, {OPT['wb']}\ns_addc_u32 s7, s7, 0")
    srd(a, 12, 6, WS_SIZE)
    srd(a, 16, 60, 256)
    a(f"""v_mov_b32 v60, 0
s_load_dwordx4 s[56:59], s[0:1], 32
s_load_dwordx2 s[4:5], s[0:1], 48
v_lshlrev_b32 v59, 4, v1
s_sub_u32 s53, s2, 80
s_xor_b32 s54, s47, 2
s_mul_i32 s54, s54, 192
s_sub_u32 s21, s2, 64
s_add_u32 s54, s54, s21
s_cmp_lt_u32 s2, 64
s_cselect_b32 s54, 999, s54
s_cmp_ge_u32 s47, 2
s_cbranch_scc1 KM_p_wp
s_cmp_lg_u32 s47, 0
s_cbranch_scc1 KM_p_no0
s_cmp_lg_u32 s2, 0
s_cbranch_scc1 KM_p_nn
s_memrealtime s[38:39]
s_waitcnt lgkmcnt(0)
s_or_b32 s38, s38, 1
v_mov_b32 v61, s38
s_mov_b64 exec, 1
buffer_store_dword v61, v60, s[16:19], 0 offen sc1
s_mov_b64 exec, -1
KM_p_nn:
KM_p_nc:""")
    spin(a, 'KM_pn', "buffer_load_dword v61, v60, s[16:19], 0 offen sc1", "v_cmp_eq_u32 vcc, 0, v61")
    a(f"""v_mov_b32 v62, {NON}
ds_write_b32 v62, v61
KM_p_no0:
s_waitcnt lgkmcnt(0)""")
    bar(a, 'P', 'g1')
    a(f"""v_mov_b32 v62, {NON}
ds_read_b32 v61, v62
s_mul_i32 s23, s47, 5120
s_add_u32 s23, s23, {MODG}
s_add_u32 s21, s23, 4096
v_lshlrev_b32 v62, 4, v1
s_mul_i32 s24, s47, 2560
s_add_u32 s24, s24, {PB1}
v_lshlrev_b32 v63, 3, v1
v_add_u32 v63, s24, v63
s_lshl_b32 s25, s2, 7
s_add_u32 s25, s25, {GFL}
s_lshl_b32 s26, s47, 14
s_add_u32 s26, s26, {GFL}
s_add_u32 s27, s26, 8192
v_lshlrev_b32 v58, 7, v1
s_waitcnt lgkmcnt(0)
s_cmp_lg_u32 s47, 0
s_cbranch_scc1 KM_p_nf
s_mov_b64 exec, 1
buffer_store_dword v61, v60, s[12:15], s25 offen sc1
s_mov_b64 exec, -1
KM_p_nf:""")
    ld = "\n".join([f"buffer_load_dwordx4 {Q(8+4*q)}, v62, s[12:15], {'s23' if q < 4 else 's21'} offen offset:{1024*(q % 4)} sc1" for q in range(5)])
    cm = "v_cmp_ne_u32 vcc, v9, v61\n" + "\n".join([f"v_cmp_ne_u32 s[38:39], v{r}, v61\ns_or_b64 vcc, vcc, s[38:39]" for r in range(11, 28, 2)])
    spin(a, 'KM_pg', ld, cm)
    for q in range(5): a(f"v_mov_b32 v{9+4*q}, v{10+4*q}\nds_write_b64 v63, {P(8+4*q)} offset:{512*q}")
    a("s_waitcnt lgkmcnt(0)")
    ST('p')
    a("s_barrier")
    spin(a, 'KM_A_p', "buffer_load_dword v11, v58, s[12:15], s26 offen sc1\nbuffer_load_dword v12, v58, s[12:15], s27 offen sc1", "v_cmp_ne_u32 vcc, v11, v61\nv_cmp_ne_u32 s[38:39], v12, v61\ns_or_b64 vcc, vcc, s[38:39]")
    ST('p')
    a("s_branch KM_p_ag2")
    a(f"""KM_p_wp:
s_sub_u32 s21, s47, 2""")
    task_ids(a, 21)
    a(f"""s_cmp_gt_u32 s28, 320
s_cbranch_scc1 KM_p_nyf
s_lshl_b32 s28, s28, 13
s_add_u32 s28, s28, {YF}
s_add_u32 s29, s28, 4096
v_mov_b32 v64, -1
v_mov_b32 v65, -1
v_mov_b32 v66, -1
v_mov_b32 v67, -1""")
    for q in range(8): a(f"buffer_store_dwordx4 {Q(64)}, v59, s[12:15], {'s28' if q < 4 else 's29'} offen offset:{1024*(q % 4)} sc1")
    a(f"""KM_p_nyf:
s_mul_i32 s21, s21, 176
s_add_u32 s21, s21, s53
s_cmp_lt_u32 s2, 80
s_cbranch_scc1 KM_p_nowp""")
    TOUCH = f"""s_mov_b64 s[44:45], exec
s_mov_b64 exec, -1
s_waitcnt lgkmcnt(0)
s_cmp_eq_u32 s47, 2
s_cselect_b32 s16, s56, s58
s_cselect_b32 s17, s57, s59
s_mov_b32 s18, {640*3072}
s_mov_b32 s19, 0x00020000
s_mul_i32 s40, s2, 7680
v_and_b32 v84, 63, v0
v_min_u32 v84, 59, v84
v_lshlrev_b32 v84, 7, v84
buffer_load_dword v85, v84, s[16:19], s40 offen
s_mov_b64 exec, s[44:45]"""
    st_save = gen.STAMPS; gen.STAMPS = False
    tmp = Asm2(); tmp.st = a.st
    wprep(tmp, 21, 24, 26, 12, 'sc1')
    gen.STAMPS = st_save
    for ins in tmp.ins:
        if ins.kind == 'nop': continue
        if ins.text.strip() == 's_waitcnt vmcnt(0)':
            a("s_barrier\ns_waitcnt vmcnt(0)"); continue
        a(ins.text)
    a("s_branch KM_p_wd\nKM_p_nowp:\ns_barrier\nKM_p_wd:\nv_and_b32 v2, 63, v0\ns_waitcnt lgkmcnt(0)")
    bar(a, 'P', 'g2')
    a("KM_p_ag2:")
    a(f"""v_mov_b32 v62, {NON}
ds_read_b32 v61, v62
v_and_b32 v2, 63, v0
s_waitcnt vmcnt(0) lgkmcnt(0)
s_cmp_lt_u32 s47, 2
s_cselect_b32 s8, s56, s58
s_cselect_b32 s9, s57, s59
s_mov_b32 s10, {640*3072}
s_mov_b32 s11, 0x00020000""")
    bar(a, 'P', 'k1a')
    a("""s_or_b32 s23, s2, s47
s_cmp_lg_u32 s23, 0
s_cbranch_scc1 KM_p_nr
s_mov_b64 exec, 1
buffer_store_dword v60, v60, s[16:19], 0 offen sc1
s_mov_b64 exec, -1
KM_p_nr:""")
    srd(a, 16, 4, 1536*1280)
    a(f"""s_cmp_ge_u32 s54, 384
s_cbranch_scc1 KM_p_nwd
s_lshr_b32 s24, s54, 3
s_and_b32 s25, s54, 7
s_mul_i32 s55, s25, {1536*160}
s_mul_i32 s21, s24, 5120
s_add_u32 s55, s55, s21
s_add_u32 s55, s55, {WDT}
s_mul_i32 s24, s24, {32*1280}
s_mul_i32 s25, s25, 160
s_add_u32 s24, s24, s25""")
    for q in range(5):
        a(f"""v_add_u32 v12, {64*q}, v2
v_mul_u32_u24 v14, 52429, v12
v_lshrrev_b32 v14, 19, v14
v_mul_u32_u24 v15, 10, v14
v_sub_u32 v15, v12, v15
v_and_b32 v36, 3, v14
v_bfe_u32 v37, v14, 2, 2
v_lshl_add_u32 v36, v37, 3, v36
v_lshrrev_b32 v37, 4, v14
v_lshl_add_u32 v36, v37, 2, v36
v_mul_u32_u24 v36, 1280, v36
v_lshl_add_u32 v36, v15, 4, v36
buffer_load_dwordx4 {Q(64+4*q)}, v36, s[16:19], s24 offen""")
    a("KM_p_nwd:")
    def touch():
        a("s_cmp_lt_u32 s47, 2\ns_cbranch_scc1 KM_p_nt")
        a(TOUCH)
        a("KM_p_nt:")
    if OPT.get('tp', 'k1a') == 'k1a': touch()
    for q in range(3):
        a(f"""v_add_u32 v10, {64*q}, v2
v_mul_u32_u24 v11, 43691, v10
v_lshrrev_b32 v11, 19, v11
v_mul_u32_u24 v12, 12, v11
v_sub_u32 v12, v10, v12
v_lshrrev_b32 v13, 2, v11
v_and_b32 v13, 2, v13
v_xor_b32 v12, v12, v13
v_mul_u32_u24 v11, 3072, v11
v_lshl_add_u32 v11, v12, 4, v11
v_subrev_u32 v{50+q}, {1024*q}, v11""")
    for q in range(4):
        a(f"""v_lshrrev_b32 v10, 4, v2
v_add_u32 v10, {4*q}, v10
v_xor_b32 v10, v10, v2
v_and_b32 v10, 7, v10
v_lshrrev_b32 v11, 3, v2
v_mul_u32_u24 v11, 1280, v11
v_lshl_add_u32 v11, v10, 4, v11
v_add_u32 v{53+q}, {q*(10240-1024)}, v11""")
    a(f"""
s_and_b32 s26, s47, 1
s_mul_i32 s27, s26, {16*3072}
s_mul_i32 s28, s51, 192
s_add_u32 s27, s27, s28
s_mul_i32 s28, s47, 3072
s_lshl_b32 s29, s50, 2
s_add_u32 s29, s29, s47
s_mul_i32 s29, s29, 40960
s_add_u32 s29, s29, {H2F}
s_lshl_b32 s30, s47, 12
v_and_b32 v58, 15, v2
v_lshlrev_b32 v58, 7, v58
v_and_b32 v57, 3, v2
v_lshlrev_b32 v57, 7, v57
v_lshlrev_b32 v59, 4, v2
v_lshlrev_b32 v63, 7, v2""")
    def iw(s):
        a(f"s_add_u32 m0, s28, {(s % 8)*WS_}")
        for q in range(3): a(f"buffer_load_dwordx4 v{50+q}, s[8:11], s27 offen offset:{1024*q} sc1 lds")
        a(f"s_add_u32 s27, s27, {32*3072}")
    def ih(d):
        a(f"s_add_u32 m0, s30, {HB + (d % 4)*HS}")
        for q in range(4): a(f"buffer_load_dwordx4 v{53+q}, s[12:15], s33 offen offset:{1024*q} sc1 lds")
        a("s_add_u32 s33, s33, 128")
    bar(a, 'P', 'k2a')
    a("s_cmp_ge_u32 s54, 384\ns_cbranch_scc1 KM_p_nwd2\ns_add_u32 s54, s55, 4096\ns_waitcnt vmcnt(0)")
    for q in range(5): a(f"buffer_store_dwordx4 {Q(64+4*q)}, v59, s[12:15], {'s55' if q < 4 else 's54'} offen offset:{1024*(q % 4)} sc1")
    a("KM_p_nwd2:")
    a(f"""s_lshl_b32 s23, s47, 11
s_add_u32 m0, s23, {PB}
s_add_u32 s23, s23, 5120
buffer_load_dwordx4 v59, s[12:15], s23 offen sc1 lds
buffer_load_dwordx4 v59, s[12:15], s23 offen offset:1024 sc1 lds""")
    for s in range(0, 4): iw(s)
    a("s_waitcnt vmcnt(12)")
    bar(a, 'P', 'k2b')
    if OPT.get('tp', 'k1a') == 'k2b': touch()
    a(f"""s_lshl_b32 s23, s50, 3
s_lshl_b32 s24, s47, 1
s_add_u32 s23, s23, s24
s_mul_i32 s23, s23, 49152
s_mul_i32 s24, s51, 3072
s_add_u32 s23, s23, s24
s_add_u32 s23, s23, {HIDF}
s_add_u32 s24, s23, 49152
v_mov_b32 v88, -1
v_mov_b32 v89, -1
v_mov_b32 v90, -1
v_mov_b32 v91, -1""")
    def hpre():
        for q in range(6): a(f"buffer_store_dwordx4 {Q(88)}, v59, s[12:15], {'s23' if q < 3 else 's24'} offen offset:{1024*(q % 3)} sc1")
    if OPT.get('hp', 'b1') == 'k2b': hpre()
    if OPT.get('wp', 'b1') == 'k2b':
        for s in range(4, 8): iw(s)
    bar(a, 'P', 'b1')
    if OPT.get('tp', 'k1a') == 'b1': touch()
    if OPT.get('hp', 'b1') == 'b1': hpre()
    if OPT.get('wp', 'b1') == 'b1':
        for s in range(4, 8): iw(s)
    bar(a, 'P', 'b2')
    bar(a, 'P', 'b3')
    if OPT.get('hp', 'b1') == 'b3': hpre()
    if OPT.get('wp', 'b1') == 'b3':
        for s in range(4, 8): iw(s)
    a(f"""s_lshl_b32 s48, s50, 4
s_add_u32 s48, s48, s51
s_lshl_b32 s48, s48, 7
s_add_u32 s48, s48, {FLG}
s_lshl_b32 s23, s50, 2
s_add_u32 s23, s23, s47
s_lshl_b32 s23, s23, 9
s_add_u32 s23, s23, {FLG}
s_and_b32 s24, s51, 7
s_mul_i32 s31, s47, 2560
s_mul_i32 s32, s24, {1536*160}
s_add_u32 s32, s32, s31
s_add_u32 s32, s32, {WDT}
s_waitcnt vmcnt(0)""")
    bar(a, 'P', 'd1')
    a(f"""s_cmp_lg_u32 s47, 0
s_cbranch_scc1 KM_na1
s_mov_b64 exec, 1
buffer_store_dword v61, v60, s[12:15], s48 offen sc1
s_mov_b64 exec, -1
KM_na1:""")
    cnt = []
    def iw2(s):
        a(f"""s_add_u32 m0, s31, {WPOS(s)*DW}
buffer_load_dwordx4 v59, s[12:15], s32 offen sc1 lds
buffer_load_dwordx4 v59, s[12:15], s32 offen offset:1024 sc1 lds
s_mov_b32 exec_hi, 0
buffer_load_dwordx4 v59, s[12:15], s32 offen offset:2048 sc1 lds
s_mov_b32 exec_hi, -1
s_add_u32 s32, s32, 10240""")
    def grp(d):
        ih(d); n = 4
        if d >= 4:
            iw(2*d); iw(2*d+1); n += 6
        cnt.append(n)
    a(f"v_add_u32 v62, s30, v59\nv_add_u32 v62, {HB}, v62")
    def hl(d, q): return f"buffer_load_dwordx4 {Q(96+16*d+4*q)}, v{53+q}, s[12:15], s29 offen offset:{1024*q+128*d} sc1"
    for d in range(4):
        for q in range(4): a(hl(d, q))
    nw2 = 0
    for d in range(10):
        if d < 4:
            R = 96+16*d
            a(f"s_mov_b32 s46, 0x8000\ns_waitcnt vmcnt({4*(3-d)+sum(cnt)})\ns_branch KM_hc{d}\nKM_hq{d}:\ns_sleep 2")
            for q in range(4): a(hl(d, q))
            a(f"s_waitcnt vmcnt(0)\nKM_hc{d}:")
            a(f"v_max3_u32 v12, v{R}, v{R+1}, v{R+2}")
            for k in range(3, 15, 2): a(f"v_max3_u32 v12, v12, v{R+k}, v{R+k+1}")
            a(f"""v_max_u32 v12, v12, v{R+15}
v_cmp_eq_u32 vcc, -1, v12
s_nop 1
s_and_b64 exec, exec, vcc
s_cbranch_scc0 KM_ho{d}
s_sub_u32 s46, s46, 1
s_cmp_lg_u32 s46, 0
s_cbranch_scc1 KM_hq{d}
KM_ho{d}:
s_mov_b64 exec, -1""")
            for q in range(4): a(f"ds_write_b128 v62, {Q(R+4*q)} offset:{d*HS+1024*q}")
            a("s_waitcnt lgkmcnt(0)")
            if d == 0: ST('p')
        else:
            a(f"s_waitcnt vmcnt({sum(cnt[d-3:])})")
        bar(a, 'P', f'B{d}')
        if d == 1:
            spin(a, 'KM_p1', "buffer_load_dword v11, v57, s[12:15], s23 offen sc1", "v_cmp_ne_u32 vcc, v11, v61")
            a("s_add_u32 s33, s29, 512")
        if d >= 1 and d+3 < 10: grp(d+3)
        if d >= 7:
            for _ in range(EARLY[d]): iw2(nw2); nw2 += 1
            cnt.append(3*EARLY[d])
    bar(a, 'P', 'B10')
    while nw2 < NWD: iw2(nw2); nw2 += 1
    a("s_waitcnt vmcnt(0)")
    ST('p')
    bar(a, 'P', 'C0')
    pend = []
    for s in CB:
        need = [t for t in pend if t <= NEXTCB[s]]
        a(f"s_waitcnt vmcnt({3*(len(pend)-len(need))})")
        bar(a, 'P', f'C{s}')
        pend = [t for t in pend if t not in need]
        while nw2 < NS2 and nw2 - NWD <= s:
            iw2(nw2); pend.append(nw2); nw2 += 1
    a("@dump 12\nKM_end:\ns_endpgm")
    assert bar.seq['W'] == bar.seq['P'], (bar.seq['W'], bar.seq['P'])
    return kd_block(NAME, 168, 100)
if __name__ == '__main__':
    OPT = {}; out = 'mega.s'
    for x in sys.argv[1:]:
        if x.endswith('.s'): out = x
        elif x.startswith('st='): gen.STAMPS = True; OPT['st'] = x[3:]
        elif x.startswith('slp'): gen.SLP = int(x[3:])
        elif x.startswith('bk'): OPT['bk'] = int(x[2:])
        elif x.startswith('tp='): OPT['tp'] = x[3:]
        elif x.startswith('hp='): OPT['hp'] = x[3:]
        elif x.startswith('wb='): OPT['wb'] = int(x[3:]) << 20
        elif x.startswith('wp='): OPT['wp'] = x[3:]
        else: OPT[x] = 1
    a = Asm2()
    kd = km(a, OPT)
    hdr = open('adaLN_cond__spectral_gfnet__glu_gated_geglu__prompt.s.ref').read().split('\n')[:13]
    s = '\n'.join(hdr) + '\n; @launch grid=(256,1,1) block=(768,1,1) lds=163840\n'
    s += '.amdgcn_target "amdgcn-amd-amdhsa--gfx950"\n.text\n' + a.text() + '.section .rodata,"a"\n' + kd
    open(out, 'w').write(s)
```

```python
import sys, math
sys.path.insert(0,'work')
import gen
from gen import *
NAME = 'adaLN_cond__spectral_gfnet__glu_gated_geglu__prompt_kernel'
MODG = 0x4000
GFL = 0x20000
CNT = 0x8000
class Bar:
    def __init__(self): self.seq = {}
    def __call__(self, a, role, name):
        self.seq.setdefault(role, []).append(name); a("s_barrier")
def spin(a, name, load, cmp):
    a(f"s_mov_b32 s46, 0x8000\n{name}:")
    a(load); a("s_waitcnt vmcnt(0)"); a(cmp)
    a(f"""s_nop 1
s_cmp_eq_u64 vcc, 0
s_cbranch_scc1 {name}_ok
s_sleep {gen.SLP}
s_sub_u32 s46, s46, 1
s_cmp_lg_u32 s46, 0
s_cbranch_scc1 {name}
{name}_ok:""")
def addr_xf(a):
    a(f"""s_lshl_b32 s40, s22, 5
v_lshrrev_b32 v22, 1, v6
v_lshl_add_u32 v22, v22, 4, v5
v_add_u32 v22, s40, v22
v_add_u32 v23, 256, v8
v_and_b32 v24, 1, v6
v_lshlrev_b32 v24, 7, v24""")
    for src_, dst in ((22, 11), (23, 13)):
        a(f"""v_lshrrev_b32 v25, 3, v{src_}
v_lshl_add_u32 v25, v25, 16, v24
v_and_b32 v26, 7, v{src_}
v_lshl_add_u32 v{dst}, v26, 4, v25""")
def addr_yf(a):
    a(f"""s_lshl_b32 s40, s22, 5
v_lshrrev_b32 v22, 1, v6
v_lshl_add_u32 v22, v22, 4, v5
v_add_u32 v22, s40, v22
v_add_u32 v23, 256, v8
v_and_b32 v24, 1, v6
v_lshlrev_b32 v24, 8, v24
v_lshl_add_u32 v11, v22, 13, v24
v_lshl_add_u32 v13, v23, 13, v24""")
def gather2(a, name, ld0, ld1, r0, r1, t, pre=False, dly=0):
    a(f"""s_mov_b32 s46, 0x8000
s_waitcnt vmcnt(0)
s_sleep {dly}
{f's_branch {name}_chk' if pre else ''}
{name}:
{ld0}
{ld1}
{name}_chk:
s_waitcnt vmcnt(0)
v_max3_u32 v{t}, v{r0}, v{r0+1}, v{r0+2}
v_max3_u32 v{t+1}, v{r1}, v{r1+1}, v{r1+2}
v_max3_u32 v{t}, v{t}, v{r0+3}, v{r1+3}
v_max_u32 v{t}, v{t}, v{t+1}
v_cmp_eq_u32 vcc, -1, v{t}
s_nop 1
s_and_b64 exec, exec, vcc
s_cbranch_scc0 {name}_ok
s_sleep 2
s_sub_u32 s46, s46, 1
s_cmp_lg_u32 s46, 0
s_cbranch_scc1 {name}
{name}_ok:
s_mov_b64 exec, -1""")
def task_ids(a, slot):
    a(f"""s_lshl_b32 s28, s{slot}, 2
s_lshr_b32 s29, s2, 6
s_add_u32 s28, s28, s29
s_lshl_b32 s28, s28, 3
s_and_b32 s29, s2, 7
s_add_u32 s28, s28, s29
s_lshl_b32 s41, s28, 16
s_lshl_b32 s28, s28, 3
s_bfe_u32 s29, s2, 0x30003
s_add_u32 s28, s28, s29
s_lshl_b32 s29, s29, 4
s_add_u32 s41, s41, s29""")
def km(a, OPT):
    bar = Bar()
    a(f".globl {NAME}\n.p2align 8\n.type {NAME},@function\n{NAME}:")
    a.st = Stamper(a, 3)
    ST = lambda tag: a("@stamp") if tag in OPT.get('st', '') else None
    R2 = 98304
    GP = R2; NON = R2 + 1536; PB1 = R2 + 2048; Z1 = R2 + 8192; K2B = R2 + 24576
    TB = R2; ZB = R2 + 12288; ZR = 528; ZC = 8*ZR; PB = R2 + 57344
    NST = 20; WS_ = 12288; HB = R2; HS = 16384
    NS2 = 24; DW = 10240; NWD = 16
    ORDER = [5, 6, 13,  7, 8, 14, 15,  0, 1, 9, 10,  2, 3, 4, 11, 12]
    EARLY = {7: 3, 8: 4, 9: 4}
    WPOS = lambda s: ORDER[s % NWD]
    CB = [3, 7, 15, 19]; NEXTCB = {3: 7, 7: 15, 15: 19, 19: 23}
    XR = 114
    a(f"""
s_cmp_ge_u32 s2, 256
s_cbranch_scc1 KM_end
@stamp
s_load_dwordx2 s[4:5], s[0:1], 0
s_load_dwordx2 s[6:7], s[0:1], 88
s_load_dwordx4 s[56:59], s[0:1], 56
s_load_dwordx4 s[24:27], s[0:1], 8
s_load_dwordx2 s[60:61], s[0:1], 80
s_and_b32 s50, s2, 7
s_lshr_b32 s51, s2, 3
s_mul_i32 s52, s50, 10
s_add_u32 s52, s52, s51
s_mul_i32 s21, s50, 20
s_add_u32 s21, s21, s51
s_add_u32 s21, s21, 70
s_cmp_lt_u32 s2, 80
s_cselect_b32 s52, s52, s21
s_lshl_b32 s50, s50, 1
s_lshr_b32 s21, s51, 4
s_add_u32 s50, s50, s21
s_and_b32 s51, s51, 15
v_lshrrev_b32 v4, 6, v0
v_and_b32 v1, 63, v0
v_readfirstlane_b32 s22, v4
s_lshl_b32 s3, s50, 1
s_lshr_b32 s21, s51, 3
s_add_u32 s3, s3, s21
s_and_b32 s20, s51, 7
s_cmp_ge_u32 s22, 8
s_cbranch_scc1 KM_prod
v_and_b32 v3, 31, v0
v_lshlrev_b32 v2, 3, v3
v_bfe_u32 v4, v0, 5, 1
v_lshl_add_u32 v2, v4, 8, v2
v_lshlrev_b32 v3, 2, v3
v_lshl_add_u32 v3, v4, 1, v3
s_lshl_b32 s21, s20, 3
s_add_u32 s21, s21, s22
s_lshl_b32 s21, s21, 5
s_add_u32 s21, s21, s3
s_mul_i32 s21, s21, 1280
s_lshl_b32 s23, s52, 5
v_lshrrev_b32 v144, 1, v0
v_and_b32 v145, 1, v0
v_mul_u32_u24 v146, 7680, v144
v_lshl_add_u32 v146, v145, 4, v146
v_add_u32 v146, s23, v146
v_lshlrev_b32 v147, 1, v144
s_cmp_lt_u32 s2, 240
s_cselect_b32 s49, 5, 0
s_waitcnt lgkmcnt(0)
""")
    if OPT.get('wb'): a(f"s_add_u32 s6, s6, {OPT['wb']}\ns_addc_u32 s7, s7, 0")
    srd(a, 12, 6, WS_SIZE)
    srd(a, 8, 56, 1280)
    srd(a, 16, 58, 640*3840*2)
    NR = 4
    def gloads(tag, cond):
        a(f"s_cmp_ge_u32 s22, s49\ns_cbranch_scc1 KM_nog1{tag}")
        for i in range(NR): a(f"buffer_load_short_d16_hi v{136+i}, v147, s[8:11], 0 offen offset:{320*i}")
        a("s_mov_b32 s23, 0")
        for i in range(NR):
            a(f"buffer_load_dwordx4 {Q(120+4*i)}, v146, s[16:19], s23 offen")
            if i < NR-1: a(f"s_add_u32 s23, s23, {160*7680}")
        a(f"KM_nog1{tag}:")
    srd(a, 24, 4, 2048*1280)
    for k in range(3): a(f"buffer_load_dwordx2 {P(XR+2*k)}, v2, s[24:27], s21 offen offset:{512*k}")
    gloads('a', 0)
    a("v_and_b32 v5, 15, v0\nv_bfe_u32 v6, v0, 4, 2")
    col_slots(a, 22, 5, 6, 8, 22)
    addr_xf(a)
    a(f"""s_lshl_b32 s38, s3, 11
s_lshl_b32 s21, s20, 8
s_add_u32 s38, s38, s21
s_add_u32 s38, s38, {XF}
v_mov_b32 v28, -1
v_mov_b32 v29, -1
v_mov_b32 v30, -1
v_mov_b32 v31, -1
buffer_store_dwordx4 {Q(28)}, v11, s[12:15], s38 offen sc1
s_mov_b32 exec_lo, 0x00ff00ff
s_mov_b32 exec_hi, 0
buffer_store_dwordx4 {Q(28)}, v13, s[12:15], s38 offen sc1
s_mov_b64 exec, -1
s_lshl_b32 s38, s20, 3
s_add_u32 s38, s38, s22
s_lshl_b32 s21, s3, 6
s_add_u32 s38, s38, s21
s_mul_i32 s38, s38, 1280
s_add_u32 s38, s38, {H2F}
buffer_store_dwordx2 {P(28)}, v2, s[12:15], s38 offen sc1""")
    w5_consts(a, 88, 22, -1.0)
    a(f"""
v_cvt_f32_u32 v22, v8
v_mul_f32 v22, {fh(1/128)}, v22
v_cvt_f32_u32 v23, v6
v_mul_f32 v23, {fh(8.0)}, v23
v_and_b32 v24, {fh(0.25)}, v9
v_fma_f32 v23, v23, v22, -v24
v_mul_f32 v24, {fh(25.0)}, v22
""")
    for t in range(4):
        for jj in range(4):
            a(f"""v_cos_f32 v25, v23
v_add_f32 v23, v23, v22
v_cos_f32 v26, v23
v_add_f32 v23, v23, v{24 if jj == 3 else 22}
v_cvt_pk_bf16_f32 v{96+4*t+jj}, v25, v26""")
    a(f"""
v_lshrrev_b32 v22, 3, v3
v_xor_b32 v22, s22, v22
v_lshlrev_b32 v22, 4, v22
v_and_b32 v23, 7, v3
v_lshl_add_u32 v22, v23, 1, v22
s_lshl_b32 s23, s22, 8
s_add_u32 s23, s23, {Z1}
v_add_u32 v14, s23, v22
v_xor_b32 v15, {2048+128}, v14
v_lshlrev_b32 v7, 2, v3
v_add_u32 v7, {PB1}, v7
v_xor_b32 v22, v6, v5
""")
    for t in range(4):
        a(f"""v_xor_b32 v23, {4*t}, v22
v_lshlrev_b32 v23, 4, v23
v_lshl_add_u32 v23, v5, 8, v23
v_add_u32 v{16+t}, {Z1}, v23""")
    r5_sconsts(a)
    a("s_waitcnt vmcnt(11)\ns_cmp_lt_u32 s22, s49\ns_cbranch_scc1 KM_x0\ns_waitcnt vmcnt(3)\nKM_x0:")
    unpack_x(a, XR, 60)
    ln_rows(a, 60, 70)
    a(f"s_cmp_ge_u32 s22, s49\ns_cbranch_scc1 KM_nog2\ns_waitcnt vmcnt({NR+3})")
    C = 136; T = 140
    for i in range(NR): a(f"v_mul_f32 v{T+i}, {fh(-math.log2(math.e))}, v{C+i}")
    for i in range(NR): a(f"v_exp_f32 v{T+i}, v{T+i}")
    for i in range(NR): a(f"v_add_f32 v{T+i}, 1.0, v{T+i}")
    for i in range(NR): a(f"v_rcp_f32 v{T+i}, v{T+i}")
    for i in range(NR): a(f"v_mul_f32 v{C+i}, v{C+i}, v{T+i}")
    for i in range(NR): a(f"v_cvt_pk_bf16_f32 v{C+i}, v{C+i}, v{C+i}")
    for i in range(NR): a(f"v_and_b32 v{48+2*i}, 0xffff0000, v{C+i}")
    a(f"""v_lshrrev_b32 v22, 4, v0
v_lshlrev_b32 v23, 6, v22
v_lshl_add_u32 v23, v145, 5, v23
v_add_u32 v23, {GP}, v23""")
    for i in range(NR):
        a(f"s_waitcnt vmcnt({NR-1-i+3})")
        for j in range(4): a(f"v_lshlrev_b32 v{32+2*j}, 16, v{120+4*i+j}\nv_and_b32 v{33+2*j}, 0xffff0000, v{120+4*i+j}")
        for j in range(4):
            if i == 0: a(f"v_pk_mul_f32 {P(40+2*j)}, {P(32+2*j)}, {P(48)} op_sel_hi:[1,0]")
            else: a(f"v_pk_fma_f32 {P(40+2*j)}, {P(32+2*j)}, {P(48+2*i)}, {P(40+2*j)} op_sel_hi:[1,0,1]")
    for mode in ('quad_perm:[2,3,0,1]', 'row_ror:4', 'row_ror:8'):
        for j in range(8): a(f"v_add_f32_dpp v{40+j}, v{40+j}, v{40+j} {mode} {DPP}")
    a(f"""v_cmp_gt_u32 vcc, 2, v5
s_and_saveexec_b64 s[38:39], vcc
ds_write_b128 v23, {Q(40)}
ds_write_b128 v23, {Q(44)} offset:16
s_mov_b64 exec, s[38:39]
KM_nog2:
s_waitcnt vmcnt(0) lgkmcnt(0)""")
    ST('a')
    bar(a, 'W', 'g1')
    a(f"""v_mov_b32 v22, {NON}
ds_read_b32 v27, v22
s_cmp_lg_u32 s22, 0
s_cbranch_scc1 KM_nog3
s_cmp_eq_u32 s49, 0
s_cbranch_scc1 KM_nog3
v_mul_u32_u24 v23, 320, v6
v_lshl_add_u32 v23, v5, 2, v23
v_add_u32 v23, {GP}, v23
ds_read_b32 v40, v23
ds_read_b32 v41, v23 offset:64
ds_read_b32 v42, v23 offset:128
ds_read_b32 v43, v23 offset:192
ds_read_b32 v44, v23 offset:256
s_sub_u32 s23, s52, 40
s_cmp_lt_u32 s23, 40
s_cselect_b32 s21, 1.0, 0
s_sub_u32 s23, s52, 160
s_cmp_lt_u32 s23, 40
s_cselect_b32 s21, 1.0, s21
s_waitcnt lgkmcnt(0)
v_add_f32 v40, v40, v41
v_add_f32 v42, v42, v43
v_add_f32 v40, v40, v44
v_add_f32 v40, v40, v42
v_mov_b32 v41, v40
v_permlane16_swap_b32 v40, v41
v_add_f32 v40, v40, v41
v_mov_b32 v41, v40
v_permlane32_swap_b32 v40, v41
v_add_f32 v40, v40, v41
v_cvt_pk_bf16_f32 v40, v40, v40
v_and_b32 v40, 0xffff0000, v40
v_add_f32 v40, s21, v40
v_cvt_pk_bf16_f32 v40, v40, v40
v_and_b32 v40, 0xffff0000, v40
v_mov_b32 v41, v27
s_mov_b64 exec, 0xffff
s_cmp_lt_u32 s52, 80
s_cbranch_scc1 KM_gran
s_lshl_b32 s23, s52, 6
v_lshlrev_b32 v23, 2, v1
buffer_store_dword v40, v23, s[12:15], s23 offen sc1
s_branch KM_pub
KM_gran:
s_lshl_b32 s23, s52, 7
s_add_u32 s23, s23, {MODG}
v_lshlrev_b32 v23, 3, v1
buffer_store_dwordx2 {P(40)}, v23, s[12:15], s23 offen sc1
KM_pub:
s_mov_b64 exec, -1
KM_nog3:""")
    M = lambda t: 120+6*t
    N = lambda x, y: 144+6*(2*x+y)
    def gen_(R, cur, step, last, t0=12):
        for hh in range(2):
            a(f"""v_cos_f32 v{t0}, v{cur}
v_sin_f32 v{t0+1}, v{cur}
v_add_f32 v{cur}, v{cur}, v{step}
v_cos_f32 v{t0+2}, v{cur}
v_sin_f32 v{t0+3}, v{cur}
v_add_f32 v{cur}, v{cur}, v{last if hh else step}
v_cvt_pk_bf16_f32 v{R+2+hh}, v{t0}, v{t0+2}
v_cvt_pk_bf16_f32 v{R+hh}, -v{t0+1}, -v{t0+3}
v_cvt_pk_bf16_f32 v{R+4+hh}, v{t0+1}, v{t0+3}""")
    a(f"""v_bfe_u32 v46, v0, 6, 2
v_lshl_add_u32 v46, v46, 4, v5
v_cvt_f32_u32 v46, v46
v_cvt_f32_u32 v47, v6
v_cvt_f32_u32 v48, v5
v_mul_f32 v47, 4.0, v47
v_mul_f32 v49, {fh(1/64)}, v46
v_mul_f32 v50, v47, v49
v_mul_f32 v51, {fh(13.0)}, v49""")
    for t in range(4): gen_(M(t), 50, 49, 51, 52)
    for x in range(2):
        a(f"v_add_f32 v49, {fh(16.0*x)}, v48\nv_mul_f32 v49, {fh(1/32)}, v49\nv_mul_f32 v50, v47, v49\nv_mul_f32 v51, {fh(13.0)}, v49")
        for y in range(2): gen_(N(x, y), 50, 49, 51, 52)
    a(f"""s_lshl_b32 s23, s3, 11
s_lshl_b32 s21, s20, 8
s_add_u32 s23, s23, s21
s_add_u32 s23, s23, {XF}""")
    ST('a')
    bar(a, 'W', 'g2')
    ST('a')
    for j in range(5): a(f"ds_read_b64 {P(40+2*j)}, v7 offset:{2560+512*j}\nds_read_b64 {P(50+2*j)}, v7 offset:{512*j}")
    for j in range(5): a(f"v_pk_mul_f32 {P(28+2*j)}, {P(60+2*j)}, {P(70)} op_sel_hi:[1,0]")
    a("s_waitcnt lgkmcnt(0)")
    for j in range(5): a(f"v_pk_fma_f32 {P(28+2*j)}, {P(28+2*j)}, {P(40+2*j)}, {P(50+2*j)}")
    h = {(3*j) % 5: 28+2*j for j in range(5)}
    t1,t2,t3,t4 = 40,42,44,46; z0,p1,q1,p2,q2 = 48,50,52,54,56
    a(f"""v_pk_add_f32 {P(t1)}, {P(h[1])}, {P(h[4])}
v_pk_add_f32 {P(t2)}, {P(h[2])}, {P(h[3])}
v_pk_add_f32 {P(t3)}, {P(h[1])}, {P(h[4])} neg_lo:[0,1] neg_hi:[0,1]
v_pk_add_f32 {P(t4)}, {P(h[2])}, {P(h[3])} neg_lo:[0,1] neg_hi:[0,1]
v_pk_add_f32 {P(z0)}, {P(h[0])}, {P(t1)}
v_pk_fma_f32 {P(p1)}, s[30:31], {P(t1)}, {P(h[0])}
v_pk_fma_f32 {P(p2)}, s[32:33], {P(t1)}, {P(h[0])}
v_pk_mul_f32 {P(q1)}, s[34:35], {P(t3)}
v_pk_mul_f32 {P(q2)}, s[36:37], {P(t3)}
v_pk_add_f32 {P(z0)}, {P(z0)}, {P(t2)}
v_pk_fma_f32 {P(p1)}, s[32:33], {P(t2)}, {P(p1)}
v_pk_fma_f32 {P(p2)}, s[30:31], {P(t2)}, {P(p2)}
v_pk_fma_f32 {P(q1)}, s[36:37], {P(t4)}, {P(q1)}
v_pk_fma_f32 {P(q2)}, s[34:35], {P(t4)}, {P(q2)} neg_lo:[0,1,0] neg_hi:[0,1,0]
v_cvt_pk_bf16_f32 v22, v{z0}, v{z0+1}
ds_write_b32 v14, v22 offset:8192""")
    for k, (p, q) in enumerate(((p1, q1), (p2, q2))):
        c, s = 88+4*k, 90+4*k; r, im = 28+4*k, 30+4*k
        a(f"""v_pk_mul_f32 {P(r)}, {P(p)}, {P(c)}
v_pk_mul_f32 {P(im)}, {P(p)}, {P(s)}
v_pk_fma_f32 {P(r)}, {P(q)}, {P(s)}, {P(r)}
v_pk_fma_f32 {P(im)}, {P(q)}, {P(c)}, {P(im)} neg_lo:[1,0,0] neg_hi:[1,0,0]
v_cvt_pk_bf16_f32 v{23+2*k}, v{r}, v{r+1}
v_cvt_pk_bf16_f32 v{24+2*k}, v{im}, v{im+1}
ds_write_b32 v{14+k}, v{23+2*k}
ds_write_b32 v{14+k}, v{24+2*k} offset:4096""")
    a("s_waitcnt vmcnt(0) lgkmcnt(0)")
    bar(a, 'W', 'k1a')
    for T in range(3):
        for t in range(4): a(f"ds_read_b128 {Q(28+16*T+4*t)}, v{16+t} offset:{4096*T}")
    n = 12
    for T in range(3):
        for t in range(4):
            n -= 1
            a(f"s_waitcnt lgkmcnt({n})")
            a(f"v_mfma_f32_16x16x32_bf16 {Q(76+4*T)}, {Q(28+16*T+4*t)}, {Q(96+4*t)}, {'0' if t == 0 else Q(76+4*T)}")
    a(f"""v_and_b32 v22, 0x80008000, v9
v_and_b32 v23, v9, v12
v_bfi_b32 v24, v9, v22, v12
v_pk_mul_f32 {P(28)}, {P(76)}, {P(10)} op_sel_hi:[1,0]
v_pk_mul_f32 {P(30)}, {P(78)}, {P(10)} op_sel_hi:[1,0]
v_pk_mul_f32 {P(32)}, {P(80)}, {P(10)} op_sel_hi:[1,0]
v_pk_mul_f32 {P(34)}, {P(82)}, {P(10)} op_sel_hi:[1,0]""")
    for i in range(4):
        a(f"v_add_f32_dpp v{76+i}, v{32+i}, v{76+i} row_ror:8 {DPP}")
        a(f"v_subrev_f32_dpp v{80+i}, v{28+i}, v{80+i} row_ror:8 {DPP}")
    a(f"""v_cvt_pk_bf16_f32 v36, v76, v77
v_cvt_pk_bf16_f32 v37, v78, v79
v_cvt_pk_bf16_f32 v38, v80, v81
v_cvt_pk_bf16_f32 v39, v82, v83
v_cvt_pk_bf16_f32 v44, v84, v85
v_cvt_pk_bf16_f32 v45, v86, v87
v_xor_b32 v36, v36, v23
v_xor_b32 v37, v37, v23
v_xor_b32 v38, v38, v24
v_xor_b32 v39, v39, v24
v_xor_b32 v44, v44, v22
v_xor_b32 v45, v45, v22
v_cndmask_b32 v40, v36, v38, s[42:43]
v_cndmask_b32 v41, v37, v39, s[42:43]
v_cndmask_b32 v42, v38, v36, s[42:43]
v_cndmask_b32 v43, v39, v37, s[42:43]
buffer_store_dwordx4 {Q(40)}, v11, s[12:15], s23 offen sc1
v_mov_b32_dpp v46, v44 row_ror:8 {DPP}
v_mov_b32_dpp v47, v45 row_ror:8 {DPP}
s_mov_b32 exec_lo, 0x00ff00ff
s_mov_b32 exec_hi, 0
buffer_store_dwordx4 {Q(44)}, v13, s[12:15], s23 offen sc1
s_mov_b64 exec, -1""")
    ST('a')
    a(f"""s_lshr_b32 s26, s22, 2
s_and_b32 s27, s22, 3
""")
    task_ids(a, 26)
    a(f"""s_cmp_gt_u32 s28, 320
s_cbranch_scc1 KM_k2skip
s_cmp_eq_u32 s28, 320
s_cselect_b32 s41, {32*65536}, s41
s_lshr_b32 s21, s28, 5
s_lshl_b32 s21, s21, 3
s_and_b32 s23, s28, 7
s_add_u32 s21, s21, s23
s_sub_u32 s23, 128, s21
s_cmp_eq_u32 s21, 0
s_cselect_b32 s23, 64, s23
s_bitcmp1_b32 s28, 3
s_cselect_b32 s21, s23, s21
s_mul_i32 s21, s21, 5
s_bfe_u32 s23, s28, 0x10004
s_lshl_b32 s23, s23, 7
s_add_u32 s21, s21, s23
s_add_u32 s21, s21, 128
s_sub_u32 s23, s21, 640
s_min_u32 s21, s21, s23
s_sub_u32 s23, 640, s21
s_min_u32 s21, s21, s23
s_sub_u32 s23, s28, 256
s_mul_i32 s23, s23, 5
s_cmp_ge_u32 s28, 256
s_cselect_b32 s40, s23, s21
v_and_b32 v1, 15, v0
v_bfe_u32 v2, v0, 4, 2
v_bfe_u32 v3, v0, 6, 2
v_and_b32 v9, 63, v0
v_lshl_add_u32 v4, v3, 2, v2
v_xor_b32 v10, v4, v1
v_lshl_add_u32 v4, v4, 4, v10
v_lshlrev_b32 v4, 7, v4
v_lshrrev_b32 v5, 1, v1
v_and_b32 v6, 1, v1
v_lshl_add_u32 v5, v6, 3, v5
v_lshl_add_u32 v5, v2, 4, v5
v_lshlrev_b32 v5, 4, v5
v_lshl_add_u32 v5, v3, 11, v5
s_add_u32 s21, s41, {XF}
s_add_u32 s23, s21, 32768
s_lshl_b32 s29, s28, 13
s_lshl_b32 s48, s26, 14
s_add_u32 s48, s48, {K2B}
v_lshl_add_u32 v6, v3, 4, v1
v_cvt_f32_u32 v6, v6
v_cvt_f32_u32 v7, v2
v_cvt_f32_u32 v8, v1
v_mul_f32 v7, 4.0, v7
""")
    a(f"v_mul_f32 v16, {fh(-1/2048)}, v6\nv_mul_f32 v10, v7, v16\nv_mul_f32 v11, {fh(13.0)}, v16")
    for k in range(8):
        a(f"v_cos_f32 v{56+k}, v10\nv_sin_f32 v{64+k}, v10")
        if k < 7: a(f"v_add_f32 v10, v10, v{11 if k == 3 else 16}")
    if 'gx1' in OPT:
        for l in (f"buffer_load_dwordx4 {Q(24)}, v4, s[12:15], s21 offen sc1", f"buffer_load_dwordx4 {Q(28)}, v4, s[12:15], s23 offen sc1"): a(l)
    a(f"""s_lshl_b32 s24, s27, 4
v_cvt_f32_u32 v12, s24
v_add_f32 v12, v12, v7
s_mov_b32 s38, {fh(2.0/(2048*640))}
s_cmp_eq_u32 s28, 256
s_cselect_b32 s38, {fh(1.0/(2048*640))}, s38
s_cmp_eq_u32 s28, 320
s_cselect_b32 s38, {fh(1.0/(2048*640))}, s38
s_mov_b32 s39, s38""")
    for nt in range(2):
        a(f"v_add_f32 v16, {fh(16.0*nt)}, v8\nv_mul_f32 v16, {fh(1/2048)}, v16\nv_mul_f32 v10, v12, v16")
        for i in range(4):
            k = 4*nt+i
            a(f"v_cos_f32 v{72+k}, v10\nv_sin_f32 v{80+k}, v10")
            if i < 3: a("v_add_f32 v10, v10, v16")
    for k in range(8): a(f"v_pk_mul_f32 {P(72+2*k)}, s[38:39], {P(72+2*k)}")
    a(f"""v_xor_b32 v10, v2, v1
v_lshlrev_b32 v10, 4, v10
v_lshl_add_u32 v10, v1, 8, v10
v_add_u32 v10, s48, v10
v_xor_b32 v11, 64, v10
v_xor_b32 v12, 128, v10
v_xor_b32 v13, 192, v10
v_lshlrev_b32 v7, 4, v9
v_add_u32 v7, s48, v7
s_lshl_b32 s24, s27, 10
v_add_u32 v6, s24, v7
v_lshlrev_b32 v8, 4, v9
v_lshl_add_u32 v8, v3, 11, v8
s_add_u32 s24, s24, s48
s_lshl_b32 s25, s40, 13
s_add_u32 s25, s25, {WP}
s_mov_b32 m0, s24""")
    ST('b')
    gather2(a, 'KM_gx', f"buffer_load_dwordx4 {Q(24)}, v4, s[12:15], s21 offen sc1", f"buffer_load_dwordx4 {Q(28)}, v4, s[12:15], s23 offen sc1", 24, 28, 32, pre=('gx1' in OPT), dly=OPT.get('dx', 0))
    a(f"""ds_write_b128 v6, {Q(24)}
ds_write_b128 v6, {Q(28)} offset:4096
s_add_u32 s21, s29, {YF}
s_add_u32 s23, s21, 1024
s_waitcnt lgkmcnt(0)""")
    bar(a, 'W', 'k2a')
    ST('b')
    a(f"""buffer_load_dwordx4 v[48:51], v5, s[12:15], s25 offen sc1
buffer_load_dwordx4 v[52:55], v5, s[12:15], s25 offen offset:1024 sc1""")
    D = lambda mt, t: 16+16*mt+4*t
    for t in range(4):
        for mt in range(2): a(f"ds_read_b128 {Q(D(mt,t))}, v{10+t} offset:{4096*mt}")
    def mf(d, A, B, first): a(f"v_mfma_f32_16x16x32_bf16 {Q(d)}, {Q(A)}, {Q(B)}, {'0' if first else Q(d)}")
    a("s_and_b32 s24, s28, 0xffffffbf\ns_cmp_lg_u32 s24, 256\ns_cbranch_scc1 KM_k2gen\ns_waitcnt lgkmcnt(0)\ns_cmp_eq_u32 s28, 256\ns_cbranch_scc1 KM_k2z")
    for f in range(8): a(f"v_mov_b32 v{16+4*f}, v{18+4*f}\nv_mov_b32 v{17+4*f}, v{19+4*f}")
    a("KM_k2z:")
    for f in range(8): a(f"v_mov_b32 v{18+4*f}, 0\nv_mov_b32 v{19+4*f}, 0")
    a("s_nop 1\nKM_k2gen:")
    for t in range(4):
        a(f"s_waitcnt lgkmcnt({6-2*t})")
        for mt in range(2):
            mf(88+8*mt, D(mt,t), M(t)+2, t == 0)
            mf(92+8*mt, D(mt,t), M(t), t == 0)
    def tw_pack(tr, ti, B, swap):
        for blk in range(2):
            for hh in range(2):
                r = 88+8*blk+2*hh; i = r+4; c = tr+4*blk+2*hh; s = ti+4*blk+2*hh; t = 104+4*blk+2*hh
                a(f"""v_pk_mul_f32 {P(t)}, {P(i)}, {P(s)}
v_pk_mul_f32 {P(i)}, {P(i)}, {P(c)}
v_pk_fma_f32 {P(i)}, {P(r)}, {P(s)}, {P(i)}
v_pk_fma_f32 {P(r)}, {P(r)}, {P(c)}, {P(t)} neg_lo:[0,0,1] neg_hi:[0,0,1]""")
        for blk in range(2):
            for hh in range(2):
                r = 88+8*blk+2*hh
                a(f"v_cvt_pk_bf16_f32 v{B+4*blk+hh+(2 if swap else 0)}, v{r}, v{r+1}")
                a(f"v_cvt_pk_bf16_f32 v{B+4*blk+hh+(0 if swap else 2)}, v{r+4}, v{r+5}")
    tw_pack(56, 64, 16, False)
    for y in range(2):
        for x in range(2):
            mf(88+8*x, N(x,y)+2, 16+4*y, y == 0)
            mf(92+8*x, N(x,y), 16+4*y, y == 0)
    a("s_waitcnt vmcnt(0)")
    for k in range(8): a(f"v_lshlrev_b32 v{32+k}, 16, v{48+k}\nv_and_b32 v{40+k}, 0xffff0000, v{48+k}")
    tw_pack(32, 40, 24, True)
    for y in range(2):
        for x in range(2):
            mf(88+8*x, 24+4*y, N(x,y), y == 0)
            mf(92+8*x, 24+4*y, N(x,y)+2, y == 0)
    tw_pack(72, 80, 16, True)
    a(f"ds_write_b128 v6, {Q(16)} offset:8192\nds_write_b128 v6, {Q(20)} offset:12288\ns_waitcnt lgkmcnt(0)")
    bar(a, 'W', 'k2b')
    for t in range(4):
        for nt in range(2): a(f"ds_read_b128 {Q(D(nt,t))}, v7 offset:{8192+4096*nt+1024*t}")
    for t in range(4):
        a(f"s_waitcnt lgkmcnt({6-2*t})")
        for nt in range(2):
            mf(88+8*nt, M(t), D(nt,t), t == 0)
            mf(92+8*nt, M(t)+2, D(nt,t), t == 0)
    for nt in range(2):
        o = 48+4*nt; s = 88+8*nt
        for k in range(4): a(f"v_cvt_pk_bf16_f32 v{o+k}, v{s+2*k}, v{s+2*k+1}")
        a(f"buffer_store_dwordx4 {Q(o)}, v8, s[12:15], s{21+2*nt} offen sc1")
    ST('b')
    a("s_branch KM_k2done\nKM_k2skip:\ns_barrier\ns_barrier\nKM_k2done:")
    a(f"""v_and_b32 v1, 63, v0
v_and_b32 v3, 31, v0
v_lshlrev_b32 v2, 3, v3
v_bfe_u32 v4, v0, 5, 1
v_lshl_add_u32 v2, v4, 8, v2
v_lshlrev_b32 v3, 2, v3
v_lshl_add_u32 v3, v4, 1, v3
v_and_b32 v5, 15, v0
v_bfe_u32 v6, v0, 4, 2""")
    col_slots(a, 22, 5, 6, 8, 22)
    addr_yf(a)
    a(f"""
s_and_b32 s23, s3, 15
s_lshl_b32 s23, s23, 4
s_lshr_b32 s21, s3, 4
s_lshl_b32 s21, s21, 10
s_add_u32 s23, s23, s21
s_lshr_b32 s21, s20, 1
s_lshl_b32 s21, s21, 11
s_add_u32 s23, s23, s21
s_and_b32 s21, s20, 1
s_lshl_b32 s21, s21, 9
s_add_u32 s23, s23, s21
s_add_u32 s23, s23, {YF}
s_lshl_b32 s21, s20, 3
s_add_u32 s21, s21, s22
s_lshl_b32 s24, s3, 6
s_add_u32 s24, s24, s21
s_mul_i32 s24, s24, 1280
""")
    w5_consts(a, 88, 22, 1.0)
    a(f"""
s_lshl_b32 s27, s22, 4
v_add_u32 v22, s27, v5
v_cvt_f32_u32 v22, v22
v_mul_f32 v22, {fh(1/128)}, v22
v_and_b32 v23, 1, v6
v_cvt_f32_u32 v23, v23
v_mul_f32 v23, 4.0, v23
v_lshrrev_b32 v24, 1, v6
v_cvt_f32_u32 v24, v24
v_mul_f32 v24, {fh(0.25)}, v24
v_fma_f32 v23, v23, v22, v24
v_mul_f32 v24, {fh(5.0)}, v22
v_mul_f32 v27, {fh(64.0)}, v22
v_cmp_eq_u32 vcc, 2, v6
v_cndmask_b32 v27, v23, v27, vcc
""")
    for t in range(4):
        for jj in range(4):
            a(f"""v_cos_f32 v25, v{27 if (t, jj) == (0, 0) else 23}
v_add_f32 v23, v23, v22
v_cos_f32 v26, v23
v_add_f32 v23, v23, v{24 if jj & 1 else 22}
v_cvt_pk_bf16_f32 v{96+4*t+jj}, v25, v26""")
    a(f"""
v_lshlrev_b32 v14, 5, v5
v_lshl_add_u32 v14, v6, 3, v14
s_lshl_b32 s27, s22, 9
s_add_u32 s27, s27, {TB}
v_add_u32 v14, s27, v14
v_and_b32 v15, 4096, v9
v_add_u32 v15, v15, v14
v_xor_b32 v112, 4096, v15
v_lshlrev_b32 v113, 3, v1
v_add_u32 v113, {TB}, v113
v_and_b32 v22, 7, v5
v_mul_u32_u24 v22, {ZR}, v22
v_lshl_add_u32 v22, v6, 4, v22
s_lshl_b32 s27, s22, 6
s_add_u32 s27, s27, {ZB}
v_add_u32 v17, s27, v22
v_lshrrev_b32 v22, 3, v5
v_mul_u32_u24 v22, {2*ZC}, v22
v_add_u32 v16, v17, v22
v_lshlrev_b32 v4, 2, v3
s_mul_i32 s27, s22, {ZR}
s_add_u32 s27, s27, {ZB}
v_add_u32 v7, s27, v4
v_add_u32 v4, {PB}, v4
v_and_b32 v22, 0x80000000, v9
v_xor_b32 v22, v22, v10
v_and_b32 v23, 0x80008000, v9
v_xor_b32 v24, v23, v12
""")
    for j in range(5):
        a(f"ds_read_b64 {P(120+2*j)}, v4 offset:{512*j}\nds_read_b64 {P(140+2*j)}, v4 offset:{5120+512*j}\nds_read_b64 {P(130+2*j)}, v4 offset:{2560+512*j}")
    a("s_waitcnt lgkmcnt(0)")
    ST('c')
    gather2(a, 'KM_gy', f"buffer_load_dwordx4 {Q(28)}, v11, s[12:15], s23 offen sc1", f"buffer_load_dwordx4 {Q(32)}, v13, s[12:15], s23 offen sc1", 28, 32, 36, dly=OPT.get('dy', 0))
    ST('c')
    a(f"""v_cndmask_b32 v32, v32, v34, s[42:43]
v_cndmask_b32 v33, v33, v35, s[42:43]
v_xor_b32 v26, v30, v24
v_xor_b32 v27, v31, v24
v_xor_b32 v30, v30, v12
v_xor_b32 v31, v31, v12
ds_write_b64 v14, {P(32)} offset:8192""")
    for hh in range(2):
        a(f"""v_lshlrev_b32 v{36+2*hh}, 16, v{28+hh}
v_and_b32 v{37+2*hh}, 0xffff0000, v{28+hh}
v_lshlrev_b32 v{40+2*hh}, 16, v{30+hh}
v_and_b32 v{41+2*hh}, 0xffff0000, v{30+hh}
v_lshlrev_b32 v{44+2*hh}, 16, v{28+hh}
v_and_b32 v{45+2*hh}, 0xffff0000, v{28+hh}
v_lshlrev_b32 v{48+2*hh}, 16, v{26+hh}
v_and_b32 v{49+2*hh}, 0xffff0000, v{26+hh}""")
    for i in range(4):
        a(f"v_fmac_f32_dpp v{44+i}, v{36+i}, v22 row_ror:8 {DPP}")
        a(f"v_fmac_f32_dpp v{48+i}, v{40+i}, v10 row_ror:8 {DPP}")
    a(f"""v_cvt_pk_bf16_f32 v52, v44, v45
v_cvt_pk_bf16_f32 v53, v46, v47
v_cvt_pk_bf16_f32 v54, v48, v49
v_cvt_pk_bf16_f32 v55, v50, v51
ds_write_b64 v15, {P(52)}
ds_write_b64 v112, {P(54)}
s_waitcnt lgkmcnt(0)""")
    bar(a, 'W', 'b1')
    for T in range(3):
        for t in range(4):
            for x in range(2): a(f"ds_read_b64_tr_b16 {P(28+16*T+4*t+2*x)}, v113 offset:{4096*T+1024*t+512*x}")
            if T == 1 and t == 3:
                a("s_waitcnt lgkmcnt(8)")
                for tt in range(4): a(f"v_mfma_f32_16x16x32_bf16 {Q(76)}, {Q(96+4*tt)}, {Q(28+4*tt)}, {'0' if tt == 0 else Q(76)}")
    for T in (1, 2):
        a(f"s_waitcnt lgkmcnt({8 if T == 1 else 0})")
        for t in range(4): a(f"v_mfma_f32_16x16x32_bf16 {Q(76+4*T)}, {Q(96+4*t)}, {Q(28+16*T+4*t)}, {'0' if t == 0 else Q(76+4*T)}")
    a(f"ds_write_b128 v16, {Q(76)} offset:{ZC}")
    for j in range(5): a(f"v_lshlrev_b32 v{28+2*j}, 16, v{XR+j}\nv_and_b32 v{29+2*j}, 0xffff0000, v{XR+j}")
    a(f"""ds_write_b128 v16, {Q(80)} offset:{2*ZC}
ds_write_b128 v17, {Q(84)}
s_waitcnt lgkmcnt(0)""")
    bar(a, 'W', 'b2')
    for c in range(5): a(f"ds_read_b64 {P(40+2*c)}, v7 offset:{ZC*c}")
    a("s_waitcnt lgkmcnt(0)")
    bar(a, 'W', 'b3')
    for k in range(2):
        r, im = 42+4*k, 44+4*k; c, s = 88+4*k, 90+4*k; R, I = 50+4*k, 52+4*k
        a(f"""v_pk_mul_f32 {P(R)}, {P(r)}, {P(c)}
v_pk_mul_f32 {P(I)}, {P(r)}, {P(s)}
v_pk_fma_f32 {P(R)}, {P(im)}, {P(s)}, {P(R)} neg_lo:[1,0,0] neg_hi:[1,0,0]
v_pk_fma_f32 {P(I)}, {P(im)}, {P(c)}, {P(I)}""")
    z0,z1r,z1i,z2r,z2i = 40,50,52,54,56
    A,B,Cc,Dd,E = 58,60,62,64,66
    sl = {(3*j) % 5: j for j in range(5)}
    X = lambda d2: P(28+2*sl[d2]); G = lambda d2: P(120+2*sl[d2])
    a(f"""v_pk_add_f32 {P(E)}, {P(z0)}, {P(z1r)}
v_pk_fma_f32 {P(A)}, s[30:31], {P(z1r)}, {P(z0)}
v_pk_fma_f32 {P(B)}, s[32:33], {P(z1r)}, {P(z0)}
v_pk_mul_f32 {P(Cc)}, s[34:35], {P(z1i)}
v_pk_mul_f32 {P(Dd)}, s[36:37], {P(z1i)}
v_pk_add_f32 {P(E)}, {P(E)}, {P(z2r)}
v_pk_fma_f32 {P(A)}, s[32:33], {P(z2r)}, {P(A)}
v_pk_fma_f32 {P(B)}, s[30:31], {P(z2r)}, {P(B)}
v_pk_fma_f32 {P(Cc)}, s[36:37], {P(z2i)}, {P(Cc)}
v_pk_fma_f32 {P(Dd)}, s[34:35], {P(z2i)}, {P(Dd)} neg_lo:[0,1,0] neg_hi:[0,1,0]
v_pk_fma_f32 {X(0)}, {G(0)}, {P(E)}, {X(0)}
v_pk_add_f32 {P(68)}, {P(A)}, {P(Cc)} neg_lo:[0,1] neg_hi:[0,1]
v_pk_add_f32 {P(70)}, {P(A)}, {P(Cc)}
v_pk_add_f32 {P(72)}, {P(B)}, {P(Dd)} neg_lo:[0,1] neg_hi:[0,1]
v_pk_add_f32 {P(74)}, {P(B)}, {P(Dd)}
v_pk_fma_f32 {X(1)}, {G(1)}, {P(68)}, {X(1)}
v_pk_fma_f32 {X(4)}, {G(4)}, {P(70)}, {X(4)}
v_pk_fma_f32 {X(2)}, {G(2)}, {P(72)}, {X(2)}
v_pk_fma_f32 {X(3)}, {G(3)}, {P(74)}, {X(3)}
s_add_u32 s25, s24, {X1}
s_add_u32 s26, s24, {H2F}""")
    for j in range(5): a(f"v_cvt_pk_bf16_f32 v{16+j}, v{28+2*j}, v{29+2*j}")
    a(f"""v_permlane32_swap_b32 v16, v17
v_permlane32_swap_b32 v18, v19
buffer_store_dwordx2 {P(16)}, v2, s[12:15], s25 offen sc1
buffer_store_dwordx2 {P(18)}, v2, s[12:15], s25 offen offset:512 sc1""")
    ln_rows(a, 28, 22)
    a(f"v_bfe_u32 v24, v0, 5, 1\nv_mul_u32_u24 v24, {H2F - X1 - 256}, v24\nv_add_u32 v24, v24, v2")
    for j in range(5): a(f"v_pk_mul_f32 {P(140+2*j)}, {P(140+2*j)}, {P(22)} op_sel_hi:[1,0]")
    for j in range(5): a(f"v_pk_fma_f32 {P(28+2*j)}, {P(28+2*j)}, {P(140+2*j)}, {P(130+2*j)}")
    for j in range(4): a(f"v_cvt_pk_bf16_f32 v{40+j}, v{28+2*j}, v{29+2*j}")
    a(f"""v_cvt_pk_bf16_f32 v21, v36, v37
v_permlane32_swap_b32 v40, v41
v_permlane32_swap_b32 v42, v43
v_permlane32_swap_b32 v20, v21
buffer_store_dwordx2 {P(40)}, v2, s[12:15], s26 offen sc1
buffer_store_dwordx2 {P(42)}, v2, s[12:15], s26 offen offset:512 sc1
buffer_store_dwordx2 {P(20)}, v24, s[12:15], s25 offen offset:1024 sc1""")
    ST('c')
    a(f"""v_mov_b32 v2, v1
s_lshr_b32 s26, s22, 2
s_and_b32 s27, s22, 3
v_lshrrev_b32 v3, 4, v2
v_bfe_u32 v4, v2, 2, 2
v_lshl_add_u32 v4, v3, 3, v4
v_mul_u32_u24 v4, 192, v4
v_and_b32 v5, 3, v2
v_lshl_add_u32 v4, v5, 3, v4
v_and_b32 v5, 1, v3
v_lshlrev_b32 v5, 5, v5
s_mul_i32 s28, s26, 96
v_add_u32 v4, s28, v4
s_cmp_eq_u32 s26, 0
s_cselect_b32 s29, 1, -1
v_mul_lo_u32 v5, v5, s29
v_add_u32 v6, v4, v5
v_sub_u32 v7, v4, v5
v_add_u32 v8, {4*WS_}, v6
v_add_u32 v9, {4*WS_}, v7
v_and_b32 v10, 15, v2
v_lshrrev_b32 v11, 1, v10
v_xor_b32 v11, v11, v3
v_lshlrev_b32 v11, 4, v11
v_lshl_add_u32 v11, v10, 7, v11
s_lshl_b32 s28, s27, 12
s_add_u32 s28, s28, {HB}
v_add_u32 v11, s28, v11
v_xor_b32 v12, 64, v11
s_load_dwordx2 s[60:61], s[0:1], 72
s_waitcnt vmcnt(0)""")
    ST('c')
    bar(a, 'W', 'd1')
    ACC = lambda mat, i, nt: 16 + 4*(6*nt + 3*mat + i)
    FA = lambda buf, mat, i: 64 + 32*buf + 4*(3*mat+i)
    FB = lambda buf, nt: 88 + 32*buf + 4*nt
    def reads(s):
        L = []; sl = s % 8
        for nt in range(2): L.append(f"ds_read_b128 {Q(FB(s & 1, nt))}, v{11 + (s & 1)} offset:{((s//2) % 4)*HS + 2048*nt}")
        for mat in range(2):
            for i in range(3):
                for x in range(2):
                    L.append(f"ds_read_b64_tr_b16 {P(FA(s & 1, mat, i) + 2*x)}, v{6 + (i & 1) + 2*(sl//4)} offset:{(sl % 4)*WS_ + mat*6144 + 4*x*192 + 32*i}")
        return L
    bar(a, 'W', 'B0')
    ST('d')
    for l in reads(0): a(l)
    for s in range(NST):
        a("s_waitcnt lgkmcnt(0)")
        if s & 1: bar(a, 'W', f'B{(s+1)//2}')
        R = reads(s+1) if s+1 < NST else []
        k = 0
        for mat in range(2):
            for i in range(3):
                for nt in range(2):
                    c = ACC(mat, i, nt)
                    a(f"v_mfma_f32_16x16x32_bf16 {Q(c)}, {Q(FA(s & 1, mat, i))}, {Q(FB(s & 1, nt))}, {'0' if s == 0 else Q(c)}")
                    for l in R[2*k:2*k+2]: a(l)
                    k += 1
    ST('d')
    kk = 2*0.7978845608028654*math.log2(math.e)
    a(f"""s_mov_b32 s30, {fh(-kk*0.044715)}
s_mov_b32 s31, {fh(-kk*0.044715)}
v_mov_b32 v10, {fh(-kk)}
v_mov_b32 v11, {fh(-kk)}
s_lshl_b32 s29, s50, 3
s_lshl_b32 s28, s27, 1
s_add_u32 s29, s29, s28
s_mul_i32 s29, s29, 49152
s_mul_i32 s28, s51, 3072
s_add_u32 s29, s29, s28
s_mul_i32 s28, s26, 1536
s_add_u32 s29, s29, s28
s_add_u32 s29, s29, {HIDF}
v_bfe_u32 v7, v2, 4, 1
v_mul_u32_u24 v7, 49152, v7
v_lshrrev_b32 v8, 5, v2
v_lshl_add_u32 v7, v8, 8, v7
v_and_b32 v8, 15, v2
v_lshl_add_u32 v7, v8, 4, v7""")
    for nt in range(2):
        Gt = ACC(0, 0, nt); U = ACC(1, 0, nt); T = 64 + 16*nt
        for i in range(0, 12, 2): a(f"v_pk_mul_f32 {P(T+i)}, {P(Gt+i)}, {P(Gt+i)}")
        for i in range(0, 12, 2): a(f"v_pk_fma_f32 {P(T+i)}, {P(T+i)}, s[30:31], {P(10)}")
        for i in range(0, 12, 2): a(f"v_pk_mul_f32 {P(T+i)}, {P(T+i)}, {P(Gt+i)}")
        for i in range(0, 12, 2): a(f"v_exp_f32 v{T+i}, v{T+i}\nv_exp_f32 v{T+i+1}, v{T+i+1}\nv_pk_mul_f32 {P(Gt+i)}, {P(Gt+i)}, {P(U+i)}")
        for i in range(0, 12, 2): a(f"v_pk_add_f32 {P(T+i)}, {P(T+i)}, 1.0 op_sel_hi:[1,0]")
        for i in range(12): a(f"v_rcp_f32 v{T+i}, v{T+i}")
        for i in range(0, 12, 2): a(f"v_pk_mul_f32 {P(Gt+i)}, {P(Gt+i)}, {P(T+i)}")
        for i in range(3):
            O = 96 + 4*i + 2*nt
            a(f"v_cvt_pk_bf16_f32 v{O}, v{Gt+4*i}, v{Gt+4*i+1}\nv_cvt_pk_bf16_f32 v{O+1}, v{Gt+4*i+2}, v{Gt+4*i+3}")
    for i in range(3):
        O = 96 + 4*i
        a(f"""v_permlane16_swap_b32 v{O}, v{O+2}
v_permlane16_swap_b32 v{O+1}, v{O+3}
buffer_store_dwordx4 {Q(O)}, v7, s[12:15], s29 offen offset:{512*i} sc1""")
    ST('d')
    a(f"""s_lshl_b32 s30, s50, 3
s_lshr_b32 s28, s51, 3
s_lshl_b32 s28, s28, 2
s_add_u32 s30, s30, s28
s_add_u32 s30, s30, s27
s_mul_i32 s29, s30, 49152
s_lshl_b32 s28, s26, 10
s_add_u32 s29, s29, s28
s_add_u32 s29, s29, {HIDF}
s_lshl_b32 s30, s30, 4
s_and_b32 s24, s51, 7
v_lshrrev_b32 v3, 2, v2
v_mul_u32_u24 v3, 160, v3
v_and_b32 v4, 3, v2
v_lshl_add_u32 v3, v4, 3, v3
s_mul_i32 s28, s26, 5120
v_add_u32 v3, s28, v3
v_add_u32 v4, {6*DW}, v3
v_add_u32 v5, {12*DW}, v3
v_lshlrev_b32 v6, 4, v2
v_and_b32 v12, 15, v2
v_lshrrev_b32 v13, 4, v2
v_mul_u32_u24 v8, 1280, v12
v_lshl_add_u32 v8, v13, 3, v8
s_mul_i32 s23, s30, 1280
s_mul_i32 s25, s24, 160
s_add_u32 s23, s23, s25
s_add_u32 s23, s23, {X1}
v_lshlrev_b32 v15, 4, v13
s_lshl_b32 s28, s25, 1
s_add_u32 s28, s28, 12800
s_lshl_b32 s21, s26, 6
s_add_u32 s23, s23, s21
s_lshl_b32 s21, s26, 7
s_add_u32 s28, s28, s21
s_waitcnt vmcnt(0)""")
    ST('d')
    a("s_mov_b32 s41, s29")
    srd(a, 16, 60, 2048*1280)
    AC2 = lambda mt: 16 + 4*mt
    FA2 = lambda buf, mt: 36 + 20*buf + 4*mt
    NB = 10
    FB2 = lambda s: 76 + 4*(s % NB)
    def reads2(s):
        p = WPOS(s)
        return [f"ds_read_b64_tr_b16 {P(FA2(s & 1, mt) + 2*x)}, v{3+p//6} offset:{(p % 6)*DW + x*2560 + 32*mt}" for mt in range(5) for x in range(2)]
    def ldb(s):
        a(f"buffer_load_dwordx4 {Q(FB2(s))}, v6, s[12:15], s29 offen offset:{2048*(s & 1)} sc1")
        if s & 1: a("s_add_u32 s29, s29, 4096")
    bar(a, 'W', 'C0')
    ST('d')
    nb = 0; nx = 0
    for s in range(NB-1): ldb(s); nb += 1
    for l in reads2(0): a(l)
    for s in range(NS2):
        f = FB2(s)
        a(f"""s_waitcnt vmcnt({nb-s-1+nx})
v_max3_u32 v9, v{f}, v{f+1}, v{f+2}
v_max_u32 v9, v9, v{f+3}
v_cmp_eq_u32 vcc, -1, v9
s_waitcnt lgkmcnt(0)
s_cmp_lg_u64 vcc, 0
s_cbranch_scc1 KM_hs{s}
KM_hr{s}:""")
        if s in CB: bar(a, 'W', f'C{s}')
        if nb < NS2: ldb(nb); nb += 1
        elif nx < 6:
            k = nx // 2
            a(f"buffer_load_dwordx2 {P(116+2*k)}, v8, s[12:15], s23 offen offset:{32*k} sc1")
            a(f"buffer_load_dwordx4 {Q(128+4*k)}, v15, s[12:15], s28 offen offset:{64*k} sc1")
            nx += 2
        R = reads2(s+1) if s+1 < NS2 else []
        for mt in range(5):
            c = AC2(mt)
            a(f"v_mfma_f32_16x16x32_bf16 {Q(c)}, {Q(FA2(s & 1, mt))}, {Q(FB2(s))}, {'0' if s == 0 else Q(c)}")
            for l in R[2*mt:2*mt+2]: a(l)
    RB = WPOS(10)*DW
    ST('d')
    a(f"""s_mul_i32 s28, s27, 5120
s_add_u32 s28, s28, {RB}
v_add_u32 v6, s28, v6
s_and_b32 s23, s30, 63
s_lshl_b32 s23, s23, 5
s_lshr_b32 s29, s30, 6
s_add_u32 s23, s23, s29
s_mul_i32 s23, s23, 1280
s_add_u32 s23, s23, s25
v_mul_u32_u24 v8, 40960, v12
v_lshl_add_u32 v8, v13, 3, v8
s_cmp_eq_u32 s26, 0
s_cbranch_scc1 KM_lo""")
    def fin(give, keep, base):
        for mt in give: a(f"ds_write_b128 v6, {Q(AC2(mt))} offset:{1024*mt}")
        a("s_waitcnt vmcnt(0)")
        for mt in keep:
            x = 116+2*(mt-base); r = 76+4*mt
            a(f"v_lshlrev_b32 v{r}, 16, v{x}\nv_and_b32 v{r+1}, 0xffff0000, v{x}\nv_lshlrev_b32 v{r+2}, 16, v{x+1}\nv_and_b32 v{r+3}, 0xffff0000, v{x+1}")
        a("s_waitcnt lgkmcnt(0)\ns_barrier")
        for mt in keep: a(f"ds_read_b128 {Q(36+4*mt)}, v6 offset:{1024*mt}")
        for n, mt in enumerate(keep):
            c = AC2(mt); x = 116+2*(mt-base); g = 128+4*(mt-base); r = 36+4*mt; o = 76+4*mt
            a(f"""s_waitcnt lgkmcnt({len(keep)-1-n})
v_pk_add_f32 {P(c)}, {P(c)}, {P(r)}
v_pk_add_f32 {P(c+2)}, {P(c+2)}, {P(r+2)}
v_pk_fma_f32 {P(o)}, {P(c)}, {P(g)}, {P(o)}
v_pk_fma_f32 {P(o+2)}, {P(c+2)}, {P(g+2)}, {P(o+2)}
v_cvt_pk_bf16_f32 v{x}, v{o}, v{o+1}
v_cvt_pk_bf16_f32 v{x+1}, v{o+2}, v{o+3}
buffer_store_dwordx2 {P(x)}, v8, s[16:19], s23 offen offset:{32*mt}""")
        a("@dump 12\ns_endpgm")
    nst = a.st.n
    fin([0,1,2], [3,4], 2)
    a.st.n = nst
    a("KM_lo:")
    fin([3,4], [0,1,2], 0)
    a.st.n = 1
    for s in range(NS2):
        f = FB2(s)
        a(f"""KM_hs{s}:
s_add_u32 s40, s41, {2048*s}
s_mov_b32 s46, 0x8000
KM_hl{s}:
s_mov_b64 exec, vcc
s_sleep 2
buffer_load_dwordx4 {Q(f)}, v6, s[12:15], s40 offen sc1
s_waitcnt vmcnt(0)
v_max3_u32 v9, v{f}, v{f+1}, v{f+2}
v_max_u32 v9, v9, v{f+3}
v_cmp_eq_u32 vcc, -1, v9
s_mov_b64 exec, -1
s_sub_u32 s46, s46, 1
s_cmp_eq_u32 s46, 0
s_cbranch_scc1 KM_hr{s}
s_cmp_lg_u64 vcc, 0
s_cbranch_scc1 KM_hl{s}
s_branch KM_hr{s}""")
    a(f"""KM_prod:
s_sub_u32 s47, s22, 8
s_waitcnt lgkmcnt(0)""")
    if OPT.get('wb'): a(f"s_add_u32 s6, s6, {OPT['wb']}\ns_addc_u32 s7, s7, 0")
    srd(a, 12, 6, WS_SIZE)
    srd(a, 16, 60, 256)
    a(f"""v_mov_b32 v60, 0
s_load_dwordx4 s[56:59], s[0:1], 32
s_load_dwordx2 s[4:5], s[0:1], 48
v_lshlrev_b32 v59, 4, v1
s_sub_u32 s53, s2, 80
s_xor_b32 s54, s47, 2
s_mul_i32 s54, s54, 192
s_sub_u32 s21, s2, 64
s_add_u32 s54, s54, s21
s_cmp_lt_u32 s2, 64
s_cselect_b32 s54, 999, s54
s_cmp_ge_u32 s47, 2
s_cbranch_scc1 KM_p_wp
s_cmp_lg_u32 s47, 0
s_cbranch_scc1 KM_p_pf
s_cmp_lg_u32 s2, 0
s_cbranch_scc1 KM_p_nn
s_memrealtime s[38:39]
s_waitcnt lgkmcnt(0)
s_or_b32 s38, s38, 1
v_mov_b32 v61, s38
s_mov_b64 exec, 1
buffer_store_dword v61, v60, s[16:19], 0 offen sc1
s_mov_b64 exec, -1
KM_p_nn:
KM_p_nc:""")
    spin(a, 'KM_pn', "buffer_load_dword v61, v60, s[16:19], 0 offen sc1", "v_cmp_eq_u32 vcc, 0, v61")
    a(f"""v_mov_b32 v62, {NON}
ds_write_b32 v62, v61
s_branch KM_p_no0
KM_p_pf:""")
    if 'nocpf' not in OPT:
        a(f"""s_cmp_lt_u32 s2, {256 - OPT.get('ncp', 16)}
s_cbranch_scc1 KM_p_no0
s_getpc_b64 s[38:39]
KM_pc:
s_sub_u32 s38, s38, KM_pc-{NAME}
s_subb_u32 s39, s39, 0
v_lshlrev_b32 v86, 7, v1""")
        for k in range(4):
            a(f"""v_add_u32 v87, {8192*k}, v86
v_min_u32 v87, KM_end-{NAME}, v87
global_load_dword v{88+k}, v87, s[38:39]""")
    a(f"""KM_p_no0:
s_waitcnt lgkmcnt(0)""")
    bar(a, 'P', 'g1')
    a(f"""v_mov_b32 v62, {NON}
ds_read_b32 v61, v62
s_mul_i32 s23, s47, 5120
s_add_u32 s23, s23, {MODG}
s_add_u32 s21, s23, 4096
v_lshlrev_b32 v62, 4, v1
s_mul_i32 s24, s47, 2560
s_add_u32 s24, s24, {PB1}
v_lshlrev_b32 v63, 3, v1
v_add_u32 v63, s24, v63
s_lshl_b32 s25, s2, 7
s_add_u32 s25, s25, {GFL}
s_lshl_b32 s26, s47, 14
s_add_u32 s26, s26, {GFL}
s_add_u32 s27, s26, 8192
v_lshlrev_b32 v58, 7, v1
s_waitcnt lgkmcnt(0)
s_cmp_lg_u32 s47, 0
s_cbranch_scc1 KM_p_nf
s_mov_b64 exec, 1
buffer_store_dword v61, v60, s[12:15], s25 offen sc1
s_mov_b64 exec, -1
KM_p_nf:""")
    ld = "\n".join([f"buffer_load_dwordx4 {Q(8+4*q)}, v62, s[12:15], {'s23' if q < 4 else 's21'} offen offset:{1024*(q % 4)} sc1" for q in range(5)])
    cm = "v_cmp_ne_u32 vcc, v9, v61\n" + "\n".join([f"v_cmp_ne_u32 s[38:39], v{r}, v61\ns_or_b64 vcc, vcc, s[38:39]" for r in range(11, 28, 2)])
    spin(a, 'KM_pg', ld, cm)
    for q in range(5): a(f"v_mov_b32 v{9+4*q}, v{10+4*q}\nds_write_b64 v63, {P(8+4*q)} offset:{512*q}")
    a("s_waitcnt lgkmcnt(0)")
    ST('p')
    a("s_barrier")
    spin(a, 'KM_A_p', "buffer_load_dword v11, v58, s[12:15], s26 offen sc1\nbuffer_load_dword v12, v58, s[12:15], s27 offen sc1", "v_cmp_ne_u32 vcc, v11, v61\nv_cmp_ne_u32 s[38:39], v12, v61\ns_or_b64 vcc, vcc, s[38:39]")
    ST('p')
    a("s_branch KM_p_ag2")
    a(f"""KM_p_wp:
s_sub_u32 s21, s47, 2""")
    task_ids(a, 21)
    a(f"""s_cmp_gt_u32 s28, 320
s_cbranch_scc1 KM_p_nyf
s_lshl_b32 s28, s28, 13
s_add_u32 s28, s28, {YF}
s_add_u32 s29, s28, 4096
v_mov_b32 v64, -1
v_mov_b32 v65, -1
v_mov_b32 v66, -1
v_mov_b32 v67, -1""")
    for q in range(8): a(f"buffer_store_dwordx4 {Q(64)}, v59, s[12:15], {'s28' if q < 4 else 's29'} offen offset:{1024*(q % 4)} sc1")
    a(f"""KM_p_nyf:
s_mul_i32 s21, s21, 176
s_add_u32 s21, s21, s53
s_cmp_lt_u32 s2, 80
s_cbranch_scc1 KM_p_nowp""")
    TOUCH = f"""s_mov_b64 s[44:45], exec
s_mov_b64 exec, -1
s_waitcnt lgkmcnt(0)
s_cmp_eq_u32 s47, 2
s_cselect_b32 s16, s56, s58
s_cselect_b32 s17, s57, s59
s_mov_b32 s18, {640*3072}
s_mov_b32 s19, 0x00020000
s_mul_i32 s40, s2, 7680
v_and_b32 v84, 63, v0
v_min_u32 v84, 59, v84
v_lshlrev_b32 v84, 7, v84
buffer_load_dword v85, v84, s[16:19], s40 offen
s_mov_b64 exec, s[44:45]"""
    st_save = gen.STAMPS; gen.STAMPS = False
    tmp = Asm2(); tmp.st = a.st
    wprep(tmp, 21, 24, 26, 12, 'sc1')
    gen.STAMPS = st_save
    for ins in tmp.ins:
        if ins.kind == 'nop': continue
        if ins.text.strip() == 's_waitcnt vmcnt(0)':
            a("s_barrier\ns_waitcnt vmcnt(0)"); continue
        a(ins.text)
    a("s_branch KM_p_wd\nKM_p_nowp:\ns_barrier\nKM_p_wd:\nv_and_b32 v2, 63, v0\ns_waitcnt lgkmcnt(0)")
    bar(a, 'P', 'g2')
    a("KM_p_ag2:")
    a(f"""v_mov_b32 v62, {NON}
ds_read_b32 v61, v62
v_and_b32 v2, 63, v0
s_waitcnt vmcnt(0) lgkmcnt(0)
s_cmp_lt_u32 s47, 2
s_cselect_b32 s8, s56, s58
s_cselect_b32 s9, s57, s59
s_mov_b32 s10, {640*3072}
s_mov_b32 s11, 0x00020000""")
    bar(a, 'P', 'k1a')
    a("""s_or_b32 s23, s2, s47
s_cmp_lg_u32 s23, 0
s_cbranch_scc1 KM_p_nr
s_mov_b64 exec, 1
buffer_store_dword v60, v60, s[16:19], 0 offen sc1
s_mov_b64 exec, -1
KM_p_nr:""")
    srd(a, 16, 4, 1536*1280)
    a(f"""s_cmp_ge_u32 s54, 384
s_cbranch_scc1 KM_p_nwd
s_lshr_b32 s24, s54, 3
s_and_b32 s25, s54, 7
s_mul_i32 s55, s25, {1536*160}
s_mul_i32 s21, s24, 5120
s_add_u32 s55, s55, s21
s_add_u32 s55, s55, {WDT}
s_mul_i32 s24, s24, {32*1280}
s_mul_i32 s25, s25, 160
s_add_u32 s24, s24, s25""")
    for q in range(5):
        a(f"""v_add_u32 v12, {64*q}, v2
v_mul_u32_u24 v14, 52429, v12
v_lshrrev_b32 v14, 19, v14
v_mul_u32_u24 v15, 10, v14
v_sub_u32 v15, v12, v15
v_and_b32 v36, 3, v14
v_bfe_u32 v37, v14, 2, 2
v_lshl_add_u32 v36, v37, 3, v36
v_lshrrev_b32 v37, 4, v14
v_lshl_add_u32 v36, v37, 2, v36
v_mul_u32_u24 v36, 1280, v36
v_lshl_add_u32 v36, v15, 4, v36
buffer_load_dwordx4 {Q(64+4*q)}, v36, s[16:19], s24 offen""")
    a("KM_p_nwd:")
    def touch():
        a("s_cmp_lt_u32 s47, 2\ns_cbranch_scc1 KM_p_nt")
        a(TOUCH)
        a("KM_p_nt:")
    if OPT.get('tp', 'k1a') == 'k1a': touch()
    for q in range(3):
        a(f"""v_add_u32 v10, {64*q}, v2
v_mul_u32_u24 v11, 43691, v10
v_lshrrev_b32 v11, 19, v11
v_mul_u32_u24 v12, 12, v11
v_sub_u32 v12, v10, v12
v_lshrrev_b32 v13, 2, v11
v_and_b32 v13, 2, v13
v_xor_b32 v12, v12, v13
v_mul_u32_u24 v11, 3072, v11
v_lshl_add_u32 v11, v12, 4, v11
v_subrev_u32 v{50+q}, {1024*q}, v11""")
    for q in range(4):
        a(f"""v_lshrrev_b32 v10, 4, v2
v_add_u32 v10, {4*q}, v10
v_xor_b32 v10, v10, v2
v_and_b32 v10, 7, v10
v_lshrrev_b32 v11, 3, v2
v_mul_u32_u24 v11, 1280, v11
v_lshl_add_u32 v11, v10, 4, v11
v_add_u32 v{53+q}, {q*(10240-1024)}, v11""")
    a(f"""
s_and_b32 s26, s47, 1
s_mul_i32 s27, s26, {16*3072}
s_mul_i32 s28, s51, 192
s_add_u32 s27, s27, s28
s_mul_i32 s28, s47, 3072
s_lshl_b32 s29, s50, 2
s_add_u32 s29, s29, s47
s_mul_i32 s29, s29, 40960
s_add_u32 s29, s29, {H2F}
s_lshl_b32 s30, s47, 12
v_and_b32 v58, 15, v2
v_lshlrev_b32 v58, 7, v58
v_and_b32 v57, 3, v2
v_lshlrev_b32 v57, 7, v57
v_lshlrev_b32 v59, 4, v2
v_lshlrev_b32 v63, 7, v2""")
    def iw(s):
        a(f"s_add_u32 m0, s28, {(s % 8)*WS_}")
        for q in range(3): a(f"buffer_load_dwordx4 v{50+q}, s[8:11], s27 offen offset:{1024*q} sc1 lds")
        a(f"s_add_u32 s27, s27, {32*3072}")
    def ih(d):
        a(f"s_add_u32 m0, s30, {HB + (d % 4)*HS}")
        for q in range(4): a(f"buffer_load_dwordx4 v{53+q}, s[12:15], s33 offen offset:{1024*q} sc1 lds")
        a("s_add_u32 s33, s33, 128")
    bar(a, 'P', 'k2a')
    a("s_cmp_ge_u32 s54, 384\ns_cbranch_scc1 KM_p_nwd2\ns_add_u32 s54, s55, 4096\ns_waitcnt vmcnt(0)")
    for q in range(5): a(f"buffer_store_dwordx4 {Q(64+4*q)}, v59, s[12:15], {'s55' if q < 4 else 's54'} offen offset:{1024*(q % 4)} sc1")
    a("KM_p_nwd2:")
    a(f"""s_lshl_b32 s23, s47, 11
s_add_u32 m0, s23, {PB}
s_add_u32 s23, s23, 5120
buffer_load_dwordx4 v59, s[12:15], s23 offen sc1 lds
buffer_load_dwordx4 v59, s[12:15], s23 offen offset:1024 sc1 lds""")
    for s in range(0, 4): iw(s)
    a("s_waitcnt vmcnt(12)")
    bar(a, 'P', 'k2b')
    if OPT.get('tp', 'k1a') == 'k2b': touch()
    a(f"""s_lshl_b32 s23, s50, 3
s_lshl_b32 s24, s47, 1
s_add_u32 s23, s23, s24
s_mul_i32 s23, s23, 49152
s_mul_i32 s24, s51, 3072
s_add_u32 s23, s23, s24
s_add_u32 s23, s23, {HIDF}
s_add_u32 s24, s23, 49152
v_mov_b32 v88, -1
v_mov_b32 v89, -1
v_mov_b32 v90, -1
v_mov_b32 v91, -1""")
    def hpre():
        for q in range(6): a(f"buffer_store_dwordx4 {Q(88)}, v59, s[12:15], {'s23' if q < 3 else 's24'} offen offset:{1024*(q % 3)} sc1")
    if OPT.get('hp', 'b1') == 'k2b': hpre()
    if OPT.get('wp', 'b1') == 'k2b':
        for s in range(4, 8): iw(s)
    bar(a, 'P', 'b1')
    if OPT.get('tp', 'k1a') == 'b1': touch()
    if OPT.get('hp', 'b1') == 'b1': hpre()
    if OPT.get('wp', 'b1') == 'b1':
        for s in range(4, 8): iw(s)
    bar(a, 'P', 'b2')
    bar(a, 'P', 'b3')
    if OPT.get('hp', 'b1') == 'b3': hpre()
    if OPT.get('wp', 'b1') == 'b3':
        for s in range(4, 8): iw(s)
    a(f"""s_lshl_b32 s48, s50, 4
s_add_u32 s48, s48, s51
s_lshl_b32 s48, s48, 7
s_add_u32 s48, s48, {FLG}
s_lshl_b32 s23, s50, 2
s_add_u32 s23, s23, s47
s_lshl_b32 s23, s23, 9
s_add_u32 s23, s23, {FLG}
s_and_b32 s24, s51, 7
s_mul_i32 s31, s47, 2560
s_mul_i32 s32, s24, {1536*160}
s_add_u32 s32, s32, s31
s_add_u32 s32, s32, {WDT}
s_waitcnt vmcnt(0)""")
    bar(a, 'P', 'd1')
    a(f"""s_cmp_lg_u32 s47, 0
s_cbranch_scc1 KM_na1
s_mov_b64 exec, 1
buffer_store_dword v61, v60, s[12:15], s48 offen sc1
s_mov_b64 exec, -1
KM_na1:""")
    cnt = []
    def iw2(s):
        a(f"""s_add_u32 m0, s31, {WPOS(s)*DW}
buffer_load_dwordx4 v59, s[12:15], s32 offen sc1 lds
buffer_load_dwordx4 v59, s[12:15], s32 offen offset:1024 sc1 lds
s_mov_b32 exec_hi, 0
buffer_load_dwordx4 v59, s[12:15], s32 offen offset:2048 sc1 lds
s_mov_b32 exec_hi, -1
s_add_u32 s32, s32, 10240""")
    def grp(d):
        ih(d); n = 4
        if d >= 4:
            iw(2*d); iw(2*d+1); n += 6
        cnt.append(n)
    a(f"v_add_u32 v62, s30, v59\nv_add_u32 v62, {HB}, v62")
    def hl(d, q): return f"buffer_load_dwordx4 {Q(96+16*d+4*q)}, v{53+q}, s[12:15], s29 offen offset:{1024*q+128*d} sc1"
    for d in range(4):
        for q in range(4): a(hl(d, q))
    nw2 = 0
    for d in range(10):
        if d < 4:
            R = 96+16*d
            a(f"s_mov_b32 s46, 0x8000\ns_waitcnt vmcnt({4*(3-d)+sum(cnt)})\ns_branch KM_hc{d}\nKM_hq{d}:\ns_sleep 2")
            for q in range(4): a(hl(d, q))
            a(f"s_waitcnt vmcnt(0)\nKM_hc{d}:")
            a(f"v_max3_u32 v12, v{R}, v{R+1}, v{R+2}")
            for k in range(3, 15, 2): a(f"v_max3_u32 v12, v12, v{R+k}, v{R+k+1}")
            a(f"""v_max_u32 v12, v12, v{R+15}
v_cmp_eq_u32 vcc, -1, v12
s_nop 1
s_and_b64 exec, exec, vcc
s_cbranch_scc0 KM_ho{d}
s_sub_u32 s46, s46, 1
s_cmp_lg_u32 s46, 0
s_cbranch_scc1 KM_hq{d}
KM_ho{d}:
s_mov_b64 exec, -1""")
            for q in range(4): a(f"ds_write_b128 v62, {Q(R+4*q)} offset:{d*HS+1024*q}")
            a("s_waitcnt lgkmcnt(0)")
            if d == 0: ST('p')
        else:
            a(f"s_waitcnt vmcnt({sum(cnt[d-3:])})")
        bar(a, 'P', f'B{d}')
        if d == 1:
            spin(a, 'KM_p1', "buffer_load_dword v11, v57, s[12:15], s23 offen sc1", "v_cmp_ne_u32 vcc, v11, v61")
            a("s_add_u32 s33, s29, 512")
        if d >= 1 and d+3 < 10: grp(d+3)
        if d >= 7:
            for _ in range(EARLY[d]): iw2(nw2); nw2 += 1
            cnt.append(3*EARLY[d])
    bar(a, 'P', 'B10')
    while nw2 < NWD: iw2(nw2); nw2 += 1
    a("s_waitcnt vmcnt(0)")
    ST('p')
    bar(a, 'P', 'C0')
    pend = []
    for s in CB:
        need = [t for t in pend if t <= NEXTCB[s]]
        a(f"s_waitcnt vmcnt({3*(len(pend)-len(need))})")
        bar(a, 'P', f'C{s}')
        pend = [t for t in pend if t not in need]
        while nw2 < NS2 and nw2 - NWD <= s:
            iw2(nw2); pend.append(nw2); nw2 += 1
    a("@dump 12\nKM_end:\ns_endpgm")
    assert bar.seq['W'] == bar.seq['P'], (bar.seq['W'], bar.seq['P'])
    return kd_block(NAME, 168, 100)
if __name__ == '__main__':
    OPT = {}; out = 'mega.s'
    for x in sys.argv[1:]:
        if x.endswith('.s'): out = x
        elif x.startswith('st='): gen.STAMPS = True; OPT['st'] = x[3:]
        elif x.startswith('slp'): gen.SLP = int(x[3:])
        elif x.startswith('bk'): OPT['bk'] = int(x[2:])
        elif x.startswith('tp='): OPT['tp'] = x[3:]
        elif x.startswith('hp='): OPT['hp'] = x[3:]
        elif x.startswith('dx='): OPT['dx'] = int(x[3:])
        elif x.startswith('dy='): OPT['dy'] = int(x[3:])
        elif x.startswith('ncp='): OPT['ncp'] = int(x[4:])
        elif x.startswith('wb='): OPT['wb'] = int(x[3:]) << 20
        elif x.startswith('wp='): OPT['wp'] = x[3:]
        else: OPT[x] = 1
    a = Asm2()
    kd = km(a, OPT)
    hdr = open('adaLN_cond__spectral_gfnet__glu_gated_geglu__prompt.s.ref').read().split('\n')[:13]
    s = '\n'.join(hdr) + '\n; @launch grid=(256,1,1) block=(768,1,1) lds=163840\n'
    s += '.amdgcn_target "amdgcn-amd-amdhsa--gfx950"\n.text\n' + a.text() + '.section .rodata,"a"\n' + kd
    open(out, 'w').write(s)
```

```python
import sys, math
sys.path.insert(0,'work')
import gen
from gen import *
NAME = 'adaLN_cond__spectral_gfnet__glu_gated_geglu__prompt_kernel'
MODG = 0x4000
GFL = 0x20000
CNT = 0x8000
class Bar:
    def __init__(self): self.seq = {}
    def __call__(self, a, role, name):
        self.seq.setdefault(role, []).append(name); a("s_barrier")
def spin(a, name, load, cmp):
    a(f"s_mov_b32 s46, 0x8000\n{name}:")
    a(load); a("s_waitcnt vmcnt(0)"); a(cmp)
    a(f"""s_nop 1
s_cmp_eq_u64 vcc, 0
s_cbranch_scc1 {name}_ok
s_sleep {gen.SLP}
s_sub_u32 s46, s46, 1
s_cmp_lg_u32 s46, 0
s_cbranch_scc1 {name}
{name}_ok:""")
def addr_xf(a):
    a(f"""s_lshl_b32 s40, s22, 5
v_lshrrev_b32 v22, 1, v6
v_lshl_add_u32 v22, v22, 4, v5
v_add_u32 v22, s40, v22
v_add_u32 v23, 256, v8
v_and_b32 v24, 1, v6
v_lshlrev_b32 v24, 7, v24""")
    for src_, dst in ((22, 11), (23, 13)):
        a(f"""v_lshrrev_b32 v25, 3, v{src_}
v_lshl_add_u32 v25, v25, 16, v24
v_and_b32 v26, 7, v{src_}
v_lshl_add_u32 v{dst}, v26, 4, v25""")
def addr_yf(a):
    a(f"""s_lshl_b32 s40, s22, 5
v_lshrrev_b32 v22, 1, v6
v_lshl_add_u32 v22, v22, 4, v5
v_add_u32 v22, s40, v22
v_add_u32 v23, 256, v8
v_and_b32 v24, 1, v6
v_lshlrev_b32 v24, 8, v24
v_lshl_add_u32 v11, v22, 13, v24
v_lshl_add_u32 v13, v23, 13, v24""")
def gather2(a, name, ld0, ld1, r0, r1, t, pre=False, dly=0):
    a(f"""s_mov_b32 s46, 0x8000
s_waitcnt vmcnt(0)
s_sleep {dly}
{f's_branch {name}_chk' if pre else ''}
{name}:
{ld0}
{ld1}
{name}_chk:
s_waitcnt vmcnt(0)
v_max3_u32 v{t}, v{r0}, v{r0+1}, v{r0+2}
v_max3_u32 v{t+1}, v{r1}, v{r1+1}, v{r1+2}
v_max3_u32 v{t}, v{t}, v{r0+3}, v{r1+3}
v_max_u32 v{t}, v{t}, v{t+1}
v_cmp_eq_u32 vcc, -1, v{t}
s_nop 1
s_and_b64 exec, exec, vcc
s_cbranch_scc0 {name}_ok
s_sleep 2
s_sub_u32 s46, s46, 1
s_cmp_lg_u32 s46, 0
s_cbranch_scc1 {name}
{name}_ok:
s_mov_b64 exec, -1""")
def task_ids(a, slot):
    a(f"""s_lshl_b32 s28, s{slot}, 2
s_lshr_b32 s29, s2, 6
s_add_u32 s28, s28, s29
s_lshl_b32 s28, s28, 3
s_and_b32 s29, s2, 7
s_add_u32 s28, s28, s29
s_lshl_b32 s41, s28, 16
s_lshl_b32 s28, s28, 3
s_bfe_u32 s29, s2, 0x30003
s_add_u32 s28, s28, s29
s_lshl_b32 s29, s29, 4
s_add_u32 s41, s41, s29""")
def km(a, OPT):
    bar = Bar()
    a(f".globl {NAME}\n.p2align 8\n.type {NAME},@function\n{NAME}:")
    a.st = Stamper(a, 3)
    ST = lambda tag: a("@stamp") if tag in OPT.get('st', '') else None
    R2 = 98304
    GP = R2; NON = R2 + 1536; PB1 = R2 + 2048; Z1 = R2 + 8192; K2B = R2 + 24576
    TB = R2; ZB = R2 + 12288; ZR = 528; ZC = 8*ZR; PB = R2 + 57344
    NST = 20; WS_ = 12288; HB = R2; HS = 16384
    NS2 = 24; DW = 10240; NWD = 16
    ORDER = [5, 6, 13,  7, 8, 14, 15,  0, 1, 9, 10,  2, 3, 4, 11, 12]
    EARLY = {7: 3, 8: 4, 9: 4}
    WPOS = lambda s: ORDER[s % NWD]
    CB = [3, 7, 15, 19]; NEXTCB = {3: 7, 7: 15, 15: 19, 19: 23}
    XR = 114
    a(f"""
s_cmp_ge_u32 s2, 256
s_cbranch_scc1 KM_end
@stamp
s_load_dwordx2 s[4:5], s[0:1], 0
s_load_dwordx2 s[6:7], s[0:1], 88
s_load_dwordx4 s[56:59], s[0:1], 56
s_load_dwordx4 s[24:27], s[0:1], 8
s_load_dwordx2 s[60:61], s[0:1], 80
s_and_b32 s50, s2, 7
s_lshr_b32 s51, s2, 3
s_mul_i32 s52, s50, 10
s_add_u32 s52, s52, s51
s_mul_i32 s21, s50, 20
s_add_u32 s21, s21, s51
s_add_u32 s21, s21, 70
s_cmp_lt_u32 s2, 80
s_cselect_b32 s52, s52, s21
s_lshl_b32 s50, s50, 1
s_lshr_b32 s21, s51, 4
s_add_u32 s50, s50, s21
s_and_b32 s51, s51, 15
v_lshrrev_b32 v4, 6, v0
v_and_b32 v1, 63, v0
v_readfirstlane_b32 s22, v4
s_lshl_b32 s3, s50, 1
s_lshr_b32 s21, s51, 3
s_add_u32 s3, s3, s21
s_and_b32 s20, s51, 7
s_cmp_ge_u32 s22, 8
s_cbranch_scc1 KM_prod
v_and_b32 v3, 31, v0
v_lshlrev_b32 v2, 3, v3
v_bfe_u32 v4, v0, 5, 1
v_lshl_add_u32 v2, v4, 8, v2
v_lshlrev_b32 v3, 2, v3
v_lshl_add_u32 v3, v4, 1, v3
s_lshl_b32 s21, s20, 3
s_add_u32 s21, s21, s22
s_lshl_b32 s21, s21, 5
s_add_u32 s21, s21, s3
s_mul_i32 s21, s21, 1280
s_lshl_b32 s23, s52, 5
v_lshrrev_b32 v144, 1, v0
v_and_b32 v145, 1, v0
v_mul_u32_u24 v146, 7680, v144
v_lshl_add_u32 v146, v145, 4, v146
v_add_u32 v146, s23, v146
v_lshlrev_b32 v147, 1, v144
s_cmp_lt_u32 s2, 240
s_cselect_b32 s49, 5, 0
s_waitcnt lgkmcnt(0)
""")
    if OPT.get('wb'): a(f"s_add_u32 s6, s6, {OPT['wb']}\ns_addc_u32 s7, s7, 0")
    srd(a, 12, 6, WS_SIZE)
    srd(a, 8, 56, 1280)
    srd(a, 16, 58, 640*3840*2)
    NR = 4
    def gloads(tag, cond):
        a(f"s_cmp_ge_u32 s22, s49\ns_cbranch_scc1 KM_nog1{tag}")
        for i in range(NR): a(f"buffer_load_short_d16_hi v{136+i}, v147, s[8:11], 0 offen offset:{320*i}")
        a("s_mov_b32 s23, 0")
        for i in range(NR):
            a(f"buffer_load_dwordx4 {Q(120+4*i)}, v146, s[16:19], s23 offen")
            if i < NR-1: a(f"s_add_u32 s23, s23, {160*7680}")
        a(f"KM_nog1{tag}:")
    srd(a, 24, 4, 2048*1280)
    for k in range(3): a(f"buffer_load_dwordx2 {P(XR+2*k)}, v2, s[24:27], s21 offen offset:{512*k}")
    gloads('a', 0)
    a("v_and_b32 v5, 15, v0\nv_bfe_u32 v6, v0, 4, 2")
    col_slots(a, 22, 5, 6, 8, 22)
    addr_xf(a)
    a(f"""s_lshl_b32 s38, s3, 11
s_lshl_b32 s21, s20, 8
s_add_u32 s38, s38, s21
s_add_u32 s38, s38, {XF}
v_mov_b32 v28, -1
v_mov_b32 v29, -1
v_mov_b32 v30, -1
v_mov_b32 v31, -1
buffer_store_dwordx4 {Q(28)}, v11, s[12:15], s38 offen sc1
s_mov_b32 exec_lo, 0x00ff00ff
s_mov_b32 exec_hi, 0
buffer_store_dwordx4 {Q(28)}, v13, s[12:15], s38 offen sc1
s_mov_b64 exec, -1
s_lshl_b32 s38, s20, 3
s_add_u32 s38, s38, s22
s_lshl_b32 s21, s3, 6
s_add_u32 s38, s38, s21
s_mul_i32 s38, s38, 1280
s_add_u32 s38, s38, {H2F}
buffer_store_dwordx2 {P(28)}, v2, s[12:15], s38 offen sc1""")
    w5_consts(a, 88, 22, -1.0)
    a(f"""
v_cvt_f32_u32 v22, v8
v_mul_f32 v22, {fh(1/128)}, v22
v_cvt_f32_u32 v23, v6
v_mul_f32 v23, {fh(8.0)}, v23
v_and_b32 v24, {fh(0.25)}, v9
v_fma_f32 v23, v23, v22, -v24
v_mul_f32 v24, {fh(25.0)}, v22
""")
    for t in range(4):
        for jj in range(4):
            a(f"""v_cos_f32 v25, v23
v_add_f32 v23, v23, v22
v_cos_f32 v26, v23
v_add_f32 v23, v23, v{24 if jj == 3 else 22}
v_cvt_pk_bf16_f32 v{96+4*t+jj}, v25, v26""")
    a(f"""
v_lshrrev_b32 v22, 3, v3
v_xor_b32 v22, s22, v22
v_lshlrev_b32 v22, 4, v22
v_and_b32 v23, 7, v3
v_lshl_add_u32 v22, v23, 1, v22
s_lshl_b32 s23, s22, 8
s_add_u32 s23, s23, {Z1}
v_add_u32 v14, s23, v22
v_xor_b32 v15, {2048+128}, v14
v_lshlrev_b32 v7, 2, v3
v_add_u32 v7, {PB1}, v7
v_xor_b32 v22, v6, v5
""")
    for t in range(4):
        a(f"""v_xor_b32 v23, {4*t}, v22
v_lshlrev_b32 v23, 4, v23
v_lshl_add_u32 v23, v5, 8, v23
v_add_u32 v{16+t}, {Z1}, v23""")
    r5_sconsts(a)
    a("s_waitcnt vmcnt(11)\ns_cmp_lt_u32 s22, s49\ns_cbranch_scc1 KM_x0\ns_waitcnt vmcnt(3)\nKM_x0:")
    unpack_x(a, XR, 60)
    ln_rows(a, 60, 70)
    a(f"s_cmp_ge_u32 s22, s49\ns_cbranch_scc1 KM_nog2\ns_waitcnt vmcnt({NR+3})")
    C = 136; T = 140
    for i in range(NR): a(f"v_mul_f32 v{T+i}, {fh(-math.log2(math.e))}, v{C+i}")
    for i in range(NR): a(f"v_exp_f32 v{T+i}, v{T+i}")
    for i in range(NR): a(f"v_add_f32 v{T+i}, 1.0, v{T+i}")
    for i in range(NR): a(f"v_rcp_f32 v{T+i}, v{T+i}")
    for i in range(NR): a(f"v_mul_f32 v{C+i}, v{C+i}, v{T+i}")
    for i in range(NR): a(f"v_cvt_pk_bf16_f32 v{C+i}, v{C+i}, v{C+i}")
    for i in range(NR): a(f"v_and_b32 v{48+2*i}, 0xffff0000, v{C+i}")
    a(f"""v_lshrrev_b32 v22, 4, v0
v_lshlrev_b32 v23, 6, v22
v_lshl_add_u32 v23, v145, 5, v23
v_add_u32 v23, {GP}, v23""")
    for i in range(NR):
        a(f"s_waitcnt vmcnt({NR-1-i+3})")
        for j in range(4): a(f"v_lshlrev_b32 v{32+2*j}, 16, v{120+4*i+j}\nv_and_b32 v{33+2*j}, 0xffff0000, v{120+4*i+j}")
        for j in range(4):
            if i == 0: a(f"v_pk_mul_f32 {P(40+2*j)}, {P(32+2*j)}, {P(48)} op_sel_hi:[1,0]")
            else: a(f"v_pk_fma_f32 {P(40+2*j)}, {P(32+2*j)}, {P(48+2*i)}, {P(40+2*j)} op_sel_hi:[1,0,1]")
    for mode in ('quad_perm:[2,3,0,1]', 'row_ror:4', 'row_ror:8'):
        for j in range(8): a(f"v_add_f32_dpp v{40+j}, v{40+j}, v{40+j} {mode} {DPP}")
    a(f"""v_cmp_gt_u32 vcc, 2, v5
s_and_saveexec_b64 s[38:39], vcc
ds_write_b128 v23, {Q(40)}
ds_write_b128 v23, {Q(44)} offset:16
s_mov_b64 exec, s[38:39]
KM_nog2:
s_waitcnt vmcnt(0) lgkmcnt(0)""")
    ST('a')
    bar(a, 'W', 'g1')
    a(f"""v_mov_b32 v22, {NON}
ds_read_b32 v27, v22
s_cmp_lg_u32 s22, 0
s_cbranch_scc1 KM_nog3
s_cmp_eq_u32 s49, 0
s_cbranch_scc1 KM_nog3
v_mul_u32_u24 v23, 320, v6
v_lshl_add_u32 v23, v5, 2, v23
v_add_u32 v23, {GP}, v23
ds_read_b32 v40, v23
ds_read_b32 v41, v23 offset:64
ds_read_b32 v42, v23 offset:128
ds_read_b32 v43, v23 offset:192
ds_read_b32 v44, v23 offset:256
s_sub_u32 s23, s52, 40
s_cmp_lt_u32 s23, 40
s_cselect_b32 s21, 1.0, 0
s_sub_u32 s23, s52, 160
s_cmp_lt_u32 s23, 40
s_cselect_b32 s21, 1.0, s21
s_waitcnt lgkmcnt(0)
v_add_f32 v40, v40, v41
v_add_f32 v42, v42, v43
v_add_f32 v40, v40, v44
v_add_f32 v40, v40, v42
v_mov_b32 v41, v40
v_permlane16_swap_b32 v40, v41
v_add_f32 v40, v40, v41
v_mov_b32 v41, v40
v_permlane32_swap_b32 v40, v41
v_add_f32 v40, v40, v41
v_cvt_pk_bf16_f32 v40, v40, v40
v_and_b32 v40, 0xffff0000, v40
v_add_f32 v40, s21, v40
v_cvt_pk_bf16_f32 v40, v40, v40
v_and_b32 v40, 0xffff0000, v40
v_mov_b32 v41, v27
s_mov_b64 exec, 0xffff
s_cmp_lt_u32 s52, 80
s_cbranch_scc1 KM_gran
s_lshl_b32 s23, s52, 6
v_lshlrev_b32 v23, 2, v1
buffer_store_dword v40, v23, s[12:15], s23 offen sc1
s_branch KM_pub
KM_gran:
s_lshl_b32 s23, s52, 7
s_add_u32 s23, s23, {MODG}
v_lshlrev_b32 v23, 3, v1
buffer_store_dwordx2 {P(40)}, v23, s[12:15], s23 offen sc1
KM_pub:
s_mov_b64 exec, -1
KM_nog3:""")
    M = lambda t: 120+6*t
    N = lambda x, y: 144+6*(2*x+y)
    def gen_(R, cur, step, last, t0=12):
        for hh in range(2):
            a(f"""v_cos_f32 v{t0}, v{cur}
v_sin_f32 v{t0+1}, v{cur}
v_add_f32 v{cur}, v{cur}, v{step}
v_cos_f32 v{t0+2}, v{cur}
v_sin_f32 v{t0+3}, v{cur}
v_add_f32 v{cur}, v{cur}, v{last if hh else step}
v_cvt_pk_bf16_f32 v{R+2+hh}, v{t0}, v{t0+2}
v_cvt_pk_bf16_f32 v{R+hh}, -v{t0+1}, -v{t0+3}
v_cvt_pk_bf16_f32 v{R+4+hh}, v{t0+1}, v{t0+3}""")
    a(f"""v_bfe_u32 v46, v0, 6, 2
v_lshl_add_u32 v46, v46, 4, v5
v_cvt_f32_u32 v46, v46
v_cvt_f32_u32 v47, v6
v_cvt_f32_u32 v48, v5
v_mul_f32 v47, 4.0, v47
v_mul_f32 v49, {fh(1/64)}, v46
v_mul_f32 v50, v47, v49
v_mul_f32 v51, {fh(13.0)}, v49""")
    for t in range(4): gen_(M(t), 50, 49, 51, 52)
    for x in range(2):
        a(f"v_add_f32 v49, {fh(16.0*x)}, v48\nv_mul_f32 v49, {fh(1/32)}, v49\nv_mul_f32 v50, v47, v49\nv_mul_f32 v51, {fh(13.0)}, v49")
        for y in range(2): gen_(N(x, y), 50, 49, 51, 52)
    a(f"""s_lshl_b32 s23, s3, 11
s_lshl_b32 s21, s20, 8
s_add_u32 s23, s23, s21
s_add_u32 s23, s23, {XF}""")
    ST('a')
    bar(a, 'W', 'g2')
    ST('a')
    for j in range(5): a(f"ds_read_b64 {P(40+2*j)}, v7 offset:{2560+512*j}\nds_read_b64 {P(50+2*j)}, v7 offset:{512*j}")
    for j in range(5): a(f"v_pk_mul_f32 {P(28+2*j)}, {P(60+2*j)}, {P(70)} op_sel_hi:[1,0]")
    a("s_waitcnt lgkmcnt(0)")
    for j in range(5): a(f"v_pk_fma_f32 {P(28+2*j)}, {P(28+2*j)}, {P(40+2*j)}, {P(50+2*j)}")
    h = {(3*j) % 5: 28+2*j for j in range(5)}
    t1,t2,t3,t4 = 40,42,44,46; z0,p1,q1,p2,q2 = 48,50,52,54,56
    a(f"""v_pk_add_f32 {P(t1)}, {P(h[1])}, {P(h[4])}
v_pk_add_f32 {P(t2)}, {P(h[2])}, {P(h[3])}
v_pk_add_f32 {P(t3)}, {P(h[1])}, {P(h[4])} neg_lo:[0,1] neg_hi:[0,1]
v_pk_add_f32 {P(t4)}, {P(h[2])}, {P(h[3])} neg_lo:[0,1] neg_hi:[0,1]
v_pk_add_f32 {P(z0)}, {P(h[0])}, {P(t1)}
v_pk_fma_f32 {P(p1)}, s[30:31], {P(t1)}, {P(h[0])}
v_pk_fma_f32 {P(p2)}, s[32:33], {P(t1)}, {P(h[0])}
v_pk_mul_f32 {P(q1)}, s[34:35], {P(t3)}
v_pk_mul_f32 {P(q2)}, s[36:37], {P(t3)}
v_pk_add_f32 {P(z0)}, {P(z0)}, {P(t2)}
v_pk_fma_f32 {P(p1)}, s[32:33], {P(t2)}, {P(p1)}
v_pk_fma_f32 {P(p2)}, s[30:31], {P(t2)}, {P(p2)}
v_pk_fma_f32 {P(q1)}, s[36:37], {P(t4)}, {P(q1)}
v_pk_fma_f32 {P(q2)}, s[34:35], {P(t4)}, {P(q2)} neg_lo:[0,1,0] neg_hi:[0,1,0]
v_cvt_pk_bf16_f32 v22, v{z0}, v{z0+1}
ds_write_b32 v14, v22 offset:8192""")
    for k, (p, q) in enumerate(((p1, q1), (p2, q2))):
        c, s = 88+4*k, 90+4*k; r, im = 28+4*k, 30+4*k
        a(f"""v_pk_mul_f32 {P(r)}, {P(p)}, {P(c)}
v_pk_mul_f32 {P(im)}, {P(p)}, {P(s)}
v_pk_fma_f32 {P(r)}, {P(q)}, {P(s)}, {P(r)}
v_pk_fma_f32 {P(im)}, {P(q)}, {P(c)}, {P(im)} neg_lo:[1,0,0] neg_hi:[1,0,0]
v_cvt_pk_bf16_f32 v{23+2*k}, v{r}, v{r+1}
v_cvt_pk_bf16_f32 v{24+2*k}, v{im}, v{im+1}
ds_write_b32 v{14+k}, v{23+2*k}
ds_write_b32 v{14+k}, v{24+2*k} offset:4096""")
    a("s_waitcnt vmcnt(0) lgkmcnt(0)")
    bar(a, 'W', 'k1a')
    for T in range(3):
        for t in range(4): a(f"ds_read_b128 {Q(28+16*T+4*t)}, v{16+t} offset:{4096*T}")
    n = 12
    for T in range(3):
        for t in range(4):
            n -= 1
            a(f"s_waitcnt lgkmcnt({n})")
            a(f"v_mfma_f32_16x16x32_bf16 {Q(76+4*T)}, {Q(28+16*T+4*t)}, {Q(96+4*t)}, {'0' if t == 0 else Q(76+4*T)}")
    a(f"""v_and_b32 v22, 0x80008000, v9
v_and_b32 v23, v9, v12
v_bfi_b32 v24, v9, v22, v12
v_pk_mul_f32 {P(28)}, {P(76)}, {P(10)} op_sel_hi:[1,0]
v_pk_mul_f32 {P(30)}, {P(78)}, {P(10)} op_sel_hi:[1,0]
v_pk_mul_f32 {P(32)}, {P(80)}, {P(10)} op_sel_hi:[1,0]
v_pk_mul_f32 {P(34)}, {P(82)}, {P(10)} op_sel_hi:[1,0]""")
    for i in range(4):
        a(f"v_add_f32_dpp v{76+i}, v{32+i}, v{76+i} row_ror:8 {DPP}")
        a(f"v_subrev_f32_dpp v{80+i}, v{28+i}, v{80+i} row_ror:8 {DPP}")
    a(f"""v_cvt_pk_bf16_f32 v36, v76, v77
v_cvt_pk_bf16_f32 v37, v78, v79
v_cvt_pk_bf16_f32 v38, v80, v81
v_cvt_pk_bf16_f32 v39, v82, v83
v_cvt_pk_bf16_f32 v44, v84, v85
v_cvt_pk_bf16_f32 v45, v86, v87
v_xor_b32 v36, v36, v23
v_xor_b32 v37, v37, v23
v_xor_b32 v38, v38, v24
v_xor_b32 v39, v39, v24
v_xor_b32 v44, v44, v22
v_xor_b32 v45, v45, v22
v_cndmask_b32 v40, v36, v38, s[42:43]
v_cndmask_b32 v41, v37, v39, s[42:43]
v_cndmask_b32 v42, v38, v36, s[42:43]
v_cndmask_b32 v43, v39, v37, s[42:43]
buffer_store_dwordx4 {Q(40)}, v11, s[12:15], s23 offen sc1
v_mov_b32_dpp v46, v44 row_ror:8 {DPP}
v_mov_b32_dpp v47, v45 row_ror:8 {DPP}
s_mov_b32 exec_lo, 0x00ff00ff
s_mov_b32 exec_hi, 0
buffer_store_dwordx4 {Q(44)}, v13, s[12:15], s23 offen sc1
s_mov_b64 exec, -1""")
    ST('a')
    a(f"""s_lshr_b32 s26, s22, 2
s_and_b32 s27, s22, 3
""")
    task_ids(a, 26)
    a(f"""s_cmp_gt_u32 s28, 320
s_cbranch_scc1 KM_k2skip
s_cmp_eq_u32 s28, 320
s_cselect_b32 s41, {32*65536}, s41
s_lshr_b32 s21, s28, 5
s_lshl_b32 s21, s21, 3
s_and_b32 s23, s28, 7
s_add_u32 s21, s21, s23
s_sub_u32 s23, 128, s21
s_cmp_eq_u32 s21, 0
s_cselect_b32 s23, 64, s23
s_bitcmp1_b32 s28, 3
s_cselect_b32 s21, s23, s21
s_mul_i32 s21, s21, 5
s_bfe_u32 s23, s28, 0x10004
s_lshl_b32 s23, s23, 7
s_add_u32 s21, s21, s23
s_add_u32 s21, s21, 128
s_sub_u32 s23, s21, 640
s_min_u32 s21, s21, s23
s_sub_u32 s23, 640, s21
s_min_u32 s21, s21, s23
s_sub_u32 s23, s28, 256
s_mul_i32 s23, s23, 5
s_cmp_ge_u32 s28, 256
s_cselect_b32 s40, s23, s21
v_and_b32 v1, 15, v0
v_bfe_u32 v2, v0, 4, 2
v_bfe_u32 v3, v0, 6, 2
v_and_b32 v9, 63, v0
v_lshl_add_u32 v4, v3, 2, v2
v_xor_b32 v10, v4, v1
v_lshl_add_u32 v4, v4, 4, v10
v_lshlrev_b32 v4, 7, v4
v_lshrrev_b32 v5, 1, v1
v_and_b32 v6, 1, v1
v_lshl_add_u32 v5, v6, 3, v5
v_lshl_add_u32 v5, v2, 4, v5
v_lshlrev_b32 v5, 4, v5
v_lshl_add_u32 v5, v3, 11, v5
s_add_u32 s21, s41, {XF}
s_add_u32 s23, s21, 32768
s_lshl_b32 s29, s28, 13
s_lshl_b32 s48, s26, 14
s_add_u32 s48, s48, {K2B}
v_lshl_add_u32 v6, v3, 4, v1
v_cvt_f32_u32 v6, v6
v_cvt_f32_u32 v7, v2
v_cvt_f32_u32 v8, v1
v_mul_f32 v7, 4.0, v7
""")
    a(f"v_mul_f32 v16, {fh(-1/2048)}, v6\nv_mul_f32 v10, v7, v16\nv_mul_f32 v11, {fh(13.0)}, v16")
    for k in range(8):
        a(f"v_cos_f32 v{56+k}, v10\nv_sin_f32 v{64+k}, v10")
        if k < 7: a(f"v_add_f32 v10, v10, v{11 if k == 3 else 16}")
    if 'gx1' in OPT:
        for l in (f"buffer_load_dwordx4 {Q(24)}, v4, s[12:15], s21 offen sc1", f"buffer_load_dwordx4 {Q(28)}, v4, s[12:15], s23 offen sc1"): a(l)
    a(f"""s_lshl_b32 s24, s27, 4
v_cvt_f32_u32 v12, s24
v_add_f32 v12, v12, v7
s_mov_b32 s38, {fh(2.0/(2048*640))}
s_cmp_eq_u32 s28, 256
s_cselect_b32 s38, {fh(1.0/(2048*640))}, s38
s_cmp_eq_u32 s28, 320
s_cselect_b32 s38, {fh(1.0/(2048*640))}, s38
s_mov_b32 s39, s38""")
    for nt in range(2):
        a(f"v_add_f32 v16, {fh(16.0*nt)}, v8\nv_mul_f32 v16, {fh(1/2048)}, v16\nv_mul_f32 v10, v12, v16")
        for i in range(4):
            k = 4*nt+i
            a(f"v_cos_f32 v{72+k}, v10\nv_sin_f32 v{80+k}, v10")
            if i < 3: a("v_add_f32 v10, v10, v16")
    for k in range(8): a(f"v_pk_mul_f32 {P(72+2*k)}, s[38:39], {P(72+2*k)}")
    a(f"""v_xor_b32 v10, v2, v1
v_lshlrev_b32 v10, 4, v10
v_lshl_add_u32 v10, v1, 8, v10
v_add_u32 v10, s48, v10
v_xor_b32 v11, 64, v10
v_xor_b32 v12, 128, v10
v_xor_b32 v13, 192, v10
v_lshlrev_b32 v7, 4, v9
v_add_u32 v7, s48, v7
s_lshl_b32 s24, s27, 10
v_add_u32 v6, s24, v7
v_lshlrev_b32 v8, 4, v9
v_lshl_add_u32 v8, v3, 11, v8
s_add_u32 s24, s24, s48
s_lshl_b32 s25, s40, 13
s_add_u32 s25, s25, {WP}
s_mov_b32 m0, s24""")
    ST('b')
    gather2(a, 'KM_gx', f"buffer_load_dwordx4 {Q(24)}, v4, s[12:15], s21 offen sc1", f"buffer_load_dwordx4 {Q(28)}, v4, s[12:15], s23 offen sc1", 24, 28, 32, pre=('gx1' in OPT), dly=OPT.get('dx', 0))
    a(f"""ds_write_b128 v6, {Q(24)}
ds_write_b128 v6, {Q(28)} offset:4096
s_add_u32 s21, s29, {YF}
s_add_u32 s23, s21, 1024
s_waitcnt lgkmcnt(0)""")
    bar(a, 'W', 'k2a')
    ST('b')
    a(f"""buffer_load_dwordx4 v[48:51], v5, s[12:15], s25 offen sc1
buffer_load_dwordx4 v[52:55], v5, s[12:15], s25 offen offset:1024 sc1""")
    D = lambda mt, t: 16+16*mt+4*t
    for t in range(4):
        for mt in range(2): a(f"ds_read_b128 {Q(D(mt,t))}, v{10+t} offset:{4096*mt}")
    def mf(d, A, B, first): a(f"v_mfma_f32_16x16x32_bf16 {Q(d)}, {Q(A)}, {Q(B)}, {'0' if first else Q(d)}")
    a("s_and_b32 s24, s28, 0xffffffbf\ns_cmp_lg_u32 s24, 256\ns_cbranch_scc1 KM_k2gen\ns_waitcnt lgkmcnt(0)\ns_cmp_eq_u32 s28, 256\ns_cbranch_scc1 KM_k2z")
    for f in range(8): a(f"v_mov_b32 v{16+4*f}, v{18+4*f}\nv_mov_b32 v{17+4*f}, v{19+4*f}")
    a("KM_k2z:")
    for f in range(8): a(f"v_mov_b32 v{18+4*f}, 0\nv_mov_b32 v{19+4*f}, 0")
    a("s_nop 1\nKM_k2gen:")
    for t in range(4):
        a(f"s_waitcnt lgkmcnt({6-2*t})")
        for mt in range(2):
            mf(88+8*mt, D(mt,t), M(t)+2, t == 0)
            mf(92+8*mt, D(mt,t), M(t), t == 0)
    def tw_pack(tr, ti, B, swap):
        for blk in range(2):
            for hh in range(2):
                r = 88+8*blk+2*hh; i = r+4; c = tr+4*blk+2*hh; s = ti+4*blk+2*hh; t = 104+4*blk+2*hh
                a(f"""v_pk_mul_f32 {P(t)}, {P(i)}, {P(s)}
v_pk_mul_f32 {P(i)}, {P(i)}, {P(c)}
v_pk_fma_f32 {P(i)}, {P(r)}, {P(s)}, {P(i)}
v_pk_fma_f32 {P(r)}, {P(r)}, {P(c)}, {P(t)} neg_lo:[0,0,1] neg_hi:[0,0,1]""")
        for blk in range(2):
            for hh in range(2):
                r = 88+8*blk+2*hh
                a(f"v_cvt_pk_bf16_f32 v{B+4*blk+hh+(2 if swap else 0)}, v{r}, v{r+1}")
                a(f"v_cvt_pk_bf16_f32 v{B+4*blk+hh+(0 if swap else 2)}, v{r+4}, v{r+5}")
    tw_pack(56, 64, 16, False)
    for y in range(2):
        for x in range(2):
            mf(88+8*x, N(x,y)+2, 16+4*y, y == 0)
            mf(92+8*x, N(x,y), 16+4*y, y == 0)
    a("s_waitcnt vmcnt(0)")
    for k in range(8): a(f"v_lshlrev_b32 v{32+k}, 16, v{48+k}\nv_and_b32 v{40+k}, 0xffff0000, v{48+k}")
    tw_pack(32, 40, 24, True)
    for y in range(2):
        for x in range(2):
            mf(88+8*x, 24+4*y, N(x,y), y == 0)
            mf(92+8*x, 24+4*y, N(x,y)+2, y == 0)
    tw_pack(72, 80, 16, True)
    a(f"ds_write_b128 v6, {Q(16)} offset:8192\nds_write_b128 v6, {Q(20)} offset:12288\ns_waitcnt lgkmcnt(0)")
    bar(a, 'W', 'k2b')
    for t in range(4):
        for nt in range(2): a(f"ds_read_b128 {Q(D(nt,t))}, v7 offset:{8192+4096*nt+1024*t}")
    for t in range(4):
        a(f"s_waitcnt lgkmcnt({6-2*t})")
        for nt in range(2):
            mf(88+8*nt, M(t), D(nt,t), t == 0)
            mf(92+8*nt, M(t)+2, D(nt,t), t == 0)
    for nt in range(2):
        o = 48+4*nt; s = 88+8*nt
        for k in range(4): a(f"v_cvt_pk_bf16_f32 v{o+k}, v{s+2*k}, v{s+2*k+1}")
        a(f"buffer_store_dwordx4 {Q(o)}, v8, s[12:15], s{21+2*nt} offen sc1")
    ST('b')
    a("s_branch KM_k2done\nKM_k2skip:\ns_barrier\ns_barrier\nKM_k2done:")
    a(f"""v_and_b32 v1, 63, v0
v_and_b32 v3, 31, v0
v_lshlrev_b32 v2, 3, v3
v_bfe_u32 v4, v0, 5, 1
v_lshl_add_u32 v2, v4, 8, v2
v_lshlrev_b32 v3, 2, v3
v_lshl_add_u32 v3, v4, 1, v3
v_and_b32 v5, 15, v0
v_bfe_u32 v6, v0, 4, 2""")
    col_slots(a, 22, 5, 6, 8, 22)
    addr_yf(a)
    a(f"""
s_and_b32 s23, s3, 15
s_lshl_b32 s23, s23, 4
s_lshr_b32 s21, s3, 4
s_lshl_b32 s21, s21, 10
s_add_u32 s23, s23, s21
s_lshr_b32 s21, s20, 1
s_lshl_b32 s21, s21, 11
s_add_u32 s23, s23, s21
s_and_b32 s21, s20, 1
s_lshl_b32 s21, s21, 9
s_add_u32 s23, s23, s21
s_add_u32 s23, s23, {YF}
s_lshl_b32 s21, s20, 3
s_add_u32 s21, s21, s22
s_lshl_b32 s24, s3, 6
s_add_u32 s24, s24, s21
s_mul_i32 s24, s24, 1280
""")
    w5_consts(a, 88, 22, 1.0)
    a(f"""
s_lshl_b32 s27, s22, 4
v_add_u32 v22, s27, v5
v_cvt_f32_u32 v22, v22
v_mul_f32 v22, {fh(1/128)}, v22
v_and_b32 v23, 1, v6
v_cvt_f32_u32 v23, v23
v_mul_f32 v23, 4.0, v23
v_lshrrev_b32 v24, 1, v6
v_cvt_f32_u32 v24, v24
v_mul_f32 v24, {fh(0.25)}, v24
v_fma_f32 v23, v23, v22, v24
v_mul_f32 v24, {fh(5.0)}, v22
v_mul_f32 v27, {fh(64.0)}, v22
v_cmp_eq_u32 vcc, 2, v6
v_cndmask_b32 v27, v23, v27, vcc
""")
    for t in range(4):
        for jj in range(4):
            a(f"""v_cos_f32 v25, v{27 if (t, jj) == (0, 0) else 23}
v_add_f32 v23, v23, v22
v_cos_f32 v26, v23
v_add_f32 v23, v23, v{24 if jj & 1 else 22}
v_cvt_pk_bf16_f32 v{96+4*t+jj}, v25, v26""")
    a(f"""
v_lshlrev_b32 v14, 5, v5
v_lshl_add_u32 v14, v6, 3, v14
s_lshl_b32 s27, s22, 9
s_add_u32 s27, s27, {TB}
v_add_u32 v14, s27, v14
v_and_b32 v15, 4096, v9
v_add_u32 v15, v15, v14
v_xor_b32 v112, 4096, v15
v_lshlrev_b32 v113, 3, v1
v_add_u32 v113, {TB}, v113
v_and_b32 v22, 7, v5
v_mul_u32_u24 v22, {ZR}, v22
v_lshl_add_u32 v22, v6, 4, v22
s_lshl_b32 s27, s22, 6
s_add_u32 s27, s27, {ZB}
v_add_u32 v17, s27, v22
v_lshrrev_b32 v22, 3, v5
v_mul_u32_u24 v22, {2*ZC}, v22
v_add_u32 v16, v17, v22
v_lshlrev_b32 v4, 2, v3
s_mul_i32 s27, s22, {ZR}
s_add_u32 s27, s27, {ZB}
v_add_u32 v7, s27, v4
v_add_u32 v4, {PB}, v4
v_and_b32 v22, 0x80000000, v9
v_xor_b32 v22, v22, v10
v_and_b32 v23, 0x80008000, v9
v_xor_b32 v24, v23, v12
""")
    for j in range(5):
        a(f"ds_read_b64 {P(120+2*j)}, v4 offset:{512*j}\nds_read_b64 {P(140+2*j)}, v4 offset:{5120+512*j}\nds_read_b64 {P(130+2*j)}, v4 offset:{2560+512*j}")
    a("s_waitcnt lgkmcnt(0)")
    ST('c')
    gather2(a, 'KM_gy', f"buffer_load_dwordx4 {Q(28)}, v11, s[12:15], s23 offen sc1", f"buffer_load_dwordx4 {Q(32)}, v13, s[12:15], s23 offen sc1", 28, 32, 36, dly=OPT.get('dy', 0))
    ST('c')
    a(f"""v_cndmask_b32 v32, v32, v34, s[42:43]
v_cndmask_b32 v33, v33, v35, s[42:43]
v_xor_b32 v26, v30, v24
v_xor_b32 v27, v31, v24
v_xor_b32 v30, v30, v12
v_xor_b32 v31, v31, v12
ds_write_b64 v14, {P(32)} offset:8192""")
    for hh in range(2):
        a(f"""v_lshlrev_b32 v{36+2*hh}, 16, v{28+hh}
v_and_b32 v{37+2*hh}, 0xffff0000, v{28+hh}
v_lshlrev_b32 v{40+2*hh}, 16, v{30+hh}
v_and_b32 v{41+2*hh}, 0xffff0000, v{30+hh}
v_lshlrev_b32 v{44+2*hh}, 16, v{28+hh}
v_and_b32 v{45+2*hh}, 0xffff0000, v{28+hh}
v_lshlrev_b32 v{48+2*hh}, 16, v{26+hh}
v_and_b32 v{49+2*hh}, 0xffff0000, v{26+hh}""")
    for i in range(4):
        a(f"v_fmac_f32_dpp v{44+i}, v{36+i}, v22 row_ror:8 {DPP}")
        a(f"v_fmac_f32_dpp v{48+i}, v{40+i}, v10 row_ror:8 {DPP}")
    a(f"""v_cvt_pk_bf16_f32 v52, v44, v45
v_cvt_pk_bf16_f32 v53, v46, v47
v_cvt_pk_bf16_f32 v54, v48, v49
v_cvt_pk_bf16_f32 v55, v50, v51
ds_write_b64 v15, {P(52)}
ds_write_b64 v112, {P(54)}
s_waitcnt lgkmcnt(0)""")
    bar(a, 'W', 'b1')
    for T in range(3):
        for t in range(4):
            for x in range(2): a(f"ds_read_b64_tr_b16 {P(28+16*T+4*t+2*x)}, v113 offset:{4096*T+1024*t+512*x}")
            if T == 1 and t == 3:
                a("s_waitcnt lgkmcnt(8)")
                for tt in range(4): a(f"v_mfma_f32_16x16x32_bf16 {Q(76)}, {Q(96+4*tt)}, {Q(28+4*tt)}, {'0' if tt == 0 else Q(76)}")
    for T in (1, 2):
        a(f"s_waitcnt lgkmcnt({8 if T == 1 else 0})")
        for t in range(4): a(f"v_mfma_f32_16x16x32_bf16 {Q(76+4*T)}, {Q(96+4*t)}, {Q(28+16*T+4*t)}, {'0' if t == 0 else Q(76+4*T)}")
    a(f"ds_write_b128 v16, {Q(76)} offset:{ZC}")
    for j in range(5): a(f"v_lshlrev_b32 v{28+2*j}, 16, v{XR+j}\nv_and_b32 v{29+2*j}, 0xffff0000, v{XR+j}")
    a(f"""ds_write_b128 v16, {Q(80)} offset:{2*ZC}
ds_write_b128 v17, {Q(84)}
s_waitcnt lgkmcnt(0)""")
    bar(a, 'W', 'b2')
    for c in range(5): a(f"ds_read_b64 {P(40+2*c)}, v7 offset:{ZC*c}")
    a("s_waitcnt lgkmcnt(0)")
    bar(a, 'W', 'b3')
    for k in range(2):
        r, im = 42+4*k, 44+4*k; c, s = 88+4*k, 90+4*k; R, I = 50+4*k, 52+4*k
        a(f"""v_pk_mul_f32 {P(R)}, {P(r)}, {P(c)}
v_pk_mul_f32 {P(I)}, {P(r)}, {P(s)}
v_pk_fma_f32 {P(R)}, {P(im)}, {P(s)}, {P(R)} neg_lo:[1,0,0] neg_hi:[1,0,0]
v_pk_fma_f32 {P(I)}, {P(im)}, {P(c)}, {P(I)}""")
    z0,z1r,z1i,z2r,z2i = 40,50,52,54,56
    A,B,Cc,Dd,E = 58,60,62,64,66
    sl = {(3*j) % 5: j for j in range(5)}
    X = lambda d2: P(28+2*sl[d2]); G = lambda d2: P(120+2*sl[d2])
    a(f"""v_pk_add_f32 {P(E)}, {P(z0)}, {P(z1r)}
v_pk_fma_f32 {P(A)}, s[30:31], {P(z1r)}, {P(z0)}
v_pk_fma_f32 {P(B)}, s[32:33], {P(z1r)}, {P(z0)}
v_pk_mul_f32 {P(Cc)}, s[34:35], {P(z1i)}
v_pk_mul_f32 {P(Dd)}, s[36:37], {P(z1i)}
v_pk_add_f32 {P(E)}, {P(E)}, {P(z2r)}
v_pk_fma_f32 {P(A)}, s[32:33], {P(z2r)}, {P(A)}
v_pk_fma_f32 {P(B)}, s[30:31], {P(z2r)}, {P(B)}
v_pk_fma_f32 {P(Cc)}, s[36:37], {P(z2i)}, {P(Cc)}
v_pk_fma_f32 {P(Dd)}, s[34:35], {P(z2i)}, {P(Dd)} neg_lo:[0,1,0] neg_hi:[0,1,0]
v_pk_fma_f32 {X(0)}, {G(0)}, {P(E)}, {X(0)}
v_pk_add_f32 {P(68)}, {P(A)}, {P(Cc)} neg_lo:[0,1] neg_hi:[0,1]
v_pk_add_f32 {P(70)}, {P(A)}, {P(Cc)}
v_pk_add_f32 {P(72)}, {P(B)}, {P(Dd)} neg_lo:[0,1] neg_hi:[0,1]
v_pk_add_f32 {P(74)}, {P(B)}, {P(Dd)}
v_pk_fma_f32 {X(1)}, {G(1)}, {P(68)}, {X(1)}
v_pk_fma_f32 {X(4)}, {G(4)}, {P(70)}, {X(4)}
v_pk_fma_f32 {X(2)}, {G(2)}, {P(72)}, {X(2)}
v_pk_fma_f32 {X(3)}, {G(3)}, {P(74)}, {X(3)}
s_add_u32 s25, s24, {X1}
s_add_u32 s26, s24, {H2F}""")
    for j in range(5): a(f"v_cvt_pk_bf16_f32 v{16+j}, v{28+2*j}, v{29+2*j}")
    a(f"""v_permlane32_swap_b32 v16, v17
v_permlane32_swap_b32 v18, v19
buffer_store_dwordx2 {P(16)}, v2, s[12:15], s25 offen sc1
buffer_store_dwordx2 {P(18)}, v2, s[12:15], s25 offen offset:512 sc1""")
    ln_rows(a, 28, 22)
    a(f"v_bfe_u32 v24, v0, 5, 1\nv_mul_u32_u24 v24, {H2F - X1 - 256}, v24\nv_add_u32 v24, v24, v2")
    for j in range(5): a(f"v_pk_mul_f32 {P(140+2*j)}, {P(140+2*j)}, {P(22)} op_sel_hi:[1,0]")
    for j in range(5): a(f"v_pk_fma_f32 {P(28+2*j)}, {P(28+2*j)}, {P(140+2*j)}, {P(130+2*j)}")
    for j in range(4): a(f"v_cvt_pk_bf16_f32 v{40+j}, v{28+2*j}, v{29+2*j}")
    a(f"""v_cvt_pk_bf16_f32 v21, v36, v37
v_permlane32_swap_b32 v40, v41
v_permlane32_swap_b32 v42, v43
v_permlane32_swap_b32 v20, v21
buffer_store_dwordx2 {P(40)}, v2, s[12:15], s26 offen sc1
buffer_store_dwordx2 {P(42)}, v2, s[12:15], s26 offen offset:512 sc1
buffer_store_dwordx2 {P(20)}, v24, s[12:15], s25 offen offset:1024 sc1""")
    ST('c')
    a(f"""v_mov_b32 v2, v1
s_lshr_b32 s26, s22, 2
s_and_b32 s27, s22, 3
v_lshrrev_b32 v3, 4, v2
v_bfe_u32 v4, v2, 2, 2
v_lshl_add_u32 v4, v3, 3, v4
v_mul_u32_u24 v4, 192, v4
v_and_b32 v5, 3, v2
v_lshl_add_u32 v4, v5, 3, v4
v_and_b32 v5, 1, v3
v_lshlrev_b32 v5, 5, v5
s_mul_i32 s28, s26, 96
v_add_u32 v4, s28, v4
s_cmp_eq_u32 s26, 0
s_cselect_b32 s29, 1, -1
v_mul_lo_u32 v5, v5, s29
v_add_u32 v6, v4, v5
v_sub_u32 v7, v4, v5
v_add_u32 v8, {4*WS_}, v6
v_add_u32 v9, {4*WS_}, v7
v_and_b32 v10, 15, v2
v_lshrrev_b32 v11, 1, v10
v_xor_b32 v11, v11, v3
v_lshlrev_b32 v11, 4, v11
v_lshl_add_u32 v11, v10, 7, v11
s_lshl_b32 s28, s27, 12
s_add_u32 s28, s28, {HB}
v_add_u32 v11, s28, v11
v_xor_b32 v12, 64, v11
s_load_dwordx2 s[60:61], s[0:1], 72
s_waitcnt vmcnt(0)""")
    ST('c')
    bar(a, 'W', 'd1')
    ACC = lambda mat, i, nt: 16 + 4*(6*nt + 3*mat + i)
    FA = lambda buf, mat, i: 64 + 32*buf + 4*(3*mat+i)
    FB = lambda buf, nt: 88 + 32*buf + 4*nt
    def reads(s):
        L = []; sl = s % 8
        for nt in range(2): L.append(f"ds_read_b128 {Q(FB(s & 1, nt))}, v{11 + (s & 1)} offset:{((s//2) % 4)*HS + 2048*nt}")
        for mat in range(2):
            for i in range(3):
                for x in range(2):
                    L.append(f"ds_read_b64_tr_b16 {P(FA(s & 1, mat, i) + 2*x)}, v{6 + (i & 1) + 2*(sl//4)} offset:{(sl % 4)*WS_ + mat*6144 + 4*x*192 + 32*i}")
        return L
    bar(a, 'W', 'B0')
    ST('d')
    for l in reads(0): a(l)
    for s in range(NST):
        a("s_waitcnt lgkmcnt(0)")
        if s & 1: bar(a, 'W', f'B{(s+1)//2}')
        R = reads(s+1) if s+1 < NST else []
        k = 0
        for mat in range(2):
            for i in range(3):
                for nt in range(2):
                    c = ACC(mat, i, nt)
                    a(f"v_mfma_f32_16x16x32_bf16 {Q(c)}, {Q(FA(s & 1, mat, i))}, {Q(FB(s & 1, nt))}, {'0' if s == 0 else Q(c)}")
                    for l in R[2*k:2*k+2]: a(l)
                    k += 1
    ST('d')
    kk = 2*0.7978845608028654*math.log2(math.e)
    a(f"""s_mov_b32 s30, {fh(-kk*0.044715)}
s_mov_b32 s31, {fh(-kk*0.044715)}
v_mov_b32 v10, {fh(-kk)}
v_mov_b32 v11, {fh(-kk)}
s_lshl_b32 s29, s50, 3
s_lshl_b32 s28, s27, 1
s_add_u32 s29, s29, s28
s_mul_i32 s29, s29, 49152
s_mul_i32 s28, s51, 3072
s_add_u32 s29, s29, s28
s_mul_i32 s28, s26, 1536
s_add_u32 s29, s29, s28
s_add_u32 s29, s29, {HIDF}
v_bfe_u32 v7, v2, 4, 1
v_mul_u32_u24 v7, 49152, v7
v_lshrrev_b32 v8, 5, v2
v_lshl_add_u32 v7, v8, 8, v7
v_and_b32 v8, 15, v2
v_lshl_add_u32 v7, v8, 4, v7""")
    for nt in range(2):
        Gt = ACC(0, 0, nt); U = ACC(1, 0, nt); T = 64 + 16*nt
        for i in range(0, 12, 2): a(f"v_pk_mul_f32 {P(T+i)}, {P(Gt+i)}, {P(Gt+i)}")
        for i in range(0, 12, 2): a(f"v_pk_fma_f32 {P(T+i)}, {P(T+i)}, s[30:31], {P(10)}")
        for i in range(0, 12, 2): a(f"v_pk_mul_f32 {P(T+i)}, {P(T+i)}, {P(Gt+i)}")
        for i in range(0, 12, 2): a(f"v_exp_f32 v{T+i}, v{T+i}\nv_exp_f32 v{T+i+1}, v{T+i+1}\nv_pk_mul_f32 {P(Gt+i)}, {P(Gt+i)}, {P(U+i)}")
        for i in range(0, 12, 2): a(f"v_pk_add_f32 {P(T+i)}, {P(T+i)}, 1.0 op_sel_hi:[1,0]")
        for i in range(12): a(f"v_rcp_f32 v{T+i}, v{T+i}")
        for i in range(0, 12, 2): a(f"v_pk_mul_f32 {P(Gt+i)}, {P(Gt+i)}, {P(T+i)}")
        for i in range(3):
            O = 96 + 4*i + 2*nt
            a(f"v_cvt_pk_bf16_f32 v{O}, v{Gt+4*i}, v{Gt+4*i+1}\nv_cvt_pk_bf16_f32 v{O+1}, v{Gt+4*i+2}, v{Gt+4*i+3}")
    for i in range(3):
        O = 96 + 4*i
        a(f"""v_permlane16_swap_b32 v{O}, v{O+2}
v_permlane16_swap_b32 v{O+1}, v{O+3}
buffer_store_dwordx4 {Q(O)}, v7, s[12:15], s29 offen offset:{512*i} sc1""")
    ST('d')
    a(f"""s_lshl_b32 s30, s50, 3
s_lshr_b32 s28, s51, 3
s_lshl_b32 s28, s28, 2
s_add_u32 s30, s30, s28
s_add_u32 s30, s30, s27
s_mul_i32 s29, s30, 49152
s_lshl_b32 s28, s26, 10
s_add_u32 s29, s29, s28
s_add_u32 s29, s29, {HIDF}
s_lshl_b32 s30, s30, 4
s_and_b32 s24, s51, 7
v_lshrrev_b32 v3, 2, v2
v_mul_u32_u24 v3, 160, v3
v_and_b32 v4, 3, v2
v_lshl_add_u32 v3, v4, 3, v3
s_mul_i32 s28, s26, 5120
v_add_u32 v3, s28, v3
v_add_u32 v4, {6*DW}, v3
v_add_u32 v5, {12*DW}, v3
v_lshlrev_b32 v6, 4, v2
v_and_b32 v12, 15, v2
v_lshrrev_b32 v13, 4, v2
v_mul_u32_u24 v8, 1280, v12
v_lshl_add_u32 v8, v13, 3, v8
s_mul_i32 s23, s30, 1280
s_mul_i32 s25, s24, 160
s_add_u32 s23, s23, s25
s_add_u32 s23, s23, {X1}
v_lshlrev_b32 v15, 4, v13
s_lshl_b32 s28, s25, 1
s_add_u32 s28, s28, 12800
s_lshl_b32 s21, s26, 6
s_add_u32 s23, s23, s21
s_lshl_b32 s21, s26, 7
s_add_u32 s28, s28, s21
s_waitcnt vmcnt(0)""")
    ST('d')
    if 'nohs' in OPT: bar(a, 'W', 'd2')
    a("s_mov_b32 s41, s29")
    srd(a, 16, 60, 2048*1280)
    AC2 = lambda mt: 16 + 4*mt
    FA2 = lambda buf, mt: 36 + 20*buf + 4*mt
    NB = 10
    FB2 = lambda s: 76 + 4*(s % NB)
    def reads2(s):
        p = WPOS(s)
        return [f"ds_read_b64_tr_b16 {P(FA2(s & 1, mt) + 2*x)}, v{3+p//6} offset:{(p % 6)*DW + x*2560 + 32*mt}" for mt in range(5) for x in range(2)]
    def ldb(s):
        a(f"buffer_load_dwordx4 {Q(FB2(s))}, v6, s[12:15], s29 offen offset:{2048*(s & 1)} sc1")
        if s & 1: a("s_add_u32 s29, s29, 4096")
    bar(a, 'W', 'C0')
    ST('d')
    nb = 0; nx = 0
    for s in range(NB-1): ldb(s); nb += 1
    for l in reads2(0): a(l)
    for s in range(NS2):
        f = FB2(s)
        if 'nohs' in OPT: a(f"s_waitcnt vmcnt({nb-s-1+nx}) lgkmcnt(0)\nKM_hr{s}:")
        else: a(f"""s_waitcnt vmcnt({nb-s-1+nx})
v_max3_u32 v9, v{f}, v{f+1}, v{f+2}
v_max_u32 v9, v9, v{f+3}
v_cmp_eq_u32 vcc, -1, v9
s_waitcnt lgkmcnt(0)
s_cmp_lg_u64 vcc, 0
s_cbranch_scc1 KM_hs{s}
KM_hr{s}:""")
        if s in CB: bar(a, 'W', f'C{s}')
        if nb < NS2: ldb(nb); nb += 1
        elif nx < 6:
            k = nx // 2
            a(f"buffer_load_dwordx2 {P(116+2*k)}, v8, s[12:15], s23 offen offset:{32*k} sc1")
            a(f"buffer_load_dwordx4 {Q(128+4*k)}, v15, s[12:15], s28 offen offset:{64*k} sc1")
            nx += 2
        R = reads2(s+1) if s+1 < NS2 else []
        for mt in range(5):
            c = AC2(mt)
            a(f"v_mfma_f32_16x16x32_bf16 {Q(c)}, {Q(FA2(s & 1, mt))}, {Q(FB2(s))}, {'0' if s == 0 else Q(c)}")
            for l in R[2*mt:2*mt+2]: a(l)
    RB = WPOS(10)*DW
    ST('d')
    a(f"""s_mul_i32 s28, s27, 5120
s_add_u32 s28, s28, {RB}
v_add_u32 v6, s28, v6
s_and_b32 s23, s30, 63
s_lshl_b32 s23, s23, 5
s_lshr_b32 s29, s30, 6
s_add_u32 s23, s23, s29
s_mul_i32 s23, s23, 1280
s_add_u32 s23, s23, s25
v_mul_u32_u24 v8, 40960, v12
v_lshl_add_u32 v8, v13, 3, v8
s_cmp_eq_u32 s26, 0
s_cbranch_scc1 KM_lo""")
    def fin(give, keep, base):
        for mt in give: a(f"ds_write_b128 v6, {Q(AC2(mt))} offset:{1024*mt}")
        a("s_waitcnt vmcnt(0)")
        for mt in keep:
            x = 116+2*(mt-base); r = 76+4*mt
            a(f"v_lshlrev_b32 v{r}, 16, v{x}\nv_and_b32 v{r+1}, 0xffff0000, v{x}\nv_lshlrev_b32 v{r+2}, 16, v{x+1}\nv_and_b32 v{r+3}, 0xffff0000, v{x+1}")
        a("s_waitcnt lgkmcnt(0)\ns_barrier")
        for mt in keep: a(f"ds_read_b128 {Q(36+4*mt)}, v6 offset:{1024*mt}")
        for n, mt in enumerate(keep):
            c = AC2(mt); x = 116+2*(mt-base); g = 128+4*(mt-base); r = 36+4*mt; o = 76+4*mt
            a(f"""s_waitcnt lgkmcnt({len(keep)-1-n})
v_pk_add_f32 {P(c)}, {P(c)}, {P(r)}
v_pk_add_f32 {P(c+2)}, {P(c+2)}, {P(r+2)}
v_pk_fma_f32 {P(o)}, {P(c)}, {P(g)}, {P(o)}
v_pk_fma_f32 {P(o+2)}, {P(c+2)}, {P(g+2)}, {P(o+2)}
v_cvt_pk_bf16_f32 v{x}, v{o}, v{o+1}
v_cvt_pk_bf16_f32 v{x+1}, v{o+2}, v{o+3}
buffer_store_dwordx2 {P(x)}, v8, s[16:19], s23 offen offset:{32*mt}""")
        a("@dump 12\ns_endpgm")
    nst = a.st.n
    fin([0,1,2], [3,4], 2)
    a.st.n = nst
    a("KM_lo:")
    fin([3,4], [0,1,2], 0)
    a.st.n = 1
    for s in range(NS2):
        f = FB2(s)
        a(f"""KM_hs{s}:
s_add_u32 s40, s41, {2048*s}
s_mov_b32 s46, 0x8000
KM_hl{s}:
s_mov_b64 exec, vcc
s_sleep 2
buffer_load_dwordx4 {Q(f)}, v6, s[12:15], s40 offen sc1
s_waitcnt vmcnt(0)
v_max3_u32 v9, v{f}, v{f+1}, v{f+2}
v_max_u32 v9, v9, v{f+3}
v_cmp_eq_u32 vcc, -1, v9
s_mov_b64 exec, -1
s_sub_u32 s46, s46, 1
s_cmp_eq_u32 s46, 0
s_cbranch_scc1 KM_hr{s}
s_cmp_lg_u64 vcc, 0
s_cbranch_scc1 KM_hl{s}
s_branch KM_hr{s}""")
    a(f"""KM_prod:
s_sub_u32 s47, s22, 8
s_waitcnt lgkmcnt(0)""")
    if OPT.get('wb'): a(f"s_add_u32 s6, s6, {OPT['wb']}\ns_addc_u32 s7, s7, 0")
    srd(a, 12, 6, WS_SIZE)
    srd(a, 16, 60, 256)
    a(f"""v_mov_b32 v60, 0
s_load_dwordx4 s[56:59], s[0:1], 32
s_load_dwordx2 s[4:5], s[0:1], 48
v_lshlrev_b32 v59, 4, v1
s_sub_u32 s53, s2, 80
s_xor_b32 s54, s47, 2
s_mul_i32 s54, s54, 192
s_sub_u32 s21, s2, 64
s_add_u32 s54, s54, s21
s_cmp_lt_u32 s2, 64
s_cselect_b32 s54, 999, s54
s_cmp_ge_u32 s47, 2
s_cbranch_scc1 KM_p_wp
s_cmp_lg_u32 s47, 0
s_cbranch_scc1 KM_p_pf
s_cmp_lg_u32 s2, 0
s_cbranch_scc1 KM_p_nn
s_memrealtime s[38:39]
s_waitcnt lgkmcnt(0)
s_or_b32 s38, s38, 1
v_mov_b32 v61, s38
s_mov_b64 exec, 1
buffer_store_dword v61, v60, s[16:19], 0 offen sc1
s_mov_b64 exec, -1
KM_p_nn:
KM_p_nc:""")
    spin(a, 'KM_pn', "buffer_load_dword v61, v60, s[16:19], 0 offen sc1", "v_cmp_eq_u32 vcc, 0, v61")
    a(f"""v_mov_b32 v62, {NON}
ds_write_b32 v62, v61
s_branch KM_p_no0
KM_p_pf:""")
    if 'nocpf' not in OPT:
        a(f"""s_cmp_lt_u32 s2, {256 - OPT.get('ncp', 16)}
s_cbranch_scc1 KM_p_no0
s_getpc_b64 s[38:39]
KM_pc:
s_sub_u32 s38, s38, KM_pc-{NAME}
s_subb_u32 s39, s39, 0
v_lshlrev_b32 v86, 7, v1""")
        for k in range(4):
            a(f"""v_add_u32 v87, {8192*k}, v86
v_min_u32 v87, KM_end-{NAME}, v87
global_load_dword v{88+k}, v87, s[38:39]""")
    a(f"""KM_p_no0:
s_waitcnt lgkmcnt(0)""")
    bar(a, 'P', 'g1')
    a(f"""v_mov_b32 v62, {NON}
ds_read_b32 v61, v62
s_mul_i32 s23, s47, 5120
s_add_u32 s23, s23, {MODG}
s_add_u32 s21, s23, 4096
v_lshlrev_b32 v62, 4, v1
s_mul_i32 s24, s47, 2560
s_add_u32 s24, s24, {PB1}
v_lshlrev_b32 v63, 3, v1
v_add_u32 v63, s24, v63
s_lshl_b32 s25, s2, 7
s_add_u32 s25, s25, {GFL}
s_lshl_b32 s26, s47, 14
s_add_u32 s26, s26, {GFL}
s_add_u32 s27, s26, 8192
v_lshlrev_b32 v58, 7, v1
s_waitcnt lgkmcnt(0)
s_cmp_lg_u32 s47, 0
s_cbranch_scc1 KM_p_nf
s_mov_b64 exec, 1
buffer_store_dword v61, v60, s[12:15], s25 offen sc1
s_mov_b64 exec, -1
KM_p_nf:""")
    ld = "\n".join([f"buffer_load_dwordx4 {Q(8+4*q)}, v62, s[12:15], {'s23' if q < 4 else 's21'} offen offset:{1024*(q % 4)} sc1" for q in range(5)])
    cm = "v_cmp_ne_u32 vcc, v9, v61\n" + "\n".join([f"v_cmp_ne_u32 s[38:39], v{r}, v61\ns_or_b64 vcc, vcc, s[38:39]" for r in range(11, 28, 2)])
    spin(a, 'KM_pg', ld, cm)
    for q in range(5): a(f"v_mov_b32 v{9+4*q}, v{10+4*q}\nds_write_b64 v63, {P(8+4*q)} offset:{512*q}")
    a("s_waitcnt lgkmcnt(0)")
    ST('p')
    a("s_barrier")
    spin(a, 'KM_A_p', "buffer_load_dword v11, v58, s[12:15], s26 offen sc1\nbuffer_load_dword v12, v58, s[12:15], s27 offen sc1", "v_cmp_ne_u32 vcc, v11, v61\nv_cmp_ne_u32 s[38:39], v12, v61\ns_or_b64 vcc, vcc, s[38:39]")
    ST('p')
    a("s_branch KM_p_ag2")
    a(f"""KM_p_wp:
s_sub_u32 s21, s47, 2""")
    task_ids(a, 21)
    a(f"""s_cmp_gt_u32 s28, 320
s_cbranch_scc1 KM_p_nyf
s_lshl_b32 s28, s28, 13
s_add_u32 s28, s28, {YF}
s_add_u32 s29, s28, 4096
v_mov_b32 v64, -1
v_mov_b32 v65, -1
v_mov_b32 v66, -1
v_mov_b32 v67, -1""")
    for q in range(8): a(f"buffer_store_dwordx4 {Q(64)}, v59, s[12:15], {'s28' if q < 4 else 's29'} offen offset:{1024*(q % 4)} sc1")
    a(f"""KM_p_nyf:
s_mul_i32 s21, s21, 176
s_add_u32 s21, s21, s53
s_cmp_lt_u32 s2, 80
s_cbranch_scc1 KM_p_nowp""")
    TOUCH = f"""s_mov_b64 s[44:45], exec
s_mov_b64 exec, -1
s_waitcnt lgkmcnt(0)
s_cmp_eq_u32 s47, 2
s_cselect_b32 s16, s56, s58
s_cselect_b32 s17, s57, s59
s_mov_b32 s18, {640*3072}
s_mov_b32 s19, 0x00020000
s_mul_i32 s40, s2, 7680
v_and_b32 v84, 63, v0
v_min_u32 v84, 59, v84
v_lshlrev_b32 v84, 7, v84
buffer_load_dword v85, v84, s[16:19], s40 offen
s_mov_b64 exec, s[44:45]"""
    st_save = gen.STAMPS; gen.STAMPS = False
    tmp = Asm2(); tmp.st = a.st
    wprep(tmp, 21, 24, 26, 12, 'sc1')
    gen.STAMPS = st_save
    for ins in tmp.ins:
        if ins.kind == 'nop': continue
        if ins.text.strip() == 's_waitcnt vmcnt(0)':
            a("s_barrier\ns_waitcnt vmcnt(0)"); continue
        a(ins.text)
    a("s_branch KM_p_wd\nKM_p_nowp:\ns_barrier\nKM_p_wd:\nv_and_b32 v2, 63, v0\ns_waitcnt lgkmcnt(0)")
    bar(a, 'P', 'g2')
    a("KM_p_ag2:")
    a(f"""v_mov_b32 v62, {NON}
ds_read_b32 v61, v62
v_and_b32 v2, 63, v0
s_waitcnt vmcnt(0) lgkmcnt(0)
s_cmp_lt_u32 s47, 2
s_cselect_b32 s8, s56, s58
s_cselect_b32 s9, s57, s59
s_mov_b32 s10, {640*3072}
s_mov_b32 s11, 0x00020000""")
    bar(a, 'P', 'k1a')
    a("""s_or_b32 s23, s2, s47
s_cmp_lg_u32 s23, 0
s_cbranch_scc1 KM_p_nr
s_mov_b64 exec, 1
buffer_store_dword v60, v60, s[16:19], 0 offen sc1
s_mov_b64 exec, -1
KM_p_nr:""")
    srd(a, 16, 4, 1536*1280)
    a(f"""s_cmp_ge_u32 s54, 384
s_cbranch_scc1 KM_p_nwd
s_lshr_b32 s24, s54, 3
s_and_b32 s25, s54, 7
s_mul_i32 s55, s25, {1536*160}
s_mul_i32 s21, s24, 5120
s_add_u32 s55, s55, s21
s_add_u32 s55, s55, {WDT}
s_mul_i32 s24, s24, {32*1280}
s_mul_i32 s25, s25, 160
s_add_u32 s24, s24, s25""")
    for q in range(5):
        a(f"""v_add_u32 v12, {64*q}, v2
v_mul_u32_u24 v14, 52429, v12
v_lshrrev_b32 v14, 19, v14
v_mul_u32_u24 v15, 10, v14
v_sub_u32 v15, v12, v15
v_and_b32 v36, 3, v14
v_bfe_u32 v37, v14, 2, 2
v_lshl_add_u32 v36, v37, 3, v36
v_lshrrev_b32 v37, 4, v14
v_lshl_add_u32 v36, v37, 2, v36
v_mul_u32_u24 v36, 1280, v36
v_lshl_add_u32 v36, v15, 4, v36
buffer_load_dwordx4 {Q(64+4*q)}, v36, s[16:19], s24 offen""")
    a("KM_p_nwd:")
    def touch():
        a("s_cmp_lt_u32 s47, 2\ns_cbranch_scc1 KM_p_nt")
        a(TOUCH)
        a("KM_p_nt:")
    if OPT.get('tp', 'k1a') == 'k1a': touch()
    for q in range(3):
        a(f"""v_add_u32 v10, {64*q}, v2
v_mul_u32_u24 v11, 43691, v10
v_lshrrev_b32 v11, 19, v11
v_mul_u32_u24 v12, 12, v11
v_sub_u32 v12, v10, v12
v_lshrrev_b32 v13, 2, v11
v_and_b32 v13, 2, v13
v_xor_b32 v12, v12, v13
v_mul_u32_u24 v11, 3072, v11
v_lshl_add_u32 v11, v12, 4, v11
v_subrev_u32 v{50+q}, {1024*q}, v11""")
    for q in range(4):
        a(f"""v_lshrrev_b32 v10, 4, v2
v_add_u32 v10, {4*q}, v10
v_xor_b32 v10, v10, v2
v_and_b32 v10, 7, v10
v_lshrrev_b32 v11, 3, v2
v_mul_u32_u24 v11, 1280, v11
v_lshl_add_u32 v11, v10, 4, v11
v_add_u32 v{53+q}, {q*(10240-1024)}, v11""")
    a(f"""
s_and_b32 s26, s47, 1
s_mul_i32 s27, s26, {16*3072}
s_mul_i32 s28, s51, 192
s_add_u32 s27, s27, s28
s_mul_i32 s28, s47, 3072
s_lshl_b32 s29, s50, 2
s_add_u32 s29, s29, s47
s_mul_i32 s29, s29, 40960
s_add_u32 s29, s29, {H2F}
s_lshl_b32 s30, s47, 12
v_and_b32 v58, 15, v2
v_lshlrev_b32 v58, 7, v58
v_and_b32 v57, 3, v2
v_lshlrev_b32 v57, 7, v57
v_lshlrev_b32 v59, 4, v2
v_lshlrev_b32 v63, 7, v2""")
    def iw(s):
        a(f"s_add_u32 m0, s28, {(s % 8)*WS_}")
        for q in range(3): a(f"buffer_load_dwordx4 v{50+q}, s[8:11], s27 offen offset:{1024*q} sc1 lds")
        a(f"s_add_u32 s27, s27, {32*3072}")
    def ih(d):
        a(f"s_add_u32 m0, s30, {HB + (d % 4)*HS}")
        for q in range(4): a(f"buffer_load_dwordx4 v{53+q}, s[12:15], s33 offen offset:{1024*q} sc1 lds")
        a("s_add_u32 s33, s33, 128")
    bar(a, 'P', 'k2a')
    a("s_cmp_ge_u32 s54, 384\ns_cbranch_scc1 KM_p_nwd2\ns_add_u32 s54, s55, 4096\ns_waitcnt vmcnt(0)")
    for q in range(5): a(f"buffer_store_dwordx4 {Q(64+4*q)}, v59, s[12:15], {'s55' if q < 4 else 's54'} offen offset:{1024*(q % 4)} sc1")
    a("KM_p_nwd2:")
    a(f"""s_lshl_b32 s23, s47, 11
s_add_u32 m0, s23, {PB}
s_add_u32 s23, s23, 5120
buffer_load_dwordx4 v59, s[12:15], s23 offen sc1 lds
buffer_load_dwordx4 v59, s[12:15], s23 offen offset:1024 sc1 lds""")
    for s in range(0, 4): iw(s)
    a("s_waitcnt vmcnt(12)")
    bar(a, 'P', 'k2b')
    if OPT.get('tp', 'k1a') == 'k2b': touch()
    a(f"""s_lshl_b32 s23, s50, 3
s_lshl_b32 s24, s47, 1
s_add_u32 s23, s23, s24
s_mul_i32 s23, s23, 49152
s_mul_i32 s24, s51, 3072
s_add_u32 s23, s23, s24
s_add_u32 s23, s23, {HIDF}
s_add_u32 s24, s23, 49152
v_mov_b32 v88, -1
v_mov_b32 v89, -1
v_mov_b32 v90, -1
v_mov_b32 v91, -1""")
    def hpre():
        if 'nohs' in OPT: return
        for q in range(6): a(f"buffer_store_dwordx4 {Q(88)}, v59, s[12:15], {'s23' if q < 3 else 's24'} offen offset:{1024*(q % 3)} sc1")
    if OPT.get('hp', 'b1') == 'k2b': hpre()
    if OPT.get('wp', 'b1') == 'k2b':
        for s in range(4, 8): iw(s)
    bar(a, 'P', 'b1')
    if OPT.get('tp', 'k1a') == 'b1': touch()
    if OPT.get('hp', 'b1') == 'b1': hpre()
    if OPT.get('wp', 'b1') == 'b1':
        for s in range(4, 8): iw(s)
    bar(a, 'P', 'b2')
    bar(a, 'P', 'b3')
    if OPT.get('hp', 'b1') == 'b3': hpre()
    if OPT.get('wp', 'b1') == 'b3':
        for s in range(4, 8): iw(s)
    a(f"""s_lshl_b32 s48, s50, 4
s_add_u32 s48, s48, s51
s_lshl_b32 s48, s48, 7
s_add_u32 s48, s48, {FLG}
s_lshl_b32 s23, s50, 2
s_add_u32 s23, s23, s47
s_lshl_b32 s23, s23, 9
s_add_u32 s23, s23, {FLG}
s_and_b32 s24, s51, 7
s_mul_i32 s31, s47, 2560
s_mul_i32 s32, s24, {1536*160}
s_add_u32 s32, s32, s31
s_add_u32 s32, s32, {WDT}
s_waitcnt vmcnt(0)""")
    bar(a, 'P', 'd1')
    a(f"""s_cmp_lg_u32 s47, 0
s_cbranch_scc1 KM_na1
s_mov_b64 exec, 1
buffer_store_dword v61, v60, s[12:15], s48 offen sc1
s_mov_b64 exec, -1
KM_na1:""")
    cnt = []
    def iw2(s):
        a(f"""s_add_u32 m0, s31, {WPOS(s)*DW}
buffer_load_dwordx4 v59, s[12:15], s32 offen sc1 lds
buffer_load_dwordx4 v59, s[12:15], s32 offen offset:1024 sc1 lds
s_mov_b32 exec_hi, 0
buffer_load_dwordx4 v59, s[12:15], s32 offen offset:2048 sc1 lds
s_mov_b32 exec_hi, -1
s_add_u32 s32, s32, 10240""")
    def grp(d):
        ih(d); n = 4
        if d >= 4:
            iw(2*d); iw(2*d+1); n += 6
        cnt.append(n)
    a(f"v_add_u32 v62, s30, v59\nv_add_u32 v62, {HB}, v62")
    def hl(d, q): return f"buffer_load_dwordx4 {Q(96+16*d+4*q)}, v{53+q}, s[12:15], s29 offen offset:{1024*q+128*d} sc1"
    for d in range(4):
        for q in range(4): a(hl(d, q))
    nw2 = 0
    def hchk(d):
        R = 96+16*d
        a(f"s_mov_b32 s46, 0x8000\ns_waitcnt vmcnt({4*(3-d)})\ns_branch KM_hc{d}\nKM_hq{d}:\ns_sleep 2")
        for q in range(4): a(hl(d, q))
        a(f"s_waitcnt vmcnt(0)\nKM_hc{d}:")
        a(f"v_max3_u32 v12, v{R}, v{R+1}, v{R+2}")
        for k in range(3, 15, 2): a(f"v_max3_u32 v12, v12, v{R+k}, v{R+k+1}")
        a(f"""v_max_u32 v12, v12, v{R+15}
v_cmp_eq_u32 vcc, -1, v12
s_nop 1
s_and_b64 exec, exec, vcc
s_cbranch_scc0 KM_ho{d}
s_sub_u32 s46, s46, 1
s_cmp_lg_u32 s46, 0
s_cbranch_scc1 KM_hq{d}
KM_ho{d}:
s_mov_b64 exec, -1""")
        for q in range(4): a(f"ds_write_b128 v62, {Q(R+4*q)} offset:{d*HS+1024*q}")
    for d in range(10):
        if d == 0:
            hchk(0); a("s_waitcnt lgkmcnt(0)"); ST('p')
        elif d == 1:
            hchk(1); a("s_waitcnt lgkmcnt(0)")
        elif d >= 4:
            a(f"s_waitcnt vmcnt({sum(cnt[d-3:])})")
        bar(a, 'P', f'B{d}')
        if d == 1:
            iw(8); iw(9)
            a("s_waitcnt vmcnt(6)")
            hchk2 = True
            for dd in (2, 3):
                R = 96+16*dd
                a(f"s_mov_b32 s46, 0x8000\ns_branch KM_hc{dd}\nKM_hq{dd}:\ns_sleep 2")
                for q in range(4): a(hl(dd, q))
                a(f"s_waitcnt vmcnt(0)\nKM_hc{dd}:")
                a(f"v_max3_u32 v12, v{R}, v{R+1}, v{R+2}")
                for k in range(3, 15, 2): a(f"v_max3_u32 v12, v12, v{R+k}, v{R+k+1}")
                a(f"""v_max_u32 v12, v12, v{R+15}
v_cmp_eq_u32 vcc, -1, v12
s_nop 1
s_and_b64 exec, exec, vcc
s_cbranch_scc0 KM_ho{dd}
s_sub_u32 s46, s46, 1
s_cmp_lg_u32 s46, 0
s_cbranch_scc1 KM_hq{dd}
KM_ho{dd}:
s_mov_b64 exec, -1""")
                for q in range(4): a(f"ds_write_b128 v62, {Q(R+4*q)} offset:{dd*HS+1024*q}")
            a("s_waitcnt lgkmcnt(0)\ns_add_u32 s33, s29, 512")
        elif d == 2:
            spin(a, 'KM_p1', "buffer_load_dword v11, v57, s[12:15], s23 offen sc1", "v_cmp_ne_u32 vcc, v11, v61")
            ih(4); cnt.append(4)
            grp(5)
        elif d >= 3 and d+3 < 10: grp(d+3)
        if d >= 7:
            for _ in range(EARLY[d]): iw2(nw2); nw2 += 1
            cnt.append(3*EARLY[d])
    bar(a, 'P', 'B10')
    while nw2 < NWD: iw2(nw2); nw2 += 1
    if 'nohs' in OPT:
        a(f"""s_lshl_b32 s23, s50, 11
s_add_u32 s23, s23, {FLG + 32768}
s_add_u32 s48, s48, 32768""")
        bar(a, 'P', 'd2')
        a(f"""s_cmp_eq_u32 s47, 1
s_cbranch_scc0 KM_nb2
s_mov_b64 exec, 1
buffer_store_dword v61, v60, s[12:15], s48 offen sc1
s_mov_b64 exec, -1
KM_nb2:
s_cmp_lg_u32 s47, 0
s_cbranch_scc1 KM_na2""")
        spin(a, 'KM_p2', "buffer_load_dword v11, v58, s[12:15], s23 offen sc1", "v_cmp_ne_u32 vcc, v11, v61")
        a("KM_na2:")
    a("s_waitcnt vmcnt(0)")
    ST('p')
    bar(a, 'P', 'C0')
    pend = []
    for s in CB:
        need = [t for t in pend if t <= NEXTCB[s]]
        a(f"s_waitcnt vmcnt({3*(len(pend)-len(need))})")
        bar(a, 'P', f'C{s}')
        pend = [t for t in pend if t not in need]
        while nw2 < NS2 and nw2 - NWD <= s:
            iw2(nw2); pend.append(nw2); nw2 += 1
    a("@dump 12\nKM_end:\ns_endpgm")
    assert bar.seq['W'] == bar.seq['P'], (bar.seq['W'], bar.seq['P'])
    return kd_block(NAME, 168, 100)
if __name__ == '__main__':
    OPT = {}; out = 'mega.s'
    for x in sys.argv[1:]:
        if x.endswith('.s'): out = x
        elif x.startswith('st='): gen.STAMPS = True; OPT['st'] = x[3:]
        elif x.startswith('slp'): gen.SLP = int(x[3:])
        elif x.startswith('bk'): OPT['bk'] = int(x[2:])
        elif x.startswith('tp='): OPT['tp'] = x[3:]
        elif x.startswith('hp='): OPT['hp'] = x[3:]
        elif x.startswith('dx='): OPT['dx'] = int(x[3:])
        elif x.startswith('dy='): OPT['dy'] = int(x[3:])
        elif x.startswith('ncp='): OPT['ncp'] = int(x[4:])
        elif x.startswith('wb='): OPT['wb'] = int(x[3:]) << 20
        elif x.startswith('wp='): OPT['wp'] = x[3:]
        else: OPT[x] = 1
    a = Asm2()
    kd = km(a, OPT)
    hdr = open('adaLN_cond__spectral_gfnet__glu_gated_geglu__prompt.s.ref').read().split('\n')[:13]
    s = '\n'.join(hdr) + '\n; @launch grid=(256,1,1) block=(768,1,1) lds=163840\n'
    s += '.amdgcn_target "amdgcn-amd-amdhsa--gfx950"\n.text\n' + a.text() + '.section .rodata,"a"\n' + kd
    open(out, 'w').write(s)
```

```python
import sys, math
sys.path.insert(0,'work')
import gen
from gen import *
NAME = 'adaLN_cond__spectral_gfnet__glu_gated_geglu__prompt_kernel'
MODG = 0x4000
GFL = 0x20000
CNT = 0x8000
class Bar:
    def __init__(self): self.seq = {}
    def __call__(self, a, role, name):
        self.seq.setdefault(role, []).append(name); a("s_barrier")
def spin(a, name, load, cmp):
    a(f"s_mov_b32 s46, 0x8000\n{name}:")
    a(load); a("s_waitcnt vmcnt(0)"); a(cmp)
    a(f"""s_nop 1
s_cmp_eq_u64 vcc, 0
s_cbranch_scc1 {name}_ok
s_sleep {gen.SLP}
s_sub_u32 s46, s46, 1
s_cmp_lg_u32 s46, 0
s_cbranch_scc1 {name}
{name}_ok:""")
def addr_xf(a):
    a(f"""s_lshl_b32 s40, s22, 5
v_lshrrev_b32 v22, 1, v6
v_lshl_add_u32 v22, v22, 4, v5
v_add_u32 v22, s40, v22
v_add_u32 v23, 256, v8
v_and_b32 v24, 1, v6
v_lshlrev_b32 v24, 7, v24""")
    for src_, dst in ((22, 11), (23, 13)):
        a(f"""v_lshrrev_b32 v25, 3, v{src_}
v_lshl_add_u32 v25, v25, 16, v24
v_and_b32 v26, 7, v{src_}
v_lshl_add_u32 v{dst}, v26, 4, v25""")
def addr_yf(a):
    a(f"""s_lshl_b32 s40, s22, 5
v_lshrrev_b32 v22, 1, v6
v_lshl_add_u32 v22, v22, 4, v5
v_add_u32 v22, s40, v22
v_add_u32 v23, 256, v8
v_and_b32 v24, 1, v6
v_lshlrev_b32 v24, 8, v24
v_lshl_add_u32 v11, v22, 13, v24
v_lshl_add_u32 v13, v23, 13, v24""")
def gather2(a, name, ld0, ld1, r0, r1, t, pre=False, dly=0):
    a(f"""s_mov_b32 s46, 0x8000
s_waitcnt vmcnt(0)
s_sleep {dly}
{f's_branch {name}_chk' if pre else ''}
{name}:
{ld0}
{ld1}
{name}_chk:
s_waitcnt vmcnt(0)
v_max3_u32 v{t}, v{r0}, v{r0+1}, v{r0+2}
v_max3_u32 v{t+1}, v{r1}, v{r1+1}, v{r1+2}
v_max3_u32 v{t}, v{t}, v{r0+3}, v{r1+3}
v_max_u32 v{t}, v{t}, v{t+1}
v_cmp_eq_u32 vcc, -1, v{t}
s_nop 1
s_and_b64 exec, exec, vcc
s_cbranch_scc0 {name}_ok
s_sleep 2
s_sub_u32 s46, s46, 1
s_cmp_lg_u32 s46, 0
s_cbranch_scc1 {name}
{name}_ok:
s_mov_b64 exec, -1""")
def task_ids(a, slot):
    a(f"""s_lshl_b32 s28, s{slot}, 2
s_lshr_b32 s29, s2, 6
s_add_u32 s28, s28, s29
s_lshl_b32 s28, s28, 3
s_and_b32 s29, s2, 7
s_add_u32 s28, s28, s29
s_lshl_b32 s41, s28, 16
s_lshl_b32 s28, s28, 3
s_bfe_u32 s29, s2, 0x30003
s_add_u32 s28, s28, s29
s_lshl_b32 s29, s29, 4
s_add_u32 s41, s41, s29""")
def km(a, OPT):
    bar = Bar()
    a(f".globl {NAME}\n.p2align 8\n.type {NAME},@function\n{NAME}:")
    a.st = Stamper(a, 3)
    ST = lambda tag: a("@stamp") if tag in OPT.get('st', '') else None
    R2 = 98304
    GP = R2; NON = R2 + 1536; PB1 = R2 + 2048; Z1 = R2 + 8192; K2B = R2 + 24576
    TB = R2; ZB = R2 + 12288; ZR = 528; ZC = 8*ZR; PB = R2 + 57344
    NST = 20; WS_ = 12288; HB = R2; HS = 16384
    NS2 = 24; DW = 10240; NWD = 16
    ORDER = [5, 6, 13,  7, 8, 14, 15,  0, 1, 9, 10,  2, 3, 4, 11, 12]
    EARLY = {7: 3, 8: 4, 9: 4} if 'e0' not in OPT else ({7: 0, 8: 0, 9: 0} if OPT['e0'] == 0 else {7: 0, 8: 4, 9: 6})
    WPOS = lambda s: ORDER[s % NWD]
    CB = [3, 7, 15, 19]; NEXTCB = {3: 7, 7: 15, 15: 19, 19: 23}
    XR = 114
    a(f"""
s_cmp_ge_u32 s2, 256
s_cbranch_scc1 KM_end
@stamp
s_load_dwordx2 s[4:5], s[0:1], 0
s_load_dwordx2 s[6:7], s[0:1], 88
s_load_dwordx4 s[56:59], s[0:1], 56
s_load_dwordx4 s[24:27], s[0:1], 8
s_load_dwordx2 s[60:61], s[0:1], 80
s_and_b32 s50, s2, 7
s_lshr_b32 s51, s2, 3
s_mul_i32 s52, s50, 10
s_add_u32 s52, s52, s51
s_mul_i32 s21, s50, 20
s_add_u32 s21, s21, s51
s_add_u32 s21, s21, 70
s_cmp_lt_u32 s2, 80
s_cselect_b32 s52, s52, s21
s_lshl_b32 s50, s50, 1
s_lshr_b32 s21, s51, 4
s_add_u32 s50, s50, s21
s_and_b32 s51, s51, 15
v_lshrrev_b32 v4, 6, v0
v_and_b32 v1, 63, v0
v_readfirstlane_b32 s22, v4
s_lshl_b32 s3, s50, 1
s_lshr_b32 s21, s51, 3
s_add_u32 s3, s3, s21
s_and_b32 s20, s51, 7
s_cmp_ge_u32 s22, 8
s_cbranch_scc1 KM_prod
v_and_b32 v3, 31, v0
v_lshlrev_b32 v2, 3, v3
v_bfe_u32 v4, v0, 5, 1
v_lshl_add_u32 v2, v4, 8, v2
v_lshlrev_b32 v3, 2, v3
v_lshl_add_u32 v3, v4, 1, v3
s_lshl_b32 s21, s20, 3
s_add_u32 s21, s21, s22
s_lshl_b32 s21, s21, 5
s_add_u32 s21, s21, s3
s_mul_i32 s21, s21, 1280
s_lshl_b32 s23, s52, 5
v_lshrrev_b32 v144, 1, v0
v_and_b32 v145, 1, v0
v_mul_u32_u24 v146, 7680, v144
v_lshl_add_u32 v146, v145, 4, v146
v_add_u32 v146, s23, v146
v_lshlrev_b32 v147, 1, v144
s_cmp_lt_u32 s2, 240
s_cselect_b32 s49, 5, 0
s_waitcnt lgkmcnt(0)
""")
    if OPT.get('wb'): a(f"s_add_u32 s6, s6, {OPT['wb']}\ns_addc_u32 s7, s7, 0")
    srd(a, 12, 6, WS_SIZE)
    srd(a, 8, 56, 1280)
    srd(a, 16, 58, 640*3840*2)
    NR = 4
    def gloads(tag, cond):
        a(f"s_cmp_ge_u32 s22, s49\ns_cbranch_scc1 KM_nog1{tag}")
        for i in range(NR): a(f"buffer_load_short_d16_hi v{136+i}, v147, s[8:11], 0 offen offset:{320*i}")
        a("s_mov_b32 s23, 0")
        for i in range(NR):
            a(f"buffer_load_dwordx4 {Q(120+4*i)}, v146, s[16:19], s23 offen")
            if i < NR-1: a(f"s_add_u32 s23, s23, {160*7680}")
        a(f"KM_nog1{tag}:")
    srd(a, 24, 4, 2048*1280)
    for k in range(3): a(f"buffer_load_dwordx2 {P(XR+2*k)}, v2, s[24:27], s21 offen offset:{512*k}")
    gloads('a', 0)
    a("v_and_b32 v5, 15, v0\nv_bfe_u32 v6, v0, 4, 2")
    col_slots(a, 22, 5, 6, 8, 22)
    addr_xf(a)
    a(f"""s_lshl_b32 s38, s3, 11
s_lshl_b32 s21, s20, 8
s_add_u32 s38, s38, s21
s_add_u32 s38, s38, {XF}
v_mov_b32 v28, -1
v_mov_b32 v29, -1
v_mov_b32 v30, -1
v_mov_b32 v31, -1
buffer_store_dwordx4 {Q(28)}, v11, s[12:15], s38 offen sc1
s_mov_b32 exec_lo, 0x00ff00ff
s_mov_b32 exec_hi, 0
buffer_store_dwordx4 {Q(28)}, v13, s[12:15], s38 offen sc1
s_mov_b64 exec, -1
s_lshl_b32 s38, s20, 3
s_add_u32 s38, s38, s22
s_lshl_b32 s21, s3, 6
s_add_u32 s38, s38, s21
s_mul_i32 s38, s38, 1280
s_add_u32 s38, s38, {H2F}
buffer_store_dwordx2 {P(28)}, v2, s[12:15], s38 offen sc1""")
    w5_consts(a, 88, 22, -1.0)
    a(f"""
v_cvt_f32_u32 v22, v8
v_mul_f32 v22, {fh(1/128)}, v22
v_cvt_f32_u32 v23, v6
v_mul_f32 v23, {fh(8.0)}, v23
v_and_b32 v24, {fh(0.25)}, v9
v_fma_f32 v23, v23, v22, -v24
v_mul_f32 v24, {fh(25.0)}, v22
""")
    for t in range(4):
        for jj in range(4):
            a(f"""v_cos_f32 v25, v23
v_add_f32 v23, v23, v22
v_cos_f32 v26, v23
v_add_f32 v23, v23, v{24 if jj == 3 else 22}
v_cvt_pk_bf16_f32 v{96+4*t+jj}, v25, v26""")
    a(f"""
v_lshrrev_b32 v22, 3, v3
v_xor_b32 v22, s22, v22
v_lshlrev_b32 v22, 4, v22
v_and_b32 v23, 7, v3
v_lshl_add_u32 v22, v23, 1, v22
s_lshl_b32 s23, s22, 8
s_add_u32 s23, s23, {Z1}
v_add_u32 v14, s23, v22
v_xor_b32 v15, {2048+128}, v14
v_lshlrev_b32 v7, 2, v3
v_add_u32 v7, {PB1}, v7
v_xor_b32 v22, v6, v5
""")
    for t in range(4):
        a(f"""v_xor_b32 v23, {4*t}, v22
v_lshlrev_b32 v23, 4, v23
v_lshl_add_u32 v23, v5, 8, v23
v_add_u32 v{16+t}, {Z1}, v23""")
    r5_sconsts(a)
    a("s_waitcnt vmcnt(11)\ns_cmp_lt_u32 s22, s49\ns_cbranch_scc1 KM_x0\ns_waitcnt vmcnt(3)\nKM_x0:")
    unpack_x(a, XR, 60)
    ln_rows(a, 60, 70)
    a(f"s_cmp_ge_u32 s22, s49\ns_cbranch_scc1 KM_nog2\ns_waitcnt vmcnt({NR+3})")
    C = 136; T = 140
    for i in range(NR): a(f"v_mul_f32 v{T+i}, {fh(-math.log2(math.e))}, v{C+i}")
    for i in range(NR): a(f"v_exp_f32 v{T+i}, v{T+i}")
    for i in range(NR): a(f"v_add_f32 v{T+i}, 1.0, v{T+i}")
    for i in range(NR): a(f"v_rcp_f32 v{T+i}, v{T+i}")
    for i in range(NR): a(f"v_mul_f32 v{C+i}, v{C+i}, v{T+i}")
    for i in range(NR): a(f"v_cvt_pk_bf16_f32 v{C+i}, v{C+i}, v{C+i}")
    for i in range(NR): a(f"v_and_b32 v{48+2*i}, 0xffff0000, v{C+i}")
    a(f"""v_lshrrev_b32 v22, 4, v0
v_lshlrev_b32 v23, 6, v22
v_lshl_add_u32 v23, v145, 5, v23
v_add_u32 v23, {GP}, v23""")
    for i in range(NR):
        a(f"s_waitcnt vmcnt({NR-1-i+3})")
        for j in range(4): a(f"v_lshlrev_b32 v{32+2*j}, 16, v{120+4*i+j}\nv_and_b32 v{33+2*j}, 0xffff0000, v{120+4*i+j}")
        for j in range(4):
            if i == 0: a(f"v_pk_mul_f32 {P(40+2*j)}, {P(32+2*j)}, {P(48)} op_sel_hi:[1,0]")
            else: a(f"v_pk_fma_f32 {P(40+2*j)}, {P(32+2*j)}, {P(48+2*i)}, {P(40+2*j)} op_sel_hi:[1,0,1]")
    for mode in ('quad_perm:[2,3,0,1]', 'row_ror:4', 'row_ror:8'):
        for j in range(8): a(f"v_add_f32_dpp v{40+j}, v{40+j}, v{40+j} {mode} {DPP}")
    a(f"""v_cmp_gt_u32 vcc, 2, v5
s_and_saveexec_b64 s[38:39], vcc
ds_write_b128 v23, {Q(40)}
ds_write_b128 v23, {Q(44)} offset:16
s_mov_b64 exec, s[38:39]
KM_nog2:
s_waitcnt vmcnt(0) lgkmcnt(0)""")
    ST('a')
    bar(a, 'W', 'g1')
    a(f"""v_mov_b32 v22, {NON}
ds_read_b32 v27, v22
s_cmp_lg_u32 s22, 0
s_cbranch_scc1 KM_nog3
s_cmp_eq_u32 s49, 0
s_cbranch_scc1 KM_nog3
v_mul_u32_u24 v23, 320, v6
v_lshl_add_u32 v23, v5, 2, v23
v_add_u32 v23, {GP}, v23
ds_read_b32 v40, v23
ds_read_b32 v41, v23 offset:64
ds_read_b32 v42, v23 offset:128
ds_read_b32 v43, v23 offset:192
ds_read_b32 v44, v23 offset:256
s_sub_u32 s23, s52, 40
s_cmp_lt_u32 s23, 40
s_cselect_b32 s21, 1.0, 0
s_sub_u32 s23, s52, 160
s_cmp_lt_u32 s23, 40
s_cselect_b32 s21, 1.0, s21
s_waitcnt lgkmcnt(0)
v_add_f32 v40, v40, v41
v_add_f32 v42, v42, v43
v_add_f32 v40, v40, v44
v_add_f32 v40, v40, v42
v_mov_b32 v41, v40
v_permlane16_swap_b32 v40, v41
v_add_f32 v40, v40, v41
v_mov_b32 v41, v40
v_permlane32_swap_b32 v40, v41
v_add_f32 v40, v40, v41
v_cvt_pk_bf16_f32 v40, v40, v40
v_and_b32 v40, 0xffff0000, v40
v_add_f32 v40, s21, v40
v_cvt_pk_bf16_f32 v40, v40, v40
v_and_b32 v40, 0xffff0000, v40
v_mov_b32 v41, v27
s_mov_b64 exec, 0xffff
s_cmp_lt_u32 s52, 80
s_cbranch_scc1 KM_gran
s_lshl_b32 s23, s52, 6
v_lshlrev_b32 v23, 2, v1
buffer_store_dword v40, v23, s[12:15], s23 offen sc1
s_branch KM_pub
KM_gran:
s_lshl_b32 s23, s52, 7
s_add_u32 s23, s23, {MODG}
v_lshlrev_b32 v23, 3, v1
buffer_store_dwordx2 {P(40)}, v23, s[12:15], s23 offen sc1
KM_pub:
s_mov_b64 exec, -1
KM_nog3:""")
    M = lambda t: 120+6*t
    N = lambda x, y: 144+6*(2*x+y)
    def gen_(R, cur, step, last, t0=12):
        for hh in range(2):
            a(f"""v_cos_f32 v{t0}, v{cur}
v_sin_f32 v{t0+1}, v{cur}
v_add_f32 v{cur}, v{cur}, v{step}
v_cos_f32 v{t0+2}, v{cur}
v_sin_f32 v{t0+3}, v{cur}
v_add_f32 v{cur}, v{cur}, v{last if hh else step}
v_cvt_pk_bf16_f32 v{R+2+hh}, v{t0}, v{t0+2}
v_cvt_pk_bf16_f32 v{R+hh}, -v{t0+1}, -v{t0+3}
v_cvt_pk_bf16_f32 v{R+4+hh}, v{t0+1}, v{t0+3}""")
    a(f"""v_bfe_u32 v46, v0, 6, 2
v_lshl_add_u32 v46, v46, 4, v5
v_cvt_f32_u32 v46, v46
v_cvt_f32_u32 v47, v6
v_cvt_f32_u32 v48, v5
v_mul_f32 v47, 4.0, v47
v_mul_f32 v49, {fh(1/64)}, v46
v_mul_f32 v50, v47, v49
v_mul_f32 v51, {fh(13.0)}, v49""")
    for t in range(4): gen_(M(t), 50, 49, 51, 52)
    for x in range(2):
        a(f"v_add_f32 v49, {fh(16.0*x)}, v48\nv_mul_f32 v49, {fh(1/32)}, v49\nv_mul_f32 v50, v47, v49\nv_mul_f32 v51, {fh(13.0)}, v49")
        for y in range(2): gen_(N(x, y), 50, 49, 51, 52)
    a(f"""s_lshl_b32 s23, s3, 11
s_lshl_b32 s21, s20, 8
s_add_u32 s23, s23, s21
s_add_u32 s23, s23, {XF}""")
    ST('a')
    bar(a, 'W', 'g2')
    ST('a')
    for j in range(5): a(f"ds_read_b64 {P(40+2*j)}, v7 offset:{2560+512*j}\nds_read_b64 {P(50+2*j)}, v7 offset:{512*j}")
    for j in range(5): a(f"v_pk_mul_f32 {P(28+2*j)}, {P(60+2*j)}, {P(70)} op_sel_hi:[1,0]")
    a("s_waitcnt lgkmcnt(0)")
    for j in range(5): a(f"v_pk_fma_f32 {P(28+2*j)}, {P(28+2*j)}, {P(40+2*j)}, {P(50+2*j)}")
    h = {(3*j) % 5: 28+2*j for j in range(5)}
    t1,t2,t3,t4 = 40,42,44,46; z0,p1,q1,p2,q2 = 48,50,52,54,56
    a(f"""v_pk_add_f32 {P(t1)}, {P(h[1])}, {P(h[4])}
v_pk_add_f32 {P(t2)}, {P(h[2])}, {P(h[3])}
v_pk_add_f32 {P(t3)}, {P(h[1])}, {P(h[4])} neg_lo:[0,1] neg_hi:[0,1]
v_pk_add_f32 {P(t4)}, {P(h[2])}, {P(h[3])} neg_lo:[0,1] neg_hi:[0,1]
v_pk_add_f32 {P(z0)}, {P(h[0])}, {P(t1)}
v_pk_fma_f32 {P(p1)}, s[30:31], {P(t1)}, {P(h[0])}
v_pk_fma_f32 {P(p2)}, s[32:33], {P(t1)}, {P(h[0])}
v_pk_mul_f32 {P(q1)}, s[34:35], {P(t3)}
v_pk_mul_f32 {P(q2)}, s[36:37], {P(t3)}
v_pk_add_f32 {P(z0)}, {P(z0)}, {P(t2)}
v_pk_fma_f32 {P(p1)}, s[32:33], {P(t2)}, {P(p1)}
v_pk_fma_f32 {P(p2)}, s[30:31], {P(t2)}, {P(p2)}
v_pk_fma_f32 {P(q1)}, s[36:37], {P(t4)}, {P(q1)}
v_pk_fma_f32 {P(q2)}, s[34:35], {P(t4)}, {P(q2)} neg_lo:[0,1,0] neg_hi:[0,1,0]
v_cvt_pk_bf16_f32 v22, v{z0}, v{z0+1}
ds_write_b32 v14, v22 offset:8192""")
    for k, (p, q) in enumerate(((p1, q1), (p2, q2))):
        c, s = 88+4*k, 90+4*k; r, im = 28+4*k, 30+4*k
        a(f"""v_pk_mul_f32 {P(r)}, {P(p)}, {P(c)}
v_pk_mul_f32 {P(im)}, {P(p)}, {P(s)}
v_pk_fma_f32 {P(r)}, {P(q)}, {P(s)}, {P(r)}
v_pk_fma_f32 {P(im)}, {P(q)}, {P(c)}, {P(im)} neg_lo:[1,0,0] neg_hi:[1,0,0]
v_cvt_pk_bf16_f32 v{23+2*k}, v{r}, v{r+1}
v_cvt_pk_bf16_f32 v{24+2*k}, v{im}, v{im+1}
ds_write_b32 v{14+k}, v{23+2*k}
ds_write_b32 v{14+k}, v{24+2*k} offset:4096""")
    a("s_waitcnt vmcnt(0) lgkmcnt(0)")
    bar(a, 'W', 'k1a')
    for T in range(3):
        for t in range(4): a(f"ds_read_b128 {Q(28+16*T+4*t)}, v{16+t} offset:{4096*T}")
    n = 12
    for T in range(3):
        for t in range(4):
            n -= 1
            a(f"s_waitcnt lgkmcnt({n})")
            a(f"v_mfma_f32_16x16x32_bf16 {Q(76+4*T)}, {Q(28+16*T+4*t)}, {Q(96+4*t)}, {'0' if t == 0 else Q(76+4*T)}")
    a(f"""v_and_b32 v22, 0x80008000, v9
v_and_b32 v23, v9, v12
v_bfi_b32 v24, v9, v22, v12
v_pk_mul_f32 {P(28)}, {P(76)}, {P(10)} op_sel_hi:[1,0]
v_pk_mul_f32 {P(30)}, {P(78)}, {P(10)} op_sel_hi:[1,0]
v_pk_mul_f32 {P(32)}, {P(80)}, {P(10)} op_sel_hi:[1,0]
v_pk_mul_f32 {P(34)}, {P(82)}, {P(10)} op_sel_hi:[1,0]""")
    for i in range(4):
        a(f"v_add_f32_dpp v{76+i}, v{32+i}, v{76+i} row_ror:8 {DPP}")
        a(f"v_subrev_f32_dpp v{80+i}, v{28+i}, v{80+i} row_ror:8 {DPP}")
    a(f"""v_cvt_pk_bf16_f32 v36, v76, v77
v_cvt_pk_bf16_f32 v37, v78, v79
v_cvt_pk_bf16_f32 v38, v80, v81
v_cvt_pk_bf16_f32 v39, v82, v83
v_cvt_pk_bf16_f32 v44, v84, v85
v_cvt_pk_bf16_f32 v45, v86, v87
v_xor_b32 v36, v36, v23
v_xor_b32 v37, v37, v23
v_xor_b32 v38, v38, v24
v_xor_b32 v39, v39, v24
v_xor_b32 v44, v44, v22
v_xor_b32 v45, v45, v22
v_cndmask_b32 v40, v36, v38, s[42:43]
v_cndmask_b32 v41, v37, v39, s[42:43]
v_cndmask_b32 v42, v38, v36, s[42:43]
v_cndmask_b32 v43, v39, v37, s[42:43]
buffer_store_dwordx4 {Q(40)}, v11, s[12:15], s23 offen sc1
v_mov_b32_dpp v46, v44 row_ror:8 {DPP}
v_mov_b32_dpp v47, v45 row_ror:8 {DPP}
s_mov_b32 exec_lo, 0x00ff00ff
s_mov_b32 exec_hi, 0
buffer_store_dwordx4 {Q(44)}, v13, s[12:15], s23 offen sc1
s_mov_b64 exec, -1""")
    ST('a')
    a(f"""s_lshr_b32 s26, s22, 2
s_and_b32 s27, s22, 3
""")
    task_ids(a, 26)
    a(f"""s_cmp_gt_u32 s28, 320
s_cbranch_scc1 KM_k2skip
s_cmp_eq_u32 s28, 320
s_cselect_b32 s41, {32*65536}, s41
s_lshr_b32 s21, s28, 5
s_lshl_b32 s21, s21, 3
s_and_b32 s23, s28, 7
s_add_u32 s21, s21, s23
s_sub_u32 s23, 128, s21
s_cmp_eq_u32 s21, 0
s_cselect_b32 s23, 64, s23
s_bitcmp1_b32 s28, 3
s_cselect_b32 s21, s23, s21
s_mul_i32 s21, s21, 5
s_bfe_u32 s23, s28, 0x10004
s_lshl_b32 s23, s23, 7
s_add_u32 s21, s21, s23
s_add_u32 s21, s21, 128
s_sub_u32 s23, s21, 640
s_min_u32 s21, s21, s23
s_sub_u32 s23, 640, s21
s_min_u32 s21, s21, s23
s_sub_u32 s23, s28, 256
s_mul_i32 s23, s23, 5
s_cmp_ge_u32 s28, 256
s_cselect_b32 s40, s23, s21
v_and_b32 v1, 15, v0
v_bfe_u32 v2, v0, 4, 2
v_bfe_u32 v3, v0, 6, 2
v_and_b32 v9, 63, v0
v_lshl_add_u32 v4, v3, 2, v2
v_xor_b32 v10, v4, v1
v_lshl_add_u32 v4, v4, 4, v10
v_lshlrev_b32 v4, 7, v4
v_lshrrev_b32 v5, 1, v1
v_and_b32 v6, 1, v1
v_lshl_add_u32 v5, v6, 3, v5
v_lshl_add_u32 v5, v2, 4, v5
v_lshlrev_b32 v5, 4, v5
v_lshl_add_u32 v5, v3, 11, v5
s_add_u32 s21, s41, {XF}
s_add_u32 s23, s21, 32768
s_lshl_b32 s29, s28, 13
s_lshl_b32 s48, s26, 14
s_add_u32 s48, s48, {K2B}
v_lshl_add_u32 v6, v3, 4, v1
v_cvt_f32_u32 v6, v6
v_cvt_f32_u32 v7, v2
v_cvt_f32_u32 v8, v1
v_mul_f32 v7, 4.0, v7
""")
    a(f"v_mul_f32 v16, {fh(-1/2048)}, v6\nv_mul_f32 v10, v7, v16\nv_mul_f32 v11, {fh(13.0)}, v16")
    for k in range(8):
        a(f"v_cos_f32 v{56+k}, v10\nv_sin_f32 v{64+k}, v10")
        if k < 7: a(f"v_add_f32 v10, v10, v{11 if k == 3 else 16}")
    if 'gx1' in OPT:
        for l in (f"buffer_load_dwordx4 {Q(24)}, v4, s[12:15], s21 offen sc1", f"buffer_load_dwordx4 {Q(28)}, v4, s[12:15], s23 offen sc1"): a(l)
    a(f"""s_lshl_b32 s24, s27, 4
v_cvt_f32_u32 v12, s24
v_add_f32 v12, v12, v7
s_mov_b32 s38, {fh(2.0/(2048*640))}
s_cmp_eq_u32 s28, 256
s_cselect_b32 s38, {fh(1.0/(2048*640))}, s38
s_cmp_eq_u32 s28, 320
s_cselect_b32 s38, {fh(1.0/(2048*640))}, s38
s_mov_b32 s39, s38""")
    for nt in range(2):
        a(f"v_add_f32 v16, {fh(16.0*nt)}, v8\nv_mul_f32 v16, {fh(1/2048)}, v16\nv_mul_f32 v10, v12, v16")
        for i in range(4):
            k = 4*nt+i
            a(f"v_cos_f32 v{72+k}, v10\nv_sin_f32 v{80+k}, v10")
            if i < 3: a("v_add_f32 v10, v10, v16")
    for k in range(8): a(f"v_pk_mul_f32 {P(72+2*k)}, s[38:39], {P(72+2*k)}")
    a(f"""v_xor_b32 v10, v2, v1
v_lshlrev_b32 v10, 4, v10
v_lshl_add_u32 v10, v1, 8, v10
v_add_u32 v10, s48, v10
v_xor_b32 v11, 64, v10
v_xor_b32 v12, 128, v10
v_xor_b32 v13, 192, v10
v_lshlrev_b32 v7, 4, v9
v_add_u32 v7, s48, v7
s_lshl_b32 s24, s27, 10
v_add_u32 v6, s24, v7
v_lshlrev_b32 v8, 4, v9
v_lshl_add_u32 v8, v3, 11, v8
s_add_u32 s24, s24, s48
s_lshl_b32 s25, s40, 13
s_add_u32 s25, s25, {WP}
s_mov_b32 m0, s24""")
    ST('b')
    gather2(a, 'KM_gx', f"buffer_load_dwordx4 {Q(24)}, v4, s[12:15], s21 offen sc1", f"buffer_load_dwordx4 {Q(28)}, v4, s[12:15], s23 offen sc1", 24, 28, 32, pre=('gx1' in OPT), dly=OPT.get('dx', 0))
    a(f"""ds_write_b128 v6, {Q(24)}
ds_write_b128 v6, {Q(28)} offset:4096
s_add_u32 s21, s29, {YF}
s_add_u32 s23, s21, 1024
s_waitcnt lgkmcnt(0)""")
    bar(a, 'W', 'k2a')
    ST('b')
    a(f"""buffer_load_dwordx4 v[48:51], v5, s[12:15], s25 offen sc1
buffer_load_dwordx4 v[52:55], v5, s[12:15], s25 offen offset:1024 sc1""")
    D = lambda mt, t: 16+16*mt+4*t
    for t in range(4):
        for mt in range(2): a(f"ds_read_b128 {Q(D(mt,t))}, v{10+t} offset:{4096*mt}")
    def mf(d, A, B, first): a(f"v_mfma_f32_16x16x32_bf16 {Q(d)}, {Q(A)}, {Q(B)}, {'0' if first else Q(d)}")
    a("s_and_b32 s24, s28, 0xffffffbf\ns_cmp_lg_u32 s24, 256\ns_cbranch_scc1 KM_k2gen\ns_waitcnt lgkmcnt(0)\ns_cmp_eq_u32 s28, 256\ns_cbranch_scc1 KM_k2z")
    for f in range(8): a(f"v_mov_b32 v{16+4*f}, v{18+4*f}\nv_mov_b32 v{17+4*f}, v{19+4*f}")
    a("KM_k2z:")
    for f in range(8): a(f"v_mov_b32 v{18+4*f}, 0\nv_mov_b32 v{19+4*f}, 0")
    a("s_nop 1\nKM_k2gen:")
    for t in range(4):
        a(f"s_waitcnt lgkmcnt({6-2*t})")
        for mt in range(2):
            mf(88+8*mt, D(mt,t), M(t)+2, t == 0)
            mf(92+8*mt, D(mt,t), M(t), t == 0)
    def tw_pack(tr, ti, B, swap):
        for blk in range(2):
            for hh in range(2):
                r = 88+8*blk+2*hh; i = r+4; c = tr+4*blk+2*hh; s = ti+4*blk+2*hh; t = 104+4*blk+2*hh
                a(f"""v_pk_mul_f32 {P(t)}, {P(i)}, {P(s)}
v_pk_mul_f32 {P(i)}, {P(i)}, {P(c)}
v_pk_fma_f32 {P(i)}, {P(r)}, {P(s)}, {P(i)}
v_pk_fma_f32 {P(r)}, {P(r)}, {P(c)}, {P(t)} neg_lo:[0,0,1] neg_hi:[0,0,1]""")
        for blk in range(2):
            for hh in range(2):
                r = 88+8*blk+2*hh
                a(f"v_cvt_pk_bf16_f32 v{B+4*blk+hh+(2 if swap else 0)}, v{r}, v{r+1}")
                a(f"v_cvt_pk_bf16_f32 v{B+4*blk+hh+(0 if swap else 2)}, v{r+4}, v{r+5}")
    tw_pack(56, 64, 16, False)
    for y in range(2):
        for x in range(2):
            mf(88+8*x, N(x,y)+2, 16+4*y, y == 0)
            mf(92+8*x, N(x,y), 16+4*y, y == 0)
    a("s_waitcnt vmcnt(0)")
    for k in range(8): a(f"v_lshlrev_b32 v{32+k}, 16, v{48+k}\nv_and_b32 v{40+k}, 0xffff0000, v{48+k}")
    tw_pack(32, 40, 24, True)
    for y in range(2):
        for x in range(2):
            mf(88+8*x, 24+4*y, N(x,y), y == 0)
            mf(92+8*x, 24+4*y, N(x,y)+2, y == 0)
    tw_pack(72, 80, 16, True)
    a(f"ds_write_b128 v6, {Q(16)} offset:8192\nds_write_b128 v6, {Q(20)} offset:12288\ns_waitcnt lgkmcnt(0)")
    bar(a, 'W', 'k2b')
    for t in range(4):
        for nt in range(2): a(f"ds_read_b128 {Q(D(nt,t))}, v7 offset:{8192+4096*nt+1024*t}")
    for t in range(4):
        a(f"s_waitcnt lgkmcnt({6-2*t})")
        for nt in range(2):
            mf(88+8*nt, M(t), D(nt,t), t == 0)
            mf(92+8*nt, M(t)+2, D(nt,t), t == 0)
    for nt in range(2):
        o = 48+4*nt; s = 88+8*nt
        for k in range(4): a(f"v_cvt_pk_bf16_f32 v{o+k}, v{s+2*k}, v{s+2*k+1}")
        a(f"buffer_store_dwordx4 {Q(o)}, v8, s[12:15], s{21+2*nt} offen sc1")
    ST('b')
    a("s_branch KM_k2done\nKM_k2skip:\ns_barrier\ns_barrier\nKM_k2done:")
    a(f"""v_and_b32 v1, 63, v0
v_and_b32 v3, 31, v0
v_lshlrev_b32 v2, 3, v3
v_bfe_u32 v4, v0, 5, 1
v_lshl_add_u32 v2, v4, 8, v2
v_lshlrev_b32 v3, 2, v3
v_lshl_add_u32 v3, v4, 1, v3
v_and_b32 v5, 15, v0
v_bfe_u32 v6, v0, 4, 2""")
    col_slots(a, 22, 5, 6, 8, 22)
    addr_yf(a)
    a(f"""
s_and_b32 s23, s3, 15
s_lshl_b32 s23, s23, 4
s_lshr_b32 s21, s3, 4
s_lshl_b32 s21, s21, 10
s_add_u32 s23, s23, s21
s_lshr_b32 s21, s20, 1
s_lshl_b32 s21, s21, 11
s_add_u32 s23, s23, s21
s_and_b32 s21, s20, 1
s_lshl_b32 s21, s21, 9
s_add_u32 s23, s23, s21
s_add_u32 s23, s23, {YF}
s_lshl_b32 s21, s20, 3
s_add_u32 s21, s21, s22
s_lshl_b32 s24, s3, 6
s_add_u32 s24, s24, s21
s_mul_i32 s24, s24, 1280
""")
    w5_consts(a, 88, 22, 1.0)
    a(f"""
s_lshl_b32 s27, s22, 4
v_add_u32 v22, s27, v5
v_cvt_f32_u32 v22, v22
v_mul_f32 v22, {fh(1/128)}, v22
v_and_b32 v23, 1, v6
v_cvt_f32_u32 v23, v23
v_mul_f32 v23, 4.0, v23
v_lshrrev_b32 v24, 1, v6
v_cvt_f32_u32 v24, v24
v_mul_f32 v24, {fh(0.25)}, v24
v_fma_f32 v23, v23, v22, v24
v_mul_f32 v24, {fh(5.0)}, v22
v_mul_f32 v27, {fh(64.0)}, v22
v_cmp_eq_u32 vcc, 2, v6
v_cndmask_b32 v27, v23, v27, vcc
""")
    for t in range(4):
        for jj in range(4):
            a(f"""v_cos_f32 v25, v{27 if (t, jj) == (0, 0) else 23}
v_add_f32 v23, v23, v22
v_cos_f32 v26, v23
v_add_f32 v23, v23, v{24 if jj & 1 else 22}
v_cvt_pk_bf16_f32 v{96+4*t+jj}, v25, v26""")
    a(f"""
v_lshlrev_b32 v14, 5, v5
v_lshl_add_u32 v14, v6, 3, v14
s_lshl_b32 s27, s22, 9
s_add_u32 s27, s27, {TB}
v_add_u32 v14, s27, v14
v_and_b32 v15, 4096, v9
v_add_u32 v15, v15, v14
v_xor_b32 v112, 4096, v15
v_lshlrev_b32 v113, 3, v1
v_add_u32 v113, {TB}, v113
v_and_b32 v22, 7, v5
v_mul_u32_u24 v22, {ZR}, v22
v_lshl_add_u32 v22, v6, 4, v22
s_lshl_b32 s27, s22, 6
s_add_u32 s27, s27, {ZB}
v_add_u32 v17, s27, v22
v_lshrrev_b32 v22, 3, v5
v_mul_u32_u24 v22, {2*ZC}, v22
v_add_u32 v16, v17, v22
v_lshlrev_b32 v4, 2, v3
s_mul_i32 s27, s22, {ZR}
s_add_u32 s27, s27, {ZB}
v_add_u32 v7, s27, v4
v_add_u32 v4, {PB}, v4
v_and_b32 v22, 0x80000000, v9
v_xor_b32 v22, v22, v10
v_and_b32 v23, 0x80008000, v9
v_xor_b32 v24, v23, v12
""")
    for j in range(5):
        a(f"ds_read_b64 {P(120+2*j)}, v4 offset:{512*j}\nds_read_b64 {P(140+2*j)}, v4 offset:{5120+512*j}\nds_read_b64 {P(130+2*j)}, v4 offset:{2560+512*j}")
    a("s_waitcnt lgkmcnt(0)")
    ST('c')
    gather2(a, 'KM_gy', f"buffer_load_dwordx4 {Q(28)}, v11, s[12:15], s23 offen sc1", f"buffer_load_dwordx4 {Q(32)}, v13, s[12:15], s23 offen sc1", 28, 32, 36, dly=OPT.get('dy', 0))
    ST('c')
    a(f"""v_cndmask_b32 v32, v32, v34, s[42:43]
v_cndmask_b32 v33, v33, v35, s[42:43]
v_xor_b32 v26, v30, v24
v_xor_b32 v27, v31, v24
v_xor_b32 v30, v30, v12
v_xor_b32 v31, v31, v12
ds_write_b64 v14, {P(32)} offset:8192""")
    for hh in range(2):
        a(f"""v_lshlrev_b32 v{36+2*hh}, 16, v{28+hh}
v_and_b32 v{37+2*hh}, 0xffff0000, v{28+hh}
v_lshlrev_b32 v{40+2*hh}, 16, v{30+hh}
v_and_b32 v{41+2*hh}, 0xffff0000, v{30+hh}
v_lshlrev_b32 v{44+2*hh}, 16, v{28+hh}
v_and_b32 v{45+2*hh}, 0xffff0000, v{28+hh}
v_lshlrev_b32 v{48+2*hh}, 16, v{26+hh}
v_and_b32 v{49+2*hh}, 0xffff0000, v{26+hh}""")
    for i in range(4):
        a(f"v_fmac_f32_dpp v{44+i}, v{36+i}, v22 row_ror:8 {DPP}")
        a(f"v_fmac_f32_dpp v{48+i}, v{40+i}, v10 row_ror:8 {DPP}")
    a(f"""v_cvt_pk_bf16_f32 v52, v44, v45
v_cvt_pk_bf16_f32 v53, v46, v47
v_cvt_pk_bf16_f32 v54, v48, v49
v_cvt_pk_bf16_f32 v55, v50, v51
ds_write_b64 v15, {P(52)}
ds_write_b64 v112, {P(54)}
s_waitcnt lgkmcnt(0)""")
    bar(a, 'W', 'b1')
    for T in range(3):
        for t in range(4):
            for x in range(2): a(f"ds_read_b64_tr_b16 {P(28+16*T+4*t+2*x)}, v113 offset:{4096*T+1024*t+512*x}")
            if T == 1 and t == 3:
                a("s_waitcnt lgkmcnt(8)")
                for tt in range(4): a(f"v_mfma_f32_16x16x32_bf16 {Q(76)}, {Q(96+4*tt)}, {Q(28+4*tt)}, {'0' if tt == 0 else Q(76)}")
    for T in (1, 2):
        a(f"s_waitcnt lgkmcnt({8 if T == 1 else 0})")
        for t in range(4): a(f"v_mfma_f32_16x16x32_bf16 {Q(76+4*T)}, {Q(96+4*t)}, {Q(28+16*T+4*t)}, {'0' if t == 0 else Q(76+4*T)}")
    a(f"ds_write_b128 v16, {Q(76)} offset:{ZC}")
    for j in range(5): a(f"v_lshlrev_b32 v{28+2*j}, 16, v{XR+j}\nv_and_b32 v{29+2*j}, 0xffff0000, v{XR+j}")
    a(f"""ds_write_b128 v16, {Q(80)} offset:{2*ZC}
ds_write_b128 v17, {Q(84)}
s_waitcnt lgkmcnt(0)""")
    bar(a, 'W', 'b2')
    for c in range(5): a(f"ds_read_b64 {P(40+2*c)}, v7 offset:{ZC*c}")
    a("s_waitcnt lgkmcnt(0)")
    bar(a, 'W', 'b3')
    for k in range(2):
        r, im = 42+4*k, 44+4*k; c, s = 88+4*k, 90+4*k; R, I = 50+4*k, 52+4*k
        a(f"""v_pk_mul_f32 {P(R)}, {P(r)}, {P(c)}
v_pk_mul_f32 {P(I)}, {P(r)}, {P(s)}
v_pk_fma_f32 {P(R)}, {P(im)}, {P(s)}, {P(R)} neg_lo:[1,0,0] neg_hi:[1,0,0]
v_pk_fma_f32 {P(I)}, {P(im)}, {P(c)}, {P(I)}""")
    z0,z1r,z1i,z2r,z2i = 40,50,52,54,56
    A,B,Cc,Dd,E = 58,60,62,64,66
    sl = {(3*j) % 5: j for j in range(5)}
    X = lambda d2: P(28+2*sl[d2]); G = lambda d2: P(120+2*sl[d2])
    a(f"""v_pk_add_f32 {P(E)}, {P(z0)}, {P(z1r)}
v_pk_fma_f32 {P(A)}, s[30:31], {P(z1r)}, {P(z0)}
v_pk_fma_f32 {P(B)}, s[32:33], {P(z1r)}, {P(z0)}
v_pk_mul_f32 {P(Cc)}, s[34:35], {P(z1i)}
v_pk_mul_f32 {P(Dd)}, s[36:37], {P(z1i)}
v_pk_add_f32 {P(E)}, {P(E)}, {P(z2r)}
v_pk_fma_f32 {P(A)}, s[32:33], {P(z2r)}, {P(A)}
v_pk_fma_f32 {P(B)}, s[30:31], {P(z2r)}, {P(B)}
v_pk_fma_f32 {P(Cc)}, s[36:37], {P(z2i)}, {P(Cc)}
v_pk_fma_f32 {P(Dd)}, s[34:35], {P(z2i)}, {P(Dd)} neg_lo:[0,1,0] neg_hi:[0,1,0]
v_pk_fma_f32 {X(0)}, {G(0)}, {P(E)}, {X(0)}
v_pk_add_f32 {P(68)}, {P(A)}, {P(Cc)} neg_lo:[0,1] neg_hi:[0,1]
v_pk_add_f32 {P(70)}, {P(A)}, {P(Cc)}
v_pk_add_f32 {P(72)}, {P(B)}, {P(Dd)} neg_lo:[0,1] neg_hi:[0,1]
v_pk_add_f32 {P(74)}, {P(B)}, {P(Dd)}
v_pk_fma_f32 {X(1)}, {G(1)}, {P(68)}, {X(1)}
v_pk_fma_f32 {X(4)}, {G(4)}, {P(70)}, {X(4)}
v_pk_fma_f32 {X(2)}, {G(2)}, {P(72)}, {X(2)}
v_pk_fma_f32 {X(3)}, {G(3)}, {P(74)}, {X(3)}
s_add_u32 s25, s24, {X1}
s_add_u32 s26, s24, {H2F}""")
    for j in range(5): a(f"v_cvt_pk_bf16_f32 v{16+j}, v{28+2*j}, v{29+2*j}")
    a(f"""v_permlane32_swap_b32 v16, v17
v_permlane32_swap_b32 v18, v19
buffer_store_dwordx2 {P(16)}, v2, s[12:15], s25 offen sc1
buffer_store_dwordx2 {P(18)}, v2, s[12:15], s25 offen offset:512 sc1""")
    ln_rows(a, 28, 22)
    a(f"v_bfe_u32 v24, v0, 5, 1\nv_mul_u32_u24 v24, {H2F - X1 - 256}, v24\nv_add_u32 v24, v24, v2")
    for j in range(5): a(f"v_pk_mul_f32 {P(140+2*j)}, {P(140+2*j)}, {P(22)} op_sel_hi:[1,0]")
    for j in range(5): a(f"v_pk_fma_f32 {P(28+2*j)}, {P(28+2*j)}, {P(140+2*j)}, {P(130+2*j)}")
    for j in range(4): a(f"v_cvt_pk_bf16_f32 v{40+j}, v{28+2*j}, v{29+2*j}")
    a(f"""v_cvt_pk_bf16_f32 v21, v36, v37
v_permlane32_swap_b32 v40, v41
v_permlane32_swap_b32 v42, v43
v_permlane32_swap_b32 v20, v21
buffer_store_dwordx2 {P(40)}, v2, s[12:15], s26 offen sc1
buffer_store_dwordx2 {P(42)}, v2, s[12:15], s26 offen offset:512 sc1
buffer_store_dwordx2 {P(20)}, v24, s[12:15], s25 offen offset:1024 sc1""")
    ST('c')
    a(f"""v_mov_b32 v2, v1
s_lshr_b32 s26, s22, 2
s_and_b32 s27, s22, 3
v_lshrrev_b32 v3, 4, v2
v_bfe_u32 v4, v2, 2, 2
v_lshl_add_u32 v4, v3, 3, v4
v_mul_u32_u24 v4, 192, v4
v_and_b32 v5, 3, v2
v_lshl_add_u32 v4, v5, 3, v4
v_and_b32 v5, 1, v3
v_lshlrev_b32 v5, 5, v5
s_mul_i32 s28, s26, 96
v_add_u32 v4, s28, v4
s_cmp_eq_u32 s26, 0
s_cselect_b32 s29, 1, -1
v_mul_lo_u32 v5, v5, s29
v_add_u32 v6, v4, v5
v_sub_u32 v7, v4, v5
v_add_u32 v8, {4*WS_}, v6
v_add_u32 v9, {4*WS_}, v7
v_and_b32 v10, 15, v2
v_lshrrev_b32 v11, 1, v10
v_xor_b32 v11, v11, v3
v_lshlrev_b32 v11, 4, v11
v_lshl_add_u32 v11, v10, 7, v11
s_lshl_b32 s28, s27, 12
s_add_u32 s28, s28, {HB}
v_add_u32 v11, s28, v11
v_xor_b32 v12, 64, v11
s_load_dwordx2 s[60:61], s[0:1], 72
s_waitcnt vmcnt(0)""")
    ST('c')
    bar(a, 'W', 'd1')
    ACC = lambda mat, i, nt: 16 + 4*(6*nt + 3*mat + i)
    FA = lambda buf, mat, i: 64 + 32*buf + 4*(3*mat+i)
    FB = lambda buf, nt: 88 + 32*buf + 4*nt
    def reads(s):
        L = []; sl = s % 8
        for nt in range(2): L.append(f"ds_read_b128 {Q(FB(s & 1, nt))}, v{11 + (s & 1)} offset:{((s//2) % 4)*HS + 2048*nt}")
        for mat in range(2):
            for i in range(3):
                for x in range(2):
                    L.append(f"ds_read_b64_tr_b16 {P(FA(s & 1, mat, i) + 2*x)}, v{6 + (i & 1) + 2*(sl//4)} offset:{(sl % 4)*WS_ + mat*6144 + 4*x*192 + 32*i}")
        return L
    bar(a, 'W', 'B0')
    ST('d')
    for l in reads(0): a(l)
    for s in range(NST):
        a("s_waitcnt lgkmcnt(0)")
        if s & 1: bar(a, 'W', f'B{(s+1)//2}')
        R = reads(s+1) if s+1 < NST else []
        k = 0
        for mat in range(2):
            for i in range(3):
                for nt in range(2):
                    c = ACC(mat, i, nt)
                    a(f"v_mfma_f32_16x16x32_bf16 {Q(c)}, {Q(FA(s & 1, mat, i))}, {Q(FB(s & 1, nt))}, {'0' if s == 0 else Q(c)}")
                    for l in R[2*k:2*k+2]: a(l)
                    k += 1
    ST('d')
    kk = 2*0.7978845608028654*math.log2(math.e)
    a(f"""s_mov_b32 s30, {fh(-kk*0.044715)}
s_mov_b32 s31, {fh(-kk*0.044715)}
v_mov_b32 v10, {fh(-kk)}
v_mov_b32 v11, {fh(-kk)}
s_lshl_b32 s29, s50, 3
s_lshl_b32 s28, s27, 1
s_add_u32 s29, s29, s28
s_mul_i32 s29, s29, 49152
s_mul_i32 s28, s51, 3072
s_add_u32 s29, s29, s28
s_mul_i32 s28, s26, 1536
s_add_u32 s29, s29, s28
s_add_u32 s29, s29, {HIDF}
v_bfe_u32 v7, v2, 4, 1
v_mul_u32_u24 v7, 49152, v7
v_lshrrev_b32 v8, 5, v2
v_lshl_add_u32 v7, v8, 8, v7
v_and_b32 v8, 15, v2
v_lshl_add_u32 v7, v8, 4, v7""")
    for nt in range(2):
        Gt = ACC(0, 0, nt); U = ACC(1, 0, nt); T = 64 + 16*nt
        for i in range(0, 12, 2): a(f"v_pk_mul_f32 {P(T+i)}, {P(Gt+i)}, {P(Gt+i)}")
        for i in range(0, 12, 2): a(f"v_pk_fma_f32 {P(T+i)}, {P(T+i)}, s[30:31], {P(10)}")
        for i in range(0, 12, 2): a(f"v_pk_mul_f32 {P(T+i)}, {P(T+i)}, {P(Gt+i)}")
        for i in range(0, 12, 2): a(f"v_exp_f32 v{T+i}, v{T+i}\nv_exp_f32 v{T+i+1}, v{T+i+1}\nv_pk_mul_f32 {P(Gt+i)}, {P(Gt+i)}, {P(U+i)}")
        for i in range(0, 12, 2): a(f"v_pk_add_f32 {P(T+i)}, {P(T+i)}, 1.0 op_sel_hi:[1,0]")
        for i in range(12): a(f"v_rcp_f32 v{T+i}, v{T+i}")
        for i in range(0, 12, 2): a(f"v_pk_mul_f32 {P(Gt+i)}, {P(Gt+i)}, {P(T+i)}")
        for i in range(3):
            O = 96 + 4*i + 2*nt
            a(f"v_cvt_pk_bf16_f32 v{O}, v{Gt+4*i}, v{Gt+4*i+1}\nv_cvt_pk_bf16_f32 v{O+1}, v{Gt+4*i+2}, v{Gt+4*i+3}")
    for i in range(3):
        O = 96 + 4*i
        a(f"""v_permlane16_swap_b32 v{O}, v{O+2}
v_permlane16_swap_b32 v{O+1}, v{O+3}
buffer_store_dwordx4 {Q(O)}, v7, s[12:15], s29 offen offset:{512*i} sc1""")
    ST('d')
    a(f"""s_lshl_b32 s30, s50, 3
s_lshr_b32 s28, s51, 3
s_lshl_b32 s28, s28, 2
s_add_u32 s30, s30, s28
s_add_u32 s30, s30, s27
s_mul_i32 s29, s30, 49152
s_lshl_b32 s28, s26, 10
s_add_u32 s29, s29, s28
s_add_u32 s29, s29, {HIDF}
s_lshl_b32 s30, s30, 4
s_and_b32 s24, s51, 7
v_lshrrev_b32 v3, 2, v2
v_mul_u32_u24 v3, 160, v3
v_and_b32 v4, 3, v2
v_lshl_add_u32 v3, v4, 3, v3
s_mul_i32 s28, s26, 5120
v_add_u32 v3, s28, v3
v_add_u32 v4, {6*DW}, v3
v_add_u32 v5, {12*DW}, v3
v_lshlrev_b32 v6, 4, v2
v_and_b32 v12, 15, v2
v_lshrrev_b32 v13, 4, v2
v_mul_u32_u24 v8, 1280, v12
v_lshl_add_u32 v8, v13, 3, v8
s_mul_i32 s23, s30, 1280
s_mul_i32 s25, s24, 160
s_add_u32 s23, s23, s25
s_add_u32 s23, s23, {X1}
v_lshlrev_b32 v15, 4, v13
s_lshl_b32 s28, s25, 1
s_add_u32 s28, s28, 12800
s_lshl_b32 s21, s26, 6
s_add_u32 s23, s23, s21
s_lshl_b32 s21, s26, 7
s_add_u32 s28, s28, s21
s_waitcnt vmcnt(0)""")
    ST('d')
    if 'nohs' in OPT: bar(a, 'W', 'd2')
    a("s_mov_b32 s41, s29")
    srd(a, 16, 60, 2048*1280)
    AC2 = lambda mt: 16 + 4*mt
    FA2 = lambda buf, mt: 36 + 20*buf + 4*mt
    NB = OPT.get('nb', 10)
    FB2 = lambda s: 76 + 4*(s % NB)
    def reads2(s):
        p = WPOS(s)
        return [f"ds_read_b64_tr_b16 {P(FA2(s & 1, mt) + 2*x)}, v{3+p//6} offset:{(p % 6)*DW + x*2560 + 32*mt}" for mt in range(5) for x in range(2)]
    def ldb(s):
        a(f"buffer_load_dwordx4 {Q(FB2(s))}, v6, s[12:15], s29 offen offset:{2048*(s & 1)} sc1")
        if s & 1: a("s_add_u32 s29, s29, 4096")
    bar(a, 'W', 'C0')
    ST('d')
    nb = 0; nx = 0
    for s in range(NB-1): ldb(s); nb += 1
    for l in reads2(0): a(l)
    for s in range(NS2):
        f = FB2(s)
        if 'nohs' in OPT: a(f"s_waitcnt vmcnt({nb-s-1+nx}) lgkmcnt(0)\nKM_hr{s}:")
        else: a(f"""s_waitcnt vmcnt({nb-s-1+nx})
v_max3_u32 v9, v{f}, v{f+1}, v{f+2}
v_max_u32 v9, v9, v{f+3}
v_cmp_eq_u32 vcc, -1, v9
s_waitcnt lgkmcnt(0)
s_cmp_lg_u64 vcc, 0
s_cbranch_scc1 KM_hs{s}
KM_hr{s}:""")
        if s in CB: bar(a, 'W', f'C{s}')
        if nb < NS2: ldb(nb); nb += 1
        elif nx < 6:
            k = nx // 2
            a(f"buffer_load_dwordx2 {P(116+2*k)}, v8, s[12:15], s23 offen offset:{32*k} sc1")
            a(f"buffer_load_dwordx4 {Q(128+4*k)}, v15, s[12:15], s28 offen offset:{64*k} sc1")
            nx += 2
        R = reads2(s+1) if s+1 < NS2 else []
        for mt in range(5):
            c = AC2(mt)
            a(f"v_mfma_f32_16x16x32_bf16 {Q(c)}, {Q(FA2(s & 1, mt))}, {Q(FB2(s))}, {'0' if s == 0 else Q(c)}")
            for l in R[2*mt:2*mt+2]: a(l)
    RB = WPOS(10)*DW
    ST('d')
    a(f"""s_mul_i32 s28, s27, 5120
s_add_u32 s28, s28, {RB}
v_add_u32 v6, s28, v6
s_and_b32 s23, s30, 63
s_lshl_b32 s23, s23, 5
s_lshr_b32 s29, s30, 6
s_add_u32 s23, s23, s29
s_mul_i32 s23, s23, 1280
s_add_u32 s23, s23, s25
v_mul_u32_u24 v8, 40960, v12
v_lshl_add_u32 v8, v13, 3, v8
s_cmp_eq_u32 s26, 0
s_cbranch_scc1 KM_lo""")
    def fin(give, keep, base):
        for mt in give: a(f"ds_write_b128 v6, {Q(AC2(mt))} offset:{1024*mt}")
        a("s_waitcnt vmcnt(0)")
        for mt in keep:
            x = 116+2*(mt-base); r = 76+4*mt
            a(f"v_lshlrev_b32 v{r}, 16, v{x}\nv_and_b32 v{r+1}, 0xffff0000, v{x}\nv_lshlrev_b32 v{r+2}, 16, v{x+1}\nv_and_b32 v{r+3}, 0xffff0000, v{x+1}")
        a("s_waitcnt lgkmcnt(0)\ns_barrier")
        for mt in keep: a(f"ds_read_b128 {Q(36+4*mt)}, v6 offset:{1024*mt}")
        for n, mt in enumerate(keep):
            c = AC2(mt); x = 116+2*(mt-base); g = 128+4*(mt-base); r = 36+4*mt; o = 76+4*mt
            a(f"""s_waitcnt lgkmcnt({len(keep)-1-n})
v_pk_add_f32 {P(c)}, {P(c)}, {P(r)}
v_pk_add_f32 {P(c+2)}, {P(c+2)}, {P(r+2)}
v_pk_fma_f32 {P(o)}, {P(c)}, {P(g)}, {P(o)}
v_pk_fma_f32 {P(o+2)}, {P(c+2)}, {P(g+2)}, {P(o+2)}
v_cvt_pk_bf16_f32 v{x}, v{o}, v{o+1}
v_cvt_pk_bf16_f32 v{x+1}, v{o+2}, v{o+3}
buffer_store_dwordx2 {P(x)}, v8, s[16:19], s23 offen offset:{32*mt}""")
        a("@dump 12\ns_endpgm")
    nst = a.st.n
    fin([0,1,2], [3,4], 2)
    a.st.n = nst
    a("KM_lo:")
    fin([3,4], [0,1,2], 0)
    a.st.n = 1
    for s in range(NS2):
        f = FB2(s)
        a(f"""KM_hs{s}:
s_add_u32 s40, s41, {2048*s}
s_mov_b32 s46, 0x8000
KM_hl{s}:
s_mov_b64 exec, vcc
s_sleep 2
buffer_load_dwordx4 {Q(f)}, v6, s[12:15], s40 offen sc1
s_waitcnt vmcnt(0)
v_max3_u32 v9, v{f}, v{f+1}, v{f+2}
v_max_u32 v9, v9, v{f+3}
v_cmp_eq_u32 vcc, -1, v9
s_mov_b64 exec, -1
s_sub_u32 s46, s46, 1
s_cmp_eq_u32 s46, 0
s_cbranch_scc1 KM_hr{s}
s_cmp_lg_u64 vcc, 0
s_cbranch_scc1 KM_hl{s}
s_branch KM_hr{s}""")
    a(f"""KM_prod:
s_sub_u32 s47, s22, 8
s_waitcnt lgkmcnt(0)""")
    if OPT.get('wb'): a(f"s_add_u32 s6, s6, {OPT['wb']}\ns_addc_u32 s7, s7, 0")
    srd(a, 12, 6, WS_SIZE)
    srd(a, 16, 60, 256)
    a(f"""v_mov_b32 v60, 0
s_load_dwordx4 s[56:59], s[0:1], 32
s_load_dwordx2 s[4:5], s[0:1], 48
v_lshlrev_b32 v59, 4, v1
s_sub_u32 s53, s2, 80
s_xor_b32 s54, s47, 2
s_mul_i32 s54, s54, 192
s_sub_u32 s21, s2, 64
s_add_u32 s54, s54, s21
s_cmp_lt_u32 s2, 64
s_cselect_b32 s54, 999, s54
s_cmp_ge_u32 s47, 2
s_cbranch_scc1 KM_p_wp
s_cmp_lg_u32 s47, 0
s_cbranch_scc1 KM_p_pf
s_cmp_lg_u32 s2, 0
s_cbranch_scc1 KM_p_nn
s_memrealtime s[38:39]
s_waitcnt lgkmcnt(0)
s_or_b32 s38, s38, 1
v_mov_b32 v61, s38
s_mov_b64 exec, 1
buffer_store_dword v61, v60, s[16:19], 0 offen sc1
s_mov_b64 exec, -1
KM_p_nn:
KM_p_nc:""")
    spin(a, 'KM_pn', "buffer_load_dword v61, v60, s[16:19], 0 offen sc1", "v_cmp_eq_u32 vcc, 0, v61")
    a(f"""v_mov_b32 v62, {NON}
ds_write_b32 v62, v61
s_branch KM_p_no0
KM_p_pf:""")
    if 'nocpf' not in OPT:
        a(f"""s_cmp_lt_u32 s2, {256 - OPT.get('ncp', 16)}
s_cbranch_scc1 KM_p_no0
s_getpc_b64 s[38:39]
KM_pc:
s_sub_u32 s38, s38, KM_pc-{NAME}
s_subb_u32 s39, s39, 0
v_lshlrev_b32 v86, 7, v1""")
        for k in range(4):
            a(f"""v_add_u32 v87, {8192*k}, v86
v_min_u32 v87, KM_end-{NAME}, v87
global_load_dword v{88+k}, v87, s[38:39]""")
    a(f"""KM_p_no0:
s_waitcnt lgkmcnt(0)""")
    bar(a, 'P', 'g1')
    a(f"""v_mov_b32 v62, {NON}
ds_read_b32 v61, v62
s_mul_i32 s23, s47, 5120
s_add_u32 s23, s23, {MODG}
s_add_u32 s21, s23, 4096
v_lshlrev_b32 v62, 4, v1
s_mul_i32 s24, s47, 2560
s_add_u32 s24, s24, {PB1}
v_lshlrev_b32 v63, 3, v1
v_add_u32 v63, s24, v63
s_lshl_b32 s25, s2, 7
s_add_u32 s25, s25, {GFL}
s_lshl_b32 s26, s47, 14
s_add_u32 s26, s26, {GFL}
s_add_u32 s27, s26, 8192
v_lshlrev_b32 v58, 7, v1
s_waitcnt lgkmcnt(0)
s_cmp_lg_u32 s47, 0
s_cbranch_scc1 KM_p_nf
s_mov_b64 exec, 1
buffer_store_dword v61, v60, s[12:15], s25 offen sc1
s_mov_b64 exec, -1
KM_p_nf:""")
    ld = "\n".join([f"buffer_load_dwordx4 {Q(8+4*q)}, v62, s[12:15], {'s23' if q < 4 else 's21'} offen offset:{1024*(q % 4)} sc1" for q in range(5)])
    cm = "v_cmp_ne_u32 vcc, v9, v61\n" + "\n".join([f"v_cmp_ne_u32 s[38:39], v{r}, v61\ns_or_b64 vcc, vcc, s[38:39]" for r in range(11, 28, 2)])
    spin(a, 'KM_pg', ld, cm)
    for q in range(5): a(f"v_mov_b32 v{9+4*q}, v{10+4*q}\nds_write_b64 v63, {P(8+4*q)} offset:{512*q}")
    a("s_waitcnt lgkmcnt(0)")
    ST('p')
    a("s_barrier")
    spin(a, 'KM_A_p', "buffer_load_dword v11, v58, s[12:15], s26 offen sc1\nbuffer_load_dword v12, v58, s[12:15], s27 offen sc1", "v_cmp_ne_u32 vcc, v11, v61\nv_cmp_ne_u32 s[38:39], v12, v61\ns_or_b64 vcc, vcc, s[38:39]")
    ST('p')
    a("s_branch KM_p_ag2")
    a(f"""KM_p_wp:
s_sub_u32 s21, s47, 2""")
    task_ids(a, 21)
    a(f"""s_cmp_gt_u32 s28, 320
s_cbranch_scc1 KM_p_nyf
s_lshl_b32 s28, s28, 13
s_add_u32 s28, s28, {YF}
s_add_u32 s29, s28, 4096
v_mov_b32 v64, -1
v_mov_b32 v65, -1
v_mov_b32 v66, -1
v_mov_b32 v67, -1""")
    for q in range(8): a(f"buffer_store_dwordx4 {Q(64)}, v59, s[12:15], {'s28' if q < 4 else 's29'} offen offset:{1024*(q % 4)} sc1")
    a(f"""KM_p_nyf:
s_mul_i32 s21, s21, 176
s_add_u32 s21, s21, s53
s_cmp_lt_u32 s2, 80
s_cbranch_scc1 KM_p_nowp""")
    TOUCH = f"""s_mov_b64 s[44:45], exec
s_mov_b64 exec, -1
s_waitcnt lgkmcnt(0)
s_cmp_eq_u32 s47, 2
s_cselect_b32 s16, s56, s58
s_cselect_b32 s17, s57, s59
s_mov_b32 s18, {640*3072}
s_mov_b32 s19, 0x00020000
s_mul_i32 s40, s2, 7680
v_and_b32 v84, 63, v0
v_min_u32 v84, 59, v84
v_lshlrev_b32 v84, 7, v84
buffer_load_dword v85, v84, s[16:19], s40 offen
s_mov_b64 exec, s[44:45]"""
    st_save = gen.STAMPS; gen.STAMPS = False
    tmp = Asm2(); tmp.st = a.st
    wprep(tmp, 21, 24, 26, 12, 'sc1')
    gen.STAMPS = st_save
    for ins in tmp.ins:
        if ins.kind == 'nop': continue
        if ins.text.strip() == 's_waitcnt vmcnt(0)':
            a("s_barrier\ns_waitcnt vmcnt(0)"); continue
        a(ins.text)
    a("s_branch KM_p_wd\nKM_p_nowp:\ns_barrier\nKM_p_wd:\nv_and_b32 v2, 63, v0\ns_waitcnt lgkmcnt(0)")
    bar(a, 'P', 'g2')
    a("KM_p_ag2:")
    a(f"""v_mov_b32 v62, {NON}
ds_read_b32 v61, v62
v_and_b32 v2, 63, v0
s_waitcnt vmcnt(0) lgkmcnt(0)
s_cmp_lt_u32 s47, 2
s_cselect_b32 s8, s56, s58
s_cselect_b32 s9, s57, s59
s_mov_b32 s10, {640*3072}
s_mov_b32 s11, 0x00020000""")
    bar(a, 'P', 'k1a')
    a("""s_or_b32 s23, s2, s47
s_cmp_lg_u32 s23, 0
s_cbranch_scc1 KM_p_nr
s_mov_b64 exec, 1
buffer_store_dword v60, v60, s[16:19], 0 offen sc1
s_mov_b64 exec, -1
KM_p_nr:""")
    srd(a, 16, 4, 1536*1280)
    a(f"""s_cmp_ge_u32 s54, 384
s_cbranch_scc1 KM_p_nwd
s_lshr_b32 s24, s54, 3
s_and_b32 s25, s54, 7
s_mul_i32 s55, s25, {1536*160}
s_mul_i32 s21, s24, 5120
s_add_u32 s55, s55, s21
s_add_u32 s55, s55, {WDT}
s_mul_i32 s24, s24, {32*1280}
s_mul_i32 s25, s25, 160
s_add_u32 s24, s24, s25""")
    for q in range(5):
        a(f"""v_add_u32 v12, {64*q}, v2
v_mul_u32_u24 v14, 52429, v12
v_lshrrev_b32 v14, 19, v14
v_mul_u32_u24 v15, 10, v14
v_sub_u32 v15, v12, v15
v_and_b32 v36, 3, v14
v_bfe_u32 v37, v14, 2, 2
v_lshl_add_u32 v36, v37, 3, v36
v_lshrrev_b32 v37, 4, v14
v_lshl_add_u32 v36, v37, 2, v36
v_mul_u32_u24 v36, 1280, v36
v_lshl_add_u32 v36, v15, 4, v36
buffer_load_dwordx4 {Q(64+4*q)}, v36, s[16:19], s24 offen""")
    a("KM_p_nwd:")
    def touch():
        a("s_cmp_lt_u32 s47, 2\ns_cbranch_scc1 KM_p_nt")
        a(TOUCH)
        a("KM_p_nt:")
    if OPT.get('tp', 'k1a') == 'k1a': touch()
    for q in range(3):
        a(f"""v_add_u32 v10, {64*q}, v2
v_mul_u32_u24 v11, 43691, v10
v_lshrrev_b32 v11, 19, v11
v_mul_u32_u24 v12, 12, v11
v_sub_u32 v12, v10, v12
v_lshrrev_b32 v13, 2, v11
v_and_b32 v13, 2, v13
v_xor_b32 v12, v12, v13
v_mul_u32_u24 v11, 3072, v11
v_lshl_add_u32 v11, v12, 4, v11
v_subrev_u32 v{50+q}, {1024*q}, v11""")
    for q in range(4):
        a(f"""v_lshrrev_b32 v10, 4, v2
v_add_u32 v10, {4*q}, v10
v_xor_b32 v10, v10, v2
v_and_b32 v10, 7, v10
v_lshrrev_b32 v11, 3, v2
v_mul_u32_u24 v11, 1280, v11
v_lshl_add_u32 v11, v10, 4, v11
v_add_u32 v{53+q}, {q*(10240-1024)}, v11""")
    a(f"""
s_and_b32 s26, s47, 1
s_mul_i32 s27, s26, {16*3072}
s_mul_i32 s28, s51, 192
s_add_u32 s27, s27, s28
s_mul_i32 s28, s47, 3072
s_lshl_b32 s29, s50, 2
s_add_u32 s29, s29, s47
s_mul_i32 s29, s29, 40960
s_add_u32 s29, s29, {H2F}
s_lshl_b32 s30, s47, 12
v_and_b32 v58, 15, v2
v_lshlrev_b32 v58, 7, v58
v_and_b32 v57, 3, v2
v_lshlrev_b32 v57, 7, v57
v_lshlrev_b32 v59, 4, v2
v_lshlrev_b32 v63, 7, v2""")
    def iw(s):
        a(f"s_add_u32 m0, s28, {(s % 8)*WS_}")
        for q in range(3): a(f"buffer_load_dwordx4 v{50+q}, s[8:11], s27 offen offset:{1024*q} sc1 lds")
        a(f"s_add_u32 s27, s27, {32*3072}")
    def ih(d):
        a(f"s_add_u32 m0, s30, {HB + (d % 4)*HS}")
        for q in range(4): a(f"buffer_load_dwordx4 v{53+q}, s[12:15], s33 offen offset:{1024*q} sc1 lds")
        a("s_add_u32 s33, s33, 128")
    bar(a, 'P', 'k2a')
    a("s_cmp_ge_u32 s54, 384\ns_cbranch_scc1 KM_p_nwd2\ns_add_u32 s54, s55, 4096\ns_waitcnt vmcnt(0)")
    for q in range(5): a(f"buffer_store_dwordx4 {Q(64+4*q)}, v59, s[12:15], {'s55' if q < 4 else 's54'} offen offset:{1024*(q % 4)} sc1")
    a("KM_p_nwd2:")
    a(f"""s_lshl_b32 s23, s47, 11
s_add_u32 m0, s23, {PB}
s_add_u32 s23, s23, 5120
buffer_load_dwordx4 v59, s[12:15], s23 offen sc1 lds
buffer_load_dwordx4 v59, s[12:15], s23 offen offset:1024 sc1 lds""")
    for s in range(0, 4): iw(s)
    a("s_waitcnt vmcnt(12)")
    bar(a, 'P', 'k2b')
    if OPT.get('tp', 'k1a') == 'k2b': touch()
    a(f"""s_lshl_b32 s23, s50, 3
s_lshl_b32 s24, s47, 1
s_add_u32 s23, s23, s24
s_mul_i32 s23, s23, 49152
s_mul_i32 s24, s51, 3072
s_add_u32 s23, s23, s24
s_add_u32 s23, s23, {HIDF}
s_add_u32 s24, s23, 49152
v_mov_b32 v88, -1
v_mov_b32 v89, -1
v_mov_b32 v90, -1
v_mov_b32 v91, -1""")
    def hpre():
        if 'nohs' in OPT: return
        for q in range(6): a(f"buffer_store_dwordx4 {Q(88)}, v59, s[12:15], {'s23' if q < 3 else 's24'} offen offset:{1024*(q % 3)} sc1")
    if OPT.get('hp', 'b1') == 'k2b': hpre()
    if OPT.get('wp', 'b1') == 'k2b':
        for s in range(4, 8): iw(s)
    bar(a, 'P', 'b1')
    if OPT.get('tp', 'k1a') == 'b1': touch()
    if OPT.get('hp', 'b1') == 'b1': hpre()
    if OPT.get('wp', 'b1') == 'b1':
        for s in range(4, 8): iw(s)
    bar(a, 'P', 'b2')
    bar(a, 'P', 'b3')
    if OPT.get('hp', 'b1') == 'b3': hpre()
    if OPT.get('wp', 'b1') == 'b3':
        for s in range(4, 8): iw(s)
    a(f"""s_lshl_b32 s48, s50, 4
s_add_u32 s48, s48, s51
s_lshl_b32 s48, s48, 7
s_add_u32 s48, s48, {FLG}
s_lshl_b32 s23, s50, 2
s_add_u32 s23, s23, s47
s_lshl_b32 s23, s23, 9
s_add_u32 s23, s23, {FLG}
s_and_b32 s24, s51, 7
s_mul_i32 s31, s47, 2560
s_mul_i32 s32, s24, {1536*160}
s_add_u32 s32, s32, s31
s_add_u32 s32, s32, {WDT}
s_waitcnt vmcnt(0)""")
    bar(a, 'P', 'd1')
    a(f"""s_cmp_lg_u32 s47, 0
s_cbranch_scc1 KM_na1
s_mov_b64 exec, 1
buffer_store_dword v61, v60, s[12:15], s48 offen sc1
s_mov_b64 exec, -1
KM_na1:""")
    cnt = []
    def iw2(s):
        a(f"""s_add_u32 m0, s31, {WPOS(s)*DW}
buffer_load_dwordx4 v59, s[12:15], s32 offen sc1 lds
buffer_load_dwordx4 v59, s[12:15], s32 offen offset:1024 sc1 lds
s_mov_b32 exec_hi, 0
buffer_load_dwordx4 v59, s[12:15], s32 offen offset:2048 sc1 lds
s_mov_b32 exec_hi, -1
s_add_u32 s32, s32, 10240""")
    def grp(d):
        ih(d); n = 4
        if d >= 4:
            iw(2*d); iw(2*d+1); n += 6
        cnt.append(n)
    a(f"v_add_u32 v62, s30, v59\nv_add_u32 v62, {HB}, v62")
    def hl(d, q): return f"buffer_load_dwordx4 {Q(96+16*d+4*q)}, v{53+q}, s[12:15], s29 offen offset:{1024*q+128*d} sc1"
    for d in range(4):
        for q in range(4): a(hl(d, q))
    nw2 = 0
    def hchk(d):
        R = 96+16*d
        a(f"s_mov_b32 s46, 0x8000\ns_waitcnt vmcnt({4*(3-d)})\ns_branch KM_hc{d}\nKM_hq{d}:\ns_sleep 2")
        for q in range(4): a(hl(d, q))
        a(f"s_waitcnt vmcnt(0)\nKM_hc{d}:")
        a(f"v_max3_u32 v12, v{R}, v{R+1}, v{R+2}")
        for k in range(3, 15, 2): a(f"v_max3_u32 v12, v12, v{R+k}, v{R+k+1}")
        a(f"""v_max_u32 v12, v12, v{R+15}
v_cmp_eq_u32 vcc, -1, v12
s_nop 1
s_and_b64 exec, exec, vcc
s_cbranch_scc0 KM_ho{d}
s_sub_u32 s46, s46, 1
s_cmp_lg_u32 s46, 0
s_cbranch_scc1 KM_hq{d}
KM_ho{d}:
s_mov_b64 exec, -1""")
        for q in range(4): a(f"ds_write_b128 v62, {Q(R+4*q)} offset:{d*HS+1024*q}")
    for d in range(10):
        if d == 0:
            hchk(0); a("s_waitcnt lgkmcnt(0)"); ST('p')
        elif d == 1:
            hchk(1); a("s_waitcnt lgkmcnt(0)")
        elif d >= 4:
            a(f"s_waitcnt vmcnt({sum(cnt[d-3:])})")
        bar(a, 'P', f'B{d}')
        if d == 1:
            iw(8); iw(9)
            a("s_waitcnt vmcnt(6)")
            hchk2 = True
            for dd in (2, 3):
                R = 96+16*dd
                a(f"s_mov_b32 s46, 0x8000\ns_branch KM_hc{dd}\nKM_hq{dd}:\ns_sleep 2")
                for q in range(4): a(hl(dd, q))
                a(f"s_waitcnt vmcnt(0)\nKM_hc{dd}:")
                a(f"v_max3_u32 v12, v{R}, v{R+1}, v{R+2}")
                for k in range(3, 15, 2): a(f"v_max3_u32 v12, v12, v{R+k}, v{R+k+1}")
                a(f"""v_max_u32 v12, v12, v{R+15}
v_cmp_eq_u32 vcc, -1, v12
s_nop 1
s_and_b64 exec, exec, vcc
s_cbranch_scc0 KM_ho{dd}
s_sub_u32 s46, s46, 1
s_cmp_lg_u32 s46, 0
s_cbranch_scc1 KM_hq{dd}
KM_ho{dd}:
s_mov_b64 exec, -1""")
                for q in range(4): a(f"ds_write_b128 v62, {Q(R+4*q)} offset:{dd*HS+1024*q}")
            a("s_waitcnt lgkmcnt(0)\ns_add_u32 s33, s29, 512")
        elif d == 2:
            spin(a, 'KM_p1', "buffer_load_dword v11, v57, s[12:15], s23 offen sc1", "v_cmp_ne_u32 vcc, v11, v61")
            ih(4); cnt.append(4)
            grp(5)
        elif d >= 3 and d+3 < 10: grp(d+3)
        if d >= 7:
            for _ in range(EARLY[d]): iw2(nw2); nw2 += 1
            cnt.append(3*EARLY[d])
    bar(a, 'P', 'B10')
    while nw2 < NWD: iw2(nw2); nw2 += 1
    if 'nohs' in OPT:
        a(f"""s_lshl_b32 s23, s50, 11
s_add_u32 s23, s23, {FLG + 32768}
s_add_u32 s48, s48, 32768""")
        bar(a, 'P', 'd2')
        a(f"""s_cmp_eq_u32 s47, 1
s_cbranch_scc0 KM_nb2
s_mov_b64 exec, 1
buffer_store_dword v61, v60, s[12:15], s48 offen sc1
s_mov_b64 exec, -1
KM_nb2:
s_cmp_lg_u32 s47, 0
s_cbranch_scc1 KM_na2""")
        spin(a, 'KM_p2', "buffer_load_dword v11, v58, s[12:15], s23 offen sc1", "v_cmp_ne_u32 vcc, v11, v61")
        a("KM_na2:")
    a("s_waitcnt vmcnt(0)")
    ST('p')
    bar(a, 'P', 'C0')
    pend = []
    for s in CB:
        need = [t for t in pend if t <= NEXTCB[s]]
        a(f"s_waitcnt vmcnt({3*(len(pend)-len(need))})")
        bar(a, 'P', f'C{s}')
        pend = [t for t in pend if t not in need]
        while nw2 < NS2 and nw2 - NWD <= s:
            iw2(nw2); pend.append(nw2); nw2 += 1
    a("@dump 12\nKM_end:\ns_endpgm")
    assert bar.seq['W'] == bar.seq['P'], (bar.seq['W'], bar.seq['P'])
    return kd_block(NAME, 168, 100)
if __name__ == '__main__':
    OPT = {}; out = 'mega.s'
    for x in sys.argv[1:]:
        if x.endswith('.s'): out = x
        elif x.startswith('st='): gen.STAMPS = True; OPT['st'] = x[3:]
        elif x.startswith('slp'): gen.SLP = int(x[3:])
        elif x.startswith('bk'): OPT['bk'] = int(x[2:])
        elif x.startswith('tp='): OPT['tp'] = x[3:]
        elif x.startswith('hp='): OPT['hp'] = x[3:]
        elif x.startswith('e0='): OPT['e0'] = int(x[3:])
        elif x.startswith('nb='): OPT['nb'] = int(x[3:])
        elif x.startswith('dx='): OPT['dx'] = int(x[3:])
        elif x.startswith('dy='): OPT['dy'] = int(x[3:])
        elif x.startswith('ncp='): OPT['ncp'] = int(x[4:])
        elif x.startswith('wb='): OPT['wb'] = int(x[3:]) << 20
        elif x.startswith('wp='): OPT['wp'] = x[3:]
        else: OPT[x] = 1
    a = Asm2()
    kd = km(a, OPT)
    hdr = open('adaLN_cond__spectral_gfnet__glu_gated_geglu__prompt.s.ref').read().split('\n')[:13]
    s = '\n'.join(hdr) + '\n; @launch grid=(256,1,1) block=(768,1,1) lds=163840\n'
    s += '.amdgcn_target "amdgcn-amd-amdhsa--gfx950"\n.text\n' + a.text() + '.section .rodata,"a"\n' + kd
    open(out, 'w').write(s)
```

```python
import sys, math, struct
sys.path.insert(0,'work')
from asmlib import *
def f2u(x): return struct.unpack('<I', struct.pack('<f', x))[0]
def fh(x): return '0x%08x' % f2u(x)
MOD=0; XF=0x100000; YF=0x400000; WP=0x700000; X1=0xA00000; H2F=0xD00000; HIDF=0x1000000; WDT=0x1C00000; FLG=0x10000; WS_SIZE=0x1E00000
DPP='row_mask:0xf bank_mask:0xf'

STAMPS = False
DBGDUMP = False
SLP = 4
TLBSH = 16
RPG = 2
OPT = set()
DBG = 0x1640000
class Stamper:
    def __init__(self, a, kid): self.a=a; self.kid=kid; self.n=0
    def __call__(self):
        if not STAMPS: return
        if self.n == 0: self.a("s_memtime s[64:65]")
        self.a(f"s_memrealtime s[{70+2*self.n}:{71+2*self.n}]"); self.n += 1
    def dump(self, srd_ws, wgreg='s2', drain=True):
        if not STAMPS: return
        a = self.a
        if DBGDUMP:
            u = a.uid()
            a("s_waitcnt vmcnt(0)"); self()
            a(f"""s_load_dwordx2 s[8:9], s[0:1], 80
s_mov_b32 s10, 256
s_mov_b32 s11, 0x00020000
s_waitcnt lgkmcnt(0)
s_cmp_lg_u32 s2, 100
s_cbranch_scc1 DD{u}
s_cmp_lg_u32 s22, 0
s_cbranch_scc1 DD{u}
s_mov_b64 exec, 1
v_mov_b32 v1, 0""")
            for k in range(1, self.n):
                a(f"s_sub_u32 s68, s{70+2*k}, s70\nv_mov_b32 v2, s68\nbuffer_store_dword v2, v1, s[8:11], 0 offen offset:{4*k}")
            a(f"DD{u}:")
            return
        if drain:
            a("s_waitcnt vmcnt(0)"); self()
        a(f"""s_memtime s[66:67]
s_waitcnt lgkmcnt(0)
s_sub_u32 s66, {'s62' if ('g1cyc' in OPT and self.kid == 3) else 's66'}, s64
s_mov_b64 exec, 1
v_lshrrev_b32 v1, 6, v0
v_lshlrev_b32 v1, 6, v1
s_lshl_b32 s68, {wgreg}, 10
s_add_u32 s68, s68, {DBG + self.kid*0x80000}""")
        a(f"v_mov_b32 v2, s66\nbuffer_store_dword v2, v1, s[{srd_ws}:{srd_ws+3}], s68 offen offset:60")
        for k in range(self.n):
            a(f"v_mov_b32 v2, s{70+2*k}\nbuffer_store_dword v2, v1, s[{srd_ws}:{srd_ws+3}], s68 offen offset:{4*k}")
class Asm2(Asm):
    _u = 0
    def uid(self, inc=1):
        self._u += inc; return self._u
    def emit(self, line):
        if line == '@stamp': self.st(); return
        if line == '@k0exp':
            if 'k0small' in OPT:
                for l in ("s_and_b32 s3, s2, 7", "s_mul_i32 s3, s3, 10", "s_lshr_b32 s22, s2, 3", "s_add_u32 s3, s3, s22", "s_cmp_ge_u32 s2, 80", "s_cbranch_scc1 K0_end"): Asm.emit(self, l)
            return
        if 'noload' in OPT and line.endswith(' lds'): return
        if 'nowload' in OPT and line.endswith(' lds') and 's[8:11]' in line: return
        if 'nohload' in OPT and line.endswith(' lds') and 's[12:15]' in line: return
        if line.startswith('@dump'):
            p = line.split(); self.st.dump(int(p[1]), p[2] if len(p) > 2 else 's2'); return
        Asm.emit(self, line)
def head(a, name):
    a.st = Stamper(a, int(name[1]))
    a(f""".globl {name}
.p2align 8
.type {name},@function
{name}:""")
def srd(a, d, p, size):
    a(f"""s_mov_b32 s{d}, s{p}
s_mov_b32 s{d+1}, s{p+1}
s_mov_b32 s{d+2}, {size}
s_mov_b32 s{d+3}, 0x00020000""")

def P(r): return f"v[{r}:{r+1}]"
def Q(r): return f"v[{r}:{r+3}]"
def wprep(a, sT, pr, pi, ws, sc):
    a(f"""s_movk_i32 s46, 640
s_and_b32 s28, s{sT}, 31
s_lshr_b32 s29, s{sT}, 5
s_and_b32 s30, s28, 3
s_lshl_b32 s31, s30, 4
s_lshl_b32 s30, s30, 11
s_bfe_u32 s23, s28, 0x10002
s_lshl_b32 s23, s23, 10
s_add_u32 s31, s31, s23
s_add_u32 s30, s30, s23
s_lshr_b32 s23, s28, 3
s_lshl_b32 s23, s23, 8
s_add_u32 s31, s31, s23
s_add_u32 s30, s30, s23
s_mul_i32 s31, s31, 642
s_lshl_b32 s28, s29, 5
s_min_u32 s28, s28, 314
s_lshl_b32 s23, s28, 1
s_add_u32 s31, s31, s23
s_lshl_b32 s23, s28, 13
s_add_u32 s30, s30, s23
s_add_u32 s30, s30, {WP}
v_and_b32 v1, 15, v0
v_bfe_u32 v2, v0, 4, 2
v_and_b32 v3, 7, v0
v_bfe_u32 v5, v0, 3, 1
v_mul_u32_u24 v3, 1284, v3
v_mad_u32_u24 v3, v5, s46, v3
v_lshl_add_u32 v3, v2, 4, v3
v_lshlrev_b32 v4, 4, v1
v_lshl_add_u32 v4, v2, 16, v4
v_xor_b32 v5, 1, v5
v_lshl_add_u32 v4, v5, 13, v4
s_sub_u32 s30, s30, 8192
s_mov_b32 s8, s{pr}
s_mov_b32 s9, s{pr+1}
s_mov_b32 s10, {2048*642}
s_mov_b32 s11, 0x00020000
s_mov_b32 s24, s{pi}
s_mov_b32 s25, s{pi+1}
s_mov_b32 s26, {2048*642}
s_mov_b32 s27, 0x00020000
s_cmp_eq_u32 s29, 10
s_cselect_b64 exec, 0xffff, -1""")
    for i in range(4):
        a(f"buffer_load_dwordx4 {Q(8+4*i)}, v3, s[8:11], s31 offen\nbuffer_load_dwordx4 {Q(24+4*i)}, v3, s[24:27], s31 offen")
        if i < 3: a("s_add_u32 s31, s31, 41088")
    a(f"""s_mov_b32 s28, 0x05040100
s_mov_b32 s23, 0x07060302
@stamp
s_waitcnt vmcnt(0)
@stamp""")
    for c in range(8):
        o = 40 + 4*(c & 1)
        for i in range(4):
            a(f"v_perm_b32 v{o+i}, v{24+4*i+c//2}, v{8+4*i+c//2}, s{23 if c & 1 else 28}")
        a(f"buffer_store_dwordx4 {Q(o)}, v4, s[{ws}:{ws+3}], s30 offen {sc}")
        if c < 7: a("s_add_u32 s30, s30, 8192")
    a("s_mov_b64 exec, -1")

def k0(a):
    head(a, 'k0_kernel')
    WPT = 1; NWP = 240 + 352//WPT
    NW0 = NWP + 56
    a(f"""
s_cmp_ge_u32 s2, {NW0}
s_cbranch_scc1 K0_end""")
    a(f"s_cmp_ge_u32 s2, {NWP}\ns_cbranch_scc1 K0_pf")
    a("""
@stamp
s_mov_b32 s69, s2
s_load_dwordx4 s[4:7], s[0:1], 56
s_load_dwordx2 s[20:21], s[0:1], 88
s_load_dwordx4 s[24:27], s[0:1], 8
s_cmp_ge_u32 s2, 240
s_cbranch_scc1 K0_wprep
v_readfirstlane_b32 s28, v0
s_cmp_ge_u32 s28, 320
s_cbranch_scc1 K0_end
s_and_b32 s3, s2, 7
s_mul_i32 s3, s3, 30
s_lshr_b32 s22, s2, 3
s_add_u32 s3, s3, s22
s_lshl_b32 s22, s3, 5
v_lshrrev_b32 v1, 1, v0
v_and_b32 v2, 1, v0
v_mul_u32_u24 v3, 7680, v1
v_lshl_add_u32 v3, v2, 4, v3
v_add_u32 v3, s22, v3
v_lshlrev_b32 v4, 1, v1
s_waitcnt lgkmcnt(0)
@stamp
""")
    srd(a, 8, 4, 1280)
    srd(a, 12, 6, 640*3840*2)
    srd(a, 16, 20, WS_SIZE)
    NR = 4
    for i in range(NR):
        a(f"buffer_load_short_d16_hi v{28+i}, v4, s[8:11], 0 offen offset:{320*i}")
    a("s_mov_b32 s23, 0")
    for i in range(NR):
        a(f"buffer_load_dwordx4 v[{8+4*i}:{11+4*i}], v3, s[12:15], s23 offen")
        if i < NR-1: a(f"s_add_u32 s23, s23, {160*7680}")
    a(f"s_waitcnt vmcnt({NR})")
    for i in range(NR): a(f"v_mul_f32 v{33+i}, {fh(-math.log2(math.e))}, v{28+i}")
    for i in range(NR): a(f"v_exp_f32 v{33+i}, v{33+i}")
    for i in range(NR): a(f"v_add_f32 v{33+i}, 1.0, v{33+i}")
    for i in range(NR): a(f"v_rcp_f32 v{33+i}, v{33+i}")
    for i in range(NR): a(f"v_mul_f32 v{28+i}, v{28+i}, v{33+i}")
    for i in range(NR): a(f"v_cvt_pk_bf16_f32 v{28+i}, v{28+i}, v{28+i}")
    for i in range(NR): a(f"v_and_b32 v{48+2*i}, 0xffff0000, v{28+i}")
    a("""v_and_b32 v5, 15, v0
v_lshrrev_b32 v6, 4, v0
v_lshlrev_b32 v7, 6, v6
v_lshl_add_u32 v7, v2, 5, v7""")
    for i in range(NR):
        a(f"s_waitcnt vmcnt({NR-1-i})")
        if i == NR-1: a("@stamp")
        for j in range(4):
            a(f"v_lshlrev_b32 v{32+2*j}, 16, v{8+4*i+j}\nv_and_b32 v{33+2*j}, 0xffff0000, v{8+4*i+j}")
        for j in range(4):
            if i == 0: a(f"v_pk_mul_f32 v[{40+2*j}:{41+2*j}], v[{32+2*j}:{33+2*j}], v[48:49] op_sel_hi:[1,0]")
            else: a(f"v_pk_fma_f32 v[{40+2*j}:{41+2*j}], v[{32+2*j}:{33+2*j}], v[{48+2*i}:{49+2*i}], v[{40+2*j}:{41+2*j}] op_sel_hi:[1,0,1]")
    for mode in ('quad_perm:[2,3,0,1]', 'row_ror:4', 'row_ror:8'):
        for j in range(8):
            a(f"v_add_f32_dpp v{40+j}, v{40+j}, v{40+j} {mode} {DPP}")
    a("""
v_cmp_gt_u32 vcc, 2, v5
s_and_saveexec_b64 s[24:25], vcc
ds_write_b128 v7, v[40:43]
ds_write_b128 v7, v[44:47] offset:16
s_mov_b64 exec, s[24:25]
s_waitcnt lgkmcnt(0)
s_barrier
s_cmp_ge_u32 s28, 64
s_cbranch_scc1 K0_end
v_mul_u32_u24 v7, 320, v6
v_lshl_add_u32 v7, v5, 2, v7
ds_read_b32 v8, v7
ds_read_b32 v9, v7 offset:64
ds_read_b32 v10, v7 offset:128
ds_read_b32 v11, v7 offset:192
ds_read_b32 v12, v7 offset:256
s_sub_u32 s24, s3, 40
s_cmp_lt_u32 s24, 40
s_cselect_b32 s25, 1.0, 0
s_sub_u32 s24, s3, 160
s_cmp_lt_u32 s24, 40
s_cselect_b32 s25, 1.0, s25
s_lshl_b32 s22, s3, 6
v_lshlrev_b32 v7, 2, v0
s_waitcnt lgkmcnt(0)
v_add_f32 v8, v8, v9
v_add_f32 v10, v10, v11
v_add_f32 v8, v8, v12
v_add_f32 v8, v8, v10
v_mov_b32 v9, v8
v_permlane16_swap_b32 v8, v9
v_add_f32 v8, v8, v9
v_mov_b32 v9, v8
v_permlane32_swap_b32 v8, v9
v_add_f32 v8, v8, v9
v_cvt_pk_bf16_f32 v8, v8, v8
v_and_b32 v8, 0xffff0000, v8
v_add_f32 v8, s25, v8
v_cvt_pk_bf16_f32 v8, v8, v8
v_and_b32 v8, 0xffff0000, v8
v_cmp_gt_u32 vcc, 16, v0
s_and_saveexec_b64 s[24:25], vcc
buffer_store_dword v8, v7, s[16:19], s22 offen
@dump 16
s_endpgm
""")
    a.st.n = 1
    a(f"""
K0_wprep:
s_sub_u32 s3, s2, 240
v_lshrrev_b32 v1, 6, v0
s_mul_i32 s3, s3, {WPT}
v_readfirstlane_b32 s22, v1
s_add_u32 s3, s3, s22
s_cmp_ge_u32 s22, {WPT}
s_cbranch_scc1 K0_end
s_waitcnt lgkmcnt(0)""")
    srd(a, 16, 20, WS_SIZE)
    wprep(a, 3, 24, 26, 16, '')
    a("@dump 16 s69\ns_endpgm")
    a("K0_pf:")
    if 'tlb' in OPT:
        a(f"""s_cmp_lt_u32 s2, 552
s_cbranch_scc1 K0_pf2
s_load_dwordx8 s[24:31], s[0:1], 32
s_load_dwordx2 s[32:33], s[0:1], 72
s_load_dwordx2 s[34:35], s[0:1], 88
s_load_dwordx2 s[36:37], s[0:1], 0
v_lshlrev_b32 v1, {TLBSH}, v0
s_mov_b32 s11, 0x00020000
s_waitcnt lgkmcnt(0)""")
        k = 2
        for p, sz in ((34, WS_SIZE), (24, 640*3072), (26, 640*3072), (28, 640*3072), (32, 2048*1280), (36, 2048*1280)):
            a(f"s_mov_b32 s8, s{p}\ns_mov_b32 s9, s{p+1}\ns_mov_b32 s10, {sz}")
            for o in range(0, sz, 384 << TLBSH):
                a(f"s_mov_b32 s20, {o}\nbuffer_load_dword v{k}, v1, s[8:11], s20 offen"); k += 1
        a("s_endpgm\nK0_pf2:")
    a(f"""s_load_dwordx2 s[8:9], s[0:1], 0
s_sub_u32 s3, s2, {NWP}
s_mul_i32 s3, s3, {384*128}
v_lshlrev_b32 v1, 7, v0
s_mov_b32 s10, {2048*1280}
s_mov_b32 s11, 0x00020000
s_waitcnt lgkmcnt(0)
buffer_load_dword v2, v1, s[8:11], s3 offen""")
    a("K0_end:\ns_endpgm")
    return ('k0_kernel', (NW0,1,1), (384,1,1), 1280, kd_block('k0_kernel', 56, 96))

C1,C2,S1,S2 = math.cos(2*math.pi/5),math.cos(4*math.pi/5),math.sin(2*math.pi/5),math.sin(4*math.pi/5)
def P(r): return f"v[{r}:{r+1}]"
def Q(r): return f"v[{r}:{r+3}]"

def col_slots(a, sW, vN, vG, out, tmp):
    a(f"""v_and_b32 v{tmp}, 7, v{vN}
s_lshl_b32 s40, s{sW}, 3
v_add_u32 v{out}, s40, v{tmp}
v_cmp_eq_u32 vcc, 0, v{out}
v_cndmask_b32 v{out+2}, 1.0, 0, vcc
v_cmp_lt_u32 s[42:43], 7, v{vN}
s_and_b64 s[44:45], s[42:43], vcc
s_andn2_b64 s[42:43], s[42:43], vcc
v_cndmask_b32 v{out}, v{out}, 64, s[44:45]
v_cndmask_b32 v{out+1}, 0, -1, s[42:43]
v_sub_u32 v{tmp}, 128, v{out}
v_cndmask_b32 v{tmp}, v{out}, v{tmp}, s[42:43]
v_mul_u32_u24 v{tmp}, 5, v{tmp}
v_lshrrev_b32 v{tmp+1}, 1, v{vG}
v_lshl_add_u32 v{tmp}, v{tmp+1}, 7, v{tmp}
v_add_u32 v{tmp+1}, 128, v{tmp}
v_subrev_u32 v{tmp+2}, 640, v{tmp+1}
v_min_u32 v{tmp+1}, v{tmp+1}, v{tmp+2}
v_sub_u32 v{tmp+2}, 640, v{tmp+1}
v_cmp_lt_u32 vcc, v{tmp+2}, v{tmp+1}
v_min_u32 v{tmp+1}, v{tmp+1}, v{tmp+2}
v_mov_b32 v{tmp+2}, 0x80008000
v_cndmask_b32 v{out+4}, 0, v{tmp+2}, vcc
v_and_b32 v{tmp+3}, 1, v{vG}
v_lshlrev_b32 v{tmp+3}, 4, v{tmp+3}
v_lshl_add_u32 v{out+3}, v{tmp+1}, 13, v{tmp+3}
v_mul_u32_u24 v{tmp+1}, 40960, v{out}
v_add_u32 v{out+5}, v{tmp+1}, v{tmp+3}""")

def allreduce64(a, v, t):
    for mode in ('quad_perm:[1,0,3,2]', 'quad_perm:[2,3,0,1]', 'row_ror:4', 'row_ror:8'):
        a(f"v_add_f32_dpp v{v}, v{v}, v{v} {mode} {DPP}")
    a(f"""v_mov_b32 v{t}, v{v}
v_permlane16_swap_b32 v{v}, v{t}
v_add_f32 v{v}, v{v}, v{t}
v_mov_b32 v{t}, v{v}
v_permlane32_swap_b32 v{v}, v{t}
v_add_f32 v{v}, v{v}, v{t}""")

def row_ids(a):
    a("""s_and_b32 s3, s2, 7
s_lshr_b32 s20, s2, 3
s_lshl_b32 s3, s3, 2
s_lshr_b32 s21, s20, 3
s_add_u32 s3, s3, s21
s_and_b32 s20, s20, 7
v_lshrrev_b32 v4, 6, v0
v_and_b32 v1, 63, v0
v_readfirstlane_b32 s22, v4
v_and_b32 v3, 31, v0
v_lshlrev_b32 v2, 3, v3
v_bfe_u32 v4, v0, 5, 1
v_lshl_add_u32 v2, v4, 8, v2
v_lshlrev_b32 v3, 2, v3
v_lshl_add_u32 v3, v4, 1, v3""")
def w5_consts(a, o, t, sgn):
    a(f"""v_cvt_f32_u32 v{t}, v3
v_mul_f32 v{t}, {fh(0.2*sgn)}, v{t}
v_add_f32 v{t+1}, {fh(0.2*sgn)}, v{t}
v_cos_f32 v{o}, v{t}
v_cos_f32 v{o+1}, v{t+1}
v_sin_f32 v{o+2}, v{t}
v_sin_f32 v{o+3}, v{t+1}
v_pk_add_f32 {P(t)}, {P(t)}, {P(t)}
v_cos_f32 v{o+4}, v{t}
v_cos_f32 v{o+5}, v{t+1}
v_sin_f32 v{o+6}, v{t}
v_sin_f32 v{o+7}, v{t+1}""")
def ln_rows(a, X, t):
    a(f"""v_pk_add_f32 {P(t)}, {P(X)}, {P(X+2)}
v_pk_add_f32 {P(t+2)}, {P(X+4)}, {P(X+6)}
v_pk_add_f32 {P(t)}, {P(t)}, {P(X+8)}
v_pk_add_f32 {P(t)}, {P(t)}, {P(t+2)}
v_add_f32 v{t}, v{t}, v{t+1}""")
    allreduce64(a, t, t+1)
    a(f"v_mul_f32 v{t}, {fh(-1/640)}, v{t}")
    for j in range(5): a(f"v_pk_add_f32 {P(X+2*j)}, {P(X+2*j)}, {P(t)} op_sel_hi:[1,0]")
    a(f"""v_pk_mul_f32 {P(t)}, {P(X)}, {P(X)}
v_pk_mul_f32 {P(t+2)}, {P(X+2)}, {P(X+2)}
v_pk_fma_f32 {P(t)}, {P(X+4)}, {P(X+4)}, {P(t)}
v_pk_fma_f32 {P(t+2)}, {P(X+6)}, {P(X+6)}, {P(t+2)}
v_pk_fma_f32 {P(t)}, {P(X+8)}, {P(X+8)}, {P(t)}
v_pk_add_f32 {P(t)}, {P(t)}, {P(t+2)}
v_add_f32 v{t}, v{t}, v{t+1}""")
    allreduce64(a, t, t+1)
    a(f"""v_mov_b32 v{t+1}, {fh(1e-5)}
v_fmac_f32 v{t+1}, {fh(1/640)}, v{t}
v_rsq_f32 v{t}, v{t+1}""")
def unpack_x(a, src, X):
    for k in range(3): a(f"v_permlane32_swap_b32 v{src+2*k}, v{src+2*k+1}")
    for j in range(5): a(f"v_lshlrev_b32 v{X+2*j}, 16, v{src+j}\nv_and_b32 v{X+2*j+1}, 0xffff0000, v{src+j}")
def r5_sconsts(a):
    a(f"""s_mov_b32 s30, {fh(C1)}
s_mov_b32 s31, {fh(C1)}
s_mov_b32 s32, {fh(C2)}
s_mov_b32 s33, {fh(C2)}
s_mov_b32 s34, {fh(S1)}
s_mov_b32 s35, {fh(S1)}
s_mov_b32 s36, {fh(S2)}
s_mov_b32 s37, {fh(S2)}""")

def k1(a):
    head(a, 'k1_kernel')
    PB = 12288
    a("""
s_cmp_ge_u32 s2, 256
s_cbranch_scc1 K1_side
@stamp
s_load_dwordx2 s[4:5], s[0:1], 0
s_load_dwordx2 s[6:7], s[0:1], 88
""")
    row_ids(a)
    a(f"""
s_lshl_b32 s21, s20, 3
s_add_u32 s21, s21, s22
s_lshl_b32 s21, s21, 5
s_add_u32 s21, s21, s3
s_mul_i32 s21, s21, 1280
v_lshlrev_b32 v4, 4, v1
s_lshl_b32 s23, s22, 10
s_add_u32 m0, s23, {PB}
s_waitcnt lgkmcnt(0)
""")
    srd(a, 8, 4, 2048*1280)
    srd(a, 12, 6, WS_SIZE)
    for k in range(3):
        a(f"buffer_load_dwordx2 {P(16+2*k)}, v2, s[8:11], s21 offen offset:{512*k}")
    a("""s_cmp_ge_u32 s22, 5
s_cbranch_scc1 K1_nodma
buffer_load_dwordx4 v4, s[12:15], s23 offen lds
K1_nodma:
v_and_b32 v5, 15, v0
v_bfe_u32 v6, v0, 4, 2""")
    col_slots(a, 22, 5, 6, 8, 22)
    w5_consts(a, 88, 22, -1.0)
    a(f"""
v_cvt_f32_u32 v22, v8
v_mul_f32 v22, {fh(1/128)}, v22
v_cvt_f32_u32 v23, v6
v_mul_f32 v23, {fh(8.0)}, v23
v_and_b32 v24, {fh(0.25)}, v9
v_fma_f32 v23, v23, v22, -v24
v_mul_f32 v24, {fh(25.0)}, v22
""")
    for t in range(4):
        for jj in range(4):
            a(f"""v_cos_f32 v25, v23
v_add_f32 v23, v23, v22
v_cos_f32 v26, v23
v_add_f32 v23, v23, v{24 if jj == 3 else 22}
v_cvt_pk_bf16_f32 v{96+4*t+jj}, v25, v26""")
    a(f"""
v_lshrrev_b32 v22, 3, v3
v_xor_b32 v22, s22, v22
v_lshlrev_b32 v22, 4, v22
v_and_b32 v23, 7, v3
v_lshl_add_u32 v22, v23, 1, v22
s_lshl_b32 s23, s22, 8
v_add_u32 v14, s23, v22
v_xor_b32 v15, {2048+128}, v14
v_lshlrev_b32 v7, 2, v3
v_xor_b32 v22, v6, v5
""")
    for t in range(4):
        a(f"""v_xor_b32 v23, {4*t}, v22
v_lshlrev_b32 v23, 4, v23
v_lshl_add_u32 v{112+t}, v5, 8, v23""")
    r5_sconsts(a)
    a(f"""
s_lshl_b32 s23, s3, 8
s_lshl_b32 s21, s20, 5
s_add_u32 s23, s23, s21
s_add_u32 s23, s23, {XF}
@stamp
s_waitcnt vmcnt(0)
s_barrier
@stamp
""")
    for j in range(5):
        a(f"ds_read_b64 {P(40+2*j)}, v7 offset:{PB+2560+512*j}\nds_read_b64 {P(50+2*j)}, v7 offset:{PB+512*j}")
    unpack_x(a, 16, 28)
    ln_rows(a, 28, 22)
    a("s_waitcnt lgkmcnt(0)")
    for j in range(5): a(f"v_pk_mul_f32 {P(40+2*j)}, {P(40+2*j)}, {P(22)} op_sel_hi:[1,0]")
    for j in range(5): a(f"v_pk_fma_f32 {P(28+2*j)}, {P(28+2*j)}, {P(40+2*j)}, {P(50+2*j)}")
    h = {(3*j) % 5: 28+2*j for j in range(5)}
    t1,t2,t3,t4 = 40,42,44,46; z0,p1,q1,p2,q2 = 48,50,52,54,56
    a(f"""v_pk_add_f32 {P(t1)}, {P(h[1])}, {P(h[4])}
v_pk_add_f32 {P(t2)}, {P(h[2])}, {P(h[3])}
v_pk_add_f32 {P(t3)}, {P(h[1])}, {P(h[4])} neg_lo:[0,1] neg_hi:[0,1]
v_pk_add_f32 {P(t4)}, {P(h[2])}, {P(h[3])} neg_lo:[0,1] neg_hi:[0,1]
v_pk_add_f32 {P(z0)}, {P(h[0])}, {P(t1)}
v_pk_fma_f32 {P(p1)}, s[30:31], {P(t1)}, {P(h[0])}
v_pk_fma_f32 {P(p2)}, s[32:33], {P(t1)}, {P(h[0])}
v_pk_mul_f32 {P(q1)}, s[34:35], {P(t3)}
v_pk_mul_f32 {P(q2)}, s[36:37], {P(t3)}
v_pk_add_f32 {P(z0)}, {P(z0)}, {P(t2)}
v_pk_fma_f32 {P(p1)}, s[32:33], {P(t2)}, {P(p1)}
v_pk_fma_f32 {P(p2)}, s[30:31], {P(t2)}, {P(p2)}
v_pk_fma_f32 {P(q1)}, s[36:37], {P(t4)}, {P(q1)}
v_pk_fma_f32 {P(q2)}, s[34:35], {P(t4)}, {P(q2)} neg_lo:[0,1,0] neg_hi:[0,1,0]
v_cvt_pk_bf16_f32 v22, v{z0}, v{z0+1}
ds_write_b32 v14, v22 offset:8192""")
    for k, (p, q) in enumerate(((p1, q1), (p2, q2))):
        c, s = 88+4*k, 90+4*k; r, im = 28+4*k, 30+4*k
        a(f"""v_pk_mul_f32 {P(r)}, {P(p)}, {P(c)}
v_pk_mul_f32 {P(im)}, {P(p)}, {P(s)}
v_pk_fma_f32 {P(r)}, {P(q)}, {P(s)}, {P(r)}
v_pk_fma_f32 {P(im)}, {P(q)}, {P(c)}, {P(im)} neg_lo:[1,0,0] neg_hi:[1,0,0]
v_cvt_pk_bf16_f32 v{23+2*k}, v{r}, v{r+1}
v_cvt_pk_bf16_f32 v{24+2*k}, v{im}, v{im+1}
ds_write_b32 v{14+k}, v{23+2*k}
ds_write_b32 v{14+k}, v{24+2*k} offset:4096""")
    a("@stamp\ns_waitcnt lgkmcnt(0)\ns_barrier\n@stamp")
    for T in range(3):
        for t in range(4):
            a(f"ds_read_b128 {Q(28+16*T+4*t)}, v{112+t} offset:{4096*T}")
    n = 12
    for T in range(3):
        for t in range(4):
            n -= 1
            a(f"s_waitcnt lgkmcnt({n})")
            a(f"v_mfma_f32_16x16x32_bf16 {Q(76+4*T)}, {Q(28+16*T+4*t)}, {Q(96+4*t)}, {'0' if t == 0 else Q(76+4*T)}")
    a(f"""v_and_b32 v22, 0x80008000, v9
v_and_b32 v23, v9, v12
v_bfi_b32 v24, v9, v22, v12
v_cmp_neq_f32 vcc, 0, v10
v_pk_mul_f32 {P(28)}, {P(76)}, {P(10)} op_sel_hi:[1,0]
v_pk_mul_f32 {P(30)}, {P(78)}, {P(10)} op_sel_hi:[1,0]
v_pk_mul_f32 {P(32)}, {P(80)}, {P(10)} op_sel_hi:[1,0]
v_pk_mul_f32 {P(34)}, {P(82)}, {P(10)} op_sel_hi:[1,0]
v_cndmask_b32 v25, 0, -1, vcc""")
    for i in range(4):
        a(f"v_add_f32_dpp v{76+i}, v{32+i}, v{76+i} row_ror:8 {DPP}")
        a(f"v_subrev_f32_dpp v{80+i}, v{28+i}, v{80+i} row_ror:8 {DPP}")
    a(f"""v_cvt_pk_bf16_f32 v36, v76, v77
v_cvt_pk_bf16_f32 v37, v78, v79
v_cvt_pk_bf16_f32 v38, v80, v81
v_cvt_pk_bf16_f32 v39, v82, v83
v_cvt_pk_bf16_f32 v44, v84, v85
v_cvt_pk_bf16_f32 v45, v86, v87
v_xor_b32 v36, v36, v23
v_xor_b32 v37, v37, v23
v_xor_b32 v38, v38, v24
v_xor_b32 v39, v39, v24
v_xor_b32 v44, v44, v22
v_xor_b32 v45, v45, v22
v_cndmask_b32 v40, v36, v38, s[42:43]
v_cndmask_b32 v41, v37, v39, s[42:43]
v_cndmask_b32 v42, v38, v36, s[42:43]
v_cndmask_b32 v43, v39, v37, s[42:43]
buffer_store_dwordx4 {Q(40)}, v11, s[12:15], s23 offen
v_and_b32_dpp v46, v44, v25 row_ror:8 {DPP}
v_and_b32_dpp v47, v45, v25 row_ror:8 {DPP}
s_not_b64 exec, s[42:43]
s_mov_b32 exec_hi, 0
buffer_store_dwordx4 {Q(44)}, v13, s[12:15], s23 offen
@stamp
@dump 12
s_endpgm
K1_side:
s_cmp_ge_u32 s2, 352
s_cbranch_scc1 K1_end
s_load_dwordx2 s[4:5], s[0:1], 48
s_load_dwordx2 s[6:7], s[0:1], 88
s_sub_u32 s3, s2, 256
s_cmp_lg_u32 s3, 0
s_cbranch_scc1 K1_nz
s_waitcnt lgkmcnt(0)
s_mov_b32 s12, s6
s_mov_b32 s13, s7
s_mov_b32 s14, {WS_SIZE}
s_mov_b32 s15, 0x00020000
s_mov_b32 s20, {FLG}
v_lshlrev_b32 v1, 7, v0
v_mov_b32 v24, 0
buffer_store_dword v24, v1, s[12:15], s20 offen
K1_nz:
v_cmp_gt_u32 vcc, 320, v0
s_and_saveexec_b64 s[30:31], vcc
s_cbranch_execz K1_end
v_mul_u32_u24 v1, 52429, v0
v_lshrrev_b32 v1, 22, v1
v_mul_u32_u24 v2, 80, v1
v_sub_u32 v2, v0, v2
v_mul_u32_u24 v3, 52429, v2
v_lshrrev_b32 v3, 19, v3
v_mul_u32_u24 v4, 10, v3
v_sub_u32 v4, v2, v4
v_mul_u32_u24 v5, 1280, v1
v_lshl_add_u32 v5, v2, 4, v5
s_mov_b32 s20, {1536*160}
v_mul_lo_u32 v6, v3, s20
v_lshl_add_u32 v6, v4, 4, v6
v_mul_u32_u24 v7, 160, v1
v_add_u32 v6, v6, v7
s_mul_i32 s20, s3, {16*1280}
s_lshr_b32 s21, s3, 1
s_mul_i32 s21, s21, {32*160}
s_and_b32 s22, s3, 1
s_mul_i32 s22, s22, {8*160}
s_add_u32 s21, s21, s22
s_add_u32 s21, s21, {WDT}
s_waitcnt lgkmcnt(0)""")
    srd(a, 8, 4, 1536*1280)
    srd(a, 12, 6, WS_SIZE)
    for q in range(4):
        a(f"buffer_load_dwordx4 {Q(8+4*q)}, v5, s[8:11], s20 offen")
        if q < 3: a("s_add_u32 s20, s20, 5120")
    for q in range(4):
        a(f"s_waitcnt vmcnt(3)\nbuffer_store_dwordx4 {Q(8+4*q)}, v6, s[12:15], s21 offen offset:{(16*(q&1) + 4*(q>>1))*160}")
    a("K1_end:\ns_endpgm")
    return ('k1_kernel', (352,1,1), (512,1,1), PB+5120, kd_block('k1_kernel', 116, 96))

def k2(a):
    head(a, 'k2_kernel')
    a(f"""
s_cmp_ge_u32 s2, 321
s_cbranch_scc1 K2_side
@stamp
s_load_dwordx2 s[6:7], s[0:1], 88
v_and_b32 v1, 15, v0
v_bfe_u32 v2, v0, 4, 2
v_lshrrev_b32 v3, 6, v0
v_and_b32 v9, 63, v0
v_readfirstlane_b32 s3, v3
v_lshl_add_u32 v4, v3, 2, v2
v_xor_b32 v10, v4, v1
v_lshlrev_b32 v10, 4, v10
v_lshl_add_u32 v4, v4, 8, v10
v_lshrrev_b32 v5, 1, v1
v_and_b32 v6, 1, v1
v_lshl_add_u32 v5, v6, 3, v5
v_lshl_add_u32 v5, v2, 4, v5
v_lshlrev_b32 v5, 4, v5
v_lshl_add_u32 v5, v3, 11, v5
s_lshl_b32 s20, s2, 13
s_add_u32 s21, s20, {XF}
s_add_u32 s22, s21, 4096
s_add_u32 s23, s20, {WP}
s_lshl_b32 s24, s3, 10
s_mov_b32 m0, s24
s_waitcnt lgkmcnt(0)
@stamp
""")
    srd(a, 8, 6, WS_SIZE)
    a(f"""buffer_load_dwordx4 v4, s[8:11], s21 offen lds
s_add_u32 m0, s24, 4096
s_nop 0
buffer_load_dwordx4 v4, s[8:11], s22 offen lds
buffer_load_dwordx4 v[48:51], v5, s[8:11], s23 offen
buffer_load_dwordx4 v[52:55], v5, s[8:11], s23 offen offset:1024
v_lshl_add_u32 v6, v3, 4, v1
v_cvt_f32_u32 v6, v6
v_cvt_f32_u32 v7, v2
v_cvt_f32_u32 v8, v1
v_mul_f32 v7, 4.0, v7
""")
    M = lambda t: 56+6*t
    N = lambda x, y: 80+6*(2*x+y)
    def gen(R, cur, step, last):
        for hh in range(2):
            a(f"""v_cos_f32 v12, v{cur}
v_sin_f32 v13, v{cur}
v_add_f32 v{cur}, v{cur}, v{step}
v_cos_f32 v14, v{cur}
v_sin_f32 v15, v{cur}
v_add_f32 v{cur}, v{cur}, v{last if hh else step}
v_cvt_pk_bf16_f32 v{R+2+hh}, v12, v14
v_cvt_pk_bf16_f32 v{R+hh}, -v13, -v15
v_cvt_pk_bf16_f32 v{R+4+hh}, v13, v15""")
    a(f"""v_mul_f32 v16, {fh(1/64)}, v6
v_mul_f32 v10, v7, v16
v_mul_f32 v11, {fh(13.0)}, v16""")
    for t in range(4): gen(M(t), 10, 16, 11)
    for x in range(2):
        a(f"""v_add_f32 v16, {fh(16.0*x)}, v8
v_mul_f32 v16, {fh(1/32)}, v16
v_mul_f32 v10, v7, v16
v_mul_f32 v11, {fh(13.0)}, v16""")
        for y in range(2): gen(N(x, y), 10, 16, 11)
    a(f"""v_mul_f32 v16, {fh(-1/2048)}, v6
v_mul_f32 v10, v7, v16
v_mul_f32 v11, {fh(13.0)}, v16""")
    for k in range(8):
        a(f"v_cos_f32 v{104+k}, v10\nv_sin_f32 v{112+k}, v10")
        if k < 7: a(f"v_add_f32 v10, v10, v{11 if k == 3 else 16}")
    a(f"""s_lshl_b32 s24, s3, 4
v_cvt_f32_u32 v12, s24
v_add_f32 v12, v12, v7
s_mov_b32 s26, {fh(2.0/(2048*640))}
s_cmp_eq_u32 s2, 0
s_cselect_b32 s26, {fh(1.0/(2048*640))}, s26
s_cmp_eq_u32 s2, 320
s_cselect_b32 s26, {fh(1.0/(2048*640))}, s26
s_mov_b32 s27, s26""")
    for nt in range(2):
        a(f"""v_add_f32 v16, {fh(16.0*nt)}, v8
v_mul_f32 v16, {fh(1/2048)}, v16
v_mul_f32 v10, v12, v16""")
        for i in range(4):
            k = 4*nt+i
            a(f"v_cos_f32 v{120+k}, v10\nv_sin_f32 v{128+k}, v10")
            if i < 3: a("v_add_f32 v10, v10, v16")
    for k in range(8): a(f"v_pk_mul_f32 {P(120+2*k)}, s[26:27], {P(120+2*k)}")
    a(f"""v_xor_b32 v10, v2, v1
v_lshlrev_b32 v10, 4, v10
v_lshl_add_u32 v10, v1, 8, v10
v_xor_b32 v11, 64, v10
v_xor_b32 v12, 128, v10
v_xor_b32 v13, 192, v10
v_lshlrev_b32 v7, 4, v9
s_lshl_b32 s24, s3, 10
v_add_u32 v6, s24, v7
v_lshlrev_b32 v5, 8, v1
v_lshl_add_u32 v5, v3, 6, v5
v_lshl_add_u32 v5, v2, 4, v5
s_add_u32 s21, s20, {YF}
s_add_u32 s22, s21, 4096
@stamp
s_waitcnt vmcnt(2)
s_barrier
@stamp""")
    D = lambda mt, t: 16+16*mt+4*t
    for t in range(4):
        for mt in range(2):
            a(f"ds_read_b128 {Q(D(mt,t))}, v{10+t} offset:{4096*mt}")
    def mf(d, A, B, first): a(f"v_mfma_f32_16x16x32_bf16 {Q(d)}, {Q(A)}, {Q(B)}, {'0' if first else Q(d)}")
    for t in range(4):
        a(f"s_waitcnt lgkmcnt({6-2*t})")
        for mt in range(2):
            mf(136+8*mt, D(mt,t), M(t)+2, t == 0)
            mf(140+8*mt, D(mt,t), M(t), t == 0)
    a("s_waitcnt vmcnt(0)")
    for k in range(8):
        a(f"v_lshlrev_b32 v{32+k}, 16, v{48+k}\nv_and_b32 v{40+k}, 0xffff0000, v{48+k}")
    def tw_pack(tr, ti, B, swap):
        for blk in range(2):
            for hh in range(2):
                r = 136+8*blk+2*hh; i = r+4; c = tr+4*blk+2*hh; s = ti+4*blk+2*hh; t = 48+4*blk+2*hh
                a(f"""v_pk_mul_f32 {P(t)}, {P(i)}, {P(s)}
v_pk_mul_f32 {P(i)}, {P(i)}, {P(c)}
v_pk_fma_f32 {P(i)}, {P(r)}, {P(s)}, {P(i)}
v_pk_fma_f32 {P(r)}, {P(r)}, {P(c)}, {P(t)} neg_lo:[0,0,1] neg_hi:[0,0,1]""")
        for blk in range(2):
            for hh in range(2):
                r = 136+8*blk+2*hh
                a(f"v_cvt_pk_bf16_f32 v{B+4*blk+hh+(2 if swap else 0)}, v{r}, v{r+1}")
                a(f"v_cvt_pk_bf16_f32 v{B+4*blk+hh+(0 if swap else 2)}, v{r+4}, v{r+5}")
    tw_pack(104, 112, 16, False)
    for y in range(2):
        for x in range(2):
            mf(136+8*x, N(x,y)+2, 16+4*y, y == 0)
            mf(140+8*x, N(x,y), 16+4*y, y == 0)
    tw_pack(32, 40, 24, True)
    for y in range(2):
        for x in range(2):
            mf(136+8*x, 24+4*y, N(x,y), y == 0)
            mf(140+8*x, 24+4*y, N(x,y)+2, y == 0)
    tw_pack(120, 128, 16, True)
    a(f"""ds_write_b128 v6, {Q(16)} offset:8192
ds_write_b128 v6, {Q(20)} offset:12288
@stamp
s_waitcnt lgkmcnt(0)
s_barrier
@stamp""")
    for t in range(4):
        for nt in range(2):
            a(f"ds_read_b128 {Q(D(nt,t))}, v7 offset:{8192+4096*nt+1024*t}")
    for t in range(4):
        a(f"s_waitcnt lgkmcnt({6-2*t})")
        for nt in range(2):
            mf(136+8*nt, M(t), D(nt,t), t == 0)
            mf(140+8*nt, M(t)+2, D(nt,t), t == 0)
    for nt in range(2):
        o = 48+4*nt; s = 136+8*nt
        for k in range(4): a(f"v_cvt_pk_bf16_f32 v{o+k}, v{s+2*k}, v{s+2*k+1}")
        a(f"buffer_store_dwordx4 {Q(o)}, v5, s[8:11], s{21+nt} offen")
    a(f"""@stamp
@dump 8
s_endpgm
K2_side:
s_cmp_ge_u32 s2, 381
s_cbranch_scc1 K2_end
s_load_dwordx4 s[4:7], s[0:1], 32
s_sub_u32 s3, s2, 321
s_lshl_b32 s3, s3, 15
v_lshlrev_b32 v1, 7, v0
s_waitcnt lgkmcnt(0)""")
    srd(a, 8, 4, 640*3072)
    srd(a, 12, 6, 640*3072)
    a("""buffer_load_dword v2, v1, s[8:11], s3 offen
buffer_load_dword v3, v1, s[12:15], s3 offen""")
    if 'wstouch' in OPT:
        a(f"""s_load_dwordx2 s[16:17], s[0:1], 88
s_mov_b32 s18, {HIDF + 2048*3072}
s_mov_b32 s19, 0x00020000
s_add_u32 s3, s3, {X1}
s_waitcnt lgkmcnt(0)""")
        for k in range(7):
            a(f"buffer_load_dword v{4+k}, v1, s[16:19], s3 offen\ns_add_u32 s3, s3, {60*32768}")
    a("K2_end:\ns_endpgm")
    return ('k2_kernel', (381,1,1), (256,1,1), 16384, kd_block('k2_kernel', 152, 96))

def k3(a):
    head(a, 'k3_kernel')
    ZB = 12288; ZR = 528; ZC = 8*ZR; PB = ZB + 5*ZC
    a("""
s_cmp_ge_u32 s2, 256
s_cbranch_scc1 K3_end
@stamp
s_load_dwordx2 s[4:5], s[0:1], 0
s_load_dwordx2 s[6:7], s[0:1], 88
""")
    row_ids(a)
    a("v_and_b32 v5, 15, v0\nv_bfe_u32 v6, v0, 4, 2")
    col_slots(a, 22, 5, 6, 8, 22)
    a(f"""
s_lshl_b32 s23, s3, 8
s_lshl_b32 s21, s20, 5
s_add_u32 s23, s23, s21
s_add_u32 s23, s23, {YF}
s_lshl_b32 s21, s20, 3
s_add_u32 s21, s21, s22
s_lshl_b32 s24, s3, 6
s_add_u32 s24, s24, s21
s_lshl_b32 s21, s21, 5
s_add_u32 s21, s21, s3
s_mul_i32 s21, s21, 1280
s_mul_i32 s24, s24, 1280
v_lshlrev_b32 v4, 4, v1
s_lshl_b32 s25, s22, 10
s_add_u32 m0, s25, {PB}
s_add_u32 s25, s25, 5120
s_waitcnt lgkmcnt(0)
""")
    srd(a, 8, 4, 2048*1280)
    srd(a, 12, 6, WS_SIZE)
    a(f"""buffer_load_dwordx4 {Q(28)}, v11, s[12:15], s23 offen
buffer_load_dwordx4 {Q(32)}, v13, s[12:15], s23 offen
buffer_load_dwordx4 v4, s[12:15], s25 offen lds""")
    for k in range(3):
        a(f"buffer_load_dwordx2 {P(16+2*k)}, v2, s[8:11], s21 offen offset:{512*k}")
    w5_consts(a, 88, 22, 1.0)
    a(f"""
s_lshl_b32 s27, s22, 4
v_add_u32 v22, s27, v5
v_cvt_f32_u32 v22, v22
v_mul_f32 v22, {fh(1/128)}, v22
v_and_b32 v23, 1, v6
v_cvt_f32_u32 v23, v23
v_mul_f32 v23, 4.0, v23
v_lshrrev_b32 v24, 1, v6
v_cvt_f32_u32 v24, v24
v_mul_f32 v24, {fh(0.25)}, v24
v_fma_f32 v23, v23, v22, v24
v_mul_f32 v24, {fh(5.0)}, v22
v_mul_f32 v27, {fh(64.0)}, v22
v_cmp_eq_u32 vcc, 2, v6
v_cndmask_b32 v27, v23, v27, vcc
""")
    for t in range(4):
        for jj in range(4):
            a(f"""v_cos_f32 v25, v{27 if (t, jj) == (0, 0) else 23}
v_add_f32 v23, v23, v22
v_cos_f32 v26, v23
v_add_f32 v23, v23, v{24 if jj & 1 else 22}
v_cvt_pk_bf16_f32 v{96+4*t+jj}, v25, v26""")
    a(f"""
v_lshlrev_b32 v14, 5, v5
v_lshl_add_u32 v14, v6, 3, v14
s_lshl_b32 s27, s22, 9
v_add_u32 v14, s27, v14
v_and_b32 v15, 4096, v9
v_add_u32 v15, v15, v14
v_xor_b32 v112, 4096, v15
v_lshlrev_b32 v113, 3, v1
v_and_b32 v22, 7, v5
v_mul_u32_u24 v22, {ZR}, v22
v_lshl_add_u32 v22, v6, 4, v22
s_lshl_b32 s27, s22, 6
v_add_u32 v115, s27, v22
v_lshrrev_b32 v22, 3, v5
v_mul_u32_u24 v22, {2*ZC}, v22
v_add_u32 v114, v115, v22
v_lshlrev_b32 v4, 2, v3
s_mul_i32 s27, s22, {ZR}
v_add_u32 v7, s27, v4
v_and_b32 v22, 0x80000000, v9
v_xor_b32 v22, v22, v10
v_and_b32 v23, 0x80008000, v9
v_xor_b32 v24, v23, v12
""")
    r5_sconsts(a)
    a(f"""@stamp
s_waitcnt vmcnt(4)
@stamp
v_cndmask_b32 v32, v32, v34, s[42:43]
v_cndmask_b32 v33, v33, v35, s[42:43]
v_xor_b32 v26, v30, v24
v_xor_b32 v27, v31, v24
v_xor_b32 v30, v30, v12
v_xor_b32 v31, v31, v12
ds_write_b64 v14, {P(32)} offset:8192""")
    for hh in range(2):
        a(f"""v_lshlrev_b32 v{36+2*hh}, 16, v{28+hh}
v_and_b32 v{37+2*hh}, 0xffff0000, v{28+hh}
v_lshlrev_b32 v{40+2*hh}, 16, v{30+hh}
v_and_b32 v{41+2*hh}, 0xffff0000, v{30+hh}
v_lshlrev_b32 v{44+2*hh}, 16, v{28+hh}
v_and_b32 v{45+2*hh}, 0xffff0000, v{28+hh}
v_lshlrev_b32 v{48+2*hh}, 16, v{26+hh}
v_and_b32 v{49+2*hh}, 0xffff0000, v{26+hh}""")
    for i in range(4):
        a(f"v_fmac_f32_dpp v{44+i}, v{36+i}, v22 row_ror:8 {DPP}")
        a(f"v_fmac_f32_dpp v{48+i}, v{40+i}, v10 row_ror:8 {DPP}")
    a(f"""v_cvt_pk_bf16_f32 v52, v44, v45
v_cvt_pk_bf16_f32 v53, v46, v47
v_cvt_pk_bf16_f32 v54, v48, v49
v_cvt_pk_bf16_f32 v55, v50, v51
ds_write_b64 v15, {P(52)}
ds_write_b64 v112, {P(54)}
s_waitcnt vmcnt(3) lgkmcnt(0)
s_barrier
@stamp""")
    for T in range(3):
        for t in range(4):
            for x in range(2):
                a(f"ds_read_b64_tr_b16 {P(28+16*T+4*t+2*x)}, v113 offset:{4096*T+1024*t+512*x}")
            if T == 1 and t == 3:
                a("s_waitcnt lgkmcnt(8)")
                for tt in range(4): a(f"v_mfma_f32_16x16x32_bf16 {Q(76)}, {Q(96+4*tt)}, {Q(28+4*tt)}, {'0' if tt == 0 else Q(76)}")
    for T in (1, 2):
        a(f"s_waitcnt lgkmcnt({8 if T == 1 else 0})")
        for t in range(4): a(f"v_mfma_f32_16x16x32_bf16 {Q(76+4*T)}, {Q(96+4*t)}, {Q(28+16*T+4*t)}, {'0' if t == 0 else Q(76+4*T)}")
    for j in range(5):
        a(f"ds_read_b64 {P(116+2*j)}, v4 offset:{PB+512*j}")
    a(f"""ds_write_b128 v114, {Q(76)} offset:{ZB+ZC}
ds_write_b128 v114, {Q(80)} offset:{ZB+2*ZC}
ds_write_b128 v115, {Q(84)} offset:{ZB}
s_waitcnt vmcnt(0)""")
    unpack_x(a, 16, 28)
    a("@stamp\ns_waitcnt lgkmcnt(0)\ns_barrier\n@stamp")
    for c in range(5): a(f"ds_read_b64 {P(40+2*c)}, v7 offset:{ZB+ZC*c}")
    for j in range(5):
        a(f"ds_read_b64 {P(136+2*j)}, v4 offset:{PB+5120+512*j}\nds_read_b64 {P(126+2*j)}, v4 offset:{PB+2560+512*j}")
    a("s_waitcnt lgkmcnt(10)")
    for k in range(2):
        r, im = 42+4*k, 44+4*k; c, s = 88+4*k, 90+4*k; R, I = 50+4*k, 52+4*k
        a(f"""v_pk_mul_f32 {P(R)}, {P(r)}, {P(c)}
v_pk_mul_f32 {P(I)}, {P(r)}, {P(s)}
v_pk_fma_f32 {P(R)}, {P(im)}, {P(s)}, {P(R)} neg_lo:[1,0,0] neg_hi:[1,0,0]
v_pk_fma_f32 {P(I)}, {P(im)}, {P(c)}, {P(I)}""")
    z0,z1r,z1i,z2r,z2i = 40,50,52,54,56
    A,B,Cc,Dd,E = 58,60,62,64,66
    sl = {(3*j) % 5: j for j in range(5)}
    X = lambda d2: P(28+2*sl[d2]); G = lambda d2: P(116+2*sl[d2])
    a(f"""v_pk_add_f32 {P(E)}, {P(z0)}, {P(z1r)}
v_pk_fma_f32 {P(A)}, s[30:31], {P(z1r)}, {P(z0)}
v_pk_fma_f32 {P(B)}, s[32:33], {P(z1r)}, {P(z0)}
v_pk_mul_f32 {P(Cc)}, s[34:35], {P(z1i)}
v_pk_mul_f32 {P(Dd)}, s[36:37], {P(z1i)}
v_pk_add_f32 {P(E)}, {P(E)}, {P(z2r)}
v_pk_fma_f32 {P(A)}, s[32:33], {P(z2r)}, {P(A)}
v_pk_fma_f32 {P(B)}, s[30:31], {P(z2r)}, {P(B)}
v_pk_fma_f32 {P(Cc)}, s[36:37], {P(z2i)}, {P(Cc)}
v_pk_fma_f32 {P(Dd)}, s[34:35], {P(z2i)}, {P(Dd)} neg_lo:[0,1,0] neg_hi:[0,1,0]
v_pk_fma_f32 {X(0)}, {G(0)}, {P(E)}, {X(0)}
v_pk_add_f32 {P(68)}, {P(A)}, {P(Cc)} neg_lo:[0,1] neg_hi:[0,1]
v_pk_add_f32 {P(70)}, {P(A)}, {P(Cc)}
v_pk_add_f32 {P(72)}, {P(B)}, {P(Dd)} neg_lo:[0,1] neg_hi:[0,1]
v_pk_add_f32 {P(74)}, {P(B)}, {P(Dd)}
v_pk_fma_f32 {X(1)}, {G(1)}, {P(68)}, {X(1)}
v_pk_fma_f32 {X(4)}, {G(4)}, {P(70)}, {X(4)}
v_pk_fma_f32 {X(2)}, {G(2)}, {P(72)}, {X(2)}
v_pk_fma_f32 {X(3)}, {G(3)}, {P(74)}, {X(3)}
s_add_u32 s25, s24, {X1}
s_add_u32 s26, s24, {H2F}""")
    for j in range(5): a(f"v_cvt_pk_bf16_f32 v{16+j}, v{28+2*j}, v{29+2*j}")
    a(f"""v_permlane32_swap_b32 v16, v17
v_permlane32_swap_b32 v18, v19
buffer_store_dwordx2 {P(16)}, v2, s[12:15], s25 offen
buffer_store_dwordx2 {P(18)}, v2, s[12:15], s25 offen offset:512""")
    ln_rows(a, 28, 22)
    a(f"""v_bfe_u32 v24, v0, 5, 1
v_mul_u32_u24 v24, {H2F - X1 - 256}, v24
v_add_u32 v24, v24, v2
s_waitcnt lgkmcnt(0)""")
    for j in range(5): a(f"v_pk_mul_f32 {P(136+2*j)}, {P(136+2*j)}, {P(22)} op_sel_hi:[1,0]")
    for j in range(5): a(f"v_pk_fma_f32 {P(28+2*j)}, {P(28+2*j)}, {P(136+2*j)}, {P(126+2*j)}")
    for j in range(4): a(f"v_cvt_pk_bf16_f32 v{40+j}, v{28+2*j}, v{29+2*j}")
    a(f"""v_cvt_pk_bf16_f32 v21, v36, v37
v_permlane32_swap_b32 v40, v41
v_permlane32_swap_b32 v42, v43
v_permlane32_swap_b32 v20, v21
buffer_store_dwordx2 {P(40)}, v2, s[12:15], s26 offen
buffer_store_dwordx2 {P(42)}, v2, s[12:15], s26 offen offset:512
buffer_store_dwordx2 {P(20)}, v24, s[12:15], s25 offen offset:1024
@stamp
@dump 12
K3_end:
s_endpgm""")
    return ('k3_kernel', (256,1,1), (512,1,1), PB+8192, kd_block('k3_kernel', 148, 96))

def ramp(NST, D, first=3):
    nxt = first; sched = {}
    for s in range(NST):
        lim = min(NST, s + D + 1)
        take = []
        while nxt < lim and len(take) < 2:
            take.append(nxt); nxt += 1
        sched[s] = take
    return list(range(first)), sched
def k4(a):
    head(a, 'k4_kernel')
    NST = 20; WS_ = 12288; HB = 98304; HS = 16384
    a(f"""
s_cmp_ge_u32 s2, 256
s_cbranch_scc1 K4_end
@stamp
s_load_dwordx4 s[4:7], s[0:1], 32
s_load_dwordx2 s[20:21], s[0:1], 88
s_and_b32 s3, s2, 7
s_lshr_b32 s22, s2, 3
s_and_b32 s23, s3, 1
s_lshl_b32 s23, s23, 3
s_and_b32 s24, s22, 7
s_add_u32 s23, s23, s24
s_lshr_b32 s24, s3, 1
s_lshl_b32 s24, s24, 2
s_lshr_b32 s25, s22, 3
s_add_u32 s24, s24, s25
v_lshrrev_b32 v1, 6, v0
v_and_b32 v2, 63, v0
v_readfirstlane_b32 s25, v1
s_cmp_lt_u32 s25, 8
s_cbranch_scc1 K4_cons
s_sub_u32 s25, s25, 8
""")
    for q in range(3):
        a(f"""v_add_u32 v10, {64*q}, v2
v_mul_u32_u24 v11, 43691, v10
v_lshrrev_b32 v11, 19, v11
v_mul_u32_u24 v12, 12, v11
v_sub_u32 v12, v10, v12
v_lshrrev_b32 v13, 2, v11
v_and_b32 v13, 2, v13
v_xor_b32 v12, v12, v13
v_mul_u32_u24 v11, 3072, v11
v_lshl_add_u32 v11, v12, 4, v11
v_subrev_u32 v{3+q}, {1024*q}, v11""")
    for q in range(4):
        a(f"""v_lshrrev_b32 v10, 4, v2
v_add_u32 v10, {4*q}, v10
v_xor_b32 v10, v10, v2
v_and_b32 v10, 7, v10
v_lshrrev_b32 v11, 3, v2
v_mul_u32_u24 v11, 1280, v11
v_lshl_add_u32 v11, v10, 4, v11
v_add_u32 v{6+q}, {q*(10240-1024)}, v11""")
    a(f"""
s_and_b32 s26, s25, 1
s_mul_i32 s27, s26, {16*3072}
s_mul_i32 s28, s24, 192
s_add_u32 s27, s27, s28
s_mul_i32 s28, s25, 3072
s_lshl_b32 s29, s23, 2
s_add_u32 s29, s29, s25
s_mul_i32 s29, s29, 40960
s_add_u32 s29, s29, {H2F}
s_lshl_b32 s30, s25, 12
s_waitcnt lgkmcnt(0)
s_cmp_lt_u32 s25, 2
s_cselect_b32 s8, s4, s6
s_cselect_b32 s9, s5, s7
s_mov_b32 s10, {640*3072}
s_mov_b32 s11, 0x00020000
""")
    srd(a, 12, 20, WS_SIZE)
    cnt = []
    def issue(s):
        n = 0
        if s % 2 == 0:
            a(f"s_add_u32 m0, s30, {HB + ((s//2) % 4)*HS}")
            for q in range(4):
                a(f"buffer_load_dwordx4 v{6+q}, s[12:15], s29 offen offset:{1024*q} lds")
            a("s_add_u32 s29, s29, 128"); n += 4
        a(f"s_add_u32 m0, s28, {(s % 8)*WS_}")
        for q in range(3):
            a(f"buffer_load_dwordx4 v{3+q}, s[8:11], s27 offen offset:{1024*q} lds")
        a(f"s_add_u32 s27, s27, {32*3072}"); n += 3
        cnt.append(n)
    init, sched = ramp(NST, 6)
    for s in init: issue(s)
    for s in range(NST):
        a(f"s_waitcnt vmcnt({sum(cnt[s+1:])})\ns_barrier")
        for g in sched[s]: issue(g)
    a("@stamp\n@dump 12\ns_endpgm")
    a.st.n = 1
    a(f"""K4_cons:
s_lshr_b32 s26, s25, 2
s_and_b32 s27, s25, 3
v_lshrrev_b32 v3, 4, v2
v_bfe_u32 v4, v2, 2, 2
v_lshl_add_u32 v4, v3, 3, v4
v_mul_u32_u24 v4, 192, v4
v_and_b32 v5, 3, v2
v_lshl_add_u32 v4, v5, 3, v4
v_and_b32 v5, 1, v3
v_lshlrev_b32 v5, 5, v5
s_mul_i32 s28, s26, 96
v_add_u32 v4, s28, v4
s_cmp_eq_u32 s26, 0
s_cselect_b32 s29, 1, -1
v_mul_lo_u32 v5, v5, s29
v_add_u32 v6, v4, v5
v_sub_u32 v7, v4, v5
v_add_u32 v8, {4*WS_}, v6
v_add_u32 v9, {4*WS_}, v7
v_and_b32 v10, 15, v2
v_lshrrev_b32 v11, 1, v10
v_xor_b32 v11, v11, v3
v_lshlrev_b32 v11, 4, v11
v_lshl_add_u32 v11, v10, 7, v11
s_lshl_b32 s28, s27, 12
s_add_u32 s28, s28, {HB}
v_add_u32 v11, s28, v11
v_xor_b32 v12, 64, v11
s_waitcnt lgkmcnt(0)
""")
    srd(a, 12, 20, WS_SIZE)
    ACC = lambda mat, i, nt: 16 + 4*(6*nt + 3*mat + i)
    FA = lambda buf, mat, i: 64 + 32*buf + 4*(3*mat+i)
    FB = lambda buf, nt: 88 + 32*buf + 4*nt
    def reads(s):
        L = []; sl = s % 8
        for nt in range(2):
            f = FB(s & 1, nt)
            L.append(f"ds_read_b128 v[{f}:{f+3}], v{11 + (s & 1)} offset:{((s//2) % 4)*HS + 2048*nt}")
        for mat in range(2):
            for i in range(3):
                for x in range(2):
                    f = FA(s & 1, mat, i) + 2*x
                    L.append(f"ds_read_b64_tr_b16 v[{f}:{f+1}], v{6 + (i & 1) + 2*(sl//4)} offset:{(sl % 4)*WS_ + mat*6144 + 4*x*192 + 32*i}")
        return L
    a("s_barrier\n@stamp")
    for l in reads(0): a(l)
    for s in range(NST):
        a("s_waitcnt lgkmcnt(0)")
        R = []
        if s+1 < NST:
            a("s_barrier"); R = reads(s+1)
        k = 0
        for mat in range(2):
            for i in range(3):
                for nt in range(2):
                    c = ACC(mat, i, nt); fa = FA(s & 1, mat, i); fb = FB(s & 1, nt)
                    if 'nomfma' not in OPT: a(f"v_mfma_f32_16x16x32_bf16 v[{c}:{c+3}], v[{fa}:{fa+3}], v[{fb}:{fb+3}], {'0' if s == 0 else f'v[{c}:{c+3}]'}")
                    if 'nords' not in OPT:
                        for l in R[2*k:2*k+2]: a(l)
                    k += 1
    a("@stamp")
    kk = 2*0.7978845608028654*math.log2(math.e)
    a(f"""s_mov_b32 s30, {fh(-kk)}
s_mov_b32 s31, {fh(-kk*0.044715)}
v_mov_b32 v10, s30
s_lshl_b32 s29, s23, 3
s_lshl_b32 s28, s27, 1
s_add_u32 s29, s29, s28
s_mul_i32 s29, s29, 49152
s_mul_i32 s28, s24, 3072
s_add_u32 s29, s29, s28
s_mul_i32 s28, s26, 1536
s_add_u32 s29, s29, s28
s_add_u32 s29, s29, {HIDF}
s_mov_b32 s32, s30
s_mov_b32 s33, s30
s_mov_b32 s30, s31
v_mov_b32 v11, v10
v_bfe_u32 v7, v2, 4, 1
v_mul_u32_u24 v7, 49152, v7
v_lshrrev_b32 v8, 5, v2
v_lshl_add_u32 v7, v8, 8, v7
v_and_b32 v8, 15, v2
v_lshl_add_u32 v7, v8, 4, v7""")
    for nt in range(2):
        G = ACC(0, 0, nt); U = ACC(1, 0, nt); T = 64 + 16*nt
        for i in range(0, 12, 2): a(f"v_pk_mul_f32 {P(T+i)}, {P(G+i)}, {P(G+i)}")
        for i in range(0, 12, 2): a(f"v_pk_fma_f32 {P(T+i)}, {P(T+i)}, s[30:31], {P(10)}")
        for i in range(0, 12, 2): a(f"v_pk_mul_f32 {P(T+i)}, {P(T+i)}, {P(G+i)}")
        for i in range(0, 12, 2): a(f"v_exp_f32 v{T+i}, v{T+i}\nv_exp_f32 v{T+i+1}, v{T+i+1}\nv_pk_mul_f32 {P(G+i)}, {P(G+i)}, {P(U+i)}")
        for i in range(0, 12, 2): a(f"v_pk_add_f32 {P(T+i)}, {P(T+i)}, 1.0 op_sel_hi:[1,0]")
        for i in range(12): a(f"v_rcp_f32 v{T+i}, v{T+i}")
        for i in range(0, 12, 2): a(f"v_pk_mul_f32 {P(G+i)}, {P(G+i)}, {P(T+i)}")
        for i in range(3):
            O = 96 + 4*i + 2*nt
            a(f"""v_cvt_pk_bf16_f32 v{O}, v{G+4*i}, v{G+4*i+1}
v_cvt_pk_bf16_f32 v{O+1}, v{G+4*i+2}, v{G+4*i+3}""")
    for i in range(3):
        O = 96 + 4*i
        a(f"""v_permlane16_swap_b32 v{O}, v{O+2}
v_permlane16_swap_b32 v{O+1}, v{O+3}
buffer_store_dwordx4 {Q(O)}, v7, s[12:15], s29 offen offset:{512*i}""")
    a("@stamp\n@dump 12\nK4_end:\ns_endpgm")
    return ('k4_kernel', (256,1,1), (768,1,1), 163840, kd_block('k4_kernel', 128, 96))

def k5(a):
    head(a, 'k5_kernel')
    NST = 24; SLOT = 18432; NS = 8
    a(f"""
s_cmp_ge_u32 s2, 256
s_cbranch_scc1 K5_end
@stamp
s_load_dwordx2 s[4:5], s[0:1], 48
s_load_dwordx2 s[6:7], s[0:1], 72
s_load_dwordx2 s[20:21], s[0:1], 88
s_and_b32 s3, s2, 7
s_lshr_b32 s22, s2, 3
s_and_b32 s23, s3, 3
s_lshl_b32 s23, s23, 3
s_and_b32 s24, s22, 7
s_add_u32 s23, s23, s24
s_lshr_b32 s24, s3, 2
s_lshl_b32 s24, s24, 2
s_lshr_b32 s25, s22, 3
s_add_u32 s24, s24, s25
v_lshrrev_b32 v1, 6, v0
v_and_b32 v2, 63, v0
v_readfirstlane_b32 s25, v1
s_cmp_lt_u32 s25, 4
s_cbranch_scc1 K5_cons
s_cmp_ge_u32 s25, 6
s_cbranch_scc1 K5_prodh
s_sub_u32 s25, s25, 4
""")
    init, sched = ramp(NST, 7)
    a(f"""
s_mul_i32 s28, s25, 5120
s_mul_i32 s27, s24, {1536*160}
s_add_u32 s27, s27, s28
s_add_u32 s27, s27, {WDT}
v_lshlrev_b32 v3, 4, v2
v_add_u32 v4, 4096, v3
s_waitcnt lgkmcnt(0)
""")
    srd(a, 8, 20, WS_SIZE)
    srd(a, 12, 20, WS_SIZE)
    def issue_w(s):
        a(f"s_add_u32 m0, s28, {(s % NS)*SLOT}")
        for q in range(4):
            a(f"buffer_load_dwordx4 v3, s[8:11], s27 offen offset:{1024*q} lds")
        a(f"s_add_u32 m0, s28, {(s % NS)*SLOT + 4096}")
        a(f"buffer_load_dwordx4 v4, s[8:11], s27 offen lds")
        a(f"s_add_u32 s27, s27, 10240")
    n = 0
    for s in init: issue_w(s); n += 1
    for s in range(NST):
        a(f"s_waitcnt vmcnt({5*(n-s-1)})\ns_barrier")
        for g in sched[s]: issue_w(g); n += 1
    a("@stamp\n@dump 12\ns_endpgm")
    a.st.n = 1
    a(f"""K5_prodh:
s_sub_u32 s25, s25, 6
s_lshl_b32 s29, s23, 2
s_lshl_b32 s28, s25, 1
s_add_u32 s29, s29, s28
s_mul_i32 s29, s29, 49152
s_add_u32 s29, s29, {HIDF}
s_lshl_b32 s28, s25, 12
s_add_u32 s28, s28, 10240
v_lshlrev_b32 v3, 4, v2
v_add_u32 v4, {49152-2048}, v3
s_waitcnt lgkmcnt(0)
""")
    srd(a, 12, 20, WS_SIZE)
    def issue_h(s):
        a(f"s_add_u32 m0, s28, {(s % NS)*SLOT}")
        for q in range(4):
            a(f"buffer_load_dwordx4 v{3+q//2}, s[12:15], s29 offen offset:{1024*q} lds")
        a("s_add_u32 s29, s29, 2048")
    n = 0
    for s in init: issue_h(s); n += 1
    for s in range(NST):
        a(f"s_waitcnt vmcnt({4*(n-s-1)})\ns_barrier")
        for g in sched[s]: issue_h(g); n += 1
    a("@stamp\n@dump 12\ns_endpgm")
    a.st.n = 1
    a(f"""K5_cons:
s_lshl_b32 s30, s23, 2
s_add_u32 s30, s30, s25
s_lshl_b32 s30, s30, 4
v_lshrrev_b32 v3, 2, v2
v_mul_u32_u24 v3, 160, v3
v_and_b32 v4, 3, v2
v_lshl_add_u32 v3, v4, 3, v3
v_add_u32 v4, {3*SLOT}, v3
v_add_u32 v5, {6*SLOT}, v3
s_lshl_b32 s28, s25, 11
s_add_u32 s28, s28, 10240
v_lshlrev_b32 v6, 4, v2
v_add_u32 v6, s28, v6
v_add_u32 v7, {3*SLOT}, v6
v_add_u32 v8, {6*SLOT}, v6
v_and_b32 v12, 15, v2
v_lshrrev_b32 v13, 4, v2
v_mul_u32_u24 v14, 1280, v12
v_lshl_add_u32 v14, v13, 3, v14
s_mul_i32 s26, s30, 1280
s_mul_i32 s27, s24, 160
s_add_u32 s26, s26, s27
s_add_u32 s26, s26, {X1}
v_lshlrev_b32 v15, 4, v13
s_lshl_b32 s28, s27, 1
s_add_u32 s28, s28, 12800
s_waitcnt lgkmcnt(0)
""")
    srd(a, 12, 20, WS_SIZE)
    srd(a, 16, 6, 2048*1280)
    ACC = lambda mt: 16 + 4*mt
    FA = lambda buf, u, mt: 36 + 48*buf + 24*u + 4*mt
    FB = lambda buf, u: 36 + 48*buf + 24*u + 20
    def reads(s):
        L = []; sl = s % NS
        for u in range(2):
            f = FB(s & 1, u)
            L.append(f"ds_read_b128 v[{f}:{f+3}], v{6+sl//3} offset:{(sl % 3)*SLOT + 1024*u}")
            for mt in range(5):
                for x in range(2):
                    f = FA(s & 1, u, mt) + 2*x
                    L.append(f"ds_read_b64_tr_b16 v[{f}:{f+1}], v{3+sl//3} offset:{(sl % 3)*SLOT + u*5120 + x*2560 + 32*mt}")
        return L
    a("s_barrier\n@stamp")
    for l in reads(0): a(l)
    for s in range(NST):
        a("s_waitcnt lgkmcnt(0)")
        R = []
        if s+1 < NST:
            a("s_barrier"); R = reads(s+1)
        if s == NST-6:
            for mt in range(5):
                a(f"buffer_load_dwordx2 v[{132+2*mt}:{133+2*mt}], v14, s[12:15], s26 offen offset:{32*mt}")
                a(f"buffer_load_dwordx4 v[{144+4*mt}:{147+4*mt}], v15, s[12:15], s28 offen offset:{64*mt}")
        k = 0
        for u in range(2):
            for mt in range(5):
                c = ACC(mt); fa = FA(s & 1, u, mt); fb = FB(s & 1, u)
                if 'nomfma' not in OPT: a(f"v_mfma_f32_16x16x32_bf16 v[{c}:{c+3}], v[{fa}:{fa+3}], v[{fb}:{fb+3}], {'0' if (s, u) == (0, 0) else f'v[{c}:{c+3}]'}")
                if 'nords' not in OPT:
                    for l in R[3*k:3*k+3]: a(l)
                k += 1
    a(f"""@stamp
s_and_b32 s26, s30, 63
s_lshl_b32 s26, s26, 5
s_lshr_b32 s29, s30, 6
s_add_u32 s26, s26, s29
s_mul_i32 s26, s26, 1280
s_add_u32 s26, s26, s27
v_mul_u32_u24 v14, 40960, v12
v_lshl_add_u32 v14, v13, 3, v14
s_waitcnt vmcnt(0)""")
    for mt in range(5):
        c = ACC(mt); x = 132+2*mt; g = 144+4*mt
        a(f"""v_lshlrev_b32 v36, 16, v{x}
v_and_b32 v37, 0xffff0000, v{x}
v_lshlrev_b32 v38, 16, v{x+1}
v_and_b32 v39, 0xffff0000, v{x+1}
v_fmac_f32 v36, v{c}, v{g}
v_fmac_f32 v37, v{c+1}, v{g+1}
v_fmac_f32 v38, v{c+2}, v{g+2}
v_fmac_f32 v39, v{c+3}, v{g+3}
v_cvt_pk_bf16_f32 v{x}, v36, v37
v_cvt_pk_bf16_f32 v{x+1}, v38, v39
buffer_store_dwordx2 v[{x}:{x+1}], v14, s[16:19], s26 offen offset:{32*mt}""")
    a("@stamp\n@dump 12\nK5_end:\ns_endpgm")
    return ('k5_kernel', (256,1,1), (512,1,1), NS*SLOT, kd_block('k5_kernel', 164, 96))

def poll(a, name, vaddr, vtmp, soff, target=1):
    a(f"""s_mov_b32 s46, 0x40000
{name}:
buffer_load_dword v{vtmp}, v{vaddr}, s[12:15], {soff} offen sc1
s_waitcnt vmcnt(0)
v_cmp_ne_u32 vcc, {target}, v{vtmp}
s_nop 1
s_cmp_eq_u64 vcc, 0
s_cbranch_scc1 {name}_ok
s_sleep {SLP}
s_sub_u32 s46, s46, 1
s_cmp_lg_u32 s46, 0
s_cbranch_scc1 {name}
{name}_ok:""")
def kf(a):
    head(a, 'k3_kernel')
    R2 = 98304
    TB = R2; ZB = R2 + 12288; ZR = 528; ZC = 8*ZR; PB = ZB + 5*ZC
    NST = 20; WS_ = 12288; HB = R2; HS = 16384
    NS2 = 24; DW = 10240; NWD = 16
    ORDER = [5, 6, 13,  7, 8, 14, 15,  0, 1, 9, 10,  2, 3, 4, 11, 12]
    EARLY = {7: 3, 8: 4, 9: 4}
    WPOS = lambda s: ORDER[s % NWD]
    CB = [3, 7, 15, 19]
    NEXTCB = {3: 7, 7: 15, 15: 19, 19: 23}
    SC = 'sc1' if 'nosc' not in OPT else ''
    SST = '' if 'stplain' in OPT else 'sc1'
    FST = '' if 'flplain' in OPT else 'sc1'
    FEX = '0xffff' if 'fl64' in OPT else '1'
    WSC = 'sc1' if 'wsc1' in OPT else ('nt' if 'wnt' in OPT else '')
    a(f"""
s_cmp_ge_u32 s2, 256
s_cbranch_scc1 KF_end
@stamp
s_load_dwordx2 s[4:5], s[0:1], 0
s_load_dwordx2 s[6:7], s[0:1], 88
s_load_dwordx4 s[56:59], s[0:1], 32
s_load_dwordx2 s[60:61], s[0:1], 72
s_and_b32 s50, s2, 7
s_lshr_b32 s51, s2, 3
s_lshl_b32 s50, s50, 1
s_lshr_b32 s21, s51, 4
s_add_u32 s50, s50, s21
s_and_b32 s51, s51, 15
v_lshrrev_b32 v4, 6, v0
v_and_b32 v1, 63, v0
v_readfirstlane_b32 s22, v4
s_cmp_ge_u32 s22, 8
s_cbranch_scc1 KF_prod
s_lshl_b32 s3, s50, 1
s_lshr_b32 s21, s51, 3
s_add_u32 s3, s3, s21
s_and_b32 s20, s51, 7
v_and_b32 v3, 31, v0
v_lshlrev_b32 v2, 3, v3
v_bfe_u32 v4, v0, 5, 1
v_lshl_add_u32 v2, v4, 8, v2
v_lshlrev_b32 v3, 2, v3
v_lshl_add_u32 v3, v4, 1, v3
v_and_b32 v5, 15, v0
v_bfe_u32 v6, v0, 4, 2""")
    col_slots(a, 22, 5, 6, 8, 22)
    a(f"""
s_lshl_b32 s23, s3, 8
s_lshl_b32 s21, s20, 5
s_add_u32 s23, s23, s21
s_add_u32 s23, s23, {YF}
s_lshl_b32 s21, s20, 3
s_add_u32 s21, s21, s22
s_lshl_b32 s24, s3, 6
s_add_u32 s24, s24, s21
s_lshl_b32 s47, s24, 2
s_lshl_b32 s21, s21, 5
s_add_u32 s21, s21, s3
s_mul_i32 s21, s21, 1280
s_mul_i32 s24, s24, 1280
v_lshlrev_b32 v4, 4, v1
s_lshl_b32 s25, s22, 10
s_add_u32 m0, s25, {PB}
s_add_u32 s25, s25, 5120
s_waitcnt lgkmcnt(0)
""")
    srd(a, 8, 4, 2048*1280)
    srd(a, 12, 6, WS_SIZE)
    a(f"""buffer_load_dwordx4 {Q(28)}, v11, s[12:15], s23 offen
buffer_load_dwordx4 {Q(32)}, v13, s[12:15], s23 offen
buffer_load_dwordx4 v4, s[12:15], s25 offen lds""")
    for k in range(3):
        a(f"buffer_load_dwordx2 {P(16+2*k)}, v2, s[8:11], s21 offen offset:{512*k}")
    w5_consts(a, 88, 22, 1.0)
    a(f"""
s_lshl_b32 s27, s22, 4
v_add_u32 v22, s27, v5
v_cvt_f32_u32 v22, v22
v_mul_f32 v22, {fh(1/128)}, v22
v_and_b32 v23, 1, v6
v_cvt_f32_u32 v23, v23
v_mul_f32 v23, 4.0, v23
v_lshrrev_b32 v24, 1, v6
v_cvt_f32_u32 v24, v24
v_mul_f32 v24, {fh(0.25)}, v24
v_fma_f32 v23, v23, v22, v24
v_mul_f32 v24, {fh(5.0)}, v22
v_mul_f32 v27, {fh(64.0)}, v22
v_cmp_eq_u32 vcc, 2, v6
v_cndmask_b32 v27, v23, v27, vcc
""")
    for t in range(4):
        for jj in range(4):
            a(f"""v_cos_f32 v25, v{27 if (t, jj) == (0, 0) else 23}
v_add_f32 v23, v23, v22
v_cos_f32 v26, v23
v_add_f32 v23, v23, v{24 if jj & 1 else 22}
v_cvt_pk_bf16_f32 v{96+4*t+jj}, v25, v26""")
    a(f"""
v_lshlrev_b32 v14, 5, v5
v_lshl_add_u32 v14, v6, 3, v14
s_lshl_b32 s27, s22, 9
s_add_u32 s27, s27, {TB}
v_add_u32 v14, s27, v14
v_and_b32 v15, 4096, v9
v_add_u32 v15, v15, v14
v_xor_b32 v112, 4096, v15
v_lshlrev_b32 v113, 3, v1
v_add_u32 v113, {TB}, v113
v_and_b32 v22, 7, v5
v_mul_u32_u24 v22, {ZR}, v22
v_lshl_add_u32 v22, v6, 4, v22
s_lshl_b32 s27, s22, 6
s_add_u32 s27, s27, {ZB}
v_add_u32 v115, s27, v22
v_lshrrev_b32 v22, 3, v5
v_mul_u32_u24 v22, {2*ZC}, v22
v_add_u32 v114, v115, v22
v_lshlrev_b32 v4, 2, v3
s_mul_i32 s27, s22, {ZR}
s_add_u32 s27, s27, {ZB}
v_add_u32 v7, s27, v4
v_add_u32 v4, {PB}, v4
v_and_b32 v22, 0x80000000, v9
v_xor_b32 v22, v22, v10
v_and_b32 v23, 0x80008000, v9
v_xor_b32 v24, v23, v12
""")
    r5_sconsts(a)
    a(f"""s_waitcnt vmcnt(4)
s_barrier
@stamp
v_cndmask_b32 v32, v32, v34, s[42:43]
v_cndmask_b32 v33, v33, v35, s[42:43]
v_xor_b32 v26, v30, v24
v_xor_b32 v27, v31, v24
v_xor_b32 v30, v30, v12
v_xor_b32 v31, v31, v12
ds_write_b64 v14, {P(32)} offset:8192""")
    for hh in range(2):
        a(f"""v_lshlrev_b32 v{36+2*hh}, 16, v{28+hh}
v_and_b32 v{37+2*hh}, 0xffff0000, v{28+hh}
v_lshlrev_b32 v{40+2*hh}, 16, v{30+hh}
v_and_b32 v{41+2*hh}, 0xffff0000, v{30+hh}
v_lshlrev_b32 v{44+2*hh}, 16, v{28+hh}
v_and_b32 v{45+2*hh}, 0xffff0000, v{28+hh}
v_lshlrev_b32 v{48+2*hh}, 16, v{26+hh}
v_and_b32 v{49+2*hh}, 0xffff0000, v{26+hh}""")
    for i in range(4):
        a(f"v_fmac_f32_dpp v{44+i}, v{36+i}, v22 row_ror:8 {DPP}")
        a(f"v_fmac_f32_dpp v{48+i}, v{40+i}, v10 row_ror:8 {DPP}")
    a(f"""v_cvt_pk_bf16_f32 v52, v44, v45
v_cvt_pk_bf16_f32 v53, v46, v47
v_cvt_pk_bf16_f32 v54, v48, v49
v_cvt_pk_bf16_f32 v55, v50, v51
ds_write_b64 v15, {P(52)}
ds_write_b64 v112, {P(54)}
s_waitcnt vmcnt(3) lgkmcnt(0)
s_barrier
@stamp""")
    for T in range(3):
        for t in range(4):
            for x in range(2):
                a(f"ds_read_b64_tr_b16 {P(28+16*T+4*t+2*x)}, v113 offset:{4096*T+1024*t+512*x}")
            if T == 1 and t == 3:
                a("s_waitcnt lgkmcnt(8)")
                for tt in range(4): a(f"v_mfma_f32_16x16x32_bf16 {Q(76)}, {Q(96+4*tt)}, {Q(28+4*tt)}, {'0' if tt == 0 else Q(76)}")
    for T in (1, 2):
        a(f"s_waitcnt lgkmcnt({8 if T == 1 else 0})")
        for t in range(4): a(f"v_mfma_f32_16x16x32_bf16 {Q(76+4*T)}, {Q(96+4*t)}, {Q(28+16*T+4*t)}, {'0' if t == 0 else Q(76+4*T)}")
    for j in range(5):
        a(f"ds_read_b64 {P(116+2*j)}, v4 offset:{512*j}")
    a(f"""ds_write_b128 v114, {Q(76)} offset:{ZC}
ds_write_b128 v114, {Q(80)} offset:{2*ZC}
ds_write_b128 v115, {Q(84)}
s_waitcnt vmcnt(0)""")
    unpack_x(a, 16, 28)
    a("s_waitcnt lgkmcnt(0)\ns_barrier\n@stamp")
    for c in range(5): a(f"ds_read_b64 {P(40+2*c)}, v7 offset:{ZC*c}")
    for j in range(5):
        a(f"ds_read_b64 {P(136+2*j)}, v4 offset:{5120+512*j}\nds_read_b64 {P(126+2*j)}, v4 offset:{2560+512*j}")
    a("s_waitcnt lgkmcnt(10)")
    for k in range(2):
        r, im = 42+4*k, 44+4*k; c, s = 88+4*k, 90+4*k; R, I = 50+4*k, 52+4*k
        a(f"""v_pk_mul_f32 {P(R)}, {P(r)}, {P(c)}
v_pk_mul_f32 {P(I)}, {P(r)}, {P(s)}
v_pk_fma_f32 {P(R)}, {P(im)}, {P(s)}, {P(R)} neg_lo:[1,0,0] neg_hi:[1,0,0]
v_pk_fma_f32 {P(I)}, {P(im)}, {P(c)}, {P(I)}""")
    z0,z1r,z1i,z2r,z2i = 40,50,52,54,56
    A,B,Cc,Dd,E = 58,60,62,64,66
    sl = {(3*j) % 5: j for j in range(5)}
    X = lambda d2: P(28+2*sl[d2]); G = lambda d2: P(116+2*sl[d2])
    a(f"""v_pk_add_f32 {P(E)}, {P(z0)}, {P(z1r)}
v_pk_fma_f32 {P(A)}, s[30:31], {P(z1r)}, {P(z0)}
v_pk_fma_f32 {P(B)}, s[32:33], {P(z1r)}, {P(z0)}
v_pk_mul_f32 {P(Cc)}, s[34:35], {P(z1i)}
v_pk_mul_f32 {P(Dd)}, s[36:37], {P(z1i)}
v_pk_add_f32 {P(E)}, {P(E)}, {P(z2r)}
v_pk_fma_f32 {P(A)}, s[32:33], {P(z2r)}, {P(A)}
v_pk_fma_f32 {P(B)}, s[30:31], {P(z2r)}, {P(B)}
v_pk_fma_f32 {P(Cc)}, s[36:37], {P(z2i)}, {P(Cc)}
v_pk_fma_f32 {P(Dd)}, s[34:35], {P(z2i)}, {P(Dd)} neg_lo:[0,1,0] neg_hi:[0,1,0]
v_pk_fma_f32 {X(0)}, {G(0)}, {P(E)}, {X(0)}
v_pk_add_f32 {P(68)}, {P(A)}, {P(Cc)} neg_lo:[0,1] neg_hi:[0,1]
v_pk_add_f32 {P(70)}, {P(A)}, {P(Cc)}
v_pk_add_f32 {P(72)}, {P(B)}, {P(Dd)} neg_lo:[0,1] neg_hi:[0,1]
v_pk_add_f32 {P(74)}, {P(B)}, {P(Dd)}
v_pk_fma_f32 {X(1)}, {G(1)}, {P(68)}, {X(1)}
v_pk_fma_f32 {X(4)}, {G(4)}, {P(70)}, {X(4)}
v_pk_fma_f32 {X(2)}, {G(2)}, {P(72)}, {X(2)}
v_pk_fma_f32 {X(3)}, {G(3)}, {P(74)}, {X(3)}
s_add_u32 s25, s24, {X1}
s_add_u32 s26, s24, {H2F}""")
    for j in range(5): a(f"v_cvt_pk_bf16_f32 v{16+j}, v{28+2*j}, v{29+2*j}")
    a(f"""v_permlane32_swap_b32 v16, v17
v_permlane32_swap_b32 v18, v19
buffer_store_dwordx2 {P(16)}, v2, s[12:15], s25 offen {SST}
buffer_store_dwordx2 {P(18)}, v2, s[12:15], s25 offen offset:512 {SST}
s_waitcnt lgkmcnt(0)
s_barrier""")
    ln_rows(a, 28, 22)
    a(f"""v_bfe_u32 v24, v0, 5, 1
v_mul_u32_u24 v24, {H2F - X1 - 256}, v24
v_add_u32 v24, v24, v2""")
    for j in range(5): a(f"v_pk_mul_f32 {P(136+2*j)}, {P(136+2*j)}, {P(22)} op_sel_hi:[1,0]")
    for j in range(5): a(f"v_pk_fma_f32 {P(28+2*j)}, {P(28+2*j)}, {P(136+2*j)}, {P(126+2*j)}")
    for j in range(4): a(f"v_cvt_pk_bf16_f32 v{40+j}, v{28+2*j}, v{29+2*j}")
    a(f"""v_cvt_pk_bf16_f32 v21, v36, v37
v_permlane32_swap_b32 v40, v41
v_permlane32_swap_b32 v42, v43
v_permlane32_swap_b32 v20, v21
buffer_store_dwordx2 {P(40)}, v2, s[12:15], s26 offen {SST}
buffer_store_dwordx2 {P(42)}, v2, s[12:15], s26 offen offset:512 {SST}
buffer_store_dwordx2 {P(20)}, v24, s[12:15], s25 offen offset:1024 {SST}
@stamp""")
    a(f"""v_mov_b32 v2, v1
s_lshr_b32 s26, s22, 2
s_and_b32 s27, s22, 3
v_lshrrev_b32 v3, 4, v2
v_bfe_u32 v4, v2, 2, 2
v_lshl_add_u32 v4, v3, 3, v4
v_mul_u32_u24 v4, 192, v4
v_and_b32 v5, 3, v2
v_lshl_add_u32 v4, v5, 3, v4
v_and_b32 v5, 1, v3
v_lshlrev_b32 v5, 5, v5
s_mul_i32 s28, s26, 96
v_add_u32 v4, s28, v4
s_cmp_eq_u32 s26, 0
s_cselect_b32 s29, 1, -1
v_mul_lo_u32 v5, v5, s29
v_add_u32 v6, v4, v5
v_sub_u32 v7, v4, v5
v_add_u32 v8, {4*WS_}, v6
v_add_u32 v9, {4*WS_}, v7
v_and_b32 v10, 15, v2
v_lshrrev_b32 v11, 1, v10
v_xor_b32 v11, v11, v3
v_lshlrev_b32 v11, 4, v11
v_lshl_add_u32 v11, v10, 7, v11
s_lshl_b32 s28, s27, 12
s_add_u32 s28, s28, {HB}
v_add_u32 v11, s28, v11
v_xor_b32 v12, 64, v11
s_add_u32 s47, s47, {FLG}
v_mov_b32 v13, 1
v_mov_b32 v14, 0
s_waitcnt vmcnt(0)
@stamp""")
    a("s_barrier")
    ACC = lambda mat, i, nt: 16 + 4*(6*nt + 3*mat + i)
    FA = lambda buf, mat, i: 64 + 32*buf + 4*(3*mat+i)
    FB = lambda buf, nt: 88 + 32*buf + 4*nt
    def reads(s):
        L = []; sl = s % 8
        for nt in range(2):
            L.append(f"ds_read_b128 {Q(FB(s & 1, nt))}, v{11 + (s & 1)} offset:{((s//2) % 4)*HS + 2048*nt}")
        for mat in range(2):
            for i in range(3):
                for x in range(2):
                    L.append(f"ds_read_b64_tr_b16 {P(FA(s & 1, mat, i) + 2*x)}, v{6 + (i & 1) + 2*(sl//4)} offset:{(sl % 4)*WS_ + mat*6144 + 4*x*192 + 32*i}")
        return L
    a("s_barrier\n@stamp")
    if STAMPS and 'g1cyc' in OPT: a("s_memtime s[64:65]")
    for l in reads(0): a(l)
    for s in range(NST):
        a("s_waitcnt lgkmcnt(0)")
        if s & 1: a("s_barrier")
        R = reads(s+1) if s+1 < NST else []
        k = 0
        for mat in range(2):
            for i in range(3):
                for nt in range(2):
                    c = ACC(mat, i, nt)
                    if 'g1nomfma' not in OPT: a(f"v_mfma_f32_16x16x32_bf16 {Q(c)}, {Q(FA(s & 1, mat, i))}, {Q(FB(s & 1, nt))}, {'0' if s == 0 else Q(c)}")
                    if 'g1nords' not in OPT:
                        for l in (R[RPG*k:RPG*k+RPG] if RPG else (R[:3] if k == 0 else R[k+2:k+3])): a(l)
                    k += 1
    a("@stamp")
    if STAMPS and 'g1cyc' in OPT: a("s_memtime s[62:63]")
    kk = 2*0.7978845608028654*math.log2(math.e)
    a(f"""s_mov_b32 s30, {fh(-kk*0.044715)}
s_mov_b32 s31, {fh(-kk*0.044715)}
v_mov_b32 v10, {fh(-kk)}
v_mov_b32 v11, {fh(-kk)}
s_lshl_b32 s29, s50, 3
s_lshl_b32 s28, s27, 1
s_add_u32 s29, s29, s28
s_mul_i32 s29, s29, 49152
s_mul_i32 s28, s51, 3072
s_add_u32 s29, s29, s28
s_mul_i32 s28, s26, 1536
s_add_u32 s29, s29, s28
s_add_u32 s29, s29, {HIDF}
v_bfe_u32 v7, v2, 4, 1
v_mul_u32_u24 v7, 49152, v7
v_lshrrev_b32 v8, 5, v2
v_lshl_add_u32 v7, v8, 8, v7
v_and_b32 v8, 15, v2
v_lshl_add_u32 v7, v8, 4, v7""")
    for nt in range(2):
        Gt = ACC(0, 0, nt); U = ACC(1, 0, nt); T = 64 + 16*nt
        for i in range(0, 12, 2): a(f"v_pk_mul_f32 {P(T+i)}, {P(Gt+i)}, {P(Gt+i)}")
        for i in range(0, 12, 2): a(f"v_pk_fma_f32 {P(T+i)}, {P(T+i)}, s[30:31], {P(10)}")
        for i in range(0, 12, 2): a(f"v_pk_mul_f32 {P(T+i)}, {P(T+i)}, {P(Gt+i)}")
        for i in range(0, 12, 2): a(f"v_exp_f32 v{T+i}, v{T+i}\nv_exp_f32 v{T+i+1}, v{T+i+1}\nv_pk_mul_f32 {P(Gt+i)}, {P(Gt+i)}, {P(U+i)}")
        for i in range(0, 12, 2): a(f"v_pk_add_f32 {P(T+i)}, {P(T+i)}, 1.0 op_sel_hi:[1,0]")
        for i in range(12): a(f"v_rcp_f32 v{T+i}, v{T+i}")
        for i in range(0, 12, 2): a(f"v_pk_mul_f32 {P(Gt+i)}, {P(Gt+i)}, {P(T+i)}")
        for i in range(3):
            O = 96 + 4*i + 2*nt
            a(f"v_cvt_pk_bf16_f32 v{O}, v{Gt+4*i}, v{Gt+4*i+1}\nv_cvt_pk_bf16_f32 v{O+1}, v{Gt+4*i+2}, v{Gt+4*i+3}")
    for i in range(3):
        O = 96 + 4*i
        a(f"""v_permlane16_swap_b32 v{O}, v{O+2}
v_permlane16_swap_b32 v{O+1}, v{O+3}
buffer_store_dwordx4 {Q(O)}, v7, s[12:15], s29 offen offset:{512*i} {SST}""")
    a(f"""@stamp
s_lshl_b32 s30, s50, 3
s_lshr_b32 s28, s51, 3
s_lshl_b32 s28, s28, 2
s_add_u32 s30, s30, s28
s_add_u32 s30, s30, s27
s_mul_i32 s29, s30, 49152
s_lshl_b32 s28, s26, 10
s_add_u32 s29, s29, s28
s_add_u32 s29, s29, {HIDF}
s_lshl_b32 s30, s30, 4
s_and_b32 s24, s51, 7
v_lshrrev_b32 v3, 2, v2
v_mul_u32_u24 v3, 160, v3
v_and_b32 v4, 3, v2
v_lshl_add_u32 v3, v4, 3, v3
s_mul_i32 s28, s26, 5120
v_add_u32 v3, s28, v3
v_add_u32 v4, {6*DW}, v3
v_add_u32 v5, {12*DW}, v3
v_lshlrev_b32 v6, 4, v2
v_and_b32 v12, 15, v2
v_lshrrev_b32 v13, 4, v2
v_mul_u32_u24 v8, 1280, v12
v_lshl_add_u32 v8, v13, 3, v8
s_mul_i32 s23, s30, 1280
s_mul_i32 s25, s24, 160
s_add_u32 s23, s23, s25
s_add_u32 s23, s23, {X1}
v_lshlrev_b32 v15, 4, v13
s_lshl_b32 s28, s25, 1
s_add_u32 s28, s28, 12800
s_lshl_b32 s21, s26, 6
s_add_u32 s23, s23, s21
s_lshl_b32 s21, s26, 7
s_add_u32 s28, s28, s21
s_waitcnt vmcnt(0)
@stamp
s_barrier""")
    srd(a, 16, 60, 2048*1280)
    AC2 = lambda mt: 16 + 4*mt
    FA2 = lambda buf, mt: 36 + 20*buf + 4*mt
    NB = 10
    FB2 = lambda s: 76 + 4*(s % NB)
    def reads2(s):
        p = WPOS(s)
        return [f"ds_read_b64_tr_b16 {P(FA2(s & 1, mt) + 2*x)}, v{3+p//6} offset:{(p % 6)*DW + x*2560 + 32*mt}" for mt in range(5) for x in range(2)]
    def ldb(s):
        a(f"buffer_load_dwordx4 {Q(FB2(s))}, v6, s[12:15], s29 offen offset:{2048*(s & 1)} {SC}")
        if s & 1: a("s_add_u32 s29, s29, 4096")
    a("s_barrier\n@stamp")
    nb = 0; nx = 0
    for s in range(NB-1): ldb(s); nb += 1
    for l in reads2(0): a(l)
    for s in range(NS2):
        a(f"s_waitcnt vmcnt({nb-s-1+nx}) lgkmcnt(0)")
        if s in CB: a("s_barrier")
        if nb < NS2: ldb(nb); nb += 1
        elif nx < 6:
            k = nx // 2
            a(f"buffer_load_dwordx2 {P(116+2*k)}, v8, s[12:15], s23 offen offset:{32*k} {SC}")
            a(f"buffer_load_dwordx4 {Q(128+4*k)}, v15, s[12:15], s28 offen offset:{64*k}")
            nx += 2
        R = reads2(s+1) if s+1 < NS2 else []
        for mt in range(5):
            c = AC2(mt)
            a(f"v_mfma_f32_16x16x32_bf16 {Q(c)}, {Q(FA2(s & 1, mt))}, {Q(FB2(s))}, {'0' if s == 0 else Q(c)}")
            for l in R[2*mt:2*mt+2]: a(l)
    RB = WPOS(10)*DW
    a(f"""@stamp
s_mul_i32 s28, s27, 5120
s_add_u32 s28, s28, {RB}
v_add_u32 v6, s28, v6
s_and_b32 s23, s30, 63
s_lshl_b32 s23, s23, 5
s_lshr_b32 s29, s30, 6
s_add_u32 s23, s23, s29
s_mul_i32 s23, s23, 1280
s_add_u32 s23, s23, s25
v_mul_u32_u24 v8, 40960, v12
v_lshl_add_u32 v8, v13, 3, v8
s_cmp_eq_u32 s26, 0
s_cbranch_scc1 KF_lo""")
    def fin(give, keep, base):
        for mt in give: a(f"ds_write_b128 v6, {Q(AC2(mt))} offset:{1024*mt}")
        a("s_waitcnt vmcnt(0)")
        for mt in keep:
            x = 116+2*(mt-base); r = 76+4*mt
            a(f"""v_lshlrev_b32 v{r}, 16, v{x}
v_and_b32 v{r+1}, 0xffff0000, v{x}
v_lshlrev_b32 v{r+2}, 16, v{x+1}
v_and_b32 v{r+3}, 0xffff0000, v{x+1}""")
        a("s_waitcnt lgkmcnt(0)\ns_barrier")
        for mt in keep: a(f"ds_read_b128 {Q(36+4*mt)}, v6 offset:{1024*mt}")
        for n, mt in enumerate(keep):
            c = AC2(mt); x = 116+2*(mt-base); g = 128+4*(mt-base); r = 36+4*mt; o = 76+4*mt
            a(f"""s_waitcnt lgkmcnt({len(keep)-1-n})
v_pk_add_f32 {P(c)}, {P(c)}, {P(r)}
v_pk_add_f32 {P(c+2)}, {P(c+2)}, {P(r+2)}
v_pk_fma_f32 {P(o)}, {P(c)}, {P(g)}, {P(o)}
v_pk_fma_f32 {P(o+2)}, {P(c+2)}, {P(g+2)}, {P(o+2)}
v_cvt_pk_bf16_f32 v{x}, v{o}, v{o+1}
v_cvt_pk_bf16_f32 v{x+1}, v{o+2}, v{o+3}
buffer_store_dwordx2 {P(x)}, v8, s[16:19], s23 offen offset:{32*mt}""")
        a("@dump 12\ns_endpgm")
    nst = a.st.n
    fin([0,1,2], [3,4], 2)
    a.st.n = nst
    a("KF_lo:")
    fin([3,4], [0,1,2], 0)
    a.st.n = 1
    a("KF_prod:\ns_sub_u32 s25, s22, 8\nv_mov_b32 v2, v1")
    for q in range(3):
        a(f"""v_add_u32 v10, {64*q}, v2
v_mul_u32_u24 v11, 43691, v10
v_lshrrev_b32 v11, 19, v11
v_mul_u32_u24 v12, 12, v11
v_sub_u32 v12, v10, v12
v_lshrrev_b32 v13, 2, v11
v_and_b32 v13, 2, v13
v_xor_b32 v12, v12, v13
v_mul_u32_u24 v11, 3072, v11
v_lshl_add_u32 v11, v12, 4, v11
v_subrev_u32 v{3+q}, {1024*q}, v11""")
    for q in range(4):
        a(f"""v_lshrrev_b32 v10, 4, v2
v_add_u32 v10, {4*q}, v10
v_xor_b32 v10, v10, v2
v_and_b32 v10, 7, v10
v_lshrrev_b32 v11, 3, v2
v_mul_u32_u24 v11, 1280, v11
v_lshl_add_u32 v11, v10, 4, v11
v_add_u32 v{6+q}, {q*(10240-1024)}, v11""")
    a(f"""
s_and_b32 s26, s25, 1
s_mul_i32 s27, s26, {16*3072}
s_mul_i32 s28, s51, 192
s_add_u32 s27, s27, s28
s_mul_i32 s28, s25, 3072
s_lshl_b32 s29, s50, 2
s_add_u32 s29, s29, s25
s_lshl_b32 s47, s29, 7
s_add_u32 s47, s47, {FLG}
s_mul_i32 s29, s29, 40960
s_add_u32 s29, s29, {H2F}
s_lshl_b32 s30, s25, 12
v_and_b32 v10, 31, v2
v_lshlrev_b32 v10, 2, v10
s_waitcnt lgkmcnt(0)
s_cmp_lt_u32 s25, 2
s_cselect_b32 s8, s56, s58
s_cselect_b32 s9, s57, s59
s_mov_b32 s10, {640*3072}
s_mov_b32 s11, 0x00020000
""")
    srd(a, 12, 6, WS_SIZE)
    def iw(s):
        a(f"s_add_u32 m0, s28, {(s % 8)*WS_}")
        for q in range(3):
            a(f"buffer_load_dwordx4 v{3+q}, s[8:11], s27 offen offset:{1024*q} {WSC} lds")
        a(f"s_add_u32 s27, s27, {32*3072}")
    def ih(d):
        a(f"s_add_u32 m0, s30, {HB + (d % 4)*HS}")
        for q in range(4):
            a(f"buffer_load_dwordx4 v{6+q}, s[12:15], s29 offen offset:{1024*q} {SC} lds")
        a("s_add_u32 s29, s29, 128")
    a("s_barrier")
    for s in range(0, 3): iw(s)
    a("@stamp\ns_barrier")
    for s in range(3, 6): iw(s)
    a("s_barrier")
    for s in range(6, 8): iw(s)
    a("s_barrier\n@stamp")
    a(f"""v_lshlrev_b32 v10, 2, v2
v_mov_b32 v12, 1
s_lshl_b32 s48, s50, 4
s_add_u32 s48, s48, s51
s_lshl_b32 s48, s48, 7
s_add_u32 s48, s48, {FLG}
s_lshl_b32 s47, s50, 2
s_add_u32 s47, s47, s25
s_lshl_b32 s47, s47, 9
s_add_u32 s47, s47, {FLG}
v_and_b32 v14, 3, v2
v_lshlrev_b32 v14, 7, v14
v_and_b32 v15, 15, v2
v_lshlrev_b32 v15, 7, v15
s_and_b32 s24, s51, 7
s_mul_i32 s31, s25, 2560
s_mul_i32 s32, s24, {1536*160}
s_add_u32 s32, s32, s31
s_add_u32 s32, s32, {WDT}
v_lshlrev_b32 v13, 4, v2
s_barrier
s_cmp_lg_u32 s25, 0
s_cbranch_scc1 KF_na1
s_mov_b64 exec, {FEX}
buffer_store_dword v12, v10, s[12:15], s48 offen {FST}
s_mov_b64 exec, -1
KF_na1:""")
    poll(a, 'KF_p1', 14, 11, 's47', 1)
    a("@stamp")
    cnt = []
    def iw2(s):
        a(f"s_add_u32 m0, s31, {WPOS(s)*DW}")
        a(f"buffer_load_dwordx4 v13, s[12:15], s32 offen {WSC} lds")
        a(f"buffer_load_dwordx4 v13, s[12:15], s32 offen offset:1024 {WSC} lds")
        a("s_mov_b32 exec_hi, 0")
        a(f"buffer_load_dwordx4 v13, s[12:15], s32 offen offset:2048 {WSC} lds")
        a("s_mov_b32 exec_hi, -1")
        a("s_add_u32 s32, s32, 10240")
    def grp(d):
        if 'g1noload' in OPT and d >= 4:
            cnt.append(0); return
        ih(d); n = 4
        if d >= 4:
            iw(2*d); iw(2*d+1); n += 6
        cnt.append(n)
    for d in range(4): grp(d)
    nw2 = 0
    for d in range(10):
        a(f"s_waitcnt vmcnt({sum(cnt[d+1:])})\ns_barrier")
        if d >= 1 and d+3 < 10: grp(d+3)
        if d >= 7:
            for _ in range(EARLY[d]): iw2(nw2); nw2 += 1
            cnt.append(3*EARLY[d])
    a("@stamp\ns_barrier")
    while nw2 < NWD: iw2(nw2); nw2 += 1
    a(f"""@stamp
s_lshl_b32 s47, s50, 11
s_add_u32 s47, s47, {FLG + 32768}
s_add_u32 s48, s48, 32768
s_barrier
s_cmp_eq_u32 s25, 1
s_cbranch_scc0 KF_nb2
s_mov_b64 exec, {FEX}
buffer_store_dword v12, v10, s[12:15], s48 offen {FST}
s_mov_b64 exec, -1
KF_nb2:
s_cmp_lg_u32 s25, 0
s_cbranch_scc1 KF_na2""")
    poll(a, 'KF_p2', 15, 11, 's47', 1)
    a("KF_na2:\n@stamp\ns_waitcnt vmcnt(0)\ns_barrier")
    pend = []
    for s in CB:
        need = [t for t in pend if t <= NEXTCB[s]]
        a(f"s_waitcnt vmcnt({3*(len(pend)-len(need))})\ns_barrier")
        pend = [t for t in pend if t not in need]
        while nw2 < NS2 and nw2 - NWD <= s:
            iw2(nw2); pend.append(nw2); nw2 += 1
    a("@stamp\n@dump 12\nKF_end:\ns_endpgm")
    return ('k3_kernel', (256,1,1), (768,1,1), 163840, kd_block('k3_kernel', 148, 100))

def build(kernels, path):
    a = Asm2(); infos = []
    for k in kernels:
        infos.append(k(a))
    if 'k4twice' in OPT: infos.insert(4, infos[4][:4] + ('',))
    if 'empty4' in OPT:
        for i in range(4):
            a(f".globl e{i}_kernel\n.p2align 8\n.type e{i}_kernel,@function\ne{i}_kernel:\ns_endpgm")
            infos.append((f'e{i}_kernel', (256,1,1), (256,1,1), 0, kd_block(f'e{i}_kernel', 8, 16)))
    a("CODE_END:\ns_endpgm")
    hdr = open('adaLN_cond__spectral_gfnet__glu_gated_geglu__prompt.s.ref').read().split('\n')[:13]
    s = '\n'.join(hdr) + '\n'
    for n, g, b, l, _ in infos:
        s += f"; @launch kernel={n} grid=({g[0]},{g[1]},{g[2]}) block=({b[0]},{b[1]},{b[2]}) lds={l}\n"
    s += '.amdgcn_target "amdgcn-amd-amdhsa--gfx950"\n.text\n' + a.text() + '.section .rodata,"a"\n'
    for i in infos: s += i[4]
    open(path, 'w').write(s)
if __name__ == '__main__':
    args = sys.argv[1:]
    out = 'cur.s'
    for x in args:
        if x == 'stamp': STAMPS = True
        elif x.endswith('.s'): out = x
        elif x.startswith('slp'): SLP = int(x[3:])
        elif x.startswith('tsh'): TLBSH = int(x[3:])
        elif x.startswith('rpg'): RPG = int(x[3:])
        else: OPT.add(x)
    build([k0, k1, k2, k3, k4, k5] if 'unfused' in OPT else [k0, k1, k2, kf], out)
```

```python
import sys, math
sys.path.insert(0,'work')
import gen
from gen import *
NAME = 'adaLN_cond__spectral_gfnet__glu_gated_geglu__prompt_kernel'
MODG = 0x4000
GFL = 0x20000
CNT = 0x8000
class Bar:
    def __init__(self): self.seq = {}
    def __call__(self, a, role, name):
        self.seq.setdefault(role, []).append(name); a("s_barrier")
def spin(a, name, load, cmp):
    a(f"s_mov_b32 s46, 0x8000\n{name}:")
    a(load); a("s_waitcnt vmcnt(0)"); a(cmp)
    a(f"""s_nop 1
s_cmp_eq_u64 vcc, 0
s_cbranch_scc1 {name}_ok
s_sleep {gen.SLP}
s_sub_u32 s46, s46, 1
s_cmp_lg_u32 s46, 0
s_cbranch_scc1 {name}
{name}_ok:""")
def addr_xf(a):
    a(f"""s_lshl_b32 s40, s22, 5
v_lshrrev_b32 v22, 1, v6
v_lshl_add_u32 v22, v22, 4, v5
v_add_u32 v22, s40, v22
v_add_u32 v23, 256, v8
v_and_b32 v24, 1, v6
v_lshlrev_b32 v24, 7, v24""")
    for src_, dst in ((22, 11), (23, 13)):
        a(f"""v_lshrrev_b32 v25, 3, v{src_}
v_lshl_add_u32 v25, v25, 16, v24
v_and_b32 v26, 7, v{src_}
v_lshl_add_u32 v{dst}, v26, 4, v25""")
def addr_yf(a):
    a(f"""s_lshl_b32 s40, s22, 5
v_lshrrev_b32 v22, 1, v6
v_lshl_add_u32 v22, v22, 4, v5
v_add_u32 v22, s40, v22
v_add_u32 v23, 256, v8
v_and_b32 v24, 1, v6
v_lshlrev_b32 v24, 8, v24
v_lshl_add_u32 v11, v22, 13, v24
v_lshl_add_u32 v13, v23, 13, v24""")
def gather2(a, name, ld0, ld1, r0, r1, t, pre=False, dly=0):
    a(f"""s_mov_b32 s46, 0x8000
s_waitcnt vmcnt(0)
s_sleep {dly}
{f's_branch {name}_chk' if pre else ''}
{name}:
{ld0}
{ld1}
{name}_chk:
s_waitcnt vmcnt(0)
v_max3_u32 v{t}, v{r0}, v{r0+1}, v{r0+2}
v_max3_u32 v{t+1}, v{r1}, v{r1+1}, v{r1+2}
v_max3_u32 v{t}, v{t}, v{r0+3}, v{r1+3}
v_max_u32 v{t}, v{t}, v{t+1}
v_cmp_eq_u32 vcc, -1, v{t}
s_nop 1
s_and_b64 exec, exec, vcc
s_cbranch_scc0 {name}_ok
s_sleep 2
s_sub_u32 s46, s46, 1
s_cmp_lg_u32 s46, 0
s_cbranch_scc1 {name}
{name}_ok:
s_mov_b64 exec, -1""")
def task_ids(a, slot):
    a(f"""s_lshl_b32 s28, s{slot}, 2
s_lshr_b32 s29, s2, 6
s_add_u32 s28, s28, s29
s_lshl_b32 s28, s28, 3
s_and_b32 s29, s2, 7
s_add_u32 s28, s28, s29
s_lshl_b32 s41, s28, 16
s_lshl_b32 s28, s28, 3
s_bfe_u32 s29, s2, 0x30003
s_add_u32 s28, s28, s29
s_lshl_b32 s29, s29, 4
s_add_u32 s41, s41, s29""")
def km(a, OPT):
    bar = Bar()
    a(f".globl {NAME}\n.p2align 8\n.type {NAME},@function\n{NAME}:")
    a.st = Stamper(a, 3)
    ST = lambda tag: a("@stamp") if tag in OPT.get('st', '') else None
    R2 = 98304
    GP = R2; NON = R2 + 1536; PB1 = R2 + 2048; Z1 = R2 + 8192; K2B = R2 + 24576
    TB = R2; ZB = R2 + 12288; ZR = 528; ZC = 8*ZR; PB = R2 + 57344
    NST = 20; WS_ = 12288; HB = R2; HS = 16384
    NS2 = 24; DW = 10240; NWD = 16
    ORDER = [5, 6, 13,  7, 8, 14, 15,  0, 1, 9, 10,  2, 3, 4, 11, 12]
    EARLY = {7: 3, 8: 4, 9: 4} if 'e0' not in OPT else ({7: 0, 8: 0, 9: 0} if OPT['e0'] == 0 else {7: 0, 8: 4, 9: 6})
    WPOS = lambda s: ORDER[s % NWD]
    CB = [3, 7, 15, 19]; NEXTCB = {3: 7, 7: 15, 15: 19, 19: 23}
    XR = 114
    a(f"""
s_cmp_ge_u32 s2, 256
s_cbranch_scc1 KM_end
@stamp
s_load_dwordx2 s[4:5], s[0:1], 0
s_load_dwordx2 s[6:7], s[0:1], 88
s_load_dwordx4 s[56:59], s[0:1], 56
s_load_dwordx4 s[24:27], s[0:1], 8
s_load_dwordx2 s[60:61], s[0:1], 80
s_and_b32 s50, s2, 7
s_lshr_b32 s51, s2, 3
s_mul_i32 s52, s50, 10
s_add_u32 s52, s52, s51
s_mul_i32 s21, s50, 20
s_add_u32 s21, s21, s51
s_add_u32 s21, s21, 70
s_cmp_lt_u32 s2, 80
s_cselect_b32 s52, s52, s21
s_lshl_b32 s50, s50, 1
s_lshr_b32 s21, s51, 4
s_add_u32 s50, s50, s21
s_and_b32 s51, s51, 15
v_lshrrev_b32 v4, 6, v0
v_and_b32 v1, 63, v0
v_readfirstlane_b32 s22, v4
s_lshl_b32 s3, s50, 1
s_lshr_b32 s21, s51, 3
s_add_u32 s3, s3, s21
s_and_b32 s20, s51, 7
s_cmp_ge_u32 s22, 8
s_cbranch_scc1 KM_prod
v_and_b32 v3, 31, v0
v_lshlrev_b32 v2, 3, v3
v_bfe_u32 v4, v0, 5, 1
v_lshl_add_u32 v2, v4, 8, v2
v_lshlrev_b32 v3, 2, v3
v_lshl_add_u32 v3, v4, 1, v3
s_lshl_b32 s21, s20, 3
s_add_u32 s21, s21, s22
s_lshl_b32 s21, s21, 5
s_add_u32 s21, s21, s3
s_mul_i32 s21, s21, 1280
s_lshl_b32 s23, s52, 5
v_lshrrev_b32 v144, 1, v0
v_and_b32 v145, 1, v0
v_mul_u32_u24 v146, 7680, v144
v_lshl_add_u32 v146, v145, 4, v146
v_add_u32 v146, s23, v146
v_lshlrev_b32 v147, 1, v144
s_cmp_lt_u32 s2, 240
s_cselect_b32 s49, 5, 0
s_waitcnt lgkmcnt(0)
""")
    if OPT.get('wb'): a(f"s_add_u32 s6, s6, {OPT['wb']}\ns_addc_u32 s7, s7, 0")
    srd(a, 12, 6, WS_SIZE)
    srd(a, 8, 56, 1280)
    srd(a, 16, 58, 640*3840*2)
    NR = 4
    def gloads(tag, cond):
        a(f"s_cmp_ge_u32 s22, s49\ns_cbranch_scc1 KM_nog1{tag}")
        for i in range(NR): a(f"buffer_load_short_d16_hi v{136+i}, v147, s[8:11], 0 offen offset:{320*i}")
        a("s_mov_b32 s23, 0")
        for i in range(NR):
            a(f"buffer_load_dwordx4 {Q(120+4*i)}, v146, s[16:19], s23 offen")
            if i < NR-1: a(f"s_add_u32 s23, s23, {160*7680}")
        a(f"KM_nog1{tag}:")
    srd(a, 24, 4, 2048*1280)
    for k in range(3): a(f"buffer_load_dwordx2 {P(XR+2*k)}, v2, s[24:27], s21 offen offset:{512*k}")
    gloads('a', 0)
    a("v_and_b32 v5, 15, v0\nv_bfe_u32 v6, v0, 4, 2")
    col_slots(a, 22, 5, 6, 8, 22)
    addr_xf(a)
    a(f"""s_lshl_b32 s38, s3, 11
s_lshl_b32 s21, s20, 8
s_add_u32 s38, s38, s21
s_add_u32 s38, s38, {XF}
v_mov_b32 v28, -1
v_mov_b32 v29, -1
v_mov_b32 v30, -1
v_mov_b32 v31, -1
buffer_store_dwordx4 {Q(28)}, v11, s[12:15], s38 offen sc1
s_mov_b32 exec_lo, 0x00ff00ff
s_mov_b32 exec_hi, 0
buffer_store_dwordx4 {Q(28)}, v13, s[12:15], s38 offen sc1
s_mov_b64 exec, -1
s_lshl_b32 s38, s20, 3
s_add_u32 s38, s38, s22
s_lshl_b32 s21, s3, 6
s_add_u32 s38, s38, s21
s_mul_i32 s38, s38, 1280
s_add_u32 s38, s38, {H2F}
buffer_store_dwordx2 {P(28)}, v2, s[12:15], s38 offen sc1""")
    w5_consts(a, 88, 22, -1.0)
    a(f"""
v_cvt_f32_u32 v22, v8
v_mul_f32 v22, {fh(1/128)}, v22
v_cvt_f32_u32 v23, v6
v_mul_f32 v23, {fh(8.0)}, v23
v_and_b32 v24, {fh(0.25)}, v9
v_fma_f32 v23, v23, v22, -v24
v_mul_f32 v24, {fh(25.0)}, v22
""")
    for t in range(4):
        for jj in range(4):
            a(f"""v_cos_f32 v25, v23
v_add_f32 v23, v23, v22
v_cos_f32 v26, v23
v_add_f32 v23, v23, v{24 if jj == 3 else 22}
v_cvt_pk_bf16_f32 v{96+4*t+jj}, v25, v26""")
    a(f"""
v_lshrrev_b32 v22, 3, v3
v_xor_b32 v22, s22, v22
v_lshlrev_b32 v22, 4, v22
v_and_b32 v23, 7, v3
v_lshl_add_u32 v22, v23, 1, v22
s_lshl_b32 s23, s22, 8
s_add_u32 s23, s23, {Z1}
v_add_u32 v14, s23, v22
v_xor_b32 v15, {2048+128}, v14
v_lshlrev_b32 v7, 2, v3
v_add_u32 v7, {PB1}, v7
v_xor_b32 v22, v6, v5
""")
    for t in range(4):
        a(f"""v_xor_b32 v23, {4*t}, v22
v_lshlrev_b32 v23, 4, v23
v_lshl_add_u32 v23, v5, 8, v23
v_add_u32 v{16+t}, {Z1}, v23""")
    r5_sconsts(a)
    a("s_waitcnt vmcnt(11)\ns_cmp_lt_u32 s22, s49\ns_cbranch_scc1 KM_x0\ns_waitcnt vmcnt(3)\nKM_x0:")
    unpack_x(a, XR, 60)
    ln_rows(a, 60, 70)
    a(f"s_cmp_ge_u32 s22, s49\ns_cbranch_scc1 KM_nog2\ns_waitcnt vmcnt({NR+3})")
    C = 136; T = 140
    for i in range(NR): a(f"v_mul_f32 v{T+i}, {fh(-math.log2(math.e))}, v{C+i}")
    for i in range(NR): a(f"v_exp_f32 v{T+i}, v{T+i}")
    for i in range(NR): a(f"v_add_f32 v{T+i}, 1.0, v{T+i}")
    for i in range(NR): a(f"v_rcp_f32 v{T+i}, v{T+i}")
    for i in range(NR): a(f"v_mul_f32 v{C+i}, v{C+i}, v{T+i}")
    for i in range(NR): a(f"v_cvt_pk_bf16_f32 v{C+i}, v{C+i}, v{C+i}")
    for i in range(NR): a(f"v_and_b32 v{48+2*i}, 0xffff0000, v{C+i}")
    a(f"""v_lshrrev_b32 v22, 4, v0
v_lshlrev_b32 v23, 6, v22
v_lshl_add_u32 v23, v145, 5, v23
v_add_u32 v23, {GP}, v23""")
    for i in range(NR):
        a(f"s_waitcnt vmcnt({NR-1-i+3})")
        for j in range(4): a(f"v_lshlrev_b32 v{32+2*j}, 16, v{120+4*i+j}\nv_and_b32 v{33+2*j}, 0xffff0000, v{120+4*i+j}")
        for j in range(4):
            if i == 0: a(f"v_pk_mul_f32 {P(40+2*j)}, {P(32+2*j)}, {P(48)} op_sel_hi:[1,0]")
            else: a(f"v_pk_fma_f32 {P(40+2*j)}, {P(32+2*j)}, {P(48+2*i)}, {P(40+2*j)} op_sel_hi:[1,0,1]")
    for mode in ('quad_perm:[2,3,0,1]', 'row_ror:4', 'row_ror:8'):
        for j in range(8): a(f"v_add_f32_dpp v{40+j}, v{40+j}, v{40+j} {mode} {DPP}")
    a(f"""v_cmp_gt_u32 vcc, 2, v5
s_and_saveexec_b64 s[38:39], vcc
ds_write_b128 v23, {Q(40)}
ds_write_b128 v23, {Q(44)} offset:16
s_mov_b64 exec, s[38:39]
KM_nog2:
s_waitcnt vmcnt(0) lgkmcnt(0)""")
    ST('a')
    bar(a, 'W', 'g1')
    a(f"""v_mov_b32 v22, {NON}
ds_read_b32 v27, v22
s_cmp_lg_u32 s22, 0
s_cbranch_scc1 KM_nog3
s_cmp_eq_u32 s49, 0
s_cbranch_scc1 KM_nog3
v_mul_u32_u24 v23, 320, v6
v_lshl_add_u32 v23, v5, 2, v23
v_add_u32 v23, {GP}, v23
ds_read_b32 v40, v23
ds_read_b32 v41, v23 offset:64
ds_read_b32 v42, v23 offset:128
ds_read_b32 v43, v23 offset:192
ds_read_b32 v44, v23 offset:256
s_sub_u32 s23, s52, 40
s_cmp_lt_u32 s23, 40
s_cselect_b32 s21, 1.0, 0
s_sub_u32 s23, s52, 160
s_cmp_lt_u32 s23, 40
s_cselect_b32 s21, 1.0, s21
s_waitcnt lgkmcnt(0)
v_add_f32 v40, v40, v41
v_add_f32 v42, v42, v43
v_add_f32 v40, v40, v44
v_add_f32 v40, v40, v42
v_mov_b32 v41, v40
v_permlane16_swap_b32 v40, v41
v_add_f32 v40, v40, v41
v_mov_b32 v41, v40
v_permlane32_swap_b32 v40, v41
v_add_f32 v40, v40, v41
v_cvt_pk_bf16_f32 v40, v40, v40
v_and_b32 v40, 0xffff0000, v40
v_add_f32 v40, s21, v40
v_cvt_pk_bf16_f32 v40, v40, v40
v_and_b32 v40, 0xffff0000, v40
v_mov_b32 v41, v27
s_mov_b64 exec, 0xffff
s_cmp_lt_u32 s52, 80
s_cbranch_scc1 KM_gran
s_lshl_b32 s23, s52, 6
v_lshlrev_b32 v23, 2, v1
buffer_store_dword v40, v23, s[12:15], s23 offen sc1
s_branch KM_pub
KM_gran:
s_lshl_b32 s23, s52, 7
s_add_u32 s23, s23, {MODG}
v_lshlrev_b32 v23, 3, v1
buffer_store_dwordx2 {P(40)}, v23, s[12:15], s23 offen sc1
KM_pub:
s_mov_b64 exec, -1
KM_nog3:""")
    M = lambda t: 120+6*t
    N = lambda x, y: 144+6*(2*x+y)
    def gen_(R, cur, step, last, t0=12):
        for hh in range(2):
            a(f"""v_cos_f32 v{t0}, v{cur}
v_sin_f32 v{t0+1}, v{cur}
v_add_f32 v{cur}, v{cur}, v{step}
v_cos_f32 v{t0+2}, v{cur}
v_sin_f32 v{t0+3}, v{cur}
v_add_f32 v{cur}, v{cur}, v{last if hh else step}
v_cvt_pk_bf16_f32 v{R+2+hh}, v{t0}, v{t0+2}
v_cvt_pk_bf16_f32 v{R+hh}, -v{t0+1}, -v{t0+3}
v_cvt_pk_bf16_f32 v{R+4+hh}, v{t0+1}, v{t0+3}""")
    a(f"""v_bfe_u32 v46, v0, 6, 2
v_lshl_add_u32 v46, v46, 4, v5
v_cvt_f32_u32 v46, v46
v_cvt_f32_u32 v47, v6
v_cvt_f32_u32 v48, v5
v_mul_f32 v47, 4.0, v47
v_mul_f32 v49, {fh(1/64)}, v46
v_mul_f32 v50, v47, v49
v_mul_f32 v51, {fh(13.0)}, v49""")
    for t in range(4): gen_(M(t), 50, 49, 51, 52)
    for x in range(2):
        a(f"v_add_f32 v49, {fh(16.0*x)}, v48\nv_mul_f32 v49, {fh(1/32)}, v49\nv_mul_f32 v50, v47, v49\nv_mul_f32 v51, {fh(13.0)}, v49")
        for y in range(2): gen_(N(x, y), 50, 49, 51, 52)
    a(f"""s_lshl_b32 s23, s3, 11
s_lshl_b32 s21, s20, 8
s_add_u32 s23, s23, s21
s_add_u32 s23, s23, {XF}""")
    ST('a')
    bar(a, 'W', 'g2')
    ST('a')
    for j in range(5): a(f"ds_read_b64 {P(40+2*j)}, v7 offset:{2560+512*j}\nds_read_b64 {P(50+2*j)}, v7 offset:{512*j}")
    for j in range(5): a(f"v_pk_mul_f32 {P(28+2*j)}, {P(60+2*j)}, {P(70)} op_sel_hi:[1,0]")
    a("s_waitcnt lgkmcnt(0)")
    for j in range(5): a(f"v_pk_fma_f32 {P(28+2*j)}, {P(28+2*j)}, {P(40+2*j)}, {P(50+2*j)}")
    h = {(3*j) % 5: 28+2*j for j in range(5)}
    t1,t2,t3,t4 = 40,42,44,46; z0,p1,q1,p2,q2 = 48,50,52,54,56
    a(f"""v_pk_add_f32 {P(t1)}, {P(h[1])}, {P(h[4])}
v_pk_add_f32 {P(t2)}, {P(h[2])}, {P(h[3])}
v_pk_add_f32 {P(t3)}, {P(h[1])}, {P(h[4])} neg_lo:[0,1] neg_hi:[0,1]
v_pk_add_f32 {P(t4)}, {P(h[2])}, {P(h[3])} neg_lo:[0,1] neg_hi:[0,1]
v_pk_add_f32 {P(z0)}, {P(h[0])}, {P(t1)}
v_pk_fma_f32 {P(p1)}, s[30:31], {P(t1)}, {P(h[0])}
v_pk_fma_f32 {P(p2)}, s[32:33], {P(t1)}, {P(h[0])}
v_pk_mul_f32 {P(q1)}, s[34:35], {P(t3)}
v_pk_mul_f32 {P(q2)}, s[36:37], {P(t3)}
v_pk_add_f32 {P(z0)}, {P(z0)}, {P(t2)}
v_pk_fma_f32 {P(p1)}, s[32:33], {P(t2)}, {P(p1)}
v_pk_fma_f32 {P(p2)}, s[30:31], {P(t2)}, {P(p2)}
v_pk_fma_f32 {P(q1)}, s[36:37], {P(t4)}, {P(q1)}
v_pk_fma_f32 {P(q2)}, s[34:35], {P(t4)}, {P(q2)} neg_lo:[0,1,0] neg_hi:[0,1,0]
v_cvt_pk_bf16_f32 v22, v{z0}, v{z0+1}
ds_write_b32 v14, v22 offset:8192""")
    for k, (p, q) in enumerate(((p1, q1), (p2, q2))):
        c, s = 88+4*k, 90+4*k; r, im = 28+4*k, 30+4*k
        a(f"""v_pk_mul_f32 {P(r)}, {P(p)}, {P(c)}
v_pk_mul_f32 {P(im)}, {P(p)}, {P(s)}
v_pk_fma_f32 {P(r)}, {P(q)}, {P(s)}, {P(r)}
v_pk_fma_f32 {P(im)}, {P(q)}, {P(c)}, {P(im)} neg_lo:[1,0,0] neg_hi:[1,0,0]
v_cvt_pk_bf16_f32 v{23+2*k}, v{r}, v{r+1}
v_cvt_pk_bf16_f32 v{24+2*k}, v{im}, v{im+1}
ds_write_b32 v{14+k}, v{23+2*k}
ds_write_b32 v{14+k}, v{24+2*k} offset:4096""")
    a("s_waitcnt vmcnt(0) lgkmcnt(0)")
    bar(a, 'W', 'k1a')
    for T in range(3):
        for t in range(4): a(f"ds_read_b128 {Q(28+16*T+4*t)}, v{16+t} offset:{4096*T}")
    n = 12
    for T in range(3):
        for t in range(4):
            n -= 1
            a(f"s_waitcnt lgkmcnt({n})")
            a(f"v_mfma_f32_16x16x32_bf16 {Q(76+4*T)}, {Q(28+16*T+4*t)}, {Q(96+4*t)}, {'0' if t == 0 else Q(76+4*T)}")
    a(f"""v_and_b32 v22, 0x80008000, v9
v_and_b32 v23, v9, v12
v_bfi_b32 v24, v9, v22, v12
v_pk_mul_f32 {P(28)}, {P(76)}, {P(10)} op_sel_hi:[1,0]
v_pk_mul_f32 {P(30)}, {P(78)}, {P(10)} op_sel_hi:[1,0]
v_pk_mul_f32 {P(32)}, {P(80)}, {P(10)} op_sel_hi:[1,0]
v_pk_mul_f32 {P(34)}, {P(82)}, {P(10)} op_sel_hi:[1,0]""")
    for i in range(4):
        a(f"v_add_f32_dpp v{76+i}, v{32+i}, v{76+i} row_ror:8 {DPP}")
        a(f"v_subrev_f32_dpp v{80+i}, v{28+i}, v{80+i} row_ror:8 {DPP}")
    a(f"""v_cvt_pk_bf16_f32 v36, v76, v77
v_cvt_pk_bf16_f32 v37, v78, v79
v_cvt_pk_bf16_f32 v38, v80, v81
v_cvt_pk_bf16_f32 v39, v82, v83
v_cvt_pk_bf16_f32 v44, v84, v85
v_cvt_pk_bf16_f32 v45, v86, v87
v_xor_b32 v36, v36, v23
v_xor_b32 v37, v37, v23
v_xor_b32 v38, v38, v24
v_xor_b32 v39, v39, v24
v_xor_b32 v44, v44, v22
v_xor_b32 v45, v45, v22
v_cndmask_b32 v40, v36, v38, s[42:43]
v_cndmask_b32 v41, v37, v39, s[42:43]
v_cndmask_b32 v42, v38, v36, s[42:43]
v_cndmask_b32 v43, v39, v37, s[42:43]
buffer_store_dwordx4 {Q(40)}, v11, s[12:15], s23 offen sc1
v_mov_b32_dpp v46, v44 row_ror:8 {DPP}
v_mov_b32_dpp v47, v45 row_ror:8 {DPP}
s_mov_b32 exec_lo, 0x00ff00ff
s_mov_b32 exec_hi, 0
buffer_store_dwordx4 {Q(44)}, v13, s[12:15], s23 offen sc1
s_mov_b64 exec, -1""")
    ST('a')
    a(f"""s_lshr_b32 s26, s22, 2
s_and_b32 s27, s22, 3
""")
    task_ids(a, 26)
    a(f"""s_cmp_gt_u32 s28, 320
s_cbranch_scc1 KM_k2skip
s_cmp_eq_u32 s28, 320
s_cselect_b32 s41, {32*65536}, s41
s_lshr_b32 s21, s28, 5
s_lshl_b32 s21, s21, 3
s_and_b32 s23, s28, 7
s_add_u32 s21, s21, s23
s_sub_u32 s23, 128, s21
s_cmp_eq_u32 s21, 0
s_cselect_b32 s23, 64, s23
s_bitcmp1_b32 s28, 3
s_cselect_b32 s21, s23, s21
s_mul_i32 s21, s21, 5
s_bfe_u32 s23, s28, 0x10004
s_lshl_b32 s23, s23, 7
s_add_u32 s21, s21, s23
s_add_u32 s21, s21, 128
s_sub_u32 s23, s21, 640
s_min_u32 s21, s21, s23
s_sub_u32 s23, 640, s21
s_min_u32 s21, s21, s23
s_sub_u32 s23, s28, 256
s_mul_i32 s23, s23, 5
s_cmp_ge_u32 s28, 256
s_cselect_b32 s40, s23, s21
v_and_b32 v1, 15, v0
v_bfe_u32 v2, v0, 4, 2
v_bfe_u32 v3, v0, 6, 2
v_and_b32 v9, 63, v0
v_lshl_add_u32 v4, v3, 2, v2
v_xor_b32 v10, v4, v1
v_lshl_add_u32 v4, v4, 4, v10
v_lshlrev_b32 v4, 7, v4
v_lshrrev_b32 v5, 1, v1
v_and_b32 v6, 1, v1
v_lshl_add_u32 v5, v6, 3, v5
v_lshl_add_u32 v5, v2, 4, v5
v_lshlrev_b32 v5, 4, v5
v_lshl_add_u32 v5, v3, 11, v5
s_add_u32 s21, s41, {XF}
s_add_u32 s23, s21, 32768
s_lshl_b32 s29, s28, 13
s_lshl_b32 s48, s26, 14
s_add_u32 s48, s48, {K2B}
v_lshl_add_u32 v6, v3, 4, v1
v_cvt_f32_u32 v6, v6
v_cvt_f32_u32 v7, v2
v_cvt_f32_u32 v8, v1
v_mul_f32 v7, 4.0, v7
""")
    a(f"v_mul_f32 v16, {fh(-1/2048)}, v6\nv_mul_f32 v10, v7, v16\nv_mul_f32 v11, {fh(13.0)}, v16")
    for k in range(8):
        a(f"v_cos_f32 v{56+k}, v10\nv_sin_f32 v{64+k}, v10")
        if k < 7: a(f"v_add_f32 v10, v10, v{11 if k == 3 else 16}")
    if 'gx1' in OPT:
        for l in (f"buffer_load_dwordx4 {Q(24)}, v4, s[12:15], s21 offen sc1", f"buffer_load_dwordx4 {Q(28)}, v4, s[12:15], s23 offen sc1"): a(l)
    a(f"""s_lshl_b32 s24, s27, 4
v_cvt_f32_u32 v12, s24
v_add_f32 v12, v12, v7
s_mov_b32 s38, {fh(2.0/(2048*640))}
s_cmp_eq_u32 s28, 256
s_cselect_b32 s38, {fh(1.0/(2048*640))}, s38
s_cmp_eq_u32 s28, 320
s_cselect_b32 s38, {fh(1.0/(2048*640))}, s38
s_mov_b32 s39, s38""")
    for nt in range(2):
        a(f"v_add_f32 v16, {fh(16.0*nt)}, v8\nv_mul_f32 v16, {fh(1/2048)}, v16\nv_mul_f32 v10, v12, v16")
        for i in range(4):
            k = 4*nt+i
            a(f"v_cos_f32 v{72+k}, v10\nv_sin_f32 v{80+k}, v10")
            if i < 3: a("v_add_f32 v10, v10, v16")
    for k in range(8): a(f"v_pk_mul_f32 {P(72+2*k)}, s[38:39], {P(72+2*k)}")
    a(f"""v_xor_b32 v10, v2, v1
v_lshlrev_b32 v10, 4, v10
v_lshl_add_u32 v10, v1, 8, v10
v_add_u32 v10, s48, v10
v_xor_b32 v11, 64, v10
v_xor_b32 v12, 128, v10
v_xor_b32 v13, 192, v10
v_lshlrev_b32 v7, 4, v9
v_add_u32 v7, s48, v7
s_lshl_b32 s24, s27, 10
v_add_u32 v6, s24, v7
v_lshlrev_b32 v8, 4, v9
v_lshl_add_u32 v8, v3, 11, v8
s_add_u32 s24, s24, s48
s_lshl_b32 s25, s40, 13
s_add_u32 s25, s25, {WP}
s_mov_b32 m0, s24""")
    ST('b')
    gather2(a, 'KM_gx', f"buffer_load_dwordx4 {Q(24)}, v4, s[12:15], s21 offen sc1", f"buffer_load_dwordx4 {Q(28)}, v4, s[12:15], s23 offen sc1", 24, 28, 32, pre=('gx1' in OPT), dly=OPT.get('dx', 0))
    a(f"""ds_write_b128 v6, {Q(24)}
ds_write_b128 v6, {Q(28)} offset:4096
s_add_u32 s21, s29, {YF}
s_add_u32 s23, s21, 1024
s_waitcnt lgkmcnt(0)""")
    bar(a, 'W', 'k2a')
    ST('b')
    a(f"""buffer_load_dwordx4 v[48:51], v5, s[12:15], s25 offen sc1
buffer_load_dwordx4 v[52:55], v5, s[12:15], s25 offen offset:1024 sc1""")
    D = lambda mt, t: 16+16*mt+4*t
    for t in range(4):
        for mt in range(2): a(f"ds_read_b128 {Q(D(mt,t))}, v{10+t} offset:{4096*mt}")
    def mf(d, A, B, first): a(f"v_mfma_f32_16x16x32_bf16 {Q(d)}, {Q(A)}, {Q(B)}, {'0' if first else Q(d)}")
    a("s_and_b32 s24, s28, 0xffffffbf\ns_cmp_lg_u32 s24, 256\ns_cbranch_scc1 KM_k2gen\ns_waitcnt lgkmcnt(0)\ns_cmp_eq_u32 s28, 256\ns_cbranch_scc1 KM_k2z")
    for f in range(8): a(f"v_mov_b32 v{16+4*f}, v{18+4*f}\nv_mov_b32 v{17+4*f}, v{19+4*f}")
    a("KM_k2z:")
    for f in range(8): a(f"v_mov_b32 v{18+4*f}, 0\nv_mov_b32 v{19+4*f}, 0")
    a("s_nop 1\nKM_k2gen:")
    for t in range(4):
        a(f"s_waitcnt lgkmcnt({6-2*t})")
        for mt in range(2):
            mf(88+8*mt, D(mt,t), M(t)+2, t == 0)
            mf(92+8*mt, D(mt,t), M(t), t == 0)
    def tw_pack(tr, ti, B, swap):
        for blk in range(2):
            for hh in range(2):
                r = 88+8*blk+2*hh; i = r+4; c = tr+4*blk+2*hh; s = ti+4*blk+2*hh; t = 104+4*blk+2*hh
                a(f"""v_pk_mul_f32 {P(t)}, {P(i)}, {P(s)}
v_pk_mul_f32 {P(i)}, {P(i)}, {P(c)}
v_pk_fma_f32 {P(i)}, {P(r)}, {P(s)}, {P(i)}
v_pk_fma_f32 {P(r)}, {P(r)}, {P(c)}, {P(t)} neg_lo:[0,0,1] neg_hi:[0,0,1]""")
        for blk in range(2):
            for hh in range(2):
                r = 88+8*blk+2*hh
                a(f"v_cvt_pk_bf16_f32 v{B+4*blk+hh+(2 if swap else 0)}, v{r}, v{r+1}")
                a(f"v_cvt_pk_bf16_f32 v{B+4*blk+hh+(0 if swap else 2)}, v{r+4}, v{r+5}")
    tw_pack(56, 64, 16, False)
    for y in range(2):
        for x in range(2):
            mf(88+8*x, N(x,y)+2, 16+4*y, y == 0)
            mf(92+8*x, N(x,y), 16+4*y, y == 0)
    a("s_waitcnt vmcnt(0)")
    for k in range(8): a(f"v_lshlrev_b32 v{32+k}, 16, v{48+k}\nv_and_b32 v{40+k}, 0xffff0000, v{48+k}")
    tw_pack(32, 40, 24, True)
    for y in range(2):
        for x in range(2):
            mf(88+8*x, 24+4*y, N(x,y), y == 0)
            mf(92+8*x, 24+4*y, N(x,y)+2, y == 0)
    tw_pack(72, 80, 16, True)
    a(f"ds_write_b128 v6, {Q(16)} offset:8192\nds_write_b128 v6, {Q(20)} offset:12288\ns_waitcnt lgkmcnt(0)")
    bar(a, 'W', 'k2b')
    for t in range(4):
        for nt in range(2): a(f"ds_read_b128 {Q(D(nt,t))}, v7 offset:{8192+4096*nt+1024*t}")
    for t in range(4):
        a(f"s_waitcnt lgkmcnt({6-2*t})")
        for nt in range(2):
            mf(88+8*nt, M(t), D(nt,t), t == 0)
            mf(92+8*nt, M(t)+2, D(nt,t), t == 0)
    for nt in range(2):
        o = 48+4*nt; s = 88+8*nt
        for k in range(4): a(f"v_cvt_pk_bf16_f32 v{o+k}, v{s+2*k}, v{s+2*k+1}")
        a(f"buffer_store_dwordx4 {Q(o)}, v8, s[12:15], s{21+2*nt} offen sc1")
    ST('b')
    a("s_branch KM_k2done\nKM_k2skip:\ns_barrier\ns_barrier\nKM_k2done:")
    a(f"""v_and_b32 v1, 63, v0
v_and_b32 v3, 31, v0
v_lshlrev_b32 v2, 3, v3
v_bfe_u32 v4, v0, 5, 1
v_lshl_add_u32 v2, v4, 8, v2
v_lshlrev_b32 v3, 2, v3
v_lshl_add_u32 v3, v4, 1, v3
v_and_b32 v5, 15, v0
v_bfe_u32 v6, v0, 4, 2""")
    col_slots(a, 22, 5, 6, 8, 22)
    addr_yf(a)
    a(f"""
s_and_b32 s23, s3, 15
s_lshl_b32 s23, s23, 4
s_lshr_b32 s21, s3, 4
s_lshl_b32 s21, s21, 10
s_add_u32 s23, s23, s21
s_lshr_b32 s21, s20, 1
s_lshl_b32 s21, s21, 11
s_add_u32 s23, s23, s21
s_and_b32 s21, s20, 1
s_lshl_b32 s21, s21, 9
s_add_u32 s23, s23, s21
s_add_u32 s23, s23, {YF}
s_lshl_b32 s21, s20, 3
s_add_u32 s21, s21, s22
s_lshl_b32 s24, s3, 6
s_add_u32 s24, s24, s21
s_mul_i32 s24, s24, 1280
""")
    w5_consts(a, 88, 22, 1.0)
    a(f"""
s_lshl_b32 s27, s22, 4
v_add_u32 v22, s27, v5
v_cvt_f32_u32 v22, v22
v_mul_f32 v22, {fh(1/128)}, v22
v_and_b32 v23, 1, v6
v_cvt_f32_u32 v23, v23
v_mul_f32 v23, 4.0, v23
v_lshrrev_b32 v24, 1, v6
v_cvt_f32_u32 v24, v24
v_mul_f32 v24, {fh(0.25)}, v24
v_fma_f32 v23, v23, v22, v24
v_mul_f32 v24, {fh(5.0)}, v22
v_mul_f32 v27, {fh(64.0)}, v22
v_cmp_eq_u32 vcc, 2, v6
v_cndmask_b32 v27, v23, v27, vcc
""")
    for t in range(4):
        for jj in range(4):
            a(f"""v_cos_f32 v25, v{27 if (t, jj) == (0, 0) else 23}
v_add_f32 v23, v23, v22
v_cos_f32 v26, v23
v_add_f32 v23, v23, v{24 if jj & 1 else 22}
v_cvt_pk_bf16_f32 v{96+4*t+jj}, v25, v26""")
    a(f"""
v_lshlrev_b32 v14, 5, v5
v_lshl_add_u32 v14, v6, 3, v14
s_lshl_b32 s27, s22, 9
s_add_u32 s27, s27, {TB}
v_add_u32 v14, s27, v14
v_and_b32 v15, 4096, v9
v_add_u32 v15, v15, v14
v_xor_b32 v112, 4096, v15
v_lshlrev_b32 v113, 3, v1
v_add_u32 v113, {TB}, v113
v_and_b32 v22, 7, v5
v_mul_u32_u24 v22, {ZR}, v22
v_lshl_add_u32 v22, v6, 4, v22
s_lshl_b32 s27, s22, 6
s_add_u32 s27, s27, {ZB}
v_add_u32 v17, s27, v22
v_lshrrev_b32 v22, 3, v5
v_mul_u32_u24 v22, {2*ZC}, v22
v_add_u32 v16, v17, v22
v_lshlrev_b32 v4, 2, v3
s_mul_i32 s27, s22, {ZR}
s_add_u32 s27, s27, {ZB}
v_add_u32 v7, s27, v4
v_add_u32 v4, {PB}, v4
v_and_b32 v22, 0x80000000, v9
v_xor_b32 v22, v22, v10
v_and_b32 v23, 0x80008000, v9
v_xor_b32 v24, v23, v12
""")
    for j in range(5):
        a(f"ds_read_b64 {P(120+2*j)}, v4 offset:{512*j}\nds_read_b64 {P(140+2*j)}, v4 offset:{5120+512*j}\nds_read_b64 {P(130+2*j)}, v4 offset:{2560+512*j}")
    a("s_waitcnt lgkmcnt(0)")
    ST('c')
    gather2(a, 'KM_gy', f"buffer_load_dwordx4 {Q(28)}, v11, s[12:15], s23 offen sc1", f"buffer_load_dwordx4 {Q(32)}, v13, s[12:15], s23 offen sc1", 28, 32, 36, dly=OPT.get('dy', 0))
    ST('c')
    a(f"""v_cndmask_b32 v32, v32, v34, s[42:43]
v_cndmask_b32 v33, v33, v35, s[42:43]
v_xor_b32 v26, v30, v24
v_xor_b32 v27, v31, v24
v_xor_b32 v30, v30, v12
v_xor_b32 v31, v31, v12
ds_write_b64 v14, {P(32)} offset:8192""")
    for hh in range(2):
        a(f"""v_lshlrev_b32 v{36+2*hh}, 16, v{28+hh}
v_and_b32 v{37+2*hh}, 0xffff0000, v{28+hh}
v_lshlrev_b32 v{40+2*hh}, 16, v{30+hh}
v_and_b32 v{41+2*hh}, 0xffff0000, v{30+hh}
v_lshlrev_b32 v{44+2*hh}, 16, v{28+hh}
v_and_b32 v{45+2*hh}, 0xffff0000, v{28+hh}
v_lshlrev_b32 v{48+2*hh}, 16, v{26+hh}
v_and_b32 v{49+2*hh}, 0xffff0000, v{26+hh}""")
    for i in range(4):
        a(f"v_fmac_f32_dpp v{44+i}, v{36+i}, v22 row_ror:8 {DPP}")
        a(f"v_fmac_f32_dpp v{48+i}, v{40+i}, v10 row_ror:8 {DPP}")
    a(f"""v_cvt_pk_bf16_f32 v52, v44, v45
v_cvt_pk_bf16_f32 v53, v46, v47
v_cvt_pk_bf16_f32 v54, v48, v49
v_cvt_pk_bf16_f32 v55, v50, v51
ds_write_b64 v15, {P(52)}
ds_write_b64 v112, {P(54)}
s_waitcnt lgkmcnt(0)""")
    bar(a, 'W', 'b1')
    for T in range(3):
        for t in range(4):
            for x in range(2): a(f"ds_read_b64_tr_b16 {P(28+16*T+4*t+2*x)}, v113 offset:{4096*T+1024*t+512*x}")
            if T == 1 and t == 3:
                a("s_waitcnt lgkmcnt(8)")
                for tt in range(4): a(f"v_mfma_f32_16x16x32_bf16 {Q(76)}, {Q(96+4*tt)}, {Q(28+4*tt)}, {'0' if tt == 0 else Q(76)}")
    for T in (1, 2):
        a(f"s_waitcnt lgkmcnt({8 if T == 1 else 0})")
        for t in range(4): a(f"v_mfma_f32_16x16x32_bf16 {Q(76+4*T)}, {Q(96+4*t)}, {Q(28+16*T+4*t)}, {'0' if t == 0 else Q(76+4*T)}")
    a(f"ds_write_b128 v16, {Q(76)} offset:{ZC}")
    for j in range(5): a(f"v_lshlrev_b32 v{28+2*j}, 16, v{XR+j}\nv_and_b32 v{29+2*j}, 0xffff0000, v{XR+j}")
    a(f"""ds_write_b128 v16, {Q(80)} offset:{2*ZC}
ds_write_b128 v17, {Q(84)}
s_waitcnt lgkmcnt(0)""")
    bar(a, 'W', 'b2')
    for c in range(5): a(f"ds_read_b64 {P(40+2*c)}, v7 offset:{ZC*c}")
    a("s_waitcnt lgkmcnt(0)")
    bar(a, 'W', 'b3')
    for k in range(2):
        r, im = 42+4*k, 44+4*k; c, s = 88+4*k, 90+4*k; R, I = 50+4*k, 52+4*k
        a(f"""v_pk_mul_f32 {P(R)}, {P(r)}, {P(c)}
v_pk_mul_f32 {P(I)}, {P(r)}, {P(s)}
v_pk_fma_f32 {P(R)}, {P(im)}, {P(s)}, {P(R)} neg_lo:[1,0,0] neg_hi:[1,0,0]
v_pk_fma_f32 {P(I)}, {P(im)}, {P(c)}, {P(I)}""")
    z0,z1r,z1i,z2r,z2i = 40,50,52,54,56
    A,B,Cc,Dd,E = 58,60,62,64,66
    sl = {(3*j) % 5: j for j in range(5)}
    X = lambda d2: P(28+2*sl[d2]); G = lambda d2: P(120+2*sl[d2])
    a(f"""v_pk_add_f32 {P(E)}, {P(z0)}, {P(z1r)}
v_pk_fma_f32 {P(A)}, s[30:31], {P(z1r)}, {P(z0)}
v_pk_fma_f32 {P(B)}, s[32:33], {P(z1r)}, {P(z0)}
v_pk_mul_f32 {P(Cc)}, s[34:35], {P(z1i)}
v_pk_mul_f32 {P(Dd)}, s[36:37], {P(z1i)}
v_pk_add_f32 {P(E)}, {P(E)}, {P(z2r)}
v_pk_fma_f32 {P(A)}, s[32:33], {P(z2r)}, {P(A)}
v_pk_fma_f32 {P(B)}, s[30:31], {P(z2r)}, {P(B)}
v_pk_fma_f32 {P(Cc)}, s[36:37], {P(z2i)}, {P(Cc)}
v_pk_fma_f32 {P(Dd)}, s[34:35], {P(z2i)}, {P(Dd)} neg_lo:[0,1,0] neg_hi:[0,1,0]
v_pk_fma_f32 {X(0)}, {G(0)}, {P(E)}, {X(0)}
v_pk_add_f32 {P(68)}, {P(A)}, {P(Cc)} neg_lo:[0,1] neg_hi:[0,1]
v_pk_add_f32 {P(70)}, {P(A)}, {P(Cc)}
v_pk_add_f32 {P(72)}, {P(B)}, {P(Dd)} neg_lo:[0,1] neg_hi:[0,1]
v_pk_add_f32 {P(74)}, {P(B)}, {P(Dd)}
v_pk_fma_f32 {X(1)}, {G(1)}, {P(68)}, {X(1)}
v_pk_fma_f32 {X(4)}, {G(4)}, {P(70)}, {X(4)}
v_pk_fma_f32 {X(2)}, {G(2)}, {P(72)}, {X(2)}
v_pk_fma_f32 {X(3)}, {G(3)}, {P(74)}, {X(3)}
s_add_u32 s25, s24, {X1}
s_add_u32 s26, s24, {H2F}""")
    for j in range(5): a(f"v_cvt_pk_bf16_f32 v{16+j}, v{28+2*j}, v{29+2*j}")
    a(f"""v_permlane32_swap_b32 v16, v17
v_permlane32_swap_b32 v18, v19
buffer_store_dwordx2 {P(16)}, v2, s[12:15], s25 offen sc1
buffer_store_dwordx2 {P(18)}, v2, s[12:15], s25 offen offset:512 sc1""")
    ln_rows(a, 28, 22)
    a(f"v_bfe_u32 v24, v0, 5, 1\nv_mul_u32_u24 v24, {H2F - X1 - 256}, v24\nv_add_u32 v24, v24, v2")
    for j in range(5): a(f"v_pk_mul_f32 {P(140+2*j)}, {P(140+2*j)}, {P(22)} op_sel_hi:[1,0]")
    for j in range(5): a(f"v_pk_fma_f32 {P(28+2*j)}, {P(28+2*j)}, {P(140+2*j)}, {P(130+2*j)}")
    for j in range(4): a(f"v_cvt_pk_bf16_f32 v{40+j}, v{28+2*j}, v{29+2*j}")
    a(f"""v_cvt_pk_bf16_f32 v21, v36, v37
v_permlane32_swap_b32 v40, v41
v_permlane32_swap_b32 v42, v43
v_permlane32_swap_b32 v20, v21
buffer_store_dwordx2 {P(40)}, v2, s[12:15], s26 offen sc1
buffer_store_dwordx2 {P(42)}, v2, s[12:15], s26 offen offset:512 sc1
buffer_store_dwordx2 {P(20)}, v24, s[12:15], s25 offen offset:1024 sc1""")
    ST('c')
    a(f"""v_mov_b32 v2, v1
s_lshr_b32 s26, s22, 2
s_and_b32 s27, s22, 3
v_lshrrev_b32 v3, 4, v2
v_bfe_u32 v4, v2, 2, 2
v_lshl_add_u32 v4, v3, 3, v4
v_mul_u32_u24 v4, 192, v4
v_and_b32 v5, 3, v2
v_lshl_add_u32 v4, v5, 3, v4
v_and_b32 v5, 1, v3
v_lshlrev_b32 v5, 5, v5
s_mul_i32 s28, s26, 96
v_add_u32 v4, s28, v4
s_cmp_eq_u32 s26, 0
s_cselect_b32 s29, 1, -1
v_mul_lo_u32 v5, v5, s29
v_add_u32 v6, v4, v5
v_sub_u32 v7, v4, v5
v_add_u32 v8, {4*WS_}, v6
v_add_u32 v9, {4*WS_}, v7
v_and_b32 v10, 15, v2
v_lshrrev_b32 v11, 1, v10
v_xor_b32 v11, v11, v3
v_lshlrev_b32 v11, 4, v11
v_lshl_add_u32 v11, v10, 7, v11
s_lshl_b32 s28, s27, 12
s_add_u32 s28, s28, {HB}
v_add_u32 v11, s28, v11
v_xor_b32 v12, 64, v11
s_load_dwordx2 s[60:61], s[0:1], 72
s_waitcnt vmcnt(0)""")
    ST('c')
    bar(a, 'W', 'd1')
    ACC = lambda mat, i, nt: 16 + 4*(6*nt + 3*mat + i)
    FA = lambda buf, mat, i: 64 + 32*buf + 4*(3*mat+i)
    FB = lambda buf, nt: 88 + 32*buf + 4*nt
    def reads(s):
        L = []; sl = s % 8
        for nt in range(2): L.append(f"ds_read_b128 {Q(FB(s & 1, nt))}, v{11 + (s & 1)} offset:{((s//2) % 4)*HS + 2048*nt}")
        for mat in range(2):
            for i in range(3):
                for x in range(2):
                    L.append(f"ds_read_b64_tr_b16 {P(FA(s & 1, mat, i) + 2*x)}, v{6 + (i & 1) + 2*(sl//4)} offset:{(sl % 4)*WS_ + mat*6144 + 4*x*192 + 32*i}")
        return L
    bar(a, 'W', 'B0')
    ST('d')
    for l in reads(0): a(l)
    for s in range(NST):
        a("s_waitcnt lgkmcnt(0)")
        if s & 1: bar(a, 'W', f'B{(s+1)//2}')
        R = reads(s+1) if s+1 < NST else []
        k = 0
        for mat in range(2):
            for i in range(3):
                for nt in range(2):
                    c = ACC(mat, i, nt)
                    a(f"v_mfma_f32_16x16x32_bf16 {Q(c)}, {Q(FA(s & 1, mat, i))}, {Q(FB(s & 1, nt))}, {'0' if s == 0 else Q(c)}")
                    for l in R[2*k:2*k+2]: a(l)
                    k += 1
    ST('d')
    kk = 2*0.7978845608028654*math.log2(math.e)
    a(f"""s_mov_b32 s30, {fh(-kk*0.044715)}
s_mov_b32 s31, {fh(-kk*0.044715)}
v_mov_b32 v10, {fh(-kk)}
v_mov_b32 v11, {fh(-kk)}
s_lshl_b32 s29, s50, 3
s_lshl_b32 s28, s27, 1
s_add_u32 s29, s29, s28
s_mul_i32 s29, s29, 49152
s_mul_i32 s28, s51, 3072
s_add_u32 s29, s29, s28
s_mul_i32 s28, s26, 1536
s_add_u32 s29, s29, s28
s_add_u32 s29, s29, {HIDF}
v_bfe_u32 v7, v2, 4, 1
v_mul_u32_u24 v7, 49152, v7
v_lshrrev_b32 v8, 5, v2
v_lshl_add_u32 v7, v8, 8, v7
v_and_b32 v8, 15, v2
v_lshl_add_u32 v7, v8, 4, v7""")
    for nt in range(2):
        Gt = ACC(0, 0, nt); U = ACC(1, 0, nt); T = 64 + 16*nt
        for i in range(0, 12, 2): a(f"v_pk_mul_f32 {P(T+i)}, {P(Gt+i)}, {P(Gt+i)}")
        for i in range(0, 12, 2): a(f"v_pk_fma_f32 {P(T+i)}, {P(T+i)}, s[30:31], {P(10)}")
        for i in range(0, 12, 2): a(f"v_pk_mul_f32 {P(T+i)}, {P(T+i)}, {P(Gt+i)}")
        for i in range(0, 12, 2): a(f"v_exp_f32 v{T+i}, v{T+i}\nv_exp_f32 v{T+i+1}, v{T+i+1}\nv_pk_mul_f32 {P(Gt+i)}, {P(Gt+i)}, {P(U+i)}")
        for i in range(0, 12, 2): a(f"v_pk_add_f32 {P(T+i)}, {P(T+i)}, 1.0 op_sel_hi:[1,0]")
        for i in range(12): a(f"v_rcp_f32 v{T+i}, v{T+i}")
        for i in range(0, 12, 2): a(f"v_pk_mul_f32 {P(Gt+i)}, {P(Gt+i)}, {P(T+i)}")
        for i in range(3):
            O = 96 + 4*i + 2*nt
            a(f"v_cvt_pk_bf16_f32 v{O}, v{Gt+4*i}, v{Gt+4*i+1}\nv_cvt_pk_bf16_f32 v{O+1}, v{Gt+4*i+2}, v{Gt+4*i+3}")
    for i in range(3):
        O = 96 + 4*i
        a(f"""v_permlane16_swap_b32 v{O}, v{O+2}
v_permlane16_swap_b32 v{O+1}, v{O+3}
buffer_store_dwordx4 {Q(O)}, v7, s[12:15], s29 offen offset:{512*i} sc1""")
    ST('d')
    a(f"""s_lshl_b32 s30, s50, 3
s_lshr_b32 s28, s51, 3
s_lshl_b32 s28, s28, 2
s_add_u32 s30, s30, s28
s_add_u32 s30, s30, s27
s_mul_i32 s29, s30, 49152
s_lshl_b32 s28, s26, 10
s_add_u32 s29, s29, s28
s_add_u32 s29, s29, {HIDF}
s_lshl_b32 s30, s30, 4
s_and_b32 s24, s51, 7
v_lshrrev_b32 v3, 2, v2
v_mul_u32_u24 v3, 160, v3
v_and_b32 v4, 3, v2
v_lshl_add_u32 v3, v4, 3, v3
s_mul_i32 s28, s26, 5120
v_add_u32 v3, s28, v3
v_add_u32 v4, {6*DW}, v3
v_add_u32 v5, {12*DW}, v3
v_lshlrev_b32 v6, 4, v2
v_and_b32 v12, 15, v2
v_lshrrev_b32 v13, 4, v2
v_mul_u32_u24 v8, 1280, v12
v_lshl_add_u32 v8, v13, 3, v8
s_mul_i32 s23, s30, 1280
s_mul_i32 s25, s24, 160
s_add_u32 s23, s23, s25
s_add_u32 s23, s23, {X1}
v_lshlrev_b32 v15, 4, v13
s_lshl_b32 s28, s25, 1
s_add_u32 s28, s28, 12800
s_lshl_b32 s21, s26, 6
s_add_u32 s23, s23, s21
s_lshl_b32 s21, s26, 7
s_add_u32 s28, s28, s21
s_waitcnt vmcnt(0)""")
    ST('d')
    if 'nohs' in OPT: bar(a, 'W', 'd2')
    a("s_mov_b32 s41, s29")
    srd(a, 16, 60, 2048*1280)
    AC2 = lambda mt: 16 + 4*mt
    FA2 = lambda buf, mt: 36 + 20*buf + 4*mt
    NB = OPT.get('nb', 10)
    FB2 = lambda s: 76 + 4*(s % NB)
    def reads2(s):
        p = WPOS(s)
        return [f"ds_read_b64_tr_b16 {P(FA2(s & 1, mt) + 2*x)}, v{3+p//6} offset:{(p % 6)*DW + x*2560 + 32*mt}" for mt in range(5) for x in range(2)]
    def ldb(s):
        a(f"buffer_load_dwordx4 {Q(FB2(s))}, v6, s[12:15], s29 offen offset:{2048*(s & 1)} sc1")
        if s & 1: a("s_add_u32 s29, s29, 4096")
    bar(a, 'W', 'C0')
    ST('d')
    nb = 0; nx = 0
    for s in range(NB-1): ldb(s); nb += 1
    for l in reads2(0): a(l)
    for s in range(NS2):
        f = FB2(s)
        if 'nohs' in OPT: a(f"s_waitcnt vmcnt({nb-s-1+nx}) lgkmcnt(0)\nKM_hr{s}:")
        else: a(f"""s_waitcnt vmcnt({nb-s-1+nx})
v_max3_u32 v9, v{f}, v{f+1}, v{f+2}
v_max_u32 v9, v9, v{f+3}
v_cmp_eq_u32 vcc, -1, v9
s_waitcnt lgkmcnt(0)
s_cmp_lg_u64 vcc, 0
s_cbranch_scc1 KM_hs{s}
KM_hr{s}:""")
        if s in CB: bar(a, 'W', f'C{s}')
        if nb < NS2: ldb(nb); nb += 1
        elif nx < 6:
            k = nx // 2
            a(f"buffer_load_dwordx2 {P(116+2*k)}, v8, s[12:15], s23 offen offset:{32*k} sc1")
            a(f"buffer_load_dwordx4 {Q(128+4*k)}, v15, s[12:15], s28 offen offset:{64*k} sc1")
            nx += 2
        R = reads2(s+1) if s+1 < NS2 else []
        for mt in range(5):
            c = AC2(mt)
            a(f"v_mfma_f32_16x16x32_bf16 {Q(c)}, {Q(FA2(s & 1, mt))}, {Q(FB2(s))}, {'0' if s == 0 else Q(c)}")
            for l in R[2*mt:2*mt+2]: a(l)
    RB = WPOS(10)*DW
    ST('d')
    a(f"""s_mul_i32 s28, s27, 5120
s_add_u32 s28, s28, {RB}
v_add_u32 v6, s28, v6
s_and_b32 s23, s30, 63
s_lshl_b32 s23, s23, 5
s_lshr_b32 s29, s30, 6
s_add_u32 s23, s23, s29
s_mul_i32 s23, s23, 1280
s_add_u32 s23, s23, s25
v_mul_u32_u24 v8, 40960, v12
v_lshl_add_u32 v8, v13, 3, v8
s_cmp_eq_u32 s26, 0
s_cbranch_scc1 KM_lo""")
    def fin(give, keep, base):
        for mt in give: a(f"ds_write_b128 v6, {Q(AC2(mt))} offset:{1024*mt}")
        a("s_waitcnt vmcnt(0)")
        for mt in keep:
            x = 116+2*(mt-base); r = 76+4*mt
            a(f"v_lshlrev_b32 v{r}, 16, v{x}\nv_and_b32 v{r+1}, 0xffff0000, v{x}\nv_lshlrev_b32 v{r+2}, 16, v{x+1}\nv_and_b32 v{r+3}, 0xffff0000, v{x+1}")
        a("s_waitcnt lgkmcnt(0)\ns_barrier")
        for mt in keep: a(f"ds_read_b128 {Q(36+4*mt)}, v6 offset:{1024*mt}")
        for n, mt in enumerate(keep):
            c = AC2(mt); x = 116+2*(mt-base); g = 128+4*(mt-base); r = 36+4*mt; o = 76+4*mt
            a(f"""s_waitcnt lgkmcnt({len(keep)-1-n})
v_pk_add_f32 {P(c)}, {P(c)}, {P(r)}
v_pk_add_f32 {P(c+2)}, {P(c+2)}, {P(r+2)}
v_pk_fma_f32 {P(o)}, {P(c)}, {P(g)}, {P(o)}
v_pk_fma_f32 {P(o+2)}, {P(c+2)}, {P(g+2)}, {P(o+2)}
v_cvt_pk_bf16_f32 v{x}, v{o}, v{o+1}
v_cvt_pk_bf16_f32 v{x+1}, v{o+2}, v{o+3}
buffer_store_dwordx2 {P(x)}, v8, s[16:19], s23 offen offset:{32*mt}""")
        a("@dump 12\ns_endpgm")
    nst = a.st.n
    fin([0,1,2], [3,4], 2)
    a.st.n = nst
    a("KM_lo:")
    fin([3,4], [0,1,2], 0)
    a.st.n = 1
    for s in range(NS2):
        f = FB2(s)
        a(f"""KM_hs{s}:
s_add_u32 s40, s41, {2048*s}
s_mov_b32 s46, 0x8000
KM_hl{s}:
s_mov_b64 exec, vcc
s_sleep 2
buffer_load_dwordx4 {Q(f)}, v6, s[12:15], s40 offen sc1
s_waitcnt vmcnt(0)
v_max3_u32 v9, v{f}, v{f+1}, v{f+2}
v_max_u32 v9, v9, v{f+3}
v_cmp_eq_u32 vcc, -1, v9
s_mov_b64 exec, -1
s_sub_u32 s46, s46, 1
s_cmp_eq_u32 s46, 0
s_cbranch_scc1 KM_hr{s}
s_cmp_lg_u64 vcc, 0
s_cbranch_scc1 KM_hl{s}
s_branch KM_hr{s}""")
    a(f"""KM_prod:
s_sub_u32 s47, s22, 8
s_waitcnt lgkmcnt(0)""")
    if OPT.get('wb'): a(f"s_add_u32 s6, s6, {OPT['wb']}\ns_addc_u32 s7, s7, 0")
    srd(a, 12, 6, WS_SIZE)
    srd(a, 16, 60, 256)
    a(f"""v_mov_b32 v60, 0
s_load_dwordx4 s[56:59], s[0:1], 32
s_load_dwordx2 s[4:5], s[0:1], 48
v_lshlrev_b32 v59, 4, v1
s_sub_u32 s53, s2, 80
s_xor_b32 s54, s47, 2
s_mul_i32 s54, s54, 192
s_sub_u32 s21, s2, 64
s_add_u32 s54, s54, s21
s_cmp_lt_u32 s2, 64
s_cselect_b32 s54, 999, s54
s_cmp_ge_u32 s47, 2
s_cbranch_scc1 KM_p_wp
s_cmp_lg_u32 s47, 0
s_cbranch_scc1 KM_p_pf
s_cmp_lg_u32 s2, 0
s_cbranch_scc1 KM_p_nn
s_memrealtime s[38:39]
s_waitcnt lgkmcnt(0)
s_or_b32 s38, s38, 1
v_mov_b32 v61, s38
s_mov_b64 exec, 1
buffer_store_dword v61, v60, s[16:19], 0 offen sc1
s_mov_b64 exec, -1
KM_p_nn:
KM_p_nc:""")
    spin(a, 'KM_pn', "buffer_load_dword v61, v60, s[16:19], 0 offen sc1", "v_cmp_eq_u32 vcc, 0, v61")
    a(f"""v_mov_b32 v62, {NON}
ds_write_b32 v62, v61
s_branch KM_p_no0
KM_p_pf:""")
    if 'tlb' in OPT:
        sh = OPT['tlb']
        a(f"""s_load_dwordx2 s[36:37], s[0:1], 72
v_lshlrev_b32 v86, {sh}, v1
v_add_u32 v86, {(1 << sh) - 128}, v86""")
        k = 92
        for o in range(0, WS_SIZE, 64 << sh):
            a(f"s_mov_b32 s23, {o}\nbuffer_load_dword v{k}, v86, s[12:15], s23 offen"); k += 1
        a("s_waitcnt lgkmcnt(0)\ns_mov_b32 s11, 0x00020000\nv_lshlrev_b32 v87, 16, v1")
        for p, sz in ((36, 2048*1280), (56, 640*3072), (58, 640*3072), (4, 1536*1280)):
            a(f"s_mov_b32 s8, s{p}\ns_mov_b32 s9, s{p+1}\ns_mov_b32 s10, {sz}\nbuffer_load_dword v{k}, v87, s[8:11], 0 offen"); k += 1
    if 'nocpf' not in OPT:
        a(f"""s_cmp_lt_u32 s2, {256 - OPT.get('ncp', 16)}
s_cbranch_scc1 KM_p_no0
s_getpc_b64 s[38:39]
KM_pc:
s_sub_u32 s38, s38, KM_pc-{NAME}
s_subb_u32 s39, s39, 0
v_lshlrev_b32 v86, 7, v1""")
        for k in range(4):
            a(f"""v_add_u32 v87, {8192*k}, v86
v_min_u32 v87, KM_end-{NAME}, v87
global_load_dword v{88+k}, v87, s[38:39]""")
    a(f"""KM_p_no0:
s_waitcnt lgkmcnt(0)""")
    bar(a, 'P', 'g1')
    a(f"""v_mov_b32 v62, {NON}
ds_read_b32 v61, v62
s_mul_i32 s23, s47, 5120
s_add_u32 s23, s23, {MODG}
s_add_u32 s21, s23, 4096
v_lshlrev_b32 v62, 4, v1
s_mul_i32 s24, s47, 2560
s_add_u32 s24, s24, {PB1}
v_lshlrev_b32 v63, 3, v1
v_add_u32 v63, s24, v63
s_lshl_b32 s25, s2, 7
s_add_u32 s25, s25, {GFL}
s_lshl_b32 s26, s47, 14
s_add_u32 s26, s26, {GFL}
s_add_u32 s27, s26, 8192
v_lshlrev_b32 v58, 7, v1
s_waitcnt lgkmcnt(0)
s_cmp_lg_u32 s47, 0
s_cbranch_scc1 KM_p_nf
s_mov_b64 exec, 1
buffer_store_dword v61, v60, s[12:15], s25 offen sc1
s_mov_b64 exec, -1
KM_p_nf:""")
    ld = "\n".join([f"buffer_load_dwordx4 {Q(8+4*q)}, v62, s[12:15], {'s23' if q < 4 else 's21'} offen offset:{1024*(q % 4)} sc1" for q in range(5)])
    cm = "v_cmp_ne_u32 vcc, v9, v61\n" + "\n".join([f"v_cmp_ne_u32 s[38:39], v{r}, v61\ns_or_b64 vcc, vcc, s[38:39]" for r in range(11, 28, 2)])
    spin(a, 'KM_pg', ld, cm)
    for q in range(5): a(f"v_mov_b32 v{9+4*q}, v{10+4*q}\nds_write_b64 v63, {P(8+4*q)} offset:{512*q}")
    a("s_waitcnt lgkmcnt(0)")
    ST('p')
    a("s_barrier")
    spin(a, 'KM_A_p', "buffer_load_dword v11, v58, s[12:15], s26 offen sc1\nbuffer_load_dword v12, v58, s[12:15], s27 offen sc1", "v_cmp_ne_u32 vcc, v11, v61\nv_cmp_ne_u32 s[38:39], v12, v61\ns_or_b64 vcc, vcc, s[38:39]")
    ST('p')
    a("s_branch KM_p_ag2")
    a(f"""KM_p_wp:
s_sub_u32 s21, s47, 2""")
    task_ids(a, 21)
    a(f"""s_cmp_gt_u32 s28, 320
s_cbranch_scc1 KM_p_nyf
s_lshl_b32 s28, s28, 13
s_add_u32 s28, s28, {YF}
s_add_u32 s29, s28, 4096
v_mov_b32 v64, -1
v_mov_b32 v65, -1
v_mov_b32 v66, -1
v_mov_b32 v67, -1""")
    for q in range(8): a(f"buffer_store_dwordx4 {Q(64)}, v59, s[12:15], {'s28' if q < 4 else 's29'} offen offset:{1024*(q % 4)} sc1")
    a(f"""KM_p_nyf:
s_mul_i32 s21, s21, 176
s_add_u32 s21, s21, s53
s_cmp_lt_u32 s2, 80
s_cbranch_scc1 KM_p_nowp""")
    TOUCH = f"""s_mov_b64 s[44:45], exec
s_mov_b64 exec, -1
s_waitcnt lgkmcnt(0)
s_cmp_eq_u32 s47, 2
s_cselect_b32 s16, s56, s58
s_cselect_b32 s17, s57, s59
s_mov_b32 s18, {640*3072}
s_mov_b32 s19, 0x00020000
s_mul_i32 s40, s2, 7680
v_and_b32 v84, 63, v0
v_min_u32 v84, 59, v84
v_lshlrev_b32 v84, 7, v84
buffer_load_dword v85, v84, s[16:19], s40 offen
s_mov_b64 exec, s[44:45]"""
    st_save = gen.STAMPS; gen.STAMPS = False
    tmp = Asm2(); tmp.st = a.st
    wprep(tmp, 21, 24, 26, 12, 'sc1')
    gen.STAMPS = st_save
    for ins in tmp.ins:
        if ins.kind == 'nop': continue
        if ins.text.strip() == 's_waitcnt vmcnt(0)':
            a("s_barrier\ns_waitcnt vmcnt(0)"); continue
        a(ins.text)
    a("s_branch KM_p_wd\nKM_p_nowp:\ns_barrier\nKM_p_wd:\nv_and_b32 v2, 63, v0\ns_waitcnt lgkmcnt(0)")
    bar(a, 'P', 'g2')
    a("KM_p_ag2:")
    a(f"""v_mov_b32 v62, {NON}
ds_read_b32 v61, v62
v_and_b32 v2, 63, v0
s_waitcnt vmcnt(0) lgkmcnt(0)
s_cmp_lt_u32 s47, 2
s_cselect_b32 s8, s56, s58
s_cselect_b32 s9, s57, s59
s_mov_b32 s10, {640*3072}
s_mov_b32 s11, 0x00020000""")
    bar(a, 'P', 'k1a')
    a("""s_or_b32 s23, s2, s47
s_cmp_lg_u32 s23, 0
s_cbranch_scc1 KM_p_nr
s_mov_b64 exec, 1
buffer_store_dword v60, v60, s[16:19], 0 offen sc1
s_mov_b64 exec, -1
KM_p_nr:""")
    srd(a, 16, 4, 1536*1280)
    a(f"""s_cmp_ge_u32 s54, 384
s_cbranch_scc1 KM_p_nwd
s_lshr_b32 s24, s54, 3
s_and_b32 s25, s54, 7
s_mul_i32 s55, s25, {1536*160}
s_mul_i32 s21, s24, 5120
s_add_u32 s55, s55, s21
s_add_u32 s55, s55, {WDT}
s_mul_i32 s24, s24, {32*1280}
s_mul_i32 s25, s25, 160
s_add_u32 s24, s24, s25""")
    for q in range(5):
        a(f"""v_add_u32 v12, {64*q}, v2
v_mul_u32_u24 v14, 52429, v12
v_lshrrev_b32 v14, 19, v14
v_mul_u32_u24 v15, 10, v14
v_sub_u32 v15, v12, v15
v_and_b32 v36, 3, v14
v_bfe_u32 v37, v14, 2, 2
v_lshl_add_u32 v36, v37, 3, v36
v_lshrrev_b32 v37, 4, v14
v_lshl_add_u32 v36, v37, 2, v36
v_mul_u32_u24 v36, 1280, v36
v_lshl_add_u32 v36, v15, 4, v36
buffer_load_dwordx4 {Q(64+4*q)}, v36, s[16:19], s24 offen""")
    a("KM_p_nwd:")
    def touch():
        a("s_cmp_lt_u32 s47, 2\ns_cbranch_scc1 KM_p_nt")
        a(TOUCH)
        a("KM_p_nt:")
    if OPT.get('tp', 'k1a') == 'k1a': touch()
    for q in range(3):
        a(f"""v_add_u32 v10, {64*q}, v2
v_mul_u32_u24 v11, 43691, v10
v_lshrrev_b32 v11, 19, v11
v_mul_u32_u24 v12, 12, v11
v_sub_u32 v12, v10, v12
v_lshrrev_b32 v13, 2, v11
v_and_b32 v13, 2, v13
v_xor_b32 v12, v12, v13
v_mul_u32_u24 v11, 3072, v11
v_lshl_add_u32 v11, v12, 4, v11
v_subrev_u32 v{50+q}, {1024*q}, v11""")
    for q in range(4):
        a(f"""v_lshrrev_b32 v10, 4, v2
v_add_u32 v10, {4*q}, v10
v_xor_b32 v10, v10, v2
v_and_b32 v10, 7, v10
v_lshrrev_b32 v11, 3, v2
v_mul_u32_u24 v11, 1280, v11
v_lshl_add_u32 v11, v10, 4, v11
v_add_u32 v{53+q}, {q*(10240-1024)}, v11""")
    a(f"""
s_and_b32 s26, s47, 1
s_mul_i32 s27, s26, {16*3072}
s_mul_i32 s28, s51, 192
s_add_u32 s27, s27, s28
s_mul_i32 s28, s47, 3072
s_lshl_b32 s29, s50, 2
s_add_u32 s29, s29, s47
s_mul_i32 s29, s29, 40960
s_add_u32 s29, s29, {H2F}
s_lshl_b32 s30, s47, 12
v_and_b32 v58, 15, v2
v_lshlrev_b32 v58, 7, v58
v_and_b32 v57, 3, v2
v_lshlrev_b32 v57, 7, v57
v_lshlrev_b32 v59, 4, v2
v_lshlrev_b32 v63, 7, v2""")
    def iw(s):
        a(f"s_add_u32 m0, s28, {(s % 8)*WS_}")
        for q in range(3): a(f"buffer_load_dwordx4 v{50+q}, s[8:11], s27 offen offset:{1024*q} sc1 lds")
        a(f"s_add_u32 s27, s27, {32*3072}")
    def ih(d):
        a(f"s_add_u32 m0, s30, {HB + (d % 4)*HS}")
        for q in range(4): a(f"buffer_load_dwordx4 v{53+q}, s[12:15], s33 offen offset:{1024*q} sc1 lds")
        a("s_add_u32 s33, s33, 128")
    bar(a, 'P', 'k2a')
    a("s_cmp_ge_u32 s54, 384\ns_cbranch_scc1 KM_p_nwd2\ns_add_u32 s54, s55, 4096\ns_waitcnt vmcnt(0)")
    for q in range(5): a(f"buffer_store_dwordx4 {Q(64+4*q)}, v59, s[12:15], {'s55' if q < 4 else 's54'} offen offset:{1024*(q % 4)} sc1")
    a("KM_p_nwd2:")
    a(f"""s_lshl_b32 s23, s47, 11
s_add_u32 m0, s23, {PB}
s_add_u32 s23, s23, 5120
buffer_load_dwordx4 v59, s[12:15], s23 offen sc1 lds
buffer_load_dwordx4 v59, s[12:15], s23 offen offset:1024 sc1 lds""")
    for s in range(0, 4): iw(s)
    a("s_waitcnt vmcnt(12)")
    bar(a, 'P', 'k2b')
    if OPT.get('tp', 'k1a') == 'k2b': touch()
    a(f"""s_lshl_b32 s23, s50, 3
s_lshl_b32 s24, s47, 1
s_add_u32 s23, s23, s24
s_mul_i32 s23, s23, 49152
s_mul_i32 s24, s51, 3072
s_add_u32 s23, s23, s24
s_add_u32 s23, s23, {HIDF}
s_add_u32 s24, s23, 49152
v_mov_b32 v88, -1
v_mov_b32 v89, -1
v_mov_b32 v90, -1
v_mov_b32 v91, -1""")
    def hpre():
        if 'nohs' in OPT: return
        for q in range(6): a(f"buffer_store_dwordx4 {Q(88)}, v59, s[12:15], {'s23' if q < 3 else 's24'} offen offset:{1024*(q % 3)} sc1")
    if OPT.get('hp', 'b1') == 'k2b': hpre()
    if OPT.get('wp', 'b1') == 'k2b':
        for s in range(4, 8): iw(s)
    bar(a, 'P', 'b1')
    if OPT.get('tp', 'k1a') == 'b1': touch()
    if OPT.get('hp', 'b1') == 'b1': hpre()
    if OPT.get('wp', 'b1') == 'b1':
        for s in range(4, 8): iw(s)
    bar(a, 'P', 'b2')
    bar(a, 'P', 'b3')
    if OPT.get('hp', 'b1') == 'b3': hpre()
    if OPT.get('wp', 'b1') == 'b3':
        for s in range(4, 8): iw(s)
    a(f"""s_lshl_b32 s48, s50, 4
s_add_u32 s48, s48, s51
s_lshl_b32 s48, s48, 7
s_add_u32 s48, s48, {FLG}
s_lshl_b32 s23, s50, 2
s_add_u32 s23, s23, s47
s_lshl_b32 s23, s23, 9
s_add_u32 s23, s23, {FLG}
s_and_b32 s24, s51, 7
s_mul_i32 s31, s47, 2560
s_mul_i32 s32, s24, {1536*160}
s_add_u32 s32, s32, s31
s_add_u32 s32, s32, {WDT}
s_waitcnt vmcnt(0)""")
    bar(a, 'P', 'd1')
    a(f"""s_cmp_lg_u32 s47, 0
s_cbranch_scc1 KM_na1
s_mov_b64 exec, 1
buffer_store_dword v61, v60, s[12:15], s48 offen sc1
s_mov_b64 exec, -1
KM_na1:""")
    cnt = []
    def iw2(s):
        a(f"""s_add_u32 m0, s31, {WPOS(s)*DW}
buffer_load_dwordx4 v59, s[12:15], s32 offen sc1 lds
buffer_load_dwordx4 v59, s[12:15], s32 offen offset:1024 sc1 lds
s_mov_b32 exec_hi, 0
buffer_load_dwordx4 v59, s[12:15], s32 offen offset:2048 sc1 lds
s_mov_b32 exec_hi, -1
s_add_u32 s32, s32, 10240""")
    def grp(d):
        ih(d); n = 4
        if d >= 4:
            iw(2*d); iw(2*d+1); n += 6
        cnt.append(n)
    a(f"v_add_u32 v62, s30, v59\nv_add_u32 v62, {HB}, v62")
    def hl(d, q): return f"buffer_load_dwordx4 {Q(96+16*d+4*q)}, v{53+q}, s[12:15], s29 offen offset:{1024*q+128*d} sc1"
    for d in range(4):
        for q in range(4): a(hl(d, q))
    nw2 = 0
    def hchk(d):
        R = 96+16*d
        a(f"s_mov_b32 s46, 0x8000\ns_waitcnt vmcnt({4*(3-d)})\ns_branch KM_hc{d}\nKM_hq{d}:\ns_sleep 2")
        for q in range(4): a(hl(d, q))
        a(f"s_waitcnt vmcnt(0)\nKM_hc{d}:")
        a(f"v_max3_u32 v12, v{R}, v{R+1}, v{R+2}")
        for k in range(3, 15, 2): a(f"v_max3_u32 v12, v12, v{R+k}, v{R+k+1}")
        a(f"""v_max_u32 v12, v12, v{R+15}
v_cmp_eq_u32 vcc, -1, v12
s_nop 1
s_and_b64 exec, exec, vcc
s_cbranch_scc0 KM_ho{d}
s_sub_u32 s46, s46, 1
s_cmp_lg_u32 s46, 0
s_cbranch_scc1 KM_hq{d}
KM_ho{d}:
s_mov_b64 exec, -1""")
        for q in range(4): a(f"ds_write_b128 v62, {Q(R+4*q)} offset:{d*HS+1024*q}")
    for d in range(10):
        if d == 0:
            hchk(0); a("s_waitcnt lgkmcnt(0)"); ST('p')
        elif d == 1:
            hchk(1); a("s_waitcnt lgkmcnt(0)")
        elif d >= 4:
            a(f"s_waitcnt vmcnt({sum(cnt[d-3:])})")
        bar(a, 'P', f'B{d}')
        if d == 1:
            iw(8); iw(9)
            a("s_waitcnt vmcnt(6)")
            hchk2 = True
            for dd in (2, 3):
                R = 96+16*dd
                a(f"s_mov_b32 s46, 0x8000\ns_branch KM_hc{dd}\nKM_hq{dd}:\ns_sleep 2")
                for q in range(4): a(hl(dd, q))
                a(f"s_waitcnt vmcnt(0)\nKM_hc{dd}:")
                a(f"v_max3_u32 v12, v{R}, v{R+1}, v{R+2}")
                for k in range(3, 15, 2): a(f"v_max3_u32 v12, v12, v{R+k}, v{R+k+1}")
                a(f"""v_max_u32 v12, v12, v{R+15}
v_cmp_eq_u32 vcc, -1, v12
s_nop 1
s_and_b64 exec, exec, vcc
s_cbranch_scc0 KM_ho{dd}
s_sub_u32 s46, s46, 1
s_cmp_lg_u32 s46, 0
s_cbranch_scc1 KM_hq{dd}
KM_ho{dd}:
s_mov_b64 exec, -1""")
                for q in range(4): a(f"ds_write_b128 v62, {Q(R+4*q)} offset:{dd*HS+1024*q}")
            a("s_waitcnt lgkmcnt(0)\ns_add_u32 s33, s29, 512")
        elif d == 2:
            spin(a, 'KM_p1', "buffer_load_dword v11, v57, s[12:15], s23 offen sc1", "v_cmp_ne_u32 vcc, v11, v61")
            ih(4); cnt.append(4)
            grp(5)
        elif d >= 3 and d+3 < 10: grp(d+3)
        if d >= 7:
            for _ in range(EARLY[d]): iw2(nw2); nw2 += 1
            cnt.append(3*EARLY[d])
    bar(a, 'P', 'B10')
    while nw2 < NWD: iw2(nw2); nw2 += 1
    if 'nohs' in OPT:
        a(f"""s_lshl_b32 s23, s50, 11
s_add_u32 s23, s23, {FLG + 32768}
s_add_u32 s48, s48, 32768""")
        bar(a, 'P', 'd2')
        a(f"""s_cmp_eq_u32 s47, 1
s_cbranch_scc0 KM_nb2
s_mov_b64 exec, 1
buffer_store_dword v61, v60, s[12:15], s48 offen sc1
s_mov_b64 exec, -1
KM_nb2:
s_cmp_lg_u32 s47, 0
s_cbranch_scc1 KM_na2""")
        spin(a, 'KM_p2', "buffer_load_dword v11, v58, s[12:15], s23 offen sc1", "v_cmp_ne_u32 vcc, v11, v61")
        a("KM_na2:")
    a("s_waitcnt vmcnt(0)")
    ST('p')
    bar(a, 'P', 'C0')
    pend = []
    for s in CB:
        need = [t for t in pend if t <= NEXTCB[s]]
        a(f"s_waitcnt vmcnt({3*(len(pend)-len(need))})")
        bar(a, 'P', f'C{s}')
        pend = [t for t in pend if t not in need]
        while nw2 < NS2 and nw2 - NWD <= s:
            iw2(nw2); pend.append(nw2); nw2 += 1
    a("@dump 12\nKM_end:\ns_endpgm")
    assert bar.seq['W'] == bar.seq['P'], (bar.seq['W'], bar.seq['P'])
    return kd_block(NAME, 168, 100)
if __name__ == '__main__':
    OPT = {}; out = 'mega.s'
    for x in sys.argv[1:]:
        if x.endswith('.s'): out = x
        elif x.startswith('st='): gen.STAMPS = True; OPT['st'] = x[3:]
        elif x.startswith('slp'): gen.SLP = int(x[3:])
        elif x.startswith('bk'): OPT['bk'] = int(x[2:])
        elif x.startswith('tp='): OPT['tp'] = x[3:]
        elif x.startswith('hp='): OPT['hp'] = x[3:]
        elif x == 'dbgdump': gen.DBGDUMP = True
        elif x.startswith('tlb='): OPT['tlb'] = int(x[4:])
        elif x.startswith('e0='): OPT['e0'] = int(x[3:])
        elif x.startswith('nb='): OPT['nb'] = int(x[3:])
        elif x.startswith('dx='): OPT['dx'] = int(x[3:])
        elif x.startswith('dy='): OPT['dy'] = int(x[3:])
        elif x.startswith('ncp='): OPT['ncp'] = int(x[4:])
        elif x.startswith('wb='): OPT['wb'] = int(x[3:]) << 20
        elif x.startswith('wp='): OPT['wp'] = x[3:]
        else: OPT[x] = 1
    a = Asm2()
    kd = km(a, OPT)
    hdr = open('adaLN_cond__spectral_gfnet__glu_gated_geglu__prompt.s.ref').read().split('\n')[:13]
    s = '\n'.join(hdr) + '\n; @launch grid=(256,1,1) block=(768,1,1) lds=163840\n'
    s += '.amdgcn_target "amdgcn-amd-amdhsa--gfx950"\n.text\n' + a.text() + '.section .rodata,"a"\n' + kd
    open(out, 'w').write(s)
```

```python
import sys, math
sys.path.insert(0,'work')
import gen
from gen import *
NAME = 'adaLN_cond__spectral_gfnet__glu_gated_geglu__prompt_kernel'
MODG = 0x4000
GFL = 0x20000
CNT = 0x8000
class Bar:
    def __init__(self): self.seq = {}
    def __call__(self, a, role, name):
        self.seq.setdefault(role, []).append(name); a("s_barrier")
def spin(a, name, load, cmp):
    a(f"s_mov_b32 s46, 0x8000\n{name}:")
    a(load); a("s_waitcnt vmcnt(0)"); a(cmp)
    a(f"""s_nop 1
s_cmp_eq_u64 vcc, 0
s_cbranch_scc1 {name}_ok
s_sleep {gen.SLP}
s_sub_u32 s46, s46, 1
s_cmp_lg_u32 s46, 0
s_cbranch_scc1 {name}
{name}_ok:""")
def addr_xf(a):
    a(f"""s_lshl_b32 s40, s22, 5
v_lshrrev_b32 v22, 1, v6
v_lshl_add_u32 v22, v22, 4, v5
v_add_u32 v22, s40, v22
v_add_u32 v23, 256, v8
v_and_b32 v24, 1, v6
v_lshlrev_b32 v24, 7, v24""")
    for src_, dst in ((22, 11), (23, 13)):
        a(f"""v_lshrrev_b32 v25, 3, v{src_}
v_lshl_add_u32 v25, v25, 16, v24
v_and_b32 v26, 7, v{src_}
v_lshl_add_u32 v{dst}, v26, 4, v25""")
def addr_yf(a):
    a(f"""s_lshl_b32 s40, s22, 5
v_lshrrev_b32 v22, 1, v6
v_lshl_add_u32 v22, v22, 4, v5
v_add_u32 v22, s40, v22
v_add_u32 v23, 256, v8
v_and_b32 v24, 1, v6
v_lshlrev_b32 v24, 8, v24
v_lshl_add_u32 v11, v22, 13, v24
v_lshl_add_u32 v13, v23, 13, v24""")
def gather2(a, name, ld0, ld1, r0, r1, t, pre=False, dly=0):
    a(f"""s_mov_b32 s46, 0x8000
s_waitcnt vmcnt(0)
s_sleep {dly}
{f's_branch {name}_chk' if pre else ''}
{name}:
{ld0}
{ld1}
{name}_chk:
s_waitcnt vmcnt(0)
v_max3_u32 v{t}, v{r0}, v{r0+1}, v{r0+2}
v_max3_u32 v{t+1}, v{r1}, v{r1+1}, v{r1+2}
v_max3_u32 v{t}, v{t}, v{r0+3}, v{r1+3}
v_max_u32 v{t}, v{t}, v{t+1}
v_cmp_eq_u32 vcc, -1, v{t}
s_nop 1
s_and_b64 exec, exec, vcc
s_cbranch_scc0 {name}_ok
s_sleep 2
s_sub_u32 s46, s46, 1
s_cmp_lg_u32 s46, 0
s_cbranch_scc1 {name}
{name}_ok:
s_mov_b64 exec, -1""")
def task_ids(a, slot):
    a(f"""s_lshl_b32 s28, s{slot}, 2
s_lshr_b32 s29, s2, 6
s_add_u32 s28, s28, s29
s_lshl_b32 s28, s28, 3
s_and_b32 s29, s2, 7
s_add_u32 s28, s28, s29
s_lshl_b32 s41, s28, 16
s_lshl_b32 s28, s28, 3
s_bfe_u32 s29, s2, 0x30003
s_add_u32 s28, s28, s29
s_lshl_b32 s29, s29, 4
s_add_u32 s41, s41, s29""")
def km(a, OPT):
    bar = Bar()
    a(f".globl {NAME}\n.p2align 8\n.type {NAME},@function\n{NAME}:")
    a.st = Stamper(a, 3)
    ST = lambda tag: a("@stamp") if tag in OPT.get('st', '') else None
    R2 = 98304
    GP = R2; NON = R2 + 1536; PB1 = R2 + 2048; Z1 = R2 + 8192; K2B = R2 + 24576
    TB = R2; ZB = R2 + 12288; ZR = 528; ZC = 8*ZR; PB = R2 + 57344
    NST = 20; WS_ = 12288; HB = R2; HS = 16384
    NS2 = 24; DW = 10240; NWD = 16
    ORDER = [5, 6, 13,  7, 8, 14, 15,  0, 1, 9, 10,  2, 3, 4, 11, 12]
    EARLY = {7: 3, 8: 4, 9: 4} if 'e0' not in OPT else ({7: 0, 8: 0, 9: 0} if OPT['e0'] == 0 else {7: 0, 8: 4, 9: 6})
    WPOS = lambda s: ORDER[s % NWD]
    CB = [3, 7, 15, 19]; NEXTCB = {3: 7, 7: 15, 15: 19, 19: 23}
    XR = 114
    a(f"""
s_cmp_ge_u32 s2, 256
s_cbranch_scc1 KM_end
@stamp
s_load_dwordx2 s[4:5], s[0:1], 0
s_load_dwordx2 s[6:7], s[0:1], 88
s_load_dwordx4 s[56:59], s[0:1], 56
s_load_dwordx4 s[24:27], s[0:1], 8
s_load_dwordx2 s[60:61], s[0:1], 80
s_and_b32 s50, s2, 7
s_lshr_b32 s51, s2, 3
s_mul_i32 s52, s50, 10
s_add_u32 s52, s52, s51
s_mul_i32 s21, s50, 20
s_add_u32 s21, s21, s51
s_add_u32 s21, s21, 70
s_cmp_lt_u32 s2, 80
s_cselect_b32 s52, s52, s21
""")
    mp = OPT.get('map', '1')
    if mp == '1':
        a("s_lshl_b32 s50, s50, 1\ns_lshr_b32 s21, s51, 4\ns_add_u32 s50, s50, s21\ns_and_b32 s51, s51, 15\ns_mov_b32 s62, s51")
    elif mp[0] == '2':
        a("""s_and_b32 s21, s50, 1
s_lshr_b32 s50, s50, 1
s_lshl_b32 s50, s50, 2
s_lshr_b32 s23, s51, 3
s_add_u32 s50, s50, s23
s_and_b32 s51, s51, 7
s_lshl_b32 s23, s21, 3
s_add_u32 s51, s51, s23
s_mov_b32 s62, s51""")
        if mp == '2b':
            a("""s_and_b32 s62, s51, 3
s_lshl_b32 s23, s21, 2
s_add_u32 s62, s62, s23
s_bfe_u32 s23, s51, 0x10002
s_lshl_b32 s23, s23, 3
s_add_u32 s62, s62, s23""")
    elif mp[0] == '4':
        a("""s_and_b32 s21, s50, 3
s_lshr_b32 s50, s50, 2
s_lshl_b32 s50, s50, 3
s_lshr_b32 s23, s51, 2
s_add_u32 s50, s50, s23
s_and_b32 s51, s51, 3
s_lshl_b32 s23, s21, 2
s_add_u32 s51, s51, s23
s_mov_b32 s62, s51""")
    a(f"""v_lshrrev_b32 v4, 6, v0
v_and_b32 v1, 63, v0
v_readfirstlane_b32 s22, v4
s_lshl_b32 s3, s50, 1
s_lshr_b32 s21, s51, 3
s_add_u32 s3, s3, s21
s_and_b32 s20, s51, 7
s_cmp_ge_u32 s22, 8
s_cbranch_scc1 KM_prod
v_and_b32 v3, 31, v0
v_lshlrev_b32 v2, 3, v3
v_bfe_u32 v4, v0, 5, 1
v_lshl_add_u32 v2, v4, 8, v2
v_lshlrev_b32 v3, 2, v3
v_lshl_add_u32 v3, v4, 1, v3
s_lshl_b32 s21, s20, 3
s_add_u32 s21, s21, s22
s_lshl_b32 s21, s21, 5
s_add_u32 s21, s21, s3
s_mul_i32 s21, s21, 1280
s_lshl_b32 s23, s52, 5
v_lshrrev_b32 v144, 1, v0
v_and_b32 v145, 1, v0
v_mul_u32_u24 v146, 7680, v144
v_lshl_add_u32 v146, v145, 4, v146
v_add_u32 v146, s23, v146
v_lshlrev_b32 v147, 1, v144
s_cmp_lt_u32 s2, 240
s_cselect_b32 s49, 5, 0
s_waitcnt lgkmcnt(0)
""")
    if OPT.get('wb'): a(f"s_add_u32 s6, s6, {OPT['wb']}\ns_addc_u32 s7, s7, 0")
    srd(a, 12, 6, WS_SIZE)
    srd(a, 8, 56, 1280)
    srd(a, 16, 58, 640*3840*2)
    NR = 4
    def gloads(tag, cond):
        a(f"s_cmp_ge_u32 s22, s49\ns_cbranch_scc1 KM_nog1{tag}")
        for i in range(NR): a(f"buffer_load_short_d16_hi v{136+i}, v147, s[8:11], 0 offen offset:{320*i}")
        a("s_mov_b32 s23, 0")
        for i in range(NR):
            a(f"buffer_load_dwordx4 {Q(120+4*i)}, v146, s[16:19], s23 offen")
            if i < NR-1: a(f"s_add_u32 s23, s23, {160*7680}")
        a(f"KM_nog1{tag}:")
    srd(a, 24, 4, 2048*1280)
    for k in range(3): a(f"buffer_load_dwordx2 {P(XR+2*k)}, v2, s[24:27], s21 offen offset:{512*k}")
    gloads('a', 0)
    a("v_and_b32 v5, 15, v0\nv_bfe_u32 v6, v0, 4, 2")
    col_slots(a, 22, 5, 6, 8, 22)
    addr_xf(a)
    a(f"""s_lshl_b32 s38, s3, 11
s_lshl_b32 s21, s20, 8
s_add_u32 s38, s38, s21
s_add_u32 s38, s38, {XF}
v_mov_b32 v28, -1
v_mov_b32 v29, -1
v_mov_b32 v30, -1
v_mov_b32 v31, -1
buffer_store_dwordx4 {Q(28)}, v11, s[12:15], s38 offen sc1
s_mov_b32 exec_lo, 0x00ff00ff
s_mov_b32 exec_hi, 0
buffer_store_dwordx4 {Q(28)}, v13, s[12:15], s38 offen sc1
s_mov_b64 exec, -1
s_lshl_b32 s38, s20, 3
s_add_u32 s38, s38, s22
s_lshl_b32 s21, s3, 6
s_add_u32 s38, s38, s21
s_mul_i32 s38, s38, 1280
s_add_u32 s38, s38, {H2F}
buffer_store_dwordx2 {P(28)}, v2, s[12:15], s38 offen sc1""")
    w5_consts(a, 88, 22, -1.0)
    a(f"""
v_cvt_f32_u32 v22, v8
v_mul_f32 v22, {fh(1/128)}, v22
v_cvt_f32_u32 v23, v6
v_mul_f32 v23, {fh(8.0)}, v23
v_and_b32 v24, {fh(0.25)}, v9
v_fma_f32 v23, v23, v22, -v24
v_mul_f32 v24, {fh(25.0)}, v22
""")
    for t in range(4):
        for jj in range(4):
            a(f"""v_cos_f32 v25, v23
v_add_f32 v23, v23, v22
v_cos_f32 v26, v23
v_add_f32 v23, v23, v{24 if jj == 3 else 22}
v_cvt_pk_bf16_f32 v{96+4*t+jj}, v25, v26""")
    a(f"""
v_lshrrev_b32 v22, 3, v3
v_xor_b32 v22, s22, v22
v_lshlrev_b32 v22, 4, v22
v_and_b32 v23, 7, v3
v_lshl_add_u32 v22, v23, 1, v22
s_lshl_b32 s23, s22, 8
s_add_u32 s23, s23, {Z1}
v_add_u32 v14, s23, v22
v_xor_b32 v15, {2048+128}, v14
v_lshlrev_b32 v7, 2, v3
v_add_u32 v7, {PB1}, v7
v_xor_b32 v22, v6, v5
""")
    for t in range(4):
        a(f"""v_xor_b32 v23, {4*t}, v22
v_lshlrev_b32 v23, 4, v23
v_lshl_add_u32 v23, v5, 8, v23
v_add_u32 v{16+t}, {Z1}, v23""")
    r5_sconsts(a)
    a("s_waitcnt vmcnt(11)\ns_cmp_lt_u32 s22, s49\ns_cbranch_scc1 KM_x0\ns_waitcnt vmcnt(3)\nKM_x0:")
    unpack_x(a, XR, 60)
    ln_rows(a, 60, 70)
    a(f"s_cmp_ge_u32 s22, s49\ns_cbranch_scc1 KM_nog2\ns_waitcnt vmcnt({NR+3})")
    C = 136; T = 140
    for i in range(NR): a(f"v_mul_f32 v{T+i}, {fh(-math.log2(math.e))}, v{C+i}")
    for i in range(NR): a(f"v_exp_f32 v{T+i}, v{T+i}")
    for i in range(NR): a(f"v_add_f32 v{T+i}, 1.0, v{T+i}")
    for i in range(NR): a(f"v_rcp_f32 v{T+i}, v{T+i}")
    for i in range(NR): a(f"v_mul_f32 v{C+i}, v{C+i}, v{T+i}")
    for i in range(NR): a(f"v_cvt_pk_bf16_f32 v{C+i}, v{C+i}, v{C+i}")
    for i in range(NR): a(f"v_and_b32 v{48+2*i}, 0xffff0000, v{C+i}")
    a(f"""v_lshrrev_b32 v22, 4, v0
v_lshlrev_b32 v23, 6, v22
v_lshl_add_u32 v23, v145, 5, v23
v_add_u32 v23, {GP}, v23""")
    for i in range(NR):
        a(f"s_waitcnt vmcnt({NR-1-i+3})")
        for j in range(4): a(f"v_lshlrev_b32 v{32+2*j}, 16, v{120+4*i+j}\nv_and_b32 v{33+2*j}, 0xffff0000, v{120+4*i+j}")
        for j in range(4):
            if i == 0: a(f"v_pk_mul_f32 {P(40+2*j)}, {P(32+2*j)}, {P(48)} op_sel_hi:[1,0]")
            else: a(f"v_pk_fma_f32 {P(40+2*j)}, {P(32+2*j)}, {P(48+2*i)}, {P(40+2*j)} op_sel_hi:[1,0,1]")
    for mode in ('quad_perm:[2,3,0,1]', 'row_ror:4', 'row_ror:8'):
        for j in range(8): a(f"v_add_f32_dpp v{40+j}, v{40+j}, v{40+j} {mode} {DPP}")
    a(f"""v_cmp_gt_u32 vcc, 2, v5
s_and_saveexec_b64 s[38:39], vcc
ds_write_b128 v23, {Q(40)}
ds_write_b128 v23, {Q(44)} offset:16
s_mov_b64 exec, s[38:39]
KM_nog2:
s_waitcnt vmcnt(0) lgkmcnt(0)""")
    ST('a')
    bar(a, 'W', 'g1')
    a(f"""v_mov_b32 v22, {NON}
ds_read_b32 v27, v22
s_cmp_lg_u32 s22, 0
s_cbranch_scc1 KM_nog3
s_cmp_eq_u32 s49, 0
s_cbranch_scc1 KM_nog3
v_mul_u32_u24 v23, 320, v6
v_lshl_add_u32 v23, v5, 2, v23
v_add_u32 v23, {GP}, v23
ds_read_b32 v40, v23
ds_read_b32 v41, v23 offset:64
ds_read_b32 v42, v23 offset:128
ds_read_b32 v43, v23 offset:192
ds_read_b32 v44, v23 offset:256
s_sub_u32 s23, s52, 40
s_cmp_lt_u32 s23, 40
s_cselect_b32 s21, 1.0, 0
s_sub_u32 s23, s52, 160
s_cmp_lt_u32 s23, 40
s_cselect_b32 s21, 1.0, s21
s_waitcnt lgkmcnt(0)
v_add_f32 v40, v40, v41
v_add_f32 v42, v42, v43
v_add_f32 v40, v40, v44
v_add_f32 v40, v40, v42
v_mov_b32 v41, v40
v_permlane16_swap_b32 v40, v41
v_add_f32 v40, v40, v41
v_mov_b32 v41, v40
v_permlane32_swap_b32 v40, v41
v_add_f32 v40, v40, v41
v_cvt_pk_bf16_f32 v40, v40, v40
v_and_b32 v40, 0xffff0000, v40
v_add_f32 v40, s21, v40
v_cvt_pk_bf16_f32 v40, v40, v40
v_and_b32 v40, 0xffff0000, v40
v_mov_b32 v41, v27
s_mov_b64 exec, 0xffff
s_cmp_lt_u32 s52, 80
s_cbranch_scc1 KM_gran
s_lshl_b32 s23, s52, 6
v_lshlrev_b32 v23, 2, v1
buffer_store_dword v40, v23, s[12:15], s23 offen sc1
s_branch KM_pub
KM_gran:
s_lshl_b32 s23, s52, 7
s_add_u32 s23, s23, {MODG}
v_lshlrev_b32 v23, 3, v1
buffer_store_dwordx2 {P(40)}, v23, s[12:15], s23 offen sc1
KM_pub:
s_mov_b64 exec, -1
KM_nog3:""")
    M = lambda t: 120+6*t
    N = lambda x, y: 144+6*(2*x+y)
    def gen_(R, cur, step, last, t0=12):
        for hh in range(2):
            a(f"""v_cos_f32 v{t0}, v{cur}
v_sin_f32 v{t0+1}, v{cur}
v_add_f32 v{cur}, v{cur}, v{step}
v_cos_f32 v{t0+2}, v{cur}
v_sin_f32 v{t0+3}, v{cur}
v_add_f32 v{cur}, v{cur}, v{last if hh else step}
v_cvt_pk_bf16_f32 v{R+2+hh}, v{t0}, v{t0+2}
v_cvt_pk_bf16_f32 v{R+hh}, -v{t0+1}, -v{t0+3}
v_cvt_pk_bf16_f32 v{R+4+hh}, v{t0+1}, v{t0+3}""")
    a(f"""v_bfe_u32 v46, v0, 6, 2
v_lshl_add_u32 v46, v46, 4, v5
v_cvt_f32_u32 v46, v46
v_cvt_f32_u32 v47, v6
v_cvt_f32_u32 v48, v5
v_mul_f32 v47, 4.0, v47
v_mul_f32 v49, {fh(1/64)}, v46
v_mul_f32 v50, v47, v49
v_mul_f32 v51, {fh(13.0)}, v49""")
    for t in range(4): gen_(M(t), 50, 49, 51, 52)
    for x in range(2):
        a(f"v_add_f32 v49, {fh(16.0*x)}, v48\nv_mul_f32 v49, {fh(1/32)}, v49\nv_mul_f32 v50, v47, v49\nv_mul_f32 v51, {fh(13.0)}, v49")
        for y in range(2): gen_(N(x, y), 50, 49, 51, 52)
    a(f"""s_lshl_b32 s23, s3, 11
s_lshl_b32 s21, s20, 8
s_add_u32 s23, s23, s21
s_add_u32 s23, s23, {XF}""")
    ST('a')
    bar(a, 'W', 'g2')
    ST('a')
    for j in range(5): a(f"ds_read_b64 {P(40+2*j)}, v7 offset:{2560+512*j}\nds_read_b64 {P(50+2*j)}, v7 offset:{512*j}")
    for j in range(5): a(f"v_pk_mul_f32 {P(28+2*j)}, {P(60+2*j)}, {P(70)} op_sel_hi:[1,0]")
    a("s_waitcnt lgkmcnt(0)")
    for j in range(5): a(f"v_pk_fma_f32 {P(28+2*j)}, {P(28+2*j)}, {P(40+2*j)}, {P(50+2*j)}")
    h = {(3*j) % 5: 28+2*j for j in range(5)}
    t1,t2,t3,t4 = 40,42,44,46; z0,p1,q1,p2,q2 = 48,50,52,54,56
    a(f"""v_pk_add_f32 {P(t1)}, {P(h[1])}, {P(h[4])}
v_pk_add_f32 {P(t2)}, {P(h[2])}, {P(h[3])}
v_pk_add_f32 {P(t3)}, {P(h[1])}, {P(h[4])} neg_lo:[0,1] neg_hi:[0,1]
v_pk_add_f32 {P(t4)}, {P(h[2])}, {P(h[3])} neg_lo:[0,1] neg_hi:[0,1]
v_pk_add_f32 {P(z0)}, {P(h[0])}, {P(t1)}
v_pk_fma_f32 {P(p1)}, s[30:31], {P(t1)}, {P(h[0])}
v_pk_fma_f32 {P(p2)}, s[32:33], {P(t1)}, {P(h[0])}
v_pk_mul_f32 {P(q1)}, s[34:35], {P(t3)}
v_pk_mul_f32 {P(q2)}, s[36:37], {P(t3)}
v_pk_add_f32 {P(z0)}, {P(z0)}, {P(t2)}
v_pk_fma_f32 {P(p1)}, s[32:33], {P(t2)}, {P(p1)}
v_pk_fma_f32 {P(p2)}, s[30:31], {P(t2)}, {P(p2)}
v_pk_fma_f32 {P(q1)}, s[36:37], {P(t4)}, {P(q1)}
v_pk_fma_f32 {P(q2)}, s[34:35], {P(t4)}, {P(q2)} neg_lo:[0,1,0] neg_hi:[0,1,0]
v_cvt_pk_bf16_f32 v22, v{z0}, v{z0+1}
ds_write_b32 v14, v22 offset:8192""")
    for k, (p, q) in enumerate(((p1, q1), (p2, q2))):
        c, s = 88+4*k, 90+4*k; r, im = 28+4*k, 30+4*k
        a(f"""v_pk_mul_f32 {P(r)}, {P(p)}, {P(c)}
v_pk_mul_f32 {P(im)}, {P(p)}, {P(s)}
v_pk_fma_f32 {P(r)}, {P(q)}, {P(s)}, {P(r)}
v_pk_fma_f32 {P(im)}, {P(q)}, {P(c)}, {P(im)} neg_lo:[1,0,0] neg_hi:[1,0,0]
v_cvt_pk_bf16_f32 v{23+2*k}, v{r}, v{r+1}
v_cvt_pk_bf16_f32 v{24+2*k}, v{im}, v{im+1}
ds_write_b32 v{14+k}, v{23+2*k}
ds_write_b32 v{14+k}, v{24+2*k} offset:4096""")
    a("s_waitcnt vmcnt(0) lgkmcnt(0)")
    bar(a, 'W', 'k1a')
    for T in range(3):
        for t in range(4): a(f"ds_read_b128 {Q(28+16*T+4*t)}, v{16+t} offset:{4096*T}")
    n = 12
    for T in range(3):
        for t in range(4):
            n -= 1
            a(f"s_waitcnt lgkmcnt({n})")
            a(f"v_mfma_f32_16x16x32_bf16 {Q(76+4*T)}, {Q(28+16*T+4*t)}, {Q(96+4*t)}, {'0' if t == 0 else Q(76+4*T)}")
    a(f"""v_and_b32 v22, 0x80008000, v9
v_and_b32 v23, v9, v12
v_bfi_b32 v24, v9, v22, v12
v_pk_mul_f32 {P(28)}, {P(76)}, {P(10)} op_sel_hi:[1,0]
v_pk_mul_f32 {P(30)}, {P(78)}, {P(10)} op_sel_hi:[1,0]
v_pk_mul_f32 {P(32)}, {P(80)}, {P(10)} op_sel_hi:[1,0]
v_pk_mul_f32 {P(34)}, {P(82)}, {P(10)} op_sel_hi:[1,0]""")
    for i in range(4):
        a(f"v_add_f32_dpp v{76+i}, v{32+i}, v{76+i} row_ror:8 {DPP}")
        a(f"v_subrev_f32_dpp v{80+i}, v{28+i}, v{80+i} row_ror:8 {DPP}")
    a(f"""v_cvt_pk_bf16_f32 v36, v76, v77
v_cvt_pk_bf16_f32 v37, v78, v79
v_cvt_pk_bf16_f32 v38, v80, v81
v_cvt_pk_bf16_f32 v39, v82, v83
v_cvt_pk_bf16_f32 v44, v84, v85
v_cvt_pk_bf16_f32 v45, v86, v87
v_xor_b32 v36, v36, v23
v_xor_b32 v37, v37, v23
v_xor_b32 v38, v38, v24
v_xor_b32 v39, v39, v24
v_xor_b32 v44, v44, v22
v_xor_b32 v45, v45, v22
v_cndmask_b32 v40, v36, v38, s[42:43]
v_cndmask_b32 v41, v37, v39, s[42:43]
v_cndmask_b32 v42, v38, v36, s[42:43]
v_cndmask_b32 v43, v39, v37, s[42:43]
buffer_store_dwordx4 {Q(40)}, v11, s[12:15], s23 offen sc1
v_mov_b32_dpp v46, v44 row_ror:8 {DPP}
v_mov_b32_dpp v47, v45 row_ror:8 {DPP}
s_mov_b32 exec_lo, 0x00ff00ff
s_mov_b32 exec_hi, 0
buffer_store_dwordx4 {Q(44)}, v13, s[12:15], s23 offen sc1
s_mov_b64 exec, -1""")
    ST('a')
    a(f"""s_lshr_b32 s26, s22, 2
s_and_b32 s27, s22, 3
""")
    task_ids(a, 26)
    a(f"""s_cmp_gt_u32 s28, 320
s_cbranch_scc1 KM_k2skip
s_cmp_eq_u32 s28, 320
s_cselect_b32 s41, {32*65536}, s41
s_lshr_b32 s21, s28, 5
s_lshl_b32 s21, s21, 3
s_and_b32 s23, s28, 7
s_add_u32 s21, s21, s23
s_sub_u32 s23, 128, s21
s_cmp_eq_u32 s21, 0
s_cselect_b32 s23, 64, s23
s_bitcmp1_b32 s28, 3
s_cselect_b32 s21, s23, s21
s_mul_i32 s21, s21, 5
s_bfe_u32 s23, s28, 0x10004
s_lshl_b32 s23, s23, 7
s_add_u32 s21, s21, s23
s_add_u32 s21, s21, 128
s_sub_u32 s23, s21, 640
s_min_u32 s21, s21, s23
s_sub_u32 s23, 640, s21
s_min_u32 s21, s21, s23
s_sub_u32 s23, s28, 256
s_mul_i32 s23, s23, 5
s_cmp_ge_u32 s28, 256
s_cselect_b32 s40, s23, s21
v_and_b32 v1, 15, v0
v_bfe_u32 v2, v0, 4, 2
v_bfe_u32 v3, v0, 6, 2
v_and_b32 v9, 63, v0
v_lshl_add_u32 v4, v3, 2, v2
v_xor_b32 v10, v4, v1
v_lshl_add_u32 v4, v4, 4, v10
v_lshlrev_b32 v4, 7, v4
v_lshrrev_b32 v5, 1, v1
v_and_b32 v6, 1, v1
v_lshl_add_u32 v5, v6, 3, v5
v_lshl_add_u32 v5, v2, 4, v5
v_lshlrev_b32 v5, 4, v5
v_lshl_add_u32 v5, v3, 11, v5
s_add_u32 s21, s41, {XF}
s_add_u32 s23, s21, 32768
s_lshl_b32 s29, s28, 13
s_lshl_b32 s48, s26, 14
s_add_u32 s48, s48, {K2B}
v_lshl_add_u32 v6, v3, 4, v1
v_cvt_f32_u32 v6, v6
v_cvt_f32_u32 v7, v2
v_cvt_f32_u32 v8, v1
v_mul_f32 v7, 4.0, v7
""")
    a(f"v_mul_f32 v16, {fh(-1/2048)}, v6\nv_mul_f32 v10, v7, v16\nv_mul_f32 v11, {fh(13.0)}, v16")
    for k in range(8):
        a(f"v_cos_f32 v{56+k}, v10\nv_sin_f32 v{64+k}, v10")
        if k < 7: a(f"v_add_f32 v10, v10, v{11 if k == 3 else 16}")
    if 'gx1' in OPT:
        for l in (f"buffer_load_dwordx4 {Q(24)}, v4, s[12:15], s21 offen sc1", f"buffer_load_dwordx4 {Q(28)}, v4, s[12:15], s23 offen sc1"): a(l)
    a(f"""s_lshl_b32 s24, s27, 4
v_cvt_f32_u32 v12, s24
v_add_f32 v12, v12, v7
s_mov_b32 s38, {fh(2.0/(2048*640))}
s_cmp_eq_u32 s28, 256
s_cselect_b32 s38, {fh(1.0/(2048*640))}, s38
s_cmp_eq_u32 s28, 320
s_cselect_b32 s38, {fh(1.0/(2048*640))}, s38
s_mov_b32 s39, s38""")
    for nt in range(2):
        a(f"v_add_f32 v16, {fh(16.0*nt)}, v8\nv_mul_f32 v16, {fh(1/2048)}, v16\nv_mul_f32 v10, v12, v16")
        for i in range(4):
            k = 4*nt+i
            a(f"v_cos_f32 v{72+k}, v10\nv_sin_f32 v{80+k}, v10")
            if i < 3: a("v_add_f32 v10, v10, v16")
    for k in range(8): a(f"v_pk_mul_f32 {P(72+2*k)}, s[38:39], {P(72+2*k)}")
    a(f"""v_xor_b32 v10, v2, v1
v_lshlrev_b32 v10, 4, v10
v_lshl_add_u32 v10, v1, 8, v10
v_add_u32 v10, s48, v10
v_xor_b32 v11, 64, v10
v_xor_b32 v12, 128, v10
v_xor_b32 v13, 192, v10
v_lshlrev_b32 v7, 4, v9
v_add_u32 v7, s48, v7
s_lshl_b32 s24, s27, 10
v_add_u32 v6, s24, v7
v_lshlrev_b32 v8, 4, v9
v_lshl_add_u32 v8, v3, 11, v8
s_add_u32 s24, s24, s48
s_lshl_b32 s25, s40, 13
s_add_u32 s25, s25, {WP}
s_mov_b32 m0, s24""")
    ST('b')
    gather2(a, 'KM_gx', f"buffer_load_dwordx4 {Q(24)}, v4, s[12:15], s21 offen sc1", f"buffer_load_dwordx4 {Q(28)}, v4, s[12:15], s23 offen sc1", 24, 28, 32, pre=('gx1' in OPT), dly=OPT.get('dx', 0))
    a(f"""ds_write_b128 v6, {Q(24)}
ds_write_b128 v6, {Q(28)} offset:4096
s_add_u32 s21, s29, {YF}
s_add_u32 s23, s21, 1024
s_waitcnt lgkmcnt(0)""")
    bar(a, 'W', 'k2a')
    ST('b')
    a(f"""buffer_load_dwordx4 v[48:51], v5, s[12:15], s25 offen sc1
buffer_load_dwordx4 v[52:55], v5, s[12:15], s25 offen offset:1024 sc1""")
    D = lambda mt, t: 16+16*mt+4*t
    for t in range(4):
        for mt in range(2): a(f"ds_read_b128 {Q(D(mt,t))}, v{10+t} offset:{4096*mt}")
    def mf(d, A, B, first): a(f"v_mfma_f32_16x16x32_bf16 {Q(d)}, {Q(A)}, {Q(B)}, {'0' if first else Q(d)}")
    a("s_and_b32 s24, s28, 0xffffffbf\ns_cmp_lg_u32 s24, 256\ns_cbranch_scc1 KM_k2gen\ns_waitcnt lgkmcnt(0)\ns_cmp_eq_u32 s28, 256\ns_cbranch_scc1 KM_k2z")
    for f in range(8): a(f"v_mov_b32 v{16+4*f}, v{18+4*f}\nv_mov_b32 v{17+4*f}, v{19+4*f}")
    a("KM_k2z:")
    for f in range(8): a(f"v_mov_b32 v{18+4*f}, 0\nv_mov_b32 v{19+4*f}, 0")
    a("s_nop 1\nKM_k2gen:")
    for t in range(4):
        a(f"s_waitcnt lgkmcnt({6-2*t})")
        for mt in range(2):
            mf(88+8*mt, D(mt,t), M(t)+2, t == 0)
            mf(92+8*mt, D(mt,t), M(t), t == 0)
    def tw_pack(tr, ti, B, swap):
        for blk in range(2):
            for hh in range(2):
                r = 88+8*blk+2*hh; i = r+4; c = tr+4*blk+2*hh; s = ti+4*blk+2*hh; t = 104+4*blk+2*hh
                a(f"""v_pk_mul_f32 {P(t)}, {P(i)}, {P(s)}
v_pk_mul_f32 {P(i)}, {P(i)}, {P(c)}
v_pk_fma_f32 {P(i)}, {P(r)}, {P(s)}, {P(i)}
v_pk_fma_f32 {P(r)}, {P(r)}, {P(c)}, {P(t)} neg_lo:[0,0,1] neg_hi:[0,0,1]""")
        for blk in range(2):
            for hh in range(2):
                r = 88+8*blk+2*hh
                a(f"v_cvt_pk_bf16_f32 v{B+4*blk+hh+(2 if swap else 0)}, v{r}, v{r+1}")
                a(f"v_cvt_pk_bf16_f32 v{B+4*blk+hh+(0 if swap else 2)}, v{r+4}, v{r+5}")
    tw_pack(56, 64, 16, False)
    for y in range(2):
        for x in range(2):
            mf(88+8*x, N(x,y)+2, 16+4*y, y == 0)
            mf(92+8*x, N(x,y), 16+4*y, y == 0)
    a("s_waitcnt vmcnt(0)")
    for k in range(8): a(f"v_lshlrev_b32 v{32+k}, 16, v{48+k}\nv_and_b32 v{40+k}, 0xffff0000, v{48+k}")
    tw_pack(32, 40, 24, True)
    for y in range(2):
        for x in range(2):
            mf(88+8*x, 24+4*y, N(x,y), y == 0)
            mf(92+8*x, 24+4*y, N(x,y)+2, y == 0)
    tw_pack(72, 80, 16, True)
    a(f"ds_write_b128 v6, {Q(16)} offset:8192\nds_write_b128 v6, {Q(20)} offset:12288\ns_waitcnt lgkmcnt(0)")
    bar(a, 'W', 'k2b')
    for t in range(4):
        for nt in range(2): a(f"ds_read_b128 {Q(D(nt,t))}, v7 offset:{8192+4096*nt+1024*t}")
    for t in range(4):
        a(f"s_waitcnt lgkmcnt({6-2*t})")
        for nt in range(2):
            mf(88+8*nt, M(t), D(nt,t), t == 0)
            mf(92+8*nt, M(t)+2, D(nt,t), t == 0)
    for nt in range(2):
        o = 48+4*nt; s = 88+8*nt
        for k in range(4): a(f"v_cvt_pk_bf16_f32 v{o+k}, v{s+2*k}, v{s+2*k+1}")
        a(f"buffer_store_dwordx4 {Q(o)}, v8, s[12:15], s{21+2*nt} offen sc1")
    ST('b')
    a("s_branch KM_k2done\nKM_k2skip:\ns_barrier\ns_barrier\nKM_k2done:")
    a(f"""v_and_b32 v1, 63, v0
v_and_b32 v3, 31, v0
v_lshlrev_b32 v2, 3, v3
v_bfe_u32 v4, v0, 5, 1
v_lshl_add_u32 v2, v4, 8, v2
v_lshlrev_b32 v3, 2, v3
v_lshl_add_u32 v3, v4, 1, v3
v_and_b32 v5, 15, v0
v_bfe_u32 v6, v0, 4, 2""")
    col_slots(a, 22, 5, 6, 8, 22)
    addr_yf(a)
    a(f"""
s_and_b32 s23, s3, 15
s_lshl_b32 s23, s23, 4
s_lshr_b32 s21, s3, 4
s_lshl_b32 s21, s21, 10
s_add_u32 s23, s23, s21
s_lshr_b32 s21, s20, 1
s_lshl_b32 s21, s21, 11
s_add_u32 s23, s23, s21
s_and_b32 s21, s20, 1
s_lshl_b32 s21, s21, 9
s_add_u32 s23, s23, s21
s_add_u32 s23, s23, {YF}
s_lshl_b32 s21, s20, 3
s_add_u32 s21, s21, s22
s_lshl_b32 s24, s3, 6
s_add_u32 s24, s24, s21
s_mul_i32 s24, s24, 1280
""")
    w5_consts(a, 88, 22, 1.0)
    a(f"""
s_lshl_b32 s27, s22, 4
v_add_u32 v22, s27, v5
v_cvt_f32_u32 v22, v22
v_mul_f32 v22, {fh(1/128)}, v22
v_and_b32 v23, 1, v6
v_cvt_f32_u32 v23, v23
v_mul_f32 v23, 4.0, v23
v_lshrrev_b32 v24, 1, v6
v_cvt_f32_u32 v24, v24
v_mul_f32 v24, {fh(0.25)}, v24
v_fma_f32 v23, v23, v22, v24
v_mul_f32 v24, {fh(5.0)}, v22
v_mul_f32 v27, {fh(64.0)}, v22
v_cmp_eq_u32 vcc, 2, v6
v_cndmask_b32 v27, v23, v27, vcc
""")
    for t in range(4):
        for jj in range(4):
            a(f"""v_cos_f32 v25, v{27 if (t, jj) == (0, 0) else 23}
v_add_f32 v23, v23, v22
v_cos_f32 v26, v23
v_add_f32 v23, v23, v{24 if jj & 1 else 22}
v_cvt_pk_bf16_f32 v{96+4*t+jj}, v25, v26""")
    a(f"""
v_lshlrev_b32 v14, 5, v5
v_lshl_add_u32 v14, v6, 3, v14
s_lshl_b32 s27, s22, 9
s_add_u32 s27, s27, {TB}
v_add_u32 v14, s27, v14
v_and_b32 v15, 4096, v9
v_add_u32 v15, v15, v14
v_xor_b32 v112, 4096, v15
v_lshlrev_b32 v113, 3, v1
v_add_u32 v113, {TB}, v113
v_and_b32 v22, 7, v5
v_mul_u32_u24 v22, {ZR}, v22
v_lshl_add_u32 v22, v6, 4, v22
s_lshl_b32 s27, s22, 6
s_add_u32 s27, s27, {ZB}
v_add_u32 v17, s27, v22
v_lshrrev_b32 v22, 3, v5
v_mul_u32_u24 v22, {2*ZC}, v22
v_add_u32 v16, v17, v22
v_lshlrev_b32 v4, 2, v3
s_mul_i32 s27, s22, {ZR}
s_add_u32 s27, s27, {ZB}
v_add_u32 v7, s27, v4
v_add_u32 v4, {PB}, v4
v_and_b32 v22, 0x80000000, v9
v_xor_b32 v22, v22, v10
v_and_b32 v23, 0x80008000, v9
v_xor_b32 v24, v23, v12
""")
    for j in range(5):
        a(f"ds_read_b64 {P(120+2*j)}, v4 offset:{512*j}\nds_read_b64 {P(140+2*j)}, v4 offset:{5120+512*j}\nds_read_b64 {P(130+2*j)}, v4 offset:{2560+512*j}")
    a("s_waitcnt lgkmcnt(0)")
    ST('c')
    gather2(a, 'KM_gy', f"buffer_load_dwordx4 {Q(28)}, v11, s[12:15], s23 offen sc1", f"buffer_load_dwordx4 {Q(32)}, v13, s[12:15], s23 offen sc1", 28, 32, 36, dly=OPT.get('dy', 0))
    ST('c')
    a(f"""v_cndmask_b32 v32, v32, v34, s[42:43]
v_cndmask_b32 v33, v33, v35, s[42:43]
v_xor_b32 v26, v30, v24
v_xor_b32 v27, v31, v24
v_xor_b32 v30, v30, v12
v_xor_b32 v31, v31, v12
ds_write_b64 v14, {P(32)} offset:8192""")
    for hh in range(2):
        a(f"""v_lshlrev_b32 v{36+2*hh}, 16, v{28+hh}
v_and_b32 v{37+2*hh}, 0xffff0000, v{28+hh}
v_lshlrev_b32 v{40+2*hh}, 16, v{30+hh}
v_and_b32 v{41+2*hh}, 0xffff0000, v{30+hh}
v_lshlrev_b32 v{44+2*hh}, 16, v{28+hh}
v_and_b32 v{45+2*hh}, 0xffff0000, v{28+hh}
v_lshlrev_b32 v{48+2*hh}, 16, v{26+hh}
v_and_b32 v{49+2*hh}, 0xffff0000, v{26+hh}""")
    for i in range(4):
        a(f"v_fmac_f32_dpp v{44+i}, v{36+i}, v22 row_ror:8 {DPP}")
        a(f"v_fmac_f32_dpp v{48+i}, v{40+i}, v10 row_ror:8 {DPP}")
    a(f"""v_cvt_pk_bf16_f32 v52, v44, v45
v_cvt_pk_bf16_f32 v53, v46, v47
v_cvt_pk_bf16_f32 v54, v48, v49
v_cvt_pk_bf16_f32 v55, v50, v51
ds_write_b64 v15, {P(52)}
ds_write_b64 v112, {P(54)}
s_waitcnt lgkmcnt(0)""")
    bar(a, 'W', 'b1')
    for T in range(3):
        for t in range(4):
            for x in range(2): a(f"ds_read_b64_tr_b16 {P(28+16*T+4*t+2*x)}, v113 offset:{4096*T+1024*t+512*x}")
            if T == 1 and t == 3:
                a("s_waitcnt lgkmcnt(8)")
                for tt in range(4): a(f"v_mfma_f32_16x16x32_bf16 {Q(76)}, {Q(96+4*tt)}, {Q(28+4*tt)}, {'0' if tt == 0 else Q(76)}")
    for T in (1, 2):
        a(f"s_waitcnt lgkmcnt({8 if T == 1 else 0})")
        for t in range(4): a(f"v_mfma_f32_16x16x32_bf16 {Q(76+4*T)}, {Q(96+4*t)}, {Q(28+16*T+4*t)}, {'0' if t == 0 else Q(76+4*T)}")
    a(f"ds_write_b128 v16, {Q(76)} offset:{ZC}")
    for j in range(5): a(f"v_lshlrev_b32 v{28+2*j}, 16, v{XR+j}\nv_and_b32 v{29+2*j}, 0xffff0000, v{XR+j}")
    a(f"""ds_write_b128 v16, {Q(80)} offset:{2*ZC}
ds_write_b128 v17, {Q(84)}
s_waitcnt lgkmcnt(0)""")
    bar(a, 'W', 'b2')
    for c in range(5): a(f"ds_read_b64 {P(40+2*c)}, v7 offset:{ZC*c}")
    a("s_waitcnt lgkmcnt(0)")
    bar(a, 'W', 'b3')
    for k in range(2):
        r, im = 42+4*k, 44+4*k; c, s = 88+4*k, 90+4*k; R, I = 50+4*k, 52+4*k
        a(f"""v_pk_mul_f32 {P(R)}, {P(r)}, {P(c)}
v_pk_mul_f32 {P(I)}, {P(r)}, {P(s)}
v_pk_fma_f32 {P(R)}, {P(im)}, {P(s)}, {P(R)} neg_lo:[1,0,0] neg_hi:[1,0,0]
v_pk_fma_f32 {P(I)}, {P(im)}, {P(c)}, {P(I)}""")
    z0,z1r,z1i,z2r,z2i = 40,50,52,54,56
    A,B,Cc,Dd,E = 58,60,62,64,66
    sl = {(3*j) % 5: j for j in range(5)}
    X = lambda d2: P(28+2*sl[d2]); G = lambda d2: P(120+2*sl[d2])
    a(f"""v_pk_add_f32 {P(E)}, {P(z0)}, {P(z1r)}
v_pk_fma_f32 {P(A)}, s[30:31], {P(z1r)}, {P(z0)}
v_pk_fma_f32 {P(B)}, s[32:33], {P(z1r)}, {P(z0)}
v_pk_mul_f32 {P(Cc)}, s[34:35], {P(z1i)}
v_pk_mul_f32 {P(Dd)}, s[36:37], {P(z1i)}
v_pk_add_f32 {P(E)}, {P(E)}, {P(z2r)}
v_pk_fma_f32 {P(A)}, s[32:33], {P(z2r)}, {P(A)}
v_pk_fma_f32 {P(B)}, s[30:31], {P(z2r)}, {P(B)}
v_pk_fma_f32 {P(Cc)}, s[36:37], {P(z2i)}, {P(Cc)}
v_pk_fma_f32 {P(Dd)}, s[34:35], {P(z2i)}, {P(Dd)} neg_lo:[0,1,0] neg_hi:[0,1,0]
v_pk_fma_f32 {X(0)}, {G(0)}, {P(E)}, {X(0)}
v_pk_add_f32 {P(68)}, {P(A)}, {P(Cc)} neg_lo:[0,1] neg_hi:[0,1]
v_pk_add_f32 {P(70)}, {P(A)}, {P(Cc)}
v_pk_add_f32 {P(72)}, {P(B)}, {P(Dd)} neg_lo:[0,1] neg_hi:[0,1]
v_pk_add_f32 {P(74)}, {P(B)}, {P(Dd)}
v_pk_fma_f32 {X(1)}, {G(1)}, {P(68)}, {X(1)}
v_pk_fma_f32 {X(4)}, {G(4)}, {P(70)}, {X(4)}
v_pk_fma_f32 {X(2)}, {G(2)}, {P(72)}, {X(2)}
v_pk_fma_f32 {X(3)}, {G(3)}, {P(74)}, {X(3)}
s_add_u32 s25, s24, {X1}
s_add_u32 s26, s24, {H2F}""")
    for j in range(5): a(f"v_cvt_pk_bf16_f32 v{16+j}, v{28+2*j}, v{29+2*j}")
    a(f"""v_permlane32_swap_b32 v16, v17
v_permlane32_swap_b32 v18, v19
buffer_store_dwordx2 {P(16)}, v2, s[12:15], s25 offen sc1
buffer_store_dwordx2 {P(18)}, v2, s[12:15], s25 offen offset:512 sc1""")
    ln_rows(a, 28, 22)
    a(f"v_bfe_u32 v24, v0, 5, 1\nv_mul_u32_u24 v24, {H2F - X1 - 256}, v24\nv_add_u32 v24, v24, v2")
    for j in range(5): a(f"v_pk_mul_f32 {P(140+2*j)}, {P(140+2*j)}, {P(22)} op_sel_hi:[1,0]")
    for j in range(5): a(f"v_pk_fma_f32 {P(28+2*j)}, {P(28+2*j)}, {P(140+2*j)}, {P(130+2*j)}")
    for j in range(4): a(f"v_cvt_pk_bf16_f32 v{40+j}, v{28+2*j}, v{29+2*j}")
    a(f"""v_cvt_pk_bf16_f32 v21, v36, v37
v_permlane32_swap_b32 v40, v41
v_permlane32_swap_b32 v42, v43
v_permlane32_swap_b32 v20, v21
buffer_store_dwordx2 {P(40)}, v2, s[12:15], s26 offen sc1
buffer_store_dwordx2 {P(42)}, v2, s[12:15], s26 offen offset:512 sc1
buffer_store_dwordx2 {P(20)}, v24, s[12:15], s25 offen offset:1024 sc1""")
    ST('c')
    a(f"""v_mov_b32 v2, v1
s_lshr_b32 s26, s22, 2
s_and_b32 s27, s22, 3
v_lshrrev_b32 v3, 4, v2
v_bfe_u32 v4, v2, 2, 2
v_lshl_add_u32 v4, v3, 3, v4
v_mul_u32_u24 v4, 192, v4
v_and_b32 v5, 3, v2
v_lshl_add_u32 v4, v5, 3, v4
v_and_b32 v5, 1, v3
v_lshlrev_b32 v5, 5, v5
s_mul_i32 s28, s26, 96
v_add_u32 v4, s28, v4
s_cmp_eq_u32 s26, 0
s_cselect_b32 s29, 1, -1
v_mul_lo_u32 v5, v5, s29
v_add_u32 v6, v4, v5
v_sub_u32 v7, v4, v5
v_add_u32 v8, {4*WS_}, v6
v_add_u32 v9, {4*WS_}, v7
v_and_b32 v10, 15, v2
v_lshrrev_b32 v11, 1, v10
v_xor_b32 v11, v11, v3
v_lshlrev_b32 v11, 4, v11
v_lshl_add_u32 v11, v10, 7, v11
s_lshl_b32 s28, s27, 12
s_add_u32 s28, s28, {HB}
v_add_u32 v11, s28, v11
v_xor_b32 v12, 64, v11
s_load_dwordx2 s[60:61], s[0:1], 72
s_waitcnt vmcnt(0)""")
    ST('c')
    bar(a, 'W', 'd1')
    ACC = lambda mat, i, nt: 16 + 4*(6*nt + 3*mat + i)
    FA = lambda buf, mat, i: 64 + 32*buf + 4*(3*mat+i)
    FB = lambda buf, nt: 88 + 32*buf + 4*nt
    def reads(s):
        L = []; sl = s % 8
        for nt in range(2): L.append(f"ds_read_b128 {Q(FB(s & 1, nt))}, v{11 + (s & 1)} offset:{((s//2) % 4)*HS + 2048*nt}")
        for mat in range(2):
            for i in range(3):
                for x in range(2):
                    L.append(f"ds_read_b64_tr_b16 {P(FA(s & 1, mat, i) + 2*x)}, v{6 + (i & 1) + 2*(sl//4)} offset:{(sl % 4)*WS_ + mat*6144 + 4*x*192 + 32*i}")
        return L
    bar(a, 'W', 'B0')
    ST('d')
    for l in reads(0): a(l)
    for s in range(NST):
        a("s_waitcnt lgkmcnt(0)")
        if s & 1: bar(a, 'W', f'B{(s+1)//2}')
        R = reads(s+1) if s+1 < NST else []
        k = 0
        for mat in range(2):
            for i in range(3):
                for nt in range(2):
                    c = ACC(mat, i, nt)
                    a(f"v_mfma_f32_16x16x32_bf16 {Q(c)}, {Q(FA(s & 1, mat, i))}, {Q(FB(s & 1, nt))}, {'0' if s == 0 else Q(c)}")
                    for l in R[2*k:2*k+2]: a(l)
                    k += 1
    ST('d')
    kk = 2*0.7978845608028654*math.log2(math.e)
    a(f"""s_mov_b32 s30, {fh(-kk*0.044715)}
s_mov_b32 s31, {fh(-kk*0.044715)}
v_mov_b32 v10, {fh(-kk)}
v_mov_b32 v11, {fh(-kk)}
s_lshl_b32 s29, s50, 3
s_lshl_b32 s28, s27, 1
s_add_u32 s29, s29, s28
s_mul_i32 s29, s29, 49152
s_mul_i32 s28, s51, 3072
s_add_u32 s29, s29, s28
s_mul_i32 s28, s26, 1536
s_add_u32 s29, s29, s28
s_add_u32 s29, s29, {HIDF}
v_bfe_u32 v7, v2, 4, 1
v_mul_u32_u24 v7, 49152, v7
v_lshrrev_b32 v8, 5, v2
v_lshl_add_u32 v7, v8, 8, v7
v_and_b32 v8, 15, v2
v_lshl_add_u32 v7, v8, 4, v7""")
    for nt in range(2):
        Gt = ACC(0, 0, nt); U = ACC(1, 0, nt); T = 64 + 16*nt
        for i in range(0, 12, 2): a(f"v_pk_mul_f32 {P(T+i)}, {P(Gt+i)}, {P(Gt+i)}")
        for i in range(0, 12, 2): a(f"v_pk_fma_f32 {P(T+i)}, {P(T+i)}, s[30:31], {P(10)}")
        for i in range(0, 12, 2): a(f"v_pk_mul_f32 {P(T+i)}, {P(T+i)}, {P(Gt+i)}")
        for i in range(0, 12, 2): a(f"v_exp_f32 v{T+i}, v{T+i}\nv_exp_f32 v{T+i+1}, v{T+i+1}\nv_pk_mul_f32 {P(Gt+i)}, {P(Gt+i)}, {P(U+i)}")
        for i in range(0, 12, 2): a(f"v_pk_add_f32 {P(T+i)}, {P(T+i)}, 1.0 op_sel_hi:[1,0]")
        for i in range(12): a(f"v_rcp_f32 v{T+i}, v{T+i}")
        for i in range(0, 12, 2): a(f"v_pk_mul_f32 {P(Gt+i)}, {P(Gt+i)}, {P(T+i)}")
        for i in range(3):
            O = 96 + 4*i + 2*nt
            a(f"v_cvt_pk_bf16_f32 v{O}, v{Gt+4*i}, v{Gt+4*i+1}\nv_cvt_pk_bf16_f32 v{O+1}, v{Gt+4*i+2}, v{Gt+4*i+3}")
    for i in range(3):
        O = 96 + 4*i
        a(f"""v_permlane16_swap_b32 v{O}, v{O+2}
v_permlane16_swap_b32 v{O+1}, v{O+3}
buffer_store_dwordx4 {Q(O)}, v7, s[12:15], s29 offen offset:{512*i} sc1""")
    ST('d')
    a(f"""s_lshl_b32 s30, s50, 3
s_lshr_b32 s28, s62, 3
s_lshl_b32 s28, s28, 2
s_add_u32 s30, s30, s28
s_add_u32 s30, s30, s27
s_mul_i32 s29, s30, 49152
s_lshl_b32 s28, s26, 10
s_add_u32 s29, s29, s28
s_add_u32 s29, s29, {HIDF}
s_lshl_b32 s30, s30, 4
s_and_b32 s24, s62, 7
v_lshrrev_b32 v3, 2, v2
v_mul_u32_u24 v3, 160, v3
v_and_b32 v4, 3, v2
v_lshl_add_u32 v3, v4, 3, v3
s_mul_i32 s28, s26, 5120
v_add_u32 v3, s28, v3
v_add_u32 v4, {6*DW}, v3
v_add_u32 v5, {12*DW}, v3
v_lshlrev_b32 v6, 4, v2
v_and_b32 v12, 15, v2
v_lshrrev_b32 v13, 4, v2
v_mul_u32_u24 v8, 1280, v12
v_lshl_add_u32 v8, v13, 3, v8
s_mul_i32 s23, s30, 1280
s_mul_i32 s25, s24, 160
s_add_u32 s23, s23, s25
s_add_u32 s23, s23, {X1}
v_lshlrev_b32 v15, 4, v13
s_lshl_b32 s28, s25, 1
s_add_u32 s28, s28, 12800
s_lshl_b32 s21, s26, 6
s_add_u32 s23, s23, s21
s_lshl_b32 s21, s26, 7
s_add_u32 s28, s28, s21
s_waitcnt vmcnt(0)""")
    ST('d')
    if 'nohs' in OPT: bar(a, 'W', 'd2')
    a("s_mov_b32 s41, s29")
    srd(a, 16, 60, 2048*1280)
    AC2 = lambda mt: 16 + 4*mt
    FA2 = lambda buf, mt: 36 + 20*buf + 4*mt
    NB = OPT.get('nb', 10)
    FB2 = lambda s: 76 + 4*(s % NB)
    def reads2(s):
        p = WPOS(s)
        return [f"ds_read_b64_tr_b16 {P(FA2(s & 1, mt) + 2*x)}, v{3+p//6} offset:{(p % 6)*DW + x*2560 + 32*mt}" for mt in range(5) for x in range(2)]
    def ldb(s):
        a(f"buffer_load_dwordx4 {Q(FB2(s))}, v6, s[12:15], s29 offen offset:{2048*(s & 1)} sc1")
        if s & 1: a("s_add_u32 s29, s29, 4096")
    bar(a, 'W', 'C0')
    ST('d')
    nb = 0; nx = 0
    for s in range(NB-1): ldb(s); nb += 1
    for l in reads2(0): a(l)
    for s in range(NS2):
        f = FB2(s)
        if 'nohs' in OPT: a(f"s_waitcnt vmcnt({nb-s-1+nx}) lgkmcnt(0)\nKM_hr{s}:")
        else: a(f"""s_waitcnt vmcnt({nb-s-1+nx})
v_max3_u32 v9, v{f}, v{f+1}, v{f+2}
v_max_u32 v9, v9, v{f+3}
v_cmp_eq_u32 vcc, -1, v9
s_waitcnt lgkmcnt(0)
s_cmp_lg_u64 vcc, 0
s_cbranch_scc1 KM_hs{s}
KM_hr{s}:""")
        if s in CB: bar(a, 'W', f'C{s}')
        if nb < NS2: ldb(nb); nb += 1
        elif nx < 6:
            k = nx // 2
            a(f"buffer_load_dwordx2 {P(116+2*k)}, v8, s[12:15], s23 offen offset:{32*k} sc1")
            a(f"buffer_load_dwordx4 {Q(128+4*k)}, v15, s[12:15], s28 offen offset:{64*k} sc1")
            nx += 2
        R = reads2(s+1) if s+1 < NS2 else []
        for mt in range(5):
            c = AC2(mt)
            a(f"v_mfma_f32_16x16x32_bf16 {Q(c)}, {Q(FA2(s & 1, mt))}, {Q(FB2(s))}, {'0' if s == 0 else Q(c)}")
            for l in R[2*mt:2*mt+2]: a(l)
    RB = WPOS(10)*DW
    ST('d')
    a(f"""s_mul_i32 s28, s27, 5120
s_add_u32 s28, s28, {RB}
v_add_u32 v6, s28, v6
s_and_b32 s23, s30, 63
s_lshl_b32 s23, s23, 5
s_lshr_b32 s29, s30, 6
s_add_u32 s23, s23, s29
s_mul_i32 s23, s23, 1280
s_add_u32 s23, s23, s25
v_mul_u32_u24 v8, 40960, v12
v_lshl_add_u32 v8, v13, 3, v8
s_cmp_eq_u32 s26, 0
s_cbranch_scc1 KM_lo""")
    def fin(give, keep, base):
        for mt in give: a(f"ds_write_b128 v6, {Q(AC2(mt))} offset:{1024*mt}")
        a("s_waitcnt vmcnt(0)")
        for mt in keep:
            x = 116+2*(mt-base); r = 76+4*mt
            a(f"v_lshlrev_b32 v{r}, 16, v{x}\nv_and_b32 v{r+1}, 0xffff0000, v{x}\nv_lshlrev_b32 v{r+2}, 16, v{x+1}\nv_and_b32 v{r+3}, 0xffff0000, v{x+1}")
        a("s_waitcnt lgkmcnt(0)\ns_barrier")
        for mt in keep: a(f"ds_read_b128 {Q(36+4*mt)}, v6 offset:{1024*mt}")
        for n, mt in enumerate(keep):
            c = AC2(mt); x = 116+2*(mt-base); g = 128+4*(mt-base); r = 36+4*mt; o = 76+4*mt
            a(f"""s_waitcnt lgkmcnt({len(keep)-1-n})
v_pk_add_f32 {P(c)}, {P(c)}, {P(r)}
v_pk_add_f32 {P(c+2)}, {P(c+2)}, {P(r+2)}
v_pk_fma_f32 {P(o)}, {P(c)}, {P(g)}, {P(o)}
v_pk_fma_f32 {P(o+2)}, {P(c+2)}, {P(g+2)}, {P(o+2)}
v_cvt_pk_bf16_f32 v{x}, v{o}, v{o+1}
v_cvt_pk_bf16_f32 v{x+1}, v{o+2}, v{o+3}
buffer_store_dwordx2 {P(x)}, v8, s[16:19], s23 offen offset:{32*mt}""")
        a("@dump 12\ns_endpgm")
    nst = a.st.n
    fin([0,1,2], [3,4], 2)
    a.st.n = nst
    a("KM_lo:")
    fin([3,4], [0,1,2], 0)
    a.st.n = 1
    for s in range(NS2):
        f = FB2(s)
        a(f"""KM_hs{s}:
s_add_u32 s40, s41, {2048*s}
s_mov_b32 s46, 0x8000
KM_hl{s}:
s_mov_b64 exec, vcc
s_sleep 2
buffer_load_dwordx4 {Q(f)}, v6, s[12:15], s40 offen sc1
s_waitcnt vmcnt(0)
v_max3_u32 v9, v{f}, v{f+1}, v{f+2}
v_max_u32 v9, v9, v{f+3}
v_cmp_eq_u32 vcc, -1, v9
s_mov_b64 exec, -1
s_sub_u32 s46, s46, 1
s_cmp_eq_u32 s46, 0
s_cbranch_scc1 KM_hr{s}
s_cmp_lg_u64 vcc, 0
s_cbranch_scc1 KM_hl{s}
s_branch KM_hr{s}""")
    a(f"""KM_prod:
s_sub_u32 s47, s22, 8
s_waitcnt lgkmcnt(0)""")
    if OPT.get('wb'): a(f"s_add_u32 s6, s6, {OPT['wb']}\ns_addc_u32 s7, s7, 0")
    srd(a, 12, 6, WS_SIZE)
    srd(a, 16, 60, 256)
    a(f"""v_mov_b32 v60, 0
s_load_dwordx4 s[56:59], s[0:1], 32
s_load_dwordx2 s[4:5], s[0:1], 48
v_lshlrev_b32 v59, 4, v1
s_sub_u32 s53, s2, 80
s_xor_b32 s54, s47, 2
s_mul_i32 s54, s54, 192
s_sub_u32 s21, s2, 64
s_add_u32 s54, s54, s21
s_cmp_lt_u32 s2, 64
s_cselect_b32 s54, 999, s54
s_cmp_ge_u32 s47, 2
s_cbranch_scc1 KM_p_wp
s_cmp_lg_u32 s47, 0
s_cbranch_scc1 KM_p_pf
s_cmp_lg_u32 s2, 0
s_cbranch_scc1 KM_p_nn
s_memrealtime s[38:39]
s_waitcnt lgkmcnt(0)
s_or_b32 s38, s38, 1
v_mov_b32 v61, s38
s_mov_b64 exec, 1
buffer_store_dword v61, v60, s[16:19], 0 offen sc1
s_mov_b64 exec, -1
KM_p_nn:
KM_p_nc:""")
    spin(a, 'KM_pn', "buffer_load_dword v61, v60, s[16:19], 0 offen sc1", "v_cmp_eq_u32 vcc, 0, v61")
    a(f"""v_mov_b32 v62, {NON}
ds_write_b32 v62, v61
s_branch KM_p_no0
KM_p_pf:""")
    if 'tlb' in OPT:
        sh = OPT['tlb']
        a(f"""s_load_dwordx2 s[36:37], s[0:1], 72
v_lshlrev_b32 v86, {sh}, v1
v_add_u32 v86, {(1 << sh) - 128}, v86""")
        k = 92
        for o in range(0, WS_SIZE, 64 << sh):
            a(f"s_mov_b32 s23, {o}\nbuffer_load_dword v{k}, v86, s[12:15], s23 offen"); k += 1
        a("s_waitcnt lgkmcnt(0)\ns_mov_b32 s11, 0x00020000\nv_lshlrev_b32 v87, 16, v1")
        for p, sz in ((36, 2048*1280), (56, 640*3072), (58, 640*3072), (4, 1536*1280)):
            a(f"s_mov_b32 s8, s{p}\ns_mov_b32 s9, s{p+1}\ns_mov_b32 s10, {sz}\nbuffer_load_dword v{k}, v87, s[8:11], 0 offen"); k += 1
    if 'nocpf' not in OPT:
        a(f"""s_cmp_lt_u32 s2, {256 - OPT.get('ncp', 16)}
s_cbranch_scc1 KM_p_no0
s_getpc_b64 s[38:39]
KM_pc:
s_sub_u32 s38, s38, KM_pc-{NAME}
s_subb_u32 s39, s39, 0
v_lshlrev_b32 v86, 7, v1""")
        for k in range(4):
            a(f"""v_add_u32 v87, {8192*k}, v86
v_min_u32 v87, KM_end-{NAME}, v87
global_load_dword v{88+k}, v87, s[38:39]""")
    a(f"""KM_p_no0:
s_waitcnt lgkmcnt(0)""")
    bar(a, 'P', 'g1')
    a(f"""v_mov_b32 v62, {NON}
ds_read_b32 v61, v62
s_mul_i32 s23, s47, 5120
s_add_u32 s23, s23, {MODG}
s_add_u32 s21, s23, 4096
v_lshlrev_b32 v62, 4, v1
s_mul_i32 s24, s47, 2560
s_add_u32 s24, s24, {PB1}
v_lshlrev_b32 v63, 3, v1
v_add_u32 v63, s24, v63
s_lshl_b32 s25, s2, 7
s_add_u32 s25, s25, {GFL}
s_lshl_b32 s26, s47, 14
s_add_u32 s26, s26, {GFL}
s_add_u32 s27, s26, 8192
v_lshlrev_b32 v58, 7, v1
s_waitcnt lgkmcnt(0)
s_cmp_lg_u32 s47, 0
s_cbranch_scc1 KM_p_nf
s_mov_b64 exec, 1
buffer_store_dword v61, v60, s[12:15], s25 offen sc1
s_mov_b64 exec, -1
KM_p_nf:""")
    ld = "\n".join([f"buffer_load_dwordx4 {Q(8+4*q)}, v62, s[12:15], {'s23' if q < 4 else 's21'} offen offset:{1024*(q % 4)} sc1" for q in range(5)])
    cm = "v_cmp_ne_u32 vcc, v9, v61\n" + "\n".join([f"v_cmp_ne_u32 s[38:39], v{r}, v61\ns_or_b64 vcc, vcc, s[38:39]" for r in range(11, 28, 2)])
    spin(a, 'KM_pg', ld, cm)
    for q in range(5): a(f"v_mov_b32 v{9+4*q}, v{10+4*q}\nds_write_b64 v63, {P(8+4*q)} offset:{512*q}")
    a("s_waitcnt lgkmcnt(0)")
    ST('p')
    a("s_barrier")
    spin(a, 'KM_A_p', "buffer_load_dword v11, v58, s[12:15], s26 offen sc1\nbuffer_load_dword v12, v58, s[12:15], s27 offen sc1", "v_cmp_ne_u32 vcc, v11, v61\nv_cmp_ne_u32 s[38:39], v12, v61\ns_or_b64 vcc, vcc, s[38:39]")
    ST('p')
    a("s_branch KM_p_ag2")
    a(f"""KM_p_wp:
s_sub_u32 s21, s47, 2""")
    task_ids(a, 21)
    a(f"""s_cmp_gt_u32 s28, 320
s_cbranch_scc1 KM_p_nyf
s_lshl_b32 s28, s28, 13
s_add_u32 s28, s28, {YF}
s_add_u32 s29, s28, 4096
v_mov_b32 v64, -1
v_mov_b32 v65, -1
v_mov_b32 v66, -1
v_mov_b32 v67, -1""")
    for q in range(8): a(f"buffer_store_dwordx4 {Q(64)}, v59, s[12:15], {'s28' if q < 4 else 's29'} offen offset:{1024*(q % 4)} sc1")
    a(f"""KM_p_nyf:
s_mul_i32 s21, s21, 176
s_add_u32 s21, s21, s53
s_cmp_lt_u32 s2, 80
s_cbranch_scc1 KM_p_nowp""")
    TOUCH = f"""s_mov_b64 s[44:45], exec
s_mov_b64 exec, -1
s_waitcnt lgkmcnt(0)
s_cmp_eq_u32 s47, 2
s_cselect_b32 s16, s56, s58
s_cselect_b32 s17, s57, s59
s_mov_b32 s18, {640*3072}
s_mov_b32 s19, 0x00020000
s_mul_i32 s40, s2, 7680
v_and_b32 v84, 63, v0
v_min_u32 v84, 59, v84
v_lshlrev_b32 v84, 7, v84
buffer_load_dword v85, v84, s[16:19], s40 offen
s_mov_b64 exec, s[44:45]"""
    st_save = gen.STAMPS; gen.STAMPS = False
    tmp = Asm2(); tmp.st = a.st
    wprep(tmp, 21, 24, 26, 12, 'sc1')
    gen.STAMPS = st_save
    for ins in tmp.ins:
        if ins.kind == 'nop': continue
        if ins.text.strip() == 's_waitcnt vmcnt(0)':
            a("s_barrier\ns_waitcnt vmcnt(0)"); continue
        a(ins.text)
    a("s_branch KM_p_wd\nKM_p_nowp:\ns_barrier\nKM_p_wd:\nv_and_b32 v2, 63, v0\ns_waitcnt lgkmcnt(0)")
    bar(a, 'P', 'g2')
    a("KM_p_ag2:")
    a(f"""v_mov_b32 v62, {NON}
ds_read_b32 v61, v62
v_and_b32 v2, 63, v0
s_waitcnt vmcnt(0) lgkmcnt(0)
s_cmp_lt_u32 s47, 2
s_cselect_b32 s8, s56, s58
s_cselect_b32 s9, s57, s59
s_mov_b32 s10, {640*3072}
s_mov_b32 s11, 0x00020000""")
    bar(a, 'P', 'k1a')
    a("""s_or_b32 s23, s2, s47
s_cmp_lg_u32 s23, 0
s_cbranch_scc1 KM_p_nr
s_mov_b64 exec, 1
buffer_store_dword v60, v60, s[16:19], 0 offen sc1
s_mov_b64 exec, -1
KM_p_nr:""")
    srd(a, 16, 4, 1536*1280)
    a(f"""s_cmp_ge_u32 s54, 384
s_cbranch_scc1 KM_p_nwd
s_lshr_b32 s24, s54, 3
s_and_b32 s25, s54, 7
s_mul_i32 s55, s25, {1536*160}
s_mul_i32 s21, s24, 5120
s_add_u32 s55, s55, s21
s_add_u32 s55, s55, {WDT}
s_mul_i32 s24, s24, {32*1280}
s_mul_i32 s25, s25, 160
s_add_u32 s24, s24, s25""")
    for q in range(5):
        a(f"""v_add_u32 v12, {64*q}, v2
v_mul_u32_u24 v14, 52429, v12
v_lshrrev_b32 v14, 19, v14
v_mul_u32_u24 v15, 10, v14
v_sub_u32 v15, v12, v15
v_and_b32 v36, 3, v14
v_bfe_u32 v37, v14, 2, 2
v_lshl_add_u32 v36, v37, 3, v36
v_lshrrev_b32 v37, 4, v14
v_lshl_add_u32 v36, v37, 2, v36
v_mul_u32_u24 v36, 1280, v36
v_lshl_add_u32 v36, v15, 4, v36
buffer_load_dwordx4 {Q(64+4*q)}, v36, s[16:19], s24 offen""")
    a("KM_p_nwd:")
    def touch():
        a("s_cmp_lt_u32 s47, 2\ns_cbranch_scc1 KM_p_nt")
        a(TOUCH)
        a("KM_p_nt:")
    if OPT.get('tp', 'k1a') == 'k1a': touch()
    for q in range(3):
        a(f"""v_add_u32 v10, {64*q}, v2
v_mul_u32_u24 v11, 43691, v10
v_lshrrev_b32 v11, 19, v11
v_mul_u32_u24 v12, 12, v11
v_sub_u32 v12, v10, v12
v_lshrrev_b32 v13, 2, v11
v_and_b32 v13, 2, v13
v_xor_b32 v12, v12, v13
v_mul_u32_u24 v11, 3072, v11
v_lshl_add_u32 v11, v12, 4, v11
v_subrev_u32 v{50+q}, {1024*q}, v11""")
    for q in range(4):
        a(f"""v_lshrrev_b32 v10, 4, v2
v_add_u32 v10, {4*q}, v10
v_xor_b32 v10, v10, v2
v_and_b32 v10, 7, v10
v_lshrrev_b32 v11, 3, v2
v_mul_u32_u24 v11, 1280, v11
v_lshl_add_u32 v11, v10, 4, v11
v_add_u32 v{53+q}, {q*(10240-1024)}, v11""")
    a(f"""
s_and_b32 s26, s47, 1
s_mul_i32 s27, s26, {16*3072}
s_mul_i32 s28, s51, 192
s_add_u32 s27, s27, s28
s_mul_i32 s28, s47, 3072
s_lshl_b32 s29, s50, 2
s_add_u32 s29, s29, s47
s_mul_i32 s29, s29, 40960
s_add_u32 s29, s29, {H2F}
s_lshl_b32 s30, s47, 12
v_and_b32 v58, 15, v2
v_lshlrev_b32 v58, 7, v58
v_and_b32 v57, 3, v2
v_lshlrev_b32 v57, 7, v57
v_lshlrev_b32 v59, 4, v2
v_lshlrev_b32 v63, 7, v2""")
    def iw(s):
        a(f"s_add_u32 m0, s28, {(s % 8)*WS_}")
        for q in range(3): a(f"buffer_load_dwordx4 v{50+q}, s[8:11], s27 offen offset:{1024*q} sc1 lds")
        a(f"s_add_u32 s27, s27, {32*3072}")
    def ih(d):
        a(f"s_add_u32 m0, s30, {HB + (d % 4)*HS}")
        for q in range(4): a(f"buffer_load_dwordx4 v{53+q}, s[12:15], s33 offen offset:{1024*q} sc1 lds")
        a("s_add_u32 s33, s33, 128")
    bar(a, 'P', 'k2a')
    a("s_cmp_ge_u32 s54, 384\ns_cbranch_scc1 KM_p_nwd2\ns_add_u32 s54, s55, 4096\ns_waitcnt vmcnt(0)")
    for q in range(5): a(f"buffer_store_dwordx4 {Q(64+4*q)}, v59, s[12:15], {'s55' if q < 4 else 's54'} offen offset:{1024*(q % 4)} sc1")
    a("KM_p_nwd2:")
    a(f"""s_lshl_b32 s23, s47, 11
s_add_u32 m0, s23, {PB}
s_add_u32 s23, s23, 5120
buffer_load_dwordx4 v59, s[12:15], s23 offen sc1 lds
buffer_load_dwordx4 v59, s[12:15], s23 offen offset:1024 sc1 lds""")
    for s in range(0, 4): iw(s)
    a("s_waitcnt vmcnt(12)")
    bar(a, 'P', 'k2b')
    if OPT.get('tp', 'k1a') == 'k2b': touch()
    a(f"""s_lshl_b32 s23, s50, 3
s_lshl_b32 s24, s47, 1
s_add_u32 s23, s23, s24
s_mul_i32 s23, s23, 49152
s_mul_i32 s24, s51, 3072
s_add_u32 s23, s23, s24
s_add_u32 s23, s23, {HIDF}
s_add_u32 s24, s23, 49152
v_mov_b32 v88, -1
v_mov_b32 v89, -1
v_mov_b32 v90, -1
v_mov_b32 v91, -1""")
    def hpre():
        if 'nohs' in OPT: return
        for q in range(6): a(f"buffer_store_dwordx4 {Q(88)}, v59, s[12:15], {'s23' if q < 3 else 's24'} offen offset:{1024*(q % 3)} sc1")
    if OPT.get('hp', 'b1') == 'k2b': hpre()
    if OPT.get('wp', 'b1') == 'k2b':
        for s in range(4, 8): iw(s)
    bar(a, 'P', 'b1')
    if OPT.get('tp', 'k1a') == 'b1': touch()
    if OPT.get('hp', 'b1') == 'b1': hpre()
    if OPT.get('wp', 'b1') == 'b1':
        for s in range(4, 8): iw(s)
    bar(a, 'P', 'b2')
    bar(a, 'P', 'b3')
    if OPT.get('hp', 'b1') == 'b3': hpre()
    if OPT.get('wp', 'b1') == 'b3':
        for s in range(4, 8): iw(s)
    a(f"""s_lshl_b32 s48, s50, 4
s_add_u32 s48, s48, s51
s_lshl_b32 s48, s48, 7
s_add_u32 s48, s48, {FLG}
s_lshl_b32 s23, s50, 2
s_add_u32 s23, s23, s47
s_lshl_b32 s23, s23, 9
s_add_u32 s23, s23, {FLG}
s_and_b32 s24, s62, 7
s_mul_i32 s31, s47, 2560
s_mul_i32 s32, s24, {1536*160}
s_add_u32 s32, s32, s31
s_add_u32 s32, s32, {WDT}
s_waitcnt vmcnt(0)""")
    bar(a, 'P', 'd1')
    a(f"""s_cmp_lg_u32 s47, 0
s_cbranch_scc1 KM_na1
s_mov_b64 exec, 1
buffer_store_dword v61, v60, s[12:15], s48 offen sc1
s_mov_b64 exec, -1
KM_na1:""")
    cnt = []
    def iw2(s):
        a(f"""s_add_u32 m0, s31, {WPOS(s)*DW}
buffer_load_dwordx4 v59, s[12:15], s32 offen sc1 lds
buffer_load_dwordx4 v59, s[12:15], s32 offen offset:1024 sc1 lds
s_mov_b32 exec_hi, 0
buffer_load_dwordx4 v59, s[12:15], s32 offen offset:2048 sc1 lds
s_mov_b32 exec_hi, -1
s_add_u32 s32, s32, 10240""")
    def grp(d):
        ih(d); n = 4
        if d >= 4:
            iw(2*d); iw(2*d+1); n += 6
        cnt.append(n)
    a(f"v_add_u32 v62, s30, v59\nv_add_u32 v62, {HB}, v62")
    def hl(d, q): return f"buffer_load_dwordx4 {Q(96+16*d+4*q)}, v{53+q}, s[12:15], s29 offen offset:{1024*q+128*d} sc1"
    for d in range(4):
        for q in range(4): a(hl(d, q))
    nw2 = 0
    def hchk(d):
        R = 96+16*d
        a(f"s_mov_b32 s46, 0x8000\ns_waitcnt vmcnt({4*(3-d)})\ns_branch KM_hc{d}\nKM_hq{d}:\ns_sleep 2")
        for q in range(4): a(hl(d, q))
        a(f"s_waitcnt vmcnt(0)\nKM_hc{d}:")
        a(f"v_max3_u32 v12, v{R}, v{R+1}, v{R+2}")
        for k in range(3, 15, 2): a(f"v_max3_u32 v12, v12, v{R+k}, v{R+k+1}")
        a(f"""v_max_u32 v12, v12, v{R+15}
v_cmp_eq_u32 vcc, -1, v12
s_nop 1
s_and_b64 exec, exec, vcc
s_cbranch_scc0 KM_ho{d}
s_sub_u32 s46, s46, 1
s_cmp_lg_u32 s46, 0
s_cbranch_scc1 KM_hq{d}
KM_ho{d}:
s_mov_b64 exec, -1""")
        for q in range(4): a(f"ds_write_b128 v62, {Q(R+4*q)} offset:{d*HS+1024*q}")
    for d in range(10):
        if d == 0:
            hchk(0); a("s_waitcnt lgkmcnt(0)"); ST('p')
        elif d == 1:
            hchk(1); a("s_waitcnt lgkmcnt(0)")
        elif d >= 4:
            a(f"s_waitcnt vmcnt({sum(cnt[d-3:])})")
        bar(a, 'P', f'B{d}')
        if d == 1:
            iw(8); iw(9)
            a("s_waitcnt vmcnt(6)")
            hchk2 = True
            for dd in (2, 3):
                R = 96+16*dd
                a(f"s_mov_b32 s46, 0x8000\ns_branch KM_hc{dd}\nKM_hq{dd}:\ns_sleep 2")
                for q in range(4): a(hl(dd, q))
                a(f"s_waitcnt vmcnt(0)\nKM_hc{dd}:")
                a(f"v_max3_u32 v12, v{R}, v{R+1}, v{R+2}")
                for k in range(3, 15, 2): a(f"v_max3_u32 v12, v12, v{R+k}, v{R+k+1}")
                a(f"""v_max_u32 v12, v12, v{R+15}
v_cmp_eq_u32 vcc, -1, v12
s_nop 1
s_and_b64 exec, exec, vcc
s_cbranch_scc0 KM_ho{dd}
s_sub_u32 s46, s46, 1
s_cmp_lg_u32 s46, 0
s_cbranch_scc1 KM_hq{dd}
KM_ho{dd}:
s_mov_b64 exec, -1""")
                for q in range(4): a(f"ds_write_b128 v62, {Q(R+4*q)} offset:{dd*HS+1024*q}")
            a("s_waitcnt lgkmcnt(0)\ns_add_u32 s33, s29, 512")
        elif d == 2:
            spin(a, 'KM_p1', "buffer_load_dword v11, v57, s[12:15], s23 offen sc1", "v_cmp_ne_u32 vcc, v11, v61")
            ih(4); cnt.append(4)
            grp(5)
        elif d >= 3 and d+3 < 10: grp(d+3)
        if d >= 7:
            for _ in range(EARLY[d]): iw2(nw2); nw2 += 1
            cnt.append(3*EARLY[d])
    bar(a, 'P', 'B10')
    while nw2 < NWD: iw2(nw2); nw2 += 1
    if 'nohs' in OPT:
        a(f"""s_lshl_b32 s23, s50, 11
s_add_u32 s23, s23, {FLG + 32768}
s_add_u32 s48, s48, 32768""")
        bar(a, 'P', 'd2')
        a(f"""s_cmp_eq_u32 s47, 1
s_cbranch_scc0 KM_nb2
s_mov_b64 exec, 1
buffer_store_dword v61, v60, s[12:15], s48 offen sc1
s_mov_b64 exec, -1
KM_nb2:
s_cmp_lg_u32 s47, 0
s_cbranch_scc1 KM_na2""")
        spin(a, 'KM_p2', "buffer_load_dword v11, v58, s[12:15], s23 offen sc1", "v_cmp_ne_u32 vcc, v11, v61")
        a("KM_na2:")
    a("s_waitcnt vmcnt(0)")
    ST('p')
    bar(a, 'P', 'C0')
    pend = []
    for s in CB:
        need = [t for t in pend if t <= NEXTCB[s]]
        a(f"s_waitcnt vmcnt({3*(len(pend)-len(need))})")
        bar(a, 'P', f'C{s}')
        pend = [t for t in pend if t not in need]
        while nw2 < NS2 and nw2 - NWD <= s:
            iw2(nw2); pend.append(nw2); nw2 += 1
    a("@dump 12\nKM_end:\ns_endpgm")
    assert bar.seq['W'] == bar.seq['P'], (bar.seq['W'], bar.seq['P'])
    return kd_block(NAME, 168, 100)
if __name__ == '__main__':
    OPT = {}; out = 'mega.s'
    for x in sys.argv[1:]:
        if x.endswith('.s'): out = x
        elif x.startswith('st='): gen.STAMPS = True; OPT['st'] = x[3:]
        elif x.startswith('slp'): gen.SLP = int(x[3:])
        elif x.startswith('bk'): OPT['bk'] = int(x[2:])
        elif x.startswith('tp='): OPT['tp'] = x[3:]
        elif x.startswith('hp='): OPT['hp'] = x[3:]
        elif x.startswith('map='): OPT['map'] = x[4:]
        elif x == 'dbgdump': gen.DBGDUMP = True
        elif x.startswith('tlb='): OPT['tlb'] = int(x[4:])
        elif x.startswith('e0='): OPT['e0'] = int(x[3:])
        elif x.startswith('nb='): OPT['nb'] = int(x[3:])
        elif x.startswith('dx='): OPT['dx'] = int(x[3:])
        elif x.startswith('dy='): OPT['dy'] = int(x[3:])
        elif x.startswith('ncp='): OPT['ncp'] = int(x[4:])
        elif x.startswith('wb='): OPT['wb'] = int(x[3:]) << 20
        elif x.startswith('wp='): OPT['wp'] = x[3:]
        else: OPT[x] = 1
    a = Asm2()
    kd = km(a, OPT)
    hdr = open('adaLN_cond__spectral_gfnet__glu_gated_geglu__prompt.s.ref').read().split('\n')[:13]
    s = '\n'.join(hdr) + '\n; @launch grid=(256,1,1) block=(768,1,1) lds=163840\n'
    s += '.amdgcn_target "amdgcn-amd-amdhsa--gfx950"\n.text\n' + a.text() + '.section .rodata,"a"\n' + kd
    open(out, 'w').write(s)
```

```python
import sys, math, struct
sys.path.insert(0,'work')
from asmlib import *
def f2u(x): return struct.unpack('<I', struct.pack('<f', x))[0]
def fh(x): return '0x%08x' % f2u(x)
MOD=0; XF=0x100000; YF=0x400000; WP=0x700000; X1=0xA00000; H2F=0xD00000; HIDF=0x1000000; WDT=0x1C00000; FLG=0x10000; WS_SIZE=0x1E00000
DPP='row_mask:0xf bank_mask:0xf'

STAMPS = False
DBGDUMP = False
SLP = 4
TLBSH = 16
RPG = 2
OPT = set()
DBG = 0x1640000
class Stamper:
    def __init__(self, a, kid): self.a=a; self.kid=kid; self.n=0
    def __call__(self):
        if not STAMPS: return
        if self.n == 0: self.a("s_memtime s[64:65]")
        self.a(f"s_memrealtime s[{70+2*self.n}:{71+2*self.n}]"); self.n += 1
    def dump(self, srd_ws, wgreg='s2', drain=True):
        if not STAMPS: return
        a = self.a
        if DBGDUMP:
            u = a.uid()
            a("s_waitcnt vmcnt(0)"); self()
            a(f"""s_load_dwordx2 s[8:9], s[0:1], 80
s_mov_b32 s10, 256
s_mov_b32 s11, 0x00020000
s_waitcnt lgkmcnt(0)
s_cmp_lg_u32 s2, 100
s_cbranch_scc1 DD{u}
s_cmp_lg_u32 s22, 0
s_cbranch_scc1 DD{u}
s_mov_b64 exec, 1
v_mov_b32 v1, 0""")
            for k in range(1, self.n):
                a(f"s_sub_u32 s68, s{70+2*k}, s70\nv_mov_b32 v2, s68\nbuffer_store_dword v2, v1, s[8:11], 0 offen offset:{4*k}")
            a(f"DD{u}:")
            return
        if drain:
            a("s_waitcnt vmcnt(0)"); self()
        a(f"""s_memtime s[66:67]
s_waitcnt lgkmcnt(0)
s_sub_u32 s66, {'s62' if ('g1cyc' in OPT and self.kid == 3) else 's66'}, s64
s_mov_b64 exec, 1
v_lshrrev_b32 v1, 6, v0
v_lshlrev_b32 v1, 6, v1
s_lshl_b32 s68, {wgreg}, 10
s_add_u32 s68, s68, {DBG + self.kid*0x80000}""")
        a(f"v_mov_b32 v2, s66\nbuffer_store_dword v2, v1, s[{srd_ws}:{srd_ws+3}], s68 offen offset:60")
        for k in range(self.n):
            a(f"v_mov_b32 v2, s{70+2*k}\nbuffer_store_dword v2, v1, s[{srd_ws}:{srd_ws+3}], s68 offen offset:{4*k}")
class Asm2(Asm):
    _u = 0
    def uid(self, inc=1):
        self._u += inc; return self._u
    def emit(self, line):
        if line == '@stamp': self.st(); return
        if line == '@k0exp':
            if 'k0small' in OPT:
                for l in ("s_and_b32 s3, s2, 7", "s_mul_i32 s3, s3, 10", "s_lshr_b32 s22, s2, 3", "s_add_u32 s3, s3, s22", "s_cmp_ge_u32 s2, 80", "s_cbranch_scc1 K0_end"): Asm.emit(self, l)
            return
        if 'noload' in OPT and line.endswith(' lds'): return
        if 'nowload' in OPT and line.endswith(' lds') and 's[8:11]' in line: return
        if 'nohload' in OPT and line.endswith(' lds') and 's[12:15]' in line: return
        if line.startswith('@dump'):
            p = line.split(); self.st.dump(int(p[1]), p[2] if len(p) > 2 else 's2'); return
        Asm.emit(self, line)
def head(a, name):
    a.st = Stamper(a, int(name[1]))
    a(f""".globl {name}
.p2align 8
.type {name},@function
{name}:""")
def srd(a, d, p, size):
    a(f"""s_mov_b32 s{d}, s{p}
s_mov_b32 s{d+1}, s{p+1}
s_mov_b32 s{d+2}, {size}
s_mov_b32 s{d+3}, 0x00020000""")

def P(r): return f"v[{r}:{r+1}]"
def Q(r): return f"v[{r}:{r+3}]"
def wprep(a, sT, pr, pi, ws, sc):
    a(f"""s_movk_i32 s46, 640
s_and_b32 s28, s{sT}, 31
s_lshr_b32 s29, s{sT}, 5
s_and_b32 s30, s28, 3
s_lshl_b32 s31, s30, 4
s_lshl_b32 s30, s30, 11
s_bfe_u32 s23, s28, 0x10002
s_lshl_b32 s23, s23, 10
s_add_u32 s31, s31, s23
s_add_u32 s30, s30, s23
s_lshr_b32 s23, s28, 3
s_lshl_b32 s23, s23, 8
s_add_u32 s31, s31, s23
s_add_u32 s30, s30, s23
s_mul_i32 s31, s31, 642
s_lshl_b32 s28, s29, 5
s_min_u32 s28, s28, 314
s_lshl_b32 s23, s28, 1
s_add_u32 s31, s31, s23
s_lshl_b32 s23, s28, 13
s_add_u32 s30, s30, s23
s_add_u32 s30, s30, {WP}
v_and_b32 v1, 15, v0
v_bfe_u32 v2, v0, 4, 2
v_and_b32 v3, 7, v0
v_bfe_u32 v5, v0, 3, 1
v_mul_u32_u24 v3, 1284, v3
v_mad_u32_u24 v3, v5, s46, v3
v_lshl_add_u32 v3, v2, 4, v3
v_lshlrev_b32 v4, 4, v1
v_lshl_add_u32 v4, v2, 16, v4
v_xor_b32 v5, 1, v5
v_lshl_add_u32 v4, v5, 13, v4
s_sub_u32 s30, s30, 8192
s_mov_b32 s8, s{pr}
s_mov_b32 s9, s{pr+1}
s_mov_b32 s10, {2048*642}
s_mov_b32 s11, 0x00020000
s_mov_b32 s24, s{pi}
s_mov_b32 s25, s{pi+1}
s_mov_b32 s26, {2048*642}
s_mov_b32 s27, 0x00020000
s_cmp_eq_u32 s29, 10
s_cselect_b64 exec, 0xffff, -1""")
    for i in range(4):
        a(f"buffer_load_dwordx4 {Q(8+4*i)}, v3, s[8:11], s31 offen\nbuffer_load_dwordx4 {Q(24+4*i)}, v3, s[24:27], s31 offen")
        if i < 3: a("s_add_u32 s31, s31, 41088")
    a(f"""s_mov_b32 s28, 0x05040100
s_mov_b32 s23, 0x07060302
@stamp
s_waitcnt vmcnt(0)
@stamp""")
    for c in range(8):
        o = 40 + 4*(c & 1)
        for i in range(4):
            a(f"v_perm_b32 v{o+i}, v{24+4*i+c//2}, v{8+4*i+c//2}, s{23 if c & 1 else 28}")
        a(f"buffer_store_dwordx4 {Q(o)}, v4, s[{ws}:{ws+3}], s30 offen {sc}")
        if c < 7: a("s_add_u32 s30, s30, 8192")
    a("s_mov_b64 exec, -1")

def wprep2(a, sT, pr, pi, ws, sc, ldsb):
    a(f"""s_movk_i32 s46, 640
s_and_b32 s28, s{sT}, 31
s_lshr_b32 s29, s{sT}, 5
s_and_b32 s30, s28, 3
s_lshl_b32 s31, s30, 4
s_lshl_b32 s30, s30, 11
s_bfe_u32 s23, s28, 0x10002
s_lshl_b32 s23, s23, 10
s_add_u32 s31, s31, s23
s_add_u32 s30, s30, s23
s_lshr_b32 s23, s28, 3
s_lshl_b32 s23, s23, 8
s_add_u32 s31, s31, s23
s_add_u32 s30, s30, s23
s_mul_i32 s31, s31, 642
s_lshl_b32 s28, s29, 5
s_min_u32 s28, s28, 314
s_lshl_b32 s23, s28, 1
s_add_u32 s31, s31, s23
s_lshl_b32 s23, s28, 13
s_add_u32 s30, s30, s23
s_add_u32 s30, s30, {WP}
v_and_b32 v1, 15, v0
v_bfe_u32 v2, v0, 4, 2
v_bfe_u32 v3, v0, 2, 3
v_bfe_u32 v5, v0, 5, 1
v_mul_u32_u24 v3, 1284, v3
v_mad_u32_u24 v3, v5, s46, v3
v_and_b32 v6, 3, v0
v_lshl_add_u32 v3, v6, 4, v3
v_bfe_u32 v7, v0, 2, 4
v_lshl_add_u32 v6, v6, 4, v7
v_lshlrev_b32 v6, 4, v6
v_add_u32 v6, {ldsb}, v6
v_and_b32 v7, 63, v0
v_lshlrev_b32 v7, 4, v7
v_add_u32 v7, {ldsb}, v7
v_bfe_u32 v5, v0, 3, 1
v_lshlrev_b32 v4, 4, v1
v_lshl_add_u32 v4, v2, 16, v4
v_xor_b32 v5, 1, v5
v_lshl_add_u32 v4, v5, 13, v4
s_sub_u32 s30, s30, 8192
s_mov_b32 s8, s{pr}
s_mov_b32 s9, s{pr+1}
s_mov_b32 s10, {2048*642}
s_mov_b32 s11, 0x00020000
s_mov_b32 s24, s{pi}
s_mov_b32 s25, s{pi+1}
s_mov_b32 s26, {2048*642}
s_mov_b32 s27, 0x00020000
s_cmp_eq_u32 s29, 10
s_cselect_b32 exec_lo, 0x11111111, -1
s_cselect_b32 exec_hi, 0x11111111, -1""")
    for i in range(4):
        a(f"buffer_load_dwordx4 {Q(8+4*i)}, v3, s[8:11], s31 offen\nbuffer_load_dwordx4 {Q(24+4*i)}, v3, s[24:27], s31 offen")
        if i < 3: a("s_add_u32 s31, s31, 41088")
    a(f"""s_mov_b32 s28, 0x05040100
s_mov_b32 s23, 0x07060302
@stamp
s_waitcnt vmcnt(0)
@stamp""")
    for c in range(8):
        o = 40 + 4*(c & 1)
        for i in range(4):
            a(f"v_perm_b32 v{o+i}, v{24+4*i+c//2}, v{8+4*i+c//2}, s{23 if c & 1 else 28}")
        a(f"ds_write_b128 v6, {Q(o)} offset:{1024*c}")
    a("s_cmp_eq_u32 s29, 10\ns_cselect_b64 exec, 0xffff, -1\ns_waitcnt lgkmcnt(0)")
    for c in range(8): a(f"ds_read_b128 {Q(8+4*c)}, v7 offset:{1024*c}")
    for c in range(8):
        a(f"s_waitcnt lgkmcnt({7-c})\nbuffer_store_dwordx4 {Q(8+4*c)}, v4, s[{ws}:{ws+3}], s30 offen {sc}")
        if c < 7: a("s_add_u32 s30, s30, 8192")
    a("s_mov_b64 exec, -1")

def k0(a):
    head(a, 'k0_kernel')
    WPT = 1; NWP = 240 + 352//WPT
    NW0 = NWP + 56
    a(f"""
s_cmp_ge_u32 s2, {NW0}
s_cbranch_scc1 K0_end""")
    a(f"s_cmp_ge_u32 s2, {NWP}\ns_cbranch_scc1 K0_pf")
    a("""
@stamp
s_mov_b32 s69, s2
s_load_dwordx4 s[4:7], s[0:1], 56
s_load_dwordx2 s[20:21], s[0:1], 88
s_load_dwordx4 s[24:27], s[0:1], 8
s_cmp_ge_u32 s2, 240
s_cbranch_scc1 K0_wprep
v_readfirstlane_b32 s28, v0
s_cmp_ge_u32 s28, 320
s_cbranch_scc1 K0_end
s_and_b32 s3, s2, 7
s_mul_i32 s3, s3, 30
s_lshr_b32 s22, s2, 3
s_add_u32 s3, s3, s22
s_lshl_b32 s22, s3, 5
v_lshrrev_b32 v1, 1, v0
v_and_b32 v2, 1, v0
v_mul_u32_u24 v3, 7680, v1
v_lshl_add_u32 v3, v2, 4, v3
v_add_u32 v3, s22, v3
v_lshlrev_b32 v4, 1, v1
s_waitcnt lgkmcnt(0)
@stamp
""")
    srd(a, 8, 4, 1280)
    srd(a, 12, 6, 640*3840*2)
    srd(a, 16, 20, WS_SIZE)
    NR = 4
    for i in range(NR):
        a(f"buffer_load_short_d16_hi v{28+i}, v4, s[8:11], 0 offen offset:{320*i}")
    a("s_mov_b32 s23, 0")
    for i in range(NR):
        a(f"buffer_load_dwordx4 v[{8+4*i}:{11+4*i}], v3, s[12:15], s23 offen")
        if i < NR-1: a(f"s_add_u32 s23, s23, {160*7680}")
    a(f"s_waitcnt vmcnt({NR})")
    for i in range(NR): a(f"v_mul_f32 v{33+i}, {fh(-math.log2(math.e))}, v{28+i}")
    for i in range(NR): a(f"v_exp_f32 v{33+i}, v{33+i}")
    for i in range(NR): a(f"v_add_f32 v{33+i}, 1.0, v{33+i}")
    for i in range(NR): a(f"v_rcp_f32 v{33+i}, v{33+i}")
    for i in range(NR): a(f"v_mul_f32 v{28+i}, v{28+i}, v{33+i}")
    for i in range(NR): a(f"v_cvt_pk_bf16_f32 v{28+i}, v{28+i}, v{28+i}")
    for i in range(NR): a(f"v_and_b32 v{48+2*i}, 0xffff0000, v{28+i}")
    a("""v_and_b32 v5, 15, v0
v_lshrrev_b32 v6, 4, v0
v_lshlrev_b32 v7, 6, v6
v_lshl_add_u32 v7, v2, 5, v7""")
    for i in range(NR):
        a(f"s_waitcnt vmcnt({NR-1-i})")
        if i == NR-1: a("@stamp")
        for j in range(4):
            a(f"v_lshlrev_b32 v{32+2*j}, 16, v{8+4*i+j}\nv_and_b32 v{33+2*j}, 0xffff0000, v{8+4*i+j}")
        for j in range(4):
            if i == 0: a(f"v_pk_mul_f32 v[{40+2*j}:{41+2*j}], v[{32+2*j}:{33+2*j}], v[48:49] op_sel_hi:[1,0]")
            else: a(f"v_pk_fma_f32 v[{40+2*j}:{41+2*j}], v[{32+2*j}:{33+2*j}], v[{48+2*i}:{49+2*i}], v[{40+2*j}:{41+2*j}] op_sel_hi:[1,0,1]")
    for mode in ('quad_perm:[2,3,0,1]', 'row_ror:4', 'row_ror:8'):
        for j in range(8):
            a(f"v_add_f32_dpp v{40+j}, v{40+j}, v{40+j} {mode} {DPP}")
    a("""
v_cmp_gt_u32 vcc, 2, v5
s_and_saveexec_b64 s[24:25], vcc
ds_write_b128 v7, v[40:43]
ds_write_b128 v7, v[44:47] offset:16
s_mov_b64 exec, s[24:25]
s_waitcnt lgkmcnt(0)
s_barrier
s_cmp_ge_u32 s28, 64
s_cbranch_scc1 K0_end
v_mul_u32_u24 v7, 320, v6
v_lshl_add_u32 v7, v5, 2, v7
ds_read_b32 v8, v7
ds_read_b32 v9, v7 offset:64
ds_read_b32 v10, v7 offset:128
ds_read_b32 v11, v7 offset:192
ds_read_b32 v12, v7 offset:256
s_sub_u32 s24, s3, 40
s_cmp_lt_u32 s24, 40
s_cselect_b32 s25, 1.0, 0
s_sub_u32 s24, s3, 160
s_cmp_lt_u32 s24, 40
s_cselect_b32 s25, 1.0, s25
s_lshl_b32 s22, s3, 6
v_lshlrev_b32 v7, 2, v0
s_waitcnt lgkmcnt(0)
v_add_f32 v8, v8, v9
v_add_f32 v10, v10, v11
v_add_f32 v8, v8, v12
v_add_f32 v8, v8, v10
v_mov_b32 v9, v8
v_permlane16_swap_b32 v8, v9
v_add_f32 v8, v8, v9
v_mov_b32 v9, v8
v_permlane32_swap_b32 v8, v9
v_add_f32 v8, v8, v9
v_cvt_pk_bf16_f32 v8, v8, v8
v_and_b32 v8, 0xffff0000, v8
v_add_f32 v8, s25, v8
v_cvt_pk_bf16_f32 v8, v8, v8
v_and_b32 v8, 0xffff0000, v8
v_cmp_gt_u32 vcc, 16, v0
s_and_saveexec_b64 s[24:25], vcc
buffer_store_dword v8, v7, s[16:19], s22 offen
@dump 16
s_endpgm
""")
    a.st.n = 1
    a(f"""
K0_wprep:
s_sub_u32 s3, s2, 240
v_lshrrev_b32 v1, 6, v0
s_mul_i32 s3, s3, {WPT}
v_readfirstlane_b32 s22, v1
s_add_u32 s3, s3, s22
s_cmp_ge_u32 s22, {WPT}
s_cbranch_scc1 K0_end
s_waitcnt lgkmcnt(0)""")
    srd(a, 16, 20, WS_SIZE)
    wprep(a, 3, 24, 26, 16, '')
    a("@dump 16 s69\ns_endpgm")
    a("K0_pf:")
    if 'tlb' in OPT:
        a(f"""s_cmp_lt_u32 s2, 552
s_cbranch_scc1 K0_pf2
s_load_dwordx8 s[24:31], s[0:1], 32
s_load_dwordx2 s[32:33], s[0:1], 72
s_load_dwordx2 s[34:35], s[0:1], 88
s_load_dwordx2 s[36:37], s[0:1], 0
v_lshlrev_b32 v1, {TLBSH}, v0
s_mov_b32 s11, 0x00020000
s_waitcnt lgkmcnt(0)""")
        k = 2
        for p, sz in ((34, WS_SIZE), (24, 640*3072), (26, 640*3072), (28, 640*3072), (32, 2048*1280), (36, 2048*1280)):
            a(f"s_mov_b32 s8, s{p}\ns_mov_b32 s9, s{p+1}\ns_mov_b32 s10, {sz}")
            for o in range(0, sz, 384 << TLBSH):
                a(f"s_mov_b32 s20, {o}\nbuffer_load_dword v{k}, v1, s[8:11], s20 offen"); k += 1
        a("s_endpgm\nK0_pf2:")
    a(f"""s_load_dwordx2 s[8:9], s[0:1], 0
s_sub_u32 s3, s2, {NWP}
s_mul_i32 s3, s3, {384*128}
v_lshlrev_b32 v1, 7, v0
s_mov_b32 s10, {2048*1280}
s_mov_b32 s11, 0x00020000
s_waitcnt lgkmcnt(0)
buffer_load_dword v2, v1, s[8:11], s3 offen""")
    a("K0_end:\ns_endpgm")
    return ('k0_kernel', (NW0,1,1), (384,1,1), 1280, kd_block('k0_kernel', 56, 96))

C1,C2,S1,S2 = math.cos(2*math.pi/5),math.cos(4*math.pi/5),math.sin(2*math.pi/5),math.sin(4*math.pi/5)
def P(r): return f"v[{r}:{r+1}]"
def Q(r): return f"v[{r}:{r+3}]"

def col_slots(a, sW, vN, vG, out, tmp):
    a(f"""v_and_b32 v{tmp}, 7, v{vN}
s_lshl_b32 s40, s{sW}, 3
v_add_u32 v{out}, s40, v{tmp}
v_cmp_eq_u32 vcc, 0, v{out}
v_cndmask_b32 v{out+2}, 1.0, 0, vcc
v_cmp_lt_u32 s[42:43], 7, v{vN}
s_and_b64 s[44:45], s[42:43], vcc
s_andn2_b64 s[42:43], s[42:43], vcc
v_cndmask_b32 v{out}, v{out}, 64, s[44:45]
v_cndmask_b32 v{out+1}, 0, -1, s[42:43]
v_sub_u32 v{tmp}, 128, v{out}
v_cndmask_b32 v{tmp}, v{out}, v{tmp}, s[42:43]
v_mul_u32_u24 v{tmp}, 5, v{tmp}
v_lshrrev_b32 v{tmp+1}, 1, v{vG}
v_lshl_add_u32 v{tmp}, v{tmp+1}, 7, v{tmp}
v_add_u32 v{tmp+1}, 128, v{tmp}
v_subrev_u32 v{tmp+2}, 640, v{tmp+1}
v_min_u32 v{tmp+1}, v{tmp+1}, v{tmp+2}
v_sub_u32 v{tmp+2}, 640, v{tmp+1}
v_cmp_lt_u32 vcc, v{tmp+2}, v{tmp+1}
v_min_u32 v{tmp+1}, v{tmp+1}, v{tmp+2}
v_mov_b32 v{tmp+2}, 0x80008000
v_cndmask_b32 v{out+4}, 0, v{tmp+2}, vcc
v_and_b32 v{tmp+3}, 1, v{vG}
v_lshlrev_b32 v{tmp+3}, 4, v{tmp+3}
v_lshl_add_u32 v{out+3}, v{tmp+1}, 13, v{tmp+3}
v_mul_u32_u24 v{tmp+1}, 40960, v{out}
v_add_u32 v{out+5}, v{tmp+1}, v{tmp+3}""")

def allreduce64(a, v, t):
    for mode in ('quad_perm:[1,0,3,2]', 'quad_perm:[2,3,0,1]', 'row_ror:4', 'row_ror:8'):
        a(f"v_add_f32_dpp v{v}, v{v}, v{v} {mode} {DPP}")
    a(f"""v_mov_b32 v{t}, v{v}
v_permlane16_swap_b32 v{v}, v{t}
v_add_f32 v{v}, v{v}, v{t}
v_mov_b32 v{t}, v{v}
v_permlane32_swap_b32 v{v}, v{t}
v_add_f32 v{v}, v{v}, v{t}""")

def row_ids(a):
    a("""s_and_b32 s3, s2, 7
s_lshr_b32 s20, s2, 3
s_lshl_b32 s3, s3, 2
s_lshr_b32 s21, s20, 3
s_add_u32 s3, s3, s21
s_and_b32 s20, s20, 7
v_lshrrev_b32 v4, 6, v0
v_and_b32 v1, 63, v0
v_readfirstlane_b32 s22, v4
v_and_b32 v3, 31, v0
v_lshlrev_b32 v2, 3, v3
v_bfe_u32 v4, v0, 5, 1
v_lshl_add_u32 v2, v4, 8, v2
v_lshlrev_b32 v3, 2, v3
v_lshl_add_u32 v3, v4, 1, v3""")
def w5_consts(a, o, t, sgn):
    a(f"""v_cvt_f32_u32 v{t}, v3
v_mul_f32 v{t}, {fh(0.2*sgn)}, v{t}
v_add_f32 v{t+1}, {fh(0.2*sgn)}, v{t}
v_cos_f32 v{o}, v{t}
v_cos_f32 v{o+1}, v{t+1}
v_sin_f32 v{o+2}, v{t}
v_sin_f32 v{o+3}, v{t+1}
v_pk_add_f32 {P(t)}, {P(t)}, {P(t)}
v_cos_f32 v{o+4}, v{t}
v_cos_f32 v{o+5}, v{t+1}
v_sin_f32 v{o+6}, v{t}
v_sin_f32 v{o+7}, v{t+1}""")
def ln_rows(a, X, t):
    a(f"""v_pk_add_f32 {P(t)}, {P(X)}, {P(X+2)}
v_pk_add_f32 {P(t+2)}, {P(X+4)}, {P(X+6)}
v_pk_add_f32 {P(t)}, {P(t)}, {P(X+8)}
v_pk_add_f32 {P(t)}, {P(t)}, {P(t+2)}
v_add_f32 v{t}, v{t}, v{t+1}""")
    allreduce64(a, t, t+1)
    a(f"v_mul_f32 v{t}, {fh(-1/640)}, v{t}")
    for j in range(5): a(f"v_pk_add_f32 {P(X+2*j)}, {P(X+2*j)}, {P(t)} op_sel_hi:[1,0]")
    a(f"""v_pk_mul_f32 {P(t)}, {P(X)}, {P(X)}
v_pk_mul_f32 {P(t+2)}, {P(X+2)}, {P(X+2)}
v_pk_fma_f32 {P(t)}, {P(X+4)}, {P(X+4)}, {P(t)}
v_pk_fma_f32 {P(t+2)}, {P(X+6)}, {P(X+6)}, {P(t+2)}
v_pk_fma_f32 {P(t)}, {P(X+8)}, {P(X+8)}, {P(t)}
v_pk_add_f32 {P(t)}, {P(t)}, {P(t+2)}
v_add_f32 v{t}, v{t}, v{t+1}""")
    allreduce64(a, t, t+1)
    a(f"""v_mov_b32 v{t+1}, {fh(1e-5)}
v_fmac_f32 v{t+1}, {fh(1/640)}, v{t}
v_rsq_f32 v{t}, v{t+1}""")
def unpack_x(a, src, X):
    for k in range(3): a(f"v_permlane32_swap_b32 v{src+2*k}, v{src+2*k+1}")
    for j in range(5): a(f"v_lshlrev_b32 v{X+2*j}, 16, v{src+j}\nv_and_b32 v{X+2*j+1}, 0xffff0000, v{src+j}")
def r5_sconsts(a):
    a(f"""s_mov_b32 s30, {fh(C1)}
s_mov_b32 s31, {fh(C1)}
s_mov_b32 s32, {fh(C2)}
s_mov_b32 s33, {fh(C2)}
s_mov_b32 s34, {fh(S1)}
s_mov_b32 s35, {fh(S1)}
s_mov_b32 s36, {fh(S2)}
s_mov_b32 s37, {fh(S2)}""")

def k1(a):
    head(a, 'k1_kernel')
    PB = 12288
    a("""
s_cmp_ge_u32 s2, 256
s_cbranch_scc1 K1_side
@stamp
s_load_dwordx2 s[4:5], s[0:1], 0
s_load_dwordx2 s[6:7], s[0:1], 88
""")
    row_ids(a)
    a(f"""
s_lshl_b32 s21, s20, 3
s_add_u32 s21, s21, s22
s_lshl_b32 s21, s21, 5
s_add_u32 s21, s21, s3
s_mul_i32 s21, s21, 1280
v_lshlrev_b32 v4, 4, v1
s_lshl_b32 s23, s22, 10
s_add_u32 m0, s23, {PB}
s_waitcnt lgkmcnt(0)
""")
    srd(a, 8, 4, 2048*1280)
    srd(a, 12, 6, WS_SIZE)
    for k in range(3):
        a(f"buffer_load_dwordx2 {P(16+2*k)}, v2, s[8:11], s21 offen offset:{512*k}")
    a("""s_cmp_ge_u32 s22, 5
s_cbranch_scc1 K1_nodma
buffer_load_dwordx4 v4, s[12:15], s23 offen lds
K1_nodma:
v_and_b32 v5, 15, v0
v_bfe_u32 v6, v0, 4, 2""")
    col_slots(a, 22, 5, 6, 8, 22)
    w5_consts(a, 88, 22, -1.0)
    a(f"""
v_cvt_f32_u32 v22, v8
v_mul_f32 v22, {fh(1/128)}, v22
v_cvt_f32_u32 v23, v6
v_mul_f32 v23, {fh(8.0)}, v23
v_and_b32 v24, {fh(0.25)}, v9
v_fma_f32 v23, v23, v22, -v24
v_mul_f32 v24, {fh(25.0)}, v22
""")
    for t in range(4):
        for jj in range(4):
            a(f"""v_cos_f32 v25, v23
v_add_f32 v23, v23, v22
v_cos_f32 v26, v23
v_add_f32 v23, v23, v{24 if jj == 3 else 22}
v_cvt_pk_bf16_f32 v{96+4*t+jj}, v25, v26""")
    a(f"""
v_lshrrev_b32 v22, 3, v3
v_xor_b32 v22, s22, v22
v_lshlrev_b32 v22, 4, v22
v_and_b32 v23, 7, v3
v_lshl_add_u32 v22, v23, 1, v22
s_lshl_b32 s23, s22, 8
v_add_u32 v14, s23, v22
v_xor_b32 v15, {2048+128}, v14
v_lshlrev_b32 v7, 2, v3
v_xor_b32 v22, v6, v5
""")
    for t in range(4):
        a(f"""v_xor_b32 v23, {4*t}, v22
v_lshlrev_b32 v23, 4, v23
v_lshl_add_u32 v{112+t}, v5, 8, v23""")
    r5_sconsts(a)
    a(f"""
s_lshl_b32 s23, s3, 8
s_lshl_b32 s21, s20, 5
s_add_u32 s23, s23, s21
s_add_u32 s23, s23, {XF}
@stamp
s_waitcnt vmcnt(0)
s_barrier
@stamp
""")
    for j in range(5):
        a(f"ds_read_b64 {P(40+2*j)}, v7 offset:{PB+2560+512*j}\nds_read_b64 {P(50+2*j)}, v7 offset:{PB+512*j}")
    unpack_x(a, 16, 28)
    ln_rows(a, 28, 22)
    a("s_waitcnt lgkmcnt(0)")
    for j in range(5): a(f"v_pk_mul_f32 {P(40+2*j)}, {P(40+2*j)}, {P(22)} op_sel_hi:[1,0]")
    for j in range(5): a(f"v_pk_fma_f32 {P(28+2*j)}, {P(28+2*j)}, {P(40+2*j)}, {P(50+2*j)}")
    h = {(3*j) % 5: 28+2*j for j in range(5)}
    t1,t2,t3,t4 = 40,42,44,46; z0,p1,q1,p2,q2 = 48,50,52,54,56
    a(f"""v_pk_add_f32 {P(t1)}, {P(h[1])}, {P(h[4])}
v_pk_add_f32 {P(t2)}, {P(h[2])}, {P(h[3])}
v_pk_add_f32 {P(t3)}, {P(h[1])}, {P(h[4])} neg_lo:[0,1] neg_hi:[0,1]
v_pk_add_f32 {P(t4)}, {P(h[2])}, {P(h[3])} neg_lo:[0,1] neg_hi:[0,1]
v_pk_add_f32 {P(z0)}, {P(h[0])}, {P(t1)}
v_pk_fma_f32 {P(p1)}, s[30:31], {P(t1)}, {P(h[0])}
v_pk_fma_f32 {P(p2)}, s[32:33], {P(t1)}, {P(h[0])}
v_pk_mul_f32 {P(q1)}, s[34:35], {P(t3)}
v_pk_mul_f32 {P(q2)}, s[36:37], {P(t3)}
v_pk_add_f32 {P(z0)}, {P(z0)}, {P(t2)}
v_pk_fma_f32 {P(p1)}, s[32:33], {P(t2)}, {P(p1)}
v_pk_fma_f32 {P(p2)}, s[30:31], {P(t2)}, {P(p2)}
v_pk_fma_f32 {P(q1)}, s[36:37], {P(t4)}, {P(q1)}
v_pk_fma_f32 {P(q2)}, s[34:35], {P(t4)}, {P(q2)} neg_lo:[0,1,0] neg_hi:[0,1,0]
v_cvt_pk_bf16_f32 v22, v{z0}, v{z0+1}
ds_write_b32 v14, v22 offset:8192""")
    for k, (p, q) in enumerate(((p1, q1), (p2, q2))):
        c, s = 88+4*k, 90+4*k; r, im = 28+4*k, 30+4*k
        a(f"""v_pk_mul_f32 {P(r)}, {P(p)}, {P(c)}
v_pk_mul_f32 {P(im)}, {P(p)}, {P(s)}
v_pk_fma_f32 {P(r)}, {P(q)}, {P(s)}, {P(r)}
v_pk_fma_f32 {P(im)}, {P(q)}, {P(c)}, {P(im)} neg_lo:[1,0,0] neg_hi:[1,0,0]
v_cvt_pk_bf16_f32 v{23+2*k}, v{r}, v{r+1}
v_cvt_pk_bf16_f32 v{24+2*k}, v{im}, v{im+1}
ds_write_b32 v{14+k}, v{23+2*k}
ds_write_b32 v{14+k}, v{24+2*k} offset:4096""")
    a("@stamp\ns_waitcnt lgkmcnt(0)\ns_barrier\n@stamp")
    for T in range(3):
        for t in range(4):
            a(f"ds_read_b128 {Q(28+16*T+4*t)}, v{112+t} offset:{4096*T}")
    n = 12
    for T in range(3):
        for t in range(4):
            n -= 1
            a(f"s_waitcnt lgkmcnt({n})")
            a(f"v_mfma_f32_16x16x32_bf16 {Q(76+4*T)}, {Q(28+16*T+4*t)}, {Q(96+4*t)}, {'0' if t == 0 else Q(76+4*T)}")
    a(f"""v_and_b32 v22, 0x80008000, v9
v_and_b32 v23, v9, v12
v_bfi_b32 v24, v9, v22, v12
v_cmp_neq_f32 vcc, 0, v10
v_pk_mul_f32 {P(28)}, {P(76)}, {P(10)} op_sel_hi:[1,0]
v_pk_mul_f32 {P(30)}, {P(78)}, {P(10)} op_sel_hi:[1,0]
v_pk_mul_f32 {P(32)}, {P(80)}, {P(10)} op_sel_hi:[1,0]
v_pk_mul_f32 {P(34)}, {P(82)}, {P(10)} op_sel_hi:[1,0]
v_cndmask_b32 v25, 0, -1, vcc""")
    for i in range(4):
        a(f"v_add_f32_dpp v{76+i}, v{32+i}, v{76+i} row_ror:8 {DPP}")
        a(f"v_subrev_f32_dpp v{80+i}, v{28+i}, v{80+i} row_ror:8 {DPP}")
    a(f"""v_cvt_pk_bf16_f32 v36, v76, v77
v_cvt_pk_bf16_f32 v37, v78, v79
v_cvt_pk_bf16_f32 v38, v80, v81
v_cvt_pk_bf16_f32 v39, v82, v83
v_cvt_pk_bf16_f32 v44, v84, v85
v_cvt_pk_bf16_f32 v45, v86, v87
v_xor_b32 v36, v36, v23
v_xor_b32 v37, v37, v23
v_xor_b32 v38, v38, v24
v_xor_b32 v39, v39, v24
v_xor_b32 v44, v44, v22
v_xor_b32 v45, v45, v22
v_cndmask_b32 v40, v36, v38, s[42:43]
v_cndmask_b32 v41, v37, v39, s[42:43]
v_cndmask_b32 v42, v38, v36, s[42:43]
v_cndmask_b32 v43, v39, v37, s[42:43]
buffer_store_dwordx4 {Q(40)}, v11, s[12:15], s23 offen
v_and_b32_dpp v46, v44, v25 row_ror:8 {DPP}
v_and_b32_dpp v47, v45, v25 row_ror:8 {DPP}
s_not_b64 exec, s[42:43]
s_mov_b32 exec_hi, 0
buffer_store_dwordx4 {Q(44)}, v13, s[12:15], s23 offen
@stamp
@dump 12
s_endpgm
K1_side:
s_cmp_ge_u32 s2, 352
s_cbranch_scc1 K1_end
s_load_dwordx2 s[4:5], s[0:1], 48
s_load_dwordx2 s[6:7], s[0:1], 88
s_sub_u32 s3, s2, 256
s_cmp_lg_u32 s3, 0
s_cbranch_scc1 K1_nz
s_waitcnt lgkmcnt(0)
s_mov_b32 s12, s6
s_mov_b32 s13, s7
s_mov_b32 s14, {WS_SIZE}
s_mov_b32 s15, 0x00020000
s_mov_b32 s20, {FLG}
v_lshlrev_b32 v1, 7, v0
v_mov_b32 v24, 0
buffer_store_dword v24, v1, s[12:15], s20 offen
K1_nz:
v_cmp_gt_u32 vcc, 320, v0
s_and_saveexec_b64 s[30:31], vcc
s_cbranch_execz K1_end
v_mul_u32_u24 v1, 52429, v0
v_lshrrev_b32 v1, 22, v1
v_mul_u32_u24 v2, 80, v1
v_sub_u32 v2, v0, v2
v_mul_u32_u24 v3, 52429, v2
v_lshrrev_b32 v3, 19, v3
v_mul_u32_u24 v4, 10, v3
v_sub_u32 v4, v2, v4
v_mul_u32_u24 v5, 1280, v1
v_lshl_add_u32 v5, v2, 4, v5
s_mov_b32 s20, {1536*160}
v_mul_lo_u32 v6, v3, s20
v_lshl_add_u32 v6, v4, 4, v6
v_mul_u32_u24 v7, 160, v1
v_add_u32 v6, v6, v7
s_mul_i32 s20, s3, {16*1280}
s_lshr_b32 s21, s3, 1
s_mul_i32 s21, s21, {32*160}
s_and_b32 s22, s3, 1
s_mul_i32 s22, s22, {8*160}
s_add_u32 s21, s21, s22
s_add_u32 s21, s21, {WDT}
s_waitcnt lgkmcnt(0)""")
    srd(a, 8, 4, 1536*1280)
    srd(a, 12, 6, WS_SIZE)
    for q in range(4):
        a(f"buffer_load_dwordx4 {Q(8+4*q)}, v5, s[8:11], s20 offen")
        if q < 3: a("s_add_u32 s20, s20, 5120")
    for q in range(4):
        a(f"s_waitcnt vmcnt(3)\nbuffer_store_dwordx4 {Q(8+4*q)}, v6, s[12:15], s21 offen offset:{(16*(q&1) + 4*(q>>1))*160}")
    a("K1_end:\ns_endpgm")
    return ('k1_kernel', (352,1,1), (512,1,1), PB+5120, kd_block('k1_kernel', 116, 96))

def k2(a):
    head(a, 'k2_kernel')
    a(f"""
s_cmp_ge_u32 s2, 321
s_cbranch_scc1 K2_side
@stamp
s_load_dwordx2 s[6:7], s[0:1], 88
v_and_b32 v1, 15, v0
v_bfe_u32 v2, v0, 4, 2
v_lshrrev_b32 v3, 6, v0
v_and_b32 v9, 63, v0
v_readfirstlane_b32 s3, v3
v_lshl_add_u32 v4, v3, 2, v2
v_xor_b32 v10, v4, v1
v_lshlrev_b32 v10, 4, v10
v_lshl_add_u32 v4, v4, 8, v10
v_lshrrev_b32 v5, 1, v1
v_and_b32 v6, 1, v1
v_lshl_add_u32 v5, v6, 3, v5
v_lshl_add_u32 v5, v2, 4, v5
v_lshlrev_b32 v5, 4, v5
v_lshl_add_u32 v5, v3, 11, v5
s_lshl_b32 s20, s2, 13
s_add_u32 s21, s20, {XF}
s_add_u32 s22, s21, 4096
s_add_u32 s23, s20, {WP}
s_lshl_b32 s24, s3, 10
s_mov_b32 m0, s24
s_waitcnt lgkmcnt(0)
@stamp
""")
    srd(a, 8, 6, WS_SIZE)
    a(f"""buffer_load_dwordx4 v4, s[8:11], s21 offen lds
s_add_u32 m0, s24, 4096
s_nop 0
buffer_load_dwordx4 v4, s[8:11], s22 offen lds
buffer_load_dwordx4 v[48:51], v5, s[8:11], s23 offen
buffer_load_dwordx4 v[52:55], v5, s[8:11], s23 offen offset:1024
v_lshl_add_u32 v6, v3, 4, v1
v_cvt_f32_u32 v6, v6
v_cvt_f32_u32 v7, v2
v_cvt_f32_u32 v8, v1
v_mul_f32 v7, 4.0, v7
""")
    M = lambda t: 56+6*t
    N = lambda x, y: 80+6*(2*x+y)
    def gen(R, cur, step, last):
        for hh in range(2):
            a(f"""v_cos_f32 v12, v{cur}
v_sin_f32 v13, v{cur}
v_add_f32 v{cur}, v{cur}, v{step}
v_cos_f32 v14, v{cur}
v_sin_f32 v15, v{cur}
v_add_f32 v{cur}, v{cur}, v{last if hh else step}
v_cvt_pk_bf16_f32 v{R+2+hh}, v12, v14
v_cvt_pk_bf16_f32 v{R+hh}, -v13, -v15
v_cvt_pk_bf16_f32 v{R+4+hh}, v13, v15""")
    a(f"""v_mul_f32 v16, {fh(1/64)}, v6
v_mul_f32 v10, v7, v16
v_mul_f32 v11, {fh(13.0)}, v16""")
    for t in range(4): gen(M(t), 10, 16, 11)
    for x in range(2):
        a(f"""v_add_f32 v16, {fh(16.0*x)}, v8
v_mul_f32 v16, {fh(1/32)}, v16
v_mul_f32 v10, v7, v16
v_mul_f32 v11, {fh(13.0)}, v16""")
        for y in range(2): gen(N(x, y), 10, 16, 11)
    a(f"""v_mul_f32 v16, {fh(-1/2048)}, v6
v_mul_f32 v10, v7, v16
v_mul_f32 v11, {fh(13.0)}, v16""")
    for k in range(8):
        a(f"v_cos_f32 v{104+k}, v10\nv_sin_f32 v{112+k}, v10")
        if k < 7: a(f"v_add_f32 v10, v10, v{11 if k == 3 else 16}")
    a(f"""s_lshl_b32 s24, s3, 4
v_cvt_f32_u32 v12, s24
v_add_f32 v12, v12, v7
s_mov_b32 s26, {fh(2.0/(2048*640))}
s_cmp_eq_u32 s2, 0
s_cselect_b32 s26, {fh(1.0/(2048*640))}, s26
s_cmp_eq_u32 s2, 320
s_cselect_b32 s26, {fh(1.0/(2048*640))}, s26
s_mov_b32 s27, s26""")
    for nt in range(2):
        a(f"""v_add_f32 v16, {fh(16.0*nt)}, v8
v_mul_f32 v16, {fh(1/2048)}, v16
v_mul_f32 v10, v12, v16""")
        for i in range(4):
            k = 4*nt+i
            a(f"v_cos_f32 v{120+k}, v10\nv_sin_f32 v{128+k}, v10")
            if i < 3: a("v_add_f32 v10, v10, v16")
    for k in range(8): a(f"v_pk_mul_f32 {P(120+2*k)}, s[26:27], {P(120+2*k)}")
    a(f"""v_xor_b32 v10, v2, v1
v_lshlrev_b32 v10, 4, v10
v_lshl_add_u32 v10, v1, 8, v10
v_xor_b32 v11, 64, v10
v_xor_b32 v12, 128, v10
v_xor_b32 v13, 192, v10
v_lshlrev_b32 v7, 4, v9
s_lshl_b32 s24, s3, 10
v_add_u32 v6, s24, v7
v_lshlrev_b32 v5, 8, v1
v_lshl_add_u32 v5, v3, 6, v5
v_lshl_add_u32 v5, v2, 4, v5
s_add_u32 s21, s20, {YF}
s_add_u32 s22, s21, 4096
@stamp
s_waitcnt vmcnt(2)
s_barrier
@stamp""")
    D = lambda mt, t: 16+16*mt+4*t
    for t in range(4):
        for mt in range(2):
            a(f"ds_read_b128 {Q(D(mt,t))}, v{10+t} offset:{4096*mt}")
    def mf(d, A, B, first): a(f"v_mfma_f32_16x16x32_bf16 {Q(d)}, {Q(A)}, {Q(B)}, {'0' if first else Q(d)}")
    for t in range(4):
        a(f"s_waitcnt lgkmcnt({6-2*t})")
        for mt in range(2):
            mf(136+8*mt, D(mt,t), M(t)+2, t == 0)
            mf(140+8*mt, D(mt,t), M(t), t == 0)
    a("s_waitcnt vmcnt(0)")
    for k in range(8):
        a(f"v_lshlrev_b32 v{32+k}, 16, v{48+k}\nv_and_b32 v{40+k}, 0xffff0000, v{48+k}")
    def tw_pack(tr, ti, B, swap):
        for blk in range(2):
            for hh in range(2):
                r = 136+8*blk+2*hh; i = r+4; c = tr+4*blk+2*hh; s = ti+4*blk+2*hh; t = 48+4*blk+2*hh
                a(f"""v_pk_mul_f32 {P(t)}, {P(i)}, {P(s)}
v_pk_mul_f32 {P(i)}, {P(i)}, {P(c)}
v_pk_fma_f32 {P(i)}, {P(r)}, {P(s)}, {P(i)}
v_pk_fma_f32 {P(r)}, {P(r)}, {P(c)}, {P(t)} neg_lo:[0,0,1] neg_hi:[0,0,1]""")
        for blk in range(2):
            for hh in range(2):
                r = 136+8*blk+2*hh
                a(f"v_cvt_pk_bf16_f32 v{B+4*blk+hh+(2 if swap else 0)}, v{r}, v{r+1}")
                a(f"v_cvt_pk_bf16_f32 v{B+4*blk+hh+(0 if swap else 2)}, v{r+4}, v{r+5}")
    tw_pack(104, 112, 16, False)
    for y in range(2):
        for x in range(2):
            mf(136+8*x, N(x,y)+2, 16+4*y, y == 0)
            mf(140+8*x, N(x,y), 16+4*y, y == 0)
    tw_pack(32, 40, 24, True)
    for y in range(2):
        for x in range(2):
            mf(136+8*x, 24+4*y, N(x,y), y == 0)
            mf(140+8*x, 24+4*y, N(x,y)+2, y == 0)
    tw_pack(120, 128, 16, True)
    a(f"""ds_write_b128 v6, {Q(16)} offset:8192
ds_write_b128 v6, {Q(20)} offset:12288
@stamp
s_waitcnt lgkmcnt(0)
s_barrier
@stamp""")
    for t in range(4):
        for nt in range(2):
            a(f"ds_read_b128 {Q(D(nt,t))}, v7 offset:{8192+4096*nt+1024*t}")
    for t in range(4):
        a(f"s_waitcnt lgkmcnt({6-2*t})")
        for nt in range(2):
            mf(136+8*nt, M(t), D(nt,t), t == 0)
            mf(140+8*nt, M(t)+2, D(nt,t), t == 0)
    for nt in range(2):
        o = 48+4*nt; s = 136+8*nt
        for k in range(4): a(f"v_cvt_pk_bf16_f32 v{o+k}, v{s+2*k}, v{s+2*k+1}")
        a(f"buffer_store_dwordx4 {Q(o)}, v5, s[8:11], s{21+nt} offen")
    a(f"""@stamp
@dump 8
s_endpgm
K2_side:
s_cmp_ge_u32 s2, 381
s_cbranch_scc1 K2_end
s_load_dwordx4 s[4:7], s[0:1], 32
s_sub_u32 s3, s2, 321
s_lshl_b32 s3, s3, 15
v_lshlrev_b32 v1, 7, v0
s_waitcnt lgkmcnt(0)""")
    srd(a, 8, 4, 640*3072)
    srd(a, 12, 6, 640*3072)
    a("""buffer_load_dword v2, v1, s[8:11], s3 offen
buffer_load_dword v3, v1, s[12:15], s3 offen""")
    if 'wstouch' in OPT:
        a(f"""s_load_dwordx2 s[16:17], s[0:1], 88
s_mov_b32 s18, {HIDF + 2048*3072}
s_mov_b32 s19, 0x00020000
s_add_u32 s3, s3, {X1}
s_waitcnt lgkmcnt(0)""")
        for k in range(7):
            a(f"buffer_load_dword v{4+k}, v1, s[16:19], s3 offen\ns_add_u32 s3, s3, {60*32768}")
    a("K2_end:\ns_endpgm")
    return ('k2_kernel', (381,1,1), (256,1,1), 16384, kd_block('k2_kernel', 152, 96))

def k3(a):
    head(a, 'k3_kernel')
    ZB = 12288; ZR = 528; ZC = 8*ZR; PB = ZB + 5*ZC
    a("""
s_cmp_ge_u32 s2, 256
s_cbranch_scc1 K3_end
@stamp
s_load_dwordx2 s[4:5], s[0:1], 0
s_load_dwordx2 s[6:7], s[0:1], 88
""")
    row_ids(a)
    a("v_and_b32 v5, 15, v0\nv_bfe_u32 v6, v0, 4, 2")
    col_slots(a, 22, 5, 6, 8, 22)
    a(f"""
s_lshl_b32 s23, s3, 8
s_lshl_b32 s21, s20, 5
s_add_u32 s23, s23, s21
s_add_u32 s23, s23, {YF}
s_lshl_b32 s21, s20, 3
s_add_u32 s21, s21, s22
s_lshl_b32 s24, s3, 6
s_add_u32 s24, s24, s21
s_lshl_b32 s21, s21, 5
s_add_u32 s21, s21, s3
s_mul_i32 s21, s21, 1280
s_mul_i32 s24, s24, 1280
v_lshlrev_b32 v4, 4, v1
s_lshl_b32 s25, s22, 10
s_add_u32 m0, s25, {PB}
s_add_u32 s25, s25, 5120
s_waitcnt lgkmcnt(0)
""")
    srd(a, 8, 4, 2048*1280)
    srd(a, 12, 6, WS_SIZE)
    a(f"""buffer_load_dwordx4 {Q(28)}, v11, s[12:15], s23 offen
buffer_load_dwordx4 {Q(32)}, v13, s[12:15], s23 offen
buffer_load_dwordx4 v4, s[12:15], s25 offen lds""")
    for k in range(3):
        a(f"buffer_load_dwordx2 {P(16+2*k)}, v2, s[8:11], s21 offen offset:{512*k}")
    w5_consts(a, 88, 22, 1.0)
    a(f"""
s_lshl_b32 s27, s22, 4
v_add_u32 v22, s27, v5
v_cvt_f32_u32 v22, v22
v_mul_f32 v22, {fh(1/128)}, v22
v_and_b32 v23, 1, v6
v_cvt_f32_u32 v23, v23
v_mul_f32 v23, 4.0, v23
v_lshrrev_b32 v24, 1, v6
v_cvt_f32_u32 v24, v24
v_mul_f32 v24, {fh(0.25)}, v24
v_fma_f32 v23, v23, v22, v24
v_mul_f32 v24, {fh(5.0)}, v22
v_mul_f32 v27, {fh(64.0)}, v22
v_cmp_eq_u32 vcc, 2, v6
v_cndmask_b32 v27, v23, v27, vcc
""")
    for t in range(4):
        for jj in range(4):
            a(f"""v_cos_f32 v25, v{27 if (t, jj) == (0, 0) else 23}
v_add_f32 v23, v23, v22
v_cos_f32 v26, v23
v_add_f32 v23, v23, v{24 if jj & 1 else 22}
v_cvt_pk_bf16_f32 v{96+4*t+jj}, v25, v26""")
    a(f"""
v_lshlrev_b32 v14, 5, v5
v_lshl_add_u32 v14, v6, 3, v14
s_lshl_b32 s27, s22, 9
v_add_u32 v14, s27, v14
v_and_b32 v15, 4096, v9
v_add_u32 v15, v15, v14
v_xor_b32 v112, 4096, v15
v_lshlrev_b32 v113, 3, v1
v_and_b32 v22, 7, v5
v_mul_u32_u24 v22, {ZR}, v22
v_lshl_add_u32 v22, v6, 4, v22
s_lshl_b32 s27, s22, 6
v_add_u32 v115, s27, v22
v_lshrrev_b32 v22, 3, v5
v_mul_u32_u24 v22, {2*ZC}, v22
v_add_u32 v114, v115, v22
v_lshlrev_b32 v4, 2, v3
s_mul_i32 s27, s22, {ZR}
v_add_u32 v7, s27, v4
v_and_b32 v22, 0x80000000, v9
v_xor_b32 v22, v22, v10
v_and_b32 v23, 0x80008000, v9
v_xor_b32 v24, v23, v12
""")
    r5_sconsts(a)
    a(f"""@stamp
s_waitcnt vmcnt(4)
@stamp
v_cndmask_b32 v32, v32, v34, s[42:43]
v_cndmask_b32 v33, v33, v35, s[42:43]
v_xor_b32 v26, v30, v24
v_xor_b32 v27, v31, v24
v_xor_b32 v30, v30, v12
v_xor_b32 v31, v31, v12
ds_write_b64 v14, {P(32)} offset:8192""")
    for hh in range(2):
        a(f"""v_lshlrev_b32 v{36+2*hh}, 16, v{28+hh}
v_and_b32 v{37+2*hh}, 0xffff0000, v{28+hh}
v_lshlrev_b32 v{40+2*hh}, 16, v{30+hh}
v_and_b32 v{41+2*hh}, 0xffff0000, v{30+hh}
v_lshlrev_b32 v{44+2*hh}, 16, v{28+hh}
v_and_b32 v{45+2*hh}, 0xffff0000, v{28+hh}
v_lshlrev_b32 v{48+2*hh}, 16, v{26+hh}
v_and_b32 v{49+2*hh}, 0xffff0000, v{26+hh}""")
    for i in range(4):
        a(f"v_fmac_f32_dpp v{44+i}, v{36+i}, v22 row_ror:8 {DPP}")
        a(f"v_fmac_f32_dpp v{48+i}, v{40+i}, v10 row_ror:8 {DPP}")
    a(f"""v_cvt_pk_bf16_f32 v52, v44, v45
v_cvt_pk_bf16_f32 v53, v46, v47
v_cvt_pk_bf16_f32 v54, v48, v49
v_cvt_pk_bf16_f32 v55, v50, v51
ds_write_b64 v15, {P(52)}
ds_write_b64 v112, {P(54)}
s_waitcnt vmcnt(3) lgkmcnt(0)
s_barrier
@stamp""")
    for T in range(3):
        for t in range(4):
            for x in range(2):
                a(f"ds_read_b64_tr_b16 {P(28+16*T+4*t+2*x)}, v113 offset:{4096*T+1024*t+512*x}")
            if T == 1 and t == 3:
                a("s_waitcnt lgkmcnt(8)")
                for tt in range(4): a(f"v_mfma_f32_16x16x32_bf16 {Q(76)}, {Q(96+4*tt)}, {Q(28+4*tt)}, {'0' if tt == 0 else Q(76)}")
    for T in (1, 2):
        a(f"s_waitcnt lgkmcnt({8 if T == 1 else 0})")
        for t in range(4): a(f"v_mfma_f32_16x16x32_bf16 {Q(76+4*T)}, {Q(96+4*t)}, {Q(28+16*T+4*t)}, {'0' if t == 0 else Q(76+4*T)}")
    for j in range(5):
        a(f"ds_read_b64 {P(116+2*j)}, v4 offset:{PB+512*j}")
    a(f"""ds_write_b128 v114, {Q(76)} offset:{ZB+ZC}
ds_write_b128 v114, {Q(80)} offset:{ZB+2*ZC}
ds_write_b128 v115, {Q(84)} offset:{ZB}
s_waitcnt vmcnt(0)""")
    unpack_x(a, 16, 28)
    a("@stamp\ns_waitcnt lgkmcnt(0)\ns_barrier\n@stamp")
    for c in range(5): a(f"ds_read_b64 {P(40+2*c)}, v7 offset:{ZB+ZC*c}")
    for j in range(5):
        a(f"ds_read_b64 {P(136+2*j)}, v4 offset:{PB+5120+512*j}\nds_read_b64 {P(126+2*j)}, v4 offset:{PB+2560+512*j}")
    a("s_waitcnt lgkmcnt(10)")
    for k in range(2):
        r, im = 42+4*k, 44+4*k; c, s = 88+4*k, 90+4*k; R, I = 50+4*k, 52+4*k
        a(f"""v_pk_mul_f32 {P(R)}, {P(r)}, {P(c)}
v_pk_mul_f32 {P(I)}, {P(r)}, {P(s)}
v_pk_fma_f32 {P(R)}, {P(im)}, {P(s)}, {P(R)} neg_lo:[1,0,0] neg_hi:[1,0,0]
v_pk_fma_f32 {P(I)}, {P(im)}, {P(c)}, {P(I)}""")
    z0,z1r,z1i,z2r,z2i = 40,50,52,54,56
    A,B,Cc,Dd,E = 58,60,62,64,66
    sl = {(3*j) % 5: j for j in range(5)}
    X = lambda d2: P(28+2*sl[d2]); G = lambda d2: P(116+2*sl[d2])
    a(f"""v_pk_add_f32 {P(E)}, {P(z0)}, {P(z1r)}
v_pk_fma_f32 {P(A)}, s[30:31], {P(z1r)}, {P(z0)}
v_pk_fma_f32 {P(B)}, s[32:33], {P(z1r)}, {P(z0)}
v_pk_mul_f32 {P(Cc)}, s[34:35], {P(z1i)}
v_pk_mul_f32 {P(Dd)}, s[36:37], {P(z1i)}
v_pk_add_f32 {P(E)}, {P(E)}, {P(z2r)}
v_pk_fma_f32 {P(A)}, s[32:33], {P(z2r)}, {P(A)}
v_pk_fma_f32 {P(B)}, s[30:31], {P(z2r)}, {P(B)}
v_pk_fma_f32 {P(Cc)}, s[36:37], {P(z2i)}, {P(Cc)}
v_pk_fma_f32 {P(Dd)}, s[34:35], {P(z2i)}, {P(Dd)} neg_lo:[0,1,0] neg_hi:[0,1,0]
v_pk_fma_f32 {X(0)}, {G(0)}, {P(E)}, {X(0)}
v_pk_add_f32 {P(68)}, {P(A)}, {P(Cc)} neg_lo:[0,1] neg_hi:[0,1]
v_pk_add_f32 {P(70)}, {P(A)}, {P(Cc)}
v_pk_add_f32 {P(72)}, {P(B)}, {P(Dd)} neg_lo:[0,1] neg_hi:[0,1]
v_pk_add_f32 {P(74)}, {P(B)}, {P(Dd)}
v_pk_fma_f32 {X(1)}, {G(1)}, {P(68)}, {X(1)}
v_pk_fma_f32 {X(4)}, {G(4)}, {P(70)}, {X(4)}
v_pk_fma_f32 {X(2)}, {G(2)}, {P(72)}, {X(2)}
v_pk_fma_f32 {X(3)}, {G(3)}, {P(74)}, {X(3)}
s_add_u32 s25, s24, {X1}
s_add_u32 s26, s24, {H2F}""")
    for j in range(5): a(f"v_cvt_pk_bf16_f32 v{16+j}, v{28+2*j}, v{29+2*j}")
    a(f"""v_permlane32_swap_b32 v16, v17
v_permlane32_swap_b32 v18, v19
buffer_store_dwordx2 {P(16)}, v2, s[12:15], s25 offen
buffer_store_dwordx2 {P(18)}, v2, s[12:15], s25 offen offset:512""")
    ln_rows(a, 28, 22)
    a(f"""v_bfe_u32 v24, v0, 5, 1
v_mul_u32_u24 v24, {H2F - X1 - 256}, v24
v_add_u32 v24, v24, v2
s_waitcnt lgkmcnt(0)""")
    for j in range(5): a(f"v_pk_mul_f32 {P(136+2*j)}, {P(136+2*j)}, {P(22)} op_sel_hi:[1,0]")
    for j in range(5): a(f"v_pk_fma_f32 {P(28+2*j)}, {P(28+2*j)}, {P(136+2*j)}, {P(126+2*j)}")
    for j in range(4): a(f"v_cvt_pk_bf16_f32 v{40+j}, v{28+2*j}, v{29+2*j}")
    a(f"""v_cvt_pk_bf16_f32 v21, v36, v37
v_permlane32_swap_b32 v40, v41
v_permlane32_swap_b32 v42, v43
v_permlane32_swap_b32 v20, v21
buffer_store_dwordx2 {P(40)}, v2, s[12:15], s26 offen
buffer_store_dwordx2 {P(42)}, v2, s[12:15], s26 offen offset:512
buffer_store_dwordx2 {P(20)}, v24, s[12:15], s25 offen offset:1024
@stamp
@dump 12
K3_end:
s_endpgm""")
    return ('k3_kernel', (256,1,1), (512,1,1), PB+8192, kd_block('k3_kernel', 148, 96))

def ramp(NST, D, first=3):
    nxt = first; sched = {}
    for s in range(NST):
        lim = min(NST, s + D + 1)
        take = []
        while nxt < lim and len(take) < 2:
            take.append(nxt); nxt += 1
        sched[s] = take
    return list(range(first)), sched
def k4(a):
    head(a, 'k4_kernel')
    NST = 20; WS_ = 12288; HB = 98304; HS = 16384
    a(f"""
s_cmp_ge_u32 s2, 256
s_cbranch_scc1 K4_end
@stamp
s_load_dwordx4 s[4:7], s[0:1], 32
s_load_dwordx2 s[20:21], s[0:1], 88
s_and_b32 s3, s2, 7
s_lshr_b32 s22, s2, 3
s_and_b32 s23, s3, 1
s_lshl_b32 s23, s23, 3
s_and_b32 s24, s22, 7
s_add_u32 s23, s23, s24
s_lshr_b32 s24, s3, 1
s_lshl_b32 s24, s24, 2
s_lshr_b32 s25, s22, 3
s_add_u32 s24, s24, s25
v_lshrrev_b32 v1, 6, v0
v_and_b32 v2, 63, v0
v_readfirstlane_b32 s25, v1
s_cmp_lt_u32 s25, 8
s_cbranch_scc1 K4_cons
s_sub_u32 s25, s25, 8
""")
    for q in range(3):
        a(f"""v_add_u32 v10, {64*q}, v2
v_mul_u32_u24 v11, 43691, v10
v_lshrrev_b32 v11, 19, v11
v_mul_u32_u24 v12, 12, v11
v_sub_u32 v12, v10, v12
v_lshrrev_b32 v13, 2, v11
v_and_b32 v13, 2, v13
v_xor_b32 v12, v12, v13
v_mul_u32_u24 v11, 3072, v11
v_lshl_add_u32 v11, v12, 4, v11
v_subrev_u32 v{3+q}, {1024*q}, v11""")
    for q in range(4):
        a(f"""v_lshrrev_b32 v10, 4, v2
v_add_u32 v10, {4*q}, v10
v_xor_b32 v10, v10, v2
v_and_b32 v10, 7, v10
v_lshrrev_b32 v11, 3, v2
v_mul_u32_u24 v11, 1280, v11
v_lshl_add_u32 v11, v10, 4, v11
v_add_u32 v{6+q}, {q*(10240-1024)}, v11""")
    a(f"""
s_and_b32 s26, s25, 1
s_mul_i32 s27, s26, {16*3072}
s_mul_i32 s28, s24, 192
s_add_u32 s27, s27, s28
s_mul_i32 s28, s25, 3072
s_lshl_b32 s29, s23, 2
s_add_u32 s29, s29, s25
s_mul_i32 s29, s29, 40960
s_add_u32 s29, s29, {H2F}
s_lshl_b32 s30, s25, 12
s_waitcnt lgkmcnt(0)
s_cmp_lt_u32 s25, 2
s_cselect_b32 s8, s4, s6
s_cselect_b32 s9, s5, s7
s_mov_b32 s10, {640*3072}
s_mov_b32 s11, 0x00020000
""")
    srd(a, 12, 20, WS_SIZE)
    cnt = []
    def issue(s):
        n = 0
        if s % 2 == 0:
            a(f"s_add_u32 m0, s30, {HB + ((s//2) % 4)*HS}")
            for q in range(4):
                a(f"buffer_load_dwordx4 v{6+q}, s[12:15], s29 offen offset:{1024*q} lds")
            a("s_add_u32 s29, s29, 128"); n += 4
        a(f"s_add_u32 m0, s28, {(s % 8)*WS_}")
        for q in range(3):
            a(f"buffer_load_dwordx4 v{3+q}, s[8:11], s27 offen offset:{1024*q} lds")
        a(f"s_add_u32 s27, s27, {32*3072}"); n += 3
        cnt.append(n)
    init, sched = ramp(NST, 6)
    for s in init: issue(s)
    for s in range(NST):
        a(f"s_waitcnt vmcnt({sum(cnt[s+1:])})\ns_barrier")
        for g in sched[s]: issue(g)
    a("@stamp\n@dump 12\ns_endpgm")
    a.st.n = 1
    a(f"""K4_cons:
s_lshr_b32 s26, s25, 2
s_and_b32 s27, s25, 3
v_lshrrev_b32 v3, 4, v2
v_bfe_u32 v4, v2, 2, 2
v_lshl_add_u32 v4, v3, 3, v4
v_mul_u32_u24 v4, 192, v4
v_and_b32 v5, 3, v2
v_lshl_add_u32 v4, v5, 3, v4
v_and_b32 v5, 1, v3
v_lshlrev_b32 v5, 5, v5
s_mul_i32 s28, s26, 96
v_add_u32 v4, s28, v4
s_cmp_eq_u32 s26, 0
s_cselect_b32 s29, 1, -1
v_mul_lo_u32 v5, v5, s29
v_add_u32 v6, v4, v5
v_sub_u32 v7, v4, v5
v_add_u32 v8, {4*WS_}, v6
v_add_u32 v9, {4*WS_}, v7
v_and_b32 v10, 15, v2
v_lshrrev_b32 v11, 1, v10
v_xor_b32 v11, v11, v3
v_lshlrev_b32 v11, 4, v11
v_lshl_add_u32 v11, v10, 7, v11
s_lshl_b32 s28, s27, 12
s_add_u32 s28, s28, {HB}
v_add_u32 v11, s28, v11
v_xor_b32 v12, 64, v11
s_waitcnt lgkmcnt(0)
""")
    srd(a, 12, 20, WS_SIZE)
    ACC = lambda mat, i, nt: 16 + 4*(6*nt + 3*mat + i)
    FA = lambda buf, mat, i: 64 + 32*buf + 4*(3*mat+i)
    FB = lambda buf, nt: 88 + 32*buf + 4*nt
    def reads(s):
        L = []; sl = s % 8
        for nt in range(2):
            f = FB(s & 1, nt)
            L.append(f"ds_read_b128 v[{f}:{f+3}], v{11 + (s & 1)} offset:{((s//2) % 4)*HS + 2048*nt}")
        for mat in range(2):
            for i in range(3):
                for x in range(2):
                    f = FA(s & 1, mat, i) + 2*x
                    L.append(f"ds_read_b64_tr_b16 v[{f}:{f+1}], v{6 + (i & 1) + 2*(sl//4)} offset:{(sl % 4)*WS_ + mat*6144 + 4*x*192 + 32*i}")
        return L
    a("s_barrier\n@stamp")
    for l in reads(0): a(l)
    for s in range(NST):
        a("s_waitcnt lgkmcnt(0)")
        R = []
        if s+1 < NST:
            a("s_barrier"); R = reads(s+1)
        k = 0
        for mat in range(2):
            for i in range(3):
                for nt in range(2):
                    c = ACC(mat, i, nt); fa = FA(s & 1, mat, i); fb = FB(s & 1, nt)
                    if 'nomfma' not in OPT: a(f"v_mfma_f32_16x16x32_bf16 v[{c}:{c+3}], v[{fa}:{fa+3}], v[{fb}:{fb+3}], {'0' if s == 0 else f'v[{c}:{c+3}]'}")
                    if 'nords' not in OPT:
                        for l in R[2*k:2*k+2]: a(l)
                    k += 1
    a("@stamp")
    kk = 2*0.7978845608028654*math.log2(math.e)
    a(f"""s_mov_b32 s30, {fh(-kk)}
s_mov_b32 s31, {fh(-kk*0.044715)}
v_mov_b32 v10, s30
s_lshl_b32 s29, s23, 3
s_lshl_b32 s28, s27, 1
s_add_u32 s29, s29, s28
s_mul_i32 s29, s29, 49152
s_mul_i32 s28, s24, 3072
s_add_u32 s29, s29, s28
s_mul_i32 s28, s26, 1536
s_add_u32 s29, s29, s28
s_add_u32 s29, s29, {HIDF}
s_mov_b32 s32, s30
s_mov_b32 s33, s30
s_mov_b32 s30, s31
v_mov_b32 v11, v10
v_bfe_u32 v7, v2, 4, 1
v_mul_u32_u24 v7, 49152, v7
v_lshrrev_b32 v8, 5, v2
v_lshl_add_u32 v7, v8, 8, v7
v_and_b32 v8, 15, v2
v_lshl_add_u32 v7, v8, 4, v7""")
    for nt in range(2):
        G = ACC(0, 0, nt); U = ACC(1, 0, nt); T = 64 + 16*nt
        for i in range(0, 12, 2): a(f"v_pk_mul_f32 {P(T+i)}, {P(G+i)}, {P(G+i)}")
        for i in range(0, 12, 2): a(f"v_pk_fma_f32 {P(T+i)}, {P(T+i)}, s[30:31], {P(10)}")
        for i in range(0, 12, 2): a(f"v_pk_mul_f32 {P(T+i)}, {P(T+i)}, {P(G+i)}")
        for i in range(0, 12, 2): a(f"v_exp_f32 v{T+i}, v{T+i}\nv_exp_f32 v{T+i+1}, v{T+i+1}\nv_pk_mul_f32 {P(G+i)}, {P(G+i)}, {P(U+i)}")
        for i in range(0, 12, 2): a(f"v_pk_add_f32 {P(T+i)}, {P(T+i)}, 1.0 op_sel_hi:[1,0]")
        for i in range(12): a(f"v_rcp_f32 v{T+i}, v{T+i}")
        for i in range(0, 12, 2): a(f"v_pk_mul_f32 {P(G+i)}, {P(G+i)}, {P(T+i)}")
        for i in range(3):
            O = 96 + 4*i + 2*nt
            a(f"""v_cvt_pk_bf16_f32 v{O}, v{G+4*i}, v{G+4*i+1}
v_cvt_pk_bf16_f32 v{O+1}, v{G+4*i+2}, v{G+4*i+3}""")
    for i in range(3):
        O = 96 + 4*i
        a(f"""v_permlane16_swap_b32 v{O}, v{O+2}
v_permlane16_swap_b32 v{O+1}, v{O+3}
buffer_store_dwordx4 {Q(O)}, v7, s[12:15], s29 offen offset:{512*i}""")
    a("@stamp\n@dump 12\nK4_end:\ns_endpgm")
    return ('k4_kernel', (256,1,1), (768,1,1), 163840, kd_block('k4_kernel', 128, 96))

def k5(a):
    head(a, 'k5_kernel')
    NST = 24; SLOT = 18432; NS = 8
    a(f"""
s_cmp_ge_u32 s2, 256
s_cbranch_scc1 K5_end
@stamp
s_load_dwordx2 s[4:5], s[0:1], 48
s_load_dwordx2 s[6:7], s[0:1], 72
s_load_dwordx2 s[20:21], s[0:1], 88
s_and_b32 s3, s2, 7
s_lshr_b32 s22, s2, 3
s_and_b32 s23, s3, 3
s_lshl_b32 s23, s23, 3
s_and_b32 s24, s22, 7
s_add_u32 s23, s23, s24
s_lshr_b32 s24, s3, 2
s_lshl_b32 s24, s24, 2
s_lshr_b32 s25, s22, 3
s_add_u32 s24, s24, s25
v_lshrrev_b32 v1, 6, v0
v_and_b32 v2, 63, v0
v_readfirstlane_b32 s25, v1
s_cmp_lt_u32 s25, 4
s_cbranch_scc1 K5_cons
s_cmp_ge_u32 s25, 6
s_cbranch_scc1 K5_prodh
s_sub_u32 s25, s25, 4
""")
    init, sched = ramp(NST, 7)
    a(f"""
s_mul_i32 s28, s25, 5120
s_mul_i32 s27, s24, {1536*160}
s_add_u32 s27, s27, s28
s_add_u32 s27, s27, {WDT}
v_lshlrev_b32 v3, 4, v2
v_add_u32 v4, 4096, v3
s_waitcnt lgkmcnt(0)
""")
    srd(a, 8, 20, WS_SIZE)
    srd(a, 12, 20, WS_SIZE)
    def issue_w(s):
        a(f"s_add_u32 m0, s28, {(s % NS)*SLOT}")
        for q in range(4):
            a(f"buffer_load_dwordx4 v3, s[8:11], s27 offen offset:{1024*q} lds")
        a(f"s_add_u32 m0, s28, {(s % NS)*SLOT + 4096}")
        a(f"buffer_load_dwordx4 v4, s[8:11], s27 offen lds")
        a(f"s_add_u32 s27, s27, 10240")
    n = 0
    for s in init: issue_w(s); n += 1
    for s in range(NST):
        a(f"s_waitcnt vmcnt({5*(n-s-1)})\ns_barrier")
        for g in sched[s]: issue_w(g); n += 1
    a("@stamp\n@dump 12\ns_endpgm")
    a.st.n = 1
    a(f"""K5_prodh:
s_sub_u32 s25, s25, 6
s_lshl_b32 s29, s23, 2
s_lshl_b32 s28, s25, 1
s_add_u32 s29, s29, s28
s_mul_i32 s29, s29, 49152
s_add_u32 s29, s29, {HIDF}
s_lshl_b32 s28, s25, 12
s_add_u32 s28, s28, 10240
v_lshlrev_b32 v3, 4, v2
v_add_u32 v4, {49152-2048}, v3
s_waitcnt lgkmcnt(0)
""")
    srd(a, 12, 20, WS_SIZE)
    def issue_h(s):
        a(f"s_add_u32 m0, s28, {(s % NS)*SLOT}")
        for q in range(4):
            a(f"buffer_load_dwordx4 v{3+q//2}, s[12:15], s29 offen offset:{1024*q} lds")
        a("s_add_u32 s29, s29, 2048")
    n = 0
    for s in init: issue_h(s); n += 1
    for s in range(NST):
        a(f"s_waitcnt vmcnt({4*(n-s-1)})\ns_barrier")
        for g in sched[s]: issue_h(g); n += 1
    a("@stamp\n@dump 12\ns_endpgm")
    a.st.n = 1
    a(f"""K5_cons:
s_lshl_b32 s30, s23, 2
s_add_u32 s30, s30, s25
s_lshl_b32 s30, s30, 4
v_lshrrev_b32 v3, 2, v2
v_mul_u32_u24 v3, 160, v3
v_and_b32 v4, 3, v2
v_lshl_add_u32 v3, v4, 3, v3
v_add_u32 v4, {3*SLOT}, v3
v_add_u32 v5, {6*SLOT}, v3
s_lshl_b32 s28, s25, 11
s_add_u32 s28, s28, 10240
v_lshlrev_b32 v6, 4, v2
v_add_u32 v6, s28, v6
v_add_u32 v7, {3*SLOT}, v6
v_add_u32 v8, {6*SLOT}, v6
v_and_b32 v12, 15, v2
v_lshrrev_b32 v13, 4, v2
v_mul_u32_u24 v14, 1280, v12
v_lshl_add_u32 v14, v13, 3, v14
s_mul_i32 s26, s30, 1280
s_mul_i32 s27, s24, 160
s_add_u32 s26, s26, s27
s_add_u32 s26, s26, {X1}
v_lshlrev_b32 v15, 4, v13
s_lshl_b32 s28, s27, 1
s_add_u32 s28, s28, 12800
s_waitcnt lgkmcnt(0)
""")
    srd(a, 12, 20, WS_SIZE)
    srd(a, 16, 6, 2048*1280)
    ACC = lambda mt: 16 + 4*mt
    FA = lambda buf, u, mt: 36 + 48*buf + 24*u + 4*mt
    FB = lambda buf, u: 36 + 48*buf + 24*u + 20
    def reads(s):
        L = []; sl = s % NS
        for u in range(2):
            f = FB(s & 1, u)
            L.append(f"ds_read_b128 v[{f}:{f+3}], v{6+sl//3} offset:{(sl % 3)*SLOT + 1024*u}")
            for mt in range(5):
                for x in range(2):
                    f = FA(s & 1, u, mt) + 2*x
                    L.append(f"ds_read_b64_tr_b16 v[{f}:{f+1}], v{3+sl//3} offset:{(sl % 3)*SLOT + u*5120 + x*2560 + 32*mt}")
        return L
    a("s_barrier\n@stamp")
    for l in reads(0): a(l)
    for s in range(NST):
        a("s_waitcnt lgkmcnt(0)")
        R = []
        if s+1 < NST:
            a("s_barrier"); R = reads(s+1)
        if s == NST-6:
            for mt in range(5):
                a(f"buffer_load_dwordx2 v[{132+2*mt}:{133+2*mt}], v14, s[12:15], s26 offen offset:{32*mt}")
                a(f"buffer_load_dwordx4 v[{144+4*mt}:{147+4*mt}], v15, s[12:15], s28 offen offset:{64*mt}")
        k = 0
        for u in range(2):
            for mt in range(5):
                c = ACC(mt); fa = FA(s & 1, u, mt); fb = FB(s & 1, u)
                if 'nomfma' not in OPT: a(f"v_mfma_f32_16x16x32_bf16 v[{c}:{c+3}], v[{fa}:{fa+3}], v[{fb}:{fb+3}], {'0' if (s, u) == (0, 0) else f'v[{c}:{c+3}]'}")
                if 'nords' not in OPT:
                    for l in R[3*k:3*k+3]: a(l)
                k += 1
    a(f"""@stamp
s_and_b32 s26, s30, 63
s_lshl_b32 s26, s26, 5
s_lshr_b32 s29, s30, 6
s_add_u32 s26, s26, s29
s_mul_i32 s26, s26, 1280
s_add_u32 s26, s26, s27
v_mul_u32_u24 v14, 40960, v12
v_lshl_add_u32 v14, v13, 3, v14
s_waitcnt vmcnt(0)""")
    for mt in range(5):
        c = ACC(mt); x = 132+2*mt; g = 144+4*mt
        a(f"""v_lshlrev_b32 v36, 16, v{x}
v_and_b32 v37, 0xffff0000, v{x}
v_lshlrev_b32 v38, 16, v{x+1}
v_and_b32 v39, 0xffff0000, v{x+1}
v_fmac_f32 v36, v{c}, v{g}
v_fmac_f32 v37, v{c+1}, v{g+1}
v_fmac_f32 v38, v{c+2}, v{g+2}
v_fmac_f32 v39, v{c+3}, v{g+3}
v_cvt_pk_bf16_f32 v{x}, v36, v37
v_cvt_pk_bf16_f32 v{x+1}, v38, v39
buffer_store_dwordx2 v[{x}:{x+1}], v14, s[16:19], s26 offen offset:{32*mt}""")
    a("@stamp\n@dump 12\nK5_end:\ns_endpgm")
    return ('k5_kernel', (256,1,1), (512,1,1), NS*SLOT, kd_block('k5_kernel', 164, 96))

def poll(a, name, vaddr, vtmp, soff, target=1):
    a(f"""s_mov_b32 s46, 0x40000
{name}:
buffer_load_dword v{vtmp}, v{vaddr}, s[12:15], {soff} offen sc1
s_waitcnt vmcnt(0)
v_cmp_ne_u32 vcc, {target}, v{vtmp}
s_nop 1
s_cmp_eq_u64 vcc, 0
s_cbranch_scc1 {name}_ok
s_sleep {SLP}
s_sub_u32 s46, s46, 1
s_cmp_lg_u32 s46, 0
s_cbranch_scc1 {name}
{name}_ok:""")
def kf(a):
    head(a, 'k3_kernel')
    R2 = 98304
    TB = R2; ZB = R2 + 12288; ZR = 528; ZC = 8*ZR; PB = ZB + 5*ZC
    NST = 20; WS_ = 12288; HB = R2; HS = 16384
    NS2 = 24; DW = 10240; NWD = 16
    ORDER = [5, 6, 13,  7, 8, 14, 15,  0, 1, 9, 10,  2, 3, 4, 11, 12]
    EARLY = {7: 3, 8: 4, 9: 4}
    WPOS = lambda s: ORDER[s % NWD]
    CB = [3, 7, 15, 19]
    NEXTCB = {3: 7, 7: 15, 15: 19, 19: 23}
    SC = 'sc1' if 'nosc' not in OPT else ''
    SST = '' if 'stplain' in OPT else 'sc1'
    FST = '' if 'flplain' in OPT else 'sc1'
    FEX = '0xffff' if 'fl64' in OPT else '1'
    WSC = 'sc1' if 'wsc1' in OPT else ('nt' if 'wnt' in OPT else '')
    a(f"""
s_cmp_ge_u32 s2, 256
s_cbranch_scc1 KF_end
@stamp
s_load_dwordx2 s[4:5], s[0:1], 0
s_load_dwordx2 s[6:7], s[0:1], 88
s_load_dwordx4 s[56:59], s[0:1], 32
s_load_dwordx2 s[60:61], s[0:1], 72
s_and_b32 s50, s2, 7
s_lshr_b32 s51, s2, 3
s_lshl_b32 s50, s50, 1
s_lshr_b32 s21, s51, 4
s_add_u32 s50, s50, s21
s_and_b32 s51, s51, 15
v_lshrrev_b32 v4, 6, v0
v_and_b32 v1, 63, v0
v_readfirstlane_b32 s22, v4
s_cmp_ge_u32 s22, 8
s_cbranch_scc1 KF_prod
s_lshl_b32 s3, s50, 1
s_lshr_b32 s21, s51, 3
s_add_u32 s3, s3, s21
s_and_b32 s20, s51, 7
v_and_b32 v3, 31, v0
v_lshlrev_b32 v2, 3, v3
v_bfe_u32 v4, v0, 5, 1
v_lshl_add_u32 v2, v4, 8, v2
v_lshlrev_b32 v3, 2, v3
v_lshl_add_u32 v3, v4, 1, v3
v_and_b32 v5, 15, v0
v_bfe_u32 v6, v0, 4, 2""")
    col_slots(a, 22, 5, 6, 8, 22)
    a(f"""
s_lshl_b32 s23, s3, 8
s_lshl_b32 s21, s20, 5
s_add_u32 s23, s23, s21
s_add_u32 s23, s23, {YF}
s_lshl_b32 s21, s20, 3
s_add_u32 s21, s21, s22
s_lshl_b32 s24, s3, 6
s_add_u32 s24, s24, s21
s_lshl_b32 s47, s24, 2
s_lshl_b32 s21, s21, 5
s_add_u32 s21, s21, s3
s_mul_i32 s21, s21, 1280
s_mul_i32 s24, s24, 1280
v_lshlrev_b32 v4, 4, v1
s_lshl_b32 s25, s22, 10
s_add_u32 m0, s25, {PB}
s_add_u32 s25, s25, 5120
s_waitcnt lgkmcnt(0)
""")
    srd(a, 8, 4, 2048*1280)
    srd(a, 12, 6, WS_SIZE)
    a(f"""buffer_load_dwordx4 {Q(28)}, v11, s[12:15], s23 offen
buffer_load_dwordx4 {Q(32)}, v13, s[12:15], s23 offen
buffer_load_dwordx4 v4, s[12:15], s25 offen lds""")
    for k in range(3):
        a(f"buffer_load_dwordx2 {P(16+2*k)}, v2, s[8:11], s21 offen offset:{512*k}")
    w5_consts(a, 88, 22, 1.0)
    a(f"""
s_lshl_b32 s27, s22, 4
v_add_u32 v22, s27, v5
v_cvt_f32_u32 v22, v22
v_mul_f32 v22, {fh(1/128)}, v22
v_and_b32 v23, 1, v6
v_cvt_f32_u32 v23, v23
v_mul_f32 v23, 4.0, v23
v_lshrrev_b32 v24, 1, v6
v_cvt_f32_u32 v24, v24
v_mul_f32 v24, {fh(0.25)}, v24
v_fma_f32 v23, v23, v22, v24
v_mul_f32 v24, {fh(5.0)}, v22
v_mul_f32 v27, {fh(64.0)}, v22
v_cmp_eq_u32 vcc, 2, v6
v_cndmask_b32 v27, v23, v27, vcc
""")
    for t in range(4):
        for jj in range(4):
            a(f"""v_cos_f32 v25, v{27 if (t, jj) == (0, 0) else 23}
v_add_f32 v23, v23, v22
v_cos_f32 v26, v23
v_add_f32 v23, v23, v{24 if jj & 1 else 22}
v_cvt_pk_bf16_f32 v{96+4*t+jj}, v25, v26""")
    a(f"""
v_lshlrev_b32 v14, 5, v5
v_lshl_add_u32 v14, v6, 3, v14
s_lshl_b32 s27, s22, 9
s_add_u32 s27, s27, {TB}
v_add_u32 v14, s27, v14
v_and_b32 v15, 4096, v9
v_add_u32 v15, v15, v14
v_xor_b32 v112, 4096, v15
v_lshlrev_b32 v113, 3, v1
v_add_u32 v113, {TB}, v113
v_and_b32 v22, 7, v5
v_mul_u32_u24 v22, {ZR}, v22
v_lshl_add_u32 v22, v6, 4, v22
s_lshl_b32 s27, s22, 6
s_add_u32 s27, s27, {ZB}
v_add_u32 v115, s27, v22
v_lshrrev_b32 v22, 3, v5
v_mul_u32_u24 v22, {2*ZC}, v22
v_add_u32 v114, v115, v22
v_lshlrev_b32 v4, 2, v3
s_mul_i32 s27, s22, {ZR}
s_add_u32 s27, s27, {ZB}
v_add_u32 v7, s27, v4
v_add_u32 v4, {PB}, v4
v_and_b32 v22, 0x80000000, v9
v_xor_b32 v22, v22, v10
v_and_b32 v23, 0x80008000, v9
v_xor_b32 v24, v23, v12
""")
    r5_sconsts(a)
    a(f"""s_waitcnt vmcnt(4)
s_barrier
@stamp
v_cndmask_b32 v32, v32, v34, s[42:43]
v_cndmask_b32 v33, v33, v35, s[42:43]
v_xor_b32 v26, v30, v24
v_xor_b32 v27, v31, v24
v_xor_b32 v30, v30, v12
v_xor_b32 v31, v31, v12
ds_write_b64 v14, {P(32)} offset:8192""")
    for hh in range(2):
        a(f"""v_lshlrev_b32 v{36+2*hh}, 16, v{28+hh}
v_and_b32 v{37+2*hh}, 0xffff0000, v{28+hh}
v_lshlrev_b32 v{40+2*hh}, 16, v{30+hh}
v_and_b32 v{41+2*hh}, 0xffff0000, v{30+hh}
v_lshlrev_b32 v{44+2*hh}, 16, v{28+hh}
v_and_b32 v{45+2*hh}, 0xffff0000, v{28+hh}
v_lshlrev_b32 v{48+2*hh}, 16, v{26+hh}
v_and_b32 v{49+2*hh}, 0xffff0000, v{26+hh}""")
    for i in range(4):
        a(f"v_fmac_f32_dpp v{44+i}, v{36+i}, v22 row_ror:8 {DPP}")
        a(f"v_fmac_f32_dpp v{48+i}, v{40+i}, v10 row_ror:8 {DPP}")
    a(f"""v_cvt_pk_bf16_f32 v52, v44, v45
v_cvt_pk_bf16_f32 v53, v46, v47
v_cvt_pk_bf16_f32 v54, v48, v49
v_cvt_pk_bf16_f32 v55, v50, v51
ds_write_b64 v15, {P(52)}
ds_write_b64 v112, {P(54)}
s_waitcnt vmcnt(3) lgkmcnt(0)
s_barrier
@stamp""")
    for T in range(3):
        for t in range(4):
            for x in range(2):
                a(f"ds_read_b64_tr_b16 {P(28+16*T+4*t+2*x)}, v113 offset:{4096*T+1024*t+512*x}")
            if T == 1 and t == 3:
                a("s_waitcnt lgkmcnt(8)")
                for tt in range(4): a(f"v_mfma_f32_16x16x32_bf16 {Q(76)}, {Q(96+4*tt)}, {Q(28+4*tt)}, {'0' if tt == 0 else Q(76)}")
    for T in (1, 2):
        a(f"s_waitcnt lgkmcnt({8 if T == 1 else 0})")
        for t in range(4): a(f"v_mfma_f32_16x16x32_bf16 {Q(76+4*T)}, {Q(96+4*t)}, {Q(28+16*T+4*t)}, {'0' if t == 0 else Q(76+4*T)}")
    for j in range(5):
        a(f"ds_read_b64 {P(116+2*j)}, v4 offset:{512*j}")
    a(f"""ds_write_b128 v114, {Q(76)} offset:{ZC}
ds_write_b128 v114, {Q(80)} offset:{2*ZC}
ds_write_b128 v115, {Q(84)}
s_waitcnt vmcnt(0)""")
    unpack_x(a, 16, 28)
    a("s_waitcnt lgkmcnt(0)\ns_barrier\n@stamp")
    for c in range(5): a(f"ds_read_b64 {P(40+2*c)}, v7 offset:{ZC*c}")
    for j in range(5):
        a(f"ds_read_b64 {P(136+2*j)}, v4 offset:{5120+512*j}\nds_read_b64 {P(126+2*j)}, v4 offset:{2560+512*j}")
    a("s_waitcnt lgkmcnt(10)")
    for k in range(2):
        r, im = 42+4*k, 44+4*k; c, s = 88+4*k, 90+4*k; R, I = 50+4*k, 52+4*k
        a(f"""v_pk_mul_f32 {P(R)}, {P(r)}, {P(c)}
v_pk_mul_f32 {P(I)}, {P(r)}, {P(s)}
v_pk_fma_f32 {P(R)}, {P(im)}, {P(s)}, {P(R)} neg_lo:[1,0,0] neg_hi:[1,0,0]
v_pk_fma_f32 {P(I)}, {P(im)}, {P(c)}, {P(I)}""")
    z0,z1r,z1i,z2r,z2i = 40,50,52,54,56
    A,B,Cc,Dd,E = 58,60,62,64,66
    sl = {(3*j) % 5: j for j in range(5)}
    X = lambda d2: P(28+2*sl[d2]); G = lambda d2: P(116+2*sl[d2])
    a(f"""v_pk_add_f32 {P(E)}, {P(z0)}, {P(z1r)}
v_pk_fma_f32 {P(A)}, s[30:31], {P(z1r)}, {P(z0)}
v_pk_fma_f32 {P(B)}, s[32:33], {P(z1r)}, {P(z0)}
v_pk_mul_f32 {P(Cc)}, s[34:35], {P(z1i)}
v_pk_mul_f32 {P(Dd)}, s[36:37], {P(z1i)}
v_pk_add_f32 {P(E)}, {P(E)}, {P(z2r)}
v_pk_fma_f32 {P(A)}, s[32:33], {P(z2r)}, {P(A)}
v_pk_fma_f32 {P(B)}, s[30:31], {P(z2r)}, {P(B)}
v_pk_fma_f32 {P(Cc)}, s[36:37], {P(z2i)}, {P(Cc)}
v_pk_fma_f32 {P(Dd)}, s[34:35], {P(z2i)}, {P(Dd)} neg_lo:[0,1,0] neg_hi:[0,1,0]
v_pk_fma_f32 {X(0)}, {G(0)}, {P(E)}, {X(0)}
v_pk_add_f32 {P(68)}, {P(A)}, {P(Cc)} neg_lo:[0,1] neg_hi:[0,1]
v_pk_add_f32 {P(70)}, {P(A)}, {P(Cc)}
v_pk_add_f32 {P(72)}, {P(B)}, {P(Dd)} neg_lo:[0,1] neg_hi:[0,1]
v_pk_add_f32 {P(74)}, {P(B)}, {P(Dd)}
v_pk_fma_f32 {X(1)}, {G(1)}, {P(68)}, {X(1)}
v_pk_fma_f32 {X(4)}, {G(4)}, {P(70)}, {X(4)}
v_pk_fma_f32 {X(2)}, {G(2)}, {P(72)}, {X(2)}
v_pk_fma_f32 {X(3)}, {G(3)}, {P(74)}, {X(3)}
s_add_u32 s25, s24, {X1}
s_add_u32 s26, s24, {H2F}""")
    for j in range(5): a(f"v_cvt_pk_bf16_f32 v{16+j}, v{28+2*j}, v{29+2*j}")
    a(f"""v_permlane32_swap_b32 v16, v17
v_permlane32_swap_b32 v18, v19
buffer_store_dwordx2 {P(16)}, v2, s[12:15], s25 offen {SST}
buffer_store_dwordx2 {P(18)}, v2, s[12:15], s25 offen offset:512 {SST}
s_waitcnt lgkmcnt(0)
s_barrier""")
    ln_rows(a, 28, 22)
    a(f"""v_bfe_u32 v24, v0, 5, 1
v_mul_u32_u24 v24, {H2F - X1 - 256}, v24
v_add_u32 v24, v24, v2""")
    for j in range(5): a(f"v_pk_mul_f32 {P(136+2*j)}, {P(136+2*j)}, {P(22)} op_sel_hi:[1,0]")
    for j in range(5): a(f"v_pk_fma_f32 {P(28+2*j)}, {P(28+2*j)}, {P(136+2*j)}, {P(126+2*j)}")
    for j in range(4): a(f"v_cvt_pk_bf16_f32 v{40+j}, v{28+2*j}, v{29+2*j}")
    a(f"""v_cvt_pk_bf16_f32 v21, v36, v37
v_permlane32_swap_b32 v40, v41
v_permlane32_swap_b32 v42, v43
v_permlane32_swap_b32 v20, v21
buffer_store_dwordx2 {P(40)}, v2, s[12:15], s26 offen {SST}
buffer_store_dwordx2 {P(42)}, v2, s[12:15], s26 offen offset:512 {SST}
buffer_store_dwordx2 {P(20)}, v24, s[12:15], s25 offen offset:1024 {SST}
@stamp""")
    a(f"""v_mov_b32 v2, v1
s_lshr_b32 s26, s22, 2
s_and_b32 s27, s22, 3
v_lshrrev_b32 v3, 4, v2
v_bfe_u32 v4, v2, 2, 2
v_lshl_add_u32 v4, v3, 3, v4
v_mul_u32_u24 v4, 192, v4
v_and_b32 v5, 3, v2
v_lshl_add_u32 v4, v5, 3, v4
v_and_b32 v5, 1, v3
v_lshlrev_b32 v5, 5, v5
s_mul_i32 s28, s26, 96
v_add_u32 v4, s28, v4
s_cmp_eq_u32 s26, 0
s_cselect_b32 s29, 1, -1
v_mul_lo_u32 v5, v5, s29
v_add_u32 v6, v4, v5
v_sub_u32 v7, v4, v5
v_add_u32 v8, {4*WS_}, v6
v_add_u32 v9, {4*WS_}, v7
v_and_b32 v10, 15, v2
v_lshrrev_b32 v11, 1, v10
v_xor_b32 v11, v11, v3
v_lshlrev_b32 v11, 4, v11
v_lshl_add_u32 v11, v10, 7, v11
s_lshl_b32 s28, s27, 12
s_add_u32 s28, s28, {HB}
v_add_u32 v11, s28, v11
v_xor_b32 v12, 64, v11
s_add_u32 s47, s47, {FLG}
v_mov_b32 v13, 1
v_mov_b32 v14, 0
s_waitcnt vmcnt(0)
@stamp""")
    a("s_barrier")
    ACC = lambda mat, i, nt: 16 + 4*(6*nt + 3*mat + i)
    FA = lambda buf, mat, i: 64 + 32*buf + 4*(3*mat+i)
    FB = lambda buf, nt: 88 + 32*buf + 4*nt
    def reads(s):
        L = []; sl = s % 8
        for nt in range(2):
            L.append(f"ds_read_b128 {Q(FB(s & 1, nt))}, v{11 + (s & 1)} offset:{((s//2) % 4)*HS + 2048*nt}")
        for mat in range(2):
            for i in range(3):
                for x in range(2):
                    L.append(f"ds_read_b64_tr_b16 {P(FA(s & 1, mat, i) + 2*x)}, v{6 + (i & 1) + 2*(sl//4)} offset:{(sl % 4)*WS_ + mat*6144 + 4*x*192 + 32*i}")
        return L
    a("s_barrier\n@stamp")
    if STAMPS and 'g1cyc' in OPT: a("s_memtime s[64:65]")
    for l in reads(0): a(l)
    for s in range(NST):
        a("s_waitcnt lgkmcnt(0)")
        if s & 1: a("s_barrier")
        R = reads(s+1) if s+1 < NST else []
        k = 0
        for mat in range(2):
            for i in range(3):
                for nt in range(2):
                    c = ACC(mat, i, nt)
                    if 'g1nomfma' not in OPT: a(f"v_mfma_f32_16x16x32_bf16 {Q(c)}, {Q(FA(s & 1, mat, i))}, {Q(FB(s & 1, nt))}, {'0' if s == 0 else Q(c)}")
                    if 'g1nords' not in OPT:
                        for l in (R[RPG*k:RPG*k+RPG] if RPG else (R[:3] if k == 0 else R[k+2:k+3])): a(l)
                    k += 1
    a("@stamp")
    if STAMPS and 'g1cyc' in OPT: a("s_memtime s[62:63]")
    kk = 2*0.7978845608028654*math.log2(math.e)
    a(f"""s_mov_b32 s30, {fh(-kk*0.044715)}
s_mov_b32 s31, {fh(-kk*0.044715)}
v_mov_b32 v10, {fh(-kk)}
v_mov_b32 v11, {fh(-kk)}
s_lshl_b32 s29, s50, 3
s_lshl_b32 s28, s27, 1
s_add_u32 s29, s29, s28
s_mul_i32 s29, s29, 49152
s_mul_i32 s28, s51, 3072
s_add_u32 s29, s29, s28
s_mul_i32 s28, s26, 1536
s_add_u32 s29, s29, s28
s_add_u32 s29, s29, {HIDF}
v_bfe_u32 v7, v2, 4, 1
v_mul_u32_u24 v7, 49152, v7
v_lshrrev_b32 v8, 5, v2
v_lshl_add_u32 v7, v8, 8, v7
v_and_b32 v8, 15, v2
v_lshl_add_u32 v7, v8, 4, v7""")
    for nt in range(2):
        Gt = ACC(0, 0, nt); U = ACC(1, 0, nt); T = 64 + 16*nt
        for i in range(0, 12, 2): a(f"v_pk_mul_f32 {P(T+i)}, {P(Gt+i)}, {P(Gt+i)}")
        for i in range(0, 12, 2): a(f"v_pk_fma_f32 {P(T+i)}, {P(T+i)}, s[30:31], {P(10)}")
        for i in range(0, 12, 2): a(f"v_pk_mul_f32 {P(T+i)}, {P(T+i)}, {P(Gt+i)}")
        for i in range(0, 12, 2): a(f"v_exp_f32 v{T+i}, v{T+i}\nv_exp_f32 v{T+i+1}, v{T+i+1}\nv_pk_mul_f32 {P(Gt+i)}, {P(Gt+i)}, {P(U+i)}")
        for i in range(0, 12, 2): a(f"v_pk_add_f32 {P(T+i)}, {P(T+i)}, 1.0 op_sel_hi:[1,0]")
        for i in range(12): a(f"v_rcp_f32 v{T+i}, v{T+i}")
        for i in range(0, 12, 2): a(f"v_pk_mul_f32 {P(Gt+i)}, {P(Gt+i)}, {P(T+i)}")
        for i in range(3):
            O = 96 + 4*i + 2*nt
            a(f"v_cvt_pk_bf16_f32 v{O}, v{Gt+4*i}, v{Gt+4*i+1}\nv_cvt_pk_bf16_f32 v{O+1}, v{Gt+4*i+2}, v{Gt+4*i+3}")
    for i in range(3):
        O = 96 + 4*i
        a(f"""v_permlane16_swap_b32 v{O}, v{O+2}
v_permlane16_swap_b32 v{O+1}, v{O+3}
buffer_store_dwordx4 {Q(O)}, v7, s[12:15], s29 offen offset:{512*i} {SST}""")
    a(f"""@stamp
s_lshl_b32 s30, s50, 3
s_lshr_b32 s28, s51, 3
s_lshl_b32 s28, s28, 2
s_add_u32 s30, s30, s28
s_add_u32 s30, s30, s27
s_mul_i32 s29, s30, 49152
s_lshl_b32 s28, s26, 10
s_add_u32 s29, s29, s28
s_add_u32 s29, s29, {HIDF}
s_lshl_b32 s30, s30, 4
s_and_b32 s24, s51, 7
v_lshrrev_b32 v3, 2, v2
v_mul_u32_u24 v3, 160, v3
v_and_b32 v4, 3, v2
v_lshl_add_u32 v3, v4, 3, v3
s_mul_i32 s28, s26, 5120
v_add_u32 v3, s28, v3
v_add_u32 v4, {6*DW}, v3
v_add_u32 v5, {12*DW}, v3
v_lshlrev_b32 v6, 4, v2
v_and_b32 v12, 15, v2
v_lshrrev_b32 v13, 4, v2
v_mul_u32_u24 v8, 1280, v12
v_lshl_add_u32 v8, v13, 3, v8
s_mul_i32 s23, s30, 1280
s_mul_i32 s25, s24, 160
s_add_u32 s23, s23, s25
s_add_u32 s23, s23, {X1}
v_lshlrev_b32 v15, 4, v13
s_lshl_b32 s28, s25, 1
s_add_u32 s28, s28, 12800
s_lshl_b32 s21, s26, 6
s_add_u32 s23, s23, s21
s_lshl_b32 s21, s26, 7
s_add_u32 s28, s28, s21
s_waitcnt vmcnt(0)
@stamp
s_barrier""")
    srd(a, 16, 60, 2048*1280)
    AC2 = lambda mt: 16 + 4*mt
    FA2 = lambda buf, mt: 36 + 20*buf + 4*mt
    NB = 10
    FB2 = lambda s: 76 + 4*(s % NB)
    def reads2(s):
        p = WPOS(s)
        return [f"ds_read_b64_tr_b16 {P(FA2(s & 1, mt) + 2*x)}, v{3+p//6} offset:{(p % 6)*DW + x*2560 + 32*mt}" for mt in range(5) for x in range(2)]
    def ldb(s):
        a(f"buffer_load_dwordx4 {Q(FB2(s))}, v6, s[12:15], s29 offen offset:{2048*(s & 1)} {SC}")
        if s & 1: a("s_add_u32 s29, s29, 4096")
    a("s_barrier\n@stamp")
    nb = 0; nx = 0
    for s in range(NB-1): ldb(s); nb += 1
    for l in reads2(0): a(l)
    for s in range(NS2):
        a(f"s_waitcnt vmcnt({nb-s-1+nx}) lgkmcnt(0)")
        if s in CB: a("s_barrier")
        if nb < NS2: ldb(nb); nb += 1
        elif nx < 6:
            k = nx // 2
            a(f"buffer_load_dwordx2 {P(116+2*k)}, v8, s[12:15], s23 offen offset:{32*k} {SC}")
            a(f"buffer_load_dwordx4 {Q(128+4*k)}, v15, s[12:15], s28 offen offset:{64*k}")
            nx += 2
        R = reads2(s+1) if s+1 < NS2 else []
        for mt in range(5):
            c = AC2(mt)
            a(f"v_mfma_f32_16x16x32_bf16 {Q(c)}, {Q(FA2(s & 1, mt))}, {Q(FB2(s))}, {'0' if s == 0 else Q(c)}")
            for l in R[2*mt:2*mt+2]: a(l)
    RB = WPOS(10)*DW
    a(f"""@stamp
s_mul_i32 s28, s27, 5120
s_add_u32 s28, s28, {RB}
v_add_u32 v6, s28, v6
s_and_b32 s23, s30, 63
s_lshl_b32 s23, s23, 5
s_lshr_b32 s29, s30, 6
s_add_u32 s23, s23, s29
s_mul_i32 s23, s23, 1280
s_add_u32 s23, s23, s25
v_mul_u32_u24 v8, 40960, v12
v_lshl_add_u32 v8, v13, 3, v8
s_cmp_eq_u32 s26, 0
s_cbranch_scc1 KF_lo""")
    def fin(give, keep, base):
        for mt in give: a(f"ds_write_b128 v6, {Q(AC2(mt))} offset:{1024*mt}")
        a("s_waitcnt vmcnt(0)")
        for mt in keep:
            x = 116+2*(mt-base); r = 76+4*mt
            a(f"""v_lshlrev_b32 v{r}, 16, v{x}
v_and_b32 v{r+1}, 0xffff0000, v{x}
v_lshlrev_b32 v{r+2}, 16, v{x+1}
v_and_b32 v{r+3}, 0xffff0000, v{x+1}""")
        a("s_waitcnt lgkmcnt(0)\ns_barrier")
        for mt in keep: a(f"ds_read_b128 {Q(36+4*mt)}, v6 offset:{1024*mt}")
        for n, mt in enumerate(keep):
            c = AC2(mt); x = 116+2*(mt-base); g = 128+4*(mt-base); r = 36+4*mt; o = 76+4*mt
            a(f"""s_waitcnt lgkmcnt({len(keep)-1-n})
v_pk_add_f32 {P(c)}, {P(c)}, {P(r)}
v_pk_add_f32 {P(c+2)}, {P(c+2)}, {P(r+2)}
v_pk_fma_f32 {P(o)}, {P(c)}, {P(g)}, {P(o)}
v_pk_fma_f32 {P(o+2)}, {P(c+2)}, {P(g+2)}, {P(o+2)}
v_cvt_pk_bf16_f32 v{x}, v{o}, v{o+1}
v_cvt_pk_bf16_f32 v{x+1}, v{o+2}, v{o+3}
buffer_store_dwordx2 {P(x)}, v8, s[16:19], s23 offen offset:{32*mt}""")
        a("@dump 12\ns_endpgm")
    nst = a.st.n
    fin([0,1,2], [3,4], 2)
    a.st.n = nst
    a("KF_lo:")
    fin([3,4], [0,1,2], 0)
    a.st.n = 1
    a("KF_prod:\ns_sub_u32 s25, s22, 8\nv_mov_b32 v2, v1")
    for q in range(3):
        a(f"""v_add_u32 v10, {64*q}, v2
v_mul_u32_u24 v11, 43691, v10
v_lshrrev_b32 v11, 19, v11
v_mul_u32_u24 v12, 12, v11
v_sub_u32 v12, v10, v12
v_lshrrev_b32 v13, 2, v11
v_and_b32 v13, 2, v13
v_xor_b32 v12, v12, v13
v_mul_u32_u24 v11, 3072, v11
v_lshl_add_u32 v11, v12, 4, v11
v_subrev_u32 v{3+q}, {1024*q}, v11""")
    for q in range(4):
        a(f"""v_lshrrev_b32 v10, 4, v2
v_add_u32 v10, {4*q}, v10
v_xor_b32 v10, v10, v2
v_and_b32 v10, 7, v10
v_lshrrev_b32 v11, 3, v2
v_mul_u32_u24 v11, 1280, v11
v_lshl_add_u32 v11, v10, 4, v11
v_add_u32 v{6+q}, {q*(10240-1024)}, v11""")
    a(f"""
s_and_b32 s26, s25, 1
s_mul_i32 s27, s26, {16*3072}
s_mul_i32 s28, s51, 192
s_add_u32 s27, s27, s28
s_mul_i32 s28, s25, 3072
s_lshl_b32 s29, s50, 2
s_add_u32 s29, s29, s25
s_lshl_b32 s47, s29, 7
s_add_u32 s47, s47, {FLG}
s_mul_i32 s29, s29, 40960
s_add_u32 s29, s29, {H2F}
s_lshl_b32 s30, s25, 12
v_and_b32 v10, 31, v2
v_lshlrev_b32 v10, 2, v10
s_waitcnt lgkmcnt(0)
s_cmp_lt_u32 s25, 2
s_cselect_b32 s8, s56, s58
s_cselect_b32 s9, s57, s59
s_mov_b32 s10, {640*3072}
s_mov_b32 s11, 0x00020000
""")
    srd(a, 12, 6, WS_SIZE)
    def iw(s):
        a(f"s_add_u32 m0, s28, {(s % 8)*WS_}")
        for q in range(3):
            a(f"buffer_load_dwordx4 v{3+q}, s[8:11], s27 offen offset:{1024*q} {WSC} lds")
        a(f"s_add_u32 s27, s27, {32*3072}")
    def ih(d):
        a(f"s_add_u32 m0, s30, {HB + (d % 4)*HS}")
        for q in range(4):
            a(f"buffer_load_dwordx4 v{6+q}, s[12:15], s29 offen offset:{1024*q} {SC} lds")
        a("s_add_u32 s29, s29, 128")
    a("s_barrier")
    for s in range(0, 3): iw(s)
    a("@stamp\ns_barrier")
    for s in range(3, 6): iw(s)
    a("s_barrier")
    for s in range(6, 8): iw(s)
    a("s_barrier\n@stamp")
    a(f"""v_lshlrev_b32 v10, 2, v2
v_mov_b32 v12, 1
s_lshl_b32 s48, s50, 4
s_add_u32 s48, s48, s51
s_lshl_b32 s48, s48, 7
s_add_u32 s48, s48, {FLG}
s_lshl_b32 s47, s50, 2
s_add_u32 s47, s47, s25
s_lshl_b32 s47, s47, 9
s_add_u32 s47, s47, {FLG}
v_and_b32 v14, 3, v2
v_lshlrev_b32 v14, 7, v14
v_and_b32 v15, 15, v2
v_lshlrev_b32 v15, 7, v15
s_and_b32 s24, s51, 7
s_mul_i32 s31, s25, 2560
s_mul_i32 s32, s24, {1536*160}
s_add_u32 s32, s32, s31
s_add_u32 s32, s32, {WDT}
v_lshlrev_b32 v13, 4, v2
s_barrier
s_cmp_lg_u32 s25, 0
s_cbranch_scc1 KF_na1
s_mov_b64 exec, {FEX}
buffer_store_dword v12, v10, s[12:15], s48 offen {FST}
s_mov_b64 exec, -1
KF_na1:""")
    poll(a, 'KF_p1', 14, 11, 's47', 1)
    a("@stamp")
    cnt = []
    def iw2(s):
        a(f"s_add_u32 m0, s31, {WPOS(s)*DW}")
        a(f"buffer_load_dwordx4 v13, s[12:15], s32 offen {WSC} lds")
        a(f"buffer_load_dwordx4 v13, s[12:15], s32 offen offset:1024 {WSC} lds")
        a("s_mov_b32 exec_hi, 0")
        a(f"buffer_load_dwordx4 v13, s[12:15], s32 offen offset:2048 {WSC} lds")
        a("s_mov_b32 exec_hi, -1")
        a("s_add_u32 s32, s32, 10240")
    def grp(d):
        if 'g1noload' in OPT and d >= 4:
            cnt.append(0); return
        ih(d); n = 4
        if d >= 4:
            iw(2*d); iw(2*d+1); n += 6
        cnt.append(n)
    for d in range(4): grp(d)
    nw2 = 0
    for d in range(10):
        a(f"s_waitcnt vmcnt({sum(cnt[d+1:])})\ns_barrier")
        if d >= 1 and d+3 < 10: grp(d+3)
        if d >= 7:
            for _ in range(EARLY[d]): iw2(nw2); nw2 += 1
            cnt.append(3*EARLY[d])
    a("@stamp\ns_barrier")
    while nw2 < NWD: iw2(nw2); nw2 += 1
    a(f"""@stamp
s_lshl_b32 s47, s50, 11
s_add_u32 s47, s47, {FLG + 32768}
s_add_u32 s48, s48, 32768
s_barrier
s_cmp_eq_u32 s25, 1
s_cbranch_scc0 KF_nb2
s_mov_b64 exec, {FEX}
buffer_store_dword v12, v10, s[12:15], s48 offen {FST}
s_mov_b64 exec, -1
KF_nb2:
s_cmp_lg_u32 s25, 0
s_cbranch_scc1 KF_na2""")
    poll(a, 'KF_p2', 15, 11, 's47', 1)
    a("KF_na2:\n@stamp\ns_waitcnt vmcnt(0)\ns_barrier")
    pend = []
    for s in CB:
        need = [t for t in pend if t <= NEXTCB[s]]
        a(f"s_waitcnt vmcnt({3*(len(pend)-len(need))})\ns_barrier")
        pend = [t for t in pend if t not in need]
        while nw2 < NS2 and nw2 - NWD <= s:
            iw2(nw2); pend.append(nw2); nw2 += 1
    a("@stamp\n@dump 12\nKF_end:\ns_endpgm")
    return ('k3_kernel', (256,1,1), (768,1,1), 163840, kd_block('k3_kernel', 148, 100))

def build(kernels, path):
    a = Asm2(); infos = []
    for k in kernels:
        infos.append(k(a))
    if 'k4twice' in OPT: infos.insert(4, infos[4][:4] + ('',))
    if 'empty4' in OPT:
        for i in range(4):
            a(f".globl e{i}_kernel\n.p2align 8\n.type e{i}_kernel,@function\ne{i}_kernel:\ns_endpgm")
            infos.append((f'e{i}_kernel', (256,1,1), (256,1,1), 0, kd_block(f'e{i}_kernel', 8, 16)))
    a("CODE_END:\ns_endpgm")
    hdr = open('adaLN_cond__spectral_gfnet__glu_gated_geglu__prompt.s.ref').read().split('\n')[:13]
    s = '\n'.join(hdr) + '\n'
    for n, g, b, l, _ in infos:
        s += f"; @launch kernel={n} grid=({g[0]},{g[1]},{g[2]}) block=({b[0]},{b[1]},{b[2]}) lds={l}\n"
    s += '.amdgcn_target "amdgcn-amd-amdhsa--gfx950"\n.text\n' + a.text() + '.section .rodata,"a"\n'
    for i in infos: s += i[4]
    open(path, 'w').write(s)
if __name__ == '__main__':
    args = sys.argv[1:]
    out = 'cur.s'
    for x in args:
        if x == 'stamp': STAMPS = True
        elif x.endswith('.s'): out = x
        elif x.startswith('slp'): SLP = int(x[3:])
        elif x.startswith('tsh'): TLBSH = int(x[3:])
        elif x.startswith('rpg'): RPG = int(x[3:])
        else: OPT.add(x)
    build([k0, k1, k2, k3, k4, k5] if 'unfused' in OPT else [k0, k1, k2, kf], out)
```

```python
import sys, math
sys.path.insert(0,'work')
import gen
from gen import *
NAME = 'adaLN_cond__spectral_gfnet__glu_gated_geglu__prompt_kernel'
MODG = 0x4000
GFL = 0x20000
CNT = 0x8000
class Bar:
    def __init__(self): self.seq = {}
    def __call__(self, a, role, name):
        self.seq.setdefault(role, []).append(name); a("s_barrier")
def spin(a, name, load, cmp, mask=True, slp=None):
    a(f"s_mov_b32 s46, 0x8000\n{name}:")
    a(load); a("s_waitcnt vmcnt(0)"); a(cmp)
    a(f"""s_nop 1
s_and_b64 exec, exec, vcc
s_cbranch_scc0 {name}_ok
s_sleep {gen.SLP if slp is None else slp}
s_sub_u32 s46, s46, 1
s_cmp_lg_u32 s46, 0
s_cbranch_scc1 {name}
{name}_ok:
s_mov_b64 exec, -1""")

def addr_xf(a):
    a(f"""s_lshl_b32 s40, s22, 5
v_lshrrev_b32 v22, 1, v6
v_lshl_add_u32 v22, v22, 4, v5
v_add_u32 v22, s40, v22
v_add_u32 v23, 256, v8
v_and_b32 v24, 1, v6
v_lshlrev_b32 v24, 7, v24""")
    for src_, dst in ((22, 11), (23, 13)):
        a(f"""v_lshrrev_b32 v25, 3, v{src_}
v_lshl_add_u32 v25, v25, 16, v24
v_and_b32 v26, 7, v{src_}
v_lshl_add_u32 v{dst}, v26, 4, v25""")
def addr_yf(a):
    a(f"""s_lshl_b32 s40, s22, 5
v_lshrrev_b32 v22, 1, v6
v_lshl_add_u32 v22, v22, 4, v5
v_add_u32 v22, s40, v22
v_add_u32 v23, 256, v8
v_and_b32 v24, 1, v6
v_lshlrev_b32 v24, 8, v24
v_lshl_add_u32 v11, v22, 13, v24
v_lshl_add_u32 v13, v23, 13, v24""")
def gather2(a, name, ld0, ld1, r0, r1, t, pre=False, dly=0):
    a(f"""s_mov_b32 s46, 0x8000
s_waitcnt vmcnt(0)
{f's_branch {name}_chk' if pre else ''}
{name}:
{ld0}
{ld1}
{name}_chk:
s_waitcnt vmcnt(0)
v_max3_u32 v{t}, v{r0}, v{r0+1}, v{r0+2}
v_max3_u32 v{t+1}, v{r1}, v{r1+1}, v{r1+2}
v_max3_u32 v{t}, v{t}, v{r0+3}, v{r1+3}
v_max_u32 v{t}, v{t}, v{t+1}
v_cmp_eq_u32 vcc, -1, v{t}
s_nop 1
s_and_b64 exec, exec, vcc
s_cbranch_scc0 {name}_ok
s_sleep 2
s_sub_u32 s46, s46, 1
s_cmp_lg_u32 s46, 0
s_cbranch_scc1 {name}
{name}_ok:
s_mov_b64 exec, -1""")
def task_ids(a, slot):
    a(f"""s_lshl_b32 s28, s{slot}, 2
s_lshr_b32 s29, s2, 6
s_add_u32 s28, s28, s29
s_lshl_b32 s28, s28, 3
s_and_b32 s29, s2, 7
s_add_u32 s28, s28, s29
s_lshl_b32 s41, s28, 16
s_lshl_b32 s28, s28, 3
s_bfe_u32 s29, s2, 0x30003
s_add_u32 s28, s28, s29
s_lshl_b32 s29, s29, 4
s_add_u32 s41, s41, s29""")
def km(a, OPT):
    bar = Bar()
    a(f".globl {NAME}\n.p2align 8\n.type {NAME},@function\n{NAME}:")
    a.st = Stamper(a, 3)
    ST = lambda tag: a("@stamp") if tag in OPT.get('st', '') else None
    R2 = 98304
    GP = R2; NON = R2 + 1536; PB1 = R2 + 2048; Z1 = R2 + 8192; K2B = R2 + 24576
    TB = R2; ZB = R2 + 12288; ZR = 528; ZC = 8*ZR; PB = R2 + 57344
    NST = 20; WS_ = 12288; HB = R2; HS = 16384
    NS2 = 24; DW = 10240; NWD = 16
    ORDER = [5, 6, 13,  7, 8, 14, 15,  0, 1, 9, 10,  2, 3, 4, 11, 12]
    EARLY = {7: 3, 8: 4, 9: 4} if 'e0' not in OPT else ({7: 0, 8: 0, 9: 0} if OPT['e0'] == 0 else {7: 0, 8: 4, 9: 6})
    WPOS = lambda s: ORDER[s % NWD]
    CB = [3, 7, 15, 19]; NEXTCB = {3: 7, 7: 15, 15: 19, 19: 23}
    XR = 114
    a(f"""
s_cmp_ge_u32 s2, 256
s_cbranch_scc1 KM_end
@stamp
s_load_dwordx2 s[4:5], s[0:1], 0
s_load_dwordx2 s[6:7], s[0:1], 88
s_load_dwordx4 s[56:59], s[0:1], 56
s_load_dwordx4 s[24:27], s[0:1], 8
s_load_dwordx2 s[60:61], s[0:1], 80
s_and_b32 s50, s2, 7
s_lshr_b32 s51, s2, 3
s_mul_i32 s52, s50, 10
s_add_u32 s52, s52, s51
s_mul_i32 s21, s50, 20
s_add_u32 s21, s21, s51
s_add_u32 s21, s21, 70
s_cmp_lt_u32 s2, 80
s_cselect_b32 s52, s52, s21
s_lshl_b32 s50, s50, 1
s_lshr_b32 s21, s51, 4
s_add_u32 s50, s50, s21
s_and_b32 s51, s51, 15
v_lshrrev_b32 v4, 6, v0
v_and_b32 v1, 63, v0
v_readfirstlane_b32 s22, v4
s_lshl_b32 s3, s50, 1
s_lshr_b32 s21, s51, 3
s_add_u32 s3, s3, s21
s_and_b32 s20, s51, 7
s_cmp_ge_u32 s22, 8
s_cbranch_scc1 KM_prod
v_and_b32 v3, 31, v0
v_lshlrev_b32 v2, 3, v3
v_bfe_u32 v4, v0, 5, 1
v_lshl_add_u32 v2, v4, 8, v2
v_lshlrev_b32 v3, 2, v3
v_lshl_add_u32 v3, v4, 1, v3
s_lshl_b32 s21, s20, 3
s_add_u32 s21, s21, s22
s_lshl_b32 s21, s21, 5
s_add_u32 s21, s21, s3
s_mul_i32 s21, s21, 1280
s_lshl_b32 s23, s52, 5
v_lshrrev_b32 v144, 1, v0
v_and_b32 v145, 1, v0
v_mul_u32_u24 v146, 7680, v144
v_lshl_add_u32 v146, v145, 4, v146
v_add_u32 v146, s23, v146
v_lshlrev_b32 v147, 1, v144
s_cmp_lt_u32 s2, 240
s_cselect_b32 s49, 5, 0
s_waitcnt lgkmcnt(0)
""")
    if OPT.get('wb'): a(f"s_add_u32 s6, s6, {OPT['wb']}\ns_addc_u32 s7, s7, 0")
    srd(a, 12, 6, WS_SIZE)
    srd(a, 8, 56, 1280)
    srd(a, 16, 58, 640*3840*2)
    NR = 4
    def gloads(tag, cond):
        a(f"s_cmp_ge_u32 s22, s49\ns_cbranch_scc1 KM_nog1{tag}")
        for i in range(NR): a(f"buffer_load_short_d16_hi v{136+i}, v147, s[8:11], 0 offen offset:{320*i}")
        a("s_mov_b32 s23, 0")
        for i in range(NR):
            a(f"buffer_load_dwordx4 {Q(120+4*i)}, v146, s[16:19], s23 offen")
            if i < NR-1: a(f"s_add_u32 s23, s23, {160*7680}")
        a(f"KM_nog1{tag}:")
    srd(a, 24, 4, 2048*1280)
    for k in range(3): a(f"buffer_load_dwordx2 {P(XR+2*k)}, v2, s[24:27], s21 offen offset:{512*k}")
    gloads('a', 0)
    a("v_and_b32 v5, 15, v0\nv_bfe_u32 v6, v0, 4, 2")
    col_slots(a, 22, 5, 6, 8, 22)
    addr_xf(a)
    a(f"""s_lshl_b32 s38, s3, 11
s_lshl_b32 s21, s20, 8
s_add_u32 s38, s38, s21
s_add_u32 s38, s38, {XF}
v_mov_b32 v28, -1
v_mov_b32 v29, -1
v_mov_b32 v30, -1
v_mov_b32 v31, -1
buffer_store_dwordx4 {Q(28)}, v11, s[12:15], s38 offen sc1
s_mov_b32 exec_lo, 0x00ff00ff
s_mov_b32 exec_hi, 0
buffer_store_dwordx4 {Q(28)}, v13, s[12:15], s38 offen sc1
s_mov_b64 exec, -1
s_lshl_b32 s38, s20, 3
s_add_u32 s38, s38, s22
s_lshl_b32 s21, s3, 6
s_add_u32 s38, s38, s21
s_mul_i32 s38, s38, 1280
s_add_u32 s38, s38, {H2F}
buffer_store_dwordx2 {P(28)}, v2, s[12:15], s38 offen sc1""")
    w5_consts(a, 88, 22, -1.0)
    a(f"""
v_cvt_f32_u32 v22, v8
v_mul_f32 v22, {fh(1/128)}, v22
v_cvt_f32_u32 v23, v6
v_mul_f32 v23, {fh(8.0)}, v23
v_and_b32 v24, {fh(0.25)}, v9
v_fma_f32 v23, v23, v22, -v24
v_mul_f32 v24, {fh(25.0)}, v22
""")
    for t in range(4):
        for jj in range(4):
            a(f"""v_cos_f32 v25, v23
v_add_f32 v23, v23, v22
v_cos_f32 v26, v23
v_add_f32 v23, v23, v{24 if jj == 3 else 22}
v_cvt_pk_bf16_f32 v{96+4*t+jj}, v25, v26""")
    a(f"""
v_lshrrev_b32 v22, 3, v3
v_xor_b32 v22, s22, v22
v_lshlrev_b32 v22, 4, v22
v_and_b32 v23, 7, v3
v_lshl_add_u32 v22, v23, 1, v22
s_lshl_b32 s23, s22, 8
s_add_u32 s23, s23, {Z1}
v_add_u32 v14, s23, v22
v_xor_b32 v15, {2048+128}, v14
v_lshlrev_b32 v7, 2, v3
v_add_u32 v7, {PB1}, v7
v_xor_b32 v22, v6, v5
""")
    for t in range(4):
        a(f"""v_xor_b32 v23, {4*t}, v22
v_lshlrev_b32 v23, 4, v23
v_lshl_add_u32 v23, v5, 8, v23
v_add_u32 v{16+t}, {Z1}, v23""")
    r5_sconsts(a)
    a("s_waitcnt vmcnt(11)\ns_cmp_lt_u32 s22, s49\ns_cbranch_scc1 KM_x0\ns_waitcnt vmcnt(3)\nKM_x0:")
    unpack_x(a, XR, 60)
    ln_rows(a, 60, 70)
    a(f"s_cmp_ge_u32 s22, s49\ns_cbranch_scc1 KM_nog2\ns_waitcnt vmcnt({NR+3})")
    C = 136; T = 140
    for i in range(NR): a(f"v_mul_f32 v{T+i}, {fh(-math.log2(math.e))}, v{C+i}")
    for i in range(NR): a(f"v_exp_f32 v{T+i}, v{T+i}")
    for i in range(NR): a(f"v_add_f32 v{T+i}, 1.0, v{T+i}")
    for i in range(NR): a(f"v_rcp_f32 v{T+i}, v{T+i}")
    for i in range(NR): a(f"v_mul_f32 v{C+i}, v{C+i}, v{T+i}")
    for i in range(NR): a(f"v_cvt_pk_bf16_f32 v{C+i}, v{C+i}, v{C+i}")
    for i in range(NR): a(f"v_and_b32 v{48+2*i}, 0xffff0000, v{C+i}")
    a(f"""v_lshrrev_b32 v22, 4, v0
v_lshlrev_b32 v23, 6, v22
v_lshl_add_u32 v23, v145, 5, v23
v_add_u32 v23, {GP}, v23""")
    for i in range(NR):
        a(f"s_waitcnt vmcnt({NR-1-i+3})")
        for j in range(4): a(f"v_lshlrev_b32 v{32+2*j}, 16, v{120+4*i+j}\nv_and_b32 v{33+2*j}, 0xffff0000, v{120+4*i+j}")
        for j in range(4):
            if i == 0: a(f"v_pk_mul_f32 {P(40+2*j)}, {P(32+2*j)}, {P(48)} op_sel_hi:[1,0]")
            else: a(f"v_pk_fma_f32 {P(40+2*j)}, {P(32+2*j)}, {P(48+2*i)}, {P(40+2*j)} op_sel_hi:[1,0,1]")
    for mode in ('quad_perm:[2,3,0,1]', 'row_ror:4', 'row_ror:8'):
        for j in range(8): a(f"v_add_f32_dpp v{40+j}, v{40+j}, v{40+j} {mode} {DPP}")
    a(f"""v_cmp_gt_u32 vcc, 2, v5
s_and_saveexec_b64 s[38:39], vcc
ds_write_b128 v23, {Q(40)}
ds_write_b128 v23, {Q(44)} offset:16
s_mov_b64 exec, s[38:39]
KM_nog2:
s_waitcnt vmcnt(0) lgkmcnt(0)""")
    ST('a')
    bar(a, 'W', 'g1')
    a(f"""v_mov_b32 v22, {NON}
ds_read_b32 v27, v22
s_cmp_lg_u32 s22, 0
s_cbranch_scc1 KM_nog3
s_cmp_eq_u32 s49, 0
s_cbranch_scc1 KM_nog3
v_mul_u32_u24 v23, 320, v6
v_lshl_add_u32 v23, v5, 2, v23
v_add_u32 v23, {GP}, v23
ds_read_b32 v40, v23
ds_read_b32 v41, v23 offset:64
ds_read_b32 v42, v23 offset:128
ds_read_b32 v43, v23 offset:192
ds_read_b32 v44, v23 offset:256
s_sub_u32 s23, s52, 40
s_cmp_lt_u32 s23, 40
s_cselect_b32 s21, 1.0, 0
s_sub_u32 s23, s52, 160
s_cmp_lt_u32 s23, 40
s_cselect_b32 s21, 1.0, s21
s_waitcnt lgkmcnt(0)
v_add_f32 v40, v40, v41
v_add_f32 v42, v42, v43
v_add_f32 v40, v40, v44
v_add_f32 v40, v40, v42
v_mov_b32 v41, v40
v_permlane16_swap_b32 v40, v41
v_add_f32 v40, v40, v41
v_mov_b32 v41, v40
v_permlane32_swap_b32 v40, v41
v_add_f32 v40, v40, v41
v_cvt_pk_bf16_f32 v40, v40, v40
v_and_b32 v40, 0xffff0000, v40
v_add_f32 v40, s21, v40
v_cvt_pk_bf16_f32 v40, v40, v40
v_and_b32 v40, 0xffff0000, v40
v_mov_b32 v41, v27
s_mov_b64 exec, 0xffff
s_cmp_lt_u32 s52, 80
s_cbranch_scc1 KM_gran
s_lshl_b32 s23, s52, 6
v_lshlrev_b32 v23, 2, v1
buffer_store_dword v40, v23, s[12:15], s23 offen sc1
s_branch KM_pub
KM_gran:
s_lshl_b32 s23, s52, 7
s_add_u32 s23, s23, {MODG}
v_lshlrev_b32 v23, 3, v1
buffer_store_dwordx2 {P(40)}, v23, s[12:15], s23 offen sc1
KM_pub:
s_mov_b64 exec, -1
KM_nog3:""")
    M = lambda t: 120+6*t
    N = lambda x, y: 144+6*(2*x+y)
    def gen_(R, cur, step, last, t0=12):
        for hh in range(2):
            a(f"""v_cos_f32 v{t0}, v{cur}
v_sin_f32 v{t0+1}, v{cur}
v_add_f32 v{cur}, v{cur}, v{step}
v_cos_f32 v{t0+2}, v{cur}
v_sin_f32 v{t0+3}, v{cur}
v_add_f32 v{cur}, v{cur}, v{last if hh else step}
v_cvt_pk_bf16_f32 v{R+2+hh}, v{t0}, v{t0+2}
v_cvt_pk_bf16_f32 v{R+hh}, -v{t0+1}, -v{t0+3}
v_cvt_pk_bf16_f32 v{R+4+hh}, v{t0+1}, v{t0+3}""")
    a(f"""v_bfe_u32 v46, v0, 6, 2
v_lshl_add_u32 v46, v46, 4, v5
v_cvt_f32_u32 v46, v46
v_cvt_f32_u32 v47, v6
v_cvt_f32_u32 v48, v5
v_mul_f32 v47, 4.0, v47
v_mul_f32 v49, {fh(1/64)}, v46
v_mul_f32 v50, v47, v49
v_mul_f32 v51, {fh(13.0)}, v49""")
    for t in range(4): gen_(M(t), 50, 49, 51, 52)
    for x in range(2):
        a(f"v_add_f32 v49, {fh(16.0*x)}, v48\nv_mul_f32 v49, {fh(1/32)}, v49\nv_mul_f32 v50, v47, v49\nv_mul_f32 v51, {fh(13.0)}, v49")
        for y in range(2): gen_(N(x, y), 50, 49, 51, 52)
    a(f"""s_lshl_b32 s23, s3, 11
s_lshl_b32 s21, s20, 8
s_add_u32 s23, s23, s21
s_add_u32 s23, s23, {XF}""")
    ST('a')
    bar(a, 'W', 'g2')
    ST('a')
    for j in range(5): a(f"ds_read_b64 {P(40+2*j)}, v7 offset:{2560+512*j}\nds_read_b64 {P(50+2*j)}, v7 offset:{512*j}")
    for j in range(5): a(f"v_pk_mul_f32 {P(28+2*j)}, {P(60+2*j)}, {P(70)} op_sel_hi:[1,0]")
    a("s_waitcnt lgkmcnt(0)")
    for j in range(5): a(f"v_pk_fma_f32 {P(28+2*j)}, {P(28+2*j)}, {P(40+2*j)}, {P(50+2*j)}")
    h = {(3*j) % 5: 28+2*j for j in range(5)}
    t1,t2,t3,t4 = 40,42,44,46; z0,p1,q1,p2,q2 = 48,50,52,54,56
    a(f"""v_pk_add_f32 {P(t1)}, {P(h[1])}, {P(h[4])}
v_pk_add_f32 {P(t2)}, {P(h[2])}, {P(h[3])}
v_pk_add_f32 {P(t3)}, {P(h[1])}, {P(h[4])} neg_lo:[0,1] neg_hi:[0,1]
v_pk_add_f32 {P(t4)}, {P(h[2])}, {P(h[3])} neg_lo:[0,1] neg_hi:[0,1]
v_pk_add_f32 {P(z0)}, {P(h[0])}, {P(t1)}
v_pk_fma_f32 {P(p1)}, s[30:31], {P(t1)}, {P(h[0])}
v_pk_fma_f32 {P(p2)}, s[32:33], {P(t1)}, {P(h[0])}
v_pk_mul_f32 {P(q1)}, s[34:35], {P(t3)}
v_pk_mul_f32 {P(q2)}, s[36:37], {P(t3)}
v_pk_add_f32 {P(z0)}, {P(z0)}, {P(t2)}
v_pk_fma_f32 {P(p1)}, s[32:33], {P(t2)}, {P(p1)}
v_pk_fma_f32 {P(p2)}, s[30:31], {P(t2)}, {P(p2)}
v_pk_fma_f32 {P(q1)}, s[36:37], {P(t4)}, {P(q1)}
v_pk_fma_f32 {P(q2)}, s[34:35], {P(t4)}, {P(q2)} neg_lo:[0,1,0] neg_hi:[0,1,0]
v_cvt_pk_bf16_f32 v22, v{z0}, v{z0+1}
ds_write_b32 v14, v22 offset:8192""")
    for k, (p, q) in enumerate(((p1, q1), (p2, q2))):
        c, s = 88+4*k, 90+4*k; r, im = 28+4*k, 30+4*k
        a(f"""v_pk_mul_f32 {P(r)}, {P(p)}, {P(c)}
v_pk_mul_f32 {P(im)}, {P(p)}, {P(s)}
v_pk_fma_f32 {P(r)}, {P(q)}, {P(s)}, {P(r)}
v_pk_fma_f32 {P(im)}, {P(q)}, {P(c)}, {P(im)} neg_lo:[1,0,0] neg_hi:[1,0,0]
v_cvt_pk_bf16_f32 v{23+2*k}, v{r}, v{r+1}
v_cvt_pk_bf16_f32 v{24+2*k}, v{im}, v{im+1}
ds_write_b32 v{14+k}, v{23+2*k}
ds_write_b32 v{14+k}, v{24+2*k} offset:4096""")
    a("s_waitcnt vmcnt(0) lgkmcnt(0)")
    bar(a, 'W', 'k1a')
    for T in range(3):
        for t in range(4): a(f"ds_read_b128 {Q(28+16*T+4*t)}, v{16+t} offset:{4096*T}")
    n = 12
    for T in range(3):
        for t in range(4):
            n -= 1
            a(f"s_waitcnt lgkmcnt({n})")
            a(f"v_mfma_f32_16x16x32_bf16 {Q(76+4*T)}, {Q(28+16*T+4*t)}, {Q(96+4*t)}, {'0' if t == 0 else Q(76+4*T)}")
    a(f"""v_and_b32 v22, 0x80008000, v9
v_and_b32 v23, v9, v12
v_bfi_b32 v24, v9, v22, v12
v_pk_mul_f32 {P(28)}, {P(76)}, {P(10)} op_sel_hi:[1,0]
v_pk_mul_f32 {P(30)}, {P(78)}, {P(10)} op_sel_hi:[1,0]
v_pk_mul_f32 {P(32)}, {P(80)}, {P(10)} op_sel_hi:[1,0]
v_pk_mul_f32 {P(34)}, {P(82)}, {P(10)} op_sel_hi:[1,0]""")
    for i in range(4):
        a(f"v_add_f32_dpp v{76+i}, v{32+i}, v{76+i} row_ror:8 {DPP}")
        a(f"v_subrev_f32_dpp v{80+i}, v{28+i}, v{80+i} row_ror:8 {DPP}")
    a(f"""v_cvt_pk_bf16_f32 v36, v76, v77
v_cvt_pk_bf16_f32 v37, v78, v79
v_cvt_pk_bf16_f32 v38, v80, v81
v_cvt_pk_bf16_f32 v39, v82, v83
v_cvt_pk_bf16_f32 v44, v84, v85
v_cvt_pk_bf16_f32 v45, v86, v87
v_xor_b32 v36, v36, v23
v_xor_b32 v37, v37, v23
v_xor_b32 v38, v38, v24
v_xor_b32 v39, v39, v24
v_xor_b32 v44, v44, v22
v_xor_b32 v45, v45, v22
v_cndmask_b32 v40, v36, v38, s[42:43]
v_cndmask_b32 v41, v37, v39, s[42:43]
v_cndmask_b32 v42, v38, v36, s[42:43]
v_cndmask_b32 v43, v39, v37, s[42:43]
buffer_store_dwordx4 {Q(40)}, v11, s[12:15], s23 offen sc1
v_mov_b32_dpp v46, v44 row_ror:8 {DPP}
v_mov_b32_dpp v47, v45 row_ror:8 {DPP}
s_mov_b32 exec_lo, 0x00ff00ff
s_mov_b32 exec_hi, 0
buffer_store_dwordx4 {Q(44)}, v13, s[12:15], s23 offen sc1
s_mov_b64 exec, -1""")
    ST('a')
    a(f"""s_lshr_b32 s26, s22, 2
s_and_b32 s27, s22, 3
""")
    task_ids(a, 26)
    a(f"""s_cmp_gt_u32 s28, 320
s_cbranch_scc1 KM_k2skip
s_cmp_eq_u32 s28, 320
s_cselect_b32 s41, {32*65536}, s41
s_lshr_b32 s21, s28, 5
s_lshl_b32 s21, s21, 3
s_and_b32 s23, s28, 7
s_add_u32 s21, s21, s23
s_sub_u32 s23, 128, s21
s_cmp_eq_u32 s21, 0
s_cselect_b32 s23, 64, s23
s_bitcmp1_b32 s28, 3
s_cselect_b32 s21, s23, s21
s_mul_i32 s21, s21, 5
s_bfe_u32 s23, s28, 0x10004
s_lshl_b32 s23, s23, 7
s_add_u32 s21, s21, s23
s_add_u32 s21, s21, 128
s_sub_u32 s23, s21, 640
s_min_u32 s21, s21, s23
s_sub_u32 s23, 640, s21
s_min_u32 s21, s21, s23
s_sub_u32 s23, s28, 256
s_mul_i32 s23, s23, 5
s_cmp_ge_u32 s28, 256
s_cselect_b32 s40, s23, s21
v_and_b32 v1, 15, v0
v_bfe_u32 v2, v0, 4, 2
v_bfe_u32 v3, v0, 6, 2
v_and_b32 v9, 63, v0
v_lshl_add_u32 v4, v3, 2, v2
v_xor_b32 v10, v4, v1
v_lshl_add_u32 v4, v4, 4, v10
v_lshlrev_b32 v4, 7, v4
v_lshrrev_b32 v5, 1, v1
v_and_b32 v6, 1, v1
v_lshl_add_u32 v5, v6, 3, v5
v_lshl_add_u32 v5, v2, 4, v5
v_lshlrev_b32 v5, 4, v5
v_lshl_add_u32 v5, v3, 11, v5
s_add_u32 s21, s41, {XF}
s_add_u32 s23, s21, 32768
s_lshl_b32 s29, s28, 13
s_lshl_b32 s48, s26, 14
s_add_u32 s48, s48, {K2B}
v_lshl_add_u32 v6, v3, 4, v1
v_cvt_f32_u32 v6, v6
v_cvt_f32_u32 v7, v2
v_cvt_f32_u32 v8, v1
v_mul_f32 v7, 4.0, v7
""")
    a(f"v_mul_f32 v16, {fh(-1/2048)}, v6\nv_mul_f32 v10, v7, v16\nv_mul_f32 v11, {fh(13.0)}, v16")
    for k in range(8):
        a(f"v_cos_f32 v{56+k}, v10\nv_sin_f32 v{64+k}, v10")
        if k < 7: a(f"v_add_f32 v10, v10, v{11 if k == 3 else 16}")
    if 'gx1' in OPT:
        for l in (f"buffer_load_dwordx4 {Q(24)}, v4, s[12:15], s21 offen sc1", f"buffer_load_dwordx4 {Q(28)}, v4, s[12:15], s23 offen sc1"): a(l)
    a(f"""s_lshl_b32 s24, s27, 4
v_cvt_f32_u32 v12, s24
v_add_f32 v12, v12, v7
s_mov_b32 s38, {fh(2.0/(2048*640))}
s_cmp_eq_u32 s28, 256
s_cselect_b32 s38, {fh(1.0/(2048*640))}, s38
s_cmp_eq_u32 s28, 320
s_cselect_b32 s38, {fh(1.0/(2048*640))}, s38
s_mov_b32 s39, s38""")
    for nt in range(2):
        a(f"v_add_f32 v16, {fh(16.0*nt)}, v8\nv_mul_f32 v16, {fh(1/2048)}, v16\nv_mul_f32 v10, v12, v16")
        for i in range(4):
            k = 4*nt+i
            a(f"v_cos_f32 v{72+k}, v10\nv_sin_f32 v{80+k}, v10")
            if i < 3: a("v_add_f32 v10, v10, v16")
    for k in range(8): a(f"v_pk_mul_f32 {P(72+2*k)}, s[38:39], {P(72+2*k)}")
    a(f"""v_xor_b32 v10, v2, v1
v_lshlrev_b32 v10, 4, v10
v_lshl_add_u32 v10, v1, 8, v10
v_add_u32 v10, s48, v10
v_xor_b32 v11, 64, v10
v_xor_b32 v12, 128, v10
v_xor_b32 v13, 192, v10
v_lshlrev_b32 v7, 4, v9
v_add_u32 v7, s48, v7
s_lshl_b32 s24, s27, 10
v_add_u32 v6, s24, v7
v_lshlrev_b32 v8, 4, v9
v_lshl_add_u32 v8, v3, 11, v8
s_add_u32 s24, s24, s48
s_lshl_b32 s25, s40, 13
s_add_u32 s25, s25, {WP}
s_mov_b32 m0, s24""")
    ST('b')
    gather2(a, 'KM_gx', f"buffer_load_dwordx4 {Q(24)}, v4, s[12:15], s21 offen sc1", f"buffer_load_dwordx4 {Q(28)}, v4, s[12:15], s23 offen sc1", 24, 28, 32, pre=('gx1' in OPT), dly=OPT.get('dx', 0))
    a(f"""ds_write_b128 v6, {Q(24)}
ds_write_b128 v6, {Q(28)} offset:4096
s_add_u32 s21, s29, {YF}
s_add_u32 s23, s21, 1024
s_waitcnt lgkmcnt(0)""")
    bar(a, 'W', 'k2a')
    ST('b')
    a(f"""buffer_load_dwordx4 v[48:51], v5, s[12:15], s25 offen sc1
buffer_load_dwordx4 v[52:55], v5, s[12:15], s25 offen offset:1024 sc1""")
    D = lambda mt, t: 16+16*mt+4*t
    for t in range(4):
        for mt in range(2): a(f"ds_read_b128 {Q(D(mt,t))}, v{10+t} offset:{4096*mt}")
    def mf(d, A, B, first): a(f"v_mfma_f32_16x16x32_bf16 {Q(d)}, {Q(A)}, {Q(B)}, {'0' if first else Q(d)}")
    a("s_and_b32 s24, s28, 0xffffffbf\ns_cmp_lg_u32 s24, 256\ns_cbranch_scc1 KM_k2gen\ns_waitcnt lgkmcnt(0)\ns_cmp_eq_u32 s28, 256\ns_cbranch_scc1 KM_k2z")
    for f in range(8): a(f"v_mov_b32 v{16+4*f}, v{18+4*f}\nv_mov_b32 v{17+4*f}, v{19+4*f}")
    a("KM_k2z:")
    for f in range(8): a(f"v_mov_b32 v{18+4*f}, 0\nv_mov_b32 v{19+4*f}, 0")
    a("s_nop 1\nKM_k2gen:")
    for t in range(4):
        a(f"s_waitcnt lgkmcnt({6-2*t})")
        for mt in range(2):
            mf(88+8*mt, D(mt,t), M(t)+2, t == 0)
            mf(92+8*mt, D(mt,t), M(t), t == 0)
    def tw_pack(tr, ti, B, swap):
        for blk in range(2):
            for hh in range(2):
                r = 88+8*blk+2*hh; i = r+4; c = tr+4*blk+2*hh; s = ti+4*blk+2*hh; t = 104+4*blk+2*hh
                a(f"""v_pk_mul_f32 {P(t)}, {P(i)}, {P(s)}
v_pk_mul_f32 {P(i)}, {P(i)}, {P(c)}
v_pk_fma_f32 {P(i)}, {P(r)}, {P(s)}, {P(i)}
v_pk_fma_f32 {P(r)}, {P(r)}, {P(c)}, {P(t)} neg_lo:[0,0,1] neg_hi:[0,0,1]""")
        for blk in range(2):
            for hh in range(2):
                r = 88+8*blk+2*hh
                a(f"v_cvt_pk_bf16_f32 v{B+4*blk+hh+(2 if swap else 0)}, v{r}, v{r+1}")
                a(f"v_cvt_pk_bf16_f32 v{B+4*blk+hh+(0 if swap else 2)}, v{r+4}, v{r+5}")
    tw_pack(56, 64, 16, False)
    for y in range(2):
        for x in range(2):
            mf(88+8*x, N(x,y)+2, 16+4*y, y == 0)
            mf(92+8*x, N(x,y), 16+4*y, y == 0)
    a("s_waitcnt vmcnt(0)")
    for k in range(8): a(f"v_lshlrev_b32 v{32+k}, 16, v{48+k}\nv_and_b32 v{40+k}, 0xffff0000, v{48+k}")
    tw_pack(32, 40, 24, True)
    for y in range(2):
        for x in range(2):
            mf(88+8*x, 24+4*y, N(x,y), y == 0)
            mf(92+8*x, 24+4*y, N(x,y)+2, y == 0)
    tw_pack(72, 80, 16, True)
    a(f"ds_write_b128 v6, {Q(16)} offset:8192\nds_write_b128 v6, {Q(20)} offset:12288\ns_waitcnt lgkmcnt(0)")
    bar(a, 'W', 'k2b')
    for t in range(4):
        for nt in range(2): a(f"ds_read_b128 {Q(D(nt,t))}, v7 offset:{8192+4096*nt+1024*t}")
    for t in range(4):
        a(f"s_waitcnt lgkmcnt({6-2*t})")
        for nt in range(2):
            mf(88+8*nt, M(t), D(nt,t), t == 0)
            mf(92+8*nt, M(t)+2, D(nt,t), t == 0)
    for nt in range(2):
        o = 48+4*nt; s = 88+8*nt
        for k in range(4): a(f"v_cvt_pk_bf16_f32 v{o+k}, v{s+2*k}, v{s+2*k+1}")
        a(f"buffer_store_dwordx4 {Q(o)}, v8, s[12:15], s{21+2*nt} offen sc1")
    ST('b')
    a("s_branch KM_k2done\nKM_k2skip:\ns_barrier\ns_barrier\nKM_k2done:")
    a(f"""v_and_b32 v1, 63, v0
v_and_b32 v3, 31, v0
v_lshlrev_b32 v2, 3, v3
v_bfe_u32 v4, v0, 5, 1
v_lshl_add_u32 v2, v4, 8, v2
v_lshlrev_b32 v3, 2, v3
v_lshl_add_u32 v3, v4, 1, v3
v_and_b32 v5, 15, v0
v_bfe_u32 v6, v0, 4, 2""")
    col_slots(a, 22, 5, 6, 8, 22)
    addr_yf(a)
    a(f"""
s_and_b32 s23, s3, 15
s_lshl_b32 s23, s23, 4
s_lshr_b32 s21, s3, 4
s_lshl_b32 s21, s21, 10
s_add_u32 s23, s23, s21
s_lshr_b32 s21, s20, 1
s_lshl_b32 s21, s21, 11
s_add_u32 s23, s23, s21
s_and_b32 s21, s20, 1
s_lshl_b32 s21, s21, 9
s_add_u32 s23, s23, s21
s_add_u32 s23, s23, {YF}
s_lshl_b32 s21, s20, 3
s_add_u32 s21, s21, s22
s_lshl_b32 s24, s3, 6
s_add_u32 s24, s24, s21
s_mul_i32 s24, s24, 1280
""")
    w5_consts(a, 88, 22, 1.0)
    a(f"""
s_lshl_b32 s27, s22, 4
v_add_u32 v22, s27, v5
v_cvt_f32_u32 v22, v22
v_mul_f32 v22, {fh(1/128)}, v22
v_and_b32 v23, 1, v6
v_cvt_f32_u32 v23, v23
v_mul_f32 v23, 4.0, v23
v_lshrrev_b32 v24, 1, v6
v_cvt_f32_u32 v24, v24
v_mul_f32 v24, {fh(0.25)}, v24
v_fma_f32 v23, v23, v22, v24
v_mul_f32 v24, {fh(5.0)}, v22
v_mul_f32 v27, {fh(64.0)}, v22
v_cmp_eq_u32 vcc, 2, v6
v_cndmask_b32 v27, v23, v27, vcc
""")
    for t in range(4):
        for jj in range(4):
            a(f"""v_cos_f32 v25, v{27 if (t, jj) == (0, 0) else 23}
v_add_f32 v23, v23, v22
v_cos_f32 v26, v23
v_add_f32 v23, v23, v{24 if jj & 1 else 22}
v_cvt_pk_bf16_f32 v{96+4*t+jj}, v25, v26""")
    a(f"""
v_lshlrev_b32 v14, 5, v5
v_lshl_add_u32 v14, v6, 3, v14
s_lshl_b32 s27, s22, 9
s_add_u32 s27, s27, {TB}
v_add_u32 v14, s27, v14
v_and_b32 v15, 4096, v9
v_add_u32 v15, v15, v14
v_xor_b32 v112, 4096, v15
v_lshlrev_b32 v113, 3, v1
v_add_u32 v113, {TB}, v113
v_and_b32 v22, 7, v5
v_mul_u32_u24 v22, {ZR}, v22
v_lshl_add_u32 v22, v6, 4, v22
s_lshl_b32 s27, s22, 6
s_add_u32 s27, s27, {ZB}
v_add_u32 v17, s27, v22
v_lshrrev_b32 v22, 3, v5
v_mul_u32_u24 v22, {2*ZC}, v22
v_add_u32 v16, v17, v22
v_lshlrev_b32 v4, 2, v3
s_mul_i32 s27, s22, {ZR}
s_add_u32 s27, s27, {ZB}
v_add_u32 v7, s27, v4
v_add_u32 v4, {PB}, v4
v_and_b32 v22, 0x80000000, v9
v_xor_b32 v22, v22, v10
v_and_b32 v23, 0x80008000, v9
v_xor_b32 v24, v23, v12
""")
    for j in range(5):
        a(f"ds_read_b64 {P(120+2*j)}, v4 offset:{512*j}\nds_read_b64 {P(140+2*j)}, v4 offset:{5120+512*j}\nds_read_b64 {P(130+2*j)}, v4 offset:{2560+512*j}")
    a("s_waitcnt lgkmcnt(0)")
    ST('c')
    gather2(a, 'KM_gy', f"buffer_load_dwordx4 {Q(28)}, v11, s[12:15], s23 offen sc1", f"buffer_load_dwordx4 {Q(32)}, v13, s[12:15], s23 offen sc1", 28, 32, 36, dly=OPT.get('dy', 0))
    ST('c')
    a(f"""v_cndmask_b32 v32, v32, v34, s[42:43]
v_cndmask_b32 v33, v33, v35, s[42:43]
v_xor_b32 v26, v30, v24
v_xor_b32 v27, v31, v24
v_xor_b32 v30, v30, v12
v_xor_b32 v31, v31, v12
ds_write_b64 v14, {P(32)} offset:8192""")
    for hh in range(2):
        a(f"""v_lshlrev_b32 v{36+2*hh}, 16, v{28+hh}
v_and_b32 v{37+2*hh}, 0xffff0000, v{28+hh}
v_lshlrev_b32 v{40+2*hh}, 16, v{30+hh}
v_and_b32 v{41+2*hh}, 0xffff0000, v{30+hh}
v_lshlrev_b32 v{44+2*hh}, 16, v{28+hh}
v_and_b32 v{45+2*hh}, 0xffff0000, v{28+hh}
v_lshlrev_b32 v{48+2*hh}, 16, v{26+hh}
v_and_b32 v{49+2*hh}, 0xffff0000, v{26+hh}""")
    for i in range(4):
        a(f"v_fmac_f32_dpp v{44+i}, v{36+i}, v22 row_ror:8 {DPP}")
        a(f"v_fmac_f32_dpp v{48+i}, v{40+i}, v10 row_ror:8 {DPP}")
    a(f"""v_cvt_pk_bf16_f32 v52, v44, v45
v_cvt_pk_bf16_f32 v53, v46, v47
v_cvt_pk_bf16_f32 v54, v48, v49
v_cvt_pk_bf16_f32 v55, v50, v51
ds_write_b64 v15, {P(52)}
ds_write_b64 v112, {P(54)}
s_waitcnt lgkmcnt(0)""")
    bar(a, 'W', 'b1')
    for T in range(3):
        for t in range(4):
            for x in range(2): a(f"ds_read_b64_tr_b16 {P(28+16*T+4*t+2*x)}, v113 offset:{4096*T+1024*t+512*x}")
            if T == 1 and t == 3:
                a("s_waitcnt lgkmcnt(8)")
                for tt in range(4): a(f"v_mfma_f32_16x16x32_bf16 {Q(76)}, {Q(96+4*tt)}, {Q(28+4*tt)}, {'0' if tt == 0 else Q(76)}")
    for T in (1, 2):
        a(f"s_waitcnt lgkmcnt({8 if T == 1 else 0})")
        for t in range(4): a(f"v_mfma_f32_16x16x32_bf16 {Q(76+4*T)}, {Q(96+4*t)}, {Q(28+16*T+4*t)}, {'0' if t == 0 else Q(76+4*T)}")
    a(f"ds_write_b128 v16, {Q(76)} offset:{ZC}")
    for j in range(5): a(f"v_lshlrev_b32 v{28+2*j}, 16, v{XR+j}\nv_and_b32 v{29+2*j}, 0xffff0000, v{XR+j}")
    a(f"""ds_write_b128 v16, {Q(80)} offset:{2*ZC}
ds_write_b128 v17, {Q(84)}
s_waitcnt lgkmcnt(0)""")
    bar(a, 'W', 'b2')
    for c in range(5): a(f"ds_read_b64 {P(40+2*c)}, v7 offset:{ZC*c}")
    a("s_waitcnt lgkmcnt(0)")
    bar(a, 'W', 'b3')
    for k in range(2):
        r, im = 42+4*k, 44+4*k; c, s = 88+4*k, 90+4*k; R, I = 50+4*k, 52+4*k
        a(f"""v_pk_mul_f32 {P(R)}, {P(r)}, {P(c)}
v_pk_mul_f32 {P(I)}, {P(r)}, {P(s)}
v_pk_fma_f32 {P(R)}, {P(im)}, {P(s)}, {P(R)} neg_lo:[1,0,0] neg_hi:[1,0,0]
v_pk_fma_f32 {P(I)}, {P(im)}, {P(c)}, {P(I)}""")
    z0,z1r,z1i,z2r,z2i = 40,50,52,54,56
    A,B,Cc,Dd,E = 58,60,62,64,66
    sl = {(3*j) % 5: j for j in range(5)}
    X = lambda d2: P(28+2*sl[d2]); G = lambda d2: P(120+2*sl[d2])
    a(f"""v_pk_add_f32 {P(E)}, {P(z0)}, {P(z1r)}
v_pk_fma_f32 {P(A)}, s[30:31], {P(z1r)}, {P(z0)}
v_pk_fma_f32 {P(B)}, s[32:33], {P(z1r)}, {P(z0)}
v_pk_mul_f32 {P(Cc)}, s[34:35], {P(z1i)}
v_pk_mul_f32 {P(Dd)}, s[36:37], {P(z1i)}
v_pk_add_f32 {P(E)}, {P(E)}, {P(z2r)}
v_pk_fma_f32 {P(A)}, s[32:33], {P(z2r)}, {P(A)}
v_pk_fma_f32 {P(B)}, s[30:31], {P(z2r)}, {P(B)}
v_pk_fma_f32 {P(Cc)}, s[36:37], {P(z2i)}, {P(Cc)}
v_pk_fma_f32 {P(Dd)}, s[34:35], {P(z2i)}, {P(Dd)} neg_lo:[0,1,0] neg_hi:[0,1,0]
v_pk_fma_f32 {X(0)}, {G(0)}, {P(E)}, {X(0)}
v_pk_add_f32 {P(68)}, {P(A)}, {P(Cc)} neg_lo:[0,1] neg_hi:[0,1]
v_pk_add_f32 {P(70)}, {P(A)}, {P(Cc)}
v_pk_add_f32 {P(72)}, {P(B)}, {P(Dd)} neg_lo:[0,1] neg_hi:[0,1]
v_pk_add_f32 {P(74)}, {P(B)}, {P(Dd)}
v_pk_fma_f32 {X(1)}, {G(1)}, {P(68)}, {X(1)}
v_pk_fma_f32 {X(4)}, {G(4)}, {P(70)}, {X(4)}
v_pk_fma_f32 {X(2)}, {G(2)}, {P(72)}, {X(2)}
v_pk_fma_f32 {X(3)}, {G(3)}, {P(74)}, {X(3)}
s_add_u32 s25, s24, {X1}
s_add_u32 s26, s24, {H2F}""")
    for j in range(5): a(f"v_cvt_pk_bf16_f32 v{16+j}, v{28+2*j}, v{29+2*j}")
    a(f"""v_permlane32_swap_b32 v16, v17
v_permlane32_swap_b32 v18, v19
buffer_store_dwordx2 {P(16)}, v2, s[12:15], s25 offen sc1
buffer_store_dwordx2 {P(18)}, v2, s[12:15], s25 offen offset:512 sc1""")
    ln_rows(a, 28, 22)
    a(f"v_bfe_u32 v24, v0, 5, 1\nv_mul_u32_u24 v24, {H2F - X1 - 256}, v24\nv_add_u32 v24, v24, v2")
    for j in range(5): a(f"v_pk_mul_f32 {P(140+2*j)}, {P(140+2*j)}, {P(22)} op_sel_hi:[1,0]")
    for j in range(5): a(f"v_pk_fma_f32 {P(28+2*j)}, {P(28+2*j)}, {P(140+2*j)}, {P(130+2*j)}")
    for j in range(4): a(f"v_cvt_pk_bf16_f32 v{40+j}, v{28+2*j}, v{29+2*j}")
    a(f"""v_cvt_pk_bf16_f32 v21, v36, v37
v_permlane32_swap_b32 v40, v41
v_permlane32_swap_b32 v42, v43
v_permlane32_swap_b32 v20, v21
buffer_store_dwordx2 {P(40)}, v2, s[12:15], s26 offen sc1
buffer_store_dwordx2 {P(42)}, v2, s[12:15], s26 offen offset:512 sc1
buffer_store_dwordx2 {P(20)}, v24, s[12:15], s25 offen offset:1024 sc1""")
    ST('c')
    a(f"""v_mov_b32 v2, v1
s_lshr_b32 s26, s22, 2
s_and_b32 s27, s22, 3
v_lshrrev_b32 v3, 4, v2
v_bfe_u32 v4, v2, 2, 2
v_lshl_add_u32 v4, v3, 3, v4
v_mul_u32_u24 v4, 192, v4
v_and_b32 v5, 3, v2
v_lshl_add_u32 v4, v5, 3, v4
v_and_b32 v5, 1, v3
v_lshlrev_b32 v5, 5, v5
s_mul_i32 s28, s26, 96
v_add_u32 v4, s28, v4
s_cmp_eq_u32 s26, 0
s_cselect_b32 s29, 1, -1
v_mul_lo_u32 v5, v5, s29
v_add_u32 v6, v4, v5
v_sub_u32 v7, v4, v5
v_add_u32 v8, {4*WS_}, v6
v_add_u32 v9, {4*WS_}, v7
v_and_b32 v10, 15, v2
v_lshrrev_b32 v11, 1, v10
v_xor_b32 v11, v11, v3
v_lshlrev_b32 v11, 4, v11
v_lshl_add_u32 v11, v10, 7, v11
s_lshl_b32 s28, s27, 12
s_add_u32 s28, s28, {HB}
v_add_u32 v11, s28, v11
v_xor_b32 v12, 64, v11
s_load_dwordx2 s[60:61], s[0:1], 72
s_waitcnt vmcnt(0)""")
    ST('c')
    bar(a, 'W', 'd1')
    ACC = lambda mat, i, nt: 16 + 4*(6*nt + 3*mat + i)
    FA = lambda buf, mat, i: 64 + 32*buf + 4*(3*mat+i)
    FB = lambda buf, nt: 88 + 32*buf + 4*nt
    def reads(s):
        L = []; sl = s % 8
        for nt in range(2): L.append(f"ds_read_b128 {Q(FB(s & 1, nt))}, v{11 + (s & 1)} offset:{((s//2) % 4)*HS + 2048*nt}")
        for mat in range(2):
            for i in range(3):
                for x in range(2):
                    L.append(f"ds_read_b64_tr_b16 {P(FA(s & 1, mat, i) + 2*x)}, v{6 + (i & 1) + 2*(sl//4)} offset:{(sl % 4)*WS_ + mat*6144 + 4*x*192 + 32*i}")
        return L
    bar(a, 'W', 'B0')
    ST('d')
    for l in reads(0): a(l)
    for s in range(NST):
        a("s_waitcnt lgkmcnt(0)")
        if s & 1: bar(a, 'W', f'B{(s+1)//2}')
        R = reads(s+1) if s+1 < NST else []
        k = 0
        for mat in range(2):
            for i in range(3):
                for nt in range(2):
                    c = ACC(mat, i, nt)
                    a(f"v_mfma_f32_16x16x32_bf16 {Q(c)}, {Q(FA(s & 1, mat, i))}, {Q(FB(s & 1, nt))}, {'0' if s == 0 else Q(c)}")
                    for l in R[2*k:2*k+2]: a(l)
                    k += 1
    ST('d')
    kk = 2*0.7978845608028654*math.log2(math.e)
    a(f"""s_mov_b32 s30, {fh(-kk*0.044715)}
s_mov_b32 s31, {fh(-kk*0.044715)}
v_mov_b32 v10, {fh(-kk)}
v_mov_b32 v11, {fh(-kk)}
s_lshl_b32 s29, s50, 3
s_lshl_b32 s28, s27, 1
s_add_u32 s29, s29, s28
s_mul_i32 s29, s29, 49152
s_mul_i32 s28, s51, 3072
s_add_u32 s29, s29, s28
s_mul_i32 s28, s26, 1536
s_add_u32 s29, s29, s28
s_add_u32 s29, s29, {HIDF}
v_bfe_u32 v7, v2, 4, 1
v_mul_u32_u24 v7, 49152, v7
v_lshrrev_b32 v8, 5, v2
v_lshl_add_u32 v7, v8, 8, v7
v_and_b32 v8, 15, v2
v_lshl_add_u32 v7, v8, 4, v7""")
    for nt in range(2):
        Gt = ACC(0, 0, nt); U = ACC(1, 0, nt); T = 64 + 16*nt
        for i in range(0, 12, 2): a(f"v_pk_mul_f32 {P(T+i)}, {P(Gt+i)}, {P(Gt+i)}")
        for i in range(0, 12, 2): a(f"v_pk_fma_f32 {P(T+i)}, {P(T+i)}, s[30:31], {P(10)}")
        for i in range(0, 12, 2): a(f"v_pk_mul_f32 {P(T+i)}, {P(T+i)}, {P(Gt+i)}")
        for i in range(0, 12, 2): a(f"v_exp_f32 v{T+i}, v{T+i}\nv_exp_f32 v{T+i+1}, v{T+i+1}\nv_pk_mul_f32 {P(Gt+i)}, {P(Gt+i)}, {P(U+i)}")
        for i in range(0, 12, 2): a(f"v_pk_add_f32 {P(T+i)}, {P(T+i)}, 1.0 op_sel_hi:[1,0]")
        for i in range(12): a(f"v_rcp_f32 v{T+i}, v{T+i}")
        for i in range(0, 12, 2): a(f"v_pk_mul_f32 {P(Gt+i)}, {P(Gt+i)}, {P(T+i)}")
        for i in range(3):
            O = 96 + 4*i + 2*nt
            a(f"v_cvt_pk_bf16_f32 v{O}, v{Gt+4*i}, v{Gt+4*i+1}\nv_cvt_pk_bf16_f32 v{O+1}, v{Gt+4*i+2}, v{Gt+4*i+3}")
    for i in range(3):
        O = 96 + 4*i
        a(f"""v_permlane16_swap_b32 v{O}, v{O+2}
v_permlane16_swap_b32 v{O+1}, v{O+3}
buffer_store_dwordx4 {Q(O)}, v7, s[12:15], s29 offen offset:{512*i} sc1""")
    ST('d')
    a(f"""s_lshl_b32 s30, s50, 3
s_lshr_b32 s28, s51, 3
s_lshl_b32 s28, s28, 2
s_add_u32 s30, s30, s28
s_add_u32 s30, s30, s27
s_mul_i32 s29, s30, 49152
s_lshl_b32 s28, s26, 10
s_add_u32 s29, s29, s28
s_add_u32 s29, s29, {HIDF}
s_lshl_b32 s30, s30, 4
s_and_b32 s24, s51, 7
v_lshrrev_b32 v3, 2, v2
v_mul_u32_u24 v3, 160, v3
v_and_b32 v4, 3, v2
v_lshl_add_u32 v3, v4, 3, v3
s_mul_i32 s28, s26, 5120
v_add_u32 v3, s28, v3
v_add_u32 v4, {6*DW}, v3
v_add_u32 v5, {12*DW}, v3
v_lshlrev_b32 v6, 4, v2
v_and_b32 v12, 15, v2
v_lshrrev_b32 v13, 4, v2
v_mul_u32_u24 v8, 1280, v12
v_lshl_add_u32 v8, v13, 3, v8
s_mul_i32 s23, s30, 1280
s_mul_i32 s25, s24, 160
s_add_u32 s23, s23, s25
s_add_u32 s23, s23, {X1}
v_lshlrev_b32 v15, 4, v13
s_lshl_b32 s28, s25, 1
s_add_u32 s28, s28, 12800
s_lshl_b32 s21, s26, 6
s_add_u32 s23, s23, s21
s_lshl_b32 s21, s26, 7
s_add_u32 s28, s28, s21
s_waitcnt vmcnt(0)""")
    ST('d')
    if 'nohs' in OPT: bar(a, 'W', 'd2')
    a("s_mov_b32 s41, s29")
    srd(a, 16, 60, 2048*1280)
    AC2 = lambda mt: 16 + 4*mt
    FA2 = lambda buf, mt: 36 + 20*buf + 4*mt
    NB = OPT.get('nb', 10)
    FB2 = lambda s: 76 + 4*(s % NB)
    def reads2(s):
        p = WPOS(s)
        return [f"ds_read_b64_tr_b16 {P(FA2(s & 1, mt) + 2*x)}, v{3+p//6} offset:{(p % 6)*DW + x*2560 + 32*mt}" for mt in range(5) for x in range(2)]
    def ldb(s):
        a(f"buffer_load_dwordx4 {Q(FB2(s))}, v6, s[12:15], s29 offen offset:{2048*(s & 1)} sc1")
        if s & 1: a("s_add_u32 s29, s29, 4096")
    bar(a, 'W', 'C0')
    ST('d')
    nb = 0; nx = 0
    for s in range(NB-1): ldb(s); nb += 1
    for l in reads2(0): a(l)
    for s in range(NS2):
        f = FB2(s)
        if 'nohs' in OPT: a(f"s_waitcnt vmcnt({nb-s-1+nx}) lgkmcnt(0)\nKM_hr{s}:")
        else: a(f"""s_waitcnt vmcnt({nb-s-1+nx})
v_max3_u32 v9, v{f}, v{f+1}, v{f+2}
v_max_u32 v9, v9, v{f+3}
v_cmp_eq_u32 vcc, -1, v9
s_waitcnt lgkmcnt(0)
s_cmp_lg_u64 vcc, 0
s_cbranch_scc1 KM_hs{s}
KM_hr{s}:""")
        if s in CB: bar(a, 'W', f'C{s}')
        if nb < NS2: ldb(nb); nb += 1
        elif nx < 6:
            k = nx // 2
            a(f"buffer_load_dwordx2 {P(116+2*k)}, v8, s[12:15], s23 offen offset:{32*k} sc1")
            a(f"buffer_load_dwordx4 {Q(128+4*k)}, v15, s[12:15], s28 offen offset:{64*k} sc1")
            nx += 2
        R = reads2(s+1) if s+1 < NS2 else []
        for mt in range(5):
            c = AC2(mt)
            a(f"v_mfma_f32_16x16x32_bf16 {Q(c)}, {Q(FA2(s & 1, mt))}, {Q(FB2(s))}, {'0' if s == 0 else Q(c)}")
            for l in R[2*mt:2*mt+2]: a(l)
    RB = WPOS(10)*DW
    ST('d')
    a(f"""s_mul_i32 s28, s27, 5120
s_add_u32 s28, s28, {RB}
v_add_u32 v6, s28, v6
s_and_b32 s23, s30, 63
s_lshl_b32 s23, s23, 5
s_lshr_b32 s29, s30, 6
s_add_u32 s23, s23, s29
s_mul_i32 s23, s23, 1280
s_add_u32 s23, s23, s25
v_mul_u32_u24 v8, 40960, v12
v_lshl_add_u32 v8, v13, 3, v8
s_cmp_eq_u32 s26, 0
s_cbranch_scc1 KM_lo""")
    def fin(give, keep, base):
        for mt in give: a(f"ds_write_b128 v6, {Q(AC2(mt))} offset:{1024*mt}")
        a("s_waitcnt vmcnt(0)")
        for mt in keep:
            x = 116+2*(mt-base); r = 76+4*mt
            a(f"v_lshlrev_b32 v{r}, 16, v{x}\nv_and_b32 v{r+1}, 0xffff0000, v{x}\nv_lshlrev_b32 v{r+2}, 16, v{x+1}\nv_and_b32 v{r+3}, 0xffff0000, v{x+1}")
        a("s_waitcnt lgkmcnt(0)\ns_barrier")
        for mt in keep: a(f"ds_read_b128 {Q(36+4*mt)}, v6 offset:{1024*mt}")
        for n, mt in enumerate(keep):
            c = AC2(mt); x = 116+2*(mt-base); g = 128+4*(mt-base); r = 36+4*mt; o = 76+4*mt
            a(f"""s_waitcnt lgkmcnt({len(keep)-1-n})
v_pk_add_f32 {P(c)}, {P(c)}, {P(r)}
v_pk_add_f32 {P(c+2)}, {P(c+2)}, {P(r+2)}
v_pk_fma_f32 {P(o)}, {P(c)}, {P(g)}, {P(o)}
v_pk_fma_f32 {P(o+2)}, {P(c+2)}, {P(g+2)}, {P(o+2)}
v_cvt_pk_bf16_f32 v{x}, v{o}, v{o+1}
v_cvt_pk_bf16_f32 v{x+1}, v{o+2}, v{o+3}
buffer_store_dwordx2 {P(x)}, v8, s[16:19], s23 offen offset:{32*mt}""")
        a("@dump 12\ns_endpgm")
    nst = a.st.n
    fin([0,1,2], [3,4], 2)
    a.st.n = nst
    a("KM_lo:")
    fin([3,4], [0,1,2], 0)
    a.st.n = 1
    for s in range(NS2):
        f = FB2(s)
        a(f"""KM_hs{s}:
s_add_u32 s40, s41, {2048*s}
s_mov_b32 s46, 0x8000
KM_hl{s}:
s_mov_b64 exec, vcc
s_sleep 2
buffer_load_dwordx4 {Q(f)}, v6, s[12:15], s40 offen sc1
s_waitcnt vmcnt(0)
v_max3_u32 v9, v{f}, v{f+1}, v{f+2}
v_max_u32 v9, v9, v{f+3}
v_cmp_eq_u32 vcc, -1, v9
s_mov_b64 exec, -1
s_sub_u32 s46, s46, 1
s_cmp_eq_u32 s46, 0
s_cbranch_scc1 KM_hr{s}
s_cmp_lg_u64 vcc, 0
s_cbranch_scc1 KM_hl{s}
s_branch KM_hr{s}""")
    a(f"""KM_prod:
s_sub_u32 s47, s22, 8
s_waitcnt lgkmcnt(0)""")
    if OPT.get('wb'): a(f"s_add_u32 s6, s6, {OPT['wb']}\ns_addc_u32 s7, s7, 0")
    srd(a, 12, 6, WS_SIZE)
    srd(a, 16, 60, 256)
    a(f"""v_mov_b32 v60, 0
s_load_dwordx4 s[56:59], s[0:1], 32
s_load_dwordx2 s[4:5], s[0:1], 48
v_lshlrev_b32 v59, 4, v1
s_sub_u32 s53, s2, 80
s_xor_b32 s54, s47, 2
s_mul_i32 s54, s54, 192
s_sub_u32 s21, s2, 64
s_add_u32 s54, s54, s21
s_cmp_lt_u32 s2, 64
s_cselect_b32 s54, 999, s54
s_cmp_ge_u32 s47, 2
s_cbranch_scc1 KM_p_wp
s_cmp_lg_u32 s47, 0
s_cbranch_scc1 KM_p_pf
s_cmp_lg_u32 s2, 0
s_cbranch_scc1 KM_p_nn
s_memrealtime s[38:39]
s_waitcnt lgkmcnt(0)
s_or_b32 s38, s38, 1
v_mov_b32 v61, s38
s_mov_b64 exec, 1
buffer_store_dword v61, v60, s[16:19], 0 offen sc1
s_mov_b64 exec, -1
KM_p_nn:
KM_p_nc:""")
    spin(a, 'KM_pn', "buffer_load_dword v61, v60, s[16:19], 0 offen sc1", "v_cmp_eq_u32 vcc, 0, v61")
    a(f"""v_mov_b32 v62, {NON}
ds_write_b32 v62, v61
s_branch KM_p_no0
KM_p_pf:""")
    if 'nocpf' not in OPT:
        a(f"""s_cmp_lt_u32 s2, {256 - OPT.get('ncp', 16)}
s_cbranch_scc1 KM_p_no0
s_getpc_b64 s[38:39]
KM_pc:
s_sub_u32 s38, s38, KM_pc-{NAME}
s_subb_u32 s39, s39, 0
v_lshlrev_b32 v86, 7, v1""")
        for k in range(4):
            a(f"""v_add_u32 v87, {8192*k}, v86
v_min_u32 v87, KM_end-{NAME}, v87
global_load_dword v{88+k}, v87, s[38:39]""")
    a(f"""KM_p_no0:
s_waitcnt lgkmcnt(0)""")
    bar(a, 'P', 'g1')
    a(f"""v_mov_b32 v62, {NON}
ds_read_b32 v61, v62
s_mul_i32 s23, s47, 5120
s_add_u32 s23, s23, {MODG}
s_add_u32 s21, s23, 4096
v_lshlrev_b32 v62, 4, v1
s_mul_i32 s24, s47, 2560
s_add_u32 s24, s24, {PB1}
v_lshlrev_b32 v63, 3, v1
v_add_u32 v63, s24, v63
s_lshl_b32 s25, s2, 7
s_add_u32 s25, s25, {GFL}
s_lshl_b32 s26, s47, 14
s_add_u32 s26, s26, {GFL}
s_add_u32 s27, s26, 8192
v_lshlrev_b32 v58, 7, v1
s_waitcnt lgkmcnt(0)
s_cmp_lg_u32 s47, 0
s_cbranch_scc1 KM_p_nf
s_mov_b64 exec, 1
buffer_store_dword v61, v60, s[12:15], s25 offen sc1
s_mov_b64 exec, -1
KM_p_nf:""")
    ld = "\n".join([f"buffer_load_dwordx4 {Q(8+4*q)}, v62, s[12:15], {'s23' if q < 4 else 's21'} offen offset:{1024*(q % 4)} sc1" for q in range(5)])
    cm = "v_cmp_ne_u32 vcc, v9, v61\n" + "\n".join([f"v_cmp_ne_u32 s[38:39], v{r}, v61\ns_or_b64 vcc, vcc, s[38:39]" for r in range(11, 28, 2)])
    spin(a, 'KM_pg', ld, cm, slp=OPT.get('gs', 4))
    for q in range(5): a(f"v_mov_b32 v{9+4*q}, v{10+4*q}\nds_write_b64 v63, {P(8+4*q)} offset:{512*q}")
    a("s_waitcnt lgkmcnt(0)")
    ST('p')
    a("s_barrier")
    spin(a, 'KM_A_p', "buffer_load_dword v11, v58, s[12:15], s26 offen sc1\nbuffer_load_dword v12, v58, s[12:15], s27 offen sc1", "v_cmp_ne_u32 vcc, v11, v61\nv_cmp_ne_u32 s[38:39], v12, v61\ns_or_b64 vcc, vcc, s[38:39]")
    ST('p')
    a("s_branch KM_p_ag2")
    a(f"""KM_p_wp:
s_sub_u32 s21, s47, 2""")
    task_ids(a, 21)
    a(f"""s_cmp_gt_u32 s28, 320
s_cbranch_scc1 KM_p_nyf
s_lshl_b32 s28, s28, 13
s_add_u32 s28, s28, {YF}
s_add_u32 s29, s28, 4096
v_mov_b32 v64, -1
v_mov_b32 v65, -1
v_mov_b32 v66, -1
v_mov_b32 v67, -1""")
    for q in range(8): a(f"buffer_store_dwordx4 {Q(64)}, v59, s[12:15], {'s28' if q < 4 else 's29'} offen offset:{1024*(q % 4)} sc1")
    a(f"""KM_p_nyf:
s_mul_i32 s21, s21, 176
s_add_u32 s21, s21, s53
s_cmp_lt_u32 s2, 80
s_cbranch_scc1 KM_p_nowp""")
    TOUCH = f"""s_mov_b64 s[44:45], exec
s_mov_b64 exec, -1
s_waitcnt lgkmcnt(0)
s_cmp_eq_u32 s47, 2
s_cselect_b32 s16, s56, s58
s_cselect_b32 s17, s57, s59
s_mov_b32 s18, {640*3072}
s_mov_b32 s19, 0x00020000
s_mul_i32 s40, s2, 7680
v_and_b32 v84, 63, v0
v_min_u32 v84, 59, v84
v_lshlrev_b32 v84, 7, v84
buffer_load_dword v85, v84, s[16:19], s40 offen
s_mov_b64 exec, s[44:45]"""
    st_save = gen.STAMPS; gen.STAMPS = False
    tmp = Asm2(); tmp.st = a.st
    if 'wp1' in OPT: wprep(tmp, 21, 24, 26, 12, 'sc1')
    else:
        tmp('s_lshl_b32 s45, s47, 13')
        wprep2(tmp, 21, 24, 26, 12, 'sc1', 's45')
    gen.STAMPS = st_save
    for ins in tmp.ins:
        if ins.kind == 'nop': continue
        if ins.text.strip() == 's_waitcnt vmcnt(0)':
            a("s_barrier\ns_waitcnt vmcnt(0)"); continue
        a(ins.text)
    a("s_branch KM_p_wd\nKM_p_nowp:\ns_barrier\nKM_p_wd:\nv_and_b32 v2, 63, v0\ns_waitcnt lgkmcnt(0)")
    bar(a, 'P', 'g2')
    a("KM_p_ag2:")
    a(f"""v_mov_b32 v62, {NON}
ds_read_b32 v61, v62
v_and_b32 v2, 63, v0
s_waitcnt vmcnt(0) lgkmcnt(0)
s_cmp_lt_u32 s47, 2
s_cselect_b32 s8, s56, s58
s_cselect_b32 s9, s57, s59
s_mov_b32 s10, {640*3072}
s_mov_b32 s11, 0x00020000""")
    bar(a, 'P', 'k1a')
    a("""s_or_b32 s23, s2, s47
s_cmp_lg_u32 s23, 0
s_cbranch_scc1 KM_p_nr
s_mov_b64 exec, 1
buffer_store_dword v60, v60, s[16:19], 0 offen sc1
s_mov_b64 exec, -1
KM_p_nr:""")
    srd(a, 16, 4, 1536*1280)
    a(f"""s_cmp_ge_u32 s54, 384
s_cbranch_scc1 KM_p_nwd
s_lshr_b32 s24, s54, 3
s_and_b32 s25, s54, 7
s_mul_i32 s55, s25, {1536*160}
s_mul_i32 s21, s24, 5120
s_add_u32 s55, s55, s21
s_add_u32 s55, s55, {WDT}
s_mul_i32 s24, s24, {32*1280}
s_mul_i32 s25, s25, 160
s_add_u32 s24, s24, s25""")
    for q in range(5):
        a(f"""v_add_u32 v12, {64*q}, v2
v_mul_u32_u24 v14, 52429, v12
v_lshrrev_b32 v14, 19, v14
v_mul_u32_u24 v15, 10, v14
v_sub_u32 v15, v12, v15
v_and_b32 v36, 3, v14
v_bfe_u32 v37, v14, 2, 2
v_lshl_add_u32 v36, v37, 3, v36
v_lshrrev_b32 v37, 4, v14
v_lshl_add_u32 v36, v37, 2, v36
v_mul_u32_u24 v36, 1280, v36
v_lshl_add_u32 v36, v15, 4, v36
buffer_load_dwordx4 {Q(64+4*q)}, v36, s[16:19], s24 offen""")
    a("KM_p_nwd:")
    def touch():
        a("s_cmp_lt_u32 s47, 2\ns_cbranch_scc1 KM_p_nt")
        a(TOUCH)
        a("KM_p_nt:")
    if OPT.get('tp', 'k1a') == 'k1a': touch()
    for q in range(3):
        a(f"""v_add_u32 v10, {64*q}, v2
v_mul_u32_u24 v11, 43691, v10
v_lshrrev_b32 v11, 19, v11
v_mul_u32_u24 v12, 12, v11
v_sub_u32 v12, v10, v12
v_lshrrev_b32 v13, 2, v11
v_and_b32 v13, 2, v13
v_xor_b32 v12, v12, v13
v_mul_u32_u24 v11, 3072, v11
v_lshl_add_u32 v11, v12, 4, v11
v_subrev_u32 v{50+q}, {1024*q}, v11""")
    for q in range(4):
        a(f"""v_lshrrev_b32 v10, 4, v2
v_add_u32 v10, {4*q}, v10
v_xor_b32 v10, v10, v2
v_and_b32 v10, 7, v10
v_lshrrev_b32 v11, 3, v2
v_mul_u32_u24 v11, 1280, v11
v_lshl_add_u32 v11, v10, 4, v11
v_add_u32 v{53+q}, {q*(10240-1024)}, v11""")
    a(f"""
s_and_b32 s26, s47, 1
s_mul_i32 s27, s26, {16*3072}
s_mul_i32 s28, s51, 192
s_add_u32 s27, s27, s28
s_mul_i32 s28, s47, 3072
s_lshl_b32 s29, s50, 2
s_add_u32 s29, s29, s47
s_mul_i32 s29, s29, 40960
s_add_u32 s29, s29, {H2F}
s_lshl_b32 s30, s47, 12
v_and_b32 v58, 15, v2
v_lshlrev_b32 v58, 7, v58
v_and_b32 v57, 3, v2
v_lshlrev_b32 v57, 7, v57
v_lshlrev_b32 v59, 4, v2
v_lshlrev_b32 v63, 7, v2""")
    def iw(s):
        a(f"s_add_u32 m0, s28, {(s % 8)*WS_}")
        for q in range(3): a(f"buffer_load_dwordx4 v{50+q}, s[8:11], s27 offen offset:{1024*q} sc1 lds")
        a(f"s_add_u32 s27, s27, {32*3072}")
    def ih(d):
        a(f"s_add_u32 m0, s30, {HB + (d % 4)*HS}")
        for q in range(4): a(f"buffer_load_dwordx4 v{53+q}, s[12:15], s33 offen offset:{1024*q} sc1 lds")
        a("s_add_u32 s33, s33, 128")
    bar(a, 'P', 'k2a')
    a("s_cmp_ge_u32 s54, 384\ns_cbranch_scc1 KM_p_nwd2\ns_add_u32 s54, s55, 4096\ns_waitcnt vmcnt(0)")
    for q in range(5): a(f"buffer_store_dwordx4 {Q(64+4*q)}, v59, s[12:15], {'s55' if q < 4 else 's54'} offen offset:{1024*(q % 4)} sc1")
    a("KM_p_nwd2:")
    a(f"""s_lshl_b32 s23, s47, 11
s_add_u32 m0, s23, {PB}
s_add_u32 s23, s23, 5120
buffer_load_dwordx4 v59, s[12:15], s23 offen sc1 lds
buffer_load_dwordx4 v59, s[12:15], s23 offen offset:1024 sc1 lds""")
    W0 = OPT.get('w0', 'k2a')
    if W0 == 'k2a':
        for s in range(0, 4): iw(s)
        a("s_waitcnt vmcnt(12)")
    elif W0 == 'split':
        for s in range(0, 2): iw(s)
        a("s_waitcnt vmcnt(6)")
    else: a("s_waitcnt vmcnt(0)")
    bar(a, 'P', 'k2b')
    if W0 == 'k2b':
        for s in range(0, 4): iw(s)
    if OPT.get('tp', 'k1a') == 'k2b': touch()
    a(f"""s_lshl_b32 s23, s50, 3
s_lshl_b32 s24, s47, 1
s_add_u32 s23, s23, s24
s_mul_i32 s23, s23, 49152
s_mul_i32 s24, s51, 3072
s_add_u32 s23, s23, s24
s_add_u32 s23, s23, {HIDF}
s_add_u32 s24, s23, 49152
v_mov_b32 v88, -1
v_mov_b32 v89, -1
v_mov_b32 v90, -1
v_mov_b32 v91, -1""")
    def hpre():
        if 'nohs' in OPT: return
        for q in range(6): a(f"buffer_store_dwordx4 {Q(88)}, v59, s[12:15], {'s23' if q < 3 else 's24'} offen offset:{1024*(q % 3)} sc1")
    if OPT.get('hp', 'b1') == 'k2b': hpre()
    if OPT.get('wp', 'd1') == 'k2b':
        for s in range(4, 8): iw(s)
    bar(a, 'P', 'b1')
    if OPT.get('tp', 'k1a') == 'b1': touch()
    if OPT.get('hp', 'b1') == 'b1': hpre()
    if W0 == 'b1':
        for s in range(0, 4): iw(s)
    if W0 == 'split':
        for s in range(2, 4): iw(s)
    if OPT.get('wp', 'd1') == 'b1':
        for s in range(4, 8): iw(s)
    bar(a, 'P', 'b2')
    bar(a, 'P', 'b3')
    if OPT.get('hp', 'b1') == 'b3': hpre()
    if W0 == 'b3':
        for s in range(0, 4): iw(s)
    if OPT.get('wp', 'd1') == 'b3':
        for s in range(4, 8): iw(s)
    a(f"""s_lshl_b32 s48, s50, 4
s_add_u32 s48, s48, s51
s_lshl_b32 s48, s48, 7
s_add_u32 s48, s48, {FLG}
s_lshl_b32 s23, s50, 2
s_add_u32 s23, s23, s47
s_lshl_b32 s23, s23, 9
s_add_u32 s23, s23, {FLG}
s_and_b32 s24, s51, 7
s_mul_i32 s31, s47, 2560
s_mul_i32 s32, s24, {1536*160}
s_add_u32 s32, s32, s31
s_add_u32 s32, s32, {WDT}
s_waitcnt vmcnt(0)""")
    bar(a, 'P', 'd1')
    a(f"""s_cmp_lg_u32 s47, 0
s_cbranch_scc1 KM_na1
s_mov_b64 exec, 1
buffer_store_dword v61, v60, s[12:15], s48 offen sc1
s_mov_b64 exec, -1
KM_na1:""")
    cnt = []
    def iw2(s):
        a(f"""s_add_u32 m0, s31, {WPOS(s)*DW}
buffer_load_dwordx4 v59, s[12:15], s32 offen sc1 lds
buffer_load_dwordx4 v59, s[12:15], s32 offen offset:1024 sc1 lds
s_mov_b32 exec_hi, 0
buffer_load_dwordx4 v59, s[12:15], s32 offen offset:2048 sc1 lds
s_mov_b32 exec_hi, -1
s_add_u32 s32, s32, 10240""")
    def grp(d):
        ih(d); n = 4
        if d >= 4:
            iw(2*d); iw(2*d+1); n += 6
        cnt.append(n)
    a(f"v_add_u32 v62, s30, v59\nv_add_u32 v62, {HB}, v62")
    def hl(d, q): return f"buffer_load_dwordx4 {Q(96+16*d+4*q)}, v{53+q}, s[12:15], s29 offen offset:{1024*q+128*d} sc1"
    for d in range(4):
        for q in range(4): a(hl(d, q))
    XW = 0
    if OPT.get('wp', 'd1') == 'd1':
        for s in range(4, 8): iw(s)
        XW = 12
    nw2 = 0
    def hchk(d):
        R = 96+16*d
        a(f"s_mov_b32 s46, 0x8000\ns_waitcnt vmcnt({4*(3-d)+XW})\ns_branch KM_hc{d}\nKM_hq{d}:\ns_sleep 2")
        for q in range(4): a(hl(d, q))
        a(f"s_waitcnt vmcnt(0)\nKM_hc{d}:")
        a(f"v_max3_u32 v12, v{R}, v{R+1}, v{R+2}")
        for k in range(3, 15, 2): a(f"v_max3_u32 v12, v12, v{R+k}, v{R+k+1}")
        a(f"""v_max_u32 v12, v12, v{R+15}
v_cmp_eq_u32 vcc, -1, v12
s_nop 1
s_and_b64 exec, exec, vcc
s_cbranch_scc0 KM_ho{d}
s_sub_u32 s46, s46, 1
s_cmp_lg_u32 s46, 0
s_cbranch_scc1 KM_hq{d}
KM_ho{d}:
s_mov_b64 exec, -1""")
        for q in range(4): a(f"ds_write_b128 v62, {Q(R+4*q)} offset:{d*HS+1024*q}")
    for d in range(10):
        if d == 0:
            hchk(0); a("s_waitcnt lgkmcnt(0)"); ST('p')
        elif d == 1:
            hchk(1); a("s_waitcnt lgkmcnt(0)")
        elif d >= 4:
            a(f"s_waitcnt vmcnt({sum(cnt[d-3:])})")
        bar(a, 'P', f'B{d}')
        if d == 1:
            iw(8); iw(9)
            a("s_waitcnt vmcnt(6)")
            hchk2 = True
            for dd in (2, 3):
                R = 96+16*dd
                a(f"s_mov_b32 s46, 0x8000\ns_branch KM_hc{dd}\nKM_hq{dd}:\ns_sleep 2")
                for q in range(4): a(hl(dd, q))
                a(f"s_waitcnt vmcnt(0)\nKM_hc{dd}:")
                a(f"v_max3_u32 v12, v{R}, v{R+1}, v{R+2}")
                for k in range(3, 15, 2): a(f"v_max3_u32 v12, v12, v{R+k}, v{R+k+1}")
                a(f"""v_max_u32 v12, v12, v{R+15}
v_cmp_eq_u32 vcc, -1, v12
s_nop 1
s_and_b64 exec, exec, vcc
s_cbranch_scc0 KM_ho{dd}
s_sub_u32 s46, s46, 1
s_cmp_lg_u32 s46, 0
s_cbranch_scc1 KM_hq{dd}
KM_ho{dd}:
s_mov_b64 exec, -1""")
                for q in range(4): a(f"ds_write_b128 v62, {Q(R+4*q)} offset:{dd*HS+1024*q}")
            a("s_waitcnt lgkmcnt(0)\ns_add_u32 s33, s29, 512")
        elif d == 2:
            spin(a, 'KM_p1', "buffer_load_dword v11, v57, s[12:15], s23 offen sc1", "v_cmp_ne_u32 vcc, v11, v61")
            ih(4); cnt.append(4)
            grp(5)
        elif d >= 3 and d+3 < 10: grp(d+3)
        if d >= 7:
            for _ in range(EARLY[d]): iw2(nw2); nw2 += 1
            cnt.append(3*EARLY[d])
    bar(a, 'P', 'B10')
    while nw2 < NWD: iw2(nw2); nw2 += 1
    if 'nohs' in OPT:
        a(f"""s_lshl_b32 s23, s50, 11
s_add_u32 s23, s23, {FLG + 32768}
s_add_u32 s48, s48, 32768""")
        bar(a, 'P', 'd2')
        a(f"""s_cmp_eq_u32 s47, 1
s_cbranch_scc0 KM_nb2
s_mov_b64 exec, 1
buffer_store_dword v61, v60, s[12:15], s48 offen sc1
s_mov_b64 exec, -1
KM_nb2:
s_cmp_lg_u32 s47, 0
s_cbranch_scc1 KM_na2""")
        spin(a, 'KM_p2', "buffer_load_dword v11, v58, s[12:15], s23 offen sc1", "v_cmp_ne_u32 vcc, v11, v61")
        a("KM_na2:")
    a("s_waitcnt vmcnt(0)")
    ST('p')
    bar(a, 'P', 'C0')
    pend = []
    for s in CB:
        need = [t for t in pend if t <= NEXTCB[s]]
        a(f"s_waitcnt vmcnt({3*(len(pend)-len(need))})")
        bar(a, 'P', f'C{s}')
        pend = [t for t in pend if t not in need]
        while nw2 < NS2 and nw2 - NWD <= s:
            iw2(nw2); pend.append(nw2); nw2 += 1
    a("@dump 12\nKM_end:\ns_endpgm")
    assert bar.seq['W'] == bar.seq['P'], (bar.seq['W'], bar.seq['P'])
    return kd_block(NAME, 168, 100)
if __name__ == '__main__':
    OPT = {}; out = 'mega.s'
    for x in sys.argv[1:]:
        if x.endswith('.s'): out = x
        elif x.startswith('st='): gen.STAMPS = True; OPT['st'] = x[3:]
        elif x.startswith('slp'): gen.SLP = int(x[3:])
        elif x.startswith('bk'): OPT['bk'] = int(x[2:])
        elif x.startswith('tp='): OPT['tp'] = x[3:]
        elif x.startswith('hp='): OPT['hp'] = x[3:]
        elif x.startswith('w0='): OPT['w0'] = x[3:]
        elif x.startswith('gd='): OPT['gd'] = int(x[3:])
        elif x.startswith('gs='): OPT['gs'] = int(x[3:])
        elif x.startswith('e0='): OPT['e0'] = int(x[3:])
        elif x.startswith('nb='): OPT['nb'] = int(x[3:])
        elif x.startswith('dx='): OPT['dx'] = int(x[3:])
        elif x.startswith('dy='): OPT['dy'] = int(x[3:])
        elif x.startswith('ncp='): OPT['ncp'] = int(x[4:])
        elif x.startswith('wb='): OPT['wb'] = int(x[3:]) << 20
        elif x.startswith('wp='): OPT['wp'] = x[3:]
        else: OPT[x] = 1
    a = Asm2()
    kd = km(a, OPT)
    hdr = open('adaLN_cond__spectral_gfnet__glu_gated_geglu__prompt.s.ref').read().split('\n')[:13]
    s = '\n'.join(hdr) + '\n; @launch grid=(256,1,1) block=(768,1,1) lds=163840\n'
    s += '.amdgcn_target "amdgcn-amd-amdhsa--gfx950"\n.text\n' + a.text() + '.section .rodata,"a"\n' + kd
    open(out, 'w').write(s)
```

```python
import sys, math
sys.path.insert(0,'work')
import gen
from gen import *
NAME = 'adaLN_cond__spectral_gfnet__glu_gated_geglu__prompt_kernel'
MODG = 0x4000
GFL = 0x20000
CNT = 0x8000
class Bar:
    def __init__(self): self.seq = {}
    def __call__(self, a, role, name):
        self.seq.setdefault(role, []).append(name); a("s_barrier")
def spin(a, name, load, cmp, mask=True, slp=None):
    a(f"s_mov_b32 s46, 0x8000\n{name}:")
    a(load); a("s_waitcnt vmcnt(0)"); a(cmp)
    a(f"""s_nop 1
s_and_b64 exec, exec, vcc
s_cbranch_scc0 {name}_ok
s_sleep {gen.SLP if slp is None else slp}
s_sub_u32 s46, s46, 1
s_cmp_lg_u32 s46, 0
s_cbranch_scc1 {name}
{name}_ok:
s_mov_b64 exec, -1""")

def addr_xf(a):
    a(f"""s_lshl_b32 s40, s22, 5
v_lshrrev_b32 v22, 1, v6
v_lshl_add_u32 v22, v22, 4, v5
v_add_u32 v22, s40, v22
v_add_u32 v23, 256, v8
v_and_b32 v24, 1, v6
v_lshlrev_b32 v24, 7, v24""")
    for src_, dst in ((22, 11), (23, 13)):
        a(f"""v_lshrrev_b32 v25, 3, v{src_}
v_lshl_add_u32 v25, v25, 16, v24
v_and_b32 v26, 7, v{src_}
v_lshl_add_u32 v{dst}, v26, 4, v25""")
def addr_yf(a):
    a(f"""s_lshl_b32 s40, s22, 5
v_lshrrev_b32 v22, 1, v6
v_lshl_add_u32 v22, v22, 4, v5
v_add_u32 v22, s40, v22
v_add_u32 v23, 256, v8
v_and_b32 v24, 1, v6
v_lshlrev_b32 v24, 8, v24
v_lshl_add_u32 v11, v22, 13, v24
v_lshl_add_u32 v13, v23, 13, v24""")
def gather2(a, name, ld0, ld1, r0, r1, t, pre=False, dly=0):
    a(f"""s_mov_b32 s46, 0x8000
s_waitcnt vmcnt(0)
{f's_branch {name}_chk' if pre else ''}
{name}:
{ld0}
{ld1}
{name}_chk:
s_waitcnt vmcnt(0)
v_max3_u32 v{t}, v{r0}, v{r0+1}, v{r0+2}
v_max3_u32 v{t+1}, v{r1}, v{r1+1}, v{r1+2}
v_max3_u32 v{t}, v{t}, v{r0+3}, v{r1+3}
v_max_u32 v{t}, v{t}, v{t+1}
v_cmp_eq_u32 vcc, -1, v{t}
s_nop 1
s_and_b64 exec, exec, vcc
s_cbranch_scc0 {name}_ok
s_sleep 2
s_sub_u32 s46, s46, 1
s_cmp_lg_u32 s46, 0
s_cbranch_scc1 {name}
{name}_ok:
s_mov_b64 exec, -1""")
def task_ids(a, slot):
    a(f"""s_lshl_b32 s28, s{slot}, 2
s_lshr_b32 s29, s2, 6
s_add_u32 s28, s28, s29
s_lshl_b32 s28, s28, 3
s_and_b32 s29, s2, 7
s_add_u32 s28, s28, s29
s_lshl_b32 s41, s28, 16
s_lshl_b32 s28, s28, 3
s_bfe_u32 s29, s2, 0x30003
s_add_u32 s28, s28, s29
s_lshl_b32 s29, s29, 4
s_add_u32 s41, s41, s29""")
def km(a, OPT):
    bar = Bar()
    a(f".globl {NAME}\n.p2align 8\n.type {NAME},@function\n{NAME}:")
    a.st = Stamper(a, 3)
    ST = lambda tag: a("@stamp") if tag in OPT.get('st', '') else None
    R2 = 98304
    GP = R2; NON = R2 + 1536; PB1 = R2 + 2048; Z1 = R2 + 8192; K2B = R2 + 24576
    TB = R2; ZB = R2 + 12288; ZR = 528; ZC = 8*ZR; PB = R2 + 57344
    NST = 20; WS_ = 12288; HB = R2; HS = 16384
    NS2 = 24; DW = 10240; NWD = 16
    ORDER = [5, 6, 13,  7, 8, 14, 15,  0, 1, 9, 10,  2, 3, 4, 11, 12]
    EARLY = {7: 3, 8: 4, 9: 4} if 'e0' not in OPT else ({7: 0, 8: 0, 9: 0} if OPT['e0'] == 0 else {7: 0, 8: 4, 9: 6})
    WPOS = lambda s: ORDER[s % NWD]
    CB = [3, 7, 15, 19]; NEXTCB = {3: 7, 7: 15, 15: 19, 19: 23}
    XR = 114
    a(f"""
s_cmp_ge_u32 s2, 256
s_cbranch_scc1 KM_end
@stamp
s_load_dwordx2 s[4:5], s[0:1], 0
s_load_dwordx2 s[6:7], s[0:1], 88
s_load_dwordx4 s[56:59], s[0:1], 56
s_load_dwordx4 s[24:27], s[0:1], 8
s_load_dwordx2 s[60:61], s[0:1], 80
s_and_b32 s50, s2, 7
s_lshr_b32 s51, s2, 3
s_mul_i32 s52, s50, 10
s_add_u32 s52, s52, s51
s_mul_i32 s21, s50, 20
s_add_u32 s21, s21, s51
s_add_u32 s21, s21, 70
s_cmp_lt_u32 s2, 80
s_cselect_b32 s52, s52, s21
s_lshl_b32 s50, s50, 1
s_lshr_b32 s21, s51, 4
s_add_u32 s50, s50, s21
s_and_b32 s51, s51, 15
v_lshrrev_b32 v4, 6, v0
v_and_b32 v1, 63, v0
v_readfirstlane_b32 s22, v4
s_lshl_b32 s3, s50, 1
s_lshr_b32 s21, s51, 3
s_add_u32 s3, s3, s21
s_and_b32 s20, s51, 7
s_cmp_ge_u32 s22, 8
s_cbranch_scc1 KM_prod
v_and_b32 v3, 31, v0
v_lshlrev_b32 v2, 3, v3
v_bfe_u32 v4, v0, 5, 1
v_lshl_add_u32 v2, v4, 8, v2
v_lshlrev_b32 v3, 2, v3
v_lshl_add_u32 v3, v4, 1, v3
s_lshl_b32 s21, s20, 3
s_add_u32 s21, s21, s22
s_lshl_b32 s21, s21, 5
s_add_u32 s21, s21, s3
s_mul_i32 s21, s21, 1280
s_lshl_b32 s23, s52, 5
v_lshrrev_b32 v144, 1, v0
v_and_b32 v145, 1, v0
v_mul_u32_u24 v146, 7680, v144
v_lshl_add_u32 v146, v145, 4, v146
v_add_u32 v146, s23, v146
v_lshlrev_b32 v147, 1, v144
s_cmp_lt_u32 s2, 240
s_cselect_b32 s49, 5, 0
s_waitcnt lgkmcnt(0)
""")
    if OPT.get('wb'): a(f"s_add_u32 s6, s6, {OPT['wb']}\ns_addc_u32 s7, s7, 0")
    srd(a, 12, 6, WS_SIZE)
    srd(a, 8, 56, 1280)
    srd(a, 16, 58, 640*3840*2)
    NR = 4
    def gloads(tag, cond):
        a(f"s_cmp_ge_u32 s22, s49\ns_cbranch_scc1 KM_nog1{tag}")
        for i in range(NR): a(f"buffer_load_short_d16_hi v{136+i}, v147, s[8:11], 0 offen offset:{320*i}")
        a("s_mov_b32 s23, 0")
        for i in range(NR):
            a(f"buffer_load_dwordx4 {Q(120+4*i)}, v146, s[16:19], s23 offen")
            if i < NR-1: a(f"s_add_u32 s23, s23, {160*7680}")
        a(f"KM_nog1{tag}:")
    srd(a, 24, 60, 256)
    a("""v_mov_b32 v20, 0
s_or_b32 s23, s2, s22
s_cmp_lg_u32 s23, 0
s_cbranch_scc1 KM_w_nn
s_memrealtime s[38:39]
s_waitcnt lgkmcnt(0)
s_or_b32 s38, s38, 1
v_mov_b32 v21, s38
s_mov_b64 exec, 1
buffer_store_dword v21, v20, s[24:27], 0 offen sc1
s_mov_b64 exec, -1
KM_w_nn:""")
    srd(a, 24, 4, 2048*1280)
    for k in range(3): a(f"buffer_load_dwordx2 {P(XR+2*k)}, v2, s[24:27], s21 offen offset:{512*k}")
    gloads('a', 0)
    a("v_and_b32 v5, 15, v0\nv_bfe_u32 v6, v0, 4, 2")
    col_slots(a, 22, 5, 6, 8, 22)
    addr_xf(a)
    a(f"""s_lshl_b32 s38, s3, 11
s_lshl_b32 s21, s20, 8
s_add_u32 s38, s38, s21
s_add_u32 s38, s38, {XF}
v_mov_b32 v28, -1
v_mov_b32 v29, -1
v_mov_b32 v30, -1
v_mov_b32 v31, -1
buffer_store_dwordx4 {Q(28)}, v11, s[12:15], s38 offen sc1
s_mov_b32 exec_lo, 0x00ff00ff
s_mov_b32 exec_hi, 0
buffer_store_dwordx4 {Q(28)}, v13, s[12:15], s38 offen sc1
s_mov_b64 exec, -1
s_lshl_b32 s38, s20, 3
s_add_u32 s38, s38, s22
s_lshl_b32 s21, s3, 6
s_add_u32 s38, s38, s21
s_mul_i32 s38, s38, 1280
s_add_u32 s38, s38, {H2F}
buffer_store_dwordx2 {P(28)}, v2, s[12:15], s38 offen sc1""")
    w5_consts(a, 88, 22, -1.0)
    a(f"""
v_cvt_f32_u32 v22, v8
v_mul_f32 v22, {fh(1/128)}, v22
v_cvt_f32_u32 v23, v6
v_mul_f32 v23, {fh(8.0)}, v23
v_and_b32 v24, {fh(0.25)}, v9
v_fma_f32 v23, v23, v22, -v24
v_mul_f32 v24, {fh(25.0)}, v22
""")
    for t in range(4):
        for jj in range(4):
            a(f"""v_cos_f32 v25, v23
v_add_f32 v23, v23, v22
v_cos_f32 v26, v23
v_add_f32 v23, v23, v{24 if jj == 3 else 22}
v_cvt_pk_bf16_f32 v{96+4*t+jj}, v25, v26""")
    a(f"""
v_lshrrev_b32 v22, 3, v3
v_xor_b32 v22, s22, v22
v_lshlrev_b32 v22, 4, v22
v_and_b32 v23, 7, v3
v_lshl_add_u32 v22, v23, 1, v22
s_lshl_b32 s23, s22, 8
s_add_u32 s23, s23, {Z1}
v_add_u32 v14, s23, v22
v_xor_b32 v15, {2048+128}, v14
v_lshlrev_b32 v7, 2, v3
v_add_u32 v7, {PB1}, v7
v_xor_b32 v22, v6, v5
""")
    for t in range(4):
        a(f"""v_xor_b32 v23, {4*t}, v22
v_lshlrev_b32 v23, 4, v23
v_lshl_add_u32 v23, v5, 8, v23
v_add_u32 v{16+t}, {Z1}, v23""")
    r5_sconsts(a)
    srd(a, 24, 60, 256)
    a("buffer_load_dword v21, v20, s[24:27], 0 offen sc1")
    a("s_waitcnt vmcnt(12)\ns_cmp_lt_u32 s22, s49\ns_cbranch_scc1 KM_x0\ns_waitcnt vmcnt(4)\nKM_x0:")
    unpack_x(a, XR, 60)
    ln_rows(a, 60, 70)
    a(f"s_cmp_ge_u32 s22, s49\ns_cbranch_scc1 KM_nog2\ns_waitcnt vmcnt({NR+4})")
    C = 136; T = 140
    for i in range(NR): a(f"v_mul_f32 v{T+i}, {fh(-math.log2(math.e))}, v{C+i}")
    for i in range(NR): a(f"v_exp_f32 v{T+i}, v{T+i}")
    for i in range(NR): a(f"v_add_f32 v{T+i}, 1.0, v{T+i}")
    for i in range(NR): a(f"v_rcp_f32 v{T+i}, v{T+i}")
    for i in range(NR): a(f"v_mul_f32 v{C+i}, v{C+i}, v{T+i}")
    for i in range(NR): a(f"v_cvt_pk_bf16_f32 v{C+i}, v{C+i}, v{C+i}")
    for i in range(NR): a(f"v_and_b32 v{48+2*i}, 0xffff0000, v{C+i}")
    a(f"""v_lshrrev_b32 v22, 4, v0
v_lshlrev_b32 v23, 6, v22
v_lshl_add_u32 v23, v145, 5, v23
v_add_u32 v23, {GP}, v23""")
    for i in range(NR):
        a(f"s_waitcnt vmcnt({NR-1-i+4})")
        for j in range(4): a(f"v_lshlrev_b32 v{32+2*j}, 16, v{120+4*i+j}\nv_and_b32 v{33+2*j}, 0xffff0000, v{120+4*i+j}")
        for j in range(4):
            if i == 0: a(f"v_pk_mul_f32 {P(40+2*j)}, {P(32+2*j)}, {P(48)} op_sel_hi:[1,0]")
            else: a(f"v_pk_fma_f32 {P(40+2*j)}, {P(32+2*j)}, {P(48+2*i)}, {P(40+2*j)} op_sel_hi:[1,0,1]")
    for mode in ('quad_perm:[2,3,0,1]', 'row_ror:4', 'row_ror:8'):
        for j in range(8): a(f"v_add_f32_dpp v{40+j}, v{40+j}, v{40+j} {mode} {DPP}")
    a(f"""v_cmp_gt_u32 vcc, 2, v5
s_and_saveexec_b64 s[38:39], vcc
ds_write_b128 v23, {Q(40)}
ds_write_b128 v23, {Q(44)} offset:16
s_mov_b64 exec, s[38:39]
KM_nog2:
s_waitcnt vmcnt(0)
v_cmp_ne_u32 vcc, 0, v21
s_nop 1
s_cmp_lg_u64 vcc, 0
s_cbranch_scc1 KM_wn_ok""")
    spin(a, 'KM_wn', "buffer_load_dword v21, v20, s[24:27], 0 offen sc1", "v_cmp_eq_u32 vcc, 0, v21")
    a(f"""v_mov_b32 v22, {NON}
ds_write_b32 v22, v21
s_waitcnt lgkmcnt(0)""")
    ST('a')
    bar(a, 'W', 'g1')
    a(f"""s_cmp_lg_u32 s22, 0
s_cbranch_scc1 KM_nog3
s_cmp_eq_u32 s49, 0
s_cbranch_scc1 KM_nog3
v_mul_u32_u24 v23, 320, v6
v_lshl_add_u32 v23, v5, 2, v23
v_add_u32 v23, {GP}, v23
ds_read_b32 v40, v23
ds_read_b32 v41, v23 offset:64
ds_read_b32 v42, v23 offset:128
ds_read_b32 v43, v23 offset:192
ds_read_b32 v44, v23 offset:256
s_sub_u32 s23, s52, 40
s_cmp_lt_u32 s23, 40
s_cselect_b32 s21, 1.0, 0
s_sub_u32 s23, s52, 160
s_cmp_lt_u32 s23, 40
s_cselect_b32 s21, 1.0, s21
s_waitcnt lgkmcnt(0)
v_add_f32 v40, v40, v41
v_add_f32 v42, v42, v43
v_add_f32 v40, v40, v44
v_add_f32 v40, v40, v42
v_mov_b32 v41, v40
v_permlane16_swap_b32 v40, v41
v_add_f32 v40, v40, v41
v_mov_b32 v41, v40
v_permlane32_swap_b32 v40, v41
v_add_f32 v40, v40, v41
v_cvt_pk_bf16_f32 v40, v40, v40
v_and_b32 v40, 0xffff0000, v40
v_add_f32 v40, s21, v40
v_cvt_pk_bf16_f32 v40, v40, v40
v_and_b32 v40, 0xffff0000, v40
v_mov_b32 v41, v21
s_mov_b64 exec, 0xffff
s_cmp_lt_u32 s52, 80
s_cbranch_scc1 KM_gran
s_lshl_b32 s23, s52, 6
v_lshlrev_b32 v23, 2, v1
buffer_store_dword v40, v23, s[12:15], s23 offen sc1
s_branch KM_pub
KM_gran:
s_lshl_b32 s23, s52, 7
s_add_u32 s23, s23, {MODG}
v_lshlrev_b32 v23, 3, v1
buffer_store_dwordx2 {P(40)}, v23, s[12:15], s23 offen sc1
KM_pub:
s_mov_b64 exec, -1
KM_nog3:""")
    M = lambda t: 120+6*t
    N = lambda x, y: 144+6*(2*x+y)
    def gen_(R, cur, step, last, t0=12):
        for hh in range(2):
            a(f"""v_cos_f32 v{t0}, v{cur}
v_sin_f32 v{t0+1}, v{cur}
v_add_f32 v{cur}, v{cur}, v{step}
v_cos_f32 v{t0+2}, v{cur}
v_sin_f32 v{t0+3}, v{cur}
v_add_f32 v{cur}, v{cur}, v{last if hh else step}
v_cvt_pk_bf16_f32 v{R+2+hh}, v{t0}, v{t0+2}
v_cvt_pk_bf16_f32 v{R+hh}, -v{t0+1}, -v{t0+3}
v_cvt_pk_bf16_f32 v{R+4+hh}, v{t0+1}, v{t0+3}""")
    a(f"""v_bfe_u32 v46, v0, 6, 2
v_lshl_add_u32 v46, v46, 4, v5
v_cvt_f32_u32 v46, v46
v_cvt_f32_u32 v47, v6
v_cvt_f32_u32 v48, v5
v_mul_f32 v47, 4.0, v47
v_mul_f32 v49, {fh(1/64)}, v46
v_mul_f32 v50, v47, v49
v_mul_f32 v51, {fh(13.0)}, v49""")
    for t in range(4): gen_(M(t), 50, 49, 51, 52)
    for x in range(2):
        a(f"v_add_f32 v49, {fh(16.0*x)}, v48\nv_mul_f32 v49, {fh(1/32)}, v49\nv_mul_f32 v50, v47, v49\nv_mul_f32 v51, {fh(13.0)}, v49")
        for y in range(2): gen_(N(x, y), 50, 49, 51, 52)
    a(f"""s_lshl_b32 s23, s3, 11
s_lshl_b32 s21, s20, 8
s_add_u32 s23, s23, s21
s_add_u32 s23, s23, {XF}""")
    ST('a')
    bar(a, 'W', 'g2')
    ST('a')
    for j in range(5): a(f"ds_read_b64 {P(40+2*j)}, v7 offset:{2560+512*j}\nds_read_b64 {P(50+2*j)}, v7 offset:{512*j}")
    for j in range(5): a(f"v_pk_mul_f32 {P(28+2*j)}, {P(60+2*j)}, {P(70)} op_sel_hi:[1,0]")
    a("s_waitcnt lgkmcnt(0)")
    for j in range(5): a(f"v_pk_fma_f32 {P(28+2*j)}, {P(28+2*j)}, {P(40+2*j)}, {P(50+2*j)}")
    h = {(3*j) % 5: 28+2*j for j in range(5)}
    t1,t2,t3,t4 = 40,42,44,46; z0,p1,q1,p2,q2 = 48,50,52,54,56
    a(f"""v_pk_add_f32 {P(t1)}, {P(h[1])}, {P(h[4])}
v_pk_add_f32 {P(t2)}, {P(h[2])}, {P(h[3])}
v_pk_add_f32 {P(t3)}, {P(h[1])}, {P(h[4])} neg_lo:[0,1] neg_hi:[0,1]
v_pk_add_f32 {P(t4)}, {P(h[2])}, {P(h[3])} neg_lo:[0,1] neg_hi:[0,1]
v_pk_add_f32 {P(z0)}, {P(h[0])}, {P(t1)}
v_pk_fma_f32 {P(p1)}, s[30:31], {P(t1)}, {P(h[0])}
v_pk_fma_f32 {P(p2)}, s[32:33], {P(t1)}, {P(h[0])}
v_pk_mul_f32 {P(q1)}, s[34:35], {P(t3)}
v_pk_mul_f32 {P(q2)}, s[36:37], {P(t3)}
v_pk_add_f32 {P(z0)}, {P(z0)}, {P(t2)}
v_pk_fma_f32 {P(p1)}, s[32:33], {P(t2)}, {P(p1)}
v_pk_fma_f32 {P(p2)}, s[30:31], {P(t2)}, {P(p2)}
v_pk_fma_f32 {P(q1)}, s[36:37], {P(t4)}, {P(q1)}
v_pk_fma_f32 {P(q2)}, s[34:35], {P(t4)}, {P(q2)} neg_lo:[0,1,0] neg_hi:[0,1,0]
v_cvt_pk_bf16_f32 v22, v{z0}, v{z0+1}
ds_write_b32 v14, v22 offset:8192""")
    for k, (p, q) in enumerate(((p1, q1), (p2, q2))):
        c, s = 88+4*k, 90+4*k; r, im = 28+4*k, 30+4*k
        a(f"""v_pk_mul_f32 {P(r)}, {P(p)}, {P(c)}
v_pk_mul_f32 {P(im)}, {P(p)}, {P(s)}
v_pk_fma_f32 {P(r)}, {P(q)}, {P(s)}, {P(r)}
v_pk_fma_f32 {P(im)}, {P(q)}, {P(c)}, {P(im)} neg_lo:[1,0,0] neg_hi:[1,0,0]
v_cvt_pk_bf16_f32 v{23+2*k}, v{r}, v{r+1}
v_cvt_pk_bf16_f32 v{24+2*k}, v{im}, v{im+1}
ds_write_b32 v{14+k}, v{23+2*k}
ds_write_b32 v{14+k}, v{24+2*k} offset:4096""")
    a("s_waitcnt vmcnt(0) lgkmcnt(0)")
    bar(a, 'W', 'k1a')
    for T in range(3):
        for t in range(4): a(f"ds_read_b128 {Q(28+16*T+4*t)}, v{16+t} offset:{4096*T}")
    n = 12
    for T in range(3):
        for t in range(4):
            n -= 1
            a(f"s_waitcnt lgkmcnt({n})")
            a(f"v_mfma_f32_16x16x32_bf16 {Q(76+4*T)}, {Q(28+16*T+4*t)}, {Q(96+4*t)}, {'0' if t == 0 else Q(76+4*T)}")
    a(f"""v_and_b32 v22, 0x80008000, v9
v_and_b32 v23, v9, v12
v_bfi_b32 v24, v9, v22, v12
v_pk_mul_f32 {P(28)}, {P(76)}, {P(10)} op_sel_hi:[1,0]
v_pk_mul_f32 {P(30)}, {P(78)}, {P(10)} op_sel_hi:[1,0]
v_pk_mul_f32 {P(32)}, {P(80)}, {P(10)} op_sel_hi:[1,0]
v_pk_mul_f32 {P(34)}, {P(82)}, {P(10)} op_sel_hi:[1,0]""")
    for i in range(4):
        a(f"v_add_f32_dpp v{76+i}, v{32+i}, v{76+i} row_ror:8 {DPP}")
        a(f"v_subrev_f32_dpp v{80+i}, v{28+i}, v{80+i} row_ror:8 {DPP}")
    a(f"""v_cvt_pk_bf16_f32 v36, v76, v77
v_cvt_pk_bf16_f32 v37, v78, v79
v_cvt_pk_bf16_f32 v38, v80, v81
v_cvt_pk_bf16_f32 v39, v82, v83
v_cvt_pk_bf16_f32 v44, v84, v85
v_cvt_pk_bf16_f32 v45, v86, v87
v_xor_b32 v36, v36, v23
v_xor_b32 v37, v37, v23
v_xor_b32 v38, v38, v24
v_xor_b32 v39, v39, v24
v_xor_b32 v44, v44, v22
v_xor_b32 v45, v45, v22
v_cndmask_b32 v40, v36, v38, s[42:43]
v_cndmask_b32 v41, v37, v39, s[42:43]
v_cndmask_b32 v42, v38, v36, s[42:43]
v_cndmask_b32 v43, v39, v37, s[42:43]
buffer_store_dwordx4 {Q(40)}, v11, s[12:15], s23 offen sc1
v_mov_b32_dpp v46, v44 row_ror:8 {DPP}
v_mov_b32_dpp v47, v45 row_ror:8 {DPP}
s_mov_b32 exec_lo, 0x00ff00ff
s_mov_b32 exec_hi, 0
buffer_store_dwordx4 {Q(44)}, v13, s[12:15], s23 offen sc1
s_mov_b64 exec, -1""")
    ST('a')
    a(f"""s_lshr_b32 s26, s22, 2
s_and_b32 s27, s22, 3
""")
    task_ids(a, 26)
    a(f"""s_cmp_gt_u32 s28, 320
s_cbranch_scc1 KM_k2skip
s_cmp_eq_u32 s28, 320
s_cselect_b32 s41, {32*65536}, s41
s_lshr_b32 s21, s28, 5
s_lshl_b32 s21, s21, 3
s_and_b32 s23, s28, 7
s_add_u32 s21, s21, s23
s_sub_u32 s23, 128, s21
s_cmp_eq_u32 s21, 0
s_cselect_b32 s23, 64, s23
s_bitcmp1_b32 s28, 3
s_cselect_b32 s21, s23, s21
s_mul_i32 s21, s21, 5
s_bfe_u32 s23, s28, 0x10004
s_lshl_b32 s23, s23, 7
s_add_u32 s21, s21, s23
s_add_u32 s21, s21, 128
s_sub_u32 s23, s21, 640
s_min_u32 s21, s21, s23
s_sub_u32 s23, 640, s21
s_min_u32 s21, s21, s23
s_sub_u32 s23, s28, 256
s_mul_i32 s23, s23, 5
s_cmp_ge_u32 s28, 256
s_cselect_b32 s40, s23, s21
v_and_b32 v1, 15, v0
v_bfe_u32 v2, v0, 4, 2
v_bfe_u32 v3, v0, 6, 2
v_and_b32 v9, 63, v0
v_lshl_add_u32 v4, v3, 2, v2
v_xor_b32 v10, v4, v1
v_lshl_add_u32 v4, v4, 4, v10
v_lshlrev_b32 v4, 7, v4
v_lshrrev_b32 v5, 1, v1
v_and_b32 v6, 1, v1
v_lshl_add_u32 v5, v6, 3, v5
v_lshl_add_u32 v5, v2, 4, v5
v_lshlrev_b32 v5, 4, v5
v_lshl_add_u32 v5, v3, 11, v5
s_add_u32 s21, s41, {XF}
s_add_u32 s23, s21, 32768
s_lshl_b32 s29, s28, 13
s_lshl_b32 s48, s26, 14
s_add_u32 s48, s48, {K2B}
v_lshl_add_u32 v6, v3, 4, v1
v_cvt_f32_u32 v6, v6
v_cvt_f32_u32 v7, v2
v_cvt_f32_u32 v8, v1
v_mul_f32 v7, 4.0, v7
""")
    a(f"v_mul_f32 v16, {fh(-1/2048)}, v6\nv_mul_f32 v10, v7, v16\nv_mul_f32 v11, {fh(13.0)}, v16")
    for k in range(8):
        a(f"v_cos_f32 v{56+k}, v10\nv_sin_f32 v{64+k}, v10")
        if k < 7: a(f"v_add_f32 v10, v10, v{11 if k == 3 else 16}")
    if 'gx1' in OPT:
        for l in (f"buffer_load_dwordx4 {Q(24)}, v4, s[12:15], s21 offen sc1", f"buffer_load_dwordx4 {Q(28)}, v4, s[12:15], s23 offen sc1"): a(l)
    a(f"""s_lshl_b32 s24, s27, 4
v_cvt_f32_u32 v12, s24
v_add_f32 v12, v12, v7
s_mov_b32 s38, {fh(2.0/(2048*640))}
s_cmp_eq_u32 s28, 256
s_cselect_b32 s38, {fh(1.0/(2048*640))}, s38
s_cmp_eq_u32 s28, 320
s_cselect_b32 s38, {fh(1.0/(2048*640))}, s38
s_mov_b32 s39, s38""")
    for nt in range(2):
        a(f"v_add_f32 v16, {fh(16.0*nt)}, v8\nv_mul_f32 v16, {fh(1/2048)}, v16\nv_mul_f32 v10, v12, v16")
        for i in range(4):
            k = 4*nt+i
            a(f"v_cos_f32 v{72+k}, v10\nv_sin_f32 v{80+k}, v10")
            if i < 3: a("v_add_f32 v10, v10, v16")
    for k in range(8): a(f"v_pk_mul_f32 {P(72+2*k)}, s[38:39], {P(72+2*k)}")
    a(f"""v_xor_b32 v10, v2, v1
v_lshlrev_b32 v10, 4, v10
v_lshl_add_u32 v10, v1, 8, v10
v_add_u32 v10, s48, v10
v_xor_b32 v11, 64, v10
v_xor_b32 v12, 128, v10
v_xor_b32 v13, 192, v10
v_lshlrev_b32 v7, 4, v9
v_add_u32 v7, s48, v7
s_lshl_b32 s24, s27, 10
v_add_u32 v6, s24, v7
v_lshlrev_b32 v8, 4, v9
v_lshl_add_u32 v8, v3, 11, v8
s_add_u32 s24, s24, s48
s_lshl_b32 s25, s40, 13
s_add_u32 s25, s25, {WP}
s_mov_b32 m0, s24""")
    ST('b')
    gather2(a, 'KM_gx', f"buffer_load_dwordx4 {Q(24)}, v4, s[12:15], s21 offen sc1", f"buffer_load_dwordx4 {Q(28)}, v4, s[12:15], s23 offen sc1", 24, 28, 32, pre=('gx1' in OPT), dly=OPT.get('dx', 0))
    a(f"""ds_write_b128 v6, {Q(24)}
ds_write_b128 v6, {Q(28)} offset:4096
s_add_u32 s21, s29, {YF}
s_add_u32 s23, s21, 1024
s_waitcnt lgkmcnt(0)""")
    bar(a, 'W', 'k2a')
    ST('b')
    a(f"""buffer_load_dwordx4 v[48:51], v5, s[12:15], s25 offen sc1
buffer_load_dwordx4 v[52:55], v5, s[12:15], s25 offen offset:1024 sc1""")
    D = lambda mt, t: 16+16*mt+4*t
    for t in range(4):
        for mt in range(2): a(f"ds_read_b128 {Q(D(mt,t))}, v{10+t} offset:{4096*mt}")
    def mf(d, A, B, first): a(f"v_mfma_f32_16x16x32_bf16 {Q(d)}, {Q(A)}, {Q(B)}, {'0' if first else Q(d)}")
    a("s_and_b32 s24, s28, 0xffffffbf\ns_cmp_lg_u32 s24, 256\ns_cbranch_scc1 KM_k2gen\ns_waitcnt lgkmcnt(0)\ns_cmp_eq_u32 s28, 256\ns_cbranch_scc1 KM_k2z")
    for f in range(8): a(f"v_mov_b32 v{16+4*f}, v{18+4*f}\nv_mov_b32 v{17+4*f}, v{19+4*f}")
    a("KM_k2z:")
    for f in range(8): a(f"v_mov_b32 v{18+4*f}, 0\nv_mov_b32 v{19+4*f}, 0")
    a("s_nop 1\nKM_k2gen:")
    for t in range(4):
        a(f"s_waitcnt lgkmcnt({6-2*t})")
        for mt in range(2):
            mf(88+8*mt, D(mt,t), M(t)+2, t == 0)
            mf(92+8*mt, D(mt,t), M(t), t == 0)
    def tw_pack(tr, ti, B, swap):
        for blk in range(2):
            for hh in range(2):
                r = 88+8*blk+2*hh; i = r+4; c = tr+4*blk+2*hh; s = ti+4*blk+2*hh; t = 104+4*blk+2*hh
                a(f"""v_pk_mul_f32 {P(t)}, {P(i)}, {P(s)}
v_pk_mul_f32 {P(i)}, {P(i)}, {P(c)}
v_pk_fma_f32 {P(i)}, {P(r)}, {P(s)}, {P(i)}
v_pk_fma_f32 {P(r)}, {P(r)}, {P(c)}, {P(t)} neg_lo:[0,0,1] neg_hi:[0,0,1]""")
        for blk in range(2):
            for hh in range(2):
                r = 88+8*blk+2*hh
                a(f"v_cvt_pk_bf16_f32 v{B+4*blk+hh+(2 if swap else 0)}, v{r}, v{r+1}")
                a(f"v_cvt_pk_bf16_f32 v{B+4*blk+hh+(0 if swap else 2)}, v{r+4}, v{r+5}")
    tw_pack(56, 64, 16, False)
    for y in range(2):
        for x in range(2):
            mf(88+8*x, N(x,y)+2, 16+4*y, y == 0)
            mf(92+8*x, N(x,y), 16+4*y, y == 0)
    a("s_waitcnt vmcnt(0)")
    for k in range(8): a(f"v_lshlrev_b32 v{32+k}, 16, v{48+k}\nv_and_b32 v{40+k}, 0xffff0000, v{48+k}")
    tw_pack(32, 40, 24, True)
    for y in range(2):
        for x in range(2):
            mf(88+8*x, 24+4*y, N(x,y), y == 0)
            mf(92+8*x, 24+4*y, N(x,y)+2, y == 0)
    tw_pack(72, 80, 16, True)
    a(f"ds_write_b128 v6, {Q(16)} offset:8192\nds_write_b128 v6, {Q(20)} offset:12288\ns_waitcnt lgkmcnt(0)")
    bar(a, 'W', 'k2b')
    for t in range(4):
        for nt in range(2): a(f"ds_read_b128 {Q(D(nt,t))}, v7 offset:{8192+4096*nt+1024*t}")
    for t in range(4):
        a(f"s_waitcnt lgkmcnt({6-2*t})")
        for nt in range(2):
            mf(88+8*nt, M(t), D(nt,t), t == 0)
            mf(92+8*nt, M(t)+2, D(nt,t), t == 0)
    for nt in range(2):
        o = 48+4*nt; s = 88+8*nt
        for k in range(4): a(f"v_cvt_pk_bf16_f32 v{o+k}, v{s+2*k}, v{s+2*k+1}")
        a(f"buffer_store_dwordx4 {Q(o)}, v8, s[12:15], s{21+2*nt} offen sc1")
    ST('b')
    a("s_branch KM_k2done\nKM_k2skip:\ns_barrier\ns_barrier\nKM_k2done:")
    a(f"""v_and_b32 v1, 63, v0
v_and_b32 v3, 31, v0
v_lshlrev_b32 v2, 3, v3
v_bfe_u32 v4, v0, 5, 1
v_lshl_add_u32 v2, v4, 8, v2
v_lshlrev_b32 v3, 2, v3
v_lshl_add_u32 v3, v4, 1, v3
v_and_b32 v5, 15, v0
v_bfe_u32 v6, v0, 4, 2""")
    col_slots(a, 22, 5, 6, 8, 22)
    addr_yf(a)
    a(f"""
s_and_b32 s23, s3, 15
s_lshl_b32 s23, s23, 4
s_lshr_b32 s21, s3, 4
s_lshl_b32 s21, s21, 10
s_add_u32 s23, s23, s21
s_lshr_b32 s21, s20, 1
s_lshl_b32 s21, s21, 11
s_add_u32 s23, s23, s21
s_and_b32 s21, s20, 1
s_lshl_b32 s21, s21, 9
s_add_u32 s23, s23, s21
s_add_u32 s23, s23, {YF}
s_lshl_b32 s21, s20, 3
s_add_u32 s21, s21, s22
s_lshl_b32 s24, s3, 6
s_add_u32 s24, s24, s21
s_mul_i32 s24, s24, 1280
""")
    w5_consts(a, 88, 22, 1.0)
    a(f"""
s_lshl_b32 s27, s22, 4
v_add_u32 v22, s27, v5
v_cvt_f32_u32 v22, v22
v_mul_f32 v22, {fh(1/128)}, v22
v_and_b32 v23, 1, v6
v_cvt_f32_u32 v23, v23
v_mul_f32 v23, 4.0, v23
v_lshrrev_b32 v24, 1, v6
v_cvt_f32_u32 v24, v24
v_mul_f32 v24, {fh(0.25)}, v24
v_fma_f32 v23, v23, v22, v24
v_mul_f32 v24, {fh(5.0)}, v22
v_mul_f32 v27, {fh(64.0)}, v22
v_cmp_eq_u32 vcc, 2, v6
v_cndmask_b32 v27, v23, v27, vcc
""")
    for t in range(4):
        for jj in range(4):
            a(f"""v_cos_f32 v25, v{27 if (t, jj) == (0, 0) else 23}
v_add_f32 v23, v23, v22
v_cos_f32 v26, v23
v_add_f32 v23, v23, v{24 if jj & 1 else 22}
v_cvt_pk_bf16_f32 v{96+4*t+jj}, v25, v26""")
    a(f"""
v_lshlrev_b32 v14, 5, v5
v_lshl_add_u32 v14, v6, 3, v14
s_lshl_b32 s27, s22, 9
s_add_u32 s27, s27, {TB}
v_add_u32 v14, s27, v14
v_and_b32 v15, 4096, v9
v_add_u32 v15, v15, v14
v_xor_b32 v112, 4096, v15
v_lshlrev_b32 v113, 3, v1
v_add_u32 v113, {TB}, v113
v_and_b32 v22, 7, v5
v_mul_u32_u24 v22, {ZR}, v22
v_lshl_add_u32 v22, v6, 4, v22
s_lshl_b32 s27, s22, 6
s_add_u32 s27, s27, {ZB}
v_add_u32 v17, s27, v22
v_lshrrev_b32 v22, 3, v5
v_mul_u32_u24 v22, {2*ZC}, v22
v_add_u32 v16, v17, v22
v_lshlrev_b32 v4, 2, v3
s_mul_i32 s27, s22, {ZR}
s_add_u32 s27, s27, {ZB}
v_add_u32 v7, s27, v4
v_add_u32 v4, {PB}, v4
v_and_b32 v22, 0x80000000, v9
v_xor_b32 v22, v22, v10
v_and_b32 v23, 0x80008000, v9
v_xor_b32 v24, v23, v12
""")
    for j in range(5):
        a(f"ds_read_b64 {P(120+2*j)}, v4 offset:{512*j}\nds_read_b64 {P(140+2*j)}, v4 offset:{5120+512*j}\nds_read_b64 {P(130+2*j)}, v4 offset:{2560+512*j}")
    a("s_waitcnt lgkmcnt(0)")
    ST('c')
    gather2(a, 'KM_gy', f"buffer_load_dwordx4 {Q(28)}, v11, s[12:15], s23 offen sc1", f"buffer_load_dwordx4 {Q(32)}, v13, s[12:15], s23 offen sc1", 28, 32, 36, dly=OPT.get('dy', 0))
    ST('c')
    a(f"""v_cndmask_b32 v32, v32, v34, s[42:43]
v_cndmask_b32 v33, v33, v35, s[42:43]
v_xor_b32 v26, v30, v24
v_xor_b32 v27, v31, v24
v_xor_b32 v30, v30, v12
v_xor_b32 v31, v31, v12
ds_write_b64 v14, {P(32)} offset:8192""")
    for hh in range(2):
        a(f"""v_lshlrev_b32 v{36+2*hh}, 16, v{28+hh}
v_and_b32 v{37+2*hh}, 0xffff0000, v{28+hh}
v_lshlrev_b32 v{40+2*hh}, 16, v{30+hh}
v_and_b32 v{41+2*hh}, 0xffff0000, v{30+hh}
v_lshlrev_b32 v{44+2*hh}, 16, v{28+hh}
v_and_b32 v{45+2*hh}, 0xffff0000, v{28+hh}
v_lshlrev_b32 v{48+2*hh}, 16, v{26+hh}
v_and_b32 v{49+2*hh}, 0xffff0000, v{26+hh}""")
    for i in range(4):
        a(f"v_fmac_f32_dpp v{44+i}, v{36+i}, v22 row_ror:8 {DPP}")
        a(f"v_fmac_f32_dpp v{48+i}, v{40+i}, v10 row_ror:8 {DPP}")
    a(f"""v_cvt_pk_bf16_f32 v52, v44, v45
v_cvt_pk_bf16_f32 v53, v46, v47
v_cvt_pk_bf16_f32 v54, v48, v49
v_cvt_pk_bf16_f32 v55, v50, v51
ds_write_b64 v15, {P(52)}
ds_write_b64 v112, {P(54)}
s_waitcnt lgkmcnt(0)""")
    bar(a, 'W', 'b1')
    for T in range(3):
        for t in range(4):
            for x in range(2): a(f"ds_read_b64_tr_b16 {P(28+16*T+4*t+2*x)}, v113 offset:{4096*T+1024*t+512*x}")
            if T == 1 and t == 3:
                a("s_waitcnt lgkmcnt(8)")
                for tt in range(4): a(f"v_mfma_f32_16x16x32_bf16 {Q(76)}, {Q(96+4*tt)}, {Q(28+4*tt)}, {'0' if tt == 0 else Q(76)}")
    for T in (1, 2):
        a(f"s_waitcnt lgkmcnt({8 if T == 1 else 0})")
        for t in range(4): a(f"v_mfma_f32_16x16x32_bf16 {Q(76+4*T)}, {Q(96+4*t)}, {Q(28+16*T+4*t)}, {'0' if t == 0 else Q(76+4*T)}")
    a(f"ds_write_b128 v16, {Q(76)} offset:{ZC}")
    for j in range(5): a(f"v_lshlrev_b32 v{28+2*j}, 16, v{XR+j}\nv_and_b32 v{29+2*j}, 0xffff0000, v{XR+j}")
    a(f"""ds_write_b128 v16, {Q(80)} offset:{2*ZC}
ds_write_b128 v17, {Q(84)}
s_waitcnt lgkmcnt(0)""")
    bar(a, 'W', 'b2')
    for c in range(5): a(f"ds_read_b64 {P(40+2*c)}, v7 offset:{ZC*c}")
    a("s_waitcnt lgkmcnt(0)")
    bar(a, 'W', 'b3')
    for k in range(2):
        r, im = 42+4*k, 44+4*k; c, s = 88+4*k, 90+4*k; R, I = 50+4*k, 52+4*k
        a(f"""v_pk_mul_f32 {P(R)}, {P(r)}, {P(c)}
v_pk_mul_f32 {P(I)}, {P(r)}, {P(s)}
v_pk_fma_f32 {P(R)}, {P(im)}, {P(s)}, {P(R)} neg_lo:[1,0,0] neg_hi:[1,0,0]
v_pk_fma_f32 {P(I)}, {P(im)}, {P(c)}, {P(I)}""")
    z0,z1r,z1i,z2r,z2i = 40,50,52,54,56
    A,B,Cc,Dd,E = 58,60,62,64,66
    sl = {(3*j) % 5: j for j in range(5)}
    X = lambda d2: P(28+2*sl[d2]); G = lambda d2: P(120+2*sl[d2])
    a(f"""v_pk_add_f32 {P(E)}, {P(z0)}, {P(z1r)}
v_pk_fma_f32 {P(A)}, s[30:31], {P(z1r)}, {P(z0)}
v_pk_fma_f32 {P(B)}, s[32:33], {P(z1r)}, {P(z0)}
v_pk_mul_f32 {P(Cc)}, s[34:35], {P(z1i)}
v_pk_mul_f32 {P(Dd)}, s[36:37], {P(z1i)}
v_pk_add_f32 {P(E)}, {P(E)}, {P(z2r)}
v_pk_fma_f32 {P(A)}, s[32:33], {P(z2r)}, {P(A)}
v_pk_fma_f32 {P(B)}, s[30:31], {P(z2r)}, {P(B)}
v_pk_fma_f32 {P(Cc)}, s[36:37], {P(z2i)}, {P(Cc)}
v_pk_fma_f32 {P(Dd)}, s[34:35], {P(z2i)}, {P(Dd)} neg_lo:[0,1,0] neg_hi:[0,1,0]
v_pk_fma_f32 {X(0)}, {G(0)}, {P(E)}, {X(0)}
v_pk_add_f32 {P(68)}, {P(A)}, {P(Cc)} neg_lo:[0,1] neg_hi:[0,1]
v_pk_add_f32 {P(70)}, {P(A)}, {P(Cc)}
v_pk_add_f32 {P(72)}, {P(B)}, {P(Dd)} neg_lo:[0,1] neg_hi:[0,1]
v_pk_add_f32 {P(74)}, {P(B)}, {P(Dd)}
v_pk_fma_f32 {X(1)}, {G(1)}, {P(68)}, {X(1)}
v_pk_fma_f32 {X(4)}, {G(4)}, {P(70)}, {X(4)}
v_pk_fma_f32 {X(2)}, {G(2)}, {P(72)}, {X(2)}
v_pk_fma_f32 {X(3)}, {G(3)}, {P(74)}, {X(3)}
s_add_u32 s25, s24, {X1}
s_add_u32 s26, s24, {H2F}""")
    for j in range(5): a(f"v_cvt_pk_bf16_f32 v{16+j}, v{28+2*j}, v{29+2*j}")
    a(f"""v_permlane32_swap_b32 v16, v17
v_permlane32_swap_b32 v18, v19
buffer_store_dwordx2 {P(16)}, v2, s[12:15], s25 offen sc1
buffer_store_dwordx2 {P(18)}, v2, s[12:15], s25 offen offset:512 sc1""")
    ln_rows(a, 28, 22)
    a(f"v_bfe_u32 v24, v0, 5, 1\nv_mul_u32_u24 v24, {H2F - X1 - 256}, v24\nv_add_u32 v24, v24, v2")
    for j in range(5): a(f"v_pk_mul_f32 {P(140+2*j)}, {P(140+2*j)}, {P(22)} op_sel_hi:[1,0]")
    for j in range(5): a(f"v_pk_fma_f32 {P(28+2*j)}, {P(28+2*j)}, {P(140+2*j)}, {P(130+2*j)}")
    for j in range(4): a(f"v_cvt_pk_bf16_f32 v{40+j}, v{28+2*j}, v{29+2*j}")
    a(f"""v_cvt_pk_bf16_f32 v21, v36, v37
v_permlane32_swap_b32 v40, v41
v_permlane32_swap_b32 v42, v43
v_permlane32_swap_b32 v20, v21
buffer_store_dwordx2 {P(40)}, v2, s[12:15], s26 offen sc1
buffer_store_dwordx2 {P(42)}, v2, s[12:15], s26 offen offset:512 sc1
buffer_store_dwordx2 {P(20)}, v24, s[12:15], s25 offen offset:1024 sc1""")
    ST('c')
    a(f"""v_mov_b32 v2, v1
s_lshr_b32 s26, s22, 2
s_and_b32 s27, s22, 3
v_lshrrev_b32 v3, 4, v2
v_bfe_u32 v4, v2, 2, 2
v_lshl_add_u32 v4, v3, 3, v4
v_mul_u32_u24 v4, 192, v4
v_and_b32 v5, 3, v2
v_lshl_add_u32 v4, v5, 3, v4
v_and_b32 v5, 1, v3
v_lshlrev_b32 v5, 5, v5
s_mul_i32 s28, s26, 96
v_add_u32 v4, s28, v4
s_cmp_eq_u32 s26, 0
s_cselect_b32 s29, 1, -1
v_mul_lo_u32 v5, v5, s29
v_add_u32 v6, v4, v5
v_sub_u32 v7, v4, v5
v_add_u32 v8, {4*WS_}, v6
v_add_u32 v9, {4*WS_}, v7
v_and_b32 v10, 15, v2
v_lshrrev_b32 v11, 1, v10
v_xor_b32 v11, v11, v3
v_lshlrev_b32 v11, 4, v11
v_lshl_add_u32 v11, v10, 7, v11
s_lshl_b32 s28, s27, 12
s_add_u32 s28, s28, {HB}
v_add_u32 v11, s28, v11
v_xor_b32 v12, 64, v11
s_load_dwordx2 s[60:61], s[0:1], 72
s_waitcnt vmcnt(0)""")
    ST('c')
    bar(a, 'W', 'd1')
    ACC = lambda mat, i, nt: 16 + 4*(6*nt + 3*mat + i)
    FA = lambda buf, mat, i: 64 + 32*buf + 4*(3*mat+i)
    FB = lambda buf, nt: 88 + 32*buf + 4*nt
    def reads(s):
        L = []; sl = s % 8
        for nt in range(2): L.append(f"ds_read_b128 {Q(FB(s & 1, nt))}, v{11 + (s & 1)} offset:{((s//2) % 4)*HS + 2048*nt}")
        for mat in range(2):
            for i in range(3):
                for x in range(2):
                    L.append(f"ds_read_b64_tr_b16 {P(FA(s & 1, mat, i) + 2*x)}, v{6 + (i & 1) + 2*(sl//4)} offset:{(sl % 4)*WS_ + mat*6144 + 4*x*192 + 32*i}")
        return L
    bar(a, 'W', 'B0')
    ST('d')
    for l in reads(0): a(l)
    for s in range(NST):
        a("s_waitcnt lgkmcnt(0)")
        if s & 1: bar(a, 'W', f'B{(s+1)//2}')
        R = reads(s+1) if s+1 < NST else []
        k = 0
        for mat in range(2):
            for i in range(3):
                for nt in range(2):
                    c = ACC(mat, i, nt)
                    a(f"v_mfma_f32_16x16x32_bf16 {Q(c)}, {Q(FA(s & 1, mat, i))}, {Q(FB(s & 1, nt))}, {'0' if s == 0 else Q(c)}")
                    for l in R[2*k:2*k+2]: a(l)
                    k += 1
    ST('d')
    kk = 2*0.7978845608028654*math.log2(math.e)
    a(f"""s_mov_b32 s30, {fh(-kk*0.044715)}
s_mov_b32 s31, {fh(-kk*0.044715)}
v_mov_b32 v10, {fh(-kk)}
v_mov_b32 v11, {fh(-kk)}
s_lshl_b32 s29, s50, 3
s_lshl_b32 s28, s27, 1
s_add_u32 s29, s29, s28
s_mul_i32 s29, s29, 49152
s_mul_i32 s28, s51, 3072
s_add_u32 s29, s29, s28
s_mul_i32 s28, s26, 1536
s_add_u32 s29, s29, s28
s_add_u32 s29, s29, {HIDF}
v_bfe_u32 v7, v2, 4, 1
v_mul_u32_u24 v7, 49152, v7
v_lshrrev_b32 v8, 5, v2
v_lshl_add_u32 v7, v8, 8, v7
v_and_b32 v8, 15, v2
v_lshl_add_u32 v7, v8, 4, v7""")
    for nt in range(2):
        Gt = ACC(0, 0, nt); U = ACC(1, 0, nt); T = 64 + 16*nt
        for i in range(0, 12, 2): a(f"v_pk_mul_f32 {P(T+i)}, {P(Gt+i)}, {P(Gt+i)}")
        for i in range(0, 12, 2): a(f"v_pk_fma_f32 {P(T+i)}, {P(T+i)}, s[30:31], {P(10)}")
        for i in range(0, 12, 2): a(f"v_pk_mul_f32 {P(T+i)}, {P(T+i)}, {P(Gt+i)}")
        for i in range(0, 12, 2): a(f"v_exp_f32 v{T+i}, v{T+i}\nv_exp_f32 v{T+i+1}, v{T+i+1}\nv_pk_mul_f32 {P(Gt+i)}, {P(Gt+i)}, {P(U+i)}")
        for i in range(0, 12, 2): a(f"v_pk_add_f32 {P(T+i)}, {P(T+i)}, 1.0 op_sel_hi:[1,0]")
        for i in range(12): a(f"v_rcp_f32 v{T+i}, v{T+i}")
        for i in range(0, 12, 2): a(f"v_pk_mul_f32 {P(Gt+i)}, {P(Gt+i)}, {P(T+i)}")
        for i in range(3):
            O = 96 + 4*i + 2*nt
            a(f"v_cvt_pk_bf16_f32 v{O}, v{Gt+4*i}, v{Gt+4*i+1}\nv_cvt_pk_bf16_f32 v{O+1}, v{Gt+4*i+2}, v{Gt+4*i+3}")
    for i in range(3):
        O = 96 + 4*i
        a(f"""v_permlane16_swap_b32 v{O}, v{O+2}
v_permlane16_swap_b32 v{O+1}, v{O+3}
buffer_store_dwordx4 {Q(O)}, v7, s[12:15], s29 offen offset:{512*i} sc1""")
    ST('d')
    a(f"""s_lshl_b32 s30, s50, 3
s_lshr_b32 s28, s51, 3
s_lshl_b32 s28, s28, 2
s_add_u32 s30, s30, s28
s_add_u32 s30, s30, s27
s_mul_i32 s29, s30, 49152
s_lshl_b32 s28, s26, 10
s_add_u32 s29, s29, s28
s_add_u32 s29, s29, {HIDF}
s_lshl_b32 s30, s30, 4
s_and_b32 s24, s51, 7
v_lshrrev_b32 v3, 2, v2
v_mul_u32_u24 v3, 160, v3
v_and_b32 v4, 3, v2
v_lshl_add_u32 v3, v4, 3, v3
s_mul_i32 s28, s26, 5120
v_add_u32 v3, s28, v3
v_add_u32 v4, {6*DW}, v3
v_add_u32 v5, {12*DW}, v3
v_lshlrev_b32 v6, 4, v2
v_and_b32 v12, 15, v2
v_lshrrev_b32 v13, 4, v2
v_mul_u32_u24 v8, 1280, v12
v_lshl_add_u32 v8, v13, 3, v8
s_mul_i32 s23, s30, 1280
s_mul_i32 s25, s24, 160
s_add_u32 s23, s23, s25
s_add_u32 s23, s23, {X1}
v_lshlrev_b32 v15, 4, v13
s_lshl_b32 s28, s25, 1
s_add_u32 s28, s28, 12800
s_lshl_b32 s21, s26, 6
s_add_u32 s23, s23, s21
s_lshl_b32 s21, s26, 7
s_add_u32 s28, s28, s21
s_waitcnt vmcnt(0)""")
    ST('d')
    if 'nohs' in OPT: bar(a, 'W', 'd2')
    a("s_mov_b32 s41, s29")
    srd(a, 16, 60, 2048*1280)
    AC2 = lambda mt: 16 + 4*mt
    FA2 = lambda buf, mt: 36 + 20*buf + 4*mt
    NB = OPT.get('nb', 10)
    FB2 = lambda s: 76 + 4*(s % NB)
    def reads2(s):
        p = WPOS(s)
        return [f"ds_read_b64_tr_b16 {P(FA2(s & 1, mt) + 2*x)}, v{3+p//6} offset:{(p % 6)*DW + x*2560 + 32*mt}" for mt in range(5) for x in range(2)]
    def ldb(s):
        a(f"buffer_load_dwordx4 {Q(FB2(s))}, v6, s[12:15], s29 offen offset:{2048*(s & 1)} sc1")
        if s & 1: a("s_add_u32 s29, s29, 4096")
    bar(a, 'W', 'C0')
    ST('d')
    nb = 0; nx = 0
    for s in range(NB-1): ldb(s); nb += 1
    for l in reads2(0): a(l)
    for s in range(NS2):
        f = FB2(s)
        if 'nohs' in OPT: a(f"s_waitcnt vmcnt({nb-s-1+nx}) lgkmcnt(0)\nKM_hr{s}:")
        else: a(f"""s_waitcnt vmcnt({nb-s-1+nx})
v_max3_u32 v9, v{f}, v{f+1}, v{f+2}
v_max_u32 v9, v9, v{f+3}
v_cmp_eq_u32 vcc, -1, v9
s_waitcnt lgkmcnt(0)
s_cmp_lg_u64 vcc, 0
s_cbranch_scc1 KM_hs{s}
KM_hr{s}:""")
        if s in CB: bar(a, 'W', f'C{s}')
        if nb < NS2: ldb(nb); nb += 1
        elif nx < 6:
            k = nx // 2
            a(f"buffer_load_dwordx2 {P(116+2*k)}, v8, s[12:15], s23 offen offset:{32*k} sc1")
            a(f"buffer_load_dwordx4 {Q(128+4*k)}, v15, s[12:15], s28 offen offset:{64*k} sc1")
            nx += 2
        R = reads2(s+1) if s+1 < NS2 else []
        for mt in range(5):
            c = AC2(mt)
            a(f"v_mfma_f32_16x16x32_bf16 {Q(c)}, {Q(FA2(s & 1, mt))}, {Q(FB2(s))}, {'0' if s == 0 else Q(c)}")
            for l in R[2*mt:2*mt+2]: a(l)
    RB = WPOS(10)*DW
    ST('d')
    a(f"""s_mul_i32 s28, s27, 5120
s_add_u32 s28, s28, {RB}
v_add_u32 v6, s28, v6
s_and_b32 s23, s30, 63
s_lshl_b32 s23, s23, 5
s_lshr_b32 s29, s30, 6
s_add_u32 s23, s23, s29
s_mul_i32 s23, s23, 1280
s_add_u32 s23, s23, s25
v_mul_u32_u24 v8, 40960, v12
v_lshl_add_u32 v8, v13, 3, v8
s_cmp_eq_u32 s26, 0
s_cbranch_scc1 KM_lo""")
    def fin(give, keep, base):
        for mt in give: a(f"ds_write_b128 v6, {Q(AC2(mt))} offset:{1024*mt}")
        a("s_waitcnt vmcnt(0)")
        for mt in keep:
            x = 116+2*(mt-base); r = 76+4*mt
            a(f"v_lshlrev_b32 v{r}, 16, v{x}\nv_and_b32 v{r+1}, 0xffff0000, v{x}\nv_lshlrev_b32 v{r+2}, 16, v{x+1}\nv_and_b32 v{r+3}, 0xffff0000, v{x+1}")
        a("s_waitcnt lgkmcnt(0)\ns_barrier")
        for mt in keep: a(f"ds_read_b128 {Q(36+4*mt)}, v6 offset:{1024*mt}")
        for n, mt in enumerate(keep):
            c = AC2(mt); x = 116+2*(mt-base); g = 128+4*(mt-base); r = 36+4*mt; o = 76+4*mt
            a(f"""s_waitcnt lgkmcnt({len(keep)-1-n})
v_pk_add_f32 {P(c)}, {P(c)}, {P(r)}
v_pk_add_f32 {P(c+2)}, {P(c+2)}, {P(r+2)}
v_pk_fma_f32 {P(o)}, {P(c)}, {P(g)}, {P(o)}
v_pk_fma_f32 {P(o+2)}, {P(c+2)}, {P(g+2)}, {P(o+2)}
v_cvt_pk_bf16_f32 v{x}, v{o}, v{o+1}
v_cvt_pk_bf16_f32 v{x+1}, v{o+2}, v{o+3}
buffer_store_dwordx2 {P(x)}, v8, s[16:19], s23 offen offset:{32*mt}""")
        a("@dump 12\ns_endpgm")
    nst = a.st.n
    fin([0,1,2], [3,4], 2)
    a.st.n = nst
    a("KM_lo:")
    fin([3,4], [0,1,2], 0)
    a.st.n = 1
    for s in range(NS2):
        f = FB2(s)
        a(f"""KM_hs{s}:
s_add_u32 s40, s41, {2048*s}
s_mov_b32 s46, 0x8000
KM_hl{s}:
s_mov_b64 exec, vcc
s_sleep 2
buffer_load_dwordx4 {Q(f)}, v6, s[12:15], s40 offen sc1
s_waitcnt vmcnt(0)
v_max3_u32 v9, v{f}, v{f+1}, v{f+2}
v_max_u32 v9, v9, v{f+3}
v_cmp_eq_u32 vcc, -1, v9
s_mov_b64 exec, -1
s_sub_u32 s46, s46, 1
s_cmp_eq_u32 s46, 0
s_cbranch_scc1 KM_hr{s}
s_cmp_lg_u64 vcc, 0
s_cbranch_scc1 KM_hl{s}
s_branch KM_hr{s}""")
    a(f"""KM_prod:
s_sub_u32 s47, s22, 8
s_waitcnt lgkmcnt(0)""")
    if OPT.get('wb'): a(f"s_add_u32 s6, s6, {OPT['wb']}\ns_addc_u32 s7, s7, 0")
    srd(a, 12, 6, WS_SIZE)
    srd(a, 16, 60, 256)
    a(f"""v_mov_b32 v60, 0
s_load_dwordx4 s[56:59], s[0:1], 32
s_load_dwordx2 s[4:5], s[0:1], 48
v_lshlrev_b32 v59, 4, v1
s_sub_u32 s53, s2, 80
s_xor_b32 s54, s47, 2
s_mul_i32 s54, s54, 192
s_sub_u32 s21, s2, 64
s_add_u32 s54, s54, s21
s_cmp_lt_u32 s2, 64
s_cselect_b32 s54, 999, s54
s_cmp_ge_u32 s47, 2
s_cbranch_scc1 KM_p_wp
s_cmp_lg_u32 s47, 0
s_cbranch_scc1 KM_p_pf
s_branch KM_p_no0
KM_p_pf:""")
    if 'nocpf' not in OPT:
        a(f"""s_cmp_lt_u32 s2, {256 - OPT.get('ncp', 16)}
s_cbranch_scc1 KM_p_no0
s_getpc_b64 s[38:39]
KM_pc:
s_sub_u32 s38, s38, KM_pc-{NAME}
s_subb_u32 s39, s39, 0
v_lshlrev_b32 v86, 7, v1""")
        for k in range(4):
            a(f"""v_add_u32 v87, {8192*k}, v86
v_min_u32 v87, KM_end-{NAME}, v87
global_load_dword v{88+k}, v87, s[38:39]""")
    a(f"""KM_p_no0:
s_waitcnt lgkmcnt(0)""")
    ST('n')
    bar(a, 'P', 'g1')
    ST('n')
    a(f"""v_mov_b32 v62, {NON}
ds_read_b32 v61, v62
s_mul_i32 s23, s47, 5120
s_add_u32 s23, s23, {MODG}
s_add_u32 s21, s23, 4096
v_lshlrev_b32 v62, 4, v1
s_mul_i32 s24, s47, 2560
s_add_u32 s24, s24, {PB1}
v_lshlrev_b32 v63, 3, v1
v_add_u32 v63, s24, v63
s_lshl_b32 s25, s2, 7
s_add_u32 s25, s25, {GFL}
s_lshl_b32 s26, s47, 14
s_add_u32 s26, s26, {GFL}
s_add_u32 s27, s26, 8192
v_lshlrev_b32 v58, 7, v1
s_waitcnt lgkmcnt(0)
s_cmp_lg_u32 s47, 0
s_cbranch_scc1 KM_p_nf
s_mov_b64 exec, 1
buffer_store_dword v61, v60, s[12:15], s25 offen sc1
s_mov_b64 exec, -1
KM_p_nf:""")
    ld = "\n".join([f"buffer_load_dwordx4 {Q(8+4*q)}, v62, s[12:15], {'s23' if q < 4 else 's21'} offen offset:{1024*(q % 4)} sc1" for q in range(5)])
    cm = "v_cmp_ne_u32 vcc, v9, v61\n" + "\n".join([f"v_cmp_ne_u32 s[38:39], v{r}, v61\ns_or_b64 vcc, vcc, s[38:39]" for r in range(11, 28, 2)])
    spin(a, 'KM_pg', ld, cm, slp=OPT.get('gs', 4))
    for q in range(5): a(f"v_mov_b32 v{9+4*q}, v{10+4*q}\nds_write_b64 v63, {P(8+4*q)} offset:{512*q}")
    a("s_waitcnt lgkmcnt(0)")
    ST('p')
    a("s_barrier")
    spin(a, 'KM_A_p', "buffer_load_dword v11, v58, s[12:15], s26 offen sc1\nbuffer_load_dword v12, v58, s[12:15], s27 offen sc1", "v_cmp_ne_u32 vcc, v11, v61\nv_cmp_ne_u32 s[38:39], v12, v61\ns_or_b64 vcc, vcc, s[38:39]")
    ST('p')
    a("s_branch KM_p_ag2")
    a(f"""KM_p_wp:
s_sub_u32 s21, s47, 2""")
    def yfpre():
        a('s_sub_u32 s40, s47, 2')
        task_ids(a, 40)
        a(f"""s_cmp_gt_u32 s28, 320
s_cbranch_scc1 KM_p_nyf
s_lshl_b32 s28, s28, 13
s_add_u32 s28, s28, {YF}
s_add_u32 s29, s28, 4096
v_mov_b32 v64, -1
v_mov_b32 v65, -1
v_mov_b32 v66, -1
v_mov_b32 v67, -1""")
        for q in range(8): a(f"buffer_store_dwordx4 {Q(64)}, v59, s[12:15], {'s28' if q < 4 else 's29'} offen offset:{1024*(q % 4)} sc1")
        a("KM_p_nyf:")
    if OPT.get('yp', '0') == '0': yfpre()
    a(f"""s_mul_i32 s21, s21, 176
s_add_u32 s21, s21, s53
s_cmp_lt_u32 s2, 80
s_cbranch_scc1 KM_p_nowp""")
    TOUCH = f"""s_mov_b64 s[44:45], exec
s_mov_b64 exec, -1
s_waitcnt lgkmcnt(0)
s_cmp_eq_u32 s47, 2
s_cselect_b32 s16, s56, s58
s_cselect_b32 s17, s57, s59
s_mov_b32 s18, {640*3072}
s_mov_b32 s19, 0x00020000
s_mul_i32 s40, s2, 7680
v_and_b32 v84, 63, v0
v_min_u32 v84, 59, v84
v_lshlrev_b32 v84, 7, v84
buffer_load_dword v85, v84, s[16:19], s40 offen
s_mov_b64 exec, s[44:45]"""
    st_save = gen.STAMPS; gen.STAMPS = False
    tmp = Asm2(); tmp.st = a.st
    if 'wp1' in OPT: wprep(tmp, 21, 24, 26, 12, 'sc1')
    else:
        tmp('s_lshl_b32 s45, s47, 13')
        wprep2(tmp, 21, 24, 26, 12, 'sc1', 's45')
    gen.STAMPS = st_save
    for ins in tmp.ins:
        if ins.kind == 'nop': continue
        if ins.text.strip() == 's_waitcnt vmcnt(0)':
            nsv = a.st.n; a.st.n = 1; ST('n'); a("s_barrier"); ST('n'); a.st.n = nsv; a("s_waitcnt vmcnt(0)"); continue
        a(ins.text)
    a("s_branch KM_p_wd\nKM_p_nowp:\ns_barrier\nKM_p_wd:\nv_and_b32 v2, 63, v0\ns_waitcnt lgkmcnt(0)")
    if OPT.get('yp', '0') == 'g1': yfpre()
    bar(a, 'P', 'g2')
    a("KM_p_ag2:")
    a(f"""v_mov_b32 v62, {NON}
ds_read_b32 v61, v62
v_and_b32 v2, 63, v0
s_waitcnt vmcnt(0) lgkmcnt(0)
s_cmp_lt_u32 s47, 2
s_cselect_b32 s8, s56, s58
s_cselect_b32 s9, s57, s59
s_mov_b32 s10, {640*3072}
s_mov_b32 s11, 0x00020000""")
    bar(a, 'P', 'k1a')
    a("""s_or_b32 s23, s2, s47
s_cmp_lg_u32 s23, 0
s_cbranch_scc1 KM_p_nr
s_mov_b64 exec, 1
buffer_store_dword v60, v60, s[16:19], 0 offen sc1
s_mov_b64 exec, -1
KM_p_nr:""")
    srd(a, 16, 4, 1536*1280)
    a(f"""s_cmp_ge_u32 s54, 384
s_cbranch_scc1 KM_p_nwd
s_lshr_b32 s24, s54, 3
s_and_b32 s25, s54, 7
s_mul_i32 s55, s25, {1536*160}
s_mul_i32 s21, s24, 5120
s_add_u32 s55, s55, s21
s_add_u32 s55, s55, {WDT}
s_mul_i32 s24, s24, {32*1280}
s_mul_i32 s25, s25, 160
s_add_u32 s24, s24, s25""")
    for q in range(5):
        a(f"""v_add_u32 v12, {64*q}, v2
v_mul_u32_u24 v14, 52429, v12
v_lshrrev_b32 v14, 19, v14
v_mul_u32_u24 v15, 10, v14
v_sub_u32 v15, v12, v15
v_and_b32 v36, 3, v14
v_bfe_u32 v37, v14, 2, 2
v_lshl_add_u32 v36, v37, 3, v36
v_lshrrev_b32 v37, 4, v14
v_lshl_add_u32 v36, v37, 2, v36
v_mul_u32_u24 v36, 1280, v36
v_lshl_add_u32 v36, v15, 4, v36
buffer_load_dwordx4 {Q(64+4*q)}, v36, s[16:19], s24 offen""")
    a("KM_p_nwd:")
    def touch():
        a("s_cmp_lt_u32 s47, 2\ns_cbranch_scc1 KM_p_nt")
        a(TOUCH)
        a("KM_p_nt:")
    if OPT.get('tp', 'k1a') == 'k1a': touch()
    for q in range(3):
        a(f"""v_add_u32 v10, {64*q}, v2
v_mul_u32_u24 v11, 43691, v10
v_lshrrev_b32 v11, 19, v11
v_mul_u32_u24 v12, 12, v11
v_sub_u32 v12, v10, v12
v_lshrrev_b32 v13, 2, v11
v_and_b32 v13, 2, v13
v_xor_b32 v12, v12, v13
v_mul_u32_u24 v11, 3072, v11
v_lshl_add_u32 v11, v12, 4, v11
v_subrev_u32 v{50+q}, {1024*q}, v11""")
    for q in range(4):
        a(f"""v_lshrrev_b32 v10, 4, v2
v_add_u32 v10, {4*q}, v10
v_xor_b32 v10, v10, v2
v_and_b32 v10, 7, v10
v_lshrrev_b32 v11, 3, v2
v_mul_u32_u24 v11, 1280, v11
v_lshl_add_u32 v11, v10, 4, v11
v_add_u32 v{53+q}, {q*(10240-1024)}, v11""")
    a(f"""
s_and_b32 s26, s47, 1
s_mul_i32 s27, s26, {16*3072}
s_mul_i32 s28, s51, 192
s_add_u32 s27, s27, s28
s_mul_i32 s28, s47, 3072
s_lshl_b32 s29, s50, 2
s_add_u32 s29, s29, s47
s_mul_i32 s29, s29, 40960
s_add_u32 s29, s29, {H2F}
s_lshl_b32 s30, s47, 12
v_and_b32 v58, 15, v2
v_lshlrev_b32 v58, 7, v58
v_and_b32 v57, 3, v2
v_lshlrev_b32 v57, 7, v57
v_lshlrev_b32 v59, 4, v2
v_lshlrev_b32 v63, 7, v2""")
    def iw(s):
        a(f"s_add_u32 m0, s28, {(s % 8)*WS_}")
        for q in range(3): a(f"buffer_load_dwordx4 v{50+q}, s[8:11], s27 offen offset:{1024*q} sc1 lds")
        a(f"s_add_u32 s27, s27, {32*3072}")
    def ih(d):
        a(f"s_add_u32 m0, s30, {HB + (d % 4)*HS}")
        for q in range(4): a(f"buffer_load_dwordx4 v{53+q}, s[12:15], s33 offen offset:{1024*q} sc1 lds")
        a("s_add_u32 s33, s33, 128")
    bar(a, 'P', 'k2a')
    a("s_cmp_ge_u32 s54, 384\ns_cbranch_scc1 KM_p_nwd2\ns_add_u32 s54, s55, 4096\ns_waitcnt vmcnt(0)")
    for q in range(5): a(f"buffer_store_dwordx4 {Q(64+4*q)}, v59, s[12:15], {'s55' if q < 4 else 's54'} offen offset:{1024*(q % 4)} sc1")
    a("KM_p_nwd2:")
    a(f"""s_lshl_b32 s23, s47, 11
s_add_u32 m0, s23, {PB}
s_add_u32 s23, s23, 5120
buffer_load_dwordx4 v59, s[12:15], s23 offen sc1 lds
buffer_load_dwordx4 v59, s[12:15], s23 offen offset:1024 sc1 lds""")
    W0 = OPT.get('w0', 'k2a')
    if W0 == 'k2a':
        for s in range(0, 4): iw(s)
        a("s_waitcnt vmcnt(12)")
    elif W0 == 'split':
        for s in range(0, 2): iw(s)
        a("s_waitcnt vmcnt(6)")
    else: a("s_waitcnt vmcnt(0)")
    bar(a, 'P', 'k2b')
    if W0 == 'k2b':
        for s in range(0, 4): iw(s)
    if OPT.get('tp', 'k1a') == 'k2b': touch()
    a(f"""s_lshl_b32 s23, s50, 3
s_lshl_b32 s24, s47, 1
s_add_u32 s23, s23, s24
s_mul_i32 s23, s23, 49152
s_mul_i32 s24, s51, 3072
s_add_u32 s23, s23, s24
s_add_u32 s23, s23, {HIDF}
s_add_u32 s24, s23, 49152
v_mov_b32 v88, -1
v_mov_b32 v89, -1
v_mov_b32 v90, -1
v_mov_b32 v91, -1""")
    def hpre():
        if 'nohs' in OPT: return
        for q in range(6): a(f"buffer_store_dwordx4 {Q(88)}, v59, s[12:15], {'s23' if q < 3 else 's24'} offen offset:{1024*(q % 3)} sc1")
    if OPT.get('hp', 'b1') == 'k2b': hpre()
    if OPT.get('wp', 'd1') == 'k2b':
        for s in range(4, 8): iw(s)
    bar(a, 'P', 'b1')
    if OPT.get('tp', 'k1a') == 'b1': touch()
    if OPT.get('hp', 'b1') == 'b1': hpre()
    if W0 == 'b1':
        for s in range(0, 4): iw(s)
    if W0 == 'split':
        for s in range(2, 4): iw(s)
    if OPT.get('wp', 'd1') == 'b1':
        for s in range(4, 8): iw(s)
    bar(a, 'P', 'b2')
    bar(a, 'P', 'b3')
    if OPT.get('hp', 'b1') == 'b3': hpre()
    if W0 == 'b3':
        for s in range(0, 4): iw(s)
    if OPT.get('wp', 'd1') == 'b3':
        for s in range(4, 8): iw(s)
    a(f"""s_lshl_b32 s48, s50, 4
s_add_u32 s48, s48, s51
s_lshl_b32 s48, s48, 7
s_add_u32 s48, s48, {FLG}
s_lshl_b32 s23, s50, 2
s_add_u32 s23, s23, s47
s_lshl_b32 s23, s23, 9
s_add_u32 s23, s23, {FLG}
s_and_b32 s24, s51, 7
s_mul_i32 s31, s47, 2560
s_mul_i32 s32, s24, {1536*160}
s_add_u32 s32, s32, s31
s_add_u32 s32, s32, {WDT}
s_waitcnt vmcnt(0)""")
    bar(a, 'P', 'd1')
    a(f"""s_cmp_lg_u32 s47, 0
s_cbranch_scc1 KM_na1
s_mov_b64 exec, 1
buffer_store_dword v61, v60, s[12:15], s48 offen sc1
s_mov_b64 exec, -1
KM_na1:""")
    cnt = []
    def iw2(s):
        a(f"""s_add_u32 m0, s31, {WPOS(s)*DW}
buffer_load_dwordx4 v59, s[12:15], s32 offen sc1 lds
buffer_load_dwordx4 v59, s[12:15], s32 offen offset:1024 sc1 lds
s_mov_b32 exec_hi, 0
buffer_load_dwordx4 v59, s[12:15], s32 offen offset:2048 sc1 lds
s_mov_b32 exec_hi, -1
s_add_u32 s32, s32, 10240""")
    def grp(d):
        ih(d); n = 4
        if d >= 4:
            iw(2*d); iw(2*d+1); n += 6
        cnt.append(n)
    a(f"v_add_u32 v62, s30, v59\nv_add_u32 v62, {HB}, v62")
    def hl(d, q): return f"buffer_load_dwordx4 {Q(96+16*d+4*q)}, v{53+q}, s[12:15], s29 offen offset:{1024*q+128*d} sc1"
    for d in range(4):
        for q in range(4): a(hl(d, q))
    XW = 0
    if OPT.get('wp', 'd1') == 'd1':
        for s in range(4, 8): iw(s)
        XW = 12
    nw2 = 0
    def hchk(d):
        R = 96+16*d
        a(f"s_mov_b32 s46, 0x8000\ns_waitcnt vmcnt({4*(3-d)+XW})\ns_branch KM_hc{d}\nKM_hq{d}:\ns_sleep 2")
        for q in range(4): a(hl(d, q))
        a(f"s_waitcnt vmcnt(0)\nKM_hc{d}:")
        a(f"v_max3_u32 v12, v{R}, v{R+1}, v{R+2}")
        for k in range(3, 15, 2): a(f"v_max3_u32 v12, v12, v{R+k}, v{R+k+1}")
        a(f"""v_max_u32 v12, v12, v{R+15}
v_cmp_eq_u32 vcc, -1, v12
s_nop 1
s_and_b64 exec, exec, vcc
s_cbranch_scc0 KM_ho{d}
s_sub_u32 s46, s46, 1
s_cmp_lg_u32 s46, 0
s_cbranch_scc1 KM_hq{d}
KM_ho{d}:
s_mov_b64 exec, -1""")
        for q in range(4): a(f"ds_write_b128 v62, {Q(R+4*q)} offset:{d*HS+1024*q}")
    for d in range(10):
        if d == 0:
            hchk(0); a("s_waitcnt lgkmcnt(0)"); ST('p')
        elif d == 1:
            hchk(1); a("s_waitcnt lgkmcnt(0)")
        elif d >= 4:
            a(f"s_waitcnt vmcnt({sum(cnt[d-3:])})")
        bar(a, 'P', f'B{d}')
        if d == 1:
            iw(8); iw(9)
            a("s_waitcnt vmcnt(6)")
            hchk2 = True
            for dd in (2, 3):
                R = 96+16*dd
                a(f"s_mov_b32 s46, 0x8000\ns_branch KM_hc{dd}\nKM_hq{dd}:\ns_sleep 2")
                for q in range(4): a(hl(dd, q))
                a(f"s_waitcnt vmcnt(0)\nKM_hc{dd}:")
                a(f"v_max3_u32 v12, v{R}, v{R+1}, v{R+2}")
                for k in range(3, 15, 2): a(f"v_max3_u32 v12, v12, v{R+k}, v{R+k+1}")
                a(f"""v_max_u32 v12, v12, v{R+15}
v_cmp_eq_u32 vcc, -1, v12
s_nop 1
s_and_b64 exec, exec, vcc
s_cbranch_scc0 KM_ho{dd}
s_sub_u32 s46, s46, 1
s_cmp_lg_u32 s46, 0
s_cbranch_scc1 KM_hq{dd}
KM_ho{dd}:
s_mov_b64 exec, -1""")
                for q in range(4): a(f"ds_write_b128 v62, {Q(R+4*q)} offset:{dd*HS+1024*q}")
            a("s_waitcnt lgkmcnt(0)\ns_add_u32 s33, s29, 512")
        elif d == 2:
            spin(a, 'KM_p1', "buffer_load_dword v11, v57, s[12:15], s23 offen sc1", "v_cmp_ne_u32 vcc, v11, v61")
            ih(4); cnt.append(4)
            grp(5)
        elif d >= 3 and d+3 < 10: grp(d+3)
        if d >= 7:
            for _ in range(EARLY[d]): iw2(nw2); nw2 += 1
            cnt.append(3*EARLY[d])
    bar(a, 'P', 'B10')
    while nw2 < NWD: iw2(nw2); nw2 += 1
    if 'nohs' in OPT:
        a(f"""s_lshl_b32 s23, s50, 11
s_add_u32 s23, s23, {FLG + 32768}
s_add_u32 s48, s48, 32768""")
        bar(a, 'P', 'd2')
        a(f"""s_cmp_eq_u32 s47, 1
s_cbranch_scc0 KM_nb2
s_mov_b64 exec, 1
buffer_store_dword v61, v60, s[12:15], s48 offen sc1
s_mov_b64 exec, -1
KM_nb2:
s_cmp_lg_u32 s47, 0
s_cbranch_scc1 KM_na2""")
        spin(a, 'KM_p2', "buffer_load_dword v11, v58, s[12:15], s23 offen sc1", "v_cmp_ne_u32 vcc, v11, v61")
        a("KM_na2:")
    a("s_waitcnt vmcnt(0)")
    ST('p')
    bar(a, 'P', 'C0')
    pend = []
    for s in CB:
        need = [t for t in pend if t <= NEXTCB[s]]
        a(f"s_waitcnt vmcnt({3*(len(pend)-len(need))})")
        bar(a, 'P', f'C{s}')
        pend = [t for t in pend if t not in need]
        while nw2 < NS2 and nw2 - NWD <= s:
            iw2(nw2); pend.append(nw2); nw2 += 1
    a("@dump 12\nKM_end:\ns_endpgm")
    assert bar.seq['W'] == bar.seq['P'], (bar.seq['W'], bar.seq['P'])
    return kd_block(NAME, 168, 100)
if __name__ == '__main__':
    OPT = {}; out = 'mega.s'
    for x in sys.argv[1:]:
        if x.endswith('.s'): out = x
        elif x.startswith('st='): gen.STAMPS = True; OPT['st'] = x[3:]
        elif x.startswith('slp'): gen.SLP = int(x[3:])
        elif x.startswith('bk'): OPT['bk'] = int(x[2:])
        elif x.startswith('tp='): OPT['tp'] = x[3:]
        elif x.startswith('hp='): OPT['hp'] = x[3:]
        elif x.startswith('yp='): OPT['yp'] = x[3:]
        elif x.startswith('w0='): OPT['w0'] = x[3:]
        elif x.startswith('gd='): OPT['gd'] = int(x[3:])
        elif x.startswith('gs='): OPT['gs'] = int(x[3:])
        elif x.startswith('e0='): OPT['e0'] = int(x[3:])
        elif x.startswith('nb='): OPT['nb'] = int(x[3:])
        elif x.startswith('dx='): OPT['dx'] = int(x[3:])
        elif x.startswith('dy='): OPT['dy'] = int(x[3:])
        elif x.startswith('ncp='): OPT['ncp'] = int(x[4:])
        elif x.startswith('wb='): OPT['wb'] = int(x[3:]) << 20
        elif x.startswith('wp='): OPT['wp'] = x[3:]
        else: OPT[x] = 1
    a = Asm2()
    kd = km(a, OPT)
    hdr = open('adaLN_cond__spectral_gfnet__glu_gated_geglu__prompt.s.ref').read().split('\n')[:13]
    s = '\n'.join(hdr) + '\n; @launch grid=(256,1,1) block=(768,1,1) lds=163840\n'
    s += '.amdgcn_target "amdgcn-amd-amdhsa--gfx950"\n.text\n' + a.text() + '.section .rodata,"a"\n' + kd
    open(out, 'w').write(s)
```

```python
import sys, math
sys.path.insert(0,'work')
import gen
from gen import *
NAME = 'adaLN_cond__spectral_gfnet__glu_gated_geglu__prompt_kernel'
MODG = 0x4000
GFL = 0x20000
CNT = 0x8000
class Bar:
    def __init__(self): self.seq = {}
    def __call__(self, a, role, name):
        self.seq.setdefault(role, []).append(name); a("s_barrier")
def spin(a, name, load, cmp, mask=True, slp=None):
    a(f"s_mov_b32 s46, 0x8000\n{name}:")
    a(load); a("s_waitcnt vmcnt(0)"); a(cmp)
    a(f"""s_nop 1
s_and_b64 exec, exec, vcc
s_cbranch_scc0 {name}_ok
s_sleep {gen.SLP if slp is None else slp}
s_sub_u32 s46, s46, 1
s_cmp_lg_u32 s46, 0
s_cbranch_scc1 {name}
{name}_ok:
s_mov_b64 exec, -1""")

def addr_xf(a):
    a(f"""s_lshl_b32 s40, s22, 5
v_lshrrev_b32 v22, 1, v6
v_lshl_add_u32 v22, v22, 4, v5
v_add_u32 v22, s40, v22
v_add_u32 v23, 256, v8
v_and_b32 v24, 1, v6
v_lshlrev_b32 v24, 7, v24""")
    for src_, dst in ((22, 11), (23, 13)):
        a(f"""v_lshrrev_b32 v25, 3, v{src_}
v_lshl_add_u32 v25, v25, 16, v24
v_and_b32 v26, 7, v{src_}
v_lshl_add_u32 v{dst}, v26, 4, v25""")
def addr_yf(a):
    a(f"""s_lshl_b32 s40, s22, 5
v_lshrrev_b32 v22, 1, v6
v_lshl_add_u32 v22, v22, 4, v5
v_add_u32 v22, s40, v22
v_add_u32 v23, 256, v8
v_and_b32 v24, 1, v6
v_lshlrev_b32 v24, 8, v24
v_lshl_add_u32 v11, v22, 13, v24
v_lshl_add_u32 v13, v23, 13, v24""")
def gather2(a, name, ld0, ld1, r0, r1, t, pre=False, dly=0):
    a(f"""s_mov_b32 s46, 0x8000
s_waitcnt vmcnt(0)
{f's_branch {name}_chk' if pre else ''}
{name}:
{ld0}
{ld1}
{name}_chk:
s_waitcnt vmcnt(0)
v_max3_u32 v{t}, v{r0}, v{r0+1}, v{r0+2}
v_max3_u32 v{t+1}, v{r1}, v{r1+1}, v{r1+2}
v_max3_u32 v{t}, v{t}, v{r0+3}, v{r1+3}
v_max_u32 v{t}, v{t}, v{t+1}
v_cmp_eq_u32 vcc, -1, v{t}
s_nop 1
s_and_b64 exec, exec, vcc
s_cbranch_scc0 {name}_ok
s_sleep 2
s_sub_u32 s46, s46, 1
s_cmp_lg_u32 s46, 0
s_cbranch_scc1 {name}
{name}_ok:
s_mov_b64 exec, -1""")
def task_ids(a, slot):
    a(f"""s_lshl_b32 s28, s{slot}, 2
s_lshr_b32 s29, s2, 6
s_add_u32 s28, s28, s29
s_lshl_b32 s28, s28, 3
s_and_b32 s29, s2, 7
s_add_u32 s28, s28, s29
s_lshl_b32 s41, s28, 16
s_lshl_b32 s28, s28, 3
s_bfe_u32 s29, s2, 0x30003
s_add_u32 s28, s28, s29
s_lshl_b32 s29, s29, 4
s_add_u32 s41, s41, s29""")
def km(a, OPT):
    bar = Bar()
    a(f".globl {NAME}\n.p2align 8\n.type {NAME},@function\n{NAME}:")
    a.st = Stamper(a, 3)
    ST = lambda tag: a("@stamp") if tag in OPT.get('st', '') else None
    R2 = 98304
    GP = R2; NON = R2 + 1536; PB1 = R2 + 2048; Z1 = R2 + 8192; K2B = R2 + 24576
    TB = R2; ZB = R2 + 12288; ZR = 528; ZC = 8*ZR; PB = R2 + 57344
    NST = 20; WS_ = 12288; HB = R2; HS = 16384
    NS2 = 24; DW = 10240; NWD = 16
    ORDER = [5, 6, 13,  7, 8, 14, 15,  0, 1, 9, 10,  2, 3, 4, 11, 12]
    EARLY = {7: 3, 8: 4, 9: 4} if 'e0' not in OPT else ({7: 0, 8: 0, 9: 0} if OPT['e0'] == 0 else {7: 0, 8: 4, 9: 6})
    WPOS = lambda s: ORDER[s % NWD]
    CB = [3, 7, 15, 19]; NEXTCB = {3: 7, 7: 15, 15: 19, 19: 23}
    XR = 114
    a(f"""
s_cmp_ge_u32 s2, 256
s_cbranch_scc1 KM_end
@stamp
s_load_dwordx2 s[4:5], s[0:1], 0
s_load_dwordx2 s[6:7], s[0:1], 88
s_load_dwordx4 s[56:59], s[0:1], 56
s_load_dwordx4 s[24:27], s[0:1], 8
s_load_dwordx2 s[60:61], s[0:1], 80
s_and_b32 s50, s2, 7
s_lshr_b32 s51, s2, 3
s_mul_i32 s52, s50, 10
s_add_u32 s52, s52, s51
s_mul_i32 s21, s50, 20
s_add_u32 s21, s21, s51
s_add_u32 s21, s21, 70
s_cmp_lt_u32 s2, 80
s_cselect_b32 s52, s52, s21
s_lshl_b32 s50, s50, 1
s_lshr_b32 s21, s51, 4
s_add_u32 s50, s50, s21
s_and_b32 s51, s51, 15
v_lshrrev_b32 v4, 6, v0
v_and_b32 v1, 63, v0
v_readfirstlane_b32 s22, v4
s_lshl_b32 s3, s50, 1
s_lshr_b32 s21, s51, 3
s_add_u32 s3, s3, s21
s_and_b32 s20, s51, 7
s_cmp_ge_u32 s22, 8
s_cbranch_scc1 KM_prod
v_and_b32 v3, 31, v0
v_lshlrev_b32 v2, 3, v3
v_bfe_u32 v4, v0, 5, 1
v_lshl_add_u32 v2, v4, 8, v2
v_lshlrev_b32 v3, 2, v3
v_lshl_add_u32 v3, v4, 1, v3
s_lshl_b32 s21, s20, 3
s_add_u32 s21, s21, s22
s_lshl_b32 s21, s21, 5
s_add_u32 s21, s21, s3
s_mul_i32 s21, s21, 1280
s_lshl_b32 s23, s52, 5
v_lshrrev_b32 v144, 1, v0
v_and_b32 v145, 1, v0
v_mul_u32_u24 v146, 7680, v144
v_lshl_add_u32 v146, v145, 4, v146
v_add_u32 v146, s23, v146
v_lshlrev_b32 v147, 1, v144
s_cmp_lt_u32 s2, 240
s_cselect_b32 s49, 5, 0
s_waitcnt lgkmcnt(0)
""")
    if OPT.get('wb'): a(f"s_add_u32 s6, s6, {OPT['wb']}\ns_addc_u32 s7, s7, 0")
    srd(a, 12, 6, WS_SIZE)
    srd(a, 8, 56, 1280)
    srd(a, 16, 58, 640*3840*2)
    NR = 4
    def gloads(tag, cond):
        a(f"s_cmp_ge_u32 s22, s49\ns_cbranch_scc1 KM_nog1{tag}")
        for i in range(NR): a(f"buffer_load_short_d16_hi v{136+i}, v147, s[8:11], 0 offen offset:{320*i}")
        a("s_mov_b32 s23, 0")
        for i in range(NR):
            a(f"buffer_load_dwordx4 {Q(120+4*i)}, v146, s[16:19], s23 offen")
            if i < NR-1: a(f"s_add_u32 s23, s23, {160*7680}")
        a(f"KM_nog1{tag}:")
    srd(a, 24, 60, 256)
    a("""v_mov_b32 v20, 0
s_or_b32 s23, s2, s22
s_cmp_lg_u32 s23, 0
s_cbranch_scc1 KM_w_nn
s_memrealtime s[38:39]
s_waitcnt lgkmcnt(0)
s_or_b32 s38, s38, 1
v_mov_b32 v21, s38
s_mov_b64 exec, 1
buffer_store_dword v21, v20, s[24:27], 0 offen sc1
s_mov_b64 exec, -1
KM_w_nn:""")
    srd(a, 24, 4, 2048*1280)
    for k in range(3): a(f"buffer_load_dwordx2 {P(XR+2*k)}, v2, s[24:27], s21 offen offset:{512*k}")
    gloads('a', 0)
    a("v_and_b32 v5, 15, v0\nv_bfe_u32 v6, v0, 4, 2")
    col_slots(a, 22, 5, 6, 8, 22)
    addr_xf(a)
    a(f"""s_lshl_b32 s38, s3, 11
s_lshl_b32 s21, s20, 8
s_add_u32 s38, s38, s21
s_add_u32 s38, s38, {XF}
v_mov_b32 v28, -1
v_mov_b32 v29, -1
v_mov_b32 v30, -1
v_mov_b32 v31, -1
buffer_store_dwordx4 {Q(28)}, v11, s[12:15], s38 offen sc1
s_mov_b32 exec_lo, 0x00ff00ff
s_mov_b32 exec_hi, 0
buffer_store_dwordx4 {Q(28)}, v13, s[12:15], s38 offen sc1
s_mov_b64 exec, -1
s_lshl_b32 s38, s20, 3
s_add_u32 s38, s38, s22
s_lshl_b32 s21, s3, 6
s_add_u32 s38, s38, s21
s_mul_i32 s38, s38, 1280
s_add_u32 s38, s38, {H2F}
buffer_store_dwordx2 {P(28)}, v2, s[12:15], s38 offen sc1""")
    w5_consts(a, 88, 22, -1.0)
    a(f"""
v_cvt_f32_u32 v22, v8
v_mul_f32 v22, {fh(1/128)}, v22
v_cvt_f32_u32 v23, v6
v_mul_f32 v23, {fh(8.0)}, v23
v_and_b32 v24, {fh(0.25)}, v9
v_fma_f32 v23, v23, v22, -v24
v_mul_f32 v24, {fh(25.0)}, v22
""")
    for t in range(4):
        for jj in range(4):
            a(f"""v_cos_f32 v25, v23
v_add_f32 v23, v23, v22
v_cos_f32 v26, v23
v_add_f32 v23, v23, v{24 if jj == 3 else 22}
v_cvt_pk_bf16_f32 v{96+4*t+jj}, v25, v26""")
    a(f"""
v_lshrrev_b32 v22, 3, v3
v_xor_b32 v22, s22, v22
v_lshlrev_b32 v22, 4, v22
v_and_b32 v23, 7, v3
v_lshl_add_u32 v22, v23, 1, v22
s_lshl_b32 s23, s22, 8
s_add_u32 s23, s23, {Z1}
v_add_u32 v14, s23, v22
v_xor_b32 v15, {2048+128}, v14
v_lshlrev_b32 v7, 2, v3
v_add_u32 v7, {PB1}, v7
v_xor_b32 v22, v6, v5
""")
    for t in range(4):
        a(f"""v_xor_b32 v23, {4*t}, v22
v_lshlrev_b32 v23, 4, v23
v_lshl_add_u32 v23, v5, 8, v23
v_add_u32 v{16+t}, {Z1}, v23""")
    r5_sconsts(a)
    srd(a, 24, 60, 256)
    a("buffer_load_dword v21, v20, s[24:27], 0 offen sc1")
    a("s_waitcnt vmcnt(12)\ns_cmp_lt_u32 s22, s49\ns_cbranch_scc1 KM_x0\ns_waitcnt vmcnt(4)\nKM_x0:")
    unpack_x(a, XR, 60)
    ln_rows(a, 60, 70)
    a(f"s_cmp_ge_u32 s22, s49\ns_cbranch_scc1 KM_nog2\ns_waitcnt vmcnt({NR+4})")
    C = 136; T = 140
    for i in range(NR): a(f"v_mul_f32 v{T+i}, {fh(-math.log2(math.e))}, v{C+i}")
    for i in range(NR): a(f"v_exp_f32 v{T+i}, v{T+i}")
    for i in range(NR): a(f"v_add_f32 v{T+i}, 1.0, v{T+i}")
    for i in range(NR): a(f"v_rcp_f32 v{T+i}, v{T+i}")
    for i in range(NR): a(f"v_mul_f32 v{C+i}, v{C+i}, v{T+i}")
    for i in range(NR): a(f"v_cvt_pk_bf16_f32 v{C+i}, v{C+i}, v{C+i}")
    for i in range(NR): a(f"v_and_b32 v{48+2*i}, 0xffff0000, v{C+i}")
    a(f"""v_lshrrev_b32 v22, 4, v0
v_lshlrev_b32 v23, 6, v22
v_lshl_add_u32 v23, v145, 5, v23
v_add_u32 v23, {GP}, v23""")
    for i in range(NR):
        a(f"s_waitcnt vmcnt({NR-1-i+4})")
        for j in range(4): a(f"v_lshlrev_b32 v{32+2*j}, 16, v{120+4*i+j}\nv_and_b32 v{33+2*j}, 0xffff0000, v{120+4*i+j}")
        for j in range(4):
            if i == 0: a(f"v_pk_mul_f32 {P(40+2*j)}, {P(32+2*j)}, {P(48)} op_sel_hi:[1,0]")
            else: a(f"v_pk_fma_f32 {P(40+2*j)}, {P(32+2*j)}, {P(48+2*i)}, {P(40+2*j)} op_sel_hi:[1,0,1]")
    for mode in ('quad_perm:[2,3,0,1]', 'row_ror:4', 'row_ror:8'):
        for j in range(8): a(f"v_add_f32_dpp v{40+j}, v{40+j}, v{40+j} {mode} {DPP}")
    a(f"""v_cmp_gt_u32 vcc, 2, v5
s_and_saveexec_b64 s[38:39], vcc
ds_write_b128 v23, {Q(40)}
ds_write_b128 v23, {Q(44)} offset:16
s_mov_b64 exec, s[38:39]
KM_nog2:
s_waitcnt vmcnt(0)
v_cmp_ne_u32 vcc, 0, v21
s_nop 1
s_cmp_lg_u64 vcc, 0
s_cbranch_scc1 KM_wn_ok""")
    spin(a, 'KM_wn', "buffer_load_dword v21, v20, s[24:27], 0 offen sc1", "v_cmp_eq_u32 vcc, 0, v21")
    a(f"""v_mov_b32 v22, {NON}
ds_write_b32 v22, v21
s_waitcnt lgkmcnt(0)""")
    ST('a')
    bar(a, 'W', 'g1')
    a(f"""s_cmp_lg_u32 s22, 0
s_cbranch_scc1 KM_nog3
s_cmp_eq_u32 s49, 0
s_cbranch_scc1 KM_nog3
v_mul_u32_u24 v23, 320, v6
v_lshl_add_u32 v23, v5, 2, v23
v_add_u32 v23, {GP}, v23
ds_read_b32 v40, v23
ds_read_b32 v41, v23 offset:64
ds_read_b32 v42, v23 offset:128
ds_read_b32 v43, v23 offset:192
ds_read_b32 v44, v23 offset:256
s_sub_u32 s23, s52, 40
s_cmp_lt_u32 s23, 40
s_cselect_b32 s21, 1.0, 0
s_sub_u32 s23, s52, 160
s_cmp_lt_u32 s23, 40
s_cselect_b32 s21, 1.0, s21
s_waitcnt lgkmcnt(0)
v_add_f32 v40, v40, v41
v_add_f32 v42, v42, v43
v_add_f32 v40, v40, v44
v_add_f32 v40, v40, v42
v_mov_b32 v41, v40
v_permlane16_swap_b32 v40, v41
v_add_f32 v40, v40, v41
v_mov_b32 v41, v40
v_permlane32_swap_b32 v40, v41
v_add_f32 v40, v40, v41
v_cvt_pk_bf16_f32 v40, v40, v40
v_and_b32 v40, 0xffff0000, v40
v_add_f32 v40, s21, v40
v_cvt_pk_bf16_f32 v40, v40, v40
v_and_b32 v40, 0xffff0000, v40
v_mov_b32 v41, v21
s_mov_b64 exec, 0xffff
s_cmp_lt_u32 s52, 80
s_cbranch_scc1 KM_gran
s_lshl_b32 s23, s52, 6
v_lshlrev_b32 v23, 2, v1
buffer_store_dword v40, v23, s[12:15], s23 offen sc1
s_branch KM_pub
KM_gran:
s_lshl_b32 s23, s52, 7
s_add_u32 s23, s23, {MODG}
v_lshlrev_b32 v23, 3, v1
buffer_store_dwordx2 {P(40)}, v23, s[12:15], s23 offen sc1
KM_pub:
s_mov_b64 exec, -1
KM_nog3:""")
    M = lambda t: 120+6*t
    N = lambda x, y: 144+6*(2*x+y)
    def gen_(R, cur, step, last, t0=12):
        for hh in range(2):
            a(f"""v_cos_f32 v{t0}, v{cur}
v_sin_f32 v{t0+1}, v{cur}
v_add_f32 v{cur}, v{cur}, v{step}
v_cos_f32 v{t0+2}, v{cur}
v_sin_f32 v{t0+3}, v{cur}
v_add_f32 v{cur}, v{cur}, v{last if hh else step}
v_cvt_pk_bf16_f32 v{R+2+hh}, v{t0}, v{t0+2}
v_cvt_pk_bf16_f32 v{R+hh}, -v{t0+1}, -v{t0+3}
v_cvt_pk_bf16_f32 v{R+4+hh}, v{t0+1}, v{t0+3}""")
    a(f"""v_bfe_u32 v46, v0, 6, 2
v_lshl_add_u32 v46, v46, 4, v5
v_cvt_f32_u32 v46, v46
v_cvt_f32_u32 v47, v6
v_cvt_f32_u32 v48, v5
v_mul_f32 v47, 4.0, v47
v_mul_f32 v49, {fh(1/64)}, v46
v_mul_f32 v50, v47, v49
v_mul_f32 v51, {fh(13.0)}, v49""")
    for t in range(4): gen_(M(t), 50, 49, 51, 52)
    for x in range(2):
        a(f"v_add_f32 v49, {fh(16.0*x)}, v48\nv_mul_f32 v49, {fh(1/32)}, v49\nv_mul_f32 v50, v47, v49\nv_mul_f32 v51, {fh(13.0)}, v49")
        for y in range(2): gen_(N(x, y), 50, 49, 51, 52)
    a(f"""s_lshl_b32 s23, s3, 11
s_lshl_b32 s21, s20, 8
s_add_u32 s23, s23, s21
s_add_u32 s23, s23, {XF}""")
    ST('a')
    bar(a, 'W', 'g2')
    ST('a')
    for j in range(5): a(f"ds_read_b64 {P(40+2*j)}, v7 offset:{2560+512*j}\nds_read_b64 {P(50+2*j)}, v7 offset:{512*j}")
    for j in range(5): a(f"v_pk_mul_f32 {P(28+2*j)}, {P(60+2*j)}, {P(70)} op_sel_hi:[1,0]")
    a("s_waitcnt lgkmcnt(0)")
    for j in range(5): a(f"v_pk_fma_f32 {P(28+2*j)}, {P(28+2*j)}, {P(40+2*j)}, {P(50+2*j)}")
    h = {(3*j) % 5: 28+2*j for j in range(5)}
    t1,t2,t3,t4 = 40,42,44,46; z0,p1,q1,p2,q2 = 48,50,52,54,56
    a(f"""v_pk_add_f32 {P(t1)}, {P(h[1])}, {P(h[4])}
v_pk_add_f32 {P(t2)}, {P(h[2])}, {P(h[3])}
v_pk_add_f32 {P(t3)}, {P(h[1])}, {P(h[4])} neg_lo:[0,1] neg_hi:[0,1]
v_pk_add_f32 {P(t4)}, {P(h[2])}, {P(h[3])} neg_lo:[0,1] neg_hi:[0,1]
v_pk_add_f32 {P(z0)}, {P(h[0])}, {P(t1)}
v_pk_fma_f32 {P(p1)}, s[30:31], {P(t1)}, {P(h[0])}
v_pk_fma_f32 {P(p2)}, s[32:33], {P(t1)}, {P(h[0])}
v_pk_mul_f32 {P(q1)}, s[34:35], {P(t3)}
v_pk_mul_f32 {P(q2)}, s[36:37], {P(t3)}
v_pk_add_f32 {P(z0)}, {P(z0)}, {P(t2)}
v_pk_fma_f32 {P(p1)}, s[32:33], {P(t2)}, {P(p1)}
v_pk_fma_f32 {P(p2)}, s[30:31], {P(t2)}, {P(p2)}
v_pk_fma_f32 {P(q1)}, s[36:37], {P(t4)}, {P(q1)}
v_pk_fma_f32 {P(q2)}, s[34:35], {P(t4)}, {P(q2)} neg_lo:[0,1,0] neg_hi:[0,1,0]
v_cvt_pk_bf16_f32 v22, v{z0}, v{z0+1}
ds_write_b32 v14, v22 offset:8192""")
    for k, (p, q) in enumerate(((p1, q1), (p2, q2))):
        c, s = 88+4*k, 90+4*k; r, im = 28+4*k, 30+4*k
        a(f"""v_pk_mul_f32 {P(r)}, {P(p)}, {P(c)}
v_pk_mul_f32 {P(im)}, {P(p)}, {P(s)}
v_pk_fma_f32 {P(r)}, {P(q)}, {P(s)}, {P(r)}
v_pk_fma_f32 {P(im)}, {P(q)}, {P(c)}, {P(im)} neg_lo:[1,0,0] neg_hi:[1,0,0]
v_cvt_pk_bf16_f32 v{23+2*k}, v{r}, v{r+1}
v_cvt_pk_bf16_f32 v{24+2*k}, v{im}, v{im+1}
ds_write_b32 v{14+k}, v{23+2*k}
ds_write_b32 v{14+k}, v{24+2*k} offset:4096""")
    a("s_waitcnt vmcnt(0) lgkmcnt(0)")
    bar(a, 'W', 'k1a')
    for T in range(3):
        for t in range(4): a(f"ds_read_b128 {Q(28+16*T+4*t)}, v{16+t} offset:{4096*T}")
    n = 12
    for T in range(3):
        for t in range(4):
            n -= 1
            a(f"s_waitcnt lgkmcnt({n})")
            a(f"v_mfma_f32_16x16x32_bf16 {Q(76+4*T)}, {Q(28+16*T+4*t)}, {Q(96+4*t)}, {'0' if t == 0 else Q(76+4*T)}")
    a(f"""v_and_b32 v22, 0x80008000, v9
v_and_b32 v23, v9, v12
v_bfi_b32 v24, v9, v22, v12
v_pk_mul_f32 {P(28)}, {P(76)}, {P(10)} op_sel_hi:[1,0]
v_pk_mul_f32 {P(30)}, {P(78)}, {P(10)} op_sel_hi:[1,0]
v_pk_mul_f32 {P(32)}, {P(80)}, {P(10)} op_sel_hi:[1,0]
v_pk_mul_f32 {P(34)}, {P(82)}, {P(10)} op_sel_hi:[1,0]""")
    for i in range(4):
        a(f"v_add_f32_dpp v{76+i}, v{32+i}, v{76+i} row_ror:8 {DPP}")
        a(f"v_subrev_f32_dpp v{80+i}, v{28+i}, v{80+i} row_ror:8 {DPP}")
    a(f"""v_cvt_pk_bf16_f32 v36, v76, v77
v_cvt_pk_bf16_f32 v37, v78, v79
v_cvt_pk_bf16_f32 v38, v80, v81
v_cvt_pk_bf16_f32 v39, v82, v83
v_cvt_pk_bf16_f32 v44, v84, v85
v_cvt_pk_bf16_f32 v45, v86, v87
v_xor_b32 v36, v36, v23
v_xor_b32 v37, v37, v23
v_xor_b32 v38, v38, v24
v_xor_b32 v39, v39, v24
v_xor_b32 v44, v44, v22
v_xor_b32 v45, v45, v22
v_cndmask_b32 v40, v36, v38, s[42:43]
v_cndmask_b32 v41, v37, v39, s[42:43]
v_cndmask_b32 v42, v38, v36, s[42:43]
v_cndmask_b32 v43, v39, v37, s[42:43]
buffer_store_dwordx4 {Q(40)}, v11, s[12:15], s23 offen sc1
v_mov_b32_dpp v46, v44 row_ror:8 {DPP}
v_mov_b32_dpp v47, v45 row_ror:8 {DPP}
s_mov_b32 exec_lo, 0x00ff00ff
s_mov_b32 exec_hi, 0
buffer_store_dwordx4 {Q(44)}, v13, s[12:15], s23 offen sc1
s_mov_b64 exec, -1""")
    ST('a')
    a(f"""s_lshr_b32 s26, s22, 2
s_and_b32 s27, s22, 3
""")
    task_ids(a, 26)
    a(f"""s_cmp_gt_u32 s28, 320
s_cbranch_scc1 KM_k2skip
s_cmp_eq_u32 s28, 320
s_cselect_b32 s41, {32*65536}, s41
s_lshr_b32 s21, s28, 5
s_lshl_b32 s21, s21, 3
s_and_b32 s23, s28, 7
s_add_u32 s21, s21, s23
s_sub_u32 s23, 128, s21
s_cmp_eq_u32 s21, 0
s_cselect_b32 s23, 64, s23
s_bitcmp1_b32 s28, 3
s_cselect_b32 s21, s23, s21
s_mul_i32 s21, s21, 5
s_bfe_u32 s23, s28, 0x10004
s_lshl_b32 s23, s23, 7
s_add_u32 s21, s21, s23
s_add_u32 s21, s21, 128
s_sub_u32 s23, s21, 640
s_min_u32 s21, s21, s23
s_sub_u32 s23, 640, s21
s_min_u32 s21, s21, s23
s_sub_u32 s23, s28, 256
s_mul_i32 s23, s23, 5
s_cmp_ge_u32 s28, 256
s_cselect_b32 s40, s23, s21
v_and_b32 v1, 15, v0
v_bfe_u32 v2, v0, 4, 2
v_bfe_u32 v3, v0, 6, 2
v_and_b32 v9, 63, v0
v_lshl_add_u32 v4, v3, 2, v2
v_xor_b32 v10, v4, v1
v_lshl_add_u32 v4, v4, 4, v10
v_lshlrev_b32 v4, 7, v4
v_lshrrev_b32 v5, 1, v1
v_and_b32 v6, 1, v1
v_lshl_add_u32 v5, v6, 3, v5
v_lshl_add_u32 v5, v2, 4, v5
v_lshlrev_b32 v5, 4, v5
v_lshl_add_u32 v5, v3, 11, v5
s_add_u32 s21, s41, {XF}
s_add_u32 s23, s21, 32768
s_lshl_b32 s29, s28, 13
s_lshl_b32 s48, s26, 14
s_add_u32 s48, s48, {K2B}
v_lshl_add_u32 v6, v3, 4, v1
v_cvt_f32_u32 v6, v6
v_cvt_f32_u32 v7, v2
v_cvt_f32_u32 v8, v1
v_mul_f32 v7, 4.0, v7
""")
    a(f"v_mul_f32 v16, {fh(-1/2048)}, v6\nv_mul_f32 v10, v7, v16\nv_mul_f32 v11, {fh(13.0)}, v16")
    for k in range(8):
        a(f"v_cos_f32 v{56+k}, v10\nv_sin_f32 v{64+k}, v10")
        if k < 7: a(f"v_add_f32 v10, v10, v{11 if k == 3 else 16}")
    if 'gx1' in OPT:
        for l in (f"buffer_load_dwordx4 {Q(24)}, v4, s[12:15], s21 offen sc1", f"buffer_load_dwordx4 {Q(28)}, v4, s[12:15], s23 offen sc1"): a(l)
    a(f"""s_lshl_b32 s24, s27, 4
v_cvt_f32_u32 v12, s24
v_add_f32 v12, v12, v7
s_mov_b32 s38, {fh(2.0/(2048*640))}
s_cmp_eq_u32 s28, 256
s_cselect_b32 s38, {fh(1.0/(2048*640))}, s38
s_cmp_eq_u32 s28, 320
s_cselect_b32 s38, {fh(1.0/(2048*640))}, s38
s_mov_b32 s39, s38""")
    for nt in range(2):
        a(f"v_add_f32 v16, {fh(16.0*nt)}, v8\nv_mul_f32 v16, {fh(1/2048)}, v16\nv_mul_f32 v10, v12, v16")
        for i in range(4):
            k = 4*nt+i
            a(f"v_cos_f32 v{72+k}, v10\nv_sin_f32 v{80+k}, v10")
            if i < 3: a("v_add_f32 v10, v10, v16")
    for k in range(8): a(f"v_pk_mul_f32 {P(72+2*k)}, s[38:39], {P(72+2*k)}")
    a(f"""v_xor_b32 v10, v2, v1
v_lshlrev_b32 v10, 4, v10
v_lshl_add_u32 v10, v1, 8, v10
v_add_u32 v10, s48, v10
v_xor_b32 v11, 64, v10
v_xor_b32 v12, 128, v10
v_xor_b32 v13, 192, v10
v_lshlrev_b32 v7, 4, v9
v_add_u32 v7, s48, v7
s_lshl_b32 s24, s27, 10
v_add_u32 v6, s24, v7
v_lshlrev_b32 v8, 4, v9
v_lshl_add_u32 v8, v3, 11, v8
s_add_u32 s24, s24, s48
s_lshl_b32 s25, s40, 13
s_add_u32 s25, s25, {WP}
s_mov_b32 m0, s24""")
    ST('b')
    gather2(a, 'KM_gx', f"buffer_load_dwordx4 {Q(24)}, v4, s[12:15], s21 offen sc1", f"buffer_load_dwordx4 {Q(28)}, v4, s[12:15], s23 offen sc1", 24, 28, 32, pre=('gx1' in OPT), dly=OPT.get('dx', 0))
    a(f"""ds_write_b128 v6, {Q(24)}
ds_write_b128 v6, {Q(28)} offset:4096
s_add_u32 s21, s29, {YF}
s_add_u32 s23, s21, 1024
s_waitcnt lgkmcnt(0)""")
    bar(a, 'W', 'k2a')
    ST('b')
    a(f"""buffer_load_dwordx4 v[48:51], v5, s[12:15], s25 offen sc1
buffer_load_dwordx4 v[52:55], v5, s[12:15], s25 offen offset:1024 sc1""")
    D = lambda mt, t: 16+16*mt+4*t
    for t in range(4):
        for mt in range(2): a(f"ds_read_b128 {Q(D(mt,t))}, v{10+t} offset:{4096*mt}")
    def mf(d, A, B, first): a(f"v_mfma_f32_16x16x32_bf16 {Q(d)}, {Q(A)}, {Q(B)}, {'0' if first else Q(d)}")
    a("s_and_b32 s24, s28, 0xffffffbf\ns_cmp_lg_u32 s24, 256\ns_cbranch_scc1 KM_k2gen\ns_waitcnt lgkmcnt(0)\ns_cmp_eq_u32 s28, 256\ns_cbranch_scc1 KM_k2z")
    for f in range(8): a(f"v_mov_b32 v{16+4*f}, v{18+4*f}\nv_mov_b32 v{17+4*f}, v{19+4*f}")
    a("KM_k2z:")
    for f in range(8): a(f"v_mov_b32 v{18+4*f}, 0\nv_mov_b32 v{19+4*f}, 0")
    a("s_nop 1\nKM_k2gen:")
    for t in range(4):
        a(f"s_waitcnt lgkmcnt({6-2*t})")
        for mt in range(2):
            mf(88+8*mt, D(mt,t), M(t)+2, t == 0)
            mf(92+8*mt, D(mt,t), M(t), t == 0)
    def tw_pack(tr, ti, B, swap):
        for blk in range(2):
            for hh in range(2):
                r = 88+8*blk+2*hh; i = r+4; c = tr+4*blk+2*hh; s = ti+4*blk+2*hh; t = 104+4*blk+2*hh
                a(f"""v_pk_mul_f32 {P(t)}, {P(i)}, {P(s)}
v_pk_mul_f32 {P(i)}, {P(i)}, {P(c)}
v_pk_fma_f32 {P(i)}, {P(r)}, {P(s)}, {P(i)}
v_pk_fma_f32 {P(r)}, {P(r)}, {P(c)}, {P(t)} neg_lo:[0,0,1] neg_hi:[0,0,1]""")
        for blk in range(2):
            for hh in range(2):
                r = 88+8*blk+2*hh
                a(f"v_cvt_pk_bf16_f32 v{B+4*blk+hh+(2 if swap else 0)}, v{r}, v{r+1}")
                a(f"v_cvt_pk_bf16_f32 v{B+4*blk+hh+(0 if swap else 2)}, v{r+4}, v{r+5}")
    tw_pack(56, 64, 16, False)
    for y in range(2):
        for x in range(2):
            mf(88+8*x, N(x,y)+2, 16+4*y, y == 0)
            mf(92+8*x, N(x,y), 16+4*y, y == 0)
    a("s_waitcnt vmcnt(0)")
    for k in range(8): a(f"v_lshlrev_b32 v{32+k}, 16, v{48+k}\nv_and_b32 v{40+k}, 0xffff0000, v{48+k}")
    tw_pack(32, 40, 24, True)
    for y in range(2):
        for x in range(2):
            mf(88+8*x, 24+4*y, N(x,y), y == 0)
            mf(92+8*x, 24+4*y, N(x,y)+2, y == 0)
    tw_pack(72, 80, 16, True)
    a(f"ds_write_b128 v6, {Q(16)} offset:8192\nds_write_b128 v6, {Q(20)} offset:12288\ns_waitcnt lgkmcnt(0)")
    bar(a, 'W', 'k2b')
    for t in range(4):
        for nt in range(2): a(f"ds_read_b128 {Q(D(nt,t))}, v7 offset:{8192+4096*nt+1024*t}")
    for t in range(4):
        a(f"s_waitcnt lgkmcnt({6-2*t})")
        for nt in range(2):
            mf(88+8*nt, M(t), D(nt,t), t == 0)
            mf(92+8*nt, M(t)+2, D(nt,t), t == 0)
    for nt in range(2):
        o = 48+4*nt; s = 88+8*nt
        for k in range(4): a(f"v_cvt_pk_bf16_f32 v{o+k}, v{s+2*k}, v{s+2*k+1}")
        a(f"buffer_store_dwordx4 {Q(o)}, v8, s[12:15], s{21+2*nt} offen sc1")
    ST('b')
    a("s_branch KM_k2done\nKM_k2skip:\ns_barrier\ns_barrier\nKM_k2done:")
    a(f"""v_and_b32 v1, 63, v0
v_and_b32 v3, 31, v0
v_lshlrev_b32 v2, 3, v3
v_bfe_u32 v4, v0, 5, 1
v_lshl_add_u32 v2, v4, 8, v2
v_lshlrev_b32 v3, 2, v3
v_lshl_add_u32 v3, v4, 1, v3
v_and_b32 v5, 15, v0
v_bfe_u32 v6, v0, 4, 2""")
    col_slots(a, 22, 5, 6, 8, 22)
    addr_yf(a)
    a(f"""
s_and_b32 s23, s3, 15
s_lshl_b32 s23, s23, 4
s_lshr_b32 s21, s3, 4
s_lshl_b32 s21, s21, 10
s_add_u32 s23, s23, s21
s_lshr_b32 s21, s20, 1
s_lshl_b32 s21, s21, 11
s_add_u32 s23, s23, s21
s_and_b32 s21, s20, 1
s_lshl_b32 s21, s21, 9
s_add_u32 s23, s23, s21
s_add_u32 s23, s23, {YF}
s_lshl_b32 s21, s20, 3
s_add_u32 s21, s21, s22
s_lshl_b32 s24, s3, 6
s_add_u32 s24, s24, s21
s_mul_i32 s24, s24, 1280
""")
    w5_consts(a, 88, 22, 1.0)
    a(f"""
s_lshl_b32 s27, s22, 4
v_add_u32 v22, s27, v5
v_cvt_f32_u32 v22, v22
v_mul_f32 v22, {fh(1/128)}, v22
v_and_b32 v23, 1, v6
v_cvt_f32_u32 v23, v23
v_mul_f32 v23, 4.0, v23
v_lshrrev_b32 v24, 1, v6
v_cvt_f32_u32 v24, v24
v_mul_f32 v24, {fh(0.25)}, v24
v_fma_f32 v23, v23, v22, v24
v_mul_f32 v24, {fh(5.0)}, v22
v_mul_f32 v27, {fh(64.0)}, v22
v_cmp_eq_u32 vcc, 2, v6
v_cndmask_b32 v27, v23, v27, vcc
""")
    for t in range(4):
        for jj in range(4):
            a(f"""v_cos_f32 v25, v{27 if (t, jj) == (0, 0) else 23}
v_add_f32 v23, v23, v22
v_cos_f32 v26, v23
v_add_f32 v23, v23, v{24 if jj & 1 else 22}
v_cvt_pk_bf16_f32 v{96+4*t+jj}, v25, v26""")
    a(f"""
v_lshlrev_b32 v14, 5, v5
v_lshl_add_u32 v14, v6, 3, v14
s_lshl_b32 s27, s22, 9
s_add_u32 s27, s27, {TB}
v_add_u32 v14, s27, v14
v_and_b32 v15, 4096, v9
v_add_u32 v15, v15, v14
v_xor_b32 v112, 4096, v15
v_lshlrev_b32 v113, 3, v1
v_add_u32 v113, {TB}, v113
v_and_b32 v22, 7, v5
v_mul_u32_u24 v22, {ZR}, v22
v_lshl_add_u32 v22, v6, 4, v22
s_lshl_b32 s27, s22, 6
s_add_u32 s27, s27, {ZB}
v_add_u32 v17, s27, v22
v_lshrrev_b32 v22, 3, v5
v_mul_u32_u24 v22, {2*ZC}, v22
v_add_u32 v16, v17, v22
v_lshlrev_b32 v4, 2, v3
s_mul_i32 s27, s22, {ZR}
s_add_u32 s27, s27, {ZB}
v_add_u32 v7, s27, v4
v_add_u32 v4, {PB}, v4
v_and_b32 v22, 0x80000000, v9
v_xor_b32 v22, v22, v10
v_and_b32 v23, 0x80008000, v9
v_xor_b32 v24, v23, v12
""")
    for j in range(5):
        a(f"ds_read_b64 {P(120+2*j)}, v4 offset:{512*j}\nds_read_b64 {P(140+2*j)}, v4 offset:{5120+512*j}\nds_read_b64 {P(130+2*j)}, v4 offset:{2560+512*j}")
    a("s_waitcnt lgkmcnt(0)")
    ST('c')
    gather2(a, 'KM_gy', f"buffer_load_dwordx4 {Q(28)}, v11, s[12:15], s23 offen sc1", f"buffer_load_dwordx4 {Q(32)}, v13, s[12:15], s23 offen sc1", 28, 32, 36, dly=OPT.get('dy', 0))
    ST('c')
    a(f"""v_cndmask_b32 v32, v32, v34, s[42:43]
v_cndmask_b32 v33, v33, v35, s[42:43]
v_xor_b32 v26, v30, v24
v_xor_b32 v27, v31, v24
v_xor_b32 v30, v30, v12
v_xor_b32 v31, v31, v12
ds_write_b64 v14, {P(32)} offset:8192""")
    for hh in range(2):
        a(f"""v_lshlrev_b32 v{36+2*hh}, 16, v{28+hh}
v_and_b32 v{37+2*hh}, 0xffff0000, v{28+hh}
v_lshlrev_b32 v{40+2*hh}, 16, v{30+hh}
v_and_b32 v{41+2*hh}, 0xffff0000, v{30+hh}
v_lshlrev_b32 v{44+2*hh}, 16, v{28+hh}
v_and_b32 v{45+2*hh}, 0xffff0000, v{28+hh}
v_lshlrev_b32 v{48+2*hh}, 16, v{26+hh}
v_and_b32 v{49+2*hh}, 0xffff0000, v{26+hh}""")
    for i in range(4):
        a(f"v_fmac_f32_dpp v{44+i}, v{36+i}, v22 row_ror:8 {DPP}")
        a(f"v_fmac_f32_dpp v{48+i}, v{40+i}, v10 row_ror:8 {DPP}")
    a(f"""v_cvt_pk_bf16_f32 v52, v44, v45
v_cvt_pk_bf16_f32 v53, v46, v47
v_cvt_pk_bf16_f32 v54, v48, v49
v_cvt_pk_bf16_f32 v55, v50, v51
ds_write_b64 v15, {P(52)}
ds_write_b64 v112, {P(54)}
s_waitcnt lgkmcnt(0)""")
    bar(a, 'W', 'b1')
    for T in range(3):
        for t in range(4):
            for x in range(2): a(f"ds_read_b64_tr_b16 {P(28+16*T+4*t+2*x)}, v113 offset:{4096*T+1024*t+512*x}")
            if T == 1 and t == 3:
                a("s_waitcnt lgkmcnt(8)")
                for tt in range(4): a(f"v_mfma_f32_16x16x32_bf16 {Q(76)}, {Q(96+4*tt)}, {Q(28+4*tt)}, {'0' if tt == 0 else Q(76)}")
    for T in (1, 2):
        a(f"s_waitcnt lgkmcnt({8 if T == 1 else 0})")
        for t in range(4): a(f"v_mfma_f32_16x16x32_bf16 {Q(76+4*T)}, {Q(96+4*t)}, {Q(28+16*T+4*t)}, {'0' if t == 0 else Q(76+4*T)}")
    a(f"ds_write_b128 v16, {Q(76)} offset:{ZC}")
    for j in range(5): a(f"v_lshlrev_b32 v{28+2*j}, 16, v{XR+j}\nv_and_b32 v{29+2*j}, 0xffff0000, v{XR+j}")
    a(f"""ds_write_b128 v16, {Q(80)} offset:{2*ZC}
ds_write_b128 v17, {Q(84)}
s_waitcnt lgkmcnt(0)""")
    bar(a, 'W', 'b2')
    for c in range(5): a(f"ds_read_b64 {P(40+2*c)}, v7 offset:{ZC*c}")
    a("s_waitcnt lgkmcnt(0)")
    bar(a, 'W', 'b3')
    for k in range(2):
        r, im = 42+4*k, 44+4*k; c, s = 88+4*k, 90+4*k; R, I = 50+4*k, 52+4*k
        a(f"""v_pk_mul_f32 {P(R)}, {P(r)}, {P(c)}
v_pk_mul_f32 {P(I)}, {P(r)}, {P(s)}
v_pk_fma_f32 {P(R)}, {P(im)}, {P(s)}, {P(R)} neg_lo:[1,0,0] neg_hi:[1,0,0]
v_pk_fma_f32 {P(I)}, {P(im)}, {P(c)}, {P(I)}""")
    z0,z1r,z1i,z2r,z2i = 40,50,52,54,56
    A,B,Cc,Dd,E = 58,60,62,64,66
    sl = {(3*j) % 5: j for j in range(5)}
    X = lambda d2: P(28+2*sl[d2]); G = lambda d2: P(120+2*sl[d2])
    a(f"""v_pk_add_f32 {P(E)}, {P(z0)}, {P(z1r)}
v_pk_fma_f32 {P(A)}, s[30:31], {P(z1r)}, {P(z0)}
v_pk_fma_f32 {P(B)}, s[32:33], {P(z1r)}, {P(z0)}
v_pk_mul_f32 {P(Cc)}, s[34:35], {P(z1i)}
v_pk_mul_f32 {P(Dd)}, s[36:37], {P(z1i)}
v_pk_add_f32 {P(E)}, {P(E)}, {P(z2r)}
v_pk_fma_f32 {P(A)}, s[32:33], {P(z2r)}, {P(A)}
v_pk_fma_f32 {P(B)}, s[30:31], {P(z2r)}, {P(B)}
v_pk_fma_f32 {P(Cc)}, s[36:37], {P(z2i)}, {P(Cc)}
v_pk_fma_f32 {P(Dd)}, s[34:35], {P(z2i)}, {P(Dd)} neg_lo:[0,1,0] neg_hi:[0,1,0]
v_pk_fma_f32 {X(0)}, {G(0)}, {P(E)}, {X(0)}
v_pk_add_f32 {P(68)}, {P(A)}, {P(Cc)} neg_lo:[0,1] neg_hi:[0,1]
v_pk_add_f32 {P(70)}, {P(A)}, {P(Cc)}
v_pk_add_f32 {P(72)}, {P(B)}, {P(Dd)} neg_lo:[0,1] neg_hi:[0,1]
v_pk_add_f32 {P(74)}, {P(B)}, {P(Dd)}
v_pk_fma_f32 {X(1)}, {G(1)}, {P(68)}, {X(1)}
v_pk_fma_f32 {X(4)}, {G(4)}, {P(70)}, {X(4)}
v_pk_fma_f32 {X(2)}, {G(2)}, {P(72)}, {X(2)}
v_pk_fma_f32 {X(3)}, {G(3)}, {P(74)}, {X(3)}
s_add_u32 s25, s24, {X1}
s_add_u32 s26, s24, {H2F}""")
    for j in range(5): a(f"v_cvt_pk_bf16_f32 v{16+j}, v{28+2*j}, v{29+2*j}")
    a(f"""v_permlane32_swap_b32 v16, v17
v_permlane32_swap_b32 v18, v19
buffer_store_dwordx2 {P(16)}, v2, s[12:15], s25 offen sc1
buffer_store_dwordx2 {P(18)}, v2, s[12:15], s25 offen offset:512 sc1""")
    ln_rows(a, 28, 22)
    a(f"v_bfe_u32 v24, v0, 5, 1\nv_mul_u32_u24 v24, {H2F - X1 - 256}, v24\nv_add_u32 v24, v24, v2")
    for j in range(5): a(f"v_pk_mul_f32 {P(140+2*j)}, {P(140+2*j)}, {P(22)} op_sel_hi:[1,0]")
    for j in range(5): a(f"v_pk_fma_f32 {P(28+2*j)}, {P(28+2*j)}, {P(140+2*j)}, {P(130+2*j)}")
    for j in range(4): a(f"v_cvt_pk_bf16_f32 v{40+j}, v{28+2*j}, v{29+2*j}")
    a(f"""v_cvt_pk_bf16_f32 v21, v36, v37
v_permlane32_swap_b32 v40, v41
v_permlane32_swap_b32 v42, v43
v_permlane32_swap_b32 v20, v21
buffer_store_dwordx2 {P(40)}, v2, s[12:15], s26 offen sc1
buffer_store_dwordx2 {P(42)}, v2, s[12:15], s26 offen offset:512 sc1
buffer_store_dwordx2 {P(20)}, v24, s[12:15], s25 offen offset:1024 sc1""")
    ST('c')
    a(f"""v_mov_b32 v2, v1
s_lshr_b32 s26, s22, 2
s_and_b32 s27, s22, 3
v_lshrrev_b32 v3, 4, v2
v_bfe_u32 v4, v2, 2, 2
v_lshl_add_u32 v4, v3, 3, v4
v_mul_u32_u24 v4, 192, v4
v_and_b32 v5, 3, v2
v_lshl_add_u32 v4, v5, 3, v4
v_and_b32 v5, 1, v3
v_lshlrev_b32 v5, 5, v5
s_mul_i32 s28, s26, 96
v_add_u32 v4, s28, v4
s_cmp_eq_u32 s26, 0
s_cselect_b32 s29, 1, -1
v_mul_lo_u32 v5, v5, s29
v_add_u32 v6, v4, v5
v_sub_u32 v7, v4, v5
v_add_u32 v8, {4*WS_}, v6
v_add_u32 v9, {4*WS_}, v7
v_and_b32 v10, 15, v2
v_lshrrev_b32 v11, 1, v10
v_xor_b32 v11, v11, v3
v_lshlrev_b32 v11, 4, v11
v_lshl_add_u32 v11, v10, 7, v11
s_lshl_b32 s28, s27, 12
s_add_u32 s28, s28, {HB}
v_add_u32 v11, s28, v11
v_xor_b32 v12, 64, v11
s_load_dwordx2 s[60:61], s[0:1], 72
s_waitcnt vmcnt(0)""")
    ST('c')
    bar(a, 'W', 'd1')
    ACC = lambda mat, i, nt: 16 + 4*(6*nt + 3*mat + i)
    FA = lambda buf, mat, i: 64 + 32*buf + 4*(3*mat+i)
    FB = lambda buf, nt: 88 + 32*buf + 4*nt
    def reads(s):
        L = []; sl = s % 8
        for nt in range(2): L.append(f"ds_read_b128 {Q(FB(s & 1, nt))}, v{11 + (s & 1)} offset:{((s//2) % 4)*HS + 2048*nt}")
        for mat in range(2):
            for i in range(3):
                for x in range(2):
                    L.append(f"ds_read_b64_tr_b16 {P(FA(s & 1, mat, i) + 2*x)}, v{6 + (i & 1) + 2*(sl//4)} offset:{(sl % 4)*WS_ + mat*6144 + 4*x*192 + 32*i}")
        return L
    bar(a, 'W', 'B0')
    ST('d')
    for l in reads(0): a(l)
    for s in range(NST):
        a("s_waitcnt lgkmcnt(0)")
        if s & 1: bar(a, 'W', f'B{(s+1)//2}')
        R = reads(s+1) if s+1 < NST else []
        k = 0
        for mat in range(2):
            for i in range(3):
                for nt in range(2):
                    c = ACC(mat, i, nt)
                    a(f"v_mfma_f32_16x16x32_bf16 {Q(c)}, {Q(FA(s & 1, mat, i))}, {Q(FB(s & 1, nt))}, {'0' if s == 0 else Q(c)}")
                    for l in R[2*k:2*k+2]: a(l)
                    k += 1
    ST('d')
    kk = 2*0.7978845608028654*math.log2(math.e)
    a(f"""s_mov_b32 s30, {fh(-kk*0.044715)}
s_mov_b32 s31, {fh(-kk*0.044715)}
v_mov_b32 v10, {fh(-kk)}
v_mov_b32 v11, {fh(-kk)}
s_lshl_b32 s29, s50, 3
s_lshl_b32 s28, s27, 1
s_add_u32 s29, s29, s28
s_mul_i32 s29, s29, 49152
s_mul_i32 s28, s51, 3072
s_add_u32 s29, s29, s28
s_mul_i32 s28, s26, 1536
s_add_u32 s29, s29, s28
s_add_u32 s29, s29, {HIDF}
v_bfe_u32 v7, v2, 4, 1
v_mul_u32_u24 v7, 49152, v7
v_lshrrev_b32 v8, 5, v2
v_lshl_add_u32 v7, v8, 8, v7
v_and_b32 v8, 15, v2
v_lshl_add_u32 v7, v8, 4, v7""")
    for nt in range(2):
        Gt = ACC(0, 0, nt); U = ACC(1, 0, nt); T = 64 + 16*nt
        for i in range(0, 12, 2): a(f"v_pk_mul_f32 {P(T+i)}, {P(Gt+i)}, {P(Gt+i)}")
        for i in range(0, 12, 2): a(f"v_pk_fma_f32 {P(T+i)}, {P(T+i)}, s[30:31], {P(10)}")
        for i in range(0, 12, 2): a(f"v_pk_mul_f32 {P(T+i)}, {P(T+i)}, {P(Gt+i)}")
        for i in range(0, 12, 2): a(f"v_exp_f32 v{T+i}, v{T+i}\nv_exp_f32 v{T+i+1}, v{T+i+1}\nv_pk_mul_f32 {P(Gt+i)}, {P(Gt+i)}, {P(U+i)}")
        for i in range(0, 12, 2): a(f"v_pk_add_f32 {P(T+i)}, {P(T+i)}, 1.0 op_sel_hi:[1,0]")
        for i in range(12): a(f"v_rcp_f32 v{T+i}, v{T+i}")
        for i in range(0, 12, 2): a(f"v_pk_mul_f32 {P(Gt+i)}, {P(Gt+i)}, {P(T+i)}")
        for i in range(3):
            O = 96 + 4*i + 2*nt
            a(f"v_cvt_pk_bf16_f32 v{O}, v{Gt+4*i}, v{Gt+4*i+1}\nv_cvt_pk_bf16_f32 v{O+1}, v{Gt+4*i+2}, v{Gt+4*i+3}")
    for i in range(3):
        O = 96 + 4*i
        a(f"""v_permlane16_swap_b32 v{O}, v{O+2}
v_permlane16_swap_b32 v{O+1}, v{O+3}
buffer_store_dwordx4 {Q(O)}, v7, s[12:15], s29 offen offset:{512*i} sc1""")
    ST('d')
    a(f"""s_lshl_b32 s30, s50, 3
s_lshr_b32 s28, s51, 3
s_lshl_b32 s28, s28, 2
s_add_u32 s30, s30, s28
s_add_u32 s30, s30, s27
s_mul_i32 s29, s30, 49152
s_lshl_b32 s28, s26, 10
s_add_u32 s29, s29, s28
s_add_u32 s29, s29, {HIDF}
s_lshl_b32 s30, s30, 4
s_and_b32 s24, s51, 7
v_lshrrev_b32 v3, 2, v2
v_mul_u32_u24 v3, 160, v3
v_and_b32 v4, 3, v2
v_lshl_add_u32 v3, v4, 3, v3
s_mul_i32 s28, s26, 5120
v_add_u32 v3, s28, v3
v_add_u32 v4, {6*DW}, v3
v_add_u32 v5, {12*DW}, v3
v_lshlrev_b32 v6, 4, v2
v_and_b32 v12, 15, v2
v_lshrrev_b32 v13, 4, v2
v_mul_u32_u24 v8, 1280, v12
v_lshl_add_u32 v8, v13, 3, v8
s_mul_i32 s23, s30, 1280
s_mul_i32 s25, s24, 160
s_add_u32 s23, s23, s25
s_add_u32 s23, s23, {X1}
v_lshlrev_b32 v15, 4, v13
s_lshl_b32 s28, s25, 1
s_add_u32 s28, s28, 12800
s_lshl_b32 s21, s26, 6
s_add_u32 s23, s23, s21
s_lshl_b32 s21, s26, 7
s_add_u32 s28, s28, s21
s_waitcnt vmcnt(0)""")
    ST('d')
    if 'nohs' in OPT: bar(a, 'W', 'd2')
    a("s_mov_b32 s41, s29")
    srd(a, 16, 60, 2048*1280)
    AC2 = lambda mt: 16 + 4*mt
    FA2 = lambda buf, mt: 36 + 20*buf + 4*mt
    NB = OPT.get('nb', 10)
    FB2 = lambda s: 76 + 4*(s % NB)
    def reads2(s):
        p = WPOS(s)
        return [f"ds_read_b64_tr_b16 {P(FA2(s & 1, mt) + 2*x)}, v{3+p//6} offset:{(p % 6)*DW + x*2560 + 32*mt}" for mt in range(5) for x in range(2)]
    def ldb(s):
        a(f"buffer_load_dwordx4 {Q(FB2(s))}, v6, s[12:15], s29 offen offset:{2048*(s & 1)} sc1")
        if s & 1: a("s_add_u32 s29, s29, 4096")
    bar(a, 'W', 'C0')
    ST('d')
    nb = 0; nx = 0
    for s in range(NB-1): ldb(s); nb += 1
    for l in reads2(0): a(l)
    for s in range(NS2):
        f = FB2(s)
        if 'nohs' in OPT: a(f"s_waitcnt vmcnt({nb-s-1+nx}) lgkmcnt(0)\nKM_hr{s}:")
        else: a(f"""s_waitcnt vmcnt({nb-s-1+nx})
v_max3_u32 v9, v{f}, v{f+1}, v{f+2}
v_max_u32 v9, v9, v{f+3}
v_cmp_eq_u32 vcc, -1, v9
s_waitcnt lgkmcnt(0)
s_cmp_lg_u64 vcc, 0
s_cbranch_scc1 KM_hs{s}
KM_hr{s}:""")
        if s in CB: bar(a, 'W', f'C{s}')
        if nb < NS2: ldb(nb); nb += 1
        elif nx < 6:
            k = nx // 2
            a(f"buffer_load_dwordx2 {P(116+2*k)}, v8, s[12:15], s23 offen offset:{32*k} sc1")
            a(f"buffer_load_dwordx4 {Q(128+4*k)}, v15, s[12:15], s28 offen offset:{64*k} sc1")
            nx += 2
        R = reads2(s+1) if s+1 < NS2 else []
        for mt in range(5):
            c = AC2(mt)
            a(f"v_mfma_f32_16x16x32_bf16 {Q(c)}, {Q(FA2(s & 1, mt))}, {Q(FB2(s))}, {'0' if s == 0 else Q(c)}")
            for l in R[2*mt:2*mt+2]: a(l)
    RB = WPOS(10)*DW
    ST('d')
    a(f"""s_mul_i32 s28, s27, 5120
s_add_u32 s28, s28, {RB}
v_add_u32 v6, s28, v6
s_and_b32 s23, s30, 63
s_lshl_b32 s23, s23, 5
s_lshr_b32 s29, s30, 6
s_add_u32 s23, s23, s29
s_mul_i32 s23, s23, 1280
s_add_u32 s23, s23, s25
v_mul_u32_u24 v8, 40960, v12
v_lshl_add_u32 v8, v13, 3, v8
s_cmp_eq_u32 s26, 0
s_cbranch_scc1 KM_lo""")
    def fin(give, keep, base):
        for mt in give: a(f"ds_write_b128 v6, {Q(AC2(mt))} offset:{1024*mt}")
        a("s_waitcnt vmcnt(0)")
        for mt in keep:
            x = 116+2*(mt-base); r = 76+4*mt
            a(f"v_lshlrev_b32 v{r}, 16, v{x}\nv_and_b32 v{r+1}, 0xffff0000, v{x}\nv_lshlrev_b32 v{r+2}, 16, v{x+1}\nv_and_b32 v{r+3}, 0xffff0000, v{x+1}")
        a("s_waitcnt lgkmcnt(0)\ns_barrier")
        for mt in keep: a(f"ds_read_b128 {Q(36+4*mt)}, v6 offset:{1024*mt}")
        for n, mt in enumerate(keep):
            c = AC2(mt); x = 116+2*(mt-base); g = 128+4*(mt-base); r = 36+4*mt; o = 76+4*mt
            a(f"""s_waitcnt lgkmcnt({len(keep)-1-n})
v_pk_add_f32 {P(c)}, {P(c)}, {P(r)}
v_pk_add_f32 {P(c+2)}, {P(c+2)}, {P(r+2)}
v_pk_fma_f32 {P(o)}, {P(c)}, {P(g)}, {P(o)}
v_pk_fma_f32 {P(o+2)}, {P(c+2)}, {P(g+2)}, {P(o+2)}
v_cvt_pk_bf16_f32 v{x}, v{o}, v{o+1}
v_cvt_pk_bf16_f32 v{x+1}, v{o+2}, v{o+3}
buffer_store_dwordx2 {P(x)}, v8, s[16:19], s23 offen offset:{32*mt}""")
        a("@dump 12\ns_endpgm")
    nst = a.st.n
    fin([0,1,2], [3,4], 2)
    a.st.n = nst
    a("KM_lo:")
    fin([3,4], [0,1,2], 0)
    a.st.n = 1
    for s in range(NS2):
        f = FB2(s)
        a(f"""KM_hs{s}:
s_add_u32 s40, s41, {2048*s}
s_mov_b32 s46, 0x8000
KM_hl{s}:
s_mov_b64 exec, vcc
s_sleep 2
buffer_load_dwordx4 {Q(f)}, v6, s[12:15], s40 offen sc1
s_waitcnt vmcnt(0)
v_max3_u32 v9, v{f}, v{f+1}, v{f+2}
v_max_u32 v9, v9, v{f+3}
v_cmp_eq_u32 vcc, -1, v9
s_mov_b64 exec, -1
s_sub_u32 s46, s46, 1
s_cmp_eq_u32 s46, 0
s_cbranch_scc1 KM_hr{s}
s_cmp_lg_u64 vcc, 0
s_cbranch_scc1 KM_hl{s}
s_branch KM_hr{s}""")
    a(f"""KM_prod:
s_sub_u32 s47, s22, 8
s_waitcnt lgkmcnt(0)""")
    if OPT.get('wb'): a(f"s_add_u32 s6, s6, {OPT['wb']}\ns_addc_u32 s7, s7, 0")
    srd(a, 12, 6, WS_SIZE)
    srd(a, 16, 60, 256)
    a(f"""v_mov_b32 v60, 0
s_load_dwordx4 s[56:59], s[0:1], 32
s_load_dwordx2 s[4:5], s[0:1], 48
v_lshlrev_b32 v59, 4, v1
s_sub_u32 s53, s2, 80
s_xor_b32 s54, s47, 2
s_mul_i32 s54, s54, 192
s_sub_u32 s21, s2, 64
s_add_u32 s54, s54, s21
s_cmp_lt_u32 s2, 64
s_cselect_b32 s54, 999, s54
s_cmp_ge_u32 s47, 2
s_cbranch_scc1 KM_p_wp
s_cmp_lg_u32 s47, 0
s_cbranch_scc1 KM_p_pf
s_branch KM_p_no0
KM_p_pf:""")
    if 'nocpf' not in OPT:
        a(f"""s_cmp_lt_u32 s2, {256 - OPT.get('ncp', 16)}
s_cbranch_scc1 KM_p_no0
s_getpc_b64 s[38:39]
KM_pc:
s_sub_u32 s38, s38, KM_pc-{NAME}
s_subb_u32 s39, s39, 0
v_lshlrev_b32 v86, 7, v1""")
        for k in range(4):
            a(f"""v_add_u32 v87, {8192*k}, v86
v_min_u32 v87, KM_end-{NAME}, v87
global_load_dword v{88+k}, v87, s[38:39]""")
    a(f"""KM_p_no0:
s_waitcnt lgkmcnt(0)""")
    ST('n')
    bar(a, 'P', 'g1')
    ST('n')
    a(f"""v_mov_b32 v62, {NON}
ds_read_b32 v61, v62
s_mul_i32 s23, s47, 5120
s_add_u32 s23, s23, {MODG}
s_add_u32 s21, s23, 4096
v_lshlrev_b32 v62, 4, v1
s_mul_i32 s24, s47, 2560
s_add_u32 s24, s24, {PB1}
v_lshlrev_b32 v63, 3, v1
v_add_u32 v63, s24, v63
s_lshl_b32 s25, s2, 7
s_add_u32 s25, s25, {GFL}
s_lshl_b32 s26, s47, 14
s_add_u32 s26, s26, {GFL}
s_add_u32 s27, s26, 8192
v_lshlrev_b32 v58, 7, v1
s_waitcnt lgkmcnt(0)
s_cmp_lg_u32 s47, 0
s_cbranch_scc1 KM_p_nf
s_mov_b64 exec, 1
buffer_store_dword v61, v60, s[12:15], s25 offen sc1
s_mov_b64 exec, -1
KM_p_nf:""")
    ld = "\n".join([f"buffer_load_dwordx4 {Q(8+4*q)}, v62, s[12:15], {'s23' if q < 4 else 's21'} offen offset:{1024*(q % 4)} sc1" for q in range(5)])
    cm = "v_cmp_ne_u32 vcc, v9, v61\n" + "\n".join([f"v_cmp_ne_u32 s[38:39], v{r}, v61\ns_or_b64 vcc, vcc, s[38:39]" for r in range(11, 28, 2)])
    spin(a, 'KM_pg', ld, cm, slp=OPT.get('gs', 4))
    for q in range(5): a(f"v_mov_b32 v{9+4*q}, v{10+4*q}\nds_write_b64 v63, {P(8+4*q)} offset:{512*q}")
    a("s_waitcnt lgkmcnt(0)")
    ST('p')
    a("s_barrier")
    spin(a, 'KM_A_p', "buffer_load_dword v11, v58, s[12:15], s26 offen sc1\nbuffer_load_dword v12, v58, s[12:15], s27 offen sc1", "v_cmp_ne_u32 vcc, v11, v61\nv_cmp_ne_u32 s[38:39], v12, v61\ns_or_b64 vcc, vcc, s[38:39]")
    ST('p')
    a("s_branch KM_p_ag2")
    a(f"""KM_p_wp:
s_sub_u32 s21, s47, 2""")
    def yfpre():
        a('s_sub_u32 s40, s47, 2')
        task_ids(a, 40)
        a(f"""s_cmp_gt_u32 s28, 320
s_cbranch_scc1 KM_p_nyf
s_lshl_b32 s28, s28, 13
s_add_u32 s28, s28, {YF}
s_add_u32 s29, s28, 4096
v_mov_b32 v64, -1
v_mov_b32 v65, -1
v_mov_b32 v66, -1
v_mov_b32 v67, -1""")
        for q in range(8): a(f"buffer_store_dwordx4 {Q(64)}, v59, s[12:15], {'s28' if q < 4 else 's29'} offen offset:{1024*(q % 4)} sc1")
        a("KM_p_nyf:")
    if OPT.get('yp', '0') == '0': yfpre()
    a(f"""s_mul_i32 s21, s21, 176
s_add_u32 s21, s21, s53
s_cmp_lt_u32 s2, 80
s_cbranch_scc1 KM_p_nowp""")
    TOUCH = f"""s_mov_b64 s[44:45], exec
s_mov_b64 exec, -1
s_waitcnt lgkmcnt(0)
s_cmp_eq_u32 s47, 2
s_cselect_b32 s16, s56, s58
s_cselect_b32 s17, s57, s59
s_mov_b32 s18, {640*3072}
s_mov_b32 s19, 0x00020000
s_mul_i32 s40, s2, 7680
v_and_b32 v84, 63, v0
v_min_u32 v84, 59, v84
v_lshlrev_b32 v84, 7, v84
buffer_load_dword v85, v84, s[16:19], s40 offen
s_mov_b64 exec, s[44:45]"""
    st_save = gen.STAMPS; gen.STAMPS = False
    tmp = Asm2(); tmp.st = a.st
    if 'wp1' in OPT: wprep(tmp, 21, 24, 26, 12, 'sc1')
    else:
        tmp('s_lshl_b32 s45, s47, 13')
        wprep2(tmp, 21, 24, 26, 12, 'sc1', 's45')
    gen.STAMPS = st_save
    for ins in tmp.ins:
        if ins.kind == 'nop': continue
        if ins.text.strip() == 's_waitcnt vmcnt(0)':
            nsv = a.st.n; a.st.n = 1; ST('n'); a("s_barrier"); ST('n'); a.st.n = nsv; a("s_waitcnt vmcnt(0)"); continue
        a(ins.text)
    a("s_branch KM_p_wd\nKM_p_nowp:\ns_barrier\nKM_p_wd:\nv_and_b32 v2, 63, v0\ns_waitcnt lgkmcnt(0)")
    if OPT.get('yp', '0') == 'g1': yfpre()
    bar(a, 'P', 'g2')
    a("KM_p_ag2:")
    a(f"""v_mov_b32 v62, {NON}
ds_read_b32 v61, v62
v_and_b32 v2, 63, v0
s_waitcnt vmcnt(0) lgkmcnt(0)
s_cmp_lt_u32 s47, 2
s_cselect_b32 s8, s56, s58
s_cselect_b32 s9, s57, s59
s_mov_b32 s10, {640*3072}
s_mov_b32 s11, 0x00020000""")
    bar(a, 'P', 'k1a')
    a("""s_or_b32 s23, s2, s47
s_cmp_lg_u32 s23, 0
s_cbranch_scc1 KM_p_nr
s_mov_b64 exec, 1
buffer_store_dword v60, v60, s[16:19], 0 offen sc1
s_mov_b64 exec, -1
KM_p_nr:""")
    srd(a, 16, 4, 1536*1280)
    a(f"""s_cmp_ge_u32 s54, 384
s_cbranch_scc1 KM_p_nwd
s_lshr_b32 s24, s54, 3
s_and_b32 s25, s54, 7
s_mul_i32 s55, s25, {1536*160}
s_mul_i32 s21, s24, 5120
s_add_u32 s55, s55, s21
s_add_u32 s55, s55, {WDT}
s_mul_i32 s24, s24, {32*1280}
s_mul_i32 s25, s25, 160
s_add_u32 s24, s24, s25""")
    for q in range(5):
        a(f"""v_add_u32 v12, {64*q}, v2
v_mul_u32_u24 v14, 52429, v12
v_lshrrev_b32 v14, 19, v14
v_mul_u32_u24 v15, 10, v14
v_sub_u32 v15, v12, v15
v_and_b32 v36, 3, v14
v_bfe_u32 v37, v14, 2, 2
v_lshl_add_u32 v36, v37, 3, v36
v_lshrrev_b32 v37, 4, v14
v_lshl_add_u32 v36, v37, 2, v36
v_mul_u32_u24 v36, 1280, v36
v_lshl_add_u32 v36, v15, 4, v36
buffer_load_dwordx4 {Q(64+4*q)}, v36, s[16:19], s24 offen""")
    a("KM_p_nwd:")
    def touch():
        a("s_cmp_lt_u32 s47, 2\ns_cbranch_scc1 KM_p_nt")
        a(TOUCH)
        a("KM_p_nt:")
    if OPT.get('tp', 'k1a') == 'k1a': touch()
    for q in range(3):
        a(f"""v_add_u32 v10, {64*q}, v2
v_mul_u32_u24 v11, 43691, v10
v_lshrrev_b32 v11, 19, v11
v_mul_u32_u24 v12, 12, v11
v_sub_u32 v12, v10, v12
v_lshrrev_b32 v13, 2, v11
v_and_b32 v13, 2, v13
v_xor_b32 v12, v12, v13
v_mul_u32_u24 v11, 3072, v11
v_lshl_add_u32 v11, v12, 4, v11
v_subrev_u32 v{50+q}, {1024*q}, v11""")
    for q in range(4):
        a(f"""v_lshrrev_b32 v10, 4, v2
v_add_u32 v10, {4*q}, v10
v_xor_b32 v10, v10, v2
v_and_b32 v10, 7, v10
v_lshrrev_b32 v11, 3, v2
v_mul_u32_u24 v11, 1280, v11
v_lshl_add_u32 v11, v10, 4, v11
v_add_u32 v{53+q}, {q*(10240-1024)}, v11""")
    a(f"""
s_and_b32 s26, s47, 1
s_mul_i32 s27, s26, {16*3072}
s_mul_i32 s28, s51, 192
s_add_u32 s27, s27, s28
s_mul_i32 s28, s47, 3072
s_lshl_b32 s29, s50, 2
s_add_u32 s29, s29, s47
s_mul_i32 s29, s29, 40960
s_add_u32 s29, s29, {H2F}
s_lshl_b32 s30, s47, 12
v_and_b32 v58, 15, v2
v_lshlrev_b32 v58, 7, v58
v_and_b32 v57, 3, v2
v_lshlrev_b32 v57, 7, v57
v_lshlrev_b32 v59, 4, v2
v_lshlrev_b32 v63, 7, v2""")
    def iw(s):
        a(f"s_add_u32 m0, s28, {(s % 8)*WS_}")
        for q in range(3): a(f"buffer_load_dwordx4 v{50+q}, s[8:11], s27 offen offset:{1024*q} sc1 lds")
        a(f"s_add_u32 s27, s27, {32*3072}")
    def ih(d):
        a(f"s_add_u32 m0, s30, {HB + (d % 4)*HS}")
        for q in range(4): a(f"buffer_load_dwordx4 v{53+q}, s[12:15], s33 offen offset:{1024*q} sc1 lds")
        a("s_add_u32 s33, s33, 128")
    bar(a, 'P', 'k2a')
    a("s_cmp_ge_u32 s54, 384\ns_cbranch_scc1 KM_p_nwd2\ns_add_u32 s54, s55, 4096\ns_waitcnt vmcnt(0)")
    for q in range(5): a(f"buffer_store_dwordx4 {Q(64+4*q)}, v59, s[12:15], {'s55' if q < 4 else 's54'} offen offset:{1024*(q % 4)} sc1")
    a("KM_p_nwd2:")
    a(f"""s_lshl_b32 s23, s47, 11
s_add_u32 m0, s23, {PB}
s_add_u32 s23, s23, 5120
buffer_load_dwordx4 v59, s[12:15], s23 offen sc1 lds
buffer_load_dwordx4 v59, s[12:15], s23 offen offset:1024 sc1 lds""")
    SCH = [int(c) for c in OPT.get('sch', '400004')]
    wn = [0]
    def iwn(k):
        for _ in range(SCH[k]): iw(wn[0]); wn[0] += 1
    iwn(0)
    a(f"s_waitcnt vmcnt({3*SCH[0]})")
    bar(a, 'P', 'k2b')
    iwn(1)
    if OPT.get('tp', 'k1a') == 'k2b': touch()
    a(f"""s_lshl_b32 s23, s50, 3
s_lshl_b32 s24, s47, 1
s_add_u32 s23, s23, s24
s_mul_i32 s23, s23, 49152
s_mul_i32 s24, s51, 3072
s_add_u32 s23, s23, s24
s_add_u32 s23, s23, {HIDF}
s_add_u32 s24, s23, 49152
v_mov_b32 v88, -1
v_mov_b32 v89, -1
v_mov_b32 v90, -1
v_mov_b32 v91, -1""")
    def hpre():
        if 'nohs' in OPT: return
        for q in range(6): a(f"buffer_store_dwordx4 {Q(88)}, v59, s[12:15], {'s23' if q < 3 else 's24'} offen offset:{1024*(q % 3)} sc1")
    if OPT.get('hp', 'b1') == 'k2b': hpre()
    bar(a, 'P', 'b1')
    if OPT.get('tp', 'k1a') == 'b1': touch()
    if OPT.get('hp', 'b1') == 'b1': hpre()
    iwn(2)
    bar(a, 'P', 'b2')
    iwn(3)
    bar(a, 'P', 'b3')
    iwn(4)
    if OPT.get('hp', 'b1') == 'b3': hpre()
    a(f"""s_lshl_b32 s48, s50, 4
s_add_u32 s48, s48, s51
s_lshl_b32 s48, s48, 7
s_add_u32 s48, s48, {FLG}
s_lshl_b32 s23, s50, 2
s_add_u32 s23, s23, s47
s_lshl_b32 s23, s23, 9
s_add_u32 s23, s23, {FLG}
s_and_b32 s24, s51, 7
s_mul_i32 s31, s47, 2560
s_mul_i32 s32, s24, {1536*160}
s_add_u32 s32, s32, s31
s_add_u32 s32, s32, {WDT}
s_waitcnt vmcnt(0)""")
    bar(a, 'P', 'd1')
    a(f"""s_cmp_lg_u32 s47, 0
s_cbranch_scc1 KM_na1
s_mov_b64 exec, 1
buffer_store_dword v61, v60, s[12:15], s48 offen sc1
s_mov_b64 exec, -1
KM_na1:""")
    cnt = []
    def iw2(s):
        a(f"""s_add_u32 m0, s31, {WPOS(s)*DW}
buffer_load_dwordx4 v59, s[12:15], s32 offen sc1 lds
buffer_load_dwordx4 v59, s[12:15], s32 offen offset:1024 sc1 lds
s_mov_b32 exec_hi, 0
buffer_load_dwordx4 v59, s[12:15], s32 offen offset:2048 sc1 lds
s_mov_b32 exec_hi, -1
s_add_u32 s32, s32, 10240""")
    def grp(d):
        ih(d); n = 4
        if d >= 4:
            iw(2*d); iw(2*d+1); n += 6
        cnt.append(n)
    a(f"v_add_u32 v62, s30, v59\nv_add_u32 v62, {HB}, v62")
    def hl(d, q): return f"buffer_load_dwordx4 {Q(96+16*d+4*q)}, v{53+q}, s[12:15], s29 offen offset:{1024*q+128*d} sc1"
    for d in range(4):
        for q in range(4): a(hl(d, q))
    iwn(5); XW = 3*SCH[5]
    assert wn[0] == 8
    nw2 = 0
    def hchk(d):
        R = 96+16*d
        a(f"s_mov_b32 s46, 0x8000\ns_waitcnt vmcnt({4*(3-d)+XW})\ns_branch KM_hc{d}\nKM_hq{d}:\ns_sleep 2")
        for q in range(4): a(hl(d, q))
        a(f"s_waitcnt vmcnt(0)\nKM_hc{d}:")
        a(f"v_max3_u32 v12, v{R}, v{R+1}, v{R+2}")
        for k in range(3, 15, 2): a(f"v_max3_u32 v12, v12, v{R+k}, v{R+k+1}")
        a(f"""v_max_u32 v12, v12, v{R+15}
v_cmp_eq_u32 vcc, -1, v12
s_nop 1
s_and_b64 exec, exec, vcc
s_cbranch_scc0 KM_ho{d}
s_sub_u32 s46, s46, 1
s_cmp_lg_u32 s46, 0
s_cbranch_scc1 KM_hq{d}
KM_ho{d}:
s_mov_b64 exec, -1""")
        for q in range(4): a(f"ds_write_b128 v62, {Q(R+4*q)} offset:{d*HS+1024*q}")
    for d in range(10):
        if d == 0:
            hchk(0); a("s_waitcnt lgkmcnt(0)"); ST('p')
        elif d == 1:
            hchk(1); a("s_waitcnt lgkmcnt(0)")
        elif d >= 4:
            a(f"s_waitcnt vmcnt({sum(cnt[d-3:])})")
        bar(a, 'P', f'B{d}')
        if d == 1:
            iw(8); iw(9)
            a("s_waitcnt vmcnt(6)")
            hchk2 = True
            for dd in (2, 3):
                R = 96+16*dd
                a(f"s_mov_b32 s46, 0x8000\ns_branch KM_hc{dd}\nKM_hq{dd}:\ns_sleep 2")
                for q in range(4): a(hl(dd, q))
                a(f"s_waitcnt vmcnt(0)\nKM_hc{dd}:")
                a(f"v_max3_u32 v12, v{R}, v{R+1}, v{R+2}")
                for k in range(3, 15, 2): a(f"v_max3_u32 v12, v12, v{R+k}, v{R+k+1}")
                a(f"""v_max_u32 v12, v12, v{R+15}
v_cmp_eq_u32 vcc, -1, v12
s_nop 1
s_and_b64 exec, exec, vcc
s_cbranch_scc0 KM_ho{dd}
s_sub_u32 s46, s46, 1
s_cmp_lg_u32 s46, 0
s_cbranch_scc1 KM_hq{dd}
KM_ho{dd}:
s_mov_b64 exec, -1""")
                for q in range(4): a(f"ds_write_b128 v62, {Q(R+4*q)} offset:{dd*HS+1024*q}")
            a("s_waitcnt lgkmcnt(0)\ns_add_u32 s33, s29, 512")
        elif d == 2:
            spin(a, 'KM_p1', "buffer_load_dword v11, v57, s[12:15], s23 offen sc1", "v_cmp_ne_u32 vcc, v11, v61")
            ih(4); cnt.append(4)
            grp(5)
        elif d >= 3 and d+3 < 10: grp(d+3)
        if d >= 7:
            for _ in range(EARLY[d]): iw2(nw2); nw2 += 1
            cnt.append(3*EARLY[d])
    bar(a, 'P', 'B10')
    while nw2 < NWD: iw2(nw2); nw2 += 1
    if 'nohs' in OPT:
        a(f"""s_lshl_b32 s23, s50, 11
s_add_u32 s23, s23, {FLG + 32768}
s_add_u32 s48, s48, 32768""")
        bar(a, 'P', 'd2')
        a(f"""s_cmp_eq_u32 s47, 1
s_cbranch_scc0 KM_nb2
s_mov_b64 exec, 1
buffer_store_dword v61, v60, s[12:15], s48 offen sc1
s_mov_b64 exec, -1
KM_nb2:
s_cmp_lg_u32 s47, 0
s_cbranch_scc1 KM_na2""")
        spin(a, 'KM_p2', "buffer_load_dword v11, v58, s[12:15], s23 offen sc1", "v_cmp_ne_u32 vcc, v11, v61")
        a("KM_na2:")
    a("s_waitcnt vmcnt(0)")
    ST('p')
    bar(a, 'P', 'C0')
    pend = []
    for s in CB:
        need = [t for t in pend if t <= NEXTCB[s]]
        a(f"s_waitcnt vmcnt({3*(len(pend)-len(need))})")
        bar(a, 'P', f'C{s}')
        pend = [t for t in pend if t not in need]
        while nw2 < NS2 and nw2 - NWD <= s:
            iw2(nw2); pend.append(nw2); nw2 += 1
    a("@dump 12\nKM_end:\ns_endpgm")
    assert bar.seq['W'] == bar.seq['P'], (bar.seq['W'], bar.seq['P'])
    return kd_block(NAME, 168, 100)
if __name__ == '__main__':
    OPT = {}; out = 'mega.s'
    for x in sys.argv[1:]:
        if x.endswith('.s'): out = x
        elif x.startswith('st='): gen.STAMPS = True; OPT['st'] = x[3:]
        elif x.startswith('slp'): gen.SLP = int(x[3:])
        elif x.startswith('bk'): OPT['bk'] = int(x[2:])
        elif x.startswith('tp='): OPT['tp'] = x[3:]
        elif x.startswith('hp='): OPT['hp'] = x[3:]
        elif x.startswith('sch='): OPT['sch'] = x[4:]
        elif x.startswith('yp='): OPT['yp'] = x[3:]
        elif x.startswith('w0='): OPT['w0'] = x[3:]
        elif x.startswith('gd='): OPT['gd'] = int(x[3:])
        elif x.startswith('gs='): OPT['gs'] = int(x[3:])
        elif x.startswith('e0='): OPT['e0'] = int(x[3:])
        elif x.startswith('nb='): OPT['nb'] = int(x[3:])
        elif x.startswith('dx='): OPT['dx'] = int(x[3:])
        elif x.startswith('dy='): OPT['dy'] = int(x[3:])
        elif x.startswith('ncp='): OPT['ncp'] = int(x[4:])
        elif x.startswith('wb='): OPT['wb'] = int(x[3:]) << 20
        elif x.startswith('wp='): OPT['wp'] = x[3:]
        else: OPT[x] = 1
    a = Asm2()
    kd = km(a, OPT)
    hdr = open('adaLN_cond__spectral_gfnet__glu_gated_geglu__prompt.s.ref').read().split('\n')[:13]
    s = '\n'.join(hdr) + '\n; @launch grid=(256,1,1) block=(768,1,1) lds=163840\n'
    s += '.amdgcn_target "amdgcn-amd-amdhsa--gfx950"\n.text\n' + a.text() + '.section .rodata,"a"\n' + kd
    open(out, 'w').write(s)
```

```python
import sys, math
sys.path.insert(0,'work')
import gen
from gen import *
NAME = 'adaLN_cond__spectral_gfnet__glu_gated_geglu__prompt_kernel'
MODG = 0x4000
GFL = 0x20000
CNT = 0x8000
class Bar:
    def __init__(self): self.seq = {}
    def __call__(self, a, role, name):
        self.seq.setdefault(role, []).append(name); a("s_barrier")
def spin(a, name, load, cmp, mask=True, slp=None):
    a(f"s_mov_b32 s46, 0x8000\n{name}:")
    a(load); a("s_waitcnt vmcnt(0)"); a(cmp)
    a(f"""s_nop 1
s_and_b64 exec, exec, vcc
s_cbranch_scc0 {name}_ok
s_sleep {gen.SLP if slp is None else slp}
s_sub_u32 s46, s46, 1
s_cmp_lg_u32 s46, 0
s_cbranch_scc1 {name}
{name}_ok:
s_mov_b64 exec, -1""")

def addr_xf(a):
    a(f"""s_lshl_b32 s40, s22, 5
v_lshrrev_b32 v22, 1, v6
v_lshl_add_u32 v22, v22, 4, v5
v_add_u32 v22, s40, v22
v_add_u32 v23, 256, v8
v_and_b32 v24, 1, v6
v_lshlrev_b32 v24, 7, v24""")
    for src_, dst in ((22, 11), (23, 13)):
        a(f"""v_lshrrev_b32 v25, 3, v{src_}
v_lshl_add_u32 v25, v25, 16, v24
v_and_b32 v26, 7, v{src_}
v_lshl_add_u32 v{dst}, v26, 4, v25""")
def addr_yf(a):
    a(f"""s_lshl_b32 s40, s22, 5
v_lshrrev_b32 v22, 1, v6
v_lshl_add_u32 v22, v22, 4, v5
v_add_u32 v22, s40, v22
v_add_u32 v23, 256, v8
v_and_b32 v24, 1, v6
v_lshlrev_b32 v24, 8, v24
v_lshl_add_u32 v11, v22, 13, v24
v_lshl_add_u32 v13, v23, 13, v24""")
def gather2(a, name, ld0, ld1, r0, r1, t, pre=False, dly=0):
    a(f"""s_mov_b32 s46, 0x8000
s_waitcnt vmcnt(0)
{f's_branch {name}_chk' if pre else ''}
{name}:
{ld0}
{ld1}
{name}_chk:
s_waitcnt vmcnt(0)
v_max3_u32 v{t}, v{r0}, v{r0+1}, v{r0+2}
v_max3_u32 v{t+1}, v{r1}, v{r1+1}, v{r1+2}
v_max3_u32 v{t}, v{t}, v{r0+3}, v{r1+3}
v_max_u32 v{t}, v{t}, v{t+1}
v_cmp_eq_u32 vcc, -1, v{t}
s_nop 1
s_and_b64 exec, exec, vcc
s_cbranch_scc0 {name}_ok
s_sleep 2
s_sub_u32 s46, s46, 1
s_cmp_lg_u32 s46, 0
s_cbranch_scc1 {name}
{name}_ok:
s_mov_b64 exec, -1""")
def task_ids(a, slot):
    a(f"""s_lshl_b32 s28, s{slot}, 2
s_lshr_b32 s29, s2, 6
s_add_u32 s28, s28, s29
s_lshl_b32 s28, s28, 3
s_and_b32 s29, s2, 7
s_add_u32 s28, s28, s29
s_lshl_b32 s41, s28, 16
s_lshl_b32 s28, s28, 3
s_bfe_u32 s29, s2, 0x30003
s_add_u32 s28, s28, s29
s_lshl_b32 s29, s29, 4
s_add_u32 s41, s41, s29""")
def km(a, OPT):
    bar = Bar()
    a(f".globl {NAME}\n.p2align 8\n.type {NAME},@function\n{NAME}:")
    a.st = Stamper(a, 3)
    ST = lambda tag: a("@stamp") if tag in OPT.get('st', '') else None
    R2 = 98304
    GP = R2; NON = R2 + 1536; PB1 = R2 + 2048; Z1 = R2 + 8192; K2B = R2 + 24576
    TB = R2; ZB = R2 + 12288; ZR = 528; ZC = 8*ZR; PB = R2 + 57344
    NST = 20; WS_ = 12288; HB = R2; HS = 16384
    NS2 = 24; DW = 10240; NWD = 16
    ORDER = [5, 6, 13,  7, 8, 14, 15,  0, 1, 9, 10,  2, 3, 4, 11, 12]
    EARLY = {7: 3, 8: 4, 9: 4} if 'e0' not in OPT else ({7: 0, 8: 0, 9: 0} if OPT['e0'] == 0 else {7: 0, 8: 4, 9: 6})
    WPOS = lambda s: ORDER[s % NWD]
    CB = [3, 7, 15, 19]; NEXTCB = {3: 7, 7: 15, 15: 19, 19: 23}
    XR = 114
    a(f"""
s_cmp_ge_u32 s2, 256
s_cbranch_scc1 KM_end
@stamp
s_load_dwordx2 s[4:5], s[0:1], 0
s_load_dwordx2 s[6:7], s[0:1], 88
s_load_dwordx4 s[56:59], s[0:1], 56
s_load_dwordx4 s[24:27], s[0:1], 8
s_load_dwordx2 s[60:61], s[0:1], 80
s_and_b32 s50, s2, 7
s_lshr_b32 s51, s2, 3
s_mul_i32 s52, s50, 10
s_add_u32 s52, s52, s51
s_mul_i32 s21, s50, 20
s_add_u32 s21, s21, s51
s_add_u32 s21, s21, 70
s_cmp_lt_u32 s2, 80
s_cselect_b32 s52, s52, s21
s_lshl_b32 s50, s50, 1
s_lshr_b32 s21, s51, 4
s_add_u32 s50, s50, s21
s_and_b32 s51, s51, 15
v_lshrrev_b32 v4, 6, v0
v_and_b32 v1, 63, v0
v_readfirstlane_b32 s22, v4
s_lshl_b32 s3, s50, 1
s_lshr_b32 s21, s51, 3
s_add_u32 s3, s3, s21
s_and_b32 s20, s51, 7
s_cmp_ge_u32 s22, 8
s_cbranch_scc1 KM_prod
v_and_b32 v3, 31, v0
v_lshlrev_b32 v2, 3, v3
v_bfe_u32 v4, v0, 5, 1
v_lshl_add_u32 v2, v4, 8, v2
v_lshlrev_b32 v3, 2, v3
v_lshl_add_u32 v3, v4, 1, v3
s_lshl_b32 s21, s20, 3
s_add_u32 s21, s21, s22
s_lshl_b32 s21, s21, 5
s_add_u32 s21, s21, s3
s_mul_i32 s21, s21, 1280
s_lshl_b32 s23, s52, 5
v_lshrrev_b32 v144, 1, v0
v_and_b32 v145, 1, v0
v_mul_u32_u24 v146, 7680, v144
v_lshl_add_u32 v146, v145, 4, v146
v_add_u32 v146, s23, v146
v_lshlrev_b32 v147, 1, v144
s_cmp_lt_u32 s2, 240
s_cselect_b32 s49, 5, 0
s_waitcnt lgkmcnt(0)
""")
    if OPT.get('wb'): a(f"s_add_u32 s6, s6, {OPT['wb']}\ns_addc_u32 s7, s7, 0")
    srd(a, 12, 6, WS_SIZE)
    srd(a, 8, 56, 1280)
    srd(a, 16, 58, 640*3840*2)
    NR = 4
    def gloads(tag, cond):
        a(f"s_cmp_ge_u32 s22, s49\ns_cbranch_scc1 KM_nog1{tag}")
        for i in range(NR): a(f"buffer_load_short_d16_hi v{136+i}, v147, s[8:11], 0 offen offset:{320*i}")
        a("s_mov_b32 s23, 0")
        for i in range(NR):
            a(f"buffer_load_dwordx4 {Q(120+4*i)}, v146, s[16:19], s23 offen")
            if i < NR-1: a(f"s_add_u32 s23, s23, {160*7680}")
        a(f"KM_nog1{tag}:")
    srd(a, 24, 60, 256)
    a("""v_mov_b32 v20, 0
s_lshr_b32 s23, s2, 3
s_or_b32 s23, s23, s22
s_cmp_lg_u32 s23, 0
s_cbranch_scc1 KM_w_nn
s_memrealtime s[38:39]
s_waitcnt lgkmcnt(0)
s_or_b32 s38, s38, 1
v_mov_b32 v22, s38
v_mov_b32 v23, 0
s_mov_b64 exec, 1
buffer_atomic_cmpswap v[22:23], v20, s[24:27], 0 offen sc1
s_mov_b64 exec, -1
KM_w_nn:""")
    srd(a, 24, 4, 2048*1280)
    for k in range(3): a(f"buffer_load_dwordx2 {P(XR+2*k)}, v2, s[24:27], s21 offen offset:{512*k}")
    gloads('a', 0)
    a("v_and_b32 v5, 15, v0\nv_bfe_u32 v6, v0, 4, 2")
    col_slots(a, 22, 5, 6, 8, 22)
    addr_xf(a)
    a(f"""s_lshl_b32 s38, s3, 11
s_lshl_b32 s21, s20, 8
s_add_u32 s38, s38, s21
s_add_u32 s38, s38, {XF}
v_mov_b32 v28, -1
v_mov_b32 v29, -1
v_mov_b32 v30, -1
v_mov_b32 v31, -1
buffer_store_dwordx4 {Q(28)}, v11, s[12:15], s38 offen sc1
s_mov_b32 exec_lo, 0x00ff00ff
s_mov_b32 exec_hi, 0
buffer_store_dwordx4 {Q(28)}, v13, s[12:15], s38 offen sc1
s_mov_b64 exec, -1
s_lshl_b32 s38, s20, 3
s_add_u32 s38, s38, s22
s_lshl_b32 s21, s3, 6
s_add_u32 s38, s38, s21
s_mul_i32 s38, s38, 1280
s_add_u32 s38, s38, {H2F}
buffer_store_dwordx2 {P(28)}, v2, s[12:15], s38 offen sc1""")
    w5_consts(a, 88, 22, -1.0)
    a(f"""
v_cvt_f32_u32 v22, v8
v_mul_f32 v22, {fh(1/128)}, v22
v_cvt_f32_u32 v23, v6
v_mul_f32 v23, {fh(8.0)}, v23
v_and_b32 v24, {fh(0.25)}, v9
v_fma_f32 v23, v23, v22, -v24
v_mul_f32 v24, {fh(25.0)}, v22
""")
    for t in range(4):
        for jj in range(4):
            a(f"""v_cos_f32 v25, v23
v_add_f32 v23, v23, v22
v_cos_f32 v26, v23
v_add_f32 v23, v23, v{24 if jj == 3 else 22}
v_cvt_pk_bf16_f32 v{96+4*t+jj}, v25, v26""")
    a(f"""
v_lshrrev_b32 v22, 3, v3
v_xor_b32 v22, s22, v22
v_lshlrev_b32 v22, 4, v22
v_and_b32 v23, 7, v3
v_lshl_add_u32 v22, v23, 1, v22
s_lshl_b32 s23, s22, 8
s_add_u32 s23, s23, {Z1}
v_add_u32 v14, s23, v22
v_xor_b32 v15, {2048+128}, v14
v_lshlrev_b32 v7, 2, v3
v_add_u32 v7, {PB1}, v7
v_xor_b32 v22, v6, v5
""")
    for t in range(4):
        a(f"""v_xor_b32 v23, {4*t}, v22
v_lshlrev_b32 v23, 4, v23
v_lshl_add_u32 v23, v5, 8, v23
v_add_u32 v{16+t}, {Z1}, v23""")
    r5_sconsts(a)
    srd(a, 24, 60, 256)
    a("s_cmp_lg_u32 s22, 7\ns_cbranch_scc1 KM_w_nl\nbuffer_load_dword v21, v20, s[24:27], 0 offen sc1\nKM_w_nl:")
    a("s_waitcnt vmcnt(11)\ns_cmp_lt_u32 s22, s49\ns_cbranch_scc1 KM_x0\ns_waitcnt vmcnt(3)\nKM_x0:")
    unpack_x(a, XR, 60)
    ln_rows(a, 60, 70)
    a(f"s_cmp_ge_u32 s22, s49\ns_cbranch_scc1 KM_nog2\ns_waitcnt vmcnt({NR+3})")
    C = 136; T = 140
    for i in range(NR): a(f"v_mul_f32 v{T+i}, {fh(-math.log2(math.e))}, v{C+i}")
    for i in range(NR): a(f"v_exp_f32 v{T+i}, v{T+i}")
    for i in range(NR): a(f"v_add_f32 v{T+i}, 1.0, v{T+i}")
    for i in range(NR): a(f"v_rcp_f32 v{T+i}, v{T+i}")
    for i in range(NR): a(f"v_mul_f32 v{C+i}, v{C+i}, v{T+i}")
    for i in range(NR): a(f"v_cvt_pk_bf16_f32 v{C+i}, v{C+i}, v{C+i}")
    for i in range(NR): a(f"v_and_b32 v{48+2*i}, 0xffff0000, v{C+i}")
    a(f"""v_lshrrev_b32 v22, 4, v0
v_lshlrev_b32 v23, 6, v22
v_lshl_add_u32 v23, v145, 5, v23
v_add_u32 v23, {GP}, v23""")
    for i in range(NR):
        a(f"s_waitcnt vmcnt({NR-1-i+3})")
        for j in range(4): a(f"v_lshlrev_b32 v{32+2*j}, 16, v{120+4*i+j}\nv_and_b32 v{33+2*j}, 0xffff0000, v{120+4*i+j}")
        for j in range(4):
            if i == 0: a(f"v_pk_mul_f32 {P(40+2*j)}, {P(32+2*j)}, {P(48)} op_sel_hi:[1,0]")
            else: a(f"v_pk_fma_f32 {P(40+2*j)}, {P(32+2*j)}, {P(48+2*i)}, {P(40+2*j)} op_sel_hi:[1,0,1]")
    for mode in ('quad_perm:[2,3,0,1]', 'row_ror:4', 'row_ror:8'):
        for j in range(8): a(f"v_add_f32_dpp v{40+j}, v{40+j}, v{40+j} {mode} {DPP}")
    a(f"""v_cmp_gt_u32 vcc, 2, v5
s_and_saveexec_b64 s[38:39], vcc
ds_write_b128 v23, {Q(40)}
ds_write_b128 v23, {Q(44)} offset:16
s_mov_b64 exec, s[38:39]
KM_nog2:
s_waitcnt vmcnt(0)
s_cmp_lg_u32 s22, 7
s_cbranch_scc1 KM_w_nw
v_cmp_ne_u32 vcc, 0, v21
s_nop 1
s_cmp_lg_u64 vcc, 0
s_cbranch_scc1 KM_wn_ok""")
    spin(a, 'KM_wn', "buffer_load_dword v21, v20, s[24:27], 0 offen sc1", "v_cmp_eq_u32 vcc, 0, v21")
    a(f"""v_mov_b32 v22, {NON}
ds_write_b32 v22, v21
KM_w_nw:
s_waitcnt lgkmcnt(0)""")
    ST('a')
    bar(a, 'W', 'g1')
    a(f"""v_mov_b32 v22, {NON}
ds_read_b32 v21, v22
s_cmp_lg_u32 s22, 0
s_cbranch_scc1 KM_nog3
s_cmp_eq_u32 s49, 0
s_cbranch_scc1 KM_nog3
v_mul_u32_u24 v23, 320, v6
v_lshl_add_u32 v23, v5, 2, v23
v_add_u32 v23, {GP}, v23
ds_read_b32 v40, v23
ds_read_b32 v41, v23 offset:64
ds_read_b32 v42, v23 offset:128
ds_read_b32 v43, v23 offset:192
ds_read_b32 v44, v23 offset:256
s_sub_u32 s23, s52, 40
s_cmp_lt_u32 s23, 40
s_cselect_b32 s21, 1.0, 0
s_sub_u32 s23, s52, 160
s_cmp_lt_u32 s23, 40
s_cselect_b32 s21, 1.0, s21
s_waitcnt lgkmcnt(0)
v_add_f32 v40, v40, v41
v_add_f32 v42, v42, v43
v_add_f32 v40, v40, v44
v_add_f32 v40, v40, v42
v_mov_b32 v41, v40
v_permlane16_swap_b32 v40, v41
v_add_f32 v40, v40, v41
v_mov_b32 v41, v40
v_permlane32_swap_b32 v40, v41
v_add_f32 v40, v40, v41
v_cvt_pk_bf16_f32 v40, v40, v40
v_and_b32 v40, 0xffff0000, v40
v_add_f32 v40, s21, v40
v_cvt_pk_bf16_f32 v40, v40, v40
v_and_b32 v40, 0xffff0000, v40
v_mov_b32 v41, v21
s_mov_b64 exec, 0xffff
s_cmp_lt_u32 s52, 80
s_cbranch_scc1 KM_gran
s_lshl_b32 s23, s52, 6
v_lshlrev_b32 v23, 2, v1
buffer_store_dword v40, v23, s[12:15], s23 offen sc1
s_branch KM_pub
KM_gran:
s_lshl_b32 s23, s52, 7
s_add_u32 s23, s23, {MODG}
v_lshlrev_b32 v23, 3, v1
buffer_store_dwordx2 {P(40)}, v23, s[12:15], s23 offen sc1
KM_pub:
s_mov_b64 exec, -1
KM_nog3:""")
    M = lambda t: 120+6*t
    N = lambda x, y: 144+6*(2*x+y)
    def gen_(R, cur, step, last, t0=12):
        for hh in range(2):
            a(f"""v_cos_f32 v{t0}, v{cur}
v_sin_f32 v{t0+1}, v{cur}
v_add_f32 v{cur}, v{cur}, v{step}
v_cos_f32 v{t0+2}, v{cur}
v_sin_f32 v{t0+3}, v{cur}
v_add_f32 v{cur}, v{cur}, v{last if hh else step}
v_cvt_pk_bf16_f32 v{R+2+hh}, v{t0}, v{t0+2}
v_cvt_pk_bf16_f32 v{R+hh}, -v{t0+1}, -v{t0+3}
v_cvt_pk_bf16_f32 v{R+4+hh}, v{t0+1}, v{t0+3}""")
    a(f"""v_bfe_u32 v46, v0, 6, 2
v_lshl_add_u32 v46, v46, 4, v5
v_cvt_f32_u32 v46, v46
v_cvt_f32_u32 v47, v6
v_cvt_f32_u32 v48, v5
v_mul_f32 v47, 4.0, v47
v_mul_f32 v49, {fh(1/64)}, v46
v_mul_f32 v50, v47, v49
v_mul_f32 v51, {fh(13.0)}, v49""")
    for t in range(4): gen_(M(t), 50, 49, 51, 52)
    for x in range(2):
        a(f"v_add_f32 v49, {fh(16.0*x)}, v48\nv_mul_f32 v49, {fh(1/32)}, v49\nv_mul_f32 v50, v47, v49\nv_mul_f32 v51, {fh(13.0)}, v49")
        for y in range(2): gen_(N(x, y), 50, 49, 51, 52)
    a(f"""s_lshl_b32 s23, s3, 11
s_lshl_b32 s21, s20, 8
s_add_u32 s23, s23, s21
s_add_u32 s23, s23, {XF}""")
    ST('a')
    bar(a, 'W', 'g2')
    ST('a')
    for j in range(5): a(f"ds_read_b64 {P(40+2*j)}, v7 offset:{2560+512*j}\nds_read_b64 {P(50+2*j)}, v7 offset:{512*j}")
    for j in range(5): a(f"v_pk_mul_f32 {P(28+2*j)}, {P(60+2*j)}, {P(70)} op_sel_hi:[1,0]")
    a("s_waitcnt lgkmcnt(0)")
    for j in range(5): a(f"v_pk_fma_f32 {P(28+2*j)}, {P(28+2*j)}, {P(40+2*j)}, {P(50+2*j)}")
    h = {(3*j) % 5: 28+2*j for j in range(5)}
    t1,t2,t3,t4 = 40,42,44,46; z0,p1,q1,p2,q2 = 48,50,52,54,56
    a(f"""v_pk_add_f32 {P(t1)}, {P(h[1])}, {P(h[4])}
v_pk_add_f32 {P(t2)}, {P(h[2])}, {P(h[3])}
v_pk_add_f32 {P(t3)}, {P(h[1])}, {P(h[4])} neg_lo:[0,1] neg_hi:[0,1]
v_pk_add_f32 {P(t4)}, {P(h[2])}, {P(h[3])} neg_lo:[0,1] neg_hi:[0,1]
v_pk_add_f32 {P(z0)}, {P(h[0])}, {P(t1)}
v_pk_fma_f32 {P(p1)}, s[30:31], {P(t1)}, {P(h[0])}
v_pk_fma_f32 {P(p2)}, s[32:33], {P(t1)}, {P(h[0])}
v_pk_mul_f32 {P(q1)}, s[34:35], {P(t3)}
v_pk_mul_f32 {P(q2)}, s[36:37], {P(t3)}
v_pk_add_f32 {P(z0)}, {P(z0)}, {P(t2)}
v_pk_fma_f32 {P(p1)}, s[32:33], {P(t2)}, {P(p1)}
v_pk_fma_f32 {P(p2)}, s[30:31], {P(t2)}, {P(p2)}
v_pk_fma_f32 {P(q1)}, s[36:37], {P(t4)}, {P(q1)}
v_pk_fma_f32 {P(q2)}, s[34:35], {P(t4)}, {P(q2)} neg_lo:[0,1,0] neg_hi:[0,1,0]
v_cvt_pk_bf16_f32 v22, v{z0}, v{z0+1}
ds_write_b32 v14, v22 offset:8192""")
    for k, (p, q) in enumerate(((p1, q1), (p2, q2))):
        c, s = 88+4*k, 90+4*k; r, im = 28+4*k, 30+4*k
        a(f"""v_pk_mul_f32 {P(r)}, {P(p)}, {P(c)}
v_pk_mul_f32 {P(im)}, {P(p)}, {P(s)}
v_pk_fma_f32 {P(r)}, {P(q)}, {P(s)}, {P(r)}
v_pk_fma_f32 {P(im)}, {P(q)}, {P(c)}, {P(im)} neg_lo:[1,0,0] neg_hi:[1,0,0]
v_cvt_pk_bf16_f32 v{23+2*k}, v{r}, v{r+1}
v_cvt_pk_bf16_f32 v{24+2*k}, v{im}, v{im+1}
ds_write_b32 v{14+k}, v{23+2*k}
ds_write_b32 v{14+k}, v{24+2*k} offset:4096""")
    a("s_waitcnt vmcnt(0) lgkmcnt(0)")
    bar(a, 'W', 'k1a')
    for T in range(3):
        for t in range(4): a(f"ds_read_b128 {Q(28+16*T+4*t)}, v{16+t} offset:{4096*T}")
    n = 12
    for T in range(3):
        for t in range(4):
            n -= 1
            a(f"s_waitcnt lgkmcnt({n})")
            a(f"v_mfma_f32_16x16x32_bf16 {Q(76+4*T)}, {Q(28+16*T+4*t)}, {Q(96+4*t)}, {'0' if t == 0 else Q(76+4*T)}")
    a(f"""v_and_b32 v22, 0x80008000, v9
v_and_b32 v23, v9, v12
v_bfi_b32 v24, v9, v22, v12
v_pk_mul_f32 {P(28)}, {P(76)}, {P(10)} op_sel_hi:[1,0]
v_pk_mul_f32 {P(30)}, {P(78)}, {P(10)} op_sel_hi:[1,0]
v_pk_mul_f32 {P(32)}, {P(80)}, {P(10)} op_sel_hi:[1,0]
v_pk_mul_f32 {P(34)}, {P(82)}, {P(10)} op_sel_hi:[1,0]""")
    for i in range(4):
        a(f"v_add_f32_dpp v{76+i}, v{32+i}, v{76+i} row_ror:8 {DPP}")
        a(f"v_subrev_f32_dpp v{80+i}, v{28+i}, v{80+i} row_ror:8 {DPP}")
    a(f"""v_cvt_pk_bf16_f32 v36, v76, v77
v_cvt_pk_bf16_f32 v37, v78, v79
v_cvt_pk_bf16_f32 v38, v80, v81
v_cvt_pk_bf16_f32 v39, v82, v83
v_cvt_pk_bf16_f32 v44, v84, v85
v_cvt_pk_bf16_f32 v45, v86, v87
v_xor_b32 v36, v36, v23
v_xor_b32 v37, v37, v23
v_xor_b32 v38, v38, v24
v_xor_b32 v39, v39, v24
v_xor_b32 v44, v44, v22
v_xor_b32 v45, v45, v22
v_cndmask_b32 v40, v36, v38, s[42:43]
v_cndmask_b32 v41, v37, v39, s[42:43]
v_cndmask_b32 v42, v38, v36, s[42:43]
v_cndmask_b32 v43, v39, v37, s[42:43]
buffer_store_dwordx4 {Q(40)}, v11, s[12:15], s23 offen sc1
v_mov_b32_dpp v46, v44 row_ror:8 {DPP}
v_mov_b32_dpp v47, v45 row_ror:8 {DPP}
s_mov_b32 exec_lo, 0x00ff00ff
s_mov_b32 exec_hi, 0
buffer_store_dwordx4 {Q(44)}, v13, s[12:15], s23 offen sc1
s_mov_b64 exec, -1""")
    ST('a')
    a(f"""s_lshr_b32 s26, s22, 2
s_and_b32 s27, s22, 3
""")
    task_ids(a, 26)
    a(f"""s_cmp_gt_u32 s28, 320
s_cbranch_scc1 KM_k2skip
s_cmp_eq_u32 s28, 320
s_cselect_b32 s41, {32*65536}, s41
s_lshr_b32 s21, s28, 5
s_lshl_b32 s21, s21, 3
s_and_b32 s23, s28, 7
s_add_u32 s21, s21, s23
s_sub_u32 s23, 128, s21
s_cmp_eq_u32 s21, 0
s_cselect_b32 s23, 64, s23
s_bitcmp1_b32 s28, 3
s_cselect_b32 s21, s23, s21
s_mul_i32 s21, s21, 5
s_bfe_u32 s23, s28, 0x10004
s_lshl_b32 s23, s23, 7
s_add_u32 s21, s21, s23
s_add_u32 s21, s21, 128
s_sub_u32 s23, s21, 640
s_min_u32 s21, s21, s23
s_sub_u32 s23, 640, s21
s_min_u32 s21, s21, s23
s_sub_u32 s23, s28, 256
s_mul_i32 s23, s23, 5
s_cmp_ge_u32 s28, 256
s_cselect_b32 s40, s23, s21
v_and_b32 v1, 15, v0
v_bfe_u32 v2, v0, 4, 2
v_bfe_u32 v3, v0, 6, 2
v_and_b32 v9, 63, v0
v_lshl_add_u32 v4, v3, 2, v2
v_xor_b32 v10, v4, v1
v_lshl_add_u32 v4, v4, 4, v10
v_lshlrev_b32 v4, 7, v4
v_lshrrev_b32 v5, 1, v1
v_and_b32 v6, 1, v1
v_lshl_add_u32 v5, v6, 3, v5
v_lshl_add_u32 v5, v2, 4, v5
v_lshlrev_b32 v5, 4, v5
v_lshl_add_u32 v5, v3, 11, v5
s_add_u32 s21, s41, {XF}
s_add_u32 s23, s21, 32768
s_lshl_b32 s29, s28, 13
s_lshl_b32 s48, s26, 14
s_add_u32 s48, s48, {K2B}
v_lshl_add_u32 v6, v3, 4, v1
v_cvt_f32_u32 v6, v6
v_cvt_f32_u32 v7, v2
v_cvt_f32_u32 v8, v1
v_mul_f32 v7, 4.0, v7
""")
    a(f"v_mul_f32 v16, {fh(-1/2048)}, v6\nv_mul_f32 v10, v7, v16\nv_mul_f32 v11, {fh(13.0)}, v16")
    for k in range(8):
        a(f"v_cos_f32 v{56+k}, v10\nv_sin_f32 v{64+k}, v10")
        if k < 7: a(f"v_add_f32 v10, v10, v{11 if k == 3 else 16}")
    if 'gx1' in OPT:
        for l in (f"buffer_load_dwordx4 {Q(24)}, v4, s[12:15], s21 offen sc1", f"buffer_load_dwordx4 {Q(28)}, v4, s[12:15], s23 offen sc1"): a(l)
    a(f"""s_lshl_b32 s24, s27, 4
v_cvt_f32_u32 v12, s24
v_add_f32 v12, v12, v7
s_mov_b32 s38, {fh(2.0/(2048*640))}
s_cmp_eq_u32 s28, 256
s_cselect_b32 s38, {fh(1.0/(2048*640))}, s38
s_cmp_eq_u32 s28, 320
s_cselect_b32 s38, {fh(1.0/(2048*640))}, s38
s_mov_b32 s39, s38""")
    for nt in range(2):
        a(f"v_add_f32 v16, {fh(16.0*nt)}, v8\nv_mul_f32 v16, {fh(1/2048)}, v16\nv_mul_f32 v10, v12, v16")
        for i in range(4):
            k = 4*nt+i
            a(f"v_cos_f32 v{72+k}, v10\nv_sin_f32 v{80+k}, v10")
            if i < 3: a("v_add_f32 v10, v10, v16")
    for k in range(8): a(f"v_pk_mul_f32 {P(72+2*k)}, s[38:39], {P(72+2*k)}")
    a(f"""v_xor_b32 v10, v2, v1
v_lshlrev_b32 v10, 4, v10
v_lshl_add_u32 v10, v1, 8, v10
v_add_u32 v10, s48, v10
v_xor_b32 v11, 64, v10
v_xor_b32 v12, 128, v10
v_xor_b32 v13, 192, v10
v_lshlrev_b32 v7, 4, v9
v_add_u32 v7, s48, v7
s_lshl_b32 s24, s27, 10
v_add_u32 v6, s24, v7
v_lshlrev_b32 v8, 4, v9
v_lshl_add_u32 v8, v3, 11, v8
s_add_u32 s24, s24, s48
s_lshl_b32 s25, s40, 13
s_add_u32 s25, s25, {WP}
s_mov_b32 m0, s24""")
    ST('b')
    gather2(a, 'KM_gx', f"buffer_load_dwordx4 {Q(24)}, v4, s[12:15], s21 offen sc1", f"buffer_load_dwordx4 {Q(28)}, v4, s[12:15], s23 offen sc1", 24, 28, 32, pre=('gx1' in OPT), dly=OPT.get('dx', 0))
    a(f"""ds_write_b128 v6, {Q(24)}
ds_write_b128 v6, {Q(28)} offset:4096
s_add_u32 s21, s29, {YF}
s_add_u32 s23, s21, 1024
s_waitcnt lgkmcnt(0)""")
    bar(a, 'W', 'k2a')
    ST('b')
    a(f"""buffer_load_dwordx4 v[48:51], v5, s[12:15], s25 offen sc1
buffer_load_dwordx4 v[52:55], v5, s[12:15], s25 offen offset:1024 sc1""")
    D = lambda mt, t: 16+16*mt+4*t
    for t in range(4):
        for mt in range(2): a(f"ds_read_b128 {Q(D(mt,t))}, v{10+t} offset:{4096*mt}")
    def mf(d, A, B, first): a(f"v_mfma_f32_16x16x32_bf16 {Q(d)}, {Q(A)}, {Q(B)}, {'0' if first else Q(d)}")
    a("s_and_b32 s24, s28, 0xffffffbf\ns_cmp_lg_u32 s24, 256\ns_cbranch_scc1 KM_k2gen\ns_waitcnt lgkmcnt(0)\ns_cmp_eq_u32 s28, 256\ns_cbranch_scc1 KM_k2z")
    for f in range(8): a(f"v_mov_b32 v{16+4*f}, v{18+4*f}\nv_mov_b32 v{17+4*f}, v{19+4*f}")
    a("KM_k2z:")
    for f in range(8): a(f"v_mov_b32 v{18+4*f}, 0\nv_mov_b32 v{19+4*f}, 0")
    a("s_nop 1\nKM_k2gen:")
    for t in range(4):
        a(f"s_waitcnt lgkmcnt({6-2*t})")
        for mt in range(2):
            mf(88+8*mt, D(mt,t), M(t)+2, t == 0)
            mf(92+8*mt, D(mt,t), M(t), t == 0)
    def tw_pack(tr, ti, B, swap):
        for blk in range(2):
            for hh in range(2):
                r = 88+8*blk+2*hh; i = r+4; c = tr+4*blk+2*hh; s = ti+4*blk+2*hh; t = 104+4*blk+2*hh
                a(f"""v_pk_mul_f32 {P(t)}, {P(i)}, {P(s)}
v_pk_mul_f32 {P(i)}, {P(i)}, {P(c)}
v_pk_fma_f32 {P(i)}, {P(r)}, {P(s)}, {P(i)}
v_pk_fma_f32 {P(r)}, {P(r)}, {P(c)}, {P(t)} neg_lo:[0,0,1] neg_hi:[0,0,1]""")
        for blk in range(2):
            for hh in range(2):
                r = 88+8*blk+2*hh
                a(f"v_cvt_pk_bf16_f32 v{B+4*blk+hh+(2 if swap else 0)}, v{r}, v{r+1}")
                a(f"v_cvt_pk_bf16_f32 v{B+4*blk+hh+(0 if swap else 2)}, v{r+4}, v{r+5}")
    tw_pack(56, 64, 16, False)
    for y in range(2):
        for x in range(2):
            mf(88+8*x, N(x,y)+2, 16+4*y, y == 0)
            mf(92+8*x, N(x,y), 16+4*y, y == 0)
    a("s_waitcnt vmcnt(0)")
    for k in range(8): a(f"v_lshlrev_b32 v{32+k}, 16, v{48+k}\nv_and_b32 v{40+k}, 0xffff0000, v{48+k}")
    tw_pack(32, 40, 24, True)
    for y in range(2):
        for x in range(2):
            mf(88+8*x, 24+4*y, N(x,y), y == 0)
            mf(92+8*x, 24+4*y, N(x,y)+2, y == 0)
    tw_pack(72, 80, 16, True)
    a(f"ds_write_b128 v6, {Q(16)} offset:8192\nds_write_b128 v6, {Q(20)} offset:12288\ns_waitcnt lgkmcnt(0)")
    bar(a, 'W', 'k2b')
    for t in range(4):
        for nt in range(2): a(f"ds_read_b128 {Q(D(nt,t))}, v7 offset:{8192+4096*nt+1024*t}")
    for t in range(4):
        a(f"s_waitcnt lgkmcnt({6-2*t})")
        for nt in range(2):
            mf(88+8*nt, M(t), D(nt,t), t == 0)
            mf(92+8*nt, M(t)+2, D(nt,t), t == 0)
    for nt in range(2):
        o = 48+4*nt; s = 88+8*nt
        for k in range(4): a(f"v_cvt_pk_bf16_f32 v{o+k}, v{s+2*k}, v{s+2*k+1}")
        a(f"buffer_store_dwordx4 {Q(o)}, v8, s[12:15], s{21+2*nt} offen sc1")
    ST('b')
    a("s_branch KM_k2done\nKM_k2skip:\ns_barrier\ns_barrier\nKM_k2done:")
    a(f"""v_and_b32 v1, 63, v0
v_and_b32 v3, 31, v0
v_lshlrev_b32 v2, 3, v3
v_bfe_u32 v4, v0, 5, 1
v_lshl_add_u32 v2, v4, 8, v2
v_lshlrev_b32 v3, 2, v3
v_lshl_add_u32 v3, v4, 1, v3
v_and_b32 v5, 15, v0
v_bfe_u32 v6, v0, 4, 2""")
    col_slots(a, 22, 5, 6, 8, 22)
    addr_yf(a)
    a(f"""
s_and_b32 s23, s3, 15
s_lshl_b32 s23, s23, 4
s_lshr_b32 s21, s3, 4
s_lshl_b32 s21, s21, 10
s_add_u32 s23, s23, s21
s_lshr_b32 s21, s20, 1
s_lshl_b32 s21, s21, 11
s_add_u32 s23, s23, s21
s_and_b32 s21, s20, 1
s_lshl_b32 s21, s21, 9
s_add_u32 s23, s23, s21
s_add_u32 s23, s23, {YF}
s_lshl_b32 s21, s20, 3
s_add_u32 s21, s21, s22
s_lshl_b32 s24, s3, 6
s_add_u32 s24, s24, s21
s_mul_i32 s24, s24, 1280
""")
    w5_consts(a, 88, 22, 1.0)
    a(f"""
s_lshl_b32 s27, s22, 4
v_add_u32 v22, s27, v5
v_cvt_f32_u32 v22, v22
v_mul_f32 v22, {fh(1/128)}, v22
v_and_b32 v23, 1, v6
v_cvt_f32_u32 v23, v23
v_mul_f32 v23, 4.0, v23
v_lshrrev_b32 v24, 1, v6
v_cvt_f32_u32 v24, v24
v_mul_f32 v24, {fh(0.25)}, v24
v_fma_f32 v23, v23, v22, v24
v_mul_f32 v24, {fh(5.0)}, v22
v_mul_f32 v27, {fh(64.0)}, v22
v_cmp_eq_u32 vcc, 2, v6
v_cndmask_b32 v27, v23, v27, vcc
""")
    for t in range(4):
        for jj in range(4):
            a(f"""v_cos_f32 v25, v{27 if (t, jj) == (0, 0) else 23}
v_add_f32 v23, v23, v22
v_cos_f32 v26, v23
v_add_f32 v23, v23, v{24 if jj & 1 else 22}
v_cvt_pk_bf16_f32 v{96+4*t+jj}, v25, v26""")
    a(f"""
v_lshlrev_b32 v14, 5, v5
v_lshl_add_u32 v14, v6, 3, v14
s_lshl_b32 s27, s22, 9
s_add_u32 s27, s27, {TB}
v_add_u32 v14, s27, v14
v_and_b32 v15, 4096, v9
v_add_u32 v15, v15, v14
v_xor_b32 v112, 4096, v15
v_lshlrev_b32 v113, 3, v1
v_add_u32 v113, {TB}, v113
v_and_b32 v22, 7, v5
v_mul_u32_u24 v22, {ZR}, v22
v_lshl_add_u32 v22, v6, 4, v22
s_lshl_b32 s27, s22, 6
s_add_u32 s27, s27, {ZB}
v_add_u32 v17, s27, v22
v_lshrrev_b32 v22, 3, v5
v_mul_u32_u24 v22, {2*ZC}, v22
v_add_u32 v16, v17, v22
v_lshlrev_b32 v4, 2, v3
s_mul_i32 s27, s22, {ZR}
s_add_u32 s27, s27, {ZB}
v_add_u32 v7, s27, v4
v_add_u32 v4, {PB}, v4
v_and_b32 v22, 0x80000000, v9
v_xor_b32 v22, v22, v10
v_and_b32 v23, 0x80008000, v9
v_xor_b32 v24, v23, v12
""")
    for j in range(5):
        a(f"ds_read_b64 {P(120+2*j)}, v4 offset:{512*j}\nds_read_b64 {P(140+2*j)}, v4 offset:{5120+512*j}\nds_read_b64 {P(130+2*j)}, v4 offset:{2560+512*j}")
    a("s_waitcnt lgkmcnt(0)")
    ST('c')
    gather2(a, 'KM_gy', f"buffer_load_dwordx4 {Q(28)}, v11, s[12:15], s23 offen sc1", f"buffer_load_dwordx4 {Q(32)}, v13, s[12:15], s23 offen sc1", 28, 32, 36, dly=OPT.get('dy', 0))
    ST('c')
    a(f"""v_cndmask_b32 v32, v32, v34, s[42:43]
v_cndmask_b32 v33, v33, v35, s[42:43]
v_xor_b32 v26, v30, v24
v_xor_b32 v27, v31, v24
v_xor_b32 v30, v30, v12
v_xor_b32 v31, v31, v12
ds_write_b64 v14, {P(32)} offset:8192""")
    for hh in range(2):
        a(f"""v_lshlrev_b32 v{36+2*hh}, 16, v{28+hh}
v_and_b32 v{37+2*hh}, 0xffff0000, v{28+hh}
v_lshlrev_b32 v{40+2*hh}, 16, v{30+hh}
v_and_b32 v{41+2*hh}, 0xffff0000, v{30+hh}
v_lshlrev_b32 v{44+2*hh}, 16, v{28+hh}
v_and_b32 v{45+2*hh}, 0xffff0000, v{28+hh}
v_lshlrev_b32 v{48+2*hh}, 16, v{26+hh}
v_and_b32 v{49+2*hh}, 0xffff0000, v{26+hh}""")
    for i in range(4):
        a(f"v_fmac_f32_dpp v{44+i}, v{36+i}, v22 row_ror:8 {DPP}")
        a(f"v_fmac_f32_dpp v{48+i}, v{40+i}, v10 row_ror:8 {DPP}")
    a(f"""v_cvt_pk_bf16_f32 v52, v44, v45
v_cvt_pk_bf16_f32 v53, v46, v47
v_cvt_pk_bf16_f32 v54, v48, v49
v_cvt_pk_bf16_f32 v55, v50, v51
ds_write_b64 v15, {P(52)}
ds_write_b64 v112, {P(54)}
s_waitcnt lgkmcnt(0)""")
    bar(a, 'W', 'b1')
    for T in range(3):
        for t in range(4):
            for x in range(2): a(f"ds_read_b64_tr_b16 {P(28+16*T+4*t+2*x)}, v113 offset:{4096*T+1024*t+512*x}")
            if T == 1 and t == 3:
                a("s_waitcnt lgkmcnt(8)")
                for tt in range(4): a(f"v_mfma_f32_16x16x32_bf16 {Q(76)}, {Q(96+4*tt)}, {Q(28+4*tt)}, {'0' if tt == 0 else Q(76)}")
    for T in (1, 2):
        a(f"s_waitcnt lgkmcnt({8 if T == 1 else 0})")
        for t in range(4): a(f"v_mfma_f32_16x16x32_bf16 {Q(76+4*T)}, {Q(96+4*t)}, {Q(28+16*T+4*t)}, {'0' if t == 0 else Q(76+4*T)}")
    a(f"ds_write_b128 v16, {Q(76)} offset:{ZC}")
    for j in range(5): a(f"v_lshlrev_b32 v{28+2*j}, 16, v{XR+j}\nv_and_b32 v{29+2*j}, 0xffff0000, v{XR+j}")
    a(f"""ds_write_b128 v16, {Q(80)} offset:{2*ZC}
ds_write_b128 v17, {Q(84)}
s_waitcnt lgkmcnt(0)""")
    bar(a, 'W', 'b2')
    for c in range(5): a(f"ds_read_b64 {P(40+2*c)}, v7 offset:{ZC*c}")
    a("s_waitcnt lgkmcnt(0)")
    bar(a, 'W', 'b3')
    for k in range(2):
        r, im = 42+4*k, 44+4*k; c, s = 88+4*k, 90+4*k; R, I = 50+4*k, 52+4*k
        a(f"""v_pk_mul_f32 {P(R)}, {P(r)}, {P(c)}
v_pk_mul_f32 {P(I)}, {P(r)}, {P(s)}
v_pk_fma_f32 {P(R)}, {P(im)}, {P(s)}, {P(R)} neg_lo:[1,0,0] neg_hi:[1,0,0]
v_pk_fma_f32 {P(I)}, {P(im)}, {P(c)}, {P(I)}""")
    z0,z1r,z1i,z2r,z2i = 40,50,52,54,56
    A,B,Cc,Dd,E = 58,60,62,64,66
    sl = {(3*j) % 5: j for j in range(5)}
    X = lambda d2: P(28+2*sl[d2]); G = lambda d2: P(120+2*sl[d2])
    a(f"""v_pk_add_f32 {P(E)}, {P(z0)}, {P(z1r)}
v_pk_fma_f32 {P(A)}, s[30:31], {P(z1r)}, {P(z0)}
v_pk_fma_f32 {P(B)}, s[32:33], {P(z1r)}, {P(z0)}
v_pk_mul_f32 {P(Cc)}, s[34:35], {P(z1i)}
v_pk_mul_f32 {P(Dd)}, s[36:37], {P(z1i)}
v_pk_add_f32 {P(E)}, {P(E)}, {P(z2r)}
v_pk_fma_f32 {P(A)}, s[32:33], {P(z2r)}, {P(A)}
v_pk_fma_f32 {P(B)}, s[30:31], {P(z2r)}, {P(B)}
v_pk_fma_f32 {P(Cc)}, s[36:37], {P(z2i)}, {P(Cc)}
v_pk_fma_f32 {P(Dd)}, s[34:35], {P(z2i)}, {P(Dd)} neg_lo:[0,1,0] neg_hi:[0,1,0]
v_pk_fma_f32 {X(0)}, {G(0)}, {P(E)}, {X(0)}
v_pk_add_f32 {P(68)}, {P(A)}, {P(Cc)} neg_lo:[0,1] neg_hi:[0,1]
v_pk_add_f32 {P(70)}, {P(A)}, {P(Cc)}
v_pk_add_f32 {P(72)}, {P(B)}, {P(Dd)} neg_lo:[0,1] neg_hi:[0,1]
v_pk_add_f32 {P(74)}, {P(B)}, {P(Dd)}
v_pk_fma_f32 {X(1)}, {G(1)}, {P(68)}, {X(1)}
v_pk_fma_f32 {X(4)}, {G(4)}, {P(70)}, {X(4)}
v_pk_fma_f32 {X(2)}, {G(2)}, {P(72)}, {X(2)}
v_pk_fma_f32 {X(3)}, {G(3)}, {P(74)}, {X(3)}
s_add_u32 s25, s24, {X1}
s_add_u32 s26, s24, {H2F}""")
    for j in range(5): a(f"v_cvt_pk_bf16_f32 v{16+j}, v{28+2*j}, v{29+2*j}")
    a(f"""v_permlane32_swap_b32 v16, v17
v_permlane32_swap_b32 v18, v19
buffer_store_dwordx2 {P(16)}, v2, s[12:15], s25 offen sc1
buffer_store_dwordx2 {P(18)}, v2, s[12:15], s25 offen offset:512 sc1""")
    ln_rows(a, 28, 22)
    a(f"v_bfe_u32 v24, v0, 5, 1\nv_mul_u32_u24 v24, {H2F - X1 - 256}, v24\nv_add_u32 v24, v24, v2")
    for j in range(5): a(f"v_pk_mul_f32 {P(140+2*j)}, {P(140+2*j)}, {P(22)} op_sel_hi:[1,0]")
    for j in range(5): a(f"v_pk_fma_f32 {P(28+2*j)}, {P(28+2*j)}, {P(140+2*j)}, {P(130+2*j)}")
    for j in range(4): a(f"v_cvt_pk_bf16_f32 v{40+j}, v{28+2*j}, v{29+2*j}")
    a(f"""v_cvt_pk_bf16_f32 v21, v36, v37
v_permlane32_swap_b32 v40, v41
v_permlane32_swap_b32 v42, v43
v_permlane32_swap_b32 v20, v21
buffer_store_dwordx2 {P(40)}, v2, s[12:15], s26 offen sc1
buffer_store_dwordx2 {P(42)}, v2, s[12:15], s26 offen offset:512 sc1
buffer_store_dwordx2 {P(20)}, v24, s[12:15], s25 offen offset:1024 sc1""")
    ST('c')
    a(f"""v_mov_b32 v2, v1
s_lshr_b32 s26, s22, 2
s_and_b32 s27, s22, 3
v_lshrrev_b32 v3, 4, v2
v_bfe_u32 v4, v2, 2, 2
v_lshl_add_u32 v4, v3, 3, v4
v_mul_u32_u24 v4, 192, v4
v_and_b32 v5, 3, v2
v_lshl_add_u32 v4, v5, 3, v4
v_and_b32 v5, 1, v3
v_lshlrev_b32 v5, 5, v5
s_mul_i32 s28, s26, 96
v_add_u32 v4, s28, v4
s_cmp_eq_u32 s26, 0
s_cselect_b32 s29, 1, -1
v_mul_lo_u32 v5, v5, s29
v_add_u32 v6, v4, v5
v_sub_u32 v7, v4, v5
v_add_u32 v8, {4*WS_}, v6
v_add_u32 v9, {4*WS_}, v7
v_and_b32 v10, 15, v2
v_lshrrev_b32 v11, 1, v10
v_xor_b32 v11, v11, v3
v_lshlrev_b32 v11, 4, v11
v_lshl_add_u32 v11, v10, 7, v11
s_lshl_b32 s28, s27, 12
s_add_u32 s28, s28, {HB}
v_add_u32 v11, s28, v11
v_xor_b32 v12, 64, v11
s_load_dwordx2 s[60:61], s[0:1], 72
s_waitcnt vmcnt(0)""")
    ST('c')
    bar(a, 'W', 'd1')
    ACC = lambda mat, i, nt: 16 + 4*(6*nt + 3*mat + i)
    FA = lambda buf, mat, i: 64 + 32*buf + 4*(3*mat+i)
    FB = lambda buf, nt: 88 + 32*buf + 4*nt
    def reads(s):
        L = []; sl = s % 8
        for nt in range(2): L.append(f"ds_read_b128 {Q(FB(s & 1, nt))}, v{11 + (s & 1)} offset:{((s//2) % 4)*HS + 2048*nt}")
        for mat in range(2):
            for i in range(3):
                for x in range(2):
                    L.append(f"ds_read_b64_tr_b16 {P(FA(s & 1, mat, i) + 2*x)}, v{6 + (i & 1) + 2*(sl//4)} offset:{(sl % 4)*WS_ + mat*6144 + 4*x*192 + 32*i}")
        return L
    bar(a, 'W', 'B0')
    ST('d')
    for l in reads(0): a(l)
    for s in range(NST):
        a("s_waitcnt lgkmcnt(0)")
        if s & 1: bar(a, 'W', f'B{(s+1)//2}')
        R = reads(s+1) if s+1 < NST else []
        k = 0
        for mat in range(2):
            for i in range(3):
                for nt in range(2):
                    c = ACC(mat, i, nt)
                    a(f"v_mfma_f32_16x16x32_bf16 {Q(c)}, {Q(FA(s & 1, mat, i))}, {Q(FB(s & 1, nt))}, {'0' if s == 0 else Q(c)}")
                    for l in R[2*k:2*k+2]: a(l)
                    k += 1
    ST('d')
    kk = 2*0.7978845608028654*math.log2(math.e)
    a(f"""s_mov_b32 s30, {fh(-kk*0.044715)}
s_mov_b32 s31, {fh(-kk*0.044715)}
v_mov_b32 v10, {fh(-kk)}
v_mov_b32 v11, {fh(-kk)}
s_lshl_b32 s29, s50, 3
s_lshl_b32 s28, s27, 1
s_add_u32 s29, s29, s28
s_mul_i32 s29, s29, 49152
s_mul_i32 s28, s51, 3072
s_add_u32 s29, s29, s28
s_mul_i32 s28, s26, 1536
s_add_u32 s29, s29, s28
s_add_u32 s29, s29, {HIDF}
v_bfe_u32 v7, v2, 4, 1
v_mul_u32_u24 v7, 49152, v7
v_lshrrev_b32 v8, 5, v2
v_lshl_add_u32 v7, v8, 8, v7
v_and_b32 v8, 15, v2
v_lshl_add_u32 v7, v8, 4, v7""")
    for nt in range(2):
        Gt = ACC(0, 0, nt); U = ACC(1, 0, nt); T = 64 + 16*nt
        for i in range(0, 12, 2): a(f"v_pk_mul_f32 {P(T+i)}, {P(Gt+i)}, {P(Gt+i)}")
        for i in range(0, 12, 2): a(f"v_pk_fma_f32 {P(T+i)}, {P(T+i)}, s[30:31], {P(10)}")
        for i in range(0, 12, 2): a(f"v_pk_mul_f32 {P(T+i)}, {P(T+i)}, {P(Gt+i)}")
        for i in range(0, 12, 2): a(f"v_exp_f32 v{T+i}, v{T+i}\nv_exp_f32 v{T+i+1}, v{T+i+1}\nv_pk_mul_f32 {P(Gt+i)}, {P(Gt+i)}, {P(U+i)}")
        for i in range(0, 12, 2): a(f"v_pk_add_f32 {P(T+i)}, {P(T+i)}, 1.0 op_sel_hi:[1,0]")
        for i in range(12): a(f"v_rcp_f32 v{T+i}, v{T+i}")
        for i in range(0, 12, 2): a(f"v_pk_mul_f32 {P(Gt+i)}, {P(Gt+i)}, {P(T+i)}")
        for i in range(3):
            O = 96 + 4*i + 2*nt
            a(f"v_cvt_pk_bf16_f32 v{O}, v{Gt+4*i}, v{Gt+4*i+1}\nv_cvt_pk_bf16_f32 v{O+1}, v{Gt+4*i+2}, v{Gt+4*i+3}")
    for i in range(3):
        O = 96 + 4*i
        a(f"""v_permlane16_swap_b32 v{O}, v{O+2}
v_permlane16_swap_b32 v{O+1}, v{O+3}
buffer_store_dwordx4 {Q(O)}, v7, s[12:15], s29 offen offset:{512*i} sc1""")
    ST('d')
    a(f"""s_lshl_b32 s30, s50, 3
s_lshr_b32 s28, s51, 3
s_lshl_b32 s28, s28, 2
s_add_u32 s30, s30, s28
s_add_u32 s30, s30, s27
s_mul_i32 s29, s30, 49152
s_lshl_b32 s28, s26, 10
s_add_u32 s29, s29, s28
s_add_u32 s29, s29, {HIDF}
s_lshl_b32 s30, s30, 4
s_and_b32 s24, s51, 7
v_lshrrev_b32 v3, 2, v2
v_mul_u32_u24 v3, 160, v3
v_and_b32 v4, 3, v2
v_lshl_add_u32 v3, v4, 3, v3
s_mul_i32 s28, s26, 5120
v_add_u32 v3, s28, v3
v_add_u32 v4, {6*DW}, v3
v_add_u32 v5, {12*DW}, v3
v_lshlrev_b32 v6, 4, v2
v_and_b32 v12, 15, v2
v_lshrrev_b32 v13, 4, v2
v_mul_u32_u24 v8, 1280, v12
v_lshl_add_u32 v8, v13, 3, v8
s_mul_i32 s23, s30, 1280
s_mul_i32 s25, s24, 160
s_add_u32 s23, s23, s25
s_add_u32 s23, s23, {X1}
v_lshlrev_b32 v15, 4, v13
s_lshl_b32 s28, s25, 1
s_add_u32 s28, s28, 12800
s_lshl_b32 s21, s26, 6
s_add_u32 s23, s23, s21
s_lshl_b32 s21, s26, 7
s_add_u32 s28, s28, s21
s_waitcnt vmcnt(0)""")
    ST('d')
    if 'nohs' in OPT: bar(a, 'W', 'd2')
    a("s_mov_b32 s41, s29")
    srd(a, 16, 60, 2048*1280)
    AC2 = lambda mt: 16 + 4*mt
    FA2 = lambda buf, mt: 36 + 20*buf + 4*mt
    NB = OPT.get('nb', 10)
    FB2 = lambda s: 76 + 4*(s % NB)
    def reads2(s):
        p = WPOS(s)
        return [f"ds_read_b64_tr_b16 {P(FA2(s & 1, mt) + 2*x)}, v{3+p//6} offset:{(p % 6)*DW + x*2560 + 32*mt}" for mt in range(5) for x in range(2)]
    def ldb(s):
        a(f"buffer_load_dwordx4 {Q(FB2(s))}, v6, s[12:15], s29 offen offset:{2048*(s & 1)} sc1")
        if s & 1: a("s_add_u32 s29, s29, 4096")
    bar(a, 'W', 'C0')
    ST('d')
    nb = 0; nx = 0
    for s in range(NB-1): ldb(s); nb += 1
    for l in reads2(0): a(l)
    for s in range(NS2):
        f = FB2(s)
        if 'nohs' in OPT: a(f"s_waitcnt vmcnt({nb-s-1+nx}) lgkmcnt(0)\nKM_hr{s}:")
        else: a(f"""s_waitcnt vmcnt({nb-s-1+nx})
v_max3_u32 v9, v{f}, v{f+1}, v{f+2}
v_max_u32 v9, v9, v{f+3}
v_cmp_eq_u32 vcc, -1, v9
s_waitcnt lgkmcnt(0)
s_cmp_lg_u64 vcc, 0
s_cbranch_scc1 KM_hs{s}
KM_hr{s}:""")
        if s in CB: bar(a, 'W', f'C{s}')
        if nb < NS2: ldb(nb); nb += 1
        elif nx < 6:
            k = nx // 2
            a(f"buffer_load_dwordx2 {P(116+2*k)}, v8, s[12:15], s23 offen offset:{32*k} sc1")
            a(f"buffer_load_dwordx4 {Q(128+4*k)}, v15, s[12:15], s28 offen offset:{64*k} sc1")
            nx += 2
        R = reads2(s+1) if s+1 < NS2 else []
        for mt in range(5):
            c = AC2(mt)
            a(f"v_mfma_f32_16x16x32_bf16 {Q(c)}, {Q(FA2(s & 1, mt))}, {Q(FB2(s))}, {'0' if s == 0 else Q(c)}")
            for l in R[2*mt:2*mt+2]: a(l)
    RB = WPOS(10)*DW
    ST('d')
    a(f"""s_mul_i32 s28, s27, 5120
s_add_u32 s28, s28, {RB}
v_add_u32 v6, s28, v6
s_and_b32 s23, s30, 63
s_lshl_b32 s23, s23, 5
s_lshr_b32 s29, s30, 6
s_add_u32 s23, s23, s29
s_mul_i32 s23, s23, 1280
s_add_u32 s23, s23, s25
v_mul_u32_u24 v8, 40960, v12
v_lshl_add_u32 v8, v13, 3, v8
s_cmp_eq_u32 s26, 0
s_cbranch_scc1 KM_lo""")
    def fin(give, keep, base):
        for mt in give: a(f"ds_write_b128 v6, {Q(AC2(mt))} offset:{1024*mt}")
        a("s_waitcnt vmcnt(0)")
        for mt in keep:
            x = 116+2*(mt-base); r = 76+4*mt
            a(f"v_lshlrev_b32 v{r}, 16, v{x}\nv_and_b32 v{r+1}, 0xffff0000, v{x}\nv_lshlrev_b32 v{r+2}, 16, v{x+1}\nv_and_b32 v{r+3}, 0xffff0000, v{x+1}")
        a("s_waitcnt lgkmcnt(0)\ns_barrier")
        for mt in keep: a(f"ds_read_b128 {Q(36+4*mt)}, v6 offset:{1024*mt}")
        for n, mt in enumerate(keep):
            c = AC2(mt); x = 116+2*(mt-base); g = 128+4*(mt-base); r = 36+4*mt; o = 76+4*mt
            a(f"""s_waitcnt lgkmcnt({len(keep)-1-n})
v_pk_add_f32 {P(c)}, {P(c)}, {P(r)}
v_pk_add_f32 {P(c+2)}, {P(c+2)}, {P(r+2)}
v_pk_fma_f32 {P(o)}, {P(c)}, {P(g)}, {P(o)}
v_pk_fma_f32 {P(o+2)}, {P(c+2)}, {P(g+2)}, {P(o+2)}
v_cvt_pk_bf16_f32 v{x}, v{o}, v{o+1}
v_cvt_pk_bf16_f32 v{x+1}, v{o+2}, v{o+3}
buffer_store_dwordx2 {P(x)}, v8, s[16:19], s23 offen offset:{32*mt}""")
        a("@dump 12\ns_endpgm")
    nst = a.st.n
    fin([0,1,2], [3,4], 2)
    a.st.n = nst
    a("KM_lo:")
    fin([3,4], [0,1,2], 0)
    a.st.n = 1
    for s in range(NS2):
        f = FB2(s)
        a(f"""KM_hs{s}:
s_add_u32 s40, s41, {2048*s}
s_mov_b32 s46, 0x8000
KM_hl{s}:
s_mov_b64 exec, vcc
s_sleep 2
buffer_load_dwordx4 {Q(f)}, v6, s[12:15], s40 offen sc1
s_waitcnt vmcnt(0)
v_max3_u32 v9, v{f}, v{f+1}, v{f+2}
v_max_u32 v9, v9, v{f+3}
v_cmp_eq_u32 vcc, -1, v9
s_mov_b64 exec, -1
s_sub_u32 s46, s46, 1
s_cmp_eq_u32 s46, 0
s_cbranch_scc1 KM_hr{s}
s_cmp_lg_u64 vcc, 0
s_cbranch_scc1 KM_hl{s}
s_branch KM_hr{s}""")
    a(f"""KM_prod:
s_sub_u32 s47, s22, 8
s_waitcnt lgkmcnt(0)""")
    if OPT.get('wb'): a(f"s_add_u32 s6, s6, {OPT['wb']}\ns_addc_u32 s7, s7, 0")
    srd(a, 12, 6, WS_SIZE)
    srd(a, 16, 60, 256)
    a(f"""v_mov_b32 v60, 0
s_load_dwordx4 s[56:59], s[0:1], 32
s_load_dwordx2 s[4:5], s[0:1], 48
v_lshlrev_b32 v59, 4, v1
s_sub_u32 s53, s2, 80
s_xor_b32 s54, s47, 2
s_mul_i32 s54, s54, 192
s_sub_u32 s21, s2, 64
s_add_u32 s54, s54, s21
s_cmp_lt_u32 s2, 64
s_cselect_b32 s54, 999, s54
s_cmp_ge_u32 s47, 2
s_cbranch_scc1 KM_p_wp
s_cmp_lg_u32 s47, 0
s_cbranch_scc1 KM_p_pf
s_branch KM_p_no0
KM_p_pf:""")
    if 'nocpf' not in OPT:
        a(f"""s_cmp_lt_u32 s2, {256 - OPT.get('ncp', 16)}
s_cbranch_scc1 KM_p_no0
s_getpc_b64 s[38:39]
KM_pc:
s_sub_u32 s38, s38, KM_pc-{NAME}
s_subb_u32 s39, s39, 0
v_lshlrev_b32 v86, 7, v1""")
        for k in range(4):
            a(f"""v_add_u32 v87, {8192*k}, v86
v_min_u32 v87, KM_end-{NAME}, v87
global_load_dword v{88+k}, v87, s[38:39]""")
    a(f"""KM_p_no0:
s_waitcnt lgkmcnt(0)""")
    ST('n')
    bar(a, 'P', 'g1')
    ST('n')
    a(f"""v_mov_b32 v62, {NON}
ds_read_b32 v61, v62
s_mul_i32 s23, s47, 5120
s_add_u32 s23, s23, {MODG}
s_add_u32 s21, s23, 4096
v_lshlrev_b32 v62, 4, v1
s_mul_i32 s24, s47, 2560
s_add_u32 s24, s24, {PB1}
v_lshlrev_b32 v63, 3, v1
v_add_u32 v63, s24, v63
s_lshl_b32 s25, s2, 7
s_add_u32 s25, s25, {GFL}
s_lshl_b32 s26, s47, 14
s_add_u32 s26, s26, {GFL}
s_add_u32 s27, s26, 8192
v_lshlrev_b32 v58, 7, v1
s_waitcnt lgkmcnt(0)
s_cmp_lg_u32 s47, 0
s_cbranch_scc1 KM_p_nf
s_mov_b64 exec, 1
buffer_store_dword v61, v60, s[12:15], s25 offen sc1
s_mov_b64 exec, -1
KM_p_nf:""")
    ld = "\n".join([f"buffer_load_dwordx4 {Q(8+4*q)}, v62, s[12:15], {'s23' if q < 4 else 's21'} offen offset:{1024*(q % 4)} sc1" for q in range(5)])
    cm = "v_cmp_ne_u32 vcc, v9, v61\n" + "\n".join([f"v_cmp_ne_u32 s[38:39], v{r}, v61\ns_or_b64 vcc, vcc, s[38:39]" for r in range(11, 28, 2)])
    spin(a, 'KM_pg', ld, cm, slp=OPT.get('gs', 4))
    for q in range(5): a(f"v_mov_b32 v{9+4*q}, v{10+4*q}\nds_write_b64 v63, {P(8+4*q)} offset:{512*q}")
    a("s_waitcnt lgkmcnt(0)")
    ST('p')
    a("s_barrier")
    spin(a, 'KM_A_p', "buffer_load_dword v11, v58, s[12:15], s26 offen sc1\nbuffer_load_dword v12, v58, s[12:15], s27 offen sc1", "v_cmp_ne_u32 vcc, v11, v61\nv_cmp_ne_u32 s[38:39], v12, v61\ns_or_b64 vcc, vcc, s[38:39]")
    ST('p')
    a("s_branch KM_p_ag2")
    a(f"""KM_p_wp:
s_sub_u32 s21, s47, 2""")
    def yfpre():
        a('s_sub_u32 s40, s47, 2')
        task_ids(a, 40)
        a(f"""s_cmp_gt_u32 s28, 320
s_cbranch_scc1 KM_p_nyf
s_lshl_b32 s28, s28, 13
s_add_u32 s28, s28, {YF}
s_add_u32 s29, s28, 4096
v_mov_b32 v64, -1
v_mov_b32 v65, -1
v_mov_b32 v66, -1
v_mov_b32 v67, -1""")
        for q in range(8): a(f"buffer_store_dwordx4 {Q(64)}, v59, s[12:15], {'s28' if q < 4 else 's29'} offen offset:{1024*(q % 4)} sc1")
        a("KM_p_nyf:")
    if OPT.get('yp', '0') == '0': yfpre()
    a(f"""s_mul_i32 s21, s21, 176
s_add_u32 s21, s21, s53
s_cmp_lt_u32 s2, 80
s_cbranch_scc1 KM_p_nowp""")
    TOUCH = f"""s_mov_b64 s[44:45], exec
s_mov_b64 exec, -1
s_waitcnt lgkmcnt(0)
s_cmp_eq_u32 s47, 2
s_cselect_b32 s16, s56, s58
s_cselect_b32 s17, s57, s59
s_mov_b32 s18, {640*3072}
s_mov_b32 s19, 0x00020000
s_mul_i32 s40, s2, 7680
v_and_b32 v84, 63, v0
v_min_u32 v84, 59, v84
v_lshlrev_b32 v84, 7, v84
buffer_load_dword v85, v84, s[16:19], s40 offen
s_mov_b64 exec, s[44:45]"""
    st_save = gen.STAMPS; gen.STAMPS = False
    tmp = Asm2(); tmp.st = a.st
    if 'wp1' in OPT: wprep(tmp, 21, 24, 26, 12, 'sc1')
    else:
        tmp('s_lshl_b32 s45, s47, 13')
        wprep2(tmp, 21, 24, 26, 12, 'sc1', 's45')
    gen.STAMPS = st_save
    for ins in tmp.ins:
        if ins.kind == 'nop': continue
        if ins.text.strip() == 's_waitcnt vmcnt(0)':
            nsv = a.st.n; a.st.n = 1; ST('n'); a("s_barrier"); ST('n'); a.st.n = nsv; a("s_waitcnt vmcnt(0)"); continue
        a(ins.text)
    a("s_branch KM_p_wd\nKM_p_nowp:\ns_barrier\nKM_p_wd:\nv_and_b32 v2, 63, v0\ns_waitcnt lgkmcnt(0)")
    if OPT.get('yp', '0') == 'g1': yfpre()
    bar(a, 'P', 'g2')
    a("KM_p_ag2:")
    a(f"""v_mov_b32 v62, {NON}
ds_read_b32 v61, v62
v_and_b32 v2, 63, v0
s_waitcnt vmcnt(0) lgkmcnt(0)
s_cmp_lt_u32 s47, 2
s_cselect_b32 s8, s56, s58
s_cselect_b32 s9, s57, s59
s_mov_b32 s10, {640*3072}
s_mov_b32 s11, 0x00020000""")
    bar(a, 'P', 'k1a')
    a("""s_or_b32 s23, s2, s47
s_cmp_lg_u32 s23, 0
s_cbranch_scc1 KM_p_nr
s_mov_b64 exec, 1
buffer_store_dword v60, v60, s[16:19], 0 offen sc1
s_mov_b64 exec, -1
KM_p_nr:""")
    srd(a, 16, 4, 1536*1280)
    a(f"""s_cmp_ge_u32 s54, 384
s_cbranch_scc1 KM_p_nwd
s_lshr_b32 s24, s54, 3
s_and_b32 s25, s54, 7
s_mul_i32 s55, s25, {1536*160}
s_mul_i32 s21, s24, 5120
s_add_u32 s55, s55, s21
s_add_u32 s55, s55, {WDT}
s_mul_i32 s24, s24, {32*1280}
s_mul_i32 s25, s25, 160
s_add_u32 s24, s24, s25""")
    for q in range(5):
        a(f"""v_add_u32 v12, {64*q}, v2
v_mul_u32_u24 v14, 52429, v12
v_lshrrev_b32 v14, 19, v14
v_mul_u32_u24 v15, 10, v14
v_sub_u32 v15, v12, v15
v_and_b32 v36, 3, v14
v_bfe_u32 v37, v14, 2, 2
v_lshl_add_u32 v36, v37, 3, v36
v_lshrrev_b32 v37, 4, v14
v_lshl_add_u32 v36, v37, 2, v36
v_mul_u32_u24 v36, 1280, v36
v_lshl_add_u32 v36, v15, 4, v36
buffer_load_dwordx4 {Q(64+4*q)}, v36, s[16:19], s24 offen""")
    a("KM_p_nwd:")
    def touch():
        a("s_cmp_lt_u32 s47, 2\ns_cbranch_scc1 KM_p_nt")
        a(TOUCH)
        a("KM_p_nt:")
    if OPT.get('tp', 'k1a') == 'k1a': touch()
    for q in range(3):
        a(f"""v_add_u32 v10, {64*q}, v2
v_mul_u32_u24 v11, 43691, v10
v_lshrrev_b32 v11, 19, v11
v_mul_u32_u24 v12, 12, v11
v_sub_u32 v12, v10, v12
v_lshrrev_b32 v13, 2, v11
v_and_b32 v13, 2, v13
v_xor_b32 v12, v12, v13
v_mul_u32_u24 v11, 3072, v11
v_lshl_add_u32 v11, v12, 4, v11
v_subrev_u32 v{50+q}, {1024*q}, v11""")
    for q in range(4):
        a(f"""v_lshrrev_b32 v10, 4, v2
v_add_u32 v10, {4*q}, v10
v_xor_b32 v10, v10, v2
v_and_b32 v10, 7, v10
v_lshrrev_b32 v11, 3, v2
v_mul_u32_u24 v11, 1280, v11
v_lshl_add_u32 v11, v10, 4, v11
v_add_u32 v{53+q}, {q*(10240-1024)}, v11""")
    a(f"""
s_and_b32 s26, s47, 1
s_mul_i32 s27, s26, {16*3072}
s_mul_i32 s28, s51, 192
s_add_u32 s27, s27, s28
s_mul_i32 s28, s47, 3072
s_lshl_b32 s29, s50, 2
s_add_u32 s29, s29, s47
s_mul_i32 s29, s29, 40960
s_add_u32 s29, s29, {H2F}
s_lshl_b32 s30, s47, 12
v_and_b32 v58, 15, v2
v_lshlrev_b32 v58, 7, v58
v_and_b32 v57, 3, v2
v_lshlrev_b32 v57, 7, v57
v_lshlrev_b32 v59, 4, v2
v_lshlrev_b32 v63, 7, v2""")
    def iw(s):
        a(f"s_add_u32 m0, s28, {(s % 8)*WS_}")
        for q in range(3): a(f"buffer_load_dwordx4 v{50+q}, s[8:11], s27 offen offset:{1024*q} sc1 lds")
        a(f"s_add_u32 s27, s27, {32*3072}")
    def ih(d):
        a(f"s_add_u32 m0, s30, {HB + (d % 4)*HS}")
        for q in range(4): a(f"buffer_load_dwordx4 v{53+q}, s[12:15], s33 offen offset:{1024*q} sc1 lds")
        a("s_add_u32 s33, s33, 128")
    bar(a, 'P', 'k2a')
    a("s_cmp_ge_u32 s54, 384\ns_cbranch_scc1 KM_p_nwd2\ns_add_u32 s54, s55, 4096\ns_waitcnt vmcnt(0)")
    for q in range(5): a(f"buffer_store_dwordx4 {Q(64+4*q)}, v59, s[12:15], {'s55' if q < 4 else 's54'} offen offset:{1024*(q % 4)} sc1")
    a("KM_p_nwd2:")
    a(f"""s_lshl_b32 s23, s47, 11
s_add_u32 m0, s23, {PB}
s_add_u32 s23, s23, 5120
buffer_load_dwordx4 v59, s[12:15], s23 offen sc1 lds
buffer_load_dwordx4 v59, s[12:15], s23 offen offset:1024 sc1 lds""")
    W0 = OPT.get('w0', 'k2a')
    if W0 == 'k2a':
        for s in range(0, 4): iw(s)
        a("s_waitcnt vmcnt(12)")
    elif W0 == 'split':
        for s in range(0, 2): iw(s)
        a("s_waitcnt vmcnt(6)")
    else: a("s_waitcnt vmcnt(0)")
    bar(a, 'P', 'k2b')
    if W0 == 'k2b':
        for s in range(0, 4): iw(s)
    if OPT.get('tp', 'k1a') == 'k2b': touch()
    a(f"""s_lshl_b32 s23, s50, 3
s_lshl_b32 s24, s47, 1
s_add_u32 s23, s23, s24
s_mul_i32 s23, s23, 49152
s_mul_i32 s24, s51, 3072
s_add_u32 s23, s23, s24
s_add_u32 s23, s23, {HIDF}
s_add_u32 s24, s23, 49152
v_mov_b32 v88, -1
v_mov_b32 v89, -1
v_mov_b32 v90, -1
v_mov_b32 v91, -1""")
    def hpre():
        if 'nohs' in OPT: return
        for q in range(6): a(f"buffer_store_dwordx4 {Q(88)}, v59, s[12:15], {'s23' if q < 3 else 's24'} offen offset:{1024*(q % 3)} sc1")
    if OPT.get('hp', 'b1') == 'k2b': hpre()
    if OPT.get('wp', 'd1') == 'k2b':
        for s in range(4, 8): iw(s)
    bar(a, 'P', 'b1')
    if OPT.get('tp', 'k1a') == 'b1': touch()
    if OPT.get('hp', 'b1') == 'b1': hpre()
    if W0 == 'b1':
        for s in range(0, 4): iw(s)
    if W0 == 'split':
        for s in range(2, 4): iw(s)
    if OPT.get('wp', 'd1') == 'b1':
        for s in range(4, 8): iw(s)
    bar(a, 'P', 'b2')
    bar(a, 'P', 'b3')
    if OPT.get('hp', 'b1') == 'b3': hpre()
    if W0 == 'b3':
        for s in range(0, 4): iw(s)
    if OPT.get('wp', 'd1') == 'b3':
        for s in range(4, 8): iw(s)
    a(f"""s_lshl_b32 s48, s50, 4
s_add_u32 s48, s48, s51
s_lshl_b32 s48, s48, 7
s_add_u32 s48, s48, {FLG}
s_lshl_b32 s23, s50, 2
s_add_u32 s23, s23, s47
s_lshl_b32 s23, s23, 9
s_add_u32 s23, s23, {FLG}
s_and_b32 s24, s51, 7
s_mul_i32 s31, s47, 2560
s_mul_i32 s32, s24, {1536*160}
s_add_u32 s32, s32, s31
s_add_u32 s32, s32, {WDT}
s_waitcnt vmcnt(0)""")
    bar(a, 'P', 'd1')
    a(f"""s_cmp_lg_u32 s47, 0
s_cbranch_scc1 KM_na1
s_mov_b64 exec, 1
buffer_store_dword v61, v60, s[12:15], s48 offen sc1
s_mov_b64 exec, -1
KM_na1:""")
    cnt = []
    def iw2(s):
        a(f"""s_add_u32 m0, s31, {WPOS(s)*DW}
buffer_load_dwordx4 v59, s[12:15], s32 offen sc1 lds
buffer_load_dwordx4 v59, s[12:15], s32 offen offset:1024 sc1 lds
s_mov_b32 exec_hi, 0
buffer_load_dwordx4 v59, s[12:15], s32 offen offset:2048 sc1 lds
s_mov_b32 exec_hi, -1
s_add_u32 s32, s32, 10240""")
    def grp(d):
        ih(d); n = 4
        if d >= 4:
            iw(2*d); iw(2*d+1); n += 6
        cnt.append(n)
    a(f"v_add_u32 v62, s30, v59\nv_add_u32 v62, {HB}, v62")
    def hl(d, q): return f"buffer_load_dwordx4 {Q(96+16*d+4*q)}, v{53+q}, s[12:15], s29 offen offset:{1024*q+128*d} sc1"
    for d in range(4):
        for q in range(4): a(hl(d, q))
    XW = 0
    if OPT.get('wp', 'd1') == 'd1':
        for s in range(4, 8): iw(s)
        XW = 12
    nw2 = 0
    def hchk(d):
        R = 96+16*d
        a(f"s_mov_b32 s46, 0x8000\ns_waitcnt vmcnt({4*(3-d)+XW})\ns_branch KM_hc{d}\nKM_hq{d}:\ns_sleep 2")
        for q in range(4): a(hl(d, q))
        a(f"s_waitcnt vmcnt(0)\nKM_hc{d}:")
        a(f"v_max3_u32 v12, v{R}, v{R+1}, v{R+2}")
        for k in range(3, 15, 2): a(f"v_max3_u32 v12, v12, v{R+k}, v{R+k+1}")
        a(f"""v_max_u32 v12, v12, v{R+15}
v_cmp_eq_u32 vcc, -1, v12
s_nop 1
s_and_b64 exec, exec, vcc
s_cbranch_scc0 KM_ho{d}
s_sub_u32 s46, s46, 1
s_cmp_lg_u32 s46, 0
s_cbranch_scc1 KM_hq{d}
KM_ho{d}:
s_mov_b64 exec, -1""")
        for q in range(4): a(f"ds_write_b128 v62, {Q(R+4*q)} offset:{d*HS+1024*q}")
    for d in range(10):
        if d == 0:
            hchk(0); a("s_waitcnt lgkmcnt(0)"); ST('p')
        elif d == 1:
            hchk(1); a("s_waitcnt lgkmcnt(0)")
        elif d >= 4:
            a(f"s_waitcnt vmcnt({sum(cnt[d-3:])})")
        bar(a, 'P', f'B{d}')
        if d == 1:
            iw(8); iw(9)
            a("s_waitcnt vmcnt(6)")
            hchk2 = True
            for dd in (2, 3):
                R = 96+16*dd
                a(f"s_mov_b32 s46, 0x8000\ns_branch KM_hc{dd}\nKM_hq{dd}:\ns_sleep 2")
                for q in range(4): a(hl(dd, q))
                a(f"s_waitcnt vmcnt(0)\nKM_hc{dd}:")
                a(f"v_max3_u32 v12, v{R}, v{R+1}, v{R+2}")
                for k in range(3, 15, 2): a(f"v_max3_u32 v12, v12, v{R+k}, v{R+k+1}")
                a(f"""v_max_u32 v12, v12, v{R+15}
v_cmp_eq_u32 vcc, -1, v12
s_nop 1
s_and_b64 exec, exec, vcc
s_cbranch_scc0 KM_ho{dd}
s_sub_u32 s46, s46, 1
s_cmp_lg_u32 s46, 0
s_cbranch_scc1 KM_hq{dd}
KM_ho{dd}:
s_mov_b64 exec, -1""")
                for q in range(4): a(f"ds_write_b128 v62, {Q(R+4*q)} offset:{dd*HS+1024*q}")
            a("s_waitcnt lgkmcnt(0)\ns_add_u32 s33, s29, 512")
        elif d == 2:
            spin(a, 'KM_p1', "buffer_load_dword v11, v57, s[12:15], s23 offen sc1", "v_cmp_ne_u32 vcc, v11, v61")
            ih(4); cnt.append(4)
            grp(5)
        elif d >= 3 and d+3 < 10: grp(d+3)
        if d >= 7:
            for _ in range(EARLY[d]): iw2(nw2); nw2 += 1
            cnt.append(3*EARLY[d])
    bar(a, 'P', 'B10')
    while nw2 < NWD: iw2(nw2); nw2 += 1
    if 'nohs' in OPT:
        a(f"""s_lshl_b32 s23, s50, 11
s_add_u32 s23, s23, {FLG + 32768}
s_add_u32 s48, s48, 32768""")
        bar(a, 'P', 'd2')
        a(f"""s_cmp_eq_u32 s47, 1
s_cbranch_scc0 KM_nb2
s_mov_b64 exec, 1
buffer_store_dword v61, v60, s[12:15], s48 offen sc1
s_mov_b64 exec, -1
KM_nb2:
s_cmp_lg_u32 s47, 0
s_cbranch_scc1 KM_na2""")
        spin(a, 'KM_p2', "buffer_load_dword v11, v58, s[12:15], s23 offen sc1", "v_cmp_ne_u32 vcc, v11, v61")
        a("KM_na2:")
    a("s_waitcnt vmcnt(0)")
    ST('p')
    bar(a, 'P', 'C0')
    pend = []
    for s in CB:
        need = [t for t in pend if t <= NEXTCB[s]]
        a(f"s_waitcnt vmcnt({3*(len(pend)-len(need))})")
        bar(a, 'P', f'C{s}')
        pend = [t for t in pend if t not in need]
        while nw2 < NS2 and nw2 - NWD <= s:
            iw2(nw2); pend.append(nw2); nw2 += 1
    a("@dump 12\nKM_end:\ns_endpgm")
    assert bar.seq['W'] == bar.seq['P'], (bar.seq['W'], bar.seq['P'])
    return kd_block(NAME, 168, 100)
if __name__ == '__main__':
    OPT = {}; out = 'mega.s'
    for x in sys.argv[1:]:
        if x.endswith('.s'): out = x
        elif x.startswith('st='): gen.STAMPS = True; OPT['st'] = x[3:]
        elif x.startswith('slp'): gen.SLP = int(x[3:])
        elif x.startswith('bk'): OPT['bk'] = int(x[2:])
        elif x.startswith('tp='): OPT['tp'] = x[3:]
        elif x.startswith('hp='): OPT['hp'] = x[3:]
        elif x.startswith('yp='): OPT['yp'] = x[3:]
        elif x.startswith('w0='): OPT['w0'] = x[3:]
        elif x.startswith('gd='): OPT['gd'] = int(x[3:])
        elif x.startswith('gs='): OPT['gs'] = int(x[3:])
        elif x.startswith('e0='): OPT['e0'] = int(x[3:])
        elif x.startswith('nb='): OPT['nb'] = int(x[3:])
        elif x.startswith('dx='): OPT['dx'] = int(x[3:])
        elif x.startswith('dy='): OPT['dy'] = int(x[3:])
        elif x.startswith('ncp='): OPT['ncp'] = int(x[4:])
        elif x.startswith('wb='): OPT['wb'] = int(x[3:]) << 20
        elif x.startswith('wp='): OPT['wp'] = x[3:]
        else: OPT[x] = 1
    a = Asm2()
    kd = km(a, OPT)
    hdr = open('adaLN_cond__spectral_gfnet__glu_gated_geglu__prompt.s.ref').read().split('\n')[:13]
    s = '\n'.join(hdr) + '\n; @launch grid=(256,1,1) block=(768,1,1) lds=163840\n'
    s += '.amdgcn_target "amdgcn-amd-amdhsa--gfx950"\n.text\n' + a.text() + '.section .rodata,"a"\n' + kd
    open(out, 'w').write(s)
```

```python
import sys, math
sys.path.insert(0,'work')
import gen
from gen import *
NAME = 'adaLN_cond__spectral_gfnet__glu_gated_geglu__prompt_kernel'
MODG = 0x4000
GFL = 0x20000
CNT = 0x8000
class Bar:
    def __init__(self): self.seq = {}
    def __call__(self, a, role, name):
        self.seq.setdefault(role, []).append(name); a("s_barrier")
def spin(a, name, load, cmp, mask=True, slp=None):
    a(f"s_mov_b32 s46, 0x8000\n{name}:")
    a(load); a("s_waitcnt vmcnt(0)"); a(cmp)
    a(f"""s_nop 1
s_and_b64 exec, exec, vcc
s_cbranch_scc0 {name}_ok
s_sleep {gen.SLP if slp is None else slp}
s_sub_u32 s46, s46, 1
s_cmp_lg_u32 s46, 0
s_cbranch_scc1 {name}
{name}_ok:
s_mov_b64 exec, -1""")

def addr_xf(a):
    a(f"""s_lshl_b32 s40, s22, 5
v_lshrrev_b32 v22, 1, v6
v_lshl_add_u32 v22, v22, 4, v5
v_add_u32 v22, s40, v22
v_add_u32 v23, 256, v8
v_and_b32 v24, 1, v6
v_lshlrev_b32 v24, 7, v24""")
    for src_, dst in ((22, 11), (23, 13)):
        a(f"""v_lshrrev_b32 v25, 3, v{src_}
v_lshl_add_u32 v25, v25, 16, v24
v_and_b32 v26, 7, v{src_}
v_lshl_add_u32 v{dst}, v26, 4, v25""")
def addr_yf(a):
    a(f"""s_lshl_b32 s40, s22, 5
v_lshrrev_b32 v22, 1, v6
v_lshl_add_u32 v22, v22, 4, v5
v_add_u32 v22, s40, v22
v_add_u32 v23, 256, v8
v_and_b32 v24, 1, v6
v_lshlrev_b32 v24, 8, v24
v_lshl_add_u32 v11, v22, 13, v24
v_lshl_add_u32 v13, v23, 13, v24""")
def gather2(a, name, ld0, ld1, r0, r1, t, pre=False, dly=0):
    a(f"""s_mov_b32 s46, 0x8000
s_waitcnt vmcnt(0)
{f's_branch {name}_chk' if pre else ''}
{name}:
{ld0}
{ld1}
{name}_chk:
s_waitcnt vmcnt(0)
v_max3_u32 v{t}, v{r0}, v{r0+1}, v{r0+2}
v_max3_u32 v{t+1}, v{r1}, v{r1+1}, v{r1+2}
v_max3_u32 v{t}, v{t}, v{r0+3}, v{r1+3}
v_max_u32 v{t}, v{t}, v{t+1}
v_cmp_eq_u32 vcc, -1, v{t}
s_nop 1
s_and_b64 exec, exec, vcc
s_cbranch_scc0 {name}_ok
s_sleep 2
s_sub_u32 s46, s46, 1
s_cmp_lg_u32 s46, 0
s_cbranch_scc1 {name}
{name}_ok:
s_mov_b64 exec, -1""")
def task_ids(a, slot):
    a(f"""s_lshl_b32 s28, s{slot}, 2
s_lshr_b32 s29, s2, 6
s_add_u32 s28, s28, s29
s_lshl_b32 s28, s28, 3
s_and_b32 s29, s2, 7
s_add_u32 s28, s28, s29
s_lshl_b32 s41, s28, 16
s_lshl_b32 s28, s28, 3
s_bfe_u32 s29, s2, 0x30003
s_add_u32 s28, s28, s29
s_lshl_b32 s29, s29, 4
s_add_u32 s41, s41, s29""")
def km(a, OPT):
    bar = Bar()
    a(f".globl {NAME}\n.p2align 8\n.type {NAME},@function\n{NAME}:")
    a.st = Stamper(a, 3)
    ST = lambda tag: a("@stamp") if tag in OPT.get('st', '') else None
    R2 = 98304
    GP = R2; NON = R2 + 1536; PB1 = R2 + 2048; Z1 = R2 + 8192; K2B = R2 + 24576
    TB = R2; ZB = R2 + 12288; ZR = 528; ZC = 8*ZR; PB = R2 + 57344
    NST = 20; WS_ = 12288; HB = R2; HS = 16384
    NS2 = 24; DW = 10240; NWD = 16
    ORDER = [5, 6, 13,  7, 8, 14, 15,  0, 1, 9, 10,  2, 3, 4, 11, 12]
    EARLY = {7: 3, 8: 4, 9: 4} if 'e0' not in OPT else ({7: 0, 8: 0, 9: 0} if OPT['e0'] == 0 else {7: 0, 8: 4, 9: 6})
    WPOS = lambda s: ORDER[s % NWD]
    CB = [3, 7, 15, 19]; NEXTCB = {3: 7, 7: 15, 15: 19, 19: 23}
    XR = 114
    a(f"""
s_cmp_ge_u32 s2, 256
s_cbranch_scc1 KM_end
@stamp
s_load_dwordx2 s[4:5], s[0:1], 0
s_load_dwordx2 s[6:7], s[0:1], 88
s_load_dwordx4 s[56:59], s[0:1], 56
s_load_dwordx4 s[24:27], s[0:1], 8
s_load_dwordx2 s[60:61], s[0:1], 80
s_and_b32 s50, s2, 7
s_lshr_b32 s51, s2, 3
s_mul_i32 s52, s50, 10
s_add_u32 s52, s52, s51
s_mul_i32 s21, s50, 20
s_add_u32 s21, s21, s51
s_add_u32 s21, s21, 70
s_cmp_lt_u32 s2, 80
s_cselect_b32 s52, s52, s21
s_lshl_b32 s50, s50, 1
s_lshr_b32 s21, s51, 4
s_add_u32 s50, s50, s21
s_and_b32 s51, s51, 15
v_lshrrev_b32 v4, 6, v0
v_and_b32 v1, 63, v0
v_readfirstlane_b32 s22, v4
s_lshl_b32 s3, s50, 1
s_lshr_b32 s21, s51, 3
s_add_u32 s3, s3, s21
s_and_b32 s20, s51, 7
s_cmp_ge_u32 s22, 8
s_cbranch_scc1 KM_prod
v_and_b32 v3, 31, v0
v_lshlrev_b32 v2, 3, v3
v_bfe_u32 v4, v0, 5, 1
v_lshl_add_u32 v2, v4, 8, v2
v_lshlrev_b32 v3, 2, v3
v_lshl_add_u32 v3, v4, 1, v3
s_lshl_b32 s21, s20, 3
s_add_u32 s21, s21, s22
s_lshl_b32 s21, s21, 5
s_add_u32 s21, s21, s3
s_mul_i32 s21, s21, 1280
s_lshl_b32 s23, s52, 5
v_lshrrev_b32 v144, 1, v0
v_and_b32 v145, 1, v0
v_mul_u32_u24 v146, 7680, v144
v_lshl_add_u32 v146, v145, 4, v146
v_add_u32 v146, s23, v146
v_lshlrev_b32 v147, 1, v144
s_cmp_lt_u32 s2, 240
s_cselect_b32 s49, 5, 0
s_waitcnt lgkmcnt(0)
""")
    if OPT.get('wb'): a(f"s_add_u32 s6, s6, {OPT['wb']}\ns_addc_u32 s7, s7, 0")
    srd(a, 12, 6, WS_SIZE)
    srd(a, 8, 56, 1280)
    srd(a, 16, 58, 640*3840*2)
    NR = 4
    def gloads(tag, cond):
        a(f"s_cmp_ge_u32 s22, s49\ns_cbranch_scc1 KM_nog1{tag}")
        for i in range(NR): a(f"buffer_load_short_d16_hi v{136+i}, v147, s[8:11], 0 offen offset:{320*i}")
        a("s_mov_b32 s23, 0")
        for i in range(NR):
            a(f"buffer_load_dwordx4 {Q(120+4*i)}, v146, s[16:19], s23 offen")
            if i < NR-1: a(f"s_add_u32 s23, s23, {160*7680}")
        a(f"KM_nog1{tag}:")
    srd(a, 24, 60, 256)
    a("""v_mov_b32 v20, 0
s_lshr_b32 s23, s2, 3
s_or_b32 s23, s23, s22
s_cmp_lg_u32 s23, 0
s_cbranch_scc1 KM_w_nn
s_memrealtime s[38:39]
s_waitcnt lgkmcnt(0)
s_or_b32 s38, s38, 1
v_mov_b32 v22, s38
v_mov_b32 v23, 0
s_mov_b64 exec, 1
buffer_atomic_cmpswap v[22:23], v20, s[24:27], 0 offen sc1
s_mov_b64 exec, -1
KM_w_nn:""")
    srd(a, 24, 4, 2048*1280)
    for k in range(3): a(f"buffer_load_dwordx2 {P(XR+2*k)}, v2, s[24:27], s21 offen offset:{512*k}")
    gloads('a', 0)
    a("v_and_b32 v5, 15, v0\nv_bfe_u32 v6, v0, 4, 2")
    col_slots(a, 22, 5, 6, 8, 22)
    addr_xf(a)
    a(f"""s_lshl_b32 s38, s3, 11
s_lshl_b32 s21, s20, 8
s_add_u32 s38, s38, s21
s_add_u32 s38, s38, {XF}
v_mov_b32 v28, -1
v_mov_b32 v29, -1
v_mov_b32 v30, -1
v_mov_b32 v31, -1
buffer_store_dwordx4 {Q(28)}, v11, s[12:15], s38 offen sc1
s_mov_b32 exec_lo, 0x00ff00ff
s_mov_b32 exec_hi, 0
buffer_store_dwordx4 {Q(28)}, v13, s[12:15], s38 offen sc1
s_mov_b64 exec, -1
s_lshl_b32 s38, s20, 3
s_add_u32 s38, s38, s22
s_lshl_b32 s21, s3, 6
s_add_u32 s38, s38, s21
s_mul_i32 s38, s38, 1280
s_add_u32 s38, s38, {H2F}
buffer_store_dwordx2 {P(28)}, v2, s[12:15], s38 offen sc1""")
    w5_consts(a, 88, 22, -1.0)
    a(f"""
v_cvt_f32_u32 v22, v8
v_mul_f32 v22, {fh(1/128)}, v22
v_cvt_f32_u32 v23, v6
v_mul_f32 v23, {fh(8.0)}, v23
v_and_b32 v24, {fh(0.25)}, v9
v_fma_f32 v23, v23, v22, -v24
v_mul_f32 v24, {fh(25.0)}, v22
""")
    for t in range(4):
        for jj in range(4):
            a(f"""v_cos_f32 v25, v23
v_add_f32 v23, v23, v22
v_cos_f32 v26, v23
v_add_f32 v23, v23, v{24 if jj == 3 else 22}
v_cvt_pk_bf16_f32 v{96+4*t+jj}, v25, v26""")
    a(f"""
v_lshrrev_b32 v22, 3, v3
v_xor_b32 v22, s22, v22
v_lshlrev_b32 v22, 4, v22
v_and_b32 v23, 7, v3
v_lshl_add_u32 v22, v23, 1, v22
s_lshl_b32 s23, s22, 8
s_add_u32 s23, s23, {Z1}
v_add_u32 v14, s23, v22
v_xor_b32 v15, {2048+128}, v14
v_lshlrev_b32 v7, 2, v3
v_add_u32 v7, {PB1}, v7
v_xor_b32 v22, v6, v5
""")
    for t in range(4):
        a(f"""v_xor_b32 v23, {4*t}, v22
v_lshlrev_b32 v23, 4, v23
v_lshl_add_u32 v23, v5, 8, v23
v_add_u32 v{16+t}, {Z1}, v23""")
    r5_sconsts(a)
    srd(a, 24, 60, 256)
    a("s_cmp_lg_u32 s22, 7\ns_cbranch_scc1 KM_w_nl\nbuffer_load_dword v21, v20, s[24:27], 0 offen sc1\nKM_w_nl:")
    a("s_waitcnt vmcnt(11)\ns_cmp_lt_u32 s22, s49\ns_cbranch_scc1 KM_x0\ns_waitcnt vmcnt(3)\nKM_x0:")
    unpack_x(a, XR, 60)
    ln_rows(a, 60, 70)
    a(f"s_cmp_ge_u32 s22, s49\ns_cbranch_scc1 KM_nog2\ns_waitcnt vmcnt({NR+3})")
    C = 136; T = 140
    for i in range(NR): a(f"v_mul_f32 v{T+i}, {fh(-math.log2(math.e))}, v{C+i}")
    for i in range(NR): a(f"v_exp_f32 v{T+i}, v{T+i}")
    for i in range(NR): a(f"v_add_f32 v{T+i}, 1.0, v{T+i}")
    for i in range(NR): a(f"v_rcp_f32 v{T+i}, v{T+i}")
    for i in range(NR): a(f"v_mul_f32 v{C+i}, v{C+i}, v{T+i}")
    for i in range(NR): a(f"v_cvt_pk_bf16_f32 v{C+i}, v{C+i}, v{C+i}")
    for i in range(NR): a(f"v_and_b32 v{48+2*i}, 0xffff0000, v{C+i}")
    a(f"""v_lshrrev_b32 v22, 4, v0
v_lshlrev_b32 v23, 6, v22
v_lshl_add_u32 v23, v145, 5, v23
v_add_u32 v23, {GP}, v23""")
    for i in range(NR):
        a(f"s_waitcnt vmcnt({NR-1-i+3})")
        for j in range(4): a(f"v_lshlrev_b32 v{32+2*j}, 16, v{120+4*i+j}\nv_and_b32 v{33+2*j}, 0xffff0000, v{120+4*i+j}")
        for j in range(4):
            if i == 0: a(f"v_pk_mul_f32 {P(40+2*j)}, {P(32+2*j)}, {P(48)} op_sel_hi:[1,0]")
            else: a(f"v_pk_fma_f32 {P(40+2*j)}, {P(32+2*j)}, {P(48+2*i)}, {P(40+2*j)} op_sel_hi:[1,0,1]")
    for mode in ('quad_perm:[2,3,0,1]', 'row_ror:4', 'row_ror:8'):
        for j in range(8): a(f"v_add_f32_dpp v{40+j}, v{40+j}, v{40+j} {mode} {DPP}")
    a(f"""v_cmp_gt_u32 vcc, 2, v5
s_and_saveexec_b64 s[38:39], vcc
ds_write_b128 v23, {Q(40)}
ds_write_b128 v23, {Q(44)} offset:16
s_mov_b64 exec, s[38:39]
KM_nog2:
s_waitcnt vmcnt(0)
s_cmp_lg_u32 s22, 7
s_cbranch_scc1 KM_w_nw
v_cmp_ne_u32 vcc, 0, v21
s_nop 1
s_cmp_lg_u64 vcc, 0
s_cbranch_scc1 KM_wn_ok""")
    spin(a, 'KM_wn', "buffer_load_dword v21, v20, s[24:27], 0 offen sc1", "v_cmp_eq_u32 vcc, 0, v21")
    a(f"""v_mov_b32 v22, {NON}
ds_write_b32 v22, v21
KM_w_nw:
s_waitcnt lgkmcnt(0)""")
    ST('a')
    bar(a, 'W', 'g1')
    a(f"""v_mov_b32 v22, {NON}
ds_read_b32 v21, v22
s_cmp_lg_u32 s22, 0
s_cbranch_scc1 KM_nog3
s_cmp_eq_u32 s49, 0
s_cbranch_scc1 KM_nog3
v_mul_u32_u24 v23, 320, v6
v_lshl_add_u32 v23, v5, 2, v23
v_add_u32 v23, {GP}, v23
ds_read_b32 v40, v23
ds_read_b32 v41, v23 offset:64
ds_read_b32 v42, v23 offset:128
ds_read_b32 v43, v23 offset:192
ds_read_b32 v44, v23 offset:256
s_sub_u32 s23, s52, 40
s_cmp_lt_u32 s23, 40
s_cselect_b32 s21, 1.0, 0
s_sub_u32 s23, s52, 160
s_cmp_lt_u32 s23, 40
s_cselect_b32 s21, 1.0, s21
s_waitcnt lgkmcnt(0)
v_add_f32 v40, v40, v41
v_add_f32 v42, v42, v43
v_add_f32 v40, v40, v44
v_add_f32 v40, v40, v42
v_mov_b32 v41, v40
v_permlane16_swap_b32 v40, v41
v_add_f32 v40, v40, v41
v_mov_b32 v41, v40
v_permlane32_swap_b32 v40, v41
v_add_f32 v40, v40, v41
v_cvt_pk_bf16_f32 v40, v40, v40
v_and_b32 v40, 0xffff0000, v40
v_add_f32 v40, s21, v40
v_cvt_pk_bf16_f32 v40, v40, v40
v_and_b32 v40, 0xffff0000, v40
v_mov_b32 v41, v21
s_mov_b64 exec, 0xffff
s_cmp_lt_u32 s52, 80
s_cbranch_scc1 KM_gran
s_lshl_b32 s23, s52, 6
v_lshlrev_b32 v23, 2, v1
buffer_store_dword v40, v23, s[12:15], s23 offen sc1
s_branch KM_pub
KM_gran:
s_lshl_b32 s23, s52, 7
s_add_u32 s23, s23, {MODG}
v_lshlrev_b32 v23, 3, v1
buffer_store_dwordx2 {P(40)}, v23, s[12:15], s23 offen sc1
KM_pub:
s_mov_b64 exec, -1
KM_nog3:""")
    M = lambda t: 120+6*t
    N = lambda x, y: 144+6*(2*x+y)
    def gen_(R, cur, step, last, t0=12):
        for hh in range(2):
            a(f"""v_cos_f32 v{t0}, v{cur}
v_sin_f32 v{t0+1}, v{cur}
v_add_f32 v{cur}, v{cur}, v{step}
v_cos_f32 v{t0+2}, v{cur}
v_sin_f32 v{t0+3}, v{cur}
v_add_f32 v{cur}, v{cur}, v{last if hh else step}
v_cvt_pk_bf16_f32 v{R+2+hh}, v{t0}, v{t0+2}
v_cvt_pk_bf16_f32 v{R+hh}, -v{t0+1}, -v{t0+3}
v_cvt_pk_bf16_f32 v{R+4+hh}, v{t0+1}, v{t0+3}""")
    a(f"""v_bfe_u32 v46, v0, 6, 2
v_lshl_add_u32 v46, v46, 4, v5
v_cvt_f32_u32 v46, v46
v_cvt_f32_u32 v47, v6
v_cvt_f32_u32 v48, v5
v_mul_f32 v47, 4.0, v47
v_mul_f32 v49, {fh(1/64)}, v46
v_mul_f32 v50, v47, v49
v_mul_f32 v51, {fh(13.0)}, v49""")
    for t in range(4): gen_(M(t), 50, 49, 51, 52)
    for x in range(2):
        a(f"v_add_f32 v49, {fh(16.0*x)}, v48\nv_mul_f32 v49, {fh(1/32)}, v49\nv_mul_f32 v50, v47, v49\nv_mul_f32 v51, {fh(13.0)}, v49")
        for y in range(2): gen_(N(x, y), 50, 49, 51, 52)
    a(f"""s_lshl_b32 s23, s3, 11
s_lshl_b32 s21, s20, 8
s_add_u32 s23, s23, s21
s_add_u32 s23, s23, {XF}""")
    ST('a')
    bar(a, 'W', 'g2')
    ST('a')
    for j in range(5): a(f"ds_read_b64 {P(40+2*j)}, v7 offset:{2560+512*j}\nds_read_b64 {P(50+2*j)}, v7 offset:{512*j}")
    for j in range(5): a(f"v_pk_mul_f32 {P(28+2*j)}, {P(60+2*j)}, {P(70)} op_sel_hi:[1,0]")
    a("s_waitcnt lgkmcnt(0)")
    for j in range(5): a(f"v_pk_fma_f32 {P(28+2*j)}, {P(28+2*j)}, {P(40+2*j)}, {P(50+2*j)}")
    h = {(3*j) % 5: 28+2*j for j in range(5)}
    t1,t2,t3,t4 = 40,42,44,46; z0,p1,q1,p2,q2 = 48,50,52,54,56
    a(f"""v_pk_add_f32 {P(t1)}, {P(h[1])}, {P(h[4])}
v_pk_add_f32 {P(t2)}, {P(h[2])}, {P(h[3])}
v_pk_add_f32 {P(t3)}, {P(h[1])}, {P(h[4])} neg_lo:[0,1] neg_hi:[0,1]
v_pk_add_f32 {P(t4)}, {P(h[2])}, {P(h[3])} neg_lo:[0,1] neg_hi:[0,1]
v_pk_add_f32 {P(z0)}, {P(h[0])}, {P(t1)}
v_pk_fma_f32 {P(p1)}, s[30:31], {P(t1)}, {P(h[0])}
v_pk_fma_f32 {P(p2)}, s[32:33], {P(t1)}, {P(h[0])}
v_pk_mul_f32 {P(q1)}, s[34:35], {P(t3)}
v_pk_mul_f32 {P(q2)}, s[36:37], {P(t3)}
v_pk_add_f32 {P(z0)}, {P(z0)}, {P(t2)}
v_pk_fma_f32 {P(p1)}, s[32:33], {P(t2)}, {P(p1)}
v_pk_fma_f32 {P(p2)}, s[30:31], {P(t2)}, {P(p2)}
v_pk_fma_f32 {P(q1)}, s[36:37], {P(t4)}, {P(q1)}
v_pk_fma_f32 {P(q2)}, s[34:35], {P(t4)}, {P(q2)} neg_lo:[0,1,0] neg_hi:[0,1,0]
v_cvt_pk_bf16_f32 v22, v{z0}, v{z0+1}
ds_write_b32 v14, v22 offset:8192""")
    for k, (p, q) in enumerate(((p1, q1), (p2, q2))):
        c, s = 88+4*k, 90+4*k; r, im = 28+4*k, 30+4*k
        a(f"""v_pk_mul_f32 {P(r)}, {P(p)}, {P(c)}
v_pk_mul_f32 {P(im)}, {P(p)}, {P(s)}
v_pk_fma_f32 {P(r)}, {P(q)}, {P(s)}, {P(r)}
v_pk_fma_f32 {P(im)}, {P(q)}, {P(c)}, {P(im)} neg_lo:[1,0,0] neg_hi:[1,0,0]
v_cvt_pk_bf16_f32 v{23+2*k}, v{r}, v{r+1}
v_cvt_pk_bf16_f32 v{24+2*k}, v{im}, v{im+1}
ds_write_b32 v{14+k}, v{23+2*k}
ds_write_b32 v{14+k}, v{24+2*k} offset:4096""")
    a("s_waitcnt vmcnt(0) lgkmcnt(0)")
    bar(a, 'W', 'k1a')
    for T in range(3):
        for t in range(4): a(f"ds_read_b128 {Q(28+16*T+4*t)}, v{16+t} offset:{4096*T}")
    n = 12
    for T in range(3):
        for t in range(4):
            n -= 1
            a(f"s_waitcnt lgkmcnt({n})")
            a(f"v_mfma_f32_16x16x32_bf16 {Q(76+4*T)}, {Q(28+16*T+4*t)}, {Q(96+4*t)}, {'0' if t == 0 else Q(76+4*T)}")
    a(f"""v_and_b32 v22, 0x80008000, v9
v_and_b32 v23, v9, v12
v_bfi_b32 v24, v9, v22, v12
v_pk_mul_f32 {P(28)}, {P(76)}, {P(10)} op_sel_hi:[1,0]
v_pk_mul_f32 {P(30)}, {P(78)}, {P(10)} op_sel_hi:[1,0]
v_pk_mul_f32 {P(32)}, {P(80)}, {P(10)} op_sel_hi:[1,0]
v_pk_mul_f32 {P(34)}, {P(82)}, {P(10)} op_sel_hi:[1,0]""")
    for i in range(4):
        a(f"v_add_f32_dpp v{76+i}, v{32+i}, v{76+i} row_ror:8 {DPP}")
        a(f"v_subrev_f32_dpp v{80+i}, v{28+i}, v{80+i} row_ror:8 {DPP}")
    a(f"""v_cvt_pk_bf16_f32 v36, v76, v77
v_cvt_pk_bf16_f32 v37, v78, v79
v_cvt_pk_bf16_f32 v38, v80, v81
v_cvt_pk_bf16_f32 v39, v82, v83
v_cvt_pk_bf16_f32 v44, v84, v85
v_cvt_pk_bf16_f32 v45, v86, v87
v_xor_b32 v36, v36, v23
v_xor_b32 v37, v37, v23
v_xor_b32 v38, v38, v24
v_xor_b32 v39, v39, v24
v_xor_b32 v44, v44, v22
v_xor_b32 v45, v45, v22
v_cndmask_b32 v40, v36, v38, s[42:43]
v_cndmask_b32 v41, v37, v39, s[42:43]
v_cndmask_b32 v42, v38, v36, s[42:43]
v_cndmask_b32 v43, v39, v37, s[42:43]
buffer_store_dwordx4 {Q(40)}, v11, s[12:15], s23 offen sc1
v_mov_b32_dpp v46, v44 row_ror:8 {DPP}
v_mov_b32_dpp v47, v45 row_ror:8 {DPP}
s_mov_b32 exec_lo, 0x00ff00ff
s_mov_b32 exec_hi, 0
buffer_store_dwordx4 {Q(44)}, v13, s[12:15], s23 offen sc1
s_mov_b64 exec, -1""")
    ST('a')
    a(f"""s_lshr_b32 s26, s22, 2
s_and_b32 s27, s22, 3
""")
    task_ids(a, 26)
    a(f"""s_cmp_gt_u32 s28, 320
s_cbranch_scc1 KM_k2skip
s_cmp_eq_u32 s28, 320
s_cselect_b32 s41, {32*65536}, s41
s_lshr_b32 s21, s28, 5
s_lshl_b32 s21, s21, 3
s_and_b32 s23, s28, 7
s_add_u32 s21, s21, s23
s_sub_u32 s23, 128, s21
s_cmp_eq_u32 s21, 0
s_cselect_b32 s23, 64, s23
s_bitcmp1_b32 s28, 3
s_cselect_b32 s21, s23, s21
s_mul_i32 s21, s21, 5
s_bfe_u32 s23, s28, 0x10004
s_lshl_b32 s23, s23, 7
s_add_u32 s21, s21, s23
s_add_u32 s21, s21, 128
s_sub_u32 s23, s21, 640
s_min_u32 s21, s21, s23
s_sub_u32 s23, 640, s21
s_min_u32 s21, s21, s23
s_sub_u32 s23, s28, 256
s_mul_i32 s23, s23, 5
s_cmp_ge_u32 s28, 256
s_cselect_b32 s40, s23, s21
v_and_b32 v1, 15, v0
v_bfe_u32 v2, v0, 4, 2
v_bfe_u32 v3, v0, 6, 2
v_and_b32 v9, 63, v0
v_lshl_add_u32 v4, v3, 2, v2
v_xor_b32 v10, v4, v1
v_lshl_add_u32 v4, v4, 4, v10
v_lshlrev_b32 v4, 7, v4
v_lshrrev_b32 v5, 1, v1
v_and_b32 v6, 1, v1
v_lshl_add_u32 v5, v6, 3, v5
v_lshl_add_u32 v5, v2, 4, v5
v_lshlrev_b32 v5, 4, v5
v_lshl_add_u32 v5, v3, 11, v5
s_add_u32 s21, s41, {XF}
s_add_u32 s23, s21, 32768
s_lshl_b32 s29, s28, 13
s_lshl_b32 s48, s26, 14
s_add_u32 s48, s48, {K2B}
v_lshl_add_u32 v6, v3, 4, v1
v_cvt_f32_u32 v6, v6
v_cvt_f32_u32 v7, v2
v_cvt_f32_u32 v8, v1
v_mul_f32 v7, 4.0, v7
""")
    a(f"v_mul_f32 v16, {fh(-1/2048)}, v6\nv_mul_f32 v10, v7, v16\nv_mul_f32 v11, {fh(13.0)}, v16")
    for k in range(8):
        a(f"v_cos_f32 v{56+k}, v10\nv_sin_f32 v{64+k}, v10")
        if k < 7: a(f"v_add_f32 v10, v10, v{11 if k == 3 else 16}")
    if 'gx1' in OPT:
        for l in (f"buffer_load_dwordx4 {Q(24)}, v4, s[12:15], s21 offen sc1", f"buffer_load_dwordx4 {Q(28)}, v4, s[12:15], s23 offen sc1"): a(l)
    a(f"""s_lshl_b32 s24, s27, 4
v_cvt_f32_u32 v12, s24
v_add_f32 v12, v12, v7
s_mov_b32 s38, {fh(2.0/(2048*640))}
s_cmp_eq_u32 s28, 256
s_cselect_b32 s38, {fh(1.0/(2048*640))}, s38
s_cmp_eq_u32 s28, 320
s_cselect_b32 s38, {fh(1.0/(2048*640))}, s38
s_mov_b32 s39, s38""")
    for nt in range(2):
        a(f"v_add_f32 v16, {fh(16.0*nt)}, v8\nv_mul_f32 v16, {fh(1/2048)}, v16\nv_mul_f32 v10, v12, v16")
        for i in range(4):
            k = 4*nt+i
            a(f"v_cos_f32 v{72+k}, v10\nv_sin_f32 v{80+k}, v10")
            if i < 3: a("v_add_f32 v10, v10, v16")
    for k in range(8): a(f"v_pk_mul_f32 {P(72+2*k)}, s[38:39], {P(72+2*k)}")
    a(f"""v_xor_b32 v10, v2, v1
v_lshlrev_b32 v10, 4, v10
v_lshl_add_u32 v10, v1, 8, v10
v_add_u32 v10, s48, v10
v_xor_b32 v11, 64, v10
v_xor_b32 v12, 128, v10
v_xor_b32 v13, 192, v10
v_lshlrev_b32 v7, 4, v9
v_add_u32 v7, s48, v7
s_lshl_b32 s24, s27, 10
v_add_u32 v6, s24, v7
v_lshlrev_b32 v8, 4, v9
v_lshl_add_u32 v8, v3, 11, v8
s_add_u32 s24, s24, s48
s_lshl_b32 s25, s40, 13
s_add_u32 s25, s25, {WP}
s_mov_b32 m0, s24""")
    ST('b')
    gather2(a, 'KM_gx', f"buffer_load_dwordx4 {Q(24)}, v4, s[12:15], s21 offen sc1", f"buffer_load_dwordx4 {Q(28)}, v4, s[12:15], s23 offen sc1", 24, 28, 32, pre=('gx1' in OPT), dly=OPT.get('dx', 0))
    a(f"""ds_write_b128 v6, {Q(24)}
ds_write_b128 v6, {Q(28)} offset:4096
s_add_u32 s21, s29, {YF}
s_add_u32 s23, s21, 1024
s_waitcnt lgkmcnt(0)""")
    bar(a, 'W', 'k2a')
    ST('b')
    a(f"""buffer_load_dwordx4 v[48:51], v5, s[12:15], s25 offen sc1
buffer_load_dwordx4 v[52:55], v5, s[12:15], s25 offen offset:1024 sc1""")
    D = lambda mt, t: 16+16*mt+4*t
    for t in range(4):
        for mt in range(2): a(f"ds_read_b128 {Q(D(mt,t))}, v{10+t} offset:{4096*mt}")
    def mf(d, A, B, first): a(f"v_mfma_f32_16x16x32_bf16 {Q(d)}, {Q(A)}, {Q(B)}, {'0' if first else Q(d)}")
    a("s_and_b32 s24, s28, 0xffffffbf\ns_cmp_lg_u32 s24, 256\ns_cbranch_scc1 KM_k2gen\ns_waitcnt lgkmcnt(0)\ns_cmp_eq_u32 s28, 256\ns_cbranch_scc1 KM_k2z")
    for f in range(8): a(f"v_mov_b32 v{16+4*f}, v{18+4*f}\nv_mov_b32 v{17+4*f}, v{19+4*f}")
    a("KM_k2z:")
    for f in range(8): a(f"v_mov_b32 v{18+4*f}, 0\nv_mov_b32 v{19+4*f}, 0")
    a("s_nop 1\nKM_k2gen:")
    for t in range(4):
        a(f"s_waitcnt lgkmcnt({6-2*t})")
        for mt in range(2):
            mf(88+8*mt, D(mt,t), M(t)+2, t == 0)
            mf(92+8*mt, D(mt,t), M(t), t == 0)
    def tw_pack(tr, ti, B, swap):
        for blk in range(2):
            for hh in range(2):
                r = 88+8*blk+2*hh; i = r+4; c = tr+4*blk+2*hh; s = ti+4*blk+2*hh; t = 104+4*blk+2*hh
                a(f"""v_pk_mul_f32 {P(t)}, {P(i)}, {P(s)}
v_pk_mul_f32 {P(i)}, {P(i)}, {P(c)}
v_pk_fma_f32 {P(i)}, {P(r)}, {P(s)}, {P(i)}
v_pk_fma_f32 {P(r)}, {P(r)}, {P(c)}, {P(t)} neg_lo:[0,0,1] neg_hi:[0,0,1]""")
        for blk in range(2):
            for hh in range(2):
                r = 88+8*blk+2*hh
                a(f"v_cvt_pk_bf16_f32 v{B+4*blk+hh+(2 if swap else 0)}, v{r}, v{r+1}")
                a(f"v_cvt_pk_bf16_f32 v{B+4*blk+hh+(0 if swap else 2)}, v{r+4}, v{r+5}")
    tw_pack(56, 64, 16, False)
    for y in range(2):
        for x in range(2):
            mf(88+8*x, N(x,y)+2, 16+4*y, y == 0)
            mf(92+8*x, N(x,y), 16+4*y, y == 0)
    a("s_waitcnt vmcnt(0)")
    for k in range(8): a(f"v_lshlrev_b32 v{32+k}, 16, v{48+k}\nv_and_b32 v{40+k}, 0xffff0000, v{48+k}")
    tw_pack(32, 40, 24, True)
    for y in range(2):
        for x in range(2):
            mf(88+8*x, 24+4*y, N(x,y), y == 0)
            mf(92+8*x, 24+4*y, N(x,y)+2, y == 0)
    tw_pack(72, 80, 16, True)
    a(f"ds_write_b128 v6, {Q(16)} offset:8192\nds_write_b128 v6, {Q(20)} offset:12288\ns_waitcnt lgkmcnt(0)")
    bar(a, 'W', 'k2b')
    for t in range(4):
        for nt in range(2): a(f"ds_read_b128 {Q(D(nt,t))}, v7 offset:{8192+4096*nt+1024*t}")
    for t in range(4):
        a(f"s_waitcnt lgkmcnt({6-2*t})")
        for nt in range(2):
            mf(88+8*nt, M(t), D(nt,t), t == 0)
            mf(92+8*nt, M(t)+2, D(nt,t), t == 0)
    for nt in range(2):
        o = 48+4*nt; s = 88+8*nt
        for k in range(4): a(f"v_cvt_pk_bf16_f32 v{o+k}, v{s+2*k}, v{s+2*k+1}")
        a(f"buffer_store_dwordx4 {Q(o)}, v8, s[12:15], s{21+2*nt} offen sc1")
    ST('b')
    a("s_branch KM_k2done\nKM_k2skip:\ns_barrier\ns_barrier\nKM_k2done:")
    a(f"""v_and_b32 v1, 63, v0
v_and_b32 v3, 31, v0
v_lshlrev_b32 v2, 3, v3
v_bfe_u32 v4, v0, 5, 1
v_lshl_add_u32 v2, v4, 8, v2
v_lshlrev_b32 v3, 2, v3
v_lshl_add_u32 v3, v4, 1, v3
v_and_b32 v5, 15, v0
v_bfe_u32 v6, v0, 4, 2""")
    col_slots(a, 22, 5, 6, 8, 22)
    addr_yf(a)
    a(f"""
s_and_b32 s23, s3, 15
s_lshl_b32 s23, s23, 4
s_lshr_b32 s21, s3, 4
s_lshl_b32 s21, s21, 10
s_add_u32 s23, s23, s21
s_lshr_b32 s21, s20, 1
s_lshl_b32 s21, s21, 11
s_add_u32 s23, s23, s21
s_and_b32 s21, s20, 1
s_lshl_b32 s21, s21, 9
s_add_u32 s23, s23, s21
s_add_u32 s23, s23, {YF}
s_lshl_b32 s21, s20, 3
s_add_u32 s21, s21, s22
s_lshl_b32 s24, s3, 6
s_add_u32 s24, s24, s21
s_mul_i32 s24, s24, 1280
""")
    w5_consts(a, 88, 22, 1.0)
    a(f"""
s_lshl_b32 s27, s22, 4
v_add_u32 v22, s27, v5
v_cvt_f32_u32 v22, v22
v_mul_f32 v22, {fh(1/128)}, v22
v_and_b32 v23, 1, v6
v_cvt_f32_u32 v23, v23
v_mul_f32 v23, 4.0, v23
v_lshrrev_b32 v24, 1, v6
v_cvt_f32_u32 v24, v24
v_mul_f32 v24, {fh(0.25)}, v24
v_fma_f32 v23, v23, v22, v24
v_mul_f32 v24, {fh(5.0)}, v22
v_mul_f32 v27, {fh(64.0)}, v22
v_cmp_eq_u32 vcc, 2, v6
v_cndmask_b32 v27, v23, v27, vcc
""")
    for t in range(4):
        for jj in range(4):
            a(f"""v_cos_f32 v25, v{27 if (t, jj) == (0, 0) else 23}
v_add_f32 v23, v23, v22
v_cos_f32 v26, v23
v_add_f32 v23, v23, v{24 if jj & 1 else 22}
v_cvt_pk_bf16_f32 v{96+4*t+jj}, v25, v26""")
    a(f"""
v_lshlrev_b32 v14, 5, v5
v_lshl_add_u32 v14, v6, 3, v14
s_lshl_b32 s27, s22, 9
s_add_u32 s27, s27, {TB}
v_add_u32 v14, s27, v14
v_and_b32 v15, 4096, v9
v_add_u32 v15, v15, v14
v_xor_b32 v112, 4096, v15
v_lshlrev_b32 v113, 3, v1
v_add_u32 v113, {TB}, v113
v_and_b32 v22, 7, v5
v_mul_u32_u24 v22, {ZR}, v22
v_lshl_add_u32 v22, v6, 4, v22
s_lshl_b32 s27, s22, 6
s_add_u32 s27, s27, {ZB}
v_add_u32 v17, s27, v22
v_lshrrev_b32 v22, 3, v5
v_mul_u32_u24 v22, {2*ZC}, v22
v_add_u32 v16, v17, v22
v_lshlrev_b32 v4, 2, v3
s_mul_i32 s27, s22, {ZR}
s_add_u32 s27, s27, {ZB}
v_add_u32 v7, s27, v4
v_add_u32 v4, {PB}, v4
v_and_b32 v22, 0x80000000, v9
v_xor_b32 v22, v22, v10
v_and_b32 v23, 0x80008000, v9
v_xor_b32 v24, v23, v12
""")
    for j in range(5):
        a(f"ds_read_b64 {P(120+2*j)}, v4 offset:{512*j}\nds_read_b64 {P(140+2*j)}, v4 offset:{5120+512*j}\nds_read_b64 {P(130+2*j)}, v4 offset:{2560+512*j}")
    a("s_waitcnt lgkmcnt(0)")
    ST('c')
    gather2(a, 'KM_gy', f"buffer_load_dwordx4 {Q(28)}, v11, s[12:15], s23 offen sc1", f"buffer_load_dwordx4 {Q(32)}, v13, s[12:15], s23 offen sc1", 28, 32, 36, dly=OPT.get('dy', 0))
    ST('c')
    a(f"""v_cndmask_b32 v32, v32, v34, s[42:43]
v_cndmask_b32 v33, v33, v35, s[42:43]
v_xor_b32 v26, v30, v24
v_xor_b32 v27, v31, v24
v_xor_b32 v30, v30, v12
v_xor_b32 v31, v31, v12
ds_write_b64 v14, {P(32)} offset:8192""")
    for hh in range(2):
        a(f"""v_lshlrev_b32 v{36+2*hh}, 16, v{28+hh}
v_and_b32 v{37+2*hh}, 0xffff0000, v{28+hh}
v_lshlrev_b32 v{40+2*hh}, 16, v{30+hh}
v_and_b32 v{41+2*hh}, 0xffff0000, v{30+hh}
v_lshlrev_b32 v{44+2*hh}, 16, v{28+hh}
v_and_b32 v{45+2*hh}, 0xffff0000, v{28+hh}
v_lshlrev_b32 v{48+2*hh}, 16, v{26+hh}
v_and_b32 v{49+2*hh}, 0xffff0000, v{26+hh}""")
    for i in range(4):
        a(f"v_fmac_f32_dpp v{44+i}, v{36+i}, v22 row_ror:8 {DPP}")
        a(f"v_fmac_f32_dpp v{48+i}, v{40+i}, v10 row_ror:8 {DPP}")
    a(f"""v_cvt_pk_bf16_f32 v52, v44, v45
v_cvt_pk_bf16_f32 v53, v46, v47
v_cvt_pk_bf16_f32 v54, v48, v49
v_cvt_pk_bf16_f32 v55, v50, v51
ds_write_b64 v15, {P(52)}
ds_write_b64 v112, {P(54)}
s_waitcnt lgkmcnt(0)""")
    bar(a, 'W', 'b1')
    for T in range(3):
        for t in range(4):
            for x in range(2): a(f"ds_read_b64_tr_b16 {P(28+16*T+4*t+2*x)}, v113 offset:{4096*T+1024*t+512*x}")
            if T == 1 and t == 3:
                a("s_waitcnt lgkmcnt(8)")
                for tt in range(4): a(f"v_mfma_f32_16x16x32_bf16 {Q(76)}, {Q(96+4*tt)}, {Q(28+4*tt)}, {'0' if tt == 0 else Q(76)}")
    for T in (1, 2):
        a(f"s_waitcnt lgkmcnt({8 if T == 1 else 0})")
        for t in range(4): a(f"v_mfma_f32_16x16x32_bf16 {Q(76+4*T)}, {Q(96+4*t)}, {Q(28+16*T+4*t)}, {'0' if t == 0 else Q(76+4*T)}")
    a(f"ds_write_b128 v16, {Q(76)} offset:{ZC}")
    for j in range(5): a(f"v_lshlrev_b32 v{28+2*j}, 16, v{XR+j}\nv_and_b32 v{29+2*j}, 0xffff0000, v{XR+j}")
    a(f"""ds_write_b128 v16, {Q(80)} offset:{2*ZC}
ds_write_b128 v17, {Q(84)}
s_waitcnt lgkmcnt(0)""")
    bar(a, 'W', 'b2')
    for c in range(5): a(f"ds_read_b64 {P(40+2*c)}, v7 offset:{ZC*c}")
    a("s_waitcnt lgkmcnt(0)")
    bar(a, 'W', 'b3')
    for k in range(2):
        r, im = 42+4*k, 44+4*k; c, s = 88+4*k, 90+4*k; R, I = 50+4*k, 52+4*k
        a(f"""v_pk_mul_f32 {P(R)}, {P(r)}, {P(c)}
v_pk_mul_f32 {P(I)}, {P(r)}, {P(s)}
v_pk_fma_f32 {P(R)}, {P(im)}, {P(s)}, {P(R)} neg_lo:[1,0,0] neg_hi:[1,0,0]
v_pk_fma_f32 {P(I)}, {P(im)}, {P(c)}, {P(I)}""")
    z0,z1r,z1i,z2r,z2i = 40,50,52,54,56
    A,B,Cc,Dd,E = 58,60,62,64,66
    sl = {(3*j) % 5: j for j in range(5)}
    X = lambda d2: P(28+2*sl[d2]); G = lambda d2: P(120+2*sl[d2])
    a(f"""v_pk_add_f32 {P(E)}, {P(z0)}, {P(z1r)}
v_pk_fma_f32 {P(A)}, s[30:31], {P(z1r)}, {P(z0)}
v_pk_fma_f32 {P(B)}, s[32:33], {P(z1r)}, {P(z0)}
v_pk_mul_f32 {P(Cc)}, s[34:35], {P(z1i)}
v_pk_mul_f32 {P(Dd)}, s[36:37], {P(z1i)}
v_pk_add_f32 {P(E)}, {P(E)}, {P(z2r)}
v_pk_fma_f32 {P(A)}, s[32:33], {P(z2r)}, {P(A)}
v_pk_fma_f32 {P(B)}, s[30:31], {P(z2r)}, {P(B)}
v_pk_fma_f32 {P(Cc)}, s[36:37], {P(z2i)}, {P(Cc)}
v_pk_fma_f32 {P(Dd)}, s[34:35], {P(z2i)}, {P(Dd)} neg_lo:[0,1,0] neg_hi:[0,1,0]
v_pk_fma_f32 {X(0)}, {G(0)}, {P(E)}, {X(0)}
v_pk_add_f32 {P(68)}, {P(A)}, {P(Cc)} neg_lo:[0,1] neg_hi:[0,1]
v_pk_add_f32 {P(70)}, {P(A)}, {P(Cc)}
v_pk_add_f32 {P(72)}, {P(B)}, {P(Dd)} neg_lo:[0,1] neg_hi:[0,1]
v_pk_add_f32 {P(74)}, {P(B)}, {P(Dd)}
v_pk_fma_f32 {X(1)}, {G(1)}, {P(68)}, {X(1)}
v_pk_fma_f32 {X(4)}, {G(4)}, {P(70)}, {X(4)}
v_pk_fma_f32 {X(2)}, {G(2)}, {P(72)}, {X(2)}
v_pk_fma_f32 {X(3)}, {G(3)}, {P(74)}, {X(3)}
s_add_u32 s25, s24, {X1}
s_add_u32 s26, s24, {H2F}""")
    for j in range(5): a(f"v_cvt_pk_bf16_f32 v{16+j}, v{28+2*j}, v{29+2*j}")
    a(f"""v_permlane32_swap_b32 v16, v17
v_permlane32_swap_b32 v18, v19
buffer_store_dwordx2 {P(16)}, v2, s[12:15], s25 offen sc1
buffer_store_dwordx2 {P(18)}, v2, s[12:15], s25 offen offset:512 sc1""")
    ln_rows(a, 28, 22)
    a(f"v_bfe_u32 v24, v0, 5, 1\nv_mul_u32_u24 v24, {H2F - X1 - 256}, v24\nv_add_u32 v24, v24, v2")
    for j in range(5): a(f"v_pk_mul_f32 {P(140+2*j)}, {P(140+2*j)}, {P(22)} op_sel_hi:[1,0]")
    for j in range(5): a(f"v_pk_fma_f32 {P(28+2*j)}, {P(28+2*j)}, {P(140+2*j)}, {P(130+2*j)}")
    for j in range(4): a(f"v_cvt_pk_bf16_f32 v{40+j}, v{28+2*j}, v{29+2*j}")
    a(f"""v_cvt_pk_bf16_f32 v21, v36, v37
v_permlane32_swap_b32 v40, v41
v_permlane32_swap_b32 v42, v43
v_permlane32_swap_b32 v20, v21
buffer_store_dwordx2 {P(40)}, v2, s[12:15], s26 offen sc1
buffer_store_dwordx2 {P(42)}, v2, s[12:15], s26 offen offset:512 sc1
buffer_store_dwordx2 {P(20)}, v24, s[12:15], s25 offen offset:1024 sc1""")
    ST('c')
    a(f"""v_mov_b32 v2, v1
s_lshr_b32 s26, s22, 2
s_and_b32 s27, s22, 3
v_lshrrev_b32 v3, 4, v2
v_bfe_u32 v4, v2, 2, 2
v_lshl_add_u32 v4, v3, 3, v4
v_mul_u32_u24 v4, 192, v4
v_and_b32 v5, 3, v2
v_lshl_add_u32 v4, v5, 3, v4
v_and_b32 v5, 1, v3
v_lshlrev_b32 v5, 5, v5
s_mul_i32 s28, s26, 96
v_add_u32 v4, s28, v4
s_cmp_eq_u32 s26, 0
s_cselect_b32 s29, 1, -1
v_mul_lo_u32 v5, v5, s29
v_add_u32 v6, v4, v5
v_sub_u32 v7, v4, v5
v_add_u32 v8, {4*WS_}, v6
v_add_u32 v9, {4*WS_}, v7
v_and_b32 v10, 15, v2
v_lshrrev_b32 v11, 1, v10
v_xor_b32 v11, v11, v3
v_lshlrev_b32 v11, 4, v11
v_lshl_add_u32 v11, v10, 7, v11
s_lshl_b32 s28, s27, 12
s_add_u32 s28, s28, {HB}
v_add_u32 v11, s28, v11
v_xor_b32 v12, 64, v11
s_load_dwordx2 s[60:61], s[0:1], 72
s_waitcnt vmcnt(0)""")
    ST('c')
    bar(a, 'W', 'd1')
    ACC = lambda mat, i, nt: 16 + 4*(6*nt + 3*mat + i)
    FA = lambda buf, mat, i: 64 + 32*buf + 4*(3*mat+i)
    FB = lambda buf, nt: 88 + 32*buf + 4*nt
    def reads(s):
        L = []; sl = s % 8
        for nt in range(2): L.append(f"ds_read_b128 {Q(FB(s & 1, nt))}, v{11 + (s & 1)} offset:{((s//2) % 4)*HS + 2048*nt}")
        for mat in range(2):
            for i in range(3):
                for x in range(2):
                    L.append(f"ds_read_b64_tr_b16 {P(FA(s & 1, mat, i) + 2*x)}, v{6 + (i & 1) + 2*(sl//4)} offset:{(sl % 4)*WS_ + mat*6144 + 4*x*192 + 32*i}")
        return L
    bar(a, 'W', 'B0')
    ST('d')
    for l in reads(0): a(l)
    for s in range(NST):
        a("s_waitcnt lgkmcnt(0)")
        if s & 1: bar(a, 'W', f'B{(s+1)//2}')
        R = reads(s+1) if s+1 < NST else []
        k = 0
        for mat in range(2):
            for i in range(3):
                for nt in range(2):
                    c = ACC(mat, i, nt)
                    a(f"v_mfma_f32_16x16x32_bf16 {Q(c)}, {Q(FA(s & 1, mat, i))}, {Q(FB(s & 1, nt))}, {'0' if s == 0 else Q(c)}")
                    for l in R[2*k:2*k+2]: a(l)
                    k += 1
    ST('d')
    kk = 2*0.7978845608028654*math.log2(math.e)
    a(f"""s_mov_b32 s30, {fh(-kk*0.044715)}
s_mov_b32 s31, {fh(-kk*0.044715)}
v_mov_b32 v10, {fh(-kk)}
v_mov_b32 v11, {fh(-kk)}
s_lshl_b32 s29, s50, 3
s_lshl_b32 s28, s27, 1
s_add_u32 s29, s29, s28
s_mul_i32 s29, s29, 49152
s_mul_i32 s28, s51, 3072
s_add_u32 s29, s29, s28
s_mul_i32 s28, s26, 1536
s_add_u32 s29, s29, s28
s_add_u32 s29, s29, {HIDF}
v_bfe_u32 v7, v2, 4, 1
v_mul_u32_u24 v7, 49152, v7
v_lshrrev_b32 v8, 5, v2
v_lshl_add_u32 v7, v8, 8, v7
v_and_b32 v8, 15, v2
v_lshl_add_u32 v7, v8, 4, v7""")
    for nt in range(2):
        Gt = ACC(0, 0, nt); U = ACC(1, 0, nt); T = 64 + 16*nt
        for i in range(0, 12, 2): a(f"v_pk_mul_f32 {P(T+i)}, {P(Gt+i)}, {P(Gt+i)}")
        for i in range(0, 12, 2): a(f"v_pk_fma_f32 {P(T+i)}, {P(T+i)}, s[30:31], {P(10)}")
        for i in range(0, 12, 2): a(f"v_pk_mul_f32 {P(T+i)}, {P(T+i)}, {P(Gt+i)}")
        for i in range(0, 12, 2): a(f"v_exp_f32 v{T+i}, v{T+i}\nv_exp_f32 v{T+i+1}, v{T+i+1}\nv_pk_mul_f32 {P(Gt+i)}, {P(Gt+i)}, {P(U+i)}")
        for i in range(0, 12, 2): a(f"v_pk_add_f32 {P(T+i)}, {P(T+i)}, 1.0 op_sel_hi:[1,0]")
        for i in range(12): a(f"v_rcp_f32 v{T+i}, v{T+i}")
        for i in range(0, 12, 2): a(f"v_pk_mul_f32 {P(Gt+i)}, {P(Gt+i)}, {P(T+i)}")
        for i in range(3):
            O = 96 + 4*i + 2*nt
            a(f"v_cvt_pk_bf16_f32 v{O}, v{Gt+4*i}, v{Gt+4*i+1}\nv_cvt_pk_bf16_f32 v{O+1}, v{Gt+4*i+2}, v{Gt+4*i+3}")
    for i in range(3):
        O = 96 + 4*i
        a(f"""v_permlane16_swap_b32 v{O}, v{O+2}
v_permlane16_swap_b32 v{O+1}, v{O+3}
buffer_store_dwordx4 {Q(O)}, v7, s[12:15], s29 offen offset:{512*i} sc1""")
    ST('d')
    a(f"""s_lshl_b32 s30, s50, 3
s_lshr_b32 s28, s51, 3
s_lshl_b32 s28, s28, 2
s_add_u32 s30, s30, s28
s_add_u32 s30, s30, s27
s_mul_i32 s29, s30, 49152
s_lshl_b32 s28, s26, 10
s_add_u32 s29, s29, s28
s_add_u32 s29, s29, {HIDF}
s_lshl_b32 s30, s30, 4
s_and_b32 s24, s51, 7
v_lshrrev_b32 v3, 2, v2
v_mul_u32_u24 v3, 160, v3
v_and_b32 v4, 3, v2
v_lshl_add_u32 v3, v4, 3, v3
s_mul_i32 s28, s26, 5120
v_add_u32 v3, s28, v3
v_add_u32 v4, {6*DW}, v3
v_add_u32 v5, {12*DW}, v3
v_lshlrev_b32 v6, 4, v2
v_and_b32 v12, 15, v2
v_lshrrev_b32 v13, 4, v2
v_mul_u32_u24 v8, 1280, v12
v_lshl_add_u32 v8, v13, 3, v8
s_mul_i32 s23, s30, 1280
s_mul_i32 s25, s24, 160
s_add_u32 s23, s23, s25
s_add_u32 s23, s23, {X1}
v_lshlrev_b32 v15, 4, v13
s_lshl_b32 s28, s25, 1
s_add_u32 s28, s28, 12800
s_lshl_b32 s21, s26, 6
s_add_u32 s23, s23, s21
s_lshl_b32 s21, s26, 7
s_add_u32 s28, s28, s21
s_waitcnt vmcnt(0)""")
    ST('d')
    if 'nohs' in OPT: bar(a, 'W', 'd2')
    a("s_mov_b32 s41, s29")
    srd(a, 16, 60, 2048*1280)
    AC2 = lambda mt: 16 + 4*mt
    FA2 = lambda buf, mt: 36 + 20*buf + 4*mt
    NB = OPT.get('nb', 10)
    FB2 = lambda s: 76 + 4*(s % NB)
    def reads2(s):
        p = WPOS(s)
        return [f"ds_read_b64_tr_b16 {P(FA2(s & 1, mt) + 2*x)}, v{3+p//6} offset:{(p % 6)*DW + x*2560 + 32*mt}" for mt in range(5) for x in range(2)]
    def ldb(s):
        a(f"buffer_load_dwordx4 {Q(FB2(s))}, v6, s[12:15], s29 offen offset:{2048*(s & 1)} sc1")
        if s & 1: a("s_add_u32 s29, s29, 4096")
    bar(a, 'W', 'C0')
    ST('d')
    nb = 0; nx = 0
    for s in range(NB-1): ldb(s); nb += 1
    for l in reads2(0): a(l)
    for s in range(NS2):
        f = FB2(s)
        if 'nohs' in OPT: a(f"s_waitcnt vmcnt({nb-s-1+nx}) lgkmcnt(0)\nKM_hr{s}:")
        else: a(f"""s_waitcnt vmcnt({nb-s-1+nx})
v_max3_u32 v9, v{f}, v{f+1}, v{f+2}
v_max_u32 v9, v9, v{f+3}
v_cmp_eq_u32 vcc, -1, v9
s_waitcnt lgkmcnt(0)
s_cmp_lg_u64 vcc, 0
s_cbranch_scc1 KM_hs{s}
KM_hr{s}:""")
        if s in CB: bar(a, 'W', f'C{s}')
        if nb < NS2: ldb(nb); nb += 1
        elif nx < 6:
            k = nx // 2
            a(f"buffer_load_dwordx2 {P(116+2*k)}, v8, s[12:15], s23 offen offset:{32*k} sc1")
            a(f"buffer_load_dwordx4 {Q(128+4*k)}, v15, s[12:15], s28 offen offset:{64*k} sc1")
            nx += 2
        R = reads2(s+1) if s+1 < NS2 else []
        for mt in range(5):
            c = AC2(mt)
            a(f"v_mfma_f32_16x16x32_bf16 {Q(c)}, {Q(FA2(s & 1, mt))}, {Q(FB2(s))}, {'0' if s == 0 else Q(c)}")
            for l in R[2*mt:2*mt+2]: a(l)
    RB = WPOS(10)*DW
    ST('d')
    a(f"""s_mul_i32 s28, s27, 5120
s_add_u32 s28, s28, {RB}
v_add_u32 v6, s28, v6
s_and_b32 s23, s30, 63
s_lshl_b32 s23, s23, 5
s_lshr_b32 s29, s30, 6
s_add_u32 s23, s23, s29
s_mul_i32 s23, s23, 1280
s_add_u32 s23, s23, s25
v_mul_u32_u24 v8, 40960, v12
v_lshl_add_u32 v8, v13, 3, v8
s_cmp_eq_u32 s26, 0
s_cbranch_scc1 KM_lo""")
    def fin(give, keep, base):
        for mt in give: a(f"ds_write_b128 v6, {Q(AC2(mt))} offset:{1024*mt}")
        a("s_waitcnt vmcnt(0)")
        for mt in keep:
            x = 116+2*(mt-base); r = 76+4*mt
            a(f"v_lshlrev_b32 v{r}, 16, v{x}\nv_and_b32 v{r+1}, 0xffff0000, v{x}\nv_lshlrev_b32 v{r+2}, 16, v{x+1}\nv_and_b32 v{r+3}, 0xffff0000, v{x+1}")
        a("s_waitcnt lgkmcnt(0)\ns_barrier")
        for mt in keep: a(f"ds_read_b128 {Q(36+4*mt)}, v6 offset:{1024*mt}")
        for n, mt in enumerate(keep):
            c = AC2(mt); x = 116+2*(mt-base); g = 128+4*(mt-base); r = 36+4*mt; o = 76+4*mt
            a(f"""s_waitcnt lgkmcnt({len(keep)-1-n})
v_pk_add_f32 {P(c)}, {P(c)}, {P(r)}
v_pk_add_f32 {P(c+2)}, {P(c+2)}, {P(r+2)}
v_pk_fma_f32 {P(o)}, {P(c)}, {P(g)}, {P(o)}
v_pk_fma_f32 {P(o+2)}, {P(c+2)}, {P(g+2)}, {P(o+2)}
v_cvt_pk_bf16_f32 v{x}, v{o}, v{o+1}
v_cvt_pk_bf16_f32 v{x+1}, v{o+2}, v{o+3}
buffer_store_dwordx2 {P(x)}, v8, s[16:19], s23 offen offset:{32*mt} {OPT.get('osc', '')}""")
        a("@dump 12\ns_endpgm")
    nst = a.st.n
    fin([0,1,2], [3,4], 2)
    a.st.n = nst
    a("KM_lo:")
    fin([3,4], [0,1,2], 0)
    a.st.n = 1
    for s in range(NS2):
        f = FB2(s)
        a(f"""KM_hs{s}:
s_add_u32 s40, s41, {2048*s}
s_mov_b32 s46, 0x8000
KM_hl{s}:
s_mov_b64 exec, vcc
s_sleep 2
buffer_load_dwordx4 {Q(f)}, v6, s[12:15], s40 offen sc1
s_waitcnt vmcnt(0)
v_max3_u32 v9, v{f}, v{f+1}, v{f+2}
v_max_u32 v9, v9, v{f+3}
v_cmp_eq_u32 vcc, -1, v9
s_mov_b64 exec, -1
s_sub_u32 s46, s46, 1
s_cmp_eq_u32 s46, 0
s_cbranch_scc1 KM_hr{s}
s_cmp_lg_u64 vcc, 0
s_cbranch_scc1 KM_hl{s}
s_branch KM_hr{s}""")
    a(f"""KM_prod:
s_sub_u32 s47, s22, 8
s_waitcnt lgkmcnt(0)""")
    if OPT.get('wb'): a(f"s_add_u32 s6, s6, {OPT['wb']}\ns_addc_u32 s7, s7, 0")
    srd(a, 12, 6, WS_SIZE)
    srd(a, 16, 60, 256)
    a(f"""v_mov_b32 v60, 0
s_load_dwordx4 s[56:59], s[0:1], 32
s_load_dwordx2 s[4:5], s[0:1], 48
v_lshlrev_b32 v59, 4, v1
s_sub_u32 s53, s2, 80
s_xor_b32 s54, s47, 2
s_mul_i32 s54, s54, 192
s_sub_u32 s21, s2, 64
s_add_u32 s54, s54, s21
s_cmp_lt_u32 s2, 64
s_cselect_b32 s54, 999, s54
s_cmp_ge_u32 s47, 2
s_cbranch_scc1 KM_p_wp
s_cmp_lg_u32 s47, 0
s_cbranch_scc1 KM_p_pf
s_branch KM_p_no0
KM_p_pf:""")
    if 'nocpf' not in OPT:
        a(f"""s_cmp_lt_u32 s2, {256 - OPT.get('ncp', 16)}
s_cbranch_scc1 KM_p_no0
s_getpc_b64 s[38:39]
KM_pc:
s_sub_u32 s38, s38, KM_pc-{NAME}
s_subb_u32 s39, s39, 0
v_lshlrev_b32 v86, 7, v1""")
        for k in range(4):
            a(f"""v_add_u32 v87, {8192*k}, v86
v_min_u32 v87, KM_end-{NAME}, v87
global_load_dword v{88+k}, v87, s[38:39]""")
    a(f"""KM_p_no0:
s_waitcnt lgkmcnt(0)""")
    ST('n')
    bar(a, 'P', 'g1')
    ST('n')
    a(f"""v_mov_b32 v62, {NON}
ds_read_b32 v61, v62
s_mul_i32 s23, s47, 5120
s_add_u32 s23, s23, {MODG}
s_add_u32 s21, s23, 4096
v_lshlrev_b32 v62, 4, v1
s_mul_i32 s24, s47, 2560
s_add_u32 s24, s24, {PB1}
v_lshlrev_b32 v63, 3, v1
v_add_u32 v63, s24, v63
s_lshl_b32 s25, s2, 7
s_add_u32 s25, s25, {GFL}
s_lshl_b32 s26, s47, 14
s_add_u32 s26, s26, {GFL}
s_add_u32 s27, s26, 8192
v_lshlrev_b32 v58, 7, v1
s_waitcnt lgkmcnt(0)
s_cmp_lg_u32 s47, 0
s_cbranch_scc1 KM_p_nf
s_mov_b64 exec, 1
buffer_store_dword v61, v60, s[12:15], s25 offen sc1
s_mov_b64 exec, -1
KM_p_nf:""")
    ld = "\n".join([f"buffer_load_dwordx4 {Q(8+4*q)}, v62, s[12:15], {'s23' if q < 4 else 's21'} offen offset:{1024*(q % 4)} sc1" for q in range(5)])
    cm = "v_cmp_ne_u32 vcc, v9, v61\n" + "\n".join([f"v_cmp_ne_u32 s[38:39], v{r}, v61\ns_or_b64 vcc, vcc, s[38:39]" for r in range(11, 28, 2)])
    spin(a, 'KM_pg', ld, cm, slp=OPT.get('gs', 4))
    for q in range(5): a(f"v_mov_b32 v{9+4*q}, v{10+4*q}\nds_write_b64 v63, {P(8+4*q)} offset:{512*q}")
    a("s_waitcnt lgkmcnt(0)")
    ST('p')
    a("s_barrier")
    spin(a, 'KM_A_p', "buffer_load_dword v11, v58, s[12:15], s26 offen sc1\nbuffer_load_dword v12, v58, s[12:15], s27 offen sc1", "v_cmp_ne_u32 vcc, v11, v61\nv_cmp_ne_u32 s[38:39], v12, v61\ns_or_b64 vcc, vcc, s[38:39]")
    ST('p')
    a("s_branch KM_p_ag2")
    a(f"""KM_p_wp:
s_sub_u32 s21, s47, 2""")
    def yfpre():
        a('s_sub_u32 s40, s47, 2')
        task_ids(a, 40)
        a(f"""s_cmp_gt_u32 s28, 320
s_cbranch_scc1 KM_p_nyf
s_lshl_b32 s28, s28, 13
s_add_u32 s28, s28, {YF}
s_add_u32 s29, s28, 4096
v_mov_b32 v64, -1
v_mov_b32 v65, -1
v_mov_b32 v66, -1
v_mov_b32 v67, -1""")
        for q in range(8): a(f"buffer_store_dwordx4 {Q(64)}, v59, s[12:15], {'s28' if q < 4 else 's29'} offen offset:{1024*(q % 4)} sc1")
        a("KM_p_nyf:")
    if OPT.get('yp', '0') == '0': yfpre()
    a(f"""s_mul_i32 s21, s21, 176
s_add_u32 s21, s21, s53
s_cmp_lt_u32 s2, 80
s_cbranch_scc1 KM_p_nowp""")
    TOUCH = f"""s_mov_b64 s[44:45], exec
s_mov_b64 exec, -1
s_waitcnt lgkmcnt(0)
s_cmp_eq_u32 s47, 2
s_cselect_b32 s16, s56, s58
s_cselect_b32 s17, s57, s59
s_mov_b32 s18, {640*3072}
s_mov_b32 s19, 0x00020000
s_mul_i32 s40, s2, 7680
v_and_b32 v84, 63, v0
v_min_u32 v84, 59, v84
v_lshlrev_b32 v84, 7, v84
buffer_load_dword v85, v84, s[16:19], s40 offen
s_mov_b64 exec, s[44:45]"""
    st_save = gen.STAMPS; gen.STAMPS = False
    tmp = Asm2(); tmp.st = a.st
    if 'wp1' in OPT: wprep(tmp, 21, 24, 26, 12, 'sc1')
    else:
        tmp('s_lshl_b32 s45, s47, 13')
        wprep2(tmp, 21, 24, 26, 12, 'sc1', 's45')
    gen.STAMPS = st_save
    for ins in tmp.ins:
        if ins.kind == 'nop': continue
        if ins.text.strip() == 's_waitcnt vmcnt(0)':
            nsv = a.st.n; a.st.n = 1; ST('n'); a("s_barrier"); ST('n'); a.st.n = nsv; a("s_waitcnt vmcnt(0)"); continue
        a(ins.text)
    a("s_branch KM_p_wd\nKM_p_nowp:\ns_barrier\nKM_p_wd:\nv_and_b32 v2, 63, v0\ns_waitcnt lgkmcnt(0)")
    if OPT.get('yp', '0') == 'g1': yfpre()
    bar(a, 'P', 'g2')
    a("KM_p_ag2:")
    a(f"""v_mov_b32 v62, {NON}
ds_read_b32 v61, v62
v_and_b32 v2, 63, v0
s_waitcnt vmcnt(0) lgkmcnt(0)
s_cmp_lt_u32 s47, 2
s_cselect_b32 s8, s56, s58
s_cselect_b32 s9, s57, s59
s_mov_b32 s10, {640*3072}
s_mov_b32 s11, 0x00020000""")
    bar(a, 'P', 'k1a')
    a("""s_or_b32 s23, s2, s47
s_cmp_lg_u32 s23, 0
s_cbranch_scc1 KM_p_nr
s_mov_b64 exec, 1
buffer_store_dword v60, v60, s[16:19], 0 offen sc1
s_mov_b64 exec, -1
KM_p_nr:""")
    srd(a, 16, 4, 1536*1280)
    a(f"""s_cmp_ge_u32 s54, 384
s_cbranch_scc1 KM_p_nwd
s_lshr_b32 s24, s54, 3
s_and_b32 s25, s54, 7
s_mul_i32 s55, s25, {1536*160}
s_mul_i32 s21, s24, 5120
s_add_u32 s55, s55, s21
s_add_u32 s55, s55, {WDT}
s_mul_i32 s24, s24, {32*1280}
s_mul_i32 s25, s25, 160
s_add_u32 s24, s24, s25""")
    for q in range(5):
        a(f"""v_add_u32 v12, {64*q}, v2
v_mul_u32_u24 v14, 52429, v12
v_lshrrev_b32 v14, 19, v14
v_mul_u32_u24 v15, 10, v14
v_sub_u32 v15, v12, v15
v_and_b32 v36, 3, v14
v_bfe_u32 v37, v14, 2, 2
v_lshl_add_u32 v36, v37, 3, v36
v_lshrrev_b32 v37, 4, v14
v_lshl_add_u32 v36, v37, 2, v36
v_mul_u32_u24 v36, 1280, v36
v_lshl_add_u32 v36, v15, 4, v36
buffer_load_dwordx4 {Q(64+4*q)}, v36, s[16:19], s24 offen""")
    a("KM_p_nwd:")
    def touch():
        a("s_cmp_lt_u32 s47, 2\ns_cbranch_scc1 KM_p_nt")
        a(TOUCH)
        a("KM_p_nt:")
    if OPT.get('tp', 'k1a') == 'k1a': touch()
    for q in range(3):
        a(f"""v_add_u32 v10, {64*q}, v2
v_mul_u32_u24 v11, 43691, v10
v_lshrrev_b32 v11, 19, v11
v_mul_u32_u24 v12, 12, v11
v_sub_u32 v12, v10, v12
v_lshrrev_b32 v13, 2, v11
v_and_b32 v13, 2, v13
v_xor_b32 v12, v12, v13
v_mul_u32_u24 v11, 3072, v11
v_lshl_add_u32 v11, v12, 4, v11
v_subrev_u32 v{50+q}, {1024*q}, v11""")
    for q in range(4):
        a(f"""v_lshrrev_b32 v10, 4, v2
v_add_u32 v10, {4*q}, v10
v_xor_b32 v10, v10, v2
v_and_b32 v10, 7, v10
v_lshrrev_b32 v11, 3, v2
v_mul_u32_u24 v11, 1280, v11
v_lshl_add_u32 v11, v10, 4, v11
v_add_u32 v{53+q}, {q*(10240-1024)}, v11""")
    a(f"""
s_and_b32 s26, s47, 1
s_mul_i32 s27, s26, {16*3072}
s_mul_i32 s28, s51, 192
s_add_u32 s27, s27, s28
s_mul_i32 s28, s47, 3072
s_lshl_b32 s29, s50, 2
s_add_u32 s29, s29, s47
s_mul_i32 s29, s29, 40960
s_add_u32 s29, s29, {H2F}
s_lshl_b32 s30, s47, 12
v_and_b32 v58, 15, v2
v_lshlrev_b32 v58, 7, v58
v_and_b32 v57, 3, v2
v_lshlrev_b32 v57, 7, v57
v_lshlrev_b32 v59, 4, v2
v_lshlrev_b32 v63, 7, v2""")
    def iw(s):
        a(f"s_add_u32 m0, s28, {(s % 8)*WS_}")
        for q in range(3): a(f"buffer_load_dwordx4 v{50+q}, s[8:11], s27 offen offset:{1024*q} sc1 lds")
        a(f"s_add_u32 s27, s27, {32*3072}")
    def ih(d):
        a(f"s_add_u32 m0, s30, {HB + (d % 4)*HS}")
        for q in range(4): a(f"buffer_load_dwordx4 v{53+q}, s[12:15], s33 offen offset:{1024*q} sc1 lds")
        a("s_add_u32 s33, s33, 128")
    bar(a, 'P', 'k2a')
    a("s_cmp_ge_u32 s54, 384\ns_cbranch_scc1 KM_p_nwd2\ns_add_u32 s54, s55, 4096\ns_waitcnt vmcnt(0)")
    for q in range(5): a(f"buffer_store_dwordx4 {Q(64+4*q)}, v59, s[12:15], {'s55' if q < 4 else 's54'} offen offset:{1024*(q % 4)} sc1")
    a("KM_p_nwd2:")
    a(f"""s_lshl_b32 s23, s47, 11
s_add_u32 m0, s23, {PB}
s_add_u32 s23, s23, 5120
buffer_load_dwordx4 v59, s[12:15], s23 offen sc1 lds
buffer_load_dwordx4 v59, s[12:15], s23 offen offset:1024 sc1 lds""")
    W0 = OPT.get('w0', 'k2a')
    if W0 == 'k2a' and 'dual' in OPT:
        a("s_cmp_lt_u32 s2, 65\ns_cbranch_scc1 KM_p_dual")
        for s in range(0, 4): iw(s)
        a("s_waitcnt vmcnt(12)\ns_barrier\ns_branch KM_p_dual2\nKM_p_dual:\ns_waitcnt vmcnt(0)")
        bar(a, 'P', 'k2b')
        for s in range(0, 4): iw(s)
        a("KM_p_dual2:")
    elif W0 == 'k2a':
        for s in range(0, 4): iw(s)
        a("s_waitcnt vmcnt(12)")
    elif W0 == 'split':
        for s in range(0, 2): iw(s)
        a("s_waitcnt vmcnt(6)")
    else: a("s_waitcnt vmcnt(0)")
    if 'dual' not in OPT: bar(a, 'P', 'k2b')
    if W0 == 'k2b':
        for s in range(0, 4): iw(s)
    if OPT.get('tp', 'k1a') == 'k2b': touch()
    a(f"""s_lshl_b32 s23, s50, 3
s_lshl_b32 s24, s47, 1
s_add_u32 s23, s23, s24
s_mul_i32 s23, s23, 49152
s_mul_i32 s24, s51, 3072
s_add_u32 s23, s23, s24
s_add_u32 s23, s23, {HIDF}
s_add_u32 s24, s23, 49152
v_mov_b32 v88, -1
v_mov_b32 v89, -1
v_mov_b32 v90, -1
v_mov_b32 v91, -1""")
    def hpre():
        if 'nohs' in OPT: return
        for q in range(6): a(f"buffer_store_dwordx4 {Q(88)}, v59, s[12:15], {'s23' if q < 3 else 's24'} offen offset:{1024*(q % 3)} sc1")
    if OPT.get('hp', 'b1') == 'k2b': hpre()
    if OPT.get('wp', 'd1') == 'k2b':
        for s in range(4, 8): iw(s)
    bar(a, 'P', 'b1')
    if OPT.get('tp', 'k1a') == 'b1': touch()
    if OPT.get('hp', 'b1') == 'b1': hpre()
    if W0 == 'b1':
        for s in range(0, 4): iw(s)
    if W0 == 'split':
        for s in range(2, 4): iw(s)
    if OPT.get('wp', 'd1') == 'b1':
        for s in range(4, 8): iw(s)
    bar(a, 'P', 'b2')
    bar(a, 'P', 'b3')
    if OPT.get('hp', 'b1') == 'b3': hpre()
    if W0 == 'b3':
        for s in range(0, 4): iw(s)
    if OPT.get('wp', 'd1') == 'b3':
        for s in range(4, 8): iw(s)
    a(f"""s_lshl_b32 s48, s50, 4
s_add_u32 s48, s48, s51
s_lshl_b32 s48, s48, 7
s_add_u32 s48, s48, {FLG}
s_lshl_b32 s23, s50, 2
s_add_u32 s23, s23, s47
s_lshl_b32 s23, s23, 9
s_add_u32 s23, s23, {FLG}
s_and_b32 s24, s51, 7
s_mul_i32 s31, s47, 2560
s_mul_i32 s32, s24, {1536*160}
s_add_u32 s32, s32, s31
s_add_u32 s32, s32, {WDT}
s_waitcnt vmcnt(0)""")
    bar(a, 'P', 'd1')
    a(f"""s_cmp_lg_u32 s47, 0
s_cbranch_scc1 KM_na1
s_mov_b64 exec, 1
buffer_store_dword v61, v60, s[12:15], s48 offen sc1
s_mov_b64 exec, -1
KM_na1:""")
    cnt = []
    def iw2(s):
        a(f"""s_add_u32 m0, s31, {WPOS(s)*DW}
buffer_load_dwordx4 v59, s[12:15], s32 offen sc1 lds
buffer_load_dwordx4 v59, s[12:15], s32 offen offset:1024 sc1 lds
s_mov_b32 exec_hi, 0
buffer_load_dwordx4 v59, s[12:15], s32 offen offset:2048 sc1 lds
s_mov_b32 exec_hi, -1
s_add_u32 s32, s32, 10240""")
    def grp(d):
        ih(d); n = 4
        if d >= 4:
            iw(2*d); iw(2*d+1); n += 6
        cnt.append(n)
    a(f"v_add_u32 v62, s30, v59\nv_add_u32 v62, {HB}, v62")
    def hl(d, q): return f"buffer_load_dwordx4 {Q(96+16*d+4*q)}, v{53+q}, s[12:15], s29 offen offset:{1024*q+128*d} sc1"
    for d in range(4):
        for q in range(4): a(hl(d, q))
    XW = 0
    if OPT.get('wp', 'd1') == 'd1':
        for s in range(4, 8): iw(s)
        XW = 12
    nw2 = 0
    def hchk(d):
        R = 96+16*d
        a(f"s_mov_b32 s46, 0x8000\ns_waitcnt vmcnt({4*(3-d)+XW})\ns_branch KM_hc{d}\nKM_hq{d}:\ns_sleep 2")
        for q in range(4): a(hl(d, q))
        a(f"s_waitcnt vmcnt(0)\nKM_hc{d}:")
        a(f"v_max3_u32 v12, v{R}, v{R+1}, v{R+2}")
        for k in range(3, 15, 2): a(f"v_max3_u32 v12, v12, v{R+k}, v{R+k+1}")
        a(f"""v_max_u32 v12, v12, v{R+15}
v_cmp_eq_u32 vcc, -1, v12
s_nop 1
s_and_b64 exec, exec, vcc
s_cbranch_scc0 KM_ho{d}
s_sub_u32 s46, s46, 1
s_cmp_lg_u32 s46, 0
s_cbranch_scc1 KM_hq{d}
KM_ho{d}:
s_mov_b64 exec, -1""")
        for q in range(4): a(f"ds_write_b128 v62, {Q(R+4*q)} offset:{d*HS+1024*q}")
    for d in range(10):
        if d == 0:
            hchk(0); a("s_waitcnt lgkmcnt(0)"); ST('p')
        elif d == 1:
            hchk(1); a("s_waitcnt lgkmcnt(0)")
        elif d >= 4:
            a(f"s_waitcnt vmcnt({sum(cnt[d-3:])})")
        bar(a, 'P', f'B{d}')
        if d == 1:
            iw(8); iw(9)
            a("s_waitcnt vmcnt(6)")
            hchk2 = True
            for dd in (2, 3):
                R = 96+16*dd
                a(f"s_mov_b32 s46, 0x8000\ns_branch KM_hc{dd}\nKM_hq{dd}:\ns_sleep 2")
                for q in range(4): a(hl(dd, q))
                a(f"s_waitcnt vmcnt(0)\nKM_hc{dd}:")
                a(f"v_max3_u32 v12, v{R}, v{R+1}, v{R+2}")
                for k in range(3, 15, 2): a(f"v_max3_u32 v12, v12, v{R+k}, v{R+k+1}")
                a(f"""v_max_u32 v12, v12, v{R+15}
v_cmp_eq_u32 vcc, -1, v12
s_nop 1
s_and_b64 exec, exec, vcc
s_cbranch_scc0 KM_ho{dd}
s_sub_u32 s46, s46, 1
s_cmp_lg_u32 s46, 0
s_cbranch_scc1 KM_hq{dd}
KM_ho{dd}:
s_mov_b64 exec, -1""")
                for q in range(4): a(f"ds_write_b128 v62, {Q(R+4*q)} offset:{dd*HS+1024*q}")
            a("s_waitcnt lgkmcnt(0)\ns_add_u32 s33, s29, 512")
        elif d == 2:
            spin(a, 'KM_p1', "buffer_load_dword v11, v57, s[12:15], s23 offen sc1", "v_cmp_ne_u32 vcc, v11, v61")
            ih(4); cnt.append(4)
            grp(5)
        elif d >= 3 and d+3 < 10: grp(d+3)
        if d >= 7:
            for _ in range(EARLY[d]): iw2(nw2); nw2 += 1
            cnt.append(3*EARLY[d])
    bar(a, 'P', 'B10')
    while nw2 < NWD: iw2(nw2); nw2 += 1
    if 'nohs' in OPT:
        a(f"""s_lshl_b32 s23, s50, 11
s_add_u32 s23, s23, {FLG + 32768}
s_add_u32 s48, s48, 32768""")
        bar(a, 'P', 'd2')
        a(f"""s_cmp_eq_u32 s47, 1
s_cbranch_scc0 KM_nb2
s_mov_b64 exec, 1
buffer_store_dword v61, v60, s[12:15], s48 offen sc1
s_mov_b64 exec, -1
KM_nb2:
s_cmp_lg_u32 s47, 0
s_cbranch_scc1 KM_na2""")
        spin(a, 'KM_p2', "buffer_load_dword v11, v58, s[12:15], s23 offen sc1", "v_cmp_ne_u32 vcc, v11, v61")
        a("KM_na2:")
    a("s_waitcnt vmcnt(0)")
    ST('p')
    bar(a, 'P', 'C0')
    pend = []
    for s in CB:
        need = [t for t in pend if t <= NEXTCB[s]]
        a(f"s_waitcnt vmcnt({3*(len(pend)-len(need))})")
        bar(a, 'P', f'C{s}')
        pend = [t for t in pend if t not in need]
        while nw2 < NS2 and nw2 - NWD <= s:
            iw2(nw2); pend.append(nw2); nw2 += 1
    a("@dump 12\nKM_end:\ns_endpgm")
    assert bar.seq['W'] == bar.seq['P'], (bar.seq['W'], bar.seq['P'])
    return kd_block(NAME, 168, 100)
if __name__ == '__main__':
    OPT = {}; out = 'mega.s'
    for x in sys.argv[1:]:
        if x.endswith('.s'): out = x
        elif x.startswith('st='): gen.STAMPS = True; OPT['st'] = x[3:]
        elif x.startswith('slp'): gen.SLP = int(x[3:])
        elif x.startswith('bk'): OPT['bk'] = int(x[2:])
        elif x.startswith('tp='): OPT['tp'] = x[3:]
        elif x.startswith('hp='): OPT['hp'] = x[3:]
        elif x.startswith('osc='): OPT['osc'] = x[4:]
        elif x.startswith('yp='): OPT['yp'] = x[3:]
        elif x.startswith('w0='): OPT['w0'] = x[3:]
        elif x.startswith('gd='): OPT['gd'] = int(x[3:])
        elif x.startswith('gs='): OPT['gs'] = int(x[3:])
        elif x.startswith('e0='): OPT['e0'] = int(x[3:])
        elif x.startswith('nb='): OPT['nb'] = int(x[3:])
        elif x.startswith('dx='): OPT['dx'] = int(x[3:])
        elif x.startswith('dy='): OPT['dy'] = int(x[3:])
        elif x.startswith('ncp='): OPT['ncp'] = int(x[4:])
        elif x.startswith('wb='): OPT['wb'] = int(x[3:]) << 20
        elif x.startswith('wp='): OPT['wp'] = x[3:]
        else: OPT[x] = 1
    a = Asm2()
    kd = km(a, OPT)
    hdr = open('adaLN_cond__spectral_gfnet__glu_gated_geglu__prompt.s.ref').read().split('\n')[:13]
    s = '\n'.join(hdr) + '\n; @launch grid=(256,1,1) block=(768,1,1) lds=163840\n'
    s += '.amdgcn_target "amdgcn-amd-amdhsa--gfx950"\n.text\n' + a.text() + '.section .rodata,"a"\n' + kd
    open(out, 'w').write(s)
```
